```python
import torch

def _softmax(x, axis=-1):
    return torch.softmax(x, dim=axis)

def _gelu(x):
    return torch.nn.functional.gelu(x, approximate='tanh')

def _silu(x):
    return torch.nn.functional.silu(x)

def _sigmoid(x):
    return torch.sigmoid(x)

def _layernorm(x, axis=-1, eps=1e-05):
    m = x.mean(dim=axis, keepdim=True)
    v = x.var(dim=axis, keepdim=True, unbiased=False)
    return (x - m) / torch.sqrt(v + eps)

def _scatter_add(tgt, idx, src, axis=0):
    return tgt.clone().index_add_(axis, idx, src)

def _segment_sum(src, seg, n):
    out = torch.zeros((n,) + src.shape[1:], dtype=src.dtype)
    return out.index_add_(0, seg, src)

def _pad(x, pw):
    flat = tuple((v for pair in reversed(pw) for v in pair))
    return torch.nn.functional.pad(x, flat)
kernel_name = 'adaLN_cond__linear_kernel_hedgehog__moe_arch_mod__prompt'

def setup_inputs():

    _w = lambda a: (lambda t: t.to(torch.bfloat16) if t.is_floating_point() else t)(torch.as_tensor(a))

    def _A_setup():
        B, S, D, H = (1, 2048, 1024, 32)
        Dh = D // H
        return {'x': _w((lambda *s: torch.randn(*s, dtype=torch.bfloat16) * 0.05)(B, S, D)), 'wqkv': _w((lambda *s: torch.randn(*s, dtype=torch.bfloat16) * 0.4)(D, 3 * D)), 'w_phi': _w((lambda *s: torch.randn(*s, dtype=torch.bfloat16) * 0.4)(H, Dh, Dh) * Dh ** (-0.5)), 'wo': _w((lambda *s: torch.randn(*s, dtype=torch.bfloat16) * 0.05)(D, D))}
    _A_in = _A_setup()

    def _B_setup():
        B, S, D, F, C = (1, 2048, 1024, 3584, 2)
        return {'x': _w((lambda *s: torch.randn(*s, dtype=torch.bfloat16) * 0.05)(B, S, D)), 'w_r': _w((lambda *s: torch.randn(*s, dtype=torch.bfloat16) * 0.1)(D)), 'w_gate': _w((lambda *s: torch.randn(*s, dtype=torch.bfloat16) * 0.05)(D, F)), 'w_up': _w((lambda *s: torch.randn(*s, dtype=torch.bfloat16) * 0.05)(D, F)), 'w_down': _w((lambda *s: torch.randn(*s, dtype=torch.bfloat16) * 0.05)(F, D))}
    _B_in = _B_setup()
    return {'A_x': _A_in['x'], 'A_wqkv': _A_in['wqkv'], 'A_w_phi': _A_in['w_phi'], 'A_wo': _A_in['wo'], 'B_x': _B_in['x'], 'B_w_r': _B_in['w_r'], 'B_w_gate': _B_in['w_gate'], 'B_w_up': _B_in['w_up'], 'B_w_down': _B_in['w_down'], 'c': _w((lambda *s: torch.randn(*s, dtype=torch.bfloat16) * 0.2)(1, 1024) * 8.0), 'w_mod': _w((lambda *s: torch.randn(*s, dtype=torch.bfloat16) * 0.2)(1024, 6 * 1024) * 1024 ** (-0.5) * 8.0)}

def reference(A_x, A_wqkv, A_w_phi, A_wo, B_x, B_w_r, B_w_gate, B_w_up, B_w_down, c, w_mod):

    def _A_ref(x, wqkv, w_phi, wo):
        B, S, D = x.shape
        H = 32
        Dh = D // H
        qkv = (lambda x, *d: x.permute(*d))((x @ wqkv).reshape(B, S, 3, H, Dh), 2, 0, 3, 1, 4)
        q, k, v = (qkv[0], qkv[1], qkv[2])
        pq = torch.einsum('bhsd,hdf->bhsf', q, w_phi)
        pk = torch.einsum('bhsd,hdf->bhsf', k, w_phi)
        phi_q = torch.concatenate([_softmax(pq, axis=-1), _softmax(-pq, axis=-1)], axis=-1)
        phi_k = torch.concatenate([_softmax(pk, axis=-1), _softmax(-pk, axis=-1)], axis=-1)
        kv = torch.einsum('bhsf,bhsd->bhfd', phi_k, v)
        z = torch.einsum('bhsf->bhf', phi_k)
        num = torch.einsum('bhqf,bhfd->bhqd', phi_q, kv)
        den = torch.einsum('bhqf,bhf->bhq', phi_q, z)[..., None] + 1e-06
        o = num / den
        return (lambda x, *d: x.permute(*d))(o, 0, 2, 1, 3).reshape(B, S, D) @ wo

    def _B_ref(x, w_r, w_gate, w_up, w_down):
        B, S, D = x.shape
        C = 2
        r = x @ w_r
        idx = torch.argsort(-r, axis=-1)[:, :C]
        idx_e = (lambda x, n, axis: torch.repeat_interleave(x, n, dim=axis))(idx.reshape(B, C, 1), D, axis=2)
        x_sel = (lambda x, i, axis: torch.take_along_dim(x, i, dim=axis))(x, idx_e, axis=1)
        g = _silu(x_sel @ w_gate)
        u = x_sel @ w_up
        y = g * u @ w_down
        r_sel = _sigmoid((lambda x, i, axis: torch.take_along_dim(x, i, dim=axis))(r, idx, axis=1))
        y = y * r_sel.reshape(B, C, 1)
        b_off = (torch.arange(B) * S).reshape(B, 1)
        flat_idx = (idx + b_off).reshape(B * C)
        zero = (x * 0.0).reshape(B * S, D)
        upd = _scatter_add(zero, flat_idx, y.reshape(B * C, D), axis=0)
        return x + upd.reshape(B, S, D)
    x = A_x
    mod = (_silu(c) @ w_mod).reshape(c.shape[0], 6, 1, -1)
    sa, ca, ga, sb, cb, gb = (mod[:, 0].clone(), mod[:, 1].clone(), mod[:, 2].clone(), mod[:, 3].clone(), mod[:, 4].clone(), mod[:, 5].clone())
    h = _layernorm(x, axis=-1) * (1 + ca) + sa
    x = x + ga * _A_ref(h, A_wqkv, A_w_phi, A_wo)
    h = _layernorm(x, axis=-1) * (1 + cb) + sb
    x = x + gb * _B_ref(h, B_w_r, B_w_gate, B_w_up, B_w_down)
    return x
```

```python
import re

TRANS = ('v_exp_f32','v_log_f32','v_rcp_f32','v_rsq_f32','v_sqrt_f32','v_sin_f32','v_cos_f32','v_rcp_iflag_f32',
         'v_rcp_f64','v_rsq_f64','v_sqrt_f64','v_exp_f16','v_rcp_f16')

def _regs(tok):
    tok = tok.strip()
    neg = tok.lstrip('-')
    m = re.fullmatch(r'(?:abs\(|\|)?([vas])(\d+)(?:\)|\|)?', neg)
    if m: return [(m.group(1), int(m.group(2)))]
    m = re.fullmatch(r'(?:abs\(|\|)?([vas])\[(\d+):(\d+)\](?:\)|\|)?', neg)
    if m: return [(m.group(1), i) for i in range(int(m.group(2)), int(m.group(3)) + 1)]
    if neg == 'vcc': return [('s', 'vcc_lo'), ('s', 'vcc_hi')]
    if neg in ('vcc_lo', 'vcc_hi'): return [('s', neg)]
    if neg == 'exec': return [('s', 'exec_lo'), ('s', 'exec_hi')]
    if neg in ('exec_lo', 'exec_hi'): return [('s', neg)]
    if neg == 'm0': return [('s', 'm0')]
    return []

def _split_ops(s):
    ops, depth, cur = [], 0, ''
    for ch in s:
        if ch in '[(': depth += 1
        if ch in '])': depth -= 1
        if ch == ',' and depth == 0:
            ops.append(cur.strip()); cur = ''
        else:
            cur += ch
    if cur.strip(): ops.append(cur.strip())
    return ops

class Ins:
    __slots__ = ('text','mn','ops','mods','dst','src','cls','passes','srcC','srcAB','lds_dma','wide_store_data')
    def __init__(self, text):
        self.text = text
        t = text.split(';')[0].split('//')[0].strip()
        parts = t.split(None, 1)
        self.mn = mn = parts[0]
        rest = parts[1] if len(parts) > 1 else ''
        ops = _split_ops(rest)
        mods = ''
        if ops:
            last = ops[-1].split(None, 1)
            if len(last) > 1 and not ops[-1].startswith('hwreg') :
                ops[-1] = last[0]; mods = last[1]
        self.ops, self.mods = ops, mods
        self.dst, self.src = [], []
        self.passes = 0; self.srcC = []; self.srcAB = []; self.lds_dma = False; self.wide_store_data = []
        R = [_regs(o) for o in ops]
        base = re.sub(r'_(e32|e64|dpp|sdwa)$', '', mn)
        if mn.startswith('v_mfma') or mn.startswith('v_smfma'):
            self.cls = 'mfma'
            self.passes = 8 if '32x32' in mn else 4
            if mn in ('v_mfma_f32_32x32x2_f32',): self.passes = 16
            if mn in ('v_mfma_f32_16x16x4_f32',): self.passes = 8
            self.dst = R[0]; self.srcAB = R[1] + R[2]; self.srcC = R[3]; self.src = self.srcAB + self.srcC
        elif mn.startswith('v_'):
            self.cls = 'valu'
            if base.startswith('v_cmpx'):
                self.dst = R[0] + _regs('exec'); self.src = sum(R[1:], [])
            elif base.startswith('v_cmp'):
                self.dst = R[0]; self.src = sum(R[1:], [])
            elif base in ('v_add_co_u32','v_sub_co_u32','v_subrev_co_u32','v_addc_co_u32','v_subb_co_u32','v_div_scale_f32','v_mad_u64_u32'):
                self.dst = R[0] + R[1]; self.src = sum(R[2:], [])
            elif base.startswith('v_permlane') and 'swap' in base or base == 'v_swap_b32':
                self.dst = R[0] + R[1]; self.src = R[0] + R[1]
            elif base == 'v_nop':
                pass
            else:
                self.dst = R[0]; self.src = sum(R[1:], [])
                if base in ('v_fmac_f32','v_dot2c_f32_bf16','v_pk_fmac_f16','v_writelane_b32','v_fmac_f64') or mn.endswith('_dpp') or 'row_' in mods or 'quad_perm' in mods:
                    self.src = self.src + R[0]
                if base == 'v_div_fmas_f32': self.src = self.src + _regs('vcc')
                if base == 'v_cndmask_b32' and len(ops) == 3: self.src = self.src + _regs('vcc')
        elif mn.startswith('ds_'):
            self.cls = 'ds'
            if mn.startswith('ds_read') or mn.startswith('ds_bpermute') or mn.startswith('ds_permute') or mn.startswith('ds_swizzle') or '_rtn' in mn:
                self.dst = R[0]; self.src = sum(R[1:], [])
            else:
                self.src = sum(R, [])
        elif mn.startswith(('buffer_', 'global_', 'flat_')):
            self.cls = 'vmem'
            allmods = ' ' + mods + ' '
            if mn in ('buffer_inv', 'buffer_wbl2'):
                pass
            elif '_lds_' in mn or ' lds ' in allmods:
                self.lds_dma = True; self.src = sum(R, []) + _regs('m0')
            elif '_load' in mn:
                self.dst = R[0]; self.src = sum(R[1:], [])
            elif '_atomic' in mn:
                ret = ' sc0 ' in allmods
                if mn.startswith('buffer_'):
                    self.src = sum(R, []); self.dst = R[0] if ret else []
                else:
                    if ret: self.dst = R[0]; self.src = sum(R[1:], [])
                    else: self.src = sum(R, [])
            else:
                self.src = sum(R, [])
                if 'x3' in mn or 'x4' in mn:
                    self.wide_store_data = R[0] if mn.startswith('buffer_') else R[1]
        elif mn.startswith(('s_load', 's_buffer_load', 's_memtime', 's_memrealtime', 's_atomic')):
            self.cls = 'smem'
            self.dst = R[0]; self.src = sum(R[1:], [])
        elif mn.startswith('s_'):
            self.cls = 'salu'
            if mn.startswith(('s_cmp', 's_cbranch', 's_branch', 's_waitcnt', 's_nop', 's_barrier', 's_endpgm', 's_sleep', 's_setprio', 's_bitcmp', 's_setpc', 's_setreg')):
                self.src = sum(R, [])
            else:
                self.dst = R[0] if R else []; self.src = sum(R[1:], [])
                if 'saveexec' in mn: self.dst = self.dst + _regs('exec'); self.src = self.src + _regs('exec')
                if mn in ('s_addk_i32','s_mulk_i32','s_cmov_b32','s_cmov_b64'): self.src = self.src + R[0]
        else:
            raise ValueError('unknown instr: ' + text)
    @property
    def is_dpp(self): return self.cls == 'valu' and (self.mn.endswith('_dpp') or 'row_' in self.mods or 'quad_perm' in self.mods)
    @property
    def is_trans(self): return re.sub(r'_(e32|e64)$', '', self.mn) in TRANS
    @property
    def states(self):
        if self.mn == 's_nop': return int(self.ops[0], 0) + 1
        return 1

def need_states(p, c):
    n = 0
    pd, cs, cd = set(p.dst), set(c.src), set(c.dst)
    vd = {r for r in pd if r[0] in 'va'}
    sd = {r for r in pd if r[0] == 's'}
    cb = re.sub(r'_(e32|e64|dpp|sdwa)$', '', c.mn)
    if p.cls == 'valu':
        if cb in ('v_readlane_b32', 'v_readfirstlane_b32') and vd & cs: n = max(n, 1)
        if c.is_dpp and vd & cs: n = max(n, 2)
        if cb.startswith('v_permlane') and vd & cs: n = max(n, 2)
        if p.is_trans and c.cls in ('valu',) and not c.is_trans and vd & cs: n = max(n, 1)
        if c.cls == 'mfma' and vd & cs: n = max(n, 2)
        if p.mn.startswith('v_dot') and vd & (cs | cd):
            srcab = set(_regs(c.ops[1]) + _regs(c.ops[2])) if len(c.ops) > 2 else cs
            if not (c.mn == p.mn and not (vd & srcab)): n = max(n, 3)
        if sd & cs:
            if c.cls == 'valu':
                n = max(n, 2)
                if cb in ('v_readlane_b32', 'v_writelane_b32', 'v_div_fmas_f32'): n = max(n, 4)
            if c.cls == 'vmem': n = max(n, 5)
            if c.cls in ('salu', 'smem'): n = max(n, 1)
        if ('s', 'exec_lo') in pd:
            if c.is_dpp: n = max(n, 5)
            if c.cls == 'mfma' or cb.startswith('v_permlane') or cb in ('v_readlane_b32','v_readfirstlane_b32','v_writelane_b32'): n = max(n, 4)
        if ('dst_sel:WORD' in p.mods or 'dst_sel:BYTE' in p.mods) and c.cls == 'valu' and (vd & (cs | cd)): n = max(n, 1)
    if p.cls == 'salu' and ('s', 'm0') in pd and (c.lds_dma or 'addtid' in c.mn or c.mn.startswith('s_movrel')): n = max(n, 1)
    if p.wide_store_data:
        w = set(p.wide_store_data)
        if w & cd: n = max(n, 2 if c.cls in ('valu', 'mfma') else 1)
    if p.cls == 'mfma':
        k = {2: 0, 4: 1, 8: 2, 16: 3}[p.passes]
        if c.cls == 'mfma':
            cC = set(c.srcC)
            if vd & cC:
                if c.srcC == p.dst and c.passes == p.passes: n = max(n, [2, 0, 0, 0][k])
                else: n = max(n, [4, 6, 10, 18][k])
            if vd & set(c.srcAB): n = max(n, [5, 8, 12, 20][k])
            if vd & cd and not (vd & cC): n = max(n, [5, 8, 12, 20][k])
        else:
            if vd & (cs | cd): n = max(n, [5, 8, 12, 20][k])
            if c.cls == 'valu' and set(p.srcC) & cd: n = max(n, [1, 3, 7, 15][k])
    return n

MAXLOOK = 21

class Asm:
    def __init__(self):
        self.items = []
        self.nlab = 0
    def __call__(self, text):
        for line in text.split('\n'):
            s = line.strip()
            if not s: continue
            if s.startswith(';') or s.startswith('.'):
                self.items.append(('raw', s))
            elif s.endswith(':'):
                self.items.append(('label', s[:-1]))
            else:
                self.items.append(('ins', Ins(s)))
    def label(self, base='L'):
        self.nlab += 1
        return f'{base}_{self.nlab}'
    def fix_hazards(self, verbose=False):
        items = self.items
        jumps = {}
        for i, x in enumerate(items):
            if x[0] == 'ins' and x[1].mn.startswith(('s_branch', 's_cbranch')):
                jumps.setdefault(x[1].ops[0], []).append(i)
        extra = [0] * len(items)
        total = 0
        for i, (kind, c) in enumerate(items):
            if kind != 'ins': continue
            worst = 0
            stack = [(i - 1, 0, False)]
            seen = set()
            while stack:
                j, dist, viajump = stack.pop()
                while j >= 0 and dist < MAXLOOK:
                    if (j, dist, viajump) in seen: break
                    seen.add((j, dist, viajump))
                    k2, val = items[j]
                    if k2 == 'label':
                        for src in jumps.get(val, []): stack.append((src, dist, True))
                        j -= 1; viajump = False; continue
                    if k2 == 'raw':
                        j -= 1; continue
                    p = val
                    if not viajump and p.mn in ('s_endpgm', 's_branch', 's_setpc_b64'): break
                    viajump = False
                    nn = need_states(p, c)
                    if nn - dist > worst: worst = nn - dist
                    dist += p.states + extra[j]
                    j -= 1
            if worst > 0:
                extra[i] = worst; total += worst
                if verbose: print('hazard pad', worst, 'before', c.text)
        out = []
        for i, x in enumerate(items):
            w = extra[i]
            while w > 0:
                k = min(w, 16); out.append(('ins', Ins(f's_nop {k-1}'))); w -= k
            out.append(x)
        self.items = out
        return total
    def check_waits(self, entries, maxvisit=4):
        items = self.items
        labpos = {x[1]: i for i, x in enumerate(items) if x[0] == 'label'}
        errs = {}
        visits = {}
        stack = [(labpos[e], (), ()) for e in entries]
        while stack:
            i, vm, lg = stack.pop()
            while i < len(items):
                kind, c = items[i]
                if kind == 'label':
                    key = (i, vm, lg)
                    if key in visits: break
                    visits[key] = 1
                    visits[i] = visits.get(i, 0) + 1
                    if visits[i] > maxvisit: break
                    i += 1; continue
                if kind == 'raw': i += 1; continue
                if c.mn == 's_waitcnt':
                    t = c.text.split(';')[0]
                    m = re.search(r'vmcnt\((\d+)\)', t)
                    if m:
                        n = int(m.group(1)); vm = vm[max(0, len(vm) - n):] if n > 0 else ()
                    m = re.search(r'lgkmcnt\((\d+)\)', t)
                    if m:
                        n = int(m.group(1))
                        if n == 0: lg = ()
                        elif not any(items[q][1].cls == 'smem' for q in lg): lg = lg[max(0, len(lg) - n):]
                    i += 1; continue
                if 'nowait' in c.text: i += 1; continue
                touched = set(c.src) | set(c.dst)
                for q in vm:
                    pd = set(items[q][1].dst)
                    bad = pd & (set(c.src) if c.cls == 'vmem' else touched)
                    if bad: errs[(i, q)] = f'vmcnt: "{c.text}" touches {sorted(bad, key=str)[:4]} pending from "{items[q][1].text}"'
                for q in lg:
                    pd = set(items[q][1].dst)
                    same = (c.cls == 'ds' and items[q][1].cls == 'ds')
                    bad = pd & (set(c.src) if same else touched)
                    if bad: errs[(i, q)] = f'lgkmcnt: "{c.text}" touches {sorted(bad, key=str)[:4]} pending from "{items[q][1].text}"'
                if c.cls == 'vmem':
                    vm = vm + (i,)
                    if len(vm) > 63: errs[(i, -1)] = f'vmcnt overflow (>63 outstanding) at "{c.text}"'; vm = vm[-63:]
                if c.cls in ('ds', 'smem'):
                    lg = lg + (i,)
                    if len(lg) > 40: lg = lg[-40:]
                if c.mn == 's_endpgm' or c.mn == 's_setpc_b64': break
                if c.mn == 's_branch': i = labpos[c.ops[0]]; continue
                if c.mn.startswith('s_cbranch'): stack.append((labpos[c.ops[0]], vm, lg))
                i += 1
        return list(errs.values())
    def text(self):
        out = []
        for k, v in self.items:
            if k == 'ins': out.append('    ' + v.text)
            elif k == 'label': out.append(v + ':')
            else: out.append(v)
        return '\n'.join(out) + '\n'


def kernel_header(name):
    return f""".globl {name}
.p2align 8
.type {name},@function
{name}:
"""

def kernel_desc(name, vgpr, sgpr=102, accum=None, wgy=False):
    if accum is None: accum = (min(vgpr, 256) + 3) // 4 * 4
    return f""".p2align 6
.amdhsa_kernel {name}
  .amdhsa_next_free_vgpr {vgpr}
  .amdhsa_next_free_sgpr {sgpr}
  .amdhsa_accum_offset {accum}
  .amdhsa_group_segment_fixed_size 0
  .amdhsa_kernarg_size 112
  .amdhsa_user_sgpr_count 2
  .amdhsa_user_sgpr_kernarg_segment_ptr 1
  .amdhsa_system_sgpr_workgroup_id_x 1
  .amdhsa_float_denorm_mode_32 3
  .amdhsa_float_denorm_mode_16_64 3
.end_amdhsa_kernel
"""


class RegAlloc:
    def __init__(self, n, start=0):
        self.free = [True] * n
        for i in range(start): self.free[i] = False
        self.hi = start
        self.names = {}
    def alloc(self, n=1, align=None, name=None):
        if align is None: align = 1 if n == 1 else (2 if n == 2 else 4)
        i = 0
        while i + n <= len(self.free):
            if i % align == 0 and all(self.free[i:i + n]):
                for k in range(i, i + n): self.free[k] = False
                self.hi = max(self.hi, i + n)
                return i
            i += 1
        raise RuntimeError(f'out of registers allocating {n} ({name})')
    def release(self, base, n=1):
        for k in range(base, base + n):
            assert not self.free[k], f'double free {k}'
            self.free[k] = True

class Counter:
    def __init__(self, a, name, maxn):
        self.a, self.name, self.maxn = a, name, maxn
        self.q = []
    def issue(self, tag=None):
        self.q.append(tag)
    def wait(self, tag):
        idx = [i for i, t in enumerate(self.q) if t == tag]
        if not idx: return
        n = len(self.q) - 1 - idx[-1]
        n = min(n, self.maxn)
        self.a(f's_waitcnt {self.name}({n})')
        self.q = self.q[len(self.q) - n:] if n > 0 else []
    def wait_all(self):
        self.a(f's_waitcnt {self.name}(0)')
        self.q = []
    def reset(self): self.q = []

def vr(b, n=1): return f'v{b}' if n == 1 else f'v[{b}:{b+n-1}]'
def sr(b, n=1): return f's{b}' if n == 1 else f's[{b}:{b+n-1}]'


import ast as _ast
class SExpr:
    OPS = {_ast.Add: 's_add_u32', _ast.Sub: 's_sub_u32', _ast.Mult: 's_mul_i32', _ast.LShift: 's_lshl_b32', _ast.RShift: 's_lshr_b32',
           _ast.BitAnd: 's_and_b32', _ast.BitOr: 's_or_b32', _ast.BitXor: 's_xor_b32'}
    PY = {_ast.Add: lambda a, b: a + b, _ast.Sub: lambda a, b: a - b, _ast.Mult: lambda a, b: a * b, _ast.LShift: lambda a, b: a << b,
          _ast.RShift: lambda a, b: a >> b, _ast.BitAnd: lambda a, b: a & b, _ast.BitOr: lambda a, b: a | b, _ast.BitXor: lambda a, b: a ^ b}
    def __init__(self, a, env, consts, temps):
        self.a, self.env, self.consts, self.temps = a, env, consts, list(temps)
    def __call__(self, dst, expr, **kw):
        self.kw = kw
        self.free = list(self.temps)
        tree = _ast.parse(expr, mode='eval').body
        r = self._ev(tree, dst)
        d = dst if isinstance(dst, str) else f's{dst}'
        if r != d: self.a(f's_mov_b32 {d}, {r}')
    def _fold(self, n):
        if isinstance(n, _ast.Constant): return n.value
        if isinstance(n, _ast.Name):
            if n.id in self.kw: return self.kw[n.id]
            if n.id in self.consts: return self.consts[n.id]
            return None
        if isinstance(n, _ast.BinOp):
            l, r = self._fold(n.left), self._fold(n.right)
            if l is not None and r is not None: return self.PY[type(n.op)](l, r)
        return None
    def _ev(self, n, dst=None):
        c = self._fold(n)
        if c is not None: return str(c & 0xffffffff) if c < -16 or c > 64 else str(c)
        if isinstance(n, _ast.Name): return f's{self.env[n.id]}'
        assert isinstance(n, _ast.BinOp), _ast.dump(n)
        op = type(n.op)
        rc, lc = self._fold(n.right), self._fold(n.left)
        if rc == 0 and op in (_ast.Add, _ast.Sub, _ast.LShift, _ast.RShift, _ast.BitOr, _ast.BitXor): return self._ev(n.left, dst)
        if lc == 0 and op in (_ast.Add, _ast.BitOr, _ast.BitXor): return self._ev(n.right, dst)
        if rc == 1 and op is _ast.Mult: return self._ev(n.left, dst)
        mn = self.OPS[op]
        left, right = n.left, n.right
        if op is _ast.Add:
            for x, y in ((left, right), (right, left)):
                if isinstance(x, _ast.BinOp) and self._fold(x) is None:
                    k = None
                    if isinstance(x.op, _ast.Mult) and self._fold(x.right) in (2, 4, 8, 16): k = self._fold(x.right).bit_length() - 1
                    if isinstance(x.op, _ast.LShift) and self._fold(x.right) in (1, 2, 3, 4): k = self._fold(x.right)
                    if k: mn = f's_lshl{k}_add_u32'; left, right = x.left, y; break
        if op is _ast.BitAnd and rc is not None and (rc & (rc + 1)) == 0 and isinstance(left, _ast.BinOp) and isinstance(left.op, _ast.RShift) and self._fold(left.right) is not None:
            mn = 's_bfe_u32'; right = _ast.Constant(self._fold(left.right) | (rc.bit_length() << 16)); left = left.left
        if op is _ast.Mult and rc is not None and rc & (rc - 1) == 0:
            mn = 's_lshl_b32'; right = _ast.Constant(rc.bit_length() - 1)
        l = self._ev(left); r = self._ev(right)
        for t in (l, r):
            if t.startswith('s') and t[1:].isdigit() and int(t[1:]) in self.temps and int(t[1:]) not in self.free: self.free.append(int(t[1:]))
        if dst is None: d = f's{self.free.pop(0)}'
        else: d = dst if isinstance(dst, str) else f's{dst}'
        self.a(f'{mn} {d}, {l}, {r}')
        return d
```

```python
import sys, os
sys.path.insert(0, os.path.dirname(os.path.abspath(__file__)))
from asm import *

NAME = 'adaLN_cond__linear_kernel_hedgehog__moe_arch_mod__prompt_kernel'

NONCE = 0x0
MODF = 0x010000
MODP2 = 0x020000
SINB = 0x040000
AINB = 0x080000
INB = 0x100000
HF = 0x400000
OF = 0x800000
X1F = 0xC00000
H2 = 0x2000000
HGR = 0x1400000
ZP = 0x1480000
GGR = 0x1500000
KVP = 0x1800000
KIN = 0x1C00000
STAMPS = 0x1600000
WS_BYTES = 268435456

SLOT = 24576
SCR = 147456
L_A1 = SCR
L_M2 = SCR + 2048
L_WPHI = SCR + 12288
L_ST = SCR + 6144
L_MP = SCR + 8192
L_XF = SCR
L_PHK = 0
L_V = 32768
WO_H0 = 32768
WO_H1 = 98304
GS = 0
L_KVF = GS
L_ZF = GS + 8192
L_EXCH = GS
L_XT = GS
L_MODL = GS + 16640
L_KEY = GS + 24832
L_K1 = GS + 24896
L_K2 = GS + 24960
L_ACT = GS + 25088
L_GU = 32768
L_DN = 98304
L_XS = 131072

SPIN_LIMIT = 200000

sWAVE, sTAG, sSPIN, sMASK, sL2E = 3, 4, 5, 6, 7
sX, sJ, sR1, sHP, sCB = 8, 9, 10, 11, 12
T0, T1, T2, T3, T4, T5, T6, T7 = 13, 14, 15, 16, 17, 18, 19, 20
sRT = 21
sCMP = 22
sPL = 24
rWS, rX, rW, rWO, rWM, rWG, rWU, rWD, rOUT = 32, 36, 40, 44, 48, 52, 56, 60, 64
KA = 68
pWPHI, pWR, pC = KA + 4, KA + 10, KA + 18
sK1, sK2, sROW0, sROW1, sFS, sKQ, sKH, sKF = 68, 69, 70, 71, 74, 75, 76, 77
sFG, sFD, sU, sROT, sWB, sU0 = 80, 81, 82, 83, 84, 85
sWO2, sW1K, sMF = 88, 89, 90
sINB, sRow, sGTB, sC32 = 92, 93, 94, 95
XT = (96, 97, 98, 99)
sTM = 100
ENV = dict(wg=2, w=sWAVE, x=sX, j=sJ, r1=sR1, hp=sHP, cb=sCB, rt=sRT, row=sRow, gtb=sGTB, c32=sC32, kh=sKH, kf=sKF, fs=sFS, kq=sKQ,
           rot=sROT, wb=sWB, u0=sU0, wo2=sWO2, w1k=sW1K, mf=sMF, u=sU, fg=sFG, fd=sFD, T0=T0, T1=T1, T2=T2, T3=T3, T4=T4, T5=T5, T6=T6, T7=T7, row0=sROW0, row1=sROW1)


class Gen:
    def __init__(self, prof=False, opts=None):
        self.a = Asm()
        self.vm = Counter(self.a, 'vmcnt', 63)
        self.lg = Counter(self.a, 'lgkmcnt', 15)
        self.V = RegAlloc(254, 1)
        self.prof = prof
        self.nopk = False
        self.nst = 0
        self.stnames = []
        self.S = SExpr(self.a, ENV, {k: v for k, v in globals().items() if isinstance(v, int) and k.isupper() and k not in ENV}, XT)
        self.o = dict(AD=12, AD2=4, wburst=(2, 1, 3, 0, 6, 3), LASTB=13,
                      sched={1: 'm1 p2', 2: 's4', 3: 'm1 s4', 4: 'p2', 5: 'm1 g2', 7: 'm1 g2 p3', 9: 'g2 q', 10: 'g2', 11: 'r', 12: 'P', 14: 'o4 f4', 15: 'f2'}, fdma=(1, 4, 1), wowin=(2, 4, 3))
        if opts: self.o.update(opts)

    def bl(self, dst, n, voff, srd, soff, imm=0, mods='', tag=None):
        op = {1: 'dword', 2: 'dwordx2', 4: 'dwordx4'}[n]
        so = soff if isinstance(soff, str) else (sr(soff))
        self.a(f'buffer_load_{op} {vr(dst, n)}, v{voff}, {sr(srd, 4)}, {so} offen' + (f' offset:{imm}' if imm else '') + (' ' + mods if mods else ''))
        self.vm.issue(tag)
    def bs(self, src, n, voff, srd, soff, imm=0, mods='', tag=None, count=True):
        op = {1: 'dword', 2: 'dwordx2', 4: 'dwordx4'}[n]
        so = soff if isinstance(soff, str) else (sr(soff))
        self.a(f'buffer_store_{op} {vr(src, n)}, v{voff}, {sr(srd, 4)}, {so} offen' + (f' offset:{imm}' if imm else '') + (' ' + mods if mods else ''))
        if count: self.vm.issue(tag)
    def dma(self, voff, srd, soff, imm=0, mods='', tag=None):
        self.a(f'buffer_load_dwordx4 v{voff}, {sr(srd, 4)}, {sr(soff)} offen' + (f' offset:{imm}' if imm else '') + (' ' + mods if mods else '') + ' lds')
        self.vm.issue(tag)
    def dr(self, op, dst, n, addr, off=0, tag=None):
        assert 0 <= off < 65536, off
        self.a(f'{op} {vr(dst, n)}, v{addr}' + (f' offset:{off}' if off else ''))
        self.lg.issue(tag)
    def tr(self, dst, addr, off, tag=None): self.dr('ds_read_b64_tr_b16', dst, 2, addr, off, tag)
    def r128(self, dst, addr, off=0, tag=None): self.dr('ds_read_b128', dst, 4, addr, off, tag)
    def dw(self, op, addr, src, n, off=0, tag=None):
        assert 0 <= off < 65536, off
        self.a(f'{op} v{addr}, {vr(src, n)}' + (f' offset:{off}' if off else ''))
        self.lg.issue(tag)
    def barrier(self):
        self.lg.wait_all()
        self.a('s_barrier')
    def stamp(self, name):
        ex = self.o.get('exfil')
        if ex and name in ex[:2]:
            self.a(f's_memrealtime {sr(sTM, 2)}')
            self.lg.wait_all()
            self.a(f'v_writelane_b32 v255, s{sTM}, {1 + ex.index(name)}')
        if not self.prof: return
        only = self.o.get('only')
        if only and name not in only and name != 'end': return
        self.a(f's_memtime {sr(sTM, 2)}')
        self.a(f's_memrealtime s[0:1]')
        self.lg.wait_all()
        self.a(f'v_writelane_b32 v255, s{sTM}, {self.nst}')
        self.a(f'v_writelane_b32 v254, s0, {self.nst}')
        self.stnames.append(name)
        self.nst += 1
        assert self.nst <= 60
    def unpack(self, lo, hi, src):
        self.a(f'v_lshlrev_b32 v{lo}, 16, v{src}')
        self.a(f'v_and_b32 v{hi}, s{sMASK}, v{src}')
    def round1(self, r):
        self.a(f'v_cvt_pk_bf16_f32 v{r}, 0, v{r}')
    def round2(self, r0, r1):
        self.round1(r0); self.round1(r1)
    def round_list(self, regs):
        for r in regs: self.round1(r)
    def pk(self, op, d, s0, s1, s2=None, bc=(), neg=()):
        srcs = [s0, s1] + ([s2] if s2 is not None else [])
        if self.nopk:
            for h in range(2):
                t = []
                for k, r in enumerate(srcs):
                    kind, n = r if isinstance(r, tuple) else ('v', r)
                    t.append(('-' if k in neg else '') + f'{kind}{n if k in bc else n + h}')
                e64 = '' if op == 'fma' else ('_e64' if (neg or t[1][0] == 's') else '')
                self.a(f'v_{op}_f32{e64} v{d+h}, ' + ', '.join(t))
            return
        txt, sel, selhi = [], [], []
        for k, r in enumerate(srcs):
            kind, n = r if isinstance(r, tuple) else ('v', r)
            if k in bc:
                txt.append(f'{kind}[{n & ~1}:{(n & ~1) + 1}]'); sel.append(n & 1); selhi.append(n & 1)
            else:
                assert n % 2 == 0
                txt.append(f'{kind}[{n}:{n+1}]'); sel.append(0); selhi.append(1)
        assert d % 2 == 0
        m = ''
        if any(sel): m += ' op_sel:[' + ','.join(map(str, sel)) + ']'
        if not all(selhi): m += ' op_sel_hi:[' + ','.join(map(str, selhi)) + ']'
        if neg:
            ng = ','.join('1' if k in neg else '0' for k in range(len(srcs)))
            m += f' neg_lo:[{ng}] neg_hi:[{ng}]'
        self.a(f'v_pk_{op}_f32 v[{d}:{d+1}], ' + ', '.join(txt) + m)
    def dpp(self, op, d, s0, s1, ctl):
        self.a(f'{op}_dpp v{d}, v{s0}, v{s1} {ctl} row_mask:0xf bank_mask:0xf')
    def allreduce(self, v, t, op='v_add_f32', lo=True, b3=True):
        if lo:
            self.dpp(op, v, v, v, 'quad_perm:[1,0,3,2]')
            self.dpp(op, v, v, v, 'quad_perm:[2,3,0,1]')
            self.dpp(op, v, v, v, 'row_half_mirror')
        self.dpp(op, v, v, v, 'row_ror:8')
        self.a(f'v_mov_b32 v{t}, v{v}')
        self.a(f'v_permlane16_swap_b32 v{v}, v{t}')
        self.a(f'{op} v{v}, v{v}, v{t}')
        self.a(f'v_mov_b32 v{t}, v{v}')
        self.a(f'v_permlane32_swap_b32 v{v}, v{t}')
        self.a(f'{op} v{v}, v{v}, v{t}')
    def poll(self, loads, tagregs, tmp=None):
        a = self.a
        L, D = a.label('POLL'), a.label('PDONE')
        a(f'{L}:')
        loads()
        self.vm.wait_all()
        if len(tagregs) == 1:
            a(f'v_cmp_ne_u32 vcc, s{sTAG}, v{tagregs[0]}')
        else:
            a(f'v_bitop3_b32 v{tmp}, v{tagregs[0]}, v{tagregs[1]}, s{sTAG} bitop3:0x7e')
            for t in tagregs[2:]: a(f'v_bitop3_b32 v{tmp}, v{tmp}, v{t}, s{sTAG} bitop3:0xf6')
            a(f'v_cmp_ne_u32 vcc, 0, v{tmp}')
        a(f's_cbranch_vccz {D}')
        a(f's_add_u32 s{sSPIN}, s{sSPIN}, 1')
        a(f's_cmp_lt_u32 s{sSPIN}, {SPIN_LIMIT}')
        a(f's_cbranch_scc1 {L}')
        a(f'{D}:')
    def weave(self, fn, extras):
        a = self.a
        keep = a.items; a.items = []
        fn()
        body = a.items; a.items = keep
        extras = list(extras); n = len(extras)
        for i, it in enumerate(body):
            while extras and (n - len(extras)) * len(body) <= i * n: extras.pop(0)()
            a.items.append(it)
        for e in extras: e()
    def tagcheck(self, tagregs, tmp):
        a = self.a
        if len(tagregs) == 1:
            a(f'v_cmp_ne_u32 vcc, s{sTAG}, v{tagregs[0]}')
        else:
            a(f'v_bitop3_b32 v{tmp}, v{tagregs[0]}, v{tagregs[1]}, s{sTAG} bitop3:0x7e')
            for t in tagregs[2:]: a(f'v_bitop3_b32 v{tmp}, v{tmp}, v{t}, s{sTAG} bitop3:0xf6')
            a(f'v_cmp_ne_u32 vcc, 0, v{tmp}')
    def try_load(self, loads, tagregs, tmp=None, between=None, pre=None):
        a = self.a
        n0 = len(self.vm.q)
        loads()
        self.vm.q[-1] = tg = ('try', a.label('T'))
        if between: between()
        self.vm.wait(tg)
        OK = a.label('TOK')
        self.tagcheck(tagregs, tmp)
        a(f's_cbranch_vccz {OK}')
        q, l = list(self.vm.q), list(self.lg.q)
        if pre: pre()
        self.poll(loads, tagregs, tmp)
        self.vm.q, self.lg.q = q, l
        a(f'{OK}:')
    def spoll(self, loads, checks, work=None):
        a = self.a
        L, C, D = a.label('SPOLL'), a.label('SCHK'), a.label('SDONE')
        def issue():
            for d, n, so, imm in loads:
                op = {1: 'dword', 2: 'dwordx2', 4: 'dwordx4', 8: 'dwordx8'}[n]
                a(f's_load_{op} {sr(sPL + d, n)}, {sr(rWS, 2)}, s{so} offset:{imm} glc')
        if work:
            issue(); work()
            a(f's_branch {C}')
        a(f'{L}:')
        issue()
        a(f'{C}:')
        a(f's_add_u32 s{sSPIN}, s{sSPIN}, 1')
        a(f's_cmp_ge_u32 s{sSPIN}, {SPIN_LIMIT}')
        self.lg.wait_all()
        a(f's_cbranch_scc1 {D}')
        for k in checks:
            a(f's_cmp_lg_u32 s{sPL + k}, s{sTAG}')
            a(f's_cbranch_scc1 {L}')
        a(f'{D}:')
    def inbox(self, box, n, checks=None, work=None):
        self.spoll([(0, n, sINB, box * 512)], range(n) if checks is None else checks, work)
    def va(self, dst, terms, sreg=None, const=0, tmp=None):
        a = self.a; vL = self.vL
        first = True
        for sh, bits, mult in terms:
            full = sh + bits >= 6
            src = vL
            t = dst if first else tmp
            if sh == 0 and full: pass
            elif full: a(f'v_lshrrev_b32 v{t}, {sh}, v{vL}'); src = t
            elif sh == 0: a(f'v_and_b32 v{t}, {(1 << bits) - 1}, v{vL}'); src = t
            else: a(f'v_bfe_u32 v{t}, v{vL}, {sh}, {bits}'); src = t
            p2 = mult & (mult - 1) == 0
            k = mult.bit_length() - 1
            if first:
                if p2 and sreg is not None: a(f'v_lshl_add_u32 v{dst}, v{src}, {k}, s{sreg}'); sreg = None
                elif p2 and k: a(f'v_lshlrev_b32 v{dst}, {k}, v{src}')
                elif p2:
                    if src != dst: a(f'v_mov_b32 v{dst}, v{src}')
                else: a(f'v_mul_u32_u24 v{dst}, {mult}, v{src}')
            else:
                assert p2
                a(f'v_lshl_add_u32 v{dst}, v{src}, {k}, v{dst}')
            first = False
        if sreg is not None: a(f'v_add_u32 v{dst}, s{sreg}, v{dst}')
        if const: a(f'v_add_u32 v{dst}, {const}, v{dst}')
    def push(self, vaddr, soff, nl, vtmp, lab, wave=0):
        a = self.a
        a(f's_cmp_lg_u32 s{sWAVE}, {wave}')
        a(f's_cbranch_scc1 {lab}')
        a(f'v_mov_b32 v{vtmp}, s{sTAG}')
        a(f's_mov_b32 exec_hi, 0')
        if nl < 32: a(f's_mov_b32 exec_lo, {(1 << nl) - 1}')
        self.bs(vtmp, 1, vaddr, rWS, soff, 0, 'sc1', count=False)
        a('s_mov_b64 exec, -1')
        a(f'{lab}:')
    def silu(self, v, t):
        a = self.a
        a(f'v_mul_f32 v{t}, s{sL2E}, v{v}')
        a(f'v_exp_f32 v{t}, -v{t}')
        a(f'v_add_f32 v{t}, 1.0, v{t}')
        a(f'v_rcp_f32 v{t}, v{t}')
        a(f'v_mul_f32 v{v}, v{v}, v{t}')
        self.round1(v)
    def gemv_ops(self, wregs, cregs, acc, t0, t1, packed):
        ops = []
        assert t0 % 2 == 0 and t1 == t0 + 1
        for i, (w, c) in enumerate(zip(wregs, cregs)):
            cp = f'v[{c & ~1}:{(c & ~1) + 1}]'
            for d in range(4):
                tt = t0 + 2 * (d & 1)
                ops.append(f'v_lshlrev_b32 v{tt}, 16, v{w+d}')
                ops.append(f'v_and_b32 v{tt+1}, s{sMASK}, v{w+d}')
                ac = f'v[{acc+2*d}:{acc+2*d+1}]'
                if not packed:
                    for h in range(2): ops.append(f'v_mul_f32 v{acc+2*d+h}, v{tt+h}, v{c}' if i == 0 else f'v_fmac_f32 v{acc+2*d+h}, v{tt+h}, v{c}')
                elif i == 0: ops.append(f'v_pk_mul_f32 {ac}, v[{tt}:{tt+1}], {cp} op_sel:[0,{c & 1}] op_sel_hi:[1,{c & 1}]')
                else: ops.append(f'v_pk_fma_f32 {ac}, v[{tt}:{tt+1}], {cp}, {ac} op_sel:[0,{c & 1},0] op_sel_hi:[1,{c & 1},1]')
        for i in range(4): ops.append(f'v_permlane32_swap_b32 v{acc+i}, v{acc+4+i}')
        for i in range(4): ops.append(f'v_add_f32 v{acc+i}, v{acc+i}, v{acc+4+i}')
        for i in range(2): ops.append(f'v_permlane16_swap_b32 v{acc+i}, v{acc+2+i}')
        for i in range(2): ops.append(f'v_add_f32 v{acc+i}, v{acc+i}, v{acc+2+i}')
        for i in range(2): ops.append(f'v_add_f32_dpp v{acc+i}, v{acc+i}, v{acc+i} row_ror:8 row_mask:0xf bank_mask:0xf')
        ops.append(f'v_mov_b32_dpp v{acc}, v{acc+1} quad_perm:[0,1,2,3] row_mask:0xf bank_mask:0xc')
        return ops
    def sum8(self, b):
        self.pk('add', b, b, b + 2); self.pk('add', b + 4, b + 4, b + 6); self.pk('add', b, b, b + 4)
        self.a(f'v_add_f32 v{b}, v{b}, v{b+1}')
    def softmax_pm(self, p, e, out, t, mid=None, part=0, split=0):
        a = self.a
        mx, mn, u0, u1, s0, s1 = t, t + 1, t + 2, t + 3, t + 4, t + 6
        if part != 2:
            self.round_list([p + i for i in range(16)])
            a(f'v_max3_f32 v{mx}, v{p}, v{p+1}, v{p+2}')
            a(f'v_min3_f32 v{mn}, v{p}, v{p+1}, v{p+2}')
            for i in range(3, 15, 2):
                a(f'v_max3_f32 v{mx}, v{mx}, v{p+i}, v{p+i+1}')
                a(f'v_min3_f32 v{mn}, v{mn}, v{p+i}, v{p+i+1}')
            a(f'v_max_f32 v{u0}, v{mx}, v{p+15}')
            a(f'v_min_f32 v{u1}, v{mn}, v{p+15}')
            a(f'v_max_f32 v{mx}, v{mx}, v{p+15}')
            a(f'v_min_f32 v{mn}, v{mn}, v{p+15}')
            a(f'v_permlane32_swap_b32 v{mx}, v{u0}')
            a(f'v_permlane32_swap_b32 v{mn}, v{u1}')
            a(f'v_max_f32 v{mx}, v{mx}, v{u0}')
            a(f'v_min_f32 v{mn}, v{mn}, v{u1}')
            self.pk('mul', mx, mx, ('s', sL2E), bc=(1,))
            for i in range(0, 16, 2):
                self.pk('fma', e + i, p + i, ('s', sL2E), mx, bc=(1, 2), neg=(2,))
                self.pk('fma', p + i, p + i, ('s', sL2E), mn, bc=(1, 2), neg=(0,))
        for i in range(split if part == 2 else 0, 16):
            if mid and i == mid[0]: mid[1]()
            if part == 1 and i == split: return
            a(f'v_exp_f32 v{e+i}, v{e+i}')
            a(f'v_exp_f32 v{p+i}, v{p+i}')
        self.pk('add', s0, e, e + 2); self.pk('add', s1, p, p + 2)
        for i in range(4, 16, 2):
            self.pk('add', s0, s0, e + i); self.pk('add', s1, s1, p + i)
        a(f'v_add_f32 v{u0}, v{s0}, v{s0+1}')
        a(f'v_add_f32 v{u1}, v{s1}, v{s1+1}')
        a(f'v_add_f32 v{mx}, v{s0}, v{s0+1}')
        a(f'v_add_f32 v{mn}, v{s1}, v{s1+1}')
        a(f'v_permlane32_swap_b32 v{mx}, v{u0}')
        a(f'v_permlane32_swap_b32 v{mn}, v{u1}')
        self.pk('add', mx, mx, u0)
        a(f'v_rcp_f32 v{mx}, v{mx}')
        a(f'v_rcp_f32 v{mn}, v{mn}')
        for i in range(0, 16, 2):
            self.pk('mul', e + i, e + i, mx, bc=(1,))
            self.pk('mul', p + i, p + i, mn, bc=(1,))
        for i in range(8):
            a(f'v_cvt_pk_bf16_f32 v{out+i}, v{e+2*i}, v{e+2*i+1}')
            a(f'v_cvt_pk_bf16_f32 v{out+8+i}, v{p+2*i}, v{p+2*i+1}')
    def ln_stats(self, xp, t, m_out, sd_out, fill=()):
        a = self.a
        fill = list(fill)
        def pad(n):
            for _ in range(n):
                if fill: a(fill.pop(0))
        s, u = t, t + 4
        a(f'v_mov_b32 v{u}, 0x3f803f80')
        for i in range(8):
            k = 2 * (i & 1)
            a(f'v_dot2_f32_bf16 v{s+k}, v{xp+i}, v{u}, ' + ('0' if i < 2 else f'v{s+k}'))
            a(f'v_dot2_f32_bf16 v{s+k+1}, v{xp+i}, v{xp+i}, ' + ('0' if i < 2 else f'v{s+k+1}'))
        pad(3)
        self.pk('add', s, s, s + 2)
        for ctl in ('quad_perm:[1,0,3,2]', 'quad_perm:[2,3,0,1]', 'row_half_mirror', 'row_ror:8'):
            pad(2 if ctl.endswith('3,2]') else 1)
            self.dpp('v_add_f32', s, s, s, ctl); self.dpp('v_add_f32', s + 1, s + 1, s + 1, ctl)
        pad(2)
        a(f'v_permlane16_swap_b32 v{s}, v{s+1}')
        a(f'v_add_f32 v{u}, v{s}, v{s+1}')
        a(f'v_add_f32 v{s}, v{s}, v{s+1}')
        pad(2)
        a(f'v_permlane32_swap_b32 v{s}, v{u}')
        a(f'v_add_f32 v{s}, v{s}, v{u}')
        a(f'v_mul_f32 v{u}, 0x3a800000, v{s}')
        a(f'v_mul_f32 v{s}, 0x3a800000, v{s}')
        pad(2)
        a(f'v_permlane16_swap_b32 v{s}, v{u}')
        a(f'v_fma_f32 v{sd_out}, -v{s}, v{s}, v{u}')
        a(f'v_cvt_pk_bf16_f32 v{m_out}, 0, v{s}')
        a(f'v_max_f32 v{sd_out}, 0, v{sd_out}')
        self.round1(sd_out)
        a(f'v_add_f32 v{sd_out}, 0x3727c5ac, v{sd_out}')
        self.round1(sd_out)
        a(f'v_sqrt_f32 v{sd_out}, v{sd_out}')
        pad(99)
        self.round1(sd_out)

    def build(self):
        a, V, vm, lg, o, S = self.a, self.V, self.vm, self.lg, self.o, self.S
        E2 = range(0, 16, 2)
        a(f'{NAME}:')
        a(f's_load_dwordx16 {sr(KA, 16)}, s[0:1], 0')
        a(f's_load_dwordx8 {sr(KA + 16, 8)}, s[0:1], 64')
        a(f's_load_dwordx2 {sr(rWS, 2)}, s[0:1], 104')
        a('s_cmp_ge_u32 s2, 256')
        a('s_cbranch_scc1 L_END')
        if self.prof:
            a(f's_memrealtime {sr(sCMP, 2)}')
            a(f's_memtime {sr(sTM, 2)}')
            a('v_mov_b32 v255, 0')
            a('v_mov_b32 v254, 0')
            self.stnames.append('start'); self.nst = 1
        if o.get('exfil'):
            a(f's_memrealtime {sr(sTM, 2)}')
        vL = self.vL = V.alloc()
        vL16 = V.alloc()
        vZ = V.alloc()
        vT = V.alloc(8)
        va = lambda dst, terms, sreg=None, const=0: self.va(dst, terms, sreg, const, vT + 5)
        a(f"""v_lshrrev_b32 v{vT}, 6, v0
        v_and_b32 v{vL}, 63, v0
        v_mov_b32 v{vZ}, 0
        v_readfirstlane_b32 s{sWAVE}, v{vT}
        v_lshlrev_b32 v{vL16}, 4, v{vL}""")
        for srd, size in ((rX, 4194304), (rWM, 12582912), (rWS, WS_BYTES), (rW, 6291456), (rWO, 2097152), (rWG, 7340032), (rWU, 7340032), (rWD, 7340032), (rOUT, 4194304)):
            a(f's_mov_b32 s{srd+2}, {size}')
            a(f's_mov_b32 s{srd+3}, 0x20000')
        a(f"""s_mov_b32 s{sSPIN}, 0
        s_mov_b32 s{sMASK}, 0xffff0000
        s_mov_b32 s{sL2E}, 0x3fb8aa3b""")
        S(sX, 'wg & 7'); S(sJ, 'wg >> 3')
        S(sRow, '(x*32 + j)*8 + w')
        S(sR1, '(x & 4)*2 + (j >> 2)'); S(sHP, '(x & 3)*4 + ((j & 3) ^ q)', q=o.get('hpx', 2))
        S(sCB, '(x & 1)*8 + (j & 7)')
        S(sRT, '(x >> 1)*4 + (j >> 3)')
        S(sGTB, 'rt*4 + (w & 3)')
        S(sC32, 'cb*2 + (w >> 2)')
        S(sINB, '(wg*64 + w)*64 + INB')
        xr = V.alloc(8); acc = V.alloc(8); wphi = V.alloc(8); fr = V.alloc(8); vq = V.alloc(8); vv = V.alloc(8)
        vWM = V.alloc(); vCo = V.alloc(); vWd = V.alloc(); vL8 = V.alloc(); vL32S = V.alloc(); vGA = V.alloc()
        vB = V.alloc(6, 1); vFG = V.alloc(); vFD = V.alloc(); vWo = V.alloc(); vPW = V.alloc(); vXF = V.alloc()
        vXT = vT + 6
        S(T3, 'row*2048')
        S(T2, '(x*8 + w)*32')
        S(T0, 'T2*6144 + (j ^ 1)*128'); S(T1, 'T0 + 8*12288')
        S(T5, 'gtb*65536 + c32*64')
        S(T4, '(((x >> 1)*16 + cb)*16 + w)*512 + AINB')
        va(vWM, [(3, 3, 12288), (0, 3, 16)])
        va(vCo, [(3, 3, 2)], T2)
        va(vXT, [(0, 5, 2048), (5, 1, 32)])
        a('s_waitcnt lgkmcnt(0)')
        if self.prof:
            a(f'v_writelane_b32 v255, s{sTM}, 0')
            a(f'v_writelane_b32 v255, s{sCMP}, 63')
            a(f'v_writelane_b32 v254, s{sCMP}, 0')
        if o.get('exfil'):
            for k in range(3): a(f'v_writelane_b32 v255, s{sTM}, {k}')
        self.stamp('karg')
        wm = V.alloc(8); cv = V.alloc(2); xs_raw = V.alloc(8)
        a(f's_mov_b64 {sr(rX, 2)}, {sr(KA, 2)}')
        self.bl(xs_raw, 4, vL16, rX, T3, 0, o.get('xsmod', ''), 'xs')
        self.bl(xs_raw + 4, 4, vL16, rX, T3, 1024, o.get('xsmod', ''), 'xs')
        a(f's_load_dword s{sTAG}, {sr(rWS, 2)}, {NONCE}')
        a(f's_mov_b64 {sr(rWM, 2)}, {sr(KA + 20, 2)}')
        if o.get('pw0', 1):
            a(f's_load_dword s{sPL}, {sr(rWS, 2)}, s{sINB} offset:0 glc')
            for q in range(2): a(f's_load_dword s{sPL + 1 + q}, {sr(rWS, 2)}, s{T4} offset:{q * 4096 + 508} glc')
        a(f'global_load_ushort v{cv}, v{vCo}, {sr(pC, 2)}'); vm.issue('c')
        a(f'global_load_ushort v{cv+1}, v{vCo}, {sr(pC, 2)} offset:16'); vm.issue('c')
        a('s_barrier')
        self.bl(wm, 4, vWM, rWM, T0, 0, o.get('ntwm', 'nt'), 'wm')
        self.bl(wm + 4, 4, vWM, rWM, T1, 0, o.get('ntwm', 'nt'), 'wm')
        for srd, k in ((rW, 2), (rWO, 6), (rWG, 12), (rWU, 14), (rWD, 16), (rOUT, 22)):
            a(f's_mov_b64 {sr(srd, 2)}, {sr(KA + k, 2)}')
        a(f"""s_getpc_b64 {sr(sCMP, 2)}
        s_and_b32 s{sCMP}, s{sCMP}, 0xfffffc00""")
        S(T6, '(j*8 + w)*128')
        va(vT, [(5, 1, 32768)], T6)
        a(f'v_min_u32 v{vT}, CODE_KB, v{vT}')
        if not o.get('nopf'): a(f'global_load_dword v{vT+7}, v{vT}, {sr(sCMP, 2)}'); vm.issue()
        S(sKH, 'w >> 2'); S(sKF, '(w >> 2) ^ (j >> 4)'); S(sROT, '(((j >> 3) ^ j) & 1)*8')
        S(sFS, 'x*7 + (j >> 2)'); S(sKQ, 'j & 3')
        S(sU0, o.get('u0', 'j & 12'))
        va(vT + 2, [(4, 1, 64)]); va(vWd, [(0, 3, 16)])
        a(f'v_xor_b32 v{vWd}, v{vWd}, v{vT+2}'); va(vT + 2, [(3, 3, 6144)]); a(f'v_add_u32 v{vWd}, v{vWd}, v{vT+2}')
        wq = [(n, t) for n in range(16) for t in range(3)]
        def w_base(n, wexpr):
            if n < 4:
                S(T7, '((j >> 4)*2) ^ n', n=n)
                S(sU, f'(((T7 + u0) & 15)*8 + {wexpr})*(8*6144) + hp*128')
                S(T7, f'T7*SLOT + ({wexpr})*1024')
            else:
                S(sU, f'(((u0 + n) & 15)*8 + {wexpr})*(8*6144) + hp*128', n=n)
                S(T7, f'({wexpr})*1024 + q', q=(n % 6) * SLOT)
        def w_slot(n, t):
            S('m0', 'T7 + q', q=t * 8192)
            self.dma(vWd, rW, sU, 0, o.get('wmod', ''), ('W', n))
            if t < 2: S(sU, 'u + 2048')
        def w_next(cnt=1):
            for _ in range(cnt):
                n, t = wq.pop(0)
                if t == 0: w_base(n, 'w')
                w_slot(n, t)
        wb = list(o['wburst'])
        va(vL8, [(0, 6, 8)])
        va(vL32S, [(0, 6, 32)], None, SCR)
        S(T0, 'w*4 + SCR')
        va(vGA, [(4, 2, 64), (0, 3, 256), (3, 1, 32)], T0)
        self.stamp('issued')
        xs = V.alloc(16); st = V.alloc(4)
        vm.wait('xs')
        self.stamp('xsok')
        self.ln_stats(xs_raw, vT, st, st + 1)
        S(T0, 'w*8 + L_ST')
        a(f"""s_waitcnt lgkmcnt(0)
        s_mul_i32 s{sTAG}, s{sTAG}, 0x9e3779b1
        s_add_u32 s{sTAG}, s{sTAG}, 0x7f4a7c15
        v_lshrrev_b32 v{st}, 16, v{st}
        v_or_b32 v{st}, v{st}, v{st+1}
        v_mov_b32 v{st+1}, s{sTAG}
        v_mov_b32 v{vT}, s{T0}""")
        self.dw('ds_write_b64', vT, st, 2)
        va(vT + 1, [(0, 2, 16)], None, L_ST)
        va(vT, [(0, 2, 16), (2, 1, 1024)])
        S(T0, '((x & 6) + ((x & 1)*2 + (j >> 4))*64 + w*8)*1024 + (j & 15)*64 + SINB')
        self.barrier()
        self.r128(st, vT + 1)
        lg.wait_all()
        a('s_mov_b64 exec, 0xff')
        self.bs(st, 4, vT, rWS, T0, 0, 'sc1')
        a('s_mov_b64 exec, -1')
        self.stamp('A2pub')
        self.bl(xr, 4, vXT, rX, T5, 0, o.get('xtmod', ''), 'xt')
        self.bl(xr + 4, 4, vXT, rX, T5, 16, o.get('xtmod', ''), 'xt')
        S(T0, 'hp*4096 + w*512')
        a(f'v_add_u32 v{vT}, s{T0}, v{vL16}')
        S('m0', 'w*512 + L_WPHI')
        a('s_mov_b32 exec_hi, 0')
        a(f'global_load_lds_dwordx4 v{vT}, {sr(pWPHI, 2)}'); vm.issue()
        a('s_mov_b32 exec_hi, -1')
        w_next(wb[0])
        vm.wait('c')
        for i in range(2):
            a(f'v_lshlrev_b32 v{cv+i}, 16, v{cv+i}')
            self.silu(cv + i, vT + i)
        S(T0, '((((w >> 1)*16 + ((j ^ 1) & 15))*2 + (j >> 4))*8 + x)*512 + AINB')
        S(T1, '(wg*4 + (w & 3))*256 + SINB')
        va(vT + 4, [(0, 5, 8)])
        vm.wait('wm')
        self.stamp('wmok')
        for s in self.gemv_ops([wm, wm + 4], [cv, cv + 1], acc, vT, vT + 1, True): a(s)
        self.dw('ds_write_b32', vGA, acc, 1, L_A1 - SCR)
        self.barrier()
        def gemv_final(ldsoff, soff, half=False):
            a(f'ds_read_b128 {vr(acc, 4)}, v{vL32S} offset:{ldsoff - SCR}')
            a(f'ds_read_b128 {vr(acc + 4, 4)}, v{vL32S} offset:{ldsoff - SCR + 16}')
            a('s_waitcnt lgkmcnt(0)')
            self.sum8(acc)
            a(f'v_mov_b32 v{acc+1}, s{sTAG}')
            if half:
                a(f"""s_bitcmp1_b32 s{sWAVE}, 0
                s_cselect_b32 exec_lo, 0, -1
                s_cselect_b32 exec_hi, -1, 0""")
            self.bs(acc, 2, vL8, rWS, soff, 0, 'sc1', count=half)
            if half: a('s_mov_b64 exec, -1')
        def a1_pub():
            gemv_final(L_A1, T0, True)
            self.stamp('A1pub')
        st_pre = lambda: self.spoll([(q, 1, T1, q * 64 + 60) for q in range(4)], range(4))
        st_ld = lambda: self.bl(st, 2, vT + 4, rWS, T1, 0, 'sc1')
        if o.get('statpre', 0) == 0: self.try_load(st_ld, [st + 1], None, lambda: (a1_pub(), w_next(wb[1])), st_pre)
        elif o['statpre'] == 1: a1_pub(); self.try_load(st_ld, [st + 1], None, lambda: w_next(wb[1]), st_pre)
        else: a1_pub(); st_pre(); self.try_load(st_ld, [st + 1], None, lambda: w_next(wb[1]))
        self.stamp('statok')
        V.release(xs_raw, 8); V.release(wm, 8); V.release(cv, 2)
        def xhat_work():
            self.unpack(st + 1, st, st)
            a(f'v_rcp_f32 v{st}, v{st}')
            for i in range(8): self.unpack(xs + 2 * i, xs + 2 * i + 1, xr + i)
            for i in E2: self.pk('add', xs + i, xs + i, st + 1, bc=(1,), neg=(1,))
            self.round_list([xs + i for i in range(16)])
            for i in E2: self.pk('mul', xs + i, xs + i, st, bc=(1,))
            self.round_list([xs + i for i in range(16)])
        va(vT, [(0, 5, 16), (5, 1, 4096)])
        S(T0, 'T4')
        S(T1, 'w*4 + L_MP'); va(vT + 1, [(0, 6, 64)], T1)
        S(T1, 'kh*1024 + L_MP'); va(vT + 2, [(0, 4, 32), (5, 1, 512)], T1)
        self.spoll([(q, 1, T0, q * 4096 + 508) for q in range(2)], range(2), work=xhat_work)
        self.stamp('apre')
        if o.get('abar', 1): a('s_barrier')
        self.try_load(lambda: self.bl(st, 4, vT, rWS, T0, 0, 'sc1'), [st + 1, st + 3], vT + 3, lambda: w_next(wb[2]))
        self.stamp('modok')
        a(f'ds_write2_b32 v{vT+1}, v{st}, v{st+2} offset0:0 offset1:8'); lg.issue()
        self.barrier()
        mp = V.alloc(16); hp = V.alloc(8)
        for i in (2, 3, 0, 1): self.r128(mp + 4 * i, vT + 2, (i >> 1) * 2048 + (i & 1) * 16, i >> 1)
        w_next(wb[3])
        S(T0, '(((rt*16 + cb)*4 + (w & 3))*2 + kh)*2048 + HF')
        lg.wait(1); self.sum8(mp + 8)
        self.round1(mp + 8)
        lg.wait(0); self.sum8(mp)
        a(f'v_add_f32 v{mp+8}, 1.0, v{mp+8}')
        self.round2(mp + 8, mp)
        for h in range(2):
            rg = range(8 * h, 8 * h + 8)
            for i in rg: self.dpp('v_mul_f32', xs + i, mp + 8, xs + i, f'row_newbcast:{i}')
            self.round_list([xs + i for i in rg])
            for i in rg: self.dpp('v_add_f32', xs + i, mp, xs + i, f'row_newbcast:{i}')
            for i in range(4 * h, 4 * h + 4): a(f'v_cvt_pk_bf16_f32 v{hp+i}, v{xs+2*i}, v{xs+2*i+1}')
            self.bs(hp + 4 * h, 4, vL16, rWS, T0, 1024 * h, 'sc1')
        self.stamp('hst')
        va(vB, [(2, 2, 128), (3, 1, 64), (4, 1, 32), (0, 2, 8), (5, 1, 2048)])
        a(f'v_xor_b32 v{vB+1}, 64, v{vB}')
        for q in (1, 2):
            for h in range(2): a(f'v_add_u32 v{vB+2*q+h}, {2*q*SLOT}, v{vB+h}')
        S(T1, 'kh*2048 + L_WPHI')
        va(vT, [(2, 2, 64), (4, 1, 32), (0, 2, 8), (5, 1, 256)], T1)
        va(vT + 1, [(0, 2, 8 * 4096), (2, 2, 4096)])
        S(T0, '((rt >> 3)*4 + (rt & 7)*32)*4096 + (cb >> 1)*64 + (cb & 1)*4 + INB')
        va(vT + 2, [(4, 1, 64)]); va(vWo, [(0, 3, 16)])
        a(f'v_xor_b32 v{vWo}, v{vWo}, v{vT+2}'); va(vT + 2, [(3, 3, 2048)]); a(f'v_add_u32 v{vWo}, v{vWo}, v{vT+2}')
        S(T1, '(w & 2)*32'); va(vT + 2, [(4, 1, 32)], T1); va(vFG, [(0, 3, 16)])
        a(f'v_xor_b32 v{vFG}, v{vFG}, v{vT+2}'); va(vT + 2, [(3, 3, 7168)]); a(f'v_add_u32 v{vFG}, v{vFG}, v{vT+2}')
        S(T1, '(w & 1)*128')
        va(vT + 2, [(5, 1, 64)], T1); va(vFD, [(0, 5, 16), (5, 1, 2048)])
        a(f'v_xor_b32 v{vFD}, v{vFD}, v{vT+2}')
        S(sFG, '(kq*8 + w)*(32*7168) + fs*128'); S(sFD, '(fs*8 + w)*16384 + kq*512')
        a(f"""s_cmp_ge_u32 s{sJ}, 28
        s_cselect_b32 s{rWG+2}, 0, s{rWG+2}
        s_cselect_b32 s{rWU+2}, 0, s{rWU+2}
        s_cselect_b32 s{rWD+2}, 0, s{rWD+2}""")
        vm.wait_all()
        a('s_barrier')
        self.push(vT + 1, T0, 16, vT + 2, 'L_PB')
        self.stamp('hpub')
        V.release(xs, 16); V.release(mp, 16); V.release(hp, 8); V.release(st, 4)
        w_next(wb[4])
        for s in range(2):
            for u in range(2): self.tr(wphi + 4 * s + 2 * u, vT, s * 1024 + u * 512)
        AD, LOOK, LASTB = o['AD'], 6, o['LASTB']
        accs = V.alloc(96)
        big = V.alloc(76)
        Ar, Br = big, big + 4 * AD
        assert 4 * AD + 4 * (LOOK + 1) <= 76
        S(T2, '(r1*64 + w)*4096 + HF')
        S(T0, '(w & 3)*4096 + L_XF'); a(f'v_add_u32 v{vXF}, s{T0}, v{vL16}')
        S(T0, '(w & 3)*1024 + kh*16384 + L_PHK'); va(vPW, [(0, 5, 32), (5, 1, 16)], T0)
        fq = [(m, i) for m in range(3) for i in range(4)]
        freg = []
        def f_src(m, i, back=0, T0=T0):
            if m < 2: S(T0, 'fg + q', q=i * 8 * 7168 - back * 4 * 32 * 7168)
            else: S(T0, 'fd + q', q=i * 4096 - back * 4 * 16384)
            return (vFG, (rWG, rWU)[m]) if m < 2 else (vFD, rWD)
        def f_lds(m, i): return (L_GU + m * 32768 if m < 2 else L_DN) + i * 1024
        def ffn_reg(n):
            for _ in range(n):
                m, i = fq.pop(0)
                for back in range(2):
                    v, r = f_src(m, i, back)
                    self.bl(big + 8 * len(freg) + 4 * back, 4, v, r, T0, 0, o.get('ntffn', 'nt'), 'ffn')
                freg.append((m, i))
        def ffn_dma(n, T0=T0):
            for _ in range(n):
                m, i = fq.pop(0)
                if o.get('nofd'): continue
                v, r = f_src(m, i, 0, T0)
                S('m0', 'w1k*4 + q', q=f_lds(m, i))
                self.dma(v, r, T0, 0, o.get('ntffn', 'nt'), 'ffn')
        S(sWB, '(rot*4 + w)*16384'); S(sWO2, '(j >> 4)*1048576 + cb*128'); S(sW1K, 'w*1024')
        def wo_dma(it, back=0, T0=T0):
            S(T0, '((wb + q) & 0xfffff) + (wo2 ^ h)', q=(8 * it - 4 * back) * 16384, h=(it >> 3) << 20)
            S('m0', 'w1k + q', q=WO_H0 + it * 8192 - 4096 * back)
            self.dma(vWo, rWO, T0, 0, '', 'wo')
        def modf_duty(g4, part):
            ld = lambda: [self.bl(g4 + 2 * q, 2, vL8, rWS, sMF, q * 512, 'sc1') for q in range(4)]
            tg = [g4 + 1, g4 + 3, g4 + 5, g4 + 7]
            saved = list(vm.q)
            a(f"""s_cmp_eq_u32 s{sMF}, 0
            s_cbranch_scc1 L_NOMF{part}""")
            if part == 0: ld()
            else:
                self.tagcheck(tg, vT)
                a('s_cbranch_vccz L_MFOK')
                self.poll(ld, tg, vT)
                a(f"""L_MFOK:
                v_add_f32 v{g4}, v{g4}, v{g4+2}
                v_add_f32 v{g4+4}, v{g4+4}, v{g4+6}
                v_add_f32 v{g4}, v{g4}, v{g4+4}""")
                self.round1(g4)
                a(f"""s_cmp_eq_u32 s{sX}, 1
                s_cselect_b32 s{T6}, 1.0, 0
                v_add_f32 v{g4}, s{T6}, v{g4}""")
                self.round1(g4)
                S(T6, '(x*16 + j)*512 + MODF')
                self.bs(g4, 2, vL8, rWS, T6, 0, 'sc1', count=False)
            a(f'L_NOMF{part}:')
            vm.q = saved
        S(sMF, '(x*16 + j + 16)*2048 + MODP2')
        a(f"""s_cmp_ge_u32 s{sX}, 3
        s_cselect_b32 s{sMF}, 0, s{sMF}
        s_cmp_ge_u32 s{sJ}, 16
        s_cselect_b32 s{sMF}, 0, s{sMF}
        s_cmp_lg_u32 s{sWAVE}, 1
        s_cselect_b32 s{sMF}, 0, s{sMF}""")
        self.inbox(0, 2, work=lambda: w_next(wb[5]))
        assert len(wq) % 3 == 0 and 30 <= len(wq) <= 36
        NPU = 16 - len(wq) // 3
        vm.wait(('W', 2))
        a('s_barrier')
        self.stamp('hok')
        a(f"""s_cmp_ge_u32 s{sWAVE}, 4
        s_cbranch_scc1 L_HELP
        s_setprio 2""")
        q_hok = list(vm.q)
        if 'pad' in o:
            a('.p2align 6')
            for _ in range(o['pad']): a('s_nop 0')
        def a_load(sg):
            if sg % 4 == 0: S(T3, '((u0 + n) & q)*16384 + T2', n=sg // 4, q=o.get('amask', 15))
            self.bl(Ar + 4 * (sg % AD), 4, vL16, rWS, T3, (sg % 4) * 1024, o.get('amod', 'sc1'), ('A', sg))
        CORD = (2, 3, 0, 1, 4, 5)
        def b_read(n):
            sg, c = divmod(n, 6); t, h = divmod(CORD[c], 2)
            slot = (sg >> 2) % 6
            off = (slot & 1) * SLOT + t * 8192 + ((sg >> 1) & 1) * 4096 + (sg & 1) * 1024
            d = Br + 4 * (n % (LOOK + 1))
            self.tr(d, vB + 2 * (slot >> 1) + h, off, ('B', n)); self.tr(d + 2, vB + 2 * (slot >> 1) + h, off + 512, ('B', n))
        nxt = 0
        def a_more(lim):
            nonlocal nxt
            while nxt < min(lim, 64): a_load(nxt); nxt += 1
        a_more(1)
        for n in range(LOOK): b_read(n)
        a_more(o.get('A0', 4))
        for n in range(384):
            sg, c = divmod(n, 6)
            if c == 0: vm.wait(('A', sg))
            lg.wait(('B', n))
            d = accs + 16 * CORD[c]
            a(f'v_mfma_f32_32x32x16_bf16 {vr(d, 16)}, {vr(Br + 4*(n % (LOOK + 1)), 4)}, {vr(Ar + 4*(sg % AD), 4)}, ' + ('0' if sg == 0 else vr(d, 16)))
            if n + LOOK < 384:
                if (n + LOOK) % 24 == 0 and (n + LOOK) // 24 <= LASTB: a('s_barrier')
                b_read(n + LOOK)
            if c == 5:
                a_more(min(nxt + 2, sg + AD + 1))
                if sg == 63 - AD and o.get('b14', 1): a('s_barrier')
        self.stamp('gemm1')
        aq, ak, av = accs, accs + 32, accs + 64
        def cvt8(d, s_):
            for i in range(8): a(f'v_cvt_pk_bf16_f32 v{d+i}, v{s_+2*i}, v{s_+2*i+1}')
        cvt8(vv, ak + 16)
        for q in range(2): self.dw('ds_write_b128', vXF, vv + 4 * q, 4, q * 1024)
        cvt8(fr, ak)
        self.barrier()
        a('s_setprio 0')
        pp = ak; ee = ak + 16
        def phi_logits(src):
            a(f'v_mfma_f32_32x32x16_bf16 {vr(pp, 16)}, {vr(wphi, 4)}, {vr(src, 4)}, 0')
            a(f'v_mfma_f32_32x32x16_bf16 {vr(pp, 16)}, {vr(wphi + 4, 4)}, {vr(src + 4, 4)}, {vr(pp, 16)}')
        phi_logits(fr)
        for h in range(2):
            cvt8(vv if h == 0 else vq, av + 16 * h)
            for db in range(2): self.dw('ds_write_b128', vPW, (vv if h == 0 else vq) + 4 * db, 4, L_V - L_PHK + h * 8192 + db * 4096)
        cvt8(fr, aq + 16)
        for q in range(2): self.dw('ds_write_b128', vXF, fr + 4 * q, 4, 2048 + q * 1024)
        cvt8(vq, aq)
        a('s_branch L_JOIN')
        a('L_HELP:')
        vm.q = [('W', 1)] * len(q_hok); lg.reset()
        m2w = accs; m2c = accs + 32; g4 = accs + 40
        def w_unit(n):
            for wexpr in ('w - 4', 'w'):
                w_base(n, wexpr)
                for t in range(3): w_slot(n, t)
        for n in range(NPU, 6): w_unit(n)
        S(T0, '((x & 3)*4 + w - 4)*128')
        va(vCo, [(3, 3, 2)], T0)
        S(T4, 'T0*6144 + (j*2 + (x >> 2))*128 + 4096')
        for i in range(8): a(f'global_load_ushort v{m2c+i}, v{vCo}, {sr(pC, 2)} offset:{16*i}'); vm.issue('m2c')
        m2l = list(range(8)); wol = [8, 9, 10, 11]; pwl = list(range(1, 8)); sil = list(range(8))
        m2ops = self.gemv_ops([m2w + 4 * i for i in range(8)], [m2c + i for i in range(8)], acc, vT, vT + 1, False)
        m2pos = 0
        def act(op, k):
            nonlocal m2pos
            kind, n = op[0], int(op[1:] or 1)
            if kind == 'm':
                for _ in range(2 * n):
                    i = m2l.pop(0)
                    self.bl(m2w + 4 * i, 4, vWM, rWM, T4, 0, o.get('ntm2', 'nt'), ('m2', i))
                    if m2l: S(T4, 'T4 + 8*12288')
            elif kind == 'f': ffn_reg(n)
            elif kind == 'o':
                assert k >= 13
                for _ in range(n):
                    it = wol.pop(0); wo_dma(it, 1); wo_dma(it)
            elif kind == 'p':
                a('s_waitcnt lgkmcnt(0)')
                for q in range(n):
                    b = pwl.pop(0)
                    a(f's_load_dword s{sPL + 2*q}, {sr(rWS, 2)}, s{sINB} offset:{b * 512} glc')
                    a(f's_load_dword s{sPL + 2*q + 1}, {sr(rWS, 2)}, s{sINB} offset:{b * 512 - 256} glc')
            elif kind == 'q':
                S(T0, 'fs*8192 + (w - 4)*256 + HGR')
                a('s_waitcnt lgkmcnt(0)')
                for q in range(4): a(f's_load_dword s{sPL + q}, {sr(rWS, 2)}, s{T0} offset:{q * 2048 + 1024 + 252} glc')
            elif kind == 's':
                vm.wait('m2c')
                for _ in range(n):
                    i = sil.pop(0)
                    a(f'v_lshlrev_b32 v{m2c+i}, 16, v{m2c+i}')
                    self.silu(m2c + i, vT + (i & 1))
            elif kind == 'g':
                assert not sil
                for _ in range(n):
                    vm.wait(('m2', m2pos // 16))
                    for s_ in m2ops[m2pos:m2pos + 16]: a(s_)
                    m2pos += 16
            elif kind == 'r':
                assert m2pos == 128
                for s_ in m2ops[128:]: a(s_)
                self.dw('ds_write_b32', vGA, acc, 1, L_M2 - SCR)
                lg.wait_all()
            elif kind == 'P':
                a(f"""s_cmp_lg_u32 s{sWAVE}, 4
                s_cbranch_scc1 L_M2F
                ds_read_b128 {vr(acc, 4)}, v{vL32S} offset:{L_M2 - SCR + 16}""")
                S(T0, '((j*2 + (x >> 2))*4 + (x & 3))*512 + MODP2')
                a(f"""s_waitcnt lgkmcnt(0)
                v_add_f32 v{acc}, v{acc}, v{acc+1}
                v_add_f32 v{acc+2}, v{acc+2}, v{acc+3}
                v_mov_b32 v{acc+1}, s{sTAG}
                v_add_f32 v{acc}, v{acc}, v{acc+2}""")
                self.bs(acc, 2, vL8, rWS, T0, 0, 'sc1', count=False)
                a('L_M2F:')
            else: raise ValueError(op)
        sched = {int(k): v.split() for k, v in o['sched'].items()}
        for op in sched.get(0, []): act(op, 0)
        for k in range(1, LASTB + 1):
            for kk in (range(k, 16) if k == LASTB else [k]): vm.wait(('W', kk))
            a('s_barrier')
            ops = sched.get(k, [])
            if 6 <= k + 4 < 16:
                pre = [op[1:] for op in ops if op[0] == '<']
                for op in pre: act(op, k)
                if not o.get('now2'): w_unit(k + 4)
            for op in ops:
                if op[0] != '<': act(op, k)
        if o.get('b14', 1):
            assert LASTB == 13 and AD <= 12
            a('s_barrier')
            for op in sched.get(14, []): act(op, 14)
        assert (not m2l or o.get('nom2')) and not wol
        self.barrier()
        for q in range(2): self.r128(fr + 4 * q, vXF, q * 1024)
        lg.wait_all()
        phi_logits(fr)
        for op in sched.get(15, []): act(op, 15)
        assert 8 * len(freg) <= 76
        a('L_JOIN:')
        vm.reset(); lg.q = [None]
        V.release(vB, 6); V.release(vWd); V.release(vWM); V.release(vCo); V.release(vGA); V.release(vL32S); V.release(acc, 8)
        V.release(big + 8 * len(freg), 76 - 8 * len(freg))
        ph = aq; fx = aq + 16
        vPA = V.alloc(); vPB = V.alloc()
        self.softmax_pm(pp, ee, ph, vT)
        for fb in range(4): self.dw('ds_write_b128', vPW, ph + 4 * fb, 4, fb * 4096)
        S(T0, 'w*4096 + L_PHK'); a(f'v_add_u32 v{vPA}, s{T0}, v{vL8}')
        S(T0, 'kh*8192 + L_V'); a(f'v_add_u32 v{vPB}, s{T0}, v{vL8}')
        ones = fr
        for i in range(4): a(f'v_mov_b32 v{ones+i}, 0x3f803f80')
        S(T0, '((hp*8 + w)*32 + r1)*1024 + KVP'); S(T2, 'T0 + 16384')
        S(T3, '(hp*8 + w)*1024 + ZP'); S(T1, 'r1*64 + T3')
        self.stamp('ksm')
        self.barrier()
        self.stamp('phik')
        fragA = [ee + 4 * i for i in range(4)]
        fragB = [av + 4 * i for i in range(8)]
        kvd = vv; zd = fr + 4
        def kvm(u):
            lg.wait(('kv', u))
            for db in range(2):
                a(f'v_mfma_f32_16x16x32_bf16 {vr(kvd + 4*db, 4)}, {vr(fragA[u], 4)}, {vr(fragB[2*u+db], 4)}, ' + ('0' if u == 0 else vr(kvd + 4*db, 4)))
            a(f'v_mfma_f32_16x16x32_bf16 {vr(zd, 4)}, {vr(fragA[u], 4)}, {vr(ones, 4)}, ' + ('0' if u == 0 else vr(zd, 4)))
        for ts in range(4):
            self.tr(fragA[ts], vPA, ts * 1024, ('kv', ts)); self.tr(fragA[ts] + 2, vPA, ts * 1024 + 512, ('kv', ts))
            for db in range(2):
                self.tr(fragB[2*ts+db], vPB, db * 4096 + ts * 1024, ('kv', ts)); self.tr(fragB[2*ts+db] + 2, vPB, db * 4096 + ts * 1024 + 512, ('kv', ts))
            if ts >= 2: kvm(ts - 2)
        kvm(2); kvm(3)
        a(f"""s_cmp_lt_u32 s{sWAVE}, 4
        s_cbranch_scc1 L_NOQX
        ds_read_b128 {vr(vq, 4)}, v{vXF} offset:2048
        ds_read_b128 {vr(vq + 4, 4)}, v{vXF} offset:3072
        L_NOQX:""")
        self.bs(kvd, 4, vL16, rWS, T0, 0, 'sc1', 'kvs')
        self.bs(kvd + 4, 4, vL16, rWS, T2, 0, 'sc1', 'kvs')
        a('s_mov_b32 exec_lo, 0x00010001')
        a('s_mov_b32 exec_hi, 0x00010001')
        self.bs(zd, 4, vL, rWS, T1, 0, 'sc1', 'kvs')
        a('s_mov_b64 exec, -1')
        lg.wait_all()
        phi_logits(vq)
        self.stamp('kvst')
        va(vPW, [(0, 3, 32 * 4096), (3, 1, 4 * 4096)])
        S(T4, '(wg & 0x1b)*4096 + (r1 >> 1)*64 + (r1 & 1)*4 + INB + 512')
        wl = [2, 3, 4, 5, 6, 7, 12, 13, 14, 15, 0, 1]
        kp = av; zz = av + 16; g4 = vv
        ga = fx; wr1 = fx + 8
        vGa = V.alloc(); vKP = V.alloc()
        va(vGa, [(0, 4, 8), (5, 1, 128)])
        va(vKP, [(3, 3, 1024), (0, 3, 16)])
        va(vXF, [(0, 3, 16), (5, 1, 8)])
        S(T5, 'cb*2048 + kh*256 + MODP2')
        ld_ga = lambda: [self.bl(ga + 2 * q, 2, vGa, rWS, T5, q * 512, 'sc1', 'ga') for q in range(4)]
        def c_push():
            vm.wait('kvs')
            a('s_barrier')
            self.push(vPW, T4, 16, vPB, 'L_PC')
            self.stamp('kvpub')
            modf_duty(g4, 0)
        qm, qs = o.get('qmid', 8), o.get('qsplit', 16)
        wo1 = lambda: wo_dma(wl.pop(0), 0, T6)
        self.softmax_pm(pp, ee, ph, vT, part=1, split=qm)
        c_push()
        self.weave(lambda: [a(f'v_exp_f32 v{r+i}, v{r+i}') for i in range(qm, qs) for r in (ee, pp)], [wo1] * o['wowin'][0])
        S(T0, '(hp*16 + r1)*16384 + w*128 + KVP'); S(T1, 'T0 + 8192')
        S(T2, '(hp*16 + r1)*1024 + w*128 + KIN'); S(T4, 'T4 + 6*512')
        self.inbox(1, 2, work=lambda: (self.weave(lambda: self.softmax_pm(pp, ee, ph, vT, part=2, split=qs), [wo1] * o['wowin'][1]), self.stamp('cw')))
        a('s_barrier')
        self.stamp('kvok')
        self.bl(kp, 4, vKP, rWS, T0, 0, 'sc1', 'kp')
        self.bl(kp + 4, 4, vKP, rWS, T1, 0, 'sc1', 'kp')
        S(T1, 'w*32 + L_ZF'); va(vT + 2, [(0, 2, 8), (5, 1, 4)], T1)
        S(T1, 'w*1024 + L_KVF'); va(vT + 1, [(0, 4, 16), (5, 1, 512), (4, 1, 8)], T1)
        S(T1, 'kh*128 + L_ZF'); va(vT + 3, [(5, 1, 16)], T1)
        S(T1, 'kh*4096 + L_KVF'); a(f'v_add_u32 v{vPA}, s{T1}, v{vL16}')
        self.bl(zz, 4, vL16, rWS, T3, 0, 'sc1', 'z')
        def red4(r, ctls):
            for i in range(2): a(f'v_permlane32_swap_b32 v{r+i}, v{r+2+i}')
            self.pk('add', r, r, r + 2)
            for ctl in ctls:
                for i in range(2): self.dpp('v_add_f32', r + i, r + i, r + i, ctl)
            for i in range(2): a(f'v_mov_b32 v{r+2+i}, v{r+i}')
            for i in range(2): a(f'v_permlane16_swap_b32 v{r+i}, v{r+2+i}')
            self.pk('add', r, r, r + 2)
            a(f'v_cvt_pk_bf16_f32 v{r}, v{r}, v{r+1}')
        vm.wait('kp')
        self.pk('add', kp, kp, kp + 4); self.pk('add', kp + 2, kp + 2, kp + 6)
        red4(kp, ['row_ror:8'])
        a(f"""v_mov_b32 v{kp+1}, s{sTAG}
        s_mov_b32 exec_lo, 0xff
        s_mov_b32 exec_hi, 0xff""")
        self.bs(kp, 2, vXF, rWS, T2, 0, 'sc1')
        a('s_mov_b64 exec, -1')
        a('s_barrier')
        self.push(vPW, T4, 16, vPB, 'L_PC2')
        self.stamp('c2pub')
        kf = av; zf = av + 16; num = pp; den = ee
        vm.wait('z')
        self.weave(lambda: red4(zz, ['row_ror:4', 'row_ror:8']), [wo1] * o['wowin'][2])
        self.dw('ds_write_b32', vT + 2, zz, 1)
        self.barrier()
        for fb in range(4): self.r128(zf + 4 * fb, vT + 3, fb * 32)
        lg.wait_all()
        S(T0, '(hp*8 + w)*2048 + KIN')
        k2 = av + 8
        def den_work():
            for fb in range(4):
                a(f'v_mfma_f32_32x32x16_bf16 {vr(den, 16)}, {vr(zf + 4*fb, 4)}, {vr(ph + 4*fb, 4)}, ' + ('0' if fb == 0 else vr(den, 16)))
            self.round1(den)
            a(f'v_add_f32 v{den}, 0x358637bd, v{den}')
            self.round1(den)
            a(f'v_rcp_f32 v{den}, v{den}')
            modf_duty(g4, 1)
            self.stamp('c2w')
        self.inbox(7, 2, work=den_work)
        self.stamp('c2h')
        self.poll(lambda: [self.bl(k2 + 4 * q, 4, vL16, rWS, T0, q * 1024, 'sc1') for q in range(2)], [k2 + 1, k2 + 3, k2 + 5, k2 + 7], vT)
        for db in range(2):
            a(f'ds_write2_b32 v{vT+1}, v{k2+4*db}, v{k2+4*db+2} offset0:{64*db} offset1:{64*db+1}'); lg.issue()
        self.barrier()
        self.stamp('kvred')
        for fb in range(4): self.r128(kf + 4 * fb, vPA, fb * 1024, ('kf', fb))
        ld_ga()
        S(T0, 'w*256'); va(vT, [(0, 6, 4)], T0)
        a(f'global_load_dword v{wr1}, v{vT}, {sr(pWR, 2)}'); vm.issue('ga')
        S(T0, '(((r1*4 + (w & 3))*16 + hp)*2 + kh)*2048 + OF')
        for fb in range(4):
            lg.wait(('kf', fb))
            a(f'v_mfma_f32_32x32x16_bf16 {vr(num, 16)}, {vr(kf + 4*fb, 4)}, {vr(ph + 4*fb, 4)}, ' + ('0' if fb == 0 else vr(num, 16)))
        for h in range(2):
            self.round_list([num + i for i in range(8 * h, 8 * h + 8)])
            for i in range(8 * h, 8 * h + 8, 2): self.pk('mul', num + i, num + i, den, bc=(1,))
            for i in range(4 * h, 4 * h + 4): a(f'v_cvt_pk_bf16_f32 v{vq+i}, v{num+2*i}, v{num+2*i+1}')
            self.bs(vq + 4 * h, 4, vL16, rWS, T0, 1024 * h, 'sc1', 'os')
        self.stamp('ost')
        for r, n in ((fr, 8), (vv, 8), (vPW, 1), (vXF, 1), (vPA, 1), (vPB, 1), (vKP, 1), (accs, 16), (accs + 32, 64), (wphi, 8)):
            V.release(r, n)
        assert GS == 0
        vG16 = vL16
        vBa = V.alloc(); vBb = V.alloc(); xf = V.alloc(16); mg = V.alloc(12)
        S(T4, 'kh*(65536 + 64) + WO_H0')
        va(vBa, [(2, 2, 128), (3, 1, 64), (5, 1, 1024), (0, 1, 32), (4, 1, 16), (1, 1, 8)])
        a(f'v_xor_b32 v{vBa}, s{T4}, v{vBa}')
        a(f'v_xor_b32 v{vBb}, 64, v{vBa}')
        assert WO_H1 == WO_H0 + 65536
        va(vT + 1, [(0, 3, 8 * 4096), (3, 1, 4096)])
        S(T2, '((r1 >> 2)*2 + (r1 & 3)*64)*4096 + (hp >> 1)*64 + (hp & 1)*4 + INB + 1024')
        for i in range(8): self.unpack(xf + 2 * i, xf + 2 * i + 1, xr + i)
        S(T6, '(gtb*2 + kf)*32768 + OF')
        vm.wait('os')
        a('s_barrier')
        self.push(vT + 1, T2, 16, vT + 2, 'L_PD')
        self.stamp('opub')
        V.release(vq, 8)
        while wl: wo_dma(wl.pop(0))
        V.release(vWo)
        S(T0, 'w*1024 + MODF'); S(T1, 'T0 + 8192'); S(T2, 'T0 + 16384')
        ld_mg = lambda: [self.bl(mg + 4 * q, 4, vL16, rWS, (T0, T1, T2)[q], 0, 'sc1', 'mg') for q in range(3)]
        gaf = V.alloc(16)
        def d_work():
            vm.wait_all()
            tg = [ga + 1 + 2 * q for q in range(4)] + [mg + 1 + 2 * q for q in range(6)]
            self.tagcheck(tg, vT)
            a('s_cbranch_vccz L_MGOK')
            self.poll(lambda: (ld_ga(), ld_mg()), tg, vT)
            a('L_MGOK:')
            a(f"""v_add_f32 v{ga}, v{ga}, v{ga+2}
            v_add_f32 v{ga+4}, v{ga+4}, v{ga+6}
            v_add_f32 v{ga}, v{ga}, v{ga+4}""")
            self.round1(ga)
            for q in range(3): a(f'v_cvt_pk_bf16_f32 v{ga+1+q}, v{mg+4*q}, v{mg+4*q+2}')
        def d_work2():
            for i in range(16): a(f'v_mov_b32_dpp v{gaf+i}, v{ga} row_newbcast:{i} row_mask:0xf bank_mask:0xf')
            self.stamp('dw')
        ld_mg()
        AD2 = o['AD2']
        accA = V.alloc(16); accB = V.alloc(16); Ar = V.alloc(4 * AD2); Br = V.alloc(16)
        nf2 = o.get('fg2', 0); f2 = []; f2r = V.alloc(4 * nf2) if nf2 else None
        def b2_read(s, c):
            d = Br + 8 * (s & 1) + 4 * c
            self.tr(d, (vBa, vBb)[c], s * 2048, ('B', s, c)); self.tr(d + 2, (vBa, vBb)[c], s * 2048 + 512, ('B', s, c))
        def a2_load(s):
            if s % 2 == 0: S(T7, '((rot + n) & 15)*2048 + T6', n=s // 2)
            self.bl(Ar + 4 * (s % AD2), 4, vL16, rWS, T7, (s % 2) * 1024, 'sc1', ('A', s))
        if o.get('dasync', 1): self.inbox(2, 2, work=lambda: (d_work(), d_work2()))
        else: d_work(); self.inbox(2, 2, work=d_work2)
        V.release(mg, 12); V.release(vGa)
        a('s_barrier')
        self.stamp('ook')
        for s in range(AD2):
            a2_load(s)
            if s == 0:
                for c in (1, 0): b2_read(0, c)
        for s in range(32):
            vm.wait(('A', s))
            for c in (1, 0):
                lg.wait(('B', s, c))
                ac = (accA, accB)[c]
                a(f'v_mfma_f32_32x32x16_bf16 {vr(ac, 16)}, {vr(Br + 8*(s & 1) + 4*c, 4)}, {vr(Ar + 4*(s % AD2), 4)}, ' + ('0' if s == 0 else vr(ac, 16)))
                if s + 1 < 32: b2_read(s + 1, c)
            if s + AD2 < 32: a2_load(s + AD2)
            if s == o.get('fg2at', 31):
                for n in range(nf2):
                    m, i = fq.pop(0); f2.append((m, i))
                    v, r = f_src(m, i)
                    self.bl(f2r + 4 * n, 4, v, r, T0, 0, o.get('ntffn', 'nt'), 'ffn')
        self.stamp('gemm2')
        S(T0, 'w*4096')
        a(f"""v_add_u32 v{vT}, s{T0}, v{vG16}
        v_xor_b32 v{vT+1}, 0x4000, v{vT}""")
        S(T0, '(gtb*32 + c32)*2048 + X1F')
        va(vT + 2, [(0, 5, 16), (5, 1, 1024)])
        for q in range(4): self.dw('ds_write_b128', vT, accB + 4 * q, 4, L_EXCH - GS + q * 1024)
        self.barrier()
        for q in range(4): self.r128(accB + 4 * q, vT + 1, L_EXCH - GS + q * 1024, ('ex', q))
        ffn_dma(o.get('fdx', 0), T1)
        for h in range(2):
            for q in (2 * h, 2 * h + 1):
                lg.wait(('ex', q))
                self.pk('add', accA + 4 * q, accA + 4 * q, accB + 4 * q); self.pk('add', accA + 4 * q + 2, accA + 4 * q + 2, accB + 4 * q + 2)
            rg = range(8 * h, 8 * h + 8)
            self.round_list([accA + i for i in rg])
            for i in range(8 * h, 8 * h + 8, 2): self.pk('mul', accA + i, accA + i, gaf + i)
            self.round_list([accA + i for i in rg])
            for i in range(8 * h, 8 * h + 8, 2): self.pk('add', accA + i, accA + i, xf + i)
            for i in range(4 * h, 4 * h + 4): a(f'v_cvt_pk_bf16_f32 v{xr+i}, v{accA+2*i}, v{accA+2*i+1}')
            self.bs(xr + 4 * h, 4, vT + 2, rWS, T0, 512 * h, 'sc1', 'x1s')
        self.stamp('x1st')
        V.release(accA, 16); V.release(accB, 16); V.release(Ar, 4 * AD2); V.release(Br, 16); V.release(vBa); V.release(vBb); V.release(xf, 16); V.release(gaf, 16)
        a(f"""s_cmp_lt_u32 s{sWAVE}, 4
        s_cbranch_scc1 L_NOST""")
        S(T0, '(w - 4)*4096 + L_GU')
        a(f'v_add_u32 v{vT}, s{T0}, v{vL16}')
        a(f'v_add_u32 v{vT+3}, {L_DN - L_GU}, v{vT}')
        for n, (m, i) in enumerate(freg):
            for back in range(2):
                self.dw('ds_write_b128', vT if m < 2 else vT + 3, big + 8 * n + 4 * back, 4, f_lds(m, i) - (L_GU if m < 2 else L_DN) + (1 - back) * 16384)
        a('L_NOST:')
        va(vT + 1, [(0, 4, 8 * 4096)])
        S(T3, '((rt >> 1) + (rt & 1)*128)*4096 + (cb >> 1)*64 + (cb & 1)*4 + INB + 1536')
        vm.wait('x1s')
        a('s_barrier')
        self.push(vT + 1, T3, 16, vT + 2, 'L_PE')
        self.stamp('x1pub')
        if nf2:
            S(T0, 'w*4096 + L_GU + 32768'); a(f'v_add_u32 v{vT}, s{T0}, v{vL16}')
            for n, (m, i) in enumerate(f2): self.dw('ds_write_b128', vT, f2r + 4 * n, 4, f_lds(m, i) - L_GU - 32768)
            V.release(f2r, 4 * nf2)
        fd = list(o['fdma']); assert sum(fd) == len(fq)
        ffn_dma(fd[0])
        S(T0, 'w*256 + L_MODL'); va(vT, [(0, 6, 4)], T0)
        for q in range(3): self.dw('ds_write_b32', vT, ga + 1 + q, 1, q * 2048)
        self.dw('ds_write_b32', vT, wr1, 1, 3 * 2048)
        self.barrier()
        V.release(fx, 16); V.release(big, 8 * len(freg))
        ffn = V.alloc(48)
        mv = V.alloc(32); mf = V.alloc(32); x1 = V.alloc(16); hh = V.alloc(16); uu = V.alloc(16); st = V.alloc(2); op = V.alloc(8); ht = V.alloc(16)
        for q in range(4):
            self.r128(mv + 8 * q, vG16, L_MODL - GS + q * 2048); self.r128(mv + 8 * q + 4, vG16, L_MODL - GS + q * 2048 + 1024)
        S(T1, '((row >> 5)*8 + w)*8192 + kq*128 + X1F'); S(T3, 'T1 + 4096')
        va(vT + 3, [(3, 3, 512), (0, 3, 16)])
        S(T4, 'w*256 + L_XT'); va(vT + 6, [(0, 3, 2064), (3, 3, 16)], T4)
        S(T4, 'w*2064'); a(f'v_add_u32 v{vT+7}, s{T4}, v{vG16}')
        lg.wait_all()
        def e_work():
            for i in range(16): self.unpack(mf + 2 * i, mf + 2 * i + 1, mv + i)
            for i in range(8): a(f'v_mov_b32 v{ht+2*i+1}, s{sTAG}')
            self.stamp('ew')
        self.inbox(3, 2, work=e_work)
        self.stamp('x1ok')
        self.bl(xr, 4, vT + 3, rWS, T1, 0, 'sc1', 'x1a')
        self.bl(xr + 4, 4, vT + 3, rWS, T3, 0, 'sc1', 'x1b')
        vm.wait('x1a')
        self.dw('ds_write_b128', vT + 6, xr, 4, 0)
        vm.wait('x1b')
        self.dw('ds_write_b128', vT + 6, xr + 4, 4, 128)
        self.barrier()
        self.stamp('x1ld')
        self.r128(xr, vT + 7, L_XT - GS, 'xt'); self.r128(xr + 4, vT + 7, L_XT - GS + 1024, 'xt')
        ffn_dma(fd[1])
        lg.wait('xt')
        unp = []
        for i in range(8): unp += [f'v_lshlrev_b32 v{x1+2*i}, 16, v{xr+i}', f'v_and_b32 v{x1+2*i+1}, s{sMASK}, v{xr+i}']
        self.ln_stats(xr, vT, st, st + 1, unp)
        a(f'v_rcp_f32 v{st+1}, v{st+1}')
        for i in E2: self.pk('add', hh + i, x1 + i, st, bc=(1,), neg=(1,))
        self.round_list([hh + i for i in range(16)])
        for i in E2: self.pk('mul', hh + i, hh + i, st + 1, bc=(1,))
        self.round_list([hh + i for i in range(16)])
        for i in E2: self.pk('mul', hh + i, hh + i, mf + 16 + i)
        self.round_list([hh + i for i in range(16)])
        for i in E2: self.pk('add', hh + i, hh + i, mf + i)
        for i in range(8): a(f'v_cvt_pk_bf16_f32 v{ht+2*i}, v{hh+2*i}, v{hh+2*i+1}')
        for i in range(8): a(f'v_dot2_f32_bf16 v{st+(i&1)}, v{ht+2*i}, v{mv+24+i}, ' + ('0' if i < 2 else f'v{st+(i&1)}'))
        a(f'v_add_f32 v{st}, v{st}, v{st+1}')
        self.allreduce(st, st + 1)
        S(T0, '2047 - row'); S(T1, 'w*4 + L_KEY')
        a(f"""v_cvt_pk_bf16_f32 v{st}, 0, v{st}
        v_ashrrev_i32 v{st+1}, 31, v{st}
        v_or_b32 v{st+1}, 0x80000000, v{st+1}
        v_xor_b32 v{st}, v{st}, v{st+1}
        v_lshrrev_b32 v{st}, 16, v{st}
        v_lshl_or_b32 v{st}, v{st}, 11, s{T0}
        v_mov_b32 v{st+1}, s{T1}
        v_readfirstlane_b32 s{T0}, v{st}
        v_mov_b32 v{st}, s{T0}""")
        self.dw('ds_write_b32', st + 1, st, 1, 0)
        va(vT, [(0, 3, 4)], None, L_KEY)
        va(vT + 2, [(0, 4, 8 * 4096)])
        S(T3, 'row*2048')
        S(T4, 'row*4096 + H2')
        S(T1, '(wg & 0x87)*4096 + ((j >> 1) & 7)*64 + (j & 1)*16 + INB + 2048')
        self.barrier()
        self.stamp('ln2')
        self.dr('ds_read_b32', vT + 1, 1, vT)
        a(f'v_mov_b32 v{st+1}, s{sTAG}')
        lg.wait_all()
        a(f"""v_cmp_gt_u32 vcc, v{vT+1}, v{st}
        s_and_b32 s{T2}, vcc_lo, 0xff
        s_bcnt1_i32_b32 s{T2}, s{T2}
        s_cmp_ge_u32 s{T2}, 2
        s_cbranch_scc1 L_NOC1
        s_lshl3_add_u32 s{T1}, s{T2}, s{T1}
        s_mov_b64 exec, 0xffff""")
        self.bs(st, 2, vT + 2, rWS, T1, 0, 'sc1', count=False)
        a('s_mov_b64 exec, -1')
        def h2_store():
            for q in range(4): self.bs(ht + 4 * q, 4, vL16, rWS, T4, (q & 1) * 2048 + (q >> 1) * 1024, 'sc1', count=False)
        if not o.get('h2late', 1): h2_store()
        a('L_NOC1:')
        self.stamp('Fpub')
        def out_calc(part):
            if part == 0:
                for i in range(8): self.unpack(hh + 2 * i, hh + 2 * i + 1, ht + 2 * i)
                for i in range(8): self.unpack(mf + 2 * i, mf + 2 * i + 1, mv + 16 + i)
                return
            for i in E2: self.pk('mul', hh + i, hh + i, mf + i)
            self.round_list([hh + i for i in range(16)])
            for i in E2: self.pk('add', hh + i, hh + i, x1 + i)
            for i in range(8): a(f'v_cvt_pk_bf16_f32 v{op+i}, v{hh+2*i}, v{hh+2*i+1}')
            if o.get('outlate'): return
            a(f"""s_cmp_lt_u32 s{T2}, 2
            s_cbranch_scc1 L_NOC2""")
            self.bs(op, 4, vL16, rOUT, T3, 0, o.get('outmod', ''), count=False)
            self.bs(op + 4, 4, vL16, rOUT, T3, 1024, o.get('outmod', ''), count=False)
            a('L_NOC2:')
        oc = o.get('ocat', 1)
        self.weave(lambda: out_calc(0) if oc < 2 else None, [lambda: ffn_dma(1)] * fd[2])
        V.release(vFG); V.release(vFD)
        def f_level(box, lds, work=None):
            S(T0, 'w*8 + q', q=lds)
            a(f'v_mov_b32 v{vT}, s{T0}')
            a(f'v_mov_b32 v{vT+1}, {lds}')
            self.inbox(box, 8, (1, 3, 5, 7), work)
            P = sPL
            a(f"""s_min_u32 s{P+1}, s{P}, s{P+4}
            s_max_u32 s{P}, s{P}, s{P+4}
            s_max_u32 s{P+2}, s{P+2}, s{P+6}
            s_max_u32 s{P+1}, s{P+1}, s{P+2}
            v_mov_b32 v{uu}, s{P}
            v_mov_b32 v{uu+1}, s{P+1}""")
            self.dw('ds_write_b64', vT, uu, 2)
        def f_merge():
            for step in (2, 4, 8):
                for b in range(0, 16, 2 * step):
                    a(f'v_min_u32 v{vT+2}, v{uu+b}, v{uu+b+step}')
                    a(f'v_max_u32 v{uu+b}, v{uu+b}, v{uu+b+step}')
                    a(f'v_max3_u32 v{uu+b+1}, v{uu+b+1}, v{uu+b+step+1}, v{vT+2}')
        va(vT + 3, [(1, 3, 4096), (0, 1, 128 * 4096)])
        S(T1, '(j & 15)*(8*4096) + x*64 + (j >> 4)*16 + INB + 2560')
        f_level(4, L_K1, (lambda: out_calc(1)) if oc == 0 else None)
        if o.get('h2late', 1):
            a(f"""s_cmp_ge_u32 s{T2}, 2
            s_cbranch_scc1 L_NOC3""")
            h2_store()
            a('L_NOC3:')
        self.stamp('F1p')
        self.barrier()
        a(f"""s_cmp_lg_u32 s{sWAVE}, 0
        s_cbranch_scc1 L_NOF2""")
        for q in range(4): a(f'ds_read_b128 {vr(uu + 4*q, 4)}, v{vT+1} offset:{16*q}')
        a('s_waitcnt lgkmcnt(0)')
        f_merge()
        a(f"""v_mov_b32 v{uu+2}, v{uu+1}
        v_mov_b32 v{uu+1}, s{sTAG}
        v_mov_b32 v{uu+3}, s{sTAG}
        s_mov_b64 exec, 0xffff""")
        self.bs(uu, 4, vT + 3, rWS, T1, 0, 'sc1', count=False)
        a("""s_mov_b64 exec, -1
        L_NOF2:""")
        self.stamp('F1')
        vGr = V.alloc(); vDr = V.alloc(); vXs = V.alloc()
        S(T0, '(w >> 2)*32768 + (w & 3)*32 + L_GU')
        va(vGr, [(4, 2, 8192), (2, 2, 128), (3, 2, 32), (0, 2, 8)]); a(f'v_xor_b32 v{vGr}, s{T0}, v{vGr}')
        S(T0, 'w*64')
        va(vDr, [(2, 1, 512), (3, 1, 4096), (5, 1, 2048), (2, 2, 64), (4, 1, 32), (0, 2, 8)])
        a(f'v_xor_b32 v{vDr}, s{T0}, v{vDr}'); a(f'v_add_u32 v{vDr}, {L_DN}, v{vDr}')
        S(T0, 'kq*512 + H2'); va(vXs, [(0, 3, 16), (4, 2, 128)], T0)
        a(f'v_and_b32 v{vT+4}, 8, v{vL}')
        a(f'v_cmp_eq_u32 {sr(sCMP, 2)}, 0, v{vT+4}')
        va(vT + 4, [(0, 4, 16), (5, 1, 8)])
        S(T1, 'fs*8192 + HGR'); S(T7, '(kq*8 + w)*256 + T1')
        if oc == 2: out_calc(0)
        f_level(5, L_K2, (lambda: out_calc(1)) if oc else None)
        self.stamp('F2p')
        vm.wait_all()
        self.barrier()
        self.stamp('F2')
        for q in range(4): self.r128(uu + 4 * q, vT + 1, 16 * q, 'k2')
        lg.wait('k2'); f_merge()
        a(f"""v_cndmask_b32 v{vT}, v{uu+1}, v{uu}, {sr(sCMP, 2)}
        v_readfirstlane_b32 s{sK1}, v{uu}
        v_bfi_b32 v{vT}, v{vT}, 0, 63
        v_readfirstlane_b32 s{sK2}, v{uu+1}""".replace(f'v_bfi_b32 v{vT}, v{vT}, 0, 63', f'v_not_b32 v{vT}, v{vT}'))
        a(f"""v_and_b32 v{vT}, 2047, v{vT}
        v_lshl_add_u32 v{vT}, v{vT}, 12, v{vXs}""")
        def sel_work():
            self.stamp('sel')
            for s in range(8):
                self.tr(ffn + 4 * s, vGr, s * 1024); self.tr(ffn + 4 * s + 2, vGr, s * 1024 + 512)
            a(f"""s_andn2_b32 s{sROW0}, 2047, s{sK1}
            s_andn2_b32 s{sROW1}, 2047, s{sK2}""")
            lg.wait_all()
        self.try_load(lambda: [self.bl(uu + 4 + 4 * p, 4, vT, rWS, '0', 2048 * p, 'sc1') for p in range(2)], [uu + 5, uu + 7, uu + 9, uu + 11], vT + 1, sel_work)
        a(f"""v_mov_b32 v{uu+5}, v{uu+6}
        v_mov_b32 v{uu+6}, v{uu+8}
        v_mov_b32 v{uu+7}, v{uu+10}""")
        self.stamp('xsel')
        gd = [x1 + 4 * i for i in range(4)] + [hh + 4 * i for i in range(4)]
        for s in range(8):
            a(f'v_mfma_f32_16x16x32_bf16 {vr(gd[s], 4)}, {vr(uu + 4, 4)}, {vr(ffn + 4*s, 4)}, 0')
        for s in range(4):
            self.tr(ffn + 32 + 4 * s, vDr, s * 8192); self.tr(ffn + 32 + 4 * s + 2, vDr, s * 8192 + 1024)
        p0, p1 = uu, uu + 2
        for p, b in ((p0, 0), (p1, 4)):
            a(f'v_add_f32 v{p}, v{gd[b]}, v{gd[b+1]+1}')
            a(f'v_add_f32 v{p+1}, v{gd[b+2]+2}, v{gd[b+3]+3}')
        a(f"""v_add_f32 v{p0}, v{p0}, v{p0+1}
        v_add_f32 v{p1}, v{p1}, v{p1+1}
        v_mov_b32 v{p0+1}, s{sTAG}
        v_permlane16_swap_b32 v{p1}, v{p1+1}
        s_cmp_ge_u32 s{sJ}, 28
        s_cbranch_scc1 L_NOHP
        v_add_f32 v{p0}, v{p0}, v{p1+1}
        s_mov_b32 exec_lo, 0xffff
        s_mov_b32 exec_hi, 0xffff""")
        self.bs(p0, 2, vT + 4, rWS, T7, 0, 'sc1', count=False)
        a("""s_mov_b64 exec, -1
        L_NOHP:""")
        self.stamp('Hpub')
        fz = V.alloc(4)
        sFR, sFK, sFC0 = T4, T5, T6
        a(f"""s_bitcmp1_b32 s{sJ}, 1
        s_cselect_b32 s{sFR}, s{sROW1}, s{sROW0}
        s_cselect_b32 s{sFK}, s{sK2}, s{sK1}""")
        def late_out():
          if not o.get('outlate'): a(f"""s_cmp_ge_u32 s{T2}, 2
          s_cbranch_scc1 L_NOOUT""")
          a(f"""s_cmp_eq_u32 s{sRow}, s{sROW0}
        s_cbranch_scc1 L_NOOUT
        s_cmp_eq_u32 s{sRow}, s{sROW1}
        s_cbranch_scc1 L_NOOUT""")
          self.bs(op, 4, vL16, rOUT, T3, 0, o.get('outmod', ''), count=False)
          self.bs(op + 4, 4, vL16, rOUT, T3, 1024, o.get('outmod', ''), count=False)
          a('L_NOOUT:')
        if o.get('outlate', 0) < 2: late_out()
        a(f"""s_cmp_lg_u32 s{sRow}, 7
        s_cbranch_scc1 L_NONON
        v_mov_b32 v{vT+2}, s{sTAG}
        s_mov_b64 exec, 1""")
        self.bs(vT + 2, 1, vZ, rWS, '0', 0, 'sc1', count=False)
        a(f"""s_mov_b64 exec, -1
        L_NONON:
        s_cmp_ge_u32 s{sJ}, 28
        s_cbranch_scc1 L_FIN
        s_cmp_lg_u32 s{sWAVE}, 7
        s_cbranch_scc1 L_NOFZ""")
        S(sFC0, '(x*4 + ((j >> 2) & 3))*2 + (j & 1)')
        S(T7, '(x*16 + (j & 15))*(56*128) + GGR')
        S(sU, 'T4*2048 + T6*32')
        va(vT + 6, [(0, 3, 4)])
        S(T0, 'T6*32 + L_MODL + 4096'); a(f'v_add_u32 v{vT+1}, s{T0}, v{vT+6}')
        a(f'ds_read_b32 v{fz+2}, v{vT+1}')
        S(sK1, 'T4*4096 + T6*32 + H2')
        va(vT + 7, [(2, 1, 16), (1, 1, 2048), (0, 1, 8)])
        S(T0, '((T4 >> 5)*64 + T6)*1024 + (T4 & 31)*16 + X1F')
        va(vT + 1, [(2, 1, 512), (0, 2, 4)])
        a(f'buffer_load_dword v{fz+1}, v{vT+1}, {sr(rWS, 4)}, s{T0} offen sc1')
        a(f"""s_lshr_b32 s{T0}, s{sFK}, 11
        s_lshl_b32 s{T0}, s{T0}, 16
        s_ashr_i32 s{T2}, s{T0}, 31
        s_andn2_b32 s{T2}, 0x7fff0000, s{T2}
        s_or_b32 s{T2}, s{T2}, 0x80000000
        s_xor_b32 s{T0}, s{T0}, s{T2}
        v_mov_b32 v{fz+3}, s{T0}
        v_mul_f32 v{fz+3}, s{sL2E}, v{fz+3}
        v_exp_f32 v{fz+3}, -v{fz+3}
        v_add_f32 v{fz+3}, 1.0, v{fz+3}
        v_rcp_f32 v{fz+3}, v{fz+3}""")
        self.round1(fz + 3)
        a('L_NOFZ:')
        a(f"""s_cmp_ge_u32 s{sWAVE}, 4
        s_cbranch_scc1 L_NOH""")
        S(T0, 'w*256 + T1')
        va(vT, [(4, 2, 2048), (0, 4, 16)])
        S(T2, 'w*32 + L_ACT'); va(vT + 1, [(5, 1, 128), (2, 1, 16), (1, 1, 8), (3, 1, 4), (0, 1, 2)], T2)
        self.spoll([(q, 1, T0, q * 2048 + 1024 + 252) for q in range(4)], range(4))
        self.stamp('Hpre')
        g, u = x1, x1 + 4
        self.poll(lambda: [self.bl(x1 + 4 * m, 4, vT, rWS, T0, m * 1024, 'sc1') for m in range(2)], [g + 1, g + 3, u + 1, u + 3], vT + 2)
        a(f"""v_permlane32_swap_b32 v{g}, v{g+2}
        v_permlane32_swap_b32 v{u}, v{u+2}
        v_add_f32 v{g}, v{g}, v{g+2}
        v_add_f32 v{u}, v{u}, v{u+2}
        v_mov_b32 v{g+2}, v{g}
        v_mov_b32 v{u+2}, v{u}
        v_permlane16_swap_b32 v{g}, v{g+2}
        v_permlane16_swap_b32 v{u}, v{u+2}
        v_add_f32 v{g}, v{g}, v{g+2}
        v_add_f32 v{u}, v{u}, v{u+2}""")
        self.round2(g, u)
        self.silu(g, vT + 2)
        a(f"""v_mul_f32 v{g}, v{g}, v{u}
        v_cvt_pk_bf16_f32 v{g}, v{g}, v{g}
        ds_write_b16 v{vT+1}, v{g}
        L_NOH:""")
        va(vT, [(2, 1, 128), (5, 1, 16)], None, L_ACT)
        va(vT + 1, [(4, 2, 56 * 128), (0, 4, 8)])
        va(vT + 2, [(0, 2, 8 * 4096)])
        S(T0, '(kq*8 + w)*(4*56*128) + fs*128 + GGR')
        S(T1, '(kq*2 + (w >> 2) + (w & 3)*32)*4096 + x*64 + (j >> 2)*4 + INB + 3072')
        self.barrier()
        self.stamp('Hok')
        for s in range(4): self.r128(x1 + 4 * s, vT, s * 32, ('ac', s))
        for s in range(4):
            lg.wait(('ac', s))
            a(f'v_mfma_f32_32x32x16_bf16 {vr(hh, 16)}, {vr(x1 + 4*s, 4)}, {vr(ffn + 32 + 4*s, 4)}, ' + ('0' if s == 0 else vr(hh, 16)))
        a(f'v_mov_b32 v{hh+1}, s{sTAG}')
        self.bs(hh, 2, vT + 1, rWS, T0, 0, 'sc1')
        a('s_mov_b64 exec, 15')
        self.bs(hh + 1, 1, vT + 2, rWS, T1, 0, 'sc1')
        a('s_mov_b64 exec, -1')
        self.stamp('Gpub')
        a(f"""s_cmp_ge_u32 s{sJ}, 16
        s_cbranch_scc1 L_FIN""")
        self.inbox(6, 8, range(7))
        self.stamp('Gpre')
        a(f"""s_barrier
        s_cmp_lg_u32 s{sWAVE}, 7
        s_cbranch_scc1 L_FIN""")
        S(T0, 'T7 + 4096')
        gg = [x1 + 4 * i for i in range(4)] + [uu + 4 * i for i in range(3)]
        self.poll(lambda: [self.bl(gg[n], 4, vL16, rWS, (T7, T0)[n >> 2], (n & 3) * 1024, 'sc1') for n in range(7)] + [self.bl(st, 2, vT + 7, rWS, sK1, 0, 'sc1')],
                  [gg[n] + 1 + 2 * e for n in range(7) for e in range(2)] + [st + 1], vT)
        self.stamp('Gok')
        for n in range(1, 7):
            for e in (0, 2): a(f'v_add_f32 v{gg[0]+e}, v{gg[0]+e}, v{gg[n]+e}')
        y0, y1 = gg[0], gg[0] + 1
        a(f'v_mov_b32 v{y1}, v{gg[0]+2}')
        for y in (y0, y1): self.dpp('v_add_f32', y, y, y, 'row_ror:8')
        for sw in ('v_permlane16_swap_b32', 'v_permlane32_swap_b32'):
            for y in (y0, y1): a(f'v_mov_b32 v{y+2}, v{y}')
            for y in (y0, y1): a(f'{sw} v{y}, v{y+2}')
            self.pk('add', y0, y0, y0 + 2)
        self.round2(y0, y1)
        self.pk('mul', y0, y0, fz + 3, bc=(1,))
        self.unpack(vT, vT + 1, st)
        self.round2(y0, y1)
        self.pk('add', y0, y0, vT)
        self.unpack(vT, vT + 1, fz + 2)
        self.round2(y0, y1)
        self.pk('mul', y0, y0, vT)
        self.unpack(vT, vT + 1, fz + 1)
        self.round2(y0, y1)
        self.pk('add', y0, y0, vT)
        a(f'v_cvt_pk_bf16_f32 v{y0}, v{y0}, v{y1}')
        a('s_mov_b64 exec, 0xff')
        self.bs(y0, 1, vT + 6, rOUT, sU, 0, 'sc1')
        a('s_mov_b64 exec, -1')
        a('L_FIN:')
        if o.get('outlate', 0) == 2: late_out()
        if o.get('exfil'):
            a('s_waitcnt vmcnt(0) lgkmcnt(0)')
            self.stamp('fin')
            a(f'''v_readlane_b32 s{T0}, v255, 0
            v_readlane_b32 s{T1}, v255, 1
            v_readlane_b32 s{T2}, v255, 2
            s_sub_u32 s{T2}, s{T2}, s{T1}
            s_max_i32 s{T2}, s{T2}, 0
            s_min_u32 s{T2}, s{T2}, 10000
            s_mul_i32 s{T2}, s{T2}, 10''')
            if len(o['exfil']) > 2:
                a(f'''s_cmp_eq_u32 s{sRow}, {o['exfil'][2]}
                s_cselect_b32 s{T2}, s{T2}, 0''')
            a(f'''s_add_u32 s{T2}, s{T2}, 6000
            L_PAD:
            s_memrealtime {sr(sTM, 2)}
            s_waitcnt lgkmcnt(0)
            s_sub_u32 s{T1}, s{sTM}, s{T0}
            s_cmp_lt_u32 s{T1}, s{T2}
            s_cbranch_scc1 L_PAD''')
        if self.prof:
            a('s_waitcnt vmcnt(0) lgkmcnt(0)')
            self.stamp('end')
            a(f's_memrealtime {sr(sTM, 2)}')
            a('s_waitcnt lgkmcnt(0)')
            a(f'v_writelane_b32 v255, s{sTM}, 61')
            S(T0, '(wg*8 + w)*256 + STAMPS')
            a(f'v_writelane_b32 v255, s{sSPIN}, 62')
            a(f'v_lshlrev_b32 v{vT+1}, 2, v{vL}')
            a(f'buffer_store_dword v255, v{vT+1}, {sr(rWS, 4)}, s{T0} offen')
            S(T0, 'T0 + 0x100000')
            a(f'buffer_store_dword v254, v{vT+1}, {sr(rWS, 4)}, s{T0} offen')
        a('L_END:')
        a('s_endpgm')
        return self

    def text(self):
        a = self.a
        npad = a.fix_hazards()
        errs = a.check_waits([NAME])
        for e in errs: print('WAITERR', e, file=sys.stderr)
        assert not errs
        hdr = open(os.path.join(os.path.dirname(os.path.abspath(__file__)), 'header.txt')).read()
        s = hdr + '; @launch grid=(256,1,1) block=(512,1,1) lds=163840\n'
        s += '.amdgcn_target "amdgcn-amd-amdhsa--gfx950"\n.text\n'
        s += f'.globl {NAME}\n.p2align 8\n.type {NAME},@function\n'
        body = a.text()
        import subprocess, tempfile
        with tempfile.TemporaryDirectory() as td:
            open(td + '/t.s', 'w').write('.amdgcn_target "amdgcn-amd-amdhsa--gfx950"\n.text\n' + body.replace('CODE_KB', '20480'))
            subprocess.run(['clang', '-x', 'assembler', '-target', 'amdgcn-amd-amdhsa', '-mcpu=gfx950', '-c', td + '/t.s', '-o', td + '/t.o'], check=True)
            subprocess.run(['llvm-objcopy', '-O', 'binary', '-j', '.text', td + '/t.o', td + '/t.bin'], check=True)
            size = os.path.getsize(td + '/t.bin')
        print('; code bytes', size, file=sys.stderr)
        s += body.replace('CODE_KB', str((size // 1024 + 1) * 1024))
        s += '.p2align 10\n.fill 768, 4, 0xbf800000\n'
        s += '.section .rodata,"a"\n' + kernel_desc(NAME, 256, 102)
        print(f'; vgpr hi {self.V.hi}, nops {npad}, instrs {sum(1 for k, _ in a.items if k == "ins")}', file=sys.stderr)
        return s


if __name__ == '__main__':
    import argparse, json
    ap = argparse.ArgumentParser()
    ap.add_argument('-o', default='/dev/stdout')
    ap.add_argument('--prof', action='store_true')
    ap.add_argument('--opts', default='{}')
    args = ap.parse_args()
    g = Gen(args.prof, json.loads(args.opts)).build()
    t = g.text()
    open(args.o, 'w').write(t)
    if args.prof: open(args.o + '.stamps', 'w').write(json.dumps(g.stnames))
```

```python
import sys, os
sys.path.insert(0, os.path.dirname(os.path.abspath(__file__)))
from asm import *

NAME = 'adaLN_cond__linear_kernel_hedgehog__moe_arch_mod__prompt_kernel'

NONCE = 0x0
GR = 0x010000
MODP2 = 0x020000
SINB = 0x040000
AINB = 0x080000
INA = 0x200000
INB = 0x100000
HF = 0x400000
OF = 0x800000
STAT = 0xC00000
CAND = 0x2000000
HGR = 0x1400000
ZP = 0x1480000
GGR = 0x1500000
KVP = 0x1800000
KIN = 0x1C00000
STAMPS = 0x1600000
WS_BYTES = 268435456

SLOT = 24576
SCR = 147456
L_A1 = SCR
L_M2 = SCR + 2048
L_WPHI = SCR + 12288
L_ST = SCR + 6144
L_MP = SCR + 8192
L_XF = SCR
L_PHK = 0
L_V = 32768
WO_H0 = 32768
WO_H1 = 98304
GS = 0
L_KVF = GS
L_ZF = GS + 8192
L_EXCH = GS
L_MT = GS + 12288
L_GU = 32768
L_DN = 98304
TS = 131072
L_SP = TS
L_ST2 = TS + 4096
L_K1 = TS + 5120
L_K2 = TS + 5184
L_K3 = TS + 5312
L_XS = TS + 5632
L_ACT = TS + 7680
L_TB = TS + 7936
L_GB = L_TB + 256
L_OT = TS + 8704
L_XT = GS

SPIN_LIMIT = 200000

sWAVE, sTAG, sSPIN, sMASK, sL2E = 3, 4, 5, 6, 7
sX, sJ, sR1, sHP, sCB = 8, 9, 10, 11, 12
T0, T1, T2, T3, T4, T5, T6, T7 = 13, 14, 15, 16, 17, 18, 19, 20
sRT = 21
sCMP = 22
sPL = 24
rWS, rX, rW, rWO, rWM, rWG, rWU, rWD, rOUT = 32, 36, 40, 44, 48, 52, 56, 60, 64
KA = 68
pWPHI, pWR, pC = KA + 4, KA + 10, KA + 18
sK1, sK2, sROW0, sROW1, sFS, sKQ, sKH, sKF = 68, 69, 70, 71, 74, 75, 76, 77
sFG, sFD, sU, sROT, sWB, sU0 = 80, 81, 82, 83, 84, 85
sWO2, sW1K, sMF = 88, 89, 90
sINB, sRow, sGTB, sC32 = 92, 93, 94, 95
sXC = 94
pDBG = 30
XT = (96, 97, 98, 99)
sTM = 100
ENV = dict(wg=2, w=sWAVE, x=sX, j=sJ, r1=sR1, hp=sHP, cb=sCB, rt=sRT, row=sRow, gtb=sGTB, c32=sC32, kh=sKH, kf=sKF, fs=sFS, kq=sKQ,
           rot=sROT, wb=sWB, u0=sU0, wo2=sWO2, w1k=sW1K, mf=sMF, u=sU, fg=sFG, fd=sFD, T0=T0, T1=T1, T2=T2, T3=T3, T4=T4, T5=T5, T6=T6, T7=T7, row0=sROW0, row1=sROW1, k1=sK1)


class Gen:
    def __init__(self, prof=False, opts=None):
        self.a = Asm()
        self.vm = Counter(self.a, 'vmcnt', 63)
        self.lg = Counter(self.a, 'lgkmcnt', 15)
        self.V = RegAlloc(254, 1)
        self.prof = prof
        self.nopk = False
        self.nst = 0
        self.stnames = []
        self.S = SExpr(self.a, ENV, {k: v for k, v in globals().items() if isinstance(v, int) and k.isupper() and k not in ENV}, XT)
        self.o = dict(AD=12, AD2=4, wburst=(0, 3, 0, 0, 6, 3), LASTB=13,
                      sched={1: 'm1 p2', 2: 's4', 3: 'm1 s4', 4: 'p2', 5: 'm1 g2', 7: 'm1 g2 p3', 9: 'g2 q', 10: 'g2', 11: 'r', 12: 'P', 14: 'o4 f4', 15: 'f2'}, fdma=(3, 0, 1, 1, 1), wowin=(2, 4, 3))
        if opts: self.o.update(opts)

    def bl(self, dst, n, voff, srd, soff, imm=0, mods='', tag=None):
        op = {1: 'dword', 2: 'dwordx2', 4: 'dwordx4'}[n]
        so = soff if isinstance(soff, str) else (sr(soff))
        self.a(f'buffer_load_{op} {vr(dst, n)}, v{voff}, {sr(srd, 4)}, {so} offen' + (f' offset:{imm}' if imm else '') + (' ' + mods if mods else ''))
        self.vm.issue(tag)
    def bs(self, src, n, voff, srd, soff, imm=0, mods='', tag=None, count=True):
        op = {1: 'dword', 2: 'dwordx2', 4: 'dwordx4'}[n]
        so = soff if isinstance(soff, str) else (sr(soff))
        self.a(f'buffer_store_{op} {vr(src, n)}, v{voff}, {sr(srd, 4)}, {so} offen' + (f' offset:{imm}' if imm else '') + (' ' + mods if mods else ''))
        if count: self.vm.issue(tag)
    def dma(self, voff, srd, soff, imm=0, mods='', tag=None):
        self.a(f'buffer_load_dwordx4 v{voff}, {sr(srd, 4)}, {sr(soff)} offen' + (f' offset:{imm}' if imm else '') + (' ' + mods if mods else '') + ' lds')
        self.vm.issue(tag)
    def dr(self, op, dst, n, addr, off=0, tag=None):
        assert 0 <= off < 65536, off
        self.a(f'{op} {vr(dst, n)}, v{addr}' + (f' offset:{off}' if off else ''))
        self.lg.issue(tag)
    def tr(self, dst, addr, off, tag=None): self.dr('ds_read_b64_tr_b16', dst, 2, addr, off, tag)
    def r128(self, dst, addr, off=0, tag=None): self.dr('ds_read_b128', dst, 4, addr, off, tag)
    def dw(self, op, addr, src, n, off=0, tag=None):
        assert 0 <= off < 65536, off
        self.a(f'{op} v{addr}, {vr(src, n)}' + (f' offset:{off}' if off else ''))
        self.lg.issue(tag)
    def barrier(self):
        self.lg.wait_all()
        self.a('s_barrier')
    def stamp(self, name):
        ex = self.o.get('exfil')
        if ex and name in ex[:2]:
            self.a(f's_memrealtime {sr(sTM, 2)}')
            self.lg.wait_all()
            self.a(f'v_writelane_b32 v255, s{sTM}, {1 + ex.index(name)}')
        if not self.prof: return
        only = self.o.get('only')
        if only and name not in only and name != 'end': return
        self.a(f's_memtime {sr(sTM, 2)}')
        self.a(f's_memrealtime s[0:1]')
        self.lg.wait_all()
        self.a(f'v_writelane_b32 v255, s{sSPIN if self.o.get("spinst") and self.nst > 3 else sTM}, {self.nst}')
        self.a(f'v_writelane_b32 v254, s0, {self.nst}')
        self.stnames.append(name)
        self.nst += 1
        assert self.nst <= 60
    def unpack(self, lo, hi, src):
        self.a(f'v_lshlrev_b32 v{lo}, 16, v{src}')
        self.a(f'v_and_b32 v{hi}, s{sMASK}, v{src}')
    def round1(self, r):
        self.a(f'v_cvt_pk_bf16_f32 v{r}, 0, v{r}')
    def round2(self, r0, r1):
        self.round1(r0); self.round1(r1)
    def round_list(self, regs):
        for r in regs: self.round1(r)
    def pk(self, op, d, s0, s1, s2=None, bc=(), neg=()):
        srcs = [s0, s1] + ([s2] if s2 is not None else [])
        if self.nopk:
            for h in range(2):
                t = []
                for k, r in enumerate(srcs):
                    kind, n = r if isinstance(r, tuple) else ('v', r)
                    t.append(('-' if k in neg else '') + f'{kind}{n if k in bc else n + h}')
                e64 = '' if op == 'fma' else ('_e64' if (neg or t[1][0] == 's') else '')
                self.a(f'v_{op}_f32{e64} v{d+h}, ' + ', '.join(t))
            return
        txt, sel, selhi = [], [], []
        for k, r in enumerate(srcs):
            kind, n = r if isinstance(r, tuple) else ('v', r)
            if k in bc:
                txt.append(f'{kind}[{n & ~1}:{(n & ~1) + 1}]'); sel.append(n & 1); selhi.append(n & 1)
            else:
                assert n % 2 == 0
                txt.append(f'{kind}[{n}:{n+1}]'); sel.append(0); selhi.append(1)
        assert d % 2 == 0
        m = ''
        if any(sel): m += ' op_sel:[' + ','.join(map(str, sel)) + ']'
        if not all(selhi): m += ' op_sel_hi:[' + ','.join(map(str, selhi)) + ']'
        if neg:
            ng = ','.join('1' if k in neg else '0' for k in range(len(srcs)))
            m += f' neg_lo:[{ng}] neg_hi:[{ng}]'
        self.a(f'v_pk_{op}_f32 v[{d}:{d+1}], ' + ', '.join(txt) + m)
    def dpp(self, op, d, s0, s1, ctl):
        self.a(f'{op}_dpp v{d}, v{s0}, v{s1} {ctl} row_mask:0xf bank_mask:0xf')
    def allreduce(self, v, t, op='v_add_f32', lo=True, b3=True):
        if lo:
            self.dpp(op, v, v, v, 'quad_perm:[1,0,3,2]')
            self.dpp(op, v, v, v, 'quad_perm:[2,3,0,1]')
            self.dpp(op, v, v, v, 'row_half_mirror')
        self.dpp(op, v, v, v, 'row_ror:8')
        self.a(f'v_mov_b32 v{t}, v{v}')
        self.a(f'v_permlane16_swap_b32 v{v}, v{t}')
        self.a(f'{op} v{v}, v{v}, v{t}')
        self.a(f'v_mov_b32 v{t}, v{v}')
        self.a(f'v_permlane32_swap_b32 v{v}, v{t}')
        self.a(f'{op} v{v}, v{v}, v{t}')
    def poll(self, loads, tagregs, tmp=None):
        a = self.a
        L, D = a.label('POLL'), a.label('PDONE')
        a(f'{L}:')
        loads()
        self.vm.wait_all()
        if len(tagregs) == 1:
            a(f'v_cmp_ne_u32 vcc, s{sTAG}, v{tagregs[0]}')
        else:
            a(f'v_bitop3_b32 v{tmp}, v{tagregs[0]}, v{tagregs[1]}, s{sTAG} bitop3:0x7e')
            for t in tagregs[2:]: a(f'v_bitop3_b32 v{tmp}, v{tmp}, v{t}, s{sTAG} bitop3:0xf6')
            a(f'v_cmp_ne_u32 vcc, 0, v{tmp}')
        a(f's_cbranch_vccz {D}')
        a(f's_add_u32 s{sSPIN}, s{sSPIN}, 1')
        a(f's_cmp_lt_u32 s{sSPIN}, {SPIN_LIMIT * 8}')
        a(f's_cbranch_scc1 {L}')
        a(f'{D}:')
    def weave(self, fn, extras):
        a = self.a
        keep = a.items; a.items = []
        fn()
        body = a.items; a.items = keep
        extras = list(extras); n = len(extras)
        for i, it in enumerate(body):
            while extras and (n - len(extras)) * len(body) <= i * n: extras.pop(0)()
            a.items.append(it)
        for e in extras: e()
    def tagcheck(self, tagregs, tmp):
        a = self.a
        if len(tagregs) == 1:
            a(f'v_cmp_ne_u32 vcc, s{sTAG}, v{tagregs[0]}')
        else:
            a(f'v_bitop3_b32 v{tmp}, v{tagregs[0]}, v{tagregs[1]}, s{sTAG} bitop3:0x7e')
            for t in tagregs[2:]: a(f'v_bitop3_b32 v{tmp}, v{tmp}, v{t}, s{sTAG} bitop3:0xf6')
            a(f'v_cmp_ne_u32 vcc, 0, v{tmp}')
    def try_load(self, loads, tagregs, tmp=None, between=None, pre=None):
        a = self.a
        n0 = len(self.vm.q)
        loads()
        self.vm.q[-1] = tg = ('try', a.label('T'))
        if between: between()
        self.vm.wait(tg)
        OK = a.label('TOK')
        self.tagcheck(tagregs, tmp)
        a(f's_cbranch_vccz {OK}')
        q, l = list(self.vm.q), list(self.lg.q)
        if pre: pre()
        self.poll(loads, tagregs, tmp)
        self.vm.q, self.lg.q = q, l
        a(f'{OK}:')
    def finish_load(self, tg, loads, tagregs, tmp=None, pre=None):
        a = self.a
        self.vm.wait(tg)
        OK = a.label('TOK')
        self.tagcheck(tagregs, tmp)
        a(f's_cbranch_vccz {OK}')
        q, l = list(self.vm.q), list(self.lg.q)
        if pre: pre()
        self.poll(loads, tagregs, tmp)
        self.vm.q, self.lg.q = q, l
        a(f'{OK}:')
    def spoll(self, loads, checks, work=None, pipe=0):
        a = self.a
        L, C, D = a.label('SPOLL'), a.label('SCHK'), a.label('SDONE')
        def issue(note=''):
            for d, n, so, imm in loads:
                op = {1: 'dword', 2: 'dwordx2', 4: 'dwordx4', 8: 'dwordx8'}[n]
                a(f's_load_{op} {sr(sPL + d, n)}, {sr(rWS, 2)}, s{so} offset:{imm} glc' + note)
        if pipe:
            self.lg.wait_all()
            for k in checks: a(f's_not_b32 s{sPL + k}, s{sTAG}')
            issue(' ; nowait')
            if work: work()
            a(f'{L}:')
            a(f's_add_u32 s{sSPIN}, s{sSPIN}, 1')
            a(f's_cmp_ge_u32 s{sSPIN}, {SPIN_LIMIT * 8}')
            a(f's_cbranch_scc1 {D}')
            ks = list(checks)
            a(f's_xor_b32 s{XT[0]}, s{sPL + ks[0]}, s{sTAG} ; nowait')
            for k in ks[1:]:
                a(f's_xor_b32 s{XT[1]}, s{sPL + k}, s{sTAG} ; nowait')
                a(f's_or_b32 s{XT[0]}, s{XT[0]}, s{XT[1]}')
            a(f's_cbranch_scc0 {D}')
            issue(' ; nowait')
            a(f's_sleep {pipe}')
            a(f's_branch {L}')
            a(f'{D}:')
            return
        if work:
            issue(); work()
            a(f's_branch {C}')
        a(f'{L}:')
        issue()
        a(f'{C}:')
        a(f's_add_u32 s{sSPIN}, s{sSPIN}, 1')
        a(f's_cmp_ge_u32 s{sSPIN}, {SPIN_LIMIT * 8}')
        self.lg.wait_all()
        a(f's_cbranch_scc1 {D}')
        for k in checks:
            a(f's_cmp_lg_u32 s{sPL + k}, s{sTAG}')
            a(f's_cbranch_scc1 {L}')
        a(f'{D}:')
    def inbox(self, box, n, checks=None, work=None, pipe=0):
        self.spoll([(0, n, sINB, box * 512)], range(n) if checks is None else checks, work, pipe)
    def va(self, dst, terms, sreg=None, const=0, tmp=None):
        a = self.a; vL = self.vL
        first = True
        for sh, bits, mult in terms:
            full = sh + bits >= 6
            src = vL
            t = dst if first else tmp
            if sh == 0 and full: pass
            elif full: a(f'v_lshrrev_b32 v{t}, {sh}, v{vL}'); src = t
            elif sh == 0: a(f'v_and_b32 v{t}, {(1 << bits) - 1}, v{vL}'); src = t
            else: a(f'v_bfe_u32 v{t}, v{vL}, {sh}, {bits}'); src = t
            p2 = mult & (mult - 1) == 0
            k = mult.bit_length() - 1
            if first:
                if p2 and sreg is not None: a(f'v_lshl_add_u32 v{dst}, v{src}, {k}, s{sreg}'); sreg = None
                elif p2 and k: a(f'v_lshlrev_b32 v{dst}, {k}, v{src}')
                elif p2:
                    if src != dst: a(f'v_mov_b32 v{dst}, v{src}')
                else: a(f'v_mul_u32_u24 v{dst}, {mult}, v{src}')
            else:
                assert p2
                a(f'v_lshl_add_u32 v{dst}, v{src}, {k}, v{dst}')
            first = False
        if sreg is not None: a(f'v_add_u32 v{dst}, s{sreg}, v{dst}')
        if const: a(f'v_add_u32 v{dst}, {const}, v{dst}')
    def push(self, vaddr, soff, nl, vtmp, lab, wave=0):
        a = self.a
        a(f's_cmp_lg_u32 s{sWAVE}, {wave}')
        a(f's_cbranch_scc1 {lab}')
        a(f'v_mov_b32 v{vtmp}, s{sTAG}')
        a(f's_mov_b32 exec_hi, 0')
        if nl < 32: a(f's_mov_b32 exec_lo, {(1 << nl) - 1}')
        self.bs(vtmp, 1, vaddr, rWS, soff, 0, 'sc1', count=False)
        a('s_mov_b64 exec, -1')
        a(f'{lab}:')
    def silu(self, v, t):
        a = self.a
        a(f'v_mul_f32 v{t}, s{sL2E}, v{v}')
        a(f'v_exp_f32 v{t}, -v{t}')
        a(f'v_add_f32 v{t}, 1.0, v{t}')
        a(f'v_rcp_f32 v{t}, v{t}')
        a(f'v_mul_f32 v{v}, v{v}, v{t}')
        self.round1(v)
    def gemv_ops(self, wregs, cregs, acc, t0, t1, packed):
        ops = []
        assert t0 % 2 == 0 and t1 == t0 + 1
        for i, (w, c) in enumerate(zip(wregs, cregs)):
            cp = f'v[{c & ~1}:{(c & ~1) + 1}]'
            for d in range(4):
                tt = t0 + 2 * (d & 1)
                ops.append(f'v_lshlrev_b32 v{tt}, 16, v{w+d}')
                ops.append(f'v_and_b32 v{tt+1}, s{sMASK}, v{w+d}')
                ac = f'v[{acc+2*d}:{acc+2*d+1}]'
                if not packed:
                    for h in range(2): ops.append(f'v_mul_f32 v{acc+2*d+h}, v{tt+h}, v{c}' if i == 0 else f'v_fmac_f32 v{acc+2*d+h}, v{tt+h}, v{c}')
                elif i == 0: ops.append(f'v_pk_mul_f32 {ac}, v[{tt}:{tt+1}], {cp} op_sel:[0,{c & 1}] op_sel_hi:[1,{c & 1}]')
                else: ops.append(f'v_pk_fma_f32 {ac}, v[{tt}:{tt+1}], {cp}, {ac} op_sel:[0,{c & 1},0] op_sel_hi:[1,{c & 1},1]')
        for i in range(4): ops.append(f'v_permlane32_swap_b32 v{acc+i}, v{acc+4+i}')
        for i in range(4): ops.append(f'v_add_f32 v{acc+i}, v{acc+i}, v{acc+4+i}')
        for i in range(2): ops.append(f'v_permlane16_swap_b32 v{acc+i}, v{acc+2+i}')
        for i in range(2): ops.append(f'v_add_f32 v{acc+i}, v{acc+i}, v{acc+2+i}')
        for i in range(2): ops.append(f'v_add_f32_dpp v{acc+i}, v{acc+i}, v{acc+i} row_ror:8 row_mask:0xf bank_mask:0xf')
        ops.append(f'v_mov_b32_dpp v{acc}, v{acc+1} quad_perm:[0,1,2,3] row_mask:0xf bank_mask:0xc')
        return ops
    def sum8(self, b):
        self.pk('add', b, b, b + 2); self.pk('add', b + 4, b + 4, b + 6); self.pk('add', b, b, b + 4)
        self.a(f'v_add_f32 v{b}, v{b}, v{b+1}')
    def softmax_pm(self, p, e, out, t, mid=None, part=0, split=0):
        a = self.a
        mx, mn, u0, u1, s0, s1 = t, t + 1, t + 2, t + 3, t + 4, t + 6
        if part != 2:
            self.round_list([p + i for i in range(16)])
            a(f'v_max3_f32 v{mx}, v{p}, v{p+1}, v{p+2}')
            a(f'v_min3_f32 v{mn}, v{p}, v{p+1}, v{p+2}')
            for i in range(3, 15, 2):
                a(f'v_max3_f32 v{mx}, v{mx}, v{p+i}, v{p+i+1}')
                a(f'v_min3_f32 v{mn}, v{mn}, v{p+i}, v{p+i+1}')
            a(f'v_max_f32 v{u0}, v{mx}, v{p+15}')
            a(f'v_min_f32 v{u1}, v{mn}, v{p+15}')
            a(f'v_max_f32 v{mx}, v{mx}, v{p+15}')
            a(f'v_min_f32 v{mn}, v{mn}, v{p+15}')
            a(f'v_permlane32_swap_b32 v{mx}, v{u0}')
            a(f'v_permlane32_swap_b32 v{mn}, v{u1}')
            a(f'v_max_f32 v{mx}, v{mx}, v{u0}')
            a(f'v_min_f32 v{mn}, v{mn}, v{u1}')
            self.pk('mul', mx, mx, ('s', sL2E), bc=(1,))
            for i in range(0, 16, 2):
                self.pk('fma', e + i, p + i, ('s', sL2E), mx, bc=(1, 2), neg=(2,))
                self.pk('fma', p + i, p + i, ('s', sL2E), mn, bc=(1, 2), neg=(0,))
        for i in range(split if part == 2 else 0, 16):
            if mid and i == mid[0]: mid[1]()
            if part == 1 and i == split: return
            a(f'v_exp_f32 v{e+i}, v{e+i}')
            a(f'v_exp_f32 v{p+i}, v{p+i}')
        self.pk('add', s0, e, e + 2); self.pk('add', s1, p, p + 2)
        for i in range(4, 16, 2):
            self.pk('add', s0, s0, e + i); self.pk('add', s1, s1, p + i)
        a(f'v_add_f32 v{u0}, v{s0}, v{s0+1}')
        a(f'v_add_f32 v{u1}, v{s1}, v{s1+1}')
        a(f'v_add_f32 v{mx}, v{s0}, v{s0+1}')
        a(f'v_add_f32 v{mn}, v{s1}, v{s1+1}')
        a(f'v_permlane32_swap_b32 v{mx}, v{u0}')
        a(f'v_permlane32_swap_b32 v{mn}, v{u1}')
        self.pk('add', mx, mx, u0)
        a(f'v_rcp_f32 v{mx}, v{mx}')
        a(f'v_rcp_f32 v{mn}, v{mn}')
        for i in range(0, 16, 2):
            self.pk('mul', e + i, e + i, mx, bc=(1,))
            self.pk('mul', p + i, p + i, mn, bc=(1,))
        for i in range(8):
            a(f'v_cvt_pk_bf16_f32 v{out+i}, v{e+2*i}, v{e+2*i+1}')
            a(f'v_cvt_pk_bf16_f32 v{out+8+i}, v{p+2*i}, v{p+2*i+1}')
    def ln_stats(self, xp, t, m_out, sd_out, fill=()):
        a = self.a
        fill = list(fill)
        def pad(n):
            for _ in range(n):
                if fill: a(fill.pop(0))
        s, u = t, t + 4
        a(f'v_mov_b32 v{u}, 0x3f803f80')
        for i in range(8):
            k = 2 * (i & 1)
            a(f'v_dot2_f32_bf16 v{s+k}, v{xp+i}, v{u}, ' + ('0' if i < 2 else f'v{s+k}'))
            a(f'v_dot2_f32_bf16 v{s+k+1}, v{xp+i}, v{xp+i}, ' + ('0' if i < 2 else f'v{s+k+1}'))
        pad(3)
        self.pk('add', s, s, s + 2)
        for ctl in ('quad_perm:[1,0,3,2]', 'quad_perm:[2,3,0,1]', 'row_half_mirror', 'row_ror:8'):
            pad(2 if ctl.endswith('3,2]') else 1)
            self.dpp('v_add_f32', s, s, s, ctl); self.dpp('v_add_f32', s + 1, s + 1, s + 1, ctl)
        pad(2)
        a(f'v_permlane16_swap_b32 v{s}, v{s+1}')
        a(f'v_add_f32 v{u}, v{s}, v{s+1}')
        a(f'v_add_f32 v{s}, v{s}, v{s+1}')
        pad(2)
        a(f'v_permlane32_swap_b32 v{s}, v{u}')
        a(f'v_add_f32 v{s}, v{s}, v{u}')
        a(f'v_mul_f32 v{u}, 0x3a800000, v{s}')
        a(f'v_mul_f32 v{s}, 0x3a800000, v{s}')
        pad(2)
        a(f'v_permlane16_swap_b32 v{s}, v{u}')
        a(f'v_fma_f32 v{sd_out}, -v{s}, v{s}, v{u}')
        a(f'v_cvt_pk_bf16_f32 v{m_out}, 0, v{s}')
        a(f'v_max_f32 v{sd_out}, 0, v{sd_out}')
        self.round1(sd_out)
        a(f'v_add_f32 v{sd_out}, 0x3727c5ac, v{sd_out}')
        self.round1(sd_out)
        a(f'v_sqrt_f32 v{sd_out}, v{sd_out}')
        pad(99)
        self.round1(sd_out)

    def stat_math(self, s, u, m_out, sd_out):
        a = self.a
        a(f'v_fma_f32 v{sd_out}, -v{s}, v{s}, v{u}')
        a(f'v_cvt_pk_bf16_f32 v{m_out}, 0, v{s}')
        a(f'v_max_f32 v{sd_out}, 0, v{sd_out}')
        self.round1(sd_out)
        a(f'v_add_f32 v{sd_out}, 0x3727c5ac, v{sd_out}')
        self.round1(sd_out)
        a(f'v_sqrt_f32 v{sd_out}, v{sd_out}')
        self.round1(sd_out)
    def ln_stats2(self, x0, x1, t, m_out, sd_out):
        a = self.a
        s0, s1, q0, q1, u = t, t + 1, t + 2, t + 3, t + 4
        a(f'v_mov_b32 v{u}, 0x3f803f80')
        for i in range(8):
            for xx, s_, q_ in ((x0, s0, q0), (x1, s1, q1)):
                a(f'v_dot2_f32_bf16 v{s_}, v{xx+i}, v{u}, ' + ('0' if i == 0 else f'v{s_}'))
                a(f'v_dot2_f32_bf16 v{q_}, v{xx+i}, v{xx+i}, ' + ('0' if i == 0 else f'v{q_}'))
        a(f"""v_permlane32_swap_b32 v{s0}, v{s1}
        v_permlane32_swap_b32 v{q0}, v{q1}
        v_add_f32 v{s0}, v{s0}, v{s1}
        v_add_f32 v{q0}, v{q0}, v{q1}
        v_permlane16_swap_b32 v{s0}, v{q0}
        v_add_f32 v{s0}, v{s0}, v{q0}""")
        for ctl in ('quad_perm:[1,0,3,2]', 'quad_perm:[2,3,0,1]', 'row_half_mirror', 'row_ror:8'): self.dpp('v_add_f32', s0, s0, s0, ctl)
        a(f"""v_mul_f32 v{q0}, 0x3a800000, v{s0}
        v_mul_f32 v{s0}, 0x3a800000, v{s0}
        v_permlane16_swap_b32 v{s0}, v{q0}""")
        self.stat_math(s0, q0, m_out, sd_out)

    def build(self):
        a, V, vm, lg, o, S = self.a, self.V, self.vm, self.lg, self.o, self.S
        E2 = range(0, 16, 2)
        a(f'{NAME}:')
        a(f's_load_dwordx16 {sr(KA, 16)}, s[0:1], 0')
        a(f's_load_dwordx8 {sr(KA + 16, 8)}, s[0:1], 64')
        a(f's_load_dwordx2 {sr(rWS, 2)}, s[0:1], 104')
        a(f's_load_dwordx2 {sr(pDBG, 2)}, s[0:1], 96')
        a('s_cmp_ge_u32 s2, 256')
        a('s_cbranch_scc1 L_END')
        if self.prof:
            a(f's_memrealtime {sr(sCMP, 2)}')
            a(f's_memtime {sr(sTM, 2)}')
            a('v_mov_b32 v255, 0')
            a('v_mov_b32 v254, 0')
            self.stnames.append('start'); self.nst = 1
        vL = self.vL = V.alloc()
        vL16 = V.alloc()
        vZ = V.alloc()
        vT = V.alloc(8)
        va = lambda dst, terms, sreg=None, const=0: self.va(dst, terms, sreg, const, vT + 5)
        a(f"""v_lshrrev_b32 v{vT}, 6, v0
        v_and_b32 v{vL}, 63, v0
        v_mov_b32 v{vZ}, 0
        v_readfirstlane_b32 s{sWAVE}, v{vT}
        v_lshlrev_b32 v{vL16}, 4, v{vL}""")
        xr = V.alloc(8); acc = V.alloc(8); wphi = V.alloc(8); fr = V.alloc(8); vq = V.alloc(8); vv = V.alloc(8)
        vWM = V.alloc(); vCo = V.alloc(); vWd = V.alloc(); vL8 = V.alloc(); vL32S = V.alloc(); vGA = V.alloc()
        vB = V.alloc(6, 1); vFG = V.alloc(); vFD = V.alloc(); vWo = V.alloc(); vPW = V.alloc(); vXF = V.alloc()
        S(sX, 'wg & 7'); S(sJ, 'wg >> 3')
        S(T2, '(x*4 + w)*64')
        S(T0, 'T2*6144 + (j ^ 1)*128')
        va(vWM, [(3, 3, 4 * 12288), (0, 3, 16)])
        va(vCo, [(3, 3, 8)], T2)
        S(T3, '((x*32 + j)*4 + w - 4)*4096')
        for srd, size in ((rWM, 12582912), (rX, 4194304), (rWS, WS_BYTES)):
            a(f's_mov_b32 s{srd+2}, {size}')
            a(f's_mov_b32 s{srd+3}, 0x20000')
        a(f's_getreg_b32 s{sXC}, hwreg(HW_REG_XCC_ID, 0, 3)')
        a(f"""s_getpc_b64 {sr(sCMP, 2) if not self.prof else sr(sPL, 2)}""")
        S(T6, '(j*7 + w)*128')
        va(vT + 6, [(5, 1, 28672)], T6)
        a(f"""v_min_u32 v{vT+6}, CODE_KB, v{vT+6}
        s_cmp_ge_u32 s{sWAVE}, 4
        s_waitcnt lgkmcnt(0)""")
        if self.prof:
            a(f'v_writelane_b32 v255, s{sTM}, 0')
            a(f'v_writelane_b32 v255, s{sCMP}, 63')
            a(f'v_writelane_b32 v254, s{sCMP}, 0')
            a(f's_mov_b64 {sr(sCMP, 2)}, {sr(sPL, 2)}')
        self.stamp('karg')
        raw = V.alloc(16); cv = V.alloc(4); vTk = V.alloc(2)
        xs = V.alloc(16); st = V.alloc(4); mq = V.alloc(4)
        a(f"""s_mov_b64 {sr(rWM, 2)}, {sr(KA + 20, 2)}
        s_mov_b64 {sr(rX, 2)}, {sr(KA, 2)}
        s_load_dword s{sTAG}, {sr(rWS, 2)}, {NONCE}
        s_cbranch_scc1 L_FS""")
        def setup():
            for srd, size in ((rW, 6291456), (rWO, 2097152), (rWG, 7340032), (rWU, 7340032), (rWD, 7340032), (rOUT, 4194304)):
                a(f's_mov_b32 s{srd+2}, {size}')
                a(f's_mov_b32 s{srd+3}, 0x20000')
            for srd, k in ((rW, 2), (rWO, 6), (rWG, 12), (rWU, 14), (rWD, 16), (rOUT, 22)):
                a(f's_mov_b64 {sr(srd, 2)}, {sr(KA + k, 2)}')
            a(f"""s_mov_b32 s{sSPIN}, 0
            s_mov_b32 s{sMASK}, 0xffff0000
            s_mov_b32 s{sL2E}, 0x3fb8aa3b""")
            S(sKH, 'w >> 2')
            va(vT + 2, [(4, 1, 64)]); va(vWd, [(0, 3, 16)])
            a(f'v_xor_b32 v{vWd}, v{vWd}, v{vT+2}'); va(vT + 2, [(3, 3, 6144)]); a(f'v_add_u32 v{vWd}, v{vWd}, v{vT+2}')
            va(vL8, [(0, 6, 8)])
            a(f'v_add_u32 v{vL32S}, {SCR}, v{vL16}')
            S(T0, '(w & 3)*4 + SCR')
            va(vGA, [(4, 2, 32), (0, 3, 128), (3, 1, 16)], T0)
            S(T1, '((x & 6) + ((x & 1)*2 + (j >> 4))*64 + w*8)*1024 + (j & 15)*64 + SINB')
        def tag_hash():
            a(f"""s_mul_i32 s{sTAG}, s{sTAG}, 0x9e3779b1
            s_add_u32 s{sTAG}, s{sTAG}, 0x7f4a7c15""")
        def code_pf():
            a(f's_and_b32 s{sCMP}, s{sCMP}, 0xfffffc00')
            a(f'global_load_dword v{vTk}, v{vT+6}, {sr(sCMP, 2)}')
        wq = [(n, t) for n in range(16) for t in range(3)]
        def w_base(n, wexpr):
            if n < 4 and o.get('wxor', 1):
                S(T7, '((j >> 4)*2) ^ n', n=n)
                S(sU, f'(((T7 + u0) & 15)*8 + {wexpr})*(8*6144) + hp*128')
                S(T7, f'T7*SLOT + ({wexpr})*1024')
            else:
                S(sU, f'(((u0 + n) & 15)*8 + {wexpr})*(8*6144) + hp*128', n=n)
                S(T7, f'({wexpr})*1024 + q', q=(n % 6) * SLOT)
        def w_slot(n, t):
            S('m0', 'T7 + q', q=t * 8192)
            self.dma(vWd, rW, sU, 0, o.get('wmod', ''), ('W', n))
            if t < 2: S(sU, 'u + 2048')
        def w_next(cnt=1):
            for _ in range(cnt):
                n, t = wq.pop(0)
                if t == 0: w_base(n, 'w')
                w_slot(n, t)
        wb = list(o['wburst'])
        def w_early():
            if not o.get('wearly'): return
            S(sHP, '(x & 3)*4 + ((j & 3) ^ q)', q=o.get('hpx', 2)); S(sU0, o.get('u0', 'j & 12'))
            w_next(o['wearly'])
        a(f'global_load_dwordx2 {vr(cv, 2)}, v{vCo}, {sr(pC, 2)}'); vm.issue('c')
        for i in range(4):
            self.bl(raw + 4 * i, 4, vWM, rWM, T0, 0, o.get('ntwm', 'nt'), ('wm', i))
            if i < 3: S(T0, 'T0 + 12288')
        a('s_barrier')
        if o.get('bar1', 1): a('s_barrier')
        code_pf(); vm.issue()
        setup()
        wq0 = list(wq); w_early(); wq[:] = wq0
        S(T0, '(((w*16 + ((j ^ 1) & 15))*2 + (j >> 4))*8 + x)*512 + AINB')
        S(T2, '(((j ^ 1) & 7)*8 + w*2 + ((j >> 3) & 1))*512 + x*64 + (j >> 4)*4 + INA')
        va(vT + 6, [(0, 2, 64 * 512)])
        vm.wait('c')
        self.unpack(cv + 2, cv + 3, cv + 1)
        a(f'v_and_b32 v{cv+1}, s{sMASK}, v{cv}'); a(f'v_lshlrev_b32 v{cv}, 16, v{cv}')
        for i in range(4): self.silu(cv + i, vT + (i & 1))
        gops = self.gemv_ops([raw + 4 * i for i in range(4)], [cv + i for i in range(4)], acc, vT, vT + 1, True)
        for i in range(4):
            vm.wait(('wm', i))
            if i == 3: self.stamp('wmok')
            for s_ in gops[12 * i:12 * i + 12]: a(s_)
        for s_ in gops[48:]: a(s_)
        self.dw('ds_write_b32', vGA, acc, 1, L_A1 - SCR)
        self.barrier()
        a(f'ds_read_b128 {vr(acc, 4)}, v{vL32S} offset:{L_A1 - SCR}')
        tag_hash()
        a('s_waitcnt lgkmcnt(0)')
        self.pk('add', acc, acc, acc + 2)
        a(f"""v_add_f32 v{acc}, v{acc}, v{acc+1}
        v_mov_b32 v{acc+1}, s{sTAG}""")
        self.bs(acc, 2, vL8, rWS, T0, 0, 'sc1')
        a('s_mov_b64 exec, 15')
        self.bs(acc + 1, 1, vT + 6, rWS, T2, 0, 'sc1')
        a('s_mov_b64 exec, -1')
        self.stamp('A1pub')
        S(T0, '(wg*4 + w)*6144')
        for i in range(o.get('wpf', 0)):
            if i == 4: S(T0, 'T0 + 4096')
            self.bl(raw, 4, vL16, rW, T0, (i & 3) * 1024, o.get('wpfmod', ''))
        a('s_branch L_FJ')
        qG = list(vm.q)
        a('L_FS:')
        vm.reset(); lg.reset()
        a('s_barrier')
        for i in range(4): self.bl(raw + 4 * i, 4, vL16, rX, T3, 1024 * i, o.get('xsmod', ''), 'xs')
        pw0 = o.get('pw0', 'ab')
        if 'a' in pw0:
            S(T4, '(wg*4 + w - 4)*128 + INA')
            for q in range(2): a(f's_load_dword s{sPL + q}, {sr(rWS, 2)}, s{T4} offset:{q * 64} glc')
        if 's' in pw0:
            S(T4, '(wg*4 + w - 4)*256 + SINB')
            for q in range(4): a(f's_load_dword s{sPL + 2 + q}, {sr(rWS, 2)}, s{T4} offset:{q * 64} glc')
        if 'b' in pw0:
            S(T4, '(wg*32 + w - 4)*128 + INB')
            for q in range(2): a(f's_load_dword s{sPL + q}, {sr(rWS, 2)}, s{T4} offset:{q * 64} glc ; nowait')
        a(f"""s_lshl_b32 s{T6}, s{sXC}, 5
        v_mov_b32 v{vTk}, 1
        v_mov_b32 v{vTk+1}, s{T6}""")
        if o.get('bar1', 1): a('s_barrier')
        a(f"""s_cmp_lg_u32 s{sWAVE}, 7
        s_cbranch_scc1 L_NOTK
        s_mov_b64 exec, 1
        global_atomic_add v{vTk}, v{vTk+1}, v{vTk}, {sr(pDBG, 2)} sc0 sc1
        s_mov_b64 exec, -1
        s_branch L_TK0
        L_NOTK:""")
        code_pf()
        a('L_TK0:')
        vm.issue('tk')
        setup()
        w_early()
        S(T0, '(w - 4)*16 + L_ST'); va(vT + 6, [(5, 1, 8)], T0)
        a('s_barrier')
        vm.wait('xs')
        lg.wait_all()
        tag_hash()
        self.stamp('xsok')
        self.ln_stats2(raw, raw + 8, xs, st, st + 1)
        a(f"""v_lshrrev_b32 v{st}, 16, v{st}
        v_or_b32 v{st}, v{st}, v{st+1}
        v_mov_b32 v{st+1}, s{sTAG}""")
        self.dw('ds_write_b64', vT + 6, st, 2)
        a('L_FJ:')
        va(vT + 1, [(0, 2, 16)], None, L_ST)
        va(vT, [(0, 2, 16), (2, 1, 1024)])
        va(vT + 6, [(0, 5, 2048), (5, 1, 32)])
        va(vT + 2, [(0, 1, 512)])
        S(T2, '((x & 6) + ((x & 1)*2 + (j >> 4))*64 + w*8)*512 + ((j >> 1) & 7)*64 + (j & 1)*4 + 8 + INA')
        self.barrier()
        self.r128(st, vT + 1, 0, 'st')
        lg.wait('st')
        a('s_mov_b64 exec, 0xff')
        self.bs(st, 4, vT, rWS, T1, 0, 'sc1')
        a('s_mov_b64 exec, 3')
        self.bs(st + 1, 1, vT + 2, rWS, T2, 0, 'sc1')
        a('s_mov_b64 exec, -1')
        self.stamp('A2pub')
        a(f"""s_cmp_lg_u32 s{sWAVE}, 7
        s_cbranch_scc1 L_NOTK2
        s_mov_b32 s{T0}, 0
        s_waitcnt vmcnt({len(vm.q) - 1 - vm.q.index('tk')})
        L_TK:
        v_readfirstlane_b32 s{T2}, v{vTk}
        s_cmp_lt_u32 s{T2}, 32
        s_cbranch_scc1 L_TKOK
        s_add_u32 s{sXC}, s{sXC}, 1
        s_and_b32 s{sXC}, s{sXC}, 7
        s_lshl_b32 s{T6}, s{sXC}, 5
        v_mov_b32 v{vTk}, 1
        v_mov_b32 v{vTk+1}, s{T6}
        s_mov_b64 exec, 1
        global_atomic_add v{vTk}, v{vTk+1}, v{vTk}, {sr(pDBG, 2)} sc0 sc1
        s_mov_b64 exec, -1
        s_add_u32 s{T0}, s{T0}, 1
        s_cmp_lt_u32 s{T0}, 8
        s_waitcnt vmcnt(0)
        s_cbranch_scc1 L_TK
        L_TKOK:
        s_lshl3_add_u32 s{T2}, s{T2}, s{sXC}
        s_and_b32 s{T2}, s{T2}, 255""")
        if o.get('rawrole'): a(f's_mov_b32 s{T2}, s2')
        a(f"""v_mov_b32 v{vTk}, s{T2}
        ds_write_b32 v{vT+1}, v{vTk} offset:64
        L_NOTK2:""")
        self.barrier()
        a(f'ds_read_b32 v{mq}, v{vT+1} offset:64'); lg.issue('role')
        lg.wait('role')
        a(f'v_readfirstlane_b32 s2, v{mq}')
        self.stamp('role')
        V.release(raw, 16); V.release(cv, 4)
        S(sX, 'wg & 7'); S(sJ, 'wg >> 3')
        S(sCB, '(x & 1)*8 + (j & 7)')
        S(sRT, '(x >> 1)*4 + (j >> 3)')
        S(sGTB, 'rt*4 + (w & 3)')
        S(sC32, 'cb*2 + kh')
        S(T5, 'gtb*65536 + c32*64')
        self.bl(xr, 4, vT + 6, rX, T5, 0, o.get('xtmod', ''), 'xt')
        self.bl(xr + 4, 4, vT + 6, rX, T5, 16, o.get('xtmod', ''), 'xt')
        S(T0, '(((x >> 1)*16 + cb)*16 + w)*512 + AINB')
        S(T2, '(wg*8 + w)*64 + INA')
        def role_prep():
            S(sR1, '(x & 4)*2 + (j >> 2)'); S(sHP, '(x & 3)*4 + ((j & 3) ^ q)', q=o.get('hpx', 2))
            S(sU0, o.get('u0', 'j & 12'))
            w_next(wb[0])
            S(sINB, '(wg*64 + w)*64 + INB')
            S(sKF, 'kh ^ (j >> 4)'); S(sROT, '(((j >> 3) ^ j) & 1)*8')
            S(sFS, 'x*7 + (j >> 2)'); S(sKQ, 'j & 3')
            va(vT + 4, [(0, 5, 8)])
            va(vT, [(0, 5, 16), (5, 1, 4096)])
            S(T3, 'w*4 + L_MP'); va(vT + 1, [(0, 6, 64)], T3)
            S(T3, 'kh*1024 + L_MP'); va(vT + 2, [(0, 4, 32), (5, 1, 512)], T3)
        S(T1, '(wg*4 + (w & 3))*256 + SINB')
        self.spoll([(0, 4, T2, 0)], range(4), work=role_prep, pipe=o.get('pipeA', 0))
        self.stamp('apre')
        a('s_barrier')
        st_ld = lambda: self.bl(st, 2, vT + 4, rWS, T1, 0, 'sc1', 'st')
        def st_fetch():
            st_ld()
            S(T3, 'hp*4096 + w*512')
            a(f'v_add_u32 v{vT+6}, s{T3}, v{vL16}')
            S('m0', 'w*512 + L_WPHI')
            a('s_mov_b32 exec_hi, 0')
            a(f'global_load_lds_dwordx4 v{vT+6}, {sr(pWPHI, 2)}'); vm.issue()
            a('s_mov_b32 exec_hi, -1')
            w_next(wb[1])
        self.try_load(lambda: self.bl(mq, 4, vT, rWS, T0, 0, 'sc1'), [mq + 1, mq + 3], vT + 3, st_fetch)
        self.stamp('modok')
        a(f'ds_write2_b32 v{vT+1}, v{mq}, v{mq+2} offset0:0 offset1:8'); lg.issue()
        for i in range(8): self.unpack(xs + 2 * i, xs + 2 * i + 1, xr + i)
        self.barrier()
        mp = V.alloc(16); hp = V.alloc(8)
        for i in (2, 3, 0, 1): self.r128(mp + 4 * i, vT + 2, (i >> 1) * 2048 + (i & 1) * 16, i >> 1)
        w_next(wb[2])
        self.finish_load('st', st_ld, [st + 1], None)
        self.stamp('statok')
        self.unpack(st + 1, st, st)
        a(f'v_rcp_f32 v{st}, v{st}')
        for i in E2: self.pk('add', xs + i, xs + i, st + 1, bc=(1,), neg=(1,))
        S(T0, '(((rt*16 + cb)*4 + (w & 3))*2 + kh)*2048 + HF')
        lg.wait(1); self.sum8(mp + 8)
        self.round1(mp + 8)
        lg.wait(0); self.sum8(mp)
        a(f'v_add_f32 v{mp+8}, 1.0, v{mp+8}')
        self.round2(mp + 8, mp)
        for h in range(2):
            rg = range(8 * h, 8 * h + 8)
            self.round_list([xs + i for i in rg])
            for i in range(8 * h, 8 * h + 8, 2): self.pk('mul', xs + i, xs + i, st, bc=(1,))
            self.round_list([xs + i for i in rg])
            for i in rg: self.dpp('v_mul_f32', xs + i, mp + 8, xs + i, f'row_newbcast:{i}')
            self.round_list([xs + i for i in rg])
            for i in rg: self.dpp('v_add_f32', xs + i, mp, xs + i, f'row_newbcast:{i}')
            for i in range(4 * h, 4 * h + 4): a(f'v_cvt_pk_bf16_f32 v{hp+i}, v{xs+2*i}, v{xs+2*i+1}')
            self.bs(hp + 4 * h, 4, vL16, rWS, T0, 1024 * h, 'sc1', 'hs')
        self.stamp('hst')
        w_next(wb[3])
        va(vB, [(2, 2, 128), (3, 1, 64), (4, 1, 32), (0, 2, 8), (5, 1, 2048)])
        a(f'v_xor_b32 v{vB+1}, 64, v{vB}')
        for q in (1, 2):
            for h in range(2): a(f'v_add_u32 v{vB+2*q+h}, {2*q*SLOT}, v{vB+h}')
        S(T1, 'kh*2048 + L_WPHI')
        va(vT, [(2, 2, 64), (4, 1, 32), (0, 2, 8), (5, 1, 256)], T1)
        va(vT + 1, [(0, 2, 8 * 4096), (2, 2, 4096)])
        S(T0, '((rt >> 3)*4 + (rt & 7)*32)*4096 + (cb >> 1)*64 + (cb & 1)*4 + INB')
        va(vT + 2, [(4, 1, 64)]); va(vWo, [(0, 3, 16)])
        a(f'v_xor_b32 v{vWo}, v{vWo}, v{vT+2}'); va(vT + 2, [(3, 3, 2048)]); a(f'v_add_u32 v{vWo}, v{vWo}, v{vT+2}')
        S(T1, '(w & 2)*32'); va(vT + 2, [(4, 1, 32)], T1); va(vFG, [(0, 3, 16)])
        a(f'v_xor_b32 v{vFG}, v{vFG}, v{vT+2}'); va(vT + 2, [(3, 3, 7168)]); a(f'v_add_u32 v{vFG}, v{vFG}, v{vT+2}')
        S(T1, '(w & 1)*128')
        va(vT + 2, [(5, 1, 64)], T1); va(vFD, [(0, 5, 16), (5, 1, 2048)])
        a(f'v_xor_b32 v{vFD}, v{vFD}, v{vT+2}')
        S(sFG, '(kq*8 + w)*(32*7168) + fs*128'); S(sFD, '(fs*8 + w)*16384 + kq*512')
        a(f"""s_cmp_ge_u32 s{sJ}, 28
        s_cselect_b32 s{rWG+2}, 0, s{rWG+2}
        s_cselect_b32 s{rWU+2}, 0, s{rWU+2}
        s_cselect_b32 s{rWD+2}, 0, s{rWD+2}""")
        vm.wait('hs')
        a('s_barrier')
        self.push(vT + 1, T0, 16, vT + 2, 'L_PB')
        self.stamp('hpub')
        V.release(xs, 16); V.release(mp, 16); V.release(hp, 8); V.release(st, 4); V.release(mq, 4); V.release(vTk, 2)
        w_next(wb[4])
        for s in range(2):
            for u in range(2): self.tr(wphi + 4 * s + 2 * u, vT, s * 1024 + u * 512)
        AD, LOOK, LASTB = o['AD'], 6, o['LASTB']
        accs = V.alloc(96)
        big = V.alloc(76)
        Ar, Br = big, big + 4 * AD
        assert 4 * AD + 4 * (LOOK + 1) <= 76
        S(T2, '(r1*64 + w)*4096 + HF')
        S(T0, '(w & 3)*4096 + L_XF'); a(f'v_add_u32 v{vXF}, s{T0}, v{vL16}')
        S(T0, '(w & 3)*1024 + kh*16384 + L_PHK'); va(vPW, [(0, 5, 32), (5, 1, 16)], T0)
        fq = [(m, i) for m in range(3) for i in range(4)]
        freg = []
        def f_src(m, i, back=0, T0=T0):
            if m < 2: S(T0, 'fg + q', q=i * 8 * 7168 - back * 4 * 32 * 7168)
            else: S(T0, 'fd + q', q=i * 4096 - back * 4 * 16384)
            return (vFG, (rWG, rWU)[m]) if m < 2 else (vFD, rWD)
        def f_lds(m, i): return (L_GU + m * 32768 if m < 2 else L_DN) + i * 1024
        def ffn_reg(n):
            for _ in range(n):
                m, i = fq.pop(0)
                for back in range(2):
                    v, r = f_src(m, i, back)
                    self.bl(big + 8 * len(freg) + 4 * back, 4, v, r, T0, 0, o.get('ntffn', 'nt'), 'ffn')
                freg.append((m, i))
        def ffn_dma(n, T0=T0):
            for _ in range(n):
                m, i = fq.pop(0)
                if o.get('nofd'): continue
                v, r = f_src(m, i, 0, T0)
                S('m0', 'w1k*4 + q', q=f_lds(m, i))
                self.dma(v, r, T0, 0, o.get('ntffn', 'nt'), 'gu' if m < 2 else 'dn')
        S(sWB, '(rot*4 + w)*16384'); S(sWO2, '(j >> 4)*1048576 + cb*128'); S(sW1K, 'w*1024')
        def wo_dma(it, back=0, T0=T0):
            S(T0, '((wb + q) & 0xfffff) + (wo2 ^ h)', q=(8 * it - 4 * back) * 16384, h=(it >> 3) << 20)
            S('m0', 'w1k + q', q=WO_H0 + it * 8192 - 4096 * back)
            self.dma(vWo, rWO, T0, 0, '', 'wo')
        self.inbox(0, 2, work=lambda: w_next(wb[5]), pipe=o.get('pipeB', 0))
        assert len(wq) % 3 == 0 and 30 <= len(wq) <= (36 if o.get('wxor', 1) else 45)
        NPU = 16 - len(wq) // 3
        vm.wait(('W', 2 if o.get('wxor', 1) else 0))
        a('s_barrier')
        self.stamp('hok')
        a(f"""s_cmp_ge_u32 s{sWAVE}, 4
        s_cbranch_scc1 L_HELP
        s_setprio 2""")
        q_hok = list(vm.q)
        if 'pad' in o:
            a('.p2align 6')
            for _ in range(o['pad']): a('s_nop 0')
        def a_load(sg):
            if sg % 4 == 0: S(T3, '((u0 + n) & q)*16384 + T2', n=sg // 4, q=o.get('amask', 15))
            self.bl(Ar + 4 * (sg % AD), 4, vL16, rWS, T3, (sg % 4) * 1024, o.get('amod', 'sc1'), ('A', sg))
        CORD = (2, 3, 0, 1, 4, 5)
        def b_read(n):
            sg, c = divmod(n, 6); t, h = divmod(CORD[c], 2)
            slot = (sg >> 2) % 6
            off = (slot & 1) * SLOT + t * 8192 + ((sg >> 1) & 1) * 4096 + (sg & 1) * 1024
            d = Br + 4 * (n % (LOOK + 1))
            self.tr(d, vB + 2 * (slot >> 1) + h, off, ('B', n)); self.tr(d + 2, vB + 2 * (slot >> 1) + h, off + 512, ('B', n))
        nxt = 0
        def a_more(lim):
            nonlocal nxt
            while nxt < min(lim, 64): a_load(nxt); nxt += 1
        a_more(1)
        for n in range(LOOK): b_read(n)
        a_more(o.get('A0', 4))
        for n in range(384):
            sg, c = divmod(n, 6)
            if c == 0: vm.wait(('A', sg))
            lg.wait(('B', n))
            d = accs + 16 * CORD[c]
            a(f'v_mfma_f32_32x32x16_bf16 {vr(d, 16)}, {vr(Br + 4*(n % (LOOK + 1)), 4)}, {vr(Ar + 4*(sg % AD), 4)}, ' + ('0' if sg == 0 else vr(d, 16)))
            if n + LOOK < 384:
                if (n + LOOK) % 24 == 0 and (n + LOOK) // 24 <= LASTB: a('s_barrier')
                b_read(n + LOOK)
            if c == 5:
                a_more(min(nxt + 2, sg + AD + 1))
                if sg == 63 - AD and o.get('b14', 1): a('s_barrier')
        self.stamp('gemm1')
        aq, ak, av = accs, accs + 32, accs + 64
        def cvt8(d, s_):
            for i in range(8): a(f'v_cvt_pk_bf16_f32 v{d+i}, v{s_+2*i}, v{s_+2*i+1}')
        cvt8(vv, ak + 16)
        for q in range(2): self.dw('ds_write_b128', vXF, vv + 4 * q, 4, q * 1024)
        cvt8(fr, ak)
        self.barrier()
        a('s_setprio 0')
        pp = ak; ee = ak + 16
        def phi_logits(src):
            a(f'v_mfma_f32_32x32x16_bf16 {vr(pp, 16)}, {vr(wphi, 4)}, {vr(src, 4)}, 0')
            a(f'v_mfma_f32_32x32x16_bf16 {vr(pp, 16)}, {vr(wphi + 4, 4)}, {vr(src + 4, 4)}, {vr(pp, 16)}')
        phi_logits(fr)
        for h in range(2):
            cvt8(vv if h == 0 else vq, av + 16 * h)
            for db in range(2): self.dw('ds_write_b128', vPW, (vv if h == 0 else vq) + 4 * db, 4, L_V - L_PHK + h * 8192 + db * 4096)
        cvt8(fr, aq + 16)
        for q in range(2): self.dw('ds_write_b128', vXF, fr + 4 * q, 4, 2048 + q * 1024)
        cvt8(vq, aq)
        a('s_branch L_JOIN')
        a('L_HELP:')
        vm.q = [('W', 1)] * len(q_hok) if o.get('wxor', 1) else list(q_hok); lg.reset()
        m2w = accs; m2c = accs + 32; g4 = accs + 48
        def w_unit(n):
            for wexpr in ('w - 4', 'w'):
                w_base(n, wexpr)
                for t in range(3): w_slot(n, t)
        for n in range(NPU, 6): w_unit(n)
        S(T0, '((x & 3)*4 + w - 4)*128')
        va(vCo, [(3, 3, 16)], T0)
        va(vWM, [(3, 3, 8 * 12288), (0, 3, 16)])
        S(T4, 'T0*6144 + (j*2 + (x >> 2))*128 + 4096')
        a(f'global_load_dwordx4 {vr(m2c + 8, 4)}, v{vCo}, {sr(pC, 2)}'); vm.issue('m2c')
        m2l = list(range(8)); wol = [8, 9, 10, 11]; pwl = list(range(1, 8)); sil = list(range(8))
        m2ops = self.gemv_ops([m2w + 4 * i for i in range(8)], [m2c + i for i in range(8)], acc, vT, vT + 1, False)
        m2pos = 0
        def act(op, k):
            nonlocal m2pos
            kind, n = op[0], int(op[1:] or 1)
            if kind == 'm':
                for _ in range(2 * n):
                    i = m2l.pop(0)
                    self.bl(m2w + 4 * i, 4, vWM, rWM, T4, 0, o.get('ntm2', 'nt'), ('m2', i))
                    if m2l: S(T4, 'T4 + 12288')
            elif kind == 'f': ffn_reg(n)
            elif kind == 'o':
                assert k >= 13
                for _ in range(n):
                    it = wol.pop(0); wo_dma(it, 1); wo_dma(it)
            elif kind == 'p':
                a('s_waitcnt lgkmcnt(0)')
                for q in range(n):
                    b = pwl.pop(0)
                    a(f's_load_dword s{sPL + 2*q}, {sr(rWS, 2)}, s{sINB} offset:{b * 512} glc')
                    a(f's_load_dword s{sPL + 2*q + 1}, {sr(rWS, 2)}, s{sINB} offset:{b * 512 - 256} glc')
            elif kind == 'q':
                S(T0, 'fs*8192 + (w - 4)*256 + HGR')
                a('s_waitcnt lgkmcnt(0)')
                for q in range(4): a(f's_load_dword s{sPL + q}, {sr(rWS, 2)}, s{T0} offset:{q * 2048 + 1024 + 252} glc')
            elif kind == 's':
                vm.wait('m2c')
                for _ in range(n):
                    i = sil.pop(0)
                    a(f'v_and_b32 v{m2c+i}, s{sMASK}, v{m2c+8+i//2}' if i & 1 else f'v_lshlrev_b32 v{m2c+i}, 16, v{m2c+8+i//2}')
                    self.silu(m2c + i, vT + (i & 1))
            elif kind == 'g':
                assert not sil
                for _ in range(n):
                    vm.wait(('m2', m2pos // 16))
                    for s_ in m2ops[m2pos:m2pos + 16]: a(s_)
                    m2pos += 16
            elif kind == 'r':
                assert m2pos == 128
                for s_ in m2ops[128:]: a(s_)
                self.dw('ds_write_b32', vGA, acc, 1, L_M2 - SCR)
                lg.wait_all()
            elif kind == 'P':
                a(f"""s_cmp_lg_u32 s{sWAVE}, 4
                s_cbranch_scc1 L_M2F
                ds_read_b128 {vr(acc, 4)}, v{vL32S} offset:{L_M2 - SCR}""")
                S(T0, '((j*2 + (x >> 2))*4 + (x & 3))*512 + MODP2')
                a(f"""s_waitcnt lgkmcnt(0)
                v_add_f32 v{acc}, v{acc}, v{acc+1}
                v_add_f32 v{acc+2}, v{acc+2}, v{acc+3}
                v_mov_b32 v{acc+1}, s{sTAG}
                v_add_f32 v{acc}, v{acc}, v{acc+2}""")
                self.bs(acc, 2, vL8, rWS, T0, 0, 'sc1', count=False)
                a('L_M2F:')
            else: raise ValueError(op)
        sched = {int(k): v.split() for k, v in o['sched'].items()}
        for op in sched.get(0, []): act(op, 0)
        for k in range(1, LASTB + 1):
            for kk in (range(k, 16) if k == LASTB else [k]): vm.wait(('W', kk))
            if o.get('ust'): self.stamp(f'w{k}')
            a('s_barrier')
            if o.get('ust'): self.stamp(f'u{k}')
            ops = sched.get(k, [])
            if 6 <= k + 4 < 16:
                pre = [op[1:] for op in ops if op[0] == '<']
                for op in pre: act(op, k)
                if not o.get('now2'): w_unit(k + 4)
            for op in ops:
                if op[0] != '<': act(op, k)
        if o.get('b14', 1):
            assert LASTB == 13 and AD <= 12
            a('s_barrier')
            for op in sched.get(14, []): act(op, 14)
        assert (not m2l or o.get('nom2')) and not wol
        self.barrier()
        for q in range(2): self.r128(fr + 4 * q, vXF, q * 1024)
        lg.wait_all()
        phi_logits(fr)
        for op in sched.get(15, []): act(op, 15)
        assert 8 * len(freg) <= 76
        a('L_JOIN:')
        vm.reset(); lg.q = [None]
        V.release(vB, 6); V.release(vWd); V.release(vWM); V.release(vCo); V.release(vGA); V.release(vL32S); V.release(acc, 8)
        V.release(big + 8 * len(freg), 76 - 8 * len(freg))
        ph = aq; fx = aq + 16
        vPA = V.alloc(); vPB = V.alloc()
        self.softmax_pm(pp, ee, ph, vT)
        for fb in range(4): self.dw('ds_write_b128', vPW, ph + 4 * fb, 4, fb * 4096)
        S(T0, 'w*4096 + L_PHK'); a(f'v_add_u32 v{vPA}, s{T0}, v{vL8}')
        S(T0, 'kh*8192 + L_V'); a(f'v_add_u32 v{vPB}, s{T0}, v{vL8}')
        ones = fr
        for i in range(4): a(f'v_mov_b32 v{ones+i}, 0x3f803f80')
        S(T0, '((hp*8 + w)*32 + r1)*1024 + KVP'); S(T2, 'T0 + 16384')
        S(T3, '(hp*8 + w)*1024 + ZP'); S(T1, 'r1*64 + T3')
        self.stamp('ksm')
        self.barrier()
        self.stamp('phik')
        fragA = [ee + 4 * i for i in range(4)]
        fragB = [av + 4 * i for i in range(8)]
        kvd = vv; zd = fr + 4
        def kvm(u):
            lg.wait(('kv', u))
            for db in range(2):
                a(f'v_mfma_f32_16x16x32_bf16 {vr(kvd + 4*db, 4)}, {vr(fragA[u], 4)}, {vr(fragB[2*u+db], 4)}, ' + ('0' if u == 0 else vr(kvd + 4*db, 4)))
            a(f'v_mfma_f32_16x16x32_bf16 {vr(zd, 4)}, {vr(fragA[u], 4)}, {vr(ones, 4)}, ' + ('0' if u == 0 else vr(zd, 4)))
        for ts in range(4):
            self.tr(fragA[ts], vPA, ts * 1024, ('kv', ts)); self.tr(fragA[ts] + 2, vPA, ts * 1024 + 512, ('kv', ts))
            for db in range(2):
                self.tr(fragB[2*ts+db], vPB, db * 4096 + ts * 1024, ('kv', ts)); self.tr(fragB[2*ts+db] + 2, vPB, db * 4096 + ts * 1024 + 512, ('kv', ts))
            if ts >= 2: kvm(ts - 2)
        kvm(2); kvm(3)
        a(f"""s_cmp_lt_u32 s{sWAVE}, 4
        s_cbranch_scc1 L_NOQX
        ds_read_b128 {vr(vq, 4)}, v{vXF} offset:2048
        ds_read_b128 {vr(vq + 4, 4)}, v{vXF} offset:3072
        L_NOQX:""")
        self.bs(kvd, 4, vL16, rWS, T0, 0, 'sc1', 'kvs')
        self.bs(kvd + 4, 4, vL16, rWS, T2, 0, 'sc1', 'kvs')
        a('s_mov_b32 exec_lo, 0x00010001')
        a('s_mov_b32 exec_hi, 0x00010001')
        self.bs(zd, 4, vL, rWS, T1, 0, 'sc1', 'kvs')
        a('s_mov_b64 exec, -1')
        lg.wait_all()
        phi_logits(vq)
        self.stamp('kvst')
        va(vPW, [(0, 3, 32 * 4096), (3, 1, 4 * 4096)])
        S(T4, '(wg & 0x1b)*4096 + (r1 >> 1)*64 + (r1 & 1)*4 + INB + 512')
        wl = [2, 3, 4, 5, 6, 7, 12, 13, 14, 15, 0, 1]
        kp = av; zz = av + 16; g4 = vv
        m2q = fx; wr1 = fx + 8
        vKP = V.alloc()
        va(vKP, [(3, 3, 1024), (0, 3, 16)])
        va(vXF, [(0, 3, 16), (5, 1, 8)])
        def c_push():
            vm.wait('kvs')
            a('s_barrier')
            self.push(vPW, T4, 16, vPB, 'L_PC')
            self.stamp('kvpub')
        qm, qs = o.get('qmid', 8), o.get('qsplit', 16)
        wo1 = lambda: wo_dma(wl.pop(0), 0, T6)
        self.softmax_pm(pp, ee, ph, vT, part=1, split=qm)
        c_push()
        self.weave(lambda: [a(f'v_exp_f32 v{r+i}, v{r+i}') for i in range(qm, qs) for r in (ee, pp)], [wo1] * o['wowin'][0])
        S(T0, '(hp*16 + r1)*16384 + w*128 + KVP'); S(T1, 'T0 + 8192')
        S(T2, '(hp*16 + r1)*1024 + w*128 + KIN'); S(T4, 'T4 + 6*512')
        self.inbox(1, 2, work=lambda: (self.weave(lambda: self.softmax_pm(pp, ee, ph, vT, part=2, split=qs), [wo1] * o['wowin'][1]), self.stamp('cw')))
        a('s_barrier')
        self.stamp('kvok')
        self.bl(kp, 4, vKP, rWS, T0, 0, 'sc1', 'kp')
        self.bl(kp + 4, 4, vKP, rWS, T1, 0, 'sc1', 'kp')
        S(T1, 'w*32 + L_ZF'); va(vT + 2, [(0, 2, 8), (5, 1, 4)], T1)
        S(T1, 'w*1024 + L_KVF'); va(vT + 1, [(0, 4, 16), (5, 1, 512), (4, 1, 8)], T1)
        S(T1, 'kh*128 + L_ZF'); va(vT + 3, [(5, 1, 16)], T1)
        S(T1, 'kh*4096 + L_KVF'); a(f'v_add_u32 v{vPA}, s{T1}, v{vL16}')
        self.bl(zz, 4, vL16, rWS, T3, 0, 'sc1', 'z')
        def red4(r, ctls):
            for i in range(2): a(f'v_permlane32_swap_b32 v{r+i}, v{r+2+i}')
            self.pk('add', r, r, r + 2)
            for ctl in ctls:
                for i in range(2): self.dpp('v_add_f32', r + i, r + i, r + i, ctl)
            for i in range(2): a(f'v_mov_b32 v{r+2+i}, v{r+i}')
            for i in range(2): a(f'v_permlane16_swap_b32 v{r+i}, v{r+2+i}')
            self.pk('add', r, r, r + 2)
            a(f'v_cvt_pk_bf16_f32 v{r}, v{r}, v{r+1}')
        vm.wait('kp')
        self.pk('add', kp, kp, kp + 4); self.pk('add', kp + 2, kp + 2, kp + 6)
        red4(kp, ['row_ror:8'])
        a(f"""v_mov_b32 v{kp+1}, s{sTAG}
        s_mov_b32 exec_lo, 0xff
        s_mov_b32 exec_hi, 0xff""")
        self.bs(kp, 2, vXF, rWS, T2, 0, 'sc1')
        a('s_mov_b64 exec, -1')
        a('s_barrier')
        self.push(vPW, T4, 16, vPB, 'L_PC2')
        self.stamp('c2pub')
        kf = av; zf = av + 16; num = pp; den = ee
        vm.wait('z')
        self.weave(lambda: red4(zz, ['row_ror:4', 'row_ror:8']), [wo1] * o['wowin'][2])
        self.dw('ds_write_b32', vT + 2, zz, 1)
        self.barrier()
        for fb in range(4): self.r128(zf + 4 * fb, vT + 3, fb * 32)
        lg.wait_all()
        S(T0, '(hp*8 + w)*2048 + KIN')
        k2 = av + 8
        def den_work():
            for fb in range(4):
                a(f'v_mfma_f32_32x32x16_bf16 {vr(den, 16)}, {vr(zf + 4*fb, 4)}, {vr(ph + 4*fb, 4)}, ' + ('0' if fb == 0 else vr(den, 16)))
            self.round1(den)
            a(f'v_add_f32 v{den}, 0x358637bd, v{den}')
            self.round1(den)
            a(f'v_rcp_f32 v{den}, v{den}')
            self.stamp('c2w')
        self.inbox(7, 2, work=den_work)
        self.stamp('c2h')
        self.poll(lambda: [self.bl(k2 + 4 * q, 4, vL16, rWS, T0, q * 1024, 'sc1') for q in range(2)], [k2 + 1, k2 + 3, k2 + 5, k2 + 7], vT)
        for db in range(2):
            a(f'ds_write2_b32 v{vT+1}, v{k2+4*db}, v{k2+4*db+2} offset0:{64*db} offset1:{64*db+1}'); lg.issue()
        self.barrier()
        self.stamp('kvred')
        for fb in range(4): self.r128(kf + 4 * fb, vPA, fb * 1024, ('kf', fb))
        vM2 = V.alloc()
        va(vM2, [(0, 5, 16), (5, 1, 512)])
        S(T5, '((w & 3)*16 + cb)*2048 + MODP2')
        ld_m2 = lambda: [self.bl(m2q + 4 * q, 4, vM2, rWS, T5, q * 1024, 'sc1', 'm2q') for q in range(2)]
        S(T0, 'cb*128'); va(vT, [(0, 5, 4)], T0)
        a(f'global_load_dword v{wr1}, v{vT}, {sr(pWR, 2)}'); vm.issue('m2q')
        ld_m2()
        S(T0, '(((r1*4 + (w & 3))*16 + hp)*2 + kh)*2048 + OF')
        for fb in range(4):
            lg.wait(('kf', fb))
            a(f'v_mfma_f32_32x32x16_bf16 {vr(num, 16)}, {vr(kf + 4*fb, 4)}, {vr(ph + 4*fb, 4)}, ' + ('0' if fb == 0 else vr(num, 16)))
        for h in range(2):
            self.round_list([num + i for i in range(8 * h, 8 * h + 8)])
            for i in range(8 * h, 8 * h + 8, 2): self.pk('mul', num + i, num + i, den, bc=(1,))
            for i in range(4 * h, 4 * h + 4): a(f'v_cvt_pk_bf16_f32 v{vq+i}, v{num+2*i}, v{num+2*i+1}')
            self.bs(vq + 4 * h, 4, vL16, rWS, T0, 1024 * h, 'sc1', 'os')
        self.stamp('ost')
        for r, n in ((fr, 8), (vv, 8), (vPW, 1), (vXF, 1), (vPA, 1), (vPB, 1), (vKP, 1), (accs, 16), (accs + 32, 64), (wphi, 8)):
            V.release(r, n)
        assert GS == 0
        vG16 = vL16
        vBa = V.alloc(); vBb = V.alloc(); xf = V.alloc(16)
        S(T4, 'kh*(65536 + 64) + WO_H0')
        va(vBa, [(2, 2, 128), (3, 1, 64), (5, 1, 1024), (0, 1, 32), (4, 1, 16), (1, 1, 8)])
        a(f'v_xor_b32 v{vBa}, s{T4}, v{vBa}')
        a(f'v_xor_b32 v{vBb}, 64, v{vBa}')
        assert WO_H1 == WO_H0 + 65536
        va(vT + 1, [(0, 3, 8 * 4096), (3, 1, 4096)])
        S(T2, '((r1 >> 2)*2 + (r1 & 3)*64)*4096 + (hp >> 1)*64 + (hp & 1)*4 + INB + 1024')
        for i in range(8): self.unpack(xf + 2 * i, xf + 2 * i + 1, xr + i)
        S(T6, '(gtb*2 + kf)*32768 + OF')
        vm.wait('os')
        a('s_barrier')
        self.push(vT + 1, T2, 16, vT + 2, 'L_PD')
        self.stamp('opub')
        V.release(vq, 8)
        while wl: wo_dma(wl.pop(0))
        V.release(vWo)
        self.finish_load('m2q', ld_m2, [m2q + 1, m2q + 3, m2q + 5, m2q + 7], vT)
        q0, q1, q2, q3 = m2q, m2q + 1, m2q + 2, m2q + 3
        S(T0, '(w & 3)*128 + L_MT'); va(vT, [(0, 5, 4)], T0)
        S(T1, 'w & 3')
        a(f"""v_add_f32 v{q0}, v{m2q}, v{m2q+4}
        v_add_f32 v{q1}, v{m2q+2}, v{m2q+6}
        v_add_f32 v{q2}, v{m2q}, v{m2q+4}""".replace(f'v_add_f32 v{q2}, v{m2q}, v{m2q+4}', f'v_mov_b32 v{q2}, v{q0}'))
        a(f"""v_mov_b32 v{q3}, v{q1}
        s_cmp_eq_u32 s{T1}, 2
        s_cselect_b32 s{T2}, 1.0, 0
        v_permlane32_swap_b32 v{q0}, v{q2}
        v_permlane32_swap_b32 v{q1}, v{q3}""")
        self.pk('add', q0, q0, q2)
        self.round2(q0, q1)
        a(f"""v_add_f32 v{q0}, s{T2}, v{q0}
        v_add_f32 v{q1}, s{T2}, v{q1}
        v_cvt_pk_bf16_f32 v{q2}, v{q0}, v{q1}""")
        self.dw('ds_write_b32', vT, q2, 1)
        a('s_cbranch_scc0 L_NOG')
        g0, g1, gh, gl = m2q + 4, m2q + 5, m2q + 6, m2q + 7
        self.unpack(q0, q1, q2); self.unpack(g0, g1, wr1)
        self.pk('mul', g0, g0, q0)
        a(f'v_cvt_pk_bf16_f32 v{gh}, v{g0}, v{g1}')
        self.unpack(q0, q1, gh)
        self.pk('add', q0, g0, q0, neg=(1,))
        a(f"""v_cvt_pk_bf16_f32 v{gl}, v{q0}, v{q1}
        v_add_f32 v{q0}, v{g0}, v{g1}
        ds_write2_b32 v{vT}, v{gh}, v{gl} offset0:64 offset1:96
        ds_write_b32 v{vT}, v{wr1} offset:512""")
        for ctl in ('quad_perm:[1,0,3,2]', 'quad_perm:[2,3,0,1]', 'row_half_mirror', 'row_ror:8'): self.dpp('v_add_f32', q0, q0, q0, ctl)
        S(T0, '(rt*16 + cb)*8 + GR')
        a(f"""v_mov_b32 v{q2}, v{q0}
        v_mov_b32 v{q1}, s{sTAG}
        v_permlane16_swap_b32 v{q0}, v{q2}
        v_add_f32 v{q0}, v{q0}, v{q2}
        s_mov_b64 exec, 1""")
        self.bs(q0, 2, vZ, rWS, T0, 0, 'sc1', count=False)
        a("""s_mov_b64 exec, -1
        L_NOG:""")
        V.release(vM2)
        S(T0, 'kh*64 + L_MT'); va(vT + 3, [(5, 1, 32)], T0); va(vT + 4, [(0, 3, 4)]); a(f'v_add_u32 v{vT+4}, v{vT+4}, v{vT+3}')
        self.barrier()
        gaf = V.alloc(16); gp = V.alloc(16); tb4 = V.alloc(4); gr = V.alloc(2); vGR = V.alloc()
        for q in range(2):
            self.r128(fx + 4 * q, vT + 3, 16 * q)
            for k in range(2): self.r128(gp + 8 * k + 4 * q, vT + 3, (4 + k) * 128 + 16 * q)
        for q, t in enumerate((1, 2, 3, 6)): self.dr('ds_read_b32', tb4 + q, 1, vT + 4, t * 128)
        lg.wait_all()
        def d_work():
            for i in range(8): self.unpack(gaf + 2 * i, gaf + 2 * i + 1, fx + i)
            va(vGR, [(0, 4, 8)])
            vm.wait_all()
            self.stamp('dw')
        AD2 = o['AD2']
        accA = V.alloc(16); accB = V.alloc(16); Ar = V.alloc(4 * AD2); Br = V.alloc(16)
        nf2 = o.get('fg2', 0); f2 = []; f2r = V.alloc(4 * nf2) if nf2 else None
        def b2_read(s, c):
            d = Br + 8 * (s & 1) + 4 * c
            self.tr(d, (vBa, vBb)[c], s * 2048, ('B', s, c)); self.tr(d + 2, (vBa, vBb)[c], s * 2048 + 512, ('B', s, c))
        def a2_load(s):
            if s % 2 == 0: S(T7, '((rot + n) & 15)*2048 + T6', n=s // 2)
            self.bl(Ar + 4 * (s % AD2), 4, vL16, rWS, T7, (s % 2) * 1024, 'sc1', ('A', s))
        self.inbox(2, 2, work=d_work)
        V.release(fx, 16)
        a('s_barrier')
        self.stamp('ook')
        if o.get('prio2', 1):
            a(f"""s_cmp_lt_u32 s{sWAVE}, 4
            s_cbranch_scc1 L_P2
            s_setprio {o.get('prio2', 1)}
            L_P2:""")
        for s in range(AD2):
            a2_load(s)
            if s == 0:
                for c in (1, 0): b2_read(0, c)
        for s in range(32):
            vm.wait(('A', s))
            for c in (1, 0):
                lg.wait(('B', s, c))
                ac = (accA, accB)[c]
                a(f'v_mfma_f32_32x32x16_bf16 {vr(ac, 16)}, {vr(Br + 8*(s & 1) + 4*c, 4)}, {vr(Ar + 4*(s % AD2), 4)}, ' + ('0' if s == 0 else vr(ac, 16)))
                if s + 1 < 32: b2_read(s + 1, c)
            if s + AD2 < 32: a2_load(s + AD2)
            if s == 31 - AD2:
                S(T5, 'rt*128 + GR')
                ld_gr = lambda: self.bl(gr, 2, vGR, rWS, T5, 0, 'sc1', 'gr')
                ld_gr()
                for n in range(nf2):
                    m, i = fq.pop(0); f2.append((m, i))
                    v, r = f_src(m, i)
                    self.bl(f2r + 4 * n, 4, v, r, T0, 0, o.get('ntffn', 'nt'), 'f2')
        self.stamp('gemm2')
        if o.get('prio2', 1): a('s_setprio 0')
        S(T0, 'w*4096')
        a(f"""v_add_u32 v{vT}, s{T0}, v{vG16}
        v_xor_b32 v{vT+1}, 0x4000, v{vT}""")
        for q in range(4): self.dw('ds_write_b128', vT, accB + 4 * q, 4, L_EXCH - GS + q * 1024)
        S(T0, 'kh*2048 + (w & 3)*512 + L_SP'); va(vT + 2, [(0, 5, 16), (5, 1, 8)], T0)
        sm = Br; one = Br + 4
        a(f'v_mov_b32 v{one}, 0x3f803f80')
        fd = list(o['fdma']); assert sum(fd) == len(fq)
        self.barrier()
        for q in range(4): self.r128(accB + 4 * q, vT + 1, L_EXCH - GS + q * 1024, ('ex', q))
        ffn_dma(fd[0], T1)
        for h in range(2):
            for q in (2 * h, 2 * h + 1):
                lg.wait(('ex', q))
                self.pk('add', accA + 4 * q, accA + 4 * q, accB + 4 * q); self.pk('add', accA + 4 * q + 2, accA + 4 * q + 2, accB + 4 * q + 2)
            rg = range(8 * h, 8 * h + 8)
            self.round_list([accA + i for i in rg])
            for i in range(8 * h, 8 * h + 8, 2): self.pk('mul', accA + i, accA + i, gaf + i)
            self.round_list([accA + i for i in rg])
            for i in range(8 * h, 8 * h + 8, 2): self.pk('add', accA + i, accA + i, xf + i)
            for i in range(4 * h, 4 * h + 4): a(f'v_cvt_pk_bf16_f32 v{xr+i}, v{accA+2*i}, v{accA+2*i+1}')
        for i in range(8):
            for d, b in ((sm, one), (sm + 2, xr + i), (sm + 1, gp + i), (sm + 3, gp + 8 + i)):
                a(f'v_dot2_f32_bf16 v{d}, v{xr+i}, v{b}, ' + ('0' if i == 0 else f'v{d}'))
        a(f"""v_permlane32_swap_b32 v{sm}, v{sm+2}
        v_permlane32_swap_b32 v{sm+1}, v{sm+3}""")
        self.pk('add', sm, sm, sm + 2)
        self.dw('ds_write_b64', vT + 2, sm, 2)
        a(f'v_add_u32 v{vT}, {L_SP}, v{vL16}')
        va(vT + 1, [(0, 3, 8 * 4096), (3, 1, 4096)])
        S(T0, '(rt*16 + cb)*2048 + STAT')
        S(T3, '((rt & 3)*64 + (rt >> 2)*2)*4096 + (cb >> 1)*64 + (cb & 1)*4 + INB + 1536')
        self.barrier()
        self.stamp('x1st')
        a(f"""s_cmp_lg_u32 s{sWAVE}, 0
        s_cbranch_scc1 L_PE""")
        for q in range(4): a(f'ds_read_b128 {vr(accB + 4*q, 4)}, v{vT} offset:{(q & 1) * 2048 + (q >> 1) * 1024}')
        for h in range(2):
            b = accB + 8 * h
            a(f's_waitcnt lgkmcnt({2 - 2*h})')
            self.pk('add', b, b, b + 4); self.pk('add', b + 2, b + 2, b + 6)
            a(f"""v_add_f32 v{b+1}, v{b+1}, v{b+3}
            v_mov_b32 v{b+3}, s{sTAG}""")
            self.bs(b, 4, vL16, rWS, T0, 1024 * h, 'sc1', count=False)
        a('s_mov_b64 exec, 0xffff')
        self.bs(accB + 3, 1, vT + 1, rWS, T3, 0, 'sc1', count=False)
        a("""s_mov_b64 exec, -1
        L_PE:""")
        self.stamp('x1pub')
        V.release(accA, 16); V.release(accB, 16); V.release(Ar, 4 * AD2); V.release(Br, 16); V.release(vBa); V.release(vBb); V.release(xf, 16); V.release(gaf, 16); V.release(gp, 16)
        ffn_dma(fd[1])
        a(f"""s_cmp_lt_u32 s{sWAVE}, 4
        s_cbranch_scc1 L_NOST""")
        S(T0, '(w - 4)*4096 + L_GU')
        a(f'v_add_u32 v{vT}, s{T0}, v{vL16}')
        a(f'v_add_u32 v{vT+3}, {L_DN - L_GU}, v{vT}')
        for n, (m, i) in enumerate(freg):
            for back in range(2):
                self.dw('ds_write_b128', vT if m < 2 else vT + 3, big + 8 * n + 4 * back, 4, f_lds(m, i) - (L_GU if m < 2 else L_DN) + (1 - back) * 16384)
        a('L_NOST:')
        S(T0, 'kh*64 + L_TB'); va(vT, [(0, 3, 4), (5, 1, 32)], T0)
        for q in range(4): self.dw('ds_write_b32', vT, tb4 + q, 1, 128 * q)
        vOT = V.alloc()
        S(T3, '(w & 3)*(32*144) + kh*64'); va(vOT, [(0, 5, 144), (5, 1, 32)], T3)
        for q in range(2): self.dw('ds_write_b128', vOT, xr + 4 * q, 4, L_XT + 16 * q)
        a(f'v_add_u32 v{vOT}, {L_OT}, v{vOT}')
        lg.wait_all()
        V.release(big, 8 * len(freg))
        x1 = V.alloc(16); hh = V.alloc(16); mf = V.alloc(32); sg = V.alloc(16); op = V.alloc(8)
        st = V.alloc(2); cn = V.alloc(2); vRid = V.alloc(); ck = V.alloc(4)
        def expand(dst, t):
            for i in range(8):
                self.dpp('v_mul_u32_u24', dst + 2 * i, t, cn, f'row_newbcast:{i}')
                self.dpp('v_and_b32', dst + 2 * i + 1, t, cn + 1, f'row_newbcast:{i}')
        def e_work():
            a(f"""v_mov_b32 v{cn}, 0x10000
            v_mov_b32 v{cn+1}, s{sMASK}""")
            S(T1, 'rt*32768 + w*256 + STAT')
            va(vT + 3, [(0, 4, 16), (4, 2, 2048)])
            S(T0, '4094 - (rt*8 + w)*32'); va(vRid, [(0, 4, 2)]); a(f'v_sub_u32 v{vRid}, s{T0}, v{vRid}')
            S(T0, 'w*128 + L_ST2'); va(vT + 4, [(0, 4, 8)], T0)
            S(T0, '(w & 3)*256 + L_ST2'); va(vT + 6, [(0, 5, 8)], T0)
            va(vT + 7, [(0, 3, 8)], None, L_K1)
            for i in range(8): self.unpack(x1 + 2 * i, x1 + 2 * i + 1, xr + i)
            self.finish_load('gr', ld_gr, [gr + 1])
            vm.wait('f2')
            for ctl in ('quad_perm:[1,0,3,2]', 'quad_perm:[2,3,0,1]', 'row_half_mirror', 'row_ror:8'): self.dpp('v_add_f32', gr, gr, gr, ctl)
            self.stamp('ew')
        self.inbox(3, 2, work=e_work)
        a('s_barrier')
        self.stamp('x1ok')
        def ld_sg():
            for q in range(4):
                S(T0, 'T1 + q', q=q * 8192)
                self.bl(sg + 4 * q, 4, vT + 3, rWS, T0, 0, 'sc1')
        ct = V.alloc(12, 4)
        def e_work2():
            a(f"""s_cmp_lg_u32 s{sWAVE}, 1
            s_cbranch_scc1 L_NOCT""")
            va(vT + 1, [(0, 4, 8)], None, L_TB)
            a(f"""ds_read_b64 {vr(ct + 2, 2)}, v{vT+1}
            ds_read_b64 {vr(ct + 6, 2)}, v{vT+1} offset:128
            ds_read_b64 {vr(ct + 8, 2)}, v{vT+1} offset:384
            s_waitcnt lgkmcnt(0)""")
            for b in (ct, ct + 4):
                self.unpack(b, b + 1, b + 2); self.unpack(b + 2, b + 3, b + 3)
            a('L_NOCT:')
            if nf2:
                S(T2, 'w*4096 + L_GU + 32768'); a(f'v_add_u32 v{vT+1}, s{T2}, v{vL16}')
                for n, (m, i) in enumerate(f2): self.dw('ds_write_b128', vT + 1, f2r + 4 * n, 4, f_lds(m, i) - L_GU - 32768)
            expand(mf, tb4); expand(mf + 16, tb4 + 1)
        self.try_load(ld_sg, [sg + 3, sg + 7, sg + 11, sg + 15], vT, e_work2)
        if nf2: V.release(f2r, 4 * nf2)
        self.stamp('x1ld')
        ffn_dma(fd[2], T2)
        A_, B_, C_, U_ = sg, sg + 1, sg + 2, sg + 3
        self.pk('add', sg, sg, sg + 4); self.pk('add', sg + 8, sg + 8, sg + 12)
        a(f"""v_add_f32 v{C_}, v{C_}, v{sg+6}
        v_add_f32 v{sg+10}, v{sg+10}, v{sg+14}""")
        self.pk('add', sg, sg, sg + 8)
        a(f"""v_add_f32 v{C_}, v{C_}, v{sg+10}
        v_mov_b32 v{U_}, v{B_}
        v_permlane32_swap_b32 v{A_}, v{C_}
        v_permlane32_swap_b32 v{B_}, v{U_}
        v_add_f32 v{A_}, v{A_}, v{C_}
        v_add_f32 v{B_}, v{B_}, v{U_}
        v_permlane16_swap_b32 v{A_}, v{B_}
        v_add_f32 v{U_}, v{A_}, v{B_}
        v_add_f32 v{A_}, v{A_}, v{B_}
        v_permlane16_swap_b32 v{A_}, v{U_}
        v_mul_f32 v{C_}, 0x3a800000, v{A_}
        v_mul_f32 v{A_}, 0x3a800000, v{A_}
        v_permlane32_swap_b32 v{A_}, v{C_}""")
        self.stat_math(A_, C_, st, st + 1)
        S(T0, 'w*8 + L_K1')
        a(f"""v_rcp_f32 v{st+1}, v{st+1}
        v_fma_f32 v{U_}, -v{st}, v{gr}, v{U_}
        v_mov_b32 v{vT+1}, s{T0}
        v_mul_f32 v{U_}, v{U_}, v{st+1}""")
        self.dw('ds_write_b64', vT + 4, st, 2)
        a(f"""s_movk_i32 s{T0}, 0xfff
        v_ashrrev_i32 v{A_}, 31, v{U_}
        v_or_b32 v{A_}, 0x80000000, v{A_}
        v_xor_b32 v{A_}, v{A_}, v{U_}
        v_bfi_b32 v{ck}, s{T0}, v{vRid}, v{A_}""")
        def top2(ctls, first):
            for n, ctl in enumerate(ctls):
                if n == 0 and first:
                    self.dpp('v_min_u32', ck + 1, ck, ck, ctl); self.dpp('v_max_u32', ck, ck, ck, ctl)
                    continue
                self.dpp('v_min_u32', ck + 2, ck, ck, ctl); self.dpp('v_max_u32', ck + 1, ck + 1, ck + 1, ctl); self.dpp('v_max_u32', ck, ck, ck, ctl)
                a(f'v_max_u32 v{ck+1}, v{ck+1}, v{ck+2}')
        top2(('row_ror:8', 'row_ror:4', 'row_ror:2', 'row_ror:1'), True)
        self.dw('ds_write_b64', vT + 1, ck, 2)
        va(vT + 2, [(0, 2, 64 * 4096), (2, 2, 2 * 4096)])
        S(T1, '((cb & 7)*8 + (cb >> 3))*4096 + (rt >> 1)*64 + (rt & 1)*16 + INB + 2560')
        self.barrier()
        self.stamp('ln2')
        self.dr('ds_read_b64', ck, 2, vT + 7, 0, 'k'); self.dr('ds_read_b64', st, 2, vT + 6, 0, 's')
        lg.wait('k')
        top2(('quad_perm:[1,0,3,2]', 'quad_perm:[2,3,0,1]', 'row_half_mirror'), False)
        a(f"""v_or_b32 v{ck+2}, 1, v{ck+1}
        v_mov_b32 v{ck+1}, s{sTAG}
        v_mov_b32 v{ck+3}, s{sTAG}
        s_cmp_lg_u32 s{sWAVE}, 0
        s_cbranch_scc1 L_NOF
        s_mov_b64 exec, 0xffff""")
        self.bs(ck, 4, vT + 2, rWS, T1, 0, 'sc1', count=False)
        a("""s_mov_b64 exec, -1
        L_NOF:""")
        self.stamp('Fpub')
        a(f"""s_cmp_lg_u32 s{sWAVE}, 1
        s_cbranch_scc1 L_NOC
        v_and_b32 v{vT}, 16, v{vL}
        v_cmp_eq_u32 vcc, 0, v{vT}
        v_cndmask_b32 v{vT}, v{ck+2}, v{ck}, vcc
        v_not_b32 v{vT}, v{vT}
        v_bfe_u32 v{vT}, v{vT}, 1, 7
        v_lshlrev_b32 v{vT+2}, 3, v{vT}
        v_mul_u32_u24 v{vT}, 144, v{vT}
        v_add_u32 v{vT+2}, {L_ST2}, v{vT+2}""")
        va(vT + 1, [(0, 4, 8)])
        cx, cs, ch = sg, sg + 4, sg + 8
        a(f"""v_add_u32 v{vT}, v{vT}, v{vT+1}
        ds_read_b64 {vr(cs, 2)}, v{vT+2}
        ds_read_b64 {vr(cx, 2)}, v{vT} offset:{L_XT}""")
        va(vT + 2, [(0, 4, 16), (4, 1, 16384), (5, 1, 4096)])
        va(vT + 3, [(4, 1, 16384)])
        S(T0, 'rt*32768 + cb*256 + CAND'); S(T3, 'rt*32768 + cb*8 + 8192 + CAND')
        a(f"""v_mov_b32 v{cx+3}, s{sTAG}
        s_waitcnt lgkmcnt(0)""")
        self.unpack(ch, ch + 1, cx); self.unpack(ch + 2, ch + 3, cx + 1)
        for i in (0, 2): self.pk('add', ch + i, ch + i, cs, bc=(1,), neg=(1,))
        self.round_list([ch + i for i in range(4)])
        for i in (0, 2): self.pk('mul', ch + i, ch + i, cs + 1, bc=(1,))
        self.round_list([ch + i for i in range(4)])
        for i in (0, 2): self.pk('mul', ch + i, ch + i, ct + 4 + i)
        self.round_list([ch + i for i in range(4)])
        for i in (0, 2): self.pk('add', ch + i, ch + i, ct + i)
        a(f"""v_mov_b32 v{cx+2}, v{cx+1}
        v_mov_b32 v{cx+1}, s{sTAG}
        s_mov_b32 exec_hi, 0
        v_cvt_pk_bf16_f32 v{cx}, v{ch}, v{ch+1}
        v_cvt_pk_bf16_f32 v{cx+2}, v{ch+2}, v{ch+3}
        s_mov_b32 exec_hi, -1
        v_dot2_f32_bf16 v{cs}, v{cx}, v{ct+8}, 0
        v_mov_b32 v{cs+1}, s{sTAG}
        v_dot2_f32_bf16 v{cs}, v{cx+2}, v{ct+9}, v{cs}""")
        self.bs(cx, 4, vT + 2, rWS, T0, 0, 'sc1', count=False)
        for ctl in ('quad_perm:[1,0,3,2]', 'quad_perm:[2,3,0,1]', 'row_half_mirror', 'row_ror:8'): self.dpp('v_add_f32', cs, cs, cs, ctl)
        a('s_mov_b64 exec, 0x10001')
        self.bs(cs, 2, vT + 3, rWS, T3, 0, 'sc1', count=False)
        a("""s_mov_b64 exec, -1
        L_NOC:""")
        V.release(ct, 12)
        def ln2_tile():
            for i in E2: self.pk('add', hh + i, x1 + i, st, bc=(1,), neg=(1,))
            self.round_list([hh + i for i in range(16)])
            for i in E2: self.pk('mul', hh + i, hh + i, st + 1, bc=(1,))
            self.round_list([hh + i for i in range(16)])
            for i in E2: self.pk('mul', hh + i, hh + i, mf + 16 + i)
            self.round_list([hh + i for i in range(16)])
            for i in E2: self.pk('add', hh + i, hh + i, mf + i)
            self.round_list([hh + i for i in range(16)])
        lg.wait('s')
        self.stamp('cand')
        ffn_dma(fd[3])
        uu = V.alloc(16); vGr = V.alloc(); vDr = V.alloc(); vXs = V.alloc()
        def out_calc():
            expand(mf, tb4 + 2)
            for i in E2: self.pk('mul', hh + i, hh + i, mf + i)
            self.round_list([hh + i for i in range(16)])
            for i in E2: self.pk('add', hh + i, hh + i, x1 + i)
            for i in range(8): a(f'v_cvt_pk_bf16_f32 v{op+i}, v{hh+2*i}, v{hh+2*i+1}')
            for q in range(2): self.dw('ds_write_b128', vOT, op + 4 * q, 4, 16 * q)
            S(T3, 'w*(16*144) + L_OT'); va(vOT, [(3, 3, 144), (0, 3, 16)], T3)
        oc = o.get('ocat', 1)
        def f_work():
            ln2_tile()
            if oc == 0: out_calc()
            S(T0, '(w >> 2)*32768 + (w & 3)*32 + L_GU')
            va(vGr, [(4, 2, 8192), (2, 2, 128), (3, 2, 32), (0, 2, 8)]); a(f'v_xor_b32 v{vGr}, s{T0}, v{vGr}')
            S(T0, 'w*64')
            va(vDr, [(2, 1, 512), (3, 1, 4096), (5, 1, 2048), (2, 2, 64), (4, 1, 32), (0, 2, 8)])
            a(f'v_xor_b32 v{vDr}, s{T0}, v{vDr}'); a(f'v_add_u32 v{vDr}, {L_DN}, v{vDr}')
            va(vXs, [(0, 3, 16), (4, 2, 128)], None, L_XS)
            S(T0, 'w*16 + L_K2'); a(f'v_mov_b32 v{vT}, s{T0}')
            va(vT + 1, [(0, 3, 16)], None, L_K2)
            a(f'v_and_b32 v{vT+4}, 8, v{vL}')
            a(f'v_cmp_eq_u32 {sr(sCMP, 2)}, 0, v{vT+4}')
            self.stamp('oc')
        self.inbox(5, 8, (1, 3, 5, 7), f_work)
        P = sPL
        a(f"""s_min_u32 s{P+1}, s{P}, s{P+4}
        s_max_u32 s{P}, s{P}, s{P+4}
        s_max_u32 s{P+3}, s{P+2}, s{P+6}
        s_min_u32 s{P+2}, s{P+2}, s{P+6}
        s_max_u32 s{P+4}, s{P+1}, s{P+3}
        s_min_u32 s{P+1}, s{P+1}, s{P+3}
        v_mov_b32 v{uu}, s{P}
        v_mov_b32 v{uu+3}, s{P+2}
        v_mov_b32 v{uu+1}, s{P+4}
        v_mov_b32 v{uu+2}, s{P+1}""")
        self.dw('ds_write_b128', vT, uu, 4)
        self.stamp('F2p')
        V.release(mf + 16, 16); V.release(gr, 2); V.release(vGR); V.release(vRid)
        ffn = V.alloc(48)
        vm.wait('gu')
        self.barrier()
        self.stamp('F2')
        def gu_frags():
            for s in range(8):
                self.tr(ffn + 4 * s, vGr, s * 1024); self.tr(ffn + 4 * s + 2, vGr, s * 1024 + 512)
        a(f"""s_cmp_lt_u32 s{sWAVE}, 4
        s_cbranch_scc1 L_CSEL""")
        fq0, vq0 = list(fq), list(vm.q)
        ffn_dma(fd[4])
        gu_frags()
        if oc: out_calc()
        a("""s_branch L_CSELD
        L_CSEL:""")
        lg.reset(); fq[:] = fq0; vm.q = vq0
        self.r128(uu, vT + 1)
        S(T0, 'w*512 + L_XS'); a(f'v_add_u32 v{vT+2}, s{T0}, v{vL8}')
        S(T0, 'w*4 + L_K3'); a(f'v_mov_b32 v{vT+3}, s{T0}')
        lg.wait_all()
        c4 = uu + 4
        for n, ctl in enumerate(('quad_perm:[1,0,3,2]', 'quad_perm:[2,3,0,1]', 'row_half_mirror')):
            for i in range(4): self.dpp('v_max_u32', c4 + i, uu + 3 - i, uu + i, ctl)
            if n == 2: break
            a(f"""v_max_u32 v{c4+4}, v{c4}, v{c4+2}
            v_max_u32 v{c4+5}, v{c4+1}, v{c4+3}
            v_min_u32 v{c4+6}, v{c4}, v{c4+2}
            v_min_u32 v{c4+7}, v{c4+1}, v{c4+3}
            v_max_u32 v{uu}, v{c4+4}, v{c4+5}
            v_min_u32 v{uu+1}, v{c4+4}, v{c4+5}
            v_max_u32 v{uu+2}, v{c4+6}, v{c4+7}
            v_min_u32 v{uu+3}, v{c4+6}, v{c4+7}""")
        for i in range(4): a(f'v_readfirstlane_b32 s{P+i}, v{c4+i}')
        a(f"""s_bitcmp1_b32 s{sWAVE}, 0
        s_cselect_b32 s{P}, s{P+1}, s{P}
        s_cselect_b32 s{P+2}, s{P+3}, s{P+2}
        s_bitcmp1_b32 s{sWAVE}, 1
        s_cselect_b32 s{P}, s{P+2}, s{P}
        s_and_b32 s{T2}, s{P}, 4095""")
        S(T0, '((15 - (T2 >> 8))*2 + (T2 & 1))*16384 + CAND'); S(T1, 'kq*1024 + T0'); S(T0, 'T0 + 8192')
        va(vT + 6, [(0, 4, 8)])
        def sel_work():
            self.stamp('sel')
            ffn_dma(fd[4], T3)
            gu_frags()
            if oc: out_calc()
            S(T2, 'T2*4 + w')
        self.try_load(lambda: (self.bl(uu + 4, 2, vT + 6, rWS, T0, 0, 'sc1'), self.bl(uu, 4, vL16, rWS, T1, 0, 'sc1')), [uu + 1, uu + 3, uu + 5], vT + 4, sel_work)
        a(f'ds_write2_b32 v{vT+2}, v{uu}, v{uu+2} offset0:0 offset1:1'); lg.issue()
        for ctl in ('quad_perm:[1,0,3,2]', 'quad_perm:[2,3,0,1]', 'row_half_mirror', 'row_ror:8'): self.dpp('v_add_f32', uu + 4, uu + 4, uu + 4, ctl)
        a(f"""v_cvt_pk_bf16_f32 v{uu+4}, 0, v{uu+4}
        v_ashrrev_i32 v{uu+5}, 31, v{uu+4}
        v_or_b32 v{uu+5}, 0x80000000, v{uu+5}
        v_xor_b32 v{uu+4}, v{uu+4}, v{uu+5}
        v_and_b32 v{uu+4}, s{sMASK}, v{uu+4}
        v_or_b32 v{uu+4}, s{T2}, v{uu+4}""")
        self.dw('ds_write_b32', vT + 3, uu + 4, 1)
        a('L_CSELD:')
        V.release(vFG); V.release(vFD); V.release(mf, 16); V.release(tb4, 4); V.release(cn, 2)
        a(f'v_mov_b32 v{vT}, {L_K3}')
        va(vT + 4, [(0, 4, 16), (5, 1, 8)])
        S(T1, 'fs*8192 + HGR'); S(T7, '(kq*8 + w)*256 + T1')
        self.barrier()
        self.stamp('xsel')
        self.r128(uu, vT)
        lg.wait_all()
        a(f"""v_max_u32 v{uu+4}, v{uu}, v{uu+1}
        v_max_u32 v{uu+5}, v{uu+2}, v{uu+3}
        v_min_u32 v{uu+6}, v{uu}, v{uu+1}
        v_min_u32 v{uu+7}, v{uu+2}, v{uu+3}
        v_min_u32 v{uu+1}, v{uu+4}, v{uu+5}
        v_max_u32 v{uu}, v{uu+4}, v{uu+5}
        v_max3_u32 v{uu+1}, v{uu+1}, v{uu+6}, v{uu+7}
        v_cndmask_b32 v{vT}, v{uu+1}, v{uu}, {sr(sCMP, 2)}
        v_readfirstlane_b32 s{sK1}, v{uu}
        v_and_b32 v{vT}, 3, v{vT}
        v_readfirstlane_b32 s{sK2}, v{uu+1}
        v_lshl_add_u32 v{vT}, v{vT}, 9, v{vXs}""")
        self.r128(uu + 4, vT)
        for q in range(2): self.r128(op + 4 * q, vOT, q * 8 * 144, 'ot')
        a(f"""s_bfe_u32 s{sROW0}, s{sK1}, {3 | (11 << 16)}
        s_bfe_u32 s{sROW1}, s{sK2}, {3 | (11 << 16)}
        s_sub_u32 s{sROW0}, 2047, s{sROW0}
        s_sub_u32 s{sROW1}, 2047, s{sROW1}
        s_waitcnt lgkmcnt(2)""")
        gd = [x1 + 4 * i for i in range(4)] + [hh + 4 * i for i in range(4)]
        for s in range(8):
            a(f'v_mfma_f32_16x16x32_bf16 {vr(gd[s], 4)}, {vr(uu + 4, 4)}, {vr(ffn + 4*s, 4)}, 0')
        p0, p1 = uu, uu + 2
        for p, b in ((p0, 0), (p1, 4)):
            a(f'v_add_f32 v{p}, v{gd[b]}, v{gd[b+1]+1}')
            a(f'v_add_f32 v{p+1}, v{gd[b+2]+2}, v{gd[b+3]+3}')
        a(f"""v_add_f32 v{p0}, v{p0}, v{p0+1}
        v_add_f32 v{p1}, v{p1}, v{p1+1}
        v_mov_b32 v{p0+1}, s{sTAG}
        v_permlane16_swap_b32 v{p1}, v{p1+1}
        s_cmp_ge_u32 s{sJ}, 28
        s_cbranch_scc1 L_NOHP
        v_add_f32 v{p0}, v{p0}, v{p1+1}
        s_mov_b32 exec_lo, 0xffff
        s_mov_b32 exec_hi, 0xffff""")
        self.bs(p0, 2, vT + 4, rWS, T7, 0, 'sc1', count=False)
        a("""s_mov_b64 exec, -1
        L_NOHP:""")
        self.stamp('Hpub')
        vOr = V.alloc(); vOa = V.alloc()
        def out_store():
            S(T0, 'rt*128 + w*16'); va(vOr, [(3, 3, 1)], T0)
            S(T2, 'T0*2048 + cb*128'); S(T3, 'T2 + 16384')
            va(vOa, [(3, 3, 2048), (0, 3, 16)])
            for q in range(2):
                if q: a(f'v_add_u32 v{vOr}, 8, v{vOr}')
                a(f"""v_cmp_ne_u32 vcc, s{sROW0}, v{vOr}
                v_cmp_ne_u32 {sr(sCMP, 2)}, s{sROW1}, v{vOr}
                s_and_b64 exec, vcc, {sr(sCMP, 2)}""")
                self.bs(op + 4 * q, 4, vOa, rOUT, (T2, T3)[q], 0, o.get('outmod', ''), count=False)
                a('s_mov_b64 exec, -1')
        lg.wait('ot')
        if o.get('outat', 1) == 0: out_store()
        fz = V.alloc(4)
        sFR, sFK, sFC0 = T4, T5, T6
        a(f"""s_bitcmp1_b32 s{sRT}, 2
        s_cselect_b32 s{sFR}, s{sROW1}, s{sROW0}
        s_cselect_b32 s{sFK}, s{sK2}, s{sK1}
        s_cmp_lg_u32 s{sWAVE}, 7
        s_cbranch_scc1 L_NOFZ
        s_cmp_lg_u32 s2, 0
        s_cbranch_scc1 L_NONON
        v_mov_b32 v{vT+2}, s{sTAG}
        s_mov_b64 exec, 1""")
        self.bs(vT + 2, 1, vZ, rWS, '0', 0, 'sc1', count=False)
        a(f"""s_mov_b64 exec, -1
        L_NONON:""")
        S(sFC0, '(rt >> 3)*2 + (rt & 1)')
        S(T7, '(cb*8 + (rt >> 2)*2 + (rt & 1))*(56*128) + GGR')
        S(sU, 'T4*2048 + cb*128 + T6*32')
        va(vT + 6, [(0, 3, 4)])
        S(T0, 'T6*32 + L_GB'); a(f'v_add_u32 v{vT+1}, s{T0}, v{vT+6}')
        a(f'ds_read_b32 v{fz+2}, v{vT+1}')
        S(sK1, '((T4 >> 7)*2 + ((T5 >> 2) & 1))*16384 + cb*256 + T6*64 + CAND'); S(sK2, 'k1 + 4096')
        va(vT + 7, [(0, 3, 8)])
        ld_fz = lambda: (self.bl(st, 2, vT + 7, rWS, sK1, 0, 'sc1'), self.bl(fz, 2, vT + 7, rWS, sK2, 0, 'sc1'))
        q_ = list(vm.q); ld_fz(); vm.q = q_
        a(f"""s_and_b32 s{T0}, s{sFK}, s{sMASK}
        s_ashr_i32 s{T2}, s{T0}, 31
        s_andn2_b32 s{T2}, 0x7fff0000, s{T2}
        s_or_b32 s{T2}, s{T2}, 0x80000000
        s_xor_b32 s{T0}, s{T0}, s{T2}
        v_mov_b32 v{fz+3}, s{T0}
        v_mul_f32 v{fz+3}, s{sL2E}, v{fz+3}
        v_exp_f32 v{fz+3}, -v{fz+3}
        v_add_f32 v{fz+3}, 1.0, v{fz+3}
        v_rcp_f32 v{fz+3}, v{fz+3}""")
        self.round1(fz + 3)
        a(f"""L_NOFZ:
        s_cmp_ge_u32 s{sJ}, 28
        s_cbranch_scc1 L_GSEC""")
        a(f"""s_cmp_ge_u32 s{sWAVE}, 4
        s_cbranch_scc1 L_NOH""")
        S(T0, 'w*256 + T1')
        va(vT, [(4, 2, 2048), (0, 4, 16)])
        S(T2, 'w*32 + L_ACT'); va(vT + 1, [(5, 1, 128), (2, 1, 16), (1, 1, 8), (3, 1, 4), (0, 1, 2)], T2)
        self.spoll([(q, 1, T0, q * 2048 + 1024 + 252) for q in range(4)], range(4))
        self.stamp('Hpre')
        g, u = x1, x1 + 4
        self.poll(lambda: [self.bl(x1 + 4 * m, 4, vT, rWS, T0, m * 1024, 'sc1') for m in range(2)], [g + 1, g + 3, u + 1, u + 3], vT + 2)
        a(f"""v_permlane32_swap_b32 v{g}, v{g+2}
        v_permlane32_swap_b32 v{u}, v{u+2}
        v_add_f32 v{g}, v{g}, v{g+2}
        v_add_f32 v{u}, v{u}, v{u+2}
        v_mov_b32 v{g+2}, v{g}
        v_mov_b32 v{u+2}, v{u}
        v_permlane16_swap_b32 v{g}, v{g+2}
        v_permlane16_swap_b32 v{u}, v{u+2}
        v_add_f32 v{g}, v{g}, v{g+2}
        v_add_f32 v{u}, v{u}, v{u+2}""")
        self.round2(g, u)
        self.silu(g, vT + 2)
        a(f"""v_mul_f32 v{g}, v{g}, v{u}
        v_cvt_pk_bf16_f32 v{g}, v{g}, v{g}
        ds_write_b16 v{vT+1}, v{g}
        L_NOH:""")
        va(vT, [(2, 1, 128), (5, 1, 16)], None, L_ACT)
        va(vT + 1, [(4, 2, 56 * 128), (0, 4, 8)])
        va(vT + 2, [(0, 1, 64 * 4096), (1, 1, 2 * 4096)])
        S(T0, '(kq*8 + w)*(4*56*128) + fs*128 + GGR')
        S(T1, '(((kq & 1)*4 + (w >> 1))*8 + (w & 1)*4 + (kq >> 1))*4096 + x*64 + (j >> 2)*4 + INB + 3072')
        vm.wait_all()
        self.barrier()
        self.stamp('Hok')
        for s in range(4):
            self.r128(x1 + 4 * s, vT, s * 32, ('ac', s))
            self.tr(ffn + 32 + 4 * s, vDr, s * 8192, ('ac', s)); self.tr(ffn + 32 + 4 * s + 2, vDr, s * 8192 + 1024, ('ac', s))
        for s in range(4):
            lg.wait(('ac', s))
            a(f'v_mfma_f32_32x32x16_bf16 {vr(hh, 16)}, {vr(x1 + 4*s, 4)}, {vr(ffn + 32 + 4*s, 4)}, ' + ('0' if s == 0 else vr(hh, 16)))
        a(f'v_mov_b32 v{hh+1}, s{sTAG}')
        self.bs(hh, 2, vT + 1, rWS, T0, 0, 'sc1')
        a('s_mov_b64 exec, 15')
        self.bs(hh + 1, 1, vT + 2, rWS, T1, 0, 'sc1')
        a('s_mov_b64 exec, -1')
        self.stamp('Gpub')
        a('L_GSEC:')
        if o.get('outat', 1) == 1: out_store()
        a(f"""s_cmp_ge_u32 s{sJ}, 16
        s_cbranch_scc1 L_FIN""")
        self.inbox(6, 8, range(7))
        self.stamp('Gpre')
        a(f"""s_barrier
        s_cmp_lg_u32 s{sWAVE}, 7
        s_cbranch_scc1 L_FIN""")
        S(T0, 'T7 + 4096')
        gg = [x1 + 4 * i for i in range(4)] + [uu + 4 * i for i in range(3)]
        self.poll(lambda: [self.bl(gg[n], 4, vL16, rWS, (T7, T0)[n >> 2], (n & 3) * 1024, 'sc1') for n in range(7)],
                  [gg[n] + 1 + 2 * e for n in range(7) for e in range(2)], vT)
        self.finish_load(None, ld_fz, [st + 1, fz + 1], vT)
        self.stamp('Gok')
        for n in range(1, 7):
            for e in (0, 2): a(f'v_add_f32 v{gg[0]+e}, v{gg[0]+e}, v{gg[n]+e}')
        y0, y1 = gg[0], gg[0] + 1
        a(f'v_mov_b32 v{y1}, v{gg[0]+2}')
        for y in (y0, y1): self.dpp('v_add_f32', y, y, y, 'row_ror:8')
        for sw in ('v_permlane16_swap_b32', 'v_permlane32_swap_b32'):
            for y in (y0, y1): a(f'v_mov_b32 v{y+2}, v{y}')
            for y in (y0, y1): a(f'{sw} v{y}, v{y+2}')
            self.pk('add', y0, y0, y0 + 2)
        self.round2(y0, y1)
        self.pk('mul', y0, y0, fz + 3, bc=(1,))
        self.unpack(vT, vT + 1, st)
        self.round2(y0, y1)
        self.pk('add', y0, y0, vT)
        self.unpack(vT, vT + 1, fz + 2)
        self.round2(y0, y1)
        self.pk('mul', y0, y0, vT)
        self.unpack(vT, vT + 1, fz)
        self.round2(y0, y1)
        self.pk('add', y0, y0, vT)
        a(f'v_cvt_pk_bf16_f32 v{y0}, v{y0}, v{y1}')
        a('s_mov_b64 exec, 0xff')
        self.bs(y0, 1, vT + 6, rOUT, sU, 0, 'sc1')
        a('s_mov_b64 exec, -1')
        a('L_FIN:')
        if self.prof:
            a('s_waitcnt vmcnt(0) lgkmcnt(0)')
            self.stamp('end')
            a(f's_memrealtime {sr(sTM, 2)}')
            a('s_waitcnt lgkmcnt(0)')
            a(f'v_writelane_b32 v255, s{sTM}, 61')
            S(T0, '(wg*8 + w)*256 + STAMPS')
            a(f'v_writelane_b32 v255, s{sSPIN}, 62')
            a(f'v_lshlrev_b32 v{vT+1}, 2, v{vL}')
            a(f'buffer_store_dword v255, v{vT+1}, {sr(rWS, 4)}, s{T0} offen')
            S(T0, 'T0 + 0x100000')
            a(f'buffer_store_dword v254, v{vT+1}, {sr(rWS, 4)}, s{T0} offen')
        a('L_END:')
        a('s_endpgm')
        return self

    def text(self):
        a = self.a
        npad = a.fix_hazards()
        errs = a.check_waits([NAME])
        for e in errs: print('WAITERR', e, file=sys.stderr)
        assert not errs
        hdr = open(os.path.join(os.path.dirname(os.path.abspath(__file__)), 'header.txt')).read()
        s = hdr + '; @launch grid=(256,1,1) block=(512,1,1) lds=163840\n'
        s += '.amdgcn_target "amdgcn-amd-amdhsa--gfx950"\n.text\n'
        s += f'.globl {NAME}\n.p2align 8\n.type {NAME},@function\n'
        body = a.text()
        import subprocess, tempfile
        with tempfile.TemporaryDirectory() as td:
            open(td + '/t.s', 'w').write('.amdgcn_target "amdgcn-amd-amdhsa--gfx950"\n.text\n' + body.replace('CODE_KB', '20480'))
            subprocess.run(['clang', '-x', 'assembler', '-target', 'amdgcn-amd-amdhsa', '-mcpu=gfx950', '-c', td + '/t.s', '-o', td + '/t.o'], check=True)
            subprocess.run(['llvm-objcopy', '-O', 'binary', '-j', '.text', td + '/t.o', td + '/t.bin'], check=True)
            size = os.path.getsize(td + '/t.bin')
        print('; code bytes', size, file=sys.stderr)
        s += body.replace('CODE_KB', str((size // 1024 + 1) * 1024))
        s += '.p2align 10\n.fill 768, 4, 0xbf800000\n'
        s += '.section .rodata,"a"\n' + kernel_desc(NAME, 256, 102)
        print(f'; vgpr hi {self.V.hi}, nops {npad}, instrs {sum(1 for k, _ in a.items if k == "ins")}', file=sys.stderr)
        return s


if __name__ == '__main__':
    import argparse, json
    ap = argparse.ArgumentParser()
    ap.add_argument('-o', default='/dev/stdout')
    ap.add_argument('--prof', action='store_true')
    ap.add_argument('--opts', default='{}')
    args = ap.parse_args()
    g = Gen(args.prof, json.loads(args.opts)).build()
    t = g.text()
    open(args.o, 'w').write(t)
    if args.prof: open(args.o + '.stamps', 'w').write(json.dumps(g.stnames))
```

```python
import sys, os
sys.path.insert(0, os.path.dirname(os.path.abspath(__file__)))
from asm import *

NAME = 'adaLN_cond__linear_kernel_hedgehog__moe_arch_mod__prompt_kernel'

NONCE = 0x0
GR = 0x010000
MODP2 = 0x020000
SINB = 0x040000
AINB = 0x080000
INA = 0x200000
INB = 0x100000
HF = 0x400000
OF = 0x800000
STAT = 0xC00000
CAND = 0x2000000
HGR = 0x1400000
ZP = 0x1480000
GGR = 0x1500000
KVP = 0x1800000
KIN = 0x1C00000
STAMPS = 0x1600000
WS_BYTES = 268435456

SLOT = 24576
SCR = 147456
L_A1 = SCR
L_M2 = SCR + 2048
L_WPHI = SCR + 12288
L_ST = SCR + 6144
L_MP = SCR + 8192
L_XF = SCR
L_PHK = 0
L_V = 32768
WO_H0 = 32768
WO_H1 = 98304
GS = 0
L_KVF = GS
L_ZF = GS + 8192
L_EXCH = GS
L_MT = GS + 12288
L_GU = 32768
L_DN = 98304
TS = 131072
L_SP = TS
L_ST2 = TS + 4096
L_K1 = TS + 5120
L_K2 = TS + 5184
L_K3 = TS + 5312
L_XS = TS + 5632
L_ACT = TS + 7680
L_TB = TS + 7936
L_GB = L_TB + 256
L_OT = TS + 8704
L_XT = GS

SPIN_LIMIT = 300000

sWAVE, sTAG, sSPIN, sMASK, sL2E = 3, 4, 5, 6, 7
sX, sJ, sR1, sHP, sCB = 8, 9, 10, 11, 12
T0, T1, T2, T3, T4, T5, T6, T7 = 13, 14, 15, 16, 17, 18, 19, 20
sRT = 21
sCMP = 22
sPL = 24
rWS, rX, rW, rWO, rWM, rWG, rWU, rWD, rOUT = 32, 36, 40, 44, 48, 52, 56, 60, 64
KA = 68
pWPHI, pWR, pC = KA + 4, KA + 10, KA + 18
sK1, sK2, sROW0, sROW1, sFS, sKQ, sKH, sKF = 68, 69, 70, 71, 74, 75, 76, 77
sFG, sFD, sU, sROT, sWB, sU0 = 80, 81, 82, 83, 84, 85
sWO2, sW1K, sMF = 88, 89, 90
sINB, sRow, sGTB, sC32 = 92, 93, 94, 95
sXC = 94
pDBG = 30
XT = (96, 97, 98, 99)
sTM = 100
ENV = dict(wg=2, w=sWAVE, x=sX, j=sJ, r1=sR1, hp=sHP, cb=sCB, rt=sRT, row=sRow, gtb=sGTB, c32=sC32, kh=sKH, kf=sKF, fs=sFS, kq=sKQ,
           rot=sROT, wb=sWB, u0=sU0, wo2=sWO2, w1k=sW1K, mf=sMF, u=sU, fg=sFG, fd=sFD, T0=T0, T1=T1, T2=T2, T3=T3, T4=T4, T5=T5, T6=T6, T7=T7, row0=sROW0, row1=sROW1, k1=sK1)


class Gen:
    def __init__(self, prof=False, opts=None):
        self.a = Asm()
        self.vm = Counter(self.a, 'vmcnt', 63)
        self.lg = Counter(self.a, 'lgkmcnt', 15)
        self.V = RegAlloc(254, 1)
        self.prof = prof
        self.nopk = False
        self.nst = 0
        self.stnames = []
        self.S = SExpr(self.a, ENV, {k: v for k, v in globals().items() if isinstance(v, int) and k.isupper() and k not in ENV}, XT)
        self.o = dict(AD=12, AD2=4, wburst=(0, 3, 0, 0, 6, 3), LASTB=13,
                      sched={1: 'm1 p2', 2: 's4', 3: 'm1 s4', 4: 'p2', 5: 'm1 g2', 7: 'm1 g2 p3', 9: 'g2 q', 10: 'g2', 11: 'r', 12: 'P', 14: 'o4 f4', 15: 'f2'}, fdma=(3, 0, 1, 1, 1), wowin=(2, 4, 3))
        if opts: self.o.update(opts)

    def bl(self, dst, n, voff, srd, soff, imm=0, mods='', tag=None):
        op = {1: 'dword', 2: 'dwordx2', 4: 'dwordx4'}[n]
        so = soff if isinstance(soff, str) else (sr(soff))
        self.a(f'buffer_load_{op} {vr(dst, n)}, v{voff}, {sr(srd, 4)}, {so} offen' + (f' offset:{imm}' if imm else '') + (' ' + mods if mods else ''))
        self.vm.issue(tag)
    def bs(self, src, n, voff, srd, soff, imm=0, mods='', tag=None, count=True):
        op = {1: 'dword', 2: 'dwordx2', 4: 'dwordx4'}[n]
        so = soff if isinstance(soff, str) else (sr(soff))
        self.a(f'buffer_store_{op} {vr(src, n)}, v{voff}, {sr(srd, 4)}, {so} offen' + (f' offset:{imm}' if imm else '') + (' ' + mods if mods else ''))
        if count: self.vm.issue(tag)
    def dma(self, voff, srd, soff, imm=0, mods='', tag=None):
        self.a(f'buffer_load_dwordx4 v{voff}, {sr(srd, 4)}, {sr(soff)} offen' + (f' offset:{imm}' if imm else '') + (' ' + mods if mods else '') + ' lds')
        self.vm.issue(tag)
    def dr(self, op, dst, n, addr, off=0, tag=None):
        assert 0 <= off < 65536, off
        self.a(f'{op} {vr(dst, n)}, v{addr}' + (f' offset:{off}' if off else ''))
        self.lg.issue(tag)
    def tr(self, dst, addr, off, tag=None): self.dr('ds_read_b64_tr_b16', dst, 2, addr, off, tag)
    def r128(self, dst, addr, off=0, tag=None): self.dr('ds_read_b128', dst, 4, addr, off, tag)
    def dw(self, op, addr, src, n, off=0, tag=None):
        assert 0 <= off < 65536, off
        self.a(f'{op} v{addr}, {vr(src, n)}' + (f' offset:{off}' if off else ''))
        self.lg.issue(tag)
    def barrier(self):
        self.lg.wait_all()
        self.a('s_barrier')
    def stamp(self, name):
        ex = self.o.get('exfil')
        if ex and name in ex[:2]:
            self.a(f's_memrealtime {sr(sTM, 2)}')
            self.lg.wait_all()
            self.a(f'v_writelane_b32 v255, s{sTM}, {1 + ex.index(name)}')
        if not self.prof: return
        only = self.o.get('only')
        if only and name not in only and name != 'end': return
        self.a(f's_memtime {sr(sTM, 2)}')
        self.a(f's_memrealtime s[0:1]')
        self.lg.wait_all()
        self.a(f'v_writelane_b32 v255, s{sSPIN if self.o.get("spinst") and self.nst > 3 else sTM}, {self.nst}')
        self.a(f'v_writelane_b32 v254, s0, {self.nst}')
        self.stnames.append(name)
        self.nst += 1
        assert self.nst <= 60
    def unpack(self, lo, hi, src):
        self.a(f'v_lshlrev_b32 v{lo}, 16, v{src}')
        self.a(f'v_and_b32 v{hi}, s{sMASK}, v{src}')
    def round1(self, r):
        self.a(f'v_cvt_pk_bf16_f32 v{r}, 0, v{r}')
    def round2(self, r0, r1):
        self.round1(r0); self.round1(r1)
    def round_list(self, regs):
        for r in regs: self.round1(r)
    def pk(self, op, d, s0, s1, s2=None, bc=(), neg=()):
        srcs = [s0, s1] + ([s2] if s2 is not None else [])
        if self.nopk:
            for h in range(2):
                t = []
                for k, r in enumerate(srcs):
                    kind, n = r if isinstance(r, tuple) else ('v', r)
                    t.append(('-' if k in neg else '') + f'{kind}{n if k in bc else n + h}')
                e64 = '' if op == 'fma' else ('_e64' if (neg or t[1][0] == 's') else '')
                self.a(f'v_{op}_f32{e64} v{d+h}, ' + ', '.join(t))
            return
        txt, sel, selhi = [], [], []
        for k, r in enumerate(srcs):
            kind, n = r if isinstance(r, tuple) else ('v', r)
            if k in bc:
                txt.append(f'{kind}[{n & ~1}:{(n & ~1) + 1}]'); sel.append(n & 1); selhi.append(n & 1)
            else:
                assert n % 2 == 0
                txt.append(f'{kind}[{n}:{n+1}]'); sel.append(0); selhi.append(1)
        assert d % 2 == 0
        m = ''
        if any(sel): m += ' op_sel:[' + ','.join(map(str, sel)) + ']'
        if not all(selhi): m += ' op_sel_hi:[' + ','.join(map(str, selhi)) + ']'
        if neg:
            ng = ','.join('1' if k in neg else '0' for k in range(len(srcs)))
            m += f' neg_lo:[{ng}] neg_hi:[{ng}]'
        self.a(f'v_pk_{op}_f32 v[{d}:{d+1}], ' + ', '.join(txt) + m)
    def dpp(self, op, d, s0, s1, ctl):
        self.a(f'{op}_dpp v{d}, v{s0}, v{s1} {ctl} row_mask:0xf bank_mask:0xf')
    def allreduce(self, v, t, op='v_add_f32', lo=True, b3=True):
        if lo:
            self.dpp(op, v, v, v, 'quad_perm:[1,0,3,2]')
            self.dpp(op, v, v, v, 'quad_perm:[2,3,0,1]')
            self.dpp(op, v, v, v, 'row_half_mirror')
        self.dpp(op, v, v, v, 'row_ror:8')
        self.a(f'v_mov_b32 v{t}, v{v}')
        self.a(f'v_permlane16_swap_b32 v{v}, v{t}')
        self.a(f'{op} v{v}, v{v}, v{t}')
        self.a(f'v_mov_b32 v{t}, v{v}')
        self.a(f'v_permlane32_swap_b32 v{v}, v{t}')
        self.a(f'{op} v{v}, v{v}, v{t}')
    def poll(self, loads, tagregs, tmp=None):
        a = self.a
        L, D = a.label('POLL'), a.label('PDONE')
        a(f'{L}:')
        loads()
        self.vm.wait_all()
        if len(tagregs) == 1:
            a(f'v_cmp_ne_u32 vcc, s{sTAG}, v{tagregs[0]}')
        else:
            a(f'v_bitop3_b32 v{tmp}, v{tagregs[0]}, v{tagregs[1]}, s{sTAG} bitop3:0x7e')
            for t in tagregs[2:]: a(f'v_bitop3_b32 v{tmp}, v{tmp}, v{t}, s{sTAG} bitop3:0xf6')
            a(f'v_cmp_ne_u32 vcc, 0, v{tmp}')
        a(f's_cbranch_vccz {D}')
        a(f's_add_u32 s{sSPIN}, s{sSPIN}, 1')
        a(f's_cmp_lt_u32 s{sSPIN}, {SPIN_LIMIT}')
        a(f's_cbranch_scc1 {L}')
        a(f'{D}:')
    def weave(self, fn, extras):
        a = self.a
        keep = a.items; a.items = []
        fn()
        body = a.items; a.items = keep
        extras = list(extras); n = len(extras)
        for i, it in enumerate(body):
            while extras and (n - len(extras)) * len(body) <= i * n: extras.pop(0)()
            a.items.append(it)
        for e in extras: e()
    def tagcheck(self, tagregs, tmp):
        a = self.a
        if len(tagregs) == 1:
            a(f'v_cmp_ne_u32 vcc, s{sTAG}, v{tagregs[0]}')
        else:
            a(f'v_bitop3_b32 v{tmp}, v{tagregs[0]}, v{tagregs[1]}, s{sTAG} bitop3:0x7e')
            for t in tagregs[2:]: a(f'v_bitop3_b32 v{tmp}, v{tmp}, v{t}, s{sTAG} bitop3:0xf6')
            a(f'v_cmp_ne_u32 vcc, 0, v{tmp}')
    def try_load(self, loads, tagregs, tmp=None, between=None, pre=None):
        a = self.a
        n0 = len(self.vm.q)
        loads()
        self.vm.q[-1] = tg = ('try', a.label('T'))
        if between: between()
        self.vm.wait(tg)
        OK = a.label('TOK')
        self.tagcheck(tagregs, tmp)
        a(f's_cbranch_vccz {OK}')
        q, l = list(self.vm.q), list(self.lg.q)
        if pre: pre()
        self.poll(loads, tagregs, tmp)
        self.vm.q, self.lg.q = q, l
        a(f'{OK}:')
    def finish_load(self, tg, loads, tagregs, tmp=None, pre=None):
        a = self.a
        self.vm.wait(tg)
        OK = a.label('TOK')
        self.tagcheck(tagregs, tmp)
        a(f's_cbranch_vccz {OK}')
        q, l = list(self.vm.q), list(self.lg.q)
        if pre: pre()
        self.poll(loads, tagregs, tmp)
        self.vm.q, self.lg.q = q, l
        a(f'{OK}:')
    def spoll(self, loads, checks, work=None, pipe=0):
        a = self.a
        L, C, D = a.label('SPOLL'), a.label('SCHK'), a.label('SDONE')
        def issue(note=''):
            for d, n, so, imm in loads:
                op = {1: 'dword', 2: 'dwordx2', 4: 'dwordx4', 8: 'dwordx8'}[n]
                a(f's_load_{op} {sr(sPL + d, n)}, {sr(rWS, 2)}, s{so} offset:{imm} glc' + note)
        if pipe:
            self.lg.wait_all()
            for k in checks: a(f's_not_b32 s{sPL + k}, s{sTAG}')
            issue(' ; nowait')
            if work: work()
            a(f'{L}:')
            a(f's_add_u32 s{sSPIN}, s{sSPIN}, 1')
            a(f's_cmp_ge_u32 s{sSPIN}, {SPIN_LIMIT}')
            a(f's_cbranch_scc1 {D}')
            ks = list(checks)
            a(f's_xor_b32 s{XT[0]}, s{sPL + ks[0]}, s{sTAG} ; nowait')
            for k in ks[1:]:
                a(f's_xor_b32 s{XT[1]}, s{sPL + k}, s{sTAG} ; nowait')
                a(f's_or_b32 s{XT[0]}, s{XT[0]}, s{XT[1]}')
            a(f's_cbranch_scc0 {D}')
            issue(' ; nowait')
            a(f's_sleep {pipe}')
            a(f's_branch {L}')
            a(f'{D}:')
            return
        if work:
            issue(); work()
            a(f's_branch {C}')
        a(f'{L}:')
        issue()
        a(f'{C}:')
        a(f's_add_u32 s{sSPIN}, s{sSPIN}, 1')
        a(f's_cmp_ge_u32 s{sSPIN}, {SPIN_LIMIT}')
        self.lg.wait_all()
        a(f's_cbranch_scc1 {D}')
        for k in checks:
            a(f's_cmp_lg_u32 s{sPL + k}, s{sTAG}')
            a(f's_cbranch_scc1 {L}')
        a(f'{D}:')
    def inbox(self, box, n, checks=None, work=None, pipe=0):
        self.spoll([(0, n, sINB, box * 512)], range(n) if checks is None else checks, work, pipe)
    def va(self, dst, terms, sreg=None, const=0, tmp=None):
        a = self.a; vL = self.vL
        first = True
        for sh, bits, mult in terms:
            full = sh + bits >= 6
            src = vL
            t = dst if first else tmp
            if sh == 0 and full: pass
            elif full: a(f'v_lshrrev_b32 v{t}, {sh}, v{vL}'); src = t
            elif sh == 0: a(f'v_and_b32 v{t}, {(1 << bits) - 1}, v{vL}'); src = t
            else: a(f'v_bfe_u32 v{t}, v{vL}, {sh}, {bits}'); src = t
            p2 = mult & (mult - 1) == 0
            k = mult.bit_length() - 1
            if first:
                if p2 and sreg is not None: a(f'v_lshl_add_u32 v{dst}, v{src}, {k}, s{sreg}'); sreg = None
                elif p2 and k: a(f'v_lshlrev_b32 v{dst}, {k}, v{src}')
                elif p2:
                    if src != dst: a(f'v_mov_b32 v{dst}, v{src}')
                else: a(f'v_mul_u32_u24 v{dst}, {mult}, v{src}')
            else:
                assert p2
                a(f'v_lshl_add_u32 v{dst}, v{src}, {k}, v{dst}')
            first = False
        if sreg is not None: a(f'v_add_u32 v{dst}, s{sreg}, v{dst}')
        if const: a(f'v_add_u32 v{dst}, {const}, v{dst}')
    def push(self, vaddr, soff, nl, vtmp, lab, wave=0):
        a = self.a
        a(f's_cmp_lg_u32 s{sWAVE}, {wave}')
        a(f's_cbranch_scc1 {lab}')
        a(f'v_mov_b32 v{vtmp}, s{sTAG}')
        a(f's_mov_b32 exec_hi, 0')
        if nl < 32: a(f's_mov_b32 exec_lo, {(1 << nl) - 1}')
        self.bs(vtmp, 1, vaddr, rWS, soff, 0, 'sc1', count=False)
        a('s_mov_b64 exec, -1')
        a(f'{lab}:')
    def silu(self, v, t):
        a = self.a
        a(f'v_mul_f32 v{t}, s{sL2E}, v{v}')
        a(f'v_exp_f32 v{t}, -v{t}')
        a(f'v_add_f32 v{t}, 1.0, v{t}')
        a(f'v_rcp_f32 v{t}, v{t}')
        a(f'v_mul_f32 v{v}, v{v}, v{t}')
        self.round1(v)
    def gemv_ops(self, wregs, cregs, acc, t0, t1, packed):
        ops = []
        assert t0 % 2 == 0 and t1 == t0 + 1
        for i, (w, c) in enumerate(zip(wregs, cregs)):
            cp = f'v[{c & ~1}:{(c & ~1) + 1}]'
            for d in range(4):
                tt = t0 + 2 * (d & 1)
                ops.append(f'v_lshlrev_b32 v{tt}, 16, v{w+d}')
                ops.append(f'v_and_b32 v{tt+1}, s{sMASK}, v{w+d}')
                ac = f'v[{acc+2*d}:{acc+2*d+1}]'
                if not packed:
                    for h in range(2): ops.append(f'v_mul_f32 v{acc+2*d+h}, v{tt+h}, v{c}' if i == 0 else f'v_fmac_f32 v{acc+2*d+h}, v{tt+h}, v{c}')
                elif i == 0: ops.append(f'v_pk_mul_f32 {ac}, v[{tt}:{tt+1}], {cp} op_sel:[0,{c & 1}] op_sel_hi:[1,{c & 1}]')
                else: ops.append(f'v_pk_fma_f32 {ac}, v[{tt}:{tt+1}], {cp}, {ac} op_sel:[0,{c & 1},0] op_sel_hi:[1,{c & 1},1]')
        for i in range(4): ops.append(f'v_permlane32_swap_b32 v{acc+i}, v{acc+4+i}')
        for i in range(4): ops.append(f'v_add_f32 v{acc+i}, v{acc+i}, v{acc+4+i}')
        for i in range(2): ops.append(f'v_permlane16_swap_b32 v{acc+i}, v{acc+2+i}')
        for i in range(2): ops.append(f'v_add_f32 v{acc+i}, v{acc+i}, v{acc+2+i}')
        for i in range(2): ops.append(f'v_add_f32_dpp v{acc+i}, v{acc+i}, v{acc+i} row_ror:8 row_mask:0xf bank_mask:0xf')
        ops.append(f'v_mov_b32_dpp v{acc}, v{acc+1} quad_perm:[0,1,2,3] row_mask:0xf bank_mask:0xc')
        return ops
    def sum8(self, b):
        self.pk('add', b, b, b + 2); self.pk('add', b + 4, b + 4, b + 6); self.pk('add', b, b, b + 4)
        self.a(f'v_add_f32 v{b}, v{b}, v{b+1}')
    def softmax_pm(self, p, e, out, t, mid=None, part=0, split=0):
        a = self.a
        mx, mn, u0, u1, s0, s1 = t, t + 1, t + 2, t + 3, t + 4, t + 6
        if part != 2:
            self.round_list([p + i for i in range(16)])
            a(f'v_max3_f32 v{mx}, v{p}, v{p+1}, v{p+2}')
            a(f'v_min3_f32 v{mn}, v{p}, v{p+1}, v{p+2}')
            for i in range(3, 15, 2):
                a(f'v_max3_f32 v{mx}, v{mx}, v{p+i}, v{p+i+1}')
                a(f'v_min3_f32 v{mn}, v{mn}, v{p+i}, v{p+i+1}')
            a(f'v_max_f32 v{u0}, v{mx}, v{p+15}')
            a(f'v_min_f32 v{u1}, v{mn}, v{p+15}')
            a(f'v_max_f32 v{mx}, v{mx}, v{p+15}')
            a(f'v_min_f32 v{mn}, v{mn}, v{p+15}')
            a(f'v_permlane32_swap_b32 v{mx}, v{u0}')
            a(f'v_permlane32_swap_b32 v{mn}, v{u1}')
            a(f'v_max_f32 v{mx}, v{mx}, v{u0}')
            a(f'v_min_f32 v{mn}, v{mn}, v{u1}')
            self.pk('mul', mx, mx, ('s', sL2E), bc=(1,))
            for i in range(0, 16, 2):
                self.pk('fma', e + i, p + i, ('s', sL2E), mx, bc=(1, 2), neg=(2,))
                self.pk('fma', p + i, p + i, ('s', sL2E), mn, bc=(1, 2), neg=(0,))
        for i in range(split if part == 2 else 0, 16):
            if mid and i == mid[0]: mid[1]()
            if part == 1 and i == split: return
            a(f'v_exp_f32 v{e+i}, v{e+i}')
            a(f'v_exp_f32 v{p+i}, v{p+i}')
        self.pk('add', s0, e, e + 2); self.pk('add', s1, p, p + 2)
        for i in range(4, 16, 2):
            self.pk('add', s0, s0, e + i); self.pk('add', s1, s1, p + i)
        a(f'v_add_f32 v{u0}, v{s0}, v{s0+1}')
        a(f'v_add_f32 v{u1}, v{s1}, v{s1+1}')
        a(f'v_add_f32 v{mx}, v{s0}, v{s0+1}')
        a(f'v_add_f32 v{mn}, v{s1}, v{s1+1}')
        a(f'v_permlane32_swap_b32 v{mx}, v{u0}')
        a(f'v_permlane32_swap_b32 v{mn}, v{u1}')
        self.pk('add', mx, mx, u0)
        a(f'v_rcp_f32 v{mx}, v{mx}')
        a(f'v_rcp_f32 v{mn}, v{mn}')
        for i in range(0, 16, 2):
            self.pk('mul', e + i, e + i, mx, bc=(1,))
            self.pk('mul', p + i, p + i, mn, bc=(1,))
        for i in range(8):
            a(f'v_cvt_pk_bf16_f32 v{out+i}, v{e+2*i}, v{e+2*i+1}')
            a(f'v_cvt_pk_bf16_f32 v{out+8+i}, v{p+2*i}, v{p+2*i+1}')
    def ln_stats(self, xp, t, m_out, sd_out, fill=()):
        a = self.a
        fill = list(fill)
        def pad(n):
            for _ in range(n):
                if fill: a(fill.pop(0))
        s, u = t, t + 4
        a(f'v_mov_b32 v{u}, 0x3f803f80')
        for i in range(8):
            k = 2 * (i & 1)
            a(f'v_dot2_f32_bf16 v{s+k}, v{xp+i}, v{u}, ' + ('0' if i < 2 else f'v{s+k}'))
            a(f'v_dot2_f32_bf16 v{s+k+1}, v{xp+i}, v{xp+i}, ' + ('0' if i < 2 else f'v{s+k+1}'))
        pad(3)
        self.pk('add', s, s, s + 2)
        for ctl in ('quad_perm:[1,0,3,2]', 'quad_perm:[2,3,0,1]', 'row_half_mirror', 'row_ror:8'):
            pad(2 if ctl.endswith('3,2]') else 1)
            self.dpp('v_add_f32', s, s, s, ctl); self.dpp('v_add_f32', s + 1, s + 1, s + 1, ctl)
        pad(2)
        a(f'v_permlane16_swap_b32 v{s}, v{s+1}')
        a(f'v_add_f32 v{u}, v{s}, v{s+1}')
        a(f'v_add_f32 v{s}, v{s}, v{s+1}')
        pad(2)
        a(f'v_permlane32_swap_b32 v{s}, v{u}')
        a(f'v_add_f32 v{s}, v{s}, v{u}')
        a(f'v_mul_f32 v{u}, 0x3a800000, v{s}')
        a(f'v_mul_f32 v{s}, 0x3a800000, v{s}')
        pad(2)
        a(f'v_permlane16_swap_b32 v{s}, v{u}')
        a(f'v_fma_f32 v{sd_out}, -v{s}, v{s}, v{u}')
        a(f'v_cvt_pk_bf16_f32 v{m_out}, 0, v{s}')
        a(f'v_max_f32 v{sd_out}, 0, v{sd_out}')
        self.round1(sd_out)
        a(f'v_add_f32 v{sd_out}, 0x3727c5ac, v{sd_out}')
        self.round1(sd_out)
        a(f'v_sqrt_f32 v{sd_out}, v{sd_out}')
        pad(99)
        self.round1(sd_out)

    def stat_math(self, s, u, m_out, sd_out):
        a = self.a
        a(f'v_fma_f32 v{sd_out}, -v{s}, v{s}, v{u}')
        a(f'v_cvt_pk_bf16_f32 v{m_out}, 0, v{s}')
        a(f'v_max_f32 v{sd_out}, 0, v{sd_out}')
        self.round1(sd_out)
        a(f'v_add_f32 v{sd_out}, 0x3727c5ac, v{sd_out}')
        self.round1(sd_out)
        a(f'v_sqrt_f32 v{sd_out}, v{sd_out}')
        self.round1(sd_out)
    def ln_stats2(self, x0, x1, t, m_out, sd_out):
        a = self.a
        s0, s1, q0, q1, u = t, t + 1, t + 2, t + 3, t + 4
        a(f'v_mov_b32 v{u}, 0x3f803f80')
        for i in range(8):
            for xx, s_, q_ in ((x0, s0, q0), (x1, s1, q1)):
                a(f'v_dot2_f32_bf16 v{s_}, v{xx+i}, v{u}, ' + ('0' if i == 0 else f'v{s_}'))
                a(f'v_dot2_f32_bf16 v{q_}, v{xx+i}, v{xx+i}, ' + ('0' if i == 0 else f'v{q_}'))
        a(f"""v_permlane32_swap_b32 v{s0}, v{s1}
        v_permlane32_swap_b32 v{q0}, v{q1}
        v_add_f32 v{s0}, v{s0}, v{s1}
        v_add_f32 v{q0}, v{q0}, v{q1}
        v_permlane16_swap_b32 v{s0}, v{q0}
        v_add_f32 v{s0}, v{s0}, v{q0}""")
        for ctl in ('quad_perm:[1,0,3,2]', 'quad_perm:[2,3,0,1]', 'row_half_mirror', 'row_ror:8'): self.dpp('v_add_f32', s0, s0, s0, ctl)
        a(f"""v_mul_f32 v{q0}, 0x3a800000, v{s0}
        v_mul_f32 v{s0}, 0x3a800000, v{s0}
        v_permlane16_swap_b32 v{s0}, v{q0}""")
        self.stat_math(s0, q0, m_out, sd_out)

    def build(self):
        a, V, vm, lg, o, S = self.a, self.V, self.vm, self.lg, self.o, self.S
        E2 = range(0, 16, 2)
        a(f'{NAME}:')
        a(f's_load_dwordx16 {sr(KA, 16)}, s[0:1], 0')
        a(f's_load_dwordx8 {sr(KA + 16, 8)}, s[0:1], 64')
        a(f's_load_dwordx2 {sr(rWS, 2)}, s[0:1], 104')
        a(f's_load_dwordx2 {sr(pDBG, 2)}, s[0:1], 96')
        a('s_cmp_ge_u32 s2, 256')
        a('s_cbranch_scc1 L_END')
        if self.prof:
            a(f's_memrealtime {sr(sCMP, 2)}')
            a(f's_memtime {sr(sTM, 2)}')
            a('v_mov_b32 v255, 0')
            a('v_mov_b32 v254, 0')
            self.stnames.append('start'); self.nst = 1
        vL = self.vL = V.alloc()
        vL16 = V.alloc()
        vZ = V.alloc()
        vT = V.alloc(8)
        va = lambda dst, terms, sreg=None, const=0: self.va(dst, terms, sreg, const, vT + 5)
        a(f"""v_lshrrev_b32 v{vT}, 6, v0
        v_and_b32 v{vL}, 63, v0
        v_mov_b32 v{vZ}, 0
        v_readfirstlane_b32 s{sWAVE}, v{vT}
        v_lshlrev_b32 v{vL16}, 4, v{vL}""")
        xr = V.alloc(8); acc = V.alloc(8); wphi = V.alloc(8); fr = V.alloc(8); vq = V.alloc(8); vv = V.alloc(8)
        vWM = V.alloc(); vCo = V.alloc(); vWd = V.alloc(); vL8 = V.alloc(); vL32S = V.alloc(); vGA = V.alloc()
        vB = V.alloc(6, 1); vFG = V.alloc(); vFD = V.alloc(); vWo = V.alloc(); vPW = V.alloc(); vXF = V.alloc()
        S(sX, 'wg & 7'); S(sJ, 'wg >> 3')
        S(T2, '(x*4 + w)*64')
        S(T0, 'T2*6144 + (j ^ 1)*128')
        va(vWM, [(3, 3, 4 * 12288), (0, 3, 16)])
        va(vCo, [(3, 3, 8)], T2)
        S(T3, '((x*32 + j)*4 + w - 4)*4096')
        for srd, size in ((rWM, 12582912), (rX, 4194304), (rWS, WS_BYTES)):
            a(f's_mov_b32 s{srd+2}, {size}')
            a(f's_mov_b32 s{srd+3}, 0x20000')
        a(f's_getreg_b32 s{sXC}, hwreg(HW_REG_XCC_ID, 0, 3)')
        if o.get('fakexcc') is not None: a(f's_and_b32 s{sXC}, s{sXC}, {o["fakexcc"]}')
        a(f"""s_getpc_b64 {sr(sCMP, 2) if not self.prof else sr(sPL, 2)}""")
        S(T6, '(j*7 + w)*128')
        va(vT + 6, [(5, 1, 28672)], T6)
        a(f"""v_min_u32 v{vT+6}, CODE_KB, v{vT+6}
        s_cmp_ge_u32 s{sWAVE}, 4
        s_waitcnt lgkmcnt(0)""")
        if self.prof:
            a(f'v_writelane_b32 v255, s{sTM}, 0')
            a(f'v_writelane_b32 v255, s{sCMP}, 63')
            a(f'v_writelane_b32 v254, s{sCMP}, 0')
            a(f's_mov_b64 {sr(sCMP, 2)}, {sr(sPL, 2)}')
        self.stamp('karg')
        raw = V.alloc(16); cv = V.alloc(4); vTk = V.alloc(2)
        xs = V.alloc(16); st = V.alloc(4); mq = V.alloc(4)
        a(f"""s_mov_b64 {sr(rWM, 2)}, {sr(KA + 20, 2)}
        s_mov_b64 {sr(rX, 2)}, {sr(KA, 2)}
        s_load_dword s{sTAG}, {sr(rWS, 2)}, {NONCE}
        s_cbranch_scc1 L_FS""")
        def setup():
            for srd, size in ((rW, 6291456), (rWO, 2097152), (rWG, 7340032), (rWU, 7340032), (rWD, 7340032), (rOUT, 4194304)):
                a(f's_mov_b32 s{srd+2}, {size}')
                a(f's_mov_b32 s{srd+3}, 0x20000')
            for srd, k in ((rW, 2), (rWO, 6), (rWG, 12), (rWU, 14), (rWD, 16), (rOUT, 22)):
                a(f's_mov_b64 {sr(srd, 2)}, {sr(KA + k, 2)}')
            a(f"""s_mov_b32 s{sSPIN}, 0
            s_mov_b32 s{sMASK}, 0xffff0000
            s_mov_b32 s{sL2E}, 0x3fb8aa3b""")
            S(sKH, 'w >> 2')
            va(vT + 2, [(4, 1, 64)]); va(vWd, [(0, 3, 16)])
            a(f'v_xor_b32 v{vWd}, v{vWd}, v{vT+2}'); va(vT + 2, [(3, 3, 6144)]); a(f'v_add_u32 v{vWd}, v{vWd}, v{vT+2}')
            va(vL8, [(0, 6, 8)])
            a(f'v_add_u32 v{vL32S}, {SCR}, v{vL16}')
            S(T0, '(w & 3)*4 + SCR')
            va(vGA, [(4, 2, 32), (0, 3, 128), (3, 1, 16)], T0)
            S(T1, '((x & 6) + ((x & 1)*2 + (j >> 4))*64 + w*8)*1024 + (j & 15)*64 + SINB')
        def tag_hash():
            a(f"""s_mul_i32 s{sTAG}, s{sTAG}, 0x9e3779b1
            s_add_u32 s{sTAG}, s{sTAG}, 0x7f4a7c15""")
        def code_pf():
            a(f's_and_b32 s{sCMP}, s{sCMP}, 0xfffffc00')
            a(f'global_load_dword v{vTk}, v{vT+6}, {sr(sCMP, 2)}')
        wq = [(n, t) for n in range(16) for t in range(3)]
        def w_base(n, wexpr):
            if n < 4 and o.get('wxor', 1):
                S(T7, '((j >> 4)*2) ^ n', n=n)
                S(sU, f'(((T7 + u0) & 15)*8 + {wexpr})*(8*6144) + hp*128')
                S(T7, f'T7*SLOT + ({wexpr})*1024')
            else:
                S(sU, f'(((u0 + n) & 15)*8 + {wexpr})*(8*6144) + hp*128', n=n)
                S(T7, f'({wexpr})*1024 + q', q=(n % 6) * SLOT)
        def w_slot(n, t):
            S('m0', 'T7 + q', q=t * 8192)
            self.dma(vWd, rW, sU, 0, o.get('wmod', ''), ('W', n))
            if t < 2: S(sU, 'u + 2048')
        def w_next(cnt=1):
            for _ in range(cnt):
                n, t = wq.pop(0)
                if t == 0: w_base(n, 'w')
                w_slot(n, t)
        wb = list(o['wburst'])
        def w_early():
            if not o.get('wearly'): return
            S(sHP, '(x & 3)*4 + ((j & 3) ^ q)', q=o.get('hpx', 2)); S(sU0, o.get('u0', 'j & 12'))
            w_next(o['wearly'])
        a(f'global_load_dwordx2 {vr(cv, 2)}, v{vCo}, {sr(pC, 2)}'); vm.issue('c')
        for i in range(4):
            self.bl(raw + 4 * i, 4, vWM, rWM, T0, 0, o.get('ntwm', 'nt'), ('wm', i))
            if i < 3: S(T0, 'T0 + 12288')
        a('s_barrier')
        if o.get('bar1', 1): a('s_barrier')
        code_pf(); vm.issue()
        setup()
        wq0 = list(wq); w_early(); wq[:] = wq0
        S(T0, '(((w*16 + ((j ^ 1) & 15))*2 + (j >> 4))*8 + x)*512 + AINB')
        S(T2, '(((j ^ 1) & 7)*8 + w*2 + ((j >> 3) & 1))*512 + x*64 + (j >> 4)*4 + INA')
        va(vT + 6, [(0, 2, 64 * 512)])
        vm.wait('c')
        self.unpack(cv + 2, cv + 3, cv + 1)
        a(f'v_and_b32 v{cv+1}, s{sMASK}, v{cv}'); a(f'v_lshlrev_b32 v{cv}, 16, v{cv}')
        for i in range(4): self.silu(cv + i, vT + (i & 1))
        gops = self.gemv_ops([raw + 4 * i for i in range(4)], [cv + i for i in range(4)], acc, vT, vT + 1, True)
        for i in range(4):
            vm.wait(('wm', i))
            if i == 3: self.stamp('wmok')
            for s_ in gops[12 * i:12 * i + 12]: a(s_)
        for s_ in gops[48:]: a(s_)
        self.dw('ds_write_b32', vGA, acc, 1, L_A1 - SCR)
        self.barrier()
        a(f'ds_read_b128 {vr(acc, 4)}, v{vL32S} offset:{L_A1 - SCR}')
        tag_hash()
        a('s_waitcnt lgkmcnt(0)')
        self.pk('add', acc, acc, acc + 2)
        a(f"""v_add_f32 v{acc}, v{acc}, v{acc+1}
        v_mov_b32 v{acc+1}, s{sTAG}""")
        self.bs(acc, 2, vL8, rWS, T0, 0, 'sc1')
        a('s_mov_b64 exec, 15')
        self.bs(acc + 1, 1, vT + 6, rWS, T2, 0, 'sc1')
        a('s_mov_b64 exec, -1')
        self.stamp('A1pub')
        S(T0, '(wg*4 + w)*6144')
        for i in range(o.get('wpf', 0)):
            if i == 4: S(T0, 'T0 + 4096')
            self.bl(raw, 4, vL16, rW, T0, (i & 3) * 1024, o.get('wpfmod', ''))
        a('s_branch L_FJ')
        qG = list(vm.q)
        a('L_FS:')
        vm.reset(); lg.reset()
        a('s_barrier')
        for i in range(4): self.bl(raw + 4 * i, 4, vL16, rX, T3, 1024 * i, o.get('xsmod', ''), 'xs')
        pw0 = o.get('pw0', 'ab')
        if 'a' in pw0:
            S(T4, '(wg*4 + w - 4)*128 + INA')
            for q in range(2): a(f's_load_dword s{sPL + q}, {sr(rWS, 2)}, s{T4} offset:{q * 64} glc')
        if 's' in pw0:
            S(T4, '(wg*4 + w - 4)*256 + SINB')
            for q in range(4): a(f's_load_dword s{sPL + 2 + q}, {sr(rWS, 2)}, s{T4} offset:{q * 64} glc')
        if 'b' in pw0:
            S(T4, '(wg*32 + w - 4)*128 + INB')
            for q in range(2): a(f's_load_dword s{sPL + q}, {sr(rWS, 2)}, s{T4} offset:{q * 64} glc ; nowait')
        a(f"""s_lshl_b32 s{T6}, s{sXC}, 5
        v_mov_b32 v{vTk}, 1
        v_mov_b32 v{vTk+1}, s{T6}""")
        if o.get('bar1', 1): a('s_barrier')
        a(f"""s_cmp_lg_u32 s{sWAVE}, 7
        s_cbranch_scc1 L_NOTK
        s_mov_b64 exec, 1
        global_atomic_add v{vTk}, v{vTk+1}, v{vTk}, {sr(pDBG, 2)} sc0 sc1
        s_mov_b64 exec, -1
        s_branch L_TK0
        L_NOTK:""")
        code_pf()
        a('L_TK0:')
        vm.issue('tk')
        setup()
        w_early()
        S(T0, '(w - 4)*16 + L_ST'); va(vT + 6, [(5, 1, 8)], T0)
        a('s_barrier')
        vm.wait('xs')
        lg.wait_all()
        tag_hash()
        self.stamp('xsok')
        self.ln_stats2(raw, raw + 8, xs, st, st + 1)
        a(f"""v_lshrrev_b32 v{st}, 16, v{st}
        v_or_b32 v{st}, v{st}, v{st+1}
        v_mov_b32 v{st+1}, s{sTAG}""")
        self.dw('ds_write_b64', vT + 6, st, 2)
        a('L_FJ:')
        va(vT + 1, [(0, 2, 16)], None, L_ST)
        va(vT, [(0, 2, 16), (2, 1, 1024)])
        va(vT + 6, [(0, 5, 2048), (5, 1, 32)])
        va(vT + 2, [(0, 1, 512)])
        S(T2, '((x & 6) + ((x & 1)*2 + (j >> 4))*64 + w*8)*512 + ((j >> 1) & 7)*64 + (j & 1)*4 + 8 + INA')
        self.barrier()
        self.r128(st, vT + 1, 0, 'st')
        lg.wait('st')
        a('s_mov_b64 exec, 0xff')
        self.bs(st, 4, vT, rWS, T1, 0, 'sc1')
        a('s_mov_b64 exec, 3')
        self.bs(st + 1, 1, vT + 2, rWS, T2, 0, 'sc1')
        a('s_mov_b64 exec, -1')
        self.stamp('A2pub')
        a(f"""s_cmp_lg_u32 s{sWAVE}, 7
        s_cbranch_scc1 L_NOTK2
        s_mov_b32 s{T0}, 0
        s_waitcnt vmcnt({len(vm.q) - 1 - vm.q.index('tk')})
        L_TK:
        v_readfirstlane_b32 s{T2}, v{vTk}
        s_cmp_lt_u32 s{T2}, 32
        s_cbranch_scc1 L_TKOK
        s_add_u32 s{T0}, s{T0}, 1
        s_cmp_lt_u32 s{T0}, 8
        s_cbranch_scc0 L_TKNO
        s_add_u32 s{sXC}, s{sXC}, 1
        s_and_b32 s{sXC}, s{sXC}, 7
        s_lshl_b32 s{T6}, s{sXC}, 5
        v_mov_b32 v{vTk}, 1
        v_mov_b32 v{vTk+1}, s{T6}
        s_mov_b64 exec, 1
        global_atomic_add v{vTk}, v{vTk+1}, v{vTk}, {sr(pDBG, 2)} sc0 sc1
        s_mov_b64 exec, -1
        s_waitcnt vmcnt(0)
        s_branch L_TK
        L_TKNO:
        s_and_b32 s{sXC}, s2, 7
        s_lshr_b32 s{T2}, s2, 3
        L_TKOK:
        s_lshl3_add_u32 s{T2}, s{T2}, s{sXC}""")
        if o.get('rawrole'): a(f's_mov_b32 s{T2}, s2')
        a(f"""v_mov_b32 v{vTk}, s{T2}
        ds_write_b32 v{vT+1}, v{vTk} offset:64
        L_NOTK2:""")
        self.barrier()
        a(f'ds_read_b32 v{mq}, v{vT+1} offset:64'); lg.issue('role')
        lg.wait('role')
        a(f'v_readfirstlane_b32 s2, v{mq}')
        self.stamp('role')
        V.release(raw, 16); V.release(cv, 4)
        S(sX, 'wg & 7'); S(sJ, 'wg >> 3')
        S(sCB, '(x & 1)*8 + (j & 7)')
        S(sRT, '(x >> 1)*4 + (j >> 3)')
        S(sGTB, 'rt*4 + (w & 3)')
        S(sC32, 'cb*2 + kh')
        S(T5, 'gtb*65536 + c32*64')
        self.bl(xr, 4, vT + 6, rX, T5, 0, o.get('xtmod', ''), 'xt')
        self.bl(xr + 4, 4, vT + 6, rX, T5, 16, o.get('xtmod', ''), 'xt')
        S(T0, '(((x >> 1)*16 + cb)*16 + w)*512 + AINB')
        S(T2, '(wg*8 + w)*64 + INA')
        def role_prep():
            S(sR1, '(x & 4)*2 + (j >> 2)'); S(sHP, '(x & 3)*4 + ((j & 3) ^ q)', q=o.get('hpx', 2))
            S(sU0, o.get('u0', 'j & 12'))
            w_next(wb[0])
            S(sINB, '(wg*64 + w)*64 + INB')
            S(sKF, 'kh ^ (j >> 4)'); S(sROT, '(((j >> 3) ^ j) & 1)*8')
            S(sFS, 'x*7 + (j >> 2)'); S(sKQ, 'j & 3')
            va(vT + 4, [(0, 5, 8)])
            va(vT, [(0, 5, 16), (5, 1, 4096)])
            S(T3, 'w*4 + L_MP'); va(vT + 1, [(0, 6, 64)], T3)
            S(T3, 'kh*1024 + L_MP'); va(vT + 2, [(0, 4, 32), (5, 1, 512)], T3)
        S(T1, '(wg*4 + (w & 3))*256 + SINB')
        self.spoll([(0, 4, T2, 0)], range(4), work=role_prep, pipe=o.get('pipeA', 0))
        self.stamp('apre')
        a('s_barrier')
        st_ld = lambda: self.bl(st, 2, vT + 4, rWS, T1, 0, 'sc1', 'st')
        def st_fetch():
            st_ld()
            S(T3, 'hp*4096 + w*512')
            a(f'v_add_u32 v{vT+6}, s{T3}, v{vL16}')
            S('m0', 'w*512 + L_WPHI')
            a('s_mov_b32 exec_hi, 0')
            a(f'global_load_lds_dwordx4 v{vT+6}, {sr(pWPHI, 2)}'); vm.issue()
            a('s_mov_b32 exec_hi, -1')
            w_next(wb[1])
        self.try_load(lambda: self.bl(mq, 4, vT, rWS, T0, 0, 'sc1'), [mq + 1, mq + 3], vT + 3, st_fetch)
        self.stamp('modok')
        a(f'ds_write2_b32 v{vT+1}, v{mq}, v{mq+2} offset0:0 offset1:8'); lg.issue()
        for i in range(8): self.unpack(xs + 2 * i, xs + 2 * i + 1, xr + i)
        self.barrier()
        mp = V.alloc(16); hp = V.alloc(8)
        for i in (2, 3, 0, 1): self.r128(mp + 4 * i, vT + 2, (i >> 1) * 2048 + (i & 1) * 16, i >> 1)
        w_next(wb[2])
        self.finish_load('st', st_ld, [st + 1], None)
        self.stamp('statok')
        self.unpack(st + 1, st, st)
        a(f'v_rcp_f32 v{st}, v{st}')
        for i in E2: self.pk('add', xs + i, xs + i, st + 1, bc=(1,), neg=(1,))
        S(T0, '(((rt*16 + cb)*4 + (w & 3))*2 + kh)*2048 + HF')
        lg.wait(1); self.sum8(mp + 8)
        self.round1(mp + 8)
        lg.wait(0); self.sum8(mp)
        a(f'v_add_f32 v{mp+8}, 1.0, v{mp+8}')
        self.round2(mp + 8, mp)
        for h in range(2):
            rg = range(8 * h, 8 * h + 8)
            self.round_list([xs + i for i in rg])
            for i in range(8 * h, 8 * h + 8, 2): self.pk('mul', xs + i, xs + i, st, bc=(1,))
            self.round_list([xs + i for i in rg])
            for i in rg: self.dpp('v_mul_f32', xs + i, mp + 8, xs + i, f'row_newbcast:{i}')
            self.round_list([xs + i for i in rg])
            for i in rg: self.dpp('v_add_f32', xs + i, mp, xs + i, f'row_newbcast:{i}')
            for i in range(4 * h, 4 * h + 4): a(f'v_cvt_pk_bf16_f32 v{hp+i}, v{xs+2*i}, v{xs+2*i+1}')
            self.bs(hp + 4 * h, 4, vL16, rWS, T0, 1024 * h, 'sc1', 'hs')
        self.stamp('hst')
        w_next(wb[3])
        va(vB, [(2, 2, 128), (3, 1, 64), (4, 1, 32), (0, 2, 8), (5, 1, 2048)])
        a(f'v_xor_b32 v{vB+1}, 64, v{vB}')
        for q in (1, 2):
            for h in range(2): a(f'v_add_u32 v{vB+2*q+h}, {2*q*SLOT}, v{vB+h}')
        S(T1, 'kh*2048 + L_WPHI')
        va(vT, [(2, 2, 64), (4, 1, 32), (0, 2, 8), (5, 1, 256)], T1)
        va(vT + 1, [(0, 2, 8 * 4096), (2, 2, 4096)])
        S(T0, '((rt >> 3)*4 + (rt & 7)*32)*4096 + (cb >> 1)*64 + (cb & 1)*4 + INB')
        va(vT + 2, [(4, 1, 64)]); va(vWo, [(0, 3, 16)])
        a(f'v_xor_b32 v{vWo}, v{vWo}, v{vT+2}'); va(vT + 2, [(3, 3, 2048)]); a(f'v_add_u32 v{vWo}, v{vWo}, v{vT+2}')
        S(T1, '(w & 2)*32'); va(vT + 2, [(4, 1, 32)], T1); va(vFG, [(0, 3, 16)])
        a(f'v_xor_b32 v{vFG}, v{vFG}, v{vT+2}'); va(vT + 2, [(3, 3, 7168)]); a(f'v_add_u32 v{vFG}, v{vFG}, v{vT+2}')
        S(T1, '(w & 1)*128')
        va(vT + 2, [(5, 1, 64)], T1); va(vFD, [(0, 5, 16), (5, 1, 2048)])
        a(f'v_xor_b32 v{vFD}, v{vFD}, v{vT+2}')
        S(sFG, '(kq*8 + w)*(32*7168) + fs*128'); S(sFD, '(fs*8 + w)*16384 + kq*512')
        a(f"""s_cmp_ge_u32 s{sJ}, 28
        s_cselect_b32 s{rWG+2}, 0, s{rWG+2}
        s_cselect_b32 s{rWU+2}, 0, s{rWU+2}
        s_cselect_b32 s{rWD+2}, 0, s{rWD+2}""")
        vm.wait('hs')
        a('s_barrier')
        self.push(vT + 1, T0, 16, vT + 2, 'L_PB')
        self.stamp('hpub')
        V.release(xs, 16); V.release(mp, 16); V.release(hp, 8); V.release(st, 4); V.release(mq, 4); V.release(vTk, 2)
        w_next(wb[4])
        for s in range(2):
            for u in range(2): self.tr(wphi + 4 * s + 2 * u, vT, s * 1024 + u * 512)
        AD, LOOK, LASTB = o['AD'], 6, o['LASTB']
        accs = V.alloc(96)
        big = V.alloc(76)
        Ar, Br = big, big + 4 * AD
        assert 4 * AD + 4 * (LOOK + 1) <= 76
        S(T2, '(r1*64 + w)*4096 + HF')
        S(T0, '(w & 3)*4096 + L_XF'); a(f'v_add_u32 v{vXF}, s{T0}, v{vL16}')
        S(T0, '(w & 3)*1024 + kh*16384 + L_PHK'); va(vPW, [(0, 5, 32), (5, 1, 16)], T0)
        fq = [(m, i) for m in range(3) for i in range(4)]
        freg = []
        def f_src(m, i, back=0, T0=T0):
            if m < 2: S(T0, 'fg + q', q=i * 8 * 7168 - back * 4 * 32 * 7168)
            else: S(T0, 'fd + q', q=i * 4096 - back * 4 * 16384)
            return (vFG, (rWG, rWU)[m]) if m < 2 else (vFD, rWD)
        def f_lds(m, i): return (L_GU + m * 32768 if m < 2 else L_DN) + i * 1024
        def ffn_reg(n):
            for _ in range(n):
                m, i = fq.pop(0)
                for back in range(2):
                    v, r = f_src(m, i, back)
                    self.bl(big + 8 * len(freg) + 4 * back, 4, v, r, T0, 0, o.get('ntffn', 'nt'), 'ffn')
                freg.append((m, i))
        def ffn_dma(n, T0=T0):
            for _ in range(n):
                m, i = fq.pop(0)
                if o.get('nofd'): continue
                v, r = f_src(m, i, 0, T0)
                S('m0', 'w1k*4 + q', q=f_lds(m, i))
                self.dma(v, r, T0, 0, o.get('ntffn', 'nt'), 'gu' if m < 2 else 'dn')
        S(sWB, '(rot*4 + w)*16384'); S(sWO2, '(j >> 4)*1048576 + cb*128'); S(sW1K, 'w*1024')
        def wo_dma(it, back=0, T0=T0):
            S(T0, '((wb + q) & 0xfffff) + (wo2 ^ h)', q=(8 * it - 4 * back) * 16384, h=(it >> 3) << 20)
            S('m0', 'w1k + q', q=WO_H0 + it * 8192 - 4096 * back)
            self.dma(vWo, rWO, T0, 0, '', 'wo')
        self.inbox(0, 2, work=lambda: w_next(wb[5]), pipe=o.get('pipeB', 0))
        assert len(wq) % 3 == 0 and 30 <= len(wq) <= (36 if o.get('wxor', 1) else 45)
        NPU = 16 - len(wq) // 3
        vm.wait(('W', 2 if o.get('wxor', 1) else 0))
        a('s_barrier')
        self.stamp('hok')
        a(f"""s_cmp_ge_u32 s{sWAVE}, 4
        s_cbranch_scc1 L_HELP
        s_setprio 2""")
        q_hok = list(vm.q)
        if 'pad' in o:
            a('.p2align 6')
            for _ in range(o['pad']): a('s_nop 0')
        def a_load(sg):
            if sg % 4 == 0: S(T3, '((u0 + n) & q)*16384 + T2', n=sg // 4, q=o.get('amask', 15))
            self.bl(Ar + 4 * (sg % AD), 4, vL16, rWS, T3, (sg % 4) * 1024, o.get('amod', 'sc1'), ('A', sg))
        CORD = (2, 3, 0, 1, 4, 5)
        def b_read(n):
            sg, c = divmod(n, 6); t, h = divmod(CORD[c], 2)
            slot = (sg >> 2) % 6
            off = (slot & 1) * SLOT + t * 8192 + ((sg >> 1) & 1) * 4096 + (sg & 1) * 1024
            d = Br + 4 * (n % (LOOK + 1))
            self.tr(d, vB + 2 * (slot >> 1) + h, off, ('B', n)); self.tr(d + 2, vB + 2 * (slot >> 1) + h, off + 512, ('B', n))
        nxt = 0
        def a_more(lim):
            nonlocal nxt
            while nxt < min(lim, 64): a_load(nxt); nxt += 1
        a_more(1)
        for n in range(LOOK): b_read(n)
        a_more(o.get('A0', 4))
        for n in range(384):
            sg, c = divmod(n, 6)
            if c == 0: vm.wait(('A', sg))
            lg.wait(('B', n))
            d = accs + 16 * CORD[c]
            a(f'v_mfma_f32_32x32x16_bf16 {vr(d, 16)}, {vr(Br + 4*(n % (LOOK + 1)), 4)}, {vr(Ar + 4*(sg % AD), 4)}, ' + ('0' if sg == 0 else vr(d, 16)))
            if n + LOOK < 384:
                if (n + LOOK) % 24 == 0 and (n + LOOK) // 24 <= LASTB: a('s_barrier')
                b_read(n + LOOK)
            if c == 5:
                a_more(min(nxt + 2, sg + AD + 1))
                if sg == 63 - AD and o.get('b14', 1): a('s_barrier')
        self.stamp('gemm1')
        aq, ak, av = accs, accs + 32, accs + 64
        def cvt8(d, s_):
            for i in range(8): a(f'v_cvt_pk_bf16_f32 v{d+i}, v{s_+2*i}, v{s_+2*i+1}')
        cvt8(vv, ak + 16)
        for q in range(2): self.dw('ds_write_b128', vXF, vv + 4 * q, 4, q * 1024)
        cvt8(fr, ak)
        self.barrier()
        a('s_setprio 0')
        pp = ak; ee = ak + 16
        def phi_logits(src):
            a(f'v_mfma_f32_32x32x16_bf16 {vr(pp, 16)}, {vr(wphi, 4)}, {vr(src, 4)}, 0')
            a(f'v_mfma_f32_32x32x16_bf16 {vr(pp, 16)}, {vr(wphi + 4, 4)}, {vr(src + 4, 4)}, {vr(pp, 16)}')
        phi_logits(fr)
        for h in range(2):
            cvt8(vv if h == 0 else vq, av + 16 * h)
            for db in range(2): self.dw('ds_write_b128', vPW, (vv if h == 0 else vq) + 4 * db, 4, L_V - L_PHK + h * 8192 + db * 4096)
        cvt8(fr, aq + 16)
        for q in range(2): self.dw('ds_write_b128', vXF, fr + 4 * q, 4, 2048 + q * 1024)
        cvt8(vq, aq)
        a('s_branch L_JOIN')
        a('L_HELP:')
        vm.q = [('W', 1)] * len(q_hok) if o.get('wxor', 1) else list(q_hok); lg.reset()
        m2w = accs; m2c = accs + 32; g4 = accs + 48
        def w_unit(n):
            for wexpr in ('w - 4', 'w'):
                w_base(n, wexpr)
                for t in range(3): w_slot(n, t)
        for n in range(NPU, 6): w_unit(n)
        S(T0, '((x & 3)*4 + w - 4)*128')
        va(vCo, [(3, 3, 16)], T0)
        va(vWM, [(3, 3, 8 * 12288), (0, 3, 16)])
        S(T4, 'T0*6144 + (j*2 + (x >> 2))*128 + 4096')
        a(f'global_load_dwordx4 {vr(m2c + 8, 4)}, v{vCo}, {sr(pC, 2)}'); vm.issue('m2c')
        m2l = list(range(8)); wol = [8, 9, 10, 11]; pwl = list(range(1, 8)); sil = list(range(8))
        m2ops = self.gemv_ops([m2w + 4 * i for i in range(8)], [m2c + i for i in range(8)], acc, vT, vT + 1, False)
        m2pos = 0
        def act(op, k):
            nonlocal m2pos
            kind, n = op[0], int(op[1:] or 1)
            if kind == 'm':
                for _ in range(2 * n):
                    i = m2l.pop(0)
                    self.bl(m2w + 4 * i, 4, vWM, rWM, T4, 0, o.get('ntm2', 'nt'), ('m2', i))
                    if m2l: S(T4, 'T4 + 12288')
            elif kind == 'f': ffn_reg(n)
            elif kind == 'o':
                assert k >= 13
                for _ in range(n):
                    it = wol.pop(0); wo_dma(it, 1); wo_dma(it)
            elif kind == 'p':
                a('s_waitcnt lgkmcnt(0)')
                for q in range(n):
                    b = pwl.pop(0)
                    a(f's_load_dword s{sPL + 2*q}, {sr(rWS, 2)}, s{sINB} offset:{b * 512} glc')
                    a(f's_load_dword s{sPL + 2*q + 1}, {sr(rWS, 2)}, s{sINB} offset:{b * 512 - 256} glc')
            elif kind == 'q':
                S(T0, 'fs*8192 + (w - 4)*256 + HGR')
                a('s_waitcnt lgkmcnt(0)')
                for q in range(4): a(f's_load_dword s{sPL + q}, {sr(rWS, 2)}, s{T0} offset:{q * 2048 + 1024 + 252} glc')
            elif kind == 's':
                vm.wait('m2c')
                for _ in range(n):
                    i = sil.pop(0)
                    a(f'v_and_b32 v{m2c+i}, s{sMASK}, v{m2c+8+i//2}' if i & 1 else f'v_lshlrev_b32 v{m2c+i}, 16, v{m2c+8+i//2}')
                    self.silu(m2c + i, vT + (i & 1))
            elif kind == 'g':
                assert not sil
                for _ in range(n):
                    vm.wait(('m2', m2pos // 16))
                    for s_ in m2ops[m2pos:m2pos + 16]: a(s_)
                    m2pos += 16
            elif kind == 'r':
                assert m2pos == 128
                for s_ in m2ops[128:]: a(s_)
                self.dw('ds_write_b32', vGA, acc, 1, L_M2 - SCR)
                lg.wait_all()
            elif kind == 'P':
                a(f"""s_cmp_lg_u32 s{sWAVE}, 4
                s_cbranch_scc1 L_M2F
                ds_read_b128 {vr(acc, 4)}, v{vL32S} offset:{L_M2 - SCR}""")
                S(T0, '((j*2 + (x >> 2))*4 + (x & 3))*512 + MODP2')
                a(f"""s_waitcnt lgkmcnt(0)
                v_add_f32 v{acc}, v{acc}, v{acc+1}
                v_add_f32 v{acc+2}, v{acc+2}, v{acc+3}
                v_mov_b32 v{acc+1}, s{sTAG}
                v_add_f32 v{acc}, v{acc}, v{acc+2}""")
                self.bs(acc, 2, vL8, rWS, T0, 0, 'sc1', count=False)
                a('L_M2F:')
            else: raise ValueError(op)
        sched = {int(k): v.split() for k, v in o['sched'].items()}
        for op in sched.get(0, []): act(op, 0)
        for k in range(1, LASTB + 1):
            for kk in (range(k, 16) if k == LASTB else [k]): vm.wait(('W', kk))
            if o.get('ust'): self.stamp(f'w{k}')
            a('s_barrier')
            if o.get('ust'): self.stamp(f'u{k}')
            ops = sched.get(k, [])
            if 6 <= k + 4 < 16:
                pre = [op[1:] for op in ops if op[0] == '<']
                for op in pre: act(op, k)
                if not o.get('now2'): w_unit(k + 4)
            for op in ops:
                if op[0] != '<': act(op, k)
        if o.get('b14', 1):
            assert LASTB == 13 and AD <= 12
            a('s_barrier')
            for op in sched.get(14, []): act(op, 14)
        assert (not m2l or o.get('nom2')) and not wol
        self.barrier()
        for q in range(2): self.r128(fr + 4 * q, vXF, q * 1024)
        lg.wait_all()
        phi_logits(fr)
        for op in sched.get(15, []): act(op, 15)
        assert 8 * len(freg) <= 76
        a('L_JOIN:')
        vm.reset(); lg.q = [None]
        V.release(vB, 6); V.release(vWd); V.release(vWM); V.release(vCo); V.release(vGA); V.release(vL32S); V.release(acc, 8)
        V.release(big + 8 * len(freg), 76 - 8 * len(freg))
        ph = aq; fx = aq + 16
        vPA = V.alloc(); vPB = V.alloc()
        self.softmax_pm(pp, ee, ph, vT)
        for fb in range(4): self.dw('ds_write_b128', vPW, ph + 4 * fb, 4, fb * 4096)
        S(T0, 'w*4096 + L_PHK'); a(f'v_add_u32 v{vPA}, s{T0}, v{vL8}')
        S(T0, 'kh*8192 + L_V'); a(f'v_add_u32 v{vPB}, s{T0}, v{vL8}')
        ones = fr
        for i in range(4): a(f'v_mov_b32 v{ones+i}, 0x3f803f80')
        S(T0, '((hp*8 + w)*32 + r1)*1024 + KVP'); S(T2, 'T0 + 16384')
        S(T3, '(hp*8 + w)*1024 + ZP'); S(T1, 'r1*64 + T3')
        self.stamp('ksm')
        self.barrier()
        self.stamp('phik')
        fragA = [ee + 4 * i for i in range(4)]
        fragB = [av + 4 * i for i in range(8)]
        kvd = vv; zd = fr + 4
        def kvm(u):
            lg.wait(('kv', u))
            for db in range(2):
                a(f'v_mfma_f32_16x16x32_bf16 {vr(kvd + 4*db, 4)}, {vr(fragA[u], 4)}, {vr(fragB[2*u+db], 4)}, ' + ('0' if u == 0 else vr(kvd + 4*db, 4)))
            a(f'v_mfma_f32_16x16x32_bf16 {vr(zd, 4)}, {vr(fragA[u], 4)}, {vr(ones, 4)}, ' + ('0' if u == 0 else vr(zd, 4)))
        for ts in range(4):
            self.tr(fragA[ts], vPA, ts * 1024, ('kv', ts)); self.tr(fragA[ts] + 2, vPA, ts * 1024 + 512, ('kv', ts))
            for db in range(2):
                self.tr(fragB[2*ts+db], vPB, db * 4096 + ts * 1024, ('kv', ts)); self.tr(fragB[2*ts+db] + 2, vPB, db * 4096 + ts * 1024 + 512, ('kv', ts))
            if ts >= 2: kvm(ts - 2)
        kvm(2); kvm(3)
        a(f"""s_cmp_lt_u32 s{sWAVE}, 4
        s_cbranch_scc1 L_NOQX
        ds_read_b128 {vr(vq, 4)}, v{vXF} offset:2048
        ds_read_b128 {vr(vq + 4, 4)}, v{vXF} offset:3072
        L_NOQX:""")
        self.bs(kvd, 4, vL16, rWS, T0, 0, 'sc1', 'kvs')
        self.bs(kvd + 4, 4, vL16, rWS, T2, 0, 'sc1', 'kvs')
        a('s_mov_b32 exec_lo, 0x00010001')
        a('s_mov_b32 exec_hi, 0x00010001')
        self.bs(zd, 4, vL, rWS, T1, 0, 'sc1', 'kvs')
        a('s_mov_b64 exec, -1')
        lg.wait_all()
        phi_logits(vq)
        self.stamp('kvst')
        va(vPW, [(0, 3, 32 * 4096), (3, 1, 4 * 4096)])
        S(T4, '(wg & 0x1b)*4096 + (r1 >> 1)*64 + (r1 & 1)*4 + INB + 512')
        wl = [2, 3, 4, 5, 6, 7, 12, 13, 14, 15, 0, 1]
        kp = av; zz = av + 16; g4 = vv
        m2q = fx; wr1 = fx + 8
        vKP = V.alloc()
        va(vKP, [(3, 3, 1024), (0, 3, 16)])
        va(vXF, [(0, 3, 16), (5, 1, 8)])
        def c_push():
            vm.wait('kvs')
            a('s_barrier')
            self.push(vPW, T4, 16, vPB, 'L_PC')
            self.stamp('kvpub')
        qm, qs = o.get('qmid', 8), o.get('qsplit', 16)
        wo1 = lambda: wo_dma(wl.pop(0), 0, T6)
        self.softmax_pm(pp, ee, ph, vT, part=1, split=qm)
        c_push()
        self.weave(lambda: [a(f'v_exp_f32 v{r+i}, v{r+i}') for i in range(qm, qs) for r in (ee, pp)], [wo1] * o['wowin'][0])
        S(T0, '(hp*16 + r1)*16384 + w*128 + KVP'); S(T1, 'T0 + 8192')
        S(T2, '(hp*16 + r1)*1024 + w*128 + KIN'); S(T4, 'T4 + 6*512')
        self.inbox(1, 2, work=lambda: (self.weave(lambda: self.softmax_pm(pp, ee, ph, vT, part=2, split=qs), [wo1] * o['wowin'][1]), self.stamp('cw')))
        a('s_barrier')
        self.stamp('kvok')
        self.bl(kp, 4, vKP, rWS, T0, 0, 'sc1', 'kp')
        self.bl(kp + 4, 4, vKP, rWS, T1, 0, 'sc1', 'kp')
        S(T1, 'w*32 + L_ZF'); va(vT + 2, [(0, 2, 8), (5, 1, 4)], T1)
        S(T1, 'w*1024 + L_KVF'); va(vT + 1, [(0, 4, 16), (5, 1, 512), (4, 1, 8)], T1)
        S(T1, 'kh*128 + L_ZF'); va(vT + 3, [(5, 1, 16)], T1)
        S(T1, 'kh*4096 + L_KVF'); a(f'v_add_u32 v{vPA}, s{T1}, v{vL16}')
        self.bl(zz, 4, vL16, rWS, T3, 0, 'sc1', 'z')
        def red4(r, ctls):
            for i in range(2): a(f'v_permlane32_swap_b32 v{r+i}, v{r+2+i}')
            self.pk('add', r, r, r + 2)
            for ctl in ctls:
                for i in range(2): self.dpp('v_add_f32', r + i, r + i, r + i, ctl)
            for i in range(2): a(f'v_mov_b32 v{r+2+i}, v{r+i}')
            for i in range(2): a(f'v_permlane16_swap_b32 v{r+i}, v{r+2+i}')
            self.pk('add', r, r, r + 2)
            a(f'v_cvt_pk_bf16_f32 v{r}, v{r}, v{r+1}')
        vm.wait('kp')
        self.pk('add', kp, kp, kp + 4); self.pk('add', kp + 2, kp + 2, kp + 6)
        red4(kp, ['row_ror:8'])
        a(f"""v_mov_b32 v{kp+1}, s{sTAG}
        s_mov_b32 exec_lo, 0xff
        s_mov_b32 exec_hi, 0xff""")
        self.bs(kp, 2, vXF, rWS, T2, 0, 'sc1')
        a('s_mov_b64 exec, -1')
        a('s_barrier')
        self.push(vPW, T4, 16, vPB, 'L_PC2')
        self.stamp('c2pub')
        kf = av; zf = av + 16; num = pp; den = ee
        vm.wait('z')
        self.weave(lambda: red4(zz, ['row_ror:4', 'row_ror:8']), [wo1] * o['wowin'][2])
        self.dw('ds_write_b32', vT + 2, zz, 1)
        self.barrier()
        for fb in range(4): self.r128(zf + 4 * fb, vT + 3, fb * 32)
        lg.wait_all()
        S(T0, '(hp*8 + w)*2048 + KIN')
        k2 = av + 8
        def den_work():
            for fb in range(4):
                a(f'v_mfma_f32_32x32x16_bf16 {vr(den, 16)}, {vr(zf + 4*fb, 4)}, {vr(ph + 4*fb, 4)}, ' + ('0' if fb == 0 else vr(den, 16)))
            self.round1(den)
            a(f'v_add_f32 v{den}, 0x358637bd, v{den}')
            self.round1(den)
            a(f'v_rcp_f32 v{den}, v{den}')
            self.stamp('c2w')
        self.inbox(7, 2, work=den_work)
        self.stamp('c2h')
        self.poll(lambda: [self.bl(k2 + 4 * q, 4, vL16, rWS, T0, q * 1024, 'sc1') for q in range(2)], [k2 + 1, k2 + 3, k2 + 5, k2 + 7], vT)
        for db in range(2):
            a(f'ds_write2_b32 v{vT+1}, v{k2+4*db}, v{k2+4*db+2} offset0:{64*db} offset1:{64*db+1}'); lg.issue()
        self.barrier()
        self.stamp('kvred')
        for fb in range(4): self.r128(kf + 4 * fb, vPA, fb * 1024, ('kf', fb))
        vM2 = V.alloc()
        va(vM2, [(0, 5, 16), (5, 1, 512)])
        S(T5, '((w & 3)*16 + cb)*2048 + MODP2')
        ld_m2 = lambda: [self.bl(m2q + 4 * q, 4, vM2, rWS, T5, q * 1024, 'sc1', 'm2q') for q in range(2)]
        S(T0, 'cb*128'); va(vT, [(0, 5, 4)], T0)
        a(f'global_load_dword v{wr1}, v{vT}, {sr(pWR, 2)}'); vm.issue('m2q')
        ld_m2()
        S(T0, '(((r1*4 + (w & 3))*16 + hp)*2 + kh)*2048 + OF')
        for fb in range(4):
            lg.wait(('kf', fb))
            a(f'v_mfma_f32_32x32x16_bf16 {vr(num, 16)}, {vr(kf + 4*fb, 4)}, {vr(ph + 4*fb, 4)}, ' + ('0' if fb == 0 else vr(num, 16)))
        for h in range(2):
            self.round_list([num + i for i in range(8 * h, 8 * h + 8)])
            for i in range(8 * h, 8 * h + 8, 2): self.pk('mul', num + i, num + i, den, bc=(1,))
            for i in range(4 * h, 4 * h + 4): a(f'v_cvt_pk_bf16_f32 v{vq+i}, v{num+2*i}, v{num+2*i+1}')
            self.bs(vq + 4 * h, 4, vL16, rWS, T0, 1024 * h, 'sc1', 'os')
        self.stamp('ost')
        for r, n in ((fr, 8), (vv, 8), (vPW, 1), (vXF, 1), (vPA, 1), (vPB, 1), (vKP, 1), (accs, 16), (accs + 32, 64), (wphi, 8)):
            V.release(r, n)
        assert GS == 0
        vG16 = vL16
        vBa = V.alloc(); vBb = V.alloc(); xf = V.alloc(16)
        S(T4, 'kh*(65536 + 64) + WO_H0')
        va(vBa, [(2, 2, 128), (3, 1, 64), (5, 1, 1024), (0, 1, 32), (4, 1, 16), (1, 1, 8)])
        a(f'v_xor_b32 v{vBa}, s{T4}, v{vBa}')
        a(f'v_xor_b32 v{vBb}, 64, v{vBa}')
        assert WO_H1 == WO_H0 + 65536
        va(vT + 1, [(0, 3, 8 * 4096), (3, 1, 4096)])
        S(T2, '((r1 >> 2)*2 + (r1 & 3)*64)*4096 + (hp >> 1)*64 + (hp & 1)*4 + INB + 1024')
        for i in range(8): self.unpack(xf + 2 * i, xf + 2 * i + 1, xr + i)
        S(T6, '(gtb*2 + kf)*32768 + OF')
        vm.wait('os')
        a('s_barrier')
        self.push(vT + 1, T2, 16, vT + 2, 'L_PD')
        self.stamp('opub')
        V.release(vq, 8)
        while wl: wo_dma(wl.pop(0))
        V.release(vWo)
        self.finish_load('m2q', ld_m2, [m2q + 1, m2q + 3, m2q + 5, m2q + 7], vT)
        q0, q1, q2, q3 = m2q, m2q + 1, m2q + 2, m2q + 3
        S(T0, '(w & 3)*128 + L_MT'); va(vT, [(0, 5, 4)], T0)
        S(T1, 'w & 3')
        a(f"""v_add_f32 v{q0}, v{m2q}, v{m2q+4}
        v_add_f32 v{q1}, v{m2q+2}, v{m2q+6}
        v_add_f32 v{q2}, v{m2q}, v{m2q+4}""".replace(f'v_add_f32 v{q2}, v{m2q}, v{m2q+4}', f'v_mov_b32 v{q2}, v{q0}'))
        a(f"""v_mov_b32 v{q3}, v{q1}
        s_cmp_eq_u32 s{T1}, 2
        s_cselect_b32 s{T2}, 1.0, 0
        v_permlane32_swap_b32 v{q0}, v{q2}
        v_permlane32_swap_b32 v{q1}, v{q3}""")
        self.pk('add', q0, q0, q2)
        self.round2(q0, q1)
        a(f"""v_add_f32 v{q0}, s{T2}, v{q0}
        v_add_f32 v{q1}, s{T2}, v{q1}
        v_cvt_pk_bf16_f32 v{q2}, v{q0}, v{q1}""")
        self.dw('ds_write_b32', vT, q2, 1)
        a('s_cbranch_scc0 L_NOG')
        g0, g1, gh, gl = m2q + 4, m2q + 5, m2q + 6, m2q + 7
        self.unpack(q0, q1, q2); self.unpack(g0, g1, wr1)
        self.pk('mul', g0, g0, q0)
        a(f'v_cvt_pk_bf16_f32 v{gh}, v{g0}, v{g1}')
        self.unpack(q0, q1, gh)
        self.pk('add', q0, g0, q0, neg=(1,))
        a(f"""v_cvt_pk_bf16_f32 v{gl}, v{q0}, v{q1}
        v_add_f32 v{q0}, v{g0}, v{g1}
        ds_write2_b32 v{vT}, v{gh}, v{gl} offset0:64 offset1:96
        ds_write_b32 v{vT}, v{wr1} offset:512""")
        for ctl in ('quad_perm:[1,0,3,2]', 'quad_perm:[2,3,0,1]', 'row_half_mirror', 'row_ror:8'): self.dpp('v_add_f32', q0, q0, q0, ctl)
        S(T0, '(rt*16 + cb)*8 + GR')
        a(f"""v_mov_b32 v{q2}, v{q0}
        v_mov_b32 v{q1}, s{sTAG}
        v_permlane16_swap_b32 v{q0}, v{q2}
        v_add_f32 v{q0}, v{q0}, v{q2}
        s_mov_b64 exec, 1""")
        self.bs(q0, 2, vZ, rWS, T0, 0, 'sc1', count=False)
        a("""s_mov_b64 exec, -1
        L_NOG:""")
        V.release(vM2)
        S(T0, 'kh*64 + L_MT'); va(vT + 3, [(5, 1, 32)], T0); va(vT + 4, [(0, 3, 4)]); a(f'v_add_u32 v{vT+4}, v{vT+4}, v{vT+3}')
        self.barrier()
        gaf = V.alloc(16); gp = V.alloc(16); tb4 = V.alloc(4); gr = V.alloc(2); vGR = V.alloc()
        for q in range(2):
            self.r128(fx + 4 * q, vT + 3, 16 * q)
            for k in range(2): self.r128(gp + 8 * k + 4 * q, vT + 3, (4 + k) * 128 + 16 * q)
        for q, t in enumerate((1, 2, 3, 6)): self.dr('ds_read_b32', tb4 + q, 1, vT + 4, t * 128)
        lg.wait_all()
        def d_work():
            for i in range(8): self.unpack(gaf + 2 * i, gaf + 2 * i + 1, fx + i)
            va(vGR, [(0, 4, 8)])
            vm.wait_all()
            self.stamp('dw')
        AD2 = o['AD2']
        accA = V.alloc(16); accB = V.alloc(16); Ar = V.alloc(4 * AD2); Br = V.alloc(16)
        nf2 = o.get('fg2', 0); f2 = []; f2r = V.alloc(4 * nf2) if nf2 else None
        def b2_read(s, c):
            d = Br + 8 * (s & 1) + 4 * c
            self.tr(d, (vBa, vBb)[c], s * 2048, ('B', s, c)); self.tr(d + 2, (vBa, vBb)[c], s * 2048 + 512, ('B', s, c))
        def a2_load(s):
            if s % 2 == 0: S(T7, '((rot + n) & 15)*2048 + T6', n=s // 2)
            self.bl(Ar + 4 * (s % AD2), 4, vL16, rWS, T7, (s % 2) * 1024, 'sc1', ('A', s))
        self.inbox(2, 2, work=d_work)
        V.release(fx, 16)
        a('s_barrier')
        self.stamp('ook')
        if o.get('prio2', 1):
            a(f"""s_cmp_lt_u32 s{sWAVE}, 4
            s_cbranch_scc1 L_P2
            s_setprio {o.get('prio2', 1)}
            L_P2:""")
        for s in range(AD2):
            a2_load(s)
            if s == 0:
                for c in (1, 0): b2_read(0, c)
        for s in range(32):
            vm.wait(('A', s))
            for c in (1, 0):
                lg.wait(('B', s, c))
                ac = (accA, accB)[c]
                a(f'v_mfma_f32_32x32x16_bf16 {vr(ac, 16)}, {vr(Br + 8*(s & 1) + 4*c, 4)}, {vr(Ar + 4*(s % AD2), 4)}, ' + ('0' if s == 0 else vr(ac, 16)))
                if s + 1 < 32: b2_read(s + 1, c)
            if s + AD2 < 32: a2_load(s + AD2)
            if s == 31 - AD2:
                S(T5, 'rt*128 + GR')
                ld_gr = lambda: self.bl(gr, 2, vGR, rWS, T5, 0, 'sc1', 'gr')
                ld_gr()
                for n in range(nf2):
                    m, i = fq.pop(0); f2.append((m, i))
                    v, r = f_src(m, i)
                    self.bl(f2r + 4 * n, 4, v, r, T0, 0, o.get('ntffn', 'nt'), 'f2')
        self.stamp('gemm2')
        if o.get('prio2', 1): a('s_setprio 0')
        S(T0, 'w*4096')
        a(f"""v_add_u32 v{vT}, s{T0}, v{vG16}
        v_xor_b32 v{vT+1}, 0x4000, v{vT}""")
        for q in range(4): self.dw('ds_write_b128', vT, accB + 4 * q, 4, L_EXCH - GS + q * 1024)
        S(T0, 'kh*2048 + (w & 3)*512 + L_SP'); va(vT + 2, [(0, 5, 16), (5, 1, 8)], T0)
        sm = Br; one = Br + 4
        a(f'v_mov_b32 v{one}, 0x3f803f80')
        fd = list(o['fdma']); assert sum(fd) == len(fq)
        self.barrier()
        for q in range(4): self.r128(accB + 4 * q, vT + 1, L_EXCH - GS + q * 1024, ('ex', q))
        ffn_dma(fd[0], T1)
        for h in range(2):
            for q in (2 * h, 2 * h + 1):
                lg.wait(('ex', q))
                self.pk('add', accA + 4 * q, accA + 4 * q, accB + 4 * q); self.pk('add', accA + 4 * q + 2, accA + 4 * q + 2, accB + 4 * q + 2)
            rg = range(8 * h, 8 * h + 8)
            self.round_list([accA + i for i in rg])
            for i in range(8 * h, 8 * h + 8, 2): self.pk('mul', accA + i, accA + i, gaf + i)
            self.round_list([accA + i for i in rg])
            for i in range(8 * h, 8 * h + 8, 2): self.pk('add', accA + i, accA + i, xf + i)
            for i in range(4 * h, 4 * h + 4): a(f'v_cvt_pk_bf16_f32 v{xr+i}, v{accA+2*i}, v{accA+2*i+1}')
        for i in range(8):
            for d, b in ((sm, one), (sm + 2, xr + i), (sm + 1, gp + i), (sm + 3, gp + 8 + i)):
                a(f'v_dot2_f32_bf16 v{d}, v{xr+i}, v{b}, ' + ('0' if i == 0 else f'v{d}'))
        a(f"""v_permlane32_swap_b32 v{sm}, v{sm+2}
        v_permlane32_swap_b32 v{sm+1}, v{sm+3}""")
        self.pk('add', sm, sm, sm + 2)
        self.dw('ds_write_b64', vT + 2, sm, 2)
        a(f'v_add_u32 v{vT}, {L_SP}, v{vL16}')
        va(vT + 1, [(0, 3, 8 * 4096), (3, 1, 4096)])
        S(T0, '(rt*16 + cb)*2048 + STAT')
        S(T3, '((rt & 3)*64 + (rt >> 2)*2)*4096 + (cb >> 1)*64 + (cb & 1)*4 + INB + 1536')
        self.barrier()
        self.stamp('x1st')
        a(f"""s_cmp_lg_u32 s{sWAVE}, 0
        s_cbranch_scc1 L_PE""")
        for q in range(4): a(f'ds_read_b128 {vr(accB + 4*q, 4)}, v{vT} offset:{(q & 1) * 2048 + (q >> 1) * 1024}')
        for h in range(2):
            b = accB + 8 * h
            a(f's_waitcnt lgkmcnt({2 - 2*h})')
            self.pk('add', b, b, b + 4); self.pk('add', b + 2, b + 2, b + 6)
            a(f"""v_add_f32 v{b+1}, v{b+1}, v{b+3}
            v_mov_b32 v{b+3}, s{sTAG}""")
            self.bs(b, 4, vL16, rWS, T0, 1024 * h, 'sc1', count=False)
        a('s_mov_b64 exec, 0xffff')
        self.bs(accB + 3, 1, vT + 1, rWS, T3, 0, 'sc1', count=False)
        a("""s_mov_b64 exec, -1
        L_PE:""")
        self.stamp('x1pub')
        V.release(accA, 16); V.release(accB, 16); V.release(Ar, 4 * AD2); V.release(Br, 16); V.release(vBa); V.release(vBb); V.release(xf, 16); V.release(gaf, 16); V.release(gp, 16)
        ffn_dma(fd[1])
        a(f"""s_cmp_lt_u32 s{sWAVE}, 4
        s_cbranch_scc1 L_NOST""")
        S(T0, '(w - 4)*4096 + L_GU')
        a(f'v_add_u32 v{vT}, s{T0}, v{vL16}')
        a(f'v_add_u32 v{vT+3}, {L_DN - L_GU}, v{vT}')
        for n, (m, i) in enumerate(freg):
            for back in range(2):
                self.dw('ds_write_b128', vT if m < 2 else vT + 3, big + 8 * n + 4 * back, 4, f_lds(m, i) - (L_GU if m < 2 else L_DN) + (1 - back) * 16384)
        a('L_NOST:')
        S(T0, 'kh*64 + L_TB'); va(vT, [(0, 3, 4), (5, 1, 32)], T0)
        for q in range(4): self.dw('ds_write_b32', vT, tb4 + q, 1, 128 * q)
        vOT = V.alloc()
        S(T3, '(w & 3)*(32*144) + kh*64'); va(vOT, [(0, 5, 144), (5, 1, 32)], T3)
        for q in range(2): self.dw('ds_write_b128', vOT, xr + 4 * q, 4, L_XT + 16 * q)
        a(f'v_add_u32 v{vOT}, {L_OT}, v{vOT}')
        lg.wait_all()
        V.release(big, 8 * len(freg))
        x1 = V.alloc(16); hh = V.alloc(16); mf = V.alloc(32); sg = V.alloc(16); op = V.alloc(8)
        st = V.alloc(2); cn = V.alloc(2); vRid = V.alloc(); ck = V.alloc(4)
        def expand(dst, t):
            for i in range(8):
                self.dpp('v_mul_u32_u24', dst + 2 * i, t, cn, f'row_newbcast:{i}')
                self.dpp('v_and_b32', dst + 2 * i + 1, t, cn + 1, f'row_newbcast:{i}')
        def e_work():
            a(f"""v_mov_b32 v{cn}, 0x10000
            v_mov_b32 v{cn+1}, s{sMASK}""")
            S(T1, 'rt*32768 + w*256 + STAT')
            va(vT + 3, [(0, 4, 16), (4, 2, 2048)])
            S(T0, '4094 - (rt*8 + w)*32'); va(vRid, [(0, 4, 2)]); a(f'v_sub_u32 v{vRid}, s{T0}, v{vRid}')
            S(T0, 'w*128 + L_ST2'); va(vT + 4, [(0, 4, 8)], T0)
            S(T0, '(w & 3)*256 + L_ST2'); va(vT + 6, [(0, 5, 8)], T0)
            va(vT + 7, [(0, 3, 8)], None, L_K1)
            for i in range(8): self.unpack(x1 + 2 * i, x1 + 2 * i + 1, xr + i)
            self.finish_load('gr', ld_gr, [gr + 1])
            vm.wait('f2')
            for ctl in ('quad_perm:[1,0,3,2]', 'quad_perm:[2,3,0,1]', 'row_half_mirror', 'row_ror:8'): self.dpp('v_add_f32', gr, gr, gr, ctl)
            self.stamp('ew')
        self.inbox(3, 2, work=e_work)
        a('s_barrier')
        self.stamp('x1ok')
        def ld_sg():
            for q in range(4):
                S(T0, 'T1 + q', q=q * 8192)
                self.bl(sg + 4 * q, 4, vT + 3, rWS, T0, 0, 'sc1')
        ct = V.alloc(12, 4)
        def e_work2():
            a(f"""s_cmp_lg_u32 s{sWAVE}, 1
            s_cbranch_scc1 L_NOCT""")
            va(vT + 1, [(0, 4, 8)], None, L_TB)
            a(f"""ds_read_b64 {vr(ct + 2, 2)}, v{vT+1}
            ds_read_b64 {vr(ct + 6, 2)}, v{vT+1} offset:128
            ds_read_b64 {vr(ct + 8, 2)}, v{vT+1} offset:384
            s_waitcnt lgkmcnt(0)""")
            for b in (ct, ct + 4):
                self.unpack(b, b + 1, b + 2); self.unpack(b + 2, b + 3, b + 3)
            a('L_NOCT:')
            if nf2:
                S(T2, 'w*4096 + L_GU + 32768'); a(f'v_add_u32 v{vT+1}, s{T2}, v{vL16}')
                for n, (m, i) in enumerate(f2): self.dw('ds_write_b128', vT + 1, f2r + 4 * n, 4, f_lds(m, i) - L_GU - 32768)
            expand(mf, tb4); expand(mf + 16, tb4 + 1)
        self.try_load(ld_sg, [sg + 3, sg + 7, sg + 11, sg + 15], vT, e_work2)
        if nf2: V.release(f2r, 4 * nf2)
        self.stamp('x1ld')
        ffn_dma(fd[2], T2)
        A_, B_, C_, U_ = sg, sg + 1, sg + 2, sg + 3
        self.pk('add', sg, sg, sg + 4); self.pk('add', sg + 8, sg + 8, sg + 12)
        a(f"""v_add_f32 v{C_}, v{C_}, v{sg+6}
        v_add_f32 v{sg+10}, v{sg+10}, v{sg+14}""")
        self.pk('add', sg, sg, sg + 8)
        a(f"""v_add_f32 v{C_}, v{C_}, v{sg+10}
        v_mov_b32 v{U_}, v{B_}
        v_permlane32_swap_b32 v{A_}, v{C_}
        v_permlane32_swap_b32 v{B_}, v{U_}
        v_add_f32 v{A_}, v{A_}, v{C_}
        v_add_f32 v{B_}, v{B_}, v{U_}
        v_permlane16_swap_b32 v{A_}, v{B_}
        v_add_f32 v{U_}, v{A_}, v{B_}
        v_add_f32 v{A_}, v{A_}, v{B_}
        v_permlane16_swap_b32 v{A_}, v{U_}
        v_mul_f32 v{C_}, 0x3a800000, v{A_}
        v_mul_f32 v{A_}, 0x3a800000, v{A_}
        v_permlane32_swap_b32 v{A_}, v{C_}""")
        self.stat_math(A_, C_, st, st + 1)
        S(T0, 'w*8 + L_K1')
        a(f"""v_rcp_f32 v{st+1}, v{st+1}
        v_fma_f32 v{U_}, -v{st}, v{gr}, v{U_}
        v_mov_b32 v{vT+1}, s{T0}
        v_mul_f32 v{U_}, v{U_}, v{st+1}""")
        self.dw('ds_write_b64', vT + 4, st, 2)
        a(f"""s_movk_i32 s{T0}, 0xfff
        v_ashrrev_i32 v{A_}, 31, v{U_}
        v_or_b32 v{A_}, 0x80000000, v{A_}
        v_xor_b32 v{A_}, v{A_}, v{U_}
        v_bfi_b32 v{ck}, s{T0}, v{vRid}, v{A_}""")
        def top2(ctls, first):
            for n, ctl in enumerate(ctls):
                if n == 0 and first:
                    self.dpp('v_min_u32', ck + 1, ck, ck, ctl); self.dpp('v_max_u32', ck, ck, ck, ctl)
                    continue
                self.dpp('v_min_u32', ck + 2, ck, ck, ctl); self.dpp('v_max_u32', ck + 1, ck + 1, ck + 1, ctl); self.dpp('v_max_u32', ck, ck, ck, ctl)
                a(f'v_max_u32 v{ck+1}, v{ck+1}, v{ck+2}')
        top2(('row_ror:8', 'row_ror:4', 'row_ror:2', 'row_ror:1'), True)
        self.dw('ds_write_b64', vT + 1, ck, 2)
        va(vT + 2, [(0, 2, 64 * 4096), (2, 2, 2 * 4096)])
        S(T1, '((cb & 7)*8 + (cb >> 3))*4096 + (rt >> 1)*64 + (rt & 1)*16 + INB + 2560')
        self.barrier()
        self.stamp('ln2')
        self.dr('ds_read_b64', ck, 2, vT + 7, 0, 'k'); self.dr('ds_read_b64', st, 2, vT + 6, 0, 's')
        lg.wait('k')
        top2(('quad_perm:[1,0,3,2]', 'quad_perm:[2,3,0,1]', 'row_half_mirror'), False)
        a(f"""v_or_b32 v{ck+2}, 1, v{ck+1}
        v_mov_b32 v{ck+1}, s{sTAG}
        v_mov_b32 v{ck+3}, s{sTAG}
        s_cmp_lg_u32 s{sWAVE}, 0
        s_cbranch_scc1 L_NOF
        s_mov_b64 exec, 0xffff""")
        self.bs(ck, 4, vT + 2, rWS, T1, 0, 'sc1', count=False)
        a("""s_mov_b64 exec, -1
        L_NOF:""")
        self.stamp('Fpub')
        a(f"""s_cmp_lg_u32 s{sWAVE}, 1
        s_cbranch_scc1 L_NOC
        v_and_b32 v{vT}, 16, v{vL}
        v_cmp_eq_u32 vcc, 0, v{vT}
        v_cndmask_b32 v{vT}, v{ck+2}, v{ck}, vcc
        v_not_b32 v{vT}, v{vT}
        v_bfe_u32 v{vT}, v{vT}, 1, 7
        v_lshlrev_b32 v{vT+2}, 3, v{vT}
        v_mul_u32_u24 v{vT}, 144, v{vT}
        v_add_u32 v{vT+2}, {L_ST2}, v{vT+2}""")
        va(vT + 1, [(0, 4, 8)])
        cx, cs, ch = sg, sg + 4, sg + 8
        a(f"""v_add_u32 v{vT}, v{vT}, v{vT+1}
        ds_read_b64 {vr(cs, 2)}, v{vT+2}
        ds_read_b64 {vr(cx, 2)}, v{vT} offset:{L_XT}""")
        va(vT + 2, [(0, 4, 16), (4, 1, 16384), (5, 1, 4096)])
        va(vT + 3, [(4, 1, 16384)])
        S(T0, 'rt*32768 + cb*256 + CAND'); S(T3, 'rt*32768 + cb*8 + 8192 + CAND')
        a(f"""v_mov_b32 v{cx+3}, s{sTAG}
        s_waitcnt lgkmcnt(0)""")
        self.unpack(ch, ch + 1, cx); self.unpack(ch + 2, ch + 3, cx + 1)
        for i in (0, 2): self.pk('add', ch + i, ch + i, cs, bc=(1,), neg=(1,))
        self.round_list([ch + i for i in range(4)])
        for i in (0, 2): self.pk('mul', ch + i, ch + i, cs + 1, bc=(1,))
        self.round_list([ch + i for i in range(4)])
        for i in (0, 2): self.pk('mul', ch + i, ch + i, ct + 4 + i)
        self.round_list([ch + i for i in range(4)])
        for i in (0, 2): self.pk('add', ch + i, ch + i, ct + i)
        a(f"""v_mov_b32 v{cx+2}, v{cx+1}
        v_mov_b32 v{cx+1}, s{sTAG}
        s_mov_b32 exec_hi, 0
        v_cvt_pk_bf16_f32 v{cx}, v{ch}, v{ch+1}
        v_cvt_pk_bf16_f32 v{cx+2}, v{ch+2}, v{ch+3}
        s_mov_b32 exec_hi, -1
        v_dot2_f32_bf16 v{cs}, v{cx}, v{ct+8}, 0
        v_mov_b32 v{cs+1}, s{sTAG}
        v_dot2_f32_bf16 v{cs}, v{cx+2}, v{ct+9}, v{cs}""")
        self.bs(cx, 4, vT + 2, rWS, T0, 0, 'sc1', count=False)
        for ctl in ('quad_perm:[1,0,3,2]', 'quad_perm:[2,3,0,1]', 'row_half_mirror', 'row_ror:8'): self.dpp('v_add_f32', cs, cs, cs, ctl)
        a('s_mov_b64 exec, 0x10001')
        self.bs(cs, 2, vT + 3, rWS, T3, 0, 'sc1', count=False)
        a("""s_mov_b64 exec, -1
        L_NOC:""")
        V.release(ct, 12)
        def ln2_tile():
            for i in E2: self.pk('add', hh + i, x1 + i, st, bc=(1,), neg=(1,))
            self.round_list([hh + i for i in range(16)])
            for i in E2: self.pk('mul', hh + i, hh + i, st + 1, bc=(1,))
            self.round_list([hh + i for i in range(16)])
            for i in E2: self.pk('mul', hh + i, hh + i, mf + 16 + i)
            self.round_list([hh + i for i in range(16)])
            for i in E2: self.pk('add', hh + i, hh + i, mf + i)
            self.round_list([hh + i for i in range(16)])
        lg.wait('s')
        self.stamp('cand')
        ffn_dma(fd[3])
        uu = V.alloc(16); vGr = V.alloc(); vDr = V.alloc(); vXs = V.alloc()
        def out_calc():
            expand(mf, tb4 + 2)
            for i in E2: self.pk('mul', hh + i, hh + i, mf + i)
            self.round_list([hh + i for i in range(16)])
            for i in E2: self.pk('add', hh + i, hh + i, x1 + i)
            for i in range(8): a(f'v_cvt_pk_bf16_f32 v{op+i}, v{hh+2*i}, v{hh+2*i+1}')
            for q in range(2): self.dw('ds_write_b128', vOT, op + 4 * q, 4, 16 * q)
            S(T3, 'w*(16*144) + L_OT'); va(vOT, [(3, 3, 144), (0, 3, 16)], T3)
        oc = o.get('ocat', 1)
        def f_work():
            ln2_tile()
            if oc == 0: out_calc()
            S(T0, '(w >> 2)*32768 + (w & 3)*32 + L_GU')
            va(vGr, [(4, 2, 8192), (2, 2, 128), (3, 2, 32), (0, 2, 8)]); a(f'v_xor_b32 v{vGr}, s{T0}, v{vGr}')
            S(T0, 'w*64')
            va(vDr, [(2, 1, 512), (3, 1, 4096), (5, 1, 2048), (2, 2, 64), (4, 1, 32), (0, 2, 8)])
            a(f'v_xor_b32 v{vDr}, s{T0}, v{vDr}'); a(f'v_add_u32 v{vDr}, {L_DN}, v{vDr}')
            va(vXs, [(0, 3, 16), (4, 2, 128)], None, L_XS)
            S(T0, 'w*16 + L_K2'); a(f'v_mov_b32 v{vT}, s{T0}')
            va(vT + 1, [(0, 3, 16)], None, L_K2)
            a(f'v_and_b32 v{vT+4}, 8, v{vL}')
            a(f'v_cmp_eq_u32 {sr(sCMP, 2)}, 0, v{vT+4}')
            self.stamp('oc')
        self.inbox(5, 8, (1, 3, 5, 7), f_work)
        P = sPL
        a(f"""s_min_u32 s{P+1}, s{P}, s{P+4}
        s_max_u32 s{P}, s{P}, s{P+4}
        s_max_u32 s{P+3}, s{P+2}, s{P+6}
        s_min_u32 s{P+2}, s{P+2}, s{P+6}
        s_max_u32 s{P+4}, s{P+1}, s{P+3}
        s_min_u32 s{P+1}, s{P+1}, s{P+3}
        v_mov_b32 v{uu}, s{P}
        v_mov_b32 v{uu+3}, s{P+2}
        v_mov_b32 v{uu+1}, s{P+4}
        v_mov_b32 v{uu+2}, s{P+1}""")
        self.dw('ds_write_b128', vT, uu, 4)
        self.stamp('F2p')
        V.release(mf + 16, 16); V.release(gr, 2); V.release(vGR); V.release(vRid)
        ffn = V.alloc(48)
        vm.wait('gu')
        self.barrier()
        self.stamp('F2')
        def gu_frags():
            for s in range(8):
                self.tr(ffn + 4 * s, vGr, s * 1024); self.tr(ffn + 4 * s + 2, vGr, s * 1024 + 512)
        a(f"""s_cmp_lt_u32 s{sWAVE}, 4
        s_cbranch_scc1 L_CSEL""")
        fq0, vq0 = list(fq), list(vm.q)
        ffn_dma(fd[4])
        gu_frags()
        if oc: out_calc()
        a("""s_branch L_CSELD
        L_CSEL:""")
        lg.reset(); fq[:] = fq0; vm.q = vq0
        self.r128(uu, vT + 1)
        S(T0, 'w*512 + L_XS'); a(f'v_add_u32 v{vT+2}, s{T0}, v{vL8}')
        S(T0, 'w*4 + L_K3'); a(f'v_mov_b32 v{vT+3}, s{T0}')
        lg.wait_all()
        c4 = uu + 4
        for n, ctl in enumerate(('quad_perm:[1,0,3,2]', 'quad_perm:[2,3,0,1]', 'row_half_mirror')):
            for i in range(4): self.dpp('v_max_u32', c4 + i, uu + 3 - i, uu + i, ctl)
            if n == 2: break
            a(f"""v_max_u32 v{c4+4}, v{c4}, v{c4+2}
            v_max_u32 v{c4+5}, v{c4+1}, v{c4+3}
            v_min_u32 v{c4+6}, v{c4}, v{c4+2}
            v_min_u32 v{c4+7}, v{c4+1}, v{c4+3}
            v_max_u32 v{uu}, v{c4+4}, v{c4+5}
            v_min_u32 v{uu+1}, v{c4+4}, v{c4+5}
            v_max_u32 v{uu+2}, v{c4+6}, v{c4+7}
            v_min_u32 v{uu+3}, v{c4+6}, v{c4+7}""")
        for i in range(4): a(f'v_readfirstlane_b32 s{P+i}, v{c4+i}')
        a(f"""s_bitcmp1_b32 s{sWAVE}, 0
        s_cselect_b32 s{P}, s{P+1}, s{P}
        s_cselect_b32 s{P+2}, s{P+3}, s{P+2}
        s_bitcmp1_b32 s{sWAVE}, 1
        s_cselect_b32 s{P}, s{P+2}, s{P}
        s_and_b32 s{T2}, s{P}, 4095""")
        S(T0, '((15 - (T2 >> 8))*2 + (T2 & 1))*16384 + CAND'); S(T1, 'kq*1024 + T0'); S(T0, 'T0 + 8192')
        va(vT + 6, [(0, 4, 8)])
        def sel_work():
            self.stamp('sel')
            ffn_dma(fd[4], T3)
            gu_frags()
            if oc: out_calc()
            S(T2, 'T2*4 + w')
        self.try_load(lambda: (self.bl(uu + 4, 2, vT + 6, rWS, T0, 0, 'sc1'), self.bl(uu, 4, vL16, rWS, T1, 0, 'sc1')), [uu + 1, uu + 3, uu + 5], vT + 4, sel_work)
        a(f'ds_write2_b32 v{vT+2}, v{uu}, v{uu+2} offset0:0 offset1:1'); lg.issue()
        for ctl in ('quad_perm:[1,0,3,2]', 'quad_perm:[2,3,0,1]', 'row_half_mirror', 'row_ror:8'): self.dpp('v_add_f32', uu + 4, uu + 4, uu + 4, ctl)
        a(f"""v_cvt_pk_bf16_f32 v{uu+4}, 0, v{uu+4}
        v_ashrrev_i32 v{uu+5}, 31, v{uu+4}
        v_or_b32 v{uu+5}, 0x80000000, v{uu+5}
        v_xor_b32 v{uu+4}, v{uu+4}, v{uu+5}
        v_and_b32 v{uu+4}, s{sMASK}, v{uu+4}
        v_or_b32 v{uu+4}, s{T2}, v{uu+4}""")
        self.dw('ds_write_b32', vT + 3, uu + 4, 1)
        a('L_CSELD:')
        V.release(vFG); V.release(vFD); V.release(mf, 16); V.release(tb4, 4); V.release(cn, 2)
        a(f'v_mov_b32 v{vT}, {L_K3}')
        va(vT + 4, [(0, 4, 16), (5, 1, 8)])
        S(T1, 'fs*8192 + HGR'); S(T7, '(kq*8 + w)*256 + T1')
        self.barrier()
        self.stamp('xsel')
        self.r128(uu, vT)
        lg.wait_all()
        a(f"""v_max_u32 v{uu+4}, v{uu}, v{uu+1}
        v_max_u32 v{uu+5}, v{uu+2}, v{uu+3}
        v_min_u32 v{uu+6}, v{uu}, v{uu+1}
        v_min_u32 v{uu+7}, v{uu+2}, v{uu+3}
        v_min_u32 v{uu+1}, v{uu+4}, v{uu+5}
        v_max_u32 v{uu}, v{uu+4}, v{uu+5}
        v_max3_u32 v{uu+1}, v{uu+1}, v{uu+6}, v{uu+7}
        v_cndmask_b32 v{vT}, v{uu+1}, v{uu}, {sr(sCMP, 2)}
        v_readfirstlane_b32 s{sK1}, v{uu}
        v_and_b32 v{vT}, 3, v{vT}
        v_readfirstlane_b32 s{sK2}, v{uu+1}
        v_lshl_add_u32 v{vT}, v{vT}, 9, v{vXs}""")
        self.r128(uu + 4, vT)
        for q in range(2): self.r128(op + 4 * q, vOT, q * 8 * 144, 'ot')
        a(f"""s_bfe_u32 s{sROW0}, s{sK1}, {3 | (11 << 16)}
        s_bfe_u32 s{sROW1}, s{sK2}, {3 | (11 << 16)}
        s_sub_u32 s{sROW0}, 2047, s{sROW0}
        s_sub_u32 s{sROW1}, 2047, s{sROW1}
        s_waitcnt lgkmcnt(2)""")
        gd = [x1 + 4 * i for i in range(4)] + [hh + 4 * i for i in range(4)]
        for s in range(8):
            a(f'v_mfma_f32_16x16x32_bf16 {vr(gd[s], 4)}, {vr(uu + 4, 4)}, {vr(ffn + 4*s, 4)}, 0')
        p0, p1 = uu, uu + 2
        for p, b in ((p0, 0), (p1, 4)):
            a(f'v_add_f32 v{p}, v{gd[b]}, v{gd[b+1]+1}')
            a(f'v_add_f32 v{p+1}, v{gd[b+2]+2}, v{gd[b+3]+3}')
        a(f"""v_add_f32 v{p0}, v{p0}, v{p0+1}
        v_add_f32 v{p1}, v{p1}, v{p1+1}
        v_mov_b32 v{p0+1}, s{sTAG}
        v_permlane16_swap_b32 v{p1}, v{p1+1}
        s_cmp_ge_u32 s{sJ}, 28
        s_cbranch_scc1 L_NOHP
        v_add_f32 v{p0}, v{p0}, v{p1+1}
        s_mov_b32 exec_lo, 0xffff
        s_mov_b32 exec_hi, 0xffff""")
        self.bs(p0, 2, vT + 4, rWS, T7, 0, 'sc1', count=False)
        a("""s_mov_b64 exec, -1
        L_NOHP:""")
        self.stamp('Hpub')
        vOr = V.alloc(); vOa = V.alloc()
        def out_store():
            S(T0, 'rt*128 + w*16'); va(vOr, [(3, 3, 1)], T0)
            S(T2, 'T0*2048 + cb*128'); S(T3, 'T2 + 16384')
            va(vOa, [(3, 3, 2048), (0, 3, 16)])
            for q in range(2):
                if q: a(f'v_add_u32 v{vOr}, 8, v{vOr}')
                a(f"""v_cmp_ne_u32 vcc, s{sROW0}, v{vOr}
                v_cmp_ne_u32 {sr(sCMP, 2)}, s{sROW1}, v{vOr}
                s_and_b64 exec, vcc, {sr(sCMP, 2)}""")
                self.bs(op + 4 * q, 4, vOa, rOUT, (T2, T3)[q], 0, o.get('outmod', ''), count=False)
                a('s_mov_b64 exec, -1')
        lg.wait('ot')
        if o.get('outat', 1) == 0: out_store()
        fz = V.alloc(4)
        sFR, sFK, sFC0 = T4, T5, T6
        a(f"""s_bitcmp1_b32 s{sRT}, 2
        s_cselect_b32 s{sFR}, s{sROW1}, s{sROW0}
        s_cselect_b32 s{sFK}, s{sK2}, s{sK1}
        s_cmp_lg_u32 s{sWAVE}, 7
        s_cbranch_scc1 L_NOFZ
        s_cmp_lg_u32 s2, 0
        s_cbranch_scc1 L_NONON
        v_mov_b32 v{vT+2}, s{sTAG}
        s_mov_b64 exec, 1""")
        self.bs(vT + 2, 1, vZ, rWS, '0', 0, 'sc1', count=False)
        a(f"""s_mov_b64 exec, -1
        L_NONON:""")
        S(sFC0, '(rt >> 3)*2 + (rt & 1)')
        S(T7, '(cb*8 + (rt >> 2)*2 + (rt & 1))*(56*128) + GGR')
        S(sU, 'T4*2048 + cb*128 + T6*32')
        va(vT + 6, [(0, 3, 4)])
        S(T0, 'T6*32 + L_GB'); a(f'v_add_u32 v{vT+1}, s{T0}, v{vT+6}')
        a(f'ds_read_b32 v{fz+2}, v{vT+1}')
        S(sK1, '((T4 >> 7)*2 + ((T5 >> 2) & 1))*16384 + cb*256 + T6*64 + CAND'); S(sK2, 'k1 + 4096')
        va(vT + 7, [(0, 3, 8)])
        ld_fz = lambda: (self.bl(st, 2, vT + 7, rWS, sK1, 0, 'sc1'), self.bl(fz, 2, vT + 7, rWS, sK2, 0, 'sc1'))
        q_ = list(vm.q); ld_fz(); vm.q = q_
        a(f"""s_and_b32 s{T0}, s{sFK}, s{sMASK}
        s_ashr_i32 s{T2}, s{T0}, 31
        s_andn2_b32 s{T2}, 0x7fff0000, s{T2}
        s_or_b32 s{T2}, s{T2}, 0x80000000
        s_xor_b32 s{T0}, s{T0}, s{T2}
        v_mov_b32 v{fz+3}, s{T0}
        v_mul_f32 v{fz+3}, s{sL2E}, v{fz+3}
        v_exp_f32 v{fz+3}, -v{fz+3}
        v_add_f32 v{fz+3}, 1.0, v{fz+3}
        v_rcp_f32 v{fz+3}, v{fz+3}""")
        self.round1(fz + 3)
        a(f"""L_NOFZ:
        s_cmp_ge_u32 s{sJ}, 28
        s_cbranch_scc1 L_GSEC""")
        a(f"""s_cmp_ge_u32 s{sWAVE}, 4
        s_cbranch_scc1 L_NOH""")
        S(T0, 'w*256 + T1')
        va(vT, [(4, 2, 2048), (0, 4, 16)])
        S(T2, 'w*32 + L_ACT'); va(vT + 1, [(5, 1, 128), (2, 1, 16), (1, 1, 8), (3, 1, 4), (0, 1, 2)], T2)
        self.spoll([(q, 1, T0, q * 2048 + 1024 + 252) for q in range(4)], range(4))
        self.stamp('Hpre')
        g, u = x1, x1 + 4
        self.poll(lambda: [self.bl(x1 + 4 * m, 4, vT, rWS, T0, m * 1024, 'sc1') for m in range(2)], [g + 1, g + 3, u + 1, u + 3], vT + 2)
        a(f"""v_permlane32_swap_b32 v{g}, v{g+2}
        v_permlane32_swap_b32 v{u}, v{u+2}
        v_add_f32 v{g}, v{g}, v{g+2}
        v_add_f32 v{u}, v{u}, v{u+2}
        v_mov_b32 v{g+2}, v{g}
        v_mov_b32 v{u+2}, v{u}
        v_permlane16_swap_b32 v{g}, v{g+2}
        v_permlane16_swap_b32 v{u}, v{u+2}
        v_add_f32 v{g}, v{g}, v{g+2}
        v_add_f32 v{u}, v{u}, v{u+2}""")
        self.round2(g, u)
        self.silu(g, vT + 2)
        a(f"""v_mul_f32 v{g}, v{g}, v{u}
        v_cvt_pk_bf16_f32 v{g}, v{g}, v{g}
        ds_write_b16 v{vT+1}, v{g}
        L_NOH:""")
        va(vT, [(2, 1, 128), (5, 1, 16)], None, L_ACT)
        va(vT + 1, [(4, 2, 56 * 128), (0, 4, 8)])
        va(vT + 2, [(0, 1, 64 * 4096), (1, 1, 2 * 4096)])
        S(T0, '(kq*8 + w)*(4*56*128) + fs*128 + GGR')
        S(T1, '(((kq & 1)*4 + (w >> 1))*8 + (w & 1)*4 + (kq >> 1))*4096 + x*64 + (j >> 2)*4 + INB + 3072')
        vm.wait_all()
        self.barrier()
        self.stamp('Hok')
        for s in range(4):
            self.r128(x1 + 4 * s, vT, s * 32, ('ac', s))
            self.tr(ffn + 32 + 4 * s, vDr, s * 8192, ('ac', s)); self.tr(ffn + 32 + 4 * s + 2, vDr, s * 8192 + 1024, ('ac', s))
        for s in range(4):
            lg.wait(('ac', s))
            a(f'v_mfma_f32_32x32x16_bf16 {vr(hh, 16)}, {vr(x1 + 4*s, 4)}, {vr(ffn + 32 + 4*s, 4)}, ' + ('0' if s == 0 else vr(hh, 16)))
        a(f'v_mov_b32 v{hh+1}, s{sTAG}')
        self.bs(hh, 2, vT + 1, rWS, T0, 0, 'sc1')
        a('s_mov_b64 exec, 15')
        self.bs(hh + 1, 1, vT + 2, rWS, T1, 0, 'sc1')
        a('s_mov_b64 exec, -1')
        self.stamp('Gpub')
        a('L_GSEC:')
        if o.get('outat', 1) == 1: out_store()
        a(f"""s_cmp_ge_u32 s{sJ}, 16
        s_cbranch_scc1 L_FIN""")
        self.inbox(6, 8, range(7))
        self.stamp('Gpre')
        a(f"""s_barrier
        s_cmp_lg_u32 s{sWAVE}, 7
        s_cbranch_scc1 L_FIN""")
        S(T0, 'T7 + 4096')
        gg = [x1 + 4 * i for i in range(4)] + [uu + 4 * i for i in range(3)]
        self.poll(lambda: [self.bl(gg[n], 4, vL16, rWS, (T7, T0)[n >> 2], (n & 3) * 1024, 'sc1') for n in range(7)],
                  [gg[n] + 1 + 2 * e for n in range(7) for e in range(2)], vT)
        self.finish_load(None, ld_fz, [st + 1, fz + 1], vT)
        self.stamp('Gok')
        for n in range(1, 7):
            for e in (0, 2): a(f'v_add_f32 v{gg[0]+e}, v{gg[0]+e}, v{gg[n]+e}')
        y0, y1 = gg[0], gg[0] + 1
        a(f'v_mov_b32 v{y1}, v{gg[0]+2}')
        for y in (y0, y1): self.dpp('v_add_f32', y, y, y, 'row_ror:8')
        for sw in ('v_permlane16_swap_b32', 'v_permlane32_swap_b32'):
            for y in (y0, y1): a(f'v_mov_b32 v{y+2}, v{y}')
            for y in (y0, y1): a(f'{sw} v{y}, v{y+2}')
            self.pk('add', y0, y0, y0 + 2)
        self.round2(y0, y1)
        self.pk('mul', y0, y0, fz + 3, bc=(1,))
        self.unpack(vT, vT + 1, st)
        self.round2(y0, y1)
        self.pk('add', y0, y0, vT)
        self.unpack(vT, vT + 1, fz + 2)
        self.round2(y0, y1)
        self.pk('mul', y0, y0, vT)
        self.unpack(vT, vT + 1, fz)
        self.round2(y0, y1)
        self.pk('add', y0, y0, vT)
        a(f'v_cvt_pk_bf16_f32 v{y0}, v{y0}, v{y1}')
        a('s_mov_b64 exec, 0xff')
        self.bs(y0, 1, vT + 6, rOUT, sU, 0, 'sc1')
        a('s_mov_b64 exec, -1')
        a('L_FIN:')
        if self.prof:
            a('s_waitcnt vmcnt(0) lgkmcnt(0)')
            self.stamp('end')
            a(f's_memrealtime {sr(sTM, 2)}')
            a('s_waitcnt lgkmcnt(0)')
            a(f'v_writelane_b32 v255, s{sTM}, 61')
            S(T0, '(wg*8 + w)*256 + STAMPS')
            a(f'v_writelane_b32 v255, s{sSPIN}, 62')
            a(f'v_lshlrev_b32 v{vT+1}, 2, v{vL}')
            a(f'buffer_store_dword v255, v{vT+1}, {sr(rWS, 4)}, s{T0} offen')
            S(T0, 'T0 + 0x100000')
            a(f'buffer_store_dword v254, v{vT+1}, {sr(rWS, 4)}, s{T0} offen')
        a('L_END:')
        a('s_endpgm')
        return self

    def text(self):
        a = self.a
        npad = a.fix_hazards()
        errs = a.check_waits([NAME])
        for e in errs: print('WAITERR', e, file=sys.stderr)
        assert not errs
        hdr = open(os.path.join(os.path.dirname(os.path.abspath(__file__)), 'header.txt')).read()
        s = hdr + '; @launch grid=(256,1,1) block=(512,1,1) lds=163840\n'
        s += '.amdgcn_target "amdgcn-amd-amdhsa--gfx950"\n.text\n'
        s += f'.globl {NAME}\n.p2align 8\n.type {NAME},@function\n'
        body = a.text()
        import subprocess, tempfile
        with tempfile.TemporaryDirectory() as td:
            open(td + '/t.s', 'w').write('.amdgcn_target "amdgcn-amd-amdhsa--gfx950"\n.text\n' + body.replace('CODE_KB', '20480'))
            subprocess.run(['clang', '-x', 'assembler', '-target', 'amdgcn-amd-amdhsa', '-mcpu=gfx950', '-c', td + '/t.s', '-o', td + '/t.o'], check=True)
            subprocess.run(['llvm-objcopy', '-O', 'binary', '-j', '.text', td + '/t.o', td + '/t.bin'], check=True)
            size = os.path.getsize(td + '/t.bin')
        print('; code bytes', size, file=sys.stderr)
        s += body.replace('CODE_KB', str((size // 1024 + 1) * 1024))
        s += '.p2align 10\n.fill 768, 4, 0xbf800000\n'
        s += '.section .rodata,"a"\n' + kernel_desc(NAME, 256, 102)
        print(f'; vgpr hi {self.V.hi}, nops {npad}, instrs {sum(1 for k, _ in a.items if k == "ins")}', file=sys.stderr)
        return s


if __name__ == '__main__':
    import argparse, json
    ap = argparse.ArgumentParser()
    ap.add_argument('-o', default='/dev/stdout')
    ap.add_argument('--prof', action='store_true')
    ap.add_argument('--opts', default='{}')
    args = ap.parse_args()
    g = Gen(args.prof, json.loads(args.opts)).build()
    t = g.text()
    open(args.o, 'w').write(t)
    if args.prof: open(args.o + '.stamps', 'w').write(json.dumps(g.stnames))
```

```python
import sys, os
sys.path.insert(0, os.path.dirname(os.path.abspath(__file__)))
from asm import *

NAME = 'adaLN_cond__linear_kernel_hedgehog__moe_arch_mod__prompt_kernel'

NONCE = 0x0
GR = 0x010000
MODP2 = 0x020000
SINB = 0x040000
AINB = 0x080000
INA = 0x200000
INB = 0x100000
HF = 0x400000
OF = 0x800000
STAT = 0xC00000
CAND = 0x2000000
HGR = 0x1400000
ZP = 0x1480000
GGR = 0x1500000
KVP = 0x1800000
KIN = 0x1C00000
STAMPS = 0x1600000
WS_BYTES = 268435456

SLOT = 24576
SCR = 147456
L_A1 = SCR
L_M2 = SCR + 2048
L_WPHI = SCR + 12288
L_ST = SCR + 6144
L_MP = SCR + 8192
L_XF = SCR
L_PHK = 0
L_V = 32768
WO_H0 = 32768
WO_H1 = 98304
GS = 0
L_KVF = GS
L_ZF = GS + 8192
L_EXCH = GS
L_MT = GS + 12288
L_GU = 32768
L_DN = 98304
TS = 131072
L_SP = TS
L_ST2 = TS + 4096
L_K1 = TS + 5120
L_K2 = TS + 5184
L_K3 = TS + 5312
L_XS = TS + 5632
L_ACT = TS + 7680
L_TB = TS + 7936
L_GB = L_TB + 256
L_OT = TS + 8704
L_XT = GS

SPIN_LIMIT = 300000

sWAVE, sTAG, sSPIN, sMASK, sL2E = 3, 4, 5, 6, 7
sX, sJ, sR1, sHP, sCB = 8, 9, 10, 11, 12
T0, T1, T2, T3, T4, T5, T6, T7 = 13, 14, 15, 16, 17, 18, 19, 20
sRT = 21
sCMP = 22
sPL = 24
rWS, rX, rW, rWO, rWM, rWG, rWU, rWD, rOUT = 32, 36, 40, 44, 48, 52, 56, 60, 64
KA = 68
pWPHI, pWR, pC = KA + 4, KA + 10, KA + 18
sK1, sK2, sROW0, sROW1, sFS, sKQ, sKH, sKF = 68, 69, 70, 71, 74, 75, 76, 77
sFG, sFD, sU, sROT, sWB, sU0 = 80, 81, 82, 83, 84, 85
sWO2, sW1K, sMF = 88, 89, 90
sINB, sRow, sGTB, sC32 = 92, 93, 94, 95
sXC = 94
pDBG = 30
pDB2 = 90
sLOC = 93
XT = (96, 97, 98, 99)
sTM = 100
ENV = dict(wg=2, w=sWAVE, x=sX, j=sJ, r1=sR1, hp=sHP, cb=sCB, rt=sRT, row=sRow, gtb=sGTB, c32=sC32, kh=sKH, kf=sKF, fs=sFS, kq=sKQ,
           rot=sROT, wb=sWB, u0=sU0, wo2=sWO2, w1k=sW1K, mf=sMF, u=sU, fg=sFG, fd=sFD, T0=T0, T1=T1, T2=T2, T3=T3, T4=T4, T5=T5, T6=T6, T7=T7, row0=sROW0, row1=sROW1, k1=sK1)


class Gen:
    def __init__(self, prof=False, opts=None):
        self.a = Asm()
        self.vm = Counter(self.a, 'vmcnt', 63)
        self.lg = Counter(self.a, 'lgkmcnt', 15)
        self.V = RegAlloc(254, 1)
        self.prof = prof
        self.nopk = False
        self.nst = 0
        self.stnames = []
        self.S = SExpr(self.a, ENV, {k: v for k, v in globals().items() if isinstance(v, int) and k.isupper() and k not in ENV}, XT)
        self.o = dict(AD=12, AD2=4, wburst=(0, 3, 0, 0, 3, 3), wxor=3, LASTB=13,
                      sched={1: 'm1 p2', 2: 's4', 3: 'm1 s4', 4: 'p2', 5: 'm1 g2', 7: 'm1 h g2 p3', 9: 'g2', 10: 'g2', 11: 'r', 12: 'P', 14: 'o4 f4', 15: 'f2'}, fdma=(3, 0, 1, 1, 1), wowin=(6, 0, 2))
        if opts: self.o.update(opts)

    def bl(self, dst, n, voff, srd, soff, imm=0, mods='', tag=None):
        op = {1: 'dword', 2: 'dwordx2', 4: 'dwordx4'}[n]
        so = soff if isinstance(soff, str) else (sr(soff))
        self.a(f'buffer_load_{op} {vr(dst, n)}, v{voff}, {sr(srd, 4)}, {so} offen' + (f' offset:{imm}' if imm else '') + (' ' + mods if mods else ''))
        self.vm.issue(tag)
    def bs(self, src, n, voff, srd, soff, imm=0, mods='', tag=None, count=True):
        op = {1: 'dword', 2: 'dwordx2', 4: 'dwordx4'}[n]
        so = soff if isinstance(soff, str) else (sr(soff))
        self.a(f'buffer_store_{op} {vr(src, n)}, v{voff}, {sr(srd, 4)}, {so} offen' + (f' offset:{imm}' if imm else '') + (' ' + mods if mods else ''))
        if count: self.vm.issue(tag)
    def bs2(self, items):
        a = self.a
        LL, D = a.label('LOC'), a.label('LOCD')
        a(f's_cmp_lg_u32 s{sLOC}, 0')
        a(f's_cbranch_scc1 {LL}')
        for src, n, voff, soff, imm in items: self.bs(src, n, voff, rWS, soff, imm, 'sc1', count=False)
        a(f's_branch {D}')
        a(f'{LL}:')
        for src, n, voff, soff, imm in items: self.bs(src, n, voff, rWS, soff, imm, '', count=False)
        a(f'{D}:')
    def dma(self, voff, srd, soff, imm=0, mods='', tag=None):
        self.a(f'buffer_load_dwordx4 v{voff}, {sr(srd, 4)}, {sr(soff)} offen' + (f' offset:{imm}' if imm else '') + (' ' + mods if mods else '') + ' lds')
        self.vm.issue(tag)
    def dr(self, op, dst, n, addr, off=0, tag=None):
        assert 0 <= off < 65536, off
        self.a(f'{op} {vr(dst, n)}, v{addr}' + (f' offset:{off}' if off else ''))
        self.lg.issue(tag)
    def tr(self, dst, addr, off, tag=None): self.dr('ds_read_b64_tr_b16', dst, 2, addr, off, tag)
    def r128(self, dst, addr, off=0, tag=None): self.dr('ds_read_b128', dst, 4, addr, off, tag)
    def dw(self, op, addr, src, n, off=0, tag=None):
        assert 0 <= off < 65536, off
        self.a(f'{op} v{addr}, {vr(src, n)}' + (f' offset:{off}' if off else ''))
        self.lg.issue(tag)
    def barrier(self):
        self.lg.wait_all()
        self.a('s_barrier')
    def stamp(self, name):
        ex = self.o.get('exfil')
        if ex and name in ex[:2]:
            self.a(f's_memrealtime {sr(sTM, 2)}')
            self.lg.wait_all()
            self.a(f'v_writelane_b32 v255, s{sTM}, {1 + ex.index(name)}')
        if not self.prof: return
        only = self.o.get('only')
        if only and name not in only and name != 'end': return
        self.a(f's_memtime {sr(sTM, 2)}')
        self.a(f's_memrealtime s[0:1]')
        self.lg.wait_all()
        self.a(f'v_writelane_b32 v255, s{sSPIN if self.o.get("spinst") and self.nst > 3 else sTM}, {self.nst}')
        self.a(f'v_writelane_b32 v254, s0, {self.nst}')
        self.stnames.append(name)
        self.nst += 1
        assert self.nst <= 60
    def unpack(self, lo, hi, src):
        self.a(f'v_lshlrev_b32 v{lo}, 16, v{src}')
        self.a(f'v_and_b32 v{hi}, s{sMASK}, v{src}')
    def round1(self, r):
        self.a(f'v_cvt_pk_bf16_f32 v{r}, 0, v{r}')
    def round2(self, r0, r1):
        self.round1(r0); self.round1(r1)
    def round_list(self, regs):
        for r in regs: self.round1(r)
    def pk(self, op, d, s0, s1, s2=None, bc=(), neg=()):
        srcs = [s0, s1] + ([s2] if s2 is not None else [])
        if self.nopk:
            for h in range(2):
                t = []
                for k, r in enumerate(srcs):
                    kind, n = r if isinstance(r, tuple) else ('v', r)
                    t.append(('-' if k in neg else '') + f'{kind}{n if k in bc else n + h}')
                e64 = '' if op == 'fma' else ('_e64' if (neg or t[1][0] == 's') else '')
                self.a(f'v_{op}_f32{e64} v{d+h}, ' + ', '.join(t))
            return
        txt, sel, selhi = [], [], []
        for k, r in enumerate(srcs):
            kind, n = r if isinstance(r, tuple) else ('v', r)
            if k in bc:
                txt.append(f'{kind}[{n & ~1}:{(n & ~1) + 1}]'); sel.append(n & 1); selhi.append(n & 1)
            else:
                assert n % 2 == 0
                txt.append(f'{kind}[{n}:{n+1}]'); sel.append(0); selhi.append(1)
        assert d % 2 == 0
        m = ''
        if any(sel): m += ' op_sel:[' + ','.join(map(str, sel)) + ']'
        if not all(selhi): m += ' op_sel_hi:[' + ','.join(map(str, selhi)) + ']'
        if neg:
            ng = ','.join('1' if k in neg else '0' for k in range(len(srcs)))
            m += f' neg_lo:[{ng}] neg_hi:[{ng}]'
        self.a(f'v_pk_{op}_f32 v[{d}:{d+1}], ' + ', '.join(txt) + m)
    def dpp(self, op, d, s0, s1, ctl):
        self.a(f'{op}_dpp v{d}, v{s0}, v{s1} {ctl} row_mask:0xf bank_mask:0xf')
    def allreduce(self, v, t, op='v_add_f32', lo=True, b3=True):
        if lo:
            self.dpp(op, v, v, v, 'quad_perm:[1,0,3,2]')
            self.dpp(op, v, v, v, 'quad_perm:[2,3,0,1]')
            self.dpp(op, v, v, v, 'row_half_mirror')
        self.dpp(op, v, v, v, 'row_ror:8')
        self.a(f'v_mov_b32 v{t}, v{v}')
        self.a(f'v_permlane16_swap_b32 v{v}, v{t}')
        self.a(f'{op} v{v}, v{v}, v{t}')
        self.a(f'v_mov_b32 v{t}, v{v}')
        self.a(f'v_permlane32_swap_b32 v{v}, v{t}')
        self.a(f'{op} v{v}, v{v}, v{t}')
    def poll(self, loads, tagregs, tmp=None):
        a = self.a
        L, D = a.label('POLL'), a.label('PDONE')
        a(f'{L}:')
        loads()
        self.vm.wait_all()
        self.tagcheck(tagregs, tmp)
        a(f's_cbranch_vccz {D}')
        a(f's_add_u32 s{sSPIN}, s{sSPIN}, 1')
        a(f's_cmp_lt_u32 s{sSPIN}, {SPIN_LIMIT}')
        a(f's_cbranch_scc1 {L}')
        a(f'{D}:')
    def weave(self, fn, extras):
        a = self.a
        keep = a.items; a.items = []
        fn()
        body = a.items; a.items = keep
        extras = list(extras); n = len(extras)
        for i, it in enumerate(body):
            while extras and (n - len(extras)) * len(body) <= i * n: extras.pop(0)()
            a.items.append(it)
        for e in extras: e()
    def tagcheck(self, tagregs, tmp):
        a = self.a
        if isinstance(tagregs[0], tuple):
            for t, sg in tagregs: a(f'v_xor_b32 v{t}, s{sg}, v{t}')
            r = [t for t, _ in tagregs]
            a(f'v_or3_b32 v{tmp}, v{r[0]}, v{r[1]}, v{r[2]}')
            for i in range(3, len(r), 2): a(f'v_or3_b32 v{tmp}, v{tmp}, v{r[i]}, v{r[min(i + 1, len(r) - 1)]}')
            a(f'v_and_b32 v{tmp}, 0xff, v{tmp}')
            a(f'v_cmp_ne_u32 vcc, 0, v{tmp}')
        elif len(tagregs) == 1:
            a(f'v_cmp_ne_u32 vcc, s{sTAG}, v{tagregs[0]}')
        else:
            a(f'v_bitop3_b32 v{tmp}, v{tagregs[0]}, v{tagregs[1]}, s{sTAG} bitop3:0x7e')
            for t in tagregs[2:]: a(f'v_bitop3_b32 v{tmp}, v{tmp}, v{t}, s{sTAG} bitop3:0xf6')
            a(f'v_cmp_ne_u32 vcc, 0, v{tmp}')
    def try_load(self, loads, tagregs, tmp=None, between=None, pre=None):
        a = self.a
        n0 = len(self.vm.q)
        loads()
        self.vm.q[-1] = tg = ('try', a.label('T'))
        if between: between()
        self.vm.wait(tg)
        OK = a.label('TOK')
        self.tagcheck(tagregs, tmp)
        a(f's_cbranch_vccz {OK}')
        q, l = list(self.vm.q), list(self.lg.q)
        if pre: pre()
        self.poll(loads, tagregs, tmp)
        self.vm.q, self.lg.q = q, l
        a(f'{OK}:')
    def finish_load(self, tg, loads, tagregs, tmp=None, pre=None):
        a = self.a
        self.vm.wait(tg)
        OK = a.label('TOK')
        self.tagcheck(tagregs, tmp)
        a(f's_cbranch_vccz {OK}')
        q, l = list(self.vm.q), list(self.lg.q)
        if pre: pre()
        self.poll(loads, tagregs, tmp)
        self.vm.q, self.lg.q = q, l
        a(f'{OK}:')
    def spoll(self, loads, checks, work=None, pipe=0):
        a = self.a
        L, C, D = a.label('SPOLL'), a.label('SCHK'), a.label('SDONE')
        def issue(note=''):
            for d, n, so, imm in loads:
                op = {1: 'dword', 2: 'dwordx2', 4: 'dwordx4', 8: 'dwordx8'}[n]
                a(f's_load_{op} {sr(sPL + d, n)}, {sr(rWS, 2)}, s{so} offset:{imm} glc' + note)
        if pipe:
            self.lg.wait_all()
            for k in checks: a(f's_not_b32 s{sPL + k}, s{sTAG}')
            issue(' ; nowait')
            if work: work()
            a(f'{L}:')
            a(f's_add_u32 s{sSPIN}, s{sSPIN}, 1')
            a(f's_cmp_ge_u32 s{sSPIN}, {SPIN_LIMIT}')
            a(f's_cbranch_scc1 {D}')
            ks = list(checks)
            a(f's_xor_b32 s{XT[0]}, s{sPL + ks[0]}, s{sTAG} ; nowait')
            for k in ks[1:]:
                a(f's_xor_b32 s{XT[1]}, s{sPL + k}, s{sTAG} ; nowait')
                a(f's_or_b32 s{XT[0]}, s{XT[0]}, s{XT[1]}')
            a(f's_cbranch_scc0 {D}')
            issue(' ; nowait')
            a(f's_sleep {pipe}')
            a(f's_branch {L}')
            a(f'{D}:')
            return
        if work:
            issue(); work()
            a(f's_branch {C}')
        a(f'{L}:')
        issue()
        a(f'{C}:')
        a(f's_add_u32 s{sSPIN}, s{sSPIN}, 1')
        a(f's_cmp_ge_u32 s{sSPIN}, {SPIN_LIMIT}')
        self.lg.wait_all()
        a(f's_cbranch_scc1 {D}')
        for k in checks:
            a(f's_cmp_lg_u32 s{sPL + k}, s{sTAG}')
            a(f's_cbranch_scc1 {L}')
        a(f'{D}:')
    def inbox(self, box, n, checks=None, work=None, pipe=0):
        self.spoll([(0, n, sINB, box * 512)], range(n) if checks is None else checks, work, pipe)
    def va(self, dst, terms, sreg=None, const=0, tmp=None):
        a = self.a; vL = self.vL
        first = True
        for sh, bits, mult in terms:
            full = sh + bits >= 6
            src = vL
            t = dst if first else tmp
            if sh == 0 and full: pass
            elif full: a(f'v_lshrrev_b32 v{t}, {sh}, v{vL}'); src = t
            elif sh == 0: a(f'v_and_b32 v{t}, {(1 << bits) - 1}, v{vL}'); src = t
            else: a(f'v_bfe_u32 v{t}, v{vL}, {sh}, {bits}'); src = t
            p2 = mult & (mult - 1) == 0
            k = mult.bit_length() - 1
            if first:
                if p2 and sreg is not None: a(f'v_lshl_add_u32 v{dst}, v{src}, {k}, s{sreg}'); sreg = None
                elif p2 and k: a(f'v_lshlrev_b32 v{dst}, {k}, v{src}')
                elif p2:
                    if src != dst: a(f'v_mov_b32 v{dst}, v{src}')
                else: a(f'v_mul_u32_u24 v{dst}, {mult}, v{src}')
            else:
                assert p2
                a(f'v_lshl_add_u32 v{dst}, v{src}, {k}, v{dst}')
            first = False
        if sreg is not None: a(f'v_add_u32 v{dst}, s{sreg}, v{dst}')
        if const: a(f'v_add_u32 v{dst}, {const}, v{dst}')
    def push(self, vaddr, soff, nl, vtmp, lab, wave=0):
        a = self.a
        a(f's_cmp_lg_u32 s{sWAVE}, {wave}')
        a(f's_cbranch_scc1 {lab}')
        a(f'v_mov_b32 v{vtmp}, s{sTAG}')
        a(f's_mov_b32 exec_hi, 0')
        if nl < 32: a(f's_mov_b32 exec_lo, {(1 << nl) - 1}')
        self.bs(vtmp, 1, vaddr, rWS, soff, 0, 'sc1', count=False)
        a('s_mov_b64 exec, -1')
        a(f'{lab}:')
    def silu(self, v, t):
        a = self.a
        a(f'v_mul_f32 v{t}, s{sL2E}, v{v}')
        a(f'v_exp_f32 v{t}, -v{t}')
        a(f'v_add_f32 v{t}, 1.0, v{t}')
        a(f'v_rcp_f32 v{t}, v{t}')
        a(f'v_mul_f32 v{v}, v{v}, v{t}')
        self.round1(v)
    def gemv_ops(self, wregs, cregs, acc, t0, t1, packed):
        ops = []
        assert t0 % 2 == 0 and t1 == t0 + 1
        for i, (w, c) in enumerate(zip(wregs, cregs)):
            cp = f'v[{c & ~1}:{(c & ~1) + 1}]'
            for d in range(4):
                tt = t0 + 2 * (d & 1)
                ops.append(f'v_lshlrev_b32 v{tt}, 16, v{w+d}')
                ops.append(f'v_and_b32 v{tt+1}, s{sMASK}, v{w+d}')
                ac = f'v[{acc+2*d}:{acc+2*d+1}]'
                if not packed:
                    for h in range(2): ops.append(f'v_mul_f32 v{acc+2*d+h}, v{tt+h}, v{c}' if i == 0 else f'v_fmac_f32 v{acc+2*d+h}, v{tt+h}, v{c}')
                elif i == 0: ops.append(f'v_pk_mul_f32 {ac}, v[{tt}:{tt+1}], {cp} op_sel:[0,{c & 1}] op_sel_hi:[1,{c & 1}]')
                else: ops.append(f'v_pk_fma_f32 {ac}, v[{tt}:{tt+1}], {cp}, {ac} op_sel:[0,{c & 1},0] op_sel_hi:[1,{c & 1},1]')
        for i in range(4): ops.append(f'v_permlane32_swap_b32 v{acc+i}, v{acc+4+i}')
        for i in range(4): ops.append(f'v_add_f32 v{acc+i}, v{acc+i}, v{acc+4+i}')
        for i in range(2): ops.append(f'v_permlane16_swap_b32 v{acc+i}, v{acc+2+i}')
        for i in range(2): ops.append(f'v_add_f32 v{acc+i}, v{acc+i}, v{acc+2+i}')
        for i in range(2): ops.append(f'v_add_f32_dpp v{acc+i}, v{acc+i}, v{acc+i} row_ror:8 row_mask:0xf bank_mask:0xf')
        ops.append(f'v_mov_b32_dpp v{acc}, v{acc+1} quad_perm:[0,1,2,3] row_mask:0xf bank_mask:0xc')
        return ops
    def sum8(self, b):
        self.pk('add', b, b, b + 2); self.pk('add', b + 4, b + 4, b + 6); self.pk('add', b, b, b + 4)
        self.a(f'v_add_f32 v{b}, v{b}, v{b+1}')
    def softmax_pm(self, p, e, out, t, mid=None, part=0, split=0):
        a = self.a
        mx, mn, u0, u1, s0, s1 = t, t + 1, t + 2, t + 3, t + 4, t + 6
        if part != 2:
            self.round_list([p + i for i in range(16)])
            a(f'v_max3_f32 v{mx}, v{p}, v{p+1}, v{p+2}')
            a(f'v_min3_f32 v{mn}, v{p}, v{p+1}, v{p+2}')
            for i in range(3, 15, 2):
                a(f'v_max3_f32 v{mx}, v{mx}, v{p+i}, v{p+i+1}')
                a(f'v_min3_f32 v{mn}, v{mn}, v{p+i}, v{p+i+1}')
            a(f'v_max_f32 v{u0}, v{mx}, v{p+15}')
            a(f'v_min_f32 v{u1}, v{mn}, v{p+15}')
            a(f'v_max_f32 v{mx}, v{mx}, v{p+15}')
            a(f'v_min_f32 v{mn}, v{mn}, v{p+15}')
            a(f'v_permlane32_swap_b32 v{mx}, v{u0}')
            a(f'v_permlane32_swap_b32 v{mn}, v{u1}')
            a(f'v_max_f32 v{mx}, v{mx}, v{u0}')
            a(f'v_min_f32 v{mn}, v{mn}, v{u1}')
            self.pk('mul', mx, mx, ('s', sL2E), bc=(1,))
            for i in range(0, 16, 2):
                self.pk('fma', e + i, p + i, ('s', sL2E), mx, bc=(1, 2), neg=(2,))
                self.pk('fma', p + i, p + i, ('s', sL2E), mn, bc=(1, 2), neg=(0,))
        for i in range(split if part == 2 else 0, 16):
            if mid and i == mid[0]: mid[1]()
            if part == 1 and i == split: return
            a(f'v_exp_f32 v{e+i}, v{e+i}')
            a(f'v_exp_f32 v{p+i}, v{p+i}')
        self.pk('add', s0, e, e + 2); self.pk('add', s1, p, p + 2)
        for i in range(4, 16, 2):
            self.pk('add', s0, s0, e + i); self.pk('add', s1, s1, p + i)
        a(f'v_add_f32 v{u0}, v{s0}, v{s0+1}')
        a(f'v_add_f32 v{u1}, v{s1}, v{s1+1}')
        a(f'v_add_f32 v{mx}, v{s0}, v{s0+1}')
        a(f'v_add_f32 v{mn}, v{s1}, v{s1+1}')
        a(f'v_permlane32_swap_b32 v{mx}, v{u0}')
        a(f'v_permlane32_swap_b32 v{mn}, v{u1}')
        self.pk('add', mx, mx, u0)
        a(f'v_rcp_f32 v{mx}, v{mx}')
        a(f'v_rcp_f32 v{mn}, v{mn}')
        for i in range(0, 16, 2):
            self.pk('mul', e + i, e + i, mx, bc=(1,))
            self.pk('mul', p + i, p + i, mn, bc=(1,))
        for i in range(8):
            a(f'v_cvt_pk_bf16_f32 v{out+i}, v{e+2*i}, v{e+2*i+1}')
            a(f'v_cvt_pk_bf16_f32 v{out+8+i}, v{p+2*i}, v{p+2*i+1}')
    def ln_stats(self, xp, t, m_out, sd_out, fill=()):
        a = self.a
        fill = list(fill)
        def pad(n):
            for _ in range(n):
                if fill: a(fill.pop(0))
        s, u = t, t + 4
        a(f'v_mov_b32 v{u}, 0x3f803f80')
        for i in range(8):
            k = 2 * (i & 1)
            a(f'v_dot2_f32_bf16 v{s+k}, v{xp+i}, v{u}, ' + ('0' if i < 2 else f'v{s+k}'))
            a(f'v_dot2_f32_bf16 v{s+k+1}, v{xp+i}, v{xp+i}, ' + ('0' if i < 2 else f'v{s+k+1}'))
        pad(3)
        self.pk('add', s, s, s + 2)
        for ctl in ('quad_perm:[1,0,3,2]', 'quad_perm:[2,3,0,1]', 'row_half_mirror', 'row_ror:8'):
            pad(2 if ctl.endswith('3,2]') else 1)
            self.dpp('v_add_f32', s, s, s, ctl); self.dpp('v_add_f32', s + 1, s + 1, s + 1, ctl)
        pad(2)
        a(f'v_permlane16_swap_b32 v{s}, v{s+1}')
        a(f'v_add_f32 v{u}, v{s}, v{s+1}')
        a(f'v_add_f32 v{s}, v{s}, v{s+1}')
        pad(2)
        a(f'v_permlane32_swap_b32 v{s}, v{u}')
        a(f'v_add_f32 v{s}, v{s}, v{u}')
        a(f'v_mul_f32 v{u}, 0x3a800000, v{s}')
        a(f'v_mul_f32 v{s}, 0x3a800000, v{s}')
        pad(2)
        a(f'v_permlane16_swap_b32 v{s}, v{u}')
        a(f'v_fma_f32 v{sd_out}, -v{s}, v{s}, v{u}')
        a(f'v_cvt_pk_bf16_f32 v{m_out}, 0, v{s}')
        a(f'v_max_f32 v{sd_out}, 0, v{sd_out}')
        self.round1(sd_out)
        a(f'v_add_f32 v{sd_out}, 0x3727c5ac, v{sd_out}')
        self.round1(sd_out)
        a(f'v_sqrt_f32 v{sd_out}, v{sd_out}')
        pad(99)
        self.round1(sd_out)

    def stat_math(self, s, u, m_out, sd_out):
        a = self.a
        a(f'v_fma_f32 v{sd_out}, -v{s}, v{s}, v{u}')
        a(f'v_cvt_pk_bf16_f32 v{m_out}, 0, v{s}')
        a(f'v_max_f32 v{sd_out}, 0, v{sd_out}')
        self.round1(sd_out)
        a(f'v_add_f32 v{sd_out}, 0x3727c5ac, v{sd_out}')
        self.round1(sd_out)
        a(f'v_sqrt_f32 v{sd_out}, v{sd_out}')
        self.round1(sd_out)
    def ln_stats2(self, x0, x1, t, m_out, sd_out):
        a = self.a
        s0, s1, q0, q1, u = t, t + 1, t + 2, t + 3, t + 4
        a(f'v_mov_b32 v{u}, 0x3f803f80')
        for i in range(8):
            for xx, s_, q_ in ((x0, s0, q0), (x1, s1, q1)):
                a(f'v_dot2_f32_bf16 v{s_}, v{xx+i}, v{u}, ' + ('0' if i == 0 else f'v{s_}'))
                a(f'v_dot2_f32_bf16 v{q_}, v{xx+i}, v{xx+i}, ' + ('0' if i == 0 else f'v{q_}'))
        a(f"""v_permlane32_swap_b32 v{s0}, v{s1}
        v_permlane32_swap_b32 v{q0}, v{q1}
        v_add_f32 v{s0}, v{s0}, v{s1}
        v_add_f32 v{q0}, v{q0}, v{q1}
        v_permlane16_swap_b32 v{s0}, v{q0}
        v_add_f32 v{s0}, v{s0}, v{q0}""")
        for ctl in ('quad_perm:[1,0,3,2]', 'quad_perm:[2,3,0,1]', 'row_half_mirror', 'row_ror:8'): self.dpp('v_add_f32', s0, s0, s0, ctl)
        a(f"""v_mul_f32 v{q0}, 0x3a800000, v{s0}
        v_mul_f32 v{s0}, 0x3a800000, v{s0}
        v_permlane16_swap_b32 v{s0}, v{q0}""")
        self.stat_math(s0, q0, m_out, sd_out)

    def build(self):
        a, V, vm, lg, o, S = self.a, self.V, self.vm, self.lg, self.o, self.S
        E2 = range(0, 16, 2)
        TL = o.get('tl', 0)
        LCB = [(0, 4, 8 * 4096)] if TL else [(0, 3, 8 * 4096), (3, 1, 4096)]
        a(f'{NAME}:')
        a(f's_load_dwordx16 {sr(KA, 16)}, s[0:1], 0')
        a(f's_load_dwordx8 {sr(KA + 16, 8)}, s[0:1], 64')
        a(f's_load_dwordx2 {sr(rWS, 2)}, s[0:1], 104')
        a(f's_load_dwordx2 {sr(pDBG, 2)}, s[0:1], 96')
        a('s_cmp_ge_u32 s2, 256')
        a('s_cbranch_scc1 L_END')
        if self.prof:
            a(f's_memrealtime {sr(sCMP, 2)}')
            a(f's_memtime {sr(sTM, 2)}')
            a('v_mov_b32 v255, 0')
            a('v_mov_b32 v254, 0')
            self.stnames.append('start'); self.nst = 1
        vL = self.vL = V.alloc()
        vL16 = V.alloc()
        vZ = V.alloc()
        vT = V.alloc(8)
        va = lambda dst, terms, sreg=None, const=0: self.va(dst, terms, sreg, const, vT + 5)
        a(f"""v_lshrrev_b32 v{vT}, 6, v0
        v_and_b32 v{vL}, 63, v0
        v_mov_b32 v{vZ}, 0
        v_readfirstlane_b32 s{sWAVE}, v{vT}
        v_lshlrev_b32 v{vL16}, 4, v{vL}""")
        xr = V.alloc(8); acc = V.alloc(8); wphi = V.alloc(8); fr = V.alloc(8); vq = V.alloc(8); vv = V.alloc(8)
        vWM = V.alloc(); vCo = V.alloc(); vWd = V.alloc(); vL8 = V.alloc(); vL32S = V.alloc(); vGA = V.alloc()
        vB = V.alloc(6, 1); vFG = V.alloc(); vFD = V.alloc(); vWo = V.alloc(); vPW = V.alloc(); vXF = V.alloc()
        S(sX, 'wg & 7'); S(sJ, 'wg >> 3')
        S(T2, '(x*4 + w)*64')
        S(T0, 'T2*6144 + (j ^ 1)*128')
        va(vWM, [(3, 3, 4 * 12288), (0, 3, 16)])
        va(vCo, [(3, 3, 8)], T2)
        S(T3, '((x*32 + j)*4 + w - 4)*4096')
        for srd, size in ((rWM, 12582912), (rX, 4194304), (rWS, WS_BYTES)):
            a(f's_mov_b32 s{srd+2}, {size}')
            a(f's_mov_b32 s{srd+3}, 0x20000')
        a(f's_getreg_b32 s{sXC}, hwreg(HW_REG_XCC_ID, 0, 3)')
        if o.get('fakexcc') is not None: a(f's_and_b32 s{sXC}, s{sXC}, {o["fakexcc"]}')
        a(f"""s_getpc_b64 {sr(sCMP, 2) if not self.prof else sr(sPL, 2)}""")
        S(T6, '(j*7 + w)*128')
        va(vT + 6, [(5, 1, 28672)], T6)
        a(f"""v_min_u32 v{vT+6}, CODE_KB, v{vT+6}
        s_cmp_ge_u32 s{sWAVE}, 4
        s_waitcnt lgkmcnt(0)""")
        if self.prof:
            a(f'v_writelane_b32 v255, s{sTM}, 0')
            a(f'v_writelane_b32 v255, s{sCMP}, 63')
            a(f'v_writelane_b32 v254, s{sCMP}, 0')
            a(f's_mov_b64 {sr(sCMP, 2)}, {sr(sPL, 2)}')
        self.stamp('karg')
        raw = V.alloc(16); cv = V.alloc(4); vTk = V.alloc(2)
        xs = V.alloc(16); st = V.alloc(4); mq = V.alloc(4)
        a(f"""s_mov_b64 {sr(rWM, 2)}, {sr(KA + 20, 2)}
        s_mov_b64 {sr(rX, 2)}, {sr(KA, 2)}
        s_load_dword s{sTAG}, {sr(rWS, 2)}, {NONCE}
        s_cbranch_scc1 L_FS""")
        def setup():
            for srd, size in ((rW, 6291456), (rWO, 2097152), (rWG, 7340032), (rWU, 7340032), (rWD, 7340032), (rOUT, 4194304)):
                a(f's_mov_b32 s{srd+2}, {size}')
                a(f's_mov_b32 s{srd+3}, 0x20000')
            for srd, k in ((rW, 2), (rWO, 6), (rWG, 12), (rWU, 14), (rWD, 16), (rOUT, 22)):
                a(f's_mov_b64 {sr(srd, 2)}, {sr(KA + k, 2)}')
            a(f"""s_mov_b64 {sr(pDB2, 2)}, {sr(pDBG, 2)}
            s_mov_b32 s{sSPIN}, 0
            s_mov_b32 s{sMASK}, 0xffff0000
            s_mov_b32 s{sL2E}, 0x3fb8aa3b""")
            S(sKH, 'w >> 2')
            va(vT + 2, [(4, 1, 64)]); va(vWd, [(0, 3, 16)])
            a(f'v_xor_b32 v{vWd}, v{vWd}, v{vT+2}'); va(vT + 2, [(3, 3, 6144)]); a(f'v_add_u32 v{vWd}, v{vWd}, v{vT+2}')
            va(vL8, [(0, 6, 8)])
            a(f'v_add_u32 v{vL32S}, {SCR}, v{vL16}')
            S(T0, '(w & 3)*4 + SCR')
            va(vGA, [(4, 2, 32), (0, 3, 128), (3, 1, 16)], T0)
            S(T1, '((j >> 4)*128 + w*8 + x)*1024 + (j & 15)*64 + SINB' if TL else '((x & 6) + ((x & 1)*2 + (j >> 4))*64 + w*8)*1024 + (j & 15)*64 + SINB')
        def tag_hash():
            a(f"""s_mul_i32 s{sTAG}, s{sTAG}, 0x9e3779b1
            s_add_u32 s{sTAG}, s{sTAG}, 0x7f4a7c15""")
        def code_pf():
            a(f's_and_b32 s{sCMP}, s{sCMP}, 0xfffffc00')
            a(f'global_load_dword v{vTk}, v{vT+6}, {sr(sCMP, 2)}')
        wq = [(n, t) for n in range(16) for t in range(3)]
        def w_base(n, wexpr):
            if n < 4 and o.get('wxor', 1):
                if o.get('wxor', 1) < 3: S(T7, '((j >> 4)*2) ^ n' if o.get('wxor', 1) == 1 else o.get('wxe', '((j >> 4) + (x >> 2)*2) ^ n'), n=n)
                else:
                    S(T7, o.get('wxe', '(j >> 4) + (x >> 2)*2'))
                    if n: a(f's_cmp_le_u32 s{T7}, {n - 1}'); a(f's_cselect_b32 s{T7}, {n}, {n - 1}')
                S(sU, f'(((T7 + u0) & 15)*8 + {wexpr})*(8*6144) + hp*128')
                S(T7, f'T7*SLOT + ({wexpr})*1024')
            else:
                S(sU, f'(((u0 + n) & 15)*8 + {wexpr})*(8*6144) + hp*128', n=n)
                S(T7, f'({wexpr})*1024 + q', q=(n % 6) * SLOT)
        def w_slot(n, t):
            S('m0', 'T7 + q', q=t * 8192)
            self.dma(vWd, rW, sU, 0, o.get('wmod', ''), ('W', n))
            if t < 2: S(sU, 'u + 2048')
        def w_next(cnt=1):
            for _ in range(cnt):
                n, t = wq.pop(0)
                if t == 0: w_base(n, 'w')
                w_slot(n, t)
        wb = list(o['wburst'])
        def w_early():
            if not o.get('wearly'): return
            S(sHP, '(x & 3)*4 + ((j & 3) ^ q)', q=o.get('hpx', 2)); S(sU0, o.get('u0', 'j & 12'))
            w_next(o['wearly'])
        a(f'global_load_dwordx2 {vr(cv, 2)}, v{vCo}, {sr(pC, 2)}'); vm.issue('c')
        for i in range(4):
            self.bl(raw + 4 * i, 4, vWM, rWM, T0, 0, o.get('ntwm', 'nt'), ('wm', i))
            if i < 3: S(T0, 'T0 + 12288')
        a('s_barrier')
        if o.get('bar1', 1): a('s_barrier')
        code_pf(); vm.issue()
        setup()
        wq0 = list(wq); w_early(); wq[:] = wq0
        S(T0, '(((w*16 + ((j ^ 1) & 15))*2 + (j >> 4))*8 + x)*512 + AINB')
        S(T2, ('(((j ^ 1) & 15)*8 + w*2)*512' if TL else '(((j ^ 1) & 7)*8 + w*2 + ((j >> 3) & 1))*512') + ' + x*64 + (j >> 4)*4 + INA')
        va(vT + 6, [(0, 1, 128 * 512), (1, 1, 512)] if TL else [(0, 2, 64 * 512)])
        vm.wait('c')
        self.unpack(cv + 2, cv + 3, cv + 1)
        a(f'v_and_b32 v{cv+1}, s{sMASK}, v{cv}'); a(f'v_lshlrev_b32 v{cv}, 16, v{cv}')
        for i in range(4): self.silu(cv + i, vT + (i & 1))
        gops = self.gemv_ops([raw + 4 * i for i in range(4)], [cv + i for i in range(4)], acc, vT, vT + 1, True)
        for i in range(4):
            vm.wait(('wm', i))
            if i == 3: self.stamp('wmok')
            for s_ in gops[12 * i:12 * i + 12]: a(s_)
        for s_ in gops[48:]: a(s_)
        self.dw('ds_write_b32', vGA, acc, 1, L_A1 - SCR)
        self.barrier()
        a(f'ds_read_b128 {vr(acc, 4)}, v{vL32S} offset:{L_A1 - SCR}')
        tag_hash()
        a('s_waitcnt lgkmcnt(0)')
        self.pk('add', acc, acc, acc + 2)
        a(f"""v_add_f32 v{acc}, v{acc}, v{acc+1}
        v_mov_b32 v{acc+1}, s{sTAG}""")
        self.bs(acc, 2, vL8, rWS, T0, 0, 'sc1')
        a('s_mov_b64 exec, 15')
        self.bs(acc + 1, 1, vT + 6, rWS, T2, 0, 'sc1')
        a('s_mov_b64 exec, -1')
        self.stamp('A1pub')
        S(T0, '(wg*4 + w)*6144')
        for i in range(o.get('wpf', 0)):
            if i == 4: S(T0, 'T0 + 4096')
            self.bl(raw, 4, vL16, rW, T0, (i & 3) * 1024, o.get('wpfmod', ''))
        a('s_branch L_FJ')
        qG = list(vm.q)
        a('L_FS:')
        vm.reset(); lg.reset()
        a('s_barrier')
        for i in range(4): self.bl(raw + 4 * i, 4, vL16, rX, T3, 1024 * i, o.get('xsmod', ''), 'xs')
        pw0 = o.get('pw0', 'ab')
        if 'a' in pw0:
            S(T4, '(wg*4 + w - 4)*128 + INA')
            for q in range(2): a(f's_load_dword s{sPL + q}, {sr(rWS, 2)}, s{T4} offset:{q * 64} glc')
        if 's' in pw0:
            S(T4, '(wg*4 + w - 4)*256 + SINB')
            for q in range(4): a(f's_load_dword s{sPL + 2 + q}, {sr(rWS, 2)}, s{T4} offset:{q * 64} glc')
        if 'b' in pw0:
            S(T4, '(wg*32 + w - 4)*128 + INB')
            for q in range(2): a(f's_load_dword s{sPL + q}, {sr(rWS, 2)}, s{T4} offset:{q * 64} glc ; nowait')
        a(f"""s_lshl_b32 s{T6}, s{sXC}, 5
        v_mov_b32 v{vTk}, 1
        v_mov_b32 v{vTk+1}, s{T6}""")
        if o.get('bar1', 1): a('s_barrier')
        a(f"""s_cmp_lg_u32 s{sWAVE}, 7
        s_cbranch_scc1 L_NOTK
        s_mov_b64 exec, 1
        global_atomic_add v{vTk}, v{vTk+1}, v{vTk}, {sr(pDBG, 2)} sc0 sc1
        s_mov_b64 exec, -1
        s_branch L_TK0
        L_NOTK:""")
        code_pf()
        a('L_TK0:')
        vm.issue('tk')
        setup()
        w_early()
        S(T0, '(w - 4)*16 + L_ST'); va(vT + 6, [(5, 1, 8)], T0)
        a('s_barrier')
        vm.wait('xs')
        lg.wait_all()
        tag_hash()
        self.stamp('xsok')
        self.ln_stats2(raw, raw + 8, xs, st, st + 1)
        a(f"""v_lshrrev_b32 v{st}, 16, v{st}
        v_or_b32 v{st}, v{st}, v{st+1}
        v_mov_b32 v{st+1}, s{sTAG}""")
        self.dw('ds_write_b64', vT + 6, st, 2)
        a('L_FJ:')
        va(vT + 1, [(0, 2, 16)], None, L_ST)
        va(vT, [(0, 2, 16), (2, 1, 65536 if TL else 1024)])
        va(vT + 6, [(0, 5, 2048), (5, 1, 32)])
        va(vT + 2, [(0, 1, 64 * 512 if TL else 512)])
        S(T2, ('((j >> 4)*128 + w*8 + x)*512' if TL else '((x & 6) + ((x & 1)*2 + (j >> 4))*64 + w*8)*512') + ' + ((j >> 1) & 7)*64 + (j & 1)*4 + 8 + INA')
        self.barrier()
        self.r128(st, vT + 1, 0, 'st')
        lg.wait('st')
        a('s_mov_b64 exec, 0xff')
        self.bs(st, 4, vT, rWS, T1, 0, 'sc1')
        a('s_mov_b64 exec, 3')
        self.bs(st + 1, 1, vT + 2, rWS, T2, 0, 'sc1')
        a('s_mov_b64 exec, -1')
        self.stamp('A2pub')
        a(f"""s_cmp_lg_u32 s{sWAVE}, 7
        s_cbranch_scc1 L_NOTK2
        s_mov_b32 s{T0}, 0
        s_waitcnt vmcnt({len(vm.q) - 1 - vm.q.index('tk')})
        L_TK:
        v_readfirstlane_b32 s{T2}, v{vTk}
        s_cmp_lt_u32 s{T2}, 32
        s_cbranch_scc1 L_TKOK
        s_add_u32 s{T0}, s{T0}, 1
        s_cmp_lt_u32 s{T0}, 8
        s_cbranch_scc0 L_TKNO
        s_add_u32 s{sXC}, s{sXC}, 1
        s_and_b32 s{sXC}, s{sXC}, 7
        s_lshl_b32 s{T6}, s{sXC}, 5
        v_mov_b32 v{vTk}, 1
        v_mov_b32 v{vTk+1}, s{T6}
        s_mov_b64 exec, 1
        global_atomic_add v{vTk}, v{vTk+1}, v{vTk}, {sr(pDBG, 2)} sc0 sc1
        s_mov_b64 exec, -1
        s_waitcnt vmcnt(0)
        s_branch L_TK
        L_TKNO:
        s_and_b32 s{sXC}, s2, 7
        s_lshr_b32 s{T2}, s2, 3
        L_TKOK:
        s_lshl3_add_u32 s{T2}, s{T2}, s{sXC}""")
        if o.get('rawrole'): a(f's_mov_b32 s{T2}, s2')
        a(f"""v_mov_b32 v{vTk}, s{T2}
        ds_write_b32 v{vT+1}, v{vTk} offset:64
        L_NOTK2:""")
        self.barrier()
        a(f'ds_read_b32 v{mq}, v{vT+1} offset:64'); lg.issue('role')
        lg.wait('role')
        a(f'v_readfirstlane_b32 s2, v{mq}')
        self.stamp('role')
        V.release(raw, 16); V.release(cv, 4)
        S(sX, 'wg & 7'); S(sJ, 'wg >> 3')
        S(sCB, 'j & 15' if TL else '(x & 1)*8 + (j & 7)')
        S(sRT, 'x*2 + (j >> 4)' if TL else '(x >> 1)*4 + (j >> 3)')
        S(sGTB, 'rt*4 + (w & 3)')
        S(sC32, 'cb*2 + kh')
        S(T5, 'gtb*65536 + c32*64')
        self.bl(xr, 4, vT + 6, rX, T5, 0, o.get('xtmod', ''), 'xt')
        self.bl(xr + 4, 4, vT + 6, rX, T5, 16, o.get('xtmod', ''), 'xt')
        S(T0, '(((x >> 1)*16 + cb)*16 + w)*512 + AINB')
        S(T2, '(wg*8 + w)*64 + INA')
        def role_prep():
            S(sR1, '(x & 4)*2 + (j >> 2)'); S(sHP, o.get('hpe', '(x & 3)*4 + ((j & 3) ^ 2)'))
            S(sU0, o.get('u0', 'j & 12'))
            w_next(wb[0])
            S(sINB, '(wg*64 + w)*64 + INB')
            S(sKF, 'kh ^ (j >> 4)'); S(sROT, o.get('rot', '0' if TL else '(((j >> 3) ^ j) & 1)*8'))
            S(sFS, 'x*7 + (j >> 2)'); S(sKQ, 'j & 3')
            va(vT + 4, [(0, 5, 8)])
            va(vT, [(0, 5, 16), (5, 1, 4096)])
            S(T3, 'w*4 + L_MP'); va(vT + 1, [(0, 6, 64)], T3)
            S(T3, 'kh*1024 + L_MP'); va(vT + 2, [(0, 4, 32), (5, 1, 512)], T3)
        S(T1, '(wg*4 + (w & 3))*256 + SINB')
        self.spoll([(0, 4, T2, 0)], range(4), work=role_prep, pipe=o.get('pipeA', 0))
        self.stamp('apre')
        a('s_barrier')
        st_ld = lambda: self.bl(st, 2, vT + 4, rWS, T1, 0, 'sc1', 'st')
        def st_fetch():
            st_ld()
            S(T3, 'hp*4096 + w*512')
            a(f'v_add_u32 v{vT+6}, s{T3}, v{vL16}')
            S('m0', 'w*512 + L_WPHI')
            a('s_mov_b32 exec_hi, 0')
            a(f'global_load_lds_dwordx4 v{vT+6}, {sr(pWPHI, 2)}'); vm.issue()
            a('s_mov_b32 exec_hi, -1')
            w_next(wb[1])
        self.try_load(lambda: self.bl(mq, 4, vT, rWS, T0, 0, 'sc1'), [mq + 1, mq + 3], vT + 3, st_fetch)
        self.stamp('modok')
        a(f'ds_write2_b32 v{vT+1}, v{mq}, v{mq+2} offset0:0 offset1:8'); lg.issue()
        for i in range(8): self.unpack(xs + 2 * i, xs + 2 * i + 1, xr + i)
        self.barrier()
        mp = V.alloc(16); hp = V.alloc(8)
        for i in (2, 3, 0, 1): self.r128(mp + 4 * i, vT + 2, (i >> 1) * 2048 + (i & 1) * 16, i >> 1)
        w_next(wb[2])
        self.finish_load('st', st_ld, [st + 1], None)
        self.stamp('statok')
        self.unpack(st + 1, st, st)
        a(f'v_rcp_f32 v{st}, v{st}')
        for i in E2: self.pk('add', xs + i, xs + i, st + 1, bc=(1,), neg=(1,))
        S(T0, '(((rt*16 + cb)*4 + (w & 3))*2 + kh)*2048 + HF')
        lg.wait(1); self.sum8(mp + 8)
        self.round1(mp + 8)
        lg.wait(0); self.sum8(mp)
        a(f'v_add_f32 v{mp+8}, 1.0, v{mp+8}')
        self.round2(mp + 8, mp)
        for h in range(2):
            rg = range(8 * h, 8 * h + 8)
            self.round_list([xs + i for i in rg])
            for i in range(8 * h, 8 * h + 8, 2): self.pk('mul', xs + i, xs + i, st, bc=(1,))
            self.round_list([xs + i for i in rg])
            for i in rg: self.dpp('v_mul_f32', xs + i, mp + 8, xs + i, f'row_newbcast:{i}')
            self.round_list([xs + i for i in rg])
            for i in rg: self.dpp('v_add_f32', xs + i, mp, xs + i, f'row_newbcast:{i}')
            for i in range(4 * h, 4 * h + 4): a(f'v_cvt_pk_bf16_f32 v{hp+i}, v{xs+2*i}, v{xs+2*i+1}')
            self.bs(hp + 4 * h, 4, vL16, rWS, T0, 1024 * h, 'sc1', 'hs')
        self.stamp('hst')
        w_next(wb[3])
        va(vB, [(2, 2, 128), (3, 1, 64), (4, 1, 32), (0, 2, 8), (5, 1, 2048)])
        a(f'v_xor_b32 v{vB+1}, 64, v{vB}')
        for q in (1, 2):
            for h in range(2): a(f'v_add_u32 v{vB+2*q+h}, {2*q*SLOT}, v{vB+h}')
        S(T1, 'kh*2048 + L_WPHI')
        va(vT, [(2, 2, 64), (4, 1, 32), (0, 2, 8), (5, 1, 256)], T1)
        va(vT + 1, [(0, 2, 8 * 4096), (2, 2, 4096)])
        S(T0, '((rt >> 3)*4 + (rt & 7)*32)*4096 + (cb >> 1)*64 + (cb & 1)*4 + INB')
        va(vT + 2, [(4, 1, 64)]); va(vWo, [(0, 3, 16)])
        a(f'v_xor_b32 v{vWo}, v{vWo}, v{vT+2}'); va(vT + 2, [(3, 3, 2048)]); a(f'v_add_u32 v{vWo}, v{vWo}, v{vT+2}')
        S(T1, '(w & 2)*32'); va(vT + 2, [(4, 1, 32)], T1); va(vFG, [(0, 3, 16)])
        a(f'v_xor_b32 v{vFG}, v{vFG}, v{vT+2}'); va(vT + 2, [(3, 3, 7168)]); a(f'v_add_u32 v{vFG}, v{vFG}, v{vT+2}')
        S(T1, '(w & 1)*128')
        va(vT + 2, [(5, 1, 64)], T1); va(vFD, [(0, 5, 16), (5, 1, 2048)])
        a(f'v_xor_b32 v{vFD}, v{vFD}, v{vT+2}')
        S(sFG, '(kq*8 + w)*(32*7168) + fs*128'); S(sFD, '(fs*8 + w)*16384 + kq*512')
        a(f"""s_cmp_ge_u32 s{sJ}, 28
        s_cselect_b32 s{rWG+2}, 0, s{rWG+2}
        s_cselect_b32 s{rWU+2}, 0, s{rWU+2}
        s_cselect_b32 s{rWD+2}, 0, s{rWD+2}""")
        vm.wait('hs')
        a('s_barrier')
        self.push(vT + 1, T0, 16, vT + 2, 'L_PB')
        self.stamp('hpub')
        V.release(xs, 16); V.release(mp, 16); V.release(hp, 8); V.release(st, 4); V.release(mq, 4); V.release(vTk, 2)
        w_next(wb[4])
        for s in range(2):
            for u in range(2): self.tr(wphi + 4 * s + 2 * u, vT, s * 1024 + u * 512)
        AD, LOOK, LASTB = o['AD'], 6, o['LASTB']
        accs = V.alloc(96)
        big = V.alloc(76)
        Ar, Br = big, big + 4 * AD
        assert 4 * AD + 4 * (LOOK + 1) <= 76
        S(T2, '(r1*64 + w)*4096 + HF')
        S(T0, '(w & 3)*4096 + L_XF'); a(f'v_add_u32 v{vXF}, s{T0}, v{vL16}')
        S(T0, '(w & 3)*1024 + kh*16384 + L_PHK'); va(vPW, [(0, 5, 32), (5, 1, 16)], T0)
        fq = [(m, i) for m in range(3) for i in range(4)]
        freg = []
        def f_src(m, i, back=0, T0=T0):
            if m < 2: S(T0, 'fg + q', q=i * 8 * 7168 - back * 4 * 32 * 7168)
            else: S(T0, 'fd + q', q=i * 4096 - back * 4 * 16384)
            return (vFG, (rWG, rWU)[m]) if m < 2 else (vFD, rWD)
        def f_lds(m, i): return (L_GU + m * 32768 if m < 2 else L_DN) + i * 1024
        def ffn_reg(n):
            for _ in range(n):
                m, i = fq.pop(0)
                for back in range(2):
                    v, r = f_src(m, i, back)
                    self.bl(big + 8 * len(freg) + 4 * back, 4, v, r, T0, 0, o.get('ntffn', 'nt'), 'ffn')
                freg.append((m, i))
        def ffn_dma(n, T0=T0):
            for _ in range(n):
                m, i = fq.pop(0)
                if o.get('nofd'): continue
                v, r = f_src(m, i, 0, T0)
                S('m0', 'w1k*4 + q', q=f_lds(m, i))
                self.dma(v, r, T0, 0, o.get('ntffn', 'nt'), 'gu' if m < 2 else 'dn')
        S(sWB, '(rot*4 + w)*16384'); S(sWO2, '(j >> 4)*1048576 + cb*128'); S(sW1K, 'w*1024')
        def wo_dma(it, back=0, T0=T0):
            S(T0, '((wb + q) & 0xfffff) + (wo2 ^ h)', q=(8 * it - 4 * back) * 16384, h=(it >> 3) << 20)
            S('m0', 'w1k + q', q=WO_H0 + it * 8192 - 4096 * back)
            self.dma(vWo, rWO, T0, 0, '', 'wo')
        self.inbox(0, 2, work=lambda: w_next(wb[5]), pipe=o.get('pipeB', 0))
        assert len(wq) % 3 == 0 and 30 <= len(wq) <= (45, 36, 36, 42)[o.get('wxor', 1)]
        NPU = 16 - len(wq) // 3
        vm.wait(('W', (0, 2, 3, 1)[o.get('wxor', 1)]))
        a('s_barrier')
        self.stamp('hok')
        a(f"""s_cmp_ge_u32 s{sWAVE}, 4
        s_cbranch_scc1 L_HELP
        s_setprio 2""")
        q_hok = list(vm.q)
        if 'pad' in o:
            a('.p2align 6')
            for _ in range(o['pad']): a('s_nop 0')
        def a_load(sg):
            if sg % 4 == 0: S(T3, '((u0 + n) & q)*16384 + T2', n=sg // 4, q=o.get('amask', 15))
            self.bl(Ar + 4 * (sg % AD), 4, vL16, rWS, T3, (sg % 4) * 1024, o.get('amod', 'sc1'), ('A', sg))
        CORD = (2, 3, 0, 1, 4, 5)
        def b_read(n):
            sg, c = divmod(n, 6); t, h = divmod(CORD[c], 2)
            slot = (sg >> 2) % 6
            off = (slot & 1) * SLOT + t * 8192 + ((sg >> 1) & 1) * 4096 + (sg & 1) * 1024
            d = Br + 4 * (n % (LOOK + 1))
            self.tr(d, vB + 2 * (slot >> 1) + h, off, ('B', n)); self.tr(d + 2, vB + 2 * (slot >> 1) + h, off + 512, ('B', n))
        nxt = 0
        def a_more(lim):
            nonlocal nxt
            while nxt < min(lim, 64): a_load(nxt); nxt += 1
        a_more(1)
        for n in range(LOOK): b_read(n)
        a_more(o.get('A0', 4))
        for n in range(384):
            sg, c = divmod(n, 6)
            if c == 0: vm.wait(('A', sg))
            lg.wait(('B', n))
            d = accs + 16 * CORD[c]
            a(f'v_mfma_f32_32x32x16_bf16 {vr(d, 16)}, {vr(Br + 4*(n % (LOOK + 1)), 4)}, {vr(Ar + 4*(sg % AD), 4)}, ' + ('0' if sg == 0 else vr(d, 16)))
            if n + LOOK < 384:
                if (n + LOOK) % 24 == 0 and (n + LOOK) // 24 <= LASTB: a('s_barrier')
                b_read(n + LOOK)
            if c == 5:
                a_more(min(nxt + 2, sg + AD + 1))
                if sg == 63 - AD and o.get('b14', 1): a('s_barrier')
        self.stamp('gemm1')
        aq, ak, av = accs, accs + 32, accs + 64
        def cvt8(d, s_):
            for i in range(8): a(f'v_cvt_pk_bf16_f32 v{d+i}, v{s_+2*i}, v{s_+2*i+1}')
        cvt8(vv, ak + 16)
        for q in range(2): self.dw('ds_write_b128', vXF, vv + 4 * q, 4, q * 1024)
        cvt8(fr, ak)
        self.barrier()
        a('s_setprio 0')
        pp = ak; ee = ak + 16
        def phi_logits(src):
            a(f'v_mfma_f32_32x32x16_bf16 {vr(pp, 16)}, {vr(wphi, 4)}, {vr(src, 4)}, 0')
            a(f'v_mfma_f32_32x32x16_bf16 {vr(pp, 16)}, {vr(wphi + 4, 4)}, {vr(src + 4, 4)}, {vr(pp, 16)}')
        phi_logits(fr)
        for h in range(2):
            cvt8(vv if h == 0 else vq, av + 16 * h)
            for db in range(2): self.dw('ds_write_b128', vPW, (vv if h == 0 else vq) + 4 * db, 4, L_V - L_PHK + h * 8192 + db * 4096)
        cvt8(fr, aq + 16)
        for q in range(2): self.dw('ds_write_b128', vXF, fr + 4 * q, 4, 2048 + q * 1024)
        cvt8(vq, aq)
        a('s_branch L_JOIN')
        a('L_HELP:')
        vm.q = [('W', 1)] * len(q_hok) if o.get('wxor', 1) == 1 else list(q_hok); lg.reset()
        m2w = accs; m2c = accs + 32; g4 = accs + 48
        def w_unit(n):
            for wexpr in ('w - 4', 'w'):
                w_base(n, wexpr)
                for t in range(3): w_slot(n, t)
        for n in range(NPU, 6): w_unit(n)
        S(T0, '((x & 3)*4 + w - 4)*128')
        va(vCo, [(3, 3, 16)], T0)
        va(vWM, [(3, 3, 8 * 12288), (0, 3, 16)])
        S(T4, 'T0*6144 + (j*2 + (x >> 2))*128 + 4096')
        a(f'global_load_dwordx4 {vr(m2c + 8, 4)}, v{vCo}, {sr(pC, 2)}'); vm.issue('m2c')
        m2l = list(range(8)); wol = [8, 9, 10, 11]; pwl = list(range(1, 8)); sil = list(range(8))
        m2ops = self.gemv_ops([m2w + 4 * i for i in range(8)], [m2c + i for i in range(8)], acc, vT, vT + 1, False)
        m2pos = 0
        def act(op, k):
            nonlocal m2pos
            kind, n = op[0], int(op[1:] or 1)
            if kind == 'm':
                for _ in range(2 * n):
                    i = m2l.pop(0)
                    self.bl(m2w + 4 * i, 4, vWM, rWM, T4, 0, o.get('ntm2', 'nt'), ('m2', i))
                    if m2l: S(T4, 'T4 + 12288')
            elif kind == 'f': ffn_reg(n)
            elif kind == 'o':
                assert k >= 13
                for _ in range(n):
                    it = wol.pop(0); wo_dma(it, 1); wo_dma(it)
            elif kind == 'p':
                a('s_waitcnt lgkmcnt(0)')
                for q in range(n):
                    b = pwl.pop(0)
                    a(f's_load_dword s{sPL + 2*q}, {sr(rWS, 2)}, s{sINB} offset:{b * 512} glc')
                    a(f's_load_dword s{sPL + 2*q + 1}, {sr(rWS, 2)}, s{sINB} offset:{b * 512 - 256} glc')
            elif kind == 'q':
                S(T0, 'fs*8192 + (w - 4)*256 + HGR')
                a('s_waitcnt lgkmcnt(0)')
                for q in range(4): a(f's_load_dword s{sPL + q}, {sr(rWS, 2)}, s{T0} offset:{q * 2048 + 1024 + 252} glc')
            elif kind == 'h':
                S(T0, '(fs*4 + kq)*2048 + (w & 1)*1024 + HGR'); S(T1, '(rt*16 + cb)*2048 + (w & 1)*1024 + STAT')
                if TL: a(f's_bitcmp1_b32 s{sWAVE}, 1'); a(f's_cselect_b32 s{T0}, s{T1}, s{T0}')
                self.bl(m2c + 12, 4, vL16, rWS, T0, 0, '')
            elif kind == 's':
                vm.wait('m2c')
                for _ in range(n):
                    i = sil.pop(0)
                    a(f'v_and_b32 v{m2c+i}, s{sMASK}, v{m2c+8+i//2}' if i & 1 else f'v_lshlrev_b32 v{m2c+i}, 16, v{m2c+8+i//2}')
                    self.silu(m2c + i, vT + (i & 1))
            elif kind == 'g':
                assert not sil
                for _ in range(n):
                    vm.wait(('m2', m2pos // 16))
                    for s_ in m2ops[m2pos:m2pos + 16]: a(s_)
                    m2pos += 16
            elif kind == 'r':
                assert m2pos == 128
                for s_ in m2ops[128:]: a(s_)
                self.dw('ds_write_b32', vGA, acc, 1, L_M2 - SCR)
                lg.wait_all()
            elif kind == 'P':
                a(f"""s_cmp_lg_u32 s{sWAVE}, 4
                s_cbranch_scc1 L_M2F
                ds_read_b128 {vr(acc, 4)}, v{vL32S} offset:{L_M2 - SCR}""")
                S(T0, '((j*2 + (x >> 2))*4 + (x & 3))*512 + MODP2')
                a(f"""s_waitcnt lgkmcnt(0)
                v_add_f32 v{acc}, v{acc}, v{acc+1}
                v_add_f32 v{acc+2}, v{acc+2}, v{acc+3}
                v_mov_b32 v{acc+1}, s{sTAG}
                v_add_f32 v{acc}, v{acc}, v{acc+2}""")
                self.bs(acc, 2, vL8, rWS, T0, 0, 'sc1', count=False)
                a('L_M2F:')
            else: raise ValueError(op)
        sched = {int(k): v.split() for k, v in o['sched'].items()}
        for op in sched.get(0, []): act(op, 0)
        for k in range(1, LASTB + 1):
            for kk in (range(k, 16) if k == LASTB else [k + 1 if k < 3 and o.get('wxor', 1) == 3 else k]): vm.wait(('W', kk))
            if o.get('ust'): self.stamp(f'w{k}')
            a('s_barrier')
            if o.get('ust'): self.stamp(f'u{k}')
            ops = sched.get(k, [])
            if 6 <= k + 4 < 16:
                pre = [op[1:] for op in ops if op[0] == '<']
                for op in pre: act(op, k)
                if not o.get('now2'): w_unit(k + 4)
            for op in ops:
                if op[0] != '<': act(op, k)
        if o.get('b14', 1):
            assert LASTB == 13 and AD <= 12
            a('s_barrier')
            for op in sched.get(14, []): act(op, 14)
        self.barrier()
        for q in range(2): self.r128(fr + 4 * q, vXF, q * 1024)
        lg.wait_all()
        phi_logits(fr)
        for op in sched.get(15, []): act(op, 15)
        assert (not m2l or o.get('nom2')) and not wol
        assert 8 * len(freg) <= 76
        a('L_JOIN:')
        vm.reset(); lg.q = [None]
        V.release(vB, 6); V.release(vWd); V.release(vWM); V.release(vCo); V.release(vGA); V.release(vL32S); V.release(acc, 8)
        V.release(big + 8 * len(freg), 76 - 8 * len(freg))
        ph = aq; fx = aq + 16
        vPA = V.alloc(); vPB = V.alloc()
        self.softmax_pm(pp, ee, ph, vT)
        for fb in range(4): self.dw('ds_write_b128', vPW, ph + 4 * fb, 4, fb * 4096)
        S(T0, 'w*4096 + L_PHK'); a(f'v_add_u32 v{vPA}, s{T0}, v{vL8}')
        S(T0, 'kh*8192 + L_V'); a(f'v_add_u32 v{vPB}, s{T0}, v{vL8}')
        ones = fr
        for i in range(4): a(f'v_mov_b32 v{ones+i}, 0x3f803f80')
        S(T0, '((hp*8 + w)*32 + r1)*1024 + KVP'); S(T2, 'T0 + 16384')
        S(T3, '(hp*8 + w)*1024 + ZP'); S(T1, 'r1*64 + T3')
        self.stamp('ksm')
        self.barrier()
        self.stamp('phik')
        fragA = [ee + 4 * i for i in range(4)]
        fragB = [av + 4 * i for i in range(8)]
        kvd = vv; zd = fr + 4
        def kvm(u):
            lg.wait(('kv', u))
            for db in range(2):
                a(f'v_mfma_f32_16x16x32_bf16 {vr(kvd + 4*db, 4)}, {vr(fragA[u], 4)}, {vr(fragB[2*u+db], 4)}, ' + ('0' if u == 0 else vr(kvd + 4*db, 4)))
            a(f'v_mfma_f32_16x16x32_bf16 {vr(zd, 4)}, {vr(fragA[u], 4)}, {vr(ones, 4)}, ' + ('0' if u == 0 else vr(zd, 4)))
        for ts in range(4):
            self.tr(fragA[ts], vPA, ts * 1024, ('kv', ts)); self.tr(fragA[ts] + 2, vPA, ts * 1024 + 512, ('kv', ts))
            for db in range(2):
                self.tr(fragB[2*ts+db], vPB, db * 4096 + ts * 1024, ('kv', ts)); self.tr(fragB[2*ts+db] + 2, vPB, db * 4096 + ts * 1024 + 512, ('kv', ts))
            if ts >= 2: kvm(ts - 2)
        va(vPW, [(0, 3, 32 * 4096), (3, 1, 4 * 4096)])
        S(T4, '(wg & 0x1b)*4096 + (r1 >> 1)*64 + (r1 & 1)*4 + INB + 512')
        kvm(2); kvm(3)
        a(f"""s_cmp_lt_u32 s{sWAVE}, 4
        s_cbranch_scc1 L_NOQX
        ds_read_b128 {vr(vq, 4)}, v{vXF} offset:2048
        ds_read_b128 {vr(vq + 4, 4)}, v{vXF} offset:3072
        L_NOQX:""")
        self.bs(kvd, 4, vL16, rWS, T0, 0, 'sc1', 'kvs')
        self.bs(kvd + 4, 4, vL16, rWS, T2, 0, 'sc1', 'kvs')
        a('s_mov_b32 exec_lo, 0x00010001')
        a('s_mov_b32 exec_hi, 0x00010001')
        self.bs(zd, 4, vL, rWS, T1, 0, 'sc1', 'kvs')
        a('s_mov_b64 exec, -1')
        lg.wait_all()
        phi_logits(vq)
        self.stamp('kvst')
        wl = [2, 3, 4, 5, 6, 7, 12, 13, 14, 15, 0, 1]
        kp = av; zz = av + 16; g4 = vv
        m2q = fx; wr1 = fx + 8
        vKP = V.alloc()
        va(vKP, [(3, 3, 1024), (0, 3, 16)])
        va(vXF, [(0, 3, 16), (5, 1, 8)])
        wo1 = lambda: wo_dma(wl.pop(0), 0, T6)
        keep = a.items; a.items = []
        self.softmax_pm(pp, ee, ph, vv)
        qsm = a.items; a.items = keep
        qcost = [2 if it[1].is_trans or 'permlane' in it[1].mn else 1 for it in qsm]
        qtot = sum(qcost); qdone = [0]
        def q_slice(upto):
            while qsm and qdone[0] < qtot * upto / 100:
                a.items.append(qsm.pop(0)); qdone[0] += qcost.pop(0)
        qs = o.get('qs', (35, 85, 100))
        q_slice(qs[0])
        vm.wait('kvs')
        a('s_barrier')
        self.push(vPW, T4, 16, vPB, 'L_PC')
        self.stamp('kvpub')
        S(T0, '(hp*16 + r1)*16384 + w*128 + KVP')
        S(T2, '(hp*16 + r1)*1024 + w*128 + KIN'); S(T4, 'T4 + 6*512')
        self.inbox(1, 2, work=lambda: (self.weave(lambda: q_slice(qs[1]), [wo1] * o['wowin'][0]), self.stamp('cw')))
        a('s_barrier')
        self.stamp('kvok')
        S(T5, 'T0 + 8192')
        ld_kp = lambda: (self.bl(kp, 4, vKP, rWS, T0, 0, 'sc1', 'kp'), self.bl(kp + 4, 4, vKP, rWS, T5, 0, 'sc1', 'kp'))
        ld_z = lambda: self.bl(zz, 4, vL16, rWS, T3, 0, 'sc1', 'z')
        ld_kp(); ld_z()
        S(T1, 'w*32 + L_ZF'); va(vT + 2, [(0, 2, 8), (5, 1, 4)], T1)
        S(T1, 'w*1024 + L_KVF'); va(vT + 1, [(0, 4, 16), (5, 1, 512), (4, 1, 8)], T1)
        S(T1, 'kh*128 + L_ZF'); va(vT + 3, [(5, 1, 16)], T1)
        S(T1, 'kh*4096 + L_KVF'); a(f'v_add_u32 v{vPA}, s{T1}, v{vL16}')
        def red4(r, ctls):
            for i in range(2): a(f'v_permlane32_swap_b32 v{r+i}, v{r+2+i}')
            self.pk('add', r, r, r + 2)
            for ctl in ctls:
                for i in range(2): self.dpp('v_add_f32', r + i, r + i, r + i, ctl)
            for i in range(2): a(f'v_mov_b32 v{r+2+i}, v{r+i}')
            for i in range(2): a(f'v_permlane16_swap_b32 v{r+i}, v{r+2+i}')
            self.pk('add', r, r, r + 2)
            a(f'v_cvt_pk_bf16_f32 v{r}, v{r}, v{r+1}')
        self.weave(lambda: q_slice(qs[2]), [wo1] * o['wowin'][1])
        vm.wait('kp')
        self.pk('add', kp, kp, kp + 4); self.pk('add', kp + 2, kp + 2, kp + 6)
        red4(kp, ['row_ror:8'])
        a(f"""v_mov_b32 v{kp+1}, s{sTAG}
        s_mov_b32 exec_lo, 0xff
        s_mov_b32 exec_hi, 0xff""")
        self.bs(kp, 2, vXF, rWS, T2, 0, 'sc1')
        a('s_mov_b64 exec, -1')
        a('s_barrier')
        self.push(vPW, T4, 16, vPB, 'L_PC2')
        self.stamp('c2pub')
        kf = av; zf = av + 16; num = pp; den = ee
        vm.wait('z')
        self.weave(lambda: red4(zz, ['row_ror:4', 'row_ror:8']), [wo1] * o['wowin'][2])
        self.dw('ds_write_b32', vT + 2, zz, 1)
        q_slice(100)
        self.barrier()
        for fb in range(4): self.r128(zf + 4 * fb, vT + 3, fb * 32)
        lg.wait_all()
        S(T0, '(hp*8 + w)*2048 + KIN')
        k2 = av + 8
        def den_work():
            for fb in range(4):
                a(f'v_mfma_f32_32x32x16_bf16 {vr(den, 16)}, {vr(zf + 4*fb, 4)}, {vr(ph + 4*fb, 4)}, ' + ('0' if fb == 0 else vr(den, 16)))
            self.round1(den)
            a(f'v_add_f32 v{den}, 0x358637bd, v{den}')
            self.round1(den)
            a(f'v_rcp_f32 v{den}, v{den}')
            self.stamp('c2w')
        self.inbox(7, 2, work=den_work)
        self.stamp('c2h')
        self.poll(lambda: [self.bl(k2 + 4 * q, 4, vL16, rWS, T0, q * 1024, 'sc1') for q in range(2)], [k2 + 1, k2 + 3, k2 + 5, k2 + 7], vT)
        for db in range(2):
            a(f'ds_write2_b32 v{vT+1}, v{k2+4*db}, v{k2+4*db+2} offset0:{64*db} offset1:{64*db+1}'); lg.issue()
        self.barrier()
        self.stamp('kvred')
        for fb in range(4): self.r128(kf + 4 * fb, vPA, fb * 1024, ('kf', fb))
        vM2 = V.alloc()
        va(vM2, [(0, 5, 16), (5, 1, 512)])
        S(T5, '((w & 3)*16 + cb)*2048 + MODP2')
        ld_m2 = lambda: [self.bl(m2q + 4 * q, 4, vM2, rWS, T5, q * 1024, 'sc1', 'm2q') for q in range(2)]
        S(T0, 'cb*128'); va(vT, [(0, 5, 4)], T0)
        a(f'global_load_dword v{wr1}, v{vT}, {sr(pWR, 2)}'); vm.issue('m2q')
        va(vT, [(0, 3, 32)])
        a(f'global_load_dword v{wr1+1}, v{vT}, {sr(pDB2, 2)} sc1'); vm.issue('m2q')
        ld_m2()
        S(T0, '(((r1*4 + (w & 3))*16 + hp)*2 + kh)*2048 + OF')
        for fb in range(4):
            lg.wait(('kf', fb))
            a(f'v_mfma_f32_32x32x16_bf16 {vr(num, 16)}, {vr(kf + 4*fb, 4)}, {vr(ph + 4*fb, 4)}, ' + ('0' if fb == 0 else vr(num, 16)))
        for h in range(2):
            self.round_list([num + i for i in range(8 * h, 8 * h + 8)])
            for i in range(8 * h, 8 * h + 8, 2): self.pk('mul', num + i, num + i, den, bc=(1,))
            for i in range(4 * h, 4 * h + 4): a(f'v_cvt_pk_bf16_f32 v{vq+i}, v{num+2*i}, v{num+2*i+1}')
            self.bs(vq + 4 * h, 4, vL16, rWS, T0, 1024 * h, 'sc1', 'os')
        self.stamp('ost')
        for r, n in ((fr, 8), (vv, 8), (vPW, 1), (vXF, 1), (vPA, 1), (vPB, 1), (vKP, 1), (accs, 16), (accs + 32, 64), (wphi, 8)):
            V.release(r, n)
        assert GS == 0
        vG16 = vL16
        vBa = V.alloc(); vBb = V.alloc(); xf = V.alloc(16)
        S(T4, 'kh*(65536 + 64) + WO_H0')
        va(vBa, [(2, 2, 128), (3, 1, 64), (5, 1, 1024), (0, 1, 32), (4, 1, 16), (1, 1, 8)])
        a(f'v_xor_b32 v{vBa}, s{T4}, v{vBa}')
        a(f'v_xor_b32 v{vBb}, 64, v{vBa}')
        assert WO_H1 == WO_H0 + 65536
        va(vT + 1, LCB)
        S(T2, ('((r1 & 1)*128 + (r1 >> 1))*4096' if TL else '((r1 >> 2)*2 + (r1 & 3)*64)*4096') + ' + (hp >> 1)*64 + (hp & 1)*4 + INB + 1024')
        for i in range(8): self.unpack(xf + 2 * i, xf + 2 * i + 1, xr + i)
        S(T6, '(gtb*2 + kf)*32768 + OF')
        vm.wait('os')
        a('s_barrier')
        self.push(vT + 1, T2, 16, vT + 2, 'L_PD')
        self.stamp('opub')
        V.release(vq, 8)
        while wl: wo_dma(wl.pop(0))
        V.release(vWo)
        self.finish_load('m2q', ld_m2, [m2q + 1, m2q + 3, m2q + 5, m2q + 7], vT)
        q0, q1, q2, q3 = m2q, m2q + 1, m2q + 2, m2q + 3
        a(f'v_cmp_ne_u32 vcc, 32, v{wr1+1}')
        a(f's_cmp_eq_u32 vcc_lo, 0')
        a(f's_cselect_b32 s{sLOC}, {o.get("local", 1)}, 0')
        S(T0, '(w & 3)*128 + L_MT'); va(vT, [(0, 5, 4)], T0)
        S(T1, 'w & 3')
        a(f"""v_add_f32 v{q0}, v{m2q}, v{m2q+4}
        v_add_f32 v{q1}, v{m2q+2}, v{m2q+6}
        v_add_f32 v{q2}, v{m2q}, v{m2q+4}""".replace(f'v_add_f32 v{q2}, v{m2q}, v{m2q+4}', f'v_mov_b32 v{q2}, v{q0}'))
        a(f"""v_mov_b32 v{q3}, v{q1}
        s_cmp_eq_u32 s{T1}, 2
        s_cselect_b32 s{T2}, 1.0, 0
        v_permlane32_swap_b32 v{q0}, v{q2}
        v_permlane32_swap_b32 v{q1}, v{q3}""")
        self.pk('add', q0, q0, q2)
        self.round2(q0, q1)
        a(f"""v_add_f32 v{q0}, s{T2}, v{q0}
        v_add_f32 v{q1}, s{T2}, v{q1}
        v_cvt_pk_bf16_f32 v{q2}, v{q0}, v{q1}""")
        self.dw('ds_write_b32', vT, q2, 1)
        a('s_cbranch_scc0 L_NOG')
        g0, g1, gh, gl = m2q + 4, m2q + 5, m2q + 6, m2q + 7
        self.unpack(q0, q1, q2); self.unpack(g0, g1, wr1)
        self.pk('mul', g0, g0, q0)
        a(f'v_cvt_pk_bf16_f32 v{gh}, v{g0}, v{g1}')
        self.unpack(q0, q1, gh)
        self.pk('add', q0, g0, q0, neg=(1,))
        a(f"""v_cvt_pk_bf16_f32 v{gl}, v{q0}, v{q1}
        v_add_f32 v{q0}, v{g0}, v{g1}
        ds_write2_b32 v{vT}, v{gh}, v{gl} offset0:64 offset1:96
        ds_write_b32 v{vT}, v{wr1} offset:512""")
        for ctl in ('quad_perm:[1,0,3,2]', 'quad_perm:[2,3,0,1]', 'row_half_mirror', 'row_ror:8'): self.dpp('v_add_f32', q0, q0, q0, ctl)
        S(T0, '(rt*16 + cb)*8 + GR')
        a(f"""v_mov_b32 v{q2}, v{q0}
        v_mov_b32 v{q1}, s{sTAG}
        v_permlane16_swap_b32 v{q0}, v{q2}
        v_add_f32 v{q0}, v{q0}, v{q2}
        s_mov_b64 exec, 1""")
        self.bs(q0, 2, vZ, rWS, T0, 0, 'sc1', count=False)
        a("""s_mov_b64 exec, -1
        L_NOG:""")
        V.release(vM2)
        S(T0, 'kh*64 + L_MT'); va(vT + 3, [(5, 1, 32)], T0); va(vT + 4, [(0, 3, 4)]); a(f'v_add_u32 v{vT+4}, v{vT+4}, v{vT+3}')
        self.barrier()
        gaf = V.alloc(16); gp = V.alloc(16); tb4 = V.alloc(4); gr = V.alloc(2); vGR = V.alloc()
        for q in range(2):
            self.r128(fx + 4 * q, vT + 3, 16 * q)
            for k in range(2): self.r128(gp + 8 * k + 4 * q, vT + 3, (4 + k) * 128 + 16 * q)
        for q, t in enumerate((1, 2, 3, 6)): self.dr('ds_read_b32', tb4 + q, 1, vT + 4, t * 128)
        lg.wait_all()
        def d_work():
            for i in range(8): self.unpack(gaf + 2 * i, gaf + 2 * i + 1, fx + i)
            va(vGR, [(0, 4, 8)])
            if o.get('stouch', TL):
                S(T2, '(rt*16 + cb)*2048 + w*256 + STAT')
                a(f'v_lshlrev_b32 v{gr}, 7, v{vL}')
                a('s_mov_b64 exec, 3')
                self.bl(gr, 1, gr, rWS, T2, 0, '')
                a('s_mov_b64 exec, -1')
            vm.wait_all()
            self.stamp('dw')
        AD2 = o['AD2']
        accA = V.alloc(16); accB = V.alloc(16); Ar = V.alloc(4 * AD2); Br = V.alloc(16)
        def b2_read(s, c):
            d = Br + 8 * (s & 1) + 4 * c
            self.tr(d, (vBa, vBb)[c], s * 2048, ('B', s, c)); self.tr(d + 2, (vBa, vBb)[c], s * 2048 + 512, ('B', s, c))
        def a2_load(s):
            if s % 2 == 0: S(T7, '((rot + n) & 15)*2048 + T6', n=s // 2)
            self.bl(Ar + 4 * (s % AD2), 4, vL16, rWS, T7, (s % 2) * 1024, 'sc1', ('A', s))
        self.inbox(2, 2, work=d_work)
        V.release(fx, 16)
        a('s_barrier')
        self.stamp('ook')
        if o.get('prio2', 1):
            a(f"""s_cmp_lt_u32 s{sWAVE}, 4
            s_cbranch_scc1 L_P2
            s_setprio {o.get('prio2', 1)}
            L_P2:""")
        for s in range(AD2):
            a2_load(s)
            if s == 0:
                for c in (1, 0): b2_read(0, c)
        for s in range(32):
            vm.wait(('A', s))
            for c in (1, 0):
                lg.wait(('B', s, c))
                ac = (accA, accB)[c]
                a(f'v_mfma_f32_32x32x16_bf16 {vr(ac, 16)}, {vr(Br + 8*(s & 1) + 4*c, 4)}, {vr(Ar + 4*(s % AD2), 4)}, ' + ('0' if s == 0 else vr(ac, 16)))
                if s + 1 < 32: b2_read(s + 1, c)
            if s == o.get('prio2n', 12): a('s_setprio 0')
            if s + AD2 < 32: a2_load(s + AD2)
            if s == 31 - AD2:
                S(T5, 'rt*128 + GR')
                ld_gr = lambda: self.bl(gr, 2, vGR, rWS, T5, 0, 'sc1', 'gr')
                ld_gr()
        self.stamp('gemm2')
        if o.get('prio2', 1): a('s_setprio 0')
        S(T0, 'w*4096')
        a(f"""v_add_u32 v{vT}, s{T0}, v{vG16}
        v_xor_b32 v{vT+1}, 0x4000, v{vT}""")
        for q in range(4): self.dw('ds_write_b128', vT, accB + 4 * q, 4, L_EXCH - GS + q * 1024)
        S(T0, 'kh*2048 + (w & 3)*512 + L_SP'); va(vT + 2, [(0, 5, 16), (5, 1, 8)], T0)
        S(T0, 'kh*64 + L_TB'); va(vT + 3, [(0, 3, 4), (5, 1, 32)], T0)
        vSG = V.alloc()
        S(T6, 'rt*32768 + w*256 + STAT'); va(vSG, [(0, 4, 16), (4, 2, 2048)])
        sm = Br; one = Br + 4
        a(f'v_mov_b32 v{one}, 0x3f803f80')
        fd = list(o['fdma']); assert sum(fd) == len(fq)
        self.barrier()
        for q in range(4): self.r128(accB + 4 * q, vT + 1, L_EXCH - GS + q * 1024, ('ex', q))
        ffn_dma(fd[0], T1)
        for h in range(2):
            for q in (2 * h, 2 * h + 1):
                lg.wait(('ex', q))
                self.pk('add', accA + 4 * q, accA + 4 * q, accB + 4 * q); self.pk('add', accA + 4 * q + 2, accA + 4 * q + 2, accB + 4 * q + 2)
            rg = range(8 * h, 8 * h + 8)
            self.round_list([accA + i for i in rg])
            for i in range(8 * h, 8 * h + 8, 2): self.pk('mul', accA + i, accA + i, gaf + i)
            self.round_list([accA + i for i in rg])
            for i in range(8 * h, 8 * h + 8, 2): self.pk('add', accA + i, accA + i, xf + i)
            for i in range(4 * h, 4 * h + 4): a(f'v_cvt_pk_bf16_f32 v{xr+i}, v{accA+2*i}, v{accA+2*i+1}')
        for i in range(8):
            for d, b in ((sm, one), (sm + 2, xr + i), (sm + 1, gp + i), (sm + 3, gp + 8 + i)):
                a(f'v_dot2_f32_bf16 v{d}, v{xr+i}, v{b}, ' + ('0' if i == 0 else f'v{d}'))
        a(f"""v_permlane32_swap_b32 v{sm}, v{sm+2}
        v_permlane32_swap_b32 v{sm+1}, v{sm+3}""")
        self.pk('add', sm, sm, sm + 2)
        self.dw('ds_write_b64', vT + 2, sm, 2)
        for q in range(4): self.dw('ds_write_b32', vT + 3, tb4 + q, 1, 128 * q)
        a(f'v_add_u32 v{vT}, {L_SP}, v{vL16}')
        va(vT + 1, LCB)
        S(T0, '(rt*16 + cb)*2048 + STAT')
        S(T3, ('((rt & 1)*128 + (rt >> 1))*4096' if TL else '((rt & 3)*64 + (rt >> 2)*2)*4096') + ' + (cb >> 1)*64 + (cb & 1)*4 + INB + 1536')
        self.barrier()
        self.stamp('x1st')
        a(f"""s_cmp_lg_u32 s{sWAVE}, 0
        s_cbranch_scc1 L_PE""")
        for q in range(4): a(f'ds_read_b128 {vr(accB + 4*q, 4)}, v{vT} offset:{(q & 1) * 2048 + (q >> 1) * 1024}')
        for h in range(2):
            b = accB + 8 * h
            a(f's_waitcnt lgkmcnt({2 - 2*h})')
            self.pk('add', b, b, b + 4); self.pk('add', b + 2, b + 2, b + 6)
            a(f"""v_add_f32 v{b+1}, v{b+1}, v{b+3}
            v_mov_b32 v{b+3}, s{sTAG}""")
        if TL:
            self.bs2([(accB + 8 * h, 4, vL16, T0, 1024 * h) for h in range(2)])
            a('s_cbranch_scc1 L_PE')
        else:
            for h in range(2): self.bs(accB + 8 * h, 4, vL16, rWS, T0, 1024 * h, 'sc1', count=False)
        a('s_mov_b64 exec, 0xffff')
        self.bs(accB + 3, 1, vT + 1, rWS, T3, 0, 'sc1', count=False)
        a("""s_mov_b64 exec, -1
        L_PE:""")
        self.stamp('x1pub')
        V.release(accA, 16); V.release(accB, 16); V.release(Ar, 4 * AD2); V.release(Br, 16); V.release(vBa); V.release(vBb); V.release(xf, 16); V.release(gaf, 16); V.release(gp, 16)
        x1 = V.alloc(16); hh = V.alloc(16); mf = V.alloc(32); sg = V.alloc(16); op = V.alloc(8)
        st = V.alloc(2); cn = V.alloc(2); vRid = V.alloc(); ck = V.alloc(4); vOT = V.alloc()
        ct = V.alloc(12, 4)
        def e_work():
            S(T3, '(w & 3)*(32*144) + kh*64'); va(vOT, [(0, 5, 144), (5, 1, 32)], T3)
            for q in range(2): self.dw('ds_write_b128', vOT, xr + 4 * q, 4, L_XT + 16 * q)
            a(f'v_add_u32 v{vOT}, {L_OT}, v{vOT}')
            S(T2, '4094 - (rt*8 + w)*32'); va(vRid, [(0, 4, 2)]); a(f'v_sub_u32 v{vRid}, s{T2}, v{vRid}')
            S(T2, 'w*128 + L_ST2'); va(vT + 4, [(0, 4, 8)], T2)
            S(T2, '(w & 3)*256 + L_ST2'); va(vT + 6, [(0, 5, 8)], T2)
            va(vT + 7, [(0, 3, 8)], None, L_K1)
            self.finish_load('gr', ld_gr, [gr + 1])
            for ctl in ('quad_perm:[1,0,3,2]', 'quad_perm:[2,3,0,1]', 'row_half_mirror', 'row_ror:8'): self.dpp('v_add_f32', gr, gr, gr, ctl)
            a(f"""s_cmp_lg_u32 s{sWAVE}, 1
            s_cbranch_scc1 L_NOCT""")
            va(vT + 1, [(0, 4, 8)], None, L_TB)
            a(f"""ds_read_b64 {vr(ct + 2, 2)}, v{vT+1}
            ds_read_b64 {vr(ct + 6, 2)}, v{vT+1} offset:128
            ds_read_b64 {vr(ct + 8, 2)}, v{vT+1} offset:384
            s_waitcnt lgkmcnt(0)""")
            for b in (ct, ct + 4):
                self.unpack(b, b + 1, b + 2); self.unpack(b + 2, b + 3, b + 3)
            a('L_NOCT:')
        def expand(dst, t):
            for i in range(8):
                self.dpp('v_mul_u32_u24', dst + 2 * i, t, cn, f'row_newbcast:{i}')
                self.dpp('v_and_b32', dst + 2 * i + 1, t, cn + 1, f'row_newbcast:{i}')
        def f_pre(part):
            if part == 0:
                a(f"""s_cmp_lt_u32 s{sWAVE}, 4
                s_cbranch_scc1 L_NOST""")
                S(T0, '(w - 4)*4096 + L_GU')
                a(f'v_add_u32 v{vT}, s{T0}, v{vL16}')
                a(f'v_add_u32 v{vT+3}, {L_DN - L_GU}, v{vT}')
                for n, (m, i) in enumerate(freg):
                    for back in range(2):
                        self.dw('ds_write_b128', vT if m < 2 else vT + 3, big + 8 * n + 4 * back, 4, f_lds(m, i) - (L_GU if m < 2 else L_DN) + (1 - back) * 16384)
                a('L_NOST:')
                return
            a(f"""v_mov_b32 v{cn}, 0x10000
            v_mov_b32 v{cn+1}, s{sMASK}""")
            for i in range(8): self.unpack(x1 + 2 * i, x1 + 2 * i + 1, xr + i)
            expand(mf, tb4); expand(mf + 16, tb4 + 1)
        if TL:
            a(f"""s_cmp_lg_u32 s{sLOC}, 0
            s_cbranch_scc1 L_ELOC""")
            self.inbox(3, 2)
            a("""s_barrier
            L_ELOC:""")
        else:
            ffn_dma(fd[1])
            self.inbox(3, 2, work=lambda: (e_work(), f_pre(0)))
            a('s_barrier')
        self.stamp('x1ok')
        def ld_sg():
            for q in range(4):
                S(T0, 'T6 + q', q=q * 8192)
                self.bl(sg + 4 * q, 4, vSG, rWS, T0, 0, 'sc1')
        self.try_load(ld_sg, [sg + 3, sg + 7, sg + 11, sg + 15], vT, e_work if TL else lambda: f_pre(1))
        V.release(vSG)
        self.stamp('x1ld')
        if o.get('htouch', 1):
            S(T2, '(fs*4 + kq)*2048 + w*256 + HGR')
            vDum = V.alloc()
            a(f'v_lshlrev_b32 v{vDum}, 7, v{vL}')
            a('s_mov_b64 exec, 3')
            self.bl(vDum, 1, vDum, rWS, T2, 0, '')
            a('s_mov_b64 exec, -1')
        ffn_dma(fd[2], T2)
        A_, B_, C_, U_ = sg, sg + 1, sg + 2, sg + 3
        self.pk('add', sg, sg, sg + 4); self.pk('add', sg + 8, sg + 8, sg + 12)
        a(f"""v_add_f32 v{C_}, v{C_}, v{sg+6}
        v_add_f32 v{sg+10}, v{sg+10}, v{sg+14}""")
        self.pk('add', sg, sg, sg + 8)
        a(f"""v_add_f32 v{C_}, v{C_}, v{sg+10}
        v_mov_b32 v{U_}, v{B_}
        v_permlane32_swap_b32 v{A_}, v{C_}
        v_permlane32_swap_b32 v{B_}, v{U_}
        v_add_f32 v{A_}, v{A_}, v{C_}
        v_add_f32 v{B_}, v{B_}, v{U_}
        v_permlane16_swap_b32 v{A_}, v{B_}
        v_add_f32 v{U_}, v{A_}, v{B_}
        v_add_f32 v{A_}, v{A_}, v{B_}
        v_permlane16_swap_b32 v{A_}, v{U_}
        v_mul_f32 v{C_}, 0x3a800000, v{A_}
        v_mul_f32 v{A_}, 0x3a800000, v{A_}
        v_permlane32_swap_b32 v{A_}, v{C_}""")
        self.stat_math(A_, C_, st, st + 1)
        S(T0, 'w*8 + L_K1')
        a(f"""v_rcp_f32 v{st+1}, v{st+1}
        v_fma_f32 v{U_}, -v{st}, v{gr}, v{U_}
        v_mov_b32 v{vT+1}, s{T0}
        v_mul_f32 v{U_}, v{U_}, v{st+1}""")
        self.dw('ds_write_b64', vT + 4, st, 2)
        a(f"""s_movk_i32 s{T0}, 0xfff
        v_ashrrev_i32 v{A_}, 31, v{U_}
        v_or_b32 v{A_}, 0x80000000, v{A_}
        v_xor_b32 v{A_}, v{A_}, v{U_}
        v_bfi_b32 v{ck}, s{T0}, v{vRid}, v{A_}""")
        def top2(ctls, first):
            for n, ctl in enumerate(ctls):
                if n == 0 and first:
                    self.dpp('v_min_u32', ck + 1, ck, ck, ctl); self.dpp('v_max_u32', ck, ck, ck, ctl)
                    continue
                self.dpp('v_min_u32', ck + 2, ck, ck, ctl); self.dpp('v_max_u32', ck + 1, ck + 1, ck + 1, ctl); self.dpp('v_max_u32', ck, ck, ck, ctl)
                a(f'v_max_u32 v{ck+1}, v{ck+1}, v{ck+2}')
        top2(('row_ror:8', 'row_ror:4', 'row_ror:2', 'row_ror:1'), True)
        self.dw('ds_write_b64', vT + 1, ck, 2)
        va(vT + 2, [(0, 1, 128 * 4096), (1, 3, 4096)] if TL else [(0, 2, 64 * 4096), (2, 2, 2 * 4096)])
        S(T1, ('cb*32768' if TL else '((cb & 7)*8 + (cb >> 3))*4096') + ' + (rt >> 1)*64 + (rt & 1)*16 + INB + 2560')
        self.barrier()
        self.stamp('ln2')
        self.dr('ds_read_b64', ck, 2, vT + 7, 0, 'k'); self.dr('ds_read_b64', st, 2, vT + 6, 0, 's')
        lg.wait('k')
        top2(('quad_perm:[1,0,3,2]', 'quad_perm:[2,3,0,1]', 'row_half_mirror'), False)
        a(f"""v_or_b32 v{ck+2}, 1, v{ck+1}
        v_mov_b32 v{ck+1}, s{sTAG}
        v_mov_b32 v{ck+3}, s{sTAG}
        s_cmp_lg_u32 s{sWAVE}, 0
        s_cbranch_scc1 L_NOF
        s_mov_b64 exec, 0xffff""")
        self.bs(ck, 4, vT + 2, rWS, T1, 0, 'sc1', count=False)
        a("""s_mov_b64 exec, -1
        L_NOF:""")
        self.stamp('Fpub')
        a(f"""s_cmp_lg_u32 s{sWAVE}, 1
        s_cbranch_scc1 L_NOC
        v_and_b32 v{vT}, 16, v{vL}
        v_cmp_eq_u32 vcc, 0, v{vT}
        v_cndmask_b32 v{vT}, v{ck+2}, v{ck}, vcc
        v_not_b32 v{vT}, v{vT}
        v_bfe_u32 v{vT}, v{vT}, 1, 7
        v_lshlrev_b32 v{vT+2}, 3, v{vT}
        v_mul_u32_u24 v{vT}, 144, v{vT}
        v_add_u32 v{vT+2}, {L_ST2}, v{vT+2}""")
        va(vT + 1, [(0, 4, 8)])
        cx, cs, ch = sg, sg + 4, sg + 8
        a(f"""v_add_u32 v{vT}, v{vT}, v{vT+1}
        ds_read_b64 {vr(cs, 2)}, v{vT+2}
        ds_read_b64 {vr(cx, 2)}, v{vT} offset:{L_XT}""")
        va(vT + 2, [(0, 4, 16), (4, 1, 16384), (5, 1, 4096)])
        va(vT + 3, [(4, 1, 16384)])
        S(T0, 'rt*32768 + cb*256 + CAND'); S(T3, 'rt*32768 + cb*8 + 8192 + CAND')
        a(f"""v_mov_b32 v{cx+3}, s{sTAG}
        s_waitcnt lgkmcnt(0)""")
        self.unpack(ch, ch + 1, cx); self.unpack(ch + 2, ch + 3, cx + 1)
        for i in (0, 2): self.pk('add', ch + i, ch + i, cs, bc=(1,), neg=(1,))
        self.round_list([ch + i for i in range(4)])
        for i in (0, 2): self.pk('mul', ch + i, ch + i, cs + 1, bc=(1,))
        self.round_list([ch + i for i in range(4)])
        for i in (0, 2): self.pk('mul', ch + i, ch + i, ct + 4 + i)
        self.round_list([ch + i for i in range(4)])
        for i in (0, 2): self.pk('add', ch + i, ch + i, ct + i)
        a(f"""v_mov_b32 v{cx+2}, v{cx+1}
        v_mov_b32 v{cx+1}, s{sTAG}
        s_mov_b32 exec_hi, 0
        v_cvt_pk_bf16_f32 v{cx}, v{ch}, v{ch+1}
        v_cvt_pk_bf16_f32 v{cx+2}, v{ch+2}, v{ch+3}
        s_mov_b32 exec_hi, -1
        v_dot2_f32_bf16 v{cs}, v{cx}, v{ct+8}, 0
        v_mov_b32 v{cs+1}, s{sTAG}
        v_dot2_f32_bf16 v{cs}, v{cx+2}, v{ct+9}, v{cs}""")
        self.bs(cx, 4, vT + 2, rWS, T0, 0, 'sc1', count=False)
        for ctl in ('quad_perm:[1,0,3,2]', 'quad_perm:[2,3,0,1]', 'row_half_mirror', 'row_ror:8'): self.dpp('v_add_f32', cs, cs, cs, ctl)
        a('s_mov_b64 exec, 0x10001')
        self.bs(cs, 2, vT + 3, rWS, T3, 0, 'sc1', count=False)
        a("""s_mov_b64 exec, -1
        L_NOC:""")
        V.release(ct, 12)
        def ln2_tile():
            for i in E2: self.pk('add', hh + i, x1 + i, st, bc=(1,), neg=(1,))
            self.round_list([hh + i for i in range(16)])
            for i in E2: self.pk('mul', hh + i, hh + i, st + 1, bc=(1,))
            self.round_list([hh + i for i in range(16)])
            for i in E2: self.pk('mul', hh + i, hh + i, mf + 16 + i)
            self.round_list([hh + i for i in range(16)])
            for i in E2: self.pk('add', hh + i, hh + i, mf + i)
            self.round_list([hh + i for i in range(16)])
        lg.wait('s')
        self.stamp('cand')
        ffn_dma(fd[3])
        uu = V.alloc(16); vGr = V.alloc(); vDr = V.alloc(); vXs = V.alloc()
        def out_calc():
            expand(mf, tb4 + 2)
            for i in E2: self.pk('mul', hh + i, hh + i, mf + i)
            self.round_list([hh + i for i in range(16)])
            for i in E2: self.pk('add', hh + i, hh + i, x1 + i)
            for i in range(8): a(f'v_cvt_pk_bf16_f32 v{op+i}, v{hh+2*i}, v{hh+2*i+1}')
            for q in range(2): self.dw('ds_write_b128', vOT, op + 4 * q, 4, 16 * q)
            S(T3, 'w*(16*144) + L_OT'); va(vOT, [(3, 3, 144), (0, 3, 16)], T3)
        oc = o.get('ocat', 2 if TL else 1); l2 = o.get('l2at', 1 if TL else 0)
        def f_work():
            if TL: f_pre(0); f_pre(1)
            if l2 == 0: ln2_tile()
            if oc == 0: out_calc()
            S(T0, '(w >> 2)*32768 + (w & 3)*32 + L_GU')
            va(vGr, [(4, 2, 8192), (2, 2, 128), (3, 2, 32), (0, 2, 8)]); a(f'v_xor_b32 v{vGr}, s{T0}, v{vGr}')
            S(T0, 'w*64')
            va(vDr, [(2, 1, 512), (3, 1, 4096), (5, 1, 2048), (2, 2, 64), (4, 1, 32), (0, 2, 8)])
            a(f'v_xor_b32 v{vDr}, s{T0}, v{vDr}'); a(f'v_add_u32 v{vDr}, {L_DN}, v{vDr}')
            va(vXs, [(0, 3, 16), (4, 2, 128)], None, L_XS)
            S(T0, 'w*16 + L_K2'); a(f'v_mov_b32 v{vT}, s{T0}')
            va(vT + 1, [(0, 3, 16)], None, L_K2)
            a(f'v_and_b32 v{vT+4}, 8, v{vL}')
            a(f'v_cmp_eq_u32 {sr(sCMP, 2)}, 0, v{vT+4}')
            self.stamp('oc')
        self.inbox(5, 8, (1, 3, 5, 7), f_work)
        P = sPL
        a(f"""s_min_u32 s{P+1}, s{P}, s{P+4}
        s_max_u32 s{P}, s{P}, s{P+4}
        s_max_u32 s{P+3}, s{P+2}, s{P+6}
        s_min_u32 s{P+2}, s{P+2}, s{P+6}
        s_max_u32 s{P+4}, s{P+1}, s{P+3}
        s_min_u32 s{P+1}, s{P+1}, s{P+3}
        v_mov_b32 v{uu}, s{P}
        v_mov_b32 v{uu+3}, s{P+2}
        v_mov_b32 v{uu+1}, s{P+4}
        v_mov_b32 v{uu+2}, s{P+1}""")
        self.dw('ds_write_b128', vT, uu, 4)
        self.stamp('F2p')
        V.release(big, 8 * len(freg)); V.release(gr, 2); V.release(vGR); V.release(vRid)
        ffn = V.alloc(48); ga_ = V.alloc(16); gb_ = V.alloc(16)
        vm.wait('gu')
        self.barrier()
        self.stamp('F2')
        def gu_frags():
            for s in range(8):
                self.tr(ffn + 4 * s, vGr, s * 1024); self.tr(ffn + 4 * s + 2, vGr, s * 1024 + 512)
        a(f"""s_cmp_lt_u32 s{sWAVE}, 4
        s_cbranch_scc1 L_CSEL""")
        fq0, vq0 = list(fq), list(vm.q)
        ffn_dma(fd[4])
        gu_frags()
        if l2 == 1: ln2_tile()
        if oc == 1: out_calc()
        a("""s_branch L_CSELD
        L_CSEL:""")
        lg.reset(); fq[:] = fq0; vm.q = vq0
        self.r128(uu, vT + 1)
        S(T0, 'w*512 + L_XS'); a(f'v_add_u32 v{vT+2}, s{T0}, v{vL8}')
        S(T0, 'w*4 + L_K3'); a(f'v_mov_b32 v{vT+3}, s{T0}')
        lg.wait_all()
        c4 = uu + 4
        for n, ctl in enumerate(('quad_perm:[1,0,3,2]', 'quad_perm:[2,3,0,1]', 'row_half_mirror')):
            for i in range(4): self.dpp('v_max_u32', c4 + i, uu + 3 - i, uu + i, ctl)
            if n == 2: break
            a(f"""v_max_u32 v{c4+4}, v{c4}, v{c4+2}
            v_max_u32 v{c4+5}, v{c4+1}, v{c4+3}
            v_min_u32 v{c4+6}, v{c4}, v{c4+2}
            v_min_u32 v{c4+7}, v{c4+1}, v{c4+3}
            v_max_u32 v{uu}, v{c4+4}, v{c4+5}
            v_min_u32 v{uu+1}, v{c4+4}, v{c4+5}
            v_max_u32 v{uu+2}, v{c4+6}, v{c4+7}
            v_min_u32 v{uu+3}, v{c4+6}, v{c4+7}""")
        for i in range(4): a(f'v_readfirstlane_b32 s{P+i}, v{c4+i}')
        a(f"""s_bitcmp1_b32 s{sWAVE}, 0
        s_cselect_b32 s{P}, s{P+1}, s{P}
        s_cselect_b32 s{P+2}, s{P+3}, s{P+2}
        s_bitcmp1_b32 s{sWAVE}, 1
        s_cselect_b32 s{P}, s{P+2}, s{P}
        s_and_b32 s{T2}, s{P}, 4095""")
        S(T0, '((15 - (T2 >> 8))*2 + (T2 & 1))*16384 + CAND'); S(T1, 'kq*1024 + T0'); S(T0, 'T0 + 8192')
        va(vT + 6, [(0, 4, 8)])
        def sel_work():
            self.stamp('sel')
            ffn_dma(fd[4], T3)
            gu_frags()
            if l2 == 1: ln2_tile()
            if oc == 1: out_calc()
            S(T2, 'T2*4 + w')
        self.try_load(lambda: (self.bl(uu + 4, 2, vT + 6, rWS, T0, 0, 'sc1'), self.bl(uu, 4, vL16, rWS, T1, 0, 'sc1')), [uu + 1, uu + 3, uu + 5], vT + 4, sel_work)
        a(f'ds_write2_b32 v{vT+2}, v{uu}, v{uu+2} offset0:0 offset1:1'); lg.issue()
        for ctl in ('quad_perm:[1,0,3,2]', 'quad_perm:[2,3,0,1]', 'row_half_mirror', 'row_ror:8'): self.dpp('v_add_f32', uu + 4, uu + 4, uu + 4, ctl)
        a(f"""v_cvt_pk_bf16_f32 v{uu+4}, 0, v{uu+4}
        v_ashrrev_i32 v{uu+5}, 31, v{uu+4}
        v_or_b32 v{uu+5}, 0x80000000, v{uu+5}
        v_xor_b32 v{uu+4}, v{uu+4}, v{uu+5}
        v_and_b32 v{uu+4}, s{sMASK}, v{uu+4}
        v_or_b32 v{uu+4}, s{T2}, v{uu+4}""")
        self.dw('ds_write_b32', vT + 3, uu + 4, 1)
        a('L_CSELD:')
        V.release(vFG); V.release(vFD)
        a(f'v_mov_b32 v{vT}, {L_K3}')
        va(vT + 4, [(0, 4, 16), (5, 1, 8)])
        S(T1, 'fs*8192 + HGR'); S(T7, '(kq*8 + w)*256 + T1')
        self.barrier()
        self.stamp('xsel')
        self.r128(uu, vT)
        lg.wait_all()
        a(f"""v_max_u32 v{uu+4}, v{uu}, v{uu+1}
        v_max_u32 v{uu+5}, v{uu+2}, v{uu+3}
        v_min_u32 v{uu+6}, v{uu}, v{uu+1}
        v_min_u32 v{uu+7}, v{uu+2}, v{uu+3}
        v_min_u32 v{uu+1}, v{uu+4}, v{uu+5}
        v_max_u32 v{uu}, v{uu+4}, v{uu+5}
        v_max3_u32 v{uu+1}, v{uu+1}, v{uu+6}, v{uu+7}
        v_cndmask_b32 v{vT}, v{uu+1}, v{uu}, {sr(sCMP, 2)}
        v_readfirstlane_b32 s{sK1}, v{uu}
        v_and_b32 v{vT}, 3, v{vT}
        v_readfirstlane_b32 s{sK2}, v{uu+1}
        v_lshl_add_u32 v{vT}, v{vT}, 9, v{vXs}""")
        self.r128(uu + 4, vT)
        if oc < 2:
            for q in range(2): self.r128(op + 4 * q, vOT, q * 8 * 144, 'ot')
        a(f"""s_bfe_u32 s{sROW0}, s{sK1}, {3 | (11 << 16)}
        s_bfe_u32 s{sROW1}, s{sK2}, {3 | (11 << 16)}
        s_sub_u32 s{sROW0}, 2047, s{sROW0}
        s_sub_u32 s{sROW1}, 2047, s{sROW1}
        s_waitcnt lgkmcnt({2 if oc < 2 else 0})""")
        gd = [ga_ + 4 * i for i in range(4)] + [gb_ + 4 * i for i in range(4)]
        for s in range(8):
            a(f'v_mfma_f32_16x16x32_bf16 {vr(gd[s], 4)}, {vr(uu + 4, 4)}, {vr(ffn + 4*s, 4)}, 0')
        p0, p1 = uu, uu + 2
        for p, b in ((p0, 0), (p1, 4)):
            a(f'v_add_f32 v{p}, v{gd[b]}, v{gd[b+1]+1}')
            a(f'v_add_f32 v{p+1}, v{gd[b+2]+2}, v{gd[b+3]+3}')
        a(f"""v_add_f32 v{p0}, v{p0}, v{p0+1}
        v_add_f32 v{p1}, v{p1}, v{p1+1}
        v_mov_b32 v{p0+1}, s{sTAG}
        v_permlane16_swap_b32 v{p1}, v{p1+1}
        s_cmp_ge_u32 s{sJ}, 28
        s_cbranch_scc1 L_NOHP
        v_add_f32 v{p0}, v{p0}, v{p1+1}
        s_mov_b32 exec_lo, 0xffff
        s_mov_b32 exec_hi, 0xffff""")
        self.bs2([(p0, 2, vT + 4, T7, 0)])
        a("""s_mov_b64 exec, -1
        L_NOHP:""")
        self.stamp('Hpub')
        vOr = V.alloc(); vOa = V.alloc()
        def out_store():
            S(T0, 'rt*128 + w*16'); va(vOr, [(3, 3, 1)], T0)
            S(T2, 'T0*2048 + cb*128'); S(T3, 'T2 + 16384')
            va(vOa, [(3, 3, 2048), (0, 3, 16)])
            for q in range(2):
                if q: a(f'v_add_u32 v{vOr}, 8, v{vOr}')
                a(f"""v_cmp_ne_u32 vcc, s{sROW0}, v{vOr}
                v_cmp_ne_u32 {sr(sCMP, 2)}, s{sROW1}, v{vOr}
                s_and_b64 exec, vcc, {sr(sCMP, 2)}""")
                self.bs(op + 4 * q, 4, vOa, rOUT, (T2, T3)[q], 0, o.get('outmod', 'sc1'), count=False)
                a('s_mov_b64 exec, -1')
        lg.wait('ot')
        if o.get('outat', 1) == 0: assert oc < 2; out_store()
        fz = V.alloc(4)
        sFR, sFK, sFC0 = T4, T5, T6
        a(f"""s_bitcmp1_b32 s{sX if TL else sRT}, {1 if TL else 2}
        s_cselect_b32 s{sFR}, s{sROW1}, s{sROW0}
        s_cselect_b32 s{sFK}, s{sK2}, s{sK1}
        s_cmp_lg_u32 s{sWAVE}, 7
        s_cbranch_scc1 L_NOFZ
        s_cmp_lg_u32 s2, 0
        s_cbranch_scc1 L_NONON
        v_mov_b32 v{vT+2}, s{sTAG}
        s_mov_b64 exec, 1""")
        self.bs(vT + 2, 1, vZ, rWS, '0', 0, 'sc1', count=False)
        a(f"""s_mov_b64 exec, -1
        L_NONON:""")
        S(sFC0, '(x >> 2)*2 + (x & 1)' if TL else '(rt >> 3)*2 + (rt & 1)')
        S(T7, '(cb*8 + x)*(56*128) + GGR' if TL else '(cb*8 + (rt >> 2)*2 + (rt & 1))*(56*128) + GGR')
        S(sU, 'T4*2048 + cb*128 + T6*32')
        va(vT + 6, [(0, 3, 4)])
        S(T0, 'T6*32 + L_GB'); a(f'v_add_u32 v{vT+1}, s{T0}, v{vT+6}')
        a(f'ds_read_b32 v{fz+2}, v{vT+1}')
        S(sK1, '((T4 >> 7)*2 + ((T5 >> 2) & 1))*16384 + cb*256 + T6*64 + CAND'); S(sK2, 'k1 + 4096')
        va(vT + 7, [(0, 3, 8)])
        ld_fz = lambda: (self.bl(st, 2, vT + 7, rWS, sK1, 0, 'sc1'), self.bl(fz, 2, vT + 7, rWS, sK2, 0, 'sc1'))
        q_ = list(vm.q); ld_fz(); vm.q = q_
        a(f"""s_and_b32 s{T0}, s{sFK}, s{sMASK}
        s_ashr_i32 s{T2}, s{T0}, 31
        s_andn2_b32 s{T2}, 0x7fff0000, s{T2}
        s_or_b32 s{T2}, s{T2}, 0x80000000
        s_xor_b32 s{T0}, s{T0}, s{T2}
        v_mov_b32 v{fz+3}, s{T0}
        v_mul_f32 v{fz+3}, s{sL2E}, v{fz+3}
        v_exp_f32 v{fz+3}, -v{fz+3}
        v_add_f32 v{fz+3}, 1.0, v{fz+3}
        v_rcp_f32 v{fz+3}, v{fz+3}""")
        self.round1(fz + 3)
        a(f"""L_NOFZ:
        s_cmp_lt_u32 s{sJ}, 28
        s_cbranch_scc1 L_HSEC""")
        if oc == 2:
            out_calc()
            self.barrier()
            for q in range(2): self.r128(op + 4 * q, vOT, q * 8 * 144)
            lg.wait_all()
        a("""s_branch L_GSEC
        L_HSEC:""")
        a(f"""s_cmp_lt_u32 s{sWAVE}, 4
        s_cbranch_scc1 L_HW""")
        if oc == 2: out_calc()
        a("""s_branch L_NOH
        L_HW:""")
        S(T0, 'w*256 + T1')
        va(vT, [(4, 2, 2048), (0, 4, 16)])
        S(T2, 'w*32 + L_ACT'); va(vT + 1, [(5, 1, 128), (2, 1, 16), (1, 1, 8), (3, 1, 4), (0, 1, 2)], T2)
        a(f"""s_cmp_lg_u32 s{sLOC}, 0
        s_cbranch_scc1 L_HLOC""")
        self.spoll([(q, 1, T0, q * 2048 + 1024 + 252) for q in range(4)], range(4))
        a('L_HLOC:')
        self.stamp('Hpre')
        g, u = ga_, ga_ + 4
        self.try_load(lambda: [self.bl(ga_ + 4 * m, 4, vT, rWS, T0, m * 1024, 'sc1') for m in range(2)], [g + 1, g + 3, u + 1, u + 3], vT + 2, out_calc if oc == 2 else None)
        a(f"""v_permlane32_swap_b32 v{g}, v{g+2}
        v_permlane32_swap_b32 v{u}, v{u+2}
        v_add_f32 v{g}, v{g}, v{g+2}
        v_add_f32 v{u}, v{u}, v{u+2}
        v_mov_b32 v{g+2}, v{g}
        v_mov_b32 v{u+2}, v{u}
        v_permlane16_swap_b32 v{g}, v{g+2}
        v_permlane16_swap_b32 v{u}, v{u+2}
        v_add_f32 v{g}, v{g}, v{g+2}
        v_add_f32 v{u}, v{u}, v{u+2}""")
        self.round2(g, u)
        self.silu(g, vT + 2)
        a(f"""v_mul_f32 v{g}, v{g}, v{u}
        v_cvt_pk_bf16_f32 v{g}, v{g}, v{g}
        ds_write_b16 v{vT+1}, v{g}
        L_NOH:""")
        va(vT, [(2, 1, 128), (5, 1, 16)], None, L_ACT)
        va(vT + 1, [(4, 2, 56 * 128), (0, 4, 8)])
        va(vT + 2, [(0, 2, 4096)] if TL else [(0, 1, 64 * 4096), (1, 1, 2 * 4096)])
        S(T0, '(kq*8 + w)*(4*56*128) + fs*128 + GGR')
        S(T1, ('(kq*8 + w)*16384' if TL else '(((kq & 1)*4 + (w >> 1))*8 + (w & 1)*4 + (kq >> 1))*4096') + ' + x*64 + (j >> 2)*4 + INB + 3072')
        vm.wait_all()
        self.barrier()
        self.stamp('Hok')
        for s in range(4):
            self.r128(ga_ + 4 * s, vT, s * 32, ('ac', s))
            self.tr(ffn + 32 + 4 * s, vDr, s * 8192, ('ac', s)); self.tr(ffn + 32 + 4 * s + 2, vDr, s * 8192 + 1024, ('ac', s))
        for s in range(4):
            lg.wait(('ac', s))
            a(f'v_mfma_f32_32x32x16_bf16 {vr(gb_, 16)}, {vr(ga_ + 4*s, 4)}, {vr(ffn + 32 + 4*s, 4)}, ' + ('0' if s == 0 else vr(gb_, 16)))
        if oc == 2:
            for q in range(2): self.r128(op + 4 * q, vOT, q * 8 * 144)
        a(f'v_mov_b32 v{gb_+1}, s{sTAG}')
        self.bs(gb_, 2, vT + 1, rWS, T0, 0, 'sc1')
        a('s_mov_b64 exec, 15')
        self.bs(gb_ + 1, 1, vT + 2, rWS, T1, 0, 'sc1')
        a('s_mov_b64 exec, -1')
        self.stamp('Gpub')
        lg.wait_all()
        a('L_GSEC:')
        if o.get('outat', 1) == 1: out_store()
        a(f"""s_cmp_ge_u32 s{sJ}, 16
        s_cbranch_scc1 L_FIN""")
        self.inbox(6, 8, range(7))
        self.stamp('Gpre')
        a(f"""s_barrier
        s_cmp_lg_u32 s{sWAVE}, 7
        s_cbranch_scc1 L_FIN""")
        S(T0, 'T7 + 4096')
        gg = [ga_ + 4 * i for i in range(4)] + [uu + 4 * i for i in range(3)]
        self.poll(lambda: [self.bl(gg[n], 4, vL16, rWS, (T7, T0)[n >> 2], (n & 3) * 1024, 'sc1') for n in range(7)],
                  [gg[n] + 1 + 2 * e for n in range(7) for e in range(2)], vT)
        self.finish_load(None, ld_fz, [st + 1, fz + 1], vT)
        self.stamp('Gok')
        for n in range(1, 7):
            for e in (0, 2): a(f'v_add_f32 v{gg[0]+e}, v{gg[0]+e}, v{gg[n]+e}')
        y0, y1 = gg[0], gg[0] + 1
        a(f'v_mov_b32 v{y1}, v{gg[0]+2}')
        for y in (y0, y1): self.dpp('v_add_f32', y, y, y, 'row_ror:8')
        for sw in ('v_permlane16_swap_b32', 'v_permlane32_swap_b32'):
            for y in (y0, y1): a(f'v_mov_b32 v{y+2}, v{y}')
            for y in (y0, y1): a(f'{sw} v{y}, v{y+2}')
            self.pk('add', y0, y0, y0 + 2)
        self.round2(y0, y1)
        self.pk('mul', y0, y0, fz + 3, bc=(1,))
        self.unpack(vT, vT + 1, st)
        self.round2(y0, y1)
        self.pk('add', y0, y0, vT)
        self.unpack(vT, vT + 1, fz + 2)
        self.round2(y0, y1)
        self.pk('mul', y0, y0, vT)
        self.unpack(vT, vT + 1, fz)
        self.round2(y0, y1)
        self.pk('add', y0, y0, vT)
        a(f'v_cvt_pk_bf16_f32 v{y0}, v{y0}, v{y1}')
        a('s_mov_b64 exec, 0xff')
        self.bs(y0, 1, vT + 6, rOUT, sU, 0, 'sc1')
        a('s_mov_b64 exec, -1')
        a('L_FIN:')
        if self.prof:
            a('s_waitcnt vmcnt(0) lgkmcnt(0)')
            self.stamp('end')
            a(f's_memrealtime {sr(sTM, 2)}')
            a('s_waitcnt lgkmcnt(0)')
            a(f'v_writelane_b32 v255, s{sTM}, 61')
            S(T0, '(wg*8 + w)*256 + STAMPS')
            a(f'v_writelane_b32 v255, s{sSPIN}, 62')
            a(f'v_lshlrev_b32 v{vT+1}, 2, v{vL}')
            a(f'buffer_store_dword v255, v{vT+1}, {sr(rWS, 4)}, s{T0} offen')
            S(T0, 'T0 + 0x100000')
            a(f'buffer_store_dword v254, v{vT+1}, {sr(rWS, 4)}, s{T0} offen')
        a('L_END:')
        a('s_endpgm')
        return self

    def text(self):
        a = self.a
        npad = a.fix_hazards()
        errs = a.check_waits([NAME])
        for e in errs: print('WAITERR', e, file=sys.stderr)
        assert not errs
        hdr = open(os.path.join(os.path.dirname(os.path.abspath(__file__)), 'header.txt')).read()
        s = hdr + '; @launch grid=(256,1,1) block=(512,1,1) lds=163840\n'
        s += '.amdgcn_target "amdgcn-amd-amdhsa--gfx950"\n.text\n'
        s += f'.globl {NAME}\n.p2align 8\n.type {NAME},@function\n'
        body = a.text()
        import subprocess, tempfile
        with tempfile.TemporaryDirectory() as td:
            open(td + '/t.s', 'w').write('.amdgcn_target "amdgcn-amd-amdhsa--gfx950"\n.text\n' + body.replace('CODE_KB', '20480'))
            subprocess.run(['clang', '-x', 'assembler', '-target', 'amdgcn-amd-amdhsa', '-mcpu=gfx950', '-c', td + '/t.s', '-o', td + '/t.o'], check=True)
            subprocess.run(['llvm-objcopy', '-O', 'binary', '-j', '.text', td + '/t.o', td + '/t.bin'], check=True)
            size = os.path.getsize(td + '/t.bin')
        print('; code bytes', size, file=sys.stderr)
        s += body.replace('CODE_KB', str((size // 1024 + 1) * 1024))
        s += '.p2align 10\n.fill 768, 4, 0xbf800000\n'
        s += '.section .rodata,"a"\n' + kernel_desc(NAME, 256, 102)
        print(f'; vgpr hi {self.V.hi}, nops {npad}, instrs {sum(1 for k, _ in a.items if k == "ins")}', file=sys.stderr)
        return s


if __name__ == '__main__':
    import argparse, json
    ap = argparse.ArgumentParser()
    ap.add_argument('-o', default='/dev/stdout')
    ap.add_argument('--prof', action='store_true')
    ap.add_argument('--opts', default='{}')
    args = ap.parse_args()
    g = Gen(args.prof, json.loads(args.opts)).build()
    t = g.text()
    open(args.o, 'w').write(t)
    if args.prof: open(args.o + '.stamps', 'w').write(json.dumps(g.stnames))
```

```python
import sys, os
sys.path.insert(0, os.path.dirname(os.path.abspath(__file__)))
from asm import *

NAME = 'adaLN_cond__linear_kernel_hedgehog__moe_arch_mod__prompt_kernel'

NONCE = 0x0
MARK = 0x100
GR = 0x010000
MODP2 = 0x020000
SINB = 0x040000
AINB = 0x080000
INA = 0x200000
INB = 0x100000
HF = 0x400000
OF = 0x800000
STAT = 0xC00000
CAND = 0x2000000
HGR = 0x1400000
ZP = 0x1480000
GGR = 0x1500000
KVP = 0x1800000
KIN = 0x1C00000
STAMPS = 0x1600000
WS_BYTES = 268435456

SLOT = 24576
SCR = 147456
L_A1 = SCR
L_M2 = SCR + 2048
L_WPHI = SCR + 12288
L_ST = SCR + 6144
L_MP = SCR + 8192
L_XF = SCR
L_PHK = 0
L_V = 32768
WO_H0 = 32768
WO_H1 = 98304
GS = 0
L_KVF = GS
L_ZF = GS + 8192
L_EXCH = GS
L_MT = GS + 12288
L_GU = 32768
L_DN = 98304
TS = 131072
L_SP = TS
L_ST2 = TS + 4096
L_K1 = TS + 5120
L_K2 = TS + 5184
L_K3 = TS + 5312
L_XS = TS + 5632
L_ACT = TS + 7680
L_TB = TS + 7936
L_GB = L_TB + 256
L_OT = TS + 8704
L_XT = GS

SPIN_LIMIT = 300000

sWAVE, sTAG, sSPIN, sMASK, sL2E = 3, 4, 5, 6, 7
sX, sJ, sR1, sHP, sCB = 8, 9, 10, 11, 12
T0, T1, T2, T3, T4, T5, T6, T7 = 13, 14, 15, 16, 17, 18, 19, 20
sRT = 21
sCMP = 22
sPL = 24
rWS, rX, rW, rWO, rWM, rWG, rWU, rWD, rOUT = 32, 36, 40, 44, 48, 52, 56, 60, 64
KA = 68
pWPHI, pWR, pC = KA + 4, KA + 10, KA + 18
sK1, sK2, sROW0, sROW1, sFS, sKQ, sKH, sKF = 68, 69, 70, 71, 74, 75, 76, 77
sFG, sFD, sU, sROT, sWB, sU0 = 80, 81, 82, 83, 84, 85
sWO2, sW1K, sMF = 88, 89, 90
sINB, sRow, sGTB, sC32 = 92, 93, 94, 95
sXC = 94
pDBG = 30
sLOC = 93
XT = (96, 97, 98, 99)
sTM = 100
ENV = dict(wg=2, w=sWAVE, x=sX, j=sJ, r1=sR1, hp=sHP, cb=sCB, rt=sRT, row=sRow, gtb=sGTB, c32=sC32, kh=sKH, kf=sKF, fs=sFS, kq=sKQ,
           rot=sROT, wb=sWB, u0=sU0, wo2=sWO2, w1k=sW1K, mf=sMF, u=sU, fg=sFG, fd=sFD, T0=T0, T1=T1, T2=T2, T3=T3, T4=T4, T5=T5, T6=T6, T7=T7, row0=sROW0, row1=sROW1, k1=sK1)


class Gen:
    def __init__(self, prof=False, opts=None):
        self.a = Asm()
        self.vm = Counter(self.a, 'vmcnt', 63)
        self.lg = Counter(self.a, 'lgkmcnt', 15)
        self.V = RegAlloc(254, 1)
        self.prof = prof
        self.nopk = False
        self.nst = 0
        self.stnames = []
        self.S = SExpr(self.a, ENV, {k: v for k, v in globals().items() if isinstance(v, int) and k.isupper() and k not in ENV}, XT)
        self.o = dict(AD=12, AD2=4, wburst=(0, 3, 0, 0, 3, 3), wxor=3, LASTB=13,
                      sched={1: 'm1 p2', 2: 's4', 3: 'm1 s4', 4: 'p2', 5: 'm1 g2', 7: 'm1 h g2 p3', 9: 'g2', 10: 'g2', 11: 'r', 12: 'P', 14: 'o4 f4', 15: 'f2'}, fdma=(3, 0, 1, 1, 1), wowin=(6, 0, 2))
        if opts: self.o.update(opts)

    def bl(self, dst, n, voff, srd, soff, imm=0, mods='', tag=None):
        op = {1: 'dword', 2: 'dwordx2', 4: 'dwordx4'}[n]
        so = soff if isinstance(soff, str) else (sr(soff))
        self.a(f'buffer_load_{op} {vr(dst, n)}, v{voff}, {sr(srd, 4)}, {so} offen' + (f' offset:{imm}' if imm else '') + (' ' + mods if mods else ''))
        self.vm.issue(tag)
    def bs(self, src, n, voff, srd, soff, imm=0, mods='', tag=None, count=True):
        op = {1: 'dword', 2: 'dwordx2', 4: 'dwordx4'}[n]
        so = soff if isinstance(soff, str) else (sr(soff))
        self.a(f'buffer_store_{op} {vr(src, n)}, v{voff}, {sr(srd, 4)}, {so} offen' + (f' offset:{imm}' if imm else '') + (' ' + mods if mods else ''))
        if count: self.vm.issue(tag)
    def bs2(self, items):
        a = self.a
        LL, D = a.label('LOC'), a.label('LOCD')
        a(f's_cmp_lg_u32 s{sLOC}, 0')
        a(f's_cbranch_scc1 {LL}')
        for src, n, voff, soff, imm in items: self.bs(src, n, voff, rWS, soff, imm, 'sc1', count=False)
        a(f's_branch {D}')
        a(f'{LL}:')
        for src, n, voff, soff, imm in items: self.bs(src, n, voff, rWS, soff, imm, '', count=False)
        a(f'{D}:')
    def dma(self, voff, srd, soff, imm=0, mods='', tag=None):
        self.a(f'buffer_load_dwordx4 v{voff}, {sr(srd, 4)}, {sr(soff)} offen' + (f' offset:{imm}' if imm else '') + (' ' + mods if mods else '') + ' lds')
        self.vm.issue(tag)
    def dr(self, op, dst, n, addr, off=0, tag=None):
        assert 0 <= off < 65536, off
        self.a(f'{op} {vr(dst, n)}, v{addr}' + (f' offset:{off}' if off else ''))
        self.lg.issue(tag)
    def tr(self, dst, addr, off, tag=None): self.dr('ds_read_b64_tr_b16', dst, 2, addr, off, tag)
    def r128(self, dst, addr, off=0, tag=None): self.dr('ds_read_b128', dst, 4, addr, off, tag)
    def dw(self, op, addr, src, n, off=0, tag=None):
        assert 0 <= off < 65536, off
        self.a(f'{op} v{addr}, {vr(src, n)}' + (f' offset:{off}' if off else ''))
        self.lg.issue(tag)
    def barrier(self):
        self.lg.wait_all()
        self.a('s_barrier')
    def stamp(self, name):
        ex = self.o.get('exfil')
        if ex and name in ex[:2]:
            self.a(f's_memrealtime {sr(sTM, 2)}')
            self.lg.wait_all()
            self.a(f'v_writelane_b32 v255, s{sTM}, {1 + ex.index(name)}')
        if not self.prof: return
        only = self.o.get('only')
        if only and name not in only and name != 'end': return
        self.a(f's_memtime {sr(sTM, 2)}')
        self.a(f's_memrealtime s[0:1]')
        self.lg.wait_all()
        self.a(f'v_writelane_b32 v255, s{sSPIN if self.o.get("spinst") and self.nst > 3 else sTM}, {self.nst}')
        self.a(f'v_writelane_b32 v254, s0, {self.nst}')
        self.stnames.append(name)
        self.nst += 1
        assert self.nst <= 60
    def unpack(self, lo, hi, src):
        self.a(f'v_lshlrev_b32 v{lo}, 16, v{src}')
        self.a(f'v_and_b32 v{hi}, s{sMASK}, v{src}')
    def round1(self, r):
        self.a(f'v_cvt_pk_bf16_f32 v{r}, 0, v{r}')
    def round2(self, r0, r1):
        self.round1(r0); self.round1(r1)
    def round_list(self, regs):
        for r in regs: self.round1(r)
    def pk(self, op, d, s0, s1, s2=None, bc=(), neg=()):
        srcs = [s0, s1] + ([s2] if s2 is not None else [])
        if self.nopk:
            for h in range(2):
                t = []
                for k, r in enumerate(srcs):
                    kind, n = r if isinstance(r, tuple) else ('v', r)
                    t.append(('-' if k in neg else '') + f'{kind}{n if k in bc else n + h}')
                e64 = '' if op == 'fma' else ('_e64' if (neg or t[1][0] == 's') else '')
                self.a(f'v_{op}_f32{e64} v{d+h}, ' + ', '.join(t))
            return
        txt, sel, selhi = [], [], []
        for k, r in enumerate(srcs):
            kind, n = r if isinstance(r, tuple) else ('v', r)
            if k in bc:
                txt.append(f'{kind}[{n & ~1}:{(n & ~1) + 1}]'); sel.append(n & 1); selhi.append(n & 1)
            else:
                assert n % 2 == 0
                txt.append(f'{kind}[{n}:{n+1}]'); sel.append(0); selhi.append(1)
        assert d % 2 == 0
        m = ''
        if any(sel): m += ' op_sel:[' + ','.join(map(str, sel)) + ']'
        if not all(selhi): m += ' op_sel_hi:[' + ','.join(map(str, selhi)) + ']'
        if neg:
            ng = ','.join('1' if k in neg else '0' for k in range(len(srcs)))
            m += f' neg_lo:[{ng}] neg_hi:[{ng}]'
        self.a(f'v_pk_{op}_f32 v[{d}:{d+1}], ' + ', '.join(txt) + m)
    def dpp(self, op, d, s0, s1, ctl):
        self.a(f'{op}_dpp v{d}, v{s0}, v{s1} {ctl} row_mask:0xf bank_mask:0xf')
    def allreduce(self, v, t, op='v_add_f32', lo=True, b3=True):
        if lo:
            self.dpp(op, v, v, v, 'quad_perm:[1,0,3,2]')
            self.dpp(op, v, v, v, 'quad_perm:[2,3,0,1]')
            self.dpp(op, v, v, v, 'row_half_mirror')
        self.dpp(op, v, v, v, 'row_ror:8')
        self.a(f'v_mov_b32 v{t}, v{v}')
        self.a(f'v_permlane16_swap_b32 v{v}, v{t}')
        self.a(f'{op} v{v}, v{v}, v{t}')
        self.a(f'v_mov_b32 v{t}, v{v}')
        self.a(f'v_permlane32_swap_b32 v{v}, v{t}')
        self.a(f'{op} v{v}, v{v}, v{t}')
    def poll(self, loads, tagregs, tmp=None):
        a = self.a
        L, D = a.label('POLL'), a.label('PDONE')
        a(f'{L}:')
        loads()
        self.vm.wait_all()
        self.tagcheck(tagregs, tmp)
        a(f's_cbranch_vccz {D}')
        a(f's_add_u32 s{sSPIN}, s{sSPIN}, 1')
        a(f's_cmp_lt_u32 s{sSPIN}, {SPIN_LIMIT}')
        a(f's_cbranch_scc1 {L}')
        a(f'{D}:')
    def weave(self, fn, extras):
        a = self.a
        keep = a.items; a.items = []
        fn()
        body = a.items; a.items = keep
        extras = list(extras); n = len(extras)
        for i, it in enumerate(body):
            while extras and (n - len(extras)) * len(body) <= i * n: extras.pop(0)()
            a.items.append(it)
        for e in extras: e()
    def tagcheck(self, tagregs, tmp):
        a = self.a
        if isinstance(tagregs[0], tuple):
            for t, sg in tagregs: a(f'v_xor_b32 v{t}, s{sg}, v{t}')
            r = [t for t, _ in tagregs]
            a(f'v_or3_b32 v{tmp}, v{r[0]}, v{r[1]}, v{r[2]}')
            for i in range(3, len(r), 2): a(f'v_or3_b32 v{tmp}, v{tmp}, v{r[i]}, v{r[min(i + 1, len(r) - 1)]}')
            a(f'v_and_b32 v{tmp}, 0xff, v{tmp}')
            a(f'v_cmp_ne_u32 vcc, 0, v{tmp}')
        elif len(tagregs) == 1:
            a(f'v_cmp_ne_u32 vcc, s{sTAG}, v{tagregs[0]}')
        else:
            a(f'v_bitop3_b32 v{tmp}, v{tagregs[0]}, v{tagregs[1]}, s{sTAG} bitop3:0x7e')
            for t in tagregs[2:]: a(f'v_bitop3_b32 v{tmp}, v{tmp}, v{t}, s{sTAG} bitop3:0xf6')
            a(f'v_cmp_ne_u32 vcc, 0, v{tmp}')
    def try_load(self, loads, tagregs, tmp=None, between=None, pre=None):
        a = self.a
        n0 = len(self.vm.q)
        loads()
        self.vm.q[-1] = tg = ('try', a.label('T'))
        if between: between()
        self.vm.wait(tg)
        OK = a.label('TOK')
        self.tagcheck(tagregs, tmp)
        a(f's_cbranch_vccz {OK}')
        q, l = list(self.vm.q), list(self.lg.q)
        if pre: pre()
        self.poll(loads, tagregs, tmp)
        self.vm.q, self.lg.q = q, l
        a(f'{OK}:')
    def finish_load(self, tg, loads, tagregs, tmp=None, pre=None):
        a = self.a
        self.vm.wait(tg)
        OK = a.label('TOK')
        self.tagcheck(tagregs, tmp)
        a(f's_cbranch_vccz {OK}')
        q, l = list(self.vm.q), list(self.lg.q)
        if pre: pre()
        self.poll(loads, tagregs, tmp)
        self.vm.q, self.lg.q = q, l
        a(f'{OK}:')
    def spoll(self, loads, checks, work=None, pipe=0):
        a = self.a
        L, C, D = a.label('SPOLL'), a.label('SCHK'), a.label('SDONE')
        def issue(note=''):
            for d, n, so, imm in loads:
                op = {1: 'dword', 2: 'dwordx2', 4: 'dwordx4', 8: 'dwordx8'}[n]
                a(f's_load_{op} {sr(sPL + d, n)}, {sr(rWS, 2)}, s{so} offset:{imm} glc' + note)
        if pipe:
            self.lg.wait_all()
            for k in checks: a(f's_not_b32 s{sPL + k}, s{sTAG}')
            issue(' ; nowait')
            if work: work()
            a(f'{L}:')
            a(f's_add_u32 s{sSPIN}, s{sSPIN}, 1')
            a(f's_cmp_ge_u32 s{sSPIN}, {SPIN_LIMIT}')
            a(f's_cbranch_scc1 {D}')
            ks = list(checks)
            a(f's_xor_b32 s{XT[0]}, s{sPL + ks[0]}, s{sTAG} ; nowait')
            for k in ks[1:]:
                a(f's_xor_b32 s{XT[1]}, s{sPL + k}, s{sTAG} ; nowait')
                a(f's_or_b32 s{XT[0]}, s{XT[0]}, s{XT[1]}')
            a(f's_cbranch_scc0 {D}')
            issue(' ; nowait')
            a(f's_sleep {pipe}')
            a(f's_branch {L}')
            a(f'{D}:')
            return
        if work:
            issue(); work()
            a(f's_branch {C}')
        a(f'{L}:')
        issue()
        a(f'{C}:')
        a(f's_add_u32 s{sSPIN}, s{sSPIN}, 1')
        a(f's_cmp_ge_u32 s{sSPIN}, {SPIN_LIMIT}')
        self.lg.wait_all()
        a(f's_cbranch_scc1 {D}')
        for k in checks:
            a(f's_cmp_lg_u32 s{sPL + k}, s{sTAG}')
            a(f's_cbranch_scc1 {L}')
        a(f'{D}:')
    def inbox(self, box, n, checks=None, work=None, pipe=0):
        self.spoll([(0, n, sINB, box * 512)], range(n) if checks is None else checks, work, pipe)
    def va(self, dst, terms, sreg=None, const=0, tmp=None):
        a = self.a; vL = self.vL
        first = True
        for sh, bits, mult in terms:
            full = sh + bits >= 6
            src = vL
            t = dst if first else tmp
            if sh == 0 and full: pass
            elif full: a(f'v_lshrrev_b32 v{t}, {sh}, v{vL}'); src = t
            elif sh == 0: a(f'v_and_b32 v{t}, {(1 << bits) - 1}, v{vL}'); src = t
            else: a(f'v_bfe_u32 v{t}, v{vL}, {sh}, {bits}'); src = t
            p2 = mult & (mult - 1) == 0
            k = mult.bit_length() - 1
            if first:
                if p2 and sreg is not None: a(f'v_lshl_add_u32 v{dst}, v{src}, {k}, s{sreg}'); sreg = None
                elif p2 and k: a(f'v_lshlrev_b32 v{dst}, {k}, v{src}')
                elif p2:
                    if src != dst: a(f'v_mov_b32 v{dst}, v{src}')
                else: a(f'v_mul_u32_u24 v{dst}, {mult}, v{src}')
            else:
                assert p2
                a(f'v_lshl_add_u32 v{dst}, v{src}, {k}, v{dst}')
            first = False
        if sreg is not None: a(f'v_add_u32 v{dst}, s{sreg}, v{dst}')
        if const: a(f'v_add_u32 v{dst}, {const}, v{dst}')
    def push(self, vaddr, soff, nl, vtmp, lab, wave=0):
        a = self.a
        a(f's_cmp_lg_u32 s{sWAVE}, {wave}')
        a(f's_cbranch_scc1 {lab}')
        a(f'v_mov_b32 v{vtmp}, s{sTAG}')
        a(f's_mov_b32 exec_hi, 0')
        if nl < 32: a(f's_mov_b32 exec_lo, {(1 << nl) - 1}')
        self.bs(vtmp, 1, vaddr, rWS, soff, 0, 'sc1', count=False)
        a('s_mov_b64 exec, -1')
        a(f'{lab}:')
    def silu(self, v, t):
        a = self.a
        a(f'v_mul_f32 v{t}, s{sL2E}, v{v}')
        a(f'v_exp_f32 v{t}, -v{t}')
        a(f'v_add_f32 v{t}, 1.0, v{t}')
        a(f'v_rcp_f32 v{t}, v{t}')
        a(f'v_mul_f32 v{v}, v{v}, v{t}')
        self.round1(v)
    def gemv_ops(self, wregs, cregs, acc, t0, t1, packed):
        ops = []
        assert t0 % 2 == 0 and t1 == t0 + 1
        for i, (w, c) in enumerate(zip(wregs, cregs)):
            cp = f'v[{c & ~1}:{(c & ~1) + 1}]'
            for d in range(4):
                tt = t0 + 2 * (d & 1)
                ops.append(f'v_lshlrev_b32 v{tt}, 16, v{w+d}')
                ops.append(f'v_and_b32 v{tt+1}, s{sMASK}, v{w+d}')
                ac = f'v[{acc+2*d}:{acc+2*d+1}]'
                if not packed:
                    for h in range(2): ops.append(f'v_mul_f32 v{acc+2*d+h}, v{tt+h}, v{c}' if i == 0 else f'v_fmac_f32 v{acc+2*d+h}, v{tt+h}, v{c}')
                elif i == 0: ops.append(f'v_pk_mul_f32 {ac}, v[{tt}:{tt+1}], {cp} op_sel:[0,{c & 1}] op_sel_hi:[1,{c & 1}]')
                else: ops.append(f'v_pk_fma_f32 {ac}, v[{tt}:{tt+1}], {cp}, {ac} op_sel:[0,{c & 1},0] op_sel_hi:[1,{c & 1},1]')
        for i in range(4): ops.append(f'v_permlane32_swap_b32 v{acc+i}, v{acc+4+i}')
        for i in range(4): ops.append(f'v_add_f32 v{acc+i}, v{acc+i}, v{acc+4+i}')
        for i in range(2): ops.append(f'v_permlane16_swap_b32 v{acc+i}, v{acc+2+i}')
        for i in range(2): ops.append(f'v_add_f32 v{acc+i}, v{acc+i}, v{acc+2+i}')
        for i in range(2): ops.append(f'v_add_f32_dpp v{acc+i}, v{acc+i}, v{acc+i} row_ror:8 row_mask:0xf bank_mask:0xf')
        ops.append(f'v_mov_b32_dpp v{acc}, v{acc+1} quad_perm:[0,1,2,3] row_mask:0xf bank_mask:0xc')
        return ops
    def sum8(self, b):
        self.pk('add', b, b, b + 2); self.pk('add', b + 4, b + 4, b + 6); self.pk('add', b, b, b + 4)
        self.a(f'v_add_f32 v{b}, v{b}, v{b+1}')
    def softmax_pm(self, p, e, out, t, mid=None, part=0, split=0):
        a = self.a
        mx, mn, u0, u1, s0, s1 = t, t + 1, t + 2, t + 3, t + 4, t + 6
        if part != 2:
            self.round_list([p + i for i in range(16)])
            a(f'v_max3_f32 v{mx}, v{p}, v{p+1}, v{p+2}')
            a(f'v_min3_f32 v{mn}, v{p}, v{p+1}, v{p+2}')
            for i in range(3, 15, 2):
                a(f'v_max3_f32 v{mx}, v{mx}, v{p+i}, v{p+i+1}')
                a(f'v_min3_f32 v{mn}, v{mn}, v{p+i}, v{p+i+1}')
            a(f'v_max_f32 v{u0}, v{mx}, v{p+15}')
            a(f'v_min_f32 v{u1}, v{mn}, v{p+15}')
            a(f'v_max_f32 v{mx}, v{mx}, v{p+15}')
            a(f'v_min_f32 v{mn}, v{mn}, v{p+15}')
            a(f'v_permlane32_swap_b32 v{mx}, v{u0}')
            a(f'v_permlane32_swap_b32 v{mn}, v{u1}')
            a(f'v_max_f32 v{mx}, v{mx}, v{u0}')
            a(f'v_min_f32 v{mn}, v{mn}, v{u1}')
            self.pk('mul', mx, mx, ('s', sL2E), bc=(1,))
            for i in range(0, 16, 2):
                self.pk('fma', e + i, p + i, ('s', sL2E), mx, bc=(1, 2), neg=(2,))
                self.pk('fma', p + i, p + i, ('s', sL2E), mn, bc=(1, 2), neg=(0,))
        for i in range(split if part == 2 else 0, 16):
            if mid and i == mid[0]: mid[1]()
            if part == 1 and i == split: return
            a(f'v_exp_f32 v{e+i}, v{e+i}')
            a(f'v_exp_f32 v{p+i}, v{p+i}')
        self.pk('add', s0, e, e + 2); self.pk('add', s1, p, p + 2)
        for i in range(4, 16, 2):
            self.pk('add', s0, s0, e + i); self.pk('add', s1, s1, p + i)
        a(f'v_add_f32 v{u0}, v{s0}, v{s0+1}')
        a(f'v_add_f32 v{u1}, v{s1}, v{s1+1}')
        a(f'v_add_f32 v{mx}, v{s0}, v{s0+1}')
        a(f'v_add_f32 v{mn}, v{s1}, v{s1+1}')
        a(f'v_permlane32_swap_b32 v{mx}, v{u0}')
        a(f'v_permlane32_swap_b32 v{mn}, v{u1}')
        self.pk('add', mx, mx, u0)
        a(f'v_rcp_f32 v{mx}, v{mx}')
        a(f'v_rcp_f32 v{mn}, v{mn}')
        for i in range(0, 16, 2):
            self.pk('mul', e + i, e + i, mx, bc=(1,))
            self.pk('mul', p + i, p + i, mn, bc=(1,))
        for i in range(8):
            a(f'v_cvt_pk_bf16_f32 v{out+i}, v{e+2*i}, v{e+2*i+1}')
            a(f'v_cvt_pk_bf16_f32 v{out+8+i}, v{p+2*i}, v{p+2*i+1}')
    def ln_stats(self, xp, t, m_out, sd_out, fill=()):
        a = self.a
        fill = list(fill)
        def pad(n):
            for _ in range(n):
                if fill: a(fill.pop(0))
        s, u = t, t + 4
        a(f'v_mov_b32 v{u}, 0x3f803f80')
        for i in range(8):
            k = 2 * (i & 1)
            a(f'v_dot2_f32_bf16 v{s+k}, v{xp+i}, v{u}, ' + ('0' if i < 2 else f'v{s+k}'))
            a(f'v_dot2_f32_bf16 v{s+k+1}, v{xp+i}, v{xp+i}, ' + ('0' if i < 2 else f'v{s+k+1}'))
        pad(3)
        self.pk('add', s, s, s + 2)
        for ctl in ('quad_perm:[1,0,3,2]', 'quad_perm:[2,3,0,1]', 'row_half_mirror', 'row_ror:8'):
            pad(2 if ctl.endswith('3,2]') else 1)
            self.dpp('v_add_f32', s, s, s, ctl); self.dpp('v_add_f32', s + 1, s + 1, s + 1, ctl)
        pad(2)
        a(f'v_permlane16_swap_b32 v{s}, v{s+1}')
        a(f'v_add_f32 v{u}, v{s}, v{s+1}')
        a(f'v_add_f32 v{s}, v{s}, v{s+1}')
        pad(2)
        a(f'v_permlane32_swap_b32 v{s}, v{u}')
        a(f'v_add_f32 v{s}, v{s}, v{u}')
        a(f'v_mul_f32 v{u}, 0x3a800000, v{s}')
        a(f'v_mul_f32 v{s}, 0x3a800000, v{s}')
        pad(2)
        a(f'v_permlane16_swap_b32 v{s}, v{u}')
        a(f'v_fma_f32 v{sd_out}, -v{s}, v{s}, v{u}')
        a(f'v_cvt_pk_bf16_f32 v{m_out}, 0, v{s}')
        a(f'v_max_f32 v{sd_out}, 0, v{sd_out}')
        self.round1(sd_out)
        a(f'v_add_f32 v{sd_out}, 0x3727c5ac, v{sd_out}')
        self.round1(sd_out)
        a(f'v_sqrt_f32 v{sd_out}, v{sd_out}')
        pad(99)
        self.round1(sd_out)

    def stat_math(self, s, u, m_out, sd_out):
        a = self.a
        a(f'v_fma_f32 v{sd_out}, -v{s}, v{s}, v{u}')
        a(f'v_cvt_pk_bf16_f32 v{m_out}, 0, v{s}')
        a(f'v_max_f32 v{sd_out}, 0, v{sd_out}')
        self.round1(sd_out)
        a(f'v_add_f32 v{sd_out}, 0x3727c5ac, v{sd_out}')
        self.round1(sd_out)
        a(f'v_sqrt_f32 v{sd_out}, v{sd_out}')
        self.round1(sd_out)
    def ln_stats2(self, x0, x1, t, m_out, sd_out):
        a = self.a
        s0, s1, q0, q1, u = t, t + 1, t + 2, t + 3, t + 4
        a(f'v_mov_b32 v{u}, 0x3f803f80')
        for i in range(8):
            for xx, s_, q_ in ((x0, s0, q0), (x1, s1, q1)):
                a(f'v_dot2_f32_bf16 v{s_}, v{xx+i}, v{u}, ' + ('0' if i == 0 else f'v{s_}'))
                a(f'v_dot2_f32_bf16 v{q_}, v{xx+i}, v{xx+i}, ' + ('0' if i == 0 else f'v{q_}'))
        a(f"""v_permlane32_swap_b32 v{s0}, v{s1}
        v_permlane32_swap_b32 v{q0}, v{q1}
        v_add_f32 v{s0}, v{s0}, v{s1}
        v_add_f32 v{q0}, v{q0}, v{q1}
        v_permlane16_swap_b32 v{s0}, v{q0}
        v_add_f32 v{s0}, v{s0}, v{q0}""")
        for ctl in ('quad_perm:[1,0,3,2]', 'quad_perm:[2,3,0,1]', 'row_half_mirror', 'row_ror:8'): self.dpp('v_add_f32', s0, s0, s0, ctl)
        a(f"""v_mul_f32 v{q0}, 0x3a800000, v{s0}
        v_mul_f32 v{s0}, 0x3a800000, v{s0}
        v_permlane16_swap_b32 v{s0}, v{q0}""")
        self.stat_math(s0, q0, m_out, sd_out)

    def build(self):
        a, V, vm, lg, o, S = self.a, self.V, self.vm, self.lg, self.o, self.S
        E2 = range(0, 16, 2)
        TL = o.get('tl', 0)
        LCB = [(0, 4, 8 * 4096)] if TL else [(0, 3, 8 * 4096), (3, 1, 4096)]
        a(f'{NAME}:')
        a(f's_load_dwordx16 {sr(KA, 16)}, s[0:1], 0')
        a(f's_load_dwordx8 {sr(KA + 16, 8)}, s[0:1], 64')
        a(f's_load_dwordx2 {sr(rWS, 2)}, s[0:1], 104')
        a(f's_load_dwordx2 {sr(pDBG, 2)}, s[0:1], 96')
        a('s_cmp_ge_u32 s2, 256')
        a('s_cbranch_scc1 L_END')
        if self.prof:
            a(f's_memrealtime {sr(sCMP, 2)}')
            a(f's_memtime {sr(sTM, 2)}')
            a('v_mov_b32 v255, 0')
            a('v_mov_b32 v254, 0')
            self.stnames.append('start'); self.nst = 1
        vL = self.vL = V.alloc()
        vL16 = V.alloc()
        vZ = V.alloc()
        vT = V.alloc(8)
        va = lambda dst, terms, sreg=None, const=0: self.va(dst, terms, sreg, const, vT + 5)
        a(f"""v_lshrrev_b32 v{vT}, 6, v0
        v_and_b32 v{vL}, 63, v0
        v_mov_b32 v{vZ}, 0
        v_readfirstlane_b32 s{sWAVE}, v{vT}
        v_lshlrev_b32 v{vL16}, 4, v{vL}""")
        xr = V.alloc(8); acc = V.alloc(8); wphi = V.alloc(8); fr = V.alloc(8); vq = V.alloc(8); vv = V.alloc(8)
        vWM = V.alloc(); vCo = V.alloc(); vWd = V.alloc(); vL8 = V.alloc(); vL32S = V.alloc(); vGA = V.alloc()
        vB = V.alloc(6, 1); vFG = V.alloc(); vFD = V.alloc(); vWo = V.alloc(); vPW = V.alloc(); vXF = V.alloc()
        S(sX, 'wg & 7'); S(sJ, 'wg >> 3')
        S(T2, '(x*4 + w)*64')
        S(T0, 'T2*6144 + (j ^ 1)*128')
        va(vWM, [(3, 3, 4 * 12288), (0, 3, 16)])
        va(vCo, [(3, 3, 8)], T2)
        S(T3, '((x*32 + j)*4 + w - 4)*4096')
        for srd, size in ((rWM, 12582912), (rX, 4194304), (rWS, WS_BYTES)):
            a(f's_mov_b32 s{srd+2}, {size}')
            a(f's_mov_b32 s{srd+3}, 0x20000')
        a(f's_getreg_b32 s{sXC}, hwreg(HW_REG_XCC_ID, 0, 3)')
        if o.get('fakexcc') is not None: a(f's_and_b32 s{sXC}, s{sXC}, {o["fakexcc"]}')
        a(f"""s_getpc_b64 {sr(sCMP, 2) if not self.prof else sr(sPL, 2)}""")
        S(T6, '(j*7 + w)*128')
        va(vT + 6, [(5, 1, 28672)], T6)
        a(f"""v_min_u32 v{vT+6}, CODE_KB, v{vT+6}
        s_cmp_ge_u32 s{sWAVE}, 4
        s_waitcnt lgkmcnt(0)""")
        if self.prof:
            a(f'v_writelane_b32 v255, s{sTM}, 0')
            a(f'v_writelane_b32 v255, s{sCMP}, 63')
            a(f'v_writelane_b32 v254, s{sCMP}, 0')
            a(f's_mov_b64 {sr(sCMP, 2)}, {sr(sPL, 2)}')
        self.stamp('karg')
        raw = V.alloc(16); cv = V.alloc(4); vTk = V.alloc(2)
        xs = V.alloc(16); st = V.alloc(4); mq = V.alloc(4)
        a(f"""s_mov_b64 {sr(rWM, 2)}, {sr(KA + 20, 2)}
        s_mov_b64 {sr(rX, 2)}, {sr(KA, 2)}
        s_load_dword s{sTAG}, {sr(rWS, 2)}, {NONCE}
        s_cbranch_scc1 L_FS""")
        def setup():
            for srd, size in ((rW, 6291456), (rWO, 2097152), (rWG, 7340032), (rWU, 7340032), (rWD, 7340032), (rOUT, 4194304)):
                a(f's_mov_b32 s{srd+2}, {size}')
                a(f's_mov_b32 s{srd+3}, 0x20000')
            for srd, k in ((rW, 2), (rWO, 6), (rWG, 12), (rWU, 14), (rWD, 16), (rOUT, 22)):
                a(f's_mov_b64 {sr(srd, 2)}, {sr(KA + k, 2)}')
            a(f"""s_mov_b32 s{sSPIN}, 0
            s_mov_b32 s{sMASK}, 0xffff0000
            s_mov_b32 s{sL2E}, 0x3fb8aa3b""")
            S(sKH, 'w >> 2')
            va(vT + 2, [(4, 1, 64)]); va(vWd, [(0, 3, 16)])
            a(f'v_xor_b32 v{vWd}, v{vWd}, v{vT+2}'); va(vT + 2, [(3, 3, 6144)]); a(f'v_add_u32 v{vWd}, v{vWd}, v{vT+2}')
            va(vL8, [(0, 6, 8)])
            a(f'v_add_u32 v{vL32S}, {SCR}, v{vL16}')
            S(T0, '(w & 3)*4 + SCR')
            va(vGA, [(4, 2, 32), (0, 3, 128), (3, 1, 16)], T0)
            S(T1, '((j >> 4)*128 + w*8 + x)*1024 + (j & 15)*64 + SINB' if TL else '((x & 6) + ((x & 1)*2 + (j >> 4))*64 + w*8)*1024 + (j & 15)*64 + SINB')
        def tag_hash():
            a(f"""s_mul_i32 s{sTAG}, s{sTAG}, 0x9e3779b1
            s_add_u32 s{sTAG}, s{sTAG}, 0x7f4a7c15""")
        def code_pf():
            a(f's_and_b32 s{sCMP}, s{sCMP}, 0xfffffc00')
            a(f'global_load_dword v{vTk}, v{vT+6}, {sr(sCMP, 2)}')
        wq = [(n, t) for n in range(16) for t in range(3)]
        def w_base(n, wexpr):
            if n < 4 and o.get('wxor', 1):
                if o.get('wxor', 1) < 3: S(T7, '((j >> 4)*2) ^ n' if o.get('wxor', 1) == 1 else o.get('wxe', '((j >> 4) + (x >> 2)*2) ^ n'), n=n)
                else:
                    S(T7, o.get('wxe', '(j >> 4) + (x >> 2)*2'))
                    if n: a(f's_cmp_le_u32 s{T7}, {n - 1}'); a(f's_cselect_b32 s{T7}, {n}, {n - 1}')
                S(sU, f'(((T7 + u0) & 15)*8 + {wexpr})*(8*6144) + hp*128')
                S(T7, f'T7*SLOT + ({wexpr})*1024')
            else:
                S(sU, f'(((u0 + n) & 15)*8 + {wexpr})*(8*6144) + hp*128', n=n)
                S(T7, f'({wexpr})*1024 + q', q=(n % 6) * SLOT)
        def w_slot(n, t):
            S('m0', 'T7 + q', q=t * 8192)
            self.dma(vWd, rW, sU, 0, o.get('wmod', ''), ('W', n))
            if t < 2: S(sU, 'u + 2048')
        def w_next(cnt=1):
            for _ in range(cnt):
                n, t = wq.pop(0)
                if t == 0: w_base(n, 'w')
                w_slot(n, t)
        wb = list(o['wburst'])
        def w_early():
            if not o.get('wearly'): return
            S(sHP, '(x & 3)*4 + ((j & 3) ^ q)', q=o.get('hpx', 2)); S(sU0, o.get('u0', 'j & 12'))
            w_next(o['wearly'])
        a(f'global_load_dwordx2 {vr(cv, 2)}, v{vCo}, {sr(pC, 2)}'); vm.issue('c')
        for i in range(4):
            self.bl(raw + 4 * i, 4, vWM, rWM, T0, 0, o.get('ntwm', 'nt'), ('wm', i))
            if i < 3: S(T0, 'T0 + 12288')
        a('s_barrier')
        if o.get('bar1', 1): a('s_barrier')
        code_pf(); vm.issue()
        setup()
        wq0 = list(wq); w_early(); wq[:] = wq0
        S(T0, '(((w*16 + ((j ^ 1) & 15))*2 + (j >> 4))*8 + x)*512 + AINB')
        S(T2, ('(((j ^ 1) & 15)*8 + w*2)*512' if TL else '(((j ^ 1) & 7)*8 + w*2 + ((j >> 3) & 1))*512') + ' + x*64 + (j >> 4)*4 + INA')
        va(vT + 6, [(0, 1, 128 * 512), (1, 1, 512)] if TL else [(0, 2, 64 * 512)])
        vm.wait('c')
        self.unpack(cv + 2, cv + 3, cv + 1)
        a(f'v_and_b32 v{cv+1}, s{sMASK}, v{cv}'); a(f'v_lshlrev_b32 v{cv}, 16, v{cv}')
        for i in range(4): self.silu(cv + i, vT + (i & 1))
        gops = self.gemv_ops([raw + 4 * i for i in range(4)], [cv + i for i in range(4)], acc, vT, vT + 1, True)
        for i in range(4):
            vm.wait(('wm', i))
            if i == 3: self.stamp('wmok')
            for s_ in gops[12 * i:12 * i + 12]: a(s_)
        for s_ in gops[48:]: a(s_)
        self.dw('ds_write_b32', vGA, acc, 1, L_A1 - SCR)
        self.barrier()
        a(f'ds_read_b128 {vr(acc, 4)}, v{vL32S} offset:{L_A1 - SCR}')
        tag_hash()
        a('s_waitcnt lgkmcnt(0)')
        self.pk('add', acc, acc, acc + 2)
        a(f"""v_add_f32 v{acc}, v{acc}, v{acc+1}
        v_mov_b32 v{acc+1}, s{sTAG}""")
        self.bs(acc, 2, vL8, rWS, T0, 0, 'sc1')
        a('s_mov_b64 exec, 15')
        self.bs(acc + 1, 1, vT + 6, rWS, T2, 0, 'sc1')
        a('s_mov_b64 exec, -1')
        self.stamp('A1pub')
        S(T0, '(wg*4 + w)*6144')
        for i in range(o.get('wpf', 0)):
            if i == 4: S(T0, 'T0 + 4096')
            self.bl(raw, 4, vL16, rW, T0, (i & 3) * 1024, o.get('wpfmod', ''))
        a('s_branch L_FJ')
        qG = list(vm.q)
        a('L_FS:')
        vm.reset(); lg.reset()
        a('s_barrier')
        for i in range(4): self.bl(raw + 4 * i, 4, vL16, rX, T3, 1024 * i, o.get('xsmod', ''), 'xs')
        pw0 = o.get('pw0', 'ab')
        if 'a' in pw0:
            S(T4, '(wg*4 + w - 4)*128 + INA')
            for q in range(2): a(f's_load_dword s{sPL + q}, {sr(rWS, 2)}, s{T4} offset:{q * 64} glc')
        if 's' in pw0:
            S(T4, '(wg*4 + w - 4)*256 + SINB')
            for q in range(4): a(f's_load_dword s{sPL + 2 + q}, {sr(rWS, 2)}, s{T4} offset:{q * 64} glc')
        if 'b' in pw0:
            S(T4, '(wg*32 + w - 4)*128 + INB')
            for q in range(2): a(f's_load_dword s{sPL + q}, {sr(rWS, 2)}, s{T4} offset:{q * 64} glc ; nowait')
        a(f"""s_lshl_b32 s{T6}, s{sXC}, 5
        v_mov_b32 v{vTk}, 1
        v_mov_b32 v{vTk+1}, s{T6}""")
        if o.get('bar1', 1): a('s_barrier')
        a(f"""s_cmp_lg_u32 s{sWAVE}, 7
        s_cbranch_scc1 L_NOTK
        s_mov_b64 exec, 1
        global_atomic_add v{vTk}, v{vTk+1}, v{vTk}, {sr(pDBG, 2)} sc0 sc1
        s_mov_b64 exec, -1
        s_branch L_TK0
        L_NOTK:""")
        code_pf()
        a('L_TK0:')
        vm.issue('tk')
        setup()
        w_early()
        S(T0, '(w - 4)*16 + L_ST'); va(vT + 6, [(5, 1, 8)], T0)
        a('s_barrier')
        vm.wait('xs')
        lg.wait_all()
        tag_hash()
        self.stamp('xsok')
        self.ln_stats2(raw, raw + 8, xs, st, st + 1)
        a(f"""v_lshrrev_b32 v{st}, 16, v{st}
        v_or_b32 v{st}, v{st}, v{st+1}
        v_mov_b32 v{st+1}, s{sTAG}""")
        self.dw('ds_write_b64', vT + 6, st, 2)
        a('L_FJ:')
        va(vT + 1, [(0, 2, 16)], None, L_ST)
        va(vT, [(0, 2, 16), (2, 1, 65536 if TL else 1024)])
        va(vT + 6, [(0, 5, 2048), (5, 1, 32)])
        va(vT + 2, [(0, 1, 64 * 512 if TL else 512)])
        S(T2, ('((j >> 4)*128 + w*8 + x)*512' if TL else '((x & 6) + ((x & 1)*2 + (j >> 4))*64 + w*8)*512') + ' + ((j >> 1) & 7)*64 + (j & 1)*4 + 8 + INA')
        self.barrier()
        self.r128(st, vT + 1, 0, 'st')
        lg.wait('st')
        a('s_mov_b64 exec, 0xff')
        self.bs(st, 4, vT, rWS, T1, 0, 'sc1')
        a('s_mov_b64 exec, 3')
        self.bs(st + 1, 1, vT + 2, rWS, T2, 0, 'sc1')
        a('s_mov_b64 exec, -1')
        self.stamp('A2pub')
        a(f"""s_cmp_lg_u32 s{sWAVE}, 7
        s_cbranch_scc1 L_NOTK2
        s_mov_b32 s{T0}, 0
        s_waitcnt vmcnt({len(vm.q) - 1 - vm.q.index('tk')})
        L_TK:
        v_readfirstlane_b32 s{T2}, v{vTk}
        s_cmp_lt_u32 s{T2}, 32
        s_cbranch_scc1 L_TKOK
        v_mov_b32 v{vTk}, s{sTAG}
        s_mov_b64 exec, 1
        buffer_store_dword v{vTk}, v{vZ}, {sr(rWS, 4)}, 0 offen offset:{MARK} sc1
        s_mov_b64 exec, -1
        s_add_u32 s{T0}, s{T0}, 1
        s_cmp_lt_u32 s{T0}, 8
        s_cbranch_scc0 L_TKNO
        s_add_u32 s{sXC}, s{sXC}, 1
        s_and_b32 s{sXC}, s{sXC}, 7
        s_lshl_b32 s{T6}, s{sXC}, 5
        v_mov_b32 v{vTk}, 1
        v_mov_b32 v{vTk+1}, s{T6}
        s_mov_b64 exec, 1
        global_atomic_add v{vTk}, v{vTk+1}, v{vTk}, {sr(pDBG, 2)} sc0 sc1
        s_mov_b64 exec, -1
        s_waitcnt vmcnt(0)
        s_branch L_TK
        L_TKNO:
        s_and_b32 s{sXC}, s2, 7
        s_lshr_b32 s{T2}, s2, 3
        L_TKOK:
        s_lshl3_add_u32 s{T2}, s{T2}, s{sXC}""")
        if o.get('rawrole'): a(f's_mov_b32 s{T2}, s2')
        a(f"""v_mov_b32 v{vTk}, s{T2}
        ds_write_b32 v{vT+1}, v{vTk} offset:64
        L_NOTK2:""")
        self.barrier()
        a(f'ds_read_b32 v{mq}, v{vT+1} offset:64'); lg.issue('role')
        lg.wait('role')
        a(f'v_readfirstlane_b32 s2, v{mq}')
        self.stamp('role')
        V.release(raw, 16); V.release(cv, 4)
        S(sX, 'wg & 7'); S(sJ, 'wg >> 3')
        S(sCB, 'j & 15' if TL else '(x & 1)*8 + (j & 7)')
        S(sRT, 'x*2 + (j >> 4)' if TL else '(x >> 1)*4 + (j >> 3)')
        S(sGTB, 'rt*4 + (w & 3)')
        S(sC32, 'cb*2 + kh')
        S(T5, 'gtb*65536 + c32*64')
        self.bl(xr, 4, vT + 6, rX, T5, 0, o.get('xtmod', ''), 'xt')
        self.bl(xr + 4, 4, vT + 6, rX, T5, 16, o.get('xtmod', ''), 'xt')
        S(T0, '(((x >> 1)*16 + cb)*16 + w)*512 + AINB')
        S(T2, '(wg*8 + w)*64 + INA')
        def role_prep():
            S(sR1, '(x & 4)*2 + (j >> 2)'); S(sHP, o.get('hpe', '(x & 3)*4 + ((j & 3) ^ 2)'))
            S(sU0, o.get('u0', 'j & 12'))
            w_next(wb[0])
            S(sINB, '(wg*64 + w)*64 + INB')
            S(sKF, 'kh ^ (j >> 4)'); S(sROT, o.get('rot', '0' if TL else '(((j >> 3) ^ j) & 1)*8'))
            S(sFS, 'x*7 + (j >> 2)'); S(sKQ, 'j & 3')
            va(vT + 4, [(0, 5, 8)])
            va(vT, [(0, 5, 16), (5, 1, 4096)])
            S(T3, 'w*4 + L_MP'); va(vT + 1, [(0, 6, 64)], T3)
            S(T3, 'kh*1024 + L_MP'); va(vT + 2, [(0, 4, 32), (5, 1, 512)], T3)
        S(T1, '(wg*4 + (w & 3))*256 + SINB')
        self.spoll([(0, 4, T2, 0)], range(4), work=role_prep, pipe=o.get('pipeA', 0))
        self.stamp('apre')
        a('s_barrier')
        st_ld = lambda: self.bl(st, 2, vT + 4, rWS, T1, 0, 'sc1', 'st')
        def st_fetch():
            st_ld()
            S(T3, 'hp*4096 + w*512')
            a(f'v_add_u32 v{vT+6}, s{T3}, v{vL16}')
            S('m0', 'w*512 + L_WPHI')
            a('s_mov_b32 exec_hi, 0')
            a(f'global_load_lds_dwordx4 v{vT+6}, {sr(pWPHI, 2)}'); vm.issue()
            a('s_mov_b32 exec_hi, -1')
            w_next(wb[1])
        self.try_load(lambda: self.bl(mq, 4, vT, rWS, T0, 0, 'sc1'), [mq + 1, mq + 3], vT + 3, st_fetch)
        self.stamp('modok')
        a(f'ds_write2_b32 v{vT+1}, v{mq}, v{mq+2} offset0:0 offset1:8'); lg.issue()
        for i in range(8): self.unpack(xs + 2 * i, xs + 2 * i + 1, xr + i)
        self.barrier()
        mp = V.alloc(16); hp = V.alloc(8)
        for i in (2, 3, 0, 1): self.r128(mp + 4 * i, vT + 2, (i >> 1) * 2048 + (i & 1) * 16, i >> 1)
        w_next(wb[2])
        self.finish_load('st', st_ld, [st + 1], None)
        self.stamp('statok')
        self.unpack(st + 1, st, st)
        a(f'v_rcp_f32 v{st}, v{st}')
        for i in E2: self.pk('add', xs + i, xs + i, st + 1, bc=(1,), neg=(1,))
        S(T0, '(((rt*16 + cb)*4 + (w & 3))*2 + kh)*2048 + HF')
        lg.wait(1); self.sum8(mp + 8)
        self.round1(mp + 8)
        lg.wait(0); self.sum8(mp)
        a(f'v_add_f32 v{mp+8}, 1.0, v{mp+8}')
        self.round2(mp + 8, mp)
        for h in range(2):
            rg = range(8 * h, 8 * h + 8)
            self.round_list([xs + i for i in rg])
            for i in range(8 * h, 8 * h + 8, 2): self.pk('mul', xs + i, xs + i, st, bc=(1,))
            self.round_list([xs + i for i in rg])
            for i in rg: self.dpp('v_mul_f32', xs + i, mp + 8, xs + i, f'row_newbcast:{i}')
            self.round_list([xs + i for i in rg])
            for i in rg: self.dpp('v_add_f32', xs + i, mp, xs + i, f'row_newbcast:{i}')
            for i in range(4 * h, 4 * h + 4): a(f'v_cvt_pk_bf16_f32 v{hp+i}, v{xs+2*i}, v{xs+2*i+1}')
            self.bs(hp + 4 * h, 4, vL16, rWS, T0, 1024 * h, 'sc1', 'hs')
        self.stamp('hst')
        w_next(wb[3])
        va(vB, [(2, 2, 128), (3, 1, 64), (4, 1, 32), (0, 2, 8), (5, 1, 2048)])
        a(f'v_xor_b32 v{vB+1}, 64, v{vB}')
        for q in (1, 2):
            for h in range(2): a(f'v_add_u32 v{vB+2*q+h}, {2*q*SLOT}, v{vB+h}')
        S(T1, 'kh*2048 + L_WPHI')
        va(vT, [(2, 2, 64), (4, 1, 32), (0, 2, 8), (5, 1, 256)], T1)
        va(vT + 1, [(0, 2, 8 * 4096), (2, 2, 4096)])
        S(T0, '((rt >> 3)*4 + (rt & 7)*32)*4096 + (cb >> 1)*64 + (cb & 1)*4 + INB')
        va(vT + 2, [(4, 1, 64)]); va(vWo, [(0, 3, 16)])
        a(f'v_xor_b32 v{vWo}, v{vWo}, v{vT+2}'); va(vT + 2, [(3, 3, 2048)]); a(f'v_add_u32 v{vWo}, v{vWo}, v{vT+2}')
        S(T1, '(w & 2)*32'); va(vT + 2, [(4, 1, 32)], T1); va(vFG, [(0, 3, 16)])
        a(f'v_xor_b32 v{vFG}, v{vFG}, v{vT+2}'); va(vT + 2, [(3, 3, 7168)]); a(f'v_add_u32 v{vFG}, v{vFG}, v{vT+2}')
        S(T1, '(w & 1)*128')
        va(vT + 2, [(5, 1, 64)], T1); va(vFD, [(0, 5, 16), (5, 1, 2048)])
        a(f'v_xor_b32 v{vFD}, v{vFD}, v{vT+2}')
        S(sFG, '(kq*8 + w)*(32*7168) + fs*128'); S(sFD, '(fs*8 + w)*16384 + kq*512')
        a(f"""s_cmp_ge_u32 s{sJ}, 28
        s_cselect_b32 s{rWG+2}, 0, s{rWG+2}
        s_cselect_b32 s{rWU+2}, 0, s{rWU+2}
        s_cselect_b32 s{rWD+2}, 0, s{rWD+2}""")
        vm.wait('hs')
        a('s_barrier')
        self.push(vT + 1, T0, 16, vT + 2, 'L_PB')
        self.stamp('hpub')
        V.release(xs, 16); V.release(mp, 16); V.release(hp, 8); V.release(st, 4); V.release(mq, 4); V.release(vTk, 2)
        w_next(wb[4])
        for s in range(2):
            for u in range(2): self.tr(wphi + 4 * s + 2 * u, vT, s * 1024 + u * 512)
        AD, LOOK, LASTB = o['AD'], 6, o['LASTB']
        accs = V.alloc(96)
        big = V.alloc(76)
        Ar, Br = big, big + 4 * AD
        assert 4 * AD + 4 * (LOOK + 1) <= 76
        S(T2, '(r1*64 + w)*4096 + HF')
        S(T0, '(w & 3)*4096 + L_XF'); a(f'v_add_u32 v{vXF}, s{T0}, v{vL16}')
        S(T0, '(w & 3)*1024 + kh*16384 + L_PHK'); va(vPW, [(0, 5, 32), (5, 1, 16)], T0)
        fq = [(m, i) for m in range(3) for i in range(4)]
        freg = []
        def f_src(m, i, back=0, T0=T0):
            if m < 2: S(T0, 'fg + q', q=i * 8 * 7168 - back * 4 * 32 * 7168)
            else: S(T0, 'fd + q', q=i * 4096 - back * 4 * 16384)
            return (vFG, (rWG, rWU)[m]) if m < 2 else (vFD, rWD)
        def f_lds(m, i): return (L_GU + m * 32768 if m < 2 else L_DN) + i * 1024
        def ffn_reg(n):
            for _ in range(n):
                m, i = fq.pop(0)
                for back in range(2):
                    v, r = f_src(m, i, back)
                    self.bl(big + 8 * len(freg) + 4 * back, 4, v, r, T0, 0, o.get('ntffn', 'nt'), 'ffn')
                freg.append((m, i))
        def ffn_dma(n, T0=T0):
            for _ in range(n):
                m, i = fq.pop(0)
                if o.get('nofd'): continue
                v, r = f_src(m, i, 0, T0)
                S('m0', 'w1k*4 + q', q=f_lds(m, i))
                self.dma(v, r, T0, 0, o.get('ntffn', 'nt'), 'gu' if m < 2 else 'dn')
        S(sWB, '(rot*4 + w)*16384'); S(sWO2, '(j >> 4)*1048576 + cb*128'); S(sW1K, 'w*1024')
        def wo_dma(it, back=0, T0=T0):
            S(T0, '((wb + q) & 0xfffff) + (wo2 ^ h)', q=(8 * it - 4 * back) * 16384, h=(it >> 3) << 20)
            S('m0', 'w1k + q', q=WO_H0 + it * 8192 - 4096 * back)
            self.dma(vWo, rWO, T0, 0, '', 'wo')
        self.inbox(0, 2, work=lambda: w_next(wb[5]), pipe=o.get('pipeB', 0))
        assert len(wq) % 3 == 0 and 30 <= len(wq) <= (45, 36, 36, 42)[o.get('wxor', 1)]
        NPU = 16 - len(wq) // 3
        vm.wait(('W', (0, 2, 3, 1)[o.get('wxor', 1)]))
        a('s_barrier')
        self.stamp('hok')
        a(f"""s_cmp_ge_u32 s{sWAVE}, 4
        s_cbranch_scc1 L_HELP
        s_setprio 2""")
        q_hok = list(vm.q)
        if 'pad' in o:
            a('.p2align 6')
            for _ in range(o['pad']): a('s_nop 0')
        def a_load(sg):
            if sg % 4 == 0: S(T3, '((u0 + n) & q)*16384 + T2', n=sg // 4, q=o.get('amask', 15))
            self.bl(Ar + 4 * (sg % AD), 4, vL16, rWS, T3, (sg % 4) * 1024, o.get('amod', 'sc1'), ('A', sg))
        CORD = (2, 3, 0, 1, 4, 5)
        def b_read(n):
            sg, c = divmod(n, 6); t, h = divmod(CORD[c], 2)
            slot = (sg >> 2) % 6
            off = (slot & 1) * SLOT + t * 8192 + ((sg >> 1) & 1) * 4096 + (sg & 1) * 1024
            d = Br + 4 * (n % (LOOK + 1))
            self.tr(d, vB + 2 * (slot >> 1) + h, off, ('B', n)); self.tr(d + 2, vB + 2 * (slot >> 1) + h, off + 512, ('B', n))
        nxt = 0
        def a_more(lim):
            nonlocal nxt
            while nxt < min(lim, 64): a_load(nxt); nxt += 1
        a_more(1)
        for n in range(LOOK): b_read(n)
        a_more(o.get('A0', 4))
        for n in range(384):
            sg, c = divmod(n, 6)
            if c == 0: vm.wait(('A', sg))
            lg.wait(('B', n))
            d = accs + 16 * CORD[c]
            a(f'v_mfma_f32_32x32x16_bf16 {vr(d, 16)}, {vr(Br + 4*(n % (LOOK + 1)), 4)}, {vr(Ar + 4*(sg % AD), 4)}, ' + ('0' if sg == 0 else vr(d, 16)))
            if n + LOOK < 384:
                if (n + LOOK) % 24 == 0 and (n + LOOK) // 24 <= LASTB: a('s_barrier')
                b_read(n + LOOK)
            if c == 5:
                a_more(min(nxt + 2, sg + AD + 1))
                if sg == 63 - AD and o.get('b14', 1): a('s_barrier')
        self.stamp('gemm1')
        aq, ak, av = accs, accs + 32, accs + 64
        def cvt8(d, s_):
            for i in range(8): a(f'v_cvt_pk_bf16_f32 v{d+i}, v{s_+2*i}, v{s_+2*i+1}')
        cvt8(vv, ak + 16)
        for q in range(2): self.dw('ds_write_b128', vXF, vv + 4 * q, 4, q * 1024)
        cvt8(fr, ak)
        self.barrier()
        a('s_setprio 0')
        pp = ak; ee = ak + 16
        def phi_logits(src):
            a(f'v_mfma_f32_32x32x16_bf16 {vr(pp, 16)}, {vr(wphi, 4)}, {vr(src, 4)}, 0')
            a(f'v_mfma_f32_32x32x16_bf16 {vr(pp, 16)}, {vr(wphi + 4, 4)}, {vr(src + 4, 4)}, {vr(pp, 16)}')
        phi_logits(fr)
        for h in range(2):
            cvt8(vv if h == 0 else vq, av + 16 * h)
            for db in range(2): self.dw('ds_write_b128', vPW, (vv if h == 0 else vq) + 4 * db, 4, L_V - L_PHK + h * 8192 + db * 4096)
        cvt8(fr, aq + 16)
        for q in range(2): self.dw('ds_write_b128', vXF, fr + 4 * q, 4, 2048 + q * 1024)
        cvt8(vq, aq)
        a('s_branch L_JOIN')
        a('L_HELP:')
        vm.q = [('W', 1)] * len(q_hok) if o.get('wxor', 1) == 1 else list(q_hok); lg.reset()
        m2w = accs; m2c = accs + 32; g4 = accs + 48
        def w_unit(n):
            for wexpr in ('w - 4', 'w'):
                w_base(n, wexpr)
                for t in range(3): w_slot(n, t)
        for n in range(NPU, 6): w_unit(n)
        S(T0, '((x & 3)*4 + w - 4)*128')
        va(vCo, [(3, 3, 16)], T0)
        va(vWM, [(3, 3, 8 * 12288), (0, 3, 16)])
        S(T4, 'T0*6144 + (j*2 + (x >> 2))*128 + 4096')
        a(f'global_load_dwordx4 {vr(m2c + 8, 4)}, v{vCo}, {sr(pC, 2)}'); vm.issue('m2c')
        m2l = list(range(8)); wol = [8, 9, 10, 11]; pwl = list(range(1, 8)); sil = list(range(8))
        m2ops = self.gemv_ops([m2w + 4 * i for i in range(8)], [m2c + i for i in range(8)], acc, vT, vT + 1, False)
        m2pos = 0
        def act(op, k):
            nonlocal m2pos
            kind, n = op[0], int(op[1:] or 1)
            if kind == 'm':
                for _ in range(2 * n):
                    i = m2l.pop(0)
                    self.bl(m2w + 4 * i, 4, vWM, rWM, T4, 0, o.get('ntm2', 'nt'), ('m2', i))
                    if m2l: S(T4, 'T4 + 12288')
            elif kind == 'f': ffn_reg(n)
            elif kind == 'o':
                assert k >= 13
                for _ in range(n):
                    it = wol.pop(0); wo_dma(it, 1); wo_dma(it)
            elif kind == 'p':
                a('s_waitcnt lgkmcnt(0)')
                for q in range(n):
                    b = pwl.pop(0)
                    a(f's_load_dword s{sPL + 2*q}, {sr(rWS, 2)}, s{sINB} offset:{b * 512} glc')
                    a(f's_load_dword s{sPL + 2*q + 1}, {sr(rWS, 2)}, s{sINB} offset:{b * 512 - 256} glc')
            elif kind == 'q':
                S(T0, 'fs*8192 + (w - 4)*256 + HGR')
                a('s_waitcnt lgkmcnt(0)')
                for q in range(4): a(f's_load_dword s{sPL + q}, {sr(rWS, 2)}, s{T0} offset:{q * 2048 + 1024 + 252} glc')
            elif kind == 'h':
                S(T0, '(fs*4 + kq)*2048 + (w & 1)*1024 + HGR'); S(T1, '(rt*16 + cb)*2048 + (w & 1)*1024 + STAT')
                if TL: a(f's_bitcmp1_b32 s{sWAVE}, 1'); a(f's_cselect_b32 s{T0}, s{T1}, s{T0}')
                self.bl(m2c + 12, 4, vL16, rWS, T0, 0, '')
            elif kind == 's':
                vm.wait('m2c')
                for _ in range(n):
                    i = sil.pop(0)
                    a(f'v_and_b32 v{m2c+i}, s{sMASK}, v{m2c+8+i//2}' if i & 1 else f'v_lshlrev_b32 v{m2c+i}, 16, v{m2c+8+i//2}')
                    self.silu(m2c + i, vT + (i & 1))
            elif kind == 'g':
                assert not sil
                for _ in range(n):
                    vm.wait(('m2', m2pos // 16))
                    for s_ in m2ops[m2pos:m2pos + 16]: a(s_)
                    m2pos += 16
            elif kind == 'r':
                assert m2pos == 128
                for s_ in m2ops[128:]: a(s_)
                self.dw('ds_write_b32', vGA, acc, 1, L_M2 - SCR)
                lg.wait_all()
            elif kind == 'P':
                a(f"""s_cmp_lg_u32 s{sWAVE}, 4
                s_cbranch_scc1 L_M2F
                ds_read_b128 {vr(acc, 4)}, v{vL32S} offset:{L_M2 - SCR}""")
                S(T0, '((j*2 + (x >> 2))*4 + (x & 3))*512 + MODP2')
                a(f"""s_waitcnt lgkmcnt(0)
                v_add_f32 v{acc}, v{acc}, v{acc+1}
                v_add_f32 v{acc+2}, v{acc+2}, v{acc+3}
                v_mov_b32 v{acc+1}, s{sTAG}
                v_add_f32 v{acc}, v{acc}, v{acc+2}""")
                self.bs(acc, 2, vL8, rWS, T0, 0, 'sc1', count=False)
                a('L_M2F:')
            else: raise ValueError(op)
        sched = {int(k): v.split() for k, v in o['sched'].items()}
        for op in sched.get(0, []): act(op, 0)
        for k in range(1, LASTB + 1):
            for kk in (range(k, 16) if k == LASTB else [k + 1 if k < 3 and o.get('wxor', 1) == 3 else k]): vm.wait(('W', kk))
            if o.get('ust'): self.stamp(f'w{k}')
            a('s_barrier')
            if o.get('ust'): self.stamp(f'u{k}')
            ops = sched.get(k, [])
            if 6 <= k + 4 < 16:
                pre = [op[1:] for op in ops if op[0] == '<']
                for op in pre: act(op, k)
                if not o.get('now2'): w_unit(k + 4)
            for op in ops:
                if op[0] != '<': act(op, k)
        if o.get('b14', 1):
            assert LASTB == 13 and AD <= 12
            a('s_barrier')
            for op in sched.get(14, []): act(op, 14)
        self.barrier()
        for q in range(2): self.r128(fr + 4 * q, vXF, q * 1024)
        lg.wait_all()
        phi_logits(fr)
        for op in sched.get(15, []): act(op, 15)
        assert (not m2l or o.get('nom2')) and not wol
        assert 8 * len(freg) <= 76
        a('L_JOIN:')
        vm.reset(); lg.q = [None]
        V.release(vB, 6); V.release(vWd); V.release(vWM); V.release(vCo); V.release(vGA); V.release(vL32S); V.release(acc, 8)
        V.release(big + 8 * len(freg), 76 - 8 * len(freg))
        ph = aq; fx = aq + 16
        vPA = V.alloc(); vPB = V.alloc()
        self.softmax_pm(pp, ee, ph, vT)
        for fb in range(4): self.dw('ds_write_b128', vPW, ph + 4 * fb, 4, fb * 4096)
        S(T0, 'w*4096 + L_PHK'); a(f'v_add_u32 v{vPA}, s{T0}, v{vL8}')
        S(T0, 'kh*8192 + L_V'); a(f'v_add_u32 v{vPB}, s{T0}, v{vL8}')
        ones = fr
        for i in range(4): a(f'v_mov_b32 v{ones+i}, 0x3f803f80')
        S(T0, '((hp*8 + w)*32 + r1)*1024 + KVP'); S(T2, 'T0 + 16384')
        S(T3, '(hp*8 + w)*1024 + ZP'); S(T1, 'r1*64 + T3')
        self.stamp('ksm')
        self.barrier()
        self.stamp('phik')
        fragA = [ee + 4 * i for i in range(4)]
        fragB = [av + 4 * i for i in range(8)]
        kvd = vv; zd = fr + 4
        def kvm(u):
            lg.wait(('kv', u))
            for db in range(2):
                a(f'v_mfma_f32_16x16x32_bf16 {vr(kvd + 4*db, 4)}, {vr(fragA[u], 4)}, {vr(fragB[2*u+db], 4)}, ' + ('0' if u == 0 else vr(kvd + 4*db, 4)))
            a(f'v_mfma_f32_16x16x32_bf16 {vr(zd, 4)}, {vr(fragA[u], 4)}, {vr(ones, 4)}, ' + ('0' if u == 0 else vr(zd, 4)))
        for ts in range(4):
            self.tr(fragA[ts], vPA, ts * 1024, ('kv', ts)); self.tr(fragA[ts] + 2, vPA, ts * 1024 + 512, ('kv', ts))
            for db in range(2):
                self.tr(fragB[2*ts+db], vPB, db * 4096 + ts * 1024, ('kv', ts)); self.tr(fragB[2*ts+db] + 2, vPB, db * 4096 + ts * 1024 + 512, ('kv', ts))
            if ts >= 2: kvm(ts - 2)
        va(vPW, [(0, 3, 32 * 4096), (3, 1, 4 * 4096)])
        S(T4, '(wg & 0x1b)*4096 + (r1 >> 1)*64 + (r1 & 1)*4 + INB + 512')
        kvm(2); kvm(3)
        a(f"""s_cmp_lt_u32 s{sWAVE}, 4
        s_cbranch_scc1 L_NOQX
        ds_read_b128 {vr(vq, 4)}, v{vXF} offset:2048
        ds_read_b128 {vr(vq + 4, 4)}, v{vXF} offset:3072
        L_NOQX:""")
        self.bs(kvd, 4, vL16, rWS, T0, 0, 'sc1', 'kvs')
        self.bs(kvd + 4, 4, vL16, rWS, T2, 0, 'sc1', 'kvs')
        a('s_mov_b32 exec_lo, 0x00010001')
        a('s_mov_b32 exec_hi, 0x00010001')
        self.bs(zd, 4, vL, rWS, T1, 0, 'sc1', 'kvs')
        a('s_mov_b64 exec, -1')
        lg.wait_all()
        phi_logits(vq)
        self.stamp('kvst')
        wl = [2, 3, 4, 5, 6, 7, 12, 13, 14, 15, 0, 1]
        kp = av; zz = av + 16; g4 = vv
        m2q = fx; wr1 = fx + 8
        vKP = V.alloc()
        va(vKP, [(3, 3, 1024), (0, 3, 16)])
        va(vXF, [(0, 3, 16), (5, 1, 8)])
        wo1 = lambda: wo_dma(wl.pop(0), 0, T6)
        keep = a.items; a.items = []
        self.softmax_pm(pp, ee, ph, vv)
        qsm = a.items; a.items = keep
        qcost = [2 if it[1].is_trans or 'permlane' in it[1].mn else 1 for it in qsm]
        qtot = sum(qcost); qdone = [0]
        def q_slice(upto):
            while qsm and qdone[0] < qtot * upto / 100:
                a.items.append(qsm.pop(0)); qdone[0] += qcost.pop(0)
        qs = o.get('qs', (35, 85, 100))
        q_slice(qs[0])
        vm.wait('kvs')
        a('s_barrier')
        self.push(vPW, T4, 16, vPB, 'L_PC')
        self.stamp('kvpub')
        S(T0, '(hp*16 + r1)*16384 + w*128 + KVP')
        S(T2, '(hp*16 + r1)*1024 + w*128 + KIN'); S(T4, 'T4 + 6*512')
        self.inbox(1, 2, work=lambda: (self.weave(lambda: q_slice(qs[1]), [wo1] * o['wowin'][0]), self.stamp('cw')))
        a('s_barrier')
        self.stamp('kvok')
        S(T5, 'T0 + 8192')
        ld_kp = lambda: (self.bl(kp, 4, vKP, rWS, T0, 0, 'sc1', 'kp'), self.bl(kp + 4, 4, vKP, rWS, T5, 0, 'sc1', 'kp'))
        ld_z = lambda: self.bl(zz, 4, vL16, rWS, T3, 0, 'sc1', 'z')
        ld_kp(); ld_z()
        S(T1, 'w*32 + L_ZF'); va(vT + 2, [(0, 2, 8), (5, 1, 4)], T1)
        S(T1, 'w*1024 + L_KVF'); va(vT + 1, [(0, 4, 16), (5, 1, 512), (4, 1, 8)], T1)
        S(T1, 'kh*128 + L_ZF'); va(vT + 3, [(5, 1, 16)], T1)
        S(T1, 'kh*4096 + L_KVF'); a(f'v_add_u32 v{vPA}, s{T1}, v{vL16}')
        def red4(r, ctls):
            for i in range(2): a(f'v_permlane32_swap_b32 v{r+i}, v{r+2+i}')
            self.pk('add', r, r, r + 2)
            for ctl in ctls:
                for i in range(2): self.dpp('v_add_f32', r + i, r + i, r + i, ctl)
            for i in range(2): a(f'v_mov_b32 v{r+2+i}, v{r+i}')
            for i in range(2): a(f'v_permlane16_swap_b32 v{r+i}, v{r+2+i}')
            self.pk('add', r, r, r + 2)
            a(f'v_cvt_pk_bf16_f32 v{r}, v{r}, v{r+1}')
        self.weave(lambda: q_slice(qs[2]), [wo1] * o['wowin'][1])
        vm.wait('kp')
        self.pk('add', kp, kp, kp + 4); self.pk('add', kp + 2, kp + 2, kp + 6)
        red4(kp, ['row_ror:8'])
        a(f"""v_mov_b32 v{kp+1}, s{sTAG}
        s_mov_b32 exec_lo, 0xff
        s_mov_b32 exec_hi, 0xff""")
        self.bs(kp, 2, vXF, rWS, T2, 0, 'sc1')
        a('s_mov_b64 exec, -1')
        a('s_barrier')
        self.push(vPW, T4, 16, vPB, 'L_PC2')
        self.stamp('c2pub')
        kf = av; zf = av + 16; num = pp; den = ee
        vm.wait('z')
        self.weave(lambda: red4(zz, ['row_ror:4', 'row_ror:8']), [wo1] * o['wowin'][2])
        self.dw('ds_write_b32', vT + 2, zz, 1)
        q_slice(100)
        self.barrier()
        for fb in range(4): self.r128(zf + 4 * fb, vT + 3, fb * 32)
        lg.wait_all()
        S(T0, '(hp*8 + w)*2048 + KIN')
        k2 = av + 8
        def den_work():
            for fb in range(4):
                a(f'v_mfma_f32_32x32x16_bf16 {vr(den, 16)}, {vr(zf + 4*fb, 4)}, {vr(ph + 4*fb, 4)}, ' + ('0' if fb == 0 else vr(den, 16)))
            self.round1(den)
            a(f'v_add_f32 v{den}, 0x358637bd, v{den}')
            self.round1(den)
            a(f'v_rcp_f32 v{den}, v{den}')
            self.stamp('c2w')
        self.inbox(7, 2, work=den_work)
        self.stamp('c2h')
        self.poll(lambda: [self.bl(k2 + 4 * q, 4, vL16, rWS, T0, q * 1024, 'sc1') for q in range(2)], [k2 + 1, k2 + 3, k2 + 5, k2 + 7], vT)
        for db in range(2):
            a(f'ds_write2_b32 v{vT+1}, v{k2+4*db}, v{k2+4*db+2} offset0:{64*db} offset1:{64*db+1}'); lg.issue()
        self.barrier()
        self.stamp('kvred')
        for fb in range(4): self.r128(kf + 4 * fb, vPA, fb * 1024, ('kf', fb))
        vM2 = V.alloc()
        va(vM2, [(0, 5, 16), (5, 1, 512)])
        S(T5, '((w & 3)*16 + cb)*2048 + MODP2')
        ld_m2 = lambda: [self.bl(m2q + 4 * q, 4, vM2, rWS, T5, q * 1024, 'sc1', 'm2q') for q in range(2)]
        S(T0, 'cb*128'); va(vT, [(0, 5, 4)], T0)
        a(f'global_load_dword v{wr1}, v{vT}, {sr(pWR, 2)}'); vm.issue('m2q')
        self.bl(wr1 + 1, 1, vZ, rWS, '0', MARK, 'sc1', 'm2q')
        ld_m2()
        S(T0, '(((r1*4 + (w & 3))*16 + hp)*2 + kh)*2048 + OF')
        for fb in range(4):
            lg.wait(('kf', fb))
            a(f'v_mfma_f32_32x32x16_bf16 {vr(num, 16)}, {vr(kf + 4*fb, 4)}, {vr(ph + 4*fb, 4)}, ' + ('0' if fb == 0 else vr(num, 16)))
        for h in range(2):
            self.round_list([num + i for i in range(8 * h, 8 * h + 8)])
            for i in range(8 * h, 8 * h + 8, 2): self.pk('mul', num + i, num + i, den, bc=(1,))
            for i in range(4 * h, 4 * h + 4): a(f'v_cvt_pk_bf16_f32 v{vq+i}, v{num+2*i}, v{num+2*i+1}')
            self.bs(vq + 4 * h, 4, vL16, rWS, T0, 1024 * h, 'sc1', 'os')
        self.stamp('ost')
        for r, n in ((fr, 8), (vv, 8), (vPW, 1), (vXF, 1), (vPA, 1), (vPB, 1), (vKP, 1), (accs, 16), (accs + 32, 64), (wphi, 8)):
            V.release(r, n)
        assert GS == 0
        vG16 = vL16
        vBa = V.alloc(); vBb = V.alloc(); xf = V.alloc(16)
        S(T4, 'kh*(65536 + 64) + WO_H0')
        va(vBa, [(2, 2, 128), (3, 1, 64), (5, 1, 1024), (0, 1, 32), (4, 1, 16), (1, 1, 8)])
        a(f'v_xor_b32 v{vBa}, s{T4}, v{vBa}')
        a(f'v_xor_b32 v{vBb}, 64, v{vBa}')
        assert WO_H1 == WO_H0 + 65536
        va(vT + 1, LCB)
        S(T2, ('((r1 & 1)*128 + (r1 >> 1))*4096' if TL else '((r1 >> 2)*2 + (r1 & 3)*64)*4096') + ' + (hp >> 1)*64 + (hp & 1)*4 + INB + 1024')
        for i in range(8): self.unpack(xf + 2 * i, xf + 2 * i + 1, xr + i)
        S(T6, '(gtb*2 + kf)*32768 + OF')
        vm.wait('os')
        a('s_barrier')
        self.push(vT + 1, T2, 16, vT + 2, 'L_PD')
        self.stamp('opub')
        V.release(vq, 8)
        while wl: wo_dma(wl.pop(0))
        V.release(vWo)
        self.finish_load('m2q', ld_m2, [m2q + 1, m2q + 3, m2q + 5, m2q + 7], vT)
        q0, q1, q2, q3 = m2q, m2q + 1, m2q + 2, m2q + 3
        a(f'v_cmp_eq_u32 vcc, s{sTAG}, v{wr1+1}')
        a(f's_cmp_eq_u32 vcc_lo, 0')
        a(f's_cselect_b32 s{sLOC}, {o.get("local", 1)}, 0')
        S(T0, '(w & 3)*128 + L_MT'); va(vT, [(0, 5, 4)], T0)
        S(T1, 'w & 3')
        a(f"""v_add_f32 v{q0}, v{m2q}, v{m2q+4}
        v_add_f32 v{q1}, v{m2q+2}, v{m2q+6}
        v_add_f32 v{q2}, v{m2q}, v{m2q+4}""".replace(f'v_add_f32 v{q2}, v{m2q}, v{m2q+4}', f'v_mov_b32 v{q2}, v{q0}'))
        a(f"""v_mov_b32 v{q3}, v{q1}
        s_cmp_eq_u32 s{T1}, 2
        s_cselect_b32 s{T2}, 1.0, 0
        v_permlane32_swap_b32 v{q0}, v{q2}
        v_permlane32_swap_b32 v{q1}, v{q3}""")
        self.pk('add', q0, q0, q2)
        self.round2(q0, q1)
        a(f"""v_add_f32 v{q0}, s{T2}, v{q0}
        v_add_f32 v{q1}, s{T2}, v{q1}
        v_cvt_pk_bf16_f32 v{q2}, v{q0}, v{q1}""")
        self.dw('ds_write_b32', vT, q2, 1)
        a('s_cbranch_scc0 L_NOG')
        g0, g1, gh, gl = m2q + 4, m2q + 5, m2q + 6, m2q + 7
        self.unpack(q0, q1, q2); self.unpack(g0, g1, wr1)
        self.pk('mul', g0, g0, q0)
        a(f'v_cvt_pk_bf16_f32 v{gh}, v{g0}, v{g1}')
        self.unpack(q0, q1, gh)
        self.pk('add', q0, g0, q0, neg=(1,))
        a(f"""v_cvt_pk_bf16_f32 v{gl}, v{q0}, v{q1}
        v_add_f32 v{q0}, v{g0}, v{g1}
        ds_write2_b32 v{vT}, v{gh}, v{gl} offset0:64 offset1:96
        ds_write_b32 v{vT}, v{wr1} offset:512""")
        for ctl in ('quad_perm:[1,0,3,2]', 'quad_perm:[2,3,0,1]', 'row_half_mirror', 'row_ror:8'): self.dpp('v_add_f32', q0, q0, q0, ctl)
        S(T0, '(rt*16 + cb)*8 + GR')
        a(f"""v_mov_b32 v{q2}, v{q0}
        v_mov_b32 v{q1}, s{sTAG}
        v_permlane16_swap_b32 v{q0}, v{q2}
        v_add_f32 v{q0}, v{q0}, v{q2}
        s_mov_b64 exec, 1""")
        self.bs(q0, 2, vZ, rWS, T0, 0, 'sc1', count=False)
        a("""s_mov_b64 exec, -1
        L_NOG:""")
        V.release(vM2)
        S(T0, 'kh*64 + L_MT'); va(vT + 3, [(5, 1, 32)], T0); va(vT + 4, [(0, 3, 4)]); a(f'v_add_u32 v{vT+4}, v{vT+4}, v{vT+3}')
        self.barrier()
        gaf = V.alloc(16); gp = V.alloc(16); tb4 = V.alloc(4); gr = V.alloc(2); vGR = V.alloc()
        for q in range(2):
            self.r128(fx + 4 * q, vT + 3, 16 * q)
            for k in range(2): self.r128(gp + 8 * k + 4 * q, vT + 3, (4 + k) * 128 + 16 * q)
        for q, t in enumerate((1, 2, 3, 6)): self.dr('ds_read_b32', tb4 + q, 1, vT + 4, t * 128)
        lg.wait_all()
        def d_work():
            for i in range(8): self.unpack(gaf + 2 * i, gaf + 2 * i + 1, fx + i)
            va(vGR, [(0, 4, 8)])
            if o.get('stouch', TL):
                S(T2, '(rt*16 + cb)*2048 + w*256 + STAT')
                a(f'v_lshlrev_b32 v{gr}, 7, v{vL}')
                a('s_mov_b64 exec, 3')
                self.bl(gr, 1, gr, rWS, T2, 0, '')
                a('s_mov_b64 exec, -1')
            vm.wait_all()
            self.stamp('dw')
        AD2 = o['AD2']
        accA = V.alloc(16); accB = V.alloc(16); Ar = V.alloc(4 * AD2); Br = V.alloc(16)
        def b2_read(s, c):
            d = Br + 8 * (s & 1) + 4 * c
            self.tr(d, (vBa, vBb)[c], s * 2048, ('B', s, c)); self.tr(d + 2, (vBa, vBb)[c], s * 2048 + 512, ('B', s, c))
        def a2_load(s):
            if s % 2 == 0: S(T7, '((rot + n) & 15)*2048 + T6', n=s // 2)
            self.bl(Ar + 4 * (s % AD2), 4, vL16, rWS, T7, (s % 2) * 1024, 'sc1', ('A', s))
        self.inbox(2, 2, work=d_work)
        V.release(fx, 16)
        a('s_barrier')
        self.stamp('ook')
        if o.get('prio2', 1):
            a(f"""s_cmp_lt_u32 s{sWAVE}, 4
            s_cbranch_scc1 L_P2
            s_setprio {o.get('prio2', 1)}
            L_P2:""")
        for s in range(AD2):
            a2_load(s)
            if s == 0:
                for c in (1, 0): b2_read(0, c)
        for s in range(32):
            vm.wait(('A', s))
            for c in (1, 0):
                lg.wait(('B', s, c))
                ac = (accA, accB)[c]
                a(f'v_mfma_f32_32x32x16_bf16 {vr(ac, 16)}, {vr(Br + 8*(s & 1) + 4*c, 4)}, {vr(Ar + 4*(s % AD2), 4)}, ' + ('0' if s == 0 else vr(ac, 16)))
                if s + 1 < 32: b2_read(s + 1, c)
            if s == o.get('prio2n', 12): a('s_setprio 0')
            if s + AD2 < 32: a2_load(s + AD2)
            if s == 31 - AD2:
                S(T5, 'rt*128 + GR')
                ld_gr = lambda: self.bl(gr, 2, vGR, rWS, T5, 0, 'sc1', 'gr')
                ld_gr()
        self.stamp('gemm2')
        if o.get('prio2', 1): a('s_setprio 0')
        S(T0, 'w*4096')
        a(f"""v_add_u32 v{vT}, s{T0}, v{vG16}
        v_xor_b32 v{vT+1}, 0x4000, v{vT}""")
        for q in range(4): self.dw('ds_write_b128', vT, accB + 4 * q, 4, L_EXCH - GS + q * 1024)
        S(T0, 'kh*2048 + (w & 3)*512 + L_SP'); va(vT + 2, [(0, 5, 16), (5, 1, 8)], T0)
        S(T0, 'kh*64 + L_TB'); va(vT + 3, [(0, 3, 4), (5, 1, 32)], T0)
        vSG = V.alloc()
        S(T6, 'rt*32768 + w*256 + STAT'); va(vSG, [(0, 4, 16), (4, 2, 2048)])
        sm = Br; one = Br + 4
        a(f'v_mov_b32 v{one}, 0x3f803f80')
        fd = list(o['fdma']); assert sum(fd) == len(fq)
        self.barrier()
        for q in range(4): self.r128(accB + 4 * q, vT + 1, L_EXCH - GS + q * 1024, ('ex', q))
        ffn_dma(fd[0], T1)
        for h in range(2):
            for q in (2 * h, 2 * h + 1):
                lg.wait(('ex', q))
                self.pk('add', accA + 4 * q, accA + 4 * q, accB + 4 * q); self.pk('add', accA + 4 * q + 2, accA + 4 * q + 2, accB + 4 * q + 2)
            rg = range(8 * h, 8 * h + 8)
            self.round_list([accA + i for i in rg])
            for i in range(8 * h, 8 * h + 8, 2): self.pk('mul', accA + i, accA + i, gaf + i)
            self.round_list([accA + i for i in rg])
            for i in range(8 * h, 8 * h + 8, 2): self.pk('add', accA + i, accA + i, xf + i)
            for i in range(4 * h, 4 * h + 4): a(f'v_cvt_pk_bf16_f32 v{xr+i}, v{accA+2*i}, v{accA+2*i+1}')
        for i in range(8):
            for d, b in ((sm, one), (sm + 2, xr + i), (sm + 1, gp + i), (sm + 3, gp + 8 + i)):
                a(f'v_dot2_f32_bf16 v{d}, v{xr+i}, v{b}, ' + ('0' if i == 0 else f'v{d}'))
        a(f"""v_permlane32_swap_b32 v{sm}, v{sm+2}
        v_permlane32_swap_b32 v{sm+1}, v{sm+3}""")
        self.pk('add', sm, sm, sm + 2)
        self.dw('ds_write_b64', vT + 2, sm, 2)
        for q in range(4): self.dw('ds_write_b32', vT + 3, tb4 + q, 1, 128 * q)
        a(f'v_add_u32 v{vT}, {L_SP}, v{vL16}')
        va(vT + 1, LCB)
        S(T0, '(rt*16 + cb)*2048 + STAT')
        S(T3, ('((rt & 1)*128 + (rt >> 1))*4096' if TL else '((rt & 3)*64 + (rt >> 2)*2)*4096') + ' + (cb >> 1)*64 + (cb & 1)*4 + INB + 1536')
        self.barrier()
        self.stamp('x1st')
        a(f"""s_cmp_lg_u32 s{sWAVE}, 0
        s_cbranch_scc1 L_PE""")
        for q in range(4): a(f'ds_read_b128 {vr(accB + 4*q, 4)}, v{vT} offset:{(q & 1) * 2048 + (q >> 1) * 1024}')
        for h in range(2):
            b = accB + 8 * h
            a(f's_waitcnt lgkmcnt({2 - 2*h})')
            self.pk('add', b, b, b + 4); self.pk('add', b + 2, b + 2, b + 6)
            a(f"""v_add_f32 v{b+1}, v{b+1}, v{b+3}
            v_mov_b32 v{b+3}, s{sTAG}""")
        if TL:
            self.bs2([(accB + 8 * h, 4, vL16, T0, 1024 * h) for h in range(2)])
            a('s_cbranch_scc1 L_PE')
        else:
            for h in range(2): self.bs(accB + 8 * h, 4, vL16, rWS, T0, 1024 * h, 'sc1', count=False)
        a('s_mov_b64 exec, 0xffff')
        self.bs(accB + 3, 1, vT + 1, rWS, T3, 0, 'sc1', count=False)
        a("""s_mov_b64 exec, -1
        L_PE:""")
        self.stamp('x1pub')
        V.release(accA, 16); V.release(accB, 16); V.release(Ar, 4 * AD2); V.release(Br, 16); V.release(vBa); V.release(vBb); V.release(xf, 16); V.release(gaf, 16); V.release(gp, 16)
        x1 = V.alloc(16); hh = V.alloc(16); mf = V.alloc(32); sg = V.alloc(16); op = V.alloc(8)
        st = V.alloc(2); cn = V.alloc(2); vRid = V.alloc(); ck = V.alloc(4); vOT = V.alloc()
        ct = V.alloc(12, 4)
        def e_work():
            S(T3, '(w & 3)*(32*144) + kh*64'); va(vOT, [(0, 5, 144), (5, 1, 32)], T3)
            for q in range(2): self.dw('ds_write_b128', vOT, xr + 4 * q, 4, L_XT + 16 * q)
            a(f'v_add_u32 v{vOT}, {L_OT}, v{vOT}')
            S(T2, '4094 - (rt*8 + w)*32'); va(vRid, [(0, 4, 2)]); a(f'v_sub_u32 v{vRid}, s{T2}, v{vRid}')
            S(T2, 'w*128 + L_ST2'); va(vT + 4, [(0, 4, 8)], T2)
            S(T2, '(w & 3)*256 + L_ST2'); va(vT + 6, [(0, 5, 8)], T2)
            va(vT + 7, [(0, 3, 8)], None, L_K1)
            self.finish_load('gr', ld_gr, [gr + 1])
            for ctl in ('quad_perm:[1,0,3,2]', 'quad_perm:[2,3,0,1]', 'row_half_mirror', 'row_ror:8'): self.dpp('v_add_f32', gr, gr, gr, ctl)
            a(f"""s_cmp_lg_u32 s{sWAVE}, 1
            s_cbranch_scc1 L_NOCT""")
            va(vT + 1, [(0, 4, 8)], None, L_TB)
            a(f"""ds_read_b64 {vr(ct + 2, 2)}, v{vT+1}
            ds_read_b64 {vr(ct + 6, 2)}, v{vT+1} offset:128
            ds_read_b64 {vr(ct + 8, 2)}, v{vT+1} offset:384
            s_waitcnt lgkmcnt(0)""")
            for b in (ct, ct + 4):
                self.unpack(b, b + 1, b + 2); self.unpack(b + 2, b + 3, b + 3)
            a('L_NOCT:')
        def expand(dst, t):
            for i in range(8):
                self.dpp('v_mul_u32_u24', dst + 2 * i, t, cn, f'row_newbcast:{i}')
                self.dpp('v_and_b32', dst + 2 * i + 1, t, cn + 1, f'row_newbcast:{i}')
        def f_pre(part):
            if part == 0:
                a(f"""s_cmp_lt_u32 s{sWAVE}, 4
                s_cbranch_scc1 L_NOST""")
                S(T0, '(w - 4)*4096 + L_GU')
                a(f'v_add_u32 v{vT}, s{T0}, v{vL16}')
                a(f'v_add_u32 v{vT+3}, {L_DN - L_GU}, v{vT}')
                for n, (m, i) in enumerate(freg):
                    for back in range(2):
                        self.dw('ds_write_b128', vT if m < 2 else vT + 3, big + 8 * n + 4 * back, 4, f_lds(m, i) - (L_GU if m < 2 else L_DN) + (1 - back) * 16384)
                a('L_NOST:')
                return
            a(f"""v_mov_b32 v{cn}, 0x10000
            v_mov_b32 v{cn+1}, s{sMASK}""")
            for i in range(8): self.unpack(x1 + 2 * i, x1 + 2 * i + 1, xr + i)
            expand(mf, tb4); expand(mf + 16, tb4 + 1)
        if TL:
            a(f"""s_cmp_lg_u32 s{sLOC}, 0
            s_cbranch_scc1 L_ELOC""")
            self.inbox(3, 2)
            a("""s_barrier
            L_ELOC:""")
        else:
            ffn_dma(fd[1])
            self.inbox(3, 2, work=lambda: (e_work(), f_pre(0)))
            a('s_barrier')
        self.stamp('x1ok')
        def ld_sg():
            for q in range(4):
                S(T0, 'T6 + q', q=q * 8192)
                self.bl(sg + 4 * q, 4, vSG, rWS, T0, 0, 'sc1')
        self.try_load(ld_sg, [sg + 3, sg + 7, sg + 11, sg + 15], vT, e_work if TL else lambda: f_pre(1))
        V.release(vSG)
        self.stamp('x1ld')
        if o.get('htouch', 1):
            S(T2, '(fs*4 + kq)*2048 + w*256 + HGR')
            vDum = V.alloc()
            a(f'v_lshlrev_b32 v{vDum}, 7, v{vL}')
            a('s_mov_b64 exec, 3')
            self.bl(vDum, 1, vDum, rWS, T2, 0, '')
            a('s_mov_b64 exec, -1')
        ffn_dma(fd[2], T2)
        A_, B_, C_, U_ = sg, sg + 1, sg + 2, sg + 3
        self.pk('add', sg, sg, sg + 4); self.pk('add', sg + 8, sg + 8, sg + 12)
        a(f"""v_add_f32 v{C_}, v{C_}, v{sg+6}
        v_add_f32 v{sg+10}, v{sg+10}, v{sg+14}""")
        self.pk('add', sg, sg, sg + 8)
        a(f"""v_add_f32 v{C_}, v{C_}, v{sg+10}
        v_mov_b32 v{U_}, v{B_}
        v_permlane32_swap_b32 v{A_}, v{C_}
        v_permlane32_swap_b32 v{B_}, v{U_}
        v_add_f32 v{A_}, v{A_}, v{C_}
        v_add_f32 v{B_}, v{B_}, v{U_}
        v_permlane16_swap_b32 v{A_}, v{B_}
        v_add_f32 v{U_}, v{A_}, v{B_}
        v_add_f32 v{A_}, v{A_}, v{B_}
        v_permlane16_swap_b32 v{A_}, v{U_}
        v_mul_f32 v{C_}, 0x3a800000, v{A_}
        v_mul_f32 v{A_}, 0x3a800000, v{A_}
        v_permlane32_swap_b32 v{A_}, v{C_}""")
        self.stat_math(A_, C_, st, st + 1)
        S(T0, 'w*8 + L_K1')
        a(f"""v_rcp_f32 v{st+1}, v{st+1}
        v_fma_f32 v{U_}, -v{st}, v{gr}, v{U_}
        v_mov_b32 v{vT+1}, s{T0}
        v_mul_f32 v{U_}, v{U_}, v{st+1}""")
        self.dw('ds_write_b64', vT + 4, st, 2)
        a(f"""s_movk_i32 s{T0}, 0xfff
        v_ashrrev_i32 v{A_}, 31, v{U_}
        v_or_b32 v{A_}, 0x80000000, v{A_}
        v_xor_b32 v{A_}, v{A_}, v{U_}
        v_bfi_b32 v{ck}, s{T0}, v{vRid}, v{A_}""")
        def top2(ctls, first):
            for n, ctl in enumerate(ctls):
                if n == 0 and first:
                    self.dpp('v_min_u32', ck + 1, ck, ck, ctl); self.dpp('v_max_u32', ck, ck, ck, ctl)
                    continue
                self.dpp('v_min_u32', ck + 2, ck, ck, ctl); self.dpp('v_max_u32', ck + 1, ck + 1, ck + 1, ctl); self.dpp('v_max_u32', ck, ck, ck, ctl)
                a(f'v_max_u32 v{ck+1}, v{ck+1}, v{ck+2}')
        top2(('row_ror:8', 'row_ror:4', 'row_ror:2', 'row_ror:1'), True)
        self.dw('ds_write_b64', vT + 1, ck, 2)
        va(vT + 2, [(0, 1, 128 * 4096), (1, 3, 4096)] if TL else [(0, 2, 64 * 4096), (2, 2, 2 * 4096)])
        S(T1, ('cb*32768' if TL else '((cb & 7)*8 + (cb >> 3))*4096') + ' + (rt >> 1)*64 + (rt & 1)*16 + INB + 2560')
        self.barrier()
        self.stamp('ln2')
        self.dr('ds_read_b64', ck, 2, vT + 7, 0, 'k'); self.dr('ds_read_b64', st, 2, vT + 6, 0, 's')
        lg.wait('k')
        top2(('quad_perm:[1,0,3,2]', 'quad_perm:[2,3,0,1]', 'row_half_mirror'), False)
        a(f"""v_or_b32 v{ck+2}, 1, v{ck+1}
        v_mov_b32 v{ck+1}, s{sTAG}
        v_mov_b32 v{ck+3}, s{sTAG}
        s_cmp_lg_u32 s{sWAVE}, 0
        s_cbranch_scc1 L_NOF
        s_mov_b64 exec, 0xffff""")
        self.bs(ck, 4, vT + 2, rWS, T1, 0, 'sc1', count=False)
        a("""s_mov_b64 exec, -1
        L_NOF:""")
        self.stamp('Fpub')
        a(f"""s_cmp_lg_u32 s{sWAVE}, 1
        s_cbranch_scc1 L_NOC
        v_and_b32 v{vT}, 16, v{vL}
        v_cmp_eq_u32 vcc, 0, v{vT}
        v_cndmask_b32 v{vT}, v{ck+2}, v{ck}, vcc
        v_not_b32 v{vT}, v{vT}
        v_bfe_u32 v{vT}, v{vT}, 1, 7
        v_lshlrev_b32 v{vT+2}, 3, v{vT}
        v_mul_u32_u24 v{vT}, 144, v{vT}
        v_add_u32 v{vT+2}, {L_ST2}, v{vT+2}""")
        va(vT + 1, [(0, 4, 8)])
        cx, cs, ch = sg, sg + 4, sg + 8
        a(f"""v_add_u32 v{vT}, v{vT}, v{vT+1}
        ds_read_b64 {vr(cs, 2)}, v{vT+2}
        ds_read_b64 {vr(cx, 2)}, v{vT} offset:{L_XT}""")
        va(vT + 2, [(0, 4, 16), (4, 1, 16384), (5, 1, 4096)])
        va(vT + 3, [(4, 1, 16384)])
        S(T0, 'rt*32768 + cb*256 + CAND'); S(T3, 'rt*32768 + cb*8 + 8192 + CAND')
        a(f"""v_mov_b32 v{cx+3}, s{sTAG}
        s_waitcnt lgkmcnt(0)""")
        self.unpack(ch, ch + 1, cx); self.unpack(ch + 2, ch + 3, cx + 1)
        for i in (0, 2): self.pk('add', ch + i, ch + i, cs, bc=(1,), neg=(1,))
        self.round_list([ch + i for i in range(4)])
        for i in (0, 2): self.pk('mul', ch + i, ch + i, cs + 1, bc=(1,))
        self.round_list([ch + i for i in range(4)])
        for i in (0, 2): self.pk('mul', ch + i, ch + i, ct + 4 + i)
        self.round_list([ch + i for i in range(4)])
        for i in (0, 2): self.pk('add', ch + i, ch + i, ct + i)
        a(f"""v_mov_b32 v{cx+2}, v{cx+1}
        v_mov_b32 v{cx+1}, s{sTAG}
        s_mov_b32 exec_hi, 0
        v_cvt_pk_bf16_f32 v{cx}, v{ch}, v{ch+1}
        v_cvt_pk_bf16_f32 v{cx+2}, v{ch+2}, v{ch+3}
        s_mov_b32 exec_hi, -1
        v_dot2_f32_bf16 v{cs}, v{cx}, v{ct+8}, 0
        v_mov_b32 v{cs+1}, s{sTAG}
        v_dot2_f32_bf16 v{cs}, v{cx+2}, v{ct+9}, v{cs}""")
        self.bs(cx, 4, vT + 2, rWS, T0, 0, 'sc1', count=False)
        for ctl in ('quad_perm:[1,0,3,2]', 'quad_perm:[2,3,0,1]', 'row_half_mirror', 'row_ror:8'): self.dpp('v_add_f32', cs, cs, cs, ctl)
        a('s_mov_b64 exec, 0x10001')
        self.bs(cs, 2, vT + 3, rWS, T3, 0, 'sc1', count=False)
        a("""s_mov_b64 exec, -1
        L_NOC:""")
        V.release(ct, 12)
        def ln2_tile():
            for i in E2: self.pk('add', hh + i, x1 + i, st, bc=(1,), neg=(1,))
            self.round_list([hh + i for i in range(16)])
            for i in E2: self.pk('mul', hh + i, hh + i, st + 1, bc=(1,))
            self.round_list([hh + i for i in range(16)])
            for i in E2: self.pk('mul', hh + i, hh + i, mf + 16 + i)
            self.round_list([hh + i for i in range(16)])
            for i in E2: self.pk('add', hh + i, hh + i, mf + i)
            self.round_list([hh + i for i in range(16)])
        lg.wait('s')
        self.stamp('cand')
        ffn_dma(fd[3])
        uu = V.alloc(16); vGr = V.alloc(); vDr = V.alloc(); vXs = V.alloc()
        def out_calc():
            expand(mf, tb4 + 2)
            for i in E2: self.pk('mul', hh + i, hh + i, mf + i)
            self.round_list([hh + i for i in range(16)])
            for i in E2: self.pk('add', hh + i, hh + i, x1 + i)
            for i in range(8): a(f'v_cvt_pk_bf16_f32 v{op+i}, v{hh+2*i}, v{hh+2*i+1}')
            for q in range(2): self.dw('ds_write_b128', vOT, op + 4 * q, 4, 16 * q)
            S(T3, 'w*(16*144) + L_OT'); va(vOT, [(3, 3, 144), (0, 3, 16)], T3)
        oc = o.get('ocat', 2 if TL else 1); l2 = o.get('l2at', 1 if TL else 0)
        def f_work():
            if TL: f_pre(0); f_pre(1)
            if l2 == 0: ln2_tile()
            if oc == 0: out_calc()
            S(T0, '(w >> 2)*32768 + (w & 3)*32 + L_GU')
            va(vGr, [(4, 2, 8192), (2, 2, 128), (3, 2, 32), (0, 2, 8)]); a(f'v_xor_b32 v{vGr}, s{T0}, v{vGr}')
            S(T0, 'w*64')
            va(vDr, [(2, 1, 512), (3, 1, 4096), (5, 1, 2048), (2, 2, 64), (4, 1, 32), (0, 2, 8)])
            a(f'v_xor_b32 v{vDr}, s{T0}, v{vDr}'); a(f'v_add_u32 v{vDr}, {L_DN}, v{vDr}')
            va(vXs, [(0, 3, 16), (4, 2, 128)], None, L_XS)
            S(T0, 'w*16 + L_K2'); a(f'v_mov_b32 v{vT}, s{T0}')
            va(vT + 1, [(0, 3, 16)], None, L_K2)
            a(f'v_and_b32 v{vT+4}, 8, v{vL}')
            a(f'v_cmp_eq_u32 {sr(sCMP, 2)}, 0, v{vT+4}')
            self.stamp('oc')
        self.inbox(5, 8, (1, 3, 5, 7), f_work)
        P = sPL
        a(f"""s_min_u32 s{P+1}, s{P}, s{P+4}
        s_max_u32 s{P}, s{P}, s{P+4}
        s_max_u32 s{P+3}, s{P+2}, s{P+6}
        s_min_u32 s{P+2}, s{P+2}, s{P+6}
        s_max_u32 s{P+4}, s{P+1}, s{P+3}
        s_min_u32 s{P+1}, s{P+1}, s{P+3}
        v_mov_b32 v{uu}, s{P}
        v_mov_b32 v{uu+3}, s{P+2}
        v_mov_b32 v{uu+1}, s{P+4}
        v_mov_b32 v{uu+2}, s{P+1}""")
        self.dw('ds_write_b128', vT, uu, 4)
        self.stamp('F2p')
        V.release(big, 8 * len(freg)); V.release(gr, 2); V.release(vGR); V.release(vRid)
        ffn = V.alloc(48); ga_ = V.alloc(16); gb_ = V.alloc(16)
        vm.wait('gu')
        self.barrier()
        self.stamp('F2')
        def gu_frags():
            for s in range(8):
                self.tr(ffn + 4 * s, vGr, s * 1024); self.tr(ffn + 4 * s + 2, vGr, s * 1024 + 512)
        a(f"""s_cmp_lt_u32 s{sWAVE}, 4
        s_cbranch_scc1 L_CSEL""")
        fq0, vq0 = list(fq), list(vm.q)
        ffn_dma(fd[4])
        gu_frags()
        if l2 == 1: ln2_tile()
        if oc == 1: out_calc()
        a("""s_branch L_CSELD
        L_CSEL:""")
        lg.reset(); fq[:] = fq0; vm.q = vq0
        self.r128(uu, vT + 1)
        S(T0, 'w*512 + L_XS'); a(f'v_add_u32 v{vT+2}, s{T0}, v{vL8}')
        S(T0, 'w*4 + L_K3'); a(f'v_mov_b32 v{vT+3}, s{T0}')
        lg.wait_all()
        c4 = uu + 4
        for n, ctl in enumerate(('quad_perm:[1,0,3,2]', 'quad_perm:[2,3,0,1]', 'row_half_mirror')):
            for i in range(4): self.dpp('v_max_u32', c4 + i, uu + 3 - i, uu + i, ctl)
            if n == 2: break
            a(f"""v_max_u32 v{c4+4}, v{c4}, v{c4+2}
            v_max_u32 v{c4+5}, v{c4+1}, v{c4+3}
            v_min_u32 v{c4+6}, v{c4}, v{c4+2}
            v_min_u32 v{c4+7}, v{c4+1}, v{c4+3}
            v_max_u32 v{uu}, v{c4+4}, v{c4+5}
            v_min_u32 v{uu+1}, v{c4+4}, v{c4+5}
            v_max_u32 v{uu+2}, v{c4+6}, v{c4+7}
            v_min_u32 v{uu+3}, v{c4+6}, v{c4+7}""")
        for i in range(4): a(f'v_readfirstlane_b32 s{P+i}, v{c4+i}')
        a(f"""s_bitcmp1_b32 s{sWAVE}, 0
        s_cselect_b32 s{P}, s{P+1}, s{P}
        s_cselect_b32 s{P+2}, s{P+3}, s{P+2}
        s_bitcmp1_b32 s{sWAVE}, 1
        s_cselect_b32 s{P}, s{P+2}, s{P}
        s_and_b32 s{T2}, s{P}, 4095""")
        S(T0, '((15 - (T2 >> 8))*2 + (T2 & 1))*16384 + CAND'); S(T1, 'kq*1024 + T0'); S(T0, 'T0 + 8192')
        va(vT + 6, [(0, 4, 8)])
        def sel_work():
            self.stamp('sel')
            ffn_dma(fd[4], T3)
            gu_frags()
            if l2 == 1: ln2_tile()
            if oc == 1: out_calc()
            S(T2, 'T2*4 + w')
        self.try_load(lambda: (self.bl(uu + 4, 2, vT + 6, rWS, T0, 0, 'sc1'), self.bl(uu, 4, vL16, rWS, T1, 0, 'sc1')), [uu + 1, uu + 3, uu + 5], vT + 4, sel_work)
        a(f'ds_write2_b32 v{vT+2}, v{uu}, v{uu+2} offset0:0 offset1:1'); lg.issue()
        for ctl in ('quad_perm:[1,0,3,2]', 'quad_perm:[2,3,0,1]', 'row_half_mirror', 'row_ror:8'): self.dpp('v_add_f32', uu + 4, uu + 4, uu + 4, ctl)
        a(f"""v_cvt_pk_bf16_f32 v{uu+4}, 0, v{uu+4}
        v_ashrrev_i32 v{uu+5}, 31, v{uu+4}
        v_or_b32 v{uu+5}, 0x80000000, v{uu+5}
        v_xor_b32 v{uu+4}, v{uu+4}, v{uu+5}
        v_and_b32 v{uu+4}, s{sMASK}, v{uu+4}
        v_or_b32 v{uu+4}, s{T2}, v{uu+4}""")
        self.dw('ds_write_b32', vT + 3, uu + 4, 1)
        a('L_CSELD:')
        V.release(vFG); V.release(vFD)
        a(f'v_mov_b32 v{vT}, {L_K3}')
        va(vT + 4, [(0, 4, 16), (5, 1, 8)])
        S(T1, 'fs*8192 + HGR'); S(T7, '(kq*8 + w)*256 + T1')
        self.barrier()
        self.stamp('xsel')
        self.r128(uu, vT)
        lg.wait_all()
        a(f"""v_max_u32 v{uu+4}, v{uu}, v{uu+1}
        v_max_u32 v{uu+5}, v{uu+2}, v{uu+3}
        v_min_u32 v{uu+6}, v{uu}, v{uu+1}
        v_min_u32 v{uu+7}, v{uu+2}, v{uu+3}
        v_min_u32 v{uu+1}, v{uu+4}, v{uu+5}
        v_max_u32 v{uu}, v{uu+4}, v{uu+5}
        v_max3_u32 v{uu+1}, v{uu+1}, v{uu+6}, v{uu+7}
        v_cndmask_b32 v{vT}, v{uu+1}, v{uu}, {sr(sCMP, 2)}
        v_readfirstlane_b32 s{sK1}, v{uu}
        v_and_b32 v{vT}, 3, v{vT}
        v_readfirstlane_b32 s{sK2}, v{uu+1}
        v_lshl_add_u32 v{vT}, v{vT}, 9, v{vXs}""")
        self.r128(uu + 4, vT)
        if oc < 2:
            for q in range(2): self.r128(op + 4 * q, vOT, q * 8 * 144, 'ot')
        a(f"""s_bfe_u32 s{sROW0}, s{sK1}, {3 | (11 << 16)}
        s_bfe_u32 s{sROW1}, s{sK2}, {3 | (11 << 16)}
        s_sub_u32 s{sROW0}, 2047, s{sROW0}
        s_sub_u32 s{sROW1}, 2047, s{sROW1}
        s_waitcnt lgkmcnt({2 if oc < 2 else 0})""")
        gd = [ga_ + 4 * i for i in range(4)] + [gb_ + 4 * i for i in range(4)]
        for s in range(8):
            a(f'v_mfma_f32_16x16x32_bf16 {vr(gd[s], 4)}, {vr(uu + 4, 4)}, {vr(ffn + 4*s, 4)}, 0')
        p0, p1 = uu, uu + 2
        hk = V.alloc(4)
        for p, b in ((p0, 0), (p1, 4)):
            a(f'v_add_f32 v{p}, v{gd[b]}, v{gd[b+1]+1}')
            a(f'v_add_f32 v{p+1}, v{gd[b+2]+2}, v{gd[b+3]+3}')
        a(f"""v_add_f32 v{p0}, v{p0}, v{p0+1}
        v_add_f32 v{p1}, v{p1}, v{p1+1}
        v_mov_b32 v{p0+1}, s{sTAG}
        v_permlane16_swap_b32 v{p1}, v{p1+1}
        s_cmp_ge_u32 s{sJ}, 28
        s_cbranch_scc1 L_NOHP
        v_add_f32 v{p0}, v{p0}, v{p1+1}
        s_mov_b32 exec_lo, 0xffff
        s_mov_b32 exec_hi, 0xffff""")
        self.bs2([(p0, 2, vT + 4, T7, 0)])
        a(f"""s_mov_b64 exec, -1
        L_NOHP:
        v_mov_b32 v{hk}, v{p0}
        v_mov_b32 v{hk+1}, v{p0+1}
        v_add_u32 v{hk+2}, s{T7}, v{vT+4}""")
        self.stamp('Hpub')
        vOr = V.alloc(); vOa = V.alloc()
        def out_store():
            S(T0, 'rt*128 + w*16'); va(vOr, [(3, 3, 1)], T0)
            S(T2, 'T0*2048 + cb*128'); S(T3, 'T2 + 16384')
            va(vOa, [(3, 3, 2048), (0, 3, 16)])
            for q in range(2):
                if q: a(f'v_add_u32 v{vOr}, 8, v{vOr}')
                a(f"""v_cmp_ne_u32 vcc, s{sROW0}, v{vOr}
                v_cmp_ne_u32 {sr(sCMP, 2)}, s{sROW1}, v{vOr}
                s_and_b64 exec, vcc, {sr(sCMP, 2)}""")
                self.bs(op + 4 * q, 4, vOa, rOUT, (T2, T3)[q], 0, o.get('outmod', 'sc1'), count=False)
                a('s_mov_b64 exec, -1')
        lg.wait('ot')
        if o.get('outat', 1) == 0: assert oc < 2; out_store()
        fz = V.alloc(4)
        sFR, sFK, sFC0 = T4, T5, T6
        a(f"""s_bitcmp1_b32 s{sX if TL else sRT}, {1 if TL else 2}
        s_cselect_b32 s{sFR}, s{sROW1}, s{sROW0}
        s_cselect_b32 s{sFK}, s{sK2}, s{sK1}
        s_cmp_lg_u32 s{sWAVE}, 7
        s_cbranch_scc1 L_NOFZ
        s_cmp_lg_u32 s2, 0
        s_cbranch_scc1 L_NONON
        v_mov_b32 v{vT+2}, s{sTAG}
        s_mov_b64 exec, 1""")
        self.bs(vT + 2, 1, vZ, rWS, '0', 0, 'sc1', count=False)
        a(f"""s_mov_b64 exec, -1
        L_NONON:""")
        S(sFC0, '(x >> 2)*2 + (x & 1)' if TL else '(rt >> 3)*2 + (rt & 1)')
        S(T7, '(cb*8 + x)*(56*128) + GGR' if TL else '(cb*8 + (rt >> 2)*2 + (rt & 1))*(56*128) + GGR')
        S(sU, 'T4*2048 + cb*128 + T6*32')
        va(vT + 6, [(0, 3, 4)])
        S(T0, 'T6*32 + L_GB'); a(f'v_add_u32 v{vT+1}, s{T0}, v{vT+6}')
        a(f'ds_read_b32 v{fz+2}, v{vT+1}')
        S(sK1, '((T4 >> 7)*2 + ((T5 >> 2) & 1))*16384 + cb*256 + T6*64 + CAND'); S(sK2, 'k1 + 4096')
        va(vT + 7, [(0, 3, 8)])
        ld_fz = lambda: (self.bl(st, 2, vT + 7, rWS, sK1, 0, 'sc1'), self.bl(fz, 2, vT + 7, rWS, sK2, 0, 'sc1'))
        q_ = list(vm.q); ld_fz(); vm.q = q_
        a(f"""s_and_b32 s{T0}, s{sFK}, s{sMASK}
        s_ashr_i32 s{T2}, s{T0}, 31
        s_andn2_b32 s{T2}, 0x7fff0000, s{T2}
        s_or_b32 s{T2}, s{T2}, 0x80000000
        s_xor_b32 s{T0}, s{T0}, s{T2}
        v_mov_b32 v{fz+3}, s{T0}
        v_mul_f32 v{fz+3}, s{sL2E}, v{fz+3}
        v_exp_f32 v{fz+3}, -v{fz+3}
        v_add_f32 v{fz+3}, 1.0, v{fz+3}
        v_rcp_f32 v{fz+3}, v{fz+3}""")
        self.round1(fz + 3)
        a(f"""L_NOFZ:
        s_cmp_lt_u32 s{sJ}, 28
        s_cbranch_scc1 L_HSEC""")
        if oc == 2:
            out_calc()
            self.barrier()
            for q in range(2): self.r128(op + 4 * q, vOT, q * 8 * 144)
            lg.wait_all()
        a("""s_branch L_GSEC
        L_HSEC:""")
        a(f"""s_cmp_lt_u32 s{sWAVE}, 4
        s_cbranch_scc1 L_HW""")
        if oc == 2: out_calc()
        a("""s_branch L_NOH
        L_HW:""")
        S(T0, 'w*256 + T1')
        va(vT, [(4, 2, 2048), (0, 4, 16)])
        S(T2, 'w*32 + L_ACT'); va(vT + 1, [(5, 1, 128), (2, 1, 16), (1, 1, 8), (3, 1, 4), (0, 1, 2)], T2)
        a(f"""s_cmp_lg_u32 s{sLOC}, 0
        s_cbranch_scc1 L_HLOC""")
        self.spoll([(q, 1, T0, q * 2048 + 1024 + 252) for q in range(4)], range(4))
        a('L_HLOC:')
        self.stamp('Hpre')
        g, u = ga_, ga_ + 4
        self.try_load(lambda: [self.bl(ga_ + 4 * m, 4, vT, rWS, T0, m * 1024, 'sc1') for m in range(2)], [g + 1, g + 3, u + 1, u + 3], vT + 2, out_calc if oc == 2 else None)
        a(f"""v_permlane32_swap_b32 v{g}, v{g+2}
        v_permlane32_swap_b32 v{u}, v{u+2}
        v_add_f32 v{g}, v{g}, v{g+2}
        v_add_f32 v{u}, v{u}, v{u+2}
        v_mov_b32 v{g+2}, v{g}
        v_mov_b32 v{u+2}, v{u}
        v_permlane16_swap_b32 v{g}, v{g+2}
        v_permlane16_swap_b32 v{u}, v{u+2}
        v_add_f32 v{g}, v{g}, v{g+2}
        v_add_f32 v{u}, v{u}, v{u+2}""")
        self.round2(g, u)
        self.silu(g, vT + 2)
        a(f"""v_mul_f32 v{g}, v{g}, v{u}
        v_cvt_pk_bf16_f32 v{g}, v{g}, v{g}
        ds_write_b16 v{vT+1}, v{g}
        L_NOH:""")
        va(vT, [(2, 1, 128), (5, 1, 16)], None, L_ACT)
        va(vT + 1, [(4, 2, 56 * 128), (0, 4, 8)])
        va(vT + 2, [(0, 2, 4096)] if TL else [(0, 1, 64 * 4096), (1, 1, 2 * 4096)])
        S(T0, '(kq*8 + w)*(4*56*128) + fs*128 + GGR')
        S(T1, ('(kq*8 + w)*16384' if TL else '(((kq & 1)*4 + (w >> 1))*8 + (w & 1)*4 + (kq >> 1))*4096') + ' + x*64 + (j >> 2)*4 + INB + 3072')
        vm.wait_all()
        self.barrier()
        self.stamp('Hok')
        for s in range(4):
            self.r128(ga_ + 4 * s, vT, s * 32, ('ac', s))
            self.tr(ffn + 32 + 4 * s, vDr, s * 8192, ('ac', s)); self.tr(ffn + 32 + 4 * s + 2, vDr, s * 8192 + 1024, ('ac', s))
        for s in range(4):
            lg.wait(('ac', s))
            a(f'v_mfma_f32_32x32x16_bf16 {vr(gb_, 16)}, {vr(ga_ + 4*s, 4)}, {vr(ffn + 32 + 4*s, 4)}, ' + ('0' if s == 0 else vr(gb_, 16)))
        if oc == 2:
            for q in range(2): self.r128(op + 4 * q, vOT, q * 8 * 144)
        a(f'v_mov_b32 v{gb_+1}, s{sTAG}')
        self.bs(gb_, 2, vT + 1, rWS, T0, 0, 'sc1')
        a('s_mov_b64 exec, 15')
        self.bs(gb_ + 1, 1, vT + 2, rWS, T1, 0, 'sc1')
        a('s_mov_b64 exec, -1')
        self.stamp('Gpub')
        if o.get('hclean', 1):
            a("""s_mov_b32 exec_lo, 0xffff
            s_mov_b32 exec_hi, 0xffff""")
            self.bs(hk, 2, hk + 2, rWS, '0', 0, 'sc1')
            a('s_mov_b64 exec, -1')
        lg.wait_all()
        a('L_GSEC:')
        if o.get('outat', 1) == 1: out_store()
        a(f"""s_cmp_ge_u32 s{sJ}, 16
        s_cbranch_scc1 L_FIN""")
        self.inbox(6, 8, range(7))
        self.stamp('Gpre')
        a(f"""s_barrier
        s_cmp_lg_u32 s{sWAVE}, 7
        s_cbranch_scc1 L_FIN""")
        S(T0, 'T7 + 4096')
        gg = [ga_ + 4 * i for i in range(4)] + [uu + 4 * i for i in range(3)]
        self.poll(lambda: [self.bl(gg[n], 4, vL16, rWS, (T7, T0)[n >> 2], (n & 3) * 1024, 'sc1') for n in range(7)],
                  [gg[n] + 1 + 2 * e for n in range(7) for e in range(2)], vT)
        self.finish_load(None, ld_fz, [st + 1, fz + 1], vT)
        self.stamp('Gok')
        for n in range(1, 7):
            for e in (0, 2): a(f'v_add_f32 v{gg[0]+e}, v{gg[0]+e}, v{gg[n]+e}')
        y0, y1 = gg[0], gg[0] + 1
        a(f'v_mov_b32 v{y1}, v{gg[0]+2}')
        for y in (y0, y1): self.dpp('v_add_f32', y, y, y, 'row_ror:8')
        for sw in ('v_permlane16_swap_b32', 'v_permlane32_swap_b32'):
            for y in (y0, y1): a(f'v_mov_b32 v{y+2}, v{y}')
            for y in (y0, y1): a(f'{sw} v{y}, v{y+2}')
            self.pk('add', y0, y0, y0 + 2)
        self.round2(y0, y1)
        self.pk('mul', y0, y0, fz + 3, bc=(1,))
        self.unpack(vT, vT + 1, st)
        self.round2(y0, y1)
        self.pk('add', y0, y0, vT)
        self.unpack(vT, vT + 1, fz + 2)
        self.round2(y0, y1)
        self.pk('mul', y0, y0, vT)
        self.unpack(vT, vT + 1, fz)
        self.round2(y0, y1)
        self.pk('add', y0, y0, vT)
        a(f'v_cvt_pk_bf16_f32 v{y0}, v{y0}, v{y1}')
        a('s_mov_b64 exec, 0xff')
        self.bs(y0, 1, vT + 6, rOUT, sU, 0, 'sc1')
        a('s_mov_b64 exec, -1')
        a('L_FIN:')
        if self.prof:
            a('s_waitcnt vmcnt(0) lgkmcnt(0)')
            self.stamp('end')
            a(f's_memrealtime {sr(sTM, 2)}')
            a('s_waitcnt lgkmcnt(0)')
            a(f'v_writelane_b32 v255, s{sTM}, 61')
            S(T0, '(wg*8 + w)*256 + STAMPS')
            a(f'v_writelane_b32 v255, s{sSPIN}, 62')
            a(f'v_lshlrev_b32 v{vT+1}, 2, v{vL}')
            a(f'buffer_store_dword v255, v{vT+1}, {sr(rWS, 4)}, s{T0} offen')
            S(T0, 'T0 + 0x100000')
            a(f'buffer_store_dword v254, v{vT+1}, {sr(rWS, 4)}, s{T0} offen')
        a('L_END:')
        a('s_endpgm')
        return self

    def text(self):
        a = self.a
        npad = a.fix_hazards()
        errs = a.check_waits([NAME])
        for e in errs: print('WAITERR', e, file=sys.stderr)
        assert not errs
        hdr = open(os.path.join(os.path.dirname(os.path.abspath(__file__)), 'header.txt')).read()
        s = hdr + '; @launch grid=(256,1,1) block=(512,1,1) lds=163840\n'
        s += '.amdgcn_target "amdgcn-amd-amdhsa--gfx950"\n.text\n'
        s += f'.globl {NAME}\n.p2align 8\n.type {NAME},@function\n'
        body = a.text()
        import subprocess, tempfile
        with tempfile.TemporaryDirectory() as td:
            open(td + '/t.s', 'w').write('.amdgcn_target "amdgcn-amd-amdhsa--gfx950"\n.text\n' + body.replace('CODE_KB', '20480'))
            subprocess.run(['clang', '-x', 'assembler', '-target', 'amdgcn-amd-amdhsa', '-mcpu=gfx950', '-c', td + '/t.s', '-o', td + '/t.o'], check=True)
            subprocess.run(['llvm-objcopy', '-O', 'binary', '-j', '.text', td + '/t.o', td + '/t.bin'], check=True)
            size = os.path.getsize(td + '/t.bin')
        print('; code bytes', size, file=sys.stderr)
        s += body.replace('CODE_KB', str((size // 1024 + 1) * 1024))
        s += '.p2align 10\n.fill 768, 4, 0xbf800000\n'
        s += '.section .rodata,"a"\n' + kernel_desc(NAME, 256, 102)
        print(f'; vgpr hi {self.V.hi}, nops {npad}, instrs {sum(1 for k, _ in a.items if k == "ins")}', file=sys.stderr)
        return s


if __name__ == '__main__':
    import argparse, json
    ap = argparse.ArgumentParser()
    ap.add_argument('-o', default='/dev/stdout')
    ap.add_argument('--prof', action='store_true')
    ap.add_argument('--opts', default='{}')
    args = ap.parse_args()
    g = Gen(args.prof, json.loads(args.opts)).build()
    t = g.text()
    open(args.o, 'w').write(t)
    if args.prof: open(args.o + '.stamps', 'w').write(json.dumps(g.stnames))
```

```python
import sys, os
sys.path.insert(0, os.path.dirname(os.path.abspath(__file__)))
from asm import *

NAME = 'adaLN_cond__linear_kernel_hedgehog__moe_arch_mod__prompt_kernel'

NONCE = 0x0
MARK = 0x100
GR = 0x010000
MODP2 = 0x020000
SINB = 0x040000
AINB = 0x080000
INA = 0x200000
INB = 0x100000
HF = 0x400000
OF = 0x800000
STAT = 0xC00000
CAND = 0x2000000
HGR = 0x1400000
ZP = 0x1480000
GGR = 0x1500000
KVP = 0x1800000
KIN = 0x1C00000
STAMPS = 0x1600000
WS_BYTES = 268435456

SEC = 8320
SLOT = 3 * SEC
SCR = 6 * SLOT
L_A1 = SCR
L_M2 = SCR + 1024
L_ST = SCR + 2048
L_MP = SCR + 2560
L_WPHI = SCR + 6656
L_XF = 147456
L_PHK = 0
L_V = 32768
WO_H0 = 32768
WO_H1 = 98304
GS = 0
L_KVF = GS
L_ZF = GS + 8192
L_EXCH = GS
L_MT = GS + 12288
L_GU = 32768
L_DN = 98304
TS = 131072
L_SP = TS
L_ST2 = TS + 4096
L_K1 = TS + 5120
L_K2 = TS + 5184
L_K3 = TS + 5312
L_XS = TS + 5632
L_ACT = TS + 7680
L_TB = TS + 7936
L_GB = L_TB + 256
L_OT = TS + 8704
L_XT = GS

SPIN_LIMIT = 300000

sWAVE, sTAG, sSPIN, sMASK, sL2E = 3, 4, 5, 6, 7
sX, sJ, sR1, sHP, sCB = 8, 9, 10, 11, 12
T0, T1, T2, T3, T4, T5, T6, T7 = 13, 14, 15, 16, 17, 18, 19, 20
sRT = 21
sCMP = 22
sPL = 24
rWS, rX, rW, rWO, rWM, rWG, rWU, rWD, rOUT = 32, 36, 40, 44, 48, 52, 56, 60, 64
KA = 68
pWPHI, pWR, pC = KA + 4, KA + 10, KA + 18
sK1, sK2, sROW0, sROW1, sFS, sKQ, sKH, sKF = 68, 69, 70, 71, 74, 75, 76, 77
sFG, sFD, sU, sROT, sWB, sU0 = 80, 81, 82, 83, 84, 85
sWO2, sW1K, sMF = 88, 89, 90
sINB, sRow, sGTB, sC32 = 92, 93, 94, 95
sXC = 94
pDBG = 30
sLOC = 93
XT = (96, 97, 98, 99)
sTM = 100
ENV = dict(wg=2, w=sWAVE, x=sX, j=sJ, r1=sR1, hp=sHP, cb=sCB, rt=sRT, row=sRow, gtb=sGTB, c32=sC32, kh=sKH, kf=sKF, fs=sFS, kq=sKQ,
           rot=sROT, wb=sWB, u0=sU0, wo2=sWO2, w1k=sW1K, mf=sMF, u=sU, fg=sFG, fd=sFD, T0=T0, T1=T1, T2=T2, T3=T3, T4=T4, T5=T5, T6=T6, T7=T7, row0=sROW0, row1=sROW1, k1=sK1)


class Gen:
    def __init__(self, prof=False, opts=None):
        self.a = Asm()
        self.vm = Counter(self.a, 'vmcnt', 63)
        self.lg = Counter(self.a, 'lgkmcnt', 15)
        self.V = RegAlloc(254, 1)
        self.prof = prof
        self.nopk = False
        self.nst = 0
        self.stnames = []
        self.S = SExpr(self.a, ENV, {k: v for k, v in globals().items() if isinstance(v, int) and k.isupper() and k not in ENV}, XT)
        self.o = dict(AD=12, AD2=4, wburst=(0, 3, 0, 0, 3, 3), wxor=3, LASTB=13,
                      sched={1: 'm1 p2', 2: 's4', 3: 'm1 s4', 4: 'p2', 5: 'm1 g2', 7: 'm1 h g2 p3', 9: 'g2', 10: 'g2', 11: 'r', 12: 'P', 14: 'o4 f4', 15: 'f2'}, fdma=(3, 0, 1, 1, 1), wowin=(6, 0, 2))
        if opts: self.o.update(opts)

    def bl(self, dst, n, voff, srd, soff, imm=0, mods='', tag=None):
        op = {1: 'dword', 2: 'dwordx2', 4: 'dwordx4'}[n]
        so = soff if isinstance(soff, str) else (sr(soff))
        self.a(f'buffer_load_{op} {vr(dst, n)}, v{voff}, {sr(srd, 4)}, {so} offen' + (f' offset:{imm}' if imm else '') + (' ' + mods if mods else ''))
        self.vm.issue(tag)
    def bs(self, src, n, voff, srd, soff, imm=0, mods='', tag=None, count=True):
        op = {1: 'dword', 2: 'dwordx2', 4: 'dwordx4'}[n]
        so = soff if isinstance(soff, str) else (sr(soff))
        self.a(f'buffer_store_{op} {vr(src, n)}, v{voff}, {sr(srd, 4)}, {so} offen' + (f' offset:{imm}' if imm else '') + (' ' + mods if mods else ''))
        if count: self.vm.issue(tag)
    def bs2(self, items):
        a = self.a
        LL, D = a.label('LOC'), a.label('LOCD')
        a(f's_cmp_lg_u32 s{sLOC}, 0')
        a(f's_cbranch_scc1 {LL}')
        for src, n, voff, soff, imm in items: self.bs(src, n, voff, rWS, soff, imm, 'sc1', count=False)
        a(f's_branch {D}')
        a(f'{LL}:')
        for src, n, voff, soff, imm in items: self.bs(src, n, voff, rWS, soff, imm, '', count=False)
        a(f'{D}:')
    def dma(self, voff, srd, soff, imm=0, mods='', tag=None):
        self.a(f'buffer_load_dwordx4 v{voff}, {sr(srd, 4)}, {sr(soff)} offen' + (f' offset:{imm}' if imm else '') + (' ' + mods if mods else '') + ' lds')
        self.vm.issue(tag)
    def dr(self, op, dst, n, addr, off=0, tag=None):
        assert 0 <= off < 65536, off
        self.a(f'{op} {vr(dst, n)}, v{addr}' + (f' offset:{off}' if off else ''))
        self.lg.issue(tag)
    def tr(self, dst, addr, off, tag=None): self.dr('ds_read_b64_tr_b16', dst, 2, addr, off, tag)
    def r128(self, dst, addr, off=0, tag=None): self.dr('ds_read_b128', dst, 4, addr, off, tag)
    def dw(self, op, addr, src, n, off=0, tag=None):
        assert 0 <= off < 65536, off
        self.a(f'{op} v{addr}, {vr(src, n)}' + (f' offset:{off}' if off else ''))
        self.lg.issue(tag)
    def barrier(self):
        self.lg.wait_all()
        self.a('s_barrier')
    def stamp(self, name):
        ex = self.o.get('exfil')
        if ex and name in ex[:2]:
            self.a(f's_memrealtime {sr(sTM, 2)}')
            self.lg.wait_all()
            self.a(f'v_writelane_b32 v255, s{sTM}, {1 + ex.index(name)}')
        if not self.prof: return
        only = self.o.get('only')
        if only and name not in only and name != 'end': return
        self.a(f's_memtime {sr(sTM, 2)}')
        self.a(f's_memrealtime s[0:1]')
        self.lg.wait_all()
        self.a(f'v_writelane_b32 v255, s{sSPIN if self.o.get("spinst") and self.nst > 3 else sTM}, {self.nst}')
        self.a(f'v_writelane_b32 v254, s0, {self.nst}')
        self.stnames.append(name)
        self.nst += 1
        assert self.nst <= 60
    def unpack(self, lo, hi, src):
        self.a(f'v_lshlrev_b32 v{lo}, 16, v{src}')
        self.a(f'v_and_b32 v{hi}, s{sMASK}, v{src}')
    def round1(self, r):
        self.a(f'v_cvt_pk_bf16_f32 v{r}, 0, v{r}')
    def round2(self, r0, r1):
        self.round1(r0); self.round1(r1)
    def round_list(self, regs):
        for r in regs: self.round1(r)
    def pk(self, op, d, s0, s1, s2=None, bc=(), neg=()):
        srcs = [s0, s1] + ([s2] if s2 is not None else [])
        if self.nopk:
            for h in range(2):
                t = []
                for k, r in enumerate(srcs):
                    kind, n = r if isinstance(r, tuple) else ('v', r)
                    t.append(('-' if k in neg else '') + f'{kind}{n if k in bc else n + h}')
                e64 = '' if op == 'fma' else ('_e64' if (neg or t[1][0] == 's') else '')
                self.a(f'v_{op}_f32{e64} v{d+h}, ' + ', '.join(t))
            return
        txt, sel, selhi = [], [], []
        for k, r in enumerate(srcs):
            kind, n = r if isinstance(r, tuple) else ('v', r)
            if k in bc:
                txt.append(f'{kind}[{n & ~1}:{(n & ~1) + 1}]'); sel.append(n & 1); selhi.append(n & 1)
            else:
                assert n % 2 == 0
                txt.append(f'{kind}[{n}:{n+1}]'); sel.append(0); selhi.append(1)
        assert d % 2 == 0
        m = ''
        if any(sel): m += ' op_sel:[' + ','.join(map(str, sel)) + ']'
        if not all(selhi): m += ' op_sel_hi:[' + ','.join(map(str, selhi)) + ']'
        if neg:
            ng = ','.join('1' if k in neg else '0' for k in range(len(srcs)))
            m += f' neg_lo:[{ng}] neg_hi:[{ng}]'
        self.a(f'v_pk_{op}_f32 v[{d}:{d+1}], ' + ', '.join(txt) + m)
    def dpp(self, op, d, s0, s1, ctl):
        self.a(f'{op}_dpp v{d}, v{s0}, v{s1} {ctl} row_mask:0xf bank_mask:0xf')
    def allreduce(self, v, t, op='v_add_f32', lo=True, b3=True):
        if lo:
            self.dpp(op, v, v, v, 'quad_perm:[1,0,3,2]')
            self.dpp(op, v, v, v, 'quad_perm:[2,3,0,1]')
            self.dpp(op, v, v, v, 'row_half_mirror')
        self.dpp(op, v, v, v, 'row_ror:8')
        self.a(f'v_mov_b32 v{t}, v{v}')
        self.a(f'v_permlane16_swap_b32 v{v}, v{t}')
        self.a(f'{op} v{v}, v{v}, v{t}')
        self.a(f'v_mov_b32 v{t}, v{v}')
        self.a(f'v_permlane32_swap_b32 v{v}, v{t}')
        self.a(f'{op} v{v}, v{v}, v{t}')
    def poll(self, loads, tagregs, tmp=None):
        a = self.a
        L, D = a.label('POLL'), a.label('PDONE')
        a(f'{L}:')
        loads()
        self.vm.wait_all()
        self.tagcheck(tagregs, tmp)
        a(f's_cbranch_vccz {D}')
        a(f's_add_u32 s{sSPIN}, s{sSPIN}, 1')
        a(f's_cmp_lt_u32 s{sSPIN}, {SPIN_LIMIT}')
        a(f's_cbranch_scc1 {L}')
        a(f'{D}:')
    def weave(self, fn, extras):
        a = self.a
        keep = a.items; a.items = []
        fn()
        body = a.items; a.items = keep
        extras = list(extras); n = len(extras)
        for i, it in enumerate(body):
            while extras and (n - len(extras)) * len(body) <= i * n: extras.pop(0)()
            a.items.append(it)
        for e in extras: e()
    def tagcheck(self, tagregs, tmp):
        a = self.a
        if tagregs[0] == 'nan':
            if len(tagregs) == 3: a(f'v_max_u32 v{tmp}, v{tagregs[1]}, v{tagregs[2]}')
            a(f'v_cmp_eq_u32 vcc, -1, v{tmp if len(tagregs) == 3 else tagregs[1]}')
        elif len(tagregs) == 1:
            a(f'v_cmp_ne_u32 vcc, s{sTAG}, v{tagregs[0]}')
        else:
            a(f'v_bitop3_b32 v{tmp}, v{tagregs[0]}, v{tagregs[1]}, s{sTAG} bitop3:0x7e')
            for t in tagregs[2:]: a(f'v_bitop3_b32 v{tmp}, v{tmp}, v{t}, s{sTAG} bitop3:0xf6')
            a(f'v_cmp_ne_u32 vcc, 0, v{tmp}')
    def try_load(self, loads, tagregs, tmp=None, between=None, pre=None):
        a = self.a
        n0 = len(self.vm.q)
        loads()
        self.vm.q[-1] = tg = ('try', a.label('T'))
        if between: between()
        self.vm.wait(tg)
        OK = a.label('TOK')
        self.tagcheck(tagregs, tmp)
        a(f's_cbranch_vccz {OK}')
        q, l = list(self.vm.q), list(self.lg.q)
        if pre: pre()
        self.poll(loads, tagregs, tmp)
        self.vm.q, self.lg.q = q, l
        a(f'{OK}:')
    def finish_load(self, tg, loads, tagregs, tmp=None, pre=None):
        a = self.a
        self.vm.wait(tg)
        OK = a.label('TOK')
        self.tagcheck(tagregs, tmp)
        a(f's_cbranch_vccz {OK}')
        q, l = list(self.vm.q), list(self.lg.q)
        if pre: pre()
        self.poll(loads, tagregs, tmp)
        self.vm.q, self.lg.q = q, l
        a(f'{OK}:')
    def spoll(self, loads, checks, work=None, pipe=0):
        a = self.a
        L, C, D = a.label('SPOLL'), a.label('SCHK'), a.label('SDONE')
        def issue(note=''):
            for d, n, so, imm in loads:
                op = {1: 'dword', 2: 'dwordx2', 4: 'dwordx4', 8: 'dwordx8'}[n]
                a(f's_load_{op} {sr(sPL + d, n)}, {sr(rWS, 2)}, s{so} offset:{imm} glc' + note)
        if pipe:
            self.lg.wait_all()
            for k in checks: a(f's_not_b32 s{sPL + k}, s{sTAG}')
            issue(' ; nowait')
            if work: work()
            a(f'{L}:')
            a(f's_add_u32 s{sSPIN}, s{sSPIN}, 1')
            a(f's_cmp_ge_u32 s{sSPIN}, {SPIN_LIMIT}')
            a(f's_cbranch_scc1 {D}')
            ks = list(checks)
            a(f's_xor_b32 s{XT[0]}, s{sPL + ks[0]}, s{sTAG} ; nowait')
            for k in ks[1:]:
                a(f's_xor_b32 s{XT[1]}, s{sPL + k}, s{sTAG} ; nowait')
                a(f's_or_b32 s{XT[0]}, s{XT[0]}, s{XT[1]}')
            a(f's_cbranch_scc0 {D}')
            issue(' ; nowait')
            a(f's_sleep {pipe}')
            a(f's_branch {L}')
            a(f'{D}:')
            return
        if work:
            issue(); work()
            a(f's_branch {C}')
        a(f'{L}:')
        issue()
        a(f'{C}:')
        a(f's_add_u32 s{sSPIN}, s{sSPIN}, 1')
        a(f's_cmp_ge_u32 s{sSPIN}, {SPIN_LIMIT}')
        self.lg.wait_all()
        a(f's_cbranch_scc1 {D}')
        for k in checks:
            a(f's_cmp_lg_u32 s{sPL + k}, s{sTAG}')
            a(f's_cbranch_scc1 {L}')
        a(f'{D}:')
    def inbox(self, box, n, checks=None, work=None, pipe=0):
        self.spoll([(0, n, sINB, box * 512)], range(n) if checks is None else checks, work, pipe)
    def va(self, dst, terms, sreg=None, const=0, tmp=None):
        a = self.a; vL = self.vL
        first = True
        for sh, bits, mult in terms:
            full = sh + bits >= 6
            src = vL
            t = dst if first else tmp
            if sh == 0 and full: pass
            elif full: a(f'v_lshrrev_b32 v{t}, {sh}, v{vL}'); src = t
            elif sh == 0: a(f'v_and_b32 v{t}, {(1 << bits) - 1}, v{vL}'); src = t
            else: a(f'v_bfe_u32 v{t}, v{vL}, {sh}, {bits}'); src = t
            p2 = mult & (mult - 1) == 0
            k = mult.bit_length() - 1
            if first:
                if p2 and sreg is not None: a(f'v_lshl_add_u32 v{dst}, v{src}, {k}, s{sreg}'); sreg = None
                elif p2 and k: a(f'v_lshlrev_b32 v{dst}, {k}, v{src}')
                elif p2:
                    if src != dst: a(f'v_mov_b32 v{dst}, v{src}')
                else: a(f'v_mul_u32_u24 v{dst}, {mult}, v{src}')
            else:
                assert p2
                a(f'v_lshl_add_u32 v{dst}, v{src}, {k}, v{dst}')
            first = False
        if sreg is not None: a(f'v_add_u32 v{dst}, s{sreg}, v{dst}')
        if const: a(f'v_add_u32 v{dst}, {const}, v{dst}')
    def push(self, vaddr, soff, nl, vtmp, lab, wave=0):
        a = self.a
        a(f's_cmp_lg_u32 s{sWAVE}, {wave}')
        a(f's_cbranch_scc1 {lab}')
        a(f'v_mov_b32 v{vtmp}, s{sTAG}')
        a(f's_mov_b32 exec_hi, 0')
        if nl < 32: a(f's_mov_b32 exec_lo, {(1 << nl) - 1}')
        self.bs(vtmp, 1, vaddr, rWS, soff, 0, 'sc1', count=False)
        a('s_mov_b64 exec, -1')
        a(f'{lab}:')
    def silu(self, v, t):
        a = self.a
        a(f'v_mul_f32 v{t}, s{sL2E}, v{v}')
        a(f'v_exp_f32 v{t}, -v{t}')
        a(f'v_add_f32 v{t}, 1.0, v{t}')
        a(f'v_rcp_f32 v{t}, v{t}')
        a(f'v_mul_f32 v{v}, v{v}, v{t}')
        self.round1(v)
    def gemv_ops(self, wregs, cregs, acc, t0, t1, packed):
        ops = []
        assert t0 % 2 == 0 and t1 == t0 + 1
        for i, (w, c) in enumerate(zip(wregs, cregs)):
            cp = f'v[{c & ~1}:{(c & ~1) + 1}]'
            for d in range(4):
                tt = t0 + 2 * (d & 1)
                ops.append(f'v_lshlrev_b32 v{tt}, 16, v{w+d}')
                ops.append(f'v_and_b32 v{tt+1}, s{sMASK}, v{w+d}')
                ac = f'v[{acc+2*d}:{acc+2*d+1}]'
                if not packed:
                    for h in range(2): ops.append(f'v_mul_f32 v{acc+2*d+h}, v{tt+h}, v{c}' if i == 0 else f'v_fmac_f32 v{acc+2*d+h}, v{tt+h}, v{c}')
                elif i == 0: ops.append(f'v_pk_mul_f32 {ac}, v[{tt}:{tt+1}], {cp} op_sel:[0,{c & 1}] op_sel_hi:[1,{c & 1}]')
                else: ops.append(f'v_pk_fma_f32 {ac}, v[{tt}:{tt+1}], {cp}, {ac} op_sel:[0,{c & 1},0] op_sel_hi:[1,{c & 1},1]')
        for i in range(4): ops.append(f'v_permlane32_swap_b32 v{acc+i}, v{acc+4+i}')
        for i in range(4): ops.append(f'v_add_f32 v{acc+i}, v{acc+i}, v{acc+4+i}')
        for i in range(2): ops.append(f'v_permlane16_swap_b32 v{acc+i}, v{acc+2+i}')
        for i in range(2): ops.append(f'v_add_f32 v{acc+i}, v{acc+i}, v{acc+2+i}')
        for i in range(2): ops.append(f'v_add_f32_dpp v{acc+i}, v{acc+i}, v{acc+i} row_ror:8 row_mask:0xf bank_mask:0xf')
        ops.append(f'v_mov_b32_dpp v{acc}, v{acc+1} quad_perm:[0,1,2,3] row_mask:0xf bank_mask:0xc')
        return ops
    def sum8(self, b):
        self.pk('add', b, b, b + 2); self.pk('add', b + 4, b + 4, b + 6); self.pk('add', b, b, b + 4)
        self.a(f'v_add_f32 v{b}, v{b}, v{b+1}')
    def softmax_pm(self, p, e, out, t, mid=None, part=0, split=0):
        a = self.a
        mx, mn, u0, u1, s0, s1 = t, t + 1, t + 2, t + 3, t + 4, t + 6
        if part != 2:
            self.round_list([p + i for i in range(16)])
            a(f'v_max3_f32 v{mx}, v{p}, v{p+1}, v{p+2}')
            a(f'v_min3_f32 v{mn}, v{p}, v{p+1}, v{p+2}')
            for i in range(3, 15, 2):
                a(f'v_max3_f32 v{mx}, v{mx}, v{p+i}, v{p+i+1}')
                a(f'v_min3_f32 v{mn}, v{mn}, v{p+i}, v{p+i+1}')
            a(f'v_max_f32 v{u0}, v{mx}, v{p+15}')
            a(f'v_min_f32 v{u1}, v{mn}, v{p+15}')
            a(f'v_max_f32 v{mx}, v{mx}, v{p+15}')
            a(f'v_min_f32 v{mn}, v{mn}, v{p+15}')
            a(f'v_permlane32_swap_b32 v{mx}, v{u0}')
            a(f'v_permlane32_swap_b32 v{mn}, v{u1}')
            a(f'v_max_f32 v{mx}, v{mx}, v{u0}')
            a(f'v_min_f32 v{mn}, v{mn}, v{u1}')
            self.pk('mul', mx, mx, ('s', sL2E), bc=(1,))
            for i in range(0, 16, 2):
                self.pk('fma', e + i, p + i, ('s', sL2E), mx, bc=(1, 2), neg=(2,))
                self.pk('fma', p + i, p + i, ('s', sL2E), mn, bc=(1, 2), neg=(0,))
        for i in range(split if part == 2 else 0, 16):
            if mid and i == mid[0]: mid[1]()
            if part == 1 and i == split: return
            a(f'v_exp_f32 v{e+i}, v{e+i}')
            a(f'v_exp_f32 v{p+i}, v{p+i}')
        self.pk('add', s0, e, e + 2); self.pk('add', s1, p, p + 2)
        for i in range(4, 16, 2):
            self.pk('add', s0, s0, e + i); self.pk('add', s1, s1, p + i)
        a(f'v_add_f32 v{u0}, v{s0}, v{s0+1}')
        a(f'v_add_f32 v{u1}, v{s1}, v{s1+1}')
        a(f'v_add_f32 v{mx}, v{s0}, v{s0+1}')
        a(f'v_add_f32 v{mn}, v{s1}, v{s1+1}')
        a(f'v_permlane32_swap_b32 v{mx}, v{u0}')
        a(f'v_permlane32_swap_b32 v{mn}, v{u1}')
        self.pk('add', mx, mx, u0)
        a(f'v_rcp_f32 v{mx}, v{mx}')
        a(f'v_rcp_f32 v{mn}, v{mn}')
        for i in range(0, 16, 2):
            self.pk('mul', e + i, e + i, mx, bc=(1,))
            self.pk('mul', p + i, p + i, mn, bc=(1,))
        for i in range(8):
            a(f'v_cvt_pk_bf16_f32 v{out+i}, v{e+2*i}, v{e+2*i+1}')
            a(f'v_cvt_pk_bf16_f32 v{out+8+i}, v{p+2*i}, v{p+2*i+1}')
    def ln_stats(self, xp, t, m_out, sd_out, fill=()):
        a = self.a
        fill = list(fill)
        def pad(n):
            for _ in range(n):
                if fill: a(fill.pop(0))
        s, u = t, t + 4
        a(f'v_mov_b32 v{u}, 0x3f803f80')
        for i in range(8):
            k = 2 * (i & 1)
            a(f'v_dot2_f32_bf16 v{s+k}, v{xp+i}, v{u}, ' + ('0' if i < 2 else f'v{s+k}'))
            a(f'v_dot2_f32_bf16 v{s+k+1}, v{xp+i}, v{xp+i}, ' + ('0' if i < 2 else f'v{s+k+1}'))
        pad(3)
        self.pk('add', s, s, s + 2)
        for ctl in ('quad_perm:[1,0,3,2]', 'quad_perm:[2,3,0,1]', 'row_half_mirror', 'row_ror:8'):
            pad(2 if ctl.endswith('3,2]') else 1)
            self.dpp('v_add_f32', s, s, s, ctl); self.dpp('v_add_f32', s + 1, s + 1, s + 1, ctl)
        pad(2)
        a(f'v_permlane16_swap_b32 v{s}, v{s+1}')
        a(f'v_add_f32 v{u}, v{s}, v{s+1}')
        a(f'v_add_f32 v{s}, v{s}, v{s+1}')
        pad(2)
        a(f'v_permlane32_swap_b32 v{s}, v{u}')
        a(f'v_add_f32 v{s}, v{s}, v{u}')
        a(f'v_mul_f32 v{u}, 0x3a800000, v{s}')
        a(f'v_mul_f32 v{s}, 0x3a800000, v{s}')
        pad(2)
        a(f'v_permlane16_swap_b32 v{s}, v{u}')
        a(f'v_fma_f32 v{sd_out}, -v{s}, v{s}, v{u}')
        a(f'v_cvt_pk_bf16_f32 v{m_out}, 0, v{s}')
        a(f'v_max_f32 v{sd_out}, 0, v{sd_out}')
        self.round1(sd_out)
        a(f'v_add_f32 v{sd_out}, 0x3727c5ac, v{sd_out}')
        self.round1(sd_out)
        a(f'v_sqrt_f32 v{sd_out}, v{sd_out}')
        pad(99)
        self.round1(sd_out)

    def stat_math(self, s, u, m_out, sd_out):
        a = self.a
        a(f'v_fma_f32 v{sd_out}, -v{s}, v{s}, v{u}')
        a(f'v_cvt_pk_bf16_f32 v{m_out}, 0, v{s}')
        a(f'v_max_f32 v{sd_out}, 0, v{sd_out}')
        self.round1(sd_out)
        a(f'v_add_f32 v{sd_out}, 0x3727c5ac, v{sd_out}')
        self.round1(sd_out)
        a(f'v_sqrt_f32 v{sd_out}, v{sd_out}')
        self.round1(sd_out)
    def ln_stats2(self, x0, x1, t, m_out, sd_out):
        a = self.a
        s0, s1, q0, q1, u = t, t + 1, t + 2, t + 3, t + 4
        a(f'v_mov_b32 v{u}, 0x3f803f80')
        for i in range(8):
            for xx, s_, q_ in ((x0, s0, q0), (x1, s1, q1)):
                a(f'v_dot2_f32_bf16 v{s_}, v{xx+i}, v{u}, ' + ('0' if i == 0 else f'v{s_}'))
                a(f'v_dot2_f32_bf16 v{q_}, v{xx+i}, v{xx+i}, ' + ('0' if i == 0 else f'v{q_}'))
        a(f"""v_permlane32_swap_b32 v{s0}, v{s1}
        v_permlane32_swap_b32 v{q0}, v{q1}
        v_add_f32 v{s0}, v{s0}, v{s1}
        v_add_f32 v{q0}, v{q0}, v{q1}
        v_permlane16_swap_b32 v{s0}, v{q0}
        v_add_f32 v{s0}, v{s0}, v{q0}""")
        for ctl in ('quad_perm:[1,0,3,2]', 'quad_perm:[2,3,0,1]', 'row_half_mirror', 'row_ror:8'): self.dpp('v_add_f32', s0, s0, s0, ctl)
        a(f"""v_mul_f32 v{q0}, 0x3a800000, v{s0}
        v_mul_f32 v{s0}, 0x3a800000, v{s0}
        v_permlane16_swap_b32 v{s0}, v{q0}""")
        self.stat_math(s0, q0, m_out, sd_out)

    def build(self):
        a, V, vm, lg, o, S = self.a, self.V, self.vm, self.lg, self.o, self.S
        E2 = range(0, 16, 2)
        TL = o.get('tl', 0)
        LCB = [(0, 4, 8 * 4096)] if TL else [(0, 3, 8 * 4096), (3, 1, 4096)]
        a(f'{NAME}:')
        a(f's_load_dwordx16 {sr(KA, 16)}, s[0:1], 0')
        a(f's_load_dwordx8 {sr(KA + 16, 8)}, s[0:1], 64')
        a(f's_load_dwordx2 {sr(rWS, 2)}, s[0:1], 104')
        a(f's_load_dwordx2 {sr(pDBG, 2)}, s[0:1], 96')
        a('s_cmp_ge_u32 s2, 256')
        a('s_cbranch_scc1 L_END')
        if self.prof:
            a(f's_memrealtime {sr(sCMP, 2)}')
            a(f's_memtime {sr(sTM, 2)}')
            a('v_mov_b32 v255, 0')
            a('v_mov_b32 v254, 0')
            self.stnames.append('start'); self.nst = 1
        if o.get('exfil'): a(f's_memrealtime {sr(sTM, 2)}')
        vL = self.vL = V.alloc()
        vL16 = V.alloc()
        vZ = V.alloc()
        vT = V.alloc(8)
        va = lambda dst, terms, sreg=None, const=0: self.va(dst, terms, sreg, const, vT + 5)
        a(f"""v_lshrrev_b32 v{vT}, 6, v0
        v_and_b32 v{vL}, 63, v0
        v_mov_b32 v{vZ}, 0
        v_readfirstlane_b32 s{sWAVE}, v{vT}
        v_lshlrev_b32 v{vL16}, 4, v{vL}""")
        xr = V.alloc(8); acc = V.alloc(8); wphi = V.alloc(8); fr = V.alloc(8); vq = V.alloc(8); vv = V.alloc(8)
        vWM = V.alloc(); vCo = V.alloc(); vWd = V.alloc(); vL8 = V.alloc(); vL32S = V.alloc(); vGA = V.alloc()
        vB = V.alloc(6, 1); vFG = V.alloc(); vFD = V.alloc(); vWo = V.alloc(); vPW = V.alloc(); vXF = V.alloc()
        S(sX, 'wg & 7'); S(sJ, 'wg >> 3')
        S(T2, '(x*4 + w)*64')
        S(T0, 'T2*6144 + (j ^ 1)*128')
        va(vWM, [(3, 3, 4 * 12288), (0, 3, 16)])
        va(vCo, [(3, 3, 8)], T2)
        S(T3, '((x*32 + j)*4 + w - 4)*4096')
        for srd, size in ((rWM, 12582912), (rX, 4194304), (rWS, WS_BYTES)):
            a(f's_mov_b32 s{srd+2}, {size}')
            a(f's_mov_b32 s{srd+3}, 0x20000')
        a(f's_getreg_b32 s{sXC}, hwreg(HW_REG_XCC_ID, 0, 3)')
        if o.get('fakexcc') is not None: a(f's_and_b32 s{sXC}, s{sXC}, {o["fakexcc"]}')
        a(f"""s_getpc_b64 {sr(sCMP, 2) if not self.prof else sr(sPL, 2)}""")
        S(T6, '(j*7 + w)*128')
        va(vT + 6, [(5, 1, 28672)], T6)
        a(f"""v_min_u32 v{vT+6}, CODE_KB, v{vT+6}
        s_cmp_ge_u32 s{sWAVE}, 4
        s_waitcnt lgkmcnt(0)""")
        if self.prof:
            a(f'v_writelane_b32 v255, s{sTM}, 0')
            a(f'v_writelane_b32 v255, s{sCMP}, 63')
            a(f'v_writelane_b32 v254, s{sCMP}, 0')
            a(f's_mov_b64 {sr(sCMP, 2)}, {sr(sPL, 2)}')
        if o.get('exfil'):
            for k in range(3): a(f'v_writelane_b32 v255, s{sTM}, {k}')
        self.stamp('karg')
        raw = V.alloc(16); cv = V.alloc(4); vTk = V.alloc(2)
        xs = V.alloc(16); st = V.alloc(4); mq = V.alloc(4)
        a(f"""s_mov_b64 {sr(rWM, 2)}, {sr(KA + 20, 2)}
        s_mov_b64 {sr(rX, 2)}, {sr(KA, 2)}
        s_load_dword s{sTAG}, {sr(rWS, 2)}, {NONCE}
        s_cbranch_scc1 L_FS""")
        def setup():
            for srd, size in ((rW, 6291456), (rWO, 2097152), (rWG, 7340032), (rWU, 7340032), (rWD, 7340032), (rOUT, 4194304)):
                a(f's_mov_b32 s{srd+2}, {size}')
                a(f's_mov_b32 s{srd+3}, 0x20000')
            for srd, k in ((rW, 2), (rWO, 6), (rWG, 12), (rWU, 14), (rWD, 16), (rOUT, 22)):
                a(f's_mov_b64 {sr(srd, 2)}, {sr(KA + k, 2)}')
            a(f"""s_mov_b32 s{sSPIN}, 0
            s_mov_b32 s{sMASK}, 0xffff0000
            s_mov_b32 s{sL2E}, 0x3fb8aa3b""")
            S(sKH, 'w >> 2')
            va(vT + 2, [(4, 1, 64)]); va(vWd, [(0, 3, 16)])
            a(f'v_xor_b32 v{vWd}, v{vWd}, v{vT+2}'); va(vT + 2, [(3, 3, 6144)]); a(f'v_add_u32 v{vWd}, v{vWd}, v{vT+2}')
            va(vL8, [(0, 6, 8)])
            a(f'v_add_u32 v{vL32S}, {SCR}, v{vL16}')
            S(T0, '(w & 3)*4 + SCR')
            va(vGA, [(4, 2, 32), (0, 3, 128), (3, 1, 16)], T0)
            S(T1, '((j >> 4)*128 + w*8 + x)*1024 + (j & 15)*64 + SINB' if TL else '((x & 6) + ((x & 1)*2 + (j >> 4))*64 + w*8)*1024 + (j & 15)*64 + SINB')
        def tag_hash():
            a(f"""s_mul_i32 s{sTAG}, s{sTAG}, 0x9e3779b1
            s_add_u32 s{sTAG}, s{sTAG}, 0x7f4a7c15""")
        def code_pf():
            a(f's_and_b32 s{sCMP}, s{sCMP}, 0xfffffc00')
            a(f'global_load_dword v{vTk}, v{vT+6}, {sr(sCMP, 2)}')
        wq = [(n, t) for n in range(16) for t in range(3)]
        def w_base(n, wexpr):
            if n < 4 and o.get('wxor', 1):
                if o.get('wxor', 1) < 3: S(T7, '((j >> 4)*2) ^ n' if o.get('wxor', 1) == 1 else o.get('wxe', '((j >> 4) + (x >> 2)*2) ^ n'), n=n)
                else:
                    S(T7, o.get('wxe', '(j >> 4) + (x >> 2)*2'))
                    if n: a(f's_cmp_le_u32 s{T7}, {n - 1}'); a(f's_cselect_b32 s{T7}, {n}, {n - 1}')
                S(sU, f'(((T7 + u0) & 15)*8 + {wexpr})*(8*6144) + hp*128')
                S(T7, f'T7*SLOT + (({wexpr}) >> 1)*2080 + (({wexpr}) & 1)*1056')
            else:
                S(sU, f'(((u0 + n) & 15)*8 + {wexpr})*(8*6144) + hp*128', n=n)
                S(T7, f'(({wexpr}) >> 1)*2080 + (({wexpr}) & 1)*1056 + q', q=(n % 6) * SLOT)
        def w_slot(n, t):
            S('m0', 'T7 + q', q=t * SEC)
            self.dma(vWd, rW, sU, 0, o.get('wmod', ''), ('W', n))
            if t < 2: S(sU, 'u + 2048')
        def w_next(cnt=1):
            for _ in range(cnt):
                n, t = wq.pop(0)
                if t == 0: w_base(n, 'w')
                w_slot(n, t)
        wb = list(o['wburst'])
        def w_early():
            if not o.get('wearly'): return
            S(sHP, '(x & 3)*4 + ((j & 3) ^ q)', q=o.get('hpx', 2)); S(sU0, o.get('u0', 'j & 12'))
            w_next(o['wearly'])
        a(f'global_load_dwordx2 {vr(cv, 2)}, v{vCo}, {sr(pC, 2)}'); vm.issue('c')
        for i in range(4):
            self.bl(raw + 4 * i, 4, vWM, rWM, T0, 0, o.get('ntwm', 'nt'), ('wm', i))
            if i < 3: S(T0, 'T0 + 12288')
        a('s_barrier')
        if o.get('bar1', 1): a('s_barrier')
        code_pf(); vm.issue()
        setup()
        wq0 = list(wq); w_early(); wq[:] = wq0
        S(T0, '(((w*16 + ((j ^ 1) & 15))*2 + (j >> 4))*8 + x)*512 + AINB')
        S(T2, ('(((j ^ 1) & 15)*8 + w*2)*512' if TL else '(((j ^ 1) & 7)*8 + w*2 + ((j >> 3) & 1))*512') + ' + x*64 + (j >> 4)*4 + INA')
        va(vT + 6, [(0, 1, 128 * 512), (1, 1, 512)] if TL else [(0, 2, 64 * 512)])
        vm.wait('c')
        self.unpack(cv + 2, cv + 3, cv + 1)
        a(f'v_and_b32 v{cv+1}, s{sMASK}, v{cv}'); a(f'v_lshlrev_b32 v{cv}, 16, v{cv}')
        for i in range(4): self.silu(cv + i, vT + (i & 1))
        gops = self.gemv_ops([raw + 4 * i for i in range(4)], [cv + i for i in range(4)], acc, vT, vT + 1, True)
        for i in range(4):
            vm.wait(('wm', i))
            if i == 3: self.stamp('wmok')
            for s_ in gops[12 * i:12 * i + 12]: a(s_)
        for s_ in gops[48:]: a(s_)
        self.dw('ds_write_b32', vGA, acc, 1, L_A1 - SCR)
        self.barrier()
        a(f'ds_read_b128 {vr(acc, 4)}, v{vL32S} offset:{L_A1 - SCR}')
        tag_hash()
        a('s_waitcnt lgkmcnt(0)')
        self.pk('add', acc, acc, acc + 2)
        a(f"""v_add_f32 v{acc}, v{acc}, v{acc+1}
        v_mov_b32 v{acc+1}, s{sTAG}""")
        self.bs(acc, 2, vL8, rWS, T0, 0, 'sc1')
        a('s_mov_b64 exec, 15')
        self.bs(acc + 1, 1, vT + 6, rWS, T2, 0, 'sc1')
        a('s_mov_b64 exec, -1')
        self.stamp('A1pub')
        S(T0, '(wg*4 + w)*6144')
        for i in range(o.get('wpf', 0)):
            if i == 4: S(T0, 'T0 + 4096')
            self.bl(raw, 4, vL16, rW, T0, (i & 3) * 1024, o.get('wpfmod', ''))
        a('s_branch L_FJ')
        qG = list(vm.q)
        a('L_FS:')
        vm.reset(); lg.reset()
        a('s_barrier')
        for i in range(4): self.bl(raw + 4 * i, 4, vL16, rX, T3, 1024 * i, o.get('xsmod', ''), 'xs')
        pw0 = o.get('pw0', 'ab')
        if 'a' in pw0:
            S(T4, '(wg*4 + w - 4)*128 + INA')
            for q in range(2): a(f's_load_dword s{sPL + q}, {sr(rWS, 2)}, s{T4} offset:{q * 64} glc')
        if 's' in pw0:
            S(T4, '(wg*4 + w - 4)*256 + SINB')
            for q in range(4): a(f's_load_dword s{sPL + 2 + q}, {sr(rWS, 2)}, s{T4} offset:{q * 64} glc')
        if 'b' in pw0:
            S(T4, '(wg*32 + w - 4)*128 + INB')
            for q in range(2): a(f's_load_dword s{sPL + q}, {sr(rWS, 2)}, s{T4} offset:{q * 64} glc ; nowait')
        a(f"""s_lshl_b32 s{T6}, s{sXC}, 5
        v_mov_b32 v{vTk}, 1
        v_mov_b32 v{vTk+1}, s{T6}""")
        if o.get('bar1', 1): a('s_barrier')
        a(f"""s_cmp_lg_u32 s{sWAVE}, 7
        s_cbranch_scc1 L_NOTK
        s_mov_b64 exec, 1
        global_atomic_add v{vTk}, v{vTk+1}, v{vTk}, {sr(pDBG, 2)} sc0 sc1
        s_mov_b64 exec, -1
        s_branch L_TK0
        L_NOTK:""")
        code_pf()
        a('L_TK0:')
        vm.issue('tk')
        setup()
        w_early()
        S(T0, '(w - 4)*16 + L_ST'); va(vT + 6, [(5, 1, 8)], T0)
        a('s_barrier')
        vm.wait('xs')
        lg.wait_all()
        tag_hash()
        self.stamp('xsok')
        self.ln_stats2(raw, raw + 8, xs, st, st + 1)
        a(f"""v_lshrrev_b32 v{st}, 16, v{st}
        v_or_b32 v{st}, v{st}, v{st+1}
        v_mov_b32 v{st+1}, s{sTAG}""")
        self.dw('ds_write_b64', vT + 6, st, 2)
        a('L_FJ:')
        va(vT + 1, [(0, 2, 16)], None, L_ST)
        va(vT, [(0, 2, 16), (2, 1, 65536 if TL else 1024)])
        va(vT + 6, [(0, 5, 2048), (5, 1, 32)])
        va(vT + 2, [(0, 1, 64 * 512 if TL else 512)])
        S(T2, ('((j >> 4)*128 + w*8 + x)*512' if TL else '((x & 6) + ((x & 1)*2 + (j >> 4))*64 + w*8)*512') + ' + ((j >> 1) & 7)*64 + (j & 1)*4 + 8 + INA')
        self.barrier()
        self.r128(st, vT + 1, 0, 'st')
        lg.wait('st')
        a('s_mov_b64 exec, 0xff')
        self.bs(st, 4, vT, rWS, T1, 0, 'sc1')
        a('s_mov_b64 exec, 3')
        self.bs(st + 1, 1, vT + 2, rWS, T2, 0, 'sc1')
        a('s_mov_b64 exec, -1')
        self.stamp('A2pub')
        a(f"""s_cmp_lg_u32 s{sWAVE}, 7
        s_cbranch_scc1 L_NOTK2
        s_mov_b32 s{T0}, 0
        s_waitcnt vmcnt({len(vm.q) - 1 - vm.q.index('tk')})
        L_TK:
        v_readfirstlane_b32 s{T2}, v{vTk}
        s_cmp_lt_u32 s{T2}, 32
        s_cbranch_scc1 L_TKOK
        v_mov_b32 v{vTk}, s{sTAG}
        s_mov_b64 exec, 1
        buffer_store_dword v{vTk}, v{vZ}, {sr(rWS, 4)}, 0 offen offset:{MARK} sc1
        s_mov_b64 exec, -1
        s_add_u32 s{T0}, s{T0}, 1
        s_cmp_lt_u32 s{T0}, 8
        s_cbranch_scc0 L_TKNO
        s_add_u32 s{sXC}, s{sXC}, 1
        s_and_b32 s{sXC}, s{sXC}, 7
        s_lshl_b32 s{T6}, s{sXC}, 5
        v_mov_b32 v{vTk}, 1
        v_mov_b32 v{vTk+1}, s{T6}
        s_mov_b64 exec, 1
        global_atomic_add v{vTk}, v{vTk+1}, v{vTk}, {sr(pDBG, 2)} sc0 sc1
        s_mov_b64 exec, -1
        s_waitcnt vmcnt(0)
        s_branch L_TK
        L_TKNO:
        s_and_b32 s{sXC}, s2, 7
        s_lshr_b32 s{T2}, s2, 3
        L_TKOK:
        s_lshl3_add_u32 s{T2}, s{T2}, s{sXC}""")
        if o.get('rawrole'): a(f's_mov_b32 s{T2}, s2')
        a(f"""v_mov_b32 v{vTk}, s{T2}
        ds_write_b32 v{vT+1}, v{vTk} offset:64
        L_NOTK2:""")
        self.barrier()
        a(f'ds_read_b32 v{mq}, v{vT+1} offset:64'); lg.issue('role')
        lg.wait('role')
        a(f'v_readfirstlane_b32 s2, v{mq}')
        self.stamp('role')
        V.release(raw, 16); V.release(cv, 4)
        S(sX, 'wg & 7'); S(sJ, 'wg >> 3')
        S(sCB, 'j & 15' if TL else '(x & 1)*8 + (j & 7)')
        S(sRT, 'x*2 + (j >> 4)' if TL else '(x >> 1)*4 + (j >> 3)')
        S(sGTB, 'rt*4 + (w & 3)')
        S(sC32, 'cb*2 + kh')
        S(T5, 'gtb*65536 + c32*64')
        self.bl(xr, 4, vT + 6, rX, T5, 0, o.get('xtmod', ''), 'xt')
        self.bl(xr + 4, 4, vT + 6, rX, T5, 16, o.get('xtmod', ''), 'xt')
        S(T0, '(((x >> 1)*16 + cb)*16 + w)*512 + AINB')
        S(T2, '(wg*8 + w)*64 + INA')
        def role_prep():
            S(sR1, '(x & 4)*2 + (j >> 2)'); S(sHP, o.get('hpe', '(x & 3)*4 + ((j & 3) ^ 2)'))
            S(sU0, o.get('u0', 'j & 12'))
            w_next(wb[0])
            S(sINB, '(wg*64 + w)*64 + INB')
            S(sKF, 'kh ^ (j >> 4)'); S(sROT, o.get('rot', '0' if TL else '(((j >> 3) ^ j) & 1)*8'))
            S(sFS, 'x*7 + (j >> 2)'); S(sKQ, 'j & 3')
            va(vT + 4, [(0, 5, 8)])
            va(vT, [(0, 5, 16), (5, 1, 4096)])
            S(T3, 'w*4 + L_MP'); va(vT + 1, [(0, 6, 64)], T3)
            S(T3, 'kh*1024 + L_MP'); va(vT + 2, [(0, 4, 32), (5, 1, 512)], T3)
        S(T1, '(wg*4 + (w & 3))*256 + SINB')
        self.spoll([(0, 4, T2, 0)], range(4), work=role_prep, pipe=o.get('pipeA', 0))
        self.stamp('apre')
        a('s_barrier')
        st_ld = lambda: self.bl(st, 2, vT + 4, rWS, T1, 0, 'sc1', 'st')
        def st_fetch():
            st_ld()
            S(T3, 'hp*4096 + w*512')
            a(f'v_add_u32 v{vT+6}, s{T3}, v{vL16}')
            S('m0', 'w*512 + L_WPHI')
            a('s_mov_b32 exec_hi, 0')
            a(f'global_load_lds_dwordx4 v{vT+6}, {sr(pWPHI, 2)}'); vm.issue()
            a('s_mov_b32 exec_hi, -1')
            w_next(wb[1])
        self.try_load(lambda: self.bl(mq, 4, vT, rWS, T0, 0, 'sc1'), [mq + 1, mq + 3], vT + 3, st_fetch)
        self.stamp('modok')
        a(f'ds_write2_b32 v{vT+1}, v{mq}, v{mq+2} offset0:0 offset1:8'); lg.issue()
        for i in range(8): self.unpack(xs + 2 * i, xs + 2 * i + 1, xr + i)
        self.barrier()
        mp = V.alloc(16); hp = V.alloc(8)
        for i in (2, 3, 0, 1): self.r128(mp + 4 * i, vT + 2, (i >> 1) * 2048 + (i & 1) * 16, i >> 1)
        w_next(wb[2])
        self.finish_load('st', st_ld, [st + 1], None)
        self.stamp('statok')
        self.unpack(st + 1, st, st)
        a(f'v_rcp_f32 v{st}, v{st}')
        for i in E2: self.pk('add', xs + i, xs + i, st + 1, bc=(1,), neg=(1,))
        S(T0, '(((rt*16 + cb)*4 + (w & 3))*2 + kh)*2048 + HF')
        va(vT + 4, [(0, 4, 16), (4, 1, 1024), (5, 1, 512)])
        lg.wait(1); self.sum8(mp + 8)
        self.round1(mp + 8)
        lg.wait(0); self.sum8(mp)
        a(f'v_add_f32 v{mp+8}, 1.0, v{mp+8}')
        self.round2(mp + 8, mp)
        for h in range(2):
            rg = range(8 * h, 8 * h + 8)
            self.round_list([xs + i for i in rg])
            for i in range(8 * h, 8 * h + 8, 2): self.pk('mul', xs + i, xs + i, st, bc=(1,))
            self.round_list([xs + i for i in rg])
            for i in rg: self.dpp('v_mul_f32', xs + i, mp + 8, xs + i, f'row_newbcast:{i}')
            self.round_list([xs + i for i in rg])
            for i in rg: self.dpp('v_add_f32', xs + i, mp, xs + i, f'row_newbcast:{i}')
            for i in range(4 * h, 4 * h + 4): a(f'v_cvt_pk_bf16_f32 v{hp+i}, v{xs+2*i}, v{xs+2*i+1}')
            self.bs(hp + 4 * h, 4, vT + 4, rWS, T0, 256 * h, 'sc1', 'hs')
        self.stamp('hst')
        w_next(wb[3])
        va(vB, [(5, 1, 2080), (2, 2, 128), (3, 1, 64), (0, 2, 8)])
        va(vB + 1, [(4, 1, 1056)])
        va(vB + 2, [(3, 1, 128)])
        a(f"""v_add_u32 v{vB}, v{vB}, v{vB+1}
        v_sub_u32 v{vB+1}, v{vB}, v{vB+2}
        v_add_u32 v{vB+1}, 64, v{vB+1}""")
        for q in (1, 2):
            for h in range(2): a(f'v_add_u32 v{vB+2*q+h}, {2*q*SLOT}, v{vB+h}')
        S(T1, 'kh*2048 + L_WPHI')
        va(vT, [(2, 2, 64), (4, 1, 32), (0, 2, 8), (5, 1, 512)], T1)
        va(vT + 1, [(0, 2, 8 * 4096), (2, 2, 4096)])
        S(T0, '((rt >> 3)*4 + (rt & 7)*32)*4096 + (cb >> 1)*64 + (cb & 1)*4 + INB')
        va(vT + 2, [(4, 1, 64), (5, 1, 16)]); va(vWo, [(0, 3, 16)])
        a(f'v_xor_b32 v{vWo}, v{vWo}, v{vT+2}'); va(vT + 2, [(3, 3, 2048)]); a(f'v_add_u32 v{vWo}, v{vWo}, v{vT+2}')
        S(T1, '(w & 2)*32'); va(vT + 2, [(4, 1, 32)], T1); va(vFG, [(0, 3, 16)])
        a(f'v_xor_b32 v{vFG}, v{vFG}, v{vT+2}'); va(vT + 2, [(3, 3, 7168)]); a(f'v_add_u32 v{vFG}, v{vFG}, v{vT+2}')
        S(T1, '(w & 1)*128')
        va(vT + 2, [(5, 1, 64)], T1); va(vFD, [(0, 5, 16), (5, 1, 2048)])
        a(f'v_xor_b32 v{vFD}, v{vFD}, v{vT+2}')
        S(sFG, '(kq*8 + w)*(32*7168) + fs*128'); S(sFD, '(fs*8 + w)*16384 + kq*512')
        a(f"""s_cmp_ge_u32 s{sJ}, 28
        s_cselect_b32 s{rWG+2}, 0, s{rWG+2}
        s_cselect_b32 s{rWU+2}, 0, s{rWU+2}
        s_cselect_b32 s{rWD+2}, 0, s{rWD+2}""")
        vm.wait('hs')
        a('s_barrier')
        self.push(vT + 1, T0, 16, vT + 2, 'L_PB')
        self.stamp('hpub')
        V.release(xs, 16); V.release(mp, 16); V.release(hp, 8); V.release(st, 4); V.release(mq, 4); V.release(vTk, 2)
        w_next(wb[4])
        for s in range(2):
            for u in range(2): self.tr(wphi + 4 * s + 2 * u, vT, s * 1024 + u * 256)
        AD, LOOK, LASTB = o['AD'], 6, o['LASTB']
        accs = V.alloc(96)
        big = V.alloc(76)
        Ar, Br = big, big + 4 * AD
        assert 4 * AD + 4 * (LOOK + 1) <= 76
        S(T2, '(r1*64 + w)*4096 + HF')
        S(T0, '(w & 3)*4096 + L_XF'); a(f'v_add_u32 v{vXF}, s{T0}, v{vL16}')
        vXW = V.alloc(); vVW = V.alloc()
        va(vXW, [(0, 4, 16), (5, 1, 512), (4, 1, 8)], T0)
        S(T0, '(w & 3)*1024 + L_V'); va(vVW, [(0, 4, 32), (4, 2, 8)], T0)
        S(T0, '(w & 3)*1024 + kh*16384 + L_PHK'); va(vPW, [(0, 5, 32), (5, 1, 16)], T0)
        fq = [(m, i) for m in range(3) for i in range(4)]
        freg = []
        def f_src(m, i, back=0, T0=T0):
            if m < 2: S(T0, 'fg + q', q=i * 8 * 7168 - back * 4 * 32 * 7168)
            else: S(T0, 'fd + q', q=i * 4096 - back * 4 * 16384)
            return (vFG, (rWG, rWU)[m]) if m < 2 else (vFD, rWD)
        def f_lds(m, i): return (L_GU + m * 32768 if m < 2 else L_DN) + i * 1024
        def ffn_reg(n):
            for _ in range(n):
                m, i = fq.pop(0)
                for back in range(2):
                    v, r = f_src(m, i, back)
                    self.bl(big + 8 * len(freg) + 4 * back, 4, v, r, T0, 0, o.get('ntffn', 'nt'), 'ffn')
                freg.append((m, i))
        def ffn_dma(n, T0=T0):
            for _ in range(n):
                m, i = fq.pop(0)
                if o.get('nofd'): continue
                v, r = f_src(m, i, 0, T0)
                S('m0', 'w1k*4 + q', q=f_lds(m, i))
                self.dma(v, r, T0, 0, o.get('ntffn', 'nt'), 'gu' if m < 2 else 'dn')
        S(sWB, '(rot*4 + w)*16384'); S(sWO2, '(j >> 4)*1048576 + cb*128'); S(sW1K, 'w*1024')
        def wo_dma(it, back=0, T0=T0):
            S(T0, '((wb + q) & 0xfffff) + (wo2 ^ h)', q=(8 * it - 4 * back) * 16384, h=(it >> 3) << 20)
            S('m0', 'w1k + q', q=WO_H0 + it * 8192 - 4096 * back)
            self.dma(vWo, rWO, T0, 0, '', 'wo')
        self.inbox(0, 2, work=lambda: w_next(wb[5]), pipe=o.get('pipeB', 0))
        assert len(wq) % 3 == 0 and 30 <= len(wq) <= (45, 36, 36, 42)[o.get('wxor', 1)]
        NPU = 16 - len(wq) // 3
        vm.wait(('W', (0, 2, 3, 1)[o.get('wxor', 1)]))
        a('s_barrier')
        self.stamp('hok')
        a(f"""s_cmp_ge_u32 s{sWAVE}, 4
        s_cbranch_scc1 L_HELP
        s_setprio 2""")
        q_hok = list(vm.q)
        if 'pad' in o:
            a('.p2align 6')
            for _ in range(o['pad']): a('s_nop 0')
        def a_load(sg):
            if sg % 4 == 0: S(T3, '((u0 + n) & q)*16384 + T2', n=sg // 4, q=o.get('amask', 15))
            self.bl(Ar + 4 * (sg % AD), 4, vL16, rWS, T3, (sg % 4) * 1024, o.get('amod', 'sc1'), ('A', sg))
        CORD = [(1, 2), (1, 3), (1, 0), (1, 1)] + [(t, ct) for t in (0, 2) for ct in range(4)]
        WEV = o.get('wev', 2); NB = LOOK + 1
        def b_read(n, q):
            st_, c = divmod(n, 12); t, ct = CORD[c]
            slot = (st_ >> 1) % 6
            off = (slot & 1) * SLOT + t * SEC + (st_ & 1) * 4160 + (ct & 1) * 32 + q * 512
            self.tr(Br + 4 * (n % NB) + 2 * q, vB + 2 * (slot >> 1) + (ct >> 1), off, ('B', n))
        nxt = 0
        def a_more(lim):
            nonlocal nxt
            while nxt < min(lim, 64): a_load(nxt); nxt += 1
        a_more(2)
        for n in range(LOOK):
            for q in range(2): b_read(n, q)
        a_more(o.get('A0', 4))
        b14 = False
        for n in range(384):
            st_, c = divmod(n, 12); t, ct = CORD[c]
            if n % WEV == 0: lg.wait(('B', min(n + WEV - 1, 383)))
            for th in range(2):
                if c == 0: vm.wait(('A', 2 * st_ + th))
                d = accs + 32 * t + 16 * (ct >> 1) + 8 * (ct & 1) + 4 * th
                a(f'v_mfma_f32_16x16x32_bf16 {vr(d, 4)}, {vr(Br + 4*(n % NB), 4)}, {vr(Ar + 4*((2*st_ + th) % AD), 4)}, ' + ('0' if st_ == 0 else vr(d, 4)))
                if n + LOOK < 384:
                    if th == 0 and (n + LOOK) % 24 == 0 and (n + LOOK) // 24 <= LASTB: a('s_barrier')
                    b_read(n + LOOK, th)
            if c in o.get('aat', (0, 3, 6, 9)): a_more(min(nxt + 1, 2 * st_ + AD))
            if nxt == 64 and not b14 and (n + LOOK) // 24 >= LASTB and (n + LOOK) % 24:
                b14 = True; a('s_barrier')
        self.stamp('gemm1')
        aq, ak, av = accs, accs + 32, accs + 64
        def cvt8(d, s_, swap=True):
            for c in range(2):
                for th in range(2):
                    for ip in range(2): a(f'v_cvt_pk_bf16_f32 v{d + 4*c + 2*th + ip}, v{s_ + 8*c + 4*th + 2*ip}, v{s_ + 8*c + 4*th + 2*ip + 1}')
            if swap:
                for c in range(2):
                    for ip in range(2): a(f'v_permlane16_swap_b32 v{d + 4*c + ip}, v{d + 4*c + 2 + ip}')
        def put8(addr, d, off, oc_, ot):
            for c in range(2):
                for th in range(2): self.dw('ds_write_b64', addr, d + 4 * c + 2 * th, 2, off + c * oc_ + th * ot)
        cvt8(vv, ak + 16, False)
        put8(vXW, vv, 0, 1024, 256)
        cvt8(fr, ak)
        self.barrier()
        a('s_setprio 0')
        pp = ak; ee = ak + 16
        def phi_logits(src):
            a(f'v_mfma_f32_32x32x16_bf16 {vr(pp, 16)}, {vr(wphi, 4)}, {vr(src, 4)}, 0')
            a(f'v_mfma_f32_32x32x16_bf16 {vr(pp, 16)}, {vr(wphi + 4, 4)}, {vr(src + 4, 4)}, {vr(pp, 16)}')
        phi_logits(fr)
        for h in range(2):
            cvt8(vv if h == 0 else vq, av + 16 * h, False)
            put8(vVW, vv if h == 0 else vq, h * 8192, 4096, 512)
        cvt8(fr, aq + 16, False)
        put8(vXW, fr, 2048, 1024, 256)
        cvt8(vq, aq)
        a('s_branch L_JOIN')
        a('L_HELP:')
        vm.q = [('W', 1)] * len(q_hok) if o.get('wxor', 1) == 1 else list(q_hok); lg.reset()
        m2w = accs; m2c = accs + 32; g4 = accs + 48
        def w_unit(n):
            for wexpr in ('w - 4', 'w'):
                w_base(n, wexpr)
                for t in range(3): w_slot(n, t)
        for n in range(NPU, 6): w_unit(n)
        S(T0, '((x & 3)*4 + w - 4)*128')
        va(vCo, [(3, 3, 16)], T0)
        va(vWM, [(3, 3, 8 * 12288), (0, 3, 16)])
        S(T4, 'T0*6144 + (j*2 + (x >> 2))*128 + 4096')
        a(f'global_load_dwordx4 {vr(m2c + 8, 4)}, v{vCo}, {sr(pC, 2)}'); vm.issue('m2c')
        m2l = list(range(8)); wol = [9, 10, 11, 12]; pwl = list(range(1, 8)); sil = list(range(8))
        m2ops = self.gemv_ops([m2w + 4 * i for i in range(8)], [m2c + i for i in range(8)], acc, vT, vT + 1, False)
        m2pos = 0
        def act(op, k):
            nonlocal m2pos
            kind, n = op[0], int(op[1:] or 1)
            if kind == 'm':
                for _ in range(2 * n):
                    i = m2l.pop(0)
                    self.bl(m2w + 4 * i, 4, vWM, rWM, T4, 0, o.get('ntm2', 'nt'), ('m2', i))
                    if m2l: S(T4, 'T4 + 12288')
            elif kind == 'f': ffn_reg(n)
            elif kind == 'o':
                assert k >= 13
                for _ in range(n):
                    it = wol.pop(0); wo_dma(it, 1); wo_dma(it)
            elif kind == 'p':
                a('s_waitcnt lgkmcnt(0)')
                for q in range(n):
                    b = pwl.pop(0)
                    a(f's_load_dword s{sPL + 2*q}, {sr(rWS, 2)}, s{sINB} offset:{b * 512} glc')
                    a(f's_load_dword s{sPL + 2*q + 1}, {sr(rWS, 2)}, s{sINB} offset:{b * 512 - 256} glc')
            elif kind == 'q':
                S(T0, 'fs*8192 + (w - 4)*256 + HGR')
                a('s_waitcnt lgkmcnt(0)')
                for q in range(4): a(f's_load_dword s{sPL + q}, {sr(rWS, 2)}, s{T0} offset:{q * 2048 + 1024 + 252} glc')
            elif kind == 'z':
                for i in range(4): a(f'v_mov_b32 v{g4+i}, -1')
                if n == 1:
                    for we in ('w - 4', 'w'):
                        S(T0, f'(((r1*4 + (w & 3))*16 + hp)*2 + (({we}) >> 2))*2048 + OF')
                        for q in range(2): self.bs(g4, 4, vL16, rWS, T0, 1024 * q, 'sc1', 'pzo')
                else:
                    for we in ('w - 4', 'w'):
                        S(T0, f'((hp*8 + {we})*32 + r1)*1024 + KVP'); S(T1, 'T0 + 16384')
                        self.bs(g4, 4, vL16, rWS, T0, 0, 'sc1', 'pz'); self.bs(g4, 4, vL16, rWS, T1, 0, 'sc1', 'pz')
                    S(T0, '((hp*8 + w - 4)*16 + r1)*64 + ZP')
                    va(vT + 2, [(0, 2, 16), (2, 1, 4096)])
                    a('s_mov_b64 exec, 0xff')
                    self.bs(g4, 4, vT + 2, rWS, T0, 0, 'sc1', 'pz')
                    a('s_mov_b64 exec, -1')
            elif kind == 'h':
                S(T0, '(fs*4 + kq)*2048 + (w & 1)*1024 + HGR'); S(T1, '(rt*16 + cb)*2048 + (w & 1)*1024 + STAT')
                if TL: a(f's_bitcmp1_b32 s{sWAVE}, 1'); a(f's_cselect_b32 s{T0}, s{T1}, s{T0}')
                self.bl(m2c + 12, 4, vL16, rWS, T0, 0, '')
            elif kind == 's':
                vm.wait('m2c')
                for _ in range(n):
                    i = sil.pop(0)
                    a(f'v_and_b32 v{m2c+i}, s{sMASK}, v{m2c+8+i//2}' if i & 1 else f'v_lshlrev_b32 v{m2c+i}, 16, v{m2c+8+i//2}')
                    self.silu(m2c + i, vT + (i & 1))
            elif kind == 'g':
                assert not sil
                for _ in range(n):
                    vm.wait(('m2', m2pos // 16))
                    for s_ in m2ops[m2pos:m2pos + 16]: a(s_)
                    m2pos += 16
            elif kind == 'r':
                assert m2pos == 128
                for s_ in m2ops[128:]: a(s_)
                self.dw('ds_write_b32', vGA, acc, 1, L_M2 - SCR)
                lg.wait_all()
            elif kind == 'P':
                a(f"""s_cmp_lg_u32 s{sWAVE}, 4
                s_cbranch_scc1 L_M2F
                ds_read_b128 {vr(acc, 4)}, v{vL32S} offset:{L_M2 - SCR}""")
                S(T0, '((j*2 + (x >> 2))*4 + (x & 3))*512 + MODP2')
                a(f"""s_waitcnt lgkmcnt(0)
                v_add_f32 v{acc}, v{acc}, v{acc+1}
                v_add_f32 v{acc+2}, v{acc+2}, v{acc+3}
                v_mov_b32 v{acc+1}, s{sTAG}
                v_add_f32 v{acc}, v{acc}, v{acc+2}""")
                self.bs(acc, 2, vL8, rWS, T0, 0, 'sc1', count=False)
                a('L_M2F:')
            else: raise ValueError(op)
        sched = {int(k): v.split() for k, v in o['sched'].items()}
        for op in sched.get(0, []): act(op, 0)
        for k in range(1, LASTB + 1):
            for kk in (range(k, 16) if k == LASTB else [k + 1 if k < 3 and o.get('wxor', 1) == 3 else k]): vm.wait(('W', kk))
            if o.get('ust'): self.stamp(f'w{k}')
            a('s_barrier')
            if o.get('ust'): self.stamp(f'u{k}')
            ops = sched.get(k, [])
            if 6 <= k + 4 < 16:
                pre = [op[1:] for op in ops if op[0] == '<']
                for op in pre: act(op, k)
                if not o.get('now2'): w_unit(k + 4)
            for op in ops:
                if op[0] != '<': act(op, k)
        if o.get('b14', 1):
            assert LASTB == 13 and AD <= 12
            a('s_barrier')
            for op in sched.get(14, []): act(op, 14)
        self.barrier()
        for q in range(2): self.r128(fr + 4 * q, vXF, q * 1024)
        lg.wait_all()
        phi_logits(fr)
        for op in sched.get(15, []): act(op, 15)
        assert (not m2l or o.get('nom2')) and not wol
        assert 8 * len(freg) <= 76
        a('L_JOIN:')
        pzq = list(vm.q)
        vm.reset(); lg.q = [None]
        V.release(vXW); V.release(vVW); V.release(vB, 6); V.release(vWd); V.release(vWM); V.release(vCo); V.release(vGA); V.release(vL32S); V.release(acc, 8)
        V.release(big + 8 * len(freg), 76 - 8 * len(freg))
        ph = aq; fx = aq + 16
        vPA = V.alloc(); vPB = V.alloc()
        self.softmax_pm(pp, ee, ph, vT)
        for fb in range(4): self.dw('ds_write_b128', vPW, ph + 4 * fb, 4, fb * 4096)
        S(T0, 'w*4096 + L_PHK'); a(f'v_add_u32 v{vPA}, s{T0}, v{vL8}')
        S(T0, 'kh*8192 + L_V'); a(f'v_add_u32 v{vPB}, s{T0}, v{vL8}')
        ones = fr
        for i in range(4): a(f'v_mov_b32 v{ones+i}, 0x3f803f80')
        S(T0, '((hp*8 + w)*32 + r1)*1024 + KVP'); S(T2, 'T0 + 16384')
        S(T3, '(hp*8 + w)*1024 + ZP'); S(T1, 'r1*64 + T3')
        self.stamp('ksm')
        self.barrier()
        self.stamp('phik')
        fragA = [ee + 4 * i for i in range(4)]
        fragB = [av + 4 * i for i in range(8)]
        kvd = vv; zd = fr + 4
        def kvm(u):
            lg.wait(('kv', u))
            for db in range(2):
                a(f'v_mfma_f32_16x16x32_bf16 {vr(kvd + 4*db, 4)}, {vr(fragA[u], 4)}, {vr(fragB[2*u+db], 4)}, ' + ('0' if u == 0 else vr(kvd + 4*db, 4)))
            a(f'v_mfma_f32_16x16x32_bf16 {vr(zd, 4)}, {vr(fragA[u], 4)}, {vr(ones, 4)}, ' + ('0' if u == 0 else vr(zd, 4)))
        for ts in range(4):
            self.tr(fragA[ts], vPA, ts * 1024, ('kv', ts)); self.tr(fragA[ts] + 2, vPA, ts * 1024 + 512, ('kv', ts))
            for db in range(2):
                self.tr(fragB[2*ts+db], vPB, db * 4096 + ts * 1024, ('kv', ts)); self.tr(fragB[2*ts+db] + 2, vPB, db * 4096 + ts * 1024 + 512, ('kv', ts))
            if ts >= 2: kvm(ts - 2)
        va(vPW, [(0, 3, 32 * 4096), (3, 1, 4 * 4096)])
        S(T4, '(wg & 0x1b)*4096 + (r1 >> 1)*64 + (r1 & 1)*4 + INB + 512')
        kvm(2); kvm(3)
        a(f"""s_cmp_lt_u32 s{sWAVE}, 4
        s_cbranch_scc1 L_NOQX
        ds_read_b128 {vr(vq, 4)}, v{vXF} offset:2048
        ds_read_b128 {vr(vq + 4, 4)}, v{vXF} offset:3072
        L_NOQX:""")
        if 'pz' in pzq: a(f's_waitcnt vmcnt({pzq[::-1].index("pz")})')
        self.bs(kvd, 4, vL16, rWS, T0, 0, 'sc1', 'kvs')
        self.bs(kvd + 4, 4, vL16, rWS, T2, 0, 'sc1', 'kvs')
        a('s_mov_b32 exec_lo, 0x00010001')
        a('s_mov_b32 exec_hi, 0x00010001')
        self.bs(zd, 4, vL, rWS, T1, 0, 'sc1', 'kvs')
        a('s_mov_b64 exec, -1')
        lg.wait_all()
        PZ = o.get('poison', (0, 0))
        if PZ[0]:
            a('s_barrier')
            self.push(vPW, T4, 16, vPB, 'L_PC')
            self.stamp('kvpub')
        phi_logits(vq)
        self.stamp('kvst')
        wl = [2, 3, 4, 5, 6, 7, 8, 13, 14, 15, 0, 1]
        kp = av; zz = av + 16; g4 = vv
        m2q = fx; wr1 = fx + 8
        vKP = V.alloc()
        va(vKP, [(3, 3, 1024), (0, 3, 16)])
        va(vXF, [(0, 3, 16), (5, 1, 8)])
        wo1 = lambda: wo_dma(wl.pop(0), 0, T6)
        keep = a.items; a.items = []
        self.softmax_pm(pp, ee, ph, vv)
        qsm = a.items; a.items = keep
        qcost = [2 if it[1].is_trans or 'permlane' in it[1].mn else 1 for it in qsm]
        qtot = sum(qcost); qdone = [0]
        def q_slice(upto):
            while qsm and qdone[0] < qtot * upto / 100:
                a.items.append(qsm.pop(0)); qdone[0] += qcost.pop(0)
        qs = o.get('qs', (35, 85, 100))
        if not PZ[0]:
            q_slice(qs[0])
            vm.wait('kvs')
            a('s_barrier')
            self.push(vPW, T4, 16, vPB, 'L_PC')
            self.stamp('kvpub')
        S(T0, '(hp*16 + r1)*16384 + w*128 + KVP')
        S(T2, '(hp*16 + r1)*1024 + w*128 + KIN'); S(T4, 'T4 + 6*512')
        self.inbox(1, 2, work=lambda: (self.weave(lambda: q_slice(qs[1]), [wo1] * o['wowin'][0]), self.stamp('cw')))
        a('s_barrier')
        self.stamp('kvok')
        S(T5, 'T0 + 8192')
        ld_kp = lambda: (self.bl(kp, 4, vKP, rWS, T0, 0, 'sc1', 'kp'), self.bl(kp + 4, 4, vKP, rWS, T5, 0, 'sc1', 'kp'))
        ld_z = lambda: self.bl(zz, 4, vL16, rWS, T3, 0, 'sc1', 'z')
        ld_kp(); ld_z()
        S(T1, 'w*32 + L_ZF'); va(vT + 2, [(0, 2, 8), (5, 1, 4)], T1)
        S(T1, 'w*1024 + L_KVF'); va(vT + 1, [(0, 4, 16), (5, 1, 512), (4, 1, 8)], T1)
        S(T1, 'kh*128 + L_ZF'); va(vT + 3, [(5, 1, 16)], T1)
        S(T1, 'kh*4096 + L_KVF'); a(f'v_add_u32 v{vPA}, s{T1}, v{vL16}')
        def red4(r, ctls):
            for i in range(2): a(f'v_permlane32_swap_b32 v{r+i}, v{r+2+i}')
            self.pk('add', r, r, r + 2)
            for ctl in ctls:
                for i in range(2): self.dpp('v_add_f32', r + i, r + i, r + i, ctl)
            for i in range(2): a(f'v_mov_b32 v{r+2+i}, v{r+i}')
            for i in range(2): a(f'v_permlane16_swap_b32 v{r+i}, v{r+2+i}')
            self.pk('add', r, r, r + 2)
            a(f'v_cvt_pk_bf16_f32 v{r}, v{r}, v{r+1}')
        self.weave(lambda: q_slice(qs[2]), [wo1] * o['wowin'][1])
        if PZ[0]: self.finish_load('kp', ld_kp, ('nan', kp, kp + 4), vT)
        else: vm.wait('kp')
        self.pk('add', kp, kp, kp + 4); self.pk('add', kp + 2, kp + 2, kp + 6)
        red4(kp, ['row_ror:8'])
        a(f"""v_mov_b32 v{kp+1}, s{sTAG}
        s_mov_b32 exec_lo, 0xff
        s_mov_b32 exec_hi, 0xff""")
        self.bs(kp, 2, vXF, rWS, T2, 0, 'sc1')
        a('s_mov_b64 exec, -1')
        a('s_barrier')
        self.push(vPW, T4, 16, vPB, 'L_PC2')
        self.stamp('c2pub')
        kf = av; zf = av + 16; num = pp; den = ee
        if PZ[0]: self.finish_load('z', ld_z, ('nan', zz), vT)
        else: vm.wait('z')
        self.weave(lambda: red4(zz, ['row_ror:4', 'row_ror:8']), [wo1] * o['wowin'][2])
        self.dw('ds_write_b32', vT + 2, zz, 1)
        q_slice(100)
        self.barrier()
        for fb in range(4): self.r128(zf + 4 * fb, vT + 3, fb * 32)
        lg.wait_all()
        S(T0, '(hp*8 + w)*2048 + KIN')
        k2 = av + 8
        def den_work():
            for fb in range(4):
                a(f'v_mfma_f32_32x32x16_bf16 {vr(den, 16)}, {vr(zf + 4*fb, 4)}, {vr(ph + 4*fb, 4)}, ' + ('0' if fb == 0 else vr(den, 16)))
            self.round1(den)
            a(f'v_add_f32 v{den}, 0x358637bd, v{den}')
            self.round1(den)
            a(f'v_rcp_f32 v{den}, v{den}')
            self.stamp('c2w')
        self.inbox(7, 2, work=den_work)
        self.stamp('c2h')
        self.poll(lambda: [self.bl(k2 + 4 * q, 4, vL16, rWS, T0, q * 1024, 'sc1') for q in range(2)], [k2 + 1, k2 + 3, k2 + 5, k2 + 7], vT)
        for db in range(2):
            a(f'ds_write2_b32 v{vT+1}, v{k2+4*db}, v{k2+4*db+2} offset0:{64*db} offset1:{64*db+1}'); lg.issue()
        self.barrier()
        self.stamp('kvred')
        for fb in range(4): self.r128(kf + 4 * fb, vPA, fb * 1024, ('kf', fb))
        vM2 = V.alloc()
        va(vM2, [(0, 5, 16), (5, 1, 512)])
        S(T5, '((w & 3)*16 + cb)*2048 + MODP2')
        ld_m2 = lambda: [self.bl(m2q + 4 * q, 4, vM2, rWS, T5, q * 1024, 'sc1', 'm2q') for q in range(2)]
        S(T0, 'cb*128'); va(vT, [(0, 5, 4)], T0)
        a(f'global_load_dword v{wr1}, v{vT}, {sr(pWR, 2)}'); vm.issue('m2q')
        self.bl(wr1 + 1, 1, vZ, rWS, '0', MARK, 'sc1', 'm2q')
        ld_m2()
        S(T0, '(((r1*4 + (w & 3))*16 + hp)*2 + kh)*2048 + OF')
        va(vT + 4, [(0, 4, 16), (4, 1, 1024), (5, 1, 256)])
        for fb in range(4):
            lg.wait(('kf', fb))
            a(f'v_mfma_f32_32x32x16_bf16 {vr(num, 16)}, {vr(kf + 4*fb, 4)}, {vr(ph + 4*fb, 4)}, ' + ('0' if fb == 0 else vr(num, 16)))
        for h in range(2):
            self.round_list([num + i for i in range(8 * h, 8 * h + 8)])
            for i in range(8 * h, 8 * h + 8, 2): self.pk('mul', num + i, num + i, den, bc=(1,))
            for i in range(4 * h, 4 * h + 4): a(f'v_cvt_pk_bf16_f32 v{vq+i}, v{num+2*i}, v{num+2*i+1}')
            self.bs(vq + 4 * h, 4, vT + 4, rWS, T0, 512 * h, 'sc1', 'os')
        self.stamp('ost')
        for r, n in ((fr, 8), (vv, 8), (vPW, 1), (vXF, 1), (vPA, 1), (vPB, 1), (vKP, 1), (accs, 16), (accs + 32, 64), (wphi, 8)):
            V.release(r, n)
        assert GS == 0
        vG16 = vL16
        vBa = V.alloc(4); xf = V.alloc(16)
        S(T4, 'kh*(65536 + 64) + WO_H0')
        va(vBa, [(5, 1, 2048), (4, 1, 512), (2, 2, 128), (3, 1, 64), (1, 1, 32), (4, 1, 16), (0, 1, 8)])
        a(f'v_xor_b32 v{vBa}, s{T4}, v{vBa}')
        for q, x_ in ((1, 16), (2, 64), (3, 80)): a(f'v_xor_b32 v{vBa+q}, {x_}, v{vBa}')
        assert WO_H1 == WO_H0 + 65536
        va(vT + 1, LCB)
        S(T2, ('((r1 & 1)*128 + (r1 >> 1))*4096' if TL else '((r1 >> 2)*2 + (r1 & 3)*64)*4096') + ' + (hp >> 1)*64 + (hp & 1)*4 + INB + 1024')
        for i in range(8): self.unpack(xf + 2 * i, xf + 2 * i + 1, xr + i)
        S(T6, '(gtb*2 + kf)*32768 + OF')
        vm.wait('os')
        a('s_barrier')
        self.push(vT + 1, T2, 16, vT + 2, 'L_PD')
        self.stamp('opub')
        V.release(vq, 8)
        while wl: wo_dma(wl.pop(0))
        V.release(vWo)
        self.finish_load('m2q', ld_m2, [m2q + 1, m2q + 3, m2q + 5, m2q + 7], vT)
        q0, q1, q2, q3 = m2q, m2q + 1, m2q + 2, m2q + 3
        a(f'v_cmp_eq_u32 vcc, s{sTAG}, v{wr1+1}')
        a(f's_cmp_eq_u32 vcc_lo, 0')
        a(f's_cselect_b32 s{sLOC}, {o.get("local", 1)}, 0')
        S(T0, '(w & 3)*128 + L_MT'); va(vT, [(0, 5, 4)], T0)
        S(T1, 'w & 3')
        a(f"""v_add_f32 v{q0}, v{m2q}, v{m2q+4}
        v_add_f32 v{q1}, v{m2q+2}, v{m2q+6}
        v_add_f32 v{q2}, v{m2q}, v{m2q+4}""".replace(f'v_add_f32 v{q2}, v{m2q}, v{m2q+4}', f'v_mov_b32 v{q2}, v{q0}'))
        a(f"""v_mov_b32 v{q3}, v{q1}
        s_cmp_eq_u32 s{T1}, 2
        s_cselect_b32 s{T2}, 1.0, 0
        v_permlane32_swap_b32 v{q0}, v{q2}
        v_permlane32_swap_b32 v{q1}, v{q3}""")
        self.pk('add', q0, q0, q2)
        self.round2(q0, q1)
        a(f"""v_add_f32 v{q0}, s{T2}, v{q0}
        v_add_f32 v{q1}, s{T2}, v{q1}
        v_cvt_pk_bf16_f32 v{q2}, v{q0}, v{q1}""")
        self.dw('ds_write_b32', vT, q2, 1)
        a('s_cbranch_scc0 L_NOG')
        g0, g1, gh, gl = m2q + 4, m2q + 5, m2q + 6, m2q + 7
        self.unpack(q0, q1, q2); self.unpack(g0, g1, wr1)
        self.pk('mul', g0, g0, q0)
        a(f'v_cvt_pk_bf16_f32 v{gh}, v{g0}, v{g1}')
        self.unpack(q0, q1, gh)
        self.pk('add', q0, g0, q0, neg=(1,))
        a(f"""v_cvt_pk_bf16_f32 v{gl}, v{q0}, v{q1}
        v_add_f32 v{q0}, v{g0}, v{g1}
        ds_write2_b32 v{vT}, v{gh}, v{gl} offset0:64 offset1:96
        ds_write_b32 v{vT}, v{wr1} offset:512""")
        for ctl in ('quad_perm:[1,0,3,2]', 'quad_perm:[2,3,0,1]', 'row_half_mirror', 'row_ror:8'): self.dpp('v_add_f32', q0, q0, q0, ctl)
        S(T0, '(rt*16 + cb)*8 + GR')
        a(f"""v_mov_b32 v{q2}, v{q0}
        v_mov_b32 v{q1}, s{sTAG}
        v_permlane16_swap_b32 v{q0}, v{q2}
        v_add_f32 v{q0}, v{q0}, v{q2}
        s_mov_b64 exec, 1""")
        self.bs(q0, 2, vZ, rWS, T0, 0, 'sc1', count=False)
        a("""s_mov_b64 exec, -1
        L_NOG:""")
        V.release(vM2)
        S(T0, 'kh*64 + L_MT'); va(vT + 3, [(5, 1, 32)], T0); va(vT + 4, [(0, 3, 4)]); a(f'v_add_u32 v{vT+4}, v{vT+4}, v{vT+3}')
        self.barrier()
        gaf = V.alloc(16); gp = V.alloc(16); tb4 = V.alloc(4); gr = V.alloc(2); vGR = V.alloc()
        for q in range(2):
            self.r128(fx + 4 * q, vT + 3, 16 * q)
            for k in range(2): self.r128(gp + 8 * k + 4 * q, vT + 3, (4 + k) * 128 + 16 * q)
        for q, t in enumerate((1, 2, 3, 6)): self.dr('ds_read_b32', tb4 + q, 1, vT + 4, t * 128)
        lg.wait_all()
        def d_work():
            for i in range(8): self.unpack(gaf + 2 * i, gaf + 2 * i + 1, fx + i)
            va(vGR, [(0, 4, 8)])
            if o.get('stouch', TL):
                S(T2, '(rt*16 + cb)*2048 + w*256 + STAT')
                a(f'v_lshlrev_b32 v{gr}, 7, v{vL}')
                a('s_mov_b64 exec, 3')
                self.bl(gr, 1, gr, rWS, T2, 0, '')
                a('s_mov_b64 exec, -1')
            vm.wait_all()
            self.stamp('dw')
        AD2 = o['AD2']
        LK2 = o.get('LK2', 4); NB2 = LK2 + 1
        accA = V.alloc(16); accB = V.alloc(16); Ar = V.alloc(4 * AD2); Br = V.alloc(4 * NB2)
        def b2_read(n, q):
            st_, c = divmod(n, 4)
            self.tr(Br + 4 * (n % NB2) + 2 * q, vBa + (c ^ 2), st_ * 4096 + q * 1024, ('B', n))
        def a2_load(s):
            if s % 2 == 0: S(T7, '((rot + n) & 15)*2048 + T6', n=s // 2)
            self.bl(Ar + 4 * (s % AD2), 4, vL16, rWS, T7, (s % 2) * 1024, 'sc1', ('A', s))
        self.inbox(2, 2, work=d_work)
        V.release(fx, 16)
        a('s_barrier')
        self.stamp('ook')
        if o.get('prio2', 1):
            a(f"""s_cmp_lt_u32 s{sWAVE}, 4
            s_cbranch_scc1 L_P2
            s_setprio {o.get('prio2', 1)}
            L_P2:""")
        nx2 = 0
        def a2_more(lim):
            nonlocal nx2
            while nx2 < min(lim, 32):
                a2_load(nx2); nx2 += 1
                if nx2 == 32: ld_gr()
        S(T5, 'rt*128 + GR')
        ld_gr = lambda: self.bl(gr, 2, vGR, rWS, T5, 0, 'sc1', 'gr')
        a2_more(2)
        for n in range(LK2):
            for q in range(2): b2_read(n, q)
        a2_more(o.get('A20', 4))
        for n in range(64):
            st_, c = divmod(n, 4)
            lg.wait(('B', n))
            for th in range(2):
                if c == 0: vm.wait(('A', 2 * st_ + th))
                d = (accB, accA)[c >> 1] + 8 * (c & 1) + 4 * th
                a(f'v_mfma_f32_16x16x32_bf16 {vr(d, 4)}, {vr(Br + 4*(n % NB2), 4)}, {vr(Ar + 4*((2*st_ + th) % AD2), 4)}, ' + ('0' if st_ == 0 else vr(d, 4)))
                if n + LK2 < 64: b2_read(n + LK2, th)
            if n == o.get('prio2n', 16): a('s_setprio 0')
            if c in o.get('a2at', (0, 1)): a2_more(min(nx2 + 1, 2 * st_ + AD2))
            if c == 3 and AD2 == 4: a2_more(2 * st_ + 6)
        self.stamp('gemm2')
        if o.get('prio2', 1): a('s_setprio 0')
        S(T0, 'w*4096')
        a(f"""v_add_u32 v{vT}, s{T0}, v{vG16}
        v_xor_b32 v{vT+1}, 0x4000, v{vT}""")
        for q in range(4): self.dw('ds_write_b128', vT, accB + 4 * q, 4, L_EXCH - GS + q * 1024)
        S(T0, 'kh*2048 + (w & 3)*512 + L_SP'); va(vT + 2, [(0, 5, 16), (5, 1, 8)], T0)
        S(T0, 'kh*64 + L_TB'); va(vT + 3, [(0, 3, 4), (5, 1, 32)], T0)
        vSG = V.alloc()
        S(T6, 'rt*32768 + w*256 + STAT'); va(vSG, [(0, 4, 16), (4, 2, 2048)])
        sm = Br; one = Br + 4
        a(f'v_mov_b32 v{one}, 0x3f803f80')
        fd = list(o['fdma']); assert sum(fd) == len(fq)
        self.barrier()
        for q in range(4): self.r128(accB + 4 * q, vT + 1, L_EXCH - GS + q * 1024, ('ex', q))
        ffn_dma(fd[0], T1)
        for h in range(2):
            for q in (2 * h, 2 * h + 1):
                lg.wait(('ex', q))
                self.pk('add', accA + 4 * q, accA + 4 * q, accB + 4 * q); self.pk('add', accA + 4 * q + 2, accA + 4 * q + 2, accB + 4 * q + 2)
            for i in range(4): a(f'v_permlane16_swap_b32 v{accA + 8*h + i}, v{accA + 8*h + 4 + i}')
            rg = range(8 * h, 8 * h + 8)
            self.round_list([accA + i for i in rg])
            for i in range(8 * h, 8 * h + 8, 2): self.pk('mul', accA + i, accA + i, gaf + i)
            self.round_list([accA + i for i in rg])
            for i in range(8 * h, 8 * h + 8, 2): self.pk('add', accA + i, accA + i, xf + i)
            for i in range(4 * h, 4 * h + 4): a(f'v_cvt_pk_bf16_f32 v{xr+i}, v{accA+2*i}, v{accA+2*i+1}')
        for i in range(8):
            for d, b in ((sm, one), (sm + 2, xr + i), (sm + 1, gp + i), (sm + 3, gp + 8 + i)):
                a(f'v_dot2_f32_bf16 v{d}, v{xr+i}, v{b}, ' + ('0' if i == 0 else f'v{d}'))
        a(f"""v_permlane32_swap_b32 v{sm}, v{sm+2}
        v_permlane32_swap_b32 v{sm+1}, v{sm+3}""")
        self.pk('add', sm, sm, sm + 2)
        self.dw('ds_write_b64', vT + 2, sm, 2)
        for q in range(4): self.dw('ds_write_b32', vT + 3, tb4 + q, 1, 128 * q)
        a(f'v_add_u32 v{vT}, {L_SP}, v{vL16}')
        va(vT + 1, LCB)
        S(T0, '(rt*16 + cb)*2048 + STAT')
        S(T3, ('((rt & 1)*128 + (rt >> 1))*4096' if TL else '((rt & 3)*64 + (rt >> 2)*2)*4096') + ' + (cb >> 1)*64 + (cb & 1)*4 + INB + 1536')
        self.barrier()
        self.stamp('x1st')
        a(f"""s_cmp_lg_u32 s{sWAVE}, 0
        s_cbranch_scc1 L_PE""")
        for q in range(4): a(f'ds_read_b128 {vr(accB + 4*q, 4)}, v{vT} offset:{(q & 1) * 2048 + (q >> 1) * 1024}')
        for h in range(2):
            b = accB + 8 * h
            a(f's_waitcnt lgkmcnt({2 - 2*h})')
            self.pk('add', b, b, b + 4); self.pk('add', b + 2, b + 2, b + 6)
            a(f"""v_add_f32 v{b+1}, v{b+1}, v{b+3}
            v_mov_b32 v{b+3}, s{sTAG}""")
        if TL:
            self.bs2([(accB + 8 * h, 4, vL16, T0, 1024 * h) for h in range(2)])
            a('s_cbranch_scc1 L_PE')
        else:
            for h in range(2): self.bs(accB + 8 * h, 4, vL16, rWS, T0, 1024 * h, 'sc1', count=False)
        a('s_mov_b64 exec, 0xffff')
        self.bs(accB + 3, 1, vT + 1, rWS, T3, 0, 'sc1', count=False)
        a("""s_mov_b64 exec, -1
        L_PE:""")
        self.stamp('x1pub')
        V.release(accA, 16); V.release(accB, 16); V.release(Ar, 4 * AD2); V.release(Br, 4 * NB2); V.release(vBa, 4); V.release(xf, 16); V.release(gaf, 16); V.release(gp, 16)
        x1 = V.alloc(16); hh = V.alloc(16); mf = V.alloc(32); sg = V.alloc(16); op = V.alloc(8)
        st = V.alloc(2); cn = V.alloc(2); vRid = V.alloc(); ck = V.alloc(4); vOT = V.alloc()
        ct = V.alloc(12, 4)
        def e_work():
            S(T3, '(w & 3)*(32*144) + kh*64'); va(vOT, [(0, 5, 144), (5, 1, 32)], T3)
            for q in range(2): self.dw('ds_write_b128', vOT, xr + 4 * q, 4, L_XT + 16 * q)
            a(f'v_add_u32 v{vOT}, {L_OT}, v{vOT}')
            S(T2, '4094 - (rt*8 + w)*32'); va(vRid, [(0, 4, 2)]); a(f'v_sub_u32 v{vRid}, s{T2}, v{vRid}')
            S(T2, 'w*128 + L_ST2'); va(vT + 4, [(0, 4, 8)], T2)
            S(T2, '(w & 3)*256 + L_ST2'); va(vT + 6, [(0, 5, 8)], T2)
            va(vT + 7, [(0, 3, 8)], None, L_K1)
            self.finish_load('gr', ld_gr, [gr + 1])
            for ctl in ('quad_perm:[1,0,3,2]', 'quad_perm:[2,3,0,1]', 'row_half_mirror', 'row_ror:8'): self.dpp('v_add_f32', gr, gr, gr, ctl)
            a(f"""s_cmp_lg_u32 s{sWAVE}, 1
            s_cbranch_scc1 L_NOCT""")
            va(vT + 1, [(0, 4, 8)], None, L_TB)
            a(f"""ds_read_b64 {vr(ct + 2, 2)}, v{vT+1}
            ds_read_b64 {vr(ct + 6, 2)}, v{vT+1} offset:128
            ds_read_b64 {vr(ct + 8, 2)}, v{vT+1} offset:384
            s_waitcnt lgkmcnt(0)""")
            for b in (ct, ct + 4):
                self.unpack(b, b + 1, b + 2); self.unpack(b + 2, b + 3, b + 3)
            a('L_NOCT:')
        def expand(dst, t):
            for i in range(8):
                self.dpp('v_mul_u32_u24', dst + 2 * i, t, cn, f'row_newbcast:{i}')
                self.dpp('v_and_b32', dst + 2 * i + 1, t, cn + 1, f'row_newbcast:{i}')
        def f_pre(part):
            if part == 0:
                a(f"""s_cmp_lt_u32 s{sWAVE}, 4
                s_cbranch_scc1 L_NOST""")
                S(T0, '(w - 4)*4096 + L_GU')
                a(f'v_add_u32 v{vT}, s{T0}, v{vL16}')
                a(f'v_add_u32 v{vT+3}, {L_DN - L_GU}, v{vT}')
                for n, (m, i) in enumerate(freg):
                    for back in range(2):
                        self.dw('ds_write_b128', vT if m < 2 else vT + 3, big + 8 * n + 4 * back, 4, f_lds(m, i) - (L_GU if m < 2 else L_DN) + (1 - back) * 16384)
                a('L_NOST:')
                return
            a(f"""v_mov_b32 v{cn}, 0x10000
            v_mov_b32 v{cn+1}, s{sMASK}""")
            for i in range(8): self.unpack(x1 + 2 * i, x1 + 2 * i + 1, xr + i)
            expand(mf, tb4); expand(mf + 16, tb4 + 1)
        if TL:
            a(f"""s_cmp_lg_u32 s{sLOC}, 0
            s_cbranch_scc1 L_ELOC""")
            self.inbox(3, 2)
            a("""s_barrier
            L_ELOC:""")
        else:
            ffn_dma(fd[1])
            self.inbox(3, 2, work=lambda: (e_work(), f_pre(0)))
            a('s_barrier')
        self.stamp('x1ok')
        def ld_sg():
            for q in range(4):
                S(T0, 'T6 + q', q=q * 8192)
                self.bl(sg + 4 * q, 4, vSG, rWS, T0, 0, 'sc1')
        self.try_load(ld_sg, [sg + 3, sg + 7, sg + 11, sg + 15], vT, e_work if TL else lambda: f_pre(1))
        V.release(vSG)
        self.stamp('x1ld')
        if o.get('htouch', 1):
            S(T2, '(fs*4 + kq)*2048 + w*256 + HGR')
            vDum = V.alloc()
            a(f'v_lshlrev_b32 v{vDum}, 7, v{vL}')
            a('s_mov_b64 exec, 3')
            self.bl(vDum, 1, vDum, rWS, T2, 0, '')
            a('s_mov_b64 exec, -1')
        ffn_dma(fd[2], T2)
        A_, B_, C_, U_ = sg, sg + 1, sg + 2, sg + 3
        self.pk('add', sg, sg, sg + 4); self.pk('add', sg + 8, sg + 8, sg + 12)
        a(f"""v_add_f32 v{C_}, v{C_}, v{sg+6}
        v_add_f32 v{sg+10}, v{sg+10}, v{sg+14}""")
        self.pk('add', sg, sg, sg + 8)
        a(f"""v_add_f32 v{C_}, v{C_}, v{sg+10}
        v_mov_b32 v{U_}, v{B_}
        v_permlane32_swap_b32 v{A_}, v{C_}
        v_permlane32_swap_b32 v{B_}, v{U_}
        v_add_f32 v{A_}, v{A_}, v{C_}
        v_add_f32 v{B_}, v{B_}, v{U_}
        v_permlane16_swap_b32 v{A_}, v{B_}
        v_add_f32 v{U_}, v{A_}, v{B_}
        v_add_f32 v{A_}, v{A_}, v{B_}
        v_permlane16_swap_b32 v{A_}, v{U_}
        v_mul_f32 v{C_}, 0x3a800000, v{A_}
        v_mul_f32 v{A_}, 0x3a800000, v{A_}
        v_permlane32_swap_b32 v{A_}, v{C_}""")
        self.stat_math(A_, C_, st, st + 1)
        S(T0, 'w*8 + L_K1')
        a(f"""v_rcp_f32 v{st+1}, v{st+1}
        v_fma_f32 v{U_}, -v{st}, v{gr}, v{U_}
        v_mov_b32 v{vT+1}, s{T0}
        v_mul_f32 v{U_}, v{U_}, v{st+1}""")
        self.dw('ds_write_b64', vT + 4, st, 2)
        a(f"""s_movk_i32 s{T0}, 0xfff
        v_ashrrev_i32 v{A_}, 31, v{U_}
        v_or_b32 v{A_}, 0x80000000, v{A_}
        v_xor_b32 v{A_}, v{A_}, v{U_}
        v_bfi_b32 v{ck}, s{T0}, v{vRid}, v{A_}""")
        def top2(ctls, first):
            for n, ctl in enumerate(ctls):
                if n == 0 and first:
                    self.dpp('v_min_u32', ck + 1, ck, ck, ctl); self.dpp('v_max_u32', ck, ck, ck, ctl)
                    continue
                self.dpp('v_min_u32', ck + 2, ck, ck, ctl); self.dpp('v_max_u32', ck + 1, ck + 1, ck + 1, ctl); self.dpp('v_max_u32', ck, ck, ck, ctl)
                a(f'v_max_u32 v{ck+1}, v{ck+1}, v{ck+2}')
        top2(('row_ror:8', 'row_ror:4', 'row_ror:2', 'row_ror:1'), True)
        self.dw('ds_write_b64', vT + 1, ck, 2)
        va(vT + 2, [(0, 1, 128 * 4096), (1, 3, 4096)] if TL else [(0, 2, 64 * 4096), (2, 2, 2 * 4096)])
        S(T1, ('cb*32768' if TL else '((cb & 7)*8 + (cb >> 3))*4096') + ' + (rt >> 1)*64 + (rt & 1)*16 + INB + 2560')
        self.barrier()
        self.stamp('ln2')
        self.dr('ds_read_b64', ck, 2, vT + 7, 0, 'k'); self.dr('ds_read_b64', st, 2, vT + 6, 0, 's')
        lg.wait('k')
        top2(('quad_perm:[1,0,3,2]', 'quad_perm:[2,3,0,1]', 'row_half_mirror'), False)
        a(f"""v_or_b32 v{ck+2}, 1, v{ck+1}
        v_mov_b32 v{ck+1}, s{sTAG}
        v_mov_b32 v{ck+3}, s{sTAG}
        s_cmp_lg_u32 s{sWAVE}, 0
        s_cbranch_scc1 L_NOF
        s_mov_b64 exec, 0xffff""")
        self.bs(ck, 4, vT + 2, rWS, T1, 0, 'sc1', count=False)
        a("""s_mov_b64 exec, -1
        L_NOF:""")
        self.stamp('Fpub')
        a(f"""s_cmp_lg_u32 s{sWAVE}, 1
        s_cbranch_scc1 L_NOC
        v_and_b32 v{vT}, 16, v{vL}
        v_cmp_eq_u32 vcc, 0, v{vT}
        v_cndmask_b32 v{vT}, v{ck+2}, v{ck}, vcc
        v_not_b32 v{vT}, v{vT}
        v_bfe_u32 v{vT}, v{vT}, 1, 7
        v_lshlrev_b32 v{vT+2}, 3, v{vT}
        v_mul_u32_u24 v{vT}, 144, v{vT}
        v_add_u32 v{vT+2}, {L_ST2}, v{vT+2}""")
        va(vT + 1, [(0, 4, 8)])
        cx, cs, ch = sg, sg + 4, sg + 8
        a(f"""v_add_u32 v{vT}, v{vT}, v{vT+1}
        ds_read_b64 {vr(cs, 2)}, v{vT+2}
        ds_read_b64 {vr(cx, 2)}, v{vT} offset:{L_XT}""")
        va(vT + 2, [(0, 4, 16), (4, 1, 16384), (5, 1, 4096)])
        va(vT + 3, [(4, 1, 16384)])
        S(T0, 'rt*32768 + cb*256 + CAND'); S(T3, 'rt*32768 + cb*8 + 8192 + CAND')
        a(f"""v_mov_b32 v{cx+3}, s{sTAG}
        s_waitcnt lgkmcnt(0)""")
        self.unpack(ch, ch + 1, cx); self.unpack(ch + 2, ch + 3, cx + 1)
        for i in (0, 2): self.pk('add', ch + i, ch + i, cs, bc=(1,), neg=(1,))
        self.round_list([ch + i for i in range(4)])
        for i in (0, 2): self.pk('mul', ch + i, ch + i, cs + 1, bc=(1,))
        self.round_list([ch + i for i in range(4)])
        for i in (0, 2): self.pk('mul', ch + i, ch + i, ct + 4 + i)
        self.round_list([ch + i for i in range(4)])
        for i in (0, 2): self.pk('add', ch + i, ch + i, ct + i)
        a(f"""v_mov_b32 v{cx+2}, v{cx+1}
        v_mov_b32 v{cx+1}, s{sTAG}
        s_mov_b32 exec_hi, 0
        v_cvt_pk_bf16_f32 v{cx}, v{ch}, v{ch+1}
        v_cvt_pk_bf16_f32 v{cx+2}, v{ch+2}, v{ch+3}
        s_mov_b32 exec_hi, -1
        v_dot2_f32_bf16 v{cs}, v{cx}, v{ct+8}, 0
        v_mov_b32 v{cs+1}, s{sTAG}
        v_dot2_f32_bf16 v{cs}, v{cx+2}, v{ct+9}, v{cs}""")
        self.bs(cx, 4, vT + 2, rWS, T0, 0, 'sc1', count=False)
        for ctl in ('quad_perm:[1,0,3,2]', 'quad_perm:[2,3,0,1]', 'row_half_mirror', 'row_ror:8'): self.dpp('v_add_f32', cs, cs, cs, ctl)
        a('s_mov_b64 exec, 0x10001')
        self.bs(cs, 2, vT + 3, rWS, T3, 0, 'sc1', count=False)
        a("""s_mov_b64 exec, -1
        L_NOC:""")
        V.release(ct, 12)
        def ln2_tile():
            for i in E2: self.pk('add', hh + i, x1 + i, st, bc=(1,), neg=(1,))
            self.round_list([hh + i for i in range(16)])
            for i in E2: self.pk('mul', hh + i, hh + i, st + 1, bc=(1,))
            self.round_list([hh + i for i in range(16)])
            for i in E2: self.pk('mul', hh + i, hh + i, mf + 16 + i)
            self.round_list([hh + i for i in range(16)])
            for i in E2: self.pk('add', hh + i, hh + i, mf + i)
            self.round_list([hh + i for i in range(16)])
        lg.wait('s')
        self.stamp('cand')
        ffn_dma(fd[3])
        uu = V.alloc(16); vGr = V.alloc(); vDr = V.alloc(); vXs = V.alloc()
        def out_calc():
            expand(mf, tb4 + 2)
            for i in E2: self.pk('mul', hh + i, hh + i, mf + i)
            self.round_list([hh + i for i in range(16)])
            for i in E2: self.pk('add', hh + i, hh + i, x1 + i)
            for i in range(8): a(f'v_cvt_pk_bf16_f32 v{op+i}, v{hh+2*i}, v{hh+2*i+1}')
            for q in range(2): self.dw('ds_write_b128', vOT, op + 4 * q, 4, 16 * q)
            S(T3, 'w*(16*144) + L_OT'); va(vOT, [(3, 3, 144), (0, 3, 16)], T3)
        oc = o.get('ocat', 2 if TL else 1); l2 = o.get('l2at', 1 if TL else 0)
        def f_work():
            if TL: f_pre(0); f_pre(1)
            if l2 == 0: ln2_tile()
            if oc == 0: out_calc()
            S(T0, '(w >> 2)*32768 + (w & 3)*32 + L_GU')
            va(vGr, [(4, 2, 8192), (2, 2, 128), (3, 2, 32), (0, 2, 8)]); a(f'v_xor_b32 v{vGr}, s{T0}, v{vGr}')
            S(T0, 'w*64')
            va(vDr, [(2, 1, 512), (3, 1, 4096), (5, 1, 2048), (2, 2, 64), (4, 1, 32), (0, 2, 8)])
            a(f'v_xor_b32 v{vDr}, s{T0}, v{vDr}'); a(f'v_add_u32 v{vDr}, {L_DN}, v{vDr}')
            va(vXs, [(0, 3, 16), (4, 2, 128)], None, L_XS)
            S(T0, 'w*16 + L_K2'); a(f'v_mov_b32 v{vT}, s{T0}')
            va(vT + 1, [(0, 3, 16)], None, L_K2)
            a(f'v_and_b32 v{vT+4}, 8, v{vL}')
            a(f'v_cmp_eq_u32 {sr(sCMP, 2)}, 0, v{vT+4}')
            self.stamp('oc')
        self.inbox(5, 8, (1, 3, 5, 7), f_work)
        P = sPL
        a(f"""s_min_u32 s{P+1}, s{P}, s{P+4}
        s_max_u32 s{P}, s{P}, s{P+4}
        s_max_u32 s{P+3}, s{P+2}, s{P+6}
        s_min_u32 s{P+2}, s{P+2}, s{P+6}
        s_max_u32 s{P+4}, s{P+1}, s{P+3}
        s_min_u32 s{P+1}, s{P+1}, s{P+3}
        v_mov_b32 v{uu}, s{P}
        v_mov_b32 v{uu+3}, s{P+2}
        v_mov_b32 v{uu+1}, s{P+4}
        v_mov_b32 v{uu+2}, s{P+1}""")
        self.dw('ds_write_b128', vT, uu, 4)
        self.stamp('F2p')
        V.release(big, 8 * len(freg)); V.release(gr, 2); V.release(vGR); V.release(vRid)
        ffn = V.alloc(48); ga_ = V.alloc(16); gb_ = V.alloc(16)
        vm.wait('gu')
        self.barrier()
        self.stamp('F2')
        def gu_frags():
            for s in range(8):
                self.tr(ffn + 4 * s, vGr, s * 1024); self.tr(ffn + 4 * s + 2, vGr, s * 1024 + 512)
        a(f"""s_cmp_lt_u32 s{sWAVE}, 4
        s_cbranch_scc1 L_CSEL""")
        fq0, vq0 = list(fq), list(vm.q)
        ffn_dma(fd[4])
        gu_frags()
        if l2 == 1: ln2_tile()
        if oc == 1: out_calc()
        a("""s_branch L_CSELD
        L_CSEL:""")
        lg.reset(); fq[:] = fq0; vm.q = vq0
        self.r128(uu, vT + 1)
        S(T0, 'w*512 + L_XS'); a(f'v_add_u32 v{vT+2}, s{T0}, v{vL8}')
        S(T0, 'w*4 + L_K3'); a(f'v_mov_b32 v{vT+3}, s{T0}')
        lg.wait_all()
        c4 = uu + 4
        for n, ctl in enumerate(('quad_perm:[1,0,3,2]', 'quad_perm:[2,3,0,1]', 'row_half_mirror')):
            for i in range(4): self.dpp('v_max_u32', c4 + i, uu + 3 - i, uu + i, ctl)
            if n == 2: break
            a(f"""v_max_u32 v{c4+4}, v{c4}, v{c4+2}
            v_max_u32 v{c4+5}, v{c4+1}, v{c4+3}
            v_min_u32 v{c4+6}, v{c4}, v{c4+2}
            v_min_u32 v{c4+7}, v{c4+1}, v{c4+3}
            v_max_u32 v{uu}, v{c4+4}, v{c4+5}
            v_min_u32 v{uu+1}, v{c4+4}, v{c4+5}
            v_max_u32 v{uu+2}, v{c4+6}, v{c4+7}
            v_min_u32 v{uu+3}, v{c4+6}, v{c4+7}""")
        for i in range(4): a(f'v_readfirstlane_b32 s{P+i}, v{c4+i}')
        a(f"""s_bitcmp1_b32 s{sWAVE}, 0
        s_cselect_b32 s{P}, s{P+1}, s{P}
        s_cselect_b32 s{P+2}, s{P+3}, s{P+2}
        s_bitcmp1_b32 s{sWAVE}, 1
        s_cselect_b32 s{P}, s{P+2}, s{P}
        s_and_b32 s{T2}, s{P}, 4095""")
        S(T0, '((15 - (T2 >> 8))*2 + (T2 & 1))*16384 + CAND'); S(T1, 'kq*1024 + T0'); S(T0, 'T0 + 8192')
        va(vT + 6, [(0, 4, 8)])
        def sel_work():
            self.stamp('sel')
            ffn_dma(fd[4], T3)
            gu_frags()
            if l2 == 1: ln2_tile()
            if oc == 1: out_calc()
            S(T2, 'T2*4 + w')
        self.try_load(lambda: (self.bl(uu + 4, 2, vT + 6, rWS, T0, 0, 'sc1'), self.bl(uu, 4, vL16, rWS, T1, 0, 'sc1')), [uu + 1, uu + 3, uu + 5], vT + 4, sel_work)
        a(f'ds_write2_b32 v{vT+2}, v{uu}, v{uu+2} offset0:0 offset1:1'); lg.issue()
        for ctl in ('quad_perm:[1,0,3,2]', 'quad_perm:[2,3,0,1]', 'row_half_mirror', 'row_ror:8'): self.dpp('v_add_f32', uu + 4, uu + 4, uu + 4, ctl)
        a(f"""v_cvt_pk_bf16_f32 v{uu+4}, 0, v{uu+4}
        v_ashrrev_i32 v{uu+5}, 31, v{uu+4}
        v_or_b32 v{uu+5}, 0x80000000, v{uu+5}
        v_xor_b32 v{uu+4}, v{uu+4}, v{uu+5}
        v_and_b32 v{uu+4}, s{sMASK}, v{uu+4}
        v_or_b32 v{uu+4}, s{T2}, v{uu+4}""")
        self.dw('ds_write_b32', vT + 3, uu + 4, 1)
        a('L_CSELD:')
        V.release(vFG); V.release(vFD)
        a(f'v_mov_b32 v{vT}, {L_K3}')
        va(vT + 4, [(0, 4, 16), (5, 1, 8)])
        S(T1, 'fs*8192 + HGR'); S(T7, '(kq*8 + w)*256 + T1')
        self.barrier()
        self.stamp('xsel')
        self.r128(uu, vT)
        lg.wait_all()
        a(f"""v_max_u32 v{uu+4}, v{uu}, v{uu+1}
        v_max_u32 v{uu+5}, v{uu+2}, v{uu+3}
        v_min_u32 v{uu+6}, v{uu}, v{uu+1}
        v_min_u32 v{uu+7}, v{uu+2}, v{uu+3}
        v_min_u32 v{uu+1}, v{uu+4}, v{uu+5}
        v_max_u32 v{uu}, v{uu+4}, v{uu+5}
        v_max3_u32 v{uu+1}, v{uu+1}, v{uu+6}, v{uu+7}
        v_cndmask_b32 v{vT}, v{uu+1}, v{uu}, {sr(sCMP, 2)}
        v_readfirstlane_b32 s{sK1}, v{uu}
        v_and_b32 v{vT}, 3, v{vT}
        v_readfirstlane_b32 s{sK2}, v{uu+1}
        v_lshl_add_u32 v{vT}, v{vT}, 9, v{vXs}""")
        self.r128(uu + 4, vT)
        if oc < 2:
            for q in range(2): self.r128(op + 4 * q, vOT, q * 8 * 144, 'ot')
        a(f"""s_bfe_u32 s{sROW0}, s{sK1}, {3 | (11 << 16)}
        s_bfe_u32 s{sROW1}, s{sK2}, {3 | (11 << 16)}
        s_sub_u32 s{sROW0}, 2047, s{sROW0}
        s_sub_u32 s{sROW1}, 2047, s{sROW1}
        s_waitcnt lgkmcnt({2 if oc < 2 else 0})""")
        gd = [ga_ + 4 * i for i in range(4)] + [gb_ + 4 * i for i in range(4)]
        for s in range(8):
            a(f'v_mfma_f32_16x16x32_bf16 {vr(gd[s], 4)}, {vr(uu + 4, 4)}, {vr(ffn + 4*s, 4)}, 0')
        p0, p1 = uu, uu + 2
        hk = V.alloc(4)
        for p, b in ((p0, 0), (p1, 4)):
            a(f'v_add_f32 v{p}, v{gd[b]}, v{gd[b+1]+1}')
            a(f'v_add_f32 v{p+1}, v{gd[b+2]+2}, v{gd[b+3]+3}')
        a(f"""v_add_f32 v{p0}, v{p0}, v{p0+1}
        v_add_f32 v{p1}, v{p1}, v{p1+1}
        v_mov_b32 v{p0+1}, s{sTAG}
        v_permlane16_swap_b32 v{p1}, v{p1+1}
        s_cmp_ge_u32 s{sJ}, 28
        s_cbranch_scc1 L_NOHP
        v_add_f32 v{p0}, v{p0}, v{p1+1}
        s_mov_b32 exec_lo, 0xffff
        s_mov_b32 exec_hi, 0xffff""")
        self.bs2([(p0, 2, vT + 4, T7, 0)])
        a(f"""s_mov_b64 exec, -1
        L_NOHP:
        v_mov_b32 v{hk}, v{p0}
        v_mov_b32 v{hk+1}, v{p0+1}
        v_add_u32 v{hk+2}, s{T7}, v{vT+4}""")
        self.stamp('Hpub')
        vOr = V.alloc(); vOa = V.alloc()
        def out_store():
            S(T0, 'rt*128 + w*16'); va(vOr, [(3, 3, 1)], T0)
            S(T2, 'T0*2048 + cb*128'); S(T3, 'T2 + 16384')
            va(vOa, [(3, 3, 2048), (0, 3, 16)])
            for q in range(2):
                if q: a(f'v_add_u32 v{vOr}, 8, v{vOr}')
                a(f"""v_cmp_ne_u32 vcc, s{sROW0}, v{vOr}
                v_cmp_ne_u32 {sr(sCMP, 2)}, s{sROW1}, v{vOr}
                s_and_b64 exec, vcc, {sr(sCMP, 2)}""")
                self.bs(op + 4 * q, 4, vOa, rOUT, (T2, T3)[q], 0, o.get('outmod', 'sc1'), count=False)
                a('s_mov_b64 exec, -1')
        lg.wait('ot')
        if o.get('outat', 1) == 0: assert oc < 2; out_store()
        fz = V.alloc(4)
        sFR, sFK, sFC0 = T4, T5, T6
        a(f"""s_bitcmp1_b32 s{sX if TL else sRT}, {1 if TL else 2}
        s_cselect_b32 s{sFR}, s{sROW1}, s{sROW0}
        s_cselect_b32 s{sFK}, s{sK2}, s{sK1}
        s_cmp_lg_u32 s{sWAVE}, 7
        s_cbranch_scc1 L_NOFZ
        s_cmp_lg_u32 s2, 0
        s_cbranch_scc1 L_NONON
        v_mov_b32 v{vT+2}, s{sTAG}
        s_mov_b64 exec, 1""")
        self.bs(vT + 2, 1, vZ, rWS, '0', 0, 'sc1', count=False)
        a(f"""s_mov_b64 exec, -1
        L_NONON:""")
        S(sFC0, '(x >> 2)*2 + (x & 1)' if TL else '(rt >> 3)*2 + (rt & 1)')
        S(T7, '(cb*8 + x)*(56*128) + GGR' if TL else '(cb*8 + (rt >> 2)*2 + (rt & 1))*(56*128) + GGR')
        S(sU, 'T4*2048 + cb*128 + T6*32')
        va(vT + 6, [(0, 3, 4)])
        S(T0, 'T6*32 + L_GB'); a(f'v_add_u32 v{vT+1}, s{T0}, v{vT+6}')
        a(f'ds_read_b32 v{fz+2}, v{vT+1}')
        S(sK1, '((T4 >> 7)*2 + ((T5 >> 2) & 1))*16384 + cb*256 + T6*64 + CAND'); S(sK2, 'k1 + 4096')
        va(vT + 7, [(0, 3, 8)])
        ld_fz = lambda: (self.bl(st, 2, vT + 7, rWS, sK1, 0, 'sc1'), self.bl(fz, 2, vT + 7, rWS, sK2, 0, 'sc1'))
        q_ = list(vm.q); ld_fz(); vm.q = q_
        a(f"""s_and_b32 s{T0}, s{sFK}, s{sMASK}
        s_ashr_i32 s{T2}, s{T0}, 31
        s_andn2_b32 s{T2}, 0x7fff0000, s{T2}
        s_or_b32 s{T2}, s{T2}, 0x80000000
        s_xor_b32 s{T0}, s{T0}, s{T2}
        v_mov_b32 v{fz+3}, s{T0}
        v_mul_f32 v{fz+3}, s{sL2E}, v{fz+3}
        v_exp_f32 v{fz+3}, -v{fz+3}
        v_add_f32 v{fz+3}, 1.0, v{fz+3}
        v_rcp_f32 v{fz+3}, v{fz+3}""")
        self.round1(fz + 3)
        a(f"""L_NOFZ:
        s_cmp_lt_u32 s{sJ}, 28
        s_cbranch_scc1 L_HSEC""")
        if oc == 2:
            out_calc()
            self.barrier()
            for q in range(2): self.r128(op + 4 * q, vOT, q * 8 * 144)
            lg.wait_all()
        a("""s_branch L_GSEC
        L_HSEC:""")
        a(f"""s_cmp_lt_u32 s{sWAVE}, 4
        s_cbranch_scc1 L_HW""")
        if oc == 2: out_calc()
        a("""s_branch L_NOH
        L_HW:""")
        S(T0, 'w*256 + T1')
        va(vT, [(4, 2, 2048), (0, 4, 16)])
        S(T2, 'w*32 + L_ACT'); va(vT + 1, [(5, 1, 128), (2, 1, 16), (1, 1, 8), (3, 1, 4), (0, 1, 2)], T2)
        a(f"""s_cmp_lg_u32 s{sLOC}, 0
        s_cbranch_scc1 L_HLOC""")
        self.spoll([(q, 1, T0, q * 2048 + 1024 + 252) for q in range(4)], range(4))
        a('L_HLOC:')
        self.stamp('Hpre')
        g, u = ga_, ga_ + 4
        self.try_load(lambda: [self.bl(ga_ + 4 * m, 4, vT, rWS, T0, m * 1024, 'sc1') for m in range(2)], [g + 1, g + 3, u + 1, u + 3], vT + 2, out_calc if oc == 2 else None)
        a(f"""v_permlane32_swap_b32 v{g}, v{g+2}
        v_permlane32_swap_b32 v{u}, v{u+2}
        v_add_f32 v{g}, v{g}, v{g+2}
        v_add_f32 v{u}, v{u}, v{u+2}
        v_mov_b32 v{g+2}, v{g}
        v_mov_b32 v{u+2}, v{u}
        v_permlane16_swap_b32 v{g}, v{g+2}
        v_permlane16_swap_b32 v{u}, v{u+2}
        v_add_f32 v{g}, v{g}, v{g+2}
        v_add_f32 v{u}, v{u}, v{u+2}""")
        self.round2(g, u)
        self.silu(g, vT + 2)
        a(f"""v_mul_f32 v{g}, v{g}, v{u}
        v_cvt_pk_bf16_f32 v{g}, v{g}, v{g}
        ds_write_b16 v{vT+1}, v{g}
        L_NOH:""")
        va(vT, [(2, 1, 128), (5, 1, 16)], None, L_ACT)
        va(vT + 1, [(4, 2, 56 * 128), (0, 4, 8)])
        va(vT + 2, [(0, 2, 4096)] if TL else [(0, 1, 64 * 4096), (1, 1, 2 * 4096)])
        S(T0, '(kq*8 + w)*(4*56*128) + fs*128 + GGR')
        S(T1, ('(kq*8 + w)*16384' if TL else '(((kq & 1)*4 + (w >> 1))*8 + (w & 1)*4 + (kq >> 1))*4096') + ' + x*64 + (j >> 2)*4 + INB + 3072')
        vm.wait_all()
        self.barrier()
        self.stamp('Hok')
        for s in range(4):
            self.r128(ga_ + 4 * s, vT, s * 32, ('ac', s))
            self.tr(ffn + 32 + 4 * s, vDr, s * 8192, ('ac', s)); self.tr(ffn + 32 + 4 * s + 2, vDr, s * 8192 + 1024, ('ac', s))
        for s in range(4):
            lg.wait(('ac', s))
            a(f'v_mfma_f32_32x32x16_bf16 {vr(gb_, 16)}, {vr(ga_ + 4*s, 4)}, {vr(ffn + 32 + 4*s, 4)}, ' + ('0' if s == 0 else vr(gb_, 16)))
        if oc == 2:
            for q in range(2): self.r128(op + 4 * q, vOT, q * 8 * 144)
        a(f'v_mov_b32 v{gb_+1}, s{sTAG}')
        self.bs(gb_, 2, vT + 1, rWS, T0, 0, 'sc1')
        a('s_mov_b64 exec, 15')
        self.bs(gb_ + 1, 1, vT + 2, rWS, T1, 0, 'sc1')
        a('s_mov_b64 exec, -1')
        self.stamp('Gpub')
        def hclean():
            a("""s_mov_b32 exec_lo, 0xffff
            s_mov_b32 exec_hi, 0xffff""")
            self.bs(hk, 2, hk + 2, rWS, '0', 0, 'sc1', count=False)
            a('s_mov_b64 exec, -1')
        if o.get('hclean', 2) == 1: hclean()
        lg.wait_all()
        a('L_GSEC:')
        if o.get('outat', 1) == 1: out_store()
        a(f"""s_cmp_lt_u32 s{sJ}, 16
        s_cbranch_scc1 L_GF""")
        if o.get('hclean', 2) == 2:
            a(f"""s_cmp_ge_u32 s{sJ}, 28
            s_cbranch_scc1 L_FIN
            s_waitcnt vmcnt(0)""")
            hclean()
        a("""s_branch L_FIN
        L_GF:""")
        self.inbox(6, 8, range(7))
        self.stamp('Gpre')
        a('s_barrier')
        if o.get('hclean', 2) == 2: hclean()
        a(f"""s_cmp_lg_u32 s{sWAVE}, 7
        s_cbranch_scc1 L_FIN""")
        S(T0, 'T7 + 4096')
        gg = [ga_ + 4 * i for i in range(4)] + [uu + 4 * i for i in range(3)]
        self.poll(lambda: [self.bl(gg[n], 4, vL16, rWS, (T7, T0)[n >> 2], (n & 3) * 1024, 'sc1') for n in range(7)],
                  [gg[n] + 1 + 2 * e for n in range(7) for e in range(2)], vT)
        self.finish_load(None, ld_fz, [st + 1, fz + 1], vT)
        self.stamp('Gok')
        for n in range(1, 7):
            for e in (0, 2): a(f'v_add_f32 v{gg[0]+e}, v{gg[0]+e}, v{gg[n]+e}')
        y0, y1 = gg[0], gg[0] + 1
        a(f'v_mov_b32 v{y1}, v{gg[0]+2}')
        for y in (y0, y1): self.dpp('v_add_f32', y, y, y, 'row_ror:8')
        for sw in ('v_permlane16_swap_b32', 'v_permlane32_swap_b32'):
            for y in (y0, y1): a(f'v_mov_b32 v{y+2}, v{y}')
            for y in (y0, y1): a(f'{sw} v{y}, v{y+2}')
            self.pk('add', y0, y0, y0 + 2)
        self.round2(y0, y1)
        self.pk('mul', y0, y0, fz + 3, bc=(1,))
        self.unpack(vT, vT + 1, st)
        self.round2(y0, y1)
        self.pk('add', y0, y0, vT)
        self.unpack(vT, vT + 1, fz + 2)
        self.round2(y0, y1)
        self.pk('mul', y0, y0, vT)
        self.unpack(vT, vT + 1, fz)
        self.round2(y0, y1)
        self.pk('add', y0, y0, vT)
        a(f'v_cvt_pk_bf16_f32 v{y0}, v{y0}, v{y1}')
        a('s_mov_b64 exec, 0xff')
        self.bs(y0, 1, vT + 6, rOUT, sU, 0, 'sc1')
        a('s_mov_b64 exec, -1')
        a('L_FIN:')
        if o.get('exfil'):
            self.stamp('fin')
            a(f'''s_lshl3_add_u32 s{T0}, s2, s{sWAVE}
            s_cmp_lg_u32 s{T0}, {o.get('exwho', 7)}
            s_cbranch_scc1 L_END
            v_readlane_b32 s{T0}, v255, 0
            v_readlane_b32 s{T1}, v255, 1
            v_readlane_b32 s{T2}, v255, 2
            s_sub_u32 s{T2}, s{T2}, s{T1}
            s_max_i32 s{T2}, s{T2}, 0
            s_min_u32 s{T2}, s{T2}, 10000
            s_mul_i32 s{T2}, s{T2}, 10
            s_add_u32 s{T2}, s{T2}, 6000
            L_PAD:
            s_memrealtime {sr(sTM, 2)}
            s_waitcnt lgkmcnt(0)
            s_sub_u32 s{T1}, s{sTM}, s{T0}
            s_cmp_lt_u32 s{T1}, s{T2}
            s_cbranch_scc1 L_PAD''')
        if self.prof:
            a('s_waitcnt vmcnt(0) lgkmcnt(0)')
            self.stamp('end')
            a(f's_memrealtime {sr(sTM, 2)}')
            a('s_waitcnt lgkmcnt(0)')
            a(f'v_writelane_b32 v255, s{sTM}, 61')
            S(T0, '(wg*8 + w)*256 + STAMPS')
            a(f'v_writelane_b32 v255, s{sSPIN}, 62')
            a(f'v_lshlrev_b32 v{vT+1}, 2, v{vL}')
            a(f'buffer_store_dword v255, v{vT+1}, {sr(rWS, 4)}, s{T0} offen')
            S(T0, 'T0 + 0x100000')
            a(f'buffer_store_dword v254, v{vT+1}, {sr(rWS, 4)}, s{T0} offen')
        a('L_END:')
        a('s_endpgm')
        return self

    def text(self):
        a = self.a
        npad = a.fix_hazards()
        errs = a.check_waits([NAME])
        for e in errs: print('WAITERR', e, file=sys.stderr)
        assert not errs
        hdr = open(os.path.join(os.path.dirname(os.path.abspath(__file__)), 'header.txt')).read()
        s = hdr + '; @launch grid=(256,1,1) block=(512,1,1) lds=163840\n'
        s += '.amdgcn_target "amdgcn-amd-amdhsa--gfx950"\n.text\n'
        s += f'.globl {NAME}\n.p2align 8\n.type {NAME},@function\n'
        body = a.text()
        import subprocess, tempfile
        with tempfile.TemporaryDirectory() as td:
            open(td + '/t.s', 'w').write('.amdgcn_target "amdgcn-amd-amdhsa--gfx950"\n.text\n' + body.replace('CODE_KB', '20480'))
            subprocess.run(['clang', '-x', 'assembler', '-target', 'amdgcn-amd-amdhsa', '-mcpu=gfx950', '-c', td + '/t.s', '-o', td + '/t.o'], check=True)
            subprocess.run(['llvm-objcopy', '-O', 'binary', '-j', '.text', td + '/t.o', td + '/t.bin'], check=True)
            size = os.path.getsize(td + '/t.bin')
        print('; code bytes', size, file=sys.stderr)
        s += body.replace('CODE_KB', str((size // 1024 + 1) * 1024))
        s += '.p2align 10\n.fill 768, 4, 0xbf800000\n'
        s += '.section .rodata,"a"\n' + kernel_desc(NAME, 256, 102)
        print(f'; vgpr hi {self.V.hi}, nops {npad}, instrs {sum(1 for k, _ in a.items if k == "ins")}', file=sys.stderr)
        return s


if __name__ == '__main__':
    import argparse, json
    ap = argparse.ArgumentParser()
    ap.add_argument('-o', default='/dev/stdout')
    ap.add_argument('--prof', action='store_true')
    ap.add_argument('--opts', default='{}')
    args = ap.parse_args()
    g = Gen(args.prof, json.loads(args.opts)).build()
    t = g.text()
    open(args.o, 'w').write(t)
    if args.prof: open(args.o + '.stamps', 'w').write(json.dumps(g.stnames))
```

```python
import sys, os
sys.path.insert(0, os.path.dirname(os.path.abspath(__file__)))
from asm import *

NAME = 'adaLN_cond__linear_kernel_hedgehog__moe_arch_mod__prompt_kernel'

NONCE = 0x0
MARK = 0x100
GR = 0x010000
MODP2 = 0x020000
SINB = 0x040000
AINB = 0x080000
INA = 0x200000
INB = 0x100000
HF = 0x400000
OF = 0x800000
STAT = 0xC00000
CAND = 0x2000000
HGR = 0x1400000
ZP = 0x1480000
GGR = 0x1500000
KVP = 0x1800000
KIN = 0x1C00000
STAMPS = 0x1600000
WS_BYTES = 268435456

SEC = 8320
SLOT = 3 * SEC
SCR = 6 * SLOT
L_A1 = SCR
L_M2 = SCR + 1024
L_ST = SCR + 2048
L_MP = SCR + 2560
L_WPHI = SCR + 6656
L_XF = 147456
L_PHK = 0
L_V = 32768
WO_H0 = 32768
WO_H1 = 98304
GS = 0
L_KVF = GS
L_ZF = GS + 8192
L_EXCH = GS
L_MT = GS + 12288
L_GU = 32768
L_DN = 98304
TS = 131072
L_SP = TS
L_ST2 = TS + 4096
L_K1 = TS + 5120
L_K2 = TS + 5184
L_K3 = TS + 5312
L_XS = TS + 5632
L_ACT = TS + 7680
L_TB = TS + 7936
L_GB = L_TB + 256
L_OT = TS + 8704
L_XT = GS

SPIN_LIMIT = 300000

sWAVE, sTAG, sSPIN, sMASK, sL2E = 3, 4, 5, 6, 7
sX, sJ, sR1, sHP, sCB = 8, 9, 10, 11, 12
T0, T1, T2, T3, T4, T5, T6, T7 = 13, 14, 15, 16, 17, 18, 19, 20
sRT = 21
sCMP = 22
sPL = 24
rWS, rX, rW, rWO, rWM, rWG, rWU, rWD, rOUT = 32, 36, 40, 44, 48, 52, 56, 60, 64
KA = 68
pWPHI, pWR, pC = KA + 4, KA + 10, KA + 18
sK1, sK2, sROW0, sROW1, sFS, sKQ, sKH, sKF = 68, 69, 70, 71, 74, 75, 76, 77
sFG, sFD, sU, sROT, sWB, sU0 = 80, 81, 82, 83, 84, 85
sWO2, sW1K, sMF = 88, 89, 90
sINB, sRow, sGTB, sC32 = 92, 93, 94, 95
sXC = 94
pDBG = 30
sLOC = 93
XT = (96, 97, 98, 99)
sTM = 100
ENV = dict(wg=2, w=sWAVE, x=sX, j=sJ, r1=sR1, hp=sHP, cb=sCB, rt=sRT, row=sRow, gtb=sGTB, c32=sC32, kh=sKH, kf=sKF, fs=sFS, kq=sKQ,
           rot=sROT, wb=sWB, u0=sU0, wo2=sWO2, w1k=sW1K, mf=sMF, u=sU, fg=sFG, fd=sFD, T0=T0, T1=T1, T2=T2, T3=T3, T4=T4, T5=T5, T6=T6, T7=T7, row0=sROW0, row1=sROW1, k1=sK1)


class Gen:
    def __init__(self, prof=False, opts=None):
        self.a = Asm()
        self.vm = Counter(self.a, 'vmcnt', 63)
        self.lg = Counter(self.a, 'lgkmcnt', 15)
        self.V = RegAlloc(254, 1)
        self.prof = prof
        self.nopk = False
        self.nst = 0
        self.stnames = []
        self.S = SExpr(self.a, ENV, {k: v for k, v in globals().items() if isinstance(v, int) and k.isupper() and k not in ENV}, XT)
        self.o = dict(AD=12, AD2=4, wburst=(0, 3, 0, 0, 3, 3), wxor=3, LASTB=13,
                      sched={1: 'm1 p2', 2: 's4', 3: 'm1 s4', 4: 'p2', 5: 'm1 g2', 7: 'm1 h g2 p3', 9: 'g2', 10: 'g2', 11: 'r', 12: 'P', 14: 'o4 f4', 15: 'f2'}, fdma=(3, 0, 1, 1, 1), wowin=(6, 0, 2))
        if opts: self.o.update(opts)

    def bl(self, dst, n, voff, srd, soff, imm=0, mods='', tag=None):
        op = {1: 'dword', 2: 'dwordx2', 4: 'dwordx4'}[n]
        so = soff if isinstance(soff, str) else (sr(soff))
        self.a(f'buffer_load_{op} {vr(dst, n)}, v{voff}, {sr(srd, 4)}, {so} offen' + (f' offset:{imm}' if imm else '') + (' ' + mods if mods else ''))
        self.vm.issue(tag)
    def bs(self, src, n, voff, srd, soff, imm=0, mods='', tag=None, count=True):
        op = {1: 'dword', 2: 'dwordx2', 4: 'dwordx4'}[n]
        so = soff if isinstance(soff, str) else (sr(soff))
        self.a(f'buffer_store_{op} {vr(src, n)}, v{voff}, {sr(srd, 4)}, {so} offen' + (f' offset:{imm}' if imm else '') + (' ' + mods if mods else ''))
        if count: self.vm.issue(tag)
    def bs2(self, items):
        a = self.a
        LL, D = a.label('LOC'), a.label('LOCD')
        a(f's_cmp_lg_u32 s{sLOC}, 0')
        a(f's_cbranch_scc1 {LL}')
        for src, n, voff, soff, imm in items: self.bs(src, n, voff, rWS, soff, imm, 'sc1', count=False)
        a(f's_branch {D}')
        a(f'{LL}:')
        for src, n, voff, soff, imm in items: self.bs(src, n, voff, rWS, soff, imm, '', count=False)
        a(f'{D}:')
    def dma(self, voff, srd, soff, imm=0, mods='', tag=None):
        self.a(f'buffer_load_dwordx4 v{voff}, {sr(srd, 4)}, {sr(soff)} offen' + (f' offset:{imm}' if imm else '') + (' ' + mods if mods else '') + ' lds')
        self.vm.issue(tag)
    def dr(self, op, dst, n, addr, off=0, tag=None):
        assert 0 <= off < 65536, off
        self.a(f'{op} {vr(dst, n)}, v{addr}' + (f' offset:{off}' if off else ''))
        self.lg.issue(tag)
    def tr(self, dst, addr, off, tag=None): self.dr('ds_read_b64_tr_b16', dst, 2, addr, off, tag)
    def r128(self, dst, addr, off=0, tag=None): self.dr('ds_read_b128', dst, 4, addr, off, tag)
    def dw(self, op, addr, src, n, off=0, tag=None):
        assert 0 <= off < 65536, off
        self.a(f'{op} v{addr}, {vr(src, n)}' + (f' offset:{off}' if off else ''))
        self.lg.issue(tag)
    def barrier(self):
        self.lg.wait_all()
        self.a('s_barrier')
    def stamp(self, name):
        ex = self.o.get('exfil')
        if ex and name in ex[:2]:
            self.a(f's_memrealtime {sr(sTM, 2)}')
            self.lg.wait_all()
            self.a(f'v_writelane_b32 v255, s{sTM}, {1 + ex.index(name)}')
        if not self.prof: return
        only = self.o.get('only')
        if only and name not in only and name != 'end': return
        self.a(f's_memtime {sr(sTM, 2)}')
        self.a(f's_memrealtime s[0:1]')
        self.lg.wait_all()
        self.a(f'v_writelane_b32 v255, s{sSPIN if self.o.get("spinst") and self.nst > 3 else sTM}, {self.nst}')
        self.a(f'v_writelane_b32 v254, s0, {self.nst}')
        self.stnames.append(name)
        self.nst += 1
        assert self.nst <= 60
    def unpack(self, lo, hi, src):
        self.a(f'v_lshlrev_b32 v{lo}, 16, v{src}')
        self.a(f'v_and_b32 v{hi}, s{sMASK}, v{src}')
    def round1(self, r):
        self.a(f'v_cvt_pk_bf16_f32 v{r}, 0, v{r}')
    def round2(self, r0, r1):
        self.round1(r0); self.round1(r1)
    def round_list(self, regs):
        for r in regs: self.round1(r)
    def pk(self, op, d, s0, s1, s2=None, bc=(), neg=()):
        srcs = [s0, s1] + ([s2] if s2 is not None else [])
        if self.nopk:
            for h in range(2):
                t = []
                for k, r in enumerate(srcs):
                    kind, n = r if isinstance(r, tuple) else ('v', r)
                    t.append(('-' if k in neg else '') + f'{kind}{n if k in bc else n + h}')
                e64 = '' if op == 'fma' else ('_e64' if (neg or t[1][0] == 's') else '')
                self.a(f'v_{op}_f32{e64} v{d+h}, ' + ', '.join(t))
            return
        txt, sel, selhi = [], [], []
        for k, r in enumerate(srcs):
            kind, n = r if isinstance(r, tuple) else ('v', r)
            if k in bc:
                txt.append(f'{kind}[{n & ~1}:{(n & ~1) + 1}]'); sel.append(n & 1); selhi.append(n & 1)
            else:
                assert n % 2 == 0
                txt.append(f'{kind}[{n}:{n+1}]'); sel.append(0); selhi.append(1)
        assert d % 2 == 0
        m = ''
        if any(sel): m += ' op_sel:[' + ','.join(map(str, sel)) + ']'
        if not all(selhi): m += ' op_sel_hi:[' + ','.join(map(str, selhi)) + ']'
        if neg:
            ng = ','.join('1' if k in neg else '0' for k in range(len(srcs)))
            m += f' neg_lo:[{ng}] neg_hi:[{ng}]'
        self.a(f'v_pk_{op}_f32 v[{d}:{d+1}], ' + ', '.join(txt) + m)
    def dpp(self, op, d, s0, s1, ctl):
        self.a(f'{op}_dpp v{d}, v{s0}, v{s1} {ctl} row_mask:0xf bank_mask:0xf')
    def allreduce(self, v, t, op='v_add_f32', lo=True, b3=True):
        if lo:
            self.dpp(op, v, v, v, 'quad_perm:[1,0,3,2]')
            self.dpp(op, v, v, v, 'quad_perm:[2,3,0,1]')
            self.dpp(op, v, v, v, 'row_half_mirror')
        self.dpp(op, v, v, v, 'row_ror:8')
        self.a(f'v_mov_b32 v{t}, v{v}')
        self.a(f'v_permlane16_swap_b32 v{v}, v{t}')
        self.a(f'{op} v{v}, v{v}, v{t}')
        self.a(f'v_mov_b32 v{t}, v{v}')
        self.a(f'v_permlane32_swap_b32 v{v}, v{t}')
        self.a(f'{op} v{v}, v{v}, v{t}')
    def poll(self, loads, tagregs, tmp=None):
        a = self.a
        L, D = a.label('POLL'), a.label('PDONE')
        a(f'{L}:')
        loads()
        self.vm.wait_all()
        self.tagcheck(tagregs, tmp)
        a(f's_cbranch_vccz {D}')
        a(f's_add_u32 s{sSPIN}, s{sSPIN}, 1')
        a(f's_cmp_lt_u32 s{sSPIN}, {SPIN_LIMIT}')
        a(f's_cbranch_scc1 {L}')
        a(f'{D}:')
    def weave(self, fn, extras):
        a = self.a
        keep = a.items; a.items = []
        fn()
        body = a.items; a.items = keep
        extras = list(extras); n = len(extras)
        for i, it in enumerate(body):
            while extras and (n - len(extras)) * len(body) <= i * n: extras.pop(0)()
            a.items.append(it)
        for e in extras: e()
    def tagcheck(self, tagregs, tmp):
        a = self.a
        if tagregs[0] == 'nan':
            if len(tagregs) == 3: a(f'v_max_u32 v{tmp}, v{tagregs[1]}, v{tagregs[2]}')
            a(f'v_cmp_eq_u32 vcc, -1, v{tmp if len(tagregs) == 3 else tagregs[1]}')
        elif len(tagregs) == 1:
            a(f'v_cmp_ne_u32 vcc, s{sTAG}, v{tagregs[0]}')
        else:
            a(f'v_bitop3_b32 v{tmp}, v{tagregs[0]}, v{tagregs[1]}, s{sTAG} bitop3:0x7e')
            for t in tagregs[2:]: a(f'v_bitop3_b32 v{tmp}, v{tmp}, v{t}, s{sTAG} bitop3:0xf6')
            a(f'v_cmp_ne_u32 vcc, 0, v{tmp}')
    def try_load(self, loads, tagregs, tmp=None, between=None, pre=None):
        a = self.a
        n0 = len(self.vm.q)
        loads()
        self.vm.q[-1] = tg = ('try', a.label('T'))
        if between: between()
        self.vm.wait(tg)
        OK = a.label('TOK')
        self.tagcheck(tagregs, tmp)
        a(f's_cbranch_vccz {OK}')
        q, l = list(self.vm.q), list(self.lg.q)
        if pre: pre()
        self.poll(loads, tagregs, tmp)
        self.vm.q, self.lg.q = q, l
        a(f'{OK}:')
    def finish_load(self, tg, loads, tagregs, tmp=None, pre=None):
        a = self.a
        self.vm.wait(tg)
        OK = a.label('TOK')
        self.tagcheck(tagregs, tmp)
        a(f's_cbranch_vccz {OK}')
        q, l = list(self.vm.q), list(self.lg.q)
        if pre: pre()
        self.poll(loads, tagregs, tmp)
        self.vm.q, self.lg.q = q, l
        a(f'{OK}:')
    def spoll(self, loads, checks, work=None, pipe=0):
        a = self.a
        L, C, D = a.label('SPOLL'), a.label('SCHK'), a.label('SDONE')
        def issue(note=''):
            for d, n, so, imm in loads:
                op = {1: 'dword', 2: 'dwordx2', 4: 'dwordx4', 8: 'dwordx8'}[n]
                a(f's_load_{op} {sr(sPL + d, n)}, {sr(rWS, 2)}, s{so} offset:{imm} glc' + note)
        if pipe:
            self.lg.wait_all()
            for k in checks: a(f's_not_b32 s{sPL + k}, s{sTAG}')
            issue(' ; nowait')
            if work: work()
            a(f'{L}:')
            a(f's_add_u32 s{sSPIN}, s{sSPIN}, 1')
            a(f's_cmp_ge_u32 s{sSPIN}, {SPIN_LIMIT}')
            a(f's_cbranch_scc1 {D}')
            ks = list(checks)
            a(f's_xor_b32 s{XT[0]}, s{sPL + ks[0]}, s{sTAG} ; nowait')
            for k in ks[1:]:
                a(f's_xor_b32 s{XT[1]}, s{sPL + k}, s{sTAG} ; nowait')
                a(f's_or_b32 s{XT[0]}, s{XT[0]}, s{XT[1]}')
            a(f's_cbranch_scc0 {D}')
            issue(' ; nowait')
            a(f's_sleep {pipe}')
            a(f's_branch {L}')
            a(f'{D}:')
            return
        if work:
            issue(); work()
            a(f's_branch {C}')
        a(f'{L}:')
        issue()
        a(f'{C}:')
        a(f's_add_u32 s{sSPIN}, s{sSPIN}, 1')
        a(f's_cmp_ge_u32 s{sSPIN}, {SPIN_LIMIT}')
        self.lg.wait_all()
        a(f's_cbranch_scc1 {D}')
        for k in checks:
            a(f's_cmp_lg_u32 s{sPL + k}, s{sTAG}')
            a(f's_cbranch_scc1 {L}')
        a(f'{D}:')
    def inbox(self, box, n, checks=None, work=None, pipe=0):
        self.spoll([(0, n, sINB, box * 512)], range(n) if checks is None else checks, work, pipe)
    def va(self, dst, terms, sreg=None, const=0, tmp=None):
        a = self.a; vL = self.vL
        first = True
        for sh, bits, mult in terms:
            full = sh + bits >= 6
            src = vL
            t = dst if first else tmp
            if sh == 0 and full: pass
            elif full: a(f'v_lshrrev_b32 v{t}, {sh}, v{vL}'); src = t
            elif sh == 0: a(f'v_and_b32 v{t}, {(1 << bits) - 1}, v{vL}'); src = t
            else: a(f'v_bfe_u32 v{t}, v{vL}, {sh}, {bits}'); src = t
            p2 = mult & (mult - 1) == 0
            k = mult.bit_length() - 1
            if first:
                if p2 and sreg is not None: a(f'v_lshl_add_u32 v{dst}, v{src}, {k}, s{sreg}'); sreg = None
                elif p2 and k: a(f'v_lshlrev_b32 v{dst}, {k}, v{src}')
                elif p2:
                    if src != dst: a(f'v_mov_b32 v{dst}, v{src}')
                else: a(f'v_mul_u32_u24 v{dst}, {mult}, v{src}')
            else:
                assert p2
                a(f'v_lshl_add_u32 v{dst}, v{src}, {k}, v{dst}')
            first = False
        if sreg is not None: a(f'v_add_u32 v{dst}, s{sreg}, v{dst}')
        if const: a(f'v_add_u32 v{dst}, {const}, v{dst}')
    def push(self, vaddr, soff, nl, vtmp, lab, wave=0):
        a = self.a
        a(f's_cmp_lg_u32 s{sWAVE}, {wave}')
        a(f's_cbranch_scc1 {lab}')
        a(f'v_mov_b32 v{vtmp}, s{sTAG}')
        a(f's_mov_b32 exec_hi, 0')
        if nl < 32: a(f's_mov_b32 exec_lo, {(1 << nl) - 1}')
        self.bs(vtmp, 1, vaddr, rWS, soff, 0, 'sc1', count=False)
        a('s_mov_b64 exec, -1')
        a(f'{lab}:')
    def silu(self, v, t):
        a = self.a
        a(f'v_mul_f32 v{t}, s{sL2E}, v{v}')
        a(f'v_exp_f32 v{t}, -v{t}')
        a(f'v_add_f32 v{t}, 1.0, v{t}')
        a(f'v_rcp_f32 v{t}, v{t}')
        a(f'v_mul_f32 v{v}, v{v}, v{t}')
        self.round1(v)
    def gemv_ops(self, wregs, cregs, acc, t0, t1, packed):
        ops = []
        assert t0 % 2 == 0 and t1 == t0 + 1
        for i, (w, c) in enumerate(zip(wregs, cregs)):
            cp = f'v[{c & ~1}:{(c & ~1) + 1}]'
            for d in range(4):
                tt = t0 + 2 * (d & 1)
                ops.append(f'v_lshlrev_b32 v{tt}, 16, v{w+d}')
                ops.append(f'v_and_b32 v{tt+1}, s{sMASK}, v{w+d}')
                ac = f'v[{acc+2*d}:{acc+2*d+1}]'
                if not packed:
                    for h in range(2): ops.append(f'v_mul_f32 v{acc+2*d+h}, v{tt+h}, v{c}' if i == 0 else f'v_fmac_f32 v{acc+2*d+h}, v{tt+h}, v{c}')
                elif i == 0: ops.append(f'v_pk_mul_f32 {ac}, v[{tt}:{tt+1}], {cp} op_sel:[0,{c & 1}] op_sel_hi:[1,{c & 1}]')
                else: ops.append(f'v_pk_fma_f32 {ac}, v[{tt}:{tt+1}], {cp}, {ac} op_sel:[0,{c & 1},0] op_sel_hi:[1,{c & 1},1]')
        for i in range(4): ops.append(f'v_permlane32_swap_b32 v{acc+i}, v{acc+4+i}')
        for i in range(4): ops.append(f'v_add_f32 v{acc+i}, v{acc+i}, v{acc+4+i}')
        for i in range(2): ops.append(f'v_permlane16_swap_b32 v{acc+i}, v{acc+2+i}')
        for i in range(2): ops.append(f'v_add_f32 v{acc+i}, v{acc+i}, v{acc+2+i}')
        for i in range(2): ops.append(f'v_add_f32_dpp v{acc+i}, v{acc+i}, v{acc+i} row_ror:8 row_mask:0xf bank_mask:0xf')
        ops.append(f'v_mov_b32_dpp v{acc}, v{acc+1} quad_perm:[0,1,2,3] row_mask:0xf bank_mask:0xc')
        return ops
    def sum8(self, b):
        self.pk('add', b, b, b + 2); self.pk('add', b + 4, b + 4, b + 6); self.pk('add', b, b, b + 4)
        self.a(f'v_add_f32 v{b}, v{b}, v{b+1}')
    def softmax_pm(self, p, e, out, t, mid=None, part=0, split=0):
        a = self.a
        mx, mn, u0, u1, s0, s1 = t, t + 1, t + 2, t + 3, t + 4, t + 6
        if part != 2:
            self.round_list([p + i for i in range(16)])
            a(f'v_max3_f32 v{mx}, v{p}, v{p+1}, v{p+2}')
            a(f'v_min3_f32 v{mn}, v{p}, v{p+1}, v{p+2}')
            for i in range(3, 15, 2):
                a(f'v_max3_f32 v{mx}, v{mx}, v{p+i}, v{p+i+1}')
                a(f'v_min3_f32 v{mn}, v{mn}, v{p+i}, v{p+i+1}')
            a(f'v_max_f32 v{u0}, v{mx}, v{p+15}')
            a(f'v_min_f32 v{u1}, v{mn}, v{p+15}')
            a(f'v_max_f32 v{mx}, v{mx}, v{p+15}')
            a(f'v_min_f32 v{mn}, v{mn}, v{p+15}')
            a(f'v_permlane32_swap_b32 v{mx}, v{u0}')
            a(f'v_permlane32_swap_b32 v{mn}, v{u1}')
            a(f'v_max_f32 v{mx}, v{mx}, v{u0}')
            a(f'v_min_f32 v{mn}, v{mn}, v{u1}')
            self.pk('mul', mx, mx, ('s', sL2E), bc=(1,))
            for i in range(0, 16, 2):
                self.pk('fma', e + i, p + i, ('s', sL2E), mx, bc=(1, 2), neg=(2,))
                self.pk('fma', p + i, p + i, ('s', sL2E), mn, bc=(1, 2), neg=(0,))
        for i in range(split if part == 2 else 0, 16):
            if mid and i == mid[0]: mid[1]()
            if part == 1 and i == split: return
            a(f'v_exp_f32 v{e+i}, v{e+i}')
            a(f'v_exp_f32 v{p+i}, v{p+i}')
        self.pk('add', s0, e, e + 2); self.pk('add', s1, p, p + 2)
        for i in range(4, 16, 2):
            self.pk('add', s0, s0, e + i); self.pk('add', s1, s1, p + i)
        a(f'v_add_f32 v{u0}, v{s0}, v{s0+1}')
        a(f'v_add_f32 v{u1}, v{s1}, v{s1+1}')
        a(f'v_add_f32 v{mx}, v{s0}, v{s0+1}')
        a(f'v_add_f32 v{mn}, v{s1}, v{s1+1}')
        a(f'v_permlane32_swap_b32 v{mx}, v{u0}')
        a(f'v_permlane32_swap_b32 v{mn}, v{u1}')
        self.pk('add', mx, mx, u0)
        a(f'v_rcp_f32 v{mx}, v{mx}')
        a(f'v_rcp_f32 v{mn}, v{mn}')
        for i in range(0, 16, 2):
            self.pk('mul', e + i, e + i, mx, bc=(1,))
            self.pk('mul', p + i, p + i, mn, bc=(1,))
        for i in range(8):
            a(f'v_cvt_pk_bf16_f32 v{out+i}, v{e+2*i}, v{e+2*i+1}')
            a(f'v_cvt_pk_bf16_f32 v{out+8+i}, v{p+2*i}, v{p+2*i+1}')
    def ln_stats(self, xp, t, m_out, sd_out, fill=()):
        a = self.a
        fill = list(fill)
        def pad(n):
            for _ in range(n):
                if fill: a(fill.pop(0))
        s, u = t, t + 4
        a(f'v_mov_b32 v{u}, 0x3f803f80')
        for i in range(8):
            k = 2 * (i & 1)
            a(f'v_dot2_f32_bf16 v{s+k}, v{xp+i}, v{u}, ' + ('0' if i < 2 else f'v{s+k}'))
            a(f'v_dot2_f32_bf16 v{s+k+1}, v{xp+i}, v{xp+i}, ' + ('0' if i < 2 else f'v{s+k+1}'))
        pad(3)
        self.pk('add', s, s, s + 2)
        for ctl in ('quad_perm:[1,0,3,2]', 'quad_perm:[2,3,0,1]', 'row_half_mirror', 'row_ror:8'):
            pad(2 if ctl.endswith('3,2]') else 1)
            self.dpp('v_add_f32', s, s, s, ctl); self.dpp('v_add_f32', s + 1, s + 1, s + 1, ctl)
        pad(2)
        a(f'v_permlane16_swap_b32 v{s}, v{s+1}')
        a(f'v_add_f32 v{u}, v{s}, v{s+1}')
        a(f'v_add_f32 v{s}, v{s}, v{s+1}')
        pad(2)
        a(f'v_permlane32_swap_b32 v{s}, v{u}')
        a(f'v_add_f32 v{s}, v{s}, v{u}')
        a(f'v_mul_f32 v{u}, 0x3a800000, v{s}')
        a(f'v_mul_f32 v{s}, 0x3a800000, v{s}')
        pad(2)
        a(f'v_permlane16_swap_b32 v{s}, v{u}')
        a(f'v_fma_f32 v{sd_out}, -v{s}, v{s}, v{u}')
        a(f'v_cvt_pk_bf16_f32 v{m_out}, 0, v{s}')
        a(f'v_max_f32 v{sd_out}, 0, v{sd_out}')
        self.round1(sd_out)
        a(f'v_add_f32 v{sd_out}, 0x3727c5ac, v{sd_out}')
        self.round1(sd_out)
        a(f'v_sqrt_f32 v{sd_out}, v{sd_out}')
        pad(99)
        self.round1(sd_out)

    def stat_math(self, s, u, m_out, sd_out):
        a = self.a
        a(f'v_fma_f32 v{sd_out}, -v{s}, v{s}, v{u}')
        a(f'v_cvt_pk_bf16_f32 v{m_out}, 0, v{s}')
        a(f'v_max_f32 v{sd_out}, 0, v{sd_out}')
        self.round1(sd_out)
        a(f'v_add_f32 v{sd_out}, 0x3727c5ac, v{sd_out}')
        self.round1(sd_out)
        a(f'v_sqrt_f32 v{sd_out}, v{sd_out}')
        self.round1(sd_out)
    def ln_stats2(self, x0, x1, t, m_out, sd_out):
        a = self.a
        s0, s1, q0, q1, u = t, t + 1, t + 2, t + 3, t + 4
        a(f'v_mov_b32 v{u}, 0x3f803f80')
        for i in range(8):
            for xx, s_, q_ in ((x0, s0, q0), (x1, s1, q1)):
                a(f'v_dot2_f32_bf16 v{s_}, v{xx+i}, v{u}, ' + ('0' if i == 0 else f'v{s_}'))
                a(f'v_dot2_f32_bf16 v{q_}, v{xx+i}, v{xx+i}, ' + ('0' if i == 0 else f'v{q_}'))
        a(f"""v_permlane32_swap_b32 v{s0}, v{s1}
        v_permlane32_swap_b32 v{q0}, v{q1}
        v_add_f32 v{s0}, v{s0}, v{s1}
        v_add_f32 v{q0}, v{q0}, v{q1}
        v_permlane16_swap_b32 v{s0}, v{q0}
        v_add_f32 v{s0}, v{s0}, v{q0}""")
        for ctl in ('quad_perm:[1,0,3,2]', 'quad_perm:[2,3,0,1]', 'row_half_mirror', 'row_ror:8'): self.dpp('v_add_f32', s0, s0, s0, ctl)
        a(f"""v_mul_f32 v{q0}, 0x3a800000, v{s0}
        v_mul_f32 v{s0}, 0x3a800000, v{s0}
        v_permlane16_swap_b32 v{s0}, v{q0}""")
        self.stat_math(s0, q0, m_out, sd_out)

    def build(self):
        a, V, vm, lg, o, S = self.a, self.V, self.vm, self.lg, self.o, self.S
        E2 = range(0, 16, 2)
        TL = o.get('tl', 0)
        LCB = [(0, 4, 8 * 4096)] if TL else [(0, 3, 8 * 4096), (3, 1, 4096)]
        a(f'{NAME}:')
        a(f's_load_dwordx16 {sr(KA, 16)}, s[0:1], 0')
        a(f's_load_dwordx8 {sr(KA + 16, 8)}, s[0:1], 64')
        a(f's_load_dwordx2 {sr(rWS, 2)}, s[0:1], 104')
        a(f's_load_dwordx2 {sr(pDBG, 2)}, s[0:1], 96')
        a('s_cmp_ge_u32 s2, 256')
        a('s_cbranch_scc1 L_END')
        if self.prof:
            a(f's_memrealtime {sr(sCMP, 2)}')
            a(f's_memtime {sr(sTM, 2)}')
            a('v_mov_b32 v255, 0')
            a('v_mov_b32 v254, 0')
            self.stnames.append('start'); self.nst = 1
        if o.get('exfil'): a(f's_memrealtime {sr(sTM, 2)}')
        vL = self.vL = V.alloc()
        vL16 = V.alloc()
        vZ = V.alloc()
        vT = V.alloc(8)
        va = lambda dst, terms, sreg=None, const=0: self.va(dst, terms, sreg, const, vT + 5)
        a(f"""v_lshrrev_b32 v{vT}, 6, v0
        v_and_b32 v{vL}, 63, v0
        v_mov_b32 v{vZ}, 0
        v_readfirstlane_b32 s{sWAVE}, v{vT}
        v_lshlrev_b32 v{vL16}, 4, v{vL}""")
        xr = V.alloc(8); acc = V.alloc(8); wphi = V.alloc(8); fr = V.alloc(8); vq = V.alloc(8); vv = V.alloc(8)
        vWM = V.alloc(); vCo = V.alloc(); vWd = V.alloc(); vL8 = V.alloc(); vL32S = V.alloc(); vGA = V.alloc()
        vB = V.alloc(6, 1); vFG = V.alloc(); vFD = V.alloc(); vWo = V.alloc(); vPW = V.alloc(); vXF = V.alloc()
        S(sX, 'wg & 7'); S(sJ, 'wg >> 3')
        S(T2, '(x*4 + w)*64')
        S(T0, 'T2*6144 + (j ^ 1)*128')
        va(vWM, [(3, 3, 4 * 12288), (0, 3, 16)])
        va(vCo, [(3, 3, 8)], T2)
        S(T3, '((x*32 + j)*4 + w - 4)*4096')
        for srd, size in ((rWM, 12582912), (rX, 4194304), (rWS, WS_BYTES)):
            a(f's_mov_b32 s{srd+2}, {size}')
            a(f's_mov_b32 s{srd+3}, 0x20000')
        a(f's_getreg_b32 s{sXC}, hwreg(HW_REG_XCC_ID, 0, 3)')
        if o.get('fakexcc') is not None: a(f's_and_b32 s{sXC}, s{sXC}, {o["fakexcc"]}')
        a(f"""s_getpc_b64 {sr(sCMP, 2) if not self.prof else sr(sPL, 2)}""")
        S(T6, '(j*7 + w)*128')
        va(vT + 6, [(5, 1, 28672)], T6)
        a(f"""v_min_u32 v{vT+6}, CODE_KB, v{vT+6}
        s_cmp_ge_u32 s{sWAVE}, 4
        s_waitcnt lgkmcnt(0)""")
        if self.prof:
            a(f'v_writelane_b32 v255, s{sTM}, 0')
            a(f'v_writelane_b32 v255, s{sCMP}, 63')
            a(f'v_writelane_b32 v254, s{sCMP}, 0')
            a(f's_mov_b64 {sr(sCMP, 2)}, {sr(sPL, 2)}')
        if o.get('exfil'):
            for k in range(3): a(f'v_writelane_b32 v255, s{sTM}, {k}')
        self.stamp('karg')
        raw = V.alloc(16); cv = V.alloc(4); vTk = V.alloc(2)
        xs = V.alloc(16); st = V.alloc(4); mq = V.alloc(4)
        a(f"""s_mov_b64 {sr(rWM, 2)}, {sr(KA + 20, 2)}
        s_mov_b64 {sr(rX, 2)}, {sr(KA, 2)}
        s_load_dword s{sTAG}, {sr(rWS, 2)}, {NONCE}
        s_cbranch_scc1 L_FS""")
        def setup():
            for srd, size in ((rW, 6291456), (rWO, 2097152), (rWG, 7340032), (rWU, 7340032), (rWD, 7340032), (rOUT, 4194304)):
                a(f's_mov_b32 s{srd+2}, {size}')
                a(f's_mov_b32 s{srd+3}, 0x20000')
            for srd, k in ((rW, 2), (rWO, 6), (rWG, 12), (rWU, 14), (rWD, 16), (rOUT, 22)):
                a(f's_mov_b64 {sr(srd, 2)}, {sr(KA + k, 2)}')
            a(f"""s_mov_b32 s{sSPIN}, 0
            s_mov_b32 s{sMASK}, 0xffff0000
            s_mov_b32 s{sL2E}, 0x3fb8aa3b""")
            S(sKH, 'w >> 2')
            va(vT + 2, [(4, 1, 64)]); va(vWd, [(0, 3, 16)])
            a(f'v_xor_b32 v{vWd}, v{vWd}, v{vT+2}'); va(vT + 2, [(3, 3, 6144)]); a(f'v_add_u32 v{vWd}, v{vWd}, v{vT+2}')
            va(vL8, [(0, 6, 8)])
            a(f'v_add_u32 v{vL32S}, {SCR}, v{vL16}')
            S(T0, '(w & 3)*4 + SCR')
            va(vGA, [(4, 2, 32), (0, 3, 128), (3, 1, 16)], T0)
            S(T1, '((j >> 4)*128 + w*8 + x)*1024 + (j & 15)*64 + SINB' if TL else '((x & 6) + ((x & 1)*2 + (j >> 4))*64 + w*8)*1024 + (j & 15)*64 + SINB')
        def tag_hash():
            a(f"""s_mul_i32 s{sTAG}, s{sTAG}, 0x9e3779b1
            s_add_u32 s{sTAG}, s{sTAG}, 0x7f4a7c15""")
        def code_pf():
            a(f's_and_b32 s{sCMP}, s{sCMP}, 0xfffffc00')
            a(f'global_load_dword v{vTk}, v{vT+6}, {sr(sCMP, 2)}')
        wq = [(n, t) for n in range(16) for t in range(3)]
        def w_base(n, wexpr):
            if n < 4 and o.get('wxor', 1):
                if o.get('wxor', 1) < 3: S(T7, '((j >> 4)*2) ^ n' if o.get('wxor', 1) == 1 else o.get('wxe', '((j >> 4) + (x >> 2)*2) ^ n'), n=n)
                else:
                    S(T7, o.get('wxe', '(j >> 4) + (x >> 2)*2'))
                    if n: a(f's_cmp_le_u32 s{T7}, {n - 1}'); a(f's_cselect_b32 s{T7}, {n}, {n - 1}')
                S(sU, f'(((T7 + u0) & 15)*8 + {wexpr})*(8*6144) + hp*128')
                S(T7, f'T7*SLOT + (({wexpr}) >> 1)*2080 + (({wexpr}) & 1)*1056')
            else:
                S(sU, f'(((u0 + n) & 15)*8 + {wexpr})*(8*6144) + hp*128', n=n)
                S(T7, f'(({wexpr}) >> 1)*2080 + (({wexpr}) & 1)*1056 + q', q=(n % 6) * SLOT)
        def w_slot(n, t):
            S('m0', 'T7 + q', q=t * SEC)
            self.dma(vWd, rW, sU, 0, o.get('wmod', ''), ('W', n))
            if t < 2: S(sU, 'u + 2048')
        def w_next(cnt=1):
            for _ in range(cnt):
                n, t = wq.pop(0)
                if t == 0: w_base(n, 'w')
                w_slot(n, t)
        wb = list(o['wburst'])
        def w_early():
            if not o.get('wearly'): return
            S(sHP, '(x & 3)*4 + ((j & 3) ^ q)', q=o.get('hpx', 2)); S(sU0, o.get('u0', 'j & 12'))
            w_next(o['wearly'])
        a(f'global_load_dwordx2 {vr(cv, 2)}, v{vCo}, {sr(pC, 2)}'); vm.issue('c')
        for i in range(4):
            self.bl(raw + 4 * i, 4, vWM, rWM, T0, 0, o.get('ntwm', 'nt'), ('wm', i))
            if i < 3: S(T0, 'T0 + 12288')
        a('s_barrier')
        if o.get('bar1', 1): a('s_barrier')
        code_pf(); vm.issue()
        setup()
        wq0 = list(wq); w_early(); wq[:] = wq0
        S(T0, '(((w*16 + ((j ^ 1) & 15))*2 + (j >> 4))*8 + x)*512 + AINB')
        S(T2, ('(((j ^ 1) & 15)*8 + w*2)*512' if TL else '(((j ^ 1) & 7)*8 + w*2 + ((j >> 3) & 1))*512') + ' + x*64 + (j >> 4)*4 + INA')
        va(vT + 6, [(0, 1, 128 * 512), (1, 1, 512)] if TL else [(0, 2, 64 * 512)])
        vm.wait('c')
        self.unpack(cv + 2, cv + 3, cv + 1)
        a(f'v_and_b32 v{cv+1}, s{sMASK}, v{cv}'); a(f'v_lshlrev_b32 v{cv}, 16, v{cv}')
        for i in range(4): self.silu(cv + i, vT + (i & 1))
        gops = self.gemv_ops([raw + 4 * i for i in range(4)], [cv + i for i in range(4)], acc, vT, vT + 1, True)
        for i in range(4):
            vm.wait(('wm', i))
            if i == 3: self.stamp('wmok')
            for s_ in gops[12 * i:12 * i + 12]: a(s_)
        for s_ in gops[48:]: a(s_)
        self.dw('ds_write_b32', vGA, acc, 1, L_A1 - SCR)
        self.barrier()
        a(f'ds_read_b128 {vr(acc, 4)}, v{vL32S} offset:{L_A1 - SCR}')
        tag_hash()
        a('s_waitcnt lgkmcnt(0)')
        self.pk('add', acc, acc, acc + 2)
        a(f"""v_add_f32 v{acc}, v{acc}, v{acc+1}
        v_mov_b32 v{acc+1}, s{sTAG}""")
        self.bs(acc, 2, vL8, rWS, T0, 0, 'sc1')
        a('s_mov_b64 exec, 15')
        self.bs(acc + 1, 1, vT + 6, rWS, T2, 0, 'sc1')
        a('s_mov_b64 exec, -1')
        self.stamp('A1pub')
        S(T0, '(wg*4 + w)*6144')
        for i in range(o.get('wpf', 0)):
            if i == 4: S(T0, 'T0 + 4096')
            self.bl(raw, 4, vL16, rW, T0, (i & 3) * 1024, o.get('wpfmod', ''))
        a('s_branch L_FJ')
        qG = list(vm.q)
        a('L_FS:')
        vm.reset(); lg.reset()
        a('s_barrier')
        for i in range(4): self.bl(raw + 4 * i, 4, vL16, rX, T3, 1024 * i, o.get('xsmod', ''), 'xs')
        pw0 = o.get('pw0', 'ab')
        if 'a' in pw0:
            S(T4, '(wg*4 + w - 4)*128 + INA')
            for q in range(2): a(f's_load_dword s{sPL + q}, {sr(rWS, 2)}, s{T4} offset:{q * 64} glc')
        if 's' in pw0:
            S(T4, '(wg*4 + w - 4)*256 + SINB')
            for q in range(4): a(f's_load_dword s{sPL + 2 + q}, {sr(rWS, 2)}, s{T4} offset:{q * 64} glc')
        if 'b' in pw0:
            S(T4, '(wg*32 + w - 4)*128 + INB')
            for q in range(2): a(f's_load_dword s{sPL + q}, {sr(rWS, 2)}, s{T4} offset:{q * 64} glc ; nowait')
        a(f"""s_lshl_b32 s{T6}, s{sXC}, 5
        v_mov_b32 v{vTk}, 1
        v_mov_b32 v{vTk+1}, s{T6}""")
        if o.get('bar1', 1): a('s_barrier')
        a(f"""s_cmp_lg_u32 s{sWAVE}, 7
        s_cbranch_scc1 L_NOTK
        s_mov_b64 exec, 1
        global_atomic_add v{vTk}, v{vTk+1}, v{vTk}, {sr(pDBG, 2)} sc0 sc1
        s_mov_b64 exec, -1
        s_branch L_TK0
        L_NOTK:""")
        code_pf()
        a('L_TK0:')
        vm.issue('tk')
        setup()
        w_early()
        S(T0, '(w - 4)*16 + L_ST'); va(vT + 6, [(5, 1, 8)], T0)
        a('s_barrier')
        vm.wait('xs')
        lg.wait_all()
        tag_hash()
        self.stamp('xsok')
        self.ln_stats2(raw, raw + 8, xs, st, st + 1)
        a(f"""v_lshrrev_b32 v{st}, 16, v{st}
        v_or_b32 v{st}, v{st}, v{st+1}
        v_mov_b32 v{st+1}, s{sTAG}""")
        self.dw('ds_write_b64', vT + 6, st, 2)
        a('L_FJ:')
        va(vT + 1, [(0, 2, 16)], None, L_ST)
        va(vT, [(0, 2, 16), (2, 1, 65536 if TL else 1024)])
        va(vT + 6, [(0, 5, 2048), (5, 1, 32)])
        va(vT + 2, [(0, 1, 64 * 512 if TL else 512)])
        S(T2, ('((j >> 4)*128 + w*8 + x)*512' if TL else '((x & 6) + ((x & 1)*2 + (j >> 4))*64 + w*8)*512') + ' + ((j >> 1) & 7)*64 + (j & 1)*4 + 8 + INA')
        self.barrier()
        self.r128(st, vT + 1, 0, 'st')
        lg.wait('st')
        a('s_mov_b64 exec, 0xff')
        self.bs(st, 4, vT, rWS, T1, 0, 'sc1')
        a('s_mov_b64 exec, 3')
        self.bs(st + 1, 1, vT + 2, rWS, T2, 0, 'sc1')
        a('s_mov_b64 exec, -1')
        self.stamp('A2pub')
        a(f"""s_cmp_lg_u32 s{sWAVE}, 7
        s_cbranch_scc1 L_NOTK2
        s_mov_b32 s{T0}, 0
        s_waitcnt vmcnt({len(vm.q) - 1 - vm.q.index('tk')})
        L_TK:
        v_readfirstlane_b32 s{T2}, v{vTk}
        s_cmp_lt_u32 s{T2}, 32
        s_cbranch_scc1 L_TKOK
        v_mov_b32 v{vTk}, s{sTAG}
        s_mov_b64 exec, 1
        buffer_store_dword v{vTk}, v{vZ}, {sr(rWS, 4)}, 0 offen offset:{MARK} sc1
        s_mov_b64 exec, -1
        s_add_u32 s{T0}, s{T0}, 1
        s_cmp_lt_u32 s{T0}, 8
        s_cbranch_scc0 L_TKNO
        s_add_u32 s{sXC}, s{sXC}, 1
        s_and_b32 s{sXC}, s{sXC}, 7
        s_lshl_b32 s{T6}, s{sXC}, 5
        v_mov_b32 v{vTk}, 1
        v_mov_b32 v{vTk+1}, s{T6}
        s_mov_b64 exec, 1
        global_atomic_add v{vTk}, v{vTk+1}, v{vTk}, {sr(pDBG, 2)} sc0 sc1
        s_mov_b64 exec, -1
        s_waitcnt vmcnt(0)
        s_branch L_TK
        L_TKNO:
        s_and_b32 s{sXC}, s2, 7
        s_lshr_b32 s{T2}, s2, 3
        L_TKOK:
        s_lshl3_add_u32 s{T2}, s{T2}, s{sXC}""")
        if o.get('rawrole'): a(f's_mov_b32 s{T2}, s2')
        a(f"""v_mov_b32 v{vTk}, s{T2}
        ds_write_b32 v{vT+1}, v{vTk} offset:64
        L_NOTK2:""")
        self.barrier()
        a(f'ds_read_b32 v{mq}, v{vT+1} offset:64'); lg.issue('role')
        lg.wait('role')
        a(f'v_readfirstlane_b32 s2, v{mq}')
        self.stamp('role')
        V.release(raw, 16); V.release(cv, 4)
        S(sX, 'wg & 7'); S(sJ, 'wg >> 3')
        S(sCB, 'j & 15' if TL else '(x & 1)*8 + (j & 7)')
        S(sRT, 'x*2 + (j >> 4)' if TL else '(x >> 1)*4 + (j >> 3)')
        S(sGTB, 'rt*4 + (w & 3)')
        S(sC32, 'cb*2 + kh')
        S(T5, 'gtb*65536 + c32*64')
        self.bl(xr, 4, vT + 6, rX, T5, 0, o.get('xtmod', ''), 'xt')
        self.bl(xr + 4, 4, vT + 6, rX, T5, 16, o.get('xtmod', ''), 'xt')
        S(T0, '(((x >> 1)*16 + cb)*16 + w)*512 + AINB')
        S(T2, '(wg*8 + w)*64 + INA')
        def role_prep():
            S(sR1, '(x & 4)*2 + (j >> 2)'); S(sHP, o.get('hpe', '(x & 3)*4 + ((j & 3) ^ 2)'))
            S(sU0, o.get('u0', 'j & 12'))
            w_next(wb[0])
            S(sINB, '(wg*64 + w)*64 + INB')
            S(sKF, 'kh ^ (j >> 4)'); S(sROT, o.get('rot', '0' if TL else '(((j >> 3) ^ j) & 1)*8'))
            S(sFS, 'x*7 + (j >> 2)'); S(sKQ, 'j & 3')
            va(vT + 4, [(0, 5, 8)])
            va(vT, [(0, 5, 16), (5, 1, 4096)])
            S(T3, 'w*4 + L_MP'); va(vT + 1, [(0, 6, 64)], T3)
            S(T3, 'kh*1024 + L_MP'); va(vT + 2, [(0, 4, 32), (5, 1, 512)], T3)
        S(T1, '(wg*4 + (w & 3))*256 + SINB')
        self.spoll([(0, 4, T2, 0)], range(4), work=role_prep, pipe=o.get('pipeA', 0))
        self.stamp('apre')
        a('s_barrier')
        st_ld = lambda: self.bl(st, 2, vT + 4, rWS, T1, 0, 'sc1', 'st')
        def st_fetch():
            st_ld()
            S(T3, 'hp*4096 + w*512')
            a(f'v_add_u32 v{vT+6}, s{T3}, v{vL16}')
            S('m0', 'w*512 + L_WPHI')
            a('s_mov_b32 exec_hi, 0')
            a(f'global_load_lds_dwordx4 v{vT+6}, {sr(pWPHI, 2)}'); vm.issue()
            a('s_mov_b32 exec_hi, -1')
            w_next(wb[1])
        self.try_load(lambda: self.bl(mq, 4, vT, rWS, T0, 0, 'sc1'), [mq + 1, mq + 3], vT + 3, st_fetch)
        self.stamp('modok')
        a(f'ds_write2_b32 v{vT+1}, v{mq}, v{mq+2} offset0:0 offset1:8'); lg.issue()
        for i in range(8): self.unpack(xs + 2 * i, xs + 2 * i + 1, xr + i)
        self.barrier()
        mp = V.alloc(16); hp = V.alloc(8)
        for i in (2, 3, 0, 1): self.r128(mp + 4 * i, vT + 2, (i >> 1) * 2048 + (i & 1) * 16, i >> 1)
        w_next(wb[2])
        self.finish_load('st', st_ld, [st + 1], None)
        self.stamp('statok')
        self.unpack(st + 1, st, st)
        a(f'v_rcp_f32 v{st}, v{st}')
        for i in E2: self.pk('add', xs + i, xs + i, st + 1, bc=(1,), neg=(1,))
        S(T0, '(((rt*16 + cb)*4 + (w & 3))*2 + kh)*2048 + HF')
        va(vT + 4, [(0, 4, 16), (4, 1, 1024), (5, 1, 512)])
        lg.wait(1); self.sum8(mp + 8)
        self.round1(mp + 8)
        lg.wait(0); self.sum8(mp)
        a(f'v_add_f32 v{mp+8}, 1.0, v{mp+8}')
        self.round2(mp + 8, mp)
        for h in range(2):
            rg = range(8 * h, 8 * h + 8)
            self.round_list([xs + i for i in rg])
            for i in range(8 * h, 8 * h + 8, 2): self.pk('mul', xs + i, xs + i, st, bc=(1,))
            self.round_list([xs + i for i in rg])
            for i in rg: self.dpp('v_mul_f32', xs + i, mp + 8, xs + i, f'row_newbcast:{i}')
            self.round_list([xs + i for i in rg])
            for i in rg: self.dpp('v_add_f32', xs + i, mp, xs + i, f'row_newbcast:{i}')
            for i in range(4 * h, 4 * h + 4): a(f'v_cvt_pk_bf16_f32 v{hp+i}, v{xs+2*i}, v{xs+2*i+1}')
            self.bs(hp + 4 * h, 4, vT + 4, rWS, T0, 256 * h, 'sc1', 'hs')
        self.stamp('hst')
        w_next(wb[3])
        va(vB, [(5, 1, 2080), (2, 2, 128), (3, 1, 64), (0, 2, 8)])
        va(vB + 1, [(4, 1, 1056)])
        va(vB + 2, [(3, 1, 128)])
        a(f"""v_add_u32 v{vB}, v{vB}, v{vB+1}
        v_sub_u32 v{vB+1}, v{vB}, v{vB+2}
        v_add_u32 v{vB+1}, 64, v{vB+1}""")
        for q in (1, 2):
            for h in range(2): a(f'v_add_u32 v{vB+2*q+h}, {2*q*SLOT}, v{vB+h}')
        S(T1, 'kh*2048 + L_WPHI')
        va(vT, [(2, 2, 64), (4, 1, 32), (0, 2, 8), (5, 1, 512)], T1)
        va(vT + 1, [(0, 2, 8 * 4096), (2, 2, 4096)])
        S(T0, '((rt >> 3)*4 + (rt & 7)*32)*4096 + (cb >> 1)*64 + (cb & 1)*4 + INB')
        va(vT + 2, [(4, 1, 64), (5, 1, 16)]); va(vWo, [(0, 3, 16)])
        a(f'v_xor_b32 v{vWo}, v{vWo}, v{vT+2}'); va(vT + 2, [(3, 3, 2048)]); a(f'v_add_u32 v{vWo}, v{vWo}, v{vT+2}')
        S(T1, '(w & 2)*32'); va(vT + 2, [(4, 1, 32)], T1); va(vFG, [(0, 3, 16)])
        a(f'v_xor_b32 v{vFG}, v{vFG}, v{vT+2}'); va(vT + 2, [(3, 3, 7168)]); a(f'v_add_u32 v{vFG}, v{vFG}, v{vT+2}')
        S(T1, '(w & 1)*128')
        va(vT + 2, [(5, 1, 64)], T1); va(vFD, [(0, 5, 16), (5, 1, 2048)])
        a(f'v_xor_b32 v{vFD}, v{vFD}, v{vT+2}')
        S(sFG, '(kq*8 + w)*(32*7168) + fs*128'); S(sFD, '(fs*8 + w)*16384 + kq*512')
        a(f"""s_cmp_ge_u32 s{sJ}, 28
        s_cselect_b32 s{rWG+2}, 0, s{rWG+2}
        s_cselect_b32 s{rWU+2}, 0, s{rWU+2}
        s_cselect_b32 s{rWD+2}, 0, s{rWD+2}""")
        vm.wait('hs')
        a('s_barrier')
        self.push(vT + 1, T0, 16, vT + 2, 'L_PB')
        self.stamp('hpub')
        V.release(xs, 16); V.release(mp, 16); V.release(hp, 8); V.release(st, 4); V.release(mq, 4); V.release(vTk, 2)
        w_next(wb[4])
        for s in range(2):
            for u in range(2): self.tr(wphi + 4 * s + 2 * u, vT, s * 1024 + u * 256)
        AD, LOOK, LASTB = o['AD'], 6, o['LASTB']
        accs = V.alloc(96)
        big = V.alloc(76)
        Ar, Br = big, big + 4 * AD
        assert 4 * AD + 4 * (LOOK + 1) <= 76
        S(T2, '(r1*64 + w)*4096 + HF')
        S(T0, '(w & 3)*4096 + L_XF'); a(f'v_add_u32 v{vXF}, s{T0}, v{vL16}')
        vXW = V.alloc(); vVW = V.alloc()
        va(vXW, [(0, 4, 16), (5, 1, 512), (4, 1, 8)], T0)
        S(T0, '(w & 3)*1024 + L_V'); va(vVW, [(0, 4, 32), (4, 2, 8)], T0)
        S(T0, '(w & 3)*1024 + kh*16384 + L_PHK'); va(vPW, [(0, 5, 32), (5, 1, 16)], T0)
        fq = [(m, i) for m in range(3) for i in range(4)]
        freg = []
        def f_src(m, i, back=0, T0=T0):
            if m < 2: S(T0, 'fg + q', q=i * 8 * 7168 - back * 4 * 32 * 7168)
            else: S(T0, 'fd + q', q=i * 4096 - back * 4 * 16384)
            return (vFG, (rWG, rWU)[m]) if m < 2 else (vFD, rWD)
        def f_lds(m, i): return (L_GU + m * 32768 if m < 2 else L_DN) + i * 1024
        def ffn_reg(n):
            for _ in range(n):
                m, i = fq.pop(0)
                for back in range(2):
                    v, r = f_src(m, i, back)
                    self.bl(big + 8 * len(freg) + 4 * back, 4, v, r, T0, 0, o.get('ntffn', 'nt'), 'ffn')
                freg.append((m, i))
        def ffn_dma(n, T0=T0):
            for _ in range(n):
                m, i = fq.pop(0)
                if o.get('nofd'): continue
                v, r = f_src(m, i, 0, T0)
                S('m0', 'w1k*4 + q', q=f_lds(m, i))
                self.dma(v, r, T0, 0, o.get('ntffn', 'nt'), 'gu' if m < 2 else 'dn')
        S(sWB, '(rot*4 + w)*16384'); S(sWO2, '(j >> 4)*1048576 + cb*128'); S(sW1K, 'w*1024')
        def wo_dma(it, back=0, T0=T0):
            S(T0, '((wb + q) & 0xfffff) + (wo2 ^ h)', q=(8 * it - 4 * back) * 16384, h=(it >> 3) << 20)
            S('m0', 'w1k + q', q=WO_H0 + it * 8192 - 4096 * back)
            self.dma(vWo, rWO, T0, 0, '', 'wo')
        self.inbox(0, 2, work=lambda: w_next(wb[5]), pipe=o.get('pipeB', 0))
        assert len(wq) % 3 == 0 and 30 <= len(wq) <= (45, 36, 36, 42)[o.get('wxor', 1)]
        NPU = 16 - len(wq) // 3
        vm.wait(('W', (0, 2, 3, 1)[o.get('wxor', 1)]))
        a('s_barrier')
        self.stamp('hok')
        a(f"""s_cmp_ge_u32 s{sWAVE}, 4
        s_cbranch_scc1 L_HELP
        s_setprio 2""")
        q_hok = list(vm.q)
        if 'pad' in o:
            a('.p2align 6')
            for _ in range(o['pad']): a('s_nop 0')
        def a_load(sg):
            if sg % 4 == 0: S(T3, '((u0 + n) & q)*16384 + T2', n=sg // 4, q=o.get('amask', 15))
            self.bl(Ar + 4 * (sg % AD), 4, vL16, rWS, T3, (sg % 4) * 1024, o.get('amod', 'sc1'), ('A', sg))
        CORD = [(1, 2), (1, 3), (1, 0), (1, 1)] + [(t, ct) for t in (0, 2) for ct in range(4)]
        WEV = o.get('wev', 2); NB = LOOK + 1
        def b_read(n, q):
            st_, c = divmod(n, 12); t, ct = CORD[c]
            slot = (st_ >> 1) % 6
            off = (slot & 1) * SLOT + t * SEC + (st_ & 1) * 4160 + (ct & 1) * 32 + q * 512
            self.tr(Br + 4 * (n % NB) + 2 * q, vB + 2 * (slot >> 1) + (ct >> 1), off, ('B', n))
        nxt = 0
        def a_more(lim):
            nonlocal nxt
            while nxt < min(lim, 64): a_load(nxt); nxt += 1
        a_more(2)
        for n in range(LOOK):
            for q in range(2): b_read(n, q)
        a_more(o.get('A0', 4))
        b14 = False
        for n in range(384):
            st_, c = divmod(n, 12); t, ct = CORD[c]
            if n % WEV == 0: lg.wait(('B', min(n + WEV - 1, 383)))
            for th in range(2):
                if c == 0: vm.wait(('A', 2 * st_ + th))
                d = accs + 32 * t + 16 * (ct >> 1) + 8 * (ct & 1) + 4 * th
                a(f'v_mfma_f32_16x16x32_bf16 {vr(d, 4)}, {vr(Br + 4*(n % NB), 4)}, {vr(Ar + 4*((2*st_ + th) % AD), 4)}, ' + ('0' if st_ == 0 else vr(d, 4)))
                if n + LOOK < 384:
                    if th == 0 and (n + LOOK) % 24 == 0 and (n + LOOK) // 24 <= LASTB: a('s_barrier')
                    b_read(n + LOOK, th)
            if c in o.get('aat', (0, 3, 6, 9)): a_more(min(nxt + 1, 2 * st_ + AD))
            if nxt == 64 and not b14 and (n + LOOK) // 24 >= LASTB and (n + LOOK) % 24:
                b14 = True; a('s_barrier')
        self.stamp('gemm1')
        aq, ak, av = accs, accs + 32, accs + 64
        def cvt8(d, s_, swap=True):
            for c in range(2):
                for th in range(2):
                    for ip in range(2): a(f'v_cvt_pk_bf16_f32 v{d + 4*c + 2*th + ip}, v{s_ + 8*c + 4*th + 2*ip}, v{s_ + 8*c + 4*th + 2*ip + 1}')
            if swap:
                for c in range(2):
                    for ip in range(2): a(f'v_permlane16_swap_b32 v{d + 4*c + ip}, v{d + 4*c + 2 + ip}')
        def put8(addr, d, off, oc_, ot):
            for c in range(2):
                for th in range(2): self.dw('ds_write_b64', addr, d + 4 * c + 2 * th, 2, off + c * oc_ + th * ot)
        cvt8(vv, ak + 16, False)
        put8(vXW, vv, 0, 1024, 256)
        cvt8(fr, ak)
        self.barrier()
        a('s_setprio 0')
        pp = ak; ee = ak + 16
        def phi_logits(src):
            a(f'v_mfma_f32_32x32x16_bf16 {vr(pp, 16)}, {vr(wphi, 4)}, {vr(src, 4)}, 0')
            a(f'v_mfma_f32_32x32x16_bf16 {vr(pp, 16)}, {vr(wphi + 4, 4)}, {vr(src + 4, 4)}, {vr(pp, 16)}')
        phi_logits(fr)
        for h in range(2):
            cvt8(vv if h == 0 else vq, av + 16 * h, False)
            put8(vVW, vv if h == 0 else vq, h * 8192, 4096, 512)
        cvt8(fr, aq + 16, False)
        put8(vXW, fr, 2048, 1024, 256)
        cvt8(vq, aq)
        a('s_branch L_JOIN')
        a('L_HELP:')
        vm.q = [('W', 1)] * len(q_hok) if o.get('wxor', 1) == 1 else list(q_hok); lg.reset()
        m2w = accs; m2c = accs + 32; g4 = accs + 48
        def w_unit(n):
            for wexpr in ('w - 4', 'w'):
                w_base(n, wexpr)
                for t in range(3): w_slot(n, t)
        for n in range(NPU, 6): w_unit(n)
        S(T0, '((x & 3)*4 + w - 4)*128')
        va(vCo, [(3, 3, 16)], T0)
        va(vWM, [(3, 3, 8 * 12288), (0, 3, 16)])
        S(T4, 'T0*6144 + (j*2 + (x >> 2))*128 + 4096')
        a(f'global_load_dwordx4 {vr(m2c + 8, 4)}, v{vCo}, {sr(pC, 2)}'); vm.issue('m2c')
        m2l = list(range(8)); wol = [9, 10, 11, 12]; pwl = list(range(1, 8)); sil = list(range(8))
        m2ops = self.gemv_ops([m2w + 4 * i for i in range(8)], [m2c + i for i in range(8)], acc, vT, vT + 1, False)
        m2pos = 0
        def act(op, k):
            nonlocal m2pos
            kind, n = op[0], int(op[1:] or 1)
            if kind == 'm':
                for _ in range(2 * n):
                    i = m2l.pop(0)
                    self.bl(m2w + 4 * i, 4, vWM, rWM, T4, 0, o.get('ntm2', 'nt'), ('m2', i))
                    if m2l: S(T4, 'T4 + 12288')
            elif kind == 'f': ffn_reg(n)
            elif kind == 'o':
                assert k >= 13
                for _ in range(n):
                    it = wol.pop(0); wo_dma(it, 1); wo_dma(it)
            elif kind == 'p':
                a('s_waitcnt lgkmcnt(0)')
                for q in range(n):
                    b = pwl.pop(0)
                    a(f's_load_dword s{sPL + 2*q}, {sr(rWS, 2)}, s{sINB} offset:{b * 512} glc')
                    a(f's_load_dword s{sPL + 2*q + 1}, {sr(rWS, 2)}, s{sINB} offset:{b * 512 - 256} glc')
            elif kind == 'q':
                S(T0, 'fs*8192 + (w - 4)*256 + HGR')
                a('s_waitcnt lgkmcnt(0)')
                for q in range(4): a(f's_load_dword s{sPL + q}, {sr(rWS, 2)}, s{T0} offset:{q * 2048 + 1024 + 252} glc')
            elif kind == 'z':
                for i in range(4): a(f'v_mov_b32 v{g4+i}, -1')
                if n == 1:
                    for we in ('w - 4', 'w'):
                        S(T0, f'(((r1*4 + (w & 3))*16 + hp)*2 + (({we}) >> 2))*2048 + OF')
                        for q in range(2): self.bs(g4, 4, vL16, rWS, T0, 1024 * q, 'sc1', 'pzo')
                else:
                    for we in ('w - 4', 'w'):
                        S(T0, f'((hp*8 + {we})*32 + r1)*1024 + KVP'); S(T1, 'T0 + 16384')
                        self.bs(g4, 4, vL16, rWS, T0, 0, 'sc1', 'pz'); self.bs(g4, 4, vL16, rWS, T1, 0, 'sc1', 'pz')
                    S(T0, '((hp*8 + w - 4)*16 + r1)*64 + ZP')
                    va(vT + 2, [(0, 2, 16), (2, 1, 4096)])
                    a('s_mov_b64 exec, 0xff')
                    self.bs(g4, 4, vT + 2, rWS, T0, 0, 'sc1', 'pz')
                    a('s_mov_b64 exec, -1')
            elif kind == 'h':
                S(T0, '(fs*4 + kq)*2048 + (w & 1)*1024 + HGR'); S(T1, '(rt*16 + cb)*2048 + (w & 1)*1024 + STAT')
                if TL: a(f's_bitcmp1_b32 s{sWAVE}, 1'); a(f's_cselect_b32 s{T0}, s{T1}, s{T0}')
                self.bl(m2c + 12, 4, vL16, rWS, T0, 0, '')
            elif kind == 's':
                vm.wait('m2c')
                for _ in range(n):
                    i = sil.pop(0)
                    a(f'v_and_b32 v{m2c+i}, s{sMASK}, v{m2c+8+i//2}' if i & 1 else f'v_lshlrev_b32 v{m2c+i}, 16, v{m2c+8+i//2}')
                    self.silu(m2c + i, vT + (i & 1))
            elif kind == 'g':
                assert not sil
                for _ in range(n):
                    vm.wait(('m2', m2pos // 16))
                    for s_ in m2ops[m2pos:m2pos + 16]: a(s_)
                    m2pos += 16
            elif kind == 'r':
                assert m2pos == 128
                for s_ in m2ops[128:]: a(s_)
                self.dw('ds_write_b32', vGA, acc, 1, L_M2 - SCR)
                lg.wait_all()
            elif kind == 'P':
                a(f"""s_cmp_lg_u32 s{sWAVE}, 4
                s_cbranch_scc1 L_M2F
                ds_read_b128 {vr(acc, 4)}, v{vL32S} offset:{L_M2 - SCR}""")
                S(T0, '((j*2 + (x >> 2))*4 + (x & 3))*512 + MODP2')
                a(f"""s_waitcnt lgkmcnt(0)
                v_add_f32 v{acc}, v{acc}, v{acc+1}
                v_add_f32 v{acc+2}, v{acc+2}, v{acc+3}
                v_mov_b32 v{acc+1}, s{sTAG}
                v_add_f32 v{acc}, v{acc}, v{acc+2}""")
                self.bs(acc, 2, vL8, rWS, T0, 0, 'sc1', count=False)
                a('L_M2F:')
            else: raise ValueError(op)
        sched = {int(k): v.split() for k, v in o['sched'].items()}
        for op in sched.get(0, []): act(op, 0)
        for k in range(1, LASTB + 1):
            for kk in (range(k, 16) if k == LASTB else [k + 1 if k < 3 and o.get('wxor', 1) == 3 else k]): vm.wait(('W', kk))
            if o.get('ust'): self.stamp(f'w{k}')
            a('s_barrier')
            if o.get('ust'): self.stamp(f'u{k}')
            ops = sched.get(k, [])
            if 6 <= k + 4 < 16:
                pre = [op[1:] for op in ops if op[0] == '<']
                for op in pre: act(op, k)
                if not o.get('now2'): w_unit(k + 4)
            for op in ops:
                if op[0] != '<': act(op, k)
        if o.get('b14', 1):
            assert LASTB == 13 and AD <= 12
            a('s_barrier')
            for op in sched.get(14, []): act(op, 14)
        self.barrier()
        for q in range(2): self.r128(fr + 4 * q, vXF, q * 1024)
        lg.wait_all()
        phi_logits(fr)
        for op in sched.get(15, []): act(op, 15)
        assert (not m2l or o.get('nom2')) and not wol
        assert 8 * len(freg) <= 76
        a('L_JOIN:')
        pzq = list(vm.q)
        vm.reset(); lg.q = [None]
        V.release(vXW); V.release(vVW); V.release(vB, 6); V.release(vWd); V.release(vWM); V.release(vCo); V.release(vGA); V.release(vL32S); V.release(acc, 8)
        V.release(big + 8 * len(freg), 76 - 8 * len(freg))
        ph = aq; fx = aq + 16
        vPA = V.alloc(); vPB = V.alloc()
        self.softmax_pm(pp, ee, ph, vT)
        for fb in range(4): self.dw('ds_write_b128', vPW, ph + 4 * fb, 4, fb * 4096)
        S(T0, 'w*4096 + L_PHK'); a(f'v_add_u32 v{vPA}, s{T0}, v{vL8}')
        S(T0, 'kh*8192 + L_V'); a(f'v_add_u32 v{vPB}, s{T0}, v{vL8}')
        ones = fr
        for i in range(4): a(f'v_mov_b32 v{ones+i}, 0x3f803f80')
        S(T0, '((hp*8 + w)*32 + r1)*1024 + KVP'); S(T2, 'T0 + 16384')
        S(T3, '(hp*8 + w)*1024 + ZP'); S(T1, 'r1*64 + T3')
        self.stamp('ksm')
        self.barrier()
        self.stamp('phik')
        fragA = [ee + 4 * i for i in range(4)]
        fragB = [av + 4 * i for i in range(8)]
        kvd = vv; zd = fr + 4
        def kvm(u):
            lg.wait(('kv', u))
            for db in range(2):
                a(f'v_mfma_f32_16x16x32_bf16 {vr(kvd + 4*db, 4)}, {vr(fragA[u], 4)}, {vr(fragB[2*u+db], 4)}, ' + ('0' if u == 0 else vr(kvd + 4*db, 4)))
            a(f'v_mfma_f32_16x16x32_bf16 {vr(zd, 4)}, {vr(fragA[u], 4)}, {vr(ones, 4)}, ' + ('0' if u == 0 else vr(zd, 4)))
        for ts in range(4):
            self.tr(fragA[ts], vPA, ts * 1024, ('kv', ts)); self.tr(fragA[ts] + 2, vPA, ts * 1024 + 512, ('kv', ts))
            for db in range(2):
                self.tr(fragB[2*ts+db], vPB, db * 4096 + ts * 1024, ('kv', ts)); self.tr(fragB[2*ts+db] + 2, vPB, db * 4096 + ts * 1024 + 512, ('kv', ts))
            if ts >= 2: kvm(ts - 2)
        va(vPW, [(0, 3, 32 * 4096), (3, 1, 4 * 4096)])
        S(T4, '(wg & 0x1b)*4096 + (r1 >> 1)*64 + (r1 & 1)*4 + INB + 512')
        kvm(2); kvm(3)
        a(f"""s_cmp_lt_u32 s{sWAVE}, 4
        s_cbranch_scc1 L_NOQX
        ds_read_b128 {vr(vq, 4)}, v{vXF} offset:2048
        ds_read_b128 {vr(vq + 4, 4)}, v{vXF} offset:3072
        L_NOQX:""")
        if 'pz' in pzq: a(f's_waitcnt vmcnt({pzq[::-1].index("pz")})')
        self.bs(kvd, 4, vL16, rWS, T0, 0, 'sc1', 'kvs')
        self.bs(kvd + 4, 4, vL16, rWS, T2, 0, 'sc1', 'kvs')
        a('s_mov_b32 exec_lo, 0x00010001')
        a('s_mov_b32 exec_hi, 0x00010001')
        self.bs(zd, 4, vL, rWS, T1, 0, 'sc1', 'kvs')
        a('s_mov_b64 exec, -1')
        lg.wait_all()
        PZ = o.get('poison', (0, 0))
        if PZ[0]:
            a('s_barrier')
            self.push(vPW, T4, 16, vPB, 'L_PC')
            self.stamp('kvpub')
        phi_logits(vq)
        self.stamp('kvst')
        wl = [2, 3, 4, 5, 6, 7, 8, 13, 14, 15, 0, 1]
        kp = av; zz = av + 16; g4 = vv
        m2q = fx; wr1 = fx + 8
        vKP = V.alloc()
        va(vKP, [(3, 3, 1024), (0, 3, 16)])
        va(vXF, [(0, 3, 16), (5, 1, 8)])
        wo1 = lambda: wo_dma(wl.pop(0), 0, T6)
        keep = a.items; a.items = []
        self.softmax_pm(pp, ee, ph, vv)
        qsm = a.items; a.items = keep
        qcost = [2 if it[1].is_trans or 'permlane' in it[1].mn else 1 for it in qsm]
        qtot = sum(qcost); qdone = [0]
        def q_slice(upto):
            while qsm and qdone[0] < qtot * upto / 100:
                a.items.append(qsm.pop(0)); qdone[0] += qcost.pop(0)
        qs = o.get('qs', (35, 85, 100))
        if not PZ[0]:
            q_slice(qs[0])
            vm.wait('kvs')
            a('s_barrier')
            self.push(vPW, T4, 16, vPB, 'L_PC')
            self.stamp('kvpub')
        S(T0, '(hp*16 + r1)*16384 + w*128 + KVP')
        S(T2, '(hp*16 + r1)*1024 + w*128 + KIN'); S(T4, 'T4 + 6*512')
        self.inbox(1, 2, work=lambda: (self.weave(lambda: q_slice(qs[1]), [wo1] * o['wowin'][0]), self.stamp('cw')))
        a('s_barrier')
        self.stamp('kvok')
        S(T5, 'T0 + 8192')
        ld_kp = lambda: (self.bl(kp, 4, vKP, rWS, T0, 0, 'sc1', 'kp'), self.bl(kp + 4, 4, vKP, rWS, T5, 0, 'sc1', 'kp'))
        ld_z = lambda: self.bl(zz, 4, vL16, rWS, T3, 0, 'sc1', 'z')
        ld_kp(); ld_z()
        S(T1, 'w*32 + L_ZF'); va(vT + 2, [(0, 2, 8), (5, 1, 4)], T1)
        S(T1, 'w*1024 + L_KVF'); va(vT + 1, [(0, 4, 16), (5, 1, 512), (4, 1, 8)], T1)
        S(T1, 'kh*128 + L_ZF'); va(vT + 3, [(5, 1, 16)], T1)
        S(T1, 'kh*4096 + L_KVF'); a(f'v_add_u32 v{vPA}, s{T1}, v{vL16}')
        def red4(r, ctls):
            for i in range(2): a(f'v_permlane32_swap_b32 v{r+i}, v{r+2+i}')
            self.pk('add', r, r, r + 2)
            for ctl in ctls:
                for i in range(2): self.dpp('v_add_f32', r + i, r + i, r + i, ctl)
            for i in range(2): a(f'v_mov_b32 v{r+2+i}, v{r+i}')
            for i in range(2): a(f'v_permlane16_swap_b32 v{r+i}, v{r+2+i}')
            self.pk('add', r, r, r + 2)
            a(f'v_cvt_pk_bf16_f32 v{r}, v{r}, v{r+1}')
        self.weave(lambda: q_slice(qs[2]), [wo1] * o['wowin'][1])
        if PZ[0]: self.finish_load('kp', ld_kp, ('nan', kp, kp + 4), vT)
        else: vm.wait('kp')
        self.pk('add', kp, kp, kp + 4); self.pk('add', kp + 2, kp + 2, kp + 6)
        red4(kp, ['row_ror:8'])
        a(f"""v_mov_b32 v{kp+1}, s{sTAG}
        s_mov_b32 exec_lo, 0xff
        s_mov_b32 exec_hi, 0xff""")
        self.bs(kp, 2, vXF, rWS, T2, 0, 'sc1')
        a('s_mov_b64 exec, -1')
        a('s_barrier')
        self.push(vPW, T4, 16, vPB, 'L_PC2')
        self.stamp('c2pub')
        kf = av; zf = av + 16; num = pp; den = ee
        if PZ[0]: self.finish_load('z', ld_z, ('nan', zz), vT)
        else: vm.wait('z')
        self.weave(lambda: red4(zz, ['row_ror:4', 'row_ror:8']), [wo1] * o['wowin'][2])
        self.dw('ds_write_b32', vT + 2, zz, 1)
        q_slice(100)
        self.barrier()
        for fb in range(4): self.r128(zf + 4 * fb, vT + 3, fb * 32)
        lg.wait_all()
        S(T0, '(hp*8 + w)*2048 + KIN')
        k2 = av + 8
        def den_work():
            for fb in range(4):
                a(f'v_mfma_f32_32x32x16_bf16 {vr(den, 16)}, {vr(zf + 4*fb, 4)}, {vr(ph + 4*fb, 4)}, ' + ('0' if fb == 0 else vr(den, 16)))
            self.round1(den)
            a(f'v_add_f32 v{den}, 0x358637bd, v{den}')
            self.round1(den)
            a(f'v_rcp_f32 v{den}, v{den}')
            self.stamp('c2w')
        self.inbox(7, 2, work=den_work)
        self.stamp('c2h')
        self.poll(lambda: [self.bl(k2 + 4 * q, 4, vL16, rWS, T0, q * 1024, 'sc1') for q in range(2)], [k2 + 1, k2 + 3, k2 + 5, k2 + 7], vT)
        for db in range(2):
            a(f'ds_write2_b32 v{vT+1}, v{k2+4*db}, v{k2+4*db+2} offset0:{64*db} offset1:{64*db+1}'); lg.issue()
        self.barrier()
        self.stamp('kvred')
        for fb in range(4): self.r128(kf + 4 * fb, vPA, fb * 1024, ('kf', fb))
        vM2 = V.alloc()
        va(vM2, [(0, 5, 16), (5, 1, 512)])
        S(T5, '((w & 3)*16 + cb)*2048 + MODP2')
        ld_m2 = lambda: [self.bl(m2q + 4 * q, 4, vM2, rWS, T5, q * 1024, 'sc1', 'm2q') for q in range(2)]
        S(T0, 'cb*128'); va(vT, [(0, 5, 4)], T0)
        a(f'global_load_dword v{wr1}, v{vT}, {sr(pWR, 2)}'); vm.issue('m2q')
        self.bl(wr1 + 1, 1, vZ, rWS, '0', MARK, 'sc1', 'm2q')
        ld_m2()
        S(T0, '(((r1*4 + (w & 3))*16 + hp)*2 + kh)*2048 + OF')
        va(vT + 4, [(0, 4, 16), (4, 1, 1024), (5, 1, 256)])
        for fb in range(4):
            lg.wait(('kf', fb))
            a(f'v_mfma_f32_32x32x16_bf16 {vr(num, 16)}, {vr(kf + 4*fb, 4)}, {vr(ph + 4*fb, 4)}, ' + ('0' if fb == 0 else vr(num, 16)))
        for h in range(2):
            self.round_list([num + i for i in range(8 * h, 8 * h + 8)])
            for i in range(8 * h, 8 * h + 8, 2): self.pk('mul', num + i, num + i, den, bc=(1,))
            for i in range(4 * h, 4 * h + 4): a(f'v_cvt_pk_bf16_f32 v{vq+i}, v{num+2*i}, v{num+2*i+1}')
            self.bs(vq + 4 * h, 4, vT + 4, rWS, T0, 512 * h, 'sc1', 'os')
        self.stamp('ost')
        for r, n in ((fr, 8), (vv, 8), (vPW, 1), (vXF, 1), (vPA, 1), (vPB, 1), (vKP, 1), (accs, 16), (accs + 32, 64), (wphi, 8)):
            V.release(r, n)
        assert GS == 0
        vG16 = vL16
        vBa = V.alloc(4); xf = V.alloc(16)
        S(T4, 'kh*(65536 + 64) + WO_H0')
        va(vBa, [(5, 1, 2048), (4, 1, 512), (2, 2, 128), (3, 1, 64), (1, 1, 32), (4, 1, 16), (0, 1, 8)])
        a(f'v_xor_b32 v{vBa}, s{T4}, v{vBa}')
        for q, x_ in ((1, 16), (2, 64), (3, 80)): a(f'v_xor_b32 v{vBa+q}, {x_}, v{vBa}')
        assert WO_H1 == WO_H0 + 65536
        va(vT + 1, LCB)
        S(T2, ('((r1 & 1)*128 + (r1 >> 1))*4096' if TL else '((r1 >> 2)*2 + (r1 & 3)*64)*4096') + ' + (hp >> 1)*64 + (hp & 1)*4 + INB + 1024')
        for i in range(8): self.unpack(xf + 2 * i, xf + 2 * i + 1, xr + i)
        S(T6, '(gtb*2 + kf)*32768 + OF')
        vm.wait('os')
        a('s_barrier')
        self.push(vT + 1, T2, 16, vT + 2, 'L_PD')
        self.stamp('opub')
        V.release(vq, 8)
        while wl: wo_dma(wl.pop(0))
        V.release(vWo)
        self.finish_load('m2q', ld_m2, [m2q + 1, m2q + 3, m2q + 5, m2q + 7], vT)
        q0, q1, q2, q3 = m2q, m2q + 1, m2q + 2, m2q + 3
        a(f'v_cmp_eq_u32 vcc, s{sTAG}, v{wr1+1}')
        a(f's_cmp_eq_u32 vcc_lo, 0')
        a(f's_cselect_b32 s{sLOC}, {o.get("local", 1)}, 0')
        S(T0, '(w & 3)*128 + L_MT'); va(vT, [(0, 5, 4)], T0)
        S(T1, 'w & 3')
        a(f"""v_add_f32 v{q0}, v{m2q}, v{m2q+4}
        v_add_f32 v{q1}, v{m2q+2}, v{m2q+6}
        v_add_f32 v{q2}, v{m2q}, v{m2q+4}""".replace(f'v_add_f32 v{q2}, v{m2q}, v{m2q+4}', f'v_mov_b32 v{q2}, v{q0}'))
        a(f"""v_mov_b32 v{q3}, v{q1}
        s_cmp_eq_u32 s{T1}, 2
        s_cselect_b32 s{T2}, 1.0, 0
        v_permlane32_swap_b32 v{q0}, v{q2}
        v_permlane32_swap_b32 v{q1}, v{q3}""")
        self.pk('add', q0, q0, q2)
        self.round2(q0, q1)
        a(f"""v_add_f32 v{q0}, s{T2}, v{q0}
        v_add_f32 v{q1}, s{T2}, v{q1}
        v_cvt_pk_bf16_f32 v{q2}, v{q0}, v{q1}""")
        self.dw('ds_write_b32', vT, q2, 1)
        a('s_cbranch_scc0 L_NOG')
        g0, g1, gh, gl = m2q + 4, m2q + 5, m2q + 6, m2q + 7
        self.unpack(q0, q1, q2); self.unpack(g0, g1, wr1)
        self.pk('mul', g0, g0, q0)
        a(f'v_cvt_pk_bf16_f32 v{gh}, v{g0}, v{g1}')
        self.unpack(q0, q1, gh)
        self.pk('add', q0, g0, q0, neg=(1,))
        a(f"""v_cvt_pk_bf16_f32 v{gl}, v{q0}, v{q1}
        v_add_f32 v{q0}, v{g0}, v{g1}
        ds_write2_b32 v{vT}, v{gh}, v{gl} offset0:64 offset1:96
        ds_write_b32 v{vT}, v{wr1} offset:512""")
        for ctl in ('quad_perm:[1,0,3,2]', 'quad_perm:[2,3,0,1]', 'row_half_mirror', 'row_ror:8'): self.dpp('v_add_f32', q0, q0, q0, ctl)
        S(T0, '(rt*16 + cb)*8 + GR')
        a(f"""v_mov_b32 v{q2}, v{q0}
        v_mov_b32 v{q1}, s{sTAG}
        v_permlane16_swap_b32 v{q0}, v{q2}
        v_add_f32 v{q0}, v{q0}, v{q2}
        s_mov_b64 exec, 1""")
        self.bs(q0, 2, vZ, rWS, T0, 0, 'sc1', count=False)
        a("""s_mov_b64 exec, -1
        L_NOG:""")
        V.release(vM2)
        S(T0, 'kh*64 + L_MT'); va(vT + 3, [(5, 1, 32)], T0); va(vT + 4, [(0, 3, 4)]); a(f'v_add_u32 v{vT+4}, v{vT+4}, v{vT+3}')
        self.barrier()
        gaf = V.alloc(16); gp = V.alloc(16); tb4 = V.alloc(4); gr = V.alloc(2); vGR = V.alloc()
        for q in range(2):
            self.r128(fx + 4 * q, vT + 3, 16 * q)
            for k in range(2): self.r128(gp + 8 * k + 4 * q, vT + 3, (4 + k) * 128 + 16 * q)
        for q, t in enumerate((1, 2, 3, 6)): self.dr('ds_read_b32', tb4 + q, 1, vT + 4, t * 128)
        lg.wait_all()
        def d_work():
            for i in range(8): self.unpack(gaf + 2 * i, gaf + 2 * i + 1, fx + i)
            va(vGR, [(0, 4, 8)])
            if o.get('stouch', TL):
                S(T2, '(rt*16 + cb)*2048 + w*256 + STAT')
                a(f'v_lshlrev_b32 v{gr}, 7, v{vL}')
                a('s_mov_b64 exec, 3')
                self.bl(gr, 1, gr, rWS, T2, 0, '')
                a('s_mov_b64 exec, -1')
            vm.wait_all()
            self.stamp('dw')
        AD2 = o['AD2']
        LK2 = o.get('LK2', 4); NB2 = LK2 + 1
        accA = V.alloc(16); accB = V.alloc(16); Ar = V.alloc(4 * AD2); Br = V.alloc(4 * NB2)
        def b2_read(n, q):
            st_, c = divmod(n, 4)
            self.tr(Br + 4 * (n % NB2) + 2 * q, vBa + (c ^ 2), st_ * 4096 + q * 1024, ('B', n))
        def a2_load(s):
            if s % 2 == 0: S(T7, '((rot + n) & 15)*2048 + T6', n=s // 2)
            self.bl(Ar + 4 * (s % AD2), 4, vL16, rWS, T7, (s % 2) * 1024, 'sc1', ('A', s))
        self.inbox(2, 2, work=d_work)
        V.release(fx, 16)
        a('s_barrier')
        self.stamp('ook')
        if o.get('prio2', 1):
            a(f"""s_cmp_lt_u32 s{sWAVE}, 4
            s_cbranch_scc1 L_P2
            s_setprio {o.get('prio2', 1)}
            L_P2:""")
        nx2 = 0
        def a2_more(lim):
            nonlocal nx2
            while nx2 < min(lim, 32):
                a2_load(nx2); nx2 += 1
                if nx2 == 32: ld_gr()
        S(T5, 'rt*128 + GR')
        ld_gr = lambda: self.bl(gr, 2, vGR, rWS, T5, 0, 'sc1', 'gr')
        a2_more(2)
        for n in range(LK2):
            for q in range(2): b2_read(n, q)
        a2_more(o.get('A20', 4))
        for n in range(64):
            st_, c = divmod(n, 4)
            lg.wait(('B', n))
            for th in range(2):
                if c == 0: vm.wait(('A', 2 * st_ + th))
                d = (accB, accA)[c >> 1] + 8 * (c & 1) + 4 * th
                a(f'v_mfma_f32_16x16x32_bf16 {vr(d, 4)}, {vr(Br + 4*(n % NB2), 4)}, {vr(Ar + 4*((2*st_ + th) % AD2), 4)}, ' + ('0' if st_ == 0 else vr(d, 4)))
                if n + LK2 < 64: b2_read(n + LK2, th)
            if n == o.get('prio2n', 16): a('s_setprio 0')
            if c in o.get('a2at', (0, 1)): a2_more(min(nx2 + 1, 2 * st_ + AD2))
            if c == 3 and AD2 == 4: a2_more(2 * st_ + 6)
        self.stamp('gemm2')
        if o.get('prio2', 1): a('s_setprio 0')
        S(T0, 'w*4096')
        a(f"""v_add_u32 v{vT}, s{T0}, v{vG16}
        v_xor_b32 v{vT+1}, 0x4000, v{vT}""")
        for q in range(4): self.dw('ds_write_b128', vT, accB + 4 * q, 4, L_EXCH - GS + q * 1024)
        S(T0, 'kh*2048 + (w & 3)*512 + L_SP'); va(vT + 2, [(0, 5, 16), (5, 1, 8)], T0)
        S(T0, 'kh*64 + L_TB'); va(vT + 3, [(0, 3, 4), (5, 1, 32)], T0)
        vSG = V.alloc()
        S(T6, 'rt*32768 + w*256 + STAT'); va(vSG, [(0, 4, 16), (4, 2, 2048)])
        sm = Br; one = Br + 4
        a(f'v_mov_b32 v{one}, 0x3f803f80')
        fd = list(o['fdma']); assert sum(fd) == len(fq)
        self.barrier()
        for q in range(4): self.r128(accB + 4 * q, vT + 1, L_EXCH - GS + q * 1024, ('ex', q))
        ffn_dma(fd[0], T1)
        for h in range(2):
            for q in (2 * h, 2 * h + 1):
                lg.wait(('ex', q))
                self.pk('add', accA + 4 * q, accA + 4 * q, accB + 4 * q); self.pk('add', accA + 4 * q + 2, accA + 4 * q + 2, accB + 4 * q + 2)
            for i in range(4): a(f'v_permlane16_swap_b32 v{accA + 8*h + i}, v{accA + 8*h + 4 + i}')
            rg = range(8 * h, 8 * h + 8)
            self.round_list([accA + i for i in rg])
            for i in range(8 * h, 8 * h + 8, 2): self.pk('mul', accA + i, accA + i, gaf + i)
            self.round_list([accA + i for i in rg])
            for i in range(8 * h, 8 * h + 8, 2): self.pk('add', accA + i, accA + i, xf + i)
            for i in range(4 * h, 4 * h + 4): a(f'v_cvt_pk_bf16_f32 v{xr+i}, v{accA+2*i}, v{accA+2*i+1}')
        for i in range(8):
            for d, b in ((sm, one), (sm + 2, xr + i), (sm + 1, gp + i), (sm + 3, gp + 8 + i)):
                a(f'v_dot2_f32_bf16 v{d}, v{xr+i}, v{b}, ' + ('0' if i == 0 else f'v{d}'))
        a(f"""v_permlane32_swap_b32 v{sm}, v{sm+2}
        v_permlane32_swap_b32 v{sm+1}, v{sm+3}""")
        self.pk('add', sm, sm, sm + 2)
        self.dw('ds_write_b64', vT + 2, sm, 2)
        for q in range(4): self.dw('ds_write_b32', vT + 3, tb4 + q, 1, 128 * q)
        a(f'v_add_u32 v{vT}, {L_SP}, v{vL16}')
        va(vT + 1, LCB)
        S(T0, '(rt*16 + cb)*2048 + STAT')
        S(T3, ('((rt & 1)*128 + (rt >> 1))*4096' if TL else '((rt & 3)*64 + (rt >> 2)*2)*4096') + ' + (cb >> 1)*64 + (cb & 1)*4 + INB + 1536')
        self.barrier()
        self.stamp('x1st')
        a(f"""s_cmp_lg_u32 s{sWAVE}, 0
        s_cbranch_scc1 L_PE""")
        for q in range(4): a(f'ds_read_b128 {vr(accB + 4*q, 4)}, v{vT} offset:{(q & 1) * 2048 + (q >> 1) * 1024}')
        for h in range(2):
            b = accB + 8 * h
            a(f's_waitcnt lgkmcnt({2 - 2*h})')
            self.pk('add', b, b, b + 4); self.pk('add', b + 2, b + 2, b + 6)
            a(f"""v_add_f32 v{b+1}, v{b+1}, v{b+3}
            v_mov_b32 v{b+3}, s{sTAG}""")
        if TL:
            self.bs2([(accB + 8 * h, 4, vL16, T0, 1024 * h) for h in range(2)])
            a('s_cbranch_scc1 L_PE')
        else:
            for h in range(2): self.bs(accB + 8 * h, 4, vL16, rWS, T0, 1024 * h, 'sc1', count=False)
        a('s_mov_b64 exec, 0xffff')
        self.bs(accB + 3, 1, vT + 1, rWS, T3, 0, 'sc1', count=False)
        a("""s_mov_b64 exec, -1
        L_PE:""")
        self.stamp('x1pub')
        V.release(accA, 16); V.release(accB, 16); V.release(Ar, 4 * AD2); V.release(Br, 4 * NB2); V.release(vBa, 4); V.release(xf, 16); V.release(gaf, 16); V.release(gp, 16)
        x1 = V.alloc(16); hh = V.alloc(16); mf = V.alloc(32); sg = V.alloc(16); op = V.alloc(8)
        st = V.alloc(2); cn = V.alloc(2); vRid = V.alloc(); ck = V.alloc(4); vOT = V.alloc()
        ct = V.alloc(12, 4)
        def e_work():
            S(T3, '(w & 3)*(32*144) + kh*64'); va(vOT, [(0, 5, 144), (5, 1, 32)], T3)
            for q in range(2): self.dw('ds_write_b128', vOT, xr + 4 * q, 4, L_XT + 16 * q)
            a(f'v_add_u32 v{vOT}, {L_OT}, v{vOT}')
            S(T2, '4094 - (rt*8 + w)*32'); va(vRid, [(0, 4, 2)]); a(f'v_sub_u32 v{vRid}, s{T2}, v{vRid}')
            S(T2, 'w*128 + L_ST2'); va(vT + 4, [(0, 4, 8)], T2)
            S(T2, '(w & 3)*256 + L_ST2'); va(vT + 6, [(0, 5, 8)], T2)
            va(vT + 7, [(0, 3, 8)], None, L_K1)
            self.finish_load('gr', ld_gr, [gr + 1])
            for ctl in ('quad_perm:[1,0,3,2]', 'quad_perm:[2,3,0,1]', 'row_half_mirror', 'row_ror:8'): self.dpp('v_add_f32', gr, gr, gr, ctl)
            a(f"""s_cmp_lg_u32 s{sWAVE}, 1
            s_cbranch_scc1 L_NOCT""")
            va(vT + 1, [(0, 4, 8)], None, L_TB)
            a(f"""ds_read_b64 {vr(ct + 2, 2)}, v{vT+1}
            ds_read_b64 {vr(ct + 6, 2)}, v{vT+1} offset:128
            ds_read_b64 {vr(ct + 8, 2)}, v{vT+1} offset:384
            s_waitcnt lgkmcnt(0)""")
            for b in (ct, ct + 4):
                self.unpack(b, b + 1, b + 2); self.unpack(b + 2, b + 3, b + 3)
            a('L_NOCT:')
        def expand(dst, t):
            for i in range(8):
                self.dpp('v_mul_u32_u24', dst + 2 * i, t, cn, f'row_newbcast:{i}')
                self.dpp('v_and_b32', dst + 2 * i + 1, t, cn + 1, f'row_newbcast:{i}')
        def f_pre(part):
            if part == 0:
                a(f"""s_cmp_lt_u32 s{sWAVE}, 4
                s_cbranch_scc1 L_NOST""")
                S(T0, '(w - 4)*4096 + L_GU')
                a(f'v_add_u32 v{vT}, s{T0}, v{vL16}')
                a(f'v_add_u32 v{vT+3}, {L_DN - L_GU}, v{vT}')
                for n, (m, i) in enumerate(freg):
                    for back in range(2):
                        self.dw('ds_write_b128', vT if m < 2 else vT + 3, big + 8 * n + 4 * back, 4, f_lds(m, i) - (L_GU if m < 2 else L_DN) + (1 - back) * 16384)
                a('L_NOST:')
                return
            a(f"""v_mov_b32 v{cn}, 0x10000
            v_mov_b32 v{cn+1}, s{sMASK}""")
            for i in range(8): self.unpack(x1 + 2 * i, x1 + 2 * i + 1, xr + i)
            expand(mf, tb4); expand(mf + 16, tb4 + 1)
        if TL:
            a(f"""s_cmp_lg_u32 s{sLOC}, 0
            s_cbranch_scc1 L_ELOC""")
            self.inbox(3, 2)
            a("""s_barrier
            L_ELOC:""")
        else:
            ffn_dma(fd[1])
            self.inbox(3, 2, work=lambda: (e_work(), f_pre(0)))
            a('s_barrier')
        self.stamp('x1ok')
        def ld_sg():
            for q in range(4):
                S(T0, 'T6 + q', q=q * 8192)
                self.bl(sg + 4 * q, 4, vSG, rWS, T0, 0, 'sc1')
        self.try_load(ld_sg, [sg + 3, sg + 7, sg + 11, sg + 15], vT, e_work if TL else lambda: f_pre(1))
        V.release(vSG)
        self.stamp('x1ld')
        if o.get('htouch', 1):
            S(T2, '(fs*4 + kq)*2048 + w*256 + HGR')
            vDum = V.alloc()
            a(f'v_lshlrev_b32 v{vDum}, 7, v{vL}')
            a('s_mov_b64 exec, 3')
            self.bl(vDum, 1, vDum, rWS, T2, 0, '')
            a('s_mov_b64 exec, -1')
        ffn_dma(fd[2], T2)
        A_, B_, C_, U_ = sg, sg + 1, sg + 2, sg + 3
        self.pk('add', sg, sg, sg + 4); self.pk('add', sg + 8, sg + 8, sg + 12)
        a(f"""v_add_f32 v{C_}, v{C_}, v{sg+6}
        v_add_f32 v{sg+10}, v{sg+10}, v{sg+14}""")
        self.pk('add', sg, sg, sg + 8)
        a(f"""v_add_f32 v{C_}, v{C_}, v{sg+10}
        v_mov_b32 v{U_}, v{B_}
        v_permlane32_swap_b32 v{A_}, v{C_}
        v_permlane32_swap_b32 v{B_}, v{U_}
        v_add_f32 v{A_}, v{A_}, v{C_}
        v_add_f32 v{B_}, v{B_}, v{U_}
        v_permlane16_swap_b32 v{A_}, v{B_}
        v_add_f32 v{U_}, v{A_}, v{B_}
        v_add_f32 v{A_}, v{A_}, v{B_}
        v_permlane16_swap_b32 v{A_}, v{U_}
        v_mul_f32 v{C_}, 0x3a800000, v{A_}
        v_mul_f32 v{A_}, 0x3a800000, v{A_}
        v_permlane32_swap_b32 v{A_}, v{C_}""")
        self.stat_math(A_, C_, st, st + 1)
        S(T0, 'w*8 + L_K1')
        a(f"""v_rcp_f32 v{st+1}, v{st+1}
        v_fma_f32 v{U_}, -v{st}, v{gr}, v{U_}
        v_mov_b32 v{vT+1}, s{T0}
        v_mul_f32 v{U_}, v{U_}, v{st+1}""")
        self.dw('ds_write_b64', vT + 4, st, 2)
        a(f"""s_movk_i32 s{T0}, 0xfff
        v_ashrrev_i32 v{A_}, 31, v{U_}
        v_or_b32 v{A_}, 0x80000000, v{A_}
        v_xor_b32 v{A_}, v{A_}, v{U_}
        v_bfi_b32 v{ck}, s{T0}, v{vRid}, v{A_}""")
        def top2(ctls, first):
            for n, ctl in enumerate(ctls):
                if n == 0 and first:
                    self.dpp('v_min_u32', ck + 1, ck, ck, ctl); self.dpp('v_max_u32', ck, ck, ck, ctl)
                    continue
                self.dpp('v_min_u32', ck + 2, ck, ck, ctl); self.dpp('v_max_u32', ck + 1, ck + 1, ck + 1, ctl); self.dpp('v_max_u32', ck, ck, ck, ctl)
                a(f'v_max_u32 v{ck+1}, v{ck+1}, v{ck+2}')
        top2(('row_ror:8', 'row_ror:4', 'row_ror:2', 'row_ror:1'), True)
        self.dw('ds_write_b64', vT + 1, ck, 2)
        va(vT + 2, [(0, 1, 128 * 4096), (1, 3, 4096)] if TL else [(0, 2, 64 * 4096), (2, 2, 2 * 4096)])
        S(T1, ('cb*32768' if TL else '((cb & 7)*8 + (cb >> 3))*4096') + ' + (rt >> 1)*64 + (rt & 1)*16 + INB + 2560')
        self.barrier()
        self.stamp('ln2')
        self.dr('ds_read_b64', ck, 2, vT + 7, 0, 'k'); self.dr('ds_read_b64', st, 2, vT + 6, 0, 's')
        lg.wait('k')
        top2(('quad_perm:[1,0,3,2]', 'quad_perm:[2,3,0,1]', 'row_half_mirror'), False)
        a(f"""v_or_b32 v{ck+2}, 1, v{ck+1}
        v_mov_b32 v{ck+1}, s{sTAG}
        v_mov_b32 v{ck+3}, s{sTAG}
        s_cmp_lg_u32 s{sWAVE}, 0
        s_cbranch_scc1 L_NOF
        s_mov_b64 exec, 0xffff""")
        self.bs(ck, 4, vT + 2, rWS, T1, 0, 'sc1', count=False)
        a("""s_mov_b64 exec, -1
        L_NOF:""")
        self.stamp('Fpub')
        a(f"""s_cmp_lg_u32 s{sWAVE}, 1
        s_cbranch_scc1 L_NOC
        v_and_b32 v{vT}, 16, v{vL}
        v_cmp_eq_u32 vcc, 0, v{vT}
        v_cndmask_b32 v{vT}, v{ck+2}, v{ck}, vcc
        v_not_b32 v{vT}, v{vT}
        v_bfe_u32 v{vT}, v{vT}, 1, 7
        v_lshlrev_b32 v{vT+2}, 3, v{vT}
        v_mul_u32_u24 v{vT}, 144, v{vT}
        v_add_u32 v{vT+2}, {L_ST2}, v{vT+2}""")
        va(vT + 1, [(0, 4, 8)])
        cx, cs, ch = sg, sg + 4, sg + 8
        a(f"""v_add_u32 v{vT}, v{vT}, v{vT+1}
        ds_read_b64 {vr(cs, 2)}, v{vT+2}
        ds_read_b64 {vr(cx, 2)}, v{vT} offset:{L_XT}""")
        va(vT + 2, [(0, 4, 16), (4, 1, 16384), (5, 1, 4096)])
        va(vT + 3, [(4, 1, 16384)])
        S(T0, 'rt*32768 + cb*256 + CAND'); S(T3, 'rt*32768 + cb*8 + 8192 + CAND')
        a(f"""v_mov_b32 v{cx+3}, s{sTAG}
        s_waitcnt lgkmcnt(0)""")
        self.unpack(ch, ch + 1, cx); self.unpack(ch + 2, ch + 3, cx + 1)
        for i in (0, 2): self.pk('add', ch + i, ch + i, cs, bc=(1,), neg=(1,))
        self.round_list([ch + i for i in range(4)])
        for i in (0, 2): self.pk('mul', ch + i, ch + i, cs + 1, bc=(1,))
        self.round_list([ch + i for i in range(4)])
        for i in (0, 2): self.pk('mul', ch + i, ch + i, ct + 4 + i)
        self.round_list([ch + i for i in range(4)])
        for i in (0, 2): self.pk('add', ch + i, ch + i, ct + i)
        a(f"""v_mov_b32 v{cx+2}, v{cx+1}
        v_mov_b32 v{cx+1}, s{sTAG}
        s_mov_b32 exec_hi, 0
        v_cvt_pk_bf16_f32 v{cx}, v{ch}, v{ch+1}
        v_cvt_pk_bf16_f32 v{cx+2}, v{ch+2}, v{ch+3}
        s_mov_b32 exec_hi, -1
        v_dot2_f32_bf16 v{cs}, v{cx}, v{ct+8}, 0
        v_mov_b32 v{cs+1}, s{sTAG}
        v_dot2_f32_bf16 v{cs}, v{cx+2}, v{ct+9}, v{cs}""")
        self.bs(cx, 4, vT + 2, rWS, T0, 0, 'sc1', count=False)
        for ctl in ('quad_perm:[1,0,3,2]', 'quad_perm:[2,3,0,1]', 'row_half_mirror', 'row_ror:8'): self.dpp('v_add_f32', cs, cs, cs, ctl)
        a('s_mov_b64 exec, 0x10001')
        self.bs(cs, 2, vT + 3, rWS, T3, 0, 'sc1', count=False)
        a("""s_mov_b64 exec, -1
        L_NOC:""")
        V.release(ct, 12)
        def ln2_tile():
            for i in E2: self.pk('add', hh + i, x1 + i, st, bc=(1,), neg=(1,))
            self.round_list([hh + i for i in range(16)])
            for i in E2: self.pk('mul', hh + i, hh + i, st + 1, bc=(1,))
            self.round_list([hh + i for i in range(16)])
            for i in E2: self.pk('mul', hh + i, hh + i, mf + 16 + i)
            self.round_list([hh + i for i in range(16)])
            for i in E2: self.pk('add', hh + i, hh + i, mf + i)
            self.round_list([hh + i for i in range(16)])
        lg.wait('s')
        self.stamp('cand')
        ffn_dma(fd[3])
        uu = V.alloc(16); vGr = V.alloc(); vDr = V.alloc(); vXs = V.alloc()
        def out_calc():
            expand(mf, tb4 + 2)
            for i in E2: self.pk('mul', hh + i, hh + i, mf + i)
            self.round_list([hh + i for i in range(16)])
            for i in E2: self.pk('add', hh + i, hh + i, x1 + i)
            for i in range(8): a(f'v_cvt_pk_bf16_f32 v{op+i}, v{hh+2*i}, v{hh+2*i+1}')
            for q in range(2): self.dw('ds_write_b128', vOT, op + 4 * q, 4, 16 * q)
            S(T3, 'w*(16*144) + L_OT'); va(vOT, [(3, 3, 144), (0, 3, 16)], T3)
        oc = o.get('ocat', 2 if TL else 1); l2 = o.get('l2at', 1 if TL else 0)
        def f_work():
            if TL: f_pre(0); f_pre(1)
            if l2 == 0: ln2_tile()
            if oc == 0: out_calc()
            S(T0, '(w >> 2)*32768 + (w & 3)*32 + L_GU')
            va(vGr, [(4, 2, 8192), (2, 2, 128), (3, 2, 32), (0, 2, 8)]); a(f'v_xor_b32 v{vGr}, s{T0}, v{vGr}')
            S(T0, 'w*64')
            va(vDr, [(2, 1, 512), (3, 1, 4096), (5, 1, 2048), (2, 2, 64), (4, 1, 32), (0, 2, 8)])
            a(f'v_xor_b32 v{vDr}, s{T0}, v{vDr}'); a(f'v_add_u32 v{vDr}, {L_DN}, v{vDr}')
            va(vXs, [(0, 3, 16), (4, 2, 128)], None, L_XS)
            S(T0, 'w*16 + L_K2'); a(f'v_mov_b32 v{vT}, s{T0}')
            va(vT + 1, [(0, 3, 16)], None, L_K2)
            a(f'v_and_b32 v{vT+4}, 8, v{vL}')
            a(f'v_cmp_eq_u32 {sr(sCMP, 2)}, 0, v{vT+4}')
            self.stamp('oc')
        self.inbox(5, 8, (1, 3, 5, 7), f_work)
        P = sPL
        a(f"""s_min_u32 s{P+1}, s{P}, s{P+4}
        s_max_u32 s{P}, s{P}, s{P+4}
        s_max_u32 s{P+3}, s{P+2}, s{P+6}
        s_min_u32 s{P+2}, s{P+2}, s{P+6}
        s_max_u32 s{P+4}, s{P+1}, s{P+3}
        s_min_u32 s{P+1}, s{P+1}, s{P+3}
        v_mov_b32 v{uu}, s{P}
        v_mov_b32 v{uu+3}, s{P+2}
        v_mov_b32 v{uu+1}, s{P+4}
        v_mov_b32 v{uu+2}, s{P+1}""")
        self.dw('ds_write_b128', vT, uu, 4)
        self.stamp('F2p')
        V.release(big, 8 * len(freg)); V.release(gr, 2); V.release(vGR); V.release(vRid)
        ffn = V.alloc(48); ga_ = V.alloc(16); gb_ = V.alloc(16)
        vm.wait('gu')
        self.barrier()
        self.stamp('F2')
        def gu_frags():
            for s in range(8):
                self.tr(ffn + 4 * s, vGr, s * 1024); self.tr(ffn + 4 * s + 2, vGr, s * 1024 + 512)
        a(f"""s_cmp_lt_u32 s{sWAVE}, 4
        s_cbranch_scc1 L_CSEL""")
        fq0, vq0 = list(fq), list(vm.q)
        ffn_dma(fd[4])
        gu_frags()
        if l2 == 1: ln2_tile()
        if oc == 1: out_calc()
        a("""s_branch L_CSELD
        L_CSEL:""")
        lg.reset(); fq[:] = fq0; vm.q = vq0
        self.r128(uu, vT + 1)
        S(T0, 'w*512 + L_XS'); a(f'v_add_u32 v{vT+2}, s{T0}, v{vL8}')
        S(T0, 'w*4 + L_K3'); a(f'v_mov_b32 v{vT+3}, s{T0}')
        lg.wait_all()
        c4 = uu + 4
        for n, ctl in enumerate(('quad_perm:[1,0,3,2]', 'quad_perm:[2,3,0,1]', 'row_half_mirror')):
            for i in range(4): self.dpp('v_max_u32', c4 + i, uu + 3 - i, uu + i, ctl)
            if n == 2: break
            a(f"""v_max_u32 v{c4+4}, v{c4}, v{c4+2}
            v_max_u32 v{c4+5}, v{c4+1}, v{c4+3}
            v_min_u32 v{c4+6}, v{c4}, v{c4+2}
            v_min_u32 v{c4+7}, v{c4+1}, v{c4+3}
            v_max_u32 v{uu}, v{c4+4}, v{c4+5}
            v_min_u32 v{uu+1}, v{c4+4}, v{c4+5}
            v_max_u32 v{uu+2}, v{c4+6}, v{c4+7}
            v_min_u32 v{uu+3}, v{c4+6}, v{c4+7}""")
        for i in range(4): a(f'v_readfirstlane_b32 s{P+i}, v{c4+i}')
        a(f"""s_bitcmp1_b32 s{sWAVE}, 0
        s_cselect_b32 s{P}, s{P+1}, s{P}
        s_cselect_b32 s{P+2}, s{P+3}, s{P+2}
        s_bitcmp1_b32 s{sWAVE}, 1
        s_cselect_b32 s{P}, s{P+2}, s{P}
        s_and_b32 s{T2}, s{P}, 4095""")
        S(T0, '((15 - (T2 >> 8))*2 + (T2 & 1))*16384 + CAND'); S(T1, 'kq*1024 + T0'); S(T0, 'T0 + 8192')
        va(vT + 6, [(0, 4, 8)])
        def sel_work():
            self.stamp('sel')
            ffn_dma(fd[4], T3)
            gu_frags()
            if l2 == 1: ln2_tile()
            if oc == 1: out_calc()
            S(T2, 'T2*4 + w')
        self.try_load(lambda: (self.bl(uu + 4, 2, vT + 6, rWS, T0, 0, 'sc1'), self.bl(uu, 4, vL16, rWS, T1, 0, 'sc1')), [uu + 1, uu + 3, uu + 5], vT + 4, sel_work)
        a(f'ds_write2_b32 v{vT+2}, v{uu}, v{uu+2} offset0:0 offset1:1'); lg.issue()
        for ctl in ('quad_perm:[1,0,3,2]', 'quad_perm:[2,3,0,1]', 'row_half_mirror', 'row_ror:8'): self.dpp('v_add_f32', uu + 4, uu + 4, uu + 4, ctl)
        a(f"""v_cvt_pk_bf16_f32 v{uu+4}, 0, v{uu+4}
        v_ashrrev_i32 v{uu+5}, 31, v{uu+4}
        v_or_b32 v{uu+5}, 0x80000000, v{uu+5}
        v_xor_b32 v{uu+4}, v{uu+4}, v{uu+5}
        v_and_b32 v{uu+4}, s{sMASK}, v{uu+4}
        v_or_b32 v{uu+4}, s{T2}, v{uu+4}""")
        self.dw('ds_write_b32', vT + 3, uu + 4, 1)
        a('L_CSELD:')
        V.release(vFG); V.release(vFD)
        a(f'v_mov_b32 v{vT}, {L_K3}')
        va(vT + 4, [(0, 4, 16), (5, 1, 8)])
        S(T1, 'fs*8192 + HGR'); S(T7, '(kq*8 + w)*256 + T1')
        self.barrier()
        self.stamp('xsel')
        self.r128(uu, vT)
        lg.wait_all()
        a(f"""v_max_u32 v{uu+4}, v{uu}, v{uu+1}
        v_max_u32 v{uu+5}, v{uu+2}, v{uu+3}
        v_min_u32 v{uu+6}, v{uu}, v{uu+1}
        v_min_u32 v{uu+7}, v{uu+2}, v{uu+3}
        v_min_u32 v{uu+1}, v{uu+4}, v{uu+5}
        v_max_u32 v{uu}, v{uu+4}, v{uu+5}
        v_max3_u32 v{uu+1}, v{uu+1}, v{uu+6}, v{uu+7}
        v_cndmask_b32 v{vT}, v{uu+1}, v{uu}, {sr(sCMP, 2)}
        v_readfirstlane_b32 s{sK1}, v{uu}
        v_and_b32 v{vT}, 3, v{vT}
        v_readfirstlane_b32 s{sK2}, v{uu+1}
        v_lshl_add_u32 v{vT}, v{vT}, 9, v{vXs}""")
        self.r128(uu + 4, vT)
        if oc < 2:
            for q in range(2): self.r128(op + 4 * q, vOT, q * 8 * 144, 'ot')
        a(f"""s_bfe_u32 s{sROW0}, s{sK1}, {3 | (11 << 16)}
        s_bfe_u32 s{sROW1}, s{sK2}, {3 | (11 << 16)}
        s_sub_u32 s{sROW0}, 2047, s{sROW0}
        s_sub_u32 s{sROW1}, 2047, s{sROW1}
        s_waitcnt lgkmcnt({2 if oc < 2 else 0})""")
        gd = [ga_ + 4 * i for i in range(4)] + [gb_ + 4 * i for i in range(4)]
        for s in range(8):
            a(f'v_mfma_f32_16x16x32_bf16 {vr(gd[s], 4)}, {vr(uu + 4, 4)}, {vr(ffn + 4*s, 4)}, 0')
        p0, p1 = uu, uu + 2
        hk = V.alloc(4)
        for p, b in ((p0, 0), (p1, 4)):
            a(f'v_add_f32 v{p}, v{gd[b]}, v{gd[b+1]+1}')
            a(f'v_add_f32 v{p+1}, v{gd[b+2]+2}, v{gd[b+3]+3}')
        a(f"""v_add_f32 v{p0}, v{p0}, v{p0+1}
        v_add_f32 v{p1}, v{p1}, v{p1+1}
        v_mov_b32 v{p0+1}, s{sTAG}
        v_permlane16_swap_b32 v{p1}, v{p1+1}
        s_cmp_ge_u32 s{sJ}, 28
        s_cbranch_scc1 L_NOHP
        v_add_f32 v{p0}, v{p0}, v{p1+1}
        s_mov_b32 exec_lo, 0xffff
        s_mov_b32 exec_hi, 0xffff""")
        self.bs2([(p0, 2, vT + 4, T7, 0)])
        a(f"""s_mov_b64 exec, -1
        L_NOHP:
        v_mov_b32 v{hk}, v{p0}
        v_mov_b32 v{hk+1}, v{p0+1}
        v_add_u32 v{hk+2}, s{T7}, v{vT+4}""")
        self.stamp('Hpub')
        vOr = V.alloc(); vOa = V.alloc()
        def out_store():
            S(T0, 'rt*128 + w*16'); va(vOr, [(3, 3, 1)], T0)
            S(T2, 'T0*2048 + cb*128'); S(T3, 'T2 + 16384')
            va(vOa, [(3, 3, 2048), (0, 3, 16)])
            for q in range(2):
                if q: a(f'v_add_u32 v{vOr}, 8, v{vOr}')
                a(f"""v_cmp_ne_u32 vcc, s{sROW0}, v{vOr}
                v_cmp_ne_u32 {sr(sCMP, 2)}, s{sROW1}, v{vOr}
                s_and_b64 exec, vcc, {sr(sCMP, 2)}""")
                self.bs(op + 4 * q, 4, vOa, rOUT, (T2, T3)[q], 0, o.get('outmod', 'sc1'), count=False)
                a('s_mov_b64 exec, -1')
        lg.wait('ot')
        if o.get('outat', 1) == 0: assert oc < 2; out_store()
        fz = V.alloc(4)
        sFR, sFK, sFC0 = T4, T5, T6
        a(f"""s_bitcmp1_b32 s{sX if TL else sRT}, {1 if TL else 2}
        s_cselect_b32 s{sFR}, s{sROW1}, s{sROW0}
        s_cselect_b32 s{sFK}, s{sK2}, s{sK1}
        s_cmp_lg_u32 s{sWAVE}, 7
        s_cbranch_scc1 L_NOFZ
        s_cmp_lg_u32 s2, 0
        s_cbranch_scc1 L_NONON
        v_mov_b32 v{vT+2}, s{sTAG}
        s_mov_b64 exec, 1""")
        self.bs(vT + 2, 1, vZ, rWS, '0', 0, 'sc1', count=False)
        a(f"""s_mov_b64 exec, -1
        L_NONON:""")
        S(sFC0, '(x >> 2)*2 + (x & 1)' if TL else '(rt >> 3)*2 + (rt & 1)')
        S(T7, '(cb*8 + x)*(56*128) + GGR' if TL else '(cb*8 + (rt >> 2)*2 + (rt & 1))*(56*128) + GGR')
        S(sU, 'T4*2048 + cb*128 + T6*32')
        va(vT + 6, [(0, 3, 4)])
        S(T0, 'T6*32 + L_GB'); a(f'v_add_u32 v{vT+1}, s{T0}, v{vT+6}')
        a(f'ds_read_b32 v{fz+2}, v{vT+1}')
        S(sK1, '((T4 >> 7)*2 + ((T5 >> 2) & 1))*16384 + cb*256 + T6*64 + CAND'); S(sK2, 'k1 + 4096')
        va(vT + 7, [(0, 3, 8)])
        ld_fz = lambda: (self.bl(st, 2, vT + 7, rWS, sK1, 0, 'sc1'), self.bl(fz, 2, vT + 7, rWS, sK2, 0, 'sc1'))
        q_ = list(vm.q); ld_fz(); vm.q = q_
        a(f"""s_and_b32 s{T0}, s{sFK}, s{sMASK}
        s_ashr_i32 s{T2}, s{T0}, 31
        s_andn2_b32 s{T2}, 0x7fff0000, s{T2}
        s_or_b32 s{T2}, s{T2}, 0x80000000
        s_xor_b32 s{T0}, s{T0}, s{T2}
        v_mov_b32 v{fz+3}, s{T0}
        v_mul_f32 v{fz+3}, s{sL2E}, v{fz+3}
        v_exp_f32 v{fz+3}, -v{fz+3}
        v_add_f32 v{fz+3}, 1.0, v{fz+3}
        v_rcp_f32 v{fz+3}, v{fz+3}""")
        self.round1(fz + 3)
        a(f"""L_NOFZ:
        s_cmp_lt_u32 s{sJ}, 28
        s_cbranch_scc1 L_HSEC""")
        if oc == 2:
            out_calc()
            self.barrier()
            for q in range(2): self.r128(op + 4 * q, vOT, q * 8 * 144)
            lg.wait_all()
        a("""s_branch L_GSEC
        L_HSEC:""")
        a(f"""s_cmp_lt_u32 s{sWAVE}, 4
        s_cbranch_scc1 L_HW""")
        if oc == 2: out_calc()
        a("""s_branch L_NOH
        L_HW:""")
        S(T0, 'w*256 + T1')
        va(vT, [(4, 2, 2048), (0, 4, 16)])
        S(T2, 'w*32 + L_ACT'); va(vT + 1, [(5, 1, 128), (2, 1, 16), (1, 1, 8), (3, 1, 4), (0, 1, 2)], T2)
        a(f"""s_cmp_lg_u32 s{sLOC}, 0
        s_cbranch_scc1 L_HLOC""")
        self.spoll([(q, 1, T0, q * 2048 + 1024 + 252) for q in range(4)], range(4))
        a('L_HLOC:')
        self.stamp('Hpre')
        g, u = ga_, ga_ + 4
        self.try_load(lambda: [self.bl(ga_ + 4 * m, 4, vT, rWS, T0, m * 1024, 'sc1') for m in range(2)], [g + 1, g + 3, u + 1, u + 3], vT + 2, out_calc if oc == 2 else None)
        a(f"""v_permlane32_swap_b32 v{g}, v{g+2}
        v_permlane32_swap_b32 v{u}, v{u+2}
        v_add_f32 v{g}, v{g}, v{g+2}
        v_add_f32 v{u}, v{u}, v{u+2}
        v_mov_b32 v{g+2}, v{g}
        v_mov_b32 v{u+2}, v{u}
        v_permlane16_swap_b32 v{g}, v{g+2}
        v_permlane16_swap_b32 v{u}, v{u+2}
        v_add_f32 v{g}, v{g}, v{g+2}
        v_add_f32 v{u}, v{u}, v{u+2}""")
        self.round2(g, u)
        self.silu(g, vT + 2)
        a(f"""v_mul_f32 v{g}, v{g}, v{u}
        v_cvt_pk_bf16_f32 v{g}, v{g}, v{g}
        ds_write_b16 v{vT+1}, v{g}
        L_NOH:""")
        va(vT, [(2, 1, 128), (5, 1, 16)], None, L_ACT)
        va(vT + 1, [(4, 2, 56 * 128), (0, 4, 8)])
        va(vT + 2, [(0, 2, 4096)] if TL else [(0, 1, 64 * 4096), (1, 1, 2 * 4096)])
        S(T0, '(kq*8 + w)*(4*56*128) + fs*128 + GGR')
        S(T1, ('(kq*8 + w)*16384' if TL else '(((kq & 1)*4 + (w >> 1))*8 + (w & 1)*4 + (kq >> 1))*4096') + ' + x*64 + (j >> 2)*4 + INB + 3072')
        vm.wait_all()
        self.barrier()
        self.stamp('Hok')
        for s in range(4):
            self.r128(ga_ + 4 * s, vT, s * 32, ('ac', s))
            self.tr(ffn + 32 + 4 * s, vDr, s * 8192, ('ac', s)); self.tr(ffn + 32 + 4 * s + 2, vDr, s * 8192 + 1024, ('ac', s))
        for s in range(4):
            lg.wait(('ac', s))
            a(f'v_mfma_f32_32x32x16_bf16 {vr(gb_, 16)}, {vr(ga_ + 4*s, 4)}, {vr(ffn + 32 + 4*s, 4)}, ' + ('0' if s == 0 else vr(gb_, 16)))
        if oc == 2:
            for q in range(2): self.r128(op + 4 * q, vOT, q * 8 * 144)
        a(f'v_mov_b32 v{gb_+1}, s{sTAG}')
        self.bs(gb_, 2, vT + 1, rWS, T0, 0, 'sc1')
        a('s_mov_b64 exec, 15')
        self.bs(gb_ + 1, 1, vT + 2, rWS, T1, 0, 'sc1')
        a('s_mov_b64 exec, -1')
        self.stamp('Gpub')
        def hclean():
            a("""s_mov_b32 exec_lo, 0xffff
            s_mov_b32 exec_hi, 0xffff""")
            self.bs(hk, 2, hk + 2, rWS, '0', 0, 'sc1', count=False)
            a('s_mov_b64 exec, -1')
        if o.get('hclean', 2) == 1: hclean()
        lg.wait_all()
        a('L_GSEC:')
        if o.get('outat', 1) == 1: out_store()
        a(f"""s_cmp_lt_u32 s{sJ}, 16
        s_cbranch_scc1 L_GF""")
        if o.get('hclean', 2) == 2:
            a(f"""s_cmp_ge_u32 s{sJ}, 28
            s_cbranch_scc1 L_FIN
            s_waitcnt vmcnt(0)""")
            hclean()
        a("""s_branch L_FIN
        L_GF:""")
        self.inbox(6, 8, range(7))
        self.stamp('Gpre')
        a('s_barrier')
        if o.get('hclean', 2) == 2: hclean()
        a(f"""s_cmp_lg_u32 s{sWAVE}, 7
        s_cbranch_scc1 L_FIN""")
        S(T0, 'T7 + 4096')
        gg = [ga_ + 4 * i for i in range(4)] + [uu + 4 * i for i in range(3)]
        self.poll(lambda: [self.bl(gg[n], 4, vL16, rWS, (T7, T0)[n >> 2], (n & 3) * 1024, 'sc1') for n in range(7)],
                  [gg[n] + 1 + 2 * e for n in range(7) for e in range(2)], vT)
        self.finish_load(None, ld_fz, [st + 1, fz + 1], vT)
        self.stamp('Gok')
        for n in range(1, 7):
            for e in (0, 2): a(f'v_add_f32 v{gg[0]+e}, v{gg[0]+e}, v{gg[n]+e}')
        y0, y1 = gg[0], gg[0] + 1
        a(f'v_mov_b32 v{y1}, v{gg[0]+2}')
        for y in (y0, y1): self.dpp('v_add_f32', y, y, y, 'row_ror:8')
        for sw in ('v_permlane16_swap_b32', 'v_permlane32_swap_b32'):
            for y in (y0, y1): a(f'v_mov_b32 v{y+2}, v{y}')
            for y in (y0, y1): a(f'{sw} v{y}, v{y+2}')
            self.pk('add', y0, y0, y0 + 2)
        self.round2(y0, y1)
        self.pk('mul', y0, y0, fz + 3, bc=(1,))
        self.unpack(vT, vT + 1, st)
        self.round2(y0, y1)
        self.pk('add', y0, y0, vT)
        self.unpack(vT, vT + 1, fz + 2)
        self.round2(y0, y1)
        self.pk('mul', y0, y0, vT)
        self.unpack(vT, vT + 1, fz)
        self.round2(y0, y1)
        self.pk('add', y0, y0, vT)
        a(f'v_cvt_pk_bf16_f32 v{y0}, v{y0}, v{y1}')
        a('s_mov_b64 exec, 0xff')
        self.bs(y0, 1, vT + 6, rOUT, sU, 0, 'sc1')
        a('s_mov_b64 exec, -1')
        a('L_FIN:')
        if o.get('exfil'):
            self.stamp('fin')
            a('s_waitcnt vmcnt(0)')
            self.stamp('finw')
            a(f'''s_lshl3_add_u32 s{T0}, s2, s{sWAVE}
            s_cmp_lg_u32 s{T0}, {o.get('exwho', 7)}
            s_cbranch_scc1 L_END
            v_readlane_b32 s{T0}, v255, 0
            v_readlane_b32 s{T1}, v255, 1
            v_readlane_b32 s{T2}, v255, 2
            s_sub_u32 s{T2}, s{T2}, s{T1}
            s_max_i32 s{T2}, s{T2}, 0
            s_min_u32 s{T2}, s{T2}, 10000
            s_mul_i32 s{T2}, s{T2}, 10
            s_add_u32 s{T2}, s{T2}, 6000
            L_PAD:
            s_memrealtime {sr(sTM, 2)}
            s_waitcnt lgkmcnt(0)
            s_sub_u32 s{T1}, s{sTM}, s{T0}
            s_cmp_lt_u32 s{T1}, s{T2}
            s_cbranch_scc1 L_PAD''')
        if o.get('padfin'):
            a(f'''s_lshl3_add_u32 s{T0}, s2, s{sWAVE}
            s_cmp_lg_u32 s{T0}, 7
            s_cbranch_scc1 L_END
            s_memrealtime {sr(sTM, 2)}
            s_waitcnt lgkmcnt(0)
            s_mov_b32 s{T0}, s{sTM}
            L_PAD2:
            s_memrealtime {sr(sTM, 2)}
            s_waitcnt lgkmcnt(0)
            s_sub_u32 s{T1}, s{sTM}, s{T0}
            s_cmp_lt_u32 s{T1}, {o['padfin']}
            s_cbranch_scc1 L_PAD2''')
        if self.prof:
            a('s_waitcnt vmcnt(0) lgkmcnt(0)')
            self.stamp('end')
            a(f's_memrealtime {sr(sTM, 2)}')
            a('s_waitcnt lgkmcnt(0)')
            a(f'v_writelane_b32 v255, s{sTM}, 61')
            S(T0, '(wg*8 + w)*256 + STAMPS')
            a(f'v_writelane_b32 v255, s{sSPIN}, 62')
            a(f'v_lshlrev_b32 v{vT+1}, 2, v{vL}')
            a(f'buffer_store_dword v255, v{vT+1}, {sr(rWS, 4)}, s{T0} offen')
            S(T0, 'T0 + 0x100000')
            a(f'buffer_store_dword v254, v{vT+1}, {sr(rWS, 4)}, s{T0} offen')
        a('L_END:')
        a('s_endpgm')
        return self

    def text(self):
        a = self.a
        npad = a.fix_hazards()
        errs = a.check_waits([NAME])
        for e in errs: print('WAITERR', e, file=sys.stderr)
        assert not errs
        hdr = open(os.path.join(os.path.dirname(os.path.abspath(__file__)), 'header.txt')).read()
        s = hdr + '; @launch grid=(256,1,1) block=(512,1,1) lds=163840\n'
        s += '.amdgcn_target "amdgcn-amd-amdhsa--gfx950"\n.text\n'
        s += f'.globl {NAME}\n.p2align 8\n.type {NAME},@function\n'
        body = a.text()
        import subprocess, tempfile
        with tempfile.TemporaryDirectory() as td:
            open(td + '/t.s', 'w').write('.amdgcn_target "amdgcn-amd-amdhsa--gfx950"\n.text\n' + body.replace('CODE_KB', '20480'))
            subprocess.run(['clang', '-x', 'assembler', '-target', 'amdgcn-amd-amdhsa', '-mcpu=gfx950', '-c', td + '/t.s', '-o', td + '/t.o'], check=True)
            subprocess.run(['llvm-objcopy', '-O', 'binary', '-j', '.text', td + '/t.o', td + '/t.bin'], check=True)
            size = os.path.getsize(td + '/t.bin')
        print('; code bytes', size, file=sys.stderr)
        s += body.replace('CODE_KB', str((size // 1024 + 1) * 1024))
        s += '.p2align 10\n.fill 768, 4, 0xbf800000\n'
        s += '.section .rodata,"a"\n' + kernel_desc(NAME, 256, 102)
        print(f'; vgpr hi {self.V.hi}, nops {npad}, instrs {sum(1 for k, _ in a.items if k == "ins")}', file=sys.stderr)
        return s


if __name__ == '__main__':
    import argparse, json
    ap = argparse.ArgumentParser()
    ap.add_argument('-o', default='/dev/stdout')
    ap.add_argument('--prof', action='store_true')
    ap.add_argument('--opts', default='{}')
    args = ap.parse_args()
    g = Gen(args.prof, json.loads(args.opts)).build()
    t = g.text()
    open(args.o, 'w').write(t)
    if args.prof: open(args.o + '.stamps', 'w').write(json.dumps(g.stnames))
```

```python
import sys, os
sys.path.insert(0, os.path.dirname(os.path.abspath(__file__)))
from asm import *

NAME = 'adaLN_cond__linear_kernel_hedgehog__moe_arch_mod__prompt_kernel'

NONCE = 0x0
CFL = 0x8000
MARK = 0x100
GR = 0x010000
MODP2 = 0x020000
SINB = 0x040000
AINB = 0x080000
INA = 0x200000
INB = 0x100000
HF = 0x400000
OF = 0x800000
STAT = 0xC00000
CAND = 0x2000000
HGR = 0x1400000
ZP = 0x1480000
GGR = 0x1500000
KVP = 0x1800000
KIN = 0x1C00000
STAMPS = 0x1600000
WS_BYTES = 268435456

SEC = 8320
SLOT = 3 * SEC
SCR = 6 * SLOT
L_A1 = SCR
L_M2 = SCR + 1024
L_ST = SCR + 2048
L_MP = SCR + 2560
L_WPHI = SCR + 6656
L_XF = 147456
L_PHK = 0
L_V = 32768
WO_H0 = 32768
WO_H1 = 98304
GS = 0
L_KVF = GS
L_ZF = GS + 8192
L_EXCH = GS
L_MT = 139264
L_GU = 32768
L_DN = 98304
TS = 131072
L_SP = TS
L_ST2 = TS + 4096
L_K1 = TS + 5120
L_K2 = TS + 5184
L_K3 = TS + 5312
L_XS = TS + 5632
L_ACT = TS + 7680
L_TB = TS + 7936
L_GB = L_TB + 256
L_OT = TS + 8704
L_XT = GS

SPIN_LIMIT = 300000

sWAVE, sTAG, sSPIN, sMASK, sL2E = 3, 4, 5, 6, 7
sX, sJ, sR1, sHP, sCB = 8, 9, 10, 11, 12
T0, T1, T2, T3, T4, T5, T6, T7 = 13, 14, 15, 16, 17, 18, 19, 20
sRT = 21
sCMP = 22
sPL = 24
rWS, rX, rW, rWO, rWM, rWG, rWU, rWD, rOUT = 32, 36, 40, 44, 48, 52, 56, 60, 64
KA = 68
pWPHI, pWR, pC = KA + 4, KA + 10, KA + 18
sK1, sK2, sROW0, sROW1, sFS, sKQ, sKH, sKF = 68, 69, 70, 71, 74, 75, 76, 77
sFG, sFD, sU, sROT, sWB, sU0 = 80, 81, 82, 83, 84, 85
sWO2, sW1K, sMF = 88, 89, 90
sINB, sRow, sGTB, sC32 = 92, 93, 94, 95
sXC = 94
pDBG = 30
sLOC = 93
XT = (96, 97, 98, 99)
sTM = 100
ENV = dict(wg=2, w=sWAVE, x=sX, j=sJ, r1=sR1, hp=sHP, cb=sCB, rt=sRT, row=sRow, gtb=sGTB, c32=sC32, kh=sKH, kf=sKF, fs=sFS, kq=sKQ,
           rot=sROT, wb=sWB, u0=sU0, wo2=sWO2, w1k=sW1K, mf=sMF, u=sU, fg=sFG, fd=sFD, T0=T0, T1=T1, T2=T2, T3=T3, T4=T4, T5=T5, T6=T6, T7=T7, row0=sROW0, row1=sROW1, k1=sK1)


class Gen:
    def __init__(self, prof=False, opts=None):
        self.a = Asm()
        self.vm = Counter(self.a, 'vmcnt', 63)
        self.lg = Counter(self.a, 'lgkmcnt', 15)
        self.V = RegAlloc(254, 1)
        self.prof = prof
        self.nopk = False
        self.nst = 0
        self.stnames = []
        self.S = SExpr(self.a, ENV, {k: v for k, v in globals().items() if isinstance(v, int) and k.isupper() and k not in ENV}, XT)
        self.o = dict(AD=12, AD2=4, wburst=(0, 3, 0, 0, 6, 6), wxor=3, LASTB=13,
                      sched={1: 'm1 p2', 2: 's4', 3: 'm1 s4', 4: 'p2', 5: 'm1 g2', 7: 'm1 h g2 p3', 8: 'g2', 9: 'g2 r', 10: 'P', 12: 'M', 13: 'N', 14: 'K o4 f4 L', 15: 'f2'}, fdma=(3, 0, 1, 1, 1), wowin=(6, 0, 3))
        if opts: self.o.update(opts)

    def bl(self, dst, n, voff, srd, soff, imm=0, mods='', tag=None):
        op = {1: 'dword', 2: 'dwordx2', 4: 'dwordx4'}[n]
        so = soff if isinstance(soff, str) else (sr(soff))
        self.a(f'buffer_load_{op} {vr(dst, n)}, v{voff}, {sr(srd, 4)}, {so} offen' + (f' offset:{imm}' if imm else '') + (' ' + mods if mods else ''))
        self.vm.issue(tag)
    def bs(self, src, n, voff, srd, soff, imm=0, mods='', tag=None, count=True):
        op = {1: 'dword', 2: 'dwordx2', 4: 'dwordx4'}[n]
        so = soff if isinstance(soff, str) else (sr(soff))
        self.a(f'buffer_store_{op} {vr(src, n)}, v{voff}, {sr(srd, 4)}, {so} offen' + (f' offset:{imm}' if imm else '') + (' ' + mods if mods else ''))
        if count: self.vm.issue(tag)
    def bs2(self, items):
        a = self.a
        LL, D = a.label('LOC'), a.label('LOCD')
        a(f's_cmp_lg_u32 s{sLOC}, 0')
        a(f's_cbranch_scc1 {LL}')
        for src, n, voff, soff, imm in items: self.bs(src, n, voff, rWS, soff, imm, 'sc1', count=False)
        a(f's_branch {D}')
        a(f'{LL}:')
        for src, n, voff, soff, imm in items: self.bs(src, n, voff, rWS, soff, imm, '', count=False)
        a(f'{D}:')
    def dma(self, voff, srd, soff, imm=0, mods='', tag=None):
        self.a(f'buffer_load_dwordx4 v{voff}, {sr(srd, 4)}, {sr(soff)} offen' + (f' offset:{imm}' if imm else '') + (' ' + mods if mods else '') + ' lds')
        self.vm.issue(tag)
    def dr(self, op, dst, n, addr, off=0, tag=None):
        assert 0 <= off < 65536, off
        self.a(f'{op} {vr(dst, n)}, v{addr}' + (f' offset:{off}' if off else ''))
        self.lg.issue(tag)
    def tr(self, dst, addr, off, tag=None): self.dr('ds_read_b64_tr_b16', dst, 2, addr, off, tag)
    def r128(self, dst, addr, off=0, tag=None): self.dr('ds_read_b128', dst, 4, addr, off, tag)
    def dw(self, op, addr, src, n, off=0, tag=None):
        assert 0 <= off < 65536, off
        self.a(f'{op} v{addr}, {vr(src, n)}' + (f' offset:{off}' if off else ''))
        self.lg.issue(tag)
    def barrier(self):
        self.lg.wait_all()
        self.a('s_barrier')
    def stamp(self, name):
        ex = self.o.get('exfil')
        if ex and name in ex[:2]:
            self.a(f's_memrealtime {sr(sTM, 2)}')
            self.lg.wait_all()
            self.a(f'v_writelane_b32 v255, s{sTM}, {1 + ex.index(name)}')
        if not self.prof: return
        only = self.o.get('only')
        if only and name not in only and name != 'end': return
        self.a(f's_memtime {sr(sTM, 2)}')
        self.a(f's_memrealtime s[0:1]')
        self.lg.wait_all()
        self.a(f'v_writelane_b32 v255, s{sSPIN if self.o.get("spinst") and self.nst > 3 else sTM}, {self.nst}')
        self.a(f'v_writelane_b32 v254, s0, {self.nst}')
        self.stnames.append(name)
        self.nst += 1
        assert self.nst <= 60
    def unpack(self, lo, hi, src):
        self.a(f'v_lshlrev_b32 v{lo}, 16, v{src}')
        self.a(f'v_and_b32 v{hi}, s{sMASK}, v{src}')
    def round1(self, r):
        self.a(f'v_cvt_pk_bf16_f32 v{r}, 0, v{r}')
    def round2(self, r0, r1):
        self.round1(r0); self.round1(r1)
    def round_list(self, regs):
        for r in regs: self.round1(r)
    def pk(self, op, d, s0, s1, s2=None, bc=(), neg=()):
        srcs = [s0, s1] + ([s2] if s2 is not None else [])
        if self.nopk:
            for h in range(2):
                t = []
                for k, r in enumerate(srcs):
                    kind, n = r if isinstance(r, tuple) else ('v', r)
                    t.append(('-' if k in neg else '') + f'{kind}{n if k in bc else n + h}')
                e64 = '' if op == 'fma' else ('_e64' if (neg or t[1][0] == 's') else '')
                self.a(f'v_{op}_f32{e64} v{d+h}, ' + ', '.join(t))
            return
        txt, sel, selhi = [], [], []
        for k, r in enumerate(srcs):
            kind, n = r if isinstance(r, tuple) else ('v', r)
            if k in bc:
                txt.append(f'{kind}[{n & ~1}:{(n & ~1) + 1}]'); sel.append(n & 1); selhi.append(n & 1)
            else:
                assert n % 2 == 0
                txt.append(f'{kind}[{n}:{n+1}]'); sel.append(0); selhi.append(1)
        assert d % 2 == 0
        m = ''
        if any(sel): m += ' op_sel:[' + ','.join(map(str, sel)) + ']'
        if not all(selhi): m += ' op_sel_hi:[' + ','.join(map(str, selhi)) + ']'
        if neg:
            ng = ','.join('1' if k in neg else '0' for k in range(len(srcs)))
            m += f' neg_lo:[{ng}] neg_hi:[{ng}]'
        self.a(f'v_pk_{op}_f32 v[{d}:{d+1}], ' + ', '.join(txt) + m)
    def dpp(self, op, d, s0, s1, ctl):
        self.a(f'{op}_dpp v{d}, v{s0}, v{s1} {ctl} row_mask:0xf bank_mask:0xf')
    def allreduce(self, v, t, op='v_add_f32', lo=True, b3=True):
        if lo:
            self.dpp(op, v, v, v, 'quad_perm:[1,0,3,2]')
            self.dpp(op, v, v, v, 'quad_perm:[2,3,0,1]')
            self.dpp(op, v, v, v, 'row_half_mirror')
        self.dpp(op, v, v, v, 'row_ror:8')
        self.a(f'v_mov_b32 v{t}, v{v}')
        self.a(f'v_permlane16_swap_b32 v{v}, v{t}')
        self.a(f'{op} v{v}, v{v}, v{t}')
        self.a(f'v_mov_b32 v{t}, v{v}')
        self.a(f'v_permlane32_swap_b32 v{v}, v{t}')
        self.a(f'{op} v{v}, v{v}, v{t}')
    def poll(self, loads, tagregs, tmp=None):
        a = self.a
        L, D = a.label('POLL'), a.label('PDONE')
        a(f'{L}:')
        loads()
        self.vm.wait_all()
        self.tagcheck(tagregs, tmp)
        a(f's_cbranch_vccz {D}')
        a(f's_add_u32 s{sSPIN}, s{sSPIN}, 1')
        a(f's_cmp_lt_u32 s{sSPIN}, {SPIN_LIMIT}')
        a(f's_cbranch_scc1 {L}')
        a(f'{D}:')
    def weave(self, fn, extras):
        a = self.a
        keep = a.items; a.items = []
        fn()
        body = a.items; a.items = keep
        extras = list(extras); n = len(extras)
        for i, it in enumerate(body):
            while extras and (n - len(extras)) * len(body) <= i * n: extras.pop(0)()
            a.items.append(it)
        for e in extras: e()
    def tagcheck(self, tagregs, tmp):
        a = self.a
        if tagregs[0] == 'nan':
            if len(tagregs) == 3: a(f'v_max_u32 v{tmp}, v{tagregs[1]}, v{tagregs[2]}')
            a(f'v_cmp_eq_u32 vcc, -1, v{tmp if len(tagregs) == 3 else tagregs[1]}')
        elif len(tagregs) == 1:
            a(f'v_cmp_ne_u32 vcc, s{sTAG}, v{tagregs[0]}')
        else:
            a(f'v_bitop3_b32 v{tmp}, v{tagregs[0]}, v{tagregs[1]}, s{sTAG} bitop3:0x7e')
            for t in tagregs[2:]: a(f'v_bitop3_b32 v{tmp}, v{tmp}, v{t}, s{sTAG} bitop3:0xf6')
            a(f'v_cmp_ne_u32 vcc, 0, v{tmp}')
    def try_load(self, loads, tagregs, tmp=None, between=None, pre=None):
        a = self.a
        n0 = len(self.vm.q)
        loads()
        self.vm.q[-1] = tg = ('try', a.label('T'))
        if between: between()
        self.vm.wait(tg)
        OK = a.label('TOK')
        self.tagcheck(tagregs, tmp)
        a(f's_cbranch_vccz {OK}')
        q, l = list(self.vm.q), list(self.lg.q)
        if pre: pre()
        self.poll(loads, tagregs, tmp)
        self.vm.q, self.lg.q = q, l
        a(f'{OK}:')
    def finish_load(self, tg, loads, tagregs, tmp=None, pre=None):
        a = self.a
        self.vm.wait(tg)
        OK = a.label('TOK')
        self.tagcheck(tagregs, tmp)
        a(f's_cbranch_vccz {OK}')
        q, l = list(self.vm.q), list(self.lg.q)
        if pre: pre()
        self.poll(loads, tagregs, tmp)
        self.vm.q, self.lg.q = q, l
        a(f'{OK}:')
    def spoll(self, loads, checks, work=None, pipe=0):
        a = self.a
        L, C, D = a.label('SPOLL'), a.label('SCHK'), a.label('SDONE')
        def issue(note=''):
            for d, n, so, imm in loads:
                op = {1: 'dword', 2: 'dwordx2', 4: 'dwordx4', 8: 'dwordx8'}[n]
                a(f's_load_{op} {sr(sPL + d, n)}, {sr(rWS, 2)}, s{so} offset:{imm} glc' + note)
        if pipe:
            self.lg.wait_all()
            for k in checks: a(f's_not_b32 s{sPL + k}, s{sTAG}')
            issue(' ; nowait')
            if work: work()
            a(f'{L}:')
            a(f's_add_u32 s{sSPIN}, s{sSPIN}, 1')
            a(f's_cmp_ge_u32 s{sSPIN}, {SPIN_LIMIT}')
            a(f's_cbranch_scc1 {D}')
            ks = list(checks)
            a(f's_xor_b32 s{XT[0]}, s{sPL + ks[0]}, s{sTAG} ; nowait')
            for k in ks[1:]:
                a(f's_xor_b32 s{XT[1]}, s{sPL + k}, s{sTAG} ; nowait')
                a(f's_or_b32 s{XT[0]}, s{XT[0]}, s{XT[1]}')
            a(f's_cbranch_scc0 {D}')
            issue(' ; nowait')
            a(f's_sleep {pipe}')
            a(f's_branch {L}')
            a(f'{D}:')
            return
        if work:
            issue(); work()
            a(f's_branch {C}')
        a(f'{L}:')
        issue()
        a(f'{C}:')
        a(f's_add_u32 s{sSPIN}, s{sSPIN}, 1')
        a(f's_cmp_ge_u32 s{sSPIN}, {SPIN_LIMIT}')
        self.lg.wait_all()
        a(f's_cbranch_scc1 {D}')
        for k in checks:
            a(f's_cmp_lg_u32 s{sPL + k}, s{sTAG}')
            a(f's_cbranch_scc1 {L}')
        a(f'{D}:')
    def inbox(self, box, n, checks=None, work=None, pipe=0):
        self.spoll([(0, n, sINB, box * 512)], range(n) if checks is None else checks, work, pipe)
    def va(self, dst, terms, sreg=None, const=0, tmp=None):
        a = self.a; vL = self.vL
        first = True
        for sh, bits, mult in terms:
            full = sh + bits >= 6
            src = vL
            t = dst if first else tmp
            if sh == 0 and full: pass
            elif full: a(f'v_lshrrev_b32 v{t}, {sh}, v{vL}'); src = t
            elif sh == 0: a(f'v_and_b32 v{t}, {(1 << bits) - 1}, v{vL}'); src = t
            else: a(f'v_bfe_u32 v{t}, v{vL}, {sh}, {bits}'); src = t
            p2 = mult & (mult - 1) == 0
            k = mult.bit_length() - 1
            if first:
                if p2 and sreg is not None: a(f'v_lshl_add_u32 v{dst}, v{src}, {k}, s{sreg}'); sreg = None
                elif p2 and k: a(f'v_lshlrev_b32 v{dst}, {k}, v{src}')
                elif p2:
                    if src != dst: a(f'v_mov_b32 v{dst}, v{src}')
                else: a(f'v_mul_u32_u24 v{dst}, {mult}, v{src}')
            else:
                assert p2
                a(f'v_lshl_add_u32 v{dst}, v{src}, {k}, v{dst}')
            first = False
        if sreg is not None: a(f'v_add_u32 v{dst}, s{sreg}, v{dst}')
        if const: a(f'v_add_u32 v{dst}, {const}, v{dst}')
    def push(self, vaddr, soff, nl, vtmp, lab, wave=0):
        a = self.a
        a(f's_cmp_lg_u32 s{sWAVE}, {wave}')
        a(f's_cbranch_scc1 {lab}')
        a(f'v_mov_b32 v{vtmp}, s{sTAG}')
        a(f's_mov_b32 exec_hi, 0')
        if nl < 32: a(f's_mov_b32 exec_lo, {(1 << nl) - 1}')
        self.bs(vtmp, 1, vaddr, rWS, soff, 0, 'sc1', count=False)
        a('s_mov_b64 exec, -1')
        a(f'{lab}:')
    def silu(self, v, t):
        a = self.a
        a(f'v_mul_f32 v{t}, s{sL2E}, v{v}')
        a(f'v_exp_f32 v{t}, -v{t}')
        a(f'v_add_f32 v{t}, 1.0, v{t}')
        a(f'v_rcp_f32 v{t}, v{t}')
        a(f'v_mul_f32 v{v}, v{v}, v{t}')
        self.round1(v)
    def gemv_ops(self, wregs, cregs, acc, t0, t1, packed):
        ops = []
        assert t0 % 2 == 0 and t1 == t0 + 1
        for i, (w, c) in enumerate(zip(wregs, cregs)):
            cp = f'v[{c & ~1}:{(c & ~1) + 1}]'
            for d in range(4):
                tt = t0 + 2 * (d & 1)
                ops.append(f'v_lshlrev_b32 v{tt}, 16, v{w+d}')
                ops.append(f'v_and_b32 v{tt+1}, s{sMASK}, v{w+d}')
                ac = f'v[{acc+2*d}:{acc+2*d+1}]'
                if not packed:
                    for h in range(2): ops.append(f'v_mul_f32 v{acc+2*d+h}, v{tt+h}, v{c}' if i == 0 else f'v_fmac_f32 v{acc+2*d+h}, v{tt+h}, v{c}')
                elif i == 0: ops.append(f'v_pk_mul_f32 {ac}, v[{tt}:{tt+1}], {cp} op_sel:[0,{c & 1}] op_sel_hi:[1,{c & 1}]')
                else: ops.append(f'v_pk_fma_f32 {ac}, v[{tt}:{tt+1}], {cp}, {ac} op_sel:[0,{c & 1},0] op_sel_hi:[1,{c & 1},1]')
        for i in range(4): ops.append(f'v_permlane32_swap_b32 v{acc+i}, v{acc+4+i}')
        for i in range(4): ops.append(f'v_add_f32 v{acc+i}, v{acc+i}, v{acc+4+i}')
        for i in range(2): ops.append(f'v_permlane16_swap_b32 v{acc+i}, v{acc+2+i}')
        for i in range(2): ops.append(f'v_add_f32 v{acc+i}, v{acc+i}, v{acc+2+i}')
        for i in range(2): ops.append(f'v_add_f32_dpp v{acc+i}, v{acc+i}, v{acc+i} row_ror:8 row_mask:0xf bank_mask:0xf')
        ops.append(f'v_mov_b32_dpp v{acc}, v{acc+1} quad_perm:[0,1,2,3] row_mask:0xf bank_mask:0xc')
        return ops
    def sum8(self, b):
        self.pk('add', b, b, b + 2); self.pk('add', b + 4, b + 4, b + 6); self.pk('add', b, b, b + 4)
        self.a(f'v_add_f32 v{b}, v{b}, v{b+1}')
    def softmax_pm(self, p, e, out, t, mid=None, part=0, split=0):
        a = self.a
        mx, mn, u0, u1, s0, s1 = t, t + 1, t + 2, t + 3, t + 4, t + 6
        if part != 2:
            self.round_list([p + i for i in range(16)])
            a(f'v_max3_f32 v{mx}, v{p}, v{p+1}, v{p+2}')
            a(f'v_min3_f32 v{mn}, v{p}, v{p+1}, v{p+2}')
            for i in range(3, 15, 2):
                a(f'v_max3_f32 v{mx}, v{mx}, v{p+i}, v{p+i+1}')
                a(f'v_min3_f32 v{mn}, v{mn}, v{p+i}, v{p+i+1}')
            a(f'v_max_f32 v{u0}, v{mx}, v{p+15}')
            a(f'v_min_f32 v{u1}, v{mn}, v{p+15}')
            a(f'v_max_f32 v{mx}, v{mx}, v{p+15}')
            a(f'v_min_f32 v{mn}, v{mn}, v{p+15}')
            a(f'v_permlane32_swap_b32 v{mx}, v{u0}')
            a(f'v_permlane32_swap_b32 v{mn}, v{u1}')
            a(f'v_max_f32 v{mx}, v{mx}, v{u0}')
            a(f'v_min_f32 v{mn}, v{mn}, v{u1}')
            self.pk('mul', mx, mx, ('s', sL2E), bc=(1,))
            for i in range(0, 16, 2):
                self.pk('fma', e + i, p + i, ('s', sL2E), mx, bc=(1, 2), neg=(2,))
                self.pk('fma', p + i, p + i, ('s', sL2E), mn, bc=(1, 2), neg=(0,))
        for i in range(split if part == 2 else 0, 16):
            if mid and i == mid[0]: mid[1]()
            if part == 1 and i == split: return
            a(f'v_exp_f32 v{e+i}, v{e+i}')
            a(f'v_exp_f32 v{p+i}, v{p+i}')
        self.pk('add', s0, e, e + 2); self.pk('add', s1, p, p + 2)
        for i in range(4, 16, 2):
            self.pk('add', s0, s0, e + i); self.pk('add', s1, s1, p + i)
        a(f'v_add_f32 v{u0}, v{s0}, v{s0+1}')
        a(f'v_add_f32 v{u1}, v{s1}, v{s1+1}')
        a(f'v_add_f32 v{mx}, v{s0}, v{s0+1}')
        a(f'v_add_f32 v{mn}, v{s1}, v{s1+1}')
        a(f'v_permlane32_swap_b32 v{mx}, v{u0}')
        a(f'v_permlane32_swap_b32 v{mn}, v{u1}')
        self.pk('add', mx, mx, u0)
        a(f'v_rcp_f32 v{mx}, v{mx}')
        a(f'v_rcp_f32 v{mn}, v{mn}')
        for i in range(0, 16, 2):
            self.pk('mul', e + i, e + i, mx, bc=(1,))
            self.pk('mul', p + i, p + i, mn, bc=(1,))
        for i in range(8):
            a(f'v_cvt_pk_bf16_f32 v{out+i}, v{e+2*i}, v{e+2*i+1}')
            a(f'v_cvt_pk_bf16_f32 v{out+8+i}, v{p+2*i}, v{p+2*i+1}')
    def ln_stats(self, xp, t, m_out, sd_out, fill=()):
        a = self.a
        fill = list(fill)
        def pad(n):
            for _ in range(n):
                if fill: a(fill.pop(0))
        s, u = t, t + 4
        a(f'v_mov_b32 v{u}, 0x3f803f80')
        for i in range(8):
            k = 2 * (i & 1)
            a(f'v_dot2_f32_bf16 v{s+k}, v{xp+i}, v{u}, ' + ('0' if i < 2 else f'v{s+k}'))
            a(f'v_dot2_f32_bf16 v{s+k+1}, v{xp+i}, v{xp+i}, ' + ('0' if i < 2 else f'v{s+k+1}'))
        pad(3)
        self.pk('add', s, s, s + 2)
        for ctl in ('quad_perm:[1,0,3,2]', 'quad_perm:[2,3,0,1]', 'row_half_mirror', 'row_ror:8'):
            pad(2 if ctl.endswith('3,2]') else 1)
            self.dpp('v_add_f32', s, s, s, ctl); self.dpp('v_add_f32', s + 1, s + 1, s + 1, ctl)
        pad(2)
        a(f'v_permlane16_swap_b32 v{s}, v{s+1}')
        a(f'v_add_f32 v{u}, v{s}, v{s+1}')
        a(f'v_add_f32 v{s}, v{s}, v{s+1}')
        pad(2)
        a(f'v_permlane32_swap_b32 v{s}, v{u}')
        a(f'v_add_f32 v{s}, v{s}, v{u}')
        a(f'v_mul_f32 v{u}, 0x3a800000, v{s}')
        a(f'v_mul_f32 v{s}, 0x3a800000, v{s}')
        pad(2)
        a(f'v_permlane16_swap_b32 v{s}, v{u}')
        a(f'v_fma_f32 v{sd_out}, -v{s}, v{s}, v{u}')
        a(f'v_cvt_pk_bf16_f32 v{m_out}, 0, v{s}')
        a(f'v_max_f32 v{sd_out}, 0, v{sd_out}')
        self.round1(sd_out)
        a(f'v_add_f32 v{sd_out}, 0x3727c5ac, v{sd_out}')
        self.round1(sd_out)
        a(f'v_sqrt_f32 v{sd_out}, v{sd_out}')
        pad(99)
        self.round1(sd_out)

    def stat_math(self, s, u, m_out, sd_out):
        a = self.a
        a(f'v_fma_f32 v{sd_out}, -v{s}, v{s}, v{u}')
        a(f'v_cvt_pk_bf16_f32 v{m_out}, 0, v{s}')
        a(f'v_max_f32 v{sd_out}, 0, v{sd_out}')
        self.round1(sd_out)
        a(f'v_add_f32 v{sd_out}, 0x3727c5ac, v{sd_out}')
        self.round1(sd_out)
        a(f'v_sqrt_f32 v{sd_out}, v{sd_out}')
        self.round1(sd_out)
    def ln_stats2(self, x0, x1, t, m_out, sd_out):
        a = self.a
        s0, s1, q0, q1, u = t, t + 1, t + 2, t + 3, t + 4
        a(f'v_mov_b32 v{u}, 0x3f803f80')
        for i in range(8):
            for xx, s_, q_ in ((x0, s0, q0), (x1, s1, q1)):
                a(f'v_dot2_f32_bf16 v{s_}, v{xx+i}, v{u}, ' + ('0' if i == 0 else f'v{s_}'))
                a(f'v_dot2_f32_bf16 v{q_}, v{xx+i}, v{xx+i}, ' + ('0' if i == 0 else f'v{q_}'))
        a(f"""v_permlane32_swap_b32 v{s0}, v{s1}
        v_permlane32_swap_b32 v{q0}, v{q1}
        v_add_f32 v{s0}, v{s0}, v{s1}
        v_add_f32 v{q0}, v{q0}, v{q1}
        v_permlane16_swap_b32 v{s0}, v{q0}
        v_add_f32 v{s0}, v{s0}, v{q0}""")
        for ctl in ('quad_perm:[1,0,3,2]', 'quad_perm:[2,3,0,1]', 'row_half_mirror', 'row_ror:8'): self.dpp('v_add_f32', s0, s0, s0, ctl)
        a(f"""v_mul_f32 v{q0}, 0x3a800000, v{s0}
        v_mul_f32 v{s0}, 0x3a800000, v{s0}
        v_permlane16_swap_b32 v{s0}, v{q0}""")
        self.stat_math(s0, q0, m_out, sd_out)

    def build(self):
        a, V, vm, lg, o, S = self.a, self.V, self.vm, self.lg, self.o, self.S
        E2 = range(0, 16, 2)
        TL = o.get('tl', 0)
        HL = o.get('hl', 1)
        D2 = o.get('d2', 1)
        LCB = [(0, 4, 8 * 4096)] if TL else [(0, 3, 8 * 4096), (3, 1, 4096)]
        a(f'{NAME}:')
        a(f's_load_dwordx16 {sr(KA, 16)}, s[0:1], 0')
        a(f's_load_dwordx8 {sr(KA + 16, 8)}, s[0:1], 64')
        a(f's_load_dwordx2 {sr(rWS, 2)}, s[0:1], 104')
        a(f's_load_dwordx2 {sr(pDBG, 2)}, s[0:1], 96')
        a('s_cmp_ge_u32 s2, 256')
        a('s_cbranch_scc1 L_END')
        if self.prof:
            a(f's_memrealtime {sr(sCMP, 2)}')
            a(f's_memtime {sr(sTM, 2)}')
            a('v_mov_b32 v255, 0')
            a('v_mov_b32 v254, 0')
            self.stnames.append('start'); self.nst = 1
        if o.get('exfil'): a(f's_memrealtime {sr(sTM, 2)}')
        vL = self.vL = V.alloc()
        vL16 = V.alloc()
        vZ = V.alloc()
        vT = V.alloc(8)
        va = lambda dst, terms, sreg=None, const=0: self.va(dst, terms, sreg, const, vT + 5)
        a(f"""v_lshrrev_b32 v{vT}, 6, v0
        v_and_b32 v{vL}, 63, v0
        v_mov_b32 v{vZ}, 0
        v_readfirstlane_b32 s{sWAVE}, v{vT}
        v_lshlrev_b32 v{vL16}, 4, v{vL}""")
        xr = V.alloc(8); acc = V.alloc(8); wphi = V.alloc(8); fr = V.alloc(8); vq = V.alloc(8); vv = V.alloc(8)
        vWM = V.alloc(); vCo = V.alloc(); vWd = V.alloc(); vL8 = V.alloc(); vL32S = V.alloc(); vGA = V.alloc()
        vB = V.alloc(6, 1); vFG = V.alloc(); vFD = V.alloc(); vWo = V.alloc(); vPW = V.alloc(); vXF = V.alloc()
        S(sX, 'wg & 7'); S(sJ, 'wg >> 3')
        S(T2, '(x*4 + w)*64')
        S(T0, 'T2*6144 + (j ^ 1)*128')
        va(vWM, [(3, 3, 4 * 12288), (0, 3, 16)])
        va(vCo, [(3, 3, 8)], T2)
        S(T3, '((x*32 + j)*4 + w - 4)*4096')
        for srd, size in ((rWM, 12582912), (rX, 4194304), (rWS, WS_BYTES)):
            a(f's_mov_b32 s{srd+2}, {size}')
            a(f's_mov_b32 s{srd+3}, 0x20000')
        a(f's_getreg_b32 s{sXC}, hwreg(HW_REG_XCC_ID, 0, 3)')
        if o.get('fakexcc') is not None: a(f's_and_b32 s{sXC}, s{sXC}, {o["fakexcc"]}')
        a(f"""s_getpc_b64 {sr(sCMP, 2) if not self.prof else sr(sPL, 2)}""")
        S(T6, '(j*7 + w)*128')
        va(vT + 6, [(5, 1, 28672)], T6)
        a(f"""v_min_u32 v{vT+6}, CODE_KB, v{vT+6}
        s_cmp_ge_u32 s{sWAVE}, 4
        s_waitcnt lgkmcnt(0)""")
        if self.prof:
            a(f'v_writelane_b32 v255, s{sTM}, 0')
            a(f'v_writelane_b32 v255, s{sCMP}, 63')
            a(f'v_writelane_b32 v254, s{sCMP}, 0')
            a(f's_mov_b64 {sr(sCMP, 2)}, {sr(sPL, 2)}')
        if o.get('exfil'):
            for k in range(3): a(f'v_writelane_b32 v255, s{sTM}, {k}')
        self.stamp('karg')
        raw = V.alloc(16); cv = V.alloc(4); vTk = V.alloc(2)
        xs = V.alloc(16); st = V.alloc(4); mq = V.alloc(4)
        a(f"""s_mov_b64 {sr(rWM, 2)}, {sr(KA + 20, 2)}
        s_mov_b64 {sr(rX, 2)}, {sr(KA, 2)}
        s_load_dword s{sTAG}, {sr(rWS, 2)}, {NONCE}
        s_cbranch_scc1 L_FS""")
        def setup():
            for srd, size in ((rW, 6291456), (rWO, 2097152), (rWG, 7340032), (rWU, 7340032), (rWD, 7340032), (rOUT, 4194304)):
                a(f's_mov_b32 s{srd+2}, {size}')
                a(f's_mov_b32 s{srd+3}, 0x20000')
            for srd, k in ((rW, 2), (rWO, 6), (rWG, 12), (rWU, 14), (rWD, 16), (rOUT, 22)):
                a(f's_mov_b64 {sr(srd, 2)}, {sr(KA + k, 2)}')
            a(f"""s_mov_b32 s{sSPIN}, 0
            s_mov_b32 s{sMASK}, 0xffff0000
            s_mov_b32 s{sL2E}, 0x3fb8aa3b""")
            S(sKH, 'w >> 2')
            va(vT + 2, [(4, 1, 64)]); va(vWd, [(0, 3, 16)])
            a(f'v_xor_b32 v{vWd}, v{vWd}, v{vT+2}'); va(vT + 2, [(3, 3, 6144)]); a(f'v_add_u32 v{vWd}, v{vWd}, v{vT+2}')
            va(vL8, [(0, 6, 8)])
            a(f'v_add_u32 v{vL32S}, {SCR}, v{vL16}')
            S(T0, '(w & 3)*4 + SCR')
            va(vGA, [(4, 2, 32), (0, 3, 128), (3, 1, 16)], T0)
            S(T1, '((j >> 4)*128 + w*8 + x)*1024 + (j & 15)*64 + SINB' if TL else '((x & 6) + ((x & 1)*2 + (j >> 4))*64 + w*8)*1024 + (j & 15)*64 + SINB')
        def tag_hash():
            a(f"""s_mul_i32 s{sTAG}, s{sTAG}, 0x9e3779b1
            s_add_u32 s{sTAG}, s{sTAG}, 0x7f4a7c15""")
        def code_pf():
            a(f's_and_b32 s{sCMP}, s{sCMP}, 0xfffffc00')
            a(f'global_load_dword v{vTk}, v{vT+6}, {sr(sCMP, 2)}')
        wq = [(n, t) for n in range(16) for t in range(3)]
        def w_base(n, wexpr):
            if n < 4 and o.get('wxor', 1):
                if o.get('wxor', 1) < 3: S(T7, '((j >> 4)*2) ^ n' if o.get('wxor', 1) == 1 else o.get('wxe', '((j >> 4) + (x >> 2)*2) ^ n'), n=n)
                else:
                    S(T7, o.get('wxe', 'j & 3' if HL else '(j >> 4) + (x >> 2)*2'))
                    if n: a(f's_cmp_le_u32 s{T7}, {n - 1}'); a(f's_cselect_b32 s{T7}, {n}, {n - 1}')
                S(sU, f'(((T7 + u0) & 15)*8 + {wexpr})*(8*6144) + hp*128')
                S(T7, f'T7*SLOT + (({wexpr}) >> 1)*2080 + (({wexpr}) & 1)*1056')
            else:
                S(sU, f'(((u0 + n) & 15)*8 + {wexpr})*(8*6144) + hp*128', n=n)
                S(T7, f'(({wexpr}) >> 1)*2080 + (({wexpr}) & 1)*1056 + q', q=(n % 6) * SLOT)
        def w_slot(n, t):
            S('m0', 'T7 + q', q=t * SEC)
            self.dma(vWd, rW, sU, 0, o.get('wmod', ''), ('W', n))
            if t < 2: S(sU, 'u + 2048')
        def w_next(cnt=1):
            for _ in range(cnt):
                n, t = wq.pop(0)
                if t == 0: w_base(n, 'w')
                w_slot(n, t)
        wb = list(o['wburst'])
        def w_early():
            if not o.get('wearly'): return
            S(sHP, '(x & 3)*4 + ((j & 3) ^ q)', q=o.get('hpx', 2)); S(sU0, o.get('u0', 'j & 12'))
            w_next(o['wearly'])
        a(f'global_load_dwordx2 {vr(cv, 2)}, v{vCo}, {sr(pC, 2)}'); vm.issue('c')
        for i in range(4):
            self.bl(raw + 4 * i, 4, vWM, rWM, T0, 0, o.get('ntwm', 'nt'), ('wm', i))
            if i < 3: S(T0, 'T0 + 12288')
        a('s_barrier')
        if o.get('bar1', 1): a('s_barrier')
        code_pf(); vm.issue()
        setup()
        wq0 = list(wq); w_early(); wq[:] = wq0
        S(T0, '(((w*16 + ((j ^ 1) & 15))*2 + (j >> 4))*8 + x)*512 + AINB')
        S(T2, ('(((j ^ 1) & 15)*8 + w*2)*512' if TL else '(((j ^ 1) & 7)*8 + w*2 + ((j >> 3) & 1))*512') + ' + x*64 + (j >> 4)*4 + INA')
        va(vT + 6, [(0, 1, 128 * 512), (1, 1, 512)] if TL else [(0, 2, 64 * 512)])
        vm.wait('c')
        self.unpack(cv + 2, cv + 3, cv + 1)
        a(f'v_and_b32 v{cv+1}, s{sMASK}, v{cv}'); a(f'v_lshlrev_b32 v{cv}, 16, v{cv}')
        for i in range(4): self.silu(cv + i, vT + (i & 1))
        gops = self.gemv_ops([raw + 4 * i for i in range(4)], [cv + i for i in range(4)], acc, vT, vT + 1, True)
        for i in range(4):
            vm.wait(('wm', i))
            if i == 3: self.stamp('wmok')
            for s_ in gops[12 * i:12 * i + 12]: a(s_)
        for s_ in gops[48:]: a(s_)
        self.dw('ds_write_b32', vGA, acc, 1, L_A1 - SCR)
        self.barrier()
        a(f'ds_read_b128 {vr(acc, 4)}, v{vL32S} offset:{L_A1 - SCR}')
        tag_hash()
        a('s_waitcnt lgkmcnt(0)')
        self.pk('add', acc, acc, acc + 2)
        a(f"""v_add_f32 v{acc}, v{acc}, v{acc+1}
        v_mov_b32 v{acc+1}, s{sTAG}""")
        self.bs(acc, 2, vL8, rWS, T0, 0, 'sc1')
        a('s_mov_b64 exec, 15')
        self.bs(acc + 1, 1, vT + 6, rWS, T2, 0, 'sc1')
        a('s_mov_b64 exec, -1')
        self.stamp('A1pub')
        S(T0, '(wg*4 + w)*6144')
        for i in range(o.get('wpf', 0)):
            if i == 4: S(T0, 'T0 + 4096')
            self.bl(raw, 4, vL16, rW, T0, (i & 3) * 1024, o.get('wpfmod', ''))
        a('s_branch L_FJ')
        qG = list(vm.q)
        a('L_FS:')
        vm.reset(); lg.reset()
        a('s_barrier')
        for i in range(4): self.bl(raw + 4 * i, 4, vL16, rX, T3, 1024 * i, o.get('xsmod', ''), 'xs')
        pw0 = o.get('pw0', 'ab')
        if 'a' in pw0:
            S(T4, '(wg*4 + w - 4)*128 + INA')
            for q in range(2): a(f's_load_dword s{sPL + q}, {sr(rWS, 2)}, s{T4} offset:{q * 64} glc')
        if 's' in pw0:
            S(T4, '(wg*4 + w - 4)*256 + SINB')
            for q in range(4): a(f's_load_dword s{sPL + 2 + q}, {sr(rWS, 2)}, s{T4} offset:{q * 64} glc')
        if 'b' in pw0:
            S(T4, '(wg*32 + w - 4)*128 + INB')
            for q in range(2): a(f's_load_dword s{sPL + q}, {sr(rWS, 2)}, s{T4} offset:{q * 64} glc ; nowait')
        a(f"""s_lshl_b32 s{T6}, s{sXC}, 5
        v_mov_b32 v{vTk}, 1
        v_mov_b32 v{vTk+1}, s{T6}""")
        if o.get('bar1', 1): a('s_barrier')
        a(f"""s_cmp_lg_u32 s{sWAVE}, 7
        s_cbranch_scc1 L_NOTK
        s_mov_b64 exec, 1
        global_atomic_add v{vTk}, v{vTk+1}, v{vTk}, {sr(pDBG, 2)} sc0 sc1
        s_mov_b64 exec, -1
        s_branch L_TK0
        L_NOTK:""")
        code_pf()
        a('L_TK0:')
        vm.issue('tk')
        setup()
        w_early()
        S(T0, '(w - 4)*16 + L_ST'); va(vT + 6, [(5, 1, 8)], T0)
        a('s_barrier')
        vm.wait('xs')
        lg.wait_all()
        tag_hash()
        self.stamp('xsok')
        self.ln_stats2(raw, raw + 8, xs, st, st + 1)
        a(f"""v_lshrrev_b32 v{st}, 16, v{st}
        v_or_b32 v{st}, v{st}, v{st+1}
        v_mov_b32 v{st+1}, s{sTAG}""")
        self.dw('ds_write_b64', vT + 6, st, 2)
        a('L_FJ:')
        va(vT + 1, [(0, 2, 16)], None, L_ST)
        va(vT, [(0, 2, 16), (2, 1, 65536 if TL else 1024)])
        va(vT + 6, [(0, 5, 2048), (5, 1, 32)])
        va(vT + 2, [(0, 1, 64 * 512 if TL else 512)])
        S(T2, ('((j >> 4)*128 + w*8 + x)*512' if TL else '((x & 6) + ((x & 1)*2 + (j >> 4))*64 + w*8)*512') + ' + ((j >> 1) & 7)*64 + (j & 1)*4 + 8 + INA')
        self.barrier()
        self.r128(st, vT + 1, 0, 'st')
        lg.wait('st')
        a('s_mov_b64 exec, 0xff')
        self.bs(st, 4, vT, rWS, T1, 0, 'sc1')
        a('s_mov_b64 exec, 3')
        self.bs(st + 1, 1, vT + 2, rWS, T2, 0, 'sc1')
        a('s_mov_b64 exec, -1')
        self.stamp('A2pub')
        a(f"""s_cmp_lg_u32 s{sWAVE}, 7
        s_cbranch_scc1 L_NOTK2
        s_mov_b32 s{T0}, 0
        s_waitcnt vmcnt({len(vm.q) - 1 - vm.q.index('tk')})
        L_TK:
        v_readfirstlane_b32 s{T2}, v{vTk}
        s_cmp_lt_u32 s{T2}, 32
        s_cbranch_scc1 L_TKOK
        v_mov_b32 v{vTk}, s{sTAG}
        s_mov_b64 exec, 1
        buffer_store_dword v{vTk}, v{vZ}, {sr(rWS, 4)}, 0 offen offset:{MARK} sc1
        s_mov_b64 exec, -1
        s_add_u32 s{T0}, s{T0}, 1
        s_cmp_lt_u32 s{T0}, 8
        s_cbranch_scc0 L_TKNO
        s_add_u32 s{sXC}, s{sXC}, 1
        s_and_b32 s{sXC}, s{sXC}, 7
        s_lshl_b32 s{T6}, s{sXC}, 5
        v_mov_b32 v{vTk}, 1
        v_mov_b32 v{vTk+1}, s{T6}
        s_mov_b64 exec, 1
        global_atomic_add v{vTk}, v{vTk+1}, v{vTk}, {sr(pDBG, 2)} sc0 sc1
        s_mov_b64 exec, -1
        s_waitcnt vmcnt(0)
        s_branch L_TK
        L_TKNO:
        s_and_b32 s{sXC}, s2, 7
        s_lshr_b32 s{T2}, s2, 3
        L_TKOK:
        s_lshl3_add_u32 s{T2}, s{T2}, s{sXC}""")
        if o.get('rawrole'): a(f's_mov_b32 s{T2}, s2')
        a(f"""v_mov_b32 v{vTk}, s{T2}
        ds_write_b32 v{vT+1}, v{vTk} offset:64
        L_NOTK2:""")
        self.barrier()
        a(f'ds_read_b32 v{mq}, v{vT+1} offset:64'); lg.issue('role')
        lg.wait('role')
        a(f'v_readfirstlane_b32 s2, v{mq}')
        self.stamp('role')
        V.release(raw, 16); V.release(cv, 4)
        S(sX, 'wg & 7'); S(sJ, 'wg >> 3')
        S(sCB, 'j & 15' if TL else '(x & 1)*8 + (j & 7)')
        S(sRT, 'x*2 + (j >> 4)' if TL else '(x >> 1)*4 + (j >> 3)')
        S(sGTB, 'rt*4 + (w & 3)')
        S(sC32, 'cb*2 + kh')
        S(T5, 'gtb*65536 + c32*64')
        self.bl(xr, 4, vT + 6, rX, T5, 0, o.get('xtmod', ''), 'xt')
        self.bl(xr + 4, 4, vT + 6, rX, T5, 16, o.get('xtmod', ''), 'xt')
        S(T0, '(((x >> 1)*16 + cb)*16 + w)*512 + AINB')
        S(T2, '(wg*8 + w)*64 + INA')
        def role_prep():
            S(sR1, 'j & 15' if HL else '(x & 4)*2 + (j >> 2)'); S(sHP, '((x >> 2)*2 + (x & 1))*4 + (x & 2) + (j >> 4)' if HL else '(x & 3)*4 + ((j & 3) ^ 2)')
            S(sU0, o.get('u0', 'j & 12'))
            w_next(wb[0])
            S(sINB, '(wg*64 + w)*64 + INB')
            S(sKF, 'kh ^ (j >> 4)'); S(sROT, o.get('rot', '(((j >> 3) ^ j) & 1)*q'), q=4 if D2 else 8)
            S(sFS, 'x*7 + (j >> 2)'); S(sKQ, 'j & 3')
            va(vT + 4, [(0, 5, 8)])
            va(vT, [(0, 5, 16), (5, 1, 4096)])
            S(T3, 'w*4 + L_MP'); va(vT + 1, [(0, 6, 64)], T3)
            S(T3, 'kh*1024 + L_MP'); va(vT + 2, [(0, 4, 32), (5, 1, 512)], T3)
        S(T1, '(wg*4 + (w & 3))*256 + SINB')
        self.spoll([(0, 4, T2, 0)], range(4), work=role_prep, pipe=o.get('pipeA', 0))
        self.stamp('apre')
        a('s_barrier')
        st_ld = lambda: self.bl(st, 2, vT + 4, rWS, T1, 0, 'sc1', 'st')
        def st_fetch():
            st_ld()
            S(T3, 'hp*4096 + w*512')
            a(f'v_add_u32 v{vT+6}, s{T3}, v{vL16}')
            S('m0', 'w*512 + L_WPHI')
            a('s_mov_b32 exec_hi, 0')
            a(f'global_load_lds_dwordx4 v{vT+6}, {sr(pWPHI, 2)}'); vm.issue()
            a('s_mov_b32 exec_hi, -1')
            w_next(wb[1])
        self.try_load(lambda: self.bl(mq, 4, vT, rWS, T0, 0, 'sc1'), [mq + 1, mq + 3], vT + 3, st_fetch)
        self.stamp('modok')
        a(f'ds_write2_b32 v{vT+1}, v{mq}, v{mq+2} offset0:0 offset1:8'); lg.issue()
        for i in range(8): self.unpack(xs + 2 * i, xs + 2 * i + 1, xr + i)
        self.barrier()
        mp = V.alloc(16); hp = V.alloc(8)
        for i in (2, 3, 0, 1): self.r128(mp + 4 * i, vT + 2, (i >> 1) * 2048 + (i & 1) * 16, i >> 1)
        w_next(wb[2])
        self.finish_load('st', st_ld, [st + 1], None)
        self.stamp('statok')
        self.unpack(st + 1, st, st)
        a(f'v_rcp_f32 v{st}, v{st}')
        for i in E2: self.pk('add', xs + i, xs + i, st + 1, bc=(1,), neg=(1,))
        S(T0, '(((rt*16 + cb)*4 + (w & 3))*2 + kh)*2048 + HF')
        va(vT + 4, [(0, 4, 16), (4, 1, 1024), (5, 1, 512)])
        lg.wait(1); self.sum8(mp + 8)
        self.round1(mp + 8)
        lg.wait(0); self.sum8(mp)
        a(f'v_add_f32 v{mp+8}, 1.0, v{mp+8}')
        self.round2(mp + 8, mp)
        for h in range(2):
            rg = range(8 * h, 8 * h + 8)
            self.round_list([xs + i for i in rg])
            for i in range(8 * h, 8 * h + 8, 2): self.pk('mul', xs + i, xs + i, st, bc=(1,))
            self.round_list([xs + i for i in rg])
            for i in rg: self.dpp('v_mul_f32', xs + i, mp + 8, xs + i, f'row_newbcast:{i}')
            self.round_list([xs + i for i in rg])
            for i in rg: self.dpp('v_add_f32', xs + i, mp, xs + i, f'row_newbcast:{i}')
            for i in range(4 * h, 4 * h + 4): a(f'v_cvt_pk_bf16_f32 v{hp+i}, v{xs+2*i}, v{xs+2*i+1}')
            self.bs(hp + 4 * h, 4, vT + 4, rWS, T0, 256 * h, 'sc1', 'hs')
        self.stamp('hst')
        w_next(wb[3])
        va(vB, [(5, 1, 2080), (2, 2, 128), (3, 1, 64), (0, 2, 8)])
        va(vB + 1, [(4, 1, 1056)])
        va(vB + 2, [(3, 1, 128)])
        a(f"""v_add_u32 v{vB}, v{vB}, v{vB+1}
        v_sub_u32 v{vB+1}, v{vB}, v{vB+2}
        v_add_u32 v{vB+1}, 64, v{vB+1}""")
        for q in (1, 2):
            for h in range(2): a(f'v_add_u32 v{vB+2*q+h}, {2*q*SLOT}, v{vB+h}')
        S(T1, 'kh*2048 + L_WPHI')
        va(vT, [(2, 2, 64), (4, 1, 32), (0, 2, 8), (5, 1, 512)], T1)
        va(vT + 1, [(0, 3, 4096), (3, 1, 128 * 4096)] if HL else [(0, 2, 8 * 4096), (2, 2, 4096)])
        S(T0, ('rt*32768' if HL else '((rt >> 3)*4 + (rt & 7)*32)*4096') + ' + (cb >> 1)*64 + (cb & 1)*4 + INB')
        va(vT + 2, [(4, 1, 64), (5, 1, 16)]); va(vWo, [(0, 3, 16)])
        a(f'v_xor_b32 v{vWo}, v{vWo}, v{vT+2}'); va(vT + 2, [(3, 3, 2048)]); a(f'v_add_u32 v{vWo}, v{vWo}, v{vT+2}')
        S(T1, '(w & 2)*32'); va(vT + 2, [(4, 1, 32)], T1); va(vFG, [(0, 3, 16)])
        a(f'v_xor_b32 v{vFG}, v{vFG}, v{vT+2}'); va(vT + 2, [(3, 3, 7168)]); a(f'v_add_u32 v{vFG}, v{vFG}, v{vT+2}')
        S(T1, '(w & 1)*128')
        va(vT + 2, [(5, 1, 64)], T1); va(vFD, [(0, 5, 16), (5, 1, 2048)])
        a(f'v_xor_b32 v{vFD}, v{vFD}, v{vT+2}')
        S(sFG, '(kq*8 + w)*(32*7168) + fs*128'); S(sFD, '(fs*8 + w)*16384 + kq*512')
        a(f"""s_cmp_ge_u32 s{sJ}, 28
        s_cselect_b32 s{rWG+2}, 0, s{rWG+2}
        s_cselect_b32 s{rWU+2}, 0, s{rWU+2}
        s_cselect_b32 s{rWD+2}, 0, s{rWD+2}""")
        vm.wait('hs')
        a('s_barrier')
        self.push(vT + 1, T0, 16, vT + 2, 'L_PB')
        self.stamp('hpub')
        V.release(xs, 16); V.release(mp, 16); V.release(hp, 8); V.release(st, 4); V.release(mq, 4); V.release(vTk, 2)
        w_next(wb[4])
        for s in range(2):
            for u in range(2): self.tr(wphi + 4 * s + 2 * u, vT, s * 1024 + u * 256)
        AD, LOOK, LASTB = o['AD'], 6, o['LASTB']
        accs = V.alloc(96)
        big = V.alloc(76)
        Ar, Br = big, big + 4 * AD
        assert 4 * AD + 4 * (LOOK + 1) <= 76
        S(T2, '(r1*64 + w)*4096 + HF')
        S(T0, '(w & 3)*4096 + L_XF'); a(f'v_add_u32 v{vXF}, s{T0}, v{vL16}')
        vXW = V.alloc(); vVW = V.alloc()
        va(vXW, [(0, 4, 16), (5, 1, 512), (4, 1, 8)], T0)
        S(T0, '(w & 3)*1024 + L_V'); va(vVW, [(0, 4, 32), (4, 2, 8)], T0)
        S(T0, '(w & 3)*1024 + kh*16384 + L_PHK'); va(vPW, [(0, 5, 32), (5, 1, 16)], T0)
        fq = [(m, i) for m in range(3) for i in range(4)]
        freg = []
        def f_src(m, i, back=0, T0=T0):
            if m < 2: S(T0, 'fg + q', q=i * 8 * 7168 - back * 4 * 32 * 7168)
            else: S(T0, 'fd + q', q=i * 4096 - back * 4 * 16384)
            return (vFG, (rWG, rWU)[m]) if m < 2 else (vFD, rWD)
        def f_lds(m, i): return (L_GU + m * 32768 if m < 2 else L_DN) + i * 1024
        def ffn_reg(n):
            for _ in range(n):
                m, i = fq.pop(0)
                for back in range(2):
                    v, r = f_src(m, i, back)
                    self.bl(big + 8 * len(freg) + 4 * back, 4, v, r, T0, 0, o.get('ntffn', 'nt'), 'ffn')
                freg.append((m, i))
        def ffn_dma(n, T0=T0):
            for _ in range(n):
                m, i = fq.pop(0)
                if o.get('nofd'): continue
                v, r = f_src(m, i, 0, T0)
                S('m0', 'w1k*4 + q', q=f_lds(m, i))
                self.dma(v, r, T0, 0, o.get('ntffn', 'nt'), 'gu' if m < 2 else 'dn')
        S(sWB, 'w*16384' if D2 else '(rot*4 + w)*16384'); S(sWO2, '(j >> 4)*1048576 + cb*128'); S(sW1K, 'w*1024')
        def wo_dma(it, back=0, T0=T0):
            S(T0, '(((wb + q) & 0xfffff) ^ (rot*65536)) + (wo2 ^ h)' if D2 else '((wb + q) & 0xfffff) + (wo2 ^ h)', q=(8 * it - 4 * back) * 16384, h=(it >> 3) << 20)
            S('m0', 'w1k + q', q=WO_H0 + it * 8192 - 4096 * back)
            self.dma(vWo, rWO, T0, 0, '', 'wo')
        self.inbox(0, 2, work=lambda: w_next(wb[5]), pipe=o.get('pipeB', 0))
        assert len(wq) % 3 == 0 and 30 <= len(wq) <= (45, 36, 36, 42)[o.get('wxor', 1)]
        NPU = 16 - len(wq) // 3
        vm.wait(('W', (0, 2, 3, 1)[o.get('wxor', 1)]))
        a('s_barrier')
        self.stamp('hok')
        a(f"""s_cmp_ge_u32 s{sWAVE}, 4
        s_cbranch_scc1 L_HELP
        s_setprio 2""")
        q_hok = list(vm.q)
        if 'pad' in o:
            a('.p2align 6')
            for _ in range(o['pad']): a('s_nop 0')
        def a_load(sg):
            if sg % 4 == 0: S(T3, '((u0 + n) & q)*16384 + T2', n=sg // 4, q=o.get('amask', 15))
            self.bl(Ar + 4 * (sg % AD), 4, vL16, rWS, T3, (sg % 4) * 1024, o.get('amod', 'sc1'), ('A', sg))
        CORD = [(1, 2), (1, 3), (1, 0), (1, 1)] + [(t, ct) for t in (0, 2) for ct in range(4)]
        WEV = o.get('wev', 2); NB = LOOK + 1
        def b_read(n, q):
            st_, c = divmod(n, 12); t, ct = CORD[c]
            slot = (st_ >> 1) % 6
            off = (slot & 1) * SLOT + t * SEC + (st_ & 1) * 4160 + (ct & 1) * 32 + q * 512
            self.tr(Br + 4 * (n % NB) + 2 * q, vB + 2 * (slot >> 1) + (ct >> 1), off, ('B', n))
        nxt = 0
        def a_more(lim):
            nonlocal nxt
            while nxt < min(lim, 64): a_load(nxt); nxt += 1
        a_more(2)
        for n in range(LOOK):
            for q in range(2): b_read(n, q)
        a_more(o.get('A0', 4))
        b14 = False
        for n in range(384):
            st_, c = divmod(n, 12); t, ct = CORD[c]
            if n % WEV == 0: lg.wait(('B', min(n + WEV - 1, 383)))
            for th in range(2):
                if c == 0: vm.wait(('A', 2 * st_ + th))
                d = accs + 32 * t + 16 * (ct >> 1) + 8 * (ct & 1) + 4 * th
                a(f'v_mfma_f32_16x16x32_bf16 {vr(d, 4)}, {vr(Br + 4*(n % NB), 4)}, {vr(Ar + 4*((2*st_ + th) % AD), 4)}, ' + ('0' if st_ == 0 else vr(d, 4)))
                if n + LOOK < 384:
                    if th == 0 and (n + LOOK) % 24 == 0 and (n + LOOK) // 24 <= LASTB: a('s_barrier')
                    b_read(n + LOOK, th)
            if c in o.get('aat', (0, 3, 6, 9)): a_more(min(nxt + 1, 2 * st_ + AD))
            if nxt == 64 and not b14 and (n + LOOK) // 24 >= LASTB and (n + LOOK) % 24:
                b14 = True; a('s_barrier')
        self.stamp('gemm1')
        aq, ak, av = accs, accs + 32, accs + 64
        def cvt8(d, s_, swap=True):
            for c in range(2):
                for th in range(2):
                    for ip in range(2): a(f'v_cvt_pk_bf16_f32 v{d + 4*c + 2*th + ip}, v{s_ + 8*c + 4*th + 2*ip}, v{s_ + 8*c + 4*th + 2*ip + 1}')
            if swap:
                for c in range(2):
                    for ip in range(2): a(f'v_permlane16_swap_b32 v{d + 4*c + ip}, v{d + 4*c + 2 + ip}')
        def put8(addr, d, off, oc_, ot):
            for c in range(2):
                for th in range(2): self.dw('ds_write_b64', addr, d + 4 * c + 2 * th, 2, off + c * oc_ + th * ot)
        cvt8(vv, ak + 16, False)
        put8(vXW, vv, 0, 1024, 256)
        cvt8(fr, ak)
        self.barrier()
        a('s_setprio 0')
        pp = ak; ee = ak + 16
        def phi_logits(src):
            a(f'v_mfma_f32_32x32x16_bf16 {vr(pp, 16)}, {vr(wphi, 4)}, {vr(src, 4)}, 0')
            a(f'v_mfma_f32_32x32x16_bf16 {vr(pp, 16)}, {vr(wphi + 4, 4)}, {vr(src + 4, 4)}, {vr(pp, 16)}')
        phi_logits(fr)
        for h in range(2):
            cvt8(vv if h == 0 else vq, av + 16 * h, False)
            put8(vVW, vv if h == 0 else vq, h * 8192, 4096, 512)
        cvt8(fr, aq + 16, False)
        put8(vXW, fr, 2048, 1024, 256)
        cvt8(vq, aq)
        a('s_branch L_JOIN')
        a('L_HELP:')
        vm.q = [('W', 1)] * len(q_hok) if o.get('wxor', 1) == 1 else list(q_hok); lg.reset()
        m2w = accs; m2c = accs + 32; g4 = accs + 48
        def w_unit(n):
            for wexpr in ('w - 4', 'w'):
                w_base(n, wexpr)
                for t in range(3): w_slot(n, t)
        for n in range(NPU, 6): w_unit(n)
        S(T0, '((j & 3)*4 + w - 4)*128' if HL else '((x & 3)*4 + w - 4)*128')
        va(vCo, [(3, 3, 16)], T0)
        va(vWM, [(3, 3, 8 * 12288), (0, 3, 16)])
        S(T4, 'T0*6144 + (((j >> 2) & 3)*16 + x*2 + (j >> 4))*128 + 4096' if HL else 'T0*6144 + (j*2 + (x >> 2))*128 + 4096')
        a(f'global_load_dwordx4 {vr(m2c + 8, 4)}, v{vCo}, {sr(pC, 2)}'); vm.issue('m2c')
        m2l = list(range(8)); wol = [9, 10, 11, 12]; pwl = list(range(1, 8)); sil = list(range(8))
        m2ops = self.gemv_ops([m2w + 4 * i for i in range(8)], [m2c + i for i in range(8)], acc, vT, vT + 1, False)
        m2pos = 0
        m2q = accs; wr1 = accs + 8; vM2 = accs + 9
        ld_m2 = lambda: [self.bl(m2q + 4 * q, 4, vM2, rWS, T5, q * 1024, 'sc1', 'm2q') for q in range(2)]
        def m2_final():
            self.finish_load('m2q', ld_m2, [m2q + 1, m2q + 3, m2q + 5, m2q + 7], vT)
            q0, q1, q2, q3 = m2q, m2q + 1, m2q + 2, m2q + 3
            S(T0, '(w & 3)*128 + L_MT'); va(vT, [(0, 5, 4)], T0)
            S(T1, 'w & 3')
            a(f"""v_add_f32 v{q0}, v{m2q}, v{m2q+4}
            v_add_f32 v{q1}, v{m2q+2}, v{m2q+6}
            v_add_f32 v{q2}, v{m2q}, v{m2q+4}""".replace(f'v_add_f32 v{q2}, v{m2q}, v{m2q+4}', f'v_mov_b32 v{q2}, v{q0}'))
            a(f"""v_mov_b32 v{q3}, v{q1}
            s_cmp_eq_u32 s{T1}, 2
            s_cselect_b32 s{T2}, 1.0, 0
            v_permlane32_swap_b32 v{q0}, v{q2}
            v_permlane32_swap_b32 v{q1}, v{q3}""")
            self.pk('add', q0, q0, q2)
            self.round2(q0, q1)
            a(f"""v_add_f32 v{q0}, s{T2}, v{q0}
            v_add_f32 v{q1}, s{T2}, v{q1}
            v_cvt_pk_bf16_f32 v{q2}, v{q0}, v{q1}""")
            self.dw('ds_write_b32', vT, q2, 1)
            a('s_cbranch_scc0 L_NOG')
            g0, g1, gh, gl = m2q + 4, m2q + 5, m2q + 6, m2q + 7
            self.unpack(q0, q1, q2); self.unpack(g0, g1, wr1)
            self.pk('mul', g0, g0, q0)
            a(f'v_cvt_pk_bf16_f32 v{gh}, v{g0}, v{g1}')
            self.unpack(q0, q1, gh)
            self.pk('add', q0, g0, q0, neg=(1,))
            a(f"""v_cvt_pk_bf16_f32 v{gl}, v{q0}, v{q1}
            v_add_f32 v{q0}, v{g0}, v{g1}
            ds_write2_b32 v{vT}, v{gh}, v{gl} offset0:64 offset1:96
            ds_write_b32 v{vT}, v{wr1} offset:512""")
            for ctl in ('quad_perm:[1,0,3,2]', 'quad_perm:[2,3,0,1]', 'row_half_mirror', 'row_ror:8'): self.dpp('v_add_f32', q0, q0, q0, ctl)
            S(T0, '(rt*16 + cb)*8 + GR')
            a(f"""v_mov_b32 v{q2}, v{q0}
            v_mov_b32 v{q1}, s{sTAG}
            v_permlane16_swap_b32 v{q0}, v{q2}
            v_add_f32 v{q0}, v{q0}, v{q2}
            s_mov_b64 exec, 1""")
            self.bs(q0, 2, vZ, rWS, T0, 0, 'sc1', count=False)
            a("""s_mov_b64 exec, -1
        L_NOG:""")
        def act(op, k):
            nonlocal m2pos
            kind, n = op[0], int(op[1:] or 1)
            if kind == 'm':
                for _ in range(2 * n):
                    i = m2l.pop(0)
                    self.bl(m2w + 4 * i, 4, vWM, rWM, T4, 0, o.get('ntm2', 'nt'), ('m2', i))
                    if m2l: S(T4, 'T4 + 12288')
            elif kind == 'f': ffn_reg(n)
            elif kind == 'o':
                assert k >= 13
                for _ in range(n):
                    it = wol.pop(0); wo_dma(it, 1); wo_dma(it)
            elif kind == 'p':
                a('s_waitcnt lgkmcnt(0)')
                for q in range(n):
                    b = pwl.pop(0)
                    a(f's_load_dword s{sPL + 2*q}, {sr(rWS, 2)}, s{sINB} offset:{b * 512} glc')
                    a(f's_load_dword s{sPL + 2*q + 1}, {sr(rWS, 2)}, s{sINB} offset:{b * 512 - 256} glc')
            elif kind == 'q':
                S(T0, 'fs*8192 + (w - 4)*256 + HGR')
                a('s_waitcnt lgkmcnt(0)')
                for q in range(4): a(f's_load_dword s{sPL + q}, {sr(rWS, 2)}, s{T0} offset:{q * 2048 + 1024 + 252} glc')
            elif kind == 'z':
                for i in range(4): a(f'v_mov_b32 v{g4+i}, -1')
                if n == 1:
                    for we in ('w - 4', 'w'):
                        S(T0, f'(((r1*4 + (w & 3))*16 + hp)*2 + (({we}) >> 2))*2048 + OF')
                        for q in range(2): self.bs(g4, 4, vL16, rWS, T0, 1024 * q, 'sc1', 'pzo')
                else:
                    for we in ('w - 4', 'w'):
                        S(T0, f'((hp*8 + {we})*32 + r1)*1024 + KVP'); S(T1, 'T0 + 16384')
                        self.bs(g4, 4, vL16, rWS, T0, 0, 'sc1', 'pz'); self.bs(g4, 4, vL16, rWS, T1, 0, 'sc1', 'pz')
                    S(T0, '((hp*8 + w - 4)*16 + r1)*64 + ZP')
                    va(vT + 2, [(0, 2, 16), (2, 1, 4096)])
                    a('s_mov_b64 exec, 0xff')
                    self.bs(g4, 4, vT + 2, rWS, T0, 0, 'sc1', 'pz')
                    a('s_mov_b64 exec, -1')
            elif kind == 'M':
                va(vM2, [(0, 5, 16), (5, 1, 512)])
                S(T5, '((w & 3)*16 + cb)*2048 + MODP2')
                S(T0, 'cb*128'); va(vT, [(0, 5, 4)], T0)
                a(f'global_load_dword v{wr1}, v{vT}, {sr(pWR, 2)}'); vm.issue('m2q')
                ld_m2()
            elif kind == 'N': m2_final()
            elif kind == 'K':
                self.bl(accs + 10, 1, vZ, rWS, '0', MARK, 'sc1', 'mk')
                S(T0, '(hp*16 + r1)*1024 + (w & 3)*256 + KIN'); S(T1, 'hp*128 + CFL')
                a(f'v_lshlrev_b32 v{vWM}, 7, v{vL}')
                a('s_mov_b64 exec, 3')
                self.bl(vWM, 1, vWM, rWS, T0, 0, '')
                self.bl(vCo, 1, vZ, rWS, T1, 0, '')
                a('s_mov_b64 exec, -1')
            elif kind == 'L':
                vm.wait('mk')
                a(f'v_mov_b32 v{vT}, {L_MT + 896}')
                self.dw('ds_write_b32', vT, accs + 10, 1)
            elif kind == 'h':
                S(T0, '(fs*4 + kq)*2048 + (w & 1)*1024 + HGR'); S(T1, '(rt*16 + cb)*2048 + (w & 1)*1024 + STAT')
                if TL: a(f's_bitcmp1_b32 s{sWAVE}, 1'); a(f's_cselect_b32 s{T0}, s{T1}, s{T0}')
                self.bl(m2c + 12, 4, vL16, rWS, T0, 0, '')
            elif kind == 's':
                vm.wait('m2c')
                for _ in range(n):
                    i = sil.pop(0)
                    a(f'v_and_b32 v{m2c+i}, s{sMASK}, v{m2c+8+i//2}' if i & 1 else f'v_lshlrev_b32 v{m2c+i}, 16, v{m2c+8+i//2}')
                    self.silu(m2c + i, vT + (i & 1))
            elif kind == 'g':
                assert not sil
                for _ in range(n):
                    vm.wait(('m2', m2pos // 16))
                    for s_ in m2ops[m2pos:m2pos + 16]: a(s_)
                    m2pos += 16
            elif kind == 'r':
                assert m2pos == 128
                for s_ in m2ops[128:]: a(s_)
                self.dw('ds_write_b32', vGA, acc, 1, L_M2 - SCR)
                lg.wait_all()
            elif kind == 'P':
                a(f"""s_cmp_lg_u32 s{sWAVE}, 4
                s_cbranch_scc1 L_M2F
                ds_read_b128 {vr(acc, 4)}, v{vL32S} offset:{L_M2 - SCR}""")
                S(T0, '((((j >> 2) & 3)*16 + x*2 + (j >> 4))*4 + (j & 3))*512 + MODP2' if HL else '((j*2 + (x >> 2))*4 + (x & 3))*512 + MODP2')
                a(f"""s_waitcnt lgkmcnt(0)
                v_add_f32 v{acc}, v{acc}, v{acc+1}
                v_add_f32 v{acc+2}, v{acc+2}, v{acc+3}
                v_mov_b32 v{acc+1}, s{sTAG}
                v_add_f32 v{acc}, v{acc}, v{acc+2}""")
                self.bs(acc, 2, vL8, rWS, T0, 0, 'sc1', count=False)
                a('L_M2F:')
            else: raise ValueError(op)
        sched = {int(k): v.split() for k, v in o['sched'].items()}
        for op in sched.get(0, []): act(op, 0)
        for k in range(1, LASTB + 1):
            for kk in (range(k, 16) if k == LASTB else [k + 1 if k < 3 and o.get('wxor', 1) == 3 else k]): vm.wait(('W', kk))
            if o.get('ust'): self.stamp(f'w{k}')
            a('s_barrier')
            if o.get('ust'): self.stamp(f'u{k}')
            ops = sched.get(k, [])
            if 6 <= k + 4 < 16:
                pre = [op[1:] for op in ops if op[0] == '<']
                for op in pre: act(op, k)
                if not o.get('now2'): w_unit(k + 4)
            for op in ops:
                if op[0] != '<': act(op, k)
        if o.get('b14', 1):
            assert LASTB == 13 and AD <= 12
            a('s_barrier')
            for op in sched.get(14, []): act(op, 14)
        self.barrier()
        for q in range(2): self.r128(fr + 4 * q, vXF, q * 1024)
        lg.wait_all()
        phi_logits(fr)
        for op in sched.get(15, []): act(op, 15)
        assert (not m2l or o.get('nom2')) and not wol
        assert 8 * len(freg) <= 76
        a('L_JOIN:')
        pzq = list(vm.q)
        vm.reset(); lg.q = [None]
        V.release(vXW); V.release(vVW); V.release(vB, 6); V.release(vWd); V.release(vGA); V.release(vL32S); V.release(acc, 8)
        V.release(big + 8 * len(freg), 76 - 8 * len(freg))
        ph = aq; fx = aq + 16
        vPA = V.alloc(); vPB = V.alloc()
        self.softmax_pm(pp, ee, ph, vT)
        for fb in range(4): self.dw('ds_write_b128', vPW, ph + 4 * fb, 4, fb * 4096)
        S(T0, 'w*4096 + L_PHK'); a(f'v_add_u32 v{vPA}, s{T0}, v{vL8}')
        S(T0, 'kh*8192 + L_V'); a(f'v_add_u32 v{vPB}, s{T0}, v{vL8}')
        ones = fr
        for i in range(4): a(f'v_mov_b32 v{ones+i}, 0x3f803f80')
        S(T0, '((hp*8 + w)*32 + r1)*1024 + KVP'); S(T2, 'T0 + 16384')
        S(T3, '(hp*8 + w)*1024 + ZP'); S(T1, 'r1*64 + T3')
        self.stamp('ksm')
        self.barrier()
        self.stamp('phik')
        tb7 = V.alloc(8); tb4 = tb7 + 4
        S(T5, 'kh*64 + L_MT'); va(tb7 + 3, [(0, 3, 4), (5, 1, 32)], T5)
        for q, t in ((0, 0), (1, 4), (2, 5), (4, 1), (5, 2), (6, 3), (7, 6)): self.dr('ds_read_b32', tb7 + q, 1, tb7 + 3, t * 128)
        a(f'v_mov_b32 v{tb7+3}, {L_MT + 896}')
        self.dr('ds_read_b32', tb7 + 3, 1, tb7 + 3)
        fragA = [ee + 4 * i for i in range(4)]
        fragB = [av + 4 * i for i in range(8)]
        kvd = vv; zd = fr + 4
        def kvm(u):
            lg.wait(('kv', u))
            for db in range(2):
                a(f'v_mfma_f32_16x16x32_bf16 {vr(kvd + 4*db, 4)}, {vr(fragA[u], 4)}, {vr(fragB[2*u+db], 4)}, ' + ('0' if u == 0 else vr(kvd + 4*db, 4)))
            a(f'v_mfma_f32_16x16x32_bf16 {vr(zd, 4)}, {vr(fragA[u], 4)}, {vr(ones, 4)}, ' + ('0' if u == 0 else vr(zd, 4)))
        for ts in range(4):
            self.tr(fragA[ts], vPA, ts * 1024, ('kv', ts)); self.tr(fragA[ts] + 2, vPA, ts * 1024 + 512, ('kv', ts))
            for db in range(2):
                self.tr(fragB[2*ts+db], vPB, db * 4096 + ts * 1024, ('kv', ts)); self.tr(fragB[2*ts+db] + 2, vPB, db * 4096 + ts * 1024 + 512, ('kv', ts))
            if ts >= 2: kvm(ts - 2)
        va(vPW, [(0, 4, 8 * 4096)] if HL else [(0, 3, 32 * 4096), (3, 1, 4 * 4096)])
        S(T4, '(wg & q)*4096 + (r1 >> 1)*64 + (r1 & 1)*4 + INB + 512', q=0x87 if HL else 0x1b)
        kvm(2)
        assert HL
        a(f'v_cmp_eq_u32 vcc, s{sTAG}, v{tb7+3}')
        a(f's_cmp_eq_u32 vcc_lo, 0')
        a(f's_cselect_b32 s{sLOC}, {o.get("local", 1)}, 0')
        kvm(3)
        a(f"""s_cmp_lt_u32 s{sWAVE}, 4
        s_cbranch_scc1 L_NOQX
        ds_read_b128 {vr(vq, 4)}, v{vXF} offset:2048
        ds_read_b128 {vr(vq + 4, 4)}, v{vXF} offset:3072
        L_NOQX:""")
        if 'pz' in pzq: a(f's_waitcnt vmcnt({pzq[::-1].index("pz")})')
        self.bs(kvd, 4, vL16, rWS, T0, 0, 'sc1', 'kvs')
        self.bs(kvd + 4, 4, vL16, rWS, T2, 0, 'sc1', 'kvs')
        a('s_mov_b32 exec_lo, 0x00010001')
        a('s_mov_b32 exec_hi, 0x00010001')
        self.bs(zd, 4, vL, rWS, T1, 0, 'sc1', 'kvs')
        a('s_mov_b64 exec, -1')
        lg.wait_all()
        phi_logits(vq)
        self.stamp('kvst')
        wl = [2, 3, 4, 5, 6, 7, 8, 13, 14, 15, 0, 1]
        kp = av; zz = av + 16; g4 = vv
        vKP = V.alloc()
        va(vKP, [(3, 3, 1024), (0, 3, 16)])
        va(vXF, [(0, 3, 16), (5, 1, 8)])
        wo1 = lambda: wo_dma(wl.pop(0), 0, T6)
        keep = a.items; a.items = []
        self.softmax_pm(pp, ee, ph, vv)
        qsm = a.items; a.items = keep
        qcost = [2 if it[1].is_trans or 'permlane' in it[1].mn else 1 for it in qsm]
        qtot = sum(qcost); qdone = [0]
        def q_slice(upto):
            while qsm and qdone[0] < qtot * upto / 100:
                a.items.append(qsm.pop(0)); qdone[0] += qcost.pop(0)
        qs = o.get('qs', (35, 85, 100))
        CL = o.get('cl', (0, 1))
        q_slice(qs[0])
        S(T5, 'hp*128 + CFL'); S(T1, 'r1*8 + T5')
        vCF = V.alloc(); cf = V.alloc()
        va(vCF, [(0, 4, 8)])
        vm.wait('kvs')
        a('s_barrier')
        if CL[0]:
            a(f"""s_cmp_eq_u32 s{sLOC}, 0
            s_cbranch_scc1 L_PCG
            s_cmp_lg_u32 s{sWAVE}, 0
            s_cbranch_scc1 L_PC
            v_mov_b32 v{cf}, s{sTAG}
            s_mov_b64 exec, 1""")
            self.bs(cf, 1, vZ, rWS, T1, 0, '', count=False)
            a("""s_mov_b64 exec, -1
            s_branch L_PC
            L_PCG:""")
        self.push(vPW, T4, 16, vPB, 'L_PC')
        self.stamp('kvpub')
        S(T0, '(hp*16 + r1)*16384 + w*128 + KVP')
        S(T2, '(hp*16 + r1)*1024 + w*128 + KIN'); S(T4, 'T4 + 6*512')
        c1_work = lambda: (self.weave(lambda: q_slice(qs[1]), [wo1] * o['wowin'][0]), self.stamp('cw'))
        if CL[0]:
            ld_cf = lambda: self.bl(cf, 1, vCF, rWS, T5, 0, 'sc1', 'cf')
            if o.get('cfpre', 1): ld_cf()
            c1_work()
            a(f"""s_cmp_lg_u32 s{sLOC}, 0
            s_cbranch_scc1 L_C1L""")
            q_ = list(vm.q)
            self.inbox(1, 2)
            a("""s_barrier
            s_branch L_C1D
            L_C1L:""")
            if o.get('cfpre', 1): self.finish_load('cf', ld_cf, [cf])
            else: self.poll(ld_cf, [cf])
            vm.q = q_
            a('L_C1D:')
        else:
            self.inbox(1, 2, work=c1_work)
            a('s_barrier')
        V.release(vCF); V.release(vWM); V.release(vCo)
        self.stamp('kvok')
        S(T5, 'T0 + 8192')
        ld_kp = lambda: (self.bl(kp, 4, vKP, rWS, T0, 0, 'sc1', 'kp'), self.bl(kp + 4, 4, vKP, rWS, T5, 0, 'sc1', 'kp'))
        ld_z = lambda: self.bl(zz, 4, vL16, rWS, T3, 0, 'sc1', 'z')
        ld_kp(); ld_z()
        S(T1, 'w*32 + L_ZF'); va(vT + 2, [(0, 2, 8), (5, 1, 4)], T1)
        S(T1, 'w*1024 + L_KVF'); va(vT + 1, [(0, 4, 16), (5, 1, 512), (4, 1, 8)], T1)
        S(T1, 'kh*128 + L_ZF'); va(vT + 3, [(5, 1, 16)], T1)
        S(T1, 'kh*4096 + L_KVF'); a(f'v_add_u32 v{vPA}, s{T1}, v{vL16}')
        def red4(r, ctls):
            for i in range(2): a(f'v_permlane32_swap_b32 v{r+i}, v{r+2+i}')
            self.pk('add', r, r, r + 2)
            for ctl in ctls:
                for i in range(2): self.dpp('v_add_f32', r + i, r + i, r + i, ctl)
            for i in range(2): a(f'v_mov_b32 v{r+2+i}, v{r+i}')
            for i in range(2): a(f'v_permlane16_swap_b32 v{r+i}, v{r+2+i}')
            self.pk('add', r, r, r + 2)
            a(f'v_cvt_pk_bf16_f32 v{r}, v{r}, v{r+1}')
        self.weave(lambda: q_slice(qs[2]), [wo1] * o['wowin'][1])
        vm.wait('kp')
        self.pk('add', kp, kp, kp + 4); self.pk('add', kp + 2, kp + 2, kp + 6)
        red4(kp, ['row_ror:8'])
        a(f"""v_mov_b32 v{kp+1}, s{sTAG}
        s_mov_b32 exec_lo, 0xff
        s_mov_b32 exec_hi, 0xff""")
        kc = V.alloc(4)
        if CL[1]:
            self.bs2([(kp, 2, vXF, T2, 0)])
            a(f"""s_mov_b64 exec, -1
            v_mov_b32 v{kc}, v{kp}
            v_mov_b32 v{kc+1}, v{kp+1}
            v_add_u32 v{kc+2}, s{T2}, v{vXF}
            s_cbranch_scc1 L_PC2""")
        else:
            self.bs(kp, 2, vXF, rWS, T2, 0, 'sc1', count=False)
            a('s_mov_b64 exec, -1')
        a('s_barrier')
        self.push(vPW, T4, 16, vPB, 'L_PC2')
        self.stamp('c2pub')
        kf = av; zf = av + 16; num = pp; den = ee
        vm.wait('z')
        self.weave(lambda: red4(zz, ['row_ror:4', 'row_ror:8']), [wo1] * o['wowin'][2])
        self.dw('ds_write_b32', vT + 2, zz, 1)
        q_slice(100)
        self.barrier()
        for fb in range(4): self.r128(zf + 4 * fb, vT + 3, fb * 32)
        lg.wait_all()
        k2 = av + 8
        S(T0, '(hp*8 + w)*2048 + KIN')
        def den_work():
            for fb in range(4):
                a(f'v_mfma_f32_32x32x16_bf16 {vr(den, 16)}, {vr(zf + 4*fb, 4)}, {vr(ph + 4*fb, 4)}, ' + ('0' if fb == 0 else vr(den, 16)))
            self.round1(den)
            a(f'v_add_f32 v{den}, 0x358637bd, v{den}')
            self.round1(den)
            a(f'v_rcp_f32 v{den}, v{den}')
            self.stamp('c2w')
        ld_k2 = lambda: [self.bl(k2 + 4 * q, 4, vL16, rWS, T0, q * 1024, 'sc1') for q in range(2)]
        if CL[1]:
            if o.get('denpre', 0): den_work()
            a(f"""s_cmp_lg_u32 s{sLOC}, 0
            s_cbranch_scc1 L_C2L""")
            self.inbox(7, 2)
            a('L_C2L:')
            self.try_load(ld_k2, [k2 + 1, k2 + 3, k2 + 5, k2 + 7], vT, None if o.get('denpre', 0) else den_work)
        else:
            self.inbox(7, 2, work=den_work)
            self.stamp('c2h')
            self.poll(ld_k2, [k2 + 1, k2 + 3, k2 + 5, k2 + 7], vT)
        for db in range(2):
            a(f'ds_write2_b32 v{vT+1}, v{k2+4*db}, v{k2+4*db+2} offset0:{64*db} offset1:{64*db+1}'); lg.issue()
        self.barrier()
        self.stamp('kvred')
        for fb in range(4): self.r128(kf + 4 * fb, vPA, fb * 1024, ('kf', fb))
        S(T0, '(((r1*4 + (w & 3))*16 + hp)*2 + kh)*2048 + OF')
        va(vT + 4, [(0, 4, 16), (4, 1, 1024), (5, 1, 256)])
        for fb in range(4):
            lg.wait(('kf', fb))
            a(f'v_mfma_f32_32x32x16_bf16 {vr(num, 16)}, {vr(kf + 4*fb, 4)}, {vr(ph + 4*fb, 4)}, ' + ('0' if fb == 0 else vr(num, 16)))
        for h in range(2):
            self.round_list([num + i for i in range(8 * h, 8 * h + 8)])
            for i in range(8 * h, 8 * h + 8, 2): self.pk('mul', num + i, num + i, den, bc=(1,))
            for i in range(4 * h, 4 * h + 4): a(f'v_cvt_pk_bf16_f32 v{vq+i}, v{num+2*i}, v{num+2*i+1}')
            self.bs(vq + 4 * h, 4, vT + 4, rWS, T0, 512 * h, 'sc1', 'os')
        self.stamp('ost')
        for r, n in ((fr, 8), (vv, 8), (vPW, 1), (vXF, 1), (vPA, 1), (vPB, 1), (vKP, 1), (accs, 16), (accs + 32, 64), (wphi, 8)):
            V.release(r, n)
        assert GS == 0
        vG16 = vL16
        vBa = V.alloc(4); xf = V.alloc(16)
        S(T4, 'kh*(65536 + 64) + WO_H0')
        va(vBa, [(5, 1, 2048), (4, 1, 512), (2, 2, 128), (3, 1, 64), (1, 1, 32), (4, 1, 16), (0, 1, 8)])
        a(f'v_xor_b32 v{vBa}, s{T4}, v{vBa}')
        for q, x_ in ((1, 16), (2, 64), (3, 80)): a(f'v_xor_b32 v{vBa+q}, {x_}, v{vBa}')
        assert WO_H1 == WO_H0 + 65536
        va(vT + 1, LCB)
        S(T2, ('((r1 & 1)*128 + (r1 >> 1))*4096' if TL else '((r1 >> 2)*2 + (r1 & 3)*64)*4096') + (' + ((hp >> 3)*4 + (hp & 3))*64 + ((hp >> 2) & 1)*4 + INB + 1024' if D2 else ' + (hp >> 1)*64 + (hp & 1)*4 + INB + 1024'))
        gaf = V.alloc(16); gp = V.alloc(16); gr = V.alloc(2); vGR = V.alloc(); cn = V.alloc(2)
        def expand(dst, t):
            for i in range(8):
                self.dpp('v_mul_u32_u24', dst + 2 * i, t, cn, f'row_newbcast:{i}')
                self.dpp('v_and_b32', dst + 2 * i + 1, t, cn + 1, f'row_newbcast:{i}')
        a(f"""v_mov_b32 v{cn}, 0x10000
        v_mov_b32 v{cn+1}, s{sMASK}""")
        for i in range(8): self.unpack(xf + 2 * i, xf + 2 * i + 1, xr + i)
        expand(gaf, tb7)
        S(T6, '(gtb*2 + kf)*32768 + OF')
        va(vGR, [(0, 4, 8)])
        vm.wait('os')
        self.barrier()
        self.push(vT + 1, T2, 16, vT + 2, 'L_PD')
        self.stamp('opub')
        def c_clean():
            if CL[1]:
                a("""s_mov_b32 exec_lo, 0xff
                s_mov_b32 exec_hi, 0xff""")
                self.bs(kc, 2, kc + 2, rWS, '0', 0, 'sc1')
                a('s_mov_b64 exec, -1')
            if CL[0]:
                S(T0, 'hp*128 + r1*8 + CFL')
                a(f"""s_cmp_lg_u32 s{sWAVE}, 0
                s_cbranch_scc1 L_NOCC
                v_mov_b32 v{cf}, s{sTAG}
                s_mov_b64 exec, 1""")
                self.bs(cf, 1, vZ, rWS, T0, 0, 'sc1', count=False)
                a("""s_mov_b64 exec, -1
                L_NOCC:""")
        if o.get('ccat', 1) == 0: c_clean()
        V.release(vq, 8)
        late_wo = bool(wl)
        while wl: wo_dma(wl.pop(0))
        V.release(vWo)
        def d_work():
            for k in range(2):
                for i in range(8): a(f'v_mov_b32_dpp v{gp + 8*k + i}, v{tb7 + 1 + k} row_newbcast:{i} row_mask:0xf bank_mask:0xf')
            if o.get('stouch', TL):
                S(T2, '(rt*16 + cb)*2048 + w*256 + STAT')
                a(f'v_lshlrev_b32 v{gr}, 7, v{vL}')
                a('s_mov_b64 exec, 3')
                self.bl(gr, 1, gr, rWS, T2, 0, '')
                a('s_mov_b64 exec, -1')
            if late_wo or o.get('stouch', TL): vm.wait_all()
            self.stamp('dw')
        AD2 = o['AD2']
        LK2 = o.get('LK2', 4); NB2 = LK2 + 1
        accA = V.alloc(16); accB = V.alloc(16); Ar = V.alloc(4 * AD2); Br = V.alloc(4 * NB2)
        def b2_read(n, q):
            st_, c = divmod(n, 4)
            self.tr(Br + 4 * (n % NB2) + 2 * q, vBa + (c ^ 2), st_ * 4096 + q * 1024, ('B', n))
        def a2_load(s):
            if s % 2 == 0: S(T7, '(rot ^ n)*2048 + T6' if D2 else '((rot + n) & 15)*2048 + T6', n=s // 2)
            self.bl(Ar + 4 * (s % AD2), 4, vL16, rWS, T7, (s % 2) * 1024, 'sc1', ('A', s))
        self.inbox(2, 2, [0] if D2 else None, work=d_work)
        V.release(fx, 16)
        a('s_barrier')
        self.stamp('ook')
        if o.get('prio2', 1):
            a(f"""s_cmp_lt_u32 s{sWAVE}, 4
            s_cbranch_scc1 L_P2
            s_setprio {o.get('prio2', 1)}
            L_P2:""")
        nx2 = 0
        def a2_more(lim):
            nonlocal nx2
            while nx2 < min(lim, 32):
                if nx2 == 16 and D2:
                    a(f"""s_cmp_eq_u32 s{sPL + 1}, s{sTAG}
                    s_cbranch_scc1 L_D2""")
                    l_ = list(lg.q)
                    self.inbox(2, 2, [1])
                    lg.q = l_
                    a("""L_D2:
                    s_barrier""")
                a2_load(nx2); nx2 += 1
                if nx2 == 32:
                    ld_gr()
                    if o.get('ccat', 1) == 1: c_clean()
        S(T5, 'rt*128 + GR')
        ld_gr = lambda: self.bl(gr, 2, vGR, rWS, T5, 0, 'sc1', 'gr')
        a2_more(2)
        for n in range(LK2):
            for q in range(2): b2_read(n, q)
        a2_more(o.get('A20', 4))
        for n in range(64):
            st_, c = divmod(n, 4)
            lg.wait(('B', n))
            for th in range(2):
                if c == 0: vm.wait(('A', 2 * st_ + th))
                d = (accB, accA)[c >> 1] + 8 * (c & 1) + 4 * th
                a(f'v_mfma_f32_16x16x32_bf16 {vr(d, 4)}, {vr(Br + 4*(n % NB2), 4)}, {vr(Ar + 4*((2*st_ + th) % AD2), 4)}, ' + ('0' if st_ == 0 else vr(d, 4)))
                if n + LK2 < 64: b2_read(n + LK2, th)
            if n == o.get('prio2n', 16): a('s_setprio 0')
            if c in o.get('a2at', (0, 1)): a2_more(min(nx2 + 1, 2 * st_ + AD2))
            if c == 3 and AD2 == 4: a2_more(2 * st_ + 6)
        V.release(kc, 4); V.release(cf)
        self.stamp('gemm2')
        if o.get('prio2', 1): a('s_setprio 0')
        S(T0, 'w*4096')
        a(f"""v_add_u32 v{vT}, s{T0}, v{vG16}
        v_xor_b32 v{vT+1}, 0x4000, v{vT}""")
        for q in range(4): self.dw('ds_write_b128', vT, accB + 4 * q, 4, L_EXCH - GS + q * 1024)
        S(T0, 'kh*2048 + (w & 3)*512 + L_SP'); va(vT + 2, [(0, 5, 16), (5, 1, 8)], T0)
        S(T0, 'kh*64 + L_TB'); va(vT + 3, [(0, 3, 4), (5, 1, 32)], T0)
        vSG = V.alloc()
        S(T6, 'rt*32768 + w*256 + STAT'); va(vSG, [(0, 4, 16), (4, 2, 2048)])
        sm = Br; one = Br + 4
        a(f'v_mov_b32 v{one}, 0x3f803f80')
        fd = list(o['fdma']); assert sum(fd) == len(fq)
        self.barrier()
        for q in range(4): self.r128(accB + 4 * q, vT + 1, L_EXCH - GS + q * 1024, ('ex', q))
        ffn_dma(fd[0], T1)
        for h in range(2):
            for q in (2 * h, 2 * h + 1):
                lg.wait(('ex', q))
                self.pk('add', accA + 4 * q, accA + 4 * q, accB + 4 * q); self.pk('add', accA + 4 * q + 2, accA + 4 * q + 2, accB + 4 * q + 2)
            for i in range(4): a(f'v_permlane16_swap_b32 v{accA + 8*h + i}, v{accA + 8*h + 4 + i}')
            rg = range(8 * h, 8 * h + 8)
            self.round_list([accA + i for i in rg])
            for i in range(8 * h, 8 * h + 8, 2): self.pk('mul', accA + i, accA + i, gaf + i)
            self.round_list([accA + i for i in rg])
            for i in range(8 * h, 8 * h + 8, 2): self.pk('add', accA + i, accA + i, xf + i)
            for i in range(4 * h, 4 * h + 4): a(f'v_cvt_pk_bf16_f32 v{xr+i}, v{accA+2*i}, v{accA+2*i+1}')
        for i in range(8):
            for d, b in ((sm, one), (sm + 2, xr + i), (sm + 1, gp + i), (sm + 3, gp + 8 + i)):
                a(f'v_dot2_f32_bf16 v{d}, v{xr+i}, v{b}, ' + ('0' if i == 0 else f'v{d}'))
        a(f"""v_permlane32_swap_b32 v{sm}, v{sm+2}
        v_permlane32_swap_b32 v{sm+1}, v{sm+3}""")
        self.pk('add', sm, sm, sm + 2)
        self.dw('ds_write_b64', vT + 2, sm, 2)
        for q in range(4): self.dw('ds_write_b32', vT + 3, tb4 + q, 1, 128 * q)
        a(f'v_add_u32 v{vT}, {L_SP}, v{vL16}')
        va(vT + 1, LCB)
        S(T0, '(rt*16 + cb)*2048 + STAT')
        S(T3, ('((rt & 1)*128 + (rt >> 1))*4096' if TL else '((rt & 3)*64 + (rt >> 2)*2)*4096') + ' + (cb >> 1)*64 + (cb & 1)*4 + INB + 1536')
        self.barrier()
        self.stamp('x1st')
        a(f"""s_cmp_lg_u32 s{sWAVE}, 0
        s_cbranch_scc1 L_PE""")
        for q in range(4): a(f'ds_read_b128 {vr(accB + 4*q, 4)}, v{vT} offset:{(q & 1) * 2048 + (q >> 1) * 1024}')
        for h in range(2):
            b = accB + 8 * h
            a(f's_waitcnt lgkmcnt({2 - 2*h})')
            self.pk('add', b, b, b + 4); self.pk('add', b + 2, b + 2, b + 6)
            a(f"""v_add_f32 v{b+1}, v{b+1}, v{b+3}
            v_mov_b32 v{b+3}, s{sTAG}""")
        if TL:
            self.bs2([(accB + 8 * h, 4, vL16, T0, 1024 * h) for h in range(2)])
            a('s_cbranch_scc1 L_PE')
        else:
            for h in range(2): self.bs(accB + 8 * h, 4, vL16, rWS, T0, 1024 * h, 'sc1', count=False)
        a('s_mov_b64 exec, 0xffff')
        self.bs(accB + 3, 1, vT + 1, rWS, T3, 0, 'sc1', count=False)
        a("""s_mov_b64 exec, -1
        L_PE:""")
        self.stamp('x1pub')
        V.release(accA, 16); V.release(accB, 16); V.release(Ar, 4 * AD2); V.release(Br, 4 * NB2); V.release(vBa, 4); V.release(xf, 16); V.release(gaf, 16); V.release(gp, 16)
        x1 = V.alloc(16); hh = V.alloc(16); mf = V.alloc(32); sg = V.alloc(16); op = V.alloc(8)
        st = V.alloc(2); vRid = V.alloc(); ck = V.alloc(4); vOT = V.alloc()
        ct = V.alloc(12, 4)
        def e_work():
            S(T3, '(w & 3)*(32*144) + kh*64'); va(vOT, [(0, 5, 144), (5, 1, 32)], T3)
            for q in range(2): self.dw('ds_write_b128', vOT, xr + 4 * q, 4, L_XT + 16 * q)
            a(f'v_add_u32 v{vOT}, {L_OT}, v{vOT}')
            S(T2, '4094 - (rt*8 + w)*32'); va(vRid, [(0, 4, 2)]); a(f'v_sub_u32 v{vRid}, s{T2}, v{vRid}')
            S(T2, 'w*128 + L_ST2'); va(vT + 4, [(0, 4, 8)], T2)
            S(T2, '(w & 3)*256 + L_ST2'); va(vT + 6, [(0, 5, 8)], T2)
            va(vT + 7, [(0, 3, 8)], None, L_K1)
            self.finish_load('gr', ld_gr, [gr + 1])
            for ctl in ('quad_perm:[1,0,3,2]', 'quad_perm:[2,3,0,1]', 'row_half_mirror', 'row_ror:8'): self.dpp('v_add_f32', gr, gr, gr, ctl)
            a(f"""s_cmp_lg_u32 s{sWAVE}, 1
            s_cbranch_scc1 L_NOCT""")
            va(vT + 1, [(0, 4, 8)], None, L_TB)
            a(f"""ds_read_b64 {vr(ct + 2, 2)}, v{vT+1}
            ds_read_b64 {vr(ct + 6, 2)}, v{vT+1} offset:128
            ds_read_b64 {vr(ct + 8, 2)}, v{vT+1} offset:384
            s_waitcnt lgkmcnt(0)""")
            for b in (ct, ct + 4):
                self.unpack(b, b + 1, b + 2); self.unpack(b + 2, b + 3, b + 3)
            a('L_NOCT:')
        def f_pre(part):
            if part == 0:
                a(f"""s_cmp_lt_u32 s{sWAVE}, 4
                s_cbranch_scc1 L_NOST""")
                S(T0, '(w - 4)*4096 + L_GU')
                a(f'v_add_u32 v{vT}, s{T0}, v{vL16}')
                a(f'v_add_u32 v{vT+3}, {L_DN - L_GU}, v{vT}')
                for n, (m, i) in enumerate(freg):
                    for back in range(2):
                        self.dw('ds_write_b128', vT if m < 2 else vT + 3, big + 8 * n + 4 * back, 4, f_lds(m, i) - (L_GU if m < 2 else L_DN) + (1 - back) * 16384)
                a('L_NOST:')
                return
            for i in range(8): self.unpack(x1 + 2 * i, x1 + 2 * i + 1, xr + i)
            expand(mf, tb4); expand(mf + 16, tb4 + 1)
        if TL:
            a(f"""s_cmp_lg_u32 s{sLOC}, 0
            s_cbranch_scc1 L_ELOC""")
            self.inbox(3, 2)
            a("""s_barrier
            L_ELOC:""")
        else:
            ffn_dma(fd[1])
            self.inbox(3, 2, work=lambda: (e_work(), f_pre(0)))
            a('s_barrier')
        self.stamp('x1ok')
        def ld_sg():
            for q in range(4):
                S(T0, 'T6 + q', q=q * 8192)
                self.bl(sg + 4 * q, 4, vSG, rWS, T0, 0, 'sc1')
        self.try_load(ld_sg, [sg + 3, sg + 7, sg + 11, sg + 15], vT, e_work if TL else lambda: f_pre(1))
        V.release(vSG)
        self.stamp('x1ld')
        if o.get('htouch', 1):
            S(T2, '(fs*4 + kq)*2048 + w*256 + HGR')
            vDum = V.alloc()
            a(f'v_lshlrev_b32 v{vDum}, 7, v{vL}')
            a('s_mov_b64 exec, 3')
            self.bl(vDum, 1, vDum, rWS, T2, 0, '')
            a('s_mov_b64 exec, -1')
        ffn_dma(fd[2], T2)
        A_, B_, C_, U_ = sg, sg + 1, sg + 2, sg + 3
        self.pk('add', sg, sg, sg + 4); self.pk('add', sg + 8, sg + 8, sg + 12)
        a(f"""v_add_f32 v{C_}, v{C_}, v{sg+6}
        v_add_f32 v{sg+10}, v{sg+10}, v{sg+14}""")
        self.pk('add', sg, sg, sg + 8)
        a(f"""v_add_f32 v{C_}, v{C_}, v{sg+10}
        v_mov_b32 v{U_}, v{B_}
        v_permlane32_swap_b32 v{A_}, v{C_}
        v_permlane32_swap_b32 v{B_}, v{U_}
        v_add_f32 v{A_}, v{A_}, v{C_}
        v_add_f32 v{B_}, v{B_}, v{U_}
        v_permlane16_swap_b32 v{A_}, v{B_}
        v_add_f32 v{U_}, v{A_}, v{B_}
        v_add_f32 v{A_}, v{A_}, v{B_}
        v_permlane16_swap_b32 v{A_}, v{U_}
        v_mul_f32 v{C_}, 0x3a800000, v{A_}
        v_mul_f32 v{A_}, 0x3a800000, v{A_}
        v_permlane32_swap_b32 v{A_}, v{C_}""")
        self.stat_math(A_, C_, st, st + 1)
        S(T0, 'w*8 + L_K1')
        a(f"""v_rcp_f32 v{st+1}, v{st+1}
        v_fma_f32 v{U_}, -v{st}, v{gr}, v{U_}
        v_mov_b32 v{vT+1}, s{T0}
        v_mul_f32 v{U_}, v{U_}, v{st+1}""")
        self.dw('ds_write_b64', vT + 4, st, 2)
        a(f"""s_movk_i32 s{T0}, 0xfff
        v_ashrrev_i32 v{A_}, 31, v{U_}
        v_or_b32 v{A_}, 0x80000000, v{A_}
        v_xor_b32 v{A_}, v{A_}, v{U_}
        v_bfi_b32 v{ck}, s{T0}, v{vRid}, v{A_}""")
        def top2(ctls, first):
            for n, ctl in enumerate(ctls):
                if n == 0 and first:
                    self.dpp('v_min_u32', ck + 1, ck, ck, ctl); self.dpp('v_max_u32', ck, ck, ck, ctl)
                    continue
                self.dpp('v_min_u32', ck + 2, ck, ck, ctl); self.dpp('v_max_u32', ck + 1, ck + 1, ck + 1, ctl); self.dpp('v_max_u32', ck, ck, ck, ctl)
                a(f'v_max_u32 v{ck+1}, v{ck+1}, v{ck+2}')
        top2(('row_ror:8', 'row_ror:4', 'row_ror:2', 'row_ror:1'), True)
        self.dw('ds_write_b64', vT + 1, ck, 2)
        va(vT + 2, [(0, 1, 128 * 4096), (1, 3, 4096)] if TL else [(0, 2, 64 * 4096), (2, 2, 2 * 4096)])
        S(T1, ('cb*32768' if TL else '((cb & 7)*8 + (cb >> 3))*4096') + ' + (rt >> 1)*64 + (rt & 1)*16 + INB + 2560')
        self.barrier()
        self.stamp('ln2')
        self.dr('ds_read_b64', ck, 2, vT + 7, 0, 'k'); self.dr('ds_read_b64', st, 2, vT + 6, 0, 's')
        lg.wait('k')
        top2(('quad_perm:[1,0,3,2]', 'quad_perm:[2,3,0,1]', 'row_half_mirror'), False)
        a(f"""v_or_b32 v{ck+2}, 1, v{ck+1}
        v_mov_b32 v{ck+1}, s{sTAG}
        v_mov_b32 v{ck+3}, s{sTAG}
        s_cmp_lg_u32 s{sWAVE}, 0
        s_cbranch_scc1 L_NOF
        s_mov_b64 exec, 0xffff""")
        self.bs(ck, 4, vT + 2, rWS, T1, 0, 'sc1', count=False)
        a("""s_mov_b64 exec, -1
        L_NOF:""")
        self.stamp('Fpub')
        a(f"""s_cmp_lg_u32 s{sWAVE}, 1
        s_cbranch_scc1 L_NOC
        v_and_b32 v{vT}, 16, v{vL}
        v_cmp_eq_u32 vcc, 0, v{vT}
        v_cndmask_b32 v{vT}, v{ck+2}, v{ck}, vcc
        v_not_b32 v{vT}, v{vT}
        v_bfe_u32 v{vT}, v{vT}, 1, 7
        v_lshlrev_b32 v{vT+2}, 3, v{vT}
        v_mul_u32_u24 v{vT}, 144, v{vT}
        v_add_u32 v{vT+2}, {L_ST2}, v{vT+2}""")
        va(vT + 1, [(0, 4, 8)])
        cx, cs, ch = sg, sg + 4, sg + 8
        a(f"""v_add_u32 v{vT}, v{vT}, v{vT+1}
        ds_read_b64 {vr(cs, 2)}, v{vT+2}
        ds_read_b64 {vr(cx, 2)}, v{vT} offset:{L_XT}""")
        va(vT + 2, [(0, 4, 16), (4, 1, 16384), (5, 1, 4096)])
        va(vT + 3, [(4, 1, 16384)])
        S(T0, 'rt*32768 + cb*256 + CAND'); S(T3, 'rt*32768 + cb*8 + 8192 + CAND')
        a(f"""v_mov_b32 v{cx+3}, s{sTAG}
        s_waitcnt lgkmcnt(0)""")
        self.unpack(ch, ch + 1, cx); self.unpack(ch + 2, ch + 3, cx + 1)
        for i in (0, 2): self.pk('add', ch + i, ch + i, cs, bc=(1,), neg=(1,))
        self.round_list([ch + i for i in range(4)])
        for i in (0, 2): self.pk('mul', ch + i, ch + i, cs + 1, bc=(1,))
        self.round_list([ch + i for i in range(4)])
        for i in (0, 2): self.pk('mul', ch + i, ch + i, ct + 4 + i)
        self.round_list([ch + i for i in range(4)])
        for i in (0, 2): self.pk('add', ch + i, ch + i, ct + i)
        a(f"""v_mov_b32 v{cx+2}, v{cx+1}
        v_mov_b32 v{cx+1}, s{sTAG}
        s_mov_b32 exec_hi, 0
        v_cvt_pk_bf16_f32 v{cx}, v{ch}, v{ch+1}
        v_cvt_pk_bf16_f32 v{cx+2}, v{ch+2}, v{ch+3}
        s_mov_b32 exec_hi, -1
        v_dot2_f32_bf16 v{cs}, v{cx}, v{ct+8}, 0
        v_mov_b32 v{cs+1}, s{sTAG}
        v_dot2_f32_bf16 v{cs}, v{cx+2}, v{ct+9}, v{cs}""")
        self.bs(cx, 4, vT + 2, rWS, T0, 0, 'sc1', count=False)
        for ctl in ('quad_perm:[1,0,3,2]', 'quad_perm:[2,3,0,1]', 'row_half_mirror', 'row_ror:8'): self.dpp('v_add_f32', cs, cs, cs, ctl)
        a('s_mov_b64 exec, 0x10001')
        self.bs(cs, 2, vT + 3, rWS, T3, 0, 'sc1', count=False)
        a("""s_mov_b64 exec, -1
        L_NOC:""")
        V.release(ct, 12)
        def ln2_tile():
            for i in E2: self.pk('add', hh + i, x1 + i, st, bc=(1,), neg=(1,))
            self.round_list([hh + i for i in range(16)])
            for i in E2: self.pk('mul', hh + i, hh + i, st + 1, bc=(1,))
            self.round_list([hh + i for i in range(16)])
            for i in E2: self.pk('mul', hh + i, hh + i, mf + 16 + i)
            self.round_list([hh + i for i in range(16)])
            for i in E2: self.pk('add', hh + i, hh + i, mf + i)
            self.round_list([hh + i for i in range(16)])
        lg.wait('s')
        self.stamp('cand')
        ffn_dma(fd[3])
        uu = V.alloc(16); vGr = V.alloc(); vDr = V.alloc(); vXs = V.alloc()
        def out_calc():
            expand(mf, tb4 + 2)
            for i in E2: self.pk('mul', hh + i, hh + i, mf + i)
            self.round_list([hh + i for i in range(16)])
            for i in E2: self.pk('add', hh + i, hh + i, x1 + i)
            for i in range(8): a(f'v_cvt_pk_bf16_f32 v{op+i}, v{hh+2*i}, v{hh+2*i+1}')
            for q in range(2): self.dw('ds_write_b128', vOT, op + 4 * q, 4, 16 * q)
            S(T3, 'w*(16*144) + L_OT'); va(vOT, [(3, 3, 144), (0, 3, 16)], T3)
        oc = o.get('ocat', 2 if TL else 1); l2 = o.get('l2at', 1 if TL else 0)
        def f_work():
            if TL: f_pre(0); f_pre(1)
            if l2 == 0: ln2_tile()
            if oc == 0: out_calc()
            S(T0, '(w >> 2)*32768 + (w & 3)*32 + L_GU')
            va(vGr, [(4, 2, 8192), (2, 2, 128), (3, 2, 32), (0, 2, 8)]); a(f'v_xor_b32 v{vGr}, s{T0}, v{vGr}')
            S(T0, 'w*64')
            va(vDr, [(2, 1, 512), (3, 1, 4096), (5, 1, 2048), (2, 2, 64), (4, 1, 32), (0, 2, 8)])
            a(f'v_xor_b32 v{vDr}, s{T0}, v{vDr}'); a(f'v_add_u32 v{vDr}, {L_DN}, v{vDr}')
            va(vXs, [(0, 3, 16), (4, 2, 128)], None, L_XS)
            S(T0, 'w*16 + L_K2'); a(f'v_mov_b32 v{vT}, s{T0}')
            va(vT + 1, [(0, 3, 16)], None, L_K2)
            a(f'v_and_b32 v{vT+4}, 8, v{vL}')
            a(f'v_cmp_eq_u32 {sr(sCMP, 2)}, 0, v{vT+4}')
            self.stamp('oc')
        self.inbox(5, 8, (1, 3, 5, 7), f_work)
        P = sPL
        a(f"""s_min_u32 s{P+1}, s{P}, s{P+4}
        s_max_u32 s{P}, s{P}, s{P+4}
        s_max_u32 s{P+3}, s{P+2}, s{P+6}
        s_min_u32 s{P+2}, s{P+2}, s{P+6}
        s_max_u32 s{P+4}, s{P+1}, s{P+3}
        s_min_u32 s{P+1}, s{P+1}, s{P+3}
        v_mov_b32 v{uu}, s{P}
        v_mov_b32 v{uu+3}, s{P+2}
        v_mov_b32 v{uu+1}, s{P+4}
        v_mov_b32 v{uu+2}, s{P+1}""")
        self.dw('ds_write_b128', vT, uu, 4)
        self.stamp('F2p')
        V.release(big, 8 * len(freg)); V.release(gr, 2); V.release(vGR); V.release(vRid)
        ffn = V.alloc(48); ga_ = V.alloc(16); gb_ = V.alloc(16)
        vm.wait('gu')
        self.barrier()
        self.stamp('F2')
        def gu_frags():
            for s in range(8):
                self.tr(ffn + 4 * s, vGr, s * 1024); self.tr(ffn + 4 * s + 2, vGr, s * 1024 + 512)
        a(f"""s_cmp_lt_u32 s{sWAVE}, 4
        s_cbranch_scc1 L_CSEL""")
        fq0, vq0 = list(fq), list(vm.q)
        ffn_dma(fd[4])
        gu_frags()
        if l2 == 1: ln2_tile()
        if oc == 1: out_calc()
        a("""s_branch L_CSELD
        L_CSEL:""")
        lg.reset(); fq[:] = fq0; vm.q = vq0
        self.r128(uu, vT + 1)
        S(T0, 'w*512 + L_XS'); a(f'v_add_u32 v{vT+2}, s{T0}, v{vL8}')
        S(T0, 'w*4 + L_K3'); a(f'v_mov_b32 v{vT+3}, s{T0}')
        lg.wait_all()
        c4 = uu + 4
        for n, ctl in enumerate(('quad_perm:[1,0,3,2]', 'quad_perm:[2,3,0,1]', 'row_half_mirror')):
            for i in range(4): self.dpp('v_max_u32', c4 + i, uu + 3 - i, uu + i, ctl)
            if n == 2: break
            a(f"""v_max_u32 v{c4+4}, v{c4}, v{c4+2}
            v_max_u32 v{c4+5}, v{c4+1}, v{c4+3}
            v_min_u32 v{c4+6}, v{c4}, v{c4+2}
            v_min_u32 v{c4+7}, v{c4+1}, v{c4+3}
            v_max_u32 v{uu}, v{c4+4}, v{c4+5}
            v_min_u32 v{uu+1}, v{c4+4}, v{c4+5}
            v_max_u32 v{uu+2}, v{c4+6}, v{c4+7}
            v_min_u32 v{uu+3}, v{c4+6}, v{c4+7}""")
        for i in range(4): a(f'v_readfirstlane_b32 s{P+i}, v{c4+i}')
        a(f"""s_bitcmp1_b32 s{sWAVE}, 0
        s_cselect_b32 s{P}, s{P+1}, s{P}
        s_cselect_b32 s{P+2}, s{P+3}, s{P+2}
        s_bitcmp1_b32 s{sWAVE}, 1
        s_cselect_b32 s{P}, s{P+2}, s{P}
        s_and_b32 s{T2}, s{P}, 4095""")
        S(T0, '((15 - (T2 >> 8))*2 + (T2 & 1))*16384 + CAND'); S(T1, 'kq*1024 + T0'); S(T0, 'T0 + 8192')
        va(vT + 6, [(0, 4, 8)])
        def sel_work():
            self.stamp('sel')
            ffn_dma(fd[4], T3)
            gu_frags()
            if l2 == 1: ln2_tile()
            if oc == 1: out_calc()
            S(T2, 'T2*4 + w')
        self.try_load(lambda: (self.bl(uu + 4, 2, vT + 6, rWS, T0, 0, 'sc1'), self.bl(uu, 4, vL16, rWS, T1, 0, 'sc1')), [uu + 1, uu + 3, uu + 5], vT + 4, sel_work)
        a(f'ds_write2_b32 v{vT+2}, v{uu}, v{uu+2} offset0:0 offset1:1'); lg.issue()
        for ctl in ('quad_perm:[1,0,3,2]', 'quad_perm:[2,3,0,1]', 'row_half_mirror', 'row_ror:8'): self.dpp('v_add_f32', uu + 4, uu + 4, uu + 4, ctl)
        a(f"""v_cvt_pk_bf16_f32 v{uu+4}, 0, v{uu+4}
        v_ashrrev_i32 v{uu+5}, 31, v{uu+4}
        v_or_b32 v{uu+5}, 0x80000000, v{uu+5}
        v_xor_b32 v{uu+4}, v{uu+4}, v{uu+5}
        v_and_b32 v{uu+4}, s{sMASK}, v{uu+4}
        v_or_b32 v{uu+4}, s{T2}, v{uu+4}""")
        self.dw('ds_write_b32', vT + 3, uu + 4, 1)
        a('L_CSELD:')
        V.release(vFG); V.release(vFD)
        a(f'v_mov_b32 v{vT}, {L_K3}')
        va(vT + 4, [(0, 4, 16), (5, 1, 8)])
        S(T1, 'fs*8192 + HGR'); S(T7, '(kq*8 + w)*256 + T1')
        self.barrier()
        self.stamp('xsel')
        self.r128(uu, vT)
        lg.wait_all()
        a(f"""v_max_u32 v{uu+4}, v{uu}, v{uu+1}
        v_max_u32 v{uu+5}, v{uu+2}, v{uu+3}
        v_min_u32 v{uu+6}, v{uu}, v{uu+1}
        v_min_u32 v{uu+7}, v{uu+2}, v{uu+3}
        v_min_u32 v{uu+1}, v{uu+4}, v{uu+5}
        v_max_u32 v{uu}, v{uu+4}, v{uu+5}
        v_max3_u32 v{uu+1}, v{uu+1}, v{uu+6}, v{uu+7}
        v_cndmask_b32 v{vT}, v{uu+1}, v{uu}, {sr(sCMP, 2)}
        v_readfirstlane_b32 s{sK1}, v{uu}
        v_and_b32 v{vT}, 3, v{vT}
        v_readfirstlane_b32 s{sK2}, v{uu+1}
        v_lshl_add_u32 v{vT}, v{vT}, 9, v{vXs}""")
        self.r128(uu + 4, vT)
        if oc < 2:
            for q in range(2): self.r128(op + 4 * q, vOT, q * 8 * 144, 'ot')
        a(f"""s_bfe_u32 s{sROW0}, s{sK1}, {3 | (11 << 16)}
        s_bfe_u32 s{sROW1}, s{sK2}, {3 | (11 << 16)}
        s_sub_u32 s{sROW0}, 2047, s{sROW0}
        s_sub_u32 s{sROW1}, 2047, s{sROW1}
        s_waitcnt lgkmcnt({2 if oc < 2 else 0})""")
        gd = [ga_ + 4 * i for i in range(4)] + [gb_ + 4 * i for i in range(4)]
        for s in range(8):
            a(f'v_mfma_f32_16x16x32_bf16 {vr(gd[s], 4)}, {vr(uu + 4, 4)}, {vr(ffn + 4*s, 4)}, 0')
        p0, p1 = uu, uu + 2
        hk = V.alloc(4)
        for p, b in ((p0, 0), (p1, 4)):
            a(f'v_add_f32 v{p}, v{gd[b]}, v{gd[b+1]+1}')
            a(f'v_add_f32 v{p+1}, v{gd[b+2]+2}, v{gd[b+3]+3}')
        a(f"""v_add_f32 v{p0}, v{p0}, v{p0+1}
        v_add_f32 v{p1}, v{p1}, v{p1+1}
        v_mov_b32 v{p0+1}, s{sTAG}
        v_permlane16_swap_b32 v{p1}, v{p1+1}
        s_cmp_ge_u32 s{sJ}, 28
        s_cbranch_scc1 L_NOHP
        v_add_f32 v{p0}, v{p0}, v{p1+1}
        s_mov_b32 exec_lo, 0xffff
        s_mov_b32 exec_hi, 0xffff""")
        self.bs2([(p0, 2, vT + 4, T7, 0)])
        a(f"""s_mov_b64 exec, -1
        L_NOHP:
        v_mov_b32 v{hk}, v{p0}
        v_mov_b32 v{hk+1}, v{p0+1}
        v_add_u32 v{hk+2}, s{T7}, v{vT+4}""")
        self.stamp('Hpub')
        vOr = V.alloc(); vOa = V.alloc()
        def out_store():
            S(T0, 'rt*128 + w*16'); va(vOr, [(3, 3, 1)], T0)
            S(T2, 'T0*2048 + cb*128'); S(T3, 'T2 + 16384')
            va(vOa, [(3, 3, 2048), (0, 3, 16)])
            for q in range(2):
                if q: a(f'v_add_u32 v{vOr}, 8, v{vOr}')
                a(f"""v_cmp_ne_u32 vcc, s{sROW0}, v{vOr}
                v_cmp_ne_u32 {sr(sCMP, 2)}, s{sROW1}, v{vOr}
                s_and_b64 exec, vcc, {sr(sCMP, 2)}""")
                self.bs(op + 4 * q, 4, vOa, rOUT, (T2, T3)[q], 0, o.get('outmod', 'sc1'), count=False)
                a('s_mov_b64 exec, -1')
        lg.wait('ot')
        if o.get('outat', 1) == 0: assert oc < 2; out_store()
        fz = V.alloc(4)
        sFR, sFK, sFC0 = T4, T5, T6
        a(f"""s_bitcmp1_b32 s{sX if TL else sRT}, {1 if TL else 2}
        s_cselect_b32 s{sFR}, s{sROW1}, s{sROW0}
        s_cselect_b32 s{sFK}, s{sK2}, s{sK1}
        s_cmp_lg_u32 s{sWAVE}, 7
        s_cbranch_scc1 L_NOFZ
        s_cmp_lg_u32 s2, 0
        s_cbranch_scc1 L_NONON
        v_mov_b32 v{vT+2}, s{sTAG}
        s_mov_b64 exec, 1""")
        self.bs(vT + 2, 1, vZ, rWS, '0', 0, 'sc1', count=False)
        a(f"""s_mov_b64 exec, -1
        L_NONON:""")
        S(sFC0, '(x >> 2)*2 + (x & 1)' if TL else '(rt >> 3)*2 + (rt & 1)')
        S(T7, '(cb*8 + x)*(56*128) + GGR' if TL else '(cb*8 + (rt >> 2)*2 + (rt & 1))*(56*128) + GGR')
        S(sU, 'T4*2048 + cb*128 + T6*32')
        va(vT + 6, [(0, 3, 4)])
        S(T0, 'T6*32 + L_GB'); a(f'v_add_u32 v{vT+1}, s{T0}, v{vT+6}')
        a(f'ds_read_b32 v{fz+2}, v{vT+1}')
        S(sK1, '((T4 >> 7)*2 + ((T5 >> 2) & 1))*16384 + cb*256 + T6*64 + CAND'); S(sK2, 'k1 + 4096')
        va(vT + 7, [(0, 3, 8)])
        ld_fz = lambda: (self.bl(st, 2, vT + 7, rWS, sK1, 0, 'sc1'), self.bl(fz, 2, vT + 7, rWS, sK2, 0, 'sc1'))
        q_ = list(vm.q); ld_fz(); vm.q = q_
        a(f"""s_and_b32 s{T0}, s{sFK}, s{sMASK}
        s_ashr_i32 s{T2}, s{T0}, 31
        s_andn2_b32 s{T2}, 0x7fff0000, s{T2}
        s_or_b32 s{T2}, s{T2}, 0x80000000
        s_xor_b32 s{T0}, s{T0}, s{T2}
        v_mov_b32 v{fz+3}, s{T0}
        v_mul_f32 v{fz+3}, s{sL2E}, v{fz+3}
        v_exp_f32 v{fz+3}, -v{fz+3}
        v_add_f32 v{fz+3}, 1.0, v{fz+3}
        v_rcp_f32 v{fz+3}, v{fz+3}""")
        self.round1(fz + 3)
        a(f"""L_NOFZ:
        s_cmp_lt_u32 s{sJ}, 28
        s_cbranch_scc1 L_HSEC""")
        if oc == 2:
            out_calc()
            self.barrier()
            for q in range(2): self.r128(op + 4 * q, vOT, q * 8 * 144)
            lg.wait_all()
        a("""s_branch L_GSEC
        L_HSEC:""")
        a(f"""s_cmp_lt_u32 s{sWAVE}, 4
        s_cbranch_scc1 L_HW""")
        if oc == 2: out_calc()
        a("""s_branch L_NOH
        L_HW:""")
        S(T0, 'w*256 + T1')
        va(vT, [(4, 2, 2048), (0, 4, 16)])
        S(T2, 'w*32 + L_ACT'); va(vT + 1, [(5, 1, 128), (2, 1, 16), (1, 1, 8), (3, 1, 4), (0, 1, 2)], T2)
        a(f"""s_cmp_lg_u32 s{sLOC}, 0
        s_cbranch_scc1 L_HLOC""")
        self.spoll([(q, 1, T0, q * 2048 + 1024 + 252) for q in range(4)], range(4))
        a('L_HLOC:')
        self.stamp('Hpre')
        g, u = ga_, ga_ + 4
        self.try_load(lambda: [self.bl(ga_ + 4 * m, 4, vT, rWS, T0, m * 1024, 'sc1') for m in range(2)], [g + 1, g + 3, u + 1, u + 3], vT + 2, out_calc if oc == 2 else None)
        a(f"""v_permlane32_swap_b32 v{g}, v{g+2}
        v_permlane32_swap_b32 v{u}, v{u+2}
        v_add_f32 v{g}, v{g}, v{g+2}
        v_add_f32 v{u}, v{u}, v{u+2}
        v_mov_b32 v{g+2}, v{g}
        v_mov_b32 v{u+2}, v{u}
        v_permlane16_swap_b32 v{g}, v{g+2}
        v_permlane16_swap_b32 v{u}, v{u+2}
        v_add_f32 v{g}, v{g}, v{g+2}
        v_add_f32 v{u}, v{u}, v{u+2}""")
        self.round2(g, u)
        self.silu(g, vT + 2)
        a(f"""v_mul_f32 v{g}, v{g}, v{u}
        v_cvt_pk_bf16_f32 v{g}, v{g}, v{g}
        ds_write_b16 v{vT+1}, v{g}
        L_NOH:""")
        va(vT, [(2, 1, 128), (5, 1, 16)], None, L_ACT)
        va(vT + 1, [(4, 2, 56 * 128), (0, 4, 8)])
        va(vT + 2, [(0, 2, 4096)] if TL else [(0, 1, 64 * 4096), (1, 1, 2 * 4096)])
        S(T0, '(kq*8 + w)*(4*56*128) + fs*128 + GGR')
        S(T1, ('(kq*8 + w)*16384' if TL else '(((kq & 1)*4 + (w >> 1))*8 + (w & 1)*4 + (kq >> 1))*4096') + ' + x*64 + (j >> 2)*4 + INB + 3072')
        vm.wait_all()
        self.barrier()
        self.stamp('Hok')
        for s in range(4):
            self.r128(ga_ + 4 * s, vT, s * 32, ('ac', s))
            self.tr(ffn + 32 + 4 * s, vDr, s * 8192, ('ac', s)); self.tr(ffn + 32 + 4 * s + 2, vDr, s * 8192 + 1024, ('ac', s))
        for s in range(4):
            lg.wait(('ac', s))
            a(f'v_mfma_f32_32x32x16_bf16 {vr(gb_, 16)}, {vr(ga_ + 4*s, 4)}, {vr(ffn + 32 + 4*s, 4)}, ' + ('0' if s == 0 else vr(gb_, 16)))
        if oc == 2:
            for q in range(2): self.r128(op + 4 * q, vOT, q * 8 * 144)
        a(f'v_mov_b32 v{gb_+1}, s{sTAG}')
        self.bs(gb_, 2, vT + 1, rWS, T0, 0, 'sc1')
        a('s_mov_b64 exec, 15')
        self.bs(gb_ + 1, 1, vT + 2, rWS, T1, 0, 'sc1')
        a('s_mov_b64 exec, -1')
        self.stamp('Gpub')
        def hclean():
            a("""s_mov_b32 exec_lo, 0xffff
            s_mov_b32 exec_hi, 0xffff""")
            self.bs(hk, 2, hk + 2, rWS, '0', 0, 'sc1', count=False)
            a('s_mov_b64 exec, -1')
        if o.get('hclean', 2) == 1: hclean()
        lg.wait_all()
        a('L_GSEC:')
        if o.get('outat', 1) == 1: out_store()
        a(f"""s_cmp_lt_u32 s{sJ}, 16
        s_cbranch_scc1 L_GF""")
        if o.get('hclean', 2) == 2:
            a(f"""s_cmp_ge_u32 s{sJ}, 28
            s_cbranch_scc1 L_FIN
            s_waitcnt vmcnt(0)""")
            hclean()
        a("""s_branch L_FIN
        L_GF:""")
        self.inbox(6, 8, range(7))
        self.stamp('Gpre')
        a('s_barrier')
        if o.get('hclean', 2) == 2: hclean()
        a(f"""s_cmp_lg_u32 s{sWAVE}, 7
        s_cbranch_scc1 L_FIN""")
        S(T0, 'T7 + 4096')
        gg = [ga_ + 4 * i for i in range(4)] + [uu + 4 * i for i in range(3)]
        self.poll(lambda: [self.bl(gg[n], 4, vL16, rWS, (T7, T0)[n >> 2], (n & 3) * 1024, 'sc1') for n in range(7)],
                  [gg[n] + 1 + 2 * e for n in range(7) for e in range(2)], vT)
        self.finish_load(None, ld_fz, [st + 1, fz + 1], vT)
        self.stamp('Gok')
        for n in range(1, 7):
            for e in (0, 2): a(f'v_add_f32 v{gg[0]+e}, v{gg[0]+e}, v{gg[n]+e}')
        y0, y1 = gg[0], gg[0] + 1
        a(f'v_mov_b32 v{y1}, v{gg[0]+2}')
        for y in (y0, y1): self.dpp('v_add_f32', y, y, y, 'row_ror:8')
        for sw in ('v_permlane16_swap_b32', 'v_permlane32_swap_b32'):
            for y in (y0, y1): a(f'v_mov_b32 v{y+2}, v{y}')
            for y in (y0, y1): a(f'{sw} v{y}, v{y+2}')
            self.pk('add', y0, y0, y0 + 2)
        self.round2(y0, y1)
        self.pk('mul', y0, y0, fz + 3, bc=(1,))
        self.unpack(vT, vT + 1, st)
        self.round2(y0, y1)
        self.pk('add', y0, y0, vT)
        self.unpack(vT, vT + 1, fz + 2)
        self.round2(y0, y1)
        self.pk('mul', y0, y0, vT)
        self.unpack(vT, vT + 1, fz)
        self.round2(y0, y1)
        self.pk('add', y0, y0, vT)
        a(f'v_cvt_pk_bf16_f32 v{y0}, v{y0}, v{y1}')
        a('s_mov_b64 exec, 0xff')
        self.bs(y0, 1, vT + 6, rOUT, sU, 0, 'sc1')
        a('s_mov_b64 exec, -1')
        a('L_FIN:')
        if o.get('exfil'):
            self.stamp('fin')
            a('s_waitcnt vmcnt(0)')
            self.stamp('finw')
            a(f'''s_lshl3_add_u32 s{T0}, s2, s{sWAVE}
            s_cmp_lg_u32 s{T0}, {o.get('exwho', 7)}
            s_cbranch_scc1 L_END
            v_readlane_b32 s{T0}, v255, 0
            v_readlane_b32 s{T1}, v255, 1
            v_readlane_b32 s{T2}, v255, 2
            s_sub_u32 s{T2}, s{T2}, s{T1}
            s_max_i32 s{T2}, s{T2}, 0
            s_min_u32 s{T2}, s{T2}, 10000
            s_mul_i32 s{T2}, s{T2}, 10
            s_add_u32 s{T2}, s{T2}, 6000
            L_PAD:
            s_memrealtime {sr(sTM, 2)}
            s_waitcnt lgkmcnt(0)
            s_sub_u32 s{T1}, s{sTM}, s{T0}
            s_cmp_lt_u32 s{T1}, s{T2}
            s_cbranch_scc1 L_PAD''')
        if o.get('padfin'):
            a(f'''s_lshl3_add_u32 s{T0}, s2, s{sWAVE}
            s_cmp_lg_u32 s{T0}, 7
            s_cbranch_scc1 L_END
            s_memrealtime {sr(sTM, 2)}
            s_waitcnt lgkmcnt(0)
            s_mov_b32 s{T0}, s{sTM}
            L_PAD2:
            s_memrealtime {sr(sTM, 2)}
            s_waitcnt lgkmcnt(0)
            s_sub_u32 s{T1}, s{sTM}, s{T0}
            s_cmp_lt_u32 s{T1}, {o['padfin']}
            s_cbranch_scc1 L_PAD2''')
        if self.prof:
            a('s_waitcnt vmcnt(0) lgkmcnt(0)')
            self.stamp('end')
            a(f's_memrealtime {sr(sTM, 2)}')
            a('s_waitcnt lgkmcnt(0)')
            a(f'v_writelane_b32 v255, s{sTM}, 61')
            S(T0, '(wg*8 + w)*256 + STAMPS')
            a(f'v_writelane_b32 v255, s{sSPIN}, 62')
            a(f'v_lshlrev_b32 v{vT+1}, 2, v{vL}')
            a(f'buffer_store_dword v255, v{vT+1}, {sr(rWS, 4)}, s{T0} offen')
            S(T0, 'T0 + 0x100000')
            a(f'buffer_store_dword v254, v{vT+1}, {sr(rWS, 4)}, s{T0} offen')
        a('L_END:')
        a('s_endpgm')
        return self

    def text(self):
        a = self.a
        npad = a.fix_hazards()
        errs = a.check_waits([NAME])
        for e in errs: print('WAITERR', e, file=sys.stderr)
        assert not errs
        hdr = open(os.path.join(os.path.dirname(os.path.abspath(__file__)), 'header.txt')).read()
        s = hdr + '; @launch grid=(256,1,1) block=(512,1,1) lds=163840\n'
        s += '.amdgcn_target "amdgcn-amd-amdhsa--gfx950"\n.text\n'
        s += f'.globl {NAME}\n.p2align 8\n.type {NAME},@function\n'
        body = a.text()
        import subprocess, tempfile
        with tempfile.TemporaryDirectory() as td:
            open(td + '/t.s', 'w').write('.amdgcn_target "amdgcn-amd-amdhsa--gfx950"\n.text\n' + body.replace('CODE_KB', '20480'))
            subprocess.run(['clang', '-x', 'assembler', '-target', 'amdgcn-amd-amdhsa', '-mcpu=gfx950', '-c', td + '/t.s', '-o', td + '/t.o'], check=True)
            subprocess.run(['llvm-objcopy', '-O', 'binary', '-j', '.text', td + '/t.o', td + '/t.bin'], check=True)
            size = os.path.getsize(td + '/t.bin')
        print('; code bytes', size, file=sys.stderr)
        s += body.replace('CODE_KB', str((size // 1024 + 1) * 1024))
        s += '.p2align 10\n.fill 768, 4, 0xbf800000\n'
        s += '.section .rodata,"a"\n' + kernel_desc(NAME, 256, 102)
        print(f'; vgpr hi {self.V.hi}, nops {npad}, instrs {sum(1 for k, _ in a.items if k == "ins")}', file=sys.stderr)
        return s


if __name__ == '__main__':
    import argparse, json
    ap = argparse.ArgumentParser()
    ap.add_argument('-o', default='/dev/stdout')
    ap.add_argument('--prof', action='store_true')
    ap.add_argument('--opts', default='{}')
    args = ap.parse_args()
    g = Gen(args.prof, json.loads(args.opts)).build()
    t = g.text()
    open(args.o, 'w').write(t)
    if args.prof: open(args.o + '.stamps', 'w').write(json.dumps(g.stnames))
```

```python
import sys, os
sys.path.insert(0, os.path.dirname(os.path.abspath(__file__)))
from asm import *

NAME = 'adaLN_cond__linear_kernel_hedgehog__moe_arch_mod__prompt_kernel'

NONCE = 0x0
CFL = 0x8000
MARK = 0x100
GR = 0x010000
MODP2 = 0x020000
SINB = 0x040000
AINB = 0x080000
INA = 0x200000
INB = 0x100000
HF = 0x400000
OF = 0x800000
STAT = 0xC00000
CAND = 0x2000000
HGR = 0x1400000
ZP = 0x1480000
GGR = 0x1500000
KVP = 0x1800000
KIN = 0x1C00000
STAMPS = 0x1600000
WS_BYTES = 268435456

SEC = 8320
SLOT = 3 * SEC
SCR = 6 * SLOT
L_A1 = SCR
L_M2 = SCR + 1024
L_ST = SCR + 2048
L_MP = SCR + 2560
L_WPHI = SCR + 6656
L_MB = SCR + 10752
L_XF = 147456
L_PHK = 0
L_V = 32768
WO_H0 = 32768
WO_H1 = 98304
GS = 0
L_KVF = GS
L_ZF = GS + 8192
L_EXCH = GS
L_MT = 139264
L_GU = 32768
L_DN = 98304
TS = 131072
L_SP = TS
L_ST2 = TS + 4096
L_K1 = TS + 5120
L_K2 = TS + 5184
L_K3 = TS + 5312
L_XS = TS + 5632
L_ACT = TS + 7680
L_TB = TS + 7936
L_GB = L_TB + 256
L_OT = TS + 8704
L_XT = GS

SPIN_LIMIT = 300000

sWAVE, sTAG, sSPIN, sMASK, sL2E = 3, 4, 5, 6, 7
sX, sJ, sR1, sHP, sCB = 8, 9, 10, 11, 12
T0, T1, T2, T3, T4, T5, T6, T7 = 13, 14, 15, 16, 17, 18, 19, 20
sRT = 21
sCMP = 22
sPL = 24
rWS, rX, rW, rWO, rWM, rWG, rWU, rWD, rOUT = 32, 36, 40, 44, 48, 52, 56, 60, 64
KA = 68
pWPHI, pWR, pC = KA + 4, KA + 10, KA + 18
sK1, sK2, sROW0, sROW1, sFS, sKQ, sKH, sKF = 68, 69, 70, 71, 74, 75, 76, 77
sFG, sFD, sU, sROT, sWB, sU0 = 80, 81, 82, 83, 84, 85
sWO2, sW1K, sMF = 88, 89, 90
sINB, sRow, sGTB, sC32 = 92, 93, 94, 95
sXC = 94
pDBG = 30
sLOC = 93
XT = (96, 97, 98, 99)
sTM = 100
ENV = dict(wg=2, w=sWAVE, x=sX, j=sJ, r1=sR1, hp=sHP, cb=sCB, rt=sRT, row=sRow, gtb=sGTB, c32=sC32, kh=sKH, kf=sKF, fs=sFS, kq=sKQ,
           rot=sROT, wb=sWB, u0=sU0, wo2=sWO2, w1k=sW1K, mf=sMF, u=sU, fg=sFG, fd=sFD, T0=T0, T1=T1, T2=T2, T3=T3, T4=T4, T5=T5, T6=T6, T7=T7, row0=sROW0, row1=sROW1, k1=sK1)


class Gen:
    def __init__(self, prof=False, opts=None):
        self.a = Asm()
        self.vm = Counter(self.a, 'vmcnt', 63)
        self.lg = Counter(self.a, 'lgkmcnt', 15)
        self.V = RegAlloc(254, 1)
        self.prof = prof
        self.nopk = False
        self.nst = 0
        self.stnames = []
        self.S = SExpr(self.a, ENV, {k: v for k, v in globals().items() if isinstance(v, int) and k.isupper() and k not in ENV}, XT)
        self.o = dict(AD=12, LOOK=6, wev=2, AD2=4, wburst=(0, 3, 0, 0, 6, 6), wxor=3, LASTB=13,
                      sched={1: 'm1 p2', 2: 's4', 3: 'm1 s4', 4: 'p2 g1', 5: 'm1 g1', 6: 'g1', 7: 'm1 h g1 p3', 8: 'g2', 9: 'g2 r', 10: 'P', 11: 'f1', 13: 'M', 14: 'K o4 f4 N', 15: 'f1'}, fdma=(3, 0, 0, 3, 0), wowin=(6, 0, 3))
        if opts: self.o.update(opts)

    def bl(self, dst, n, voff, srd, soff, imm=0, mods='', tag=None):
        op = {1: 'dword', 2: 'dwordx2', 4: 'dwordx4'}[n]
        so = soff if isinstance(soff, str) else (sr(soff))
        self.a(f'buffer_load_{op} {vr(dst, n)}, v{voff}, {sr(srd, 4)}, {so} offen' + (f' offset:{imm}' if imm else '') + (' ' + mods if mods else ''))
        self.vm.issue(tag)
    def bs(self, src, n, voff, srd, soff, imm=0, mods='', tag=None, count=True):
        op = {1: 'dword', 2: 'dwordx2', 4: 'dwordx4'}[n]
        so = soff if isinstance(soff, str) else (sr(soff))
        self.a(f'buffer_store_{op} {vr(src, n)}, v{voff}, {sr(srd, 4)}, {so} offen' + (f' offset:{imm}' if imm else '') + (' ' + mods if mods else ''))
        if count: self.vm.issue(tag)
    def bs2(self, items):
        a = self.a
        LL, D = a.label('LOC'), a.label('LOCD')
        a(f's_cmp_lg_u32 s{sLOC}, 0')
        a(f's_cbranch_scc1 {LL}')
        for src, n, voff, soff, imm in items: self.bs(src, n, voff, rWS, soff, imm, 'sc1', count=False)
        a(f's_branch {D}')
        a(f'{LL}:')
        for src, n, voff, soff, imm in items: self.bs(src, n, voff, rWS, soff, imm, '', count=False)
        a(f'{D}:')
    def dma(self, voff, srd, soff, imm=0, mods='', tag=None):
        self.a(f'buffer_load_dwordx4 v{voff}, {sr(srd, 4)}, {sr(soff)} offen' + (f' offset:{imm}' if imm else '') + (' ' + mods if mods else '') + ' lds')
        self.vm.issue(tag)
    def dr(self, op, dst, n, addr, off=0, tag=None):
        assert 0 <= off < 65536, off
        self.a(f'{op} {vr(dst, n)}, v{addr}' + (f' offset:{off}' if off else ''))
        self.lg.issue(tag)
    def tr(self, dst, addr, off, tag=None): self.dr('ds_read_b64_tr_b16', dst, 2, addr, off, tag)
    def r128(self, dst, addr, off=0, tag=None): self.dr('ds_read_b128', dst, 4, addr, off, tag)
    def dw(self, op, addr, src, n, off=0, tag=None):
        assert 0 <= off < 65536, off
        self.a(f'{op} v{addr}, {vr(src, n)}' + (f' offset:{off}' if off else ''))
        self.lg.issue(tag)
    def barrier(self):
        self.lg.wait_all()
        self.a('s_barrier')
    def stamp(self, name):
        ex = self.o.get('exfil')
        if ex and name in ex[:2]:
            self.a(f's_memrealtime {sr(sTM, 2)}')
            self.lg.wait_all()
            self.a(f'v_writelane_b32 v255, s{sTM}, {1 + ex.index(name)}')
        if not self.prof: return
        only = self.o.get('only')
        if only and name not in only and name != 'end': return
        self.a(f's_memtime {sr(sTM, 2)}')
        self.a(f's_memrealtime s[0:1]')
        self.lg.wait_all()
        self.a(f'v_writelane_b32 v255, s{sSPIN if self.o.get("spinst") and self.nst > 3 else sTM}, {self.nst}')
        self.a(f'v_writelane_b32 v254, s0, {self.nst}')
        self.stnames.append(name)
        self.nst += 1
        assert self.nst <= 60
    def unpack(self, lo, hi, src):
        self.a(f'v_lshlrev_b32 v{lo}, 16, v{src}')
        self.a(f'v_and_b32 v{hi}, s{sMASK}, v{src}')
    def round1(self, r):
        self.a(f'v_cvt_pk_bf16_f32 v{r}, 0, v{r}')
    def round2(self, r0, r1):
        self.round1(r0); self.round1(r1)
    def round_list(self, regs):
        for r in regs: self.round1(r)
    def pk(self, op, d, s0, s1, s2=None, bc=(), neg=()):
        srcs = [s0, s1] + ([s2] if s2 is not None else [])
        if self.nopk:
            for h in range(2):
                t = []
                for k, r in enumerate(srcs):
                    kind, n = r if isinstance(r, tuple) else ('v', r)
                    t.append(('-' if k in neg else '') + f'{kind}{n if k in bc else n + h}')
                e64 = '' if op == 'fma' else ('_e64' if (neg or t[1][0] == 's') else '')
                self.a(f'v_{op}_f32{e64} v{d+h}, ' + ', '.join(t))
            return
        txt, sel, selhi = [], [], []
        for k, r in enumerate(srcs):
            kind, n = r if isinstance(r, tuple) else ('v', r)
            if k in bc:
                txt.append(f'{kind}[{n & ~1}:{(n & ~1) + 1}]'); sel.append(n & 1); selhi.append(n & 1)
            else:
                assert n % 2 == 0
                txt.append(f'{kind}[{n}:{n+1}]'); sel.append(0); selhi.append(1)
        assert d % 2 == 0
        m = ''
        if any(sel): m += ' op_sel:[' + ','.join(map(str, sel)) + ']'
        if not all(selhi): m += ' op_sel_hi:[' + ','.join(map(str, selhi)) + ']'
        if neg:
            ng = ','.join('1' if k in neg else '0' for k in range(len(srcs)))
            m += f' neg_lo:[{ng}] neg_hi:[{ng}]'
        self.a(f'v_pk_{op}_f32 v[{d}:{d+1}], ' + ', '.join(txt) + m)
    def dpp(self, op, d, s0, s1, ctl):
        self.a(f'{op}_dpp v{d}, v{s0}, v{s1} {ctl} row_mask:0xf bank_mask:0xf')
    def allreduce(self, v, t, op='v_add_f32', lo=True, b3=True):
        if lo:
            self.dpp(op, v, v, v, 'quad_perm:[1,0,3,2]')
            self.dpp(op, v, v, v, 'quad_perm:[2,3,0,1]')
            self.dpp(op, v, v, v, 'row_half_mirror')
        self.dpp(op, v, v, v, 'row_ror:8')
        self.a(f'v_mov_b32 v{t}, v{v}')
        self.a(f'v_permlane16_swap_b32 v{v}, v{t}')
        self.a(f'{op} v{v}, v{v}, v{t}')
        self.a(f'v_mov_b32 v{t}, v{v}')
        self.a(f'v_permlane32_swap_b32 v{v}, v{t}')
        self.a(f'{op} v{v}, v{v}, v{t}')
    def poll(self, loads, tagregs, tmp=None):
        a = self.a
        L, D = a.label('POLL'), a.label('PDONE')
        a(f'{L}:')
        loads()
        self.vm.wait_all()
        self.tagcheck(tagregs, tmp)
        a(f's_cbranch_vccz {D}')
        a(f's_add_u32 s{sSPIN}, s{sSPIN}, 1')
        a(f's_cmp_lt_u32 s{sSPIN}, {SPIN_LIMIT}')
        a(f's_cbranch_scc1 {L}')
        a(f'{D}:')
    def weave(self, fn, extras):
        a = self.a
        keep = a.items; a.items = []
        fn()
        body = a.items; a.items = keep
        extras = list(extras); n = len(extras)
        for i, it in enumerate(body):
            while extras and (n - len(extras)) * len(body) <= i * n: extras.pop(0)()
            a.items.append(it)
        for e in extras: e()
    def tagcheck(self, tagregs, tmp):
        a = self.a
        if tagregs[0] == 'nan':
            if len(tagregs) == 3: a(f'v_max_u32 v{tmp}, v{tagregs[1]}, v{tagregs[2]}')
            a(f'v_cmp_eq_u32 vcc, -1, v{tmp if len(tagregs) == 3 else tagregs[1]}')
        elif len(tagregs) == 1:
            a(f'v_cmp_ne_u32 vcc, s{sTAG}, v{tagregs[0]}')
        else:
            a(f'v_bitop3_b32 v{tmp}, v{tagregs[0]}, v{tagregs[1]}, s{sTAG} bitop3:0x7e')
            for t in tagregs[2:]: a(f'v_bitop3_b32 v{tmp}, v{tmp}, v{t}, s{sTAG} bitop3:0xf6')
            a(f'v_cmp_ne_u32 vcc, 0, v{tmp}')
    def try_load(self, loads, tagregs, tmp=None, between=None, pre=None):
        a = self.a
        n0 = len(self.vm.q)
        loads()
        self.vm.q[-1] = tg = ('try', a.label('T'))
        if between: between()
        self.vm.wait(tg)
        OK = a.label('TOK')
        self.tagcheck(tagregs, tmp)
        a(f's_cbranch_vccz {OK}')
        q, l = list(self.vm.q), list(self.lg.q)
        if pre: pre()
        self.poll(loads, tagregs, tmp)
        self.vm.q, self.lg.q = q, l
        a(f'{OK}:')
    def finish_load(self, tg, loads, tagregs, tmp=None, pre=None):
        a = self.a
        self.vm.wait(tg)
        OK = a.label('TOK')
        self.tagcheck(tagregs, tmp)
        a(f's_cbranch_vccz {OK}')
        q, l = list(self.vm.q), list(self.lg.q)
        if pre: pre()
        self.poll(loads, tagregs, tmp)
        self.vm.q, self.lg.q = q, l
        a(f'{OK}:')
    def spoll(self, loads, checks, work=None, pipe=0):
        a = self.a
        L, C, D = a.label('SPOLL'), a.label('SCHK'), a.label('SDONE')
        def issue(note=''):
            for d, n, so, imm in loads:
                op = {1: 'dword', 2: 'dwordx2', 4: 'dwordx4', 8: 'dwordx8'}[n]
                a(f's_load_{op} {sr(sPL + d, n)}, {sr(rWS, 2)}, s{so} offset:{imm} glc' + note)
        if pipe:
            self.lg.wait_all()
            for k in checks: a(f's_not_b32 s{sPL + k}, s{sTAG}')
            issue(' ; nowait')
            if work: work()
            a(f'{L}:')
            a(f's_add_u32 s{sSPIN}, s{sSPIN}, 1')
            a(f's_cmp_ge_u32 s{sSPIN}, {SPIN_LIMIT}')
            a(f's_cbranch_scc1 {D}')
            ks = list(checks)
            a(f's_xor_b32 s{XT[0]}, s{sPL + ks[0]}, s{sTAG} ; nowait')
            for k in ks[1:]:
                a(f's_xor_b32 s{XT[1]}, s{sPL + k}, s{sTAG} ; nowait')
                a(f's_or_b32 s{XT[0]}, s{XT[0]}, s{XT[1]}')
            a(f's_cbranch_scc0 {D}')
            issue(' ; nowait')
            a(f's_sleep {pipe}')
            a(f's_branch {L}')
            a(f'{D}:')
            return
        if work:
            issue(); work()
            a(f's_branch {C}')
        a(f'{L}:')
        issue()
        a(f'{C}:')
        a(f's_add_u32 s{sSPIN}, s{sSPIN}, 1')
        a(f's_cmp_ge_u32 s{sSPIN}, {SPIN_LIMIT}')
        self.lg.wait_all()
        a(f's_cbranch_scc1 {D}')
        for k in checks:
            a(f's_cmp_lg_u32 s{sPL + k}, s{sTAG}')
            a(f's_cbranch_scc1 {L}')
        a(f'{D}:')
    def inbox(self, box, n, checks=None, work=None, pipe=0):
        self.spoll([(0, n, sINB, box * 512)], range(n) if checks is None else checks, work, pipe)
    def va(self, dst, terms, sreg=None, const=0, tmp=None):
        a = self.a; vL = self.vL
        first = True
        for sh, bits, mult in terms:
            full = sh + bits >= 6
            src = vL
            t = dst if first else tmp
            if sh == 0 and full: pass
            elif full: a(f'v_lshrrev_b32 v{t}, {sh}, v{vL}'); src = t
            elif sh == 0: a(f'v_and_b32 v{t}, {(1 << bits) - 1}, v{vL}'); src = t
            else: a(f'v_bfe_u32 v{t}, v{vL}, {sh}, {bits}'); src = t
            p2 = mult & (mult - 1) == 0
            k = mult.bit_length() - 1
            if first:
                if p2 and sreg is not None: a(f'v_lshl_add_u32 v{dst}, v{src}, {k}, s{sreg}'); sreg = None
                elif p2 and k: a(f'v_lshlrev_b32 v{dst}, {k}, v{src}')
                elif p2:
                    if src != dst: a(f'v_mov_b32 v{dst}, v{src}')
                else: a(f'v_mul_u32_u24 v{dst}, {mult}, v{src}')
            else:
                assert p2
                a(f'v_lshl_add_u32 v{dst}, v{src}, {k}, v{dst}')
            first = False
        if sreg is not None: a(f'v_add_u32 v{dst}, s{sreg}, v{dst}')
        if const: a(f'v_add_u32 v{dst}, {const}, v{dst}')
    def push(self, vaddr, soff, nl, vtmp, lab, wave=0):
        a = self.a
        a(f's_cmp_lg_u32 s{sWAVE}, {wave}')
        a(f's_cbranch_scc1 {lab}')
        a(f'v_mov_b32 v{vtmp}, s{sTAG}')
        a(f's_mov_b32 exec_hi, 0')
        if nl < 32: a(f's_mov_b32 exec_lo, {(1 << nl) - 1}')
        self.bs(vtmp, 1, vaddr, rWS, soff, 0, 'sc1', count=False)
        a('s_mov_b64 exec, -1')
        a(f'{lab}:')
    def silu(self, v, t):
        a = self.a
        a(f'v_mul_f32 v{t}, s{sL2E}, v{v}')
        a(f'v_exp_f32 v{t}, -v{t}')
        a(f'v_add_f32 v{t}, 1.0, v{t}')
        a(f'v_rcp_f32 v{t}, v{t}')
        a(f'v_mul_f32 v{v}, v{v}, v{t}')
        self.round1(v)
    def gemv_ops(self, wregs, cregs, acc, t0, t1, packed):
        ops = []
        assert t0 % 2 == 0 and t1 == t0 + 1
        for i, (w, c) in enumerate(zip(wregs, cregs)):
            cp = f'v[{c & ~1}:{(c & ~1) + 1}]'
            for d in range(4):
                tt = t0 + 2 * (d & 1)
                ops.append(f'v_lshlrev_b32 v{tt}, 16, v{w+d}')
                ops.append(f'v_and_b32 v{tt+1}, s{sMASK}, v{w+d}')
                ac = f'v[{acc+2*d}:{acc+2*d+1}]'
                if not packed:
                    for h in range(2): ops.append(f'v_mul_f32 v{acc+2*d+h}, v{tt+h}, v{c}' if i == 0 else f'v_fmac_f32 v{acc+2*d+h}, v{tt+h}, v{c}')
                elif i == 0: ops.append(f'v_pk_mul_f32 {ac}, v[{tt}:{tt+1}], {cp} op_sel:[0,{c & 1}] op_sel_hi:[1,{c & 1}]')
                else: ops.append(f'v_pk_fma_f32 {ac}, v[{tt}:{tt+1}], {cp}, {ac} op_sel:[0,{c & 1},0] op_sel_hi:[1,{c & 1},1]')
        for i in range(4): ops.append(f'v_permlane32_swap_b32 v{acc+i}, v{acc+4+i}')
        for i in range(4): ops.append(f'v_add_f32 v{acc+i}, v{acc+i}, v{acc+4+i}')
        for i in range(2): ops.append(f'v_permlane16_swap_b32 v{acc+i}, v{acc+2+i}')
        for i in range(2): ops.append(f'v_add_f32 v{acc+i}, v{acc+i}, v{acc+2+i}')
        for i in range(2): ops.append(f'v_add_f32_dpp v{acc+i}, v{acc+i}, v{acc+i} row_ror:8 row_mask:0xf bank_mask:0xf')
        ops.append(f'v_mov_b32_dpp v{acc}, v{acc+1} quad_perm:[0,1,2,3] row_mask:0xf bank_mask:0xc')
        return ops
    def sum8(self, b):
        self.pk('add', b, b, b + 2); self.pk('add', b + 4, b + 4, b + 6); self.pk('add', b, b, b + 4)
        self.a(f'v_add_f32 v{b}, v{b}, v{b+1}')
    def softmax_pm(self, p, e, out, t, mid=None, part=0, split=0):
        a = self.a
        mx, mn, u0, u1, s0, s1 = t, t + 1, t + 2, t + 3, t + 4, t + 6
        if part != 2:
            self.round_list([p + i for i in range(16)])
            a(f'v_max3_f32 v{mx}, v{p}, v{p+1}, v{p+2}')
            a(f'v_min3_f32 v{mn}, v{p}, v{p+1}, v{p+2}')
            for i in range(3, 15, 2):
                a(f'v_max3_f32 v{mx}, v{mx}, v{p+i}, v{p+i+1}')
                a(f'v_min3_f32 v{mn}, v{mn}, v{p+i}, v{p+i+1}')
            a(f'v_max_f32 v{u0}, v{mx}, v{p+15}')
            a(f'v_min_f32 v{u1}, v{mn}, v{p+15}')
            a(f'v_max_f32 v{mx}, v{mx}, v{p+15}')
            a(f'v_min_f32 v{mn}, v{mn}, v{p+15}')
            a(f'v_permlane32_swap_b32 v{mx}, v{u0}')
            a(f'v_permlane32_swap_b32 v{mn}, v{u1}')
            a(f'v_max_f32 v{mx}, v{mx}, v{u0}')
            a(f'v_min_f32 v{mn}, v{mn}, v{u1}')
            self.pk('mul', mx, mx, ('s', sL2E), bc=(1,))
            for i in range(0, 16, 2):
                self.pk('fma', e + i, p + i, ('s', sL2E), mx, bc=(1, 2), neg=(2,))
                self.pk('fma', p + i, p + i, ('s', sL2E), mn, bc=(1, 2), neg=(0,))
        for i in range(split if part == 2 else 0, 16):
            if mid and i == mid[0]: mid[1]()
            if part == 1 and i == split: return
            a(f'v_exp_f32 v{e+i}, v{e+i}')
            a(f'v_exp_f32 v{p+i}, v{p+i}')
        self.pk('add', s0, e, e + 2); self.pk('add', s1, p, p + 2)
        for i in range(4, 16, 2):
            self.pk('add', s0, s0, e + i); self.pk('add', s1, s1, p + i)
        a(f'v_add_f32 v{u0}, v{s0}, v{s0+1}')
        a(f'v_add_f32 v{u1}, v{s1}, v{s1+1}')
        a(f'v_add_f32 v{mx}, v{s0}, v{s0+1}')
        a(f'v_add_f32 v{mn}, v{s1}, v{s1+1}')
        a(f'v_permlane32_swap_b32 v{mx}, v{u0}')
        a(f'v_permlane32_swap_b32 v{mn}, v{u1}')
        self.pk('add', mx, mx, u0)
        a(f'v_rcp_f32 v{mx}, v{mx}')
        a(f'v_rcp_f32 v{mn}, v{mn}')
        for i in range(0, 16, 2):
            self.pk('mul', e + i, e + i, mx, bc=(1,))
            self.pk('mul', p + i, p + i, mn, bc=(1,))
        for i in range(8):
            a(f'v_cvt_pk_bf16_f32 v{out+i}, v{e+2*i}, v{e+2*i+1}')
            a(f'v_cvt_pk_bf16_f32 v{out+8+i}, v{p+2*i}, v{p+2*i+1}')
    def ln_stats(self, xp, t, m_out, sd_out, fill=()):
        a = self.a
        fill = list(fill)
        def pad(n):
            for _ in range(n):
                if fill: a(fill.pop(0))
        s, u = t, t + 4
        a(f'v_mov_b32 v{u}, 0x3f803f80')
        for i in range(8):
            k = 2 * (i & 1)
            a(f'v_dot2_f32_bf16 v{s+k}, v{xp+i}, v{u}, ' + ('0' if i < 2 else f'v{s+k}'))
            a(f'v_dot2_f32_bf16 v{s+k+1}, v{xp+i}, v{xp+i}, ' + ('0' if i < 2 else f'v{s+k+1}'))
        pad(3)
        self.pk('add', s, s, s + 2)
        for ctl in ('quad_perm:[1,0,3,2]', 'quad_perm:[2,3,0,1]', 'row_half_mirror', 'row_ror:8'):
            pad(2 if ctl.endswith('3,2]') else 1)
            self.dpp('v_add_f32', s, s, s, ctl); self.dpp('v_add_f32', s + 1, s + 1, s + 1, ctl)
        pad(2)
        a(f'v_permlane16_swap_b32 v{s}, v{s+1}')
        a(f'v_add_f32 v{u}, v{s}, v{s+1}')
        a(f'v_add_f32 v{s}, v{s}, v{s+1}')
        pad(2)
        a(f'v_permlane32_swap_b32 v{s}, v{u}')
        a(f'v_add_f32 v{s}, v{s}, v{u}')
        a(f'v_mul_f32 v{u}, 0x3a800000, v{s}')
        a(f'v_mul_f32 v{s}, 0x3a800000, v{s}')
        pad(2)
        a(f'v_permlane16_swap_b32 v{s}, v{u}')
        a(f'v_fma_f32 v{sd_out}, -v{s}, v{s}, v{u}')
        a(f'v_cvt_pk_bf16_f32 v{m_out}, 0, v{s}')
        a(f'v_max_f32 v{sd_out}, 0, v{sd_out}')
        self.round1(sd_out)
        a(f'v_add_f32 v{sd_out}, 0x3727c5ac, v{sd_out}')
        self.round1(sd_out)
        a(f'v_sqrt_f32 v{sd_out}, v{sd_out}')
        pad(99)
        self.round1(sd_out)

    def stat_math(self, s, u, m_out, sd_out):
        a = self.a
        a(f'v_fma_f32 v{sd_out}, -v{s}, v{s}, v{u}')
        a(f'v_cvt_pk_bf16_f32 v{m_out}, 0, v{s}')
        a(f'v_max_f32 v{sd_out}, 0, v{sd_out}')
        self.round1(sd_out)
        a(f'v_add_f32 v{sd_out}, 0x3727c5ac, v{sd_out}')
        self.round1(sd_out)
        a(f'v_sqrt_f32 v{sd_out}, v{sd_out}')
        self.round1(sd_out)
    def ln_stats2(self, x0, x1, t, m_out, sd_out):
        a = self.a
        s0, s1, q0, q1, u = t, t + 1, t + 2, t + 3, t + 4
        a(f'v_mov_b32 v{u}, 0x3f803f80')
        for i in range(8):
            for xx, s_, q_ in ((x0, s0, q0), (x1, s1, q1)):
                a(f'v_dot2_f32_bf16 v{s_}, v{xx+i}, v{u}, ' + ('0' if i == 0 else f'v{s_}'))
                a(f'v_dot2_f32_bf16 v{q_}, v{xx+i}, v{xx+i}, ' + ('0' if i == 0 else f'v{q_}'))
        a(f"""v_permlane32_swap_b32 v{s0}, v{s1}
        v_permlane32_swap_b32 v{q0}, v{q1}
        v_add_f32 v{s0}, v{s0}, v{s1}
        v_add_f32 v{q0}, v{q0}, v{q1}
        v_permlane16_swap_b32 v{s0}, v{q0}
        v_add_f32 v{s0}, v{s0}, v{q0}""")
        for ctl in ('quad_perm:[1,0,3,2]', 'quad_perm:[2,3,0,1]', 'row_half_mirror', 'row_ror:8'): self.dpp('v_add_f32', s0, s0, s0, ctl)
        a(f"""v_mul_f32 v{q0}, 0x3a800000, v{s0}
        v_mul_f32 v{s0}, 0x3a800000, v{s0}
        v_permlane16_swap_b32 v{s0}, v{q0}""")
        self.stat_math(s0, q0, m_out, sd_out)

    def build(self):
        a, V, vm, lg, o, S = self.a, self.V, self.vm, self.lg, self.o, self.S
        E2 = range(0, 16, 2)
        TL = o.get('tl', 0)
        HL = o.get('hl', 1)
        D2 = o.get('d2', 1)
        LCB = [(0, 4, 8 * 4096)] if TL else [(0, 3, 8 * 4096), (3, 1, 4096)]
        a(f'{NAME}:')
        a(f's_load_dwordx16 {sr(KA, 16)}, s[0:1], 0')
        a(f's_load_dwordx8 {sr(KA + 16, 8)}, s[0:1], 64')
        a(f's_load_dwordx2 {sr(rWS, 2)}, s[0:1], 104')
        a(f's_load_dwordx2 {sr(pDBG, 2)}, s[0:1], 96')
        a('s_cmp_ge_u32 s2, 256')
        a('s_cbranch_scc1 L_END')
        if self.prof:
            a(f's_memrealtime {sr(sCMP, 2)}')
            a(f's_memtime {sr(sTM, 2)}')
            a('v_mov_b32 v255, 0')
            a('v_mov_b32 v254, 0')
            self.stnames.append('start'); self.nst = 1
        if o.get('exfil'): a(f's_memrealtime {sr(sTM, 2)}')
        vL = self.vL = V.alloc()
        vL16 = V.alloc()
        vZ = V.alloc()
        vT = V.alloc(8)
        va = lambda dst, terms, sreg=None, const=0: self.va(dst, terms, sreg, const, vT + 5)
        a(f"""v_lshrrev_b32 v{vT}, 6, v0
        v_and_b32 v{vL}, 63, v0
        v_mov_b32 v{vZ}, 0
        v_readfirstlane_b32 s{sWAVE}, v{vT}
        v_lshlrev_b32 v{vL16}, 4, v{vL}""")
        xr = V.alloc(8); acc = V.alloc(8); wphi = V.alloc(8); fr = V.alloc(8); vq = V.alloc(8); vv = V.alloc(8)
        vWM = V.alloc(); vCo = V.alloc(); vWd = V.alloc(); vL8 = V.alloc(); vL32S = V.alloc(); vGA = V.alloc()
        vB = V.alloc(6, 1); vFG = V.alloc(); vFD = V.alloc(); vWo = V.alloc(); vPW = V.alloc(); vXF = V.alloc()
        S(sX, 'wg & 7'); S(sJ, 'wg >> 3')
        S(T2, '(x*4 + w)*64')
        S(T0, 'T2*6144 + (j ^ 1)*128')
        va(vWM, [(3, 3, 4 * 12288), (0, 3, 16)])
        va(vCo, [(3, 3, 8)], T2)
        S(T3, '((x*32 + j)*4 + w - 4)*4096')
        for srd, size in ((rWM, 12582912), (rX, 4194304), (rWS, WS_BYTES)):
            a(f's_mov_b32 s{srd+2}, {size}')
            a(f's_mov_b32 s{srd+3}, 0x20000')
        a(f's_getreg_b32 s{sXC}, hwreg(HW_REG_XCC_ID, 0, 3)')
        if o.get('fakexcc') is not None: a(f's_and_b32 s{sXC}, s{sXC}, {o["fakexcc"]}')
        a(f"""s_getpc_b64 {sr(sCMP, 2) if not self.prof else sr(sPL, 2)}""")
        S(T6, '(j*7 + w)*128')
        va(vT + 6, [(5, 1, 28672)], T6)
        a(f"""v_min_u32 v{vT+6}, CODE_KB, v{vT+6}
        s_cmp_ge_u32 s{sWAVE}, 4
        s_waitcnt lgkmcnt(0)""")
        if self.prof:
            a(f'v_writelane_b32 v255, s{sTM}, 0')
            a(f'v_writelane_b32 v255, s{sCMP}, 63')
            a(f'v_writelane_b32 v254, s{sCMP}, 0')
            a(f's_mov_b64 {sr(sCMP, 2)}, {sr(sPL, 2)}')
        if o.get('exfil'):
            for k in range(3): a(f'v_writelane_b32 v255, s{sTM}, {k}')
        self.stamp('karg')
        raw = V.alloc(16); cv = V.alloc(4); vTk = V.alloc(2)
        xs = V.alloc(16); st = V.alloc(4); mq = V.alloc(4)
        a(f"""s_mov_b64 {sr(rWM, 2)}, {sr(KA + 20, 2)}
        s_mov_b64 {sr(rX, 2)}, {sr(KA, 2)}
        s_load_dword s{sTAG}, {sr(rWS, 2)}, {NONCE}
        s_cbranch_scc1 L_FS""")
        def setup():
            for srd, size in ((rW, 6291456), (rWO, 2097152), (rWG, 7340032), (rWU, 7340032), (rWD, 7340032), (rOUT, 4194304)):
                a(f's_mov_b32 s{srd+2}, {size}')
                a(f's_mov_b32 s{srd+3}, 0x20000')
            for srd, k in ((rW, 2), (rWO, 6), (rWG, 12), (rWU, 14), (rWD, 16), (rOUT, 22)):
                a(f's_mov_b64 {sr(srd, 2)}, {sr(KA + k, 2)}')
            a(f"""s_mov_b32 s{sSPIN}, 0
            s_mov_b32 s{sMASK}, 0xffff0000
            s_mov_b32 s{sL2E}, 0x3fb8aa3b""")
            S(sKH, 'w >> 2')
            va(vT + 2, [(4, 1, 64)]); va(vWd, [(0, 3, 16)])
            a(f'v_xor_b32 v{vWd}, v{vWd}, v{vT+2}'); va(vT + 2, [(3, 3, 6144)]); a(f'v_add_u32 v{vWd}, v{vWd}, v{vT+2}')
            va(vL8, [(0, 6, 8)])
            a(f'v_add_u32 v{vL32S}, {SCR}, v{vL16}')
            S(T0, '(w & 3)*4 + SCR')
            va(vGA, [(4, 2, 32), (0, 3, 128), (3, 1, 16)], T0)
            S(T1, '((j >> 4)*128 + w*8 + x)*1024 + (j & 15)*64 + SINB' if TL else '((x & 6) + ((x & 1)*2 + (j >> 4))*64 + w*8)*1024 + (j & 15)*64 + SINB')
        def tag_hash():
            a(f"""s_mul_i32 s{sTAG}, s{sTAG}, 0x9e3779b1
            s_add_u32 s{sTAG}, s{sTAG}, 0x7f4a7c15""")
        def code_pf():
            a(f's_and_b32 s{sCMP}, s{sCMP}, 0xfffffc00')
            a(f'global_load_dword v{vTk}, v{vT+6}, {sr(sCMP, 2)}')
        wq = [(n, t) for n in range(16) for t in range(3)]
        def w_base(n, wexpr):
            if n < 4 and o.get('wxor', 1):
                if o.get('wxor', 1) < 3: S(T7, '((j >> 4)*2) ^ n' if o.get('wxor', 1) == 1 else o.get('wxe', '((j >> 4) + (x >> 2)*2) ^ n'), n=n)
                else:
                    S(T7, o.get('wxe', 'j & 3' if HL else '(j >> 4) + (x >> 2)*2'))
                    if n: a(f's_cmp_le_u32 s{T7}, {n - 1}'); a(f's_cselect_b32 s{T7}, {n}, {n - 1}')
                S(sU, f'(((T7 + u0) & 15)*8 + {wexpr})*(8*6144) + hp*128')
                S(T7, f'T7*SLOT + (({wexpr}) >> 1)*2080 + (({wexpr}) & 1)*1056')
            else:
                S(sU, f'(((u0 + n) & 15)*8 + {wexpr})*(8*6144) + hp*128', n=n)
                S(T7, f'(({wexpr}) >> 1)*2080 + (({wexpr}) & 1)*1056 + q', q=(n % 6) * SLOT)
        def w_slot(n, t):
            S('m0', 'T7 + q', q=t * SEC)
            self.dma(vWd, rW, sU, 0, o.get('wmod', ''), ('W', n))
            if t < 2: S(sU, 'u + 2048')
        def w_next(cnt=1):
            for _ in range(cnt):
                n, t = wq.pop(0)
                if t == 0: w_base(n, 'w')
                w_slot(n, t)
        wb = list(o['wburst'])
        def w_early():
            if not o.get('wearly'): return
            S(sHP, '(x & 3)*4 + ((j & 3) ^ q)', q=o.get('hpx', 2)); S(sU0, o.get('u0', 'j & 12'))
            w_next(o['wearly'])
        a(f'global_load_dwordx2 {vr(cv, 2)}, v{vCo}, {sr(pC, 2)}'); vm.issue('c')
        for i in range(4):
            self.bl(raw + 4 * i, 4, vWM, rWM, T0, 0, o.get('ntwm', 'nt'), ('wm', i))
            if i < 3: S(T0, 'T0 + 12288')
        a('s_barrier')
        if o.get('bar1', 1): a('s_barrier')
        code_pf(); vm.issue()
        setup()
        wq0 = list(wq); w_early(); wq[:] = wq0
        S(T0, '(((w*16 + ((j ^ 1) & 15))*2 + (j >> 4))*8 + x)*512 + AINB')
        S(T2, ('(((j ^ 1) & 15)*8 + w*2)*512' if TL else '(((j ^ 1) & 7)*8 + w*2 + ((j >> 3) & 1))*512') + ' + x*64 + (j >> 4)*4 + INA')
        va(vT + 6, [(0, 1, 128 * 512), (1, 1, 512)] if TL else [(0, 2, 64 * 512)])
        vm.wait('c')
        self.unpack(cv + 2, cv + 3, cv + 1)
        a(f'v_and_b32 v{cv+1}, s{sMASK}, v{cv}'); a(f'v_lshlrev_b32 v{cv}, 16, v{cv}')
        for i in range(4): self.silu(cv + i, vT + (i & 1))
        gops = self.gemv_ops([raw + 4 * i for i in range(4)], [cv + i for i in range(4)], acc, vT, vT + 1, True)
        for i in range(4):
            vm.wait(('wm', i))
            if i == 3: self.stamp('wmok')
            for s_ in gops[12 * i:12 * i + 12]: a(s_)
        for s_ in gops[48:]: a(s_)
        self.dw('ds_write_b32', vGA, acc, 1, L_A1 - SCR)
        self.barrier()
        a(f'ds_read_b128 {vr(acc, 4)}, v{vL32S} offset:{L_A1 - SCR}')
        tag_hash()
        a('s_waitcnt lgkmcnt(0)')
        self.pk('add', acc, acc, acc + 2)
        a(f"""v_add_f32 v{acc}, v{acc}, v{acc+1}
        v_mov_b32 v{acc+1}, s{sTAG}""")
        self.bs(acc, 2, vL8, rWS, T0, 0, 'sc1')
        a('s_mov_b64 exec, 15')
        self.bs(acc + 1, 1, vT + 6, rWS, T2, 0, 'sc1')
        a('s_mov_b64 exec, -1')
        self.stamp('A1pub')
        S(T0, '(wg*4 + w)*6144')
        for i in range(o.get('wpf', 0)):
            if i == 4: S(T0, 'T0 + 4096')
            self.bl(raw, 4, vL16, rW, T0, (i & 3) * 1024, o.get('wpfmod', ''))
        a('s_branch L_FJ')
        qG = list(vm.q)
        a('L_FS:')
        vm.reset(); lg.reset()
        a('s_barrier')
        for i in range(4): self.bl(raw + 4 * i, 4, vL16, rX, T3, 1024 * i, o.get('xsmod', ''), 'xs')
        pw0 = o.get('pw0', 'ab')
        if 'a' in pw0:
            S(T4, '(wg*4 + w - 4)*128 + INA')
            for q in range(2): a(f's_load_dword s{sPL + q}, {sr(rWS, 2)}, s{T4} offset:{q * 64} glc')
        if 's' in pw0:
            S(T4, '(wg*4 + w - 4)*256 + SINB')
            for q in range(4): a(f's_load_dword s{sPL + 2 + q}, {sr(rWS, 2)}, s{T4} offset:{q * 64} glc')
        if 'b' in pw0:
            S(T4, '(wg*32 + w - 4)*128 + INB')
            for q in range(2): a(f's_load_dword s{sPL + q}, {sr(rWS, 2)}, s{T4} offset:{q * 64} glc ; nowait')
        a(f"""s_lshl_b32 s{T6}, s{sXC}, 5
        v_mov_b32 v{vTk}, 1
        v_mov_b32 v{vTk+1}, s{T6}""")
        if o.get('bar1', 1): a('s_barrier')
        a(f"""s_cmp_lg_u32 s{sWAVE}, 7
        s_cbranch_scc1 L_NOTK
        s_mov_b64 exec, 1
        global_atomic_add v{vTk}, v{vTk+1}, v{vTk}, {sr(pDBG, 2)} sc0 sc1
        s_mov_b64 exec, -1
        s_branch L_TK0
        L_NOTK:""")
        code_pf()
        a('L_TK0:')
        vm.issue('tk')
        setup()
        w_early()
        S(T0, '(w - 4)*16 + L_ST'); va(vT + 6, [(5, 1, 8)], T0)
        a('s_barrier')
        vm.wait('xs')
        lg.wait_all()
        tag_hash()
        self.stamp('xsok')
        self.ln_stats2(raw, raw + 8, xs, st, st + 1)
        a(f"""v_lshrrev_b32 v{st}, 16, v{st}
        v_or_b32 v{st}, v{st}, v{st+1}
        v_mov_b32 v{st+1}, s{sTAG}""")
        self.dw('ds_write_b64', vT + 6, st, 2)
        a('L_FJ:')
        va(vT + 1, [(0, 2, 16)], None, L_ST)
        va(vT, [(0, 2, 16), (2, 1, 65536 if TL else 1024)])
        va(vT + 6, [(0, 5, 2048), (5, 1, 32)])
        va(vT + 2, [(0, 1, 64 * 512 if TL else 512), (1, 1, 256)])
        S(T2, ('((j >> 4)*128 + w*8 + x)*512' if TL else '((x & 6) + ((x & 1)*2 + (j >> 4))*64 + w*8)*512') + ' + ((j >> 2) & 3)*64 + (j & 3)*4 + 16 + INA')
        self.barrier()
        self.r128(st, vT + 1, 0, 'st')
        lg.wait('st')
        a('s_mov_b64 exec, 0xff')
        self.bs(st, 4, vT, rWS, T1, 0, 'sc1')
        a('s_mov_b64 exec, 15')
        self.bs(st + 1, 1, vT + 2, rWS, T2, 0, 'sc1')
        a('s_mov_b64 exec, -1')
        self.stamp('A2pub')
        a(f"""s_cmp_lg_u32 s{sWAVE}, 7
        s_cbranch_scc1 L_NOTK2
        s_mov_b32 s{T0}, 0
        s_waitcnt vmcnt({len(vm.q) - 1 - vm.q.index('tk')})
        L_TK:
        v_readfirstlane_b32 s{T2}, v{vTk}
        s_cmp_lt_u32 s{T2}, 32
        s_cbranch_scc1 L_TKOK
        v_mov_b32 v{vTk}, s{sTAG}
        s_mov_b64 exec, 1
        buffer_store_dword v{vTk}, v{vZ}, {sr(rWS, 4)}, 0 offen offset:{MARK} sc1
        s_mov_b64 exec, -1
        s_add_u32 s{T0}, s{T0}, 1
        s_cmp_lt_u32 s{T0}, 8
        s_cbranch_scc0 L_TKNO
        s_add_u32 s{sXC}, s{sXC}, 1
        s_and_b32 s{sXC}, s{sXC}, 7
        s_lshl_b32 s{T6}, s{sXC}, 5
        v_mov_b32 v{vTk}, 1
        v_mov_b32 v{vTk+1}, s{T6}
        s_mov_b64 exec, 1
        global_atomic_add v{vTk}, v{vTk+1}, v{vTk}, {sr(pDBG, 2)} sc0 sc1
        s_mov_b64 exec, -1
        s_waitcnt vmcnt(0)
        s_branch L_TK
        L_TKNO:
        s_and_b32 s{sXC}, s2, 7
        s_lshr_b32 s{T2}, s2, 3
        L_TKOK:
        s_lshl3_add_u32 s{T2}, s{T2}, s{sXC}""")
        if o.get('rawrole'): a(f's_mov_b32 s{T2}, s2')
        a(f"""v_mov_b32 v{vTk}, s{T2}
        ds_write_b32 v{vT+1}, v{vTk} offset:64
        L_NOTK2:""")
        self.barrier()
        a(f'ds_read_b32 v{mq}, v{vT+1} offset:64'); lg.issue('role')
        lg.wait('role')
        a(f'v_readfirstlane_b32 s2, v{mq}')
        self.stamp('role')
        V.release(raw, 16); V.release(cv, 4)
        S(sX, 'wg & 7'); S(sJ, 'wg >> 3')
        S(sCB, 'j & 15' if TL else '(x & 1)*8 + (j & 7)')
        S(sRT, 'x*2 + (j >> 4)' if TL else '(x >> 1)*4 + (j >> 3)')
        S(sGTB, 'rt*4 + (w & 3)')
        S(sC32, 'cb*2 + kh')
        S(T5, 'gtb*65536 + c32*64')
        ld_xt = lambda: [self.bl(xr + 4 * q, 4, vT + 6, rX, T5, 16 * q, o.get('xtmod', ''), 'xt') for q in range(2)]
        if not o.get('xtlate', 0): ld_xt()
        S(T0, '(((x >> 1)*16 + cb)*16 + w)*512 + AINB')
        S(T2, '(wg*8 + w)*64 + INA')
        def role_prep():
            S(sR1, 'j & 15' if HL else '(x & 4)*2 + (j >> 2)'); S(sHP, '((x >> 2)*2 + (x & 1))*4 + (x & 2) + (j >> 4)' if HL else '(x & 3)*4 + ((j & 3) ^ 2)')
            S(sU0, o.get('u0', 'j & 12'))
            w_next(wb[0])
            S(sINB, '(wg*64 + w)*64 + INB')
            S(sKF, 'kh ^ (j >> 4)'); S(sROT, o.get('rot', '(((j >> 3) ^ j) & 1)*q'), q=4 if D2 else 8)
            S(sFS, 'x*7 + (j >> 2)'); S(sKQ, 'j & 3')
            va(vT + 4, [(0, 5, 8)])
            va(vT, [(0, 5, 16), (5, 1, 4096)])
            S(T3, 'w*4 + L_MP'); va(vT + 1, [(0, 6, 64)], T3)
            S(T3, 'kh*1024 + L_MP'); va(vT + 2, [(0, 4, 32), (5, 1, 512)], T3)
        S(T1, '(wg*4 + (w & 3))*256 + SINB')
        self.spoll([(0, 8, T2, 0)], (0, 1, 4, 5, 6, 7), work=role_prep)
        self.stamp('apre')
        if o.get('abar', 2) == 1: a('s_barrier')
        st_ld = lambda: self.bl(st, 2, vT + 4, rWS, T1, 0, 'sc1', 'st')
        def st_fetch():
            st_ld()
            if o.get('abar', 2) == 2: a('s_barrier')
            if o.get('xtlate', 0): ld_xt()
            S(T3, 'hp*4096 + w*512')
            a(f'v_add_u32 v{vT+6}, s{T3}, v{vL16}')
            S('m0', 'w*512 + L_WPHI')
            a('s_mov_b32 exec_hi, 0')
            a(f'global_load_lds_dwordx4 v{vT+6}, {sr(pWPHI, 2)}'); vm.issue()
            a('s_mov_b32 exec_hi, -1')
            w_next(wb[1])
        self.try_load(lambda: self.bl(mq, 4, vT, rWS, T0, 0, 'sc1'), [mq + 1, mq + 3], vT + 3, st_fetch)
        self.stamp('modok')
        a(f'ds_write2_b32 v{vT+1}, v{mq}, v{mq+2} offset0:0 offset1:8'); lg.issue()
        if not o.get('xtlate', 0):
            for i in range(8): self.unpack(xs + 2 * i, xs + 2 * i + 1, xr + i)
        self.barrier()
        mp = V.alloc(16); hp = V.alloc(8)
        for i in (2, 3, 0, 1): self.r128(mp + 4 * i, vT + 2, (i >> 1) * 2048 + (i & 1) * 16, i >> 1)
        w_next(wb[2])
        self.finish_load('st', st_ld, [st + 1], None)
        if o.get('xtlate', 0):
            vm.wait('xt')
            for i in range(8): self.unpack(xs + 2 * i, xs + 2 * i + 1, xr + i)
        self.stamp('statok')
        self.unpack(st + 1, st, st)
        a(f'v_rcp_f32 v{st}, v{st}')
        for i in E2: self.pk('add', xs + i, xs + i, st + 1, bc=(1,), neg=(1,))
        S(T0, '(((rt*16 + cb)*4 + (w & 3))*2 + kh)*2048 + HF')
        va(vT + 4, [(0, 4, 16), (4, 1, 1024), (5, 1, 512)])
        lg.wait(1); self.sum8(mp + 8)
        self.round1(mp + 8)
        lg.wait(0); self.sum8(mp)
        a(f'v_add_f32 v{mp+8}, 1.0, v{mp+8}')
        self.round2(mp + 8, mp)
        PKM = o.get('pkm', 1)
        if PKM:
            mb = V.alloc(32)
            S(T3, 'w*256 + L_MB'); va(vT, [(0, 4, 4), (5, 1, 64)], T3); va(vT + 1, [(5, 1, 64)], T3)
            a(f'ds_write2_b32 v{vT}, v{mp+8}, v{mp} offset0:0 offset1:32'); lg.issue()
            for q in range(8): self.r128(mb + 4 * q, vT + 1, (q >> 2) * 128 + (q & 3) * 16, ('mb', q))
        for h in range(2):
            rg = range(8 * h, 8 * h + 8)
            self.round_list([xs + i for i in rg])
            for i in range(8 * h, 8 * h + 8, 2): self.pk('mul', xs + i, xs + i, st, bc=(1,))
            self.round_list([xs + i for i in rg])
        for h in range(2):
            rg = range(8 * h, 8 * h + 8)
            if PKM:
                lg.wait(('mb', 2 * h + 1))
                for i in range(8 * h, 8 * h + 8, 2): self.pk('mul', xs + i, xs + i, mb + i)
            else:
                for i in rg: self.dpp('v_mul_f32', xs + i, mp + 8, xs + i, f'row_newbcast:{i}')
            self.round_list([xs + i for i in rg])
            if PKM:
                lg.wait(('mb', 4 + 2 * h + 1))
                for i in range(8 * h, 8 * h + 8, 2): self.pk('add', xs + i, xs + i, mb + 16 + i)
            else:
                for i in rg: self.dpp('v_add_f32', xs + i, mp, xs + i, f'row_newbcast:{i}')
            for i in range(4 * h, 4 * h + 4): a(f'v_cvt_pk_bf16_f32 v{hp+i}, v{xs+2*i}, v{xs+2*i+1}')
            self.bs(hp + 4 * h, 4, vT + 4, rWS, T0, 256 * h, 'sc1', 'hs')
        if PKM: V.release(mb, 32)
        self.stamp('hst')
        w_next(wb[3])
        va(vB, [(5, 1, 2080), (2, 2, 128), (3, 1, 64), (0, 2, 8)])
        va(vB + 1, [(4, 1, 1056)])
        va(vB + 2, [(3, 1, 128)])
        a(f"""v_add_u32 v{vB}, v{vB}, v{vB+1}
        v_sub_u32 v{vB+1}, v{vB}, v{vB+2}
        v_add_u32 v{vB+1}, 64, v{vB+1}""")
        for q in (1, 2):
            for h in range(2): a(f'v_add_u32 v{vB+2*q+h}, {2*q*SLOT}, v{vB+h}')
        S(T1, 'kh*2048 + L_WPHI')
        va(vT, [(2, 2, 64), (4, 1, 32), (0, 2, 8), (5, 1, 512)], T1)
        va(vT + 1, [(0, 3, 4096), (3, 1, 128 * 4096)] if HL else [(0, 2, 8 * 4096), (2, 2, 4096)])
        S(T0, ('rt*32768' if HL else '((rt >> 3)*4 + (rt & 7)*32)*4096') + ' + (cb >> 1)*64 + (cb & 1)*4 + INB')
        va(vT + 2, [(4, 1, 64), (5, 1, 16)]); va(vWo, [(0, 3, 16)])
        a(f'v_xor_b32 v{vWo}, v{vWo}, v{vT+2}'); va(vT + 2, [(3, 3, 2048)]); a(f'v_add_u32 v{vWo}, v{vWo}, v{vT+2}')
        S(T1, '(w & 2)*32'); va(vT + 2, [(4, 1, 32)], T1); va(vFG, [(0, 3, 16)])
        a(f'v_xor_b32 v{vFG}, v{vFG}, v{vT+2}'); va(vT + 2, [(3, 3, 7168)]); a(f'v_add_u32 v{vFG}, v{vFG}, v{vT+2}')
        S(T1, '(w & 1)*128')
        va(vT + 2, [(5, 1, 64)], T1); va(vFD, [(0, 5, 16), (5, 1, 2048)])
        a(f'v_xor_b32 v{vFD}, v{vFD}, v{vT+2}')
        S(sFG, '(kq*8 + w)*(32*7168) + fs*128'); S(sFD, '(fs*8 + w)*16384 + kq*512')
        a(f"""s_cmp_ge_u32 s{sJ}, 28
        s_cselect_b32 s{rWG+2}, 0, s{rWG+2}
        s_cselect_b32 s{rWU+2}, 0, s{rWU+2}
        s_cselect_b32 s{rWD+2}, 0, s{rWD+2}""")
        vm.wait('hs')
        a('s_barrier')
        self.push(vT + 1, T0, 16, vT + 2, 'L_PB')
        self.stamp('hpub')
        V.release(xs, 16); V.release(mp, 16); V.release(hp, 8); V.release(st, 4); V.release(mq, 4); V.release(vTk, 2)
        w_next(wb[4])
        for s in range(2):
            for u in range(2): self.tr(wphi + 4 * s + 2 * u, vT, s * 1024 + u * 256)
        AD, LOOK, LASTB = o['AD'], o.get('LOOK', 6), o['LASTB']
        accs = V.alloc(96)
        big = V.alloc(76)
        Ar, Br = big, big + 4 * AD
        assert 4 * AD + 4 * (LOOK + 1) <= 76
        S(T2, '(r1*64 + w)*4096 + HF')
        S(T0, '(w & 3)*4096 + L_XF'); a(f'v_add_u32 v{vXF}, s{T0}, v{vL16}')
        vXW = V.alloc(); vVW = V.alloc()
        va(vXW, [(0, 4, 16), (5, 1, 512), (4, 1, 8)], T0)
        S(T0, '(w & 3)*1024 + L_V'); va(vVW, [(0, 4, 32), (4, 2, 8)], T0)
        S(T0, '(w & 3)*1024 + kh*16384 + L_PHK'); va(vPW, [(0, 5, 32), (5, 1, 16)], T0)
        fq = [(m, i) for m in range(3) for i in range(4)]
        freg = []
        def f_src(m, i, back=0, T0=T0):
            if m < 2: S(T0, 'fg + q', q=i * 8 * 7168 - back * 4 * 32 * 7168)
            else: S(T0, 'fd + q', q=i * 4096 - back * 4 * 16384)
            return (vFG, (rWG, rWU)[m]) if m < 2 else (vFD, rWD)
        def f_lds(m, i): return (L_GU + m * 32768 if m < 2 else L_DN) + i * 1024
        def ffn_reg(n):
            for _ in range(n):
                m, i = fq.pop(0)
                for back in range(2):
                    v, r = f_src(m, i, back)
                    self.bl(big + 8 * len(freg) + 4 * back, 4, v, r, T0, 0, o.get('ntffn', 'nt'), 'ffn')
                freg.append((m, i))
        def ffn_dma(n, T0=T0):
            for _ in range(n):
                m, i = fq.pop(0)
                if o.get('nofd'): continue
                v, r = f_src(m, i, 0, T0)
                S('m0', 'w1k*4 + q', q=f_lds(m, i))
                self.dma(v, r, T0, 0, o.get('ntffn', 'nt'), 'gu' if m < 2 else 'dn')
        S(sWB, 'w*16384' if D2 else '(rot*4 + w)*16384'); S(sWO2, '(j >> 4)*1048576 + cb*128'); S(sW1K, 'w*1024')
        def wo_dma(it, back=0, T0=T0):
            S(T0, '(((wb + q) & 0xfffff) ^ (rot*65536)) + (wo2 ^ h)' if D2 else '((wb + q) & 0xfffff) + (wo2 ^ h)', q=(8 * it - 4 * back) * 16384, h=(it >> 3) << 20)
            S('m0', 'w1k + q', q=WO_H0 + it * 8192 - 4096 * back)
            self.dma(vWo, rWO, T0, 0, '', 'wo')
        self.inbox(0, 2, work=lambda: w_next(wb[5]), pipe=o.get('pipeB', 0))
        assert len(wq) % 3 == 0 and 30 <= len(wq) <= (45, 36, 36, 42)[o.get('wxor', 1)]
        NPU = 16 - len(wq) // 3
        vm.wait(('W', (0, 2, 3, 1)[o.get('wxor', 1)]))
        a('s_barrier')
        self.stamp('hok')
        a(f"""s_cmp_ge_u32 s{sWAVE}, 4
        s_cbranch_scc1 L_HELP
        s_setprio 2""")
        q_hok = list(vm.q)
        if 'pad' in o:
            a('.p2align 6')
            for _ in range(o['pad']): a('s_nop 0')
        def a_load(sg):
            if sg % 4 == 0: S(T3, '((u0 + n) & q)*16384 + T2', n=sg // 4, q=o.get('amask', 15))
            self.bl(Ar + 4 * (sg % AD), 4, vL16, rWS, T3, (sg % 4) * 1024, o.get('amod', 'sc1'), ('A', sg))
        CORD = [(1, 2), (1, 3), (1, 0), (1, 1)] + [(t, ct) for t in (0, 2) for ct in range(4)]
        WEV = o.get('wev', 2); NB = LOOK + 1
        def b_read(n, q):
            st_, c = divmod(n, 12); t, ct = CORD[c]
            slot = (st_ >> 1) % 6
            off = (slot & 1) * SLOT + t * SEC + (st_ & 1) * 4160 + (ct & 1) * 32 + q * 512
            self.tr(Br + 4 * (n % NB) + 2 * q, vB + 2 * (slot >> 1) + (ct >> 1), off, ('B', n))
        nxt = 0
        def a_more(lim):
            nonlocal nxt
            while nxt < min(lim, 64): a_load(nxt); nxt += 1
        a_more(2)
        for n in range(LOOK):
            for q in range(2): b_read(n, q)
        a_more(o.get('A0', 4))
        b14 = False
        for n in range(384):
            st_, c = divmod(n, 12); t, ct = CORD[c]
            if n % WEV == 0: lg.wait(('B', min(n + WEV - 1, 383)))
            for th in range(2):
                if c == 0: vm.wait(('A', 2 * st_ + (th if st_ < 2 or not o.get('vw1', 1) else 1)))
                d = accs + 32 * t + 16 * (ct >> 1) + 8 * (ct & 1) + 4 * th
                a(f'v_mfma_f32_16x16x32_bf16 {vr(d, 4)}, {vr(Br + 4*(n % NB), 4)}, {vr(Ar + 4*((2*st_ + th) % AD), 4)}, ' + ('0' if st_ == 0 else vr(d, 4)))
                if n + LOOK < 384:
                    if th == 0 and (n + LOOK) % 24 == 0 and (n + LOOK) // 24 <= LASTB: a('s_barrier')
                    b_read(n + LOOK, th)
            if c in o.get('aat', (0, 3, 6, 9)): a_more(min(nxt + 1, 2 * st_ + AD))
            if nxt == 64 and not b14 and (n + LOOK) // 24 >= LASTB and (n + LOOK) % 24:
                b14 = True; a('s_barrier')
        self.stamp('gemm1')
        aq, ak, av = accs, accs + 32, accs + 64
        def cvt8(d, s_, swap=True):
            for c in range(2):
                for th in range(2):
                    for ip in range(2): a(f'v_cvt_pk_bf16_f32 v{d + 4*c + 2*th + ip}, v{s_ + 8*c + 4*th + 2*ip}, v{s_ + 8*c + 4*th + 2*ip + 1}')
            if swap:
                for c in range(2):
                    for ip in range(2): a(f'v_permlane16_swap_b32 v{d + 4*c + ip}, v{d + 4*c + 2 + ip}')
        def put8(addr, d, off, oc_, ot):
            for c in range(2):
                for th in range(2): self.dw('ds_write_b64', addr, d + 4 * c + 2 * th, 2, off + c * oc_ + th * ot)
        cvt8(vv, ak + 16, False)
        put8(vXW, vv, 0, 1024, 256)
        cvt8(fr, ak)
        self.barrier()
        a('s_setprio 0')
        pp = ak; ee = ak + 16
        def phi_logits(src):
            a(f'v_mfma_f32_32x32x16_bf16 {vr(pp, 16)}, {vr(wphi, 4)}, {vr(src, 4)}, 0')
            a(f'v_mfma_f32_32x32x16_bf16 {vr(pp, 16)}, {vr(wphi + 4, 4)}, {vr(src + 4, 4)}, {vr(pp, 16)}')
        phi_logits(fr)
        for h in range(2):
            cvt8(vv if h == 0 else vq, av + 16 * h, False)
            put8(vVW, vv if h == 0 else vq, h * 8192, 4096, 512)
        cvt8(fr, aq + 16, False)
        put8(vXW, fr, 2048, 1024, 256)
        cvt8(vq, aq)
        a('s_branch L_JOIN')
        a('L_HELP:')
        vm.q = [('W', 1)] * len(q_hok) if o.get('wxor', 1) == 1 else list(q_hok); lg.reset()
        m2w = accs; m2c = accs + 32; g4 = accs + 48
        def w_unit(n):
            for wexpr in ('w - 4', 'w'):
                w_base(n, wexpr)
                for t in range(3): w_slot(n, t)
        for n in range(NPU, 6): w_unit(n)
        S(T0, '((j & 3)*4 + w - 4)*128' if HL else '((x & 3)*4 + w - 4)*128')
        va(vCo, [(3, 3, 16)], T0)
        va(vWM, [(3, 3, 8 * 12288), (0, 3, 16)])
        S(T4, 'T0*6144 + (((j >> 2) & 3)*16 + x*2 + (j >> 4))*128 + 4096' if HL else 'T0*6144 + (j*2 + (x >> 2))*128 + 4096')
        a(f'global_load_dwordx4 {vr(m2c + 8, 4)}, v{vCo}, {sr(pC, 2)}'); vm.issue('m2c')
        m2l = list(range(8)); wol = [9, 10, 11, 12]; pwl = list(range(1, 8)); sil = list(range(8))
        m2ops = self.gemv_ops([m2w + 4 * i for i in range(8)], [m2c + i for i in range(8)], acc, vT, vT + 1, False)
        m2pos = 0
        m2q = accs; wr1 = accs + 8; vM2 = accs + 9
        ld_m2 = lambda: [self.bl(m2q + 4 * q, 4, vM2, rWS, T5, q * 1024, 'sc1', 'm2q') for q in range(2)]
        def m2_final():
            self.finish_load('m2q', ld_m2, [m2q + 1, m2q + 3, m2q + 5, m2q + 7], vT)
            q0, q1, q2, q3 = m2q, m2q + 1, m2q + 2, m2q + 3
            S(T0, '(w & 3)*128 + L_MT'); va(vT, [(0, 5, 4)], T0)
            S(T1, 'w & 3')
            a(f"""v_add_f32 v{q0}, v{m2q}, v{m2q+4}
            v_add_f32 v{q1}, v{m2q+2}, v{m2q+6}
            v_add_f32 v{q2}, v{m2q}, v{m2q+4}""".replace(f'v_add_f32 v{q2}, v{m2q}, v{m2q+4}', f'v_mov_b32 v{q2}, v{q0}'))
            a(f"""v_mov_b32 v{q3}, v{q1}
            s_cmp_eq_u32 s{T1}, 2
            s_cselect_b32 s{T2}, 1.0, 0
            v_permlane32_swap_b32 v{q0}, v{q2}
            v_permlane32_swap_b32 v{q1}, v{q3}""")
            self.pk('add', q0, q0, q2)
            self.round2(q0, q1)
            a(f"""v_add_f32 v{q0}, s{T2}, v{q0}
            v_add_f32 v{q1}, s{T2}, v{q1}
            v_cvt_pk_bf16_f32 v{q2}, v{q0}, v{q1}""")
            self.dw('ds_write_b32', vT, q2, 1)
            a('s_cbranch_scc0 L_NOG')
            g0, g1, gh, gl = m2q + 4, m2q + 5, m2q + 6, m2q + 7
            self.unpack(q0, q1, q2); self.unpack(g0, g1, wr1)
            self.pk('mul', g0, g0, q0)
            a(f'v_cvt_pk_bf16_f32 v{gh}, v{g0}, v{g1}')
            self.unpack(q0, q1, gh)
            self.pk('add', q0, g0, q0, neg=(1,))
            a(f"""v_cvt_pk_bf16_f32 v{gl}, v{q0}, v{q1}
            v_add_f32 v{q0}, v{g0}, v{g1}
            ds_write2_b32 v{vT}, v{gh}, v{gl} offset0:64 offset1:96
            ds_write_b32 v{vT}, v{wr1} offset:512""")
            for ctl in ('quad_perm:[1,0,3,2]', 'quad_perm:[2,3,0,1]', 'row_half_mirror', 'row_ror:8'): self.dpp('v_add_f32', q0, q0, q0, ctl)
            S(T0, '(rt*16 + cb)*8 + GR')
            a(f"""v_mov_b32 v{q2}, v{q0}
            v_mov_b32 v{q1}, s{sTAG}
            v_permlane16_swap_b32 v{q0}, v{q2}
            v_add_f32 v{q0}, v{q0}, v{q2}
            s_mov_b64 exec, 1""")
            self.bs(q0, 2, vZ, rWS, T0, 0, 'sc1', count=False)
            a("""s_mov_b64 exec, -1
        L_NOG:""")
        def act(op, k):
            nonlocal m2pos
            kind, n = op[0], int(op[1:] or 1)
            if kind == 'm':
                for _ in range(2 * n):
                    i = m2l.pop(0)
                    self.bl(m2w + 4 * i, 4, vWM, rWM, T4, 0, o.get('ntm2', 'nt'), ('m2', i))
                    if m2l: S(T4, 'T4 + 12288')
            elif kind == 'f': ffn_reg(n)
            elif kind == 'o':
                assert k >= 13
                for _ in range(n):
                    it = wol.pop(0); wo_dma(it, 1); wo_dma(it)
            elif kind == 'p':
                a('s_waitcnt lgkmcnt(0)')
                for q in range(n):
                    b = pwl.pop(0)
                    a(f's_load_dword s{sPL + 2*q}, {sr(rWS, 2)}, s{sINB} offset:{b * 512} glc')
                    a(f's_load_dword s{sPL + 2*q + 1}, {sr(rWS, 2)}, s{sINB} offset:{b * 512 - 256} glc')
            elif kind == 'q':
                S(T0, 'fs*8192 + (w - 4)*256 + HGR')
                a('s_waitcnt lgkmcnt(0)')
                for q in range(4): a(f's_load_dword s{sPL + q}, {sr(rWS, 2)}, s{T0} offset:{q * 2048 + 1024 + 252} glc')
            elif kind == 'z':
                for i in range(4): a(f'v_mov_b32 v{g4+i}, -1')
                if n == 1:
                    for we in ('w - 4', 'w'):
                        S(T0, f'(((r1*4 + (w & 3))*16 + hp)*2 + (({we}) >> 2))*2048 + OF')
                        for q in range(2): self.bs(g4, 4, vL16, rWS, T0, 1024 * q, 'sc1', 'pzo')
                else:
                    for we in ('w - 4', 'w'):
                        S(T0, f'((hp*8 + {we})*32 + r1)*1024 + KVP'); S(T1, 'T0 + 16384')
                        self.bs(g4, 4, vL16, rWS, T0, 0, 'sc1', 'pz'); self.bs(g4, 4, vL16, rWS, T1, 0, 'sc1', 'pz')
                    S(T0, '((hp*8 + w - 4)*16 + r1)*64 + ZP')
                    va(vT + 2, [(0, 2, 16), (2, 1, 4096)])
                    a('s_mov_b64 exec, 0xff')
                    self.bs(g4, 4, vT + 2, rWS, T0, 0, 'sc1', 'pz')
                    a('s_mov_b64 exec, -1')
            elif kind == 'M':
                va(vM2, [(0, 5, 16), (5, 1, 512)])
                S(T5, '((w & 3)*16 + cb)*2048 + MODP2')
                S(T0, 'cb*128'); va(vT, [(0, 5, 4)], T0)
                a(f'global_load_dword v{wr1}, v{vT}, {sr(pWR, 2)}'); vm.issue('m2q')
                ld_m2()
            elif kind == 'N': m2_final()
            elif kind == 'K':
                S(T0, '(hp*16 + r1)*1024 + (w & 3)*256 + KIN'); S(T1, 'hp*128 + CFL')
                a(f'v_lshlrev_b32 v{vWM}, 7, v{vL}')
                a('s_mov_b64 exec, 3')
                self.bl(vWM, 1, vWM, rWS, T0, 0, '')
                self.bl(vCo, 1, vZ, rWS, T1, 0, '')
                a('s_mov_b64 exec, -1')
            elif kind == 'h':
                S(T0, '(fs*4 + kq)*2048 + (w & 1)*1024 + HGR'); S(T1, '(rt*16 + cb)*2048 + (w & 1)*1024 + STAT')
                if TL: a(f's_bitcmp1_b32 s{sWAVE}, 1'); a(f's_cselect_b32 s{T0}, s{T1}, s{T0}')
                self.bl(m2c + 12, 4, vL16, rWS, T0, 0, '')
            elif kind == 's':
                vm.wait('m2c')
                for _ in range(n):
                    i = sil.pop(0)
                    a(f'v_and_b32 v{m2c+i}, s{sMASK}, v{m2c+8+i//2}' if i & 1 else f'v_lshlrev_b32 v{m2c+i}, 16, v{m2c+8+i//2}')
                    self.silu(m2c + i, vT + (i & 1))
            elif kind == 'g':
                assert not sil
                for _ in range(n):
                    vm.wait(('m2', m2pos // 16))
                    for s_ in m2ops[m2pos:m2pos + 16]: a(s_)
                    m2pos += 16
            elif kind == 'r':
                assert m2pos == 128
                for s_ in m2ops[128:]: a(s_)
                self.dw('ds_write_b32', vGA, acc, 1, L_M2 - SCR)
                lg.wait_all()
            elif kind == 'P':
                a(f"""s_cmp_lg_u32 s{sWAVE}, 4
                s_cbranch_scc1 L_M2F
                ds_read_b128 {vr(acc, 4)}, v{vL32S} offset:{L_M2 - SCR}""")
                S(T0, '((((j >> 2) & 3)*16 + x*2 + (j >> 4))*4 + (j & 3))*512 + MODP2' if HL else '((j*2 + (x >> 2))*4 + (x & 3))*512 + MODP2')
                a(f"""s_waitcnt lgkmcnt(0)
                v_add_f32 v{acc}, v{acc}, v{acc+1}
                v_add_f32 v{acc+2}, v{acc+2}, v{acc+3}
                v_mov_b32 v{acc+1}, s{sTAG}
                v_add_f32 v{acc}, v{acc}, v{acc+2}""")
                self.bs(acc, 2, vL8, rWS, T0, 0, 'sc1', count=False)
                a('L_M2F:')
            else: raise ValueError(op)
        sched = {int(k): v.split() for k, v in o['sched'].items()}
        for op in sched.get(0, []): act(op, 0)
        for k in range(1, LASTB + 1):
            for kk in (range(k, 16) if k == LASTB else [k + 1 if k < 3 and o.get('wxor', 1) == 3 else k]): vm.wait(('W', kk))
            if o.get('ust'): self.stamp(f'w{k}')
            a('s_barrier')
            if o.get('ust'): self.stamp(f'u{k}')
            ops = sched.get(k, [])
            if 6 <= k + 4 < 16:
                pre = [op[1:] for op in ops if op[0] == '<']
                for op in pre: act(op, k)
                if not o.get('now2'): w_unit(k + 4)
            for op in ops:
                if op[0] != '<': act(op, k)
        if o.get('b14', 1):
            assert LASTB == 13 and AD <= 12
            a('s_barrier')
            for op in sched.get(14, []): act(op, 14)
        self.barrier()
        for q in range(2): self.r128(fr + 4 * q, vXF, q * 1024)
        lg.wait_all()
        phi_logits(fr)
        for op in sched.get(15, []): act(op, 15)
        assert (not m2l or o.get('nom2')) and not wol
        assert 8 * len(freg) <= 76
        a('L_JOIN:')
        pzq = list(vm.q)
        vm.reset(); lg.q = [None]
        V.release(vXW); V.release(vVW); V.release(vB, 6); V.release(vWd); V.release(vGA); V.release(vL32S); V.release(acc, 8)
        V.release(big + 8 * len(freg), 76 - 8 * len(freg))
        ph = aq; fx = aq + 16
        vPA = V.alloc(); vPB = V.alloc()
        self.softmax_pm(pp, ee, ph, vT)
        for fb in range(4): self.dw('ds_write_b128', vPW, ph + 4 * fb, 4, fb * 4096)
        S(T0, 'w*4096 + L_PHK'); a(f'v_add_u32 v{vPA}, s{T0}, v{vL8}')
        S(T0, 'kh*8192 + L_V'); a(f'v_add_u32 v{vPB}, s{T0}, v{vL8}')
        ones = fr
        for i in range(4): a(f'v_mov_b32 v{ones+i}, 0x3f803f80')
        S(T0, '((hp*8 + w)*32 + r1)*1024 + KVP'); S(T2, 'T0 + 16384')
        S(T3, '(hp*8 + w)*1024 + ZP'); S(T1, 'r1*64 + T3')
        self.stamp('ksm')
        self.barrier()
        self.stamp('phik')
        tb7 = V.alloc(8); tb4 = tb7 + 4
        S(T5, 'kh*64 + L_MT'); va(tb7 + 3, [(0, 3, 4), (5, 1, 32)], T5)
        for q, t in ((0, 0), (1, 4), (2, 5), (4, 1), (5, 2), (6, 3), (7, 6)): self.dr('ds_read_b32', tb7 + q, 1, tb7 + 3, t * 128)
        fragA = [ee + 4 * i for i in range(4)]
        fragB = [av + 4 * i for i in range(8)]
        kvd = vv; zd = fr + 4
        def kvm(u):
            lg.wait(('kv', u))
            for db in range(2):
                a(f'v_mfma_f32_16x16x32_bf16 {vr(kvd + 4*db, 4)}, {vr(fragA[u], 4)}, {vr(fragB[2*u+db], 4)}, ' + ('0' if u == 0 else vr(kvd + 4*db, 4)))
            a(f'v_mfma_f32_16x16x32_bf16 {vr(zd, 4)}, {vr(fragA[u], 4)}, {vr(ones, 4)}, ' + ('0' if u == 0 else vr(zd, 4)))
        for ts in range(4):
            self.tr(fragA[ts], vPA, ts * 1024, ('kv', ts)); self.tr(fragA[ts] + 2, vPA, ts * 1024 + 512, ('kv', ts))
            for db in range(2):
                self.tr(fragB[2*ts+db], vPB, db * 4096 + ts * 1024, ('kv', ts)); self.tr(fragB[2*ts+db] + 2, vPB, db * 4096 + ts * 1024 + 512, ('kv', ts))
            if ts >= 2: kvm(ts - 2)
        va(vPW, [(0, 4, 8 * 4096)] if HL else [(0, 3, 32 * 4096), (3, 1, 4 * 4096)])
        S(T4, '(wg & q)*4096 + (r1 >> 1)*64 + (r1 & 1)*4 + INB + 512', q=0x87 if HL else 0x1b)
        kvm(2); kvm(3)
        a(f"""s_cmp_lt_u32 s{sWAVE}, 4
        s_cbranch_scc1 L_NOQX
        ds_read_b128 {vr(vq, 4)}, v{vXF} offset:2048
        ds_read_b128 {vr(vq + 4, 4)}, v{vXF} offset:3072
        L_NOQX:""")
        if 'pz' in pzq: a(f's_waitcnt vmcnt({pzq[::-1].index("pz")})')
        self.bs(kvd, 4, vL16, rWS, T0, 0, 'sc1', 'kvs')
        self.bs(kvd + 4, 4, vL16, rWS, T2, 0, 'sc1', 'kvs')
        a('s_mov_b32 exec_lo, 0x00010001')
        a('s_mov_b32 exec_hi, 0x00010001')
        self.bs(zd, 4, vL, rWS, T1, 0, 'sc1', 'kvs')
        a('s_mov_b64 exec, -1')
        lg.wait_all()
        phi_logits(vq)
        self.stamp('kvst')
        wl = [2, 3, 4, 5, 6, 7, 8, 13, 14, 15, 0, 1]
        kp = av; zz = av + 16; g4 = vv
        vKP = V.alloc()
        va(vKP, [(3, 3, 1024), (0, 3, 16)])
        va(vXF, [(0, 3, 16), (5, 1, 8)])
        wo1 = lambda: wo_dma(wl.pop(0), 0, T6)
        keep = a.items; a.items = []
        self.softmax_pm(pp, ee, ph, vv)
        qsm = a.items; a.items = keep
        qcost = [2 if it[1].is_trans or 'permlane' in it[1].mn else 1 for it in qsm]
        qtot = sum(qcost); qdone = [0]
        def q_slice(upto):
            while qsm and qdone[0] < qtot * upto / 100:
                a.items.append(qsm.pop(0)); qdone[0] += qcost.pop(0)
        qs = o.get('qs', (35, 85, 100))
        CL = o.get('cl', (0, 1)); assert CL[1]
        q_slice(qs[0])
        S(T5, 'hp*128 + CFL'); S(T1, 'r1*8 + T5')
        vCF = V.alloc(); cf = V.alloc()
        va(vCF, [(0, 4, 8)])
        vm.wait('kvs')
        a('s_barrier')
        if CL[0]:
            a(f"""s_cmp_eq_u32 s{sLOC}, 0
            s_cbranch_scc1 L_PCG
            s_cmp_lg_u32 s{sWAVE}, 0
            s_cbranch_scc1 L_PC
            v_mov_b32 v{cf}, s{sTAG}
            s_mov_b64 exec, 1""")
            self.bs(cf, 1, vZ, rWS, T1, 0, '', count=False)
            a("""s_mov_b64 exec, -1
            s_branch L_PC
            L_PCG:""")
        self.push(vPW, T4, 16, vPB, 'L_PC')
        self.stamp('kvpub')
        assert HL and not CL[0]
        self.bl(tb7 + 3, 1, vZ, rWS, '0', MARK, 'sc1', 'mk')
        S(T0, '(hp*16 + r1)*16384 + w*128 + KVP')
        S(T2, '(hp*16 + r1)*1024 + w*128 + KIN'); S(T4, 'T4 + 6*512')
        c1_work = lambda: (self.weave(lambda: q_slice(qs[1]), [wo1] * o['wowin'][0]), self.stamp('cw'))
        if CL[0]:
            ld_cf = lambda: self.bl(cf, 1, vCF, rWS, T5, 0, 'sc1', 'cf')
            if o.get('cfpre', 1): ld_cf()
            c1_work()
            a(f"""s_cmp_lg_u32 s{sLOC}, 0
            s_cbranch_scc1 L_C1L""")
            q_ = list(vm.q)
            self.inbox(1, 2)
            a("""s_barrier
            s_branch L_C1D
            L_C1L:""")
            if o.get('cfpre', 1): self.finish_load('cf', ld_cf, [cf])
            else: self.poll(ld_cf, [cf])
            vm.q = q_
            a('L_C1D:')
        else:
            self.inbox(1, 2, work=c1_work)
            a('s_barrier')
        V.release(vCF); V.release(vWM); V.release(vCo)
        self.stamp('kvok')
        S(T5, 'T0 + 8192')
        ld_kp = lambda: (self.bl(kp, 4, vKP, rWS, T0, 0, 'sc1', 'kp'), self.bl(kp + 4, 4, vKP, rWS, T5, 0, 'sc1', 'kp'))
        ld_z = lambda: self.bl(zz, 4, vL16, rWS, T3, 0, 'sc1', 'z')
        ld_kp(); ld_z()
        S(T1, 'w*32 + L_ZF'); va(vT + 2, [(0, 2, 8), (5, 1, 4)], T1)
        S(T1, 'w*1024 + L_KVF'); va(vT + 1, [(0, 4, 16), (5, 1, 512), (4, 1, 8)], T1)
        S(T1, 'kh*128 + L_ZF'); va(vT + 3, [(5, 1, 16)], T1)
        S(T1, 'kh*4096 + L_KVF'); a(f'v_add_u32 v{vPA}, s{T1}, v{vL16}')
        def red4(r, ctls):
            for i in range(2): a(f'v_permlane32_swap_b32 v{r+i}, v{r+2+i}')
            self.pk('add', r, r, r + 2)
            for ctl in ctls:
                for i in range(2): self.dpp('v_add_f32', r + i, r + i, r + i, ctl)
            for i in range(2): a(f'v_mov_b32 v{r+2+i}, v{r+i}')
            for i in range(2): a(f'v_permlane16_swap_b32 v{r+i}, v{r+2+i}')
            self.pk('add', r, r, r + 2)
            a(f'v_cvt_pk_bf16_f32 v{r}, v{r}, v{r+1}')
        self.weave(lambda: q_slice(qs[2]), [wo1] * o['wowin'][1])
        vm.wait('kp')
        a(f'v_cmp_eq_u32 vcc, s{sTAG}, v{tb7+3}')
        a(f's_cmp_eq_u32 vcc_lo, 0')
        a(f's_cselect_b32 s{sLOC}, {o.get("local", 1)}, 0')
        self.pk('add', kp, kp, kp + 4); self.pk('add', kp + 2, kp + 2, kp + 6)
        red4(kp, ['row_ror:8'])
        a(f"""v_mov_b32 v{kp+1}, s{sTAG}
        s_mov_b32 exec_lo, 0xff
        s_mov_b32 exec_hi, 0xff""")
        kc = V.alloc(4)
        if CL[1]:
            self.bs2([(kp, 2, vXF, T2, 0)])
            a(f"""s_mov_b64 exec, -1
            v_mov_b32 v{kc}, v{kp}
            v_mov_b32 v{kc+1}, v{kp+1}
            v_add_u32 v{kc+2}, s{T2}, v{vXF}
            s_cbranch_scc1 L_PC2""")
        else:
            self.bs(kp, 2, vXF, rWS, T2, 0, 'sc1', count=False)
            a('s_mov_b64 exec, -1')
        a('s_barrier')
        self.push(vPW, T4, 16, vPB, 'L_PC2')
        self.stamp('c2pub')
        kf = av; zf = av + 16; num = pp; den = ee
        k2 = av + 8
        S(T0, '(hp*8 + w)*2048 + KIN')
        ld_k2 = lambda: [self.bl(k2 + 4 * q, 4, vL16, rWS, T0, q * 1024, 'sc1') for q in range(2)]
        def z_work():
            vm.wait('z')
            red4(zz, ['row_ror:4', 'row_ror:8'])
            self.dw('ds_write_b32', vT + 2, zz, 1)
            q_slice(100)
            self.stamp('c2w')
        ZP_ = o.get('zpre', 1)
        if ZP_: z_work()
        a(f"""s_cmp_lg_u32 s{sLOC}, 0
        s_cbranch_scc1 L_C2L""")
        l_ = list(lg.q)
        self.inbox(7, 2)
        lg.q = l_
        a('L_C2L:')
        self.try_load(ld_k2, [k2 + 1, k2 + 3, k2 + 5, k2 + 7], vT, None if ZP_ else z_work)
        for db in range(2):
            a(f'ds_write2_b32 v{vT+1}, v{k2+4*db}, v{k2+4*db+2} offset0:{64*db} offset1:{64*db+1}'); lg.issue()
        self.barrier()
        self.stamp('kvred')
        for fb in range(4): self.r128(zf + 4 * fb, vT + 3, fb * 32, ('zf', fb))
        for fb in range(4): self.r128(kf + 4 * fb, vPA, fb * 1024, ('kf', fb))
        for _ in range(o['wowin'][2]): wo1()
        S(T0, '(((r1*4 + (w & 3))*16 + hp)*2 + kh)*2048 + OF')
        va(vT + 4, [(0, 4, 16), (4, 1, 1024), (5, 1, 256)])
        for fb in range(4):
            lg.wait(('zf', fb))
            a(f'v_mfma_f32_32x32x16_bf16 {vr(den, 16)}, {vr(zf + 4*fb, 4)}, {vr(ph + 4*fb, 4)}, ' + ('0' if fb == 0 else vr(den, 16)))
        for fb in range(4):
            lg.wait(('kf', fb))
            a(f'v_mfma_f32_32x32x16_bf16 {vr(num, 16)}, {vr(kf + 4*fb, 4)}, {vr(ph + 4*fb, 4)}, ' + ('0' if fb == 0 else vr(num, 16)))
        self.round1(den)
        a(f'v_add_f32 v{den}, 0x358637bd, v{den}')
        self.round1(den)
        a(f'v_rcp_f32 v{den}, v{den}')
        for h in range(2):
            self.round_list([num + i for i in range(8 * h, 8 * h + 8)])
            for i in range(8 * h, 8 * h + 8, 2): self.pk('mul', num + i, num + i, den, bc=(1,))
            for i in range(4 * h, 4 * h + 4): a(f'v_cvt_pk_bf16_f32 v{vq+i}, v{num+2*i}, v{num+2*i+1}')
            self.bs(vq + 4 * h, 4, vT + 4, rWS, T0, 512 * h, 'sc1', 'os')
        self.stamp('ost')
        for r, n in ((fr, 8), (vv, 8), (vPW, 1), (vXF, 1), (vPA, 1), (vPB, 1), (vKP, 1), (accs, 16), (accs + 32, 64), (wphi, 8)):
            V.release(r, n)
        assert GS == 0
        vG16 = vL16
        vBa = V.alloc(4); xf = V.alloc(16)
        S(T4, 'kh*(65536 + 64) + WO_H0')
        va(vBa, [(5, 1, 2048), (4, 1, 512), (2, 2, 128), (3, 1, 64), (1, 1, 32), (4, 1, 16), (0, 1, 8)])
        a(f'v_xor_b32 v{vBa}, s{T4}, v{vBa}')
        for q, x_ in ((1, 16), (2, 64), (3, 80)): a(f'v_xor_b32 v{vBa+q}, {x_}, v{vBa}')
        assert WO_H1 == WO_H0 + 65536
        va(vT + 1, LCB)
        S(T2, ('((r1 & 1)*128 + (r1 >> 1))*4096' if TL else '((r1 >> 2)*2 + (r1 & 3)*64)*4096') + (' + ((hp >> 3)*4 + (hp & 3))*64 + ((hp >> 2) & 1)*4 + INB + 1024' if D2 else ' + (hp >> 1)*64 + (hp & 1)*4 + INB + 1024'))
        gaf = V.alloc(16); gp = V.alloc(16); gr = V.alloc(2); vGR = V.alloc(); cn = V.alloc(2)
        def expand(dst, t):
            for i in range(8):
                self.dpp('v_mul_u32_u24', dst + 2 * i, t, cn, f'row_newbcast:{i}')
                self.dpp('v_and_b32', dst + 2 * i + 1, t, cn + 1, f'row_newbcast:{i}')
        a(f"""v_mov_b32 v{cn}, 0x10000
        v_mov_b32 v{cn+1}, s{sMASK}""")
        for i in range(8): self.unpack(xf + 2 * i, xf + 2 * i + 1, xr + i)
        expand(gaf, tb7)
        S(T6, '(gtb*2 + kf)*32768 + OF')
        va(vGR, [(0, 4, 8)])
        vm.wait('os')
        self.barrier()
        self.push(vT + 1, T2, 16, vT + 2, 'L_PD')
        self.stamp('opub')
        def c_clean():
            if CL[1]:
                a("""s_mov_b32 exec_lo, 0xff
                s_mov_b32 exec_hi, 0xff""")
                self.bs(kc, 2, kc + 2, rWS, '0', 0, 'sc1')
                a('s_mov_b64 exec, -1')
            if CL[0]:
                S(T0, 'hp*128 + r1*8 + CFL')
                a(f"""s_cmp_lg_u32 s{sWAVE}, 0
                s_cbranch_scc1 L_NOCC
                v_mov_b32 v{cf}, s{sTAG}
                s_mov_b64 exec, 1""")
                self.bs(cf, 1, vZ, rWS, T0, 0, 'sc1', count=False)
                a("""s_mov_b64 exec, -1
                L_NOCC:""")
        if o.get('ccat', 1) == 0: c_clean()
        V.release(vq, 8)
        late_wo = bool(wl)
        while wl: wo_dma(wl.pop(0))
        V.release(vWo)
        def d_work():
            for k in range(2):
                for i in range(8): a(f'v_mov_b32_dpp v{gp + 8*k + i}, v{tb7 + 1 + k} row_newbcast:{i} row_mask:0xf bank_mask:0xf')
            if o.get('stouch', TL):
                S(T2, '(rt*16 + cb)*2048 + w*256 + STAT')
                a(f'v_lshlrev_b32 v{gr}, 7, v{vL}')
                a('s_mov_b64 exec, 3')
                self.bl(gr, 1, gr, rWS, T2, 0, '')
                a('s_mov_b64 exec, -1')
            if late_wo or o.get('stouch', TL): vm.wait_all()
            self.stamp('dw')
        AD2 = o['AD2']
        LK2 = o.get('LK2', 4); NB2 = LK2 + 1
        accA = V.alloc(16); accB = V.alloc(16); Ar = V.alloc(4 * AD2); Br = V.alloc(4 * NB2)
        def b2_read(n, q):
            st_, c = divmod(n, 4)
            self.tr(Br + 4 * (n % NB2) + 2 * q, vBa + (c ^ 2), st_ * 4096 + q * 1024, ('B', n))
        def a2_load(s):
            if s % 2 == 0: S(T7, '(rot ^ n)*2048 + T6' if D2 else '((rot + n) & 15)*2048 + T6', n=s // 2)
            self.bl(Ar + 4 * (s % AD2), 4, vL16, rWS, T7, (s % 2) * 1024, 'sc1', ('A', s))
        self.inbox(2, 2, [0] if D2 else None, work=d_work)
        V.release(fx, 16)
        a('s_barrier')
        self.stamp('ook')
        if o.get('prio2', 1):
            a(f"""s_cmp_lt_u32 s{sWAVE}, 4
            s_cbranch_scc1 L_P2
            s_setprio {o.get('prio2', 1)}
            L_P2:""")
        nx2 = 0
        def a2_more(lim):
            nonlocal nx2
            while nx2 < min(lim, 32):
                if nx2 == 16 and D2:
                    a(f"""s_cmp_eq_u32 s{sPL + 1}, s{sTAG}
                    s_cbranch_scc1 L_D2""")
                    l_ = list(lg.q)
                    self.inbox(2, 2, [1])
                    lg.q = l_
                    a("""L_D2:
                    s_barrier""")
                a2_load(nx2); nx2 += 1
                if nx2 == 32:
                    ld_gr()
                    if o.get('ccat', 1) == 1: c_clean()
        S(T5, 'rt*128 + GR')
        ld_gr = lambda: self.bl(gr, 2, vGR, rWS, T5, 0, 'sc1', 'gr')
        a2_more(2)
        for n in range(LK2):
            for q in range(2): b2_read(n, q)
        a2_more(o.get('A20', 4))
        for n in range(64):
            st_, c = divmod(n, 4)
            lg.wait(('B', n))
            for th in range(2):
                if c == 0: vm.wait(('A', 2 * st_ + th))
                d = (accB, accA)[c >> 1] + 8 * (c & 1) + 4 * th
                a(f'v_mfma_f32_16x16x32_bf16 {vr(d, 4)}, {vr(Br + 4*(n % NB2), 4)}, {vr(Ar + 4*((2*st_ + th) % AD2), 4)}, ' + ('0' if st_ == 0 else vr(d, 4)))
                if n + LK2 < 64: b2_read(n + LK2, th)
            if n == o.get('prio2n', 18): a('s_setprio 0')
            if c in o.get('a2at', (0, 1)): a2_more(min(nx2 + 1, 2 * st_ + AD2))
            if c == 3 and AD2 == 4: a2_more(2 * st_ + 6)
        V.release(kc, 4); V.release(cf)
        self.stamp('gemm2')
        if o.get('prio2', 1): a('s_setprio 0')
        S(T0, 'w*4096')
        a(f"""v_add_u32 v{vT}, s{T0}, v{vG16}
        v_xor_b32 v{vT+1}, 0x4000, v{vT}""")
        for q in range(4): self.dw('ds_write_b128', vT, accB + 4 * q, 4, L_EXCH - GS + q * 1024)
        S(T0, 'kh*2048 + (w & 3)*512 + L_SP'); va(vT + 2, [(0, 5, 16), (5, 1, 8)], T0)
        S(T0, 'kh*64 + L_TB'); va(vT + 3, [(0, 3, 4), (5, 1, 32)], T0)
        vSG = V.alloc()
        S(T6, 'rt*32768 + w*256 + STAT'); va(vSG, [(0, 4, 16), (4, 2, 2048)])
        sm = Br; one = Br + 4
        a(f'v_mov_b32 v{one}, 0x3f803f80')
        fd = list(o['fdma']); assert sum(fd) == len(fq)
        self.stamp('exw')
        self.barrier()
        self.stamp('ex1')
        for q in range(4): self.r128(accB + 4 * q, vT + 1, L_EXCH - GS + q * 1024, ('ex', q))
        ffn_dma(fd[0], T1)
        for h in range(2):
            for q in (2 * h, 2 * h + 1):
                lg.wait(('ex', q))
                self.pk('add', accA + 4 * q, accA + 4 * q, accB + 4 * q); self.pk('add', accA + 4 * q + 2, accA + 4 * q + 2, accB + 4 * q + 2)
            for i in range(4): a(f'v_permlane16_swap_b32 v{accA + 8*h + i}, v{accA + 8*h + 4 + i}')
            rg = range(8 * h, 8 * h + 8)
            self.round_list([accA + i for i in rg])
            for i in range(8 * h, 8 * h + 8, 2): self.pk('mul', accA + i, accA + i, gaf + i)
            self.round_list([accA + i for i in rg])
            for i in range(8 * h, 8 * h + 8, 2): self.pk('add', accA + i, accA + i, xf + i)
            for i in range(4 * h, 4 * h + 4): a(f'v_cvt_pk_bf16_f32 v{xr+i}, v{accA+2*i}, v{accA+2*i+1}')
        self.stamp('x1c')
        for i in range(8):
            for d, b in ((sm, one), (sm + 2, xr + i), (sm + 1, gp + i), (sm + 3, gp + 8 + i)):
                a(f'v_dot2_f32_bf16 v{d}, v{xr+i}, v{b}, ' + ('0' if i == 0 else f'v{d}'))
        a(f"""v_permlane32_swap_b32 v{sm}, v{sm+2}
        v_permlane32_swap_b32 v{sm+1}, v{sm+3}""")
        self.pk('add', sm, sm, sm + 2)
        self.dw('ds_write_b64', vT + 2, sm, 2)
        for q in range(4): self.dw('ds_write_b32', vT + 3, tb4 + q, 1, 128 * q)
        a(f'v_add_u32 v{vT}, {L_SP}, v{vL16}')
        va(vT + 1, LCB)
        S(T0, '(rt*16 + cb)*2048 + STAT')
        S(T3, ('((rt & 1)*128 + (rt >> 1))*4096' if TL else '((rt & 3)*64 + (rt >> 2)*2)*4096') + ' + (cb >> 1)*64 + (cb & 1)*4 + INB + 1536')
        self.barrier()
        self.stamp('x1st')
        a(f"""s_cmp_lg_u32 s{sWAVE}, 0
        s_cbranch_scc1 L_PE""")
        for q in range(4): a(f'ds_read_b128 {vr(accB + 4*q, 4)}, v{vT} offset:{(q & 1) * 2048 + (q >> 1) * 1024}')
        for h in range(2):
            b = accB + 8 * h
            a(f's_waitcnt lgkmcnt({2 - 2*h})')
            self.pk('add', b, b, b + 4); self.pk('add', b + 2, b + 2, b + 6)
            a(f"""v_add_f32 v{b+1}, v{b+1}, v{b+3}
            v_mov_b32 v{b+3}, s{sTAG}""")
        if TL:
            self.bs2([(accB + 8 * h, 4, vL16, T0, 1024 * h) for h in range(2)])
            a('s_cbranch_scc1 L_PE')
        else:
            for h in range(2): self.bs(accB + 8 * h, 4, vL16, rWS, T0, 1024 * h, 'sc1', count=False)
        a('s_mov_b64 exec, 0xffff')
        self.bs(accB + 3, 1, vT + 1, rWS, T3, 0, 'sc1', count=False)
        a("""s_mov_b64 exec, -1
        L_PE:""")
        self.stamp('x1pub')
        V.release(accA, 16); V.release(accB, 16); V.release(Ar, 4 * AD2); V.release(Br, 4 * NB2); V.release(vBa, 4); V.release(xf, 16); V.release(gaf, 16); V.release(gp, 16)
        x1 = V.alloc(16); hh = V.alloc(16); mf = V.alloc(32); sg = V.alloc(16); op = V.alloc(8)
        st = V.alloc(2); vRid = V.alloc(); ck = V.alloc(4); vOT = V.alloc()
        ct = V.alloc(12, 4)
        def e_work():
            S(T3, '(w & 3)*(32*144) + kh*64'); va(vOT, [(0, 5, 144), (5, 1, 32)], T3)
            for q in range(2): self.dw('ds_write_b128', vOT, xr + 4 * q, 4, L_XT + 16 * q)
            a(f'v_add_u32 v{vOT}, {L_OT}, v{vOT}')
            S(T2, '4094 - (rt*8 + w)*32'); va(vRid, [(0, 4, 2)]); a(f'v_sub_u32 v{vRid}, s{T2}, v{vRid}')
            S(T2, 'w*128 + L_ST2'); va(vT + 4, [(0, 4, 8)], T2)
            S(T2, '(w & 3)*256 + L_ST2'); va(vT + 6, [(0, 5, 8)], T2)
            va(vT + 7, [(0, 3, 8)], None, L_K1)
            self.finish_load('gr', ld_gr, [gr + 1])
            for ctl in ('quad_perm:[1,0,3,2]', 'quad_perm:[2,3,0,1]', 'row_half_mirror', 'row_ror:8'): self.dpp('v_add_f32', gr, gr, gr, ctl)
            a(f"""s_cmp_lg_u32 s{sWAVE}, 1
            s_cbranch_scc1 L_NOCT""")
            va(vT + 1, [(0, 4, 8)], None, L_TB)
            a(f"""ds_read_b64 {vr(ct + 2, 2)}, v{vT+1}
            ds_read_b64 {vr(ct + 6, 2)}, v{vT+1} offset:128
            ds_read_b64 {vr(ct + 8, 2)}, v{vT+1} offset:384
            s_waitcnt lgkmcnt(0)""")
            for b in (ct, ct + 4):
                self.unpack(b, b + 1, b + 2); self.unpack(b + 2, b + 3, b + 3)
            a('L_NOCT:')
        def f_pre(part):
            if part == 0:
                a(f"""s_cmp_lt_u32 s{sWAVE}, 4
                s_cbranch_scc1 L_NOST""")
                S(T0, '(w - 4)*4096 + L_GU')
                a(f'v_add_u32 v{vT}, s{T0}, v{vL16}')
                a(f'v_add_u32 v{vT+3}, {L_DN - L_GU}, v{vT}')
                for n, (m, i) in enumerate(freg):
                    for back in range(2):
                        self.dw('ds_write_b128', vT if m < 2 else vT + 3, big + 8 * n + 4 * back, 4, f_lds(m, i) - (L_GU if m < 2 else L_DN) + (1 - back) * 16384)
                a('L_NOST:')
                return
            for i in range(8): self.unpack(x1 + 2 * i, x1 + 2 * i + 1, xr + i)
            expand(mf, tb4); expand(mf + 16, tb4 + 1)
        if TL:
            a(f"""s_cmp_lg_u32 s{sLOC}, 0
            s_cbranch_scc1 L_ELOC""")
            self.inbox(3, 2)
            a("""s_barrier
            L_ELOC:""")
        else:
            ffn_dma(fd[1])
            self.inbox(3, 2, work=lambda: (e_work(), f_pre(0)))
            a('s_barrier')
        self.stamp('x1ok')
        def ld_sg():
            for q in range(4):
                S(T0, 'T6 + q', q=q * 8192)
                self.bl(sg + 4 * q, 4, vSG, rWS, T0, 0, 'sc1')
        self.try_load(ld_sg, [sg + 3, sg + 7, sg + 11, sg + 15], vT, e_work if TL else lambda: f_pre(1))
        V.release(vSG)
        self.stamp('x1ld')
        if o.get('htouch', 1):
            S(T2, '(fs*4 + kq)*2048 + w*256 + HGR')
            vDum = V.alloc()
            a(f'v_lshlrev_b32 v{vDum}, 7, v{vL}')
            a('s_mov_b64 exec, 3')
            self.bl(vDum, 1, vDum, rWS, T2, 0, '')
            a('s_mov_b64 exec, -1')
        ffn_dma(fd[2], T2)
        A_, B_, C_, U_ = sg, sg + 1, sg + 2, sg + 3
        self.pk('add', sg, sg, sg + 4); self.pk('add', sg + 8, sg + 8, sg + 12)
        a(f"""v_add_f32 v{C_}, v{C_}, v{sg+6}
        v_add_f32 v{sg+10}, v{sg+10}, v{sg+14}""")
        self.pk('add', sg, sg, sg + 8)
        a(f"""v_add_f32 v{C_}, v{C_}, v{sg+10}
        v_mov_b32 v{U_}, v{B_}
        v_permlane32_swap_b32 v{A_}, v{C_}
        v_permlane32_swap_b32 v{B_}, v{U_}
        v_add_f32 v{A_}, v{A_}, v{C_}
        v_add_f32 v{B_}, v{B_}, v{U_}
        v_permlane16_swap_b32 v{A_}, v{B_}
        v_add_f32 v{U_}, v{A_}, v{B_}
        v_add_f32 v{A_}, v{A_}, v{B_}
        v_permlane16_swap_b32 v{A_}, v{U_}
        v_mul_f32 v{C_}, 0x3a800000, v{A_}
        v_mul_f32 v{A_}, 0x3a800000, v{A_}
        v_permlane32_swap_b32 v{A_}, v{C_}""")
        self.stat_math(A_, C_, st, st + 1)
        S(T0, 'w*8 + L_K1')
        a(f"""v_rcp_f32 v{st+1}, v{st+1}
        v_fma_f32 v{U_}, -v{st}, v{gr}, v{U_}
        v_mov_b32 v{vT+1}, s{T0}
        v_mul_f32 v{U_}, v{U_}, v{st+1}""")
        self.dw('ds_write_b64', vT + 4, st, 2)
        a(f"""s_movk_i32 s{T0}, 0xfff
        v_ashrrev_i32 v{A_}, 31, v{U_}
        v_or_b32 v{A_}, 0x80000000, v{A_}
        v_xor_b32 v{A_}, v{A_}, v{U_}
        v_bfi_b32 v{ck}, s{T0}, v{vRid}, v{A_}""")
        def top2(ctls, first):
            for n, ctl in enumerate(ctls):
                if n == 0 and first:
                    self.dpp('v_min_u32', ck + 1, ck, ck, ctl); self.dpp('v_max_u32', ck, ck, ck, ctl)
                    continue
                self.dpp('v_min_u32', ck + 2, ck, ck, ctl); self.dpp('v_max_u32', ck + 1, ck + 1, ck + 1, ctl); self.dpp('v_max_u32', ck, ck, ck, ctl)
                a(f'v_max_u32 v{ck+1}, v{ck+1}, v{ck+2}')
        top2(('row_ror:8', 'row_ror:4', 'row_ror:2', 'row_ror:1'), True)
        self.dw('ds_write_b64', vT + 1, ck, 2)
        va(vT + 2, [(0, 1, 128 * 4096), (1, 3, 4096)] if TL else [(0, 2, 64 * 4096), (2, 2, 2 * 4096)])
        S(T1, ('cb*32768' if TL else '((cb & 7)*8 + (cb >> 3))*4096') + ' + (rt >> 1)*64 + (rt & 1)*16 + INB + 2560')
        self.barrier()
        self.stamp('ln2')
        self.dr('ds_read_b64', ck, 2, vT + 7, 0, 'k'); self.dr('ds_read_b64', st, 2, vT + 6, 0, 's')
        lg.wait('k')
        top2(('quad_perm:[1,0,3,2]', 'quad_perm:[2,3,0,1]', 'row_half_mirror'), False)
        a(f"""v_or_b32 v{ck+2}, 1, v{ck+1}
        v_mov_b32 v{ck+1}, s{sTAG}
        v_mov_b32 v{ck+3}, s{sTAG}
        s_cmp_lg_u32 s{sWAVE}, 0
        s_cbranch_scc1 L_NOF
        s_mov_b64 exec, 0xffff""")
        self.bs(ck, 4, vT + 2, rWS, T1, 0, 'sc1', count=False)
        a("""s_mov_b64 exec, -1
        L_NOF:""")
        self.stamp('Fpub')
        a(f"""s_cmp_lg_u32 s{sWAVE}, 1
        s_cbranch_scc1 L_NOC
        v_and_b32 v{vT}, 16, v{vL}
        v_cmp_eq_u32 vcc, 0, v{vT}
        v_cndmask_b32 v{vT}, v{ck+2}, v{ck}, vcc
        v_not_b32 v{vT}, v{vT}
        v_bfe_u32 v{vT}, v{vT}, 1, 7
        v_lshlrev_b32 v{vT+2}, 3, v{vT}
        v_mul_u32_u24 v{vT}, 144, v{vT}
        v_add_u32 v{vT+2}, {L_ST2}, v{vT+2}""")
        va(vT + 1, [(0, 4, 8)])
        cx, cs, ch = sg, sg + 4, sg + 8
        a(f"""v_add_u32 v{vT}, v{vT}, v{vT+1}
        ds_read_b64 {vr(cs, 2)}, v{vT+2}
        ds_read_b64 {vr(cx, 2)}, v{vT} offset:{L_XT}""")
        va(vT + 2, [(0, 4, 16), (4, 1, 16384), (5, 1, 4096)])
        va(vT + 3, [(4, 1, 16384)])
        S(T0, 'rt*32768 + cb*256 + CAND'); S(T3, 'rt*32768 + cb*8 + 8192 + CAND')
        a(f"""v_mov_b32 v{cx+3}, s{sTAG}
        s_waitcnt lgkmcnt(0)""")
        self.unpack(ch, ch + 1, cx); self.unpack(ch + 2, ch + 3, cx + 1)
        for i in (0, 2): self.pk('add', ch + i, ch + i, cs, bc=(1,), neg=(1,))
        self.round_list([ch + i for i in range(4)])
        for i in (0, 2): self.pk('mul', ch + i, ch + i, cs + 1, bc=(1,))
        self.round_list([ch + i for i in range(4)])
        for i in (0, 2): self.pk('mul', ch + i, ch + i, ct + 4 + i)
        self.round_list([ch + i for i in range(4)])
        for i in (0, 2): self.pk('add', ch + i, ch + i, ct + i)
        a(f"""v_mov_b32 v{cx+2}, v{cx+1}
        v_mov_b32 v{cx+1}, s{sTAG}
        s_mov_b32 exec_hi, 0
        v_cvt_pk_bf16_f32 v{cx}, v{ch}, v{ch+1}
        v_cvt_pk_bf16_f32 v{cx+2}, v{ch+2}, v{ch+3}
        s_mov_b32 exec_hi, -1
        v_dot2_f32_bf16 v{cs}, v{cx}, v{ct+8}, 0
        v_mov_b32 v{cs+1}, s{sTAG}
        v_dot2_f32_bf16 v{cs}, v{cx+2}, v{ct+9}, v{cs}""")
        self.bs(cx, 4, vT + 2, rWS, T0, 0, 'sc1', count=False)
        for ctl in ('quad_perm:[1,0,3,2]', 'quad_perm:[2,3,0,1]', 'row_half_mirror', 'row_ror:8'): self.dpp('v_add_f32', cs, cs, cs, ctl)
        a('s_mov_b64 exec, 0x10001')
        self.bs(cs, 2, vT + 3, rWS, T3, 0, 'sc1', count=False)
        a("""s_mov_b64 exec, -1
        L_NOC:""")
        V.release(ct, 12)
        def ln2_tile():
            for i in E2: self.pk('add', hh + i, x1 + i, st, bc=(1,), neg=(1,))
            self.round_list([hh + i for i in range(16)])
            for i in E2: self.pk('mul', hh + i, hh + i, st + 1, bc=(1,))
            self.round_list([hh + i for i in range(16)])
            for i in E2: self.pk('mul', hh + i, hh + i, mf + 16 + i)
            self.round_list([hh + i for i in range(16)])
            for i in E2: self.pk('add', hh + i, hh + i, mf + i)
            self.round_list([hh + i for i in range(16)])
        lg.wait('s')
        self.stamp('cand')
        ffn_dma(fd[3])
        uu = V.alloc(16); vGr = V.alloc(); vDr = V.alloc(); vXs = V.alloc()
        def out_calc():
            expand(mf, tb4 + 2)
            for i in E2: self.pk('mul', hh + i, hh + i, mf + i)
            self.round_list([hh + i for i in range(16)])
            for i in E2: self.pk('add', hh + i, hh + i, x1 + i)
            for i in range(8): a(f'v_cvt_pk_bf16_f32 v{op+i}, v{hh+2*i}, v{hh+2*i+1}')
            for q in range(2): self.dw('ds_write_b128', vOT, op + 4 * q, 4, 16 * q)
            S(T3, 'w*(16*144) + L_OT'); va(vOT, [(3, 3, 144), (0, 3, 16)], T3)
        oc = o.get('ocat', 2 if TL else 1); l2 = o.get('l2at', 1 if TL else 0)
        def f_work():
            if TL: f_pre(0); f_pre(1)
            if l2 == 0: ln2_tile()
            if oc == 0: out_calc()
            S(T0, '(w >> 2)*32768 + (w & 3)*32 + L_GU')
            va(vGr, [(4, 2, 8192), (2, 2, 128), (3, 2, 32), (0, 2, 8)]); a(f'v_xor_b32 v{vGr}, s{T0}, v{vGr}')
            S(T0, 'w*64')
            va(vDr, [(2, 1, 512), (3, 1, 4096), (5, 1, 2048), (2, 2, 64), (4, 1, 32), (0, 2, 8)])
            a(f'v_xor_b32 v{vDr}, s{T0}, v{vDr}'); a(f'v_add_u32 v{vDr}, {L_DN}, v{vDr}')
            va(vXs, [(0, 3, 16), (4, 2, 128)], None, L_XS)
            S(T0, 'w*16 + L_K2'); a(f'v_mov_b32 v{vT}, s{T0}')
            va(vT + 1, [(0, 3, 16)], None, L_K2)
            a(f'v_and_b32 v{vT+4}, 8, v{vL}')
            a(f'v_cmp_eq_u32 {sr(sCMP, 2)}, 0, v{vT+4}')
            self.stamp('oc')
        self.inbox(5, 8, (1, 3, 5, 7), f_work)
        P = sPL
        a(f"""s_min_u32 s{P+1}, s{P}, s{P+4}
        s_max_u32 s{P}, s{P}, s{P+4}
        s_max_u32 s{P+3}, s{P+2}, s{P+6}
        s_min_u32 s{P+2}, s{P+2}, s{P+6}
        s_max_u32 s{P+4}, s{P+1}, s{P+3}
        s_min_u32 s{P+1}, s{P+1}, s{P+3}
        v_mov_b32 v{uu}, s{P}
        v_mov_b32 v{uu+3}, s{P+2}
        v_mov_b32 v{uu+1}, s{P+4}
        v_mov_b32 v{uu+2}, s{P+1}""")
        self.dw('ds_write_b128', vT, uu, 4)
        self.stamp('F2p')
        V.release(big, 8 * len(freg)); V.release(gr, 2); V.release(vGR); V.release(vRid)
        ffn = V.alloc(48); ga_ = V.alloc(16); gb_ = V.alloc(16)
        vm.wait('gu')
        self.barrier()
        self.stamp('F2')
        def gu_frags():
            for s in range(8):
                self.tr(ffn + 4 * s, vGr, s * 1024); self.tr(ffn + 4 * s + 2, vGr, s * 1024 + 512)
        a(f"""s_cmp_lt_u32 s{sWAVE}, 4
        s_cbranch_scc1 L_CSEL""")
        fq0, vq0 = list(fq), list(vm.q)
        if not o.get('f4late', 1): ffn_dma(fd[4])
        gu_frags()
        if l2 == 1: ln2_tile()
        if oc == 1: out_calc()
        if o.get('f4late', 1): ffn_dma(fd[4])
        a("""s_branch L_CSELD
        L_CSEL:""")
        lg.reset(); fq[:] = fq0; vm.q = vq0
        self.r128(uu, vT + 1)
        S(T0, 'w*512 + L_XS'); a(f'v_add_u32 v{vT+2}, s{T0}, v{vL8}')
        S(T0, 'w*4 + L_K3'); a(f'v_mov_b32 v{vT+3}, s{T0}')
        lg.wait_all()
        c4 = uu + 4
        for n, ctl in enumerate(('quad_perm:[1,0,3,2]', 'quad_perm:[2,3,0,1]', 'row_half_mirror')):
            for i in range(4): self.dpp('v_max_u32', c4 + i, uu + 3 - i, uu + i, ctl)
            if n == 2: break
            a(f"""v_max_u32 v{c4+4}, v{c4}, v{c4+2}
            v_max_u32 v{c4+5}, v{c4+1}, v{c4+3}
            v_min_u32 v{c4+6}, v{c4}, v{c4+2}
            v_min_u32 v{c4+7}, v{c4+1}, v{c4+3}
            v_max_u32 v{uu}, v{c4+4}, v{c4+5}
            v_min_u32 v{uu+1}, v{c4+4}, v{c4+5}
            v_max_u32 v{uu+2}, v{c4+6}, v{c4+7}
            v_min_u32 v{uu+3}, v{c4+6}, v{c4+7}""")
        for i in range(4): a(f'v_readfirstlane_b32 s{P+i}, v{c4+i}')
        a(f"""s_bitcmp1_b32 s{sWAVE}, 0
        s_cselect_b32 s{P}, s{P+1}, s{P}
        s_cselect_b32 s{P+2}, s{P+3}, s{P+2}
        s_bitcmp1_b32 s{sWAVE}, 1
        s_cselect_b32 s{P}, s{P+2}, s{P}
        s_and_b32 s{T2}, s{P}, 4095""")
        S(T0, '((15 - (T2 >> 8))*2 + (T2 & 1))*16384 + CAND'); S(T1, 'kq*1024 + T0'); S(T0, 'T0 + 8192')
        va(vT + 6, [(0, 4, 8)])
        def sel_work():
            self.stamp('sel')
            ffn_dma(fd[4], T3)
            gu_frags()
            if l2 == 1: ln2_tile()
            if oc == 1: out_calc()
            S(T2, 'T2*4 + w')
        self.try_load(lambda: (self.bl(uu + 4, 2, vT + 6, rWS, T0, 0, 'sc1'), self.bl(uu, 4, vL16, rWS, T1, 0, 'sc1')), [uu + 1, uu + 3, uu + 5], vT + 4, sel_work)
        a(f'ds_write2_b32 v{vT+2}, v{uu}, v{uu+2} offset0:0 offset1:1'); lg.issue()
        for ctl in ('quad_perm:[1,0,3,2]', 'quad_perm:[2,3,0,1]', 'row_half_mirror', 'row_ror:8'): self.dpp('v_add_f32', uu + 4, uu + 4, uu + 4, ctl)
        a(f"""v_cvt_pk_bf16_f32 v{uu+4}, 0, v{uu+4}
        v_ashrrev_i32 v{uu+5}, 31, v{uu+4}
        v_or_b32 v{uu+5}, 0x80000000, v{uu+5}
        v_xor_b32 v{uu+4}, v{uu+4}, v{uu+5}
        v_and_b32 v{uu+4}, s{sMASK}, v{uu+4}
        v_or_b32 v{uu+4}, s{T2}, v{uu+4}""")
        self.dw('ds_write_b32', vT + 3, uu + 4, 1)
        a('L_CSELD:')
        V.release(vFG); V.release(vFD)
        a(f'v_mov_b32 v{vT}, {L_K3}')
        va(vT + 4, [(0, 4, 16), (5, 1, 8)])
        S(T1, 'fs*8192 + HGR'); S(T7, '(kq*8 + w)*256 + T1')
        self.barrier()
        self.stamp('xsel')
        self.r128(uu, vT)
        lg.wait_all()
        a(f"""v_max_u32 v{uu+4}, v{uu}, v{uu+1}
        v_max_u32 v{uu+5}, v{uu+2}, v{uu+3}
        v_min_u32 v{uu+6}, v{uu}, v{uu+1}
        v_min_u32 v{uu+7}, v{uu+2}, v{uu+3}
        v_min_u32 v{uu+1}, v{uu+4}, v{uu+5}
        v_max_u32 v{uu}, v{uu+4}, v{uu+5}
        v_max3_u32 v{uu+1}, v{uu+1}, v{uu+6}, v{uu+7}
        v_cndmask_b32 v{vT}, v{uu+1}, v{uu}, {sr(sCMP, 2)}
        v_readfirstlane_b32 s{sK1}, v{uu}
        v_and_b32 v{vT}, 3, v{vT}
        v_readfirstlane_b32 s{sK2}, v{uu+1}
        v_lshl_add_u32 v{vT}, v{vT}, 9, v{vXs}""")
        self.r128(uu + 4, vT)
        if oc < 2:
            for q in range(2): self.r128(op + 4 * q, vOT, q * 8 * 144, 'ot')
        a(f"""s_bfe_u32 s{sROW0}, s{sK1}, {3 | (11 << 16)}
        s_bfe_u32 s{sROW1}, s{sK2}, {3 | (11 << 16)}
        s_sub_u32 s{sROW0}, 2047, s{sROW0}
        s_sub_u32 s{sROW1}, 2047, s{sROW1}
        s_waitcnt lgkmcnt({2 if oc < 2 else 0})""")
        gd = [ga_ + 4 * i for i in range(4)] + [gb_ + 4 * i for i in range(4)]
        for s in range(8):
            a(f'v_mfma_f32_16x16x32_bf16 {vr(gd[s], 4)}, {vr(uu + 4, 4)}, {vr(ffn + 4*s, 4)}, 0')
        p0, p1 = uu, uu + 2
        hk = V.alloc(4)
        for p, b in ((p0, 0), (p1, 4)):
            a(f'v_add_f32 v{p}, v{gd[b]}, v{gd[b+1]+1}')
            a(f'v_add_f32 v{p+1}, v{gd[b+2]+2}, v{gd[b+3]+3}')
        a(f"""v_add_f32 v{p0}, v{p0}, v{p0+1}
        v_add_f32 v{p1}, v{p1}, v{p1+1}
        v_mov_b32 v{p0+1}, s{sTAG}
        v_permlane16_swap_b32 v{p1}, v{p1+1}
        s_cmp_ge_u32 s{sJ}, 28
        s_cbranch_scc1 L_NOHP
        v_add_f32 v{p0}, v{p0}, v{p1+1}
        s_mov_b32 exec_lo, 0xffff
        s_mov_b32 exec_hi, 0xffff""")
        self.bs2([(p0, 2, vT + 4, T7, 0)])
        a(f"""s_mov_b64 exec, -1
        L_NOHP:
        v_mov_b32 v{hk}, v{p0}
        v_mov_b32 v{hk+1}, v{p0+1}
        v_add_u32 v{hk+2}, s{T7}, v{vT+4}""")
        self.stamp('Hpub')
        vOr = V.alloc(); vOa = V.alloc()
        def out_store():
            S(T0, 'rt*128 + w*16'); va(vOr, [(3, 3, 1)], T0)
            S(T2, 'T0*2048 + cb*128'); S(T3, 'T2 + 16384')
            va(vOa, [(3, 3, 2048), (0, 3, 16)])
            for q in range(2):
                if q: a(f'v_add_u32 v{vOr}, 8, v{vOr}')
                a(f"""v_cmp_ne_u32 vcc, s{sROW0}, v{vOr}
                v_cmp_ne_u32 {sr(sCMP, 2)}, s{sROW1}, v{vOr}
                s_and_b64 exec, vcc, {sr(sCMP, 2)}""")
                self.bs(op + 4 * q, 4, vOa, rOUT, (T2, T3)[q], 0, o.get('outmod', 'sc1'), count=False)
                a('s_mov_b64 exec, -1')
        lg.wait('ot')
        if o.get('outat', 1) == 0: assert oc < 2; out_store()
        fz = V.alloc(4)
        sFR, sFK, sFC0 = T4, T5, T6
        a(f"""s_bitcmp1_b32 s{sX if TL else sRT}, {1 if TL else 2}
        s_cselect_b32 s{sFR}, s{sROW1}, s{sROW0}
        s_cselect_b32 s{sFK}, s{sK2}, s{sK1}
        s_cmp_lg_u32 s{sWAVE}, 7
        s_cbranch_scc1 L_NOFZ
        s_cmp_lg_u32 s2, 0
        s_cbranch_scc1 L_NONON
        v_mov_b32 v{vT+2}, s{sTAG}
        s_mov_b64 exec, 1""")
        self.bs(vT + 2, 1, vZ, rWS, '0', 0, 'sc1', count=False)
        a(f"""s_mov_b64 exec, -1
        L_NONON:""")
        S(sFC0, '(x >> 2)*2 + (x & 1)' if TL else '(rt >> 3)*2 + (rt & 1)')
        S(T7, '(cb*8 + x)*(56*128) + GGR' if TL else '(cb*8 + (rt >> 2)*2 + (rt & 1))*(56*128) + GGR')
        S(sU, 'T4*2048 + cb*128 + T6*32')
        va(vT + 6, [(0, 3, 4)])
        S(T0, 'T6*32 + L_GB'); a(f'v_add_u32 v{vT+1}, s{T0}, v{vT+6}')
        a(f'ds_read_b32 v{fz+2}, v{vT+1}')
        S(sK1, '((T4 >> 7)*2 + ((T5 >> 2) & 1))*16384 + cb*256 + T6*64 + CAND'); S(sK2, 'k1 + 4096')
        va(vT + 7, [(0, 3, 8)])
        ld_fz = lambda: (self.bl(st, 2, vT + 7, rWS, sK1, 0, 'sc1'), self.bl(fz, 2, vT + 7, rWS, sK2, 0, 'sc1'))
        q_ = list(vm.q); ld_fz(); vm.q = q_
        a(f"""s_and_b32 s{T0}, s{sFK}, s{sMASK}
        s_ashr_i32 s{T2}, s{T0}, 31
        s_andn2_b32 s{T2}, 0x7fff0000, s{T2}
        s_or_b32 s{T2}, s{T2}, 0x80000000
        s_xor_b32 s{T0}, s{T0}, s{T2}
        v_mov_b32 v{fz+3}, s{T0}
        v_mul_f32 v{fz+3}, s{sL2E}, v{fz+3}
        v_exp_f32 v{fz+3}, -v{fz+3}
        v_add_f32 v{fz+3}, 1.0, v{fz+3}
        v_rcp_f32 v{fz+3}, v{fz+3}""")
        self.round1(fz + 3)
        a(f"""L_NOFZ:
        s_cmp_lt_u32 s{sJ}, 28
        s_cbranch_scc1 L_HSEC""")
        if oc == 2:
            out_calc()
            self.barrier()
            for q in range(2): self.r128(op + 4 * q, vOT, q * 8 * 144)
            lg.wait_all()
        a("""s_branch L_GSEC
        L_HSEC:""")
        a(f"""s_cmp_lt_u32 s{sWAVE}, 4
        s_cbranch_scc1 L_HW""")
        if oc == 2: out_calc()
        a("""s_branch L_NOH
        L_HW:""")
        S(T0, 'w*256 + T1')
        va(vT, [(4, 2, 2048), (0, 4, 16)])
        S(T2, 'w*32 + L_ACT'); va(vT + 1, [(5, 1, 128), (2, 1, 16), (1, 1, 8), (3, 1, 4), (0, 1, 2)], T2)
        a(f"""s_cmp_lg_u32 s{sLOC}, 0
        s_cbranch_scc1 L_HLOC""")
        self.spoll([(q, 1, T0, q * 2048 + 1024 + 252) for q in range(4)], range(4))
        a('L_HLOC:')
        self.stamp('Hpre')
        g, u = ga_, ga_ + 4
        self.try_load(lambda: [self.bl(ga_ + 4 * m, 4, vT, rWS, T0, m * 1024, 'sc1') for m in range(2)], [g + 1, g + 3, u + 1, u + 3], vT + 2, out_calc if oc == 2 else None)
        a(f"""v_permlane32_swap_b32 v{g}, v{g+2}
        v_permlane32_swap_b32 v{u}, v{u+2}
        v_add_f32 v{g}, v{g}, v{g+2}
        v_add_f32 v{u}, v{u}, v{u+2}
        v_mov_b32 v{g+2}, v{g}
        v_mov_b32 v{u+2}, v{u}
        v_permlane16_swap_b32 v{g}, v{g+2}
        v_permlane16_swap_b32 v{u}, v{u+2}
        v_add_f32 v{g}, v{g}, v{g+2}
        v_add_f32 v{u}, v{u}, v{u+2}""")
        self.round2(g, u)
        self.silu(g, vT + 2)
        a(f"""v_mul_f32 v{g}, v{g}, v{u}
        v_cvt_pk_bf16_f32 v{g}, v{g}, v{g}
        ds_write_b16 v{vT+1}, v{g}
        L_NOH:""")
        va(vT, [(2, 1, 128), (5, 1, 16)], None, L_ACT)
        va(vT + 1, [(4, 2, 56 * 128), (0, 4, 8)])
        va(vT + 2, [(0, 2, 4096)] if TL else [(0, 1, 64 * 4096), (1, 1, 2 * 4096)])
        S(T0, '(kq*8 + w)*(4*56*128) + fs*128 + GGR')
        S(T1, ('(kq*8 + w)*16384' if TL else '(((kq & 1)*4 + (w >> 1))*8 + (w & 1)*4 + (kq >> 1))*4096') + ' + x*64 + (j >> 2)*4 + INB + 3072')
        vm.wait_all()
        self.barrier()
        self.stamp('Hok')
        for s in range(4):
            self.r128(ga_ + 4 * s, vT, s * 32, ('ac', s))
            self.tr(ffn + 32 + 4 * s, vDr, s * 8192, ('ac', s)); self.tr(ffn + 32 + 4 * s + 2, vDr, s * 8192 + 1024, ('ac', s))
        for s in range(4):
            lg.wait(('ac', s))
            a(f'v_mfma_f32_32x32x16_bf16 {vr(gb_, 16)}, {vr(ga_ + 4*s, 4)}, {vr(ffn + 32 + 4*s, 4)}, ' + ('0' if s == 0 else vr(gb_, 16)))
        if oc == 2:
            for q in range(2): self.r128(op + 4 * q, vOT, q * 8 * 144)
        a(f'v_mov_b32 v{gb_+1}, s{sTAG}')
        self.bs(gb_, 2, vT + 1, rWS, T0, 0, 'sc1')
        a('s_mov_b64 exec, 15')
        self.bs(gb_ + 1, 1, vT + 2, rWS, T1, 0, 'sc1')
        a('s_mov_b64 exec, -1')
        self.stamp('Gpub')
        def hclean():
            a("""s_mov_b32 exec_lo, 0xffff
            s_mov_b32 exec_hi, 0xffff""")
            self.bs(hk, 2, hk + 2, rWS, '0', 0, 'sc1', count=False)
            a('s_mov_b64 exec, -1')
        if o.get('hclean', 3) == 1: hclean()
        lg.wait_all()
        a('L_GSEC:')
        if o.get('outat', 1) == 1: out_store()
        a(f"""s_cmp_lt_u32 s{sJ}, 16
        s_cbranch_scc1 L_GF""")
        if o.get('outat', 1) == 2: out_store()
        if o.get('hclean', 3) >= 2:
            a(f"""s_cmp_ge_u32 s{sJ}, 28
            s_cbranch_scc1 L_FIN
            s_waitcnt vmcnt(0)""")
            hclean()
        a("""s_branch L_FIN
        L_GF:""")
        self.inbox(6, 8, range(7))
        self.stamp('Gpre')
        a('s_barrier')
        if o.get('hclean', 3) == 2: hclean()
        if o.get('hclean', 3) == 3:
            a(f"""s_cmp_eq_u32 s{sWAVE}, 7
            s_cbranch_scc1 L_G7
            s_barrier""")
            if o.get('outat', 1) == 2: out_store()
            hclean()
            a("""s_branch L_FIN
            L_G7:""")
        a(f"""s_cmp_lg_u32 s{sWAVE}, 7
        s_cbranch_scc1 L_FIN""")
        S(T0, 'T7 + 4096')
        gg = [ga_ + 4 * i for i in range(4)] + [uu + 4 * i for i in range(3)]
        self.poll(lambda: [self.bl(gg[n], 4, vL16, rWS, (T7, T0)[n >> 2], (n & 3) * 1024, 'sc1') for n in range(7)],
                  [gg[n] + 1 + 2 * e for n in range(7) for e in range(2)], vT)
        self.finish_load(None, ld_fz, [st + 1, fz + 1], vT)
        self.stamp('Gok')
        if o.get('hclean', 3) == 3: a('s_barrier')
        for n in range(1, 7):
            for e in (0, 2): a(f'v_add_f32 v{gg[0]+e}, v{gg[0]+e}, v{gg[n]+e}')
        y0, y1 = gg[0], gg[0] + 1
        a(f'v_mov_b32 v{y1}, v{gg[0]+2}')
        for y in (y0, y1): self.dpp('v_add_f32', y, y, y, 'row_ror:8')
        for sw in ('v_permlane16_swap_b32', 'v_permlane32_swap_b32'):
            for y in (y0, y1): a(f'v_mov_b32 v{y+2}, v{y}')
            for y in (y0, y1): a(f'{sw} v{y}, v{y+2}')
            self.pk('add', y0, y0, y0 + 2)
        self.round2(y0, y1)
        self.pk('mul', y0, y0, fz + 3, bc=(1,))
        self.unpack(vT, vT + 1, st)
        self.round2(y0, y1)
        self.pk('add', y0, y0, vT)
        self.unpack(vT, vT + 1, fz + 2)
        self.round2(y0, y1)
        self.pk('mul', y0, y0, vT)
        self.unpack(vT, vT + 1, fz)
        self.round2(y0, y1)
        self.pk('add', y0, y0, vT)
        a(f'v_cvt_pk_bf16_f32 v{y0}, v{y0}, v{y1}')
        a('s_mov_b64 exec, 0xff')
        self.bs(y0, 1, vT + 6, rOUT, sU, 0, 'sc1')
        a('s_mov_b64 exec, -1')
        if o.get('outat', 1) == 2: out_store()
        if o.get('hclean', 3) == 3: hclean()
        a('L_FIN:')
        if o.get('exfil'):
            self.stamp('fin')
            a('s_waitcnt vmcnt(0)')
            self.stamp('finw')
            a(f'''s_lshl3_add_u32 s{T0}, s2, s{sWAVE}
            s_cmp_lg_u32 s{T0}, {o.get('exwho', 7)}
            s_cbranch_scc1 L_END
            v_readlane_b32 s{T0}, v255, 0
            v_readlane_b32 s{T1}, v255, 1
            v_readlane_b32 s{T2}, v255, 2
            s_sub_u32 s{T2}, s{T2}, s{T1}
            s_max_i32 s{T2}, s{T2}, 0
            s_min_u32 s{T2}, s{T2}, 10000
            s_mul_i32 s{T2}, s{T2}, 10
            s_add_u32 s{T2}, s{T2}, 6000
            L_PAD:
            s_memrealtime {sr(sTM, 2)}
            s_waitcnt lgkmcnt(0)
            s_sub_u32 s{T1}, s{sTM}, s{T0}
            s_cmp_lt_u32 s{T1}, s{T2}
            s_cbranch_scc1 L_PAD''')
        if o.get('padfin'):
            a(f'''s_lshl3_add_u32 s{T0}, s2, s{sWAVE}
            s_cmp_lg_u32 s{T0}, 7
            s_cbranch_scc1 L_END
            s_memrealtime {sr(sTM, 2)}
            s_waitcnt lgkmcnt(0)
            s_mov_b32 s{T0}, s{sTM}
            L_PAD2:
            s_memrealtime {sr(sTM, 2)}
            s_waitcnt lgkmcnt(0)
            s_sub_u32 s{T1}, s{sTM}, s{T0}
            s_cmp_lt_u32 s{T1}, {o['padfin']}
            s_cbranch_scc1 L_PAD2''')
        if self.prof:
            a('s_waitcnt vmcnt(0) lgkmcnt(0)')
            self.stamp('end')
            a(f's_memrealtime {sr(sTM, 2)}')
            a('s_waitcnt lgkmcnt(0)')
            a(f'v_writelane_b32 v255, s{sTM}, 61')
            S(T0, '(wg*8 + w)*256 + STAMPS')
            a(f'v_writelane_b32 v255, s{sSPIN}, 62')
            a(f'v_lshlrev_b32 v{vT+1}, 2, v{vL}')
            a(f'buffer_store_dword v255, v{vT+1}, {sr(rWS, 4)}, s{T0} offen')
            S(T0, 'T0 + 0x100000')
            a(f'buffer_store_dword v254, v{vT+1}, {sr(rWS, 4)}, s{T0} offen')
        a('L_END:')
        a('s_endpgm')
        return self

    def text(self):
        a = self.a
        npad = a.fix_hazards()
        errs = a.check_waits([NAME])
        for e in errs: print('WAITERR', e, file=sys.stderr)
        assert not errs
        hdr = open(os.path.join(os.path.dirname(os.path.abspath(__file__)), 'header.txt')).read()
        s = hdr + '; @launch grid=(256,1,1) block=(512,1,1) lds=163840\n'
        s += '.amdgcn_target "amdgcn-amd-amdhsa--gfx950"\n.text\n'
        s += f'.globl {NAME}\n.p2align 8\n.type {NAME},@function\n'
        body = a.text()
        import subprocess, tempfile
        with tempfile.TemporaryDirectory() as td:
            open(td + '/t.s', 'w').write('.amdgcn_target "amdgcn-amd-amdhsa--gfx950"\n.text\n' + body.replace('CODE_KB', '20480'))
            subprocess.run(['clang', '-x', 'assembler', '-target', 'amdgcn-amd-amdhsa', '-mcpu=gfx950', '-c', td + '/t.s', '-o', td + '/t.o'], check=True)
            subprocess.run(['llvm-objcopy', '-O', 'binary', '-j', '.text', td + '/t.o', td + '/t.bin'], check=True)
            size = os.path.getsize(td + '/t.bin')
        print('; code bytes', size, file=sys.stderr)
        s += body.replace('CODE_KB', str((size // 1024 + 1) * 1024))
        s += '.p2align 10\n.fill 768, 4, 0xbf800000\n'
        s += '.section .rodata,"a"\n' + kernel_desc(NAME, 256, 102)
        print(f'; vgpr hi {self.V.hi}, nops {npad}, instrs {sum(1 for k, _ in a.items if k == "ins")}', file=sys.stderr)
        return s


if __name__ == '__main__':
    import argparse, json
    ap = argparse.ArgumentParser()
    ap.add_argument('-o', default='/dev/stdout')
    ap.add_argument('--prof', action='store_true')
    ap.add_argument('--opts', default='{}')
    args = ap.parse_args()
    g = Gen(args.prof, json.loads(args.opts)).build()
    t = g.text()
    open(args.o, 'w').write(t)
    if args.prof: open(args.o + '.stamps', 'w').write(json.dumps(g.stnames))
```

```python
import sys, os
sys.path.insert(0, os.path.dirname(os.path.abspath(__file__)))
from asm import *

NAME = 'adaLN_cond__linear_kernel_hedgehog__moe_arch_mod__prompt_kernel'

NONCE = 0x0
CFL = 0x8000
MARK = 0x100
GR = 0x010000
MODP2 = 0x020000
SINB = 0x040000
AINB = 0x080000
INA = 0x200000
INB = 0x100000
HF = 0x400000
OF = 0x800000
STAT = 0xC00000
CAND = 0x2000000
HGR = 0x1400000
ZP = 0x1480000
GGR = 0x1500000
KVP = 0x1800000
KIN = 0x1C00000
STAMPS = 0x1600000
WS_BYTES = 268435456

SEC = 8320
SLOT = 3 * SEC
SCR = 6 * SLOT
L_A1 = SCR
L_M2 = SCR + 1024
L_ST = SCR + 2048
L_MP = SCR + 2560
L_WPHI = SCR + 6656
L_MB = SCR + 10752
L_XF = 147456
L_PHK = 0
L_V = 32768
WO_H0 = 32768
WO_H1 = 98304
GS = 0
L_KVF = GS
L_ZF = GS + 8192
L_EXCH = GS
L_MT = 139264
L_GU = 32768
L_DN = 98304
TS = 131072
L_SP = TS
L_ST2 = TS + 4096
L_K1 = TS + 5120
L_K2 = TS + 5184
L_K3 = TS + 5312
L_XS = TS + 5632
L_ACT = TS + 7680
L_TB = TS + 7936
L_GB = L_TB + 256
L_OT = TS + 8704
L_XT = GS

SPIN_LIMIT = 300000

sWAVE, sTAG, sSPIN, sMASK, sL2E = 3, 4, 5, 6, 7
sX, sJ, sR1, sHP, sCB = 8, 9, 10, 11, 12
T0, T1, T2, T3, T4, T5, T6, T7 = 13, 14, 15, 16, 17, 18, 19, 20
sRT = 21
sCMP = 22
sPL = 24
rWS, rX, rW, rWO, rWM, rWG, rWU, rWD, rOUT = 32, 36, 40, 44, 48, 52, 56, 60, 64
KA = 68
pWPHI, pWR, pC = KA + 4, KA + 10, KA + 18
sK1, sK2, sROW0, sROW1, sFS, sKQ, sKH, sKF = 68, 69, 70, 71, 74, 75, 76, 77
sFG, sFD, sU, sROT, sWB, sU0 = 80, 81, 82, 83, 84, 85
sWO2, sW1K, sMF = 88, 89, 90
sINB, sRow, sGTB, sC32 = 92, 93, 94, 95
sXC = 94
pDBG = 30
sLOC = 93
XT = (96, 97, 98, 99)
sTM = 100
ENV = dict(wg=2, w=sWAVE, x=sX, j=sJ, r1=sR1, hp=sHP, cb=sCB, rt=sRT, row=sRow, gtb=sGTB, c32=sC32, kh=sKH, kf=sKF, fs=sFS, kq=sKQ,
           rot=sROT, wb=sWB, u0=sU0, wo2=sWO2, w1k=sW1K, mf=sMF, u=sU, fg=sFG, fd=sFD, T0=T0, T1=T1, T2=T2, T3=T3, T4=T4, T5=T5, T6=T6, T7=T7, row0=sROW0, row1=sROW1, k1=sK1)


class Gen:
    def __init__(self, prof=False, opts=None):
        self.a = Asm()
        self.vm = Counter(self.a, 'vmcnt', 63)
        self.lg = Counter(self.a, 'lgkmcnt', 15)
        self.V = RegAlloc(254, 1)
        self.prof = prof
        self.nopk = False
        self.nst = 0
        self.stnames = []
        self.S = SExpr(self.a, ENV, {k: v for k, v in globals().items() if isinstance(v, int) and k.isupper() and k not in ENV}, XT)
        self.o = dict(AD=12, LOOK=6, wev=2, AD2=8, A20=6, wburst=(0, 3, 0, 0, 6, 6), wxor=3, LASTB=13,
                      sched={1: 'm1 p2', 2: 's4', 3: 'm1 s4', 4: 'p2 g1', 5: 'm1 g1', 6: 'g1', 7: 'm1 h g1 p3', 8: 'g2', 9: 'g2 r', 10: 'P', 11: 'f1', 13: 'M', 14: 'K o4 f4 N', 15: 'f1'}, fdma=(3, 0, 0, 3, 0), wowin=(6, 0, 3))
        if opts: self.o.update(opts)

    def bl(self, dst, n, voff, srd, soff, imm=0, mods='', tag=None):
        op = {1: 'dword', 2: 'dwordx2', 4: 'dwordx4'}[n]
        so = soff if isinstance(soff, str) else (sr(soff))
        self.a(f'buffer_load_{op} {vr(dst, n)}, v{voff}, {sr(srd, 4)}, {so} offen' + (f' offset:{imm}' if imm else '') + (' ' + mods if mods else ''))
        self.vm.issue(tag)
    def bs(self, src, n, voff, srd, soff, imm=0, mods='', tag=None, count=True):
        op = {1: 'dword', 2: 'dwordx2', 4: 'dwordx4'}[n]
        so = soff if isinstance(soff, str) else (sr(soff))
        self.a(f'buffer_store_{op} {vr(src, n)}, v{voff}, {sr(srd, 4)}, {so} offen' + (f' offset:{imm}' if imm else '') + (' ' + mods if mods else ''))
        if count: self.vm.issue(tag)
    def bs2(self, items):
        a = self.a
        LL, D = a.label('LOC'), a.label('LOCD')
        a(f's_cmp_lg_u32 s{sLOC}, 0')
        a(f's_cbranch_scc1 {LL}')
        for src, n, voff, soff, imm in items: self.bs(src, n, voff, rWS, soff, imm, 'sc1', count=False)
        a(f's_branch {D}')
        a(f'{LL}:')
        for src, n, voff, soff, imm in items: self.bs(src, n, voff, rWS, soff, imm, '', count=False)
        a(f'{D}:')
    def dma(self, voff, srd, soff, imm=0, mods='', tag=None):
        self.a(f'buffer_load_dwordx4 v{voff}, {sr(srd, 4)}, {sr(soff)} offen' + (f' offset:{imm}' if imm else '') + (' ' + mods if mods else '') + ' lds')
        self.vm.issue(tag)
    def dr(self, op, dst, n, addr, off=0, tag=None):
        assert 0 <= off < 65536, off
        self.a(f'{op} {vr(dst, n)}, v{addr}' + (f' offset:{off}' if off else ''))
        self.lg.issue(tag)
    def tr(self, dst, addr, off, tag=None): self.dr('ds_read_b64_tr_b16', dst, 2, addr, off, tag)
    def r128(self, dst, addr, off=0, tag=None): self.dr('ds_read_b128', dst, 4, addr, off, tag)
    def dw(self, op, addr, src, n, off=0, tag=None):
        assert 0 <= off < 65536, off
        self.a(f'{op} v{addr}, {vr(src, n)}' + (f' offset:{off}' if off else ''))
        self.lg.issue(tag)
    def barrier(self):
        self.lg.wait_all()
        self.a('s_barrier')
    def stamp(self, name):
        ex = self.o.get('exfil')
        if ex and name in ex[:2]:
            self.a(f's_memrealtime {sr(sTM, 2)}')
            self.lg.wait_all()
            self.a(f'v_writelane_b32 v255, s{sTM}, {1 + ex.index(name)}')
        if not self.prof: return
        only = self.o.get('only')
        if only and name not in only and name != 'end': return
        self.a(f's_memtime {sr(sTM, 2)}')
        self.a(f's_memrealtime s[0:1]')
        self.lg.wait_all()
        self.a(f'v_writelane_b32 v255, s{sSPIN if self.o.get("spinst") and self.nst > 3 else sTM}, {self.nst}')
        self.a(f'v_writelane_b32 v254, s0, {self.nst}')
        self.stnames.append(name)
        self.nst += 1
        assert self.nst <= 60
    def unpack(self, lo, hi, src):
        self.a(f'v_lshlrev_b32 v{lo}, 16, v{src}')
        self.a(f'v_and_b32 v{hi}, s{sMASK}, v{src}')
    def round1(self, r):
        self.a(f'v_cvt_pk_bf16_f32 v{r}, 0, v{r}')
    def round2(self, r0, r1):
        self.round1(r0); self.round1(r1)
    def round_list(self, regs):
        for r in regs: self.round1(r)
    def pk(self, op, d, s0, s1, s2=None, bc=(), neg=()):
        srcs = [s0, s1] + ([s2] if s2 is not None else [])
        if self.nopk:
            for h in range(2):
                t = []
                for k, r in enumerate(srcs):
                    kind, n = r if isinstance(r, tuple) else ('v', r)
                    t.append(('-' if k in neg else '') + f'{kind}{n if k in bc else n + h}')
                e64 = '' if op == 'fma' else ('_e64' if (neg or t[1][0] == 's') else '')
                self.a(f'v_{op}_f32{e64} v{d+h}, ' + ', '.join(t))
            return
        txt, sel, selhi = [], [], []
        for k, r in enumerate(srcs):
            kind, n = r if isinstance(r, tuple) else ('v', r)
            if k in bc:
                txt.append(f'{kind}[{n & ~1}:{(n & ~1) + 1}]'); sel.append(n & 1); selhi.append(n & 1)
            else:
                assert n % 2 == 0
                txt.append(f'{kind}[{n}:{n+1}]'); sel.append(0); selhi.append(1)
        assert d % 2 == 0
        m = ''
        if any(sel): m += ' op_sel:[' + ','.join(map(str, sel)) + ']'
        if not all(selhi): m += ' op_sel_hi:[' + ','.join(map(str, selhi)) + ']'
        if neg:
            ng = ','.join('1' if k in neg else '0' for k in range(len(srcs)))
            m += f' neg_lo:[{ng}] neg_hi:[{ng}]'
        self.a(f'v_pk_{op}_f32 v[{d}:{d+1}], ' + ', '.join(txt) + m)
    def dpp(self, op, d, s0, s1, ctl):
        self.a(f'{op}_dpp v{d}, v{s0}, v{s1} {ctl} row_mask:0xf bank_mask:0xf')
    def allreduce(self, v, t, op='v_add_f32', lo=True, b3=True):
        if lo:
            self.dpp(op, v, v, v, 'quad_perm:[1,0,3,2]')
            self.dpp(op, v, v, v, 'quad_perm:[2,3,0,1]')
            self.dpp(op, v, v, v, 'row_half_mirror')
        self.dpp(op, v, v, v, 'row_ror:8')
        self.a(f'v_mov_b32 v{t}, v{v}')
        self.a(f'v_permlane16_swap_b32 v{v}, v{t}')
        self.a(f'{op} v{v}, v{v}, v{t}')
        self.a(f'v_mov_b32 v{t}, v{v}')
        self.a(f'v_permlane32_swap_b32 v{v}, v{t}')
        self.a(f'{op} v{v}, v{v}, v{t}')
    def poll(self, loads, tagregs, tmp=None):
        a = self.a
        L, D = a.label('POLL'), a.label('PDONE')
        a(f'{L}:')
        loads()
        self.vm.wait_all()
        self.tagcheck(tagregs, tmp)
        a(f's_cbranch_vccz {D}')
        a(f's_add_u32 s{sSPIN}, s{sSPIN}, 1')
        a(f's_cmp_lt_u32 s{sSPIN}, {SPIN_LIMIT}')
        a(f's_cbranch_scc1 {L}')
        a(f'{D}:')
    def weave(self, fn, extras):
        a = self.a
        keep = a.items; a.items = []
        fn()
        body = a.items; a.items = keep
        extras = list(extras); n = len(extras)
        for i, it in enumerate(body):
            while extras and (n - len(extras)) * len(body) <= i * n: extras.pop(0)()
            a.items.append(it)
        for e in extras: e()
    def tagcheck(self, tagregs, tmp):
        a = self.a
        if tagregs[0] == 'nan':
            if len(tagregs) == 3: a(f'v_max_u32 v{tmp}, v{tagregs[1]}, v{tagregs[2]}')
            a(f'v_cmp_eq_u32 vcc, -1, v{tmp if len(tagregs) == 3 else tagregs[1]}')
        elif len(tagregs) == 1:
            a(f'v_cmp_ne_u32 vcc, s{sTAG}, v{tagregs[0]}')
        else:
            a(f'v_bitop3_b32 v{tmp}, v{tagregs[0]}, v{tagregs[1]}, s{sTAG} bitop3:0x7e')
            for t in tagregs[2:]: a(f'v_bitop3_b32 v{tmp}, v{tmp}, v{t}, s{sTAG} bitop3:0xf6')
            a(f'v_cmp_ne_u32 vcc, 0, v{tmp}')
    def try_load(self, loads, tagregs, tmp=None, between=None, pre=None):
        a = self.a
        n0 = len(self.vm.q)
        loads()
        self.vm.q[-1] = tg = ('try', a.label('T'))
        if between: between()
        self.vm.wait(tg)
        OK = a.label('TOK')
        self.tagcheck(tagregs, tmp)
        a(f's_cbranch_vccz {OK}')
        q, l = list(self.vm.q), list(self.lg.q)
        if pre: pre()
        self.poll(loads, tagregs, tmp)
        self.vm.q, self.lg.q = q, l
        a(f'{OK}:')
    def finish_load(self, tg, loads, tagregs, tmp=None, pre=None):
        a = self.a
        self.vm.wait(tg)
        OK = a.label('TOK')
        self.tagcheck(tagregs, tmp)
        a(f's_cbranch_vccz {OK}')
        q, l = list(self.vm.q), list(self.lg.q)
        if pre: pre()
        self.poll(loads, tagregs, tmp)
        self.vm.q, self.lg.q = q, l
        a(f'{OK}:')
    def spoll(self, loads, checks, work=None, pipe=0):
        a = self.a
        L, C, D = a.label('SPOLL'), a.label('SCHK'), a.label('SDONE')
        def issue(note=''):
            for d, n, so, imm in loads:
                op = {1: 'dword', 2: 'dwordx2', 4: 'dwordx4', 8: 'dwordx8'}[n]
                a(f's_load_{op} {sr(sPL + d, n)}, {sr(rWS, 2)}, s{so} offset:{imm} glc' + note)
        if pipe:
            self.lg.wait_all()
            for k in checks: a(f's_not_b32 s{sPL + k}, s{sTAG}')
            issue(' ; nowait')
            if work: work()
            a(f'{L}:')
            a(f's_add_u32 s{sSPIN}, s{sSPIN}, 1')
            a(f's_cmp_ge_u32 s{sSPIN}, {SPIN_LIMIT}')
            a(f's_cbranch_scc1 {D}')
            ks = list(checks)
            a(f's_xor_b32 s{XT[0]}, s{sPL + ks[0]}, s{sTAG} ; nowait')
            for k in ks[1:]:
                a(f's_xor_b32 s{XT[1]}, s{sPL + k}, s{sTAG} ; nowait')
                a(f's_or_b32 s{XT[0]}, s{XT[0]}, s{XT[1]}')
            a(f's_cbranch_scc0 {D}')
            issue(' ; nowait')
            a(f's_sleep {pipe}')
            a(f's_branch {L}')
            a(f'{D}:')
            return
        if work:
            issue(); work()
            a(f's_branch {C}')
        a(f'{L}:')
        issue()
        a(f'{C}:')
        a(f's_add_u32 s{sSPIN}, s{sSPIN}, 1')
        a(f's_cmp_ge_u32 s{sSPIN}, {SPIN_LIMIT}')
        self.lg.wait_all()
        a(f's_cbranch_scc1 {D}')
        for k in checks:
            a(f's_cmp_lg_u32 s{sPL + k}, s{sTAG}')
            a(f's_cbranch_scc1 {L}')
        a(f'{D}:')
    def inbox(self, box, n, checks=None, work=None, pipe=0):
        self.spoll([(0, n, sINB, box * 512)], range(n) if checks is None else checks, work, pipe)
    def va(self, dst, terms, sreg=None, const=0, tmp=None):
        a = self.a; vL = self.vL
        first = True
        for sh, bits, mult in terms:
            full = sh + bits >= 6
            src = vL
            t = dst if first else tmp
            if sh == 0 and full: pass
            elif full: a(f'v_lshrrev_b32 v{t}, {sh}, v{vL}'); src = t
            elif sh == 0: a(f'v_and_b32 v{t}, {(1 << bits) - 1}, v{vL}'); src = t
            else: a(f'v_bfe_u32 v{t}, v{vL}, {sh}, {bits}'); src = t
            p2 = mult & (mult - 1) == 0
            k = mult.bit_length() - 1
            if first:
                if p2 and sreg is not None: a(f'v_lshl_add_u32 v{dst}, v{src}, {k}, s{sreg}'); sreg = None
                elif p2 and k: a(f'v_lshlrev_b32 v{dst}, {k}, v{src}')
                elif p2:
                    if src != dst: a(f'v_mov_b32 v{dst}, v{src}')
                else: a(f'v_mul_u32_u24 v{dst}, {mult}, v{src}')
            else:
                assert p2
                a(f'v_lshl_add_u32 v{dst}, v{src}, {k}, v{dst}')
            first = False
        if sreg is not None: a(f'v_add_u32 v{dst}, s{sreg}, v{dst}')
        if const: a(f'v_add_u32 v{dst}, {const}, v{dst}')
    def push(self, vaddr, soff, nl, vtmp, lab, wave=0):
        a = self.a
        a(f's_cmp_lg_u32 s{sWAVE}, {wave}')
        a(f's_cbranch_scc1 {lab}')
        a(f'v_mov_b32 v{vtmp}, s{sTAG}')
        a(f's_mov_b32 exec_hi, 0')
        if nl < 32: a(f's_mov_b32 exec_lo, {(1 << nl) - 1}')
        self.bs(vtmp, 1, vaddr, rWS, soff, 0, 'sc1', count=False)
        a('s_mov_b64 exec, -1')
        a(f'{lab}:')
    def silu(self, v, t):
        a = self.a
        a(f'v_mul_f32 v{t}, s{sL2E}, v{v}')
        a(f'v_exp_f32 v{t}, -v{t}')
        a(f'v_add_f32 v{t}, 1.0, v{t}')
        a(f'v_rcp_f32 v{t}, v{t}')
        a(f'v_mul_f32 v{v}, v{v}, v{t}')
        self.round1(v)
    def gemv_ops(self, wregs, cregs, acc, t0, t1, packed):
        ops = []
        assert t0 % 2 == 0 and t1 == t0 + 1
        for i, (w, c) in enumerate(zip(wregs, cregs)):
            cp = f'v[{c & ~1}:{(c & ~1) + 1}]'
            for d in range(4):
                tt = t0 + 2 * (d & 1)
                ops.append(f'v_lshlrev_b32 v{tt}, 16, v{w+d}')
                ops.append(f'v_and_b32 v{tt+1}, s{sMASK}, v{w+d}')
                ac = f'v[{acc+2*d}:{acc+2*d+1}]'
                if not packed:
                    for h in range(2): ops.append(f'v_mul_f32 v{acc+2*d+h}, v{tt+h}, v{c}' if i == 0 else f'v_fmac_f32 v{acc+2*d+h}, v{tt+h}, v{c}')
                elif i == 0: ops.append(f'v_pk_mul_f32 {ac}, v[{tt}:{tt+1}], {cp} op_sel:[0,{c & 1}] op_sel_hi:[1,{c & 1}]')
                else: ops.append(f'v_pk_fma_f32 {ac}, v[{tt}:{tt+1}], {cp}, {ac} op_sel:[0,{c & 1},0] op_sel_hi:[1,{c & 1},1]')
        for i in range(4): ops.append(f'v_permlane32_swap_b32 v{acc+i}, v{acc+4+i}')
        for i in range(4): ops.append(f'v_add_f32 v{acc+i}, v{acc+i}, v{acc+4+i}')
        for i in range(2): ops.append(f'v_permlane16_swap_b32 v{acc+i}, v{acc+2+i}')
        for i in range(2): ops.append(f'v_add_f32 v{acc+i}, v{acc+i}, v{acc+2+i}')
        for i in range(2): ops.append(f'v_add_f32_dpp v{acc+i}, v{acc+i}, v{acc+i} row_ror:8 row_mask:0xf bank_mask:0xf')
        ops.append(f'v_mov_b32_dpp v{acc}, v{acc+1} quad_perm:[0,1,2,3] row_mask:0xf bank_mask:0xc')
        return ops
    def sum8(self, b):
        self.pk('add', b, b, b + 2); self.pk('add', b + 4, b + 4, b + 6); self.pk('add', b, b, b + 4)
        self.a(f'v_add_f32 v{b}, v{b}, v{b+1}')
    def softmax_pm(self, p, e, out, t, mid=None, part=0, split=0):
        a = self.a
        mx, mn, u0, u1, s0, s1 = t, t + 1, t + 2, t + 3, t + 4, t + 6
        if part != 2:
            self.round_list([p + i for i in range(16)])
            a(f'v_max3_f32 v{mx}, v{p}, v{p+1}, v{p+2}')
            a(f'v_min3_f32 v{mn}, v{p}, v{p+1}, v{p+2}')
            for i in range(3, 15, 2):
                a(f'v_max3_f32 v{mx}, v{mx}, v{p+i}, v{p+i+1}')
                a(f'v_min3_f32 v{mn}, v{mn}, v{p+i}, v{p+i+1}')
            a(f'v_max_f32 v{u0}, v{mx}, v{p+15}')
            a(f'v_min_f32 v{u1}, v{mn}, v{p+15}')
            a(f'v_max_f32 v{mx}, v{mx}, v{p+15}')
            a(f'v_min_f32 v{mn}, v{mn}, v{p+15}')
            a(f'v_permlane32_swap_b32 v{mx}, v{u0}')
            a(f'v_permlane32_swap_b32 v{mn}, v{u1}')
            a(f'v_max_f32 v{mx}, v{mx}, v{u0}')
            a(f'v_min_f32 v{mn}, v{mn}, v{u1}')
            self.pk('mul', mx, mx, ('s', sL2E), bc=(1,))
            for i in range(0, 16, 2):
                self.pk('fma', e + i, p + i, ('s', sL2E), mx, bc=(1, 2), neg=(2,))
                self.pk('fma', p + i, p + i, ('s', sL2E), mn, bc=(1, 2), neg=(0,))
        for i in range(split if part == 2 else 0, 16):
            if mid and i == mid[0]: mid[1]()
            if part == 1 and i == split: return
            a(f'v_exp_f32 v{e+i}, v{e+i}')
            a(f'v_exp_f32 v{p+i}, v{p+i}')
        self.pk('add', s0, e, e + 2); self.pk('add', s1, p, p + 2)
        for i in range(4, 16, 2):
            self.pk('add', s0, s0, e + i); self.pk('add', s1, s1, p + i)
        a(f'v_add_f32 v{u0}, v{s0}, v{s0+1}')
        a(f'v_add_f32 v{u1}, v{s1}, v{s1+1}')
        a(f'v_add_f32 v{mx}, v{s0}, v{s0+1}')
        a(f'v_add_f32 v{mn}, v{s1}, v{s1+1}')
        a(f'v_permlane32_swap_b32 v{mx}, v{u0}')
        a(f'v_permlane32_swap_b32 v{mn}, v{u1}')
        self.pk('add', mx, mx, u0)
        a(f'v_rcp_f32 v{mx}, v{mx}')
        a(f'v_rcp_f32 v{mn}, v{mn}')
        for i in range(0, 16, 2):
            self.pk('mul', e + i, e + i, mx, bc=(1,))
            self.pk('mul', p + i, p + i, mn, bc=(1,))
        for i in range(8):
            a(f'v_cvt_pk_bf16_f32 v{out+i}, v{e+2*i}, v{e+2*i+1}')
            a(f'v_cvt_pk_bf16_f32 v{out+8+i}, v{p+2*i}, v{p+2*i+1}')
    def ln_stats(self, xp, t, m_out, sd_out, fill=()):
        a = self.a
        fill = list(fill)
        def pad(n):
            for _ in range(n):
                if fill: a(fill.pop(0))
        s, u = t, t + 4
        a(f'v_mov_b32 v{u}, 0x3f803f80')
        for i in range(8):
            k = 2 * (i & 1)
            a(f'v_dot2_f32_bf16 v{s+k}, v{xp+i}, v{u}, ' + ('0' if i < 2 else f'v{s+k}'))
            a(f'v_dot2_f32_bf16 v{s+k+1}, v{xp+i}, v{xp+i}, ' + ('0' if i < 2 else f'v{s+k+1}'))
        pad(3)
        self.pk('add', s, s, s + 2)
        for ctl in ('quad_perm:[1,0,3,2]', 'quad_perm:[2,3,0,1]', 'row_half_mirror', 'row_ror:8'):
            pad(2 if ctl.endswith('3,2]') else 1)
            self.dpp('v_add_f32', s, s, s, ctl); self.dpp('v_add_f32', s + 1, s + 1, s + 1, ctl)
        pad(2)
        a(f'v_permlane16_swap_b32 v{s}, v{s+1}')
        a(f'v_add_f32 v{u}, v{s}, v{s+1}')
        a(f'v_add_f32 v{s}, v{s}, v{s+1}')
        pad(2)
        a(f'v_permlane32_swap_b32 v{s}, v{u}')
        a(f'v_add_f32 v{s}, v{s}, v{u}')
        a(f'v_mul_f32 v{u}, 0x3a800000, v{s}')
        a(f'v_mul_f32 v{s}, 0x3a800000, v{s}')
        pad(2)
        a(f'v_permlane16_swap_b32 v{s}, v{u}')
        a(f'v_fma_f32 v{sd_out}, -v{s}, v{s}, v{u}')
        a(f'v_cvt_pk_bf16_f32 v{m_out}, 0, v{s}')
        a(f'v_max_f32 v{sd_out}, 0, v{sd_out}')
        self.round1(sd_out)
        a(f'v_add_f32 v{sd_out}, 0x3727c5ac, v{sd_out}')
        self.round1(sd_out)
        a(f'v_sqrt_f32 v{sd_out}, v{sd_out}')
        pad(99)
        self.round1(sd_out)

    def stat_math(self, s, u, m_out, sd_out):
        a = self.a
        a(f'v_fma_f32 v{sd_out}, -v{s}, v{s}, v{u}')
        a(f'v_cvt_pk_bf16_f32 v{m_out}, 0, v{s}')
        a(f'v_max_f32 v{sd_out}, 0, v{sd_out}')
        self.round1(sd_out)
        a(f'v_add_f32 v{sd_out}, 0x3727c5ac, v{sd_out}')
        self.round1(sd_out)
        a(f'v_sqrt_f32 v{sd_out}, v{sd_out}')
        self.round1(sd_out)
    def ln_stats2(self, x0, x1, t, m_out, sd_out):
        a = self.a
        s0, s1, q0, q1, u = t, t + 1, t + 2, t + 3, t + 4
        a(f'v_mov_b32 v{u}, 0x3f803f80')
        for i in range(8):
            for xx, s_, q_ in ((x0, s0, q0), (x1, s1, q1)):
                a(f'v_dot2_f32_bf16 v{s_}, v{xx+i}, v{u}, ' + ('0' if i == 0 else f'v{s_}'))
                a(f'v_dot2_f32_bf16 v{q_}, v{xx+i}, v{xx+i}, ' + ('0' if i == 0 else f'v{q_}'))
        a(f"""v_permlane32_swap_b32 v{s0}, v{s1}
        v_permlane32_swap_b32 v{q0}, v{q1}
        v_add_f32 v{s0}, v{s0}, v{s1}
        v_add_f32 v{q0}, v{q0}, v{q1}
        v_permlane16_swap_b32 v{s0}, v{q0}
        v_add_f32 v{s0}, v{s0}, v{q0}""")
        for ctl in ('quad_perm:[1,0,3,2]', 'quad_perm:[2,3,0,1]', 'row_half_mirror', 'row_ror:8'): self.dpp('v_add_f32', s0, s0, s0, ctl)
        a(f"""v_mul_f32 v{q0}, 0x3a800000, v{s0}
        v_mul_f32 v{s0}, 0x3a800000, v{s0}
        v_permlane16_swap_b32 v{s0}, v{q0}""")
        self.stat_math(s0, q0, m_out, sd_out)

    def build(self):
        a, V, vm, lg, o, S = self.a, self.V, self.vm, self.lg, self.o, self.S
        E2 = range(0, 16, 2)
        TL = o.get('tl', 0)
        HL = o.get('hl', 1)
        D2 = o.get('d2', 1)
        LCB = [(0, 4, 8 * 4096)] if TL else [(0, 3, 8 * 4096), (3, 1, 4096)]
        a(f'{NAME}:')
        a(f's_load_dwordx16 {sr(KA, 16)}, s[0:1], 0')
        a(f's_load_dwordx8 {sr(KA + 16, 8)}, s[0:1], 64')
        a(f's_load_dwordx2 {sr(rWS, 2)}, s[0:1], 104')
        a(f's_load_dwordx2 {sr(pDBG, 2)}, s[0:1], 96')
        a('s_cmp_ge_u32 s2, 256')
        a('s_cbranch_scc1 L_END')
        if self.prof:
            a(f's_memrealtime {sr(sCMP, 2)}')
            a(f's_memtime {sr(sTM, 2)}')
            a('v_mov_b32 v255, 0')
            a('v_mov_b32 v254, 0')
            self.stnames.append('start'); self.nst = 1
        if o.get('exfil'): a(f's_memrealtime {sr(sTM, 2)}')
        vL = self.vL = V.alloc()
        vL16 = V.alloc()
        vZ = V.alloc()
        vT = V.alloc(8)
        va = lambda dst, terms, sreg=None, const=0: self.va(dst, terms, sreg, const, vT + 5)
        a(f"""v_lshrrev_b32 v{vT}, 6, v0
        v_and_b32 v{vL}, 63, v0
        v_mov_b32 v{vZ}, 0
        v_readfirstlane_b32 s{sWAVE}, v{vT}
        v_lshlrev_b32 v{vL16}, 4, v{vL}""")
        xr = V.alloc(8); acc = V.alloc(8); wphi = V.alloc(8); fr = V.alloc(8); vq = V.alloc(8); vv = V.alloc(8)
        vWM = V.alloc(); vCo = V.alloc(); vWd = V.alloc(); vL8 = V.alloc(); vL32S = V.alloc(); vGA = V.alloc()
        vB = V.alloc(6, 1); vFG = V.alloc(); vFD = V.alloc(); vWo = V.alloc(); vPW = V.alloc(); vXF = V.alloc()
        S(sX, 'wg & 7'); S(sJ, 'wg >> 3')
        S(T2, '(x*4 + w)*64')
        S(T0, 'T2*6144 + (j ^ 1)*128')
        va(vWM, [(3, 3, 4 * 12288), (0, 3, 16)])
        va(vCo, [(3, 3, 8)], T2)
        S(T3, '((x*32 + j)*4 + w - 4)*4096')
        for srd, size in ((rWM, 12582912), (rX, 4194304), (rWS, WS_BYTES)):
            a(f's_mov_b32 s{srd+2}, {size}')
            a(f's_mov_b32 s{srd+3}, 0x20000')
        a(f's_getreg_b32 s{sXC}, hwreg(HW_REG_XCC_ID, 0, 3)')
        if o.get('fakexcc') is not None: a(f's_and_b32 s{sXC}, s{sXC}, {o["fakexcc"]}')
        a(f"""s_getpc_b64 {sr(sCMP, 2) if not self.prof else sr(sPL, 2)}""")
        S(T6, '(j*7 + w)*128')
        va(vT + 6, [(5, 1, 28672)], T6)
        a(f"""v_min_u32 v{vT+6}, CODE_KB, v{vT+6}
        s_cmp_ge_u32 s{sWAVE}, 4
        s_waitcnt lgkmcnt(0)""")
        if self.prof:
            a(f'v_writelane_b32 v255, s{sTM}, 0')
            a(f'v_writelane_b32 v255, s{sCMP}, 63')
            a(f'v_writelane_b32 v254, s{sCMP}, 0')
            a(f's_mov_b64 {sr(sCMP, 2)}, {sr(sPL, 2)}')
        if o.get('exfil'):
            for k in range(3): a(f'v_writelane_b32 v255, s{sTM}, {k}')
        self.stamp('karg')
        raw = V.alloc(16); cv = V.alloc(4); vTk = V.alloc(2)
        xs = V.alloc(16); st = V.alloc(4); mq = V.alloc(4)
        a(f"""s_mov_b64 {sr(rWM, 2)}, {sr(KA + 20, 2)}
        s_mov_b64 {sr(rX, 2)}, {sr(KA, 2)}
        s_load_dword s{sTAG}, {sr(rWS, 2)}, {NONCE}
        s_cbranch_scc1 L_FS""")
        def setup():
            for srd, size in ((rW, 6291456), (rWO, 2097152), (rWG, 7340032), (rWU, 7340032), (rWD, 7340032), (rOUT, 4194304)):
                a(f's_mov_b32 s{srd+2}, {size}')
                a(f's_mov_b32 s{srd+3}, 0x20000')
            for srd, k in ((rW, 2), (rWO, 6), (rWG, 12), (rWU, 14), (rWD, 16), (rOUT, 22)):
                a(f's_mov_b64 {sr(srd, 2)}, {sr(KA + k, 2)}')
            a(f"""s_mov_b32 s{sSPIN}, 0
            s_mov_b32 s{sMASK}, 0xffff0000
            s_mov_b32 s{sL2E}, 0x3fb8aa3b""")
            S(sKH, 'w >> 2')
            va(vT + 2, [(4, 1, 64)]); va(vWd, [(0, 3, 16)])
            a(f'v_xor_b32 v{vWd}, v{vWd}, v{vT+2}'); va(vT + 2, [(3, 3, 6144)]); a(f'v_add_u32 v{vWd}, v{vWd}, v{vT+2}')
            va(vL8, [(0, 6, 8)])
            a(f'v_add_u32 v{vL32S}, {SCR}, v{vL16}')
            S(T0, '(w & 3)*4 + SCR')
            va(vGA, [(4, 2, 32), (0, 3, 128), (3, 1, 16)], T0)
            S(T1, '((j >> 4)*128 + w*8 + x)*1024 + (j & 15)*64 + SINB' if TL else '((x & 6) + ((x & 1)*2 + (j >> 4))*64 + w*8)*1024 + (j & 15)*64 + SINB')
        def tag_hash():
            a(f"""s_mul_i32 s{sTAG}, s{sTAG}, 0x9e3779b1
            s_add_u32 s{sTAG}, s{sTAG}, 0x7f4a7c15""")
        def code_pf():
            a(f's_and_b32 s{sCMP}, s{sCMP}, 0xfffffc00')
            a(f'global_load_dword v{vTk}, v{vT+6}, {sr(sCMP, 2)}')
        wq = [(n, t) for n in range(16) for t in range(3)]
        def w_base(n, wexpr):
            if n < 4 and o.get('wxor', 1):
                if o.get('wxor', 1) < 3: S(T7, '((j >> 4)*2) ^ n' if o.get('wxor', 1) == 1 else o.get('wxe', '((j >> 4) + (x >> 2)*2) ^ n'), n=n)
                else:
                    S(T7, o.get('wxe', 'j & 3' if HL else '(j >> 4) + (x >> 2)*2'))
                    if n: a(f's_cmp_le_u32 s{T7}, {n - 1}'); a(f's_cselect_b32 s{T7}, {n}, {n - 1}')
                S(sU, f'(((T7 + u0) & 15)*8 + {wexpr})*(8*6144) + hp*128')
                S(T7, f'T7*SLOT + (({wexpr}) >> 1)*2080 + (({wexpr}) & 1)*1056')
            else:
                S(sU, f'(((u0 + n) & 15)*8 + {wexpr})*(8*6144) + hp*128', n=n)
                S(T7, f'(({wexpr}) >> 1)*2080 + (({wexpr}) & 1)*1056 + q', q=(n % 6) * SLOT)
        def w_slot(n, t):
            S('m0', 'T7 + q', q=t * SEC)
            self.dma(vWd, rW, sU, 0, o.get('wmod', ''), ('W', n))
            if t < 2: S(sU, 'u + 2048')
        def w_next(cnt=1):
            for _ in range(cnt):
                n, t = wq.pop(0)
                if t == 0: w_base(n, 'w')
                w_slot(n, t)
        wb = list(o['wburst'])
        def w_early():
            if not o.get('wearly'): return
            S(sHP, '(x & 3)*4 + ((j & 3) ^ q)', q=o.get('hpx', 2)); S(sU0, o.get('u0', 'j & 12'))
            w_next(o['wearly'])
        a(f'global_load_dwordx2 {vr(cv, 2)}, v{vCo}, {sr(pC, 2)}'); vm.issue('c')
        for i in range(4):
            self.bl(raw + 4 * i, 4, vWM, rWM, T0, 0, o.get('ntwm', 'nt'), ('wm', i))
            if i < 3: S(T0, 'T0 + 12288')
        a('s_barrier')
        if o.get('bar1', 1): a('s_barrier')
        code_pf(); vm.issue()
        setup()
        wq0 = list(wq); w_early(); wq[:] = wq0
        S(T0, '(((w*16 + ((j ^ 1) & 15))*2 + (j >> 4))*8 + x)*512 + AINB')
        S(T2, ('(((j ^ 1) & 15)*8 + w*2)*512' if TL else '(((j ^ 1) & 7)*8 + w*2 + ((j >> 3) & 1))*512') + ' + x*64 + (j >> 4)*4 + INA')
        va(vT + 6, [(0, 1, 128 * 512), (1, 1, 512)] if TL else [(0, 2, 64 * 512)])
        vm.wait('c')
        self.unpack(cv + 2, cv + 3, cv + 1)
        a(f'v_and_b32 v{cv+1}, s{sMASK}, v{cv}'); a(f'v_lshlrev_b32 v{cv}, 16, v{cv}')
        for i in range(4): self.silu(cv + i, vT + (i & 1))
        gops = self.gemv_ops([raw + 4 * i for i in range(4)], [cv + i for i in range(4)], acc, vT, vT + 1, True)
        for i in range(4):
            vm.wait(('wm', i))
            if i == 3: self.stamp('wmok')
            for s_ in gops[12 * i:12 * i + 12]: a(s_)
        for s_ in gops[48:]: a(s_)
        self.dw('ds_write_b32', vGA, acc, 1, L_A1 - SCR)
        self.barrier()
        a(f'ds_read_b128 {vr(acc, 4)}, v{vL32S} offset:{L_A1 - SCR}')
        tag_hash()
        a('s_waitcnt lgkmcnt(0)')
        self.pk('add', acc, acc, acc + 2)
        a(f"""v_add_f32 v{acc}, v{acc}, v{acc+1}
        v_mov_b32 v{acc+1}, s{sTAG}""")
        self.bs(acc, 2, vL8, rWS, T0, 0, 'sc1')
        a('s_mov_b64 exec, 15')
        self.bs(acc + 1, 1, vT + 6, rWS, T2, 0, 'sc1')
        a('s_mov_b64 exec, -1')
        self.stamp('A1pub')
        S(T0, '(wg*4 + w)*6144')
        for i in range(o.get('wpf', 0)):
            if i == 4: S(T0, 'T0 + 4096')
            self.bl(raw, 4, vL16, rW, T0, (i & 3) * 1024, o.get('wpfmod', ''))
        a('s_branch L_FJ')
        qG = list(vm.q)
        a('L_FS:')
        vm.reset(); lg.reset()
        a('s_barrier')
        for i in range(4): self.bl(raw + 4 * i, 4, vL16, rX, T3, 1024 * i, o.get('xsmod', ''), 'xs')
        pw0 = o.get('pw0', 'ab')
        if 'a' in pw0:
            S(T4, '(wg*4 + w - 4)*128 + INA')
            for q in range(2): a(f's_load_dword s{sPL + q}, {sr(rWS, 2)}, s{T4} offset:{q * 64} glc')
        if 's' in pw0:
            S(T4, '(wg*4 + w - 4)*256 + SINB')
            for q in range(4): a(f's_load_dword s{sPL + 2 + q}, {sr(rWS, 2)}, s{T4} offset:{q * 64} glc')
        if 'b' in pw0:
            S(T4, '(wg*32 + w - 4)*128 + INB')
            for q in range(2): a(f's_load_dword s{sPL + q}, {sr(rWS, 2)}, s{T4} offset:{q * 64} glc ; nowait')
        a(f"""s_lshl_b32 s{T6}, s{sXC}, 5
        v_mov_b32 v{vTk}, 1
        v_mov_b32 v{vTk+1}, s{T6}""")
        if o.get('bar1', 1): a('s_barrier')
        a(f"""s_cmp_lg_u32 s{sWAVE}, 7
        s_cbranch_scc1 L_NOTK
        s_mov_b64 exec, 1
        global_atomic_add v{vTk}, v{vTk+1}, v{vTk}, {sr(pDBG, 2)} sc0 sc1
        s_mov_b64 exec, -1
        s_branch L_TK0
        L_NOTK:""")
        code_pf()
        a('L_TK0:')
        vm.issue('tk')
        setup()
        w_early()
        S(T0, '(w - 4)*16 + L_ST'); va(vT + 6, [(5, 1, 8)], T0)
        a('s_barrier')
        vm.wait('xs')
        lg.wait_all()
        tag_hash()
        self.stamp('xsok')
        self.ln_stats2(raw, raw + 8, xs, st, st + 1)
        a(f"""v_lshrrev_b32 v{st}, 16, v{st}
        v_or_b32 v{st}, v{st}, v{st+1}
        v_mov_b32 v{st+1}, s{sTAG}""")
        self.dw('ds_write_b64', vT + 6, st, 2)
        a('L_FJ:')
        va(vT + 1, [(0, 2, 16)], None, L_ST)
        va(vT, [(0, 2, 16), (2, 1, 65536 if TL else 1024)])
        va(vT + 6, [(0, 5, 2048), (5, 1, 32)])
        va(vT + 2, [(0, 1, 64 * 512 if TL else 512), (1, 1, 256)])
        S(T2, ('((j >> 4)*128 + w*8 + x)*512' if TL else '((x & 6) + ((x & 1)*2 + (j >> 4))*64 + w*8)*512') + ' + ((j >> 2) & 3)*64 + (j & 3)*4 + 16 + INA')
        self.barrier()
        self.r128(st, vT + 1, 0, 'st')
        lg.wait('st')
        a('s_mov_b64 exec, 0xff')
        self.bs(st, 4, vT, rWS, T1, 0, 'sc1')
        a('s_mov_b64 exec, 15')
        self.bs(st + 1, 1, vT + 2, rWS, T2, 0, 'sc1')
        a('s_mov_b64 exec, -1')
        self.stamp('A2pub')
        a(f"""s_cmp_lg_u32 s{sWAVE}, 7
        s_cbranch_scc1 L_NOTK2
        s_mov_b32 s{T0}, 0
        s_waitcnt vmcnt({len(vm.q) - 1 - vm.q.index('tk')})
        L_TK:
        v_readfirstlane_b32 s{T2}, v{vTk}
        s_cmp_lt_u32 s{T2}, 32
        s_cbranch_scc1 L_TKOK
        v_mov_b32 v{vTk}, s{sTAG}
        s_mov_b64 exec, 1
        buffer_store_dword v{vTk}, v{vZ}, {sr(rWS, 4)}, 0 offen offset:{MARK} sc1
        s_mov_b64 exec, -1
        s_add_u32 s{T0}, s{T0}, 1
        s_cmp_lt_u32 s{T0}, 8
        s_cbranch_scc0 L_TKNO
        s_add_u32 s{sXC}, s{sXC}, 1
        s_and_b32 s{sXC}, s{sXC}, 7
        s_lshl_b32 s{T6}, s{sXC}, 5
        v_mov_b32 v{vTk}, 1
        v_mov_b32 v{vTk+1}, s{T6}
        s_mov_b64 exec, 1
        global_atomic_add v{vTk}, v{vTk+1}, v{vTk}, {sr(pDBG, 2)} sc0 sc1
        s_mov_b64 exec, -1
        s_waitcnt vmcnt(0)
        s_branch L_TK
        L_TKNO:
        s_and_b32 s{sXC}, s2, 7
        s_lshr_b32 s{T2}, s2, 3
        L_TKOK:
        s_lshl3_add_u32 s{T2}, s{T2}, s{sXC}""")
        if o.get('rawrole'): a(f's_mov_b32 s{T2}, s2')
        a(f"""v_mov_b32 v{vTk}, s{T2}
        ds_write_b32 v{vT+1}, v{vTk} offset:64
        L_NOTK2:""")
        self.barrier()
        a(f'ds_read_b32 v{mq}, v{vT+1} offset:64'); lg.issue('role')
        lg.wait('role')
        a(f'v_readfirstlane_b32 s2, v{mq}')
        self.stamp('role')
        V.release(raw, 16); V.release(cv, 4)
        S(sX, 'wg & 7'); S(sJ, 'wg >> 3')
        S(sCB, 'j & 15' if TL else '(x & 1)*8 + (j & 7)')
        S(sRT, 'x*2 + (j >> 4)' if TL else '(x >> 1)*4 + (j >> 3)')
        S(sGTB, 'rt*4 + (w & 3)')
        S(sC32, 'cb*2 + kh')
        S(T5, 'gtb*65536 + c32*64')
        ld_xt = lambda: [self.bl(xr + 4 * q, 4, vT + 6, rX, T5, 16 * q, o.get('xtmod', ''), 'xt') for q in range(2)]
        if not o.get('xtlate', 0): ld_xt()
        S(T0, '(((x >> 1)*16 + cb)*16 + w)*512 + AINB')
        S(T2, '(wg*8 + w)*64 + INA')
        def role_prep():
            S(sR1, 'j & 15' if HL else '(x & 4)*2 + (j >> 2)'); S(sHP, '((x >> 2)*2 + (x & 1))*4 + (x & 2) + (j >> 4)' if HL else '(x & 3)*4 + ((j & 3) ^ 2)')
            S(sU0, o.get('u0', 'j & 12'))
            w_next(wb[0])
            S(sINB, '(wg*64 + w)*64 + INB')
            S(sKF, 'kh ^ (j >> 4)'); S(sROT, o.get('rot', '(((j >> 3) ^ j) & 1)*q'), q=4 if D2 else 8)
            S(sFS, 'x*7 + (j >> 2)'); S(sKQ, 'j & 3')
            va(vT + 4, [(0, 5, 8)])
            va(vT, [(0, 5, 16), (5, 1, 4096)])
            S(T3, 'w*4 + L_MP'); va(vT + 1, [(0, 6, 64)], T3)
            S(T3, 'kh*1024 + L_MP'); va(vT + 2, [(0, 4, 32), (5, 1, 512)], T3)
        S(T1, '(wg*4 + (w & 3))*256 + SINB')
        self.spoll([(0, 8, T2, 0)], (0, 1, 4, 5, 6, 7), work=role_prep)
        self.stamp('apre')
        if o.get('abar', 2) == 1: a('s_barrier')
        st_ld = lambda: self.bl(st, 2, vT + 4, rWS, T1, 0, 'sc1', 'st')
        def st_fetch():
            st_ld()
            if o.get('abar', 2) == 2: a('s_barrier')
            if o.get('xtlate', 0): ld_xt()
            S(T3, 'hp*4096 + w*512')
            a(f'v_add_u32 v{vT+6}, s{T3}, v{vL16}')
            S('m0', 'w*512 + L_WPHI')
            a('s_mov_b32 exec_hi, 0')
            a(f'global_load_lds_dwordx4 v{vT+6}, {sr(pWPHI, 2)}'); vm.issue()
            a('s_mov_b32 exec_hi, -1')
            w_next(wb[1])
        self.try_load(lambda: self.bl(mq, 4, vT, rWS, T0, 0, 'sc1'), [mq + 1, mq + 3], vT + 3, st_fetch)
        self.stamp('modok')
        a(f'ds_write2_b32 v{vT+1}, v{mq}, v{mq+2} offset0:0 offset1:8'); lg.issue()
        if not o.get('xtlate', 0):
            for i in range(8): self.unpack(xs + 2 * i, xs + 2 * i + 1, xr + i)
        self.barrier()
        mp = V.alloc(16); hp = V.alloc(8)
        for i in (2, 3, 0, 1): self.r128(mp + 4 * i, vT + 2, (i >> 1) * 2048 + (i & 1) * 16, i >> 1)
        w_next(wb[2])
        self.finish_load('st', st_ld, [st + 1], None)
        if o.get('xtlate', 0):
            vm.wait('xt')
            for i in range(8): self.unpack(xs + 2 * i, xs + 2 * i + 1, xr + i)
        self.stamp('statok')
        self.unpack(st + 1, st, st)
        a(f'v_rcp_f32 v{st}, v{st}')
        for i in E2: self.pk('add', xs + i, xs + i, st + 1, bc=(1,), neg=(1,))
        S(T0, '(((rt*16 + cb)*4 + (w & 3))*2 + kh)*2048 + HF')
        va(vT + 4, [(0, 4, 16), (4, 1, 1024), (5, 1, 512)])
        lg.wait(1); self.sum8(mp + 8)
        self.round1(mp + 8)
        lg.wait(0); self.sum8(mp)
        a(f'v_add_f32 v{mp+8}, 1.0, v{mp+8}')
        self.round2(mp + 8, mp)
        PKM = o.get('pkm', 1)
        if PKM:
            mb = V.alloc(32)
            S(T3, 'w*256 + L_MB'); va(vT, [(0, 4, 4), (5, 1, 64)], T3); va(vT + 1, [(5, 1, 64)], T3)
            a(f'ds_write2_b32 v{vT}, v{mp+8}, v{mp} offset0:0 offset1:32'); lg.issue()
            for q in range(8): self.r128(mb + 4 * q, vT + 1, (q >> 2) * 128 + (q & 3) * 16, ('mb', q))
        for h in range(2):
            rg = range(8 * h, 8 * h + 8)
            self.round_list([xs + i for i in rg])
            for i in range(8 * h, 8 * h + 8, 2): self.pk('mul', xs + i, xs + i, st, bc=(1,))
            self.round_list([xs + i for i in rg])
        for h in range(2):
            rg = range(8 * h, 8 * h + 8)
            if PKM:
                lg.wait(('mb', 2 * h + 1))
                for i in range(8 * h, 8 * h + 8, 2): self.pk('mul', xs + i, xs + i, mb + i)
            else:
                for i in rg: self.dpp('v_mul_f32', xs + i, mp + 8, xs + i, f'row_newbcast:{i}')
            self.round_list([xs + i for i in rg])
            if PKM:
                lg.wait(('mb', 4 + 2 * h + 1))
                for i in range(8 * h, 8 * h + 8, 2): self.pk('add', xs + i, xs + i, mb + 16 + i)
            else:
                for i in rg: self.dpp('v_add_f32', xs + i, mp, xs + i, f'row_newbcast:{i}')
            for i in range(4 * h, 4 * h + 4): a(f'v_cvt_pk_bf16_f32 v{hp+i}, v{xs+2*i}, v{xs+2*i+1}')
            self.bs(hp + 4 * h, 4, vT + 4, rWS, T0, 256 * h, 'sc1', 'hs')
        if PKM: V.release(mb, 32)
        self.stamp('hst')
        w_next(wb[3])
        va(vB, [(5, 1, 2080), (2, 2, 128), (3, 1, 64), (0, 2, 8)])
        va(vB + 1, [(4, 1, 1056)])
        va(vB + 2, [(3, 1, 128)])
        a(f"""v_add_u32 v{vB}, v{vB}, v{vB+1}
        v_sub_u32 v{vB+1}, v{vB}, v{vB+2}
        v_add_u32 v{vB+1}, 64, v{vB+1}""")
        for q in (1, 2):
            for h in range(2): a(f'v_add_u32 v{vB+2*q+h}, {2*q*SLOT}, v{vB+h}')
        S(T1, 'kh*2048 + L_WPHI')
        va(vT, [(2, 2, 64), (4, 1, 32), (0, 2, 8), (5, 1, 512)], T1)
        va(vT + 1, [(0, 3, 4096), (3, 1, 128 * 4096)] if HL else [(0, 2, 8 * 4096), (2, 2, 4096)])
        S(T0, ('rt*32768' if HL else '((rt >> 3)*4 + (rt & 7)*32)*4096') + ' + (cb >> 1)*64 + (cb & 1)*4 + INB')
        va(vT + 2, [(4, 1, 64), (5, 1, 16)]); va(vWo, [(0, 3, 16)])
        a(f'v_xor_b32 v{vWo}, v{vWo}, v{vT+2}'); va(vT + 2, [(3, 3, 2048)]); a(f'v_add_u32 v{vWo}, v{vWo}, v{vT+2}')
        S(T1, '(w & 2)*32'); va(vT + 2, [(4, 1, 32)], T1); va(vFG, [(0, 3, 16)])
        a(f'v_xor_b32 v{vFG}, v{vFG}, v{vT+2}'); va(vT + 2, [(3, 3, 7168)]); a(f'v_add_u32 v{vFG}, v{vFG}, v{vT+2}')
        S(T1, '(w & 1)*128')
        va(vT + 2, [(5, 1, 64)], T1); va(vFD, [(0, 5, 16), (5, 1, 2048)])
        a(f'v_xor_b32 v{vFD}, v{vFD}, v{vT+2}')
        S(sFG, '(kq*8 + w)*(32*7168) + fs*128'); S(sFD, '(fs*8 + w)*16384 + kq*512')
        a(f"""s_cmp_ge_u32 s{sJ}, 28
        s_cselect_b32 s{rWG+2}, 0, s{rWG+2}
        s_cselect_b32 s{rWU+2}, 0, s{rWU+2}
        s_cselect_b32 s{rWD+2}, 0, s{rWD+2}""")
        vm.wait('hs')
        a('s_barrier')
        self.push(vT + 1, T0, 16, vT + 2, 'L_PB')
        self.stamp('hpub')
        V.release(xs, 16); V.release(mp, 16); V.release(hp, 8); V.release(st, 4); V.release(mq, 4); V.release(vTk, 2)
        w_next(wb[4])
        for s in range(2):
            for u in range(2): self.tr(wphi + 4 * s + 2 * u, vT, s * 1024 + u * 256)
        AD, LOOK, LASTB = o['AD'], o.get('LOOK', 6), o['LASTB']
        accs = V.alloc(96)
        big = V.alloc(76)
        Ar, Br = big, big + 4 * AD
        assert 4 * AD + 4 * (LOOK + 1) <= 76
        S(T2, '(r1*64 + w)*4096 + HF')
        S(T0, '(w & 3)*4096 + L_XF'); a(f'v_add_u32 v{vXF}, s{T0}, v{vL16}')
        vXW = V.alloc(); vVW = V.alloc()
        va(vXW, [(0, 4, 16), (5, 1, 512), (4, 1, 8)], T0)
        S(T0, '(w & 3)*1024 + L_V'); va(vVW, [(0, 4, 32), (4, 2, 8)], T0)
        S(T0, '(w & 3)*1024 + kh*16384 + L_PHK'); va(vPW, [(0, 5, 32), (5, 1, 16)], T0)
        fq = [(m, i) for m in range(3) for i in range(4)]
        freg = []
        def f_src(m, i, back=0, T0=T0):
            if m < 2: S(T0, 'fg + q', q=i * 8 * 7168 - back * 4 * 32 * 7168)
            else: S(T0, 'fd + q', q=i * 4096 - back * 4 * 16384)
            return (vFG, (rWG, rWU)[m]) if m < 2 else (vFD, rWD)
        def f_lds(m, i): return (L_GU + m * 32768 if m < 2 else L_DN) + i * 1024
        def ffn_reg(n):
            for _ in range(n):
                m, i = fq.pop(0)
                for back in range(2):
                    v, r = f_src(m, i, back)
                    self.bl(big + 8 * len(freg) + 4 * back, 4, v, r, T0, 0, o.get('ntffn', 'nt'), 'ffn')
                freg.append((m, i))
        def ffn_dma(n, T0=T0):
            for _ in range(n):
                m, i = fq.pop(0)
                if o.get('nofd'): continue
                v, r = f_src(m, i, 0, T0)
                S('m0', 'w1k*4 + q', q=f_lds(m, i))
                self.dma(v, r, T0, 0, o.get('ntffn', 'nt'), 'gu' if m < 2 else 'dn')
        S(sWB, 'w*16384' if D2 else '(rot*4 + w)*16384'); S(sWO2, '(j >> 4)*1048576 + cb*128'); S(sW1K, 'w*1024')
        def wo_dma(it, back=0, T0=T0):
            S(T0, '(((wb + q) & 0xfffff) ^ (rot*65536)) + (wo2 ^ h)' if D2 else '((wb + q) & 0xfffff) + (wo2 ^ h)', q=(8 * it - 4 * back) * 16384, h=(it >> 3) << 20)
            S('m0', 'w1k + q', q=WO_H0 + it * 8192 - 4096 * back)
            self.dma(vWo, rWO, T0, 0, '', 'wo')
        self.inbox(0, 2, work=lambda: w_next(wb[5]), pipe=o.get('pipeB', 0))
        assert len(wq) % 3 == 0 and 30 <= len(wq) <= (45, 36, 36, 42)[o.get('wxor', 1)]
        NPU = 16 - len(wq) // 3
        vm.wait(('W', (0, 2, 3, 1)[o.get('wxor', 1)]))
        a('s_barrier')
        self.stamp('hok')
        a(f"""s_cmp_ge_u32 s{sWAVE}, 4
        s_cbranch_scc1 L_HELP
        s_setprio 2""")
        q_hok = list(vm.q)
        if 'pad' in o:
            a('.p2align 6')
            for _ in range(o['pad']): a('s_nop 0')
        def a_load(sg):
            if sg % 4 == 0: S(T3, '((u0 + n) & q)*16384 + T2', n=sg // 4, q=o.get('amask', 15))
            self.bl(Ar + 4 * (sg % AD), 4, vL16, rWS, T3, (sg % 4) * 1024, o.get('amod', 'sc1'), ('A', sg))
        CORD = [(1, 2), (1, 3), (1, 0), (1, 1)] + [(t, ct) for t in (0, 2) for ct in range(4)]
        WEV = o.get('wev', 2); NB = LOOK + 1
        def b_read(n, q):
            st_, c = divmod(n, 12); t, ct = CORD[c]
            slot = (st_ >> 1) % 6
            off = (slot & 1) * SLOT + t * SEC + (st_ & 1) * 4160 + (ct & 1) * 32 + q * 512
            self.tr(Br + 4 * (n % NB) + 2 * q, vB + 2 * (slot >> 1) + (ct >> 1), off, ('B', n))
        nxt = 0
        def a_more(lim):
            nonlocal nxt
            while nxt < min(lim, 64): a_load(nxt); nxt += 1
        a_more(2)
        for n in range(LOOK):
            for q in range(2): b_read(n, q)
        a_more(o.get('A0', 4))
        b14 = False
        for n in range(384):
            st_, c = divmod(n, 12); t, ct = CORD[c]
            if n % WEV == 0: lg.wait(('B', min(n + WEV - 1, 383)))
            for th in range(2):
                if c == 0: vm.wait(('A', 2 * st_ + (th if st_ < 2 or not o.get('vw1', 1) else 1)))
                d = accs + 32 * t + 16 * (ct >> 1) + 8 * (ct & 1) + 4 * th
                a(f'v_mfma_f32_16x16x32_bf16 {vr(d, 4)}, {vr(Br + 4*(n % NB), 4)}, {vr(Ar + 4*((2*st_ + th) % AD), 4)}, ' + ('0' if st_ == 0 else vr(d, 4)))
                if n + LOOK < 384:
                    if th == 0 and (n + LOOK) % 24 == 0 and (n + LOOK) // 24 <= LASTB: a('s_barrier')
                    b_read(n + LOOK, th)
            if c in o.get('aat', (0, 3, 6, 9)): a_more(min(nxt + 1, 2 * st_ + AD))
            if nxt == 64 and not b14 and (n + LOOK) // 24 >= LASTB and (n + LOOK) % 24:
                b14 = True; a('s_barrier')
        self.stamp('gemm1')
        aq, ak, av = accs, accs + 32, accs + 64
        def cvt8(d, s_, swap=True):
            for c in range(2):
                for th in range(2):
                    for ip in range(2): a(f'v_cvt_pk_bf16_f32 v{d + 4*c + 2*th + ip}, v{s_ + 8*c + 4*th + 2*ip}, v{s_ + 8*c + 4*th + 2*ip + 1}')
            if swap:
                for c in range(2):
                    for ip in range(2): a(f'v_permlane16_swap_b32 v{d + 4*c + ip}, v{d + 4*c + 2 + ip}')
        def put8(addr, d, off, oc_, ot):
            for c in range(2):
                for th in range(2): self.dw('ds_write_b64', addr, d + 4 * c + 2 * th, 2, off + c * oc_ + th * ot)
        cvt8(vv, ak + 16, False)
        put8(vXW, vv, 0, 1024, 256)
        cvt8(fr, ak)
        self.barrier()
        a('s_setprio 0')
        pp = ak; ee = ak + 16
        def phi_logits(src):
            a(f'v_mfma_f32_32x32x16_bf16 {vr(pp, 16)}, {vr(wphi, 4)}, {vr(src, 4)}, 0')
            a(f'v_mfma_f32_32x32x16_bf16 {vr(pp, 16)}, {vr(wphi + 4, 4)}, {vr(src + 4, 4)}, {vr(pp, 16)}')
        phi_logits(fr)
        for h in range(2):
            cvt8(vv if h == 0 else vq, av + 16 * h, False)
            put8(vVW, vv if h == 0 else vq, h * 8192, 4096, 512)
        cvt8(fr, aq + 16, False)
        put8(vXW, fr, 2048, 1024, 256)
        cvt8(vq, aq)
        a('s_branch L_JOIN')
        a('L_HELP:')
        vm.q = [('W', 1)] * len(q_hok) if o.get('wxor', 1) == 1 else list(q_hok); lg.reset()
        m2w = accs; m2c = accs + 32; g4 = accs + 48
        def w_unit(n):
            for wexpr in ('w - 4', 'w'):
                w_base(n, wexpr)
                for t in range(3):
                    w_slot(n, t)
                    if o.get('pace', 0) and n >= 6: a(f's_sleep {o["pace"]}')
        for n in range(NPU, 6): w_unit(n)
        S(T0, '((j & 3)*4 + w - 4)*128' if HL else '((x & 3)*4 + w - 4)*128')
        va(vCo, [(3, 3, 16)], T0)
        va(vWM, [(3, 3, 8 * 12288), (0, 3, 16)])
        S(T4, 'T0*6144 + (((j >> 2) & 3)*16 + x*2 + (j >> 4))*128 + 4096' if HL else 'T0*6144 + (j*2 + (x >> 2))*128 + 4096')
        a(f'global_load_dwordx4 {vr(m2c + 8, 4)}, v{vCo}, {sr(pC, 2)}'); vm.issue('m2c')
        m2l = list(range(8)); wol = [9, 10, 11, 12]; pwl = list(range(1, 8)); sil = list(range(8))
        m2ops = self.gemv_ops([m2w + 4 * i for i in range(8)], [m2c + i for i in range(8)], acc, vT, vT + 1, False)
        m2pos = 0
        m2q = accs; wr1 = accs + 8; vM2 = accs + 9
        ld_m2 = lambda: [self.bl(m2q + 4 * q, 4, vM2, rWS, T5, q * 1024, 'sc1', 'm2q') for q in range(2)]
        def m2_final():
            self.finish_load('m2q', ld_m2, [m2q + 1, m2q + 3, m2q + 5, m2q + 7], vT)
            q0, q1, q2, q3 = m2q, m2q + 1, m2q + 2, m2q + 3
            S(T0, '(w & 3)*128 + L_MT'); va(vT, [(0, 5, 4)], T0)
            S(T1, 'w & 3')
            a(f"""v_add_f32 v{q0}, v{m2q}, v{m2q+4}
            v_add_f32 v{q1}, v{m2q+2}, v{m2q+6}
            v_add_f32 v{q2}, v{m2q}, v{m2q+4}""".replace(f'v_add_f32 v{q2}, v{m2q}, v{m2q+4}', f'v_mov_b32 v{q2}, v{q0}'))
            a(f"""v_mov_b32 v{q3}, v{q1}
            s_cmp_eq_u32 s{T1}, 2
            s_cselect_b32 s{T2}, 1.0, 0
            v_permlane32_swap_b32 v{q0}, v{q2}
            v_permlane32_swap_b32 v{q1}, v{q3}""")
            self.pk('add', q0, q0, q2)
            self.round2(q0, q1)
            a(f"""v_add_f32 v{q0}, s{T2}, v{q0}
            v_add_f32 v{q1}, s{T2}, v{q1}
            v_cvt_pk_bf16_f32 v{q2}, v{q0}, v{q1}""")
            self.dw('ds_write_b32', vT, q2, 1)
            a('s_cbranch_scc0 L_NOG')
            g0, g1, gh, gl = m2q + 4, m2q + 5, m2q + 6, m2q + 7
            self.unpack(q0, q1, q2); self.unpack(g0, g1, wr1)
            self.pk('mul', g0, g0, q0)
            a(f'v_cvt_pk_bf16_f32 v{gh}, v{g0}, v{g1}')
            self.unpack(q0, q1, gh)
            self.pk('add', q0, g0, q0, neg=(1,))
            a(f"""v_cvt_pk_bf16_f32 v{gl}, v{q0}, v{q1}
            v_add_f32 v{q0}, v{g0}, v{g1}
            ds_write2_b32 v{vT}, v{gh}, v{gl} offset0:64 offset1:96
            ds_write_b32 v{vT}, v{wr1} offset:512""")
            for ctl in ('quad_perm:[1,0,3,2]', 'quad_perm:[2,3,0,1]', 'row_half_mirror', 'row_ror:8'): self.dpp('v_add_f32', q0, q0, q0, ctl)
            S(T0, '(rt*16 + cb)*8 + GR')
            a(f"""v_mov_b32 v{q2}, v{q0}
            v_mov_b32 v{q1}, s{sTAG}
            v_permlane16_swap_b32 v{q0}, v{q2}
            v_add_f32 v{q0}, v{q0}, v{q2}
            s_mov_b64 exec, 1""")
            self.bs(q0, 2, vZ, rWS, T0, 0, 'sc1', count=False)
            a("""s_mov_b64 exec, -1
        L_NOG:""")
        def act(op, k):
            nonlocal m2pos
            kind, n = op[0], int(op[1:] or 1)
            if kind == 'm':
                for _ in range(2 * n):
                    i = m2l.pop(0)
                    self.bl(m2w + 4 * i, 4, vWM, rWM, T4, 0, o.get('ntm2', 'nt'), ('m2', i))
                    if m2l: S(T4, 'T4 + 12288')
            elif kind == 'f': ffn_reg(n)
            elif kind == 'o':
                assert k >= 13
                for _ in range(n):
                    it = wol.pop(0); wo_dma(it, 1); wo_dma(it)
            elif kind == 'p':
                a('s_waitcnt lgkmcnt(0)')
                for q in range(n):
                    b = pwl.pop(0)
                    a(f's_load_dword s{sPL + 2*q}, {sr(rWS, 2)}, s{sINB} offset:{b * 512} glc')
                    a(f's_load_dword s{sPL + 2*q + 1}, {sr(rWS, 2)}, s{sINB} offset:{b * 512 - 256} glc')
            elif kind == 'q':
                S(T0, 'fs*8192 + (w - 4)*256 + HGR')
                a('s_waitcnt lgkmcnt(0)')
                for q in range(4): a(f's_load_dword s{sPL + q}, {sr(rWS, 2)}, s{T0} offset:{q * 2048 + 1024 + 252} glc')
            elif kind == 'z':
                for i in range(4): a(f'v_mov_b32 v{g4+i}, -1')
                if n == 1:
                    for we in ('w - 4', 'w'):
                        S(T0, f'(((r1*4 + (w & 3))*16 + hp)*2 + (({we}) >> 2))*2048 + OF')
                        for q in range(2): self.bs(g4, 4, vL16, rWS, T0, 1024 * q, 'sc1', 'pzo')
                else:
                    for we in ('w - 4', 'w'):
                        S(T0, f'((hp*8 + {we})*32 + r1)*1024 + KVP'); S(T1, 'T0 + 16384')
                        self.bs(g4, 4, vL16, rWS, T0, 0, 'sc1', 'pz'); self.bs(g4, 4, vL16, rWS, T1, 0, 'sc1', 'pz')
                    S(T0, '((hp*8 + w - 4)*16 + r1)*64 + ZP')
                    va(vT + 2, [(0, 2, 16), (2, 1, 4096)])
                    a('s_mov_b64 exec, 0xff')
                    self.bs(g4, 4, vT + 2, rWS, T0, 0, 'sc1', 'pz')
                    a('s_mov_b64 exec, -1')
            elif kind == 'M':
                va(vM2, [(0, 5, 16), (5, 1, 512)])
                S(T5, '((w & 3)*16 + cb)*2048 + MODP2')
                S(T0, 'cb*128'); va(vT, [(0, 5, 4)], T0)
                a(f'global_load_dword v{wr1}, v{vT}, {sr(pWR, 2)}'); vm.issue('m2q')
                ld_m2()
            elif kind == 'N': m2_final()
            elif kind == 'K':
                S(T0, '(hp*16 + r1)*1024 + (w & 3)*256 + KIN'); S(T1, 'hp*128 + CFL')
                a(f'v_lshlrev_b32 v{vWM}, 7, v{vL}')
                a('s_mov_b64 exec, 3')
                self.bl(vWM, 1, vWM, rWS, T0, 0, '')
                self.bl(vCo, 1, vZ, rWS, T1, 0, '')
                a('s_mov_b64 exec, -1')
            elif kind == 'h':
                S(T0, '(fs*4 + kq)*2048 + (w & 1)*1024 + HGR'); S(T1, '(rt*16 + cb)*2048 + (w & 1)*1024 + STAT')
                if TL: a(f's_bitcmp1_b32 s{sWAVE}, 1'); a(f's_cselect_b32 s{T0}, s{T1}, s{T0}')
                self.bl(m2c + 12, 4, vL16, rWS, T0, 0, '')
            elif kind == 's':
                vm.wait('m2c')
                for _ in range(n):
                    i = sil.pop(0)
                    a(f'v_and_b32 v{m2c+i}, s{sMASK}, v{m2c+8+i//2}' if i & 1 else f'v_lshlrev_b32 v{m2c+i}, 16, v{m2c+8+i//2}')
                    self.silu(m2c + i, vT + (i & 1))
            elif kind == 'g':
                assert not sil
                for _ in range(n):
                    vm.wait(('m2', m2pos // 16))
                    for s_ in m2ops[m2pos:m2pos + 16]: a(s_)
                    m2pos += 16
            elif kind == 'r':
                assert m2pos == 128
                for s_ in m2ops[128:]: a(s_)
                self.dw('ds_write_b32', vGA, acc, 1, L_M2 - SCR)
                lg.wait_all()
            elif kind == 'P':
                a(f"""s_cmp_lg_u32 s{sWAVE}, 4
                s_cbranch_scc1 L_M2F
                ds_read_b128 {vr(acc, 4)}, v{vL32S} offset:{L_M2 - SCR}""")
                S(T0, '((((j >> 2) & 3)*16 + x*2 + (j >> 4))*4 + (j & 3))*512 + MODP2' if HL else '((j*2 + (x >> 2))*4 + (x & 3))*512 + MODP2')
                a(f"""s_waitcnt lgkmcnt(0)
                v_add_f32 v{acc}, v{acc}, v{acc+1}
                v_add_f32 v{acc+2}, v{acc+2}, v{acc+3}
                v_mov_b32 v{acc+1}, s{sTAG}
                v_add_f32 v{acc}, v{acc}, v{acc+2}""")
                self.bs(acc, 2, vL8, rWS, T0, 0, 'sc1', count=False)
                a('L_M2F:')
            else: raise ValueError(op)
        sched = {int(k): v.split() for k, v in o['sched'].items()}
        for op in sched.get(0, []): act(op, 0)
        for k in range(1, LASTB + 1):
            for kk in (range(k, 16) if k == LASTB else [k + 1 if k < 3 and o.get('wxor', 1) == 3 else k]): vm.wait(('W', kk))
            if o.get('ust'): self.stamp(f'w{k}')
            a('s_barrier')
            if o.get('ust'): self.stamp(f'u{k}')
            ops = sched.get(k, [])
            if 6 <= k + 4 < 16:
                pre = [op[1:] for op in ops if op[0] == '<']
                for op in pre: act(op, k)
                if not o.get('now2'): w_unit(k + 4)
            for op in ops:
                if op[0] != '<': act(op, k)
        if o.get('b14', 1):
            assert LASTB == 13 and AD <= 12
            a('s_barrier')
            for op in sched.get(14, []): act(op, 14)
        self.barrier()
        for q in range(2): self.r128(fr + 4 * q, vXF, q * 1024)
        lg.wait_all()
        phi_logits(fr)
        for op in sched.get(15, []): act(op, 15)
        assert (not m2l or o.get('nom2')) and not wol
        assert 8 * len(freg) <= 76
        a('L_JOIN:')
        pzq = list(vm.q)
        vm.reset(); lg.q = [None]
        V.release(vXW); V.release(vVW); V.release(vB, 6); V.release(vWd); V.release(vGA); V.release(vL32S); V.release(acc, 8)
        V.release(big + 8 * len(freg), 76 - 8 * len(freg))
        ph = aq; fx = aq + 16
        vPA = V.alloc(); vPB = V.alloc()
        self.softmax_pm(pp, ee, ph, vT)
        for fb in range(4): self.dw('ds_write_b128', vPW, ph + 4 * fb, 4, fb * 4096)
        S(T0, 'w*4096 + L_PHK'); a(f'v_add_u32 v{vPA}, s{T0}, v{vL8}')
        S(T0, 'kh*8192 + L_V'); a(f'v_add_u32 v{vPB}, s{T0}, v{vL8}')
        ones = fr
        for i in range(4): a(f'v_mov_b32 v{ones+i}, 0x3f803f80')
        S(T0, '((hp*8 + w)*32 + r1)*1024 + KVP'); S(T2, 'T0 + 16384')
        S(T3, '(hp*8 + w)*1024 + ZP'); S(T1, 'r1*64 + T3')
        self.stamp('ksm')
        self.barrier()
        self.stamp('phik')
        tb7 = V.alloc(8); tb4 = tb7 + 4
        S(T5, 'kh*64 + L_MT'); va(tb7 + 3, [(0, 3, 4), (5, 1, 32)], T5)
        for q, t in ((0, 0), (1, 4), (2, 5), (4, 1), (5, 2), (6, 3), (7, 6)): self.dr('ds_read_b32', tb7 + q, 1, tb7 + 3, t * 128)
        fragA = [ee + 4 * i for i in range(4)]
        fragB = [av + 4 * i for i in range(8)]
        kvd = vv; zd = fr + 4
        def kvm(u):
            lg.wait(('kv', u))
            for db in range(2):
                a(f'v_mfma_f32_16x16x32_bf16 {vr(kvd + 4*db, 4)}, {vr(fragA[u], 4)}, {vr(fragB[2*u+db], 4)}, ' + ('0' if u == 0 else vr(kvd + 4*db, 4)))
            a(f'v_mfma_f32_16x16x32_bf16 {vr(zd, 4)}, {vr(fragA[u], 4)}, {vr(ones, 4)}, ' + ('0' if u == 0 else vr(zd, 4)))
        for ts in range(4):
            self.tr(fragA[ts], vPA, ts * 1024, ('kv', ts)); self.tr(fragA[ts] + 2, vPA, ts * 1024 + 512, ('kv', ts))
            for db in range(2):
                self.tr(fragB[2*ts+db], vPB, db * 4096 + ts * 1024, ('kv', ts)); self.tr(fragB[2*ts+db] + 2, vPB, db * 4096 + ts * 1024 + 512, ('kv', ts))
            if ts >= 2: kvm(ts - 2)
        va(vPW, [(0, 4, 8 * 4096)] if HL else [(0, 3, 32 * 4096), (3, 1, 4 * 4096)])
        S(T4, '(wg & q)*4096 + (r1 >> 1)*64 + (r1 & 1)*4 + INB + 512', q=0x87 if HL else 0x1b)
        kvm(2); kvm(3)
        a(f"""s_cmp_lt_u32 s{sWAVE}, 4
        s_cbranch_scc1 L_NOQX
        ds_read_b128 {vr(vq, 4)}, v{vXF} offset:2048
        ds_read_b128 {vr(vq + 4, 4)}, v{vXF} offset:3072
        L_NOQX:""")
        if 'pz' in pzq: a(f's_waitcnt vmcnt({pzq[::-1].index("pz")})')
        self.bs(kvd, 4, vL16, rWS, T0, 0, 'sc1', 'kvs')
        self.bs(kvd + 4, 4, vL16, rWS, T2, 0, 'sc1', 'kvs')
        a('s_mov_b32 exec_lo, 0x00010001')
        a('s_mov_b32 exec_hi, 0x00010001')
        self.bs(zd, 4, vL, rWS, T1, 0, 'sc1', 'kvs')
        a('s_mov_b64 exec, -1')
        lg.wait_all()
        phi_logits(vq)
        self.stamp('kvst')
        wl = [2, 3, 4, 5, 6, 7, 8, 13, 14, 15, 0, 1]
        kp = av; zz = av + 16; g4 = vv
        vKP = V.alloc()
        va(vKP, [(3, 3, 1024), (0, 3, 16)])
        va(vXF, [(0, 3, 16), (5, 1, 8)])
        wo1 = lambda: wo_dma(wl.pop(0), 0, T6)
        keep = a.items; a.items = []
        self.softmax_pm(pp, ee, ph, vv)
        qsm = a.items; a.items = keep
        qcost = [2 if it[1].is_trans or 'permlane' in it[1].mn else 1 for it in qsm]
        qtot = sum(qcost); qdone = [0]
        def q_slice(upto):
            while qsm and qdone[0] < qtot * upto / 100:
                a.items.append(qsm.pop(0)); qdone[0] += qcost.pop(0)
        qs = o.get('qs', (35, 85, 100))
        CL = o.get('cl', (0, 1)); assert CL[1]
        q_slice(qs[0])
        S(T5, 'hp*128 + CFL'); S(T1, 'r1*8 + T5')
        vCF = V.alloc(); cf = V.alloc()
        va(vCF, [(0, 4, 8)])
        vm.wait('kvs')
        a('s_barrier')
        if CL[0]:
            a(f"""s_cmp_eq_u32 s{sLOC}, 0
            s_cbranch_scc1 L_PCG
            s_cmp_lg_u32 s{sWAVE}, 0
            s_cbranch_scc1 L_PC
            v_mov_b32 v{cf}, s{sTAG}
            s_mov_b64 exec, 1""")
            self.bs(cf, 1, vZ, rWS, T1, 0, '', count=False)
            a("""s_mov_b64 exec, -1
            s_branch L_PC
            L_PCG:""")
        self.push(vPW, T4, 16, vPB, 'L_PC')
        self.stamp('kvpub')
        assert HL and not CL[0]
        self.bl(tb7 + 3, 1, vZ, rWS, '0', MARK, 'sc1', 'mk')
        S(T0, '(hp*16 + r1)*16384 + w*128 + KVP')
        S(T2, '(hp*16 + r1)*1024 + w*128 + KIN'); S(T4, 'T4 + 6*512')
        c1_work = lambda: (self.weave(lambda: q_slice(qs[1]), [wo1] * o['wowin'][0]), self.stamp('cw'))
        if CL[0]:
            ld_cf = lambda: self.bl(cf, 1, vCF, rWS, T5, 0, 'sc1', 'cf')
            if o.get('cfpre', 1): ld_cf()
            c1_work()
            a(f"""s_cmp_lg_u32 s{sLOC}, 0
            s_cbranch_scc1 L_C1L""")
            q_ = list(vm.q)
            self.inbox(1, 2)
            a("""s_barrier
            s_branch L_C1D
            L_C1L:""")
            if o.get('cfpre', 1): self.finish_load('cf', ld_cf, [cf])
            else: self.poll(ld_cf, [cf])
            vm.q = q_
            a('L_C1D:')
        else:
            self.inbox(1, 2, work=c1_work)
            a('s_barrier')
        V.release(vCF); V.release(vWM); V.release(vCo)
        self.stamp('kvok')
        S(T5, 'T0 + 8192')
        ld_kp = lambda: (self.bl(kp, 4, vKP, rWS, T0, 0, 'sc1', 'kp'), self.bl(kp + 4, 4, vKP, rWS, T5, 0, 'sc1', 'kp'))
        ld_z = lambda: self.bl(zz, 4, vL16, rWS, T3, 0, 'sc1', 'z')
        ld_kp(); ld_z()
        S(T1, 'w*32 + L_ZF'); va(vT + 2, [(0, 2, 8), (5, 1, 4)], T1)
        S(T1, 'w*1024 + L_KVF'); va(vT + 1, [(0, 4, 16), (5, 1, 512), (4, 1, 8)], T1)
        S(T1, 'kh*128 + L_ZF'); va(vT + 3, [(5, 1, 16)], T1)
        S(T1, 'kh*4096 + L_KVF'); a(f'v_add_u32 v{vPA}, s{T1}, v{vL16}')
        def red4(r, ctls):
            for i in range(2): a(f'v_permlane32_swap_b32 v{r+i}, v{r+2+i}')
            self.pk('add', r, r, r + 2)
            for ctl in ctls:
                for i in range(2): self.dpp('v_add_f32', r + i, r + i, r + i, ctl)
            for i in range(2): a(f'v_mov_b32 v{r+2+i}, v{r+i}')
            for i in range(2): a(f'v_permlane16_swap_b32 v{r+i}, v{r+2+i}')
            self.pk('add', r, r, r + 2)
            a(f'v_cvt_pk_bf16_f32 v{r}, v{r}, v{r+1}')
        self.weave(lambda: q_slice(qs[2]), [wo1] * o['wowin'][1])
        vm.wait('kp')
        a(f'v_cmp_eq_u32 vcc, s{sTAG}, v{tb7+3}')
        a(f's_cmp_eq_u32 vcc_lo, 0')
        a(f's_cselect_b32 s{sLOC}, {o.get("local", 1)}, 0')
        self.pk('add', kp, kp, kp + 4); self.pk('add', kp + 2, kp + 2, kp + 6)
        red4(kp, ['row_ror:8'])
        a(f"""v_mov_b32 v{kp+1}, s{sTAG}
        s_mov_b32 exec_lo, 0xff
        s_mov_b32 exec_hi, 0xff""")
        kc = V.alloc(4)
        if CL[1]:
            self.bs2([(kp, 2, vXF, T2, 0)])
            a(f"""s_mov_b64 exec, -1
            v_mov_b32 v{kc}, v{kp}
            v_mov_b32 v{kc+1}, v{kp+1}
            v_add_u32 v{kc+2}, s{T2}, v{vXF}
            s_cbranch_scc1 L_PC2""")
        else:
            self.bs(kp, 2, vXF, rWS, T2, 0, 'sc1', count=False)
            a('s_mov_b64 exec, -1')
        a('s_barrier')
        self.push(vPW, T4, 16, vPB, 'L_PC2')
        self.stamp('c2pub')
        kf = av; zf = av + 16; num = pp; den = ee
        k2 = av + 8
        S(T0, '(hp*8 + w)*2048 + KIN')
        ld_k2 = lambda: [self.bl(k2 + 4 * q, 4, vL16, rWS, T0, q * 1024, 'sc1') for q in range(2)]
        def z_work():
            vm.wait('z')
            red4(zz, ['row_ror:4', 'row_ror:8'])
            self.dw('ds_write_b32', vT + 2, zz, 1)
            q_slice(100)
            self.stamp('c2w')
        ZP_ = o.get('zpre', 1)
        if ZP_: z_work()
        a(f"""s_cmp_lg_u32 s{sLOC}, 0
        s_cbranch_scc1 L_C2L""")
        l_ = list(lg.q)
        self.inbox(7, 2)
        lg.q = l_
        a('L_C2L:')
        self.try_load(ld_k2, [k2 + 1, k2 + 3, k2 + 5, k2 + 7], vT, None if ZP_ else z_work)
        for db in range(2):
            a(f'ds_write2_b32 v{vT+1}, v{k2+4*db}, v{k2+4*db+2} offset0:{64*db} offset1:{64*db+1}'); lg.issue()
        self.barrier()
        self.stamp('kvred')
        for fb in range(4): self.r128(zf + 4 * fb, vT + 3, fb * 32, ('zf', fb))
        for fb in range(4): self.r128(kf + 4 * fb, vPA, fb * 1024, ('kf', fb))
        for _ in range(o['wowin'][2]): wo1()
        S(T0, '(((r1*4 + (w & 3))*16 + hp)*2 + kh)*2048 + OF')
        va(vT + 4, [(0, 4, 16), (4, 1, 1024), (5, 1, 256)])
        for fb in range(4):
            lg.wait(('zf', fb))
            a(f'v_mfma_f32_32x32x16_bf16 {vr(den, 16)}, {vr(zf + 4*fb, 4)}, {vr(ph + 4*fb, 4)}, ' + ('0' if fb == 0 else vr(den, 16)))
        for fb in range(4):
            lg.wait(('kf', fb))
            a(f'v_mfma_f32_32x32x16_bf16 {vr(num, 16)}, {vr(kf + 4*fb, 4)}, {vr(ph + 4*fb, 4)}, ' + ('0' if fb == 0 else vr(num, 16)))
        self.round1(den)
        a(f'v_add_f32 v{den}, 0x358637bd, v{den}')
        self.round1(den)
        a(f'v_rcp_f32 v{den}, v{den}')
        for h in range(2):
            self.round_list([num + i for i in range(8 * h, 8 * h + 8)])
            for i in range(8 * h, 8 * h + 8, 2): self.pk('mul', num + i, num + i, den, bc=(1,))
            for i in range(4 * h, 4 * h + 4): a(f'v_cvt_pk_bf16_f32 v{vq+i}, v{num+2*i}, v{num+2*i+1}')
            self.bs(vq + 4 * h, 4, vT + 4, rWS, T0, 512 * h, 'sc1', 'os')
        self.stamp('ost')
        for r, n in ((fr, 8), (vv, 8), (vPW, 1), (vXF, 1), (vPA, 1), (vPB, 1), (vKP, 1), (accs, 96), (wphi, 8)):
            V.release(r, n)
        assert GS == 0
        vG16 = vL16
        vBa = V.alloc(4); xf = V.alloc(16)
        S(T4, 'kh*(65536 + 64) + WO_H0')
        va(vBa, [(5, 1, 2048), (4, 1, 512), (2, 2, 128), (3, 1, 64), (1, 1, 32), (4, 1, 16), (0, 1, 8)])
        a(f'v_xor_b32 v{vBa}, s{T4}, v{vBa}')
        for q, x_ in ((1, 16), (2, 64), (3, 80)): a(f'v_xor_b32 v{vBa+q}, {x_}, v{vBa}')
        assert WO_H1 == WO_H0 + 65536
        va(vT + 1, LCB)
        S(T2, ('((r1 & 1)*128 + (r1 >> 1))*4096' if TL else '((r1 >> 2)*2 + (r1 & 3)*64)*4096') + (' + ((hp >> 3)*4 + (hp & 3))*64 + ((hp >> 2) & 1)*4 + INB + 1024' if D2 else ' + (hp >> 1)*64 + (hp & 1)*4 + INB + 1024'))
        gaf = V.alloc(16); gp = V.alloc(16); gr = V.alloc(2); vGR = V.alloc(); cn = V.alloc(2)
        def expand(dst, t):
            for i in range(8):
                self.dpp('v_mul_u32_u24', dst + 2 * i, t, cn, f'row_newbcast:{i}')
                self.dpp('v_and_b32', dst + 2 * i + 1, t, cn + 1, f'row_newbcast:{i}')
        a(f"""v_mov_b32 v{cn}, 0x10000
        v_mov_b32 v{cn+1}, s{sMASK}""")
        for i in range(8): self.unpack(xf + 2 * i, xf + 2 * i + 1, xr + i)
        expand(gaf, tb7)
        S(T6, '(gtb*2 + kf)*32768 + OF')
        va(vGR, [(0, 4, 8)])
        vm.wait('os')
        self.barrier()
        self.push(vT + 1, T2, 16, vT + 2, 'L_PD')
        self.stamp('opub')
        def c_clean():
            if CL[1]:
                a("""s_mov_b32 exec_lo, 0xff
                s_mov_b32 exec_hi, 0xff""")
                self.bs(kc, 2, kc + 2, rWS, '0', 0, 'sc1')
                a('s_mov_b64 exec, -1')
            if CL[0]:
                S(T0, 'hp*128 + r1*8 + CFL')
                a(f"""s_cmp_lg_u32 s{sWAVE}, 0
                s_cbranch_scc1 L_NOCC
                v_mov_b32 v{cf}, s{sTAG}
                s_mov_b64 exec, 1""")
                self.bs(cf, 1, vZ, rWS, T0, 0, 'sc1', count=False)
                a("""s_mov_b64 exec, -1
                L_NOCC:""")
        if o.get('ccat', 1) == 0: c_clean()
        V.release(vq, 8)
        late_wo = bool(wl)
        while wl: wo_dma(wl.pop(0))
        V.release(vWo)
        MS = o.get('msum', 1)
        def d_work():
            for k in range(2):
                for i in range(8): a(f'v_mov_b32_dpp v{gp + 8*k + i}, v{tb7 + 1 + k} row_newbcast:{i} row_mask:0xf bank_mask:0xf')
            if MS:
                a(f"""v_and_b32 v{vT}, 3, v{vL}
                v_cmp_eq_u32 vcc, 1, v{vT}
                v_cmp_eq_u32 {sr(sCMP, 2)}, 0, v{vT}
                v_mov_b32 v{vT+1}, 0x3f803f80""")
                for i in range(8): a(f'v_cndmask_b32 v{gp+i}, v{gp+8+i}, v{gp+i}, vcc')
                for i in range(8): a(f'v_cndmask_b32 v{gp+i}, v{gp+i}, v{vT+1}, {sr(sCMP, 2)}')
            if o.get('stouch', TL):
                S(T2, '(rt*16 + cb)*2048 + w*256 + STAT')
                a(f'v_lshlrev_b32 v{gr}, 7, v{vL}')
                a('s_mov_b64 exec, 3')
                self.bl(gr, 1, gr, rWS, T2, 0, '')
                a('s_mov_b64 exec, -1')
            if late_wo or o.get('stouch', TL): vm.wait_all()
            self.stamp('dw')
        AD2 = o['AD2']
        LK2 = o.get('LK2', 4); NB2 = LK2 + 1
        accA = V.alloc(16); accB = V.alloc(16); Ar = V.alloc(4 * AD2); Br = V.alloc(4 * NB2)
        def b2_read(n, q):
            st_, c = divmod(n, 4)
            self.tr(Br + 4 * (n % NB2) + 2 * q, vBa + (c ^ 2), st_ * 4096 + q * 1024, ('B', n))
        def a2_load(s):
            if s % 2 == 0: S(T7, '(rot ^ n)*2048 + T6' if D2 else '((rot + n) & 15)*2048 + T6', n=(s // 2) & o.get('a2mask', 15))
            self.bl(Ar + 4 * (s % AD2), 4, vL16, rWS, T7, (s % 2) * 1024, o.get('a2mod', 'sc1'), ('A', s))
        self.inbox(2, 2, [0] if D2 else None, work=d_work)
        a('s_barrier')
        self.stamp('ook')
        if o.get('prio2', 1):
            a(f"""s_cmp_lt_u32 s{sWAVE}, 4
            s_cbranch_scc1 L_P2
            s_setprio {o.get('prio2', 1)}
            L_P2:""")
        nx2 = 0
        def a2_more(lim):
            nonlocal nx2
            while nx2 < min(lim, 32):
                if nx2 == 16 and D2:
                    a(f"""s_cmp_eq_u32 s{sPL + 1}, s{sTAG}
                    s_cbranch_scc1 L_D2""")
                    l_ = list(lg.q)
                    self.inbox(2, 2, [1])
                    lg.q = l_
                    a("""L_D2:
                    s_barrier""")
                a2_load(nx2); nx2 += 1
                if nx2 == 32:
                    ld_gr()
                    if o.get('ccat', 1) == 1: c_clean()
        S(T5, 'rt*128 + GR')
        ld_gr = lambda: self.bl(gr, 2, vGR, rWS, T5, 0, 'sc1', 'gr')
        a2_more(2)
        for n in range(LK2):
            for q in range(2): b2_read(n, q)
        a2_more(o.get('A20', 4))
        for n in range(64):
            st_, c = divmod(n, 4)
            if n % o.get('wev2', 1) == 0: lg.wait(('B', min(n + o.get('wev2', 1) - 1, 63)))
            for th in range(2):
                if c == 0: vm.wait(('A', 2 * st_ + (th if st_ == 0 or not o.get('vw2', 1) else 1)))
                d = (accB, accA)[c >> 1] + 8 * (c & 1) + 4 * th
                a(f'v_mfma_f32_16x16x32_bf16 {vr(d, 4)}, {vr(Br + 4*(n % NB2), 4)}, {vr(Ar + 4*((2*st_ + th) % AD2), 4)}, ' + ('0' if st_ == 0 else vr(d, 4)))
                if n + LK2 < 64: b2_read(n + LK2, th)
            if n == o.get('prio2n', 18): a('s_setprio 0')
            if c in o.get('a2at', (0, 1)): a2_more(min(nx2 + 1, 2 * st_ + AD2))
            if c == 3 and AD2 == 4: a2_more(2 * st_ + 6)
        self.stamp('gemm2')
        if o.get('prio2', 1): a('s_setprio 0')
        S(T0, 'w*4096')
        a(f'v_add_u32 v{vT}, s{T0}, v{vG16}')
        for q in range(4): self.dw('ds_write_b128', vT, accB + 4 * q, 4, L_EXCH - GS + q * 1024)
        for i in range(8): a(f'v_permlane16_swap_b32 v{accA + 8*(i >> 2) + (i & 3)}, v{accA + 8*(i >> 2) + 4 + (i & 3)}')
        S(T0, '(w ^ 4)*4096'); va(vT + 1, [(0, 4, 16), (4, 1, 1024), (5, 1, 512)], T0)
        S(T0, 'kh*2048 + (w & 3)*512 + L_SP'); va(vT + 2, [(0, 5, 16), (5, 1, 8)], T0)
        S(T0, 'kh*64 + L_TB'); va(vT + 3, [(0, 3, 4), (5, 1, 32)], T0)
        vSG = V.alloc()
        S(T6, 'rt*32768 + w*256 + STAT'); va(vSG, [(0, 4, 16), (4, 2, 2048)])
        sm = Br; one = Br + 4
        a(f'v_mov_b32 v{one}, 0x3f803f80')
        fd = list(o['fdma']); assert sum(fd) == len(fq)
        self.stamp('exw')
        self.barrier()
        self.stamp('ex1')
        for q in range(4): self.r128(accB + 4 * q, vT + 1, L_EXCH - GS + (q >> 1) * 2048 + (q & 1) * 256, ('ex', q))
        ffn_dma(fd[0], T1)
        for h in range(2):
            for q in (2 * h, 2 * h + 1):
                lg.wait(('ex', q))
                self.pk('add', accA + 4 * q, accA + 4 * q, accB + 4 * q); self.pk('add', accA + 4 * q + 2, accA + 4 * q + 2, accB + 4 * q + 2)
            rg = range(8 * h, 8 * h + 8)
            self.round_list([accA + i for i in rg])
            for i in range(8 * h, 8 * h + 8, 2): self.pk('mul', accA + i, accA + i, gaf + i)
            self.round_list([accA + i for i in rg])
            for i in range(8 * h, 8 * h + 8, 2): self.pk('add', accA + i, accA + i, xf + i)
            for i in range(4 * h, 4 * h + 4): a(f'v_cvt_pk_bf16_f32 v{xr+i}, v{accA+2*i}, v{accA+2*i+1}')
        self.stamp('x1c')
        if MS:
            for t in range(2): a(f'v_mfma_f32_32x32x16_bf16 {vr(accB, 16)}, {vr(gp + 4*t, 4)}, {vr(xr + 4*t, 4)}, ' + ('0' if t == 0 else vr(accB, 16)))
            for i in range(8): a(f'v_dot2_f32_bf16 v{sm + (i & 1)}, v{xr+i}, v{xr+i}, ' + ('0' if i < 2 else f'v{sm + (i & 1)}'))
            a(f"""v_add_f32 v{sm+2}, v{sm}, v{sm+1}
            v_add_f32 v{sm}, v{sm}, v{sm+1}
            v_permlane32_swap_b32 v{sm}, v{sm+2}
            s_mov_b32 exec_lo, 0
            v_add_f32 v{accB}, v{sm}, v{sm+2}
            v_mov_b32 v{accB+1}, v{accB+2}
            s_mov_b32 exec_lo, -1""")
            self.dw('ds_write_b64', vT + 2, accB, 2)
        else:
            for i in range(8):
                for d, b in ((sm, one), (sm + 2, xr + i), (sm + 1, gp + i), (sm + 3, gp + 8 + i)):
                    a(f'v_dot2_f32_bf16 v{d}, v{xr+i}, v{b}, ' + ('0' if i == 0 else f'v{d}'))
            a(f"""v_permlane32_swap_b32 v{sm}, v{sm+2}
            v_permlane32_swap_b32 v{sm+1}, v{sm+3}""")
            self.pk('add', sm, sm, sm + 2)
            self.dw('ds_write_b64', vT + 2, sm, 2)
        for q in range(4): self.dw('ds_write_b32', vT + 3, tb4 + q, 1, 128 * q)
        a(f'v_add_u32 v{vT}, {L_SP}, v{vL16}')
        va(vT + 1, LCB)
        S(T0, '(rt*16 + cb)*2048 + STAT')
        S(T3, ('((rt & 1)*128 + (rt >> 1))*4096' if TL else '((rt & 3)*64 + (rt >> 2)*2)*4096') + ' + (cb >> 1)*64 + (cb & 1)*4 + INB + 1536')
        self.barrier()
        self.stamp('x1st')
        a(f"""s_cmp_lg_u32 s{sWAVE}, 0
        s_cbranch_scc1 L_PE""")
        for q in range(4): a(f'ds_read_b128 {vr(accB + 4*q, 4)}, v{vT} offset:{(q & 1) * 2048 + (q >> 1) * 1024}')
        for h in range(2):
            b = accB + 8 * h
            a(f's_waitcnt lgkmcnt({2 - 2*h})')
            self.pk('add', b, b, b + 4); self.pk('add', b + 2, b + 2, b + 6)
            a(f"""v_add_f32 v{b+1}, v{b+1}, v{b+3}
            v_mov_b32 v{b+3}, s{sTAG}""")
        if TL:
            self.bs2([(accB + 8 * h, 4, vL16, T0, 1024 * h) for h in range(2)])
            a('s_cbranch_scc1 L_PE')
        else:
            for h in range(2): self.bs(accB + 8 * h, 4, vL16, rWS, T0, 1024 * h, 'sc1', count=False)
        a('s_mov_b64 exec, 0xffff')
        self.bs(accB + 3, 1, vT + 1, rWS, T3, 0, 'sc1', count=False)
        a("""s_mov_b64 exec, -1
        L_PE:""")
        self.stamp('x1pub')
        if o.get('ccat', 1) == 2: c_clean()
        V.release(accA, 16); V.release(accB, 16); V.release(Ar, 4 * AD2); V.release(Br, 4 * NB2); V.release(vBa, 4); V.release(xf, 16); V.release(gaf, 16); V.release(gp, 16)
        x1 = V.alloc(16); hh = V.alloc(16); mf = V.alloc(32); sg = V.alloc(16); op = V.alloc(8)
        st = V.alloc(2); vRid = V.alloc(); ck = V.alloc(4); vOT = V.alloc()
        ct = V.alloc(12, 4)
        def e_work():
            S(T3, '(w & 3)*(32*144) + kh*64'); va(vOT, [(0, 5, 144), (5, 1, 32)], T3)
            for q in range(2): self.dw('ds_write_b128', vOT, xr + 4 * q, 4, L_XT + 16 * q)
            a(f'v_add_u32 v{vOT}, {L_OT}, v{vOT}')
            S(T2, '4094 - (rt*8 + w)*32'); va(vRid, [(0, 4, 2)]); a(f'v_sub_u32 v{vRid}, s{T2}, v{vRid}')
            S(T2, 'w*128 + L_ST2'); va(vT + 4, [(0, 4, 8)], T2)
            S(T2, '(w & 3)*256 + L_ST2'); va(vT + 6, [(0, 5, 8)], T2)
            va(vT + 7, [(0, 3, 8)], None, L_K1)
            self.finish_load('gr', ld_gr, [gr + 1])
            for ctl in ('quad_perm:[1,0,3,2]', 'quad_perm:[2,3,0,1]', 'row_half_mirror', 'row_ror:8'): self.dpp('v_add_f32', gr, gr, gr, ctl)
            a(f"""s_cmp_lg_u32 s{sWAVE}, 1
            s_cbranch_scc1 L_NOCT""")
            va(vT + 1, [(0, 4, 8)], None, L_TB)
            a(f"""ds_read_b64 {vr(ct + 2, 2)}, v{vT+1}
            ds_read_b64 {vr(ct + 6, 2)}, v{vT+1} offset:128
            ds_read_b64 {vr(ct + 8, 2)}, v{vT+1} offset:384
            s_waitcnt lgkmcnt(0)""")
            for b in (ct, ct + 4):
                self.unpack(b, b + 1, b + 2); self.unpack(b + 2, b + 3, b + 3)
            a('L_NOCT:')
        def f_pre(part):
            if part == 0:
                a(f"""s_cmp_lt_u32 s{sWAVE}, 4
                s_cbranch_scc1 L_NOST""")
                S(T0, '(w - 4)*4096 + L_GU')
                a(f'v_add_u32 v{vT}, s{T0}, v{vL16}')
                a(f'v_add_u32 v{vT+3}, {L_DN - L_GU}, v{vT}')
                for n, (m, i) in enumerate(freg):
                    for back in range(2):
                        self.dw('ds_write_b128', vT if m < 2 else vT + 3, big + 8 * n + 4 * back, 4, f_lds(m, i) - (L_GU if m < 2 else L_DN) + (1 - back) * 16384)
                a('L_NOST:')
                return
            for i in range(8): self.unpack(x1 + 2 * i, x1 + 2 * i + 1, xr + i)
            expand(mf, tb4); expand(mf + 16, tb4 + 1)
        if TL:
            a(f"""s_cmp_lg_u32 s{sLOC}, 0
            s_cbranch_scc1 L_ELOC""")
            self.inbox(3, 2)
            a("""s_barrier
            L_ELOC:""")
        else:
            ffn_dma(fd[1])
            self.inbox(3, 2, work=lambda: (e_work(), f_pre(0)))
            a('s_barrier')
        self.stamp('x1ok')
        def ld_sg():
            for q in range(4):
                S(T0, 'T6 + q', q=q * 8192)
                self.bl(sg + 4 * q, 4, vSG, rWS, T0, 0, 'sc1')
        self.try_load(ld_sg, [sg + 3, sg + 7, sg + 11, sg + 15], vT, e_work if TL else lambda: f_pre(1))
        V.release(vSG)
        self.stamp('x1ld')
        if o.get('htouch', 1):
            S(T2, '(fs*4 + kq)*2048 + w*256 + HGR')
            vDum = V.alloc()
            a(f'v_lshlrev_b32 v{vDum}, 7, v{vL}')
            a('s_mov_b64 exec, 3')
            self.bl(vDum, 1, vDum, rWS, T2, 0, '')
            a('s_mov_b64 exec, -1')
        ffn_dma(fd[2], T2)
        A_, B_, C_, U_ = sg, sg + 1, sg + 2, sg + 3
        self.pk('add', sg, sg, sg + 4); self.pk('add', sg + 8, sg + 8, sg + 12)
        a(f"""v_add_f32 v{C_}, v{C_}, v{sg+6}
        v_add_f32 v{sg+10}, v{sg+10}, v{sg+14}""")
        self.pk('add', sg, sg, sg + 8)
        a(f"""v_add_f32 v{C_}, v{C_}, v{sg+10}
        v_mov_b32 v{U_}, v{B_}
        v_permlane32_swap_b32 v{A_}, v{C_}
        v_permlane32_swap_b32 v{B_}, v{U_}
        v_add_f32 v{A_}, v{A_}, v{C_}
        v_add_f32 v{B_}, v{B_}, v{U_}
        v_permlane16_swap_b32 v{A_}, v{B_}
        v_add_f32 v{U_}, v{A_}, v{B_}
        v_add_f32 v{A_}, v{A_}, v{B_}
        v_permlane16_swap_b32 v{A_}, v{U_}
        v_mul_f32 v{C_}, 0x3a800000, v{A_}
        v_mul_f32 v{A_}, 0x3a800000, v{A_}
        v_permlane32_swap_b32 v{A_}, v{C_}""")
        self.stat_math(A_, C_, st, st + 1)
        S(T0, 'w*8 + L_K1')
        a(f"""v_rcp_f32 v{st+1}, v{st+1}
        v_fma_f32 v{U_}, -v{st}, v{gr}, v{U_}
        v_mov_b32 v{vT+1}, s{T0}
        v_mul_f32 v{U_}, v{U_}, v{st+1}""")
        self.dw('ds_write_b64', vT + 4, st, 2)
        a(f"""s_movk_i32 s{T0}, 0xfff
        v_ashrrev_i32 v{A_}, 31, v{U_}
        v_or_b32 v{A_}, 0x80000000, v{A_}
        v_xor_b32 v{A_}, v{A_}, v{U_}
        v_bfi_b32 v{ck}, s{T0}, v{vRid}, v{A_}""")
        def top2(ctls, first):
            for n, ctl in enumerate(ctls):
                if n == 0 and first:
                    self.dpp('v_min_u32', ck + 1, ck, ck, ctl); self.dpp('v_max_u32', ck, ck, ck, ctl)
                    continue
                self.dpp('v_min_u32', ck + 2, ck, ck, ctl); self.dpp('v_max_u32', ck + 1, ck + 1, ck + 1, ctl); self.dpp('v_max_u32', ck, ck, ck, ctl)
                a(f'v_max_u32 v{ck+1}, v{ck+1}, v{ck+2}')
        top2(('row_ror:8', 'row_ror:4', 'row_ror:2', 'row_ror:1'), True)
        self.dw('ds_write_b64', vT + 1, ck, 2)
        va(vT + 2, [(0, 1, 128 * 4096), (1, 3, 4096)] if TL else [(0, 2, 64 * 4096), (2, 2, 2 * 4096)])
        S(T1, ('cb*32768' if TL else '((cb & 7)*8 + (cb >> 3))*4096') + ' + (rt >> 1)*64 + (rt & 1)*16 + INB + 2560')
        self.barrier()
        self.stamp('ln2')
        self.dr('ds_read_b64', ck, 2, vT + 7, 0, 'k'); self.dr('ds_read_b64', st, 2, vT + 6, 0, 's')
        lg.wait('k')
        top2(('quad_perm:[1,0,3,2]', 'quad_perm:[2,3,0,1]', 'row_half_mirror'), False)
        a(f"""v_or_b32 v{ck+2}, 1, v{ck+1}
        v_mov_b32 v{ck+1}, s{sTAG}
        v_mov_b32 v{ck+3}, s{sTAG}
        s_cmp_lg_u32 s{sWAVE}, 0
        s_cbranch_scc1 L_NOF
        s_mov_b64 exec, 0xffff""")
        self.bs(ck, 4, vT + 2, rWS, T1, 0, 'sc1', count=False)
        a("""s_mov_b64 exec, -1
        L_NOF:""")
        self.stamp('Fpub')
        a(f"""s_cmp_lg_u32 s{sWAVE}, 1
        s_cbranch_scc1 L_NOC
        v_and_b32 v{vT}, 16, v{vL}
        v_cmp_eq_u32 vcc, 0, v{vT}
        v_cndmask_b32 v{vT}, v{ck+2}, v{ck}, vcc
        v_not_b32 v{vT}, v{vT}
        v_bfe_u32 v{vT}, v{vT}, 1, 7
        v_lshlrev_b32 v{vT+2}, 3, v{vT}
        v_mul_u32_u24 v{vT}, 144, v{vT}
        v_add_u32 v{vT+2}, {L_ST2}, v{vT+2}""")
        va(vT + 1, [(0, 4, 8)])
        cx, cs, ch = sg, sg + 4, sg + 8
        a(f"""v_add_u32 v{vT}, v{vT}, v{vT+1}
        ds_read_b64 {vr(cs, 2)}, v{vT+2}
        ds_read_b64 {vr(cx, 2)}, v{vT} offset:{L_XT}""")
        va(vT + 2, [(0, 4, 16), (4, 1, 16384), (5, 1, 4096)])
        va(vT + 3, [(4, 1, 16384)])
        S(T0, 'rt*32768 + cb*256 + CAND'); S(T3, 'rt*32768 + cb*8 + 8192 + CAND')
        a(f"""v_mov_b32 v{cx+3}, s{sTAG}
        s_waitcnt lgkmcnt(0)""")
        self.unpack(ch, ch + 1, cx); self.unpack(ch + 2, ch + 3, cx + 1)
        for i in (0, 2): self.pk('add', ch + i, ch + i, cs, bc=(1,), neg=(1,))
        self.round_list([ch + i for i in range(4)])
        for i in (0, 2): self.pk('mul', ch + i, ch + i, cs + 1, bc=(1,))
        self.round_list([ch + i for i in range(4)])
        for i in (0, 2): self.pk('mul', ch + i, ch + i, ct + 4 + i)
        self.round_list([ch + i for i in range(4)])
        for i in (0, 2): self.pk('add', ch + i, ch + i, ct + i)
        a(f"""v_mov_b32 v{cx+2}, v{cx+1}
        v_mov_b32 v{cx+1}, s{sTAG}
        s_mov_b32 exec_hi, 0
        v_cvt_pk_bf16_f32 v{cx}, v{ch}, v{ch+1}
        v_cvt_pk_bf16_f32 v{cx+2}, v{ch+2}, v{ch+3}
        s_mov_b32 exec_hi, -1
        v_dot2_f32_bf16 v{cs}, v{cx}, v{ct+8}, 0
        v_mov_b32 v{cs+1}, s{sTAG}
        v_dot2_f32_bf16 v{cs}, v{cx+2}, v{ct+9}, v{cs}""")
        self.bs(cx, 4, vT + 2, rWS, T0, 0, 'sc1', count=False)
        for ctl in ('quad_perm:[1,0,3,2]', 'quad_perm:[2,3,0,1]', 'row_half_mirror', 'row_ror:8'): self.dpp('v_add_f32', cs, cs, cs, ctl)
        a('s_mov_b64 exec, 0x10001')
        self.bs(cs, 2, vT + 3, rWS, T3, 0, 'sc1', count=False)
        a("""s_mov_b64 exec, -1
        L_NOC:""")
        V.release(ct, 12)
        def ln2_tile():
            for i in E2: self.pk('add', hh + i, x1 + i, st, bc=(1,), neg=(1,))
            self.round_list([hh + i for i in range(16)])
            for i in E2: self.pk('mul', hh + i, hh + i, st + 1, bc=(1,))
            self.round_list([hh + i for i in range(16)])
            for i in E2: self.pk('mul', hh + i, hh + i, mf + 16 + i)
            self.round_list([hh + i for i in range(16)])
            for i in E2: self.pk('add', hh + i, hh + i, mf + i)
            self.round_list([hh + i for i in range(16)])
        lg.wait('s')
        self.stamp('cand')
        if o.get('ccat', 1) == 3: c_clean()
        V.release(kc, 4); V.release(cf)
        ffn_dma(fd[3])
        uu = V.alloc(16); vGr = V.alloc(); vDr = V.alloc(); vXs = V.alloc()
        def out_calc():
            expand(mf, tb4 + 2)
            for i in E2: self.pk('mul', hh + i, hh + i, mf + i)
            self.round_list([hh + i for i in range(16)])
            for i in E2: self.pk('add', hh + i, hh + i, x1 + i)
            for i in range(8): a(f'v_cvt_pk_bf16_f32 v{op+i}, v{hh+2*i}, v{hh+2*i+1}')
            for q in range(2): self.dw('ds_write_b128', vOT, op + 4 * q, 4, 16 * q)
            S(T3, 'w*(16*144) + L_OT'); va(vOT, [(3, 3, 144), (0, 3, 16)], T3)
        oc = o.get('ocat', 2 if TL else 1); l2 = o.get('l2at', 1 if TL else 0)
        def f_work():
            if TL: f_pre(0); f_pre(1)
            if l2 == 0: ln2_tile()
            if oc == 0: out_calc()
            S(T0, '(w >> 2)*32768 + (w & 3)*32 + L_GU')
            va(vGr, [(4, 2, 8192), (2, 2, 128), (3, 2, 32), (0, 2, 8)]); a(f'v_xor_b32 v{vGr}, s{T0}, v{vGr}')
            S(T0, 'w*64')
            va(vDr, [(2, 1, 512), (3, 1, 4096), (5, 1, 2048), (2, 2, 64), (4, 1, 32), (0, 2, 8)])
            a(f'v_xor_b32 v{vDr}, s{T0}, v{vDr}'); a(f'v_add_u32 v{vDr}, {L_DN}, v{vDr}')
            va(vXs, [(0, 3, 16), (4, 2, 128)], None, L_XS)
            S(T0, 'w*16 + L_K2'); a(f'v_mov_b32 v{vT}, s{T0}')
            va(vT + 1, [(0, 3, 16)], None, L_K2)
            a(f'v_and_b32 v{vT+4}, 8, v{vL}')
            a(f'v_cmp_eq_u32 {sr(sCMP, 2)}, 0, v{vT+4}')
            self.stamp('oc')
        self.inbox(5, 8, (1, 3, 5, 7), f_work)
        P = sPL
        a(f"""s_min_u32 s{P+1}, s{P}, s{P+4}
        s_max_u32 s{P}, s{P}, s{P+4}
        s_max_u32 s{P+3}, s{P+2}, s{P+6}
        s_min_u32 s{P+2}, s{P+2}, s{P+6}
        s_max_u32 s{P+4}, s{P+1}, s{P+3}
        s_min_u32 s{P+1}, s{P+1}, s{P+3}
        v_mov_b32 v{uu}, s{P}
        v_mov_b32 v{uu+3}, s{P+2}
        v_mov_b32 v{uu+1}, s{P+4}
        v_mov_b32 v{uu+2}, s{P+1}""")
        self.dw('ds_write_b128', vT, uu, 4)
        self.stamp('F2p')
        V.release(big, 8 * len(freg)); V.release(gr, 2); V.release(vGR); V.release(vRid)
        ffn = V.alloc(48); ga_ = V.alloc(16); gb_ = V.alloc(16)
        vm.wait('gu')
        self.barrier()
        self.stamp('F2')
        def gu_frags():
            for s in range(8):
                self.tr(ffn + 4 * s, vGr, s * 1024); self.tr(ffn + 4 * s + 2, vGr, s * 1024 + 512)
        a(f"""s_cmp_lt_u32 s{sWAVE}, 4
        s_cbranch_scc1 L_CSEL""")
        fq0, vq0 = list(fq), list(vm.q)
        if not o.get('f4late', 1): ffn_dma(fd[4])
        gu_frags()
        if l2 == 1: ln2_tile()
        if oc == 1: out_calc()
        if o.get('f4late', 1): ffn_dma(fd[4])
        a("""s_branch L_CSELD
        L_CSEL:""")
        lg.reset(); fq[:] = fq0; vm.q = vq0
        self.r128(uu, vT + 1)
        S(T0, 'w*512 + L_XS'); a(f'v_add_u32 v{vT+2}, s{T0}, v{vL8}')
        S(T0, 'w*4 + L_K3'); a(f'v_mov_b32 v{vT+3}, s{T0}')
        lg.wait_all()
        c4 = uu + 4
        for n, ctl in enumerate(('quad_perm:[1,0,3,2]', 'quad_perm:[2,3,0,1]', 'row_half_mirror')):
            for i in range(4): self.dpp('v_max_u32', c4 + i, uu + 3 - i, uu + i, ctl)
            if n == 2: break
            a(f"""v_max_u32 v{c4+4}, v{c4}, v{c4+2}
            v_max_u32 v{c4+5}, v{c4+1}, v{c4+3}
            v_min_u32 v{c4+6}, v{c4}, v{c4+2}
            v_min_u32 v{c4+7}, v{c4+1}, v{c4+3}
            v_max_u32 v{uu}, v{c4+4}, v{c4+5}
            v_min_u32 v{uu+1}, v{c4+4}, v{c4+5}
            v_max_u32 v{uu+2}, v{c4+6}, v{c4+7}
            v_min_u32 v{uu+3}, v{c4+6}, v{c4+7}""")
        for i in range(4): a(f'v_readfirstlane_b32 s{P+i}, v{c4+i}')
        a(f"""s_bitcmp1_b32 s{sWAVE}, 0
        s_cselect_b32 s{P}, s{P+1}, s{P}
        s_cselect_b32 s{P+2}, s{P+3}, s{P+2}
        s_bitcmp1_b32 s{sWAVE}, 1
        s_cselect_b32 s{P}, s{P+2}, s{P}
        s_and_b32 s{T2}, s{P}, 4095""")
        S(T0, '((15 - (T2 >> 8))*2 + (T2 & 1))*16384 + CAND'); S(T1, 'kq*1024 + T0'); S(T0, 'T0 + 8192')
        va(vT + 6, [(0, 4, 8)])
        def sel_work():
            self.stamp('sel')
            ffn_dma(fd[4], T3)
            gu_frags()
            if l2 == 1: ln2_tile()
            if oc == 1: out_calc()
            S(T2, 'T2*4 + w')
        self.try_load(lambda: (self.bl(uu + 4, 2, vT + 6, rWS, T0, 0, 'sc1'), self.bl(uu, 4, vL16, rWS, T1, 0, 'sc1')), [uu + 1, uu + 3, uu + 5], vT + 4, sel_work)
        a(f'ds_write2_b32 v{vT+2}, v{uu}, v{uu+2} offset0:0 offset1:1'); lg.issue()
        for ctl in ('quad_perm:[1,0,3,2]', 'quad_perm:[2,3,0,1]', 'row_half_mirror', 'row_ror:8'): self.dpp('v_add_f32', uu + 4, uu + 4, uu + 4, ctl)
        a(f"""v_cvt_pk_bf16_f32 v{uu+4}, 0, v{uu+4}
        v_ashrrev_i32 v{uu+5}, 31, v{uu+4}
        v_or_b32 v{uu+5}, 0x80000000, v{uu+5}
        v_xor_b32 v{uu+4}, v{uu+4}, v{uu+5}
        v_and_b32 v{uu+4}, s{sMASK}, v{uu+4}
        v_or_b32 v{uu+4}, s{T2}, v{uu+4}""")
        self.dw('ds_write_b32', vT + 3, uu + 4, 1)
        a('L_CSELD:')
        V.release(vFG); V.release(vFD)
        a(f'v_mov_b32 v{vT}, {L_K3}')
        va(vT + 4, [(0, 4, 16), (5, 1, 8)])
        S(T1, 'fs*8192 + HGR'); S(T7, '(kq*8 + w)*256 + T1')
        self.barrier()
        self.stamp('xsel')
        self.r128(uu, vT)
        lg.wait_all()
        a(f"""v_max_u32 v{uu+4}, v{uu}, v{uu+1}
        v_max_u32 v{uu+5}, v{uu+2}, v{uu+3}
        v_min_u32 v{uu+6}, v{uu}, v{uu+1}
        v_min_u32 v{uu+7}, v{uu+2}, v{uu+3}
        v_min_u32 v{uu+1}, v{uu+4}, v{uu+5}
        v_max_u32 v{uu}, v{uu+4}, v{uu+5}
        v_max3_u32 v{uu+1}, v{uu+1}, v{uu+6}, v{uu+7}
        v_cndmask_b32 v{vT}, v{uu+1}, v{uu}, {sr(sCMP, 2)}
        v_readfirstlane_b32 s{sK1}, v{uu}
        v_and_b32 v{vT}, 3, v{vT}
        v_readfirstlane_b32 s{sK2}, v{uu+1}
        v_lshl_add_u32 v{vT}, v{vT}, 9, v{vXs}""")
        self.r128(uu + 4, vT)
        if oc < 2:
            for q in range(2): self.r128(op + 4 * q, vOT, q * 8 * 144, 'ot')
        a(f"""s_bfe_u32 s{sROW0}, s{sK1}, {3 | (11 << 16)}
        s_bfe_u32 s{sROW1}, s{sK2}, {3 | (11 << 16)}
        s_sub_u32 s{sROW0}, 2047, s{sROW0}
        s_sub_u32 s{sROW1}, 2047, s{sROW1}
        s_waitcnt lgkmcnt({2 if oc < 2 else 0})""")
        gd = [ga_ + 4 * i for i in range(4)] + [gb_ + 4 * i for i in range(4)]
        for s in range(8):
            a(f'v_mfma_f32_16x16x32_bf16 {vr(gd[s], 4)}, {vr(uu + 4, 4)}, {vr(ffn + 4*s, 4)}, 0')
        p0, p1 = uu, uu + 2
        hk = V.alloc(4)
        for p, b in ((p0, 0), (p1, 4)):
            a(f'v_add_f32 v{p}, v{gd[b]}, v{gd[b+1]+1}')
            a(f'v_add_f32 v{p+1}, v{gd[b+2]+2}, v{gd[b+3]+3}')
        a(f"""v_add_f32 v{p0}, v{p0}, v{p0+1}
        v_add_f32 v{p1}, v{p1}, v{p1+1}
        v_mov_b32 v{p0+1}, s{sTAG}
        v_permlane16_swap_b32 v{p1}, v{p1+1}
        s_cmp_ge_u32 s{sJ}, 28
        s_cbranch_scc1 L_NOHP
        v_add_f32 v{p0}, v{p0}, v{p1+1}
        s_mov_b32 exec_lo, 0xffff
        s_mov_b32 exec_hi, 0xffff""")
        self.bs2([(p0, 2, vT + 4, T7, 0)])
        a(f"""s_mov_b64 exec, -1
        L_NOHP:
        v_mov_b32 v{hk}, v{p0}
        v_mov_b32 v{hk+1}, v{p0+1}
        v_add_u32 v{hk+2}, s{T7}, v{vT+4}""")
        self.stamp('Hpub')
        vOr = V.alloc(); vOa = V.alloc()
        def out_store():
            S(T0, 'rt*128 + w*16'); va(vOr, [(3, 3, 1)], T0)
            S(T2, 'T0*2048 + cb*128'); S(T3, 'T2 + 16384')
            va(vOa, [(3, 3, 2048), (0, 3, 16)])
            for q in range(2):
                if q: a(f'v_add_u32 v{vOr}, 8, v{vOr}')
                a(f"""v_cmp_ne_u32 vcc, s{sROW0}, v{vOr}
                v_cmp_ne_u32 {sr(sCMP, 2)}, s{sROW1}, v{vOr}
                s_and_b64 exec, vcc, {sr(sCMP, 2)}""")
                self.bs(op + 4 * q, 4, vOa, rOUT, (T2, T3)[q], 0, o.get('outmod', 'sc1'), count=False)
                a('s_mov_b64 exec, -1')
        lg.wait('ot')
        if o.get('outat', 1) == 0: assert oc < 2; out_store()
        fz = V.alloc(4)
        sFR, sFK, sFC0 = T4, T5, T6
        a(f"""s_bitcmp1_b32 s{sX if TL else sRT}, {1 if TL else 2}
        s_cselect_b32 s{sFR}, s{sROW1}, s{sROW0}
        s_cselect_b32 s{sFK}, s{sK2}, s{sK1}
        s_cmp_lg_u32 s{sWAVE}, 7
        s_cbranch_scc1 L_NOFZ
        s_cmp_lg_u32 s2, 0
        s_cbranch_scc1 L_NONON
        v_mov_b32 v{vT+2}, s{sTAG}
        s_mov_b64 exec, 1""")
        self.bs(vT + 2, 1, vZ, rWS, '0', 0, 'sc1', count=False)
        a(f"""s_mov_b64 exec, -1
        L_NONON:""")
        S(sFC0, '(x >> 2)*2 + (x & 1)' if TL else '(rt >> 3)*2 + (rt & 1)')
        S(T7, '(cb*8 + x)*(56*128) + GGR' if TL else '(cb*8 + (rt >> 2)*2 + (rt & 1))*(56*128) + GGR')
        S(sU, 'T4*2048 + cb*128 + T6*32')
        va(vT + 6, [(0, 3, 4)])
        S(T0, 'T6*32 + L_GB'); a(f'v_add_u32 v{vT+1}, s{T0}, v{vT+6}')
        a(f'ds_read_b32 v{fz+2}, v{vT+1}')
        S(sK1, '((T4 >> 7)*2 + ((T5 >> 2) & 1))*16384 + cb*256 + T6*64 + CAND'); S(sK2, 'k1 + 4096')
        va(vT + 7, [(0, 3, 8)])
        ld_fz = lambda: (self.bl(st, 2, vT + 7, rWS, sK1, 0, 'sc1'), self.bl(fz, 2, vT + 7, rWS, sK2, 0, 'sc1'))
        q_ = list(vm.q); ld_fz(); vm.q = q_
        a(f"""s_and_b32 s{T0}, s{sFK}, s{sMASK}
        s_ashr_i32 s{T2}, s{T0}, 31
        s_andn2_b32 s{T2}, 0x7fff0000, s{T2}
        s_or_b32 s{T2}, s{T2}, 0x80000000
        s_xor_b32 s{T0}, s{T0}, s{T2}
        v_mov_b32 v{fz+3}, s{T0}
        v_mul_f32 v{fz+3}, s{sL2E}, v{fz+3}
        v_exp_f32 v{fz+3}, -v{fz+3}
        v_add_f32 v{fz+3}, 1.0, v{fz+3}
        v_rcp_f32 v{fz+3}, v{fz+3}""")
        self.round1(fz + 3)
        a(f"""L_NOFZ:
        s_cmp_lt_u32 s{sJ}, 28
        s_cbranch_scc1 L_HSEC""")
        if oc == 2:
            out_calc()
            self.barrier()
            for q in range(2): self.r128(op + 4 * q, vOT, q * 8 * 144)
            lg.wait_all()
        a("""s_branch L_GSEC
        L_HSEC:""")
        a(f"""s_cmp_lt_u32 s{sWAVE}, 4
        s_cbranch_scc1 L_HW""")
        if oc == 2: out_calc()
        a("""s_branch L_NOH
        L_HW:""")
        S(T0, 'w*256 + T1')
        va(vT, [(4, 2, 2048), (0, 4, 16)])
        S(T2, 'w*32 + L_ACT'); va(vT + 1, [(5, 1, 128), (2, 1, 16), (1, 1, 8), (3, 1, 4), (0, 1, 2)], T2)
        a(f"""s_cmp_lg_u32 s{sLOC}, 0
        s_cbranch_scc1 L_HLOC""")
        self.spoll([(q, 1, T0, q * 2048 + 1024 + 252) for q in range(4)], range(4))
        a('L_HLOC:')
        self.stamp('Hpre')
        g, u = ga_, ga_ + 4
        self.try_load(lambda: [self.bl(ga_ + 4 * m, 4, vT, rWS, T0, m * 1024, 'sc1') for m in range(2)], [g + 1, g + 3, u + 1, u + 3], vT + 2, out_calc if oc == 2 else None)
        a(f"""v_permlane32_swap_b32 v{g}, v{g+2}
        v_permlane32_swap_b32 v{u}, v{u+2}
        v_add_f32 v{g}, v{g}, v{g+2}
        v_add_f32 v{u}, v{u}, v{u+2}
        v_mov_b32 v{g+2}, v{g}
        v_mov_b32 v{u+2}, v{u}
        v_permlane16_swap_b32 v{g}, v{g+2}
        v_permlane16_swap_b32 v{u}, v{u+2}
        v_add_f32 v{g}, v{g}, v{g+2}
        v_add_f32 v{u}, v{u}, v{u+2}""")
        self.round2(g, u)
        self.silu(g, vT + 2)
        a(f"""v_mul_f32 v{g}, v{g}, v{u}
        v_cvt_pk_bf16_f32 v{g}, v{g}, v{g}
        ds_write_b16 v{vT+1}, v{g}
        L_NOH:""")
        va(vT, [(2, 1, 128), (5, 1, 16)], None, L_ACT)
        va(vT + 1, [(4, 2, 56 * 128), (0, 4, 8)])
        va(vT + 2, [(0, 2, 4096)] if TL else [(0, 1, 64 * 4096), (1, 1, 2 * 4096)])
        S(T0, '(kq*8 + w)*(4*56*128) + fs*128 + GGR')
        S(T1, ('(kq*8 + w)*16384' if TL else '(((kq & 1)*4 + (w >> 1))*8 + (w & 1)*4 + (kq >> 1))*4096') + ' + x*64 + (j >> 2)*4 + INB + 3072')
        vm.wait_all()
        self.barrier()
        self.stamp('Hok')
        for s in range(4):
            self.r128(ga_ + 4 * s, vT, s * 32, ('ac', s))
            self.tr(ffn + 32 + 4 * s, vDr, s * 8192, ('ac', s)); self.tr(ffn + 32 + 4 * s + 2, vDr, s * 8192 + 1024, ('ac', s))
        for s in range(4):
            lg.wait(('ac', s))
            a(f'v_mfma_f32_32x32x16_bf16 {vr(gb_, 16)}, {vr(ga_ + 4*s, 4)}, {vr(ffn + 32 + 4*s, 4)}, ' + ('0' if s == 0 else vr(gb_, 16)))
        if oc == 2:
            for q in range(2): self.r128(op + 4 * q, vOT, q * 8 * 144)
        a(f'v_mov_b32 v{gb_+1}, s{sTAG}')
        self.bs(gb_, 2, vT + 1, rWS, T0, 0, 'sc1')
        a('s_mov_b64 exec, 15')
        self.bs(gb_ + 1, 1, vT + 2, rWS, T1, 0, 'sc1')
        a('s_mov_b64 exec, -1')
        self.stamp('Gpub')
        def hclean():
            a("""s_mov_b32 exec_lo, 0xffff
            s_mov_b32 exec_hi, 0xffff""")
            self.bs(hk, 2, hk + 2, rWS, '0', 0, 'sc1', count=False)
            a('s_mov_b64 exec, -1')
        if o.get('hclean', 3) == 1: hclean()
        lg.wait_all()
        a('L_GSEC:')
        if o.get('outat', 1) == 1: out_store()
        a(f"""s_cmp_lt_u32 s{sJ}, 16
        s_cbranch_scc1 L_GF""")
        if o.get('outat', 1) == 2: out_store()
        if o.get('hclean', 3) >= 2:
            a(f"""s_cmp_ge_u32 s{sJ}, 28
            s_cbranch_scc1 L_FIN
            s_waitcnt vmcnt(0)""")
            hclean()
        a("""s_branch L_FIN
        L_GF:""")
        self.inbox(6, 8, range(7))
        self.stamp('Gpre')
        a('s_barrier')
        if o.get('hclean', 3) == 2: hclean()
        if o.get('hclean', 3) == 3:
            a(f"""s_cmp_eq_u32 s{sWAVE}, 7
            s_cbranch_scc1 L_G7
            s_barrier""")
            if o.get('outat', 1) == 2: out_store()
            hclean()
            a("""s_branch L_FIN
            L_G7:""")
        a(f"""s_cmp_lg_u32 s{sWAVE}, 7
        s_cbranch_scc1 L_FIN""")
        S(T0, 'T7 + 4096')
        gg = [ga_ + 4 * i for i in range(4)] + [uu + 4 * i for i in range(3)]
        self.poll(lambda: [self.bl(gg[n], 4, vL16, rWS, (T7, T0)[n >> 2], (n & 3) * 1024, 'sc1') for n in range(7)],
                  [gg[n] + 1 + 2 * e for n in range(7) for e in range(2)], vT)
        self.finish_load(None, ld_fz, [st + 1, fz + 1], vT)
        self.stamp('Gok')
        if o.get('hclean', 3) == 3: a('s_barrier')
        y0, y1 = gg[0], gg[0] + 1
        for lo, hi in ((0, 1), (2, 3), (4, 5), (0, 2), (4, 6), (0, 4)):
            for e in (0, 2): a(f'v_add_f32 v{gg[lo]+e}, v{gg[lo]+e}, v{gg[hi]+e}')
        a(f'v_mov_b32 v{y1}, v{gg[0]+2}')
        for y in (y0, y1): self.dpp('v_add_f32', y, y, y, 'row_ror:8')
        for sw in ('v_permlane16_swap_b32', 'v_permlane32_swap_b32'):
            for y in (y0, y1): a(f'v_mov_b32 v{y+2}, v{y}')
            for y in (y0, y1): a(f'{sw} v{y}, v{y+2}')
            self.pk('add', y0, y0, y0 + 2)
        self.round2(y0, y1)
        self.pk('mul', y0, y0, fz + 3, bc=(1,))
        self.unpack(vT, vT + 1, st)
        self.round2(y0, y1)
        self.pk('add', y0, y0, vT)
        self.unpack(vT, vT + 1, fz + 2)
        self.round2(y0, y1)
        self.pk('mul', y0, y0, vT)
        self.unpack(vT, vT + 1, fz)
        self.round2(y0, y1)
        self.pk('add', y0, y0, vT)
        a(f'v_cvt_pk_bf16_f32 v{y0}, v{y0}, v{y1}')
        a('s_mov_b64 exec, 0xff')
        self.bs(y0, 1, vT + 6, rOUT, sU, 0, 'sc1')
        a('s_mov_b64 exec, -1')
        if o.get('outat', 1) == 2: out_store()
        if o.get('hclean', 3) == 3: hclean()
        a('L_FIN:')
        if o.get('exfil'):
            self.stamp('fin')
            a('s_waitcnt vmcnt(0)')
            self.stamp('finw')
            a(f'''s_lshl3_add_u32 s{T0}, s2, s{sWAVE}
            s_cmp_lg_u32 s{T0}, {o.get('exwho', 7)}
            s_cbranch_scc1 L_END
            v_readlane_b32 s{T0}, v255, 0
            v_readlane_b32 s{T1}, v255, 1
            v_readlane_b32 s{T2}, v255, 2
            s_sub_u32 s{T2}, s{T2}, s{T1}
            s_max_i32 s{T2}, s{T2}, 0
            s_min_u32 s{T2}, s{T2}, 10000
            s_mul_i32 s{T2}, s{T2}, 10
            s_add_u32 s{T2}, s{T2}, 6000
            L_PAD:
            s_memrealtime {sr(sTM, 2)}
            s_waitcnt lgkmcnt(0)
            s_sub_u32 s{T1}, s{sTM}, s{T0}
            s_cmp_lt_u32 s{T1}, s{T2}
            s_cbranch_scc1 L_PAD''')
        if o.get('padfin'):
            a(f'''s_lshl3_add_u32 s{T0}, s2, s{sWAVE}
            s_cmp_lg_u32 s{T0}, 7
            s_cbranch_scc1 L_END
            s_memrealtime {sr(sTM, 2)}
            s_waitcnt lgkmcnt(0)
            s_mov_b32 s{T0}, s{sTM}
            L_PAD2:
            s_memrealtime {sr(sTM, 2)}
            s_waitcnt lgkmcnt(0)
            s_sub_u32 s{T1}, s{sTM}, s{T0}
            s_cmp_lt_u32 s{T1}, {o['padfin']}
            s_cbranch_scc1 L_PAD2''')
        if self.prof:
            a('s_waitcnt vmcnt(0) lgkmcnt(0)')
            self.stamp('end')
            a(f's_memrealtime {sr(sTM, 2)}')
            a('s_waitcnt lgkmcnt(0)')
            a(f'v_writelane_b32 v255, s{sTM}, 61')
            S(T0, '(wg*8 + w)*256 + STAMPS')
            a(f'v_writelane_b32 v255, s{sSPIN}, 62')
            a(f'v_lshlrev_b32 v{vT+1}, 2, v{vL}')
            a(f'buffer_store_dword v255, v{vT+1}, {sr(rWS, 4)}, s{T0} offen')
            S(T0, 'T0 + 0x100000')
            a(f'buffer_store_dword v254, v{vT+1}, {sr(rWS, 4)}, s{T0} offen')
        a('L_END:')
        a('s_endpgm')
        return self

    def text(self):
        a = self.a
        npad = a.fix_hazards()
        errs = a.check_waits([NAME])
        for e in errs: print('WAITERR', e, file=sys.stderr)
        assert not errs
        hdr = open(os.path.join(os.path.dirname(os.path.abspath(__file__)), 'header.txt')).read()
        s = hdr + '; @launch grid=(256,1,1) block=(512,1,1) lds=163840\n'
        s += '.amdgcn_target "amdgcn-amd-amdhsa--gfx950"\n.text\n'
        s += f'.globl {NAME}\n.p2align 8\n.type {NAME},@function\n'
        body = a.text()
        import subprocess, tempfile
        with tempfile.TemporaryDirectory() as td:
            open(td + '/t.s', 'w').write('.amdgcn_target "amdgcn-amd-amdhsa--gfx950"\n.text\n' + body.replace('CODE_KB', '20480'))
            subprocess.run(['clang', '-x', 'assembler', '-target', 'amdgcn-amd-amdhsa', '-mcpu=gfx950', '-c', td + '/t.s', '-o', td + '/t.o'], check=True)
            subprocess.run(['llvm-objcopy', '-O', 'binary', '-j', '.text', td + '/t.o', td + '/t.bin'], check=True)
            size = os.path.getsize(td + '/t.bin')
        print('; code bytes', size, file=sys.stderr)
        s += body.replace('CODE_KB', str((size // 1024 + 1) * 1024))
        s += '.p2align 10\n.fill 768, 4, 0xbf800000\n'
        s += '.section .rodata,"a"\n' + kernel_desc(NAME, 256, 102)
        print(f'; vgpr hi {self.V.hi}, nops {npad}, instrs {sum(1 for k, _ in a.items if k == "ins")}', file=sys.stderr)
        return s


if __name__ == '__main__':
    import argparse, json
    ap = argparse.ArgumentParser()
    ap.add_argument('-o', default='/dev/stdout')
    ap.add_argument('--prof', action='store_true')
    ap.add_argument('--opts', default='{}')
    args = ap.parse_args()
    g = Gen(args.prof, json.loads(args.opts)).build()
    t = g.text()
    open(args.o, 'w').write(t)
    if args.prof: open(args.o + '.stamps', 'w').write(json.dumps(g.stnames))
```

```python
import sys, os
sys.path.insert(0, os.path.dirname(os.path.abspath(__file__)))
from asm import *

NAME = 'adaLN_cond__linear_kernel_hedgehog__moe_arch_mod__prompt_kernel'

NONCE = 0x0
CFL = 0x8000
MARK = 0x100
GR = 0x010000
MODP2 = 0x020000
SINB = 0x040000
AINB = 0x080000
INA = 0x200000
INB = 0x100000
HF = 0x400000
OF = 0x800000
STAT = 0xC00000
CAND = 0x2000000
HGR = 0x1400000
ZP = 0x1480000
GGR = 0x1500000
KVP = 0x1800000
KIN = 0x1C00000
STAMPS = 0x1600000
WS_BYTES = 268435456

SEC = 8320
SLOT = 3 * SEC
SCR = 6 * SLOT
L_A1 = SCR
L_M2 = SCR + 1024
L_ST = SCR + 2048
L_MP = SCR + 2560
L_WPHI = SCR + 6656
L_MB = SCR + 10752
L_XF = 147456
L_PHK = 0
L_V = 32768
WO_H0 = 32768
WO_H1 = 98304
GS = 0
L_KVF = GS
L_ZF = GS + 8192
L_EXCH = GS
L_MT = 139264
L_GU = 32768
L_DN = 98304
TS = 131072
L_SP = TS
L_ST2 = TS + 4096
L_K1 = TS + 5120
L_K2 = TS + 5184
L_K3 = TS + 5312
L_XS = TS + 5632
L_ACT = TS + 7680
L_TB = TS + 7936
L_GB = L_TB + 256
L_OT = TS + 8704
L_XT = GS

SPIN_LIMIT = 300000

sWAVE, sTAG, sSPIN, sMASK, sL2E = 3, 4, 5, 6, 7
sX, sJ, sR1, sHP, sCB = 8, 9, 10, 11, 12
T0, T1, T2, T3, T4, T5, T6, T7 = 13, 14, 15, 16, 17, 18, 19, 20
sRT = 21
sCMP = 22
sPL = 24
rWS, rX, rW, rWO, rWM, rWG, rWU, rWD, rOUT = 32, 36, 40, 44, 48, 52, 56, 60, 64
KA = 68
pWPHI, pWR, pC = KA + 4, KA + 10, KA + 18
sK1, sK2, sROW0, sROW1, sFS, sKQ, sKH, sKF = 68, 69, 70, 71, 74, 75, 76, 77
sFG, sFD, sU, sROT, sWB, sU0 = 80, 81, 82, 83, 84, 85
sWO2, sW1K, sMF = 88, 89, 90
sINB, sRow, sGTB, sC32 = 92, 93, 94, 95
sXC = 94
pDBG = 30
sLOC = 93
XT = (96, 97, 98, 99)
sTM = 100
ENV = dict(wg=2, w=sWAVE, x=sX, j=sJ, r1=sR1, hp=sHP, cb=sCB, rt=sRT, row=sRow, gtb=sGTB, c32=sC32, kh=sKH, kf=sKF, fs=sFS, kq=sKQ,
           rot=sROT, wb=sWB, u0=sU0, wo2=sWO2, w1k=sW1K, mf=sMF, u=sU, fg=sFG, fd=sFD, T0=T0, T1=T1, T2=T2, T3=T3, T4=T4, T5=T5, T6=T6, T7=T7, row0=sROW0, row1=sROW1, k1=sK1)


class Gen:
    def __init__(self, prof=False, opts=None):
        self.a = Asm()
        self.vm = Counter(self.a, 'vmcnt', 63)
        self.lg = Counter(self.a, 'lgkmcnt', 15)
        self.V = RegAlloc(254, 1)
        self.prof = prof
        self.nopk = False
        self.nst = 0
        self.stnames = []
        self.S = SExpr(self.a, ENV, {k: v for k, v in globals().items() if isinstance(v, int) and k.isupper() and k not in ENV}, XT)
        self.o = dict(AD=12, LOOK=6, wev=2, AD2=8, A20=6, wburst=(0, 3, 0, 0, 6, 6), wxor=3, LASTB=13,
                      sched={1: 'm1 p2', 2: 's4', 3: 'm1 s4', 4: 'p2 g1', 5: 'm1 g1', 6: 'g1', 7: 'm1 h g1 p3', 8: 'g2', 9: 'g2 r', 10: 'P', 11: 'f1', 13: 'M', 14: 'K o4 f4 N', 15: 'f1'}, fdma=(3, 0, 0, 3, 0), wowin=(6, 0, 3))
        if opts: self.o.update(opts)

    def bl(self, dst, n, voff, srd, soff, imm=0, mods='', tag=None):
        op = {1: 'dword', 2: 'dwordx2', 4: 'dwordx4'}[n]
        so = soff if isinstance(soff, str) else (sr(soff))
        self.a(f'buffer_load_{op} {vr(dst, n)}, v{voff}, {sr(srd, 4)}, {so} offen' + (f' offset:{imm}' if imm else '') + (' ' + mods if mods else ''))
        self.vm.issue(tag)
    def bs(self, src, n, voff, srd, soff, imm=0, mods='', tag=None, count=True):
        op = {1: 'dword', 2: 'dwordx2', 4: 'dwordx4'}[n]
        so = soff if isinstance(soff, str) else (sr(soff))
        self.a(f'buffer_store_{op} {vr(src, n)}, v{voff}, {sr(srd, 4)}, {so} offen' + (f' offset:{imm}' if imm else '') + (' ' + mods if mods else ''))
        if count: self.vm.issue(tag)
    def bs2(self, items):
        a = self.a
        LL, D = a.label('LOC'), a.label('LOCD')
        a(f's_cmp_lg_u32 s{sLOC}, 0')
        a(f's_cbranch_scc1 {LL}')
        for src, n, voff, soff, imm in items: self.bs(src, n, voff, rWS, soff, imm, 'sc1', count=False)
        a(f's_branch {D}')
        a(f'{LL}:')
        for src, n, voff, soff, imm in items: self.bs(src, n, voff, rWS, soff, imm, '', count=False)
        a(f'{D}:')
    def dma(self, voff, srd, soff, imm=0, mods='', tag=None):
        self.a(f'buffer_load_dwordx4 v{voff}, {sr(srd, 4)}, {sr(soff)} offen' + (f' offset:{imm}' if imm else '') + (' ' + mods if mods else '') + ' lds')
        self.vm.issue(tag)
    def dr(self, op, dst, n, addr, off=0, tag=None):
        assert 0 <= off < 65536, off
        self.a(f'{op} {vr(dst, n)}, v{addr}' + (f' offset:{off}' if off else ''))
        self.lg.issue(tag)
    def tr(self, dst, addr, off, tag=None): self.dr('ds_read_b64_tr_b16', dst, 2, addr, off, tag)
    def r128(self, dst, addr, off=0, tag=None): self.dr('ds_read_b128', dst, 4, addr, off, tag)
    def dw(self, op, addr, src, n, off=0, tag=None):
        assert 0 <= off < 65536, off
        self.a(f'{op} v{addr}, {vr(src, n)}' + (f' offset:{off}' if off else ''))
        self.lg.issue(tag)
    def barrier(self):
        self.lg.wait_all()
        self.a('s_barrier')
    def stamp(self, name):
        ex = self.o.get('exfil')
        if ex and name in ex[:2]:
            self.a(f's_memrealtime {sr(sTM, 2)}')
            self.lg.wait_all()
            self.a(f'v_writelane_b32 v255, s{sTM}, {1 + ex.index(name)}')
        if not self.prof: return
        only = self.o.get('only')
        if only and name not in only and name != 'end': return
        self.a(f's_memtime {sr(sTM, 2)}')
        self.a(f's_memrealtime s[0:1]')
        self.lg.wait_all()
        self.a(f'v_writelane_b32 v255, s{sSPIN if self.o.get("spinst") and self.nst > 3 else sTM}, {self.nst}')
        self.a(f'v_writelane_b32 v254, s0, {self.nst}')
        self.stnames.append(name)
        self.nst += 1
        assert self.nst <= 60
    def unpack(self, lo, hi, src):
        self.a(f'v_lshlrev_b32 v{lo}, 16, v{src}')
        self.a(f'v_and_b32 v{hi}, s{sMASK}, v{src}')
    def round1(self, r):
        self.a(f'v_cvt_pk_bf16_f32 v{r}, 0, v{r}')
    def round2(self, r0, r1):
        self.round1(r0); self.round1(r1)
    def round_list(self, regs):
        for r in regs: self.round1(r)
    def pk(self, op, d, s0, s1, s2=None, bc=(), neg=()):
        srcs = [s0, s1] + ([s2] if s2 is not None else [])
        if self.nopk:
            for h in range(2):
                t = []
                for k, r in enumerate(srcs):
                    kind, n = r if isinstance(r, tuple) else ('v', r)
                    t.append(('-' if k in neg else '') + f'{kind}{n if k in bc else n + h}')
                e64 = '' if op == 'fma' else ('_e64' if (neg or t[1][0] == 's') else '')
                self.a(f'v_{op}_f32{e64} v{d+h}, ' + ', '.join(t))
            return
        txt, sel, selhi = [], [], []
        for k, r in enumerate(srcs):
            kind, n = r if isinstance(r, tuple) else ('v', r)
            if k in bc:
                txt.append(f'{kind}[{n & ~1}:{(n & ~1) + 1}]'); sel.append(n & 1); selhi.append(n & 1)
            else:
                assert n % 2 == 0
                txt.append(f'{kind}[{n}:{n+1}]'); sel.append(0); selhi.append(1)
        assert d % 2 == 0
        m = ''
        if any(sel): m += ' op_sel:[' + ','.join(map(str, sel)) + ']'
        if not all(selhi): m += ' op_sel_hi:[' + ','.join(map(str, selhi)) + ']'
        if neg:
            ng = ','.join('1' if k in neg else '0' for k in range(len(srcs)))
            m += f' neg_lo:[{ng}] neg_hi:[{ng}]'
        self.a(f'v_pk_{op}_f32 v[{d}:{d+1}], ' + ', '.join(txt) + m)
    def dpp(self, op, d, s0, s1, ctl):
        self.a(f'{op}_dpp v{d}, v{s0}, v{s1} {ctl} row_mask:0xf bank_mask:0xf')
    def allreduce(self, v, t, op='v_add_f32', lo=True, b3=True):
        if lo:
            self.dpp(op, v, v, v, 'quad_perm:[1,0,3,2]')
            self.dpp(op, v, v, v, 'quad_perm:[2,3,0,1]')
            self.dpp(op, v, v, v, 'row_half_mirror')
        self.dpp(op, v, v, v, 'row_ror:8')
        self.a(f'v_mov_b32 v{t}, v{v}')
        self.a(f'v_permlane16_swap_b32 v{v}, v{t}')
        self.a(f'{op} v{v}, v{v}, v{t}')
        self.a(f'v_mov_b32 v{t}, v{v}')
        self.a(f'v_permlane32_swap_b32 v{v}, v{t}')
        self.a(f'{op} v{v}, v{v}, v{t}')
    def poll(self, loads, tagregs, tmp=None):
        a = self.a
        L, D = a.label('POLL'), a.label('PDONE')
        a(f'{L}:')
        loads()
        self.vm.wait_all()
        self.tagcheck(tagregs, tmp)
        a(f's_cbranch_vccz {D}')
        a(f's_add_u32 s{sSPIN}, s{sSPIN}, 1')
        a(f's_cmp_lt_u32 s{sSPIN}, {SPIN_LIMIT}')
        a(f's_cbranch_scc1 {L}')
        a(f'{D}:')
    def weave(self, fn, extras):
        a = self.a
        keep = a.items; a.items = []
        fn()
        body = a.items; a.items = keep
        extras = list(extras); n = len(extras)
        for i, it in enumerate(body):
            while extras and (n - len(extras)) * len(body) <= i * n: extras.pop(0)()
            a.items.append(it)
        for e in extras: e()
    def tagcheck(self, tagregs, tmp):
        a = self.a
        if tagregs[0] == 'nan':
            if len(tagregs) == 3: a(f'v_max_u32 v{tmp}, v{tagregs[1]}, v{tagregs[2]}')
            a(f'v_cmp_eq_u32 vcc, -1, v{tmp if len(tagregs) == 3 else tagregs[1]}')
        elif len(tagregs) == 1:
            a(f'v_cmp_ne_u32 vcc, s{sTAG}, v{tagregs[0]}')
        else:
            a(f'v_bitop3_b32 v{tmp}, v{tagregs[0]}, v{tagregs[1]}, s{sTAG} bitop3:0x7e')
            for t in tagregs[2:]: a(f'v_bitop3_b32 v{tmp}, v{tmp}, v{t}, s{sTAG} bitop3:0xf6')
            a(f'v_cmp_ne_u32 vcc, 0, v{tmp}')
    def try_load(self, loads, tagregs, tmp=None, between=None, pre=None):
        a = self.a
        n0 = len(self.vm.q)
        loads()
        self.vm.q[-1] = tg = ('try', a.label('T'))
        if between: between()
        self.vm.wait(tg)
        OK = a.label('TOK')
        self.tagcheck(tagregs, tmp)
        a(f's_cbranch_vccz {OK}')
        q, l = list(self.vm.q), list(self.lg.q)
        if pre: pre()
        self.poll(loads, tagregs, tmp)
        self.vm.q, self.lg.q = q, l
        a(f'{OK}:')
    def finish_load(self, tg, loads, tagregs, tmp=None, pre=None):
        a = self.a
        self.vm.wait(tg)
        OK = a.label('TOK')
        self.tagcheck(tagregs, tmp)
        a(f's_cbranch_vccz {OK}')
        q, l = list(self.vm.q), list(self.lg.q)
        if pre: pre()
        self.poll(loads, tagregs, tmp)
        self.vm.q, self.lg.q = q, l
        a(f'{OK}:')
    def spoll(self, loads, checks, work=None, pipe=0):
        a = self.a
        L, C, D = a.label('SPOLL'), a.label('SCHK'), a.label('SDONE')
        def issue(note=''):
            for d, n, so, imm in loads:
                op = {1: 'dword', 2: 'dwordx2', 4: 'dwordx4', 8: 'dwordx8'}[n]
                a(f's_load_{op} {sr(sPL + d, n)}, {sr(rWS, 2)}, s{so} offset:{imm} glc' + note)
        if pipe:
            self.lg.wait_all()
            for k in checks: a(f's_not_b32 s{sPL + k}, s{sTAG}')
            issue(' ; nowait')
            if work: work()
            a(f'{L}:')
            a(f's_add_u32 s{sSPIN}, s{sSPIN}, 1')
            a(f's_cmp_ge_u32 s{sSPIN}, {SPIN_LIMIT}')
            a(f's_cbranch_scc1 {D}')
            ks = list(checks)
            a(f's_xor_b32 s{XT[0]}, s{sPL + ks[0]}, s{sTAG} ; nowait')
            for k in ks[1:]:
                a(f's_xor_b32 s{XT[1]}, s{sPL + k}, s{sTAG} ; nowait')
                a(f's_or_b32 s{XT[0]}, s{XT[0]}, s{XT[1]}')
            a(f's_cbranch_scc0 {D}')
            issue(' ; nowait')
            a(f's_sleep {pipe}')
            a(f's_branch {L}')
            a(f'{D}:')
            return
        if work:
            issue(); work()
            a(f's_branch {C}')
        a(f'{L}:')
        issue()
        a(f'{C}:')
        a(f's_add_u32 s{sSPIN}, s{sSPIN}, 1')
        a(f's_cmp_ge_u32 s{sSPIN}, {SPIN_LIMIT}')
        self.lg.wait_all()
        a(f's_cbranch_scc1 {D}')
        for k in checks:
            a(f's_cmp_lg_u32 s{sPL + k}, s{sTAG}')
            a(f's_cbranch_scc1 {L}')
        a(f'{D}:')
    def inbox(self, box, n, checks=None, work=None, pipe=0):
        self.spoll([(0, n, sINB, box * 512)], range(n) if checks is None else checks, work, pipe)
    def va(self, dst, terms, sreg=None, const=0, tmp=None):
        a = self.a; vL = self.vL
        first = True
        for sh, bits, mult in terms:
            full = sh + bits >= 6
            src = vL
            t = dst if first else tmp
            if sh == 0 and full: pass
            elif full: a(f'v_lshrrev_b32 v{t}, {sh}, v{vL}'); src = t
            elif sh == 0: a(f'v_and_b32 v{t}, {(1 << bits) - 1}, v{vL}'); src = t
            else: a(f'v_bfe_u32 v{t}, v{vL}, {sh}, {bits}'); src = t
            p2 = mult & (mult - 1) == 0
            k = mult.bit_length() - 1
            if first:
                if p2 and sreg is not None: a(f'v_lshl_add_u32 v{dst}, v{src}, {k}, s{sreg}'); sreg = None
                elif p2 and k: a(f'v_lshlrev_b32 v{dst}, {k}, v{src}')
                elif p2:
                    if src != dst: a(f'v_mov_b32 v{dst}, v{src}')
                else: a(f'v_mul_u32_u24 v{dst}, {mult}, v{src}')
            else:
                assert p2
                a(f'v_lshl_add_u32 v{dst}, v{src}, {k}, v{dst}')
            first = False
        if sreg is not None: a(f'v_add_u32 v{dst}, s{sreg}, v{dst}')
        if const: a(f'v_add_u32 v{dst}, {const}, v{dst}')
    def push(self, vaddr, soff, nl, vtmp, lab, wave=0):
        a = self.a
        a(f's_cmp_lg_u32 s{sWAVE}, {wave}')
        a(f's_cbranch_scc1 {lab}')
        a(f'v_mov_b32 v{vtmp}, s{sTAG}')
        a(f's_mov_b32 exec_hi, 0')
        if nl < 32: a(f's_mov_b32 exec_lo, {(1 << nl) - 1}')
        self.bs(vtmp, 1, vaddr, rWS, soff, 0, 'sc1', count=False)
        a('s_mov_b64 exec, -1')
        a(f'{lab}:')
    def silu(self, v, t):
        a = self.a
        a(f'v_mul_f32 v{t}, s{sL2E}, v{v}')
        a(f'v_exp_f32 v{t}, -v{t}')
        a(f'v_add_f32 v{t}, 1.0, v{t}')
        a(f'v_rcp_f32 v{t}, v{t}')
        a(f'v_mul_f32 v{v}, v{v}, v{t}')
        self.round1(v)
    def gemv_ops(self, wregs, cregs, acc, t0, t1, packed):
        ops = []
        assert t0 % 2 == 0 and t1 == t0 + 1
        for i, (w, c) in enumerate(zip(wregs, cregs)):
            cp = f'v[{c & ~1}:{(c & ~1) + 1}]'
            for d in range(4):
                tt = t0 + 2 * (d & 1)
                ops.append(f'v_lshlrev_b32 v{tt}, 16, v{w+d}')
                ops.append(f'v_and_b32 v{tt+1}, s{sMASK}, v{w+d}')
                ac = f'v[{acc+2*d}:{acc+2*d+1}]'
                if not packed:
                    for h in range(2): ops.append(f'v_mul_f32 v{acc+2*d+h}, v{tt+h}, v{c}' if i == 0 else f'v_fmac_f32 v{acc+2*d+h}, v{tt+h}, v{c}')
                elif i == 0: ops.append(f'v_pk_mul_f32 {ac}, v[{tt}:{tt+1}], {cp} op_sel:[0,{c & 1}] op_sel_hi:[1,{c & 1}]')
                else: ops.append(f'v_pk_fma_f32 {ac}, v[{tt}:{tt+1}], {cp}, {ac} op_sel:[0,{c & 1},0] op_sel_hi:[1,{c & 1},1]')
        for i in range(4): ops.append(f'v_permlane32_swap_b32 v{acc+i}, v{acc+4+i}')
        for i in range(4): ops.append(f'v_add_f32 v{acc+i}, v{acc+i}, v{acc+4+i}')
        for i in range(2): ops.append(f'v_permlane16_swap_b32 v{acc+i}, v{acc+2+i}')
        for i in range(2): ops.append(f'v_add_f32 v{acc+i}, v{acc+i}, v{acc+2+i}')
        for i in range(2): ops.append(f'v_add_f32_dpp v{acc+i}, v{acc+i}, v{acc+i} row_ror:8 row_mask:0xf bank_mask:0xf')
        ops.append(f'v_mov_b32_dpp v{acc}, v{acc+1} quad_perm:[0,1,2,3] row_mask:0xf bank_mask:0xc')
        return ops
    def sum8(self, b):
        self.pk('add', b, b, b + 2); self.pk('add', b + 4, b + 4, b + 6); self.pk('add', b, b, b + 4)
        self.a(f'v_add_f32 v{b}, v{b}, v{b+1}')
    def softmax_pm(self, p, e, out, t, mid=None, part=0, split=0):
        a = self.a
        mx, mn, u0, u1, s0, s1 = t, t + 1, t + 2, t + 3, t + 4, t + 6
        if part != 2:
            self.round_list([p + i for i in range(16)])
            a(f'v_max3_f32 v{mx}, v{p}, v{p+1}, v{p+2}')
            a(f'v_min3_f32 v{mn}, v{p}, v{p+1}, v{p+2}')
            for i in range(3, 15, 2):
                a(f'v_max3_f32 v{mx}, v{mx}, v{p+i}, v{p+i+1}')
                a(f'v_min3_f32 v{mn}, v{mn}, v{p+i}, v{p+i+1}')
            a(f'v_max_f32 v{u0}, v{mx}, v{p+15}')
            a(f'v_min_f32 v{u1}, v{mn}, v{p+15}')
            a(f'v_max_f32 v{mx}, v{mx}, v{p+15}')
            a(f'v_min_f32 v{mn}, v{mn}, v{p+15}')
            a(f'v_permlane32_swap_b32 v{mx}, v{u0}')
            a(f'v_permlane32_swap_b32 v{mn}, v{u1}')
            a(f'v_max_f32 v{mx}, v{mx}, v{u0}')
            a(f'v_min_f32 v{mn}, v{mn}, v{u1}')
            self.pk('mul', mx, mx, ('s', sL2E), bc=(1,))
            for i in range(0, 16, 2):
                self.pk('fma', e + i, p + i, ('s', sL2E), mx, bc=(1, 2), neg=(2,))
                self.pk('fma', p + i, p + i, ('s', sL2E), mn, bc=(1, 2), neg=(0,))
        for i in range(split if part == 2 else 0, 16):
            if mid and i == mid[0]: mid[1]()
            if part == 1 and i == split: return
            a(f'v_exp_f32 v{e+i}, v{e+i}')
            a(f'v_exp_f32 v{p+i}, v{p+i}')
        self.pk('add', s0, e, e + 2); self.pk('add', s1, p, p + 2)
        for i in range(4, 16, 2):
            self.pk('add', s0, s0, e + i); self.pk('add', s1, s1, p + i)
        a(f'v_add_f32 v{u0}, v{s0}, v{s0+1}')
        a(f'v_add_f32 v{u1}, v{s1}, v{s1+1}')
        a(f'v_add_f32 v{mx}, v{s0}, v{s0+1}')
        a(f'v_add_f32 v{mn}, v{s1}, v{s1+1}')
        a(f'v_permlane32_swap_b32 v{mx}, v{u0}')
        a(f'v_permlane32_swap_b32 v{mn}, v{u1}')
        self.pk('add', mx, mx, u0)
        a(f'v_rcp_f32 v{mx}, v{mx}')
        a(f'v_rcp_f32 v{mn}, v{mn}')
        for i in range(0, 16, 2):
            self.pk('mul', e + i, e + i, mx, bc=(1,))
            self.pk('mul', p + i, p + i, mn, bc=(1,))
        for i in range(8):
            a(f'v_cvt_pk_bf16_f32 v{out+i}, v{e+2*i}, v{e+2*i+1}')
            a(f'v_cvt_pk_bf16_f32 v{out+8+i}, v{p+2*i}, v{p+2*i+1}')
    def ln_stats(self, xp, t, m_out, sd_out, fill=()):
        a = self.a
        fill = list(fill)
        def pad(n):
            for _ in range(n):
                if fill: a(fill.pop(0))
        s, u = t, t + 4
        a(f'v_mov_b32 v{u}, 0x3f803f80')
        for i in range(8):
            k = 2 * (i & 1)
            a(f'v_dot2_f32_bf16 v{s+k}, v{xp+i}, v{u}, ' + ('0' if i < 2 else f'v{s+k}'))
            a(f'v_dot2_f32_bf16 v{s+k+1}, v{xp+i}, v{xp+i}, ' + ('0' if i < 2 else f'v{s+k+1}'))
        pad(3)
        self.pk('add', s, s, s + 2)
        for ctl in ('quad_perm:[1,0,3,2]', 'quad_perm:[2,3,0,1]', 'row_half_mirror', 'row_ror:8'):
            pad(2 if ctl.endswith('3,2]') else 1)
            self.dpp('v_add_f32', s, s, s, ctl); self.dpp('v_add_f32', s + 1, s + 1, s + 1, ctl)
        pad(2)
        a(f'v_permlane16_swap_b32 v{s}, v{s+1}')
        a(f'v_add_f32 v{u}, v{s}, v{s+1}')
        a(f'v_add_f32 v{s}, v{s}, v{s+1}')
        pad(2)
        a(f'v_permlane32_swap_b32 v{s}, v{u}')
        a(f'v_add_f32 v{s}, v{s}, v{u}')
        a(f'v_mul_f32 v{u}, 0x3a800000, v{s}')
        a(f'v_mul_f32 v{s}, 0x3a800000, v{s}')
        pad(2)
        a(f'v_permlane16_swap_b32 v{s}, v{u}')
        a(f'v_fma_f32 v{sd_out}, -v{s}, v{s}, v{u}')
        a(f'v_cvt_pk_bf16_f32 v{m_out}, 0, v{s}')
        a(f'v_max_f32 v{sd_out}, 0, v{sd_out}')
        self.round1(sd_out)
        a(f'v_add_f32 v{sd_out}, 0x3727c5ac, v{sd_out}')
        self.round1(sd_out)
        a(f'v_sqrt_f32 v{sd_out}, v{sd_out}')
        pad(99)
        self.round1(sd_out)

    def stat_math(self, s, u, m_out, sd_out):
        a = self.a
        a(f'v_fma_f32 v{sd_out}, -v{s}, v{s}, v{u}')
        a(f'v_cvt_pk_bf16_f32 v{m_out}, 0, v{s}')
        a(f'v_max_f32 v{sd_out}, 0, v{sd_out}')
        self.round1(sd_out)
        a(f'v_add_f32 v{sd_out}, 0x3727c5ac, v{sd_out}')
        self.round1(sd_out)
        a(f'v_sqrt_f32 v{sd_out}, v{sd_out}')
        self.round1(sd_out)
    def ln_stats2(self, x0, x1, t, m_out, sd_out):
        a = self.a
        s0, s1, q0, q1, u = t, t + 1, t + 2, t + 3, t + 4
        a(f'v_mov_b32 v{u}, 0x3f803f80')
        for i in range(8):
            for xx, s_, q_ in ((x0, s0, q0), (x1, s1, q1)):
                a(f'v_dot2_f32_bf16 v{s_}, v{xx+i}, v{u}, ' + ('0' if i == 0 else f'v{s_}'))
                a(f'v_dot2_f32_bf16 v{q_}, v{xx+i}, v{xx+i}, ' + ('0' if i == 0 else f'v{q_}'))
        a(f"""v_permlane32_swap_b32 v{s0}, v{s1}
        v_permlane32_swap_b32 v{q0}, v{q1}
        v_add_f32 v{s0}, v{s0}, v{s1}
        v_add_f32 v{q0}, v{q0}, v{q1}
        v_permlane16_swap_b32 v{s0}, v{q0}
        v_add_f32 v{s0}, v{s0}, v{q0}""")
        for ctl in ('quad_perm:[1,0,3,2]', 'quad_perm:[2,3,0,1]', 'row_half_mirror', 'row_ror:8'): self.dpp('v_add_f32', s0, s0, s0, ctl)
        a(f"""v_mul_f32 v{q0}, 0x3a800000, v{s0}
        v_mul_f32 v{s0}, 0x3a800000, v{s0}
        v_permlane16_swap_b32 v{s0}, v{q0}""")
        self.stat_math(s0, q0, m_out, sd_out)

    def build(self):
        a, V, vm, lg, o, S = self.a, self.V, self.vm, self.lg, self.o, self.S
        E2 = range(0, 16, 2)
        TL = o.get('tl', 0)
        HL = o.get('hl', 1)
        D2 = o.get('d2', 1)
        LCB = [(0, 4, 8 * 4096)] if TL else [(0, 3, 8 * 4096), (3, 1, 4096)]
        a(f'{NAME}:')
        a(f's_load_dwordx16 {sr(KA, 16)}, s[0:1], 0')
        a(f's_load_dwordx8 {sr(KA + 16, 8)}, s[0:1], 64')
        a(f's_load_dwordx2 {sr(rWS, 2)}, s[0:1], 104')
        a(f's_load_dwordx2 {sr(pDBG, 2)}, s[0:1], 96')
        a('s_cmp_ge_u32 s2, 256')
        a('s_cbranch_scc1 L_END')
        if self.prof:
            a(f's_memrealtime {sr(sCMP, 2)}')
            a(f's_memtime {sr(sTM, 2)}')
            a('v_mov_b32 v255, 0')
            a('v_mov_b32 v254, 0')
            self.stnames.append('start'); self.nst = 1
        if o.get('exfil'): a(f's_memrealtime {sr(sTM, 2)}')
        vL = self.vL = V.alloc()
        vL16 = V.alloc()
        vZ = V.alloc()
        vT = V.alloc(8)
        va = lambda dst, terms, sreg=None, const=0: self.va(dst, terms, sreg, const, vT + 5)
        a(f"""v_lshrrev_b32 v{vT}, 6, v0
        v_and_b32 v{vL}, 63, v0
        v_mov_b32 v{vZ}, 0
        v_readfirstlane_b32 s{sWAVE}, v{vT}
        v_lshlrev_b32 v{vL16}, 4, v{vL}""")
        xr = V.alloc(8); acc = V.alloc(8); wphi = V.alloc(8); fr = V.alloc(8); vq = V.alloc(8); vv = V.alloc(8)
        vWM = V.alloc(); vCo = V.alloc(); vWd = V.alloc(); vL8 = V.alloc(); vL32S = V.alloc(); vGA = V.alloc()
        vB = V.alloc(6, 1); vFG = V.alloc(); vFD = V.alloc(); vWo = V.alloc(); vPW = V.alloc(); vXF = V.alloc()
        S(sX, 'wg & 7'); S(sJ, 'wg >> 3')
        S(T2, '(x*4 + w)*64')
        S(T0, 'T2*6144 + (j ^ 1)*128')
        va(vWM, [(3, 3, 4 * 12288), (0, 3, 16)])
        va(vCo, [(3, 3, 8)], T2)
        S(T3, '((x*32 + j)*4 + w - 4)*4096')
        for srd, size in ((rWM, 12582912), (rX, 4194304), (rWS, WS_BYTES)):
            a(f's_mov_b32 s{srd+2}, {size}')
            a(f's_mov_b32 s{srd+3}, 0x20000')
        a(f's_getreg_b32 s{sXC}, hwreg(HW_REG_XCC_ID, 0, 3)')
        if o.get('fakexcc') is not None: a(f's_and_b32 s{sXC}, s{sXC}, {o["fakexcc"]}')
        a(f"""s_getpc_b64 {sr(sCMP, 2) if not self.prof else sr(sPL, 2)}""")
        S(T6, '(j*7 + w)*128')
        va(vT + 6, [(5, 1, 28672)], T6)
        a(f"""v_min_u32 v{vT+6}, CODE_KB, v{vT+6}
        s_cmp_ge_u32 s{sWAVE}, 4
        s_waitcnt lgkmcnt(0)""")
        if self.prof:
            a(f'v_writelane_b32 v255, s{sTM}, 0')
            a(f'v_writelane_b32 v255, s{sCMP}, 63')
            a(f'v_writelane_b32 v254, s{sCMP}, 0')
            a(f's_mov_b64 {sr(sCMP, 2)}, {sr(sPL, 2)}')
        if o.get('exfil'):
            for k in range(3): a(f'v_writelane_b32 v255, s{sTM}, {k}')
        self.stamp('karg')
        raw = V.alloc(16); cv = V.alloc(4); vTk = V.alloc(2)
        xs = V.alloc(16); st = V.alloc(4); mq = V.alloc(4)
        a(f"""s_mov_b64 {sr(rWM, 2)}, {sr(KA + 20, 2)}
        s_mov_b64 {sr(rX, 2)}, {sr(KA, 2)}
        s_load_dword s{sTAG}, {sr(rWS, 2)}, {NONCE}
        s_cbranch_scc1 L_FS""")
        def setup():
            for srd, size in ((rW, 6291456), (rWO, 2097152), (rWG, 7340032), (rWU, 7340032), (rWD, 7340032), (rOUT, 4194304)):
                a(f's_mov_b32 s{srd+2}, {size}')
                a(f's_mov_b32 s{srd+3}, 0x20000')
            for srd, k in ((rW, 2), (rWO, 6), (rWG, 12), (rWU, 14), (rWD, 16), (rOUT, 22)):
                a(f's_mov_b64 {sr(srd, 2)}, {sr(KA + k, 2)}')
            a(f"""s_mov_b32 s{sSPIN}, 0
            s_mov_b32 s{sMASK}, 0xffff0000
            s_mov_b32 s{sL2E}, 0x3fb8aa3b""")
            S(sKH, 'w >> 2')
            va(vT + 2, [(4, 1, 64)]); va(vWd, [(0, 3, 16)])
            a(f'v_xor_b32 v{vWd}, v{vWd}, v{vT+2}'); va(vT + 2, [(3, 3, 6144)]); a(f'v_add_u32 v{vWd}, v{vWd}, v{vT+2}')
            va(vL8, [(0, 6, 8)])
            a(f'v_add_u32 v{vL32S}, {SCR}, v{vL16}')
            S(T0, '(w & 3)*4 + SCR')
            va(vGA, [(4, 2, 32), (0, 3, 128), (3, 1, 16)], T0)
            S(T1, '((j >> 4)*128 + w*8 + x)*1024 + (j & 15)*64 + SINB' if TL else '((x & 6) + ((x & 1)*2 + (j >> 4))*64 + w*8)*1024 + (j & 15)*64 + SINB')
        def tag_hash():
            a(f"""s_mul_i32 s{sTAG}, s{sTAG}, 0x9e3779b1
            s_add_u32 s{sTAG}, s{sTAG}, 0x7f4a7c15""")
        def code_pf():
            a(f's_and_b32 s{sCMP}, s{sCMP}, 0xfffffc00')
            a(f'global_load_dword v{vTk}, v{vT+6}, {sr(sCMP, 2)}')
        wq = [(n, t) for n in range(16) for t in range(3)]
        def w_base(n, wexpr):
            if n < 4 and o.get('wxor', 1):
                if o.get('wxor', 1) < 3: S(T7, '((j >> 4)*2) ^ n' if o.get('wxor', 1) == 1 else o.get('wxe', '((j >> 4) + (x >> 2)*2) ^ n'), n=n)
                else:
                    S(T7, o.get('wxe', 'j & 3' if HL else '(j >> 4) + (x >> 2)*2'))
                    if n: a(f's_cmp_le_u32 s{T7}, {n - 1}'); a(f's_cselect_b32 s{T7}, {n}, {n - 1}')
                S(sU, f'(((T7 + u0) & 15)*8 + {wexpr})*(8*6144) + hp*128')
                S(T7, f'T7*SLOT + (({wexpr}) >> 1)*2080 + (({wexpr}) & 1)*1056')
            else:
                S(sU, f'(((u0 + n) & 15)*8 + {wexpr})*(8*6144) + hp*128', n=n)
                S(T7, f'(({wexpr}) >> 1)*2080 + (({wexpr}) & 1)*1056 + q', q=(n % 6) * SLOT)
        def w_slot(n, t):
            S('m0', 'T7 + q', q=t * SEC)
            self.dma(vWd, rW, sU, 0, o.get('wmod', ''), ('W', n))
            if t < 2: S(sU, 'u + 2048')
        def w_next(cnt=1):
            for _ in range(cnt):
                n, t = wq.pop(0)
                if t == 0: w_base(n, 'w')
                w_slot(n, t)
        wb = list(o['wburst'])
        def w_early():
            if not o.get('wearly'): return
            S(sHP, '(x & 3)*4 + ((j & 3) ^ q)', q=o.get('hpx', 2)); S(sU0, o.get('u0', 'j & 12'))
            w_next(o['wearly'])
        a(f'global_load_dwordx2 {vr(cv, 2)}, v{vCo}, {sr(pC, 2)}'); vm.issue('c')
        for i in range(4):
            self.bl(raw + 4 * i, 4, vWM, rWM, T0, 0, o.get('ntwm', 'nt'), ('wm', i))
            if i < 3: S(T0, 'T0 + 12288')
        a('s_barrier')
        if o.get('bar1', 1): a('s_barrier')
        code_pf(); vm.issue()
        setup()
        wq0 = list(wq); w_early(); wq[:] = wq0
        S(T0, '(((w*16 + ((j ^ 1) & 15))*2 + (j >> 4))*8 + x)*512 + AINB')
        S(T2, ('(((j ^ 1) & 15)*8 + w*2)*512' if TL else '(((j ^ 1) & 7)*8 + w*2 + ((j >> 3) & 1))*512') + ' + x*64 + (j >> 4)*4 + INA')
        va(vT + 6, [(0, 1, 128 * 512), (1, 1, 512)] if TL else [(0, 2, 64 * 512)])
        vm.wait('c')
        self.unpack(cv + 2, cv + 3, cv + 1)
        a(f'v_and_b32 v{cv+1}, s{sMASK}, v{cv}'); a(f'v_lshlrev_b32 v{cv}, 16, v{cv}')
        for i in range(4): self.silu(cv + i, vT + (i & 1))
        gops = self.gemv_ops([raw + 4 * i for i in range(4)], [cv + i for i in range(4)], acc, vT, vT + 1, True)
        for i in range(4):
            vm.wait(('wm', i))
            if i == 3: self.stamp('wmok')
            for s_ in gops[12 * i:12 * i + 12]: a(s_)
        for s_ in gops[48:]: a(s_)
        self.dw('ds_write_b32', vGA, acc, 1, L_A1 - SCR)
        self.barrier()
        a(f'ds_read_b128 {vr(acc, 4)}, v{vL32S} offset:{L_A1 - SCR}')
        tag_hash()
        a('s_waitcnt lgkmcnt(0)')
        self.pk('add', acc, acc, acc + 2)
        a(f"""v_add_f32 v{acc}, v{acc}, v{acc+1}
        v_mov_b32 v{acc+1}, s{sTAG}""")
        self.bs(acc, 2, vL8, rWS, T0, 0, 'sc1')
        a('s_mov_b64 exec, 15')
        self.bs(acc + 1, 1, vT + 6, rWS, T2, 0, 'sc1')
        a('s_mov_b64 exec, -1')
        self.stamp('A1pub')
        S(T0, '(wg*4 + w)*6144')
        for i in range(o.get('wpf', 0)):
            if i == 4: S(T0, 'T0 + 4096')
            self.bl(raw, 4, vL16, rW, T0, (i & 3) * 1024, o.get('wpfmod', ''))
        a('s_branch L_FJ')
        qG = list(vm.q)
        a('L_FS:')
        vm.reset(); lg.reset()
        a('s_barrier')
        for i in range(4): self.bl(raw + 4 * i, 4, vL16, rX, T3, 1024 * i, o.get('xsmod', ''), 'xs')
        pw0 = o.get('pw0', 'ab')
        if 'a' in pw0:
            S(T4, '(wg*4 + w - 4)*128 + INA')
            for q in range(2): a(f's_load_dword s{sPL + q}, {sr(rWS, 2)}, s{T4} offset:{q * 64} glc')
        if 's' in pw0:
            S(T4, '(wg*4 + w - 4)*256 + SINB')
            for q in range(4): a(f's_load_dword s{sPL + 2 + q}, {sr(rWS, 2)}, s{T4} offset:{q * 64} glc')
        if 'b' in pw0:
            S(T4, '(wg*32 + w - 4)*128 + INB')
            for q in range(2): a(f's_load_dword s{sPL + q}, {sr(rWS, 2)}, s{T4} offset:{q * 64} glc ; nowait')
        a(f"""s_lshl_b32 s{T6}, s{sXC}, 5
        v_mov_b32 v{vTk}, 1
        v_mov_b32 v{vTk+1}, s{T6}""")
        if o.get('bar1', 1): a('s_barrier')
        a(f"""s_cmp_lg_u32 s{sWAVE}, 7
        s_cbranch_scc1 L_NOTK
        s_mov_b64 exec, 1
        global_atomic_add v{vTk}, v{vTk+1}, v{vTk}, {sr(pDBG, 2)} sc0 sc1
        s_mov_b64 exec, -1
        s_branch L_TK0
        L_NOTK:""")
        code_pf()
        a('L_TK0:')
        vm.issue('tk')
        setup()
        w_early()
        S(T0, '(w - 4)*16 + L_ST'); va(vT + 6, [(5, 1, 8)], T0)
        a('s_barrier')
        vm.wait('xs')
        lg.wait_all()
        tag_hash()
        self.stamp('xsok')
        self.ln_stats2(raw, raw + 8, xs, st, st + 1)
        a(f"""v_lshrrev_b32 v{st}, 16, v{st}
        v_or_b32 v{st}, v{st}, v{st+1}
        v_mov_b32 v{st+1}, s{sTAG}""")
        self.dw('ds_write_b64', vT + 6, st, 2)
        a('L_FJ:')
        va(vT + 1, [(0, 2, 16)], None, L_ST)
        va(vT, [(0, 2, 16), (2, 1, 65536 if TL else 1024)])
        va(vT + 6, [(0, 5, 2048), (5, 1, 32)])
        va(vT + 2, [(0, 1, 64 * 512 if TL else 512), (1, 1, 256)])
        S(T2, ('((j >> 4)*128 + w*8 + x)*512' if TL else '((x & 6) + ((x & 1)*2 + (j >> 4))*64 + w*8)*512') + ' + ((j >> 2) & 3)*64 + (j & 3)*4 + 16 + INA')
        self.barrier()
        self.r128(st, vT + 1, 0, 'st')
        lg.wait('st')
        a('s_mov_b64 exec, 0xff')
        self.bs(st, 4, vT, rWS, T1, 0, 'sc1')
        a('s_mov_b64 exec, 15')
        self.bs(st + 1, 1, vT + 2, rWS, T2, 0, 'sc1')
        a('s_mov_b64 exec, -1')
        self.stamp('A2pub')
        a(f"""s_cmp_lg_u32 s{sWAVE}, 7
        s_cbranch_scc1 L_NOTK2
        s_mov_b32 s{T0}, 0
        s_waitcnt vmcnt({len(vm.q) - 1 - vm.q.index('tk')})
        L_TK:
        v_readfirstlane_b32 s{T2}, v{vTk}
        s_cmp_lt_u32 s{T2}, 32
        s_cbranch_scc1 L_TKOK
        v_mov_b32 v{vTk}, s{sTAG}
        s_mov_b64 exec, 1
        buffer_store_dword v{vTk}, v{vZ}, {sr(rWS, 4)}, 0 offen offset:{MARK} sc1
        s_mov_b64 exec, -1
        s_add_u32 s{T0}, s{T0}, 1
        s_cmp_lt_u32 s{T0}, 8
        s_cbranch_scc0 L_TKNO
        s_add_u32 s{sXC}, s{sXC}, 1
        s_and_b32 s{sXC}, s{sXC}, 7
        s_lshl_b32 s{T6}, s{sXC}, 5
        v_mov_b32 v{vTk}, 1
        v_mov_b32 v{vTk+1}, s{T6}
        s_mov_b64 exec, 1
        global_atomic_add v{vTk}, v{vTk+1}, v{vTk}, {sr(pDBG, 2)} sc0 sc1
        s_mov_b64 exec, -1
        s_waitcnt vmcnt(0)
        s_branch L_TK
        L_TKNO:
        s_and_b32 s{sXC}, s2, 7
        s_lshr_b32 s{T2}, s2, 3
        L_TKOK:
        s_lshl3_add_u32 s{T2}, s{T2}, s{sXC}""")
        if o.get('rawrole'): a(f's_mov_b32 s{T2}, s2')
        a(f"""v_mov_b32 v{vTk}, s{T2}
        ds_write_b32 v{vT+1}, v{vTk} offset:64
        L_NOTK2:""")
        self.barrier()
        a(f'ds_read_b32 v{mq}, v{vT+1} offset:64'); lg.issue('role')
        lg.wait('role')
        a(f'v_readfirstlane_b32 s2, v{mq}')
        self.stamp('role')
        V.release(raw, 16); V.release(cv, 4)
        S(sX, 'wg & 7'); S(sJ, 'wg >> 3')
        S(sCB, 'j & 15' if TL else '(x & 1)*8 + (j & 7)')
        S(sRT, 'x*2 + (j >> 4)' if TL else '(x >> 1)*4 + (j >> 3)')
        S(sGTB, 'rt*4 + (w & 3)')
        S(sC32, 'cb*2 + kh')
        S(T5, 'gtb*65536 + c32*64')
        ld_xt = lambda: [self.bl(xr + 4 * q, 4, vT + 6, rX, T5, 16 * q, o.get('xtmod', ''), 'xt') for q in range(2)]
        if not o.get('xtlate', 0): ld_xt()
        S(T0, '(((x >> 1)*16 + cb)*16 + w)*512 + AINB')
        S(T2, '(wg*8 + w)*64 + INA')
        def role_prep():
            S(sR1, 'j & 15' if HL else '(x & 4)*2 + (j >> 2)'); S(sHP, '((x >> 2)*2 + (x & 1))*4 + (x & 2) + (j >> 4)' if HL else '(x & 3)*4 + ((j & 3) ^ 2)')
            S(sU0, o.get('u0', 'j & 12'))
            w_next(wb[0])
            S(sINB, '(wg*64 + w)*64 + INB')
            S(sKF, 'kh ^ (j >> 4)'); S(sROT, o.get('rot', '(((j >> 3) ^ j) & 1)*q'), q=4 if D2 else 8)
            S(sFS, 'x*7 + (j >> 2)'); S(sKQ, 'j & 3')
            va(vT + 4, [(0, 5, 8)])
            va(vT, [(0, 5, 16), (5, 1, 4096)])
            S(T3, 'w*4 + L_MP'); va(vT + 1, [(0, 6, 64)], T3)
            S(T3, 'kh*1024 + L_MP'); va(vT + 2, [(0, 4, 32), (5, 1, 512)], T3)
        S(T1, '(wg*4 + (w & 3))*256 + SINB')
        self.spoll([(0, 8, T2, 0)], (0, 1, 4, 5, 6, 7), work=role_prep)
        self.stamp('apre')
        if o.get('abar', 2) == 1: a('s_barrier')
        st_ld = lambda: self.bl(st, 2, vT + 4, rWS, T1, 0, 'sc1', 'st')
        def st_fetch():
            st_ld()
            if o.get('abar', 2) == 2: a('s_barrier')
            if o.get('xtlate', 0): ld_xt()
            S(T3, 'hp*4096 + w*512')
            a(f'v_add_u32 v{vT+6}, s{T3}, v{vL16}')
            S('m0', 'w*512 + L_WPHI')
            a('s_mov_b32 exec_hi, 0')
            a(f'global_load_lds_dwordx4 v{vT+6}, {sr(pWPHI, 2)}'); vm.issue()
            a('s_mov_b32 exec_hi, -1')
            w_next(wb[1])
        self.try_load(lambda: self.bl(mq, 4, vT, rWS, T0, 0, 'sc1'), [mq + 1, mq + 3], vT + 3, st_fetch)
        self.stamp('modok')
        a(f'ds_write2_b32 v{vT+1}, v{mq}, v{mq+2} offset0:0 offset1:8'); lg.issue()
        if not o.get('xtlate', 0):
            for i in range(8): self.unpack(xs + 2 * i, xs + 2 * i + 1, xr + i)
        self.barrier()
        mp = V.alloc(16); hp = V.alloc(8)
        for i in (2, 3, 0, 1): self.r128(mp + 4 * i, vT + 2, (i >> 1) * 2048 + (i & 1) * 16, i >> 1)
        w_next(wb[2])
        self.finish_load('st', st_ld, [st + 1], None)
        if o.get('xtlate', 0):
            vm.wait('xt')
            for i in range(8): self.unpack(xs + 2 * i, xs + 2 * i + 1, xr + i)
        self.stamp('statok')
        self.unpack(st + 1, st, st)
        a(f'v_rcp_f32 v{st}, v{st}')
        for i in E2: self.pk('add', xs + i, xs + i, st + 1, bc=(1,), neg=(1,))
        S(T0, '(((rt*16 + cb)*4 + (w & 3))*2 + kh)*2048 + HF')
        va(vT + 4, [(0, 4, 16), (4, 1, 1024), (5, 1, 512)])
        lg.wait(1); self.sum8(mp + 8)
        self.round1(mp + 8)
        lg.wait(0); self.sum8(mp)
        a(f'v_add_f32 v{mp+8}, 1.0, v{mp+8}')
        self.round2(mp + 8, mp)
        PKM = o.get('pkm', 1)
        if PKM:
            mb = V.alloc(32)
            S(T3, 'w*256 + L_MB'); va(vT, [(0, 4, 4), (5, 1, 64)], T3); va(vT + 1, [(5, 1, 64)], T3)
            a(f'ds_write2_b32 v{vT}, v{mp+8}, v{mp} offset0:0 offset1:32'); lg.issue()
            for q in range(8): self.r128(mb + 4 * q, vT + 1, (q >> 2) * 128 + (q & 3) * 16, ('mb', q))
        for h in range(2):
            rg = range(8 * h, 8 * h + 8)
            self.round_list([xs + i for i in rg])
            for i in range(8 * h, 8 * h + 8, 2): self.pk('mul', xs + i, xs + i, st, bc=(1,))
            self.round_list([xs + i for i in rg])
        for h in range(2):
            rg = range(8 * h, 8 * h + 8)
            if PKM:
                lg.wait(('mb', 2 * h + 1))
                for i in range(8 * h, 8 * h + 8, 2): self.pk('mul', xs + i, xs + i, mb + i)
            else:
                for i in rg: self.dpp('v_mul_f32', xs + i, mp + 8, xs + i, f'row_newbcast:{i}')
            self.round_list([xs + i for i in rg])
            if PKM:
                lg.wait(('mb', 4 + 2 * h + 1))
                for i in range(8 * h, 8 * h + 8, 2): self.pk('add', xs + i, xs + i, mb + 16 + i)
            else:
                for i in rg: self.dpp('v_add_f32', xs + i, mp, xs + i, f'row_newbcast:{i}')
            for i in range(4 * h, 4 * h + 4): a(f'v_cvt_pk_bf16_f32 v{hp+i}, v{xs+2*i}, v{xs+2*i+1}')
            self.bs(hp + 4 * h, 4, vT + 4, rWS, T0, 256 * h, 'sc1', 'hs')
        if PKM: V.release(mb, 32)
        self.stamp('hst')
        w_next(wb[3])
        va(vB, [(5, 1, 2080), (2, 2, 128), (3, 1, 64), (0, 2, 8)])
        va(vB + 1, [(4, 1, 1056)])
        va(vB + 2, [(3, 1, 128)])
        a(f"""v_add_u32 v{vB}, v{vB}, v{vB+1}
        v_sub_u32 v{vB+1}, v{vB}, v{vB+2}
        v_add_u32 v{vB+1}, 64, v{vB+1}""")
        for q in (1, 2):
            for h in range(2): a(f'v_add_u32 v{vB+2*q+h}, {2*q*SLOT}, v{vB+h}')
        S(T1, 'kh*2048 + L_WPHI')
        va(vT, [(2, 2, 64), (4, 1, 32), (0, 2, 8), (5, 1, 512)], T1)
        va(vT + 1, [(0, 3, 4096), (3, 1, 128 * 4096)] if HL else [(0, 2, 8 * 4096), (2, 2, 4096)])
        S(T0, ('rt*32768' if HL else '((rt >> 3)*4 + (rt & 7)*32)*4096') + ' + (cb >> 1)*64 + (cb & 1)*4 + INB')
        va(vT + 2, [(4, 1, 64), (5, 1, 16)]); va(vWo, [(0, 3, 16)])
        a(f'v_xor_b32 v{vWo}, v{vWo}, v{vT+2}'); va(vT + 2, [(3, 3, 2048)]); a(f'v_add_u32 v{vWo}, v{vWo}, v{vT+2}')
        S(T1, '(w & 2)*32'); va(vT + 2, [(4, 1, 32)], T1); va(vFG, [(0, 3, 16)])
        a(f'v_xor_b32 v{vFG}, v{vFG}, v{vT+2}'); va(vT + 2, [(3, 3, 7168)]); a(f'v_add_u32 v{vFG}, v{vFG}, v{vT+2}')
        S(T1, '(w & 1)*128')
        va(vT + 2, [(5, 1, 64)], T1); va(vFD, [(0, 5, 16), (5, 1, 2048)])
        a(f'v_xor_b32 v{vFD}, v{vFD}, v{vT+2}')
        S(sFG, '(kq*8 + w)*(32*7168) + fs*128'); S(sFD, '(fs*8 + w)*16384 + kq*512')
        a(f"""s_cmp_ge_u32 s{sJ}, 28
        s_cselect_b32 s{rWG+2}, 0, s{rWG+2}
        s_cselect_b32 s{rWU+2}, 0, s{rWU+2}
        s_cselect_b32 s{rWD+2}, 0, s{rWD+2}""")
        vm.wait('hs')
        a('s_barrier')
        self.push(vT + 1, T0, 16, vT + 2, 'L_PB')
        self.stamp('hpub')
        V.release(xs, 16); V.release(mp, 16); V.release(hp, 8); V.release(st, 4); V.release(mq, 4); V.release(vTk, 2)
        w_next(wb[4])
        for s in range(2):
            for u in range(2): self.tr(wphi + 4 * s + 2 * u, vT, s * 1024 + u * 256)
        AD, LOOK, LASTB = o['AD'], o.get('LOOK', 6), o['LASTB']
        accs = V.alloc(96)
        big = V.alloc(76)
        Ar, Br = big, big + 4 * AD
        assert 4 * AD + 4 * (LOOK + 1) <= 76
        S(T2, '(r1*64 + w)*4096 + HF')
        S(T0, '(w & 3)*4096 + L_XF'); a(f'v_add_u32 v{vXF}, s{T0}, v{vL16}')
        vXW = V.alloc(); vVW = V.alloc()
        va(vXW, [(0, 4, 16), (5, 1, 512), (4, 1, 8)], T0)
        S(T0, '(w & 3)*1024 + L_V'); va(vVW, [(0, 4, 32), (4, 2, 8)], T0)
        S(T0, '(w & 3)*1024 + kh*16384 + L_PHK'); va(vPW, [(0, 5, 32), (5, 1, 16)], T0)
        fq = [(m, i) for m in range(3) for i in range(4)]
        freg = []
        def f_src(m, i, back=0, T0=T0):
            if m < 2: S(T0, 'fg + q', q=i * 8 * 7168 - back * 4 * 32 * 7168)
            else: S(T0, 'fd + q', q=i * 4096 - back * 4 * 16384)
            return (vFG, (rWG, rWU)[m]) if m < 2 else (vFD, rWD)
        def f_lds(m, i): return (L_GU + m * 32768 if m < 2 else L_DN) + i * 1024
        def ffn_reg(n):
            for _ in range(n):
                m, i = fq.pop(0)
                for back in range(2):
                    v, r = f_src(m, i, back)
                    self.bl(big + 8 * len(freg) + 4 * back, 4, v, r, T0, 0, o.get('ntffn', 'nt'), 'ffn')
                freg.append((m, i))
        def ffn_dma(n, T0=T0):
            for _ in range(n):
                m, i = fq.pop(0)
                if o.get('nofd'): continue
                v, r = f_src(m, i, 0, T0)
                S('m0', 'w1k*4 + q', q=f_lds(m, i))
                self.dma(v, r, T0, 0, o.get('ntffn', 'nt'), 'gu' if m < 2 else 'dn')
        S(sWB, 'w*16384' if D2 else '(rot*4 + w)*16384'); S(sWO2, '(j >> 4)*1048576 + cb*128'); S(sW1K, 'w*1024')
        def wo_dma(it, back=0, T0=T0):
            S(T0, '(((wb + q) & 0xfffff) ^ (rot*65536)) + (wo2 ^ h)' if D2 else '((wb + q) & 0xfffff) + (wo2 ^ h)', q=(8 * it - 4 * back) * 16384, h=(it >> 3) << 20)
            S('m0', 'w1k + q', q=WO_H0 + it * 8192 - 4096 * back)
            self.dma(vWo, rWO, T0, 0, '', 'wo')
        self.inbox(0, 2, work=lambda: w_next(wb[5]), pipe=o.get('pipeB', 0))
        assert len(wq) % 3 == 0 and 30 <= len(wq) <= (45, 36, 36, 42)[o.get('wxor', 1)]
        NPU = 16 - len(wq) // 3
        vm.wait(('W', (0, 2, 3, 1)[o.get('wxor', 1)]))
        a('s_barrier')
        self.stamp('hok')
        a(f"""s_cmp_ge_u32 s{sWAVE}, 4
        s_cbranch_scc1 L_HELP
        s_setprio 2""")
        q_hok = list(vm.q)
        if 'pad' in o:
            a('.p2align 6')
            for _ in range(o['pad']): a('s_nop 0')
        def a_load(sg):
            if sg % 4 == 0: S(T3, '((u0 + n) & q)*16384 + T2', n=sg // 4, q=o.get('amask', 15))
            self.bl(Ar + 4 * (sg % AD), 4, vL16, rWS, T3, (sg % 4) * 1024, o.get('amod', 'sc1'), ('A', sg))
        CORD = [(1, 2), (1, 3), (1, 0), (1, 1)] + [(t, ct) for t in (0, 2) for ct in range(4)]
        WEV = o.get('wev', 2); NB = LOOK + 1
        def b_read(n, q):
            st_, c = divmod(n, 12); t, ct = CORD[c]
            slot = (st_ >> 1) % 6
            off = (slot & 1) * SLOT + t * SEC + (st_ & 1) * 4160 + (ct & 1) * 32 + q * 512
            self.tr(Br + 4 * (n % NB) + 2 * q, vB + 2 * (slot >> 1) + (ct >> 1), off, ('B', n))
        nxt = 0
        def a_more(lim):
            nonlocal nxt
            while nxt < min(lim, 64): a_load(nxt); nxt += 1
        a_more(2)
        for n in range(LOOK):
            for q in range(2): b_read(n, q)
        a_more(o.get('A0', 4))
        b14 = False
        for n in range(384):
            st_, c = divmod(n, 12); t, ct = CORD[c]
            if n % WEV == 0: lg.wait(('B', min(n + WEV - 1, 383)))
            for th in range(2):
                if c == 0: vm.wait(('A', 2 * st_ + (th if st_ < 2 or not o.get('vw1', 1) else 1)))
                d = accs + 32 * t + 16 * (ct >> 1) + 8 * (ct & 1) + 4 * th
                a(f'v_mfma_f32_16x16x32_bf16 {vr(d, 4)}, {vr(Br + 4*(n % NB), 4)}, {vr(Ar + 4*((2*st_ + th) % AD), 4)}, ' + ('0' if st_ == 0 else vr(d, 4)))
                if n + LOOK < 384:
                    if th == 0 and (n + LOOK) % 24 == 0 and (n + LOOK) // 24 <= LASTB: a('s_barrier')
                    b_read(n + LOOK, th)
            if c in o.get('aat', (0, 3, 6, 9)): a_more(min(nxt + 1, 2 * st_ + AD))
            if nxt == 64 and not b14 and (n + LOOK) // 24 >= LASTB and (n + LOOK) % 24:
                b14 = True; a('s_barrier')
        self.stamp('gemm1')
        aq, ak, av = accs, accs + 32, accs + 64
        def cvt8(d, s_, swap=True):
            for c in range(2):
                for th in range(2):
                    for ip in range(2): a(f'v_cvt_pk_bf16_f32 v{d + 4*c + 2*th + ip}, v{s_ + 8*c + 4*th + 2*ip}, v{s_ + 8*c + 4*th + 2*ip + 1}')
            if swap:
                for c in range(2):
                    for ip in range(2): a(f'v_permlane16_swap_b32 v{d + 4*c + ip}, v{d + 4*c + 2 + ip}')
        def put8(addr, d, off, oc_, ot):
            for c in range(2):
                for th in range(2): self.dw('ds_write_b64', addr, d + 4 * c + 2 * th, 2, off + c * oc_ + th * ot)
        cvt8(vv, ak + 16, False)
        put8(vXW, vv, 0, 1024, 256)
        cvt8(fr, ak)
        self.barrier()
        a('s_setprio 0')
        pp = ak; ee = ak + 16
        def phi_logits(src):
            a(f'v_mfma_f32_32x32x16_bf16 {vr(pp, 16)}, {vr(wphi, 4)}, {vr(src, 4)}, 0')
            a(f'v_mfma_f32_32x32x16_bf16 {vr(pp, 16)}, {vr(wphi + 4, 4)}, {vr(src + 4, 4)}, {vr(pp, 16)}')
        phi_logits(fr)
        for h in range(2):
            cvt8(vv if h == 0 else vq, av + 16 * h, False)
            put8(vVW, vv if h == 0 else vq, h * 8192, 4096, 512)
        cvt8(fr, aq + 16, False)
        put8(vXW, fr, 2048, 1024, 256)
        cvt8(vq, aq)
        a('s_branch L_JOIN')
        a('L_HELP:')
        vm.q = [('W', 1)] * len(q_hok) if o.get('wxor', 1) == 1 else list(q_hok); lg.reset()
        m2w = accs; m2c = accs + 32; g4 = accs + 48
        def w_unit(n):
            for wexpr in ('w - 4', 'w'):
                w_base(n, wexpr)
                for t in range(3):
                    w_slot(n, t)
                    if o.get('pace', 0) and n >= 6: a(f's_sleep {o["pace"]}')
        for n in range(NPU, 6): w_unit(n)
        S(T0, '((j & 3)*4 + w - 4)*128' if HL else '((x & 3)*4 + w - 4)*128')
        va(vCo, [(3, 3, 16)], T0)
        va(vWM, [(3, 3, 8 * 12288), (0, 3, 16)])
        S(T4, 'T0*6144 + (((j >> 2) & 3)*16 + x*2 + (j >> 4))*128 + 4096' if HL else 'T0*6144 + (j*2 + (x >> 2))*128 + 4096')
        a(f'global_load_dwordx4 {vr(m2c + 8, 4)}, v{vCo}, {sr(pC, 2)}'); vm.issue('m2c')
        m2l = list(range(8)); wol = [9, 10, 11, 12]; pwl = list(range(1, 8)); sil = list(range(8))
        m2ops = self.gemv_ops([m2w + 4 * i for i in range(8)], [m2c + i for i in range(8)], acc, vT, vT + 1, False)
        m2pos = 0
        m2q = accs; wr1 = accs + 8; vM2 = accs + 9
        ld_m2 = lambda: [self.bl(m2q + 4 * q, 4, vM2, rWS, T5, q * 1024, 'sc1', 'm2q') for q in range(2)]
        def m2_final():
            self.finish_load('m2q', ld_m2, [m2q + 1, m2q + 3, m2q + 5, m2q + 7], vT)
            q0, q1, q2, q3 = m2q, m2q + 1, m2q + 2, m2q + 3
            S(T0, '(w & 3)*128 + L_MT'); va(vT, [(0, 5, 4)], T0)
            S(T1, 'w & 3')
            a(f"""v_add_f32 v{q0}, v{m2q}, v{m2q+4}
            v_add_f32 v{q1}, v{m2q+2}, v{m2q+6}
            v_add_f32 v{q2}, v{m2q}, v{m2q+4}""".replace(f'v_add_f32 v{q2}, v{m2q}, v{m2q+4}', f'v_mov_b32 v{q2}, v{q0}'))
            a(f"""v_mov_b32 v{q3}, v{q1}
            s_cmp_eq_u32 s{T1}, 2
            s_cselect_b32 s{T2}, 1.0, 0
            v_permlane32_swap_b32 v{q0}, v{q2}
            v_permlane32_swap_b32 v{q1}, v{q3}""")
            self.pk('add', q0, q0, q2)
            self.round2(q0, q1)
            a(f"""v_add_f32 v{q0}, s{T2}, v{q0}
            v_add_f32 v{q1}, s{T2}, v{q1}
            v_cvt_pk_bf16_f32 v{q2}, v{q0}, v{q1}""")
            self.dw('ds_write_b32', vT, q2, 1)
            a('s_cbranch_scc0 L_NOG')
            g0, g1, gh, gl = m2q + 4, m2q + 5, m2q + 6, m2q + 7
            self.unpack(q0, q1, q2); self.unpack(g0, g1, wr1)
            self.pk('mul', g0, g0, q0)
            a(f'v_cvt_pk_bf16_f32 v{gh}, v{g0}, v{g1}')
            self.unpack(q0, q1, gh)
            self.pk('add', q0, g0, q0, neg=(1,))
            a(f"""v_cvt_pk_bf16_f32 v{gl}, v{q0}, v{q1}
            v_add_f32 v{q0}, v{g0}, v{g1}
            ds_write2_b32 v{vT}, v{gh}, v{gl} offset0:64 offset1:96
            ds_write_b32 v{vT}, v{wr1} offset:512""")
            for ctl in ('quad_perm:[1,0,3,2]', 'quad_perm:[2,3,0,1]', 'row_half_mirror', 'row_ror:8'): self.dpp('v_add_f32', q0, q0, q0, ctl)
            S(T0, '(rt*16 + cb)*8 + GR')
            a(f"""v_mov_b32 v{q2}, v{q0}
            v_mov_b32 v{q1}, s{sTAG}
            v_permlane16_swap_b32 v{q0}, v{q2}
            v_add_f32 v{q0}, v{q0}, v{q2}
            s_mov_b64 exec, 1""")
            self.bs(q0, 2, vZ, rWS, T0, 0, 'sc1', count=False)
            a("""s_mov_b64 exec, -1
        L_NOG:""")
        def act(op, k):
            nonlocal m2pos
            kind, n = op[0], int(op[1:] or 1)
            if kind == 'm':
                for _ in range(2 * n):
                    i = m2l.pop(0)
                    self.bl(m2w + 4 * i, 4, vWM, rWM, T4, 0, o.get('ntm2', 'nt'), ('m2', i))
                    if m2l: S(T4, 'T4 + 12288')
            elif kind == 'f': ffn_reg(n)
            elif kind == 'o':
                assert k >= 13
                for _ in range(n):
                    it = wol.pop(0); wo_dma(it, 1); wo_dma(it)
            elif kind == 'p':
                a('s_waitcnt lgkmcnt(0)')
                for q in range(n):
                    b = pwl.pop(0)
                    a(f's_load_dword s{sPL + 2*q}, {sr(rWS, 2)}, s{sINB} offset:{b * 512} glc')
                    a(f's_load_dword s{sPL + 2*q + 1}, {sr(rWS, 2)}, s{sINB} offset:{b * 512 - 256} glc')
            elif kind == 'q':
                S(T0, 'fs*8192 + (w - 4)*256 + HGR')
                a('s_waitcnt lgkmcnt(0)')
                for q in range(4): a(f's_load_dword s{sPL + q}, {sr(rWS, 2)}, s{T0} offset:{q * 2048 + 1024 + 252} glc')
            elif kind == 'z':
                for i in range(4): a(f'v_mov_b32 v{g4+i}, -1')
                if n == 1:
                    for we in ('w - 4', 'w'):
                        S(T0, f'(((r1*4 + (w & 3))*16 + hp)*2 + (({we}) >> 2))*2048 + OF')
                        for q in range(2): self.bs(g4, 4, vL16, rWS, T0, 1024 * q, 'sc1', 'pzo')
                else:
                    for we in ('w - 4', 'w'):
                        S(T0, f'((hp*8 + {we})*32 + r1)*1024 + KVP'); S(T1, 'T0 + 16384')
                        self.bs(g4, 4, vL16, rWS, T0, 0, 'sc1', 'pz'); self.bs(g4, 4, vL16, rWS, T1, 0, 'sc1', 'pz')
                    S(T0, '((hp*8 + w - 4)*16 + r1)*64 + ZP')
                    va(vT + 2, [(0, 2, 16), (2, 1, 4096)])
                    a('s_mov_b64 exec, 0xff')
                    self.bs(g4, 4, vT + 2, rWS, T0, 0, 'sc1', 'pz')
                    a('s_mov_b64 exec, -1')
            elif kind == 'M':
                va(vM2, [(0, 5, 16), (5, 1, 512)])
                S(T5, '((w & 3)*16 + cb)*2048 + MODP2')
                S(T0, 'cb*128'); va(vT, [(0, 5, 4)], T0)
                a(f'global_load_dword v{wr1}, v{vT}, {sr(pWR, 2)}'); vm.issue('m2q')
                ld_m2()
            elif kind == 'N': m2_final()
            elif kind == 'K':
                S(T0, '(hp*16 + r1)*1024 + (w & 3)*256 + KIN'); S(T1, 'hp*128 + CFL')
                a(f'v_lshlrev_b32 v{vWM}, 7, v{vL}')
                a('s_mov_b64 exec, 3')
                self.bl(vWM, 1, vWM, rWS, T0, 0, '')
                self.bl(vCo, 1, vZ, rWS, T1, 0, '')
                a('s_mov_b64 exec, -1')
            elif kind == 'h':
                S(T0, '(fs*4 + kq)*2048 + (w & 1)*1024 + HGR'); S(T1, '(rt*16 + cb)*2048 + (w & 1)*1024 + STAT')
                if TL: a(f's_bitcmp1_b32 s{sWAVE}, 1'); a(f's_cselect_b32 s{T0}, s{T1}, s{T0}')
                self.bl(m2c + 12, 4, vL16, rWS, T0, 0, '')
            elif kind == 's':
                vm.wait('m2c')
                for _ in range(n):
                    i = sil.pop(0)
                    a(f'v_and_b32 v{m2c+i}, s{sMASK}, v{m2c+8+i//2}' if i & 1 else f'v_lshlrev_b32 v{m2c+i}, 16, v{m2c+8+i//2}')
                    self.silu(m2c + i, vT + (i & 1))
            elif kind == 'g':
                assert not sil
                for _ in range(n):
                    vm.wait(('m2', m2pos // 16))
                    for s_ in m2ops[m2pos:m2pos + 16]: a(s_)
                    m2pos += 16
            elif kind == 'r':
                assert m2pos == 128
                for s_ in m2ops[128:]: a(s_)
                self.dw('ds_write_b32', vGA, acc, 1, L_M2 - SCR)
                lg.wait_all()
            elif kind == 'P':
                a(f"""s_cmp_lg_u32 s{sWAVE}, 4
                s_cbranch_scc1 L_M2F
                ds_read_b128 {vr(acc, 4)}, v{vL32S} offset:{L_M2 - SCR}""")
                S(T0, '((((j >> 2) & 3)*16 + x*2 + (j >> 4))*4 + (j & 3))*512 + MODP2' if HL else '((j*2 + (x >> 2))*4 + (x & 3))*512 + MODP2')
                a(f"""s_waitcnt lgkmcnt(0)
                v_add_f32 v{acc}, v{acc}, v{acc+1}
                v_add_f32 v{acc+2}, v{acc+2}, v{acc+3}
                v_mov_b32 v{acc+1}, s{sTAG}
                v_add_f32 v{acc}, v{acc}, v{acc+2}""")
                self.bs(acc, 2, vL8, rWS, T0, 0, 'sc1', count=False)
                a('L_M2F:')
            else: raise ValueError(op)
        sched = {int(k): v.split() for k, v in o['sched'].items()}
        for op in sched.get(0, []): act(op, 0)
        for k in range(1, LASTB + 1):
            for kk in (range(k, 16) if k == LASTB else [k + 1 if k < 3 and o.get('wxor', 1) == 3 else k]): vm.wait(('W', kk))
            if o.get('ust'): self.stamp(f'w{k}')
            a('s_barrier')
            if o.get('ust'): self.stamp(f'u{k}')
            ops = sched.get(k, [])
            if 6 <= k + 4 < 16:
                pre = [op[1:] for op in ops if op[0] == '<']
                for op in pre: act(op, k)
                if not o.get('now2'): w_unit(k + 4)
            for op in ops:
                if op[0] != '<': act(op, k)
        if o.get('b14', 1):
            assert LASTB == 13 and AD <= 12
            a('s_barrier')
            for op in sched.get(14, []): act(op, 14)
        self.barrier()
        for q in range(2): self.r128(fr + 4 * q, vXF, q * 1024)
        lg.wait_all()
        phi_logits(fr)
        for op in sched.get(15, []): act(op, 15)
        assert (not m2l or o.get('nom2')) and not wol
        assert 8 * len(freg) <= 76
        a('L_JOIN:')
        pzq = list(vm.q)
        vm.reset(); lg.q = [None]
        V.release(vXW); V.release(vVW); V.release(vB, 6); V.release(vWd); V.release(vGA); V.release(vL32S); V.release(acc, 8)
        V.release(big + 8 * len(freg), 76 - 8 * len(freg))
        ph = aq; fx = aq + 16
        vPA = V.alloc(); vPB = V.alloc()
        self.softmax_pm(pp, ee, ph, vT)
        for fb in range(4): self.dw('ds_write_b128', vPW, ph + 4 * fb, 4, fb * 4096)
        S(T0, 'w*4096 + L_PHK'); a(f'v_add_u32 v{vPA}, s{T0}, v{vL8}')
        S(T0, 'kh*8192 + L_V'); a(f'v_add_u32 v{vPB}, s{T0}, v{vL8}')
        ones = fr
        for i in range(4): a(f'v_mov_b32 v{ones+i}, 0x3f803f80')
        S(T0, '((hp*8 + w)*32 + r1)*1024 + KVP'); S(T2, 'T0 + 16384')
        S(T3, '(hp*8 + w)*1024 + ZP'); S(T1, 'r1*64 + T3')
        self.stamp('ksm')
        self.barrier()
        self.stamp('phik')
        tb7 = V.alloc(8); tb4 = tb7 + 4
        S(T5, 'kh*64 + L_MT'); va(tb7 + 3, [(0, 3, 4), (5, 1, 32)], T5)
        for q, t in ((0, 0), (1, 4), (2, 5), (4, 1), (5, 2), (6, 3), (7, 6)): self.dr('ds_read_b32', tb7 + q, 1, tb7 + 3, t * 128)
        fragA = [ee + 4 * i for i in range(4)]
        fragB = [av + 4 * i for i in range(8)]
        kvd = vv; zd = fr + 4
        def kvm(u):
            lg.wait(('kv', u))
            for db in range(2):
                a(f'v_mfma_f32_16x16x32_bf16 {vr(kvd + 4*db, 4)}, {vr(fragA[u], 4)}, {vr(fragB[2*u+db], 4)}, ' + ('0' if u == 0 else vr(kvd + 4*db, 4)))
            a(f'v_mfma_f32_16x16x32_bf16 {vr(zd, 4)}, {vr(fragA[u], 4)}, {vr(ones, 4)}, ' + ('0' if u == 0 else vr(zd, 4)))
        for ts in range(4):
            self.tr(fragA[ts], vPA, ts * 1024, ('kv', ts)); self.tr(fragA[ts] + 2, vPA, ts * 1024 + 512, ('kv', ts))
            for db in range(2):
                self.tr(fragB[2*ts+db], vPB, db * 4096 + ts * 1024, ('kv', ts)); self.tr(fragB[2*ts+db] + 2, vPB, db * 4096 + ts * 1024 + 512, ('kv', ts))
            if ts >= 2: kvm(ts - 2)
        va(vPW, [(0, 4, 8 * 4096)] if HL else [(0, 3, 32 * 4096), (3, 1, 4 * 4096)])
        S(T4, '(wg & q)*4096 + (r1 >> 1)*64 + (r1 & 1)*4 + INB + 512', q=0x87 if HL else 0x1b)
        kvm(2); kvm(3)
        a(f"""s_cmp_lt_u32 s{sWAVE}, 4
        s_cbranch_scc1 L_NOQX
        ds_read_b128 {vr(vq, 4)}, v{vXF} offset:2048
        ds_read_b128 {vr(vq + 4, 4)}, v{vXF} offset:3072
        L_NOQX:""")
        if 'pz' in pzq: a(f's_waitcnt vmcnt({pzq[::-1].index("pz")})')
        self.bs(kvd, 4, vL16, rWS, T0, 0, 'sc1', 'kvs')
        self.bs(kvd + 4, 4, vL16, rWS, T2, 0, 'sc1', 'kvs')
        a('s_mov_b32 exec_lo, 0x00010001')
        a('s_mov_b32 exec_hi, 0x00010001')
        self.bs(zd, 4, vL, rWS, T1, 0, 'sc1', 'kvs')
        a('s_mov_b64 exec, -1')
        lg.wait_all()
        phi_logits(vq)
        self.stamp('kvst')
        wl = [2, 3, 4, 5, 6, 7, 8, 13, 14, 15, 0, 1]
        kp = av; zz = av + 16; g4 = vv
        vKP = V.alloc()
        va(vKP, [(3, 3, 1024), (0, 3, 16)])
        va(vXF, [(0, 3, 16), (5, 1, 8)])
        wo1 = lambda: wo_dma(wl.pop(0), 0, T6)
        keep = a.items; a.items = []
        self.softmax_pm(pp, ee, ph, vv)
        qsm = a.items; a.items = keep
        qcost = [2 if it[1].is_trans or 'permlane' in it[1].mn else 1 for it in qsm]
        qtot = sum(qcost); qdone = [0]
        def q_slice(upto):
            while qsm and qdone[0] < qtot * upto / 100:
                a.items.append(qsm.pop(0)); qdone[0] += qcost.pop(0)
        qs = o.get('qs', (35, 85, 100))
        CL = o.get('cl', (0, 1)); assert CL[1]
        q_slice(qs[0])
        S(T5, 'hp*128 + CFL'); S(T1, 'r1*8 + T5')
        vCF = V.alloc(); cf = V.alloc()
        va(vCF, [(0, 4, 8)])
        vm.wait('kvs')
        a('s_barrier')
        if CL[0]:
            a(f"""s_cmp_eq_u32 s{sLOC}, 0
            s_cbranch_scc1 L_PCG
            s_cmp_lg_u32 s{sWAVE}, 0
            s_cbranch_scc1 L_PC
            v_mov_b32 v{cf}, s{sTAG}
            s_mov_b64 exec, 1""")
            self.bs(cf, 1, vZ, rWS, T1, 0, '', count=False)
            a("""s_mov_b64 exec, -1
            s_branch L_PC
            L_PCG:""")
        self.push(vPW, T4, 16, vPB, 'L_PC')
        self.stamp('kvpub')
        assert HL and not CL[0]
        self.bl(tb7 + 3, 1, vZ, rWS, '0', MARK, 'sc1', 'mk')
        S(T0, '(hp*16 + r1)*16384 + w*128 + KVP')
        S(T2, '(hp*16 + r1)*1024 + w*128 + KIN'); S(T4, 'T4 + 6*512')
        c1_work = lambda: (self.weave(lambda: q_slice(qs[1]), [wo1] * o['wowin'][0]), self.stamp('cw'))
        if CL[0]:
            ld_cf = lambda: self.bl(cf, 1, vCF, rWS, T5, 0, 'sc1', 'cf')
            if o.get('cfpre', 1): ld_cf()
            c1_work()
            a(f"""s_cmp_lg_u32 s{sLOC}, 0
            s_cbranch_scc1 L_C1L""")
            q_ = list(vm.q)
            self.inbox(1, 2)
            a("""s_barrier
            s_branch L_C1D
            L_C1L:""")
            if o.get('cfpre', 1): self.finish_load('cf', ld_cf, [cf])
            else: self.poll(ld_cf, [cf])
            vm.q = q_
            a('L_C1D:')
        else:
            self.inbox(1, 2, work=c1_work)
            a('s_barrier')
        V.release(vCF); V.release(vWM); V.release(vCo)
        self.stamp('kvok')
        S(T5, 'T0 + 8192')
        ld_kp = lambda: (self.bl(kp, 4, vKP, rWS, T0, 0, 'sc1', 'kp'), self.bl(kp + 4, 4, vKP, rWS, T5, 0, 'sc1', 'kp'))
        ld_z = lambda: self.bl(zz, 4, vL16, rWS, T3, 0, 'sc1', 'z')
        ld_kp(); ld_z()
        S(T1, 'w*32 + L_ZF'); va(vT + 2, [(0, 2, 8), (5, 1, 4)], T1)
        S(T1, 'w*1024 + L_KVF'); va(vT + 1, [(0, 4, 16), (5, 1, 512), (4, 1, 8)], T1)
        S(T1, 'kh*128 + L_ZF'); va(vT + 3, [(5, 1, 16)], T1)
        S(T1, 'kh*4096 + L_KVF'); a(f'v_add_u32 v{vPA}, s{T1}, v{vL16}')
        def red4(r, ctls):
            for i in range(2): a(f'v_permlane32_swap_b32 v{r+i}, v{r+2+i}')
            self.pk('add', r, r, r + 2)
            for ctl in ctls:
                for i in range(2): self.dpp('v_add_f32', r + i, r + i, r + i, ctl)
            for i in range(2): a(f'v_mov_b32 v{r+2+i}, v{r+i}')
            for i in range(2): a(f'v_permlane16_swap_b32 v{r+i}, v{r+2+i}')
            self.pk('add', r, r, r + 2)
            a(f'v_cvt_pk_bf16_f32 v{r}, v{r}, v{r+1}')
        self.weave(lambda: q_slice(qs[2]), [wo1] * o['wowin'][1])
        vm.wait('kp')
        a(f'v_cmp_eq_u32 vcc, s{sTAG}, v{tb7+3}')
        a(f's_cmp_eq_u32 vcc_lo, 0')
        a(f's_cselect_b32 s{sLOC}, {o.get("local", 1)}, 0')
        self.pk('add', kp, kp, kp + 4); self.pk('add', kp + 2, kp + 2, kp + 6)
        red4(kp, ['row_ror:8'])
        a(f"""v_mov_b32 v{kp+1}, s{sTAG}
        s_mov_b32 exec_lo, 0xff
        s_mov_b32 exec_hi, 0xff""")
        kc = V.alloc(4)
        if CL[1]:
            self.bs2([(kp, 2, vXF, T2, 0)])
            a(f"""s_mov_b64 exec, -1
            v_mov_b32 v{kc}, v{kp}
            v_mov_b32 v{kc+1}, v{kp+1}
            v_add_u32 v{kc+2}, s{T2}, v{vXF}
            s_cbranch_scc1 L_PC2""")
        else:
            self.bs(kp, 2, vXF, rWS, T2, 0, 'sc1', count=False)
            a('s_mov_b64 exec, -1')
        a('s_barrier')
        self.push(vPW, T4, 16, vPB, 'L_PC2')
        self.stamp('c2pub')
        kf = av; zf = av + 16; num = pp; den = ee
        k2 = av + 8
        S(T0, '(hp*8 + w)*2048 + KIN')
        ld_k2 = lambda: [self.bl(k2 + 4 * q, 4, vL16, rWS, T0, q * 1024, 'sc1') for q in range(2)]
        def z_work():
            vm.wait('z')
            red4(zz, ['row_ror:4', 'row_ror:8'])
            self.dw('ds_write_b32', vT + 2, zz, 1)
            q_slice(100)
            self.stamp('c2w')
        ZP_ = o.get('zpre', 1)
        if ZP_: z_work()
        a(f"""s_cmp_lg_u32 s{sLOC}, 0
        s_cbranch_scc1 L_C2L""")
        l_ = list(lg.q)
        self.inbox(7, 2)
        lg.q = l_
        a('L_C2L:')
        self.try_load(ld_k2, [k2 + 1, k2 + 3, k2 + 5, k2 + 7], vT, None if ZP_ else z_work)
        for db in range(2):
            a(f'ds_write2_b32 v{vT+1}, v{k2+4*db}, v{k2+4*db+2} offset0:{64*db} offset1:{64*db+1}'); lg.issue()
        self.barrier()
        self.stamp('kvred')
        for fb in range(4): self.r128(zf + 4 * fb, vT + 3, fb * 32, ('zf', fb))
        for fb in range(4): self.r128(kf + 4 * fb, vPA, fb * 1024, ('kf', fb))
        for _ in range(o['wowin'][2]): wo1()
        S(T0, '(((r1*4 + (w & 3))*16 + hp)*2 + kh)*2048 + OF')
        va(vT + 4, [(0, 4, 16), (4, 1, 1024), (5, 1, 256)])
        for fb in range(4):
            lg.wait(('zf', fb))
            a(f'v_mfma_f32_32x32x16_bf16 {vr(den, 16)}, {vr(zf + 4*fb, 4)}, {vr(ph + 4*fb, 4)}, ' + ('0' if fb == 0 else vr(den, 16)))
        for fb in range(4):
            lg.wait(('kf', fb))
            a(f'v_mfma_f32_32x32x16_bf16 {vr(num, 16)}, {vr(kf + 4*fb, 4)}, {vr(ph + 4*fb, 4)}, ' + ('0' if fb == 0 else vr(num, 16)))
        self.round1(den)
        a(f'v_add_f32 v{den}, 0x358637bd, v{den}')
        self.round1(den)
        a(f'v_rcp_f32 v{den}, v{den}')
        for h in range(2):
            self.round_list([num + i for i in range(8 * h, 8 * h + 8)])
            for i in range(8 * h, 8 * h + 8, 2): self.pk('mul', num + i, num + i, den, bc=(1,))
            for i in range(4 * h, 4 * h + 4): a(f'v_cvt_pk_bf16_f32 v{vq+i}, v{num+2*i}, v{num+2*i+1}')
            self.bs(vq + 4 * h, 4, vT + 4, rWS, T0, 512 * h, 'sc1', 'os')
        self.stamp('ost')
        for r, n in ((fr, 8), (vv, 8), (vPW, 1), (vXF, 1), (vPA, 1), (vPB, 1), (vKP, 1), (accs, 96), (wphi, 8)):
            V.release(r, n)
        assert GS == 0
        vG16 = vL16
        vBa = V.alloc(4); xf = V.alloc(16)
        S(T4, 'kh*(65536 + 64) + WO_H0')
        va(vBa, [(5, 1, 2048), (4, 1, 512), (2, 2, 128), (3, 1, 64), (1, 1, 32), (4, 1, 16), (0, 1, 8)])
        a(f'v_xor_b32 v{vBa}, s{T4}, v{vBa}')
        for q, x_ in ((1, 16), (2, 64), (3, 80)): a(f'v_xor_b32 v{vBa+q}, {x_}, v{vBa}')
        assert WO_H1 == WO_H0 + 65536
        va(vT + 1, LCB)
        S(T2, ('((r1 & 1)*128 + (r1 >> 1))*4096' if TL else '((r1 >> 2)*2 + (r1 & 3)*64)*4096') + (' + ((hp >> 3)*4 + (hp & 3))*64 + ((hp >> 2) & 1)*4 + INB + 1024' if D2 else ' + (hp >> 1)*64 + (hp & 1)*4 + INB + 1024'))
        gaf = V.alloc(16); gp = V.alloc(16); gr = V.alloc(2); vGR = V.alloc(); cn = V.alloc(2)
        def expand(dst, t):
            for i in range(8):
                self.dpp('v_mul_u32_u24', dst + 2 * i, t, cn, f'row_newbcast:{i}')
                self.dpp('v_and_b32', dst + 2 * i + 1, t, cn + 1, f'row_newbcast:{i}')
        a(f"""v_mov_b32 v{cn}, 0x10000
        v_mov_b32 v{cn+1}, s{sMASK}""")
        for i in range(8): self.unpack(xf + 2 * i, xf + 2 * i + 1, xr + i)
        expand(gaf, tb7)
        S(T6, '(gtb*2 + kf)*32768 + OF')
        va(vGR, [(0, 4, 8)])
        vm.wait('os')
        self.barrier()
        self.push(vT + 1, T2, 16, vT + 2, 'L_PD')
        self.stamp('opub')
        def c_clean():
            if CL[1]:
                a("""s_mov_b32 exec_lo, 0xff
                s_mov_b32 exec_hi, 0xff""")
                self.bs(kc, 2, kc + 2, rWS, '0', 0, 'sc1')
                a('s_mov_b64 exec, -1')
            if CL[0]:
                S(T0, 'hp*128 + r1*8 + CFL')
                a(f"""s_cmp_lg_u32 s{sWAVE}, 0
                s_cbranch_scc1 L_NOCC
                v_mov_b32 v{cf}, s{sTAG}
                s_mov_b64 exec, 1""")
                self.bs(cf, 1, vZ, rWS, T0, 0, 'sc1', count=False)
                a("""s_mov_b64 exec, -1
                L_NOCC:""")
        if o.get('ccat', 3) == 0: c_clean()
        V.release(vq, 8)
        late_wo = bool(wl)
        while wl: wo_dma(wl.pop(0))
        V.release(vWo)
        MS = o.get('msum', 1)
        def d_work():
            for k in range(2):
                for i in range(8): a(f'v_mov_b32_dpp v{gp + 8*k + i}, v{tb7 + 1 + k} row_newbcast:{i} row_mask:0xf bank_mask:0xf')
            if MS:
                a(f"""v_and_b32 v{vT}, 3, v{vL}
                v_cmp_eq_u32 vcc, 1, v{vT}
                v_cmp_eq_u32 {sr(sCMP, 2)}, 0, v{vT}
                v_mov_b32 v{vT+1}, 0x3f803f80""")
                for i in range(8): a(f'v_cndmask_b32 v{gp+i}, v{gp+8+i}, v{gp+i}, vcc')
                for i in range(8): a(f'v_cndmask_b32 v{gp+i}, v{gp+i}, v{vT+1}, {sr(sCMP, 2)}')
            if o.get('stouch', TL):
                S(T2, '(rt*16 + cb)*2048 + w*256 + STAT')
                a(f'v_lshlrev_b32 v{gr}, 7, v{vL}')
                a('s_mov_b64 exec, 3')
                self.bl(gr, 1, gr, rWS, T2, 0, '')
                a('s_mov_b64 exec, -1')
            if late_wo or o.get('stouch', TL): vm.wait_all()
            self.stamp('dw')
        AD2 = o['AD2']
        LK2 = o.get('LK2', 4); NB2 = LK2 + 1
        accA = V.alloc(16); accB = V.alloc(16); Ar = V.alloc(4 * AD2); Br = V.alloc(4 * NB2)
        def b2_read(n, q):
            st_, c = divmod(n, 4)
            self.tr(Br + 4 * (n % NB2) + 2 * q, vBa + (c ^ 2), st_ * 4096 + q * 1024, ('B', n))
        def a2_load(s):
            if s % 2 == 0: S(T7, '(rot ^ n)*2048 + T6' if D2 else '((rot + n) & 15)*2048 + T6', n=(s // 2) & o.get('a2mask', 15))
            self.bl(Ar + 4 * (s % AD2), 4, vL16, rWS, T7, (s % 2) * 1024, o.get('a2mod', 'sc1'), ('A', s))
        self.inbox(2, 2, [0] if D2 else None, work=d_work)
        a('s_barrier')
        self.stamp('ook')
        if o.get('prio2', 1):
            a(f"""s_cmp_lt_u32 s{sWAVE}, 4
            s_cbranch_scc1 L_P2
            s_setprio {o.get('prio2', 1)}
            L_P2:""")
        nx2 = 0
        def a2_more(lim):
            nonlocal nx2
            while nx2 < min(lim, 32):
                if nx2 == 16 and D2:
                    a(f"""s_cmp_eq_u32 s{sPL + 1}, s{sTAG}
                    s_cbranch_scc1 L_D2""")
                    l_ = list(lg.q)
                    self.inbox(2, 2, [1])
                    lg.q = l_
                    a("""L_D2:
                    s_barrier""")
                a2_load(nx2); nx2 += 1
                if nx2 == 32:
                    ld_gr()
                    if o.get('ccat', 3) == 1: c_clean()
        S(T5, 'rt*128 + GR')
        ld_gr = lambda: self.bl(gr, 2, vGR, rWS, T5, 0, 'sc1', 'gr')
        a2_more(2)
        for n in range(LK2):
            for q in range(2): b2_read(n, q)
        a2_more(o.get('A20', 4))
        for n in range(64):
            st_, c = divmod(n, 4)
            if n % o.get('wev2', 1) == 0: lg.wait(('B', min(n + o.get('wev2', 1) - 1, 63)))
            for th in range(2):
                if c == 0: vm.wait(('A', 2 * st_ + (th if st_ == 0 or not o.get('vw2', 1) else 1)))
                d = (accB, accA)[c >> 1] + 8 * (c & 1) + 4 * th
                a(f'v_mfma_f32_16x16x32_bf16 {vr(d, 4)}, {vr(Br + 4*(n % NB2), 4)}, {vr(Ar + 4*((2*st_ + th) % AD2), 4)}, ' + ('0' if st_ == 0 else vr(d, 4)))
                if n + LK2 < 64: b2_read(n + LK2, th)
            if n == o.get('prio2n', 18): a('s_setprio 0')
            if c in o.get('a2at', (0, 1)): a2_more(min(nx2 + 1, 2 * st_ + AD2))
            if c == 3 and AD2 == 4: a2_more(2 * st_ + 6)
        self.stamp('gemm2')
        if o.get('prio2', 1): a('s_setprio 0')
        S(T0, 'w*4096')
        a(f'v_add_u32 v{vT}, s{T0}, v{vG16}')
        for q in range(4): self.dw('ds_write_b128', vT, accB + 4 * q, 4, L_EXCH - GS + q * 1024)
        for i in range(8): a(f'v_permlane16_swap_b32 v{accA + 8*(i >> 2) + (i & 3)}, v{accA + 8*(i >> 2) + 4 + (i & 3)}')
        S(T0, '(w ^ 4)*4096'); va(vT + 1, [(0, 4, 16), (4, 1, 1024), (5, 1, 512)], T0)
        S(T0, 'kh*2048 + (w & 3)*512 + L_SP'); va(vT + 2, [(0, 5, 16), (5, 1, 8)], T0)
        S(T0, 'kh*64 + L_TB'); va(vT + 3, [(0, 3, 4), (5, 1, 32)], T0)
        vSG = V.alloc()
        S(T6, 'rt*32768 + w*256 + STAT'); va(vSG, [(0, 4, 16), (4, 2, 2048)])
        sm = Br; one = Br + 4
        a(f'v_mov_b32 v{one}, 0x3f803f80')
        fd = list(o['fdma']); assert sum(fd) == len(fq)
        self.stamp('exw')
        self.barrier()
        self.stamp('ex1')
        for q in range(4): self.r128(accB + 4 * q, vT + 1, L_EXCH - GS + (q >> 1) * 2048 + (q & 1) * 256, ('ex', q))
        ffn_dma(fd[0], T1)
        for h in range(2):
            for q in (2 * h, 2 * h + 1):
                lg.wait(('ex', q))
                self.pk('add', accA + 4 * q, accA + 4 * q, accB + 4 * q); self.pk('add', accA + 4 * q + 2, accA + 4 * q + 2, accB + 4 * q + 2)
            rg = range(8 * h, 8 * h + 8)
            self.round_list([accA + i for i in rg])
            for i in range(8 * h, 8 * h + 8, 2): self.pk('mul', accA + i, accA + i, gaf + i)
            self.round_list([accA + i for i in rg])
            for i in range(8 * h, 8 * h + 8, 2): self.pk('add', accA + i, accA + i, xf + i)
            for i in range(4 * h, 4 * h + 4): a(f'v_cvt_pk_bf16_f32 v{xr+i}, v{accA+2*i}, v{accA+2*i+1}')
        self.stamp('x1c')
        if MS:
            for t in range(2): a(f'v_mfma_f32_32x32x16_bf16 {vr(accB, 16)}, {vr(gp + 4*t, 4)}, {vr(xr + 4*t, 4)}, ' + ('0' if t == 0 else vr(accB, 16)))
            for i in range(8): a(f'v_dot2_f32_bf16 v{sm + (i & 1)}, v{xr+i}, v{xr+i}, ' + ('0' if i < 2 else f'v{sm + (i & 1)}'))
            a(f"""v_add_f32 v{sm+2}, v{sm}, v{sm+1}
            v_add_f32 v{sm}, v{sm}, v{sm+1}
            v_permlane32_swap_b32 v{sm}, v{sm+2}
            s_mov_b32 exec_lo, 0
            v_add_f32 v{accB}, v{sm}, v{sm+2}
            v_mov_b32 v{accB+1}, v{accB+2}
            s_mov_b32 exec_lo, -1""")
            self.dw('ds_write_b64', vT + 2, accB, 2)
        else:
            for i in range(8):
                for d, b in ((sm, one), (sm + 2, xr + i), (sm + 1, gp + i), (sm + 3, gp + 8 + i)):
                    a(f'v_dot2_f32_bf16 v{d}, v{xr+i}, v{b}, ' + ('0' if i == 0 else f'v{d}'))
            a(f"""v_permlane32_swap_b32 v{sm}, v{sm+2}
            v_permlane32_swap_b32 v{sm+1}, v{sm+3}""")
            self.pk('add', sm, sm, sm + 2)
            self.dw('ds_write_b64', vT + 2, sm, 2)
        for q in range(4): self.dw('ds_write_b32', vT + 3, tb4 + q, 1, 128 * q)
        a(f'v_add_u32 v{vT}, {L_SP}, v{vL16}')
        va(vT + 1, LCB)
        S(T0, '(rt*16 + cb)*2048 + STAT')
        S(T3, ('((rt & 1)*128 + (rt >> 1))*4096' if TL else '((rt & 3)*64 + (rt >> 2)*2)*4096') + ' + (cb >> 1)*64 + (cb & 1)*4 + INB + 1536')
        self.barrier()
        self.stamp('x1st')
        a(f"""s_cmp_lg_u32 s{sWAVE}, 0
        s_cbranch_scc1 L_PE""")
        for q in range(4): a(f'ds_read_b128 {vr(accB + 4*q, 4)}, v{vT} offset:{(q & 1) * 2048 + (q >> 1) * 1024}')
        for h in range(2):
            b = accB + 8 * h
            a(f's_waitcnt lgkmcnt({2 - 2*h})')
            self.pk('add', b, b, b + 4); self.pk('add', b + 2, b + 2, b + 6)
            a(f"""v_add_f32 v{b+1}, v{b+1}, v{b+3}
            v_mov_b32 v{b+3}, s{sTAG}""")
        if TL:
            self.bs2([(accB + 8 * h, 4, vL16, T0, 1024 * h) for h in range(2)])
            a('s_cbranch_scc1 L_PE')
        else:
            for h in range(2): self.bs(accB + 8 * h, 4, vL16, rWS, T0, 1024 * h, 'sc1', count=False)
        a('s_mov_b64 exec, 0xffff')
        self.bs(accB + 3, 1, vT + 1, rWS, T3, 0, 'sc1', count=False)
        a("""s_mov_b64 exec, -1
        L_PE:""")
        self.stamp('x1pub')
        if o.get('ccat', 3) == 2: c_clean()
        V.release(accA, 16); V.release(accB, 16); V.release(Ar, 4 * AD2); V.release(Br, 4 * NB2); V.release(vBa, 4); V.release(xf, 16); V.release(gaf, 16); V.release(gp, 16)
        x1 = V.alloc(16); hh = V.alloc(16); mf = V.alloc(32); sg = V.alloc(16); op = V.alloc(8)
        st = V.alloc(2); vRid = V.alloc(); ck = V.alloc(4); vOT = V.alloc()
        ct = V.alloc(12, 4)
        def e_work():
            S(T3, '(w & 3)*(32*144) + kh*64'); va(vOT, [(0, 5, 144), (5, 1, 32)], T3)
            for q in range(2): self.dw('ds_write_b128', vOT, xr + 4 * q, 4, L_XT + 16 * q)
            a(f'v_add_u32 v{vOT}, {L_OT}, v{vOT}')
            S(T2, '4094 - (rt*8 + w)*32'); va(vRid, [(0, 4, 2)]); a(f'v_sub_u32 v{vRid}, s{T2}, v{vRid}')
            S(T2, 'w*128 + L_ST2'); va(vT + 4, [(0, 4, 8)], T2)
            S(T2, '(w & 3)*256 + L_ST2'); va(vT + 6, [(0, 5, 8)], T2)
            va(vT + 7, [(0, 3, 8)], None, L_K1)
            self.finish_load('gr', ld_gr, [gr + 1])
            for ctl in ('quad_perm:[1,0,3,2]', 'quad_perm:[2,3,0,1]', 'row_half_mirror', 'row_ror:8'): self.dpp('v_add_f32', gr, gr, gr, ctl)
            a(f"""s_cmp_lg_u32 s{sWAVE}, 1
            s_cbranch_scc1 L_NOCT""")
            va(vT + 1, [(0, 4, 8)], None, L_TB)
            a(f"""ds_read_b64 {vr(ct + 2, 2)}, v{vT+1}
            ds_read_b64 {vr(ct + 6, 2)}, v{vT+1} offset:128
            ds_read_b64 {vr(ct + 8, 2)}, v{vT+1} offset:384
            s_waitcnt lgkmcnt(0)""")
            for b in (ct, ct + 4):
                self.unpack(b, b + 1, b + 2); self.unpack(b + 2, b + 3, b + 3)
            a('L_NOCT:')
        def f_pre(part):
            if part == 0:
                a(f"""s_cmp_lt_u32 s{sWAVE}, 4
                s_cbranch_scc1 L_NOST""")
                S(T0, '(w - 4)*4096 + L_GU')
                a(f'v_add_u32 v{vT}, s{T0}, v{vL16}')
                a(f'v_add_u32 v{vT+3}, {L_DN - L_GU}, v{vT}')
                for n, (m, i) in enumerate(freg):
                    for back in range(2):
                        self.dw('ds_write_b128', vT if m < 2 else vT + 3, big + 8 * n + 4 * back, 4, f_lds(m, i) - (L_GU if m < 2 else L_DN) + (1 - back) * 16384)
                a('L_NOST:')
                return
            for i in range(8): self.unpack(x1 + 2 * i, x1 + 2 * i + 1, xr + i)
            expand(mf, tb4); expand(mf + 16, tb4 + 1)
        if TL:
            a(f"""s_cmp_lg_u32 s{sLOC}, 0
            s_cbranch_scc1 L_ELOC""")
            self.inbox(3, 2)
            a("""s_barrier
            L_ELOC:""")
        else:
            ffn_dma(fd[1])
            self.inbox(3, 2, work=lambda: (e_work(), f_pre(0)))
            a('s_barrier')
        self.stamp('x1ok')
        def ld_sg():
            for q in range(4):
                S(T0, 'T6 + q', q=q * 8192)
                self.bl(sg + 4 * q, 4, vSG, rWS, T0, 0, 'sc1')
        self.try_load(ld_sg, [sg + 3, sg + 7, sg + 11, sg + 15], vT, e_work if TL else lambda: f_pre(1))
        V.release(vSG)
        self.stamp('x1ld')
        if o.get('htouch', 1):
            S(T2, '(fs*4 + kq)*2048 + w*256 + HGR')
            vDum = V.alloc()
            a(f'v_lshlrev_b32 v{vDum}, 7, v{vL}')
            a('s_mov_b64 exec, 3')
            self.bl(vDum, 1, vDum, rWS, T2, 0, '')
            a('s_mov_b64 exec, -1')
        ffn_dma(fd[2], T2)
        A_, B_, C_, U_ = sg, sg + 1, sg + 2, sg + 3
        self.pk('add', sg, sg, sg + 4); self.pk('add', sg + 8, sg + 8, sg + 12)
        a(f"""v_add_f32 v{C_}, v{C_}, v{sg+6}
        v_add_f32 v{sg+10}, v{sg+10}, v{sg+14}""")
        self.pk('add', sg, sg, sg + 8)
        a(f"""v_add_f32 v{C_}, v{C_}, v{sg+10}
        v_mov_b32 v{U_}, v{B_}
        v_permlane32_swap_b32 v{A_}, v{C_}
        v_permlane32_swap_b32 v{B_}, v{U_}
        v_add_f32 v{A_}, v{A_}, v{C_}
        v_add_f32 v{B_}, v{B_}, v{U_}
        v_permlane16_swap_b32 v{A_}, v{B_}
        v_add_f32 v{U_}, v{A_}, v{B_}
        v_add_f32 v{A_}, v{A_}, v{B_}
        v_permlane16_swap_b32 v{A_}, v{U_}
        v_mul_f32 v{C_}, 0x3a800000, v{A_}
        v_mul_f32 v{A_}, 0x3a800000, v{A_}
        v_permlane32_swap_b32 v{A_}, v{C_}""")
        self.stat_math(A_, C_, st, st + 1)
        S(T0, 'w*8 + L_K1')
        a(f"""v_rcp_f32 v{st+1}, v{st+1}
        v_fma_f32 v{U_}, -v{st}, v{gr}, v{U_}
        v_mov_b32 v{vT+1}, s{T0}
        v_mul_f32 v{U_}, v{U_}, v{st+1}""")
        self.dw('ds_write_b64', vT + 4, st, 2)
        a(f"""s_movk_i32 s{T0}, 0xfff
        v_ashrrev_i32 v{A_}, 31, v{U_}
        v_or_b32 v{A_}, 0x80000000, v{A_}
        v_xor_b32 v{A_}, v{A_}, v{U_}
        v_bfi_b32 v{ck}, s{T0}, v{vRid}, v{A_}""")
        def top2(ctls, first):
            for n, ctl in enumerate(ctls):
                if n == 0 and first:
                    self.dpp('v_min_u32', ck + 1, ck, ck, ctl); self.dpp('v_max_u32', ck, ck, ck, ctl)
                    continue
                self.dpp('v_min_u32', ck + 2, ck, ck, ctl); self.dpp('v_max_u32', ck + 1, ck + 1, ck + 1, ctl); self.dpp('v_max_u32', ck, ck, ck, ctl)
                a(f'v_max_u32 v{ck+1}, v{ck+1}, v{ck+2}')
        top2(('row_ror:8', 'row_ror:4', 'row_ror:2', 'row_ror:1'), True)
        self.dw('ds_write_b64', vT + 1, ck, 2)
        va(vT + 2, [(0, 1, 128 * 4096), (1, 3, 4096)] if TL else [(0, 2, 64 * 4096), (2, 2, 2 * 4096)])
        S(T1, ('cb*32768' if TL else '((cb & 7)*8 + (cb >> 3))*4096') + ' + (rt >> 1)*64 + (rt & 1)*16 + INB + 2560')
        self.barrier()
        self.stamp('ln2')
        self.dr('ds_read_b64', ck, 2, vT + 7, 0, 'k'); self.dr('ds_read_b64', st, 2, vT + 6, 0, 's')
        lg.wait('k')
        top2(('quad_perm:[1,0,3,2]', 'quad_perm:[2,3,0,1]', 'row_half_mirror'), False)
        a(f"""v_or_b32 v{ck+2}, 1, v{ck+1}
        v_mov_b32 v{ck+1}, s{sTAG}
        v_mov_b32 v{ck+3}, s{sTAG}
        s_cmp_lg_u32 s{sWAVE}, 0
        s_cbranch_scc1 L_NOF
        s_mov_b64 exec, 0xffff""")
        self.bs(ck, 4, vT + 2, rWS, T1, 0, 'sc1', count=False)
        a("""s_mov_b64 exec, -1
        L_NOF:""")
        self.stamp('Fpub')
        a(f"""s_cmp_lg_u32 s{sWAVE}, 1
        s_cbranch_scc1 L_NOC
        v_and_b32 v{vT}, 16, v{vL}
        v_cmp_eq_u32 vcc, 0, v{vT}
        v_cndmask_b32 v{vT}, v{ck+2}, v{ck}, vcc
        v_not_b32 v{vT}, v{vT}
        v_bfe_u32 v{vT}, v{vT}, 1, 7
        v_lshlrev_b32 v{vT+2}, 3, v{vT}
        v_mul_u32_u24 v{vT}, 144, v{vT}
        v_add_u32 v{vT+2}, {L_ST2}, v{vT+2}""")
        va(vT + 1, [(0, 4, 8)])
        cx, cs, ch = sg, sg + 4, sg + 8
        a(f"""v_add_u32 v{vT}, v{vT}, v{vT+1}
        ds_read_b64 {vr(cs, 2)}, v{vT+2}
        ds_read_b64 {vr(cx, 2)}, v{vT} offset:{L_XT}""")
        va(vT + 2, [(0, 4, 16), (4, 1, 16384), (5, 1, 4096)])
        va(vT + 3, [(4, 1, 16384)])
        S(T0, 'rt*32768 + cb*256 + CAND'); S(T3, 'rt*32768 + cb*8 + 8192 + CAND')
        a(f"""v_mov_b32 v{cx+3}, s{sTAG}
        s_waitcnt lgkmcnt(0)""")
        self.unpack(ch, ch + 1, cx); self.unpack(ch + 2, ch + 3, cx + 1)
        for i in (0, 2): self.pk('add', ch + i, ch + i, cs, bc=(1,), neg=(1,))
        self.round_list([ch + i for i in range(4)])
        for i in (0, 2): self.pk('mul', ch + i, ch + i, cs + 1, bc=(1,))
        self.round_list([ch + i for i in range(4)])
        for i in (0, 2): self.pk('mul', ch + i, ch + i, ct + 4 + i)
        self.round_list([ch + i for i in range(4)])
        for i in (0, 2): self.pk('add', ch + i, ch + i, ct + i)
        a(f"""v_mov_b32 v{cx+2}, v{cx+1}
        v_mov_b32 v{cx+1}, s{sTAG}
        s_mov_b32 exec_hi, 0
        v_cvt_pk_bf16_f32 v{cx}, v{ch}, v{ch+1}
        v_cvt_pk_bf16_f32 v{cx+2}, v{ch+2}, v{ch+3}
        s_mov_b32 exec_hi, -1
        v_dot2_f32_bf16 v{cs}, v{cx}, v{ct+8}, 0
        v_mov_b32 v{cs+1}, s{sTAG}
        v_dot2_f32_bf16 v{cs}, v{cx+2}, v{ct+9}, v{cs}""")
        self.bs(cx, 4, vT + 2, rWS, T0, 0, 'sc1', count=False)
        for ctl in ('quad_perm:[1,0,3,2]', 'quad_perm:[2,3,0,1]', 'row_half_mirror', 'row_ror:8'): self.dpp('v_add_f32', cs, cs, cs, ctl)
        a('s_mov_b64 exec, 0x10001')
        self.bs(cs, 2, vT + 3, rWS, T3, 0, 'sc1', count=False)
        a("""s_mov_b64 exec, -1
        L_NOC:""")
        V.release(ct, 12)
        def ln2_tile():
            for i in E2: self.pk('add', hh + i, x1 + i, st, bc=(1,), neg=(1,))
            self.round_list([hh + i for i in range(16)])
            for i in E2: self.pk('mul', hh + i, hh + i, st + 1, bc=(1,))
            self.round_list([hh + i for i in range(16)])
            for i in E2: self.pk('mul', hh + i, hh + i, mf + 16 + i)
            self.round_list([hh + i for i in range(16)])
            for i in E2: self.pk('add', hh + i, hh + i, mf + i)
            self.round_list([hh + i for i in range(16)])
        lg.wait('s')
        self.stamp('cand')
        if o.get('ccat', 3) == 3: c_clean()
        V.release(kc, 4); V.release(cf)
        ffn_dma(fd[3])
        uu = V.alloc(16); vGr = V.alloc(); vDr = V.alloc(); vXs = V.alloc()
        def out_calc():
            expand(mf, tb4 + 2)
            for i in E2: self.pk('mul', hh + i, hh + i, mf + i)
            self.round_list([hh + i for i in range(16)])
            for i in E2: self.pk('add', hh + i, hh + i, x1 + i)
            for i in range(8): a(f'v_cvt_pk_bf16_f32 v{op+i}, v{hh+2*i}, v{hh+2*i+1}')
            for q in range(2): self.dw('ds_write_b128', vOT, op + 4 * q, 4, 16 * q)
            S(T3, 'w*(16*144) + L_OT'); va(vOT, [(3, 3, 144), (0, 3, 16)], T3)
        oc = o.get('ocat', 2 if TL else 1); l2 = o.get('l2at', 1 if TL else 0)
        def f_work():
            if TL: f_pre(0); f_pre(1)
            if l2 == 0: ln2_tile()
            if oc == 0: out_calc()
            S(T0, '(w >> 2)*32768 + (w & 3)*32 + L_GU')
            va(vGr, [(4, 2, 8192), (2, 2, 128), (3, 2, 32), (0, 2, 8)]); a(f'v_xor_b32 v{vGr}, s{T0}, v{vGr}')
            S(T0, 'w*64')
            va(vDr, [(2, 1, 512), (3, 1, 4096), (5, 1, 2048), (2, 2, 64), (4, 1, 32), (0, 2, 8)])
            a(f'v_xor_b32 v{vDr}, s{T0}, v{vDr}'); a(f'v_add_u32 v{vDr}, {L_DN}, v{vDr}')
            va(vXs, [(0, 3, 16), (4, 2, 128)], None, L_XS)
            S(T0, 'w*16 + L_K2'); a(f'v_mov_b32 v{vT}, s{T0}')
            va(vT + 1, [(0, 3, 16)], None, L_K2)
            a(f'v_and_b32 v{vT+4}, 8, v{vL}')
            a(f'v_cmp_eq_u32 {sr(sCMP, 2)}, 0, v{vT+4}')
            self.stamp('oc')
        self.inbox(5, 8, (1, 3, 5, 7), f_work)
        P = sPL
        a(f"""s_min_u32 s{P+1}, s{P}, s{P+4}
        s_max_u32 s{P}, s{P}, s{P+4}
        s_max_u32 s{P+3}, s{P+2}, s{P+6}
        s_min_u32 s{P+2}, s{P+2}, s{P+6}
        s_max_u32 s{P+4}, s{P+1}, s{P+3}
        s_min_u32 s{P+1}, s{P+1}, s{P+3}
        v_mov_b32 v{uu}, s{P}
        v_mov_b32 v{uu+3}, s{P+2}
        v_mov_b32 v{uu+1}, s{P+4}
        v_mov_b32 v{uu+2}, s{P+1}""")
        self.dw('ds_write_b128', vT, uu, 4)
        self.stamp('F2p')
        V.release(big, 8 * len(freg)); V.release(gr, 2); V.release(vGR); V.release(vRid)
        ffn = V.alloc(48); ga_ = V.alloc(16); gb_ = V.alloc(16)
        vm.wait('gu')
        self.barrier()
        self.stamp('F2')
        def gu_frags():
            for s in range(8):
                self.tr(ffn + 4 * s, vGr, s * 1024); self.tr(ffn + 4 * s + 2, vGr, s * 1024 + 512)
        a(f"""s_cmp_lt_u32 s{sWAVE}, 4
        s_cbranch_scc1 L_CSEL""")
        fq0, vq0 = list(fq), list(vm.q)
        if not o.get('f4late', 1): ffn_dma(fd[4])
        gu_frags()
        if l2 == 1: ln2_tile()
        if oc == 1: out_calc()
        if o.get('f4late', 1): ffn_dma(fd[4])
        a("""s_branch L_CSELD
        L_CSEL:""")
        lg.reset(); fq[:] = fq0; vm.q = vq0
        self.r128(uu, vT + 1)
        S(T0, 'w*512 + L_XS'); a(f'v_add_u32 v{vT+2}, s{T0}, v{vL8}')
        S(T0, 'w*4 + L_K3'); a(f'v_mov_b32 v{vT+3}, s{T0}')
        lg.wait_all()
        c4 = uu + 4
        for n, ctl in enumerate(('quad_perm:[1,0,3,2]', 'quad_perm:[2,3,0,1]', 'row_half_mirror')):
            for i in range(4): self.dpp('v_max_u32', c4 + i, uu + 3 - i, uu + i, ctl)
            if n == 2: break
            a(f"""v_max_u32 v{c4+4}, v{c4}, v{c4+2}
            v_max_u32 v{c4+5}, v{c4+1}, v{c4+3}
            v_min_u32 v{c4+6}, v{c4}, v{c4+2}
            v_min_u32 v{c4+7}, v{c4+1}, v{c4+3}
            v_max_u32 v{uu}, v{c4+4}, v{c4+5}
            v_min_u32 v{uu+1}, v{c4+4}, v{c4+5}
            v_max_u32 v{uu+2}, v{c4+6}, v{c4+7}
            v_min_u32 v{uu+3}, v{c4+6}, v{c4+7}""")
        for i in range(4): a(f'v_readfirstlane_b32 s{P+i}, v{c4+i}')
        a(f"""s_bitcmp1_b32 s{sWAVE}, 0
        s_cselect_b32 s{P}, s{P+1}, s{P}
        s_cselect_b32 s{P+2}, s{P+3}, s{P+2}
        s_bitcmp1_b32 s{sWAVE}, 1
        s_cselect_b32 s{P}, s{P+2}, s{P}
        s_and_b32 s{T2}, s{P}, 4095""")
        S(T0, '((15 - (T2 >> 8))*2 + (T2 & 1))*16384 + CAND'); S(T1, 'kq*1024 + T0'); S(T0, 'T0 + 8192')
        va(vT + 6, [(0, 4, 8)])
        def sel_work():
            self.stamp('sel')
            ffn_dma(fd[4], T3)
            gu_frags()
            if l2 == 1: ln2_tile()
            if oc == 1: out_calc()
            S(T2, 'T2*4 + w')
        self.try_load(lambda: (self.bl(uu + 4, 2, vT + 6, rWS, T0, 0, 'sc1'), self.bl(uu, 4, vL16, rWS, T1, 0, 'sc1')), [uu + 1, uu + 3, uu + 5], vT + 4, sel_work)
        a(f'ds_write2_b32 v{vT+2}, v{uu}, v{uu+2} offset0:0 offset1:1'); lg.issue()
        for ctl in ('quad_perm:[1,0,3,2]', 'quad_perm:[2,3,0,1]', 'row_half_mirror', 'row_ror:8'): self.dpp('v_add_f32', uu + 4, uu + 4, uu + 4, ctl)
        a(f"""v_cvt_pk_bf16_f32 v{uu+4}, 0, v{uu+4}
        v_ashrrev_i32 v{uu+5}, 31, v{uu+4}
        v_or_b32 v{uu+5}, 0x80000000, v{uu+5}
        v_xor_b32 v{uu+4}, v{uu+4}, v{uu+5}
        v_and_b32 v{uu+4}, s{sMASK}, v{uu+4}
        v_or_b32 v{uu+4}, s{T2}, v{uu+4}""")
        self.dw('ds_write_b32', vT + 3, uu + 4, 1)
        a('L_CSELD:')
        V.release(vFG); V.release(vFD)
        a(f'v_mov_b32 v{vT}, {L_K3}')
        va(vT + 4, [(0, 4, 16), (5, 1, 8)])
        S(T1, 'fs*8192 + HGR'); S(T7, '(kq*8 + w)*256 + T1')
        self.barrier()
        self.stamp('xsel')
        self.r128(uu, vT)
        lg.wait_all()
        a(f"""v_max_u32 v{uu+4}, v{uu}, v{uu+1}
        v_max_u32 v{uu+5}, v{uu+2}, v{uu+3}
        v_min_u32 v{uu+6}, v{uu}, v{uu+1}
        v_min_u32 v{uu+7}, v{uu+2}, v{uu+3}
        v_min_u32 v{uu+1}, v{uu+4}, v{uu+5}
        v_max_u32 v{uu}, v{uu+4}, v{uu+5}
        v_max3_u32 v{uu+1}, v{uu+1}, v{uu+6}, v{uu+7}
        v_cndmask_b32 v{vT}, v{uu+1}, v{uu}, {sr(sCMP, 2)}
        v_readfirstlane_b32 s{sK1}, v{uu}
        v_and_b32 v{vT}, 3, v{vT}
        v_readfirstlane_b32 s{sK2}, v{uu+1}
        v_lshl_add_u32 v{vT}, v{vT}, 9, v{vXs}""")
        self.r128(uu + 4, vT)
        if oc < 2:
            for q in range(2): self.r128(op + 4 * q, vOT, q * 8 * 144, 'ot')
        a(f"""s_bfe_u32 s{sROW0}, s{sK1}, {3 | (11 << 16)}
        s_bfe_u32 s{sROW1}, s{sK2}, {3 | (11 << 16)}
        s_sub_u32 s{sROW0}, 2047, s{sROW0}
        s_sub_u32 s{sROW1}, 2047, s{sROW1}
        s_waitcnt lgkmcnt({2 if oc < 2 else 0})""")
        gd = [ga_ + 4 * i for i in range(4)] + [gb_ + 4 * i for i in range(4)]
        for s in range(8):
            a(f'v_mfma_f32_16x16x32_bf16 {vr(gd[s], 4)}, {vr(uu + 4, 4)}, {vr(ffn + 4*s, 4)}, 0')
        p0, p1 = uu, uu + 2
        hk = V.alloc(4)
        for p, b in ((p0, 0), (p1, 4)):
            a(f'v_add_f32 v{p}, v{gd[b]}, v{gd[b+1]+1}')
            a(f'v_add_f32 v{p+1}, v{gd[b+2]+2}, v{gd[b+3]+3}')
        a(f"""v_add_f32 v{p0}, v{p0}, v{p0+1}
        v_add_f32 v{p1}, v{p1}, v{p1+1}
        v_mov_b32 v{p0+1}, s{sTAG}
        v_permlane16_swap_b32 v{p1}, v{p1+1}
        s_cmp_ge_u32 s{sJ}, 28
        s_cbranch_scc1 L_NOHP
        v_add_f32 v{p0}, v{p0}, v{p1+1}
        s_mov_b32 exec_lo, 0xffff
        s_mov_b32 exec_hi, 0xffff""")
        self.bs2([(p0, 2, vT + 4, T7, 0)])
        a(f"""s_mov_b64 exec, -1
        L_NOHP:
        v_mov_b32 v{hk}, v{p0}
        v_mov_b32 v{hk+1}, v{p0+1}
        v_add_u32 v{hk+2}, s{T7}, v{vT+4}""")
        self.stamp('Hpub')
        vOr = V.alloc(); vOa = V.alloc()
        def out_store():
            S(T0, 'rt*128 + w*16'); va(vOr, [(3, 3, 1)], T0)
            S(T2, 'T0*2048 + cb*128'); S(T3, 'T2 + 16384')
            va(vOa, [(3, 3, 2048), (0, 3, 16)])
            for q in range(2):
                if q: a(f'v_add_u32 v{vOr}, 8, v{vOr}')
                a(f"""v_cmp_ne_u32 vcc, s{sROW0}, v{vOr}
                v_cmp_ne_u32 {sr(sCMP, 2)}, s{sROW1}, v{vOr}
                s_and_b64 exec, vcc, {sr(sCMP, 2)}""")
                self.bs(op + 4 * q, 4, vOa, rOUT, (T2, T3)[q], 0, o.get('outmod', 'sc1'), count=False)
                a('s_mov_b64 exec, -1')
        lg.wait('ot')
        if o.get('outat', 1) == 0: assert oc < 2; out_store()
        fz = V.alloc(4)
        sFR, sFK, sFC0 = T4, T5, T6
        a(f"""s_bitcmp1_b32 s{sX if TL else sRT}, {1 if TL else 2}
        s_cselect_b32 s{sFR}, s{sROW1}, s{sROW0}
        s_cselect_b32 s{sFK}, s{sK2}, s{sK1}
        s_cmp_lg_u32 s{sWAVE}, 7
        s_cbranch_scc1 L_NOFZ
        s_cmp_lg_u32 s2, 0
        s_cbranch_scc1 L_NONON
        v_mov_b32 v{vT+2}, s{sTAG}
        s_mov_b64 exec, 1""")
        self.bs(vT + 2, 1, vZ, rWS, '0', 0, 'sc1', count=False)
        a(f"""s_mov_b64 exec, -1
        L_NONON:""")
        S(sFC0, '(x >> 2)*2 + (x & 1)' if TL else '(rt >> 3)*2 + (rt & 1)')
        S(T7, '(cb*8 + x)*(56*128) + GGR' if TL else '(cb*8 + (rt >> 2)*2 + (rt & 1))*(56*128) + GGR')
        S(sU, 'T4*2048 + cb*128 + T6*32')
        va(vT + 6, [(0, 3, 4)])
        S(T0, 'T6*32 + L_GB'); a(f'v_add_u32 v{vT+1}, s{T0}, v{vT+6}')
        a(f'ds_read_b32 v{fz+2}, v{vT+1}')
        S(sK1, '((T4 >> 7)*2 + ((T5 >> 2) & 1))*16384 + cb*256 + T6*64 + CAND'); S(sK2, 'k1 + 4096')
        va(vT + 7, [(0, 3, 8)])
        ld_fz = lambda: (self.bl(st, 2, vT + 7, rWS, sK1, 0, 'sc1'), self.bl(fz, 2, vT + 7, rWS, sK2, 0, 'sc1'))
        q_ = list(vm.q); ld_fz(); vm.q = q_
        a(f"""s_and_b32 s{T0}, s{sFK}, s{sMASK}
        s_ashr_i32 s{T2}, s{T0}, 31
        s_andn2_b32 s{T2}, 0x7fff0000, s{T2}
        s_or_b32 s{T2}, s{T2}, 0x80000000
        s_xor_b32 s{T0}, s{T0}, s{T2}
        v_mov_b32 v{fz+3}, s{T0}
        v_mul_f32 v{fz+3}, s{sL2E}, v{fz+3}
        v_exp_f32 v{fz+3}, -v{fz+3}
        v_add_f32 v{fz+3}, 1.0, v{fz+3}
        v_rcp_f32 v{fz+3}, v{fz+3}""")
        self.round1(fz + 3)
        a(f"""L_NOFZ:
        s_cmp_lt_u32 s{sJ}, 28
        s_cbranch_scc1 L_HSEC""")
        if oc == 2:
            out_calc()
            self.barrier()
            for q in range(2): self.r128(op + 4 * q, vOT, q * 8 * 144)
            lg.wait_all()
        a("""s_branch L_GSEC
        L_HSEC:""")
        a(f"""s_cmp_lt_u32 s{sWAVE}, 4
        s_cbranch_scc1 L_HW""")
        if oc == 2: out_calc()
        a("""s_branch L_NOH
        L_HW:""")
        S(T0, 'w*256 + T1')
        va(vT, [(4, 2, 2048), (0, 4, 16)])
        S(T2, 'w*32 + L_ACT'); va(vT + 1, [(5, 1, 128), (2, 1, 16), (1, 1, 8), (3, 1, 4), (0, 1, 2)], T2)
        a(f"""s_cmp_lg_u32 s{sLOC}, 0
        s_cbranch_scc1 L_HLOC""")
        self.spoll([(q, 1, T0, q * 2048 + 1024 + 252) for q in range(4)], range(4))
        a('L_HLOC:')
        self.stamp('Hpre')
        g, u = ga_, ga_ + 4
        self.try_load(lambda: [self.bl(ga_ + 4 * m, 4, vT, rWS, T0, m * 1024, 'sc1') for m in range(2)], [g + 1, g + 3, u + 1, u + 3], vT + 2, out_calc if oc == 2 else None)
        a(f"""v_permlane32_swap_b32 v{g}, v{g+2}
        v_permlane32_swap_b32 v{u}, v{u+2}
        v_add_f32 v{g}, v{g}, v{g+2}
        v_add_f32 v{u}, v{u}, v{u+2}
        v_mov_b32 v{g+2}, v{g}
        v_mov_b32 v{u+2}, v{u}
        v_permlane16_swap_b32 v{g}, v{g+2}
        v_permlane16_swap_b32 v{u}, v{u+2}
        v_add_f32 v{g}, v{g}, v{g+2}
        v_add_f32 v{u}, v{u}, v{u+2}""")
        self.round2(g, u)
        self.silu(g, vT + 2)
        a(f"""v_mul_f32 v{g}, v{g}, v{u}
        v_cvt_pk_bf16_f32 v{g}, v{g}, v{g}
        ds_write_b16 v{vT+1}, v{g}
        L_NOH:""")
        va(vT, [(2, 1, 128), (5, 1, 16)], None, L_ACT)
        va(vT + 1, [(4, 2, 56 * 128), (0, 4, 8)])
        va(vT + 2, [(0, 2, 4096)] if TL else [(0, 1, 64 * 4096), (1, 1, 2 * 4096)])
        S(T0, '(kq*8 + w)*(4*56*128) + fs*128 + GGR')
        S(T1, ('(kq*8 + w)*16384' if TL else '(((kq & 1)*4 + (w >> 1))*8 + (w & 1)*4 + (kq >> 1))*4096') + ' + x*64 + (j >> 2)*4 + INB + 3072')
        vm.wait_all()
        self.barrier()
        self.stamp('Hok')
        for s in range(4):
            self.r128(ga_ + 4 * s, vT, s * 32, ('ac', s))
            self.tr(ffn + 32 + 4 * s, vDr, s * 8192, ('ac', s)); self.tr(ffn + 32 + 4 * s + 2, vDr, s * 8192 + 1024, ('ac', s))
        for s in range(4):
            lg.wait(('ac', s))
            a(f'v_mfma_f32_32x32x16_bf16 {vr(gb_, 16)}, {vr(ga_ + 4*s, 4)}, {vr(ffn + 32 + 4*s, 4)}, ' + ('0' if s == 0 else vr(gb_, 16)))
        if oc == 2:
            for q in range(2): self.r128(op + 4 * q, vOT, q * 8 * 144)
        a(f'v_mov_b32 v{gb_+1}, s{sTAG}')
        self.bs(gb_, 2, vT + 1, rWS, T0, 0, 'sc1')
        a('s_mov_b64 exec, 15')
        self.bs(gb_ + 1, 1, vT + 2, rWS, T1, 0, 'sc1')
        a('s_mov_b64 exec, -1')
        self.stamp('Gpub')
        def hclean():
            a("""s_mov_b32 exec_lo, 0xffff
            s_mov_b32 exec_hi, 0xffff""")
            self.bs(hk, 2, hk + 2, rWS, '0', 0, 'sc1', count=False)
            a('s_mov_b64 exec, -1')
        if o.get('hclean', 3) == 1: hclean()
        lg.wait_all()
        a('L_GSEC:')
        if o.get('outat', 1) == 1: out_store()
        a(f"""s_cmp_lt_u32 s{sJ}, 16
        s_cbranch_scc1 L_GF""")
        if o.get('outat', 1) == 2: out_store()
        if o.get('hclean', 3) >= 2:
            a(f"""s_cmp_ge_u32 s{sJ}, 28
            s_cbranch_scc1 L_FIN
            s_waitcnt vmcnt(0)""")
            hclean()
        a("""s_branch L_FIN
        L_GF:""")
        self.inbox(6, 8, range(7))
        self.stamp('Gpre')
        a('s_barrier')
        if o.get('hclean', 3) == 2: hclean()
        if o.get('hclean', 3) == 3:
            a(f"""s_cmp_eq_u32 s{sWAVE}, 7
            s_cbranch_scc1 L_G7
            s_barrier""")
            if o.get('outat', 1) == 2: out_store()
            hclean()
            a("""s_branch L_FIN
            L_G7:""")
        a(f"""s_cmp_lg_u32 s{sWAVE}, 7
        s_cbranch_scc1 L_FIN""")
        S(T0, 'T7 + 4096')
        gg = [ga_ + 4 * i for i in range(4)] + [uu + 4 * i for i in range(3)]
        self.poll(lambda: [self.bl(gg[n], 4, vL16, rWS, (T7, T0)[n >> 2], (n & 3) * 1024, 'sc1') for n in range(7)],
                  [gg[n] + 1 + 2 * e for n in range(7) for e in range(2)], vT)
        self.finish_load(None, ld_fz, [st + 1, fz + 1], vT)
        self.stamp('Gok')
        if o.get('hclean', 3) == 3: a('s_barrier')
        y0, y1 = gg[0], gg[0] + 1
        for lo, hi in ((0, 1), (2, 3), (4, 5), (0, 2), (4, 6), (0, 4)):
            for e in (0, 2): a(f'v_add_f32 v{gg[lo]+e}, v{gg[lo]+e}, v{gg[hi]+e}')
        a(f'v_mov_b32 v{y1}, v{gg[0]+2}')
        for y in (y0, y1): self.dpp('v_add_f32', y, y, y, 'row_ror:8')
        for sw in ('v_permlane16_swap_b32', 'v_permlane32_swap_b32'):
            for y in (y0, y1): a(f'v_mov_b32 v{y+2}, v{y}')
            for y in (y0, y1): a(f'{sw} v{y}, v{y+2}')
            self.pk('add', y0, y0, y0 + 2)
        self.round2(y0, y1)
        self.pk('mul', y0, y0, fz + 3, bc=(1,))
        self.unpack(vT, vT + 1, st)
        self.round2(y0, y1)
        self.pk('add', y0, y0, vT)
        self.unpack(vT, vT + 1, fz + 2)
        self.round2(y0, y1)
        self.pk('mul', y0, y0, vT)
        self.unpack(vT, vT + 1, fz)
        self.round2(y0, y1)
        self.pk('add', y0, y0, vT)
        a(f'v_cvt_pk_bf16_f32 v{y0}, v{y0}, v{y1}')
        a('s_mov_b64 exec, 0xff')
        self.bs(y0, 1, vT + 6, rOUT, sU, 0, 'sc1')
        a('s_mov_b64 exec, -1')
        if o.get('outat', 1) == 2: out_store()
        if o.get('hclean', 3) == 3: hclean()
        a('L_FIN:')
        if o.get('exfil'):
            self.stamp('fin')
            a('s_waitcnt vmcnt(0)')
            self.stamp('finw')
            a(f'''s_lshl3_add_u32 s{T0}, s2, s{sWAVE}
            s_cmp_lg_u32 s{T0}, {o.get('exwho', 7)}
            s_cbranch_scc1 L_END
            v_readlane_b32 s{T0}, v255, 0
            v_readlane_b32 s{T1}, v255, 1
            v_readlane_b32 s{T2}, v255, 2
            s_sub_u32 s{T2}, s{T2}, s{T1}
            s_max_i32 s{T2}, s{T2}, 0
            s_min_u32 s{T2}, s{T2}, 10000
            s_mul_i32 s{T2}, s{T2}, 10
            s_add_u32 s{T2}, s{T2}, 6000
            L_PAD:
            s_memrealtime {sr(sTM, 2)}
            s_waitcnt lgkmcnt(0)
            s_sub_u32 s{T1}, s{sTM}, s{T0}
            s_cmp_lt_u32 s{T1}, s{T2}
            s_cbranch_scc1 L_PAD''')
        if o.get('padfin'):
            a(f'''s_lshl3_add_u32 s{T0}, s2, s{sWAVE}
            s_cmp_lg_u32 s{T0}, 7
            s_cbranch_scc1 L_END
            s_memrealtime {sr(sTM, 2)}
            s_waitcnt lgkmcnt(0)
            s_mov_b32 s{T0}, s{sTM}
            L_PAD2:
            s_memrealtime {sr(sTM, 2)}
            s_waitcnt lgkmcnt(0)
            s_sub_u32 s{T1}, s{sTM}, s{T0}
            s_cmp_lt_u32 s{T1}, {o['padfin']}
            s_cbranch_scc1 L_PAD2''')
        if self.prof:
            a('s_waitcnt vmcnt(0) lgkmcnt(0)')
            self.stamp('end')
            a(f's_memrealtime {sr(sTM, 2)}')
            a('s_waitcnt lgkmcnt(0)')
            a(f'v_writelane_b32 v255, s{sTM}, 61')
            S(T0, '(wg*8 + w)*256 + STAMPS')
            a(f'v_writelane_b32 v255, s{sSPIN}, 62')
            a(f'v_lshlrev_b32 v{vT+1}, 2, v{vL}')
            a(f'buffer_store_dword v255, v{vT+1}, {sr(rWS, 4)}, s{T0} offen')
            S(T0, 'T0 + 0x100000')
            a(f'buffer_store_dword v254, v{vT+1}, {sr(rWS, 4)}, s{T0} offen')
        a('L_END:')
        a('s_endpgm')
        return self

    def text(self):
        a = self.a
        npad = a.fix_hazards()
        errs = a.check_waits([NAME])
        for e in errs: print('WAITERR', e, file=sys.stderr)
        assert not errs
        hdr = open(os.path.join(os.path.dirname(os.path.abspath(__file__)), 'header.txt')).read()
        s = hdr + '; @launch grid=(256,1,1) block=(512,1,1) lds=163840\n'
        s += '.amdgcn_target "amdgcn-amd-amdhsa--gfx950"\n.text\n'
        s += f'.globl {NAME}\n.p2align 8\n.type {NAME},@function\n'
        body = a.text()
        import subprocess, tempfile
        with tempfile.TemporaryDirectory() as td:
            open(td + '/t.s', 'w').write('.amdgcn_target "amdgcn-amd-amdhsa--gfx950"\n.text\n' + body.replace('CODE_KB', '20480'))
            subprocess.run(['clang', '-x', 'assembler', '-target', 'amdgcn-amd-amdhsa', '-mcpu=gfx950', '-c', td + '/t.s', '-o', td + '/t.o'], check=True)
            subprocess.run(['llvm-objcopy', '-O', 'binary', '-j', '.text', td + '/t.o', td + '/t.bin'], check=True)
            size = os.path.getsize(td + '/t.bin')
        print('; code bytes', size, file=sys.stderr)
        s += body.replace('CODE_KB', str((size // 1024 + 1) * 1024))
        s += '.p2align 10\n.fill 768, 4, 0xbf800000\n'
        s += '.section .rodata,"a"\n' + kernel_desc(NAME, 256, 102)
        print(f'; vgpr hi {self.V.hi}, nops {npad}, instrs {sum(1 for k, _ in a.items if k == "ins")}', file=sys.stderr)
        return s


if __name__ == '__main__':
    import argparse, json
    ap = argparse.ArgumentParser()
    ap.add_argument('-o', default='/dev/stdout')
    ap.add_argument('--prof', action='store_true')
    ap.add_argument('--opts', default='{}')
    args = ap.parse_args()
    g = Gen(args.prof, json.loads(args.opts)).build()
    t = g.text()
    open(args.o, 'w').write(t)
    if args.prof: open(args.o + '.stamps', 'w').write(json.dumps(g.stnames))
```

```python
import sys, os
sys.path.insert(0, os.path.dirname(os.path.abspath(__file__)))
from asm import *

NAME = 'adaLN_cond__linear_kernel_hedgehog__moe_arch_mod__prompt_kernel'

NONCE = 0x0
CFL = 0x8000
MARK = 0x100
GR = 0x010000
MODP2 = 0x020000
SINB = 0x040000
AINB = 0x080000
INA = 0x200000
INB = 0x100000
HF = 0x400000
OF = 0x800000
STAT = 0xC00000
CAND = 0x2000000
HGR = 0x1400000
ZP = 0x1480000
GGR = 0x1500000
KVP = 0x1800000
KIN = 0x1C00000
STAMPS = 0x1600000
WS_BYTES = 268435456

SEC = 8320
SLOT = 3 * SEC
SCR = 6 * SLOT
L_A1 = SCR
L_M2 = SCR + 1024
L_ST = SCR + 2048
L_MP = SCR + 2560
L_WPHI = SCR + 6656
L_MB = SCR + 10752
L_XF = 147456
L_PHK = 0
L_V = 32768
WO_H0 = 32768
WO_H1 = 98304
GS = 0
L_KVF = GS
L_ZF = GS + 8192
L_EXCH = GS
L_MT = 139264
L_GU = 32768
L_DN = 98304
TS = 131072
L_SP = TS
L_ST2 = TS + 4096
L_K1 = TS + 5120
L_K2 = TS + 5184
L_K3 = TS + 5312
L_XS = TS + 5632
L_ACT = TS + 7680
L_TB = TS + 7936
L_GB = L_TB + 256
L_OT = TS + 8704
L_XT = GS

SPIN_LIMIT = 300000

sWAVE, sTAG, sSPIN, sMASK, sL2E = 3, 4, 5, 6, 7
sX, sJ, sR1, sHP, sCB = 8, 9, 10, 11, 12
T0, T1, T2, T3, T4, T5, T6, T7 = 13, 14, 15, 16, 17, 18, 19, 20
sRT = 21
sCMP = 22
sPL = 24
rWS, rX, rW, rWO, rWM, rWG, rWU, rWD, rOUT = 32, 36, 40, 44, 48, 52, 56, 60, 64
KA = 68
pWPHI, pWR, pC = KA + 4, KA + 10, KA + 18
sK1, sK2, sROW0, sROW1, sFS, sKQ, sKH, sKF = 68, 69, 70, 71, 74, 75, 76, 77
sFG, sFD, sU, sROT, sWB, sU0 = 80, 81, 82, 83, 84, 85
sWO2, sW1K, sMF = 88, 89, 90
sINB, sRow, sGTB, sC32 = 92, 93, 94, 95
sXC = 94
pDBG = 30
sLOC = 93
XT = (96, 97, 98, 99)
sTM = 100
ENV = dict(wg=2, w=sWAVE, x=sX, j=sJ, r1=sR1, hp=sHP, cb=sCB, rt=sRT, row=sRow, gtb=sGTB, c32=sC32, kh=sKH, kf=sKF, fs=sFS, kq=sKQ,
           rot=sROT, wb=sWB, u0=sU0, wo2=sWO2, w1k=sW1K, mf=sMF, u=sU, fg=sFG, fd=sFD, T0=T0, T1=T1, T2=T2, T3=T3, T4=T4, T5=T5, T6=T6, T7=T7, row0=sROW0, row1=sROW1, k1=sK1, xc=sXC)


class Gen:
    def __init__(self, prof=False, opts=None):
        self.a = Asm()
        self.vm = Counter(self.a, 'vmcnt', 63)
        self.lg = Counter(self.a, 'lgkmcnt', 15)
        self.V = RegAlloc(254, 1)
        self.prof = prof
        self.nopk = False
        self.nst = 0
        self.stnames = []
        self.S = SExpr(self.a, ENV, {k: v for k, v in globals().items() if isinstance(v, int) and k.isupper() and k not in ENV}, XT)
        self.o = dict(AD=12, LOOK=6, wev=2, AD2=8, A20=6, wburst=(0, 3, 0, 0, 6, 6), wxor=3, LASTB=13,
                      sched={1: 'm1 p2', 2: 's4', 3: 'm1 s4', 4: 'p2 g1', 5: 'm1 g1', 6: 'g1', 7: 'm1 h g1 p3', 8: 'g2', 9: 'g2 r', 10: 'P', 11: 'f1', 13: 'M', 14: 'K o4 f4 N', 15: 'f1'}, fdma=(3, 0, 1, 1, 1), wowin=(6, 0, 3))
        if opts: self.o.update(opts)

    def bl(self, dst, n, voff, srd, soff, imm=0, mods='', tag=None):
        op = {1: 'dword', 2: 'dwordx2', 4: 'dwordx4'}[n]
        so = soff if isinstance(soff, str) else (sr(soff))
        self.a(f'buffer_load_{op} {vr(dst, n)}, v{voff}, {sr(srd, 4)}, {so} offen' + (f' offset:{imm}' if imm else '') + (' ' + mods if mods else ''))
        self.vm.issue(tag)
    def bs(self, src, n, voff, srd, soff, imm=0, mods='', tag=None, count=True):
        op = {1: 'dword', 2: 'dwordx2', 4: 'dwordx4'}[n]
        so = soff if isinstance(soff, str) else (sr(soff))
        self.a(f'buffer_store_{op} {vr(src, n)}, v{voff}, {sr(srd, 4)}, {so} offen' + (f' offset:{imm}' if imm else '') + (' ' + mods if mods else ''))
        if count: self.vm.issue(tag)
    def bs2(self, items):
        a = self.a
        LL, D = a.label('LOC'), a.label('LOCD')
        a(f's_cmp_lg_u32 s{sLOC}, 0')
        a(f's_cbranch_scc1 {LL}')
        for src, n, voff, soff, imm in items: self.bs(src, n, voff, rWS, soff, imm, 'sc1', count=False)
        a(f's_branch {D}')
        a(f'{LL}:')
        for src, n, voff, soff, imm in items: self.bs(src, n, voff, rWS, soff, imm, '', count=False)
        a(f'{D}:')
    def dma(self, voff, srd, soff, imm=0, mods='', tag=None):
        self.a(f'buffer_load_dwordx4 v{voff}, {sr(srd, 4)}, {sr(soff)} offen' + (f' offset:{imm}' if imm else '') + (' ' + mods if mods else '') + ' lds')
        self.vm.issue(tag)
    def dr(self, op, dst, n, addr, off=0, tag=None):
        assert 0 <= off < 65536, off
        self.a(f'{op} {vr(dst, n)}, v{addr}' + (f' offset:{off}' if off else ''))
        self.lg.issue(tag)
    def tr(self, dst, addr, off, tag=None): self.dr('ds_read_b64_tr_b16', dst, 2, addr, off, tag)
    def r128(self, dst, addr, off=0, tag=None): self.dr('ds_read_b128', dst, 4, addr, off, tag)
    def dw(self, op, addr, src, n, off=0, tag=None):
        assert 0 <= off < 65536, off
        self.a(f'{op} v{addr}, {vr(src, n)}' + (f' offset:{off}' if off else ''))
        self.lg.issue(tag)
    def barrier(self):
        self.lg.wait_all()
        self.a('s_barrier')
    def stamp(self, name):
        ex = self.o.get('exfil')
        if ex and name in ex[:2]:
            self.a(f's_memrealtime {sr(sTM, 2)}')
            self.lg.wait_all()
            self.a(f'v_writelane_b32 v255, s{sTM}, {1 + ex.index(name)}')
        if not self.prof: return
        only = self.o.get('only')
        if only and name not in only and name != 'end': return
        self.a(f's_memtime {sr(sTM, 2)}')
        self.a(f's_memrealtime s[0:1]')
        self.lg.wait_all()
        self.a(f'v_writelane_b32 v255, s{sSPIN if self.o.get("spinst") and self.nst > 3 else sTM}, {self.nst}')
        self.a(f'v_writelane_b32 v254, s0, {self.nst}')
        self.stnames.append(name)
        self.nst += 1
        assert self.nst <= 60
    def unpack(self, lo, hi, src):
        self.a(f'v_lshlrev_b32 v{lo}, 16, v{src}')
        self.a(f'v_and_b32 v{hi}, s{sMASK}, v{src}')
    def round1(self, r):
        self.a(f'v_cvt_pk_bf16_f32 v{r}, 0, v{r}')
    def round2(self, r0, r1):
        self.round1(r0); self.round1(r1)
    def round_list(self, regs):
        for r in regs: self.round1(r)
    def pk(self, op, d, s0, s1, s2=None, bc=(), neg=()):
        srcs = [s0, s1] + ([s2] if s2 is not None else [])
        if self.nopk:
            for h in range(2):
                t = []
                for k, r in enumerate(srcs):
                    kind, n = r if isinstance(r, tuple) else ('v', r)
                    t.append(('-' if k in neg else '') + f'{kind}{n if k in bc else n + h}')
                e64 = '' if op == 'fma' else ('_e64' if (neg or t[1][0] == 's') else '')
                self.a(f'v_{op}_f32{e64} v{d+h}, ' + ', '.join(t))
            return
        txt, sel, selhi = [], [], []
        for k, r in enumerate(srcs):
            kind, n = r if isinstance(r, tuple) else ('v', r)
            if k in bc:
                txt.append(f'{kind}[{n & ~1}:{(n & ~1) + 1}]'); sel.append(n & 1); selhi.append(n & 1)
            else:
                assert n % 2 == 0
                txt.append(f'{kind}[{n}:{n+1}]'); sel.append(0); selhi.append(1)
        assert d % 2 == 0
        m = ''
        if any(sel): m += ' op_sel:[' + ','.join(map(str, sel)) + ']'
        if not all(selhi): m += ' op_sel_hi:[' + ','.join(map(str, selhi)) + ']'
        if neg:
            ng = ','.join('1' if k in neg else '0' for k in range(len(srcs)))
            m += f' neg_lo:[{ng}] neg_hi:[{ng}]'
        self.a(f'v_pk_{op}_f32 v[{d}:{d+1}], ' + ', '.join(txt) + m)
    def dpp(self, op, d, s0, s1, ctl):
        self.a(f'{op}_dpp v{d}, v{s0}, v{s1} {ctl} row_mask:0xf bank_mask:0xf')
    def allreduce(self, v, t, op='v_add_f32', lo=True, b3=True):
        if lo:
            self.dpp(op, v, v, v, 'quad_perm:[1,0,3,2]')
            self.dpp(op, v, v, v, 'quad_perm:[2,3,0,1]')
            self.dpp(op, v, v, v, 'row_half_mirror')
        self.dpp(op, v, v, v, 'row_ror:8')
        self.a(f'v_mov_b32 v{t}, v{v}')
        self.a(f'v_permlane16_swap_b32 v{v}, v{t}')
        self.a(f'{op} v{v}, v{v}, v{t}')
        self.a(f'v_mov_b32 v{t}, v{v}')
        self.a(f'v_permlane32_swap_b32 v{v}, v{t}')
        self.a(f'{op} v{v}, v{v}, v{t}')
    def poll(self, loads, tagregs, tmp=None):
        a = self.a
        L, D = a.label('POLL'), a.label('PDONE')
        a(f'{L}:')
        loads()
        self.vm.wait_all()
        self.tagcheck(tagregs, tmp)
        a(f's_cbranch_vccz {D}')
        a(f's_add_u32 s{sSPIN}, s{sSPIN}, 1')
        a(f's_cmp_lt_u32 s{sSPIN}, {SPIN_LIMIT}')
        a(f's_cbranch_scc1 {L}')
        a(f'{D}:')
    def weave(self, fn, extras):
        a = self.a
        keep = a.items; a.items = []
        fn()
        body = a.items; a.items = keep
        extras = list(extras); n = len(extras)
        for i, it in enumerate(body):
            while extras and (n - len(extras)) * len(body) <= i * n: extras.pop(0)()
            a.items.append(it)
        for e in extras: e()
    def tagcheck(self, tagregs, tmp):
        a = self.a
        if tagregs[0] == 'nan':
            if len(tagregs) == 3: a(f'v_max_u32 v{tmp}, v{tagregs[1]}, v{tagregs[2]}')
            a(f'v_cmp_eq_u32 vcc, -1, v{tmp if len(tagregs) == 3 else tagregs[1]}')
        elif len(tagregs) == 1:
            a(f'v_cmp_ne_u32 vcc, s{sTAG}, v{tagregs[0]}')
        else:
            a(f'v_bitop3_b32 v{tmp}, v{tagregs[0]}, v{tagregs[1]}, s{sTAG} bitop3:0x7e')
            for t in tagregs[2:]: a(f'v_bitop3_b32 v{tmp}, v{tmp}, v{t}, s{sTAG} bitop3:0xf6')
            a(f'v_cmp_ne_u32 vcc, 0, v{tmp}')
    def try_load(self, loads, tagregs, tmp=None, between=None, pre=None):
        a = self.a
        n0 = len(self.vm.q)
        loads()
        self.vm.q[-1] = tg = ('try', a.label('T'))
        if between: between()
        self.vm.wait(tg)
        OK = a.label('TOK')
        self.tagcheck(tagregs, tmp)
        a(f's_cbranch_vccz {OK}')
        q, l = list(self.vm.q), list(self.lg.q)
        if pre: pre()
        self.poll(loads, tagregs, tmp)
        self.vm.q, self.lg.q = q, l
        a(f'{OK}:')
    def finish_load(self, tg, loads, tagregs, tmp=None, pre=None):
        a = self.a
        self.vm.wait(tg)
        OK = a.label('TOK')
        self.tagcheck(tagregs, tmp)
        a(f's_cbranch_vccz {OK}')
        q, l = list(self.vm.q), list(self.lg.q)
        if pre: pre()
        self.poll(loads, tagregs, tmp)
        self.vm.q, self.lg.q = q, l
        a(f'{OK}:')
    def spoll(self, loads, checks, work=None, pipe=0):
        a = self.a
        L, C, D = a.label('SPOLL'), a.label('SCHK'), a.label('SDONE')
        def issue(note=''):
            for d, n, so, imm in loads:
                op = {1: 'dword', 2: 'dwordx2', 4: 'dwordx4', 8: 'dwordx8'}[n]
                a(f's_load_{op} {sr(sPL + d, n)}, {sr(rWS, 2)}, s{so} offset:{imm} glc' + note)
        if pipe:
            self.lg.wait_all()
            for k in checks: a(f's_not_b32 s{sPL + k}, s{sTAG}')
            issue(' ; nowait')
            if work: work()
            a(f'{L}:')
            a(f's_add_u32 s{sSPIN}, s{sSPIN}, 1')
            a(f's_cmp_ge_u32 s{sSPIN}, {SPIN_LIMIT}')
            a(f's_cbranch_scc1 {D}')
            ks = list(checks)
            a(f's_xor_b32 s{XT[0]}, s{sPL + ks[0]}, s{sTAG} ; nowait')
            for k in ks[1:]:
                a(f's_xor_b32 s{XT[1]}, s{sPL + k}, s{sTAG} ; nowait')
                a(f's_or_b32 s{XT[0]}, s{XT[0]}, s{XT[1]}')
            a(f's_cbranch_scc0 {D}')
            issue(' ; nowait')
            a(f's_sleep {pipe}')
            a(f's_branch {L}')
            a(f'{D}:')
            return
        if work:
            issue(); work()
            a(f's_branch {C}')
        a(f'{L}:')
        issue()
        a(f'{C}:')
        a(f's_add_u32 s{sSPIN}, s{sSPIN}, 1')
        a(f's_cmp_ge_u32 s{sSPIN}, {SPIN_LIMIT}')
        self.lg.wait_all()
        a(f's_cbranch_scc1 {D}')
        for k in checks:
            a(f's_cmp_lg_u32 s{sPL + k}, s{sTAG}')
            a(f's_cbranch_scc1 {L}')
        a(f'{D}:')
    def inbox(self, box, n, checks=None, work=None, pipe=0):
        self.spoll([(0, n, sINB, box * 512)], range(n) if checks is None else checks, work, pipe)
    def va(self, dst, terms, sreg=None, const=0, tmp=None):
        a = self.a; vL = self.vL
        first = True
        for sh, bits, mult in terms:
            full = sh + bits >= 6
            src = vL
            t = dst if first else tmp
            if sh == 0 and full: pass
            elif full: a(f'v_lshrrev_b32 v{t}, {sh}, v{vL}'); src = t
            elif sh == 0: a(f'v_and_b32 v{t}, {(1 << bits) - 1}, v{vL}'); src = t
            else: a(f'v_bfe_u32 v{t}, v{vL}, {sh}, {bits}'); src = t
            p2 = mult & (mult - 1) == 0
            k = mult.bit_length() - 1
            if first:
                if p2 and sreg is not None: a(f'v_lshl_add_u32 v{dst}, v{src}, {k}, s{sreg}'); sreg = None
                elif p2 and k: a(f'v_lshlrev_b32 v{dst}, {k}, v{src}')
                elif p2:
                    if src != dst: a(f'v_mov_b32 v{dst}, v{src}')
                else: a(f'v_mul_u32_u24 v{dst}, {mult}, v{src}')
            else:
                assert p2
                a(f'v_lshl_add_u32 v{dst}, v{src}, {k}, v{dst}')
            first = False
        if sreg is not None: a(f'v_add_u32 v{dst}, s{sreg}, v{dst}')
        if const: a(f'v_add_u32 v{dst}, {const}, v{dst}')
    def push(self, vaddr, soff, nl, vtmp, lab, wave=0):
        a = self.a
        a(f's_cmp_lg_u32 s{sWAVE}, {wave}')
        a(f's_cbranch_scc1 {lab}')
        a(f'v_mov_b32 v{vtmp}, s{sTAG}')
        a(f's_mov_b32 exec_hi, 0')
        if nl < 32: a(f's_mov_b32 exec_lo, {(1 << nl) - 1}')
        self.bs(vtmp, 1, vaddr, rWS, soff, 0, 'sc1', count=False)
        a('s_mov_b64 exec, -1')
        a(f'{lab}:')
    def silu(self, v, t):
        a = self.a
        a(f'v_mul_f32 v{t}, s{sL2E}, v{v}')
        a(f'v_exp_f32 v{t}, -v{t}')
        a(f'v_add_f32 v{t}, 1.0, v{t}')
        a(f'v_rcp_f32 v{t}, v{t}')
        a(f'v_mul_f32 v{v}, v{v}, v{t}')
        self.round1(v)
    def gemv_ops(self, wregs, cregs, acc, t0, t1, packed):
        ops = []
        assert t0 % 2 == 0 and t1 == t0 + 1
        for i, (w, c) in enumerate(zip(wregs, cregs)):
            cp = f'v[{c & ~1}:{(c & ~1) + 1}]'
            for d in range(4):
                tt = t0 + 2 * (d & 1)
                ops.append(f'v_lshlrev_b32 v{tt}, 16, v{w+d}')
                ops.append(f'v_and_b32 v{tt+1}, s{sMASK}, v{w+d}')
                ac = f'v[{acc+2*d}:{acc+2*d+1}]'
                if not packed:
                    for h in range(2): ops.append(f'v_mul_f32 v{acc+2*d+h}, v{tt+h}, v{c}' if i == 0 else f'v_fmac_f32 v{acc+2*d+h}, v{tt+h}, v{c}')
                elif i == 0: ops.append(f'v_pk_mul_f32 {ac}, v[{tt}:{tt+1}], {cp} op_sel:[0,{c & 1}] op_sel_hi:[1,{c & 1}]')
                else: ops.append(f'v_pk_fma_f32 {ac}, v[{tt}:{tt+1}], {cp}, {ac} op_sel:[0,{c & 1},0] op_sel_hi:[1,{c & 1},1]')
        for i in range(4): ops.append(f'v_permlane32_swap_b32 v{acc+i}, v{acc+4+i}')
        for i in range(4): ops.append(f'v_add_f32 v{acc+i}, v{acc+i}, v{acc+4+i}')
        for i in range(2): ops.append(f'v_permlane16_swap_b32 v{acc+i}, v{acc+2+i}')
        for i in range(2): ops.append(f'v_add_f32 v{acc+i}, v{acc+i}, v{acc+2+i}')
        for i in range(2): ops.append(f'v_add_f32_dpp v{acc+i}, v{acc+i}, v{acc+i} row_ror:8 row_mask:0xf bank_mask:0xf')
        ops.append(f'v_mov_b32_dpp v{acc}, v{acc+1} quad_perm:[0,1,2,3] row_mask:0xf bank_mask:0xc')
        return ops
    def sum8(self, b):
        self.pk('add', b, b, b + 2); self.pk('add', b + 4, b + 4, b + 6); self.pk('add', b, b, b + 4)
        self.a(f'v_add_f32 v{b}, v{b}, v{b+1}')
    def softmax_pm(self, p, e, out, t, mid=None, part=0, split=0):
        a = self.a
        mx, mn, u0, u1, s0, s1 = t, t + 1, t + 2, t + 3, t + 4, t + 6
        if part != 2:
            self.round_list([p + i for i in range(16)])
            a(f'v_max3_f32 v{mx}, v{p}, v{p+1}, v{p+2}')
            a(f'v_min3_f32 v{mn}, v{p}, v{p+1}, v{p+2}')
            for i in range(3, 15, 2):
                a(f'v_max3_f32 v{mx}, v{mx}, v{p+i}, v{p+i+1}')
                a(f'v_min3_f32 v{mn}, v{mn}, v{p+i}, v{p+i+1}')
            a(f'v_max_f32 v{u0}, v{mx}, v{p+15}')
            a(f'v_min_f32 v{u1}, v{mn}, v{p+15}')
            a(f'v_max_f32 v{mx}, v{mx}, v{p+15}')
            a(f'v_min_f32 v{mn}, v{mn}, v{p+15}')
            a(f'v_permlane32_swap_b32 v{mx}, v{u0}')
            a(f'v_permlane32_swap_b32 v{mn}, v{u1}')
            a(f'v_max_f32 v{mx}, v{mx}, v{u0}')
            a(f'v_min_f32 v{mn}, v{mn}, v{u1}')
            self.pk('mul', mx, mx, ('s', sL2E), bc=(1,))
            for i in range(0, 16, 2):
                self.pk('fma', e + i, p + i, ('s', sL2E), mx, bc=(1, 2), neg=(2,))
                self.pk('fma', p + i, p + i, ('s', sL2E), mn, bc=(1, 2), neg=(0,))
        for i in range(split if part == 2 else 0, 16):
            if mid and i == mid[0]: mid[1]()
            if part == 1 and i == split: return
            a(f'v_exp_f32 v{e+i}, v{e+i}')
            a(f'v_exp_f32 v{p+i}, v{p+i}')
        self.pk('add', s0, e, e + 2); self.pk('add', s1, p, p + 2)
        for i in range(4, 16, 2):
            self.pk('add', s0, s0, e + i); self.pk('add', s1, s1, p + i)
        a(f'v_add_f32 v{u0}, v{s0}, v{s0+1}')
        a(f'v_add_f32 v{u1}, v{s1}, v{s1+1}')
        a(f'v_add_f32 v{mx}, v{s0}, v{s0+1}')
        a(f'v_add_f32 v{mn}, v{s1}, v{s1+1}')
        a(f'v_permlane32_swap_b32 v{mx}, v{u0}')
        a(f'v_permlane32_swap_b32 v{mn}, v{u1}')
        self.pk('add', mx, mx, u0)
        a(f'v_rcp_f32 v{mx}, v{mx}')
        a(f'v_rcp_f32 v{mn}, v{mn}')
        for i in range(0, 16, 2):
            self.pk('mul', e + i, e + i, mx, bc=(1,))
            self.pk('mul', p + i, p + i, mn, bc=(1,))
        for i in range(8):
            a(f'v_cvt_pk_bf16_f32 v{out+i}, v{e+2*i}, v{e+2*i+1}')
            a(f'v_cvt_pk_bf16_f32 v{out+8+i}, v{p+2*i}, v{p+2*i+1}')
    def ln_stats(self, xp, t, m_out, sd_out, fill=()):
        a = self.a
        fill = list(fill)
        def pad(n):
            for _ in range(n):
                if fill: a(fill.pop(0))
        s, u = t, t + 4
        a(f'v_mov_b32 v{u}, 0x3f803f80')
        for i in range(8):
            k = 2 * (i & 1)
            a(f'v_dot2_f32_bf16 v{s+k}, v{xp+i}, v{u}, ' + ('0' if i < 2 else f'v{s+k}'))
            a(f'v_dot2_f32_bf16 v{s+k+1}, v{xp+i}, v{xp+i}, ' + ('0' if i < 2 else f'v{s+k+1}'))
        pad(3)
        self.pk('add', s, s, s + 2)
        for ctl in ('quad_perm:[1,0,3,2]', 'quad_perm:[2,3,0,1]', 'row_half_mirror', 'row_ror:8'):
            pad(2 if ctl.endswith('3,2]') else 1)
            self.dpp('v_add_f32', s, s, s, ctl); self.dpp('v_add_f32', s + 1, s + 1, s + 1, ctl)
        pad(2)
        a(f'v_permlane16_swap_b32 v{s}, v{s+1}')
        a(f'v_add_f32 v{u}, v{s}, v{s+1}')
        a(f'v_add_f32 v{s}, v{s}, v{s+1}')
        pad(2)
        a(f'v_permlane32_swap_b32 v{s}, v{u}')
        a(f'v_add_f32 v{s}, v{s}, v{u}')
        a(f'v_mul_f32 v{u}, 0x3a800000, v{s}')
        a(f'v_mul_f32 v{s}, 0x3a800000, v{s}')
        pad(2)
        a(f'v_permlane16_swap_b32 v{s}, v{u}')
        a(f'v_fma_f32 v{sd_out}, -v{s}, v{s}, v{u}')
        a(f'v_cvt_pk_bf16_f32 v{m_out}, 0, v{s}')
        a(f'v_max_f32 v{sd_out}, 0, v{sd_out}')
        self.round1(sd_out)
        a(f'v_add_f32 v{sd_out}, 0x3727c5ac, v{sd_out}')
        self.round1(sd_out)
        a(f'v_sqrt_f32 v{sd_out}, v{sd_out}')
        pad(99)
        self.round1(sd_out)

    def stat_math(self, s, u, m_out, sd_out):
        a = self.a
        a(f'v_fma_f32 v{sd_out}, -v{s}, v{s}, v{u}')
        a(f'v_cvt_pk_bf16_f32 v{m_out}, 0, v{s}')
        a(f'v_max_f32 v{sd_out}, 0, v{sd_out}')
        self.round1(sd_out)
        a(f'v_add_f32 v{sd_out}, 0x3727c5ac, v{sd_out}')
        self.round1(sd_out)
        a(f'v_sqrt_f32 v{sd_out}, v{sd_out}')
        self.round1(sd_out)
    def ln_stats2(self, x0, x1, t, m_out, sd_out):
        a = self.a
        s0, s1, q0, q1, u = t, t + 1, t + 2, t + 3, t + 4
        a(f'v_mov_b32 v{u}, 0x3f803f80')
        for i in range(8):
            for xx, s_, q_ in ((x0, s0, q0), (x1, s1, q1)):
                a(f'v_dot2_f32_bf16 v{s_}, v{xx+i}, v{u}, ' + ('0' if i == 0 else f'v{s_}'))
                a(f'v_dot2_f32_bf16 v{q_}, v{xx+i}, v{xx+i}, ' + ('0' if i == 0 else f'v{q_}'))
        a(f"""v_permlane32_swap_b32 v{s0}, v{s1}
        v_permlane32_swap_b32 v{q0}, v{q1}
        v_add_f32 v{s0}, v{s0}, v{s1}
        v_add_f32 v{q0}, v{q0}, v{q1}
        v_permlane16_swap_b32 v{s0}, v{q0}
        v_add_f32 v{s0}, v{s0}, v{q0}""")
        for ctl in ('quad_perm:[1,0,3,2]', 'quad_perm:[2,3,0,1]', 'row_half_mirror', 'row_ror:8'): self.dpp('v_add_f32', s0, s0, s0, ctl)
        a(f"""v_mul_f32 v{q0}, 0x3a800000, v{s0}
        v_mul_f32 v{s0}, 0x3a800000, v{s0}
        v_permlane16_swap_b32 v{s0}, v{q0}""")
        self.stat_math(s0, q0, m_out, sd_out)

    def build(self):
        a, V, vm, lg, o, S = self.a, self.V, self.vm, self.lg, self.o, self.S
        E2 = range(0, 16, 2)
        TL = o.get('tl', 0)
        HL = o.get('hl', 1)
        D2 = o.get('d2', 1)
        LCB = [(0, 4, 8 * 4096)] if TL else [(0, 3, 8 * 4096), (3, 1, 4096)]
        a(f'{NAME}:')
        a(f's_load_dwordx16 {sr(KA, 16)}, s[0:1], 0')
        a(f's_load_dwordx8 {sr(KA + 16, 8)}, s[0:1], 64')
        a(f's_load_dwordx2 {sr(rWS, 2)}, s[0:1], 104')
        a(f's_load_dwordx2 {sr(pDBG, 2)}, s[0:1], 96')
        a('s_cmp_ge_u32 s2, 256')
        a('s_cbranch_scc1 L_END')
        if self.prof:
            a(f's_memrealtime {sr(sCMP, 2)}')
            a(f's_memtime {sr(sTM, 2)}')
            a('v_mov_b32 v255, 0')
            a('v_mov_b32 v254, 0')
            self.stnames.append('start'); self.nst = 1
        if o.get('exfil'): a(f's_memrealtime {sr(sTM, 2)}')
        vL = self.vL = V.alloc()
        vL16 = V.alloc()
        vZ = V.alloc()
        vT = V.alloc(8)
        va = lambda dst, terms, sreg=None, const=0: self.va(dst, terms, sreg, const, vT + 5)
        a(f"""v_lshrrev_b32 v{vT}, 6, v0
        v_and_b32 v{vL}, 63, v0
        v_mov_b32 v{vZ}, 0
        v_readfirstlane_b32 s{sWAVE}, v{vT}
        v_lshlrev_b32 v{vL16}, 4, v{vL}""")
        xr = V.alloc(8); acc = V.alloc(8); wphi = V.alloc(8); fr = V.alloc(8); vq = V.alloc(8); vv = V.alloc(8)
        vWM = V.alloc(); vCo = V.alloc(); vWd = V.alloc(); vL8 = V.alloc(); vL32S = V.alloc(); vGA = V.alloc()
        vB = V.alloc(6, 1); vFG = V.alloc(); vFD = V.alloc(); vWo = V.alloc(); vPW = V.alloc(); vXF = V.alloc()
        S(sX, 'wg & 7'); S(sJ, 'wg >> 3')
        S(T2, '(x*4 + w)*64')
        S(T0, 'T2*6144 + (j ^ 1)*128')
        va(vWM, [(3, 3, 4 * 12288), (0, 3, 16)])
        va(vCo, [(3, 3, 8)], T2)
        S(T3, '((x*32 + j)*4 + w - 4)*4096')
        for srd, size in ((rWM, 12582912), (rX, 4194304), (rWS, WS_BYTES)):
            a(f's_mov_b32 s{srd+2}, {size}')
            a(f's_mov_b32 s{srd+3}, 0x20000')
        a(f's_getreg_b32 s{sXC}, hwreg(HW_REG_XCC_ID, 0, 3)')
        if o.get('fakexcc') is not None: a(f's_and_b32 s{sXC}, s{sXC}, {o["fakexcc"]}')
        a(f"""s_getpc_b64 {sr(sCMP, 2) if not self.prof else sr(sPL, 2)}""")
        S(T6, '(j*7 + w)*128')
        va(vT + 6, [(5, 1, 28672)], T6)
        a(f"""v_min_u32 v{vT+6}, CODE_KB, v{vT+6}
        s_cmp_ge_u32 s{sWAVE}, 4
        s_waitcnt lgkmcnt(0)""")
        if self.prof:
            a(f'v_writelane_b32 v255, s{sTM}, 0')
            a(f'v_writelane_b32 v255, s{sCMP}, 63')
            a(f'v_writelane_b32 v254, s{sCMP}, 0')
            a(f's_mov_b64 {sr(sCMP, 2)}, {sr(sPL, 2)}')
        if o.get('exfil'):
            for k in range(3): a(f'v_writelane_b32 v255, s{sTM}, {k}')
        self.stamp('karg')
        raw = V.alloc(16); cv = V.alloc(4); vTk = V.alloc(2)
        xs = V.alloc(16); st = V.alloc(4); mq = V.alloc(4)
        a(f"""s_mov_b64 {sr(rWM, 2)}, {sr(KA + 20, 2)}
        s_mov_b64 {sr(rX, 2)}, {sr(KA, 2)}
        s_load_dword s{sTAG}, {sr(rWS, 2)}, {NONCE}
        s_cbranch_scc1 L_FS""")
        def setup():
            for srd, size in ((rW, 6291456), (rWO, 2097152), (rWG, 7340032), (rWU, 7340032), (rWD, 7340032), (rOUT, 4194304)):
                a(f's_mov_b32 s{srd+2}, {size}')
                a(f's_mov_b32 s{srd+3}, 0x20000')
            for srd, k in ((rW, 2), (rWO, 6), (rWG, 12), (rWU, 14), (rWD, 16), (rOUT, 22)):
                a(f's_mov_b64 {sr(srd, 2)}, {sr(KA + k, 2)}')
            a(f"""s_mov_b32 s{sSPIN}, 0
            s_mov_b32 s{sMASK}, 0xffff0000
            s_mov_b32 s{sL2E}, 0x3fb8aa3b""")
            S(sKH, 'w >> 2')
            va(vT + 2, [(4, 1, 64)]); va(vWd, [(0, 3, 16)])
            a(f'v_xor_b32 v{vWd}, v{vWd}, v{vT+2}'); va(vT + 2, [(3, 3, 6144)]); a(f'v_add_u32 v{vWd}, v{vWd}, v{vT+2}')
            va(vL8, [(0, 6, 8)])
            a(f'v_add_u32 v{vL32S}, {SCR}, v{vL16}')
            S(T0, '(w & 3)*4 + SCR')
            va(vGA, [(4, 2, 32), (0, 3, 128), (3, 1, 16)], T0)
            S(T1, '((j >> 4)*128 + w*8 + x)*1024 + (j & 15)*64 + SINB' if TL else '((x & 6) + ((x & 1)*2 + (j >> 4))*64 + w*8)*1024 + (j & 15)*64 + SINB')
        def tag_hash():
            a(f"""s_mul_i32 s{sTAG}, s{sTAG}, 0x9e3779b1
            s_add_u32 s{sTAG}, s{sTAG}, 0x7f4a7c15""")
        def code_pf():
            a(f's_and_b32 s{sCMP}, s{sCMP}, 0xfffffc00')
            a(f'global_load_dword v{vTk}, v{vT+6}, {sr(sCMP, 2)}')
        wq = [(n, t) for n in range(16) for t in range(3)]
        def w_base(n, wexpr):
            if n < 4 and o.get('wxor', 1):
                if o.get('wxor', 1) < 3: S(T7, '((j >> 4)*2) ^ n' if o.get('wxor', 1) == 1 else o.get('wxe', '((j >> 4) + (x >> 2)*2) ^ n'), n=n)
                else:
                    S(T7, o.get('wxe', 'j & 3' if HL else '(j >> 4) + (x >> 2)*2'))
                    if n: a(f's_cmp_le_u32 s{T7}, {n - 1}'); a(f's_cselect_b32 s{T7}, {n}, {n - 1}')
                S(sU, f'(((T7 + u0) & 15)*8 + {wexpr})*(8*6144) + hp*128')
                S(T7, f'T7*SLOT + (({wexpr}) >> 1)*2080 + (({wexpr}) & 1)*1056')
            else:
                S(sU, f'(((u0 + n) & 15)*8 + {wexpr})*(8*6144) + hp*128', n=n)
                S(T7, f'(({wexpr}) >> 1)*2080 + (({wexpr}) & 1)*1056 + q', q=(n % 6) * SLOT)
        def w_slot(n, t):
            S('m0', 'T7 + q', q=t * SEC)
            self.dma(vWd, rW, sU, 0, o.get('wmod', ''), ('W', n))
            if t < 2: S(sU, 'u + 2048')
        def w_next(cnt=1):
            for _ in range(cnt):
                n, t = wq.pop(0)
                if t == 0: w_base(n, 'w')
                w_slot(n, t)
        wb = list(o['wburst'])
        def w_early():
            if not o.get('wearly'): return
            S(sHP, '(x & 3)*4 + ((j & 3) ^ q)', q=o.get('hpx', 2)); S(sU0, o.get('u0', 'j & 12'))
            w_next(o['wearly'])
        a(f'global_load_dwordx2 {vr(cv, 2)}, v{vCo}, {sr(pC, 2)}'); vm.issue('c')
        for i in range(4):
            self.bl(raw + 4 * i, 4, vWM, rWM, T0, 0, o.get('ntwm', 'nt'), ('wm', i))
            if i < 3: S(T0, 'T0 + 12288')
        a('s_barrier')
        if o.get('bar1', 1): a('s_barrier')
        code_pf(); vm.issue()
        setup()
        wq0 = list(wq); w_early(); wq[:] = wq0
        S(T0, '(((w*16 + ((j ^ 1) & 15))*2 + (j >> 4))*8 + x)*512 + AINB')
        S(T2, ('(((j ^ 1) & 15)*8 + w*2)*512' if TL else '(((j ^ 1) & 7)*8 + w*2 + ((j >> 3) & 1))*512') + ' + x*64 + (j >> 4)*4 + INA')
        va(vT + 6, [(0, 1, 128 * 512), (1, 1, 512)] if TL else [(0, 2, 64 * 512)])
        vm.wait('c')
        self.unpack(cv + 2, cv + 3, cv + 1)
        a(f'v_and_b32 v{cv+1}, s{sMASK}, v{cv}'); a(f'v_lshlrev_b32 v{cv}, 16, v{cv}')
        for i in range(4): self.silu(cv + i, vT + (i & 1))
        gops = self.gemv_ops([raw + 4 * i for i in range(4)], [cv + i for i in range(4)], acc, vT, vT + 1, True)
        for i in range(4):
            vm.wait(('wm', i))
            if i == 3: self.stamp('wmok')
            for s_ in gops[12 * i:12 * i + 12]: a(s_)
        for s_ in gops[48:]: a(s_)
        self.dw('ds_write_b32', vGA, acc, 1, L_A1 - SCR)
        self.barrier()
        a(f'ds_read_b128 {vr(acc, 4)}, v{vL32S} offset:{L_A1 - SCR}')
        tag_hash()
        a('s_waitcnt lgkmcnt(0)')
        self.pk('add', acc, acc, acc + 2)
        a(f"""v_add_f32 v{acc}, v{acc}, v{acc+1}
        v_mov_b32 v{acc+1}, s{sTAG}""")
        self.bs(acc, 2, vL8, rWS, T0, 0, 'sc1')
        a('s_mov_b64 exec, 15')
        self.bs(acc + 1, 1, vT + 6, rWS, T2, 0, 'sc1')
        a('s_mov_b64 exec, -1')
        self.stamp('A1pub')
        if o.get('wpf', 0):
            S(T2, '(((xc >> 2)*2 + (xc & 1))*4 + (xc & 2))*128 + (j*32 + w*8)*6144')
            va(vT + 2, [(4, 2, 6144), (0, 4, 16)])
            for i in range(o['wpf']):
                S(T0, 'T2 + q', q=(i % 3) * 2048 + (i // 3) * 4 * 6144)
                self.bl(raw, 4, vT + 2, rW, T0, 0, o.get('wpfmod', ''))
        tl_ = o.get('tlb', '')
        if tl_:
            S(T2, 'wg*128'); va(vT + 2, [(0, 6, 1 << 21)], T2)
            tab = dict(W=rW, o=rWO, g=rWG, u=rWU, d=rWD, m=rWM, x=rX, O=rOUT)
            for k_, c_ in enumerate(tl_):
                a(f's_cmp_lg_u32 s{sWAVE}, {k_ & 3}')
                L_ = a.label('TLB'); a(f's_cbranch_scc1 {L_}')
                if c_ == 's':
                    a('s_mov_b64 exec, 0x1ffff'); self.bl(raw + 4, 1, vT + 2, rWS, '0', 0, '', None); vm.q.pop(); a('s_mov_b64 exec, -1')
                else: self.bl(raw + 4, 1, vT + 2, tab[c_], '0', 0, '', None); vm.q.pop()
                a(f'{L_}:')
        a('s_branch L_FJ')
        qG = list(vm.q)
        a('L_FS:')
        vm.reset(); lg.reset()
        a('s_barrier')
        for i in range(4): self.bl(raw + 4 * i, 4, vL16, rX, T3, 1024 * i, o.get('xsmod', ''), 'xs')
        pw0 = o.get('pw0', 'ab')
        if 'a' in pw0:
            S(T4, '(wg*4 + w - 4)*128 + INA')
            for q in range(2): a(f's_load_dword s{sPL + q}, {sr(rWS, 2)}, s{T4} offset:{q * 64} glc')
        if 's' in pw0:
            S(T4, '(wg*4 + w - 4)*256 + SINB')
            for q in range(4): a(f's_load_dword s{sPL + 2 + q}, {sr(rWS, 2)}, s{T4} offset:{q * 64} glc')
        if 'b' in pw0:
            S(T4, '(wg*32 + w - 4)*128 + INB')
            for q in range(2): a(f's_load_dword s{sPL + q}, {sr(rWS, 2)}, s{T4} offset:{q * 64} glc ; nowait')
        a(f"""s_lshl_b32 s{T6}, s{sXC}, 5
        v_mov_b32 v{vTk}, 1
        v_mov_b32 v{vTk+1}, s{T6}""")
        if o.get('bar1', 1): a('s_barrier')
        a(f"""s_cmp_lg_u32 s{sWAVE}, 7
        s_cbranch_scc1 L_NOTK
        s_mov_b64 exec, 1
        global_atomic_add v{vTk}, v{vTk+1}, v{vTk}, {sr(pDBG, 2)} sc0 sc1
        s_mov_b64 exec, -1
        s_branch L_TK0
        L_NOTK:""")
        code_pf()
        a('L_TK0:')
        vm.issue('tk')
        setup()
        w_early()
        S(T0, '(w - 4)*16 + L_ST'); va(vT + 6, [(5, 1, 8)], T0)
        a('s_barrier')
        vm.wait('xs')
        lg.wait_all()
        tag_hash()
        self.stamp('xsok')
        self.ln_stats2(raw, raw + 8, xs, st, st + 1)
        a(f"""v_lshrrev_b32 v{st}, 16, v{st}
        v_or_b32 v{st}, v{st}, v{st+1}
        v_mov_b32 v{st+1}, s{sTAG}""")
        self.dw('ds_write_b64', vT + 6, st, 2)
        a('L_FJ:')
        va(vT + 1, [(0, 2, 16)], None, L_ST)
        va(vT, [(0, 2, 16), (2, 1, 65536 if TL else 1024)])
        va(vT + 6, [(0, 5, 2048), (5, 1, 32)])
        va(vT + 2, [(0, 1, 64 * 512 if TL else 512), (1, 1, 256)])
        S(T2, ('((j >> 4)*128 + w*8 + x)*512' if TL else '((x & 6) + ((x & 1)*2 + (j >> 4))*64 + w*8)*512') + ' + ((j >> 2) & 3)*64 + (j & 3)*4 + 16 + INA')
        self.barrier()
        self.r128(st, vT + 1, 0, 'st')
        lg.wait('st')
        a('s_mov_b64 exec, 0xff')
        self.bs(st, 4, vT, rWS, T1, 0, 'sc1')
        a('s_mov_b64 exec, 15')
        self.bs(st + 1, 1, vT + 2, rWS, T2, 0, 'sc1')
        a('s_mov_b64 exec, -1')
        self.stamp('A2pub')
        a(f"""s_cmp_lg_u32 s{sWAVE}, 7
        s_cbranch_scc1 L_NOTK2
        s_mov_b32 s{T0}, 0
        s_waitcnt vmcnt({len(vm.q) - 1 - vm.q.index('tk')})
        L_TK:
        v_readfirstlane_b32 s{T2}, v{vTk}
        s_cmp_lt_u32 s{T2}, 32
        s_cbranch_scc1 L_TKOK
        v_mov_b32 v{vTk}, s{sTAG}
        s_mov_b64 exec, 1
        buffer_store_dword v{vTk}, v{vZ}, {sr(rWS, 4)}, 0 offen offset:{MARK} sc1
        s_mov_b64 exec, -1
        s_add_u32 s{T0}, s{T0}, 1
        s_cmp_lt_u32 s{T0}, 8
        s_cbranch_scc0 L_TKNO
        s_add_u32 s{sXC}, s{sXC}, 1
        s_and_b32 s{sXC}, s{sXC}, 7
        s_lshl_b32 s{T6}, s{sXC}, 5
        v_mov_b32 v{vTk}, 1
        v_mov_b32 v{vTk+1}, s{T6}
        s_mov_b64 exec, 1
        global_atomic_add v{vTk}, v{vTk+1}, v{vTk}, {sr(pDBG, 2)} sc0 sc1
        s_mov_b64 exec, -1
        s_waitcnt vmcnt(0)
        s_branch L_TK
        L_TKNO:
        s_and_b32 s{sXC}, s2, 7
        s_lshr_b32 s{T2}, s2, 3
        L_TKOK:
        s_lshl3_add_u32 s{T2}, s{T2}, s{sXC}""")
        if o.get('rawrole'): a(f's_mov_b32 s{T2}, s2')
        a(f"""v_mov_b32 v{vTk}, s{T2}
        ds_write_b32 v{vT+1}, v{vTk} offset:64
        L_NOTK2:""")
        self.barrier()
        a(f'ds_read_b32 v{mq}, v{vT+1} offset:64'); lg.issue('role')
        lg.wait('role')
        a(f'v_readfirstlane_b32 s2, v{mq}')
        self.stamp('role')
        V.release(raw, 16); V.release(cv, 4)
        S(sX, 'wg & 7'); S(sJ, 'wg >> 3')
        S(sCB, 'j & 15' if TL else '(x & 1)*8 + (j & 7)')
        S(sRT, 'x*2 + (j >> 4)' if TL else '(x >> 1)*4 + (j >> 3)')
        S(sGTB, 'rt*4 + (w & 3)')
        S(sC32, 'cb*2 + kh')
        S(T5, 'gtb*65536 + c32*64')
        ld_xt = lambda: [self.bl(xr + 4 * q, 4, vT + 6, rX, T5, 16 * q, o.get('xtmod', ''), 'xt') for q in range(2)]
        if not o.get('xtlate', 0): ld_xt()
        S(T0, '(((x >> 1)*16 + cb)*16 + w)*512 + AINB')
        S(T2, '(wg*8 + w)*64 + INA')
        def role_prep():
            S(sR1, 'j & 15' if HL else '(x & 4)*2 + (j >> 2)'); S(sHP, '((x >> 2)*2 + (x & 1))*4 + (x & 2) + (j >> 4)' if HL else '(x & 3)*4 + ((j & 3) ^ 2)')
            S(sU0, o.get('u0', 'j & 12'))
            w_next(wb[0])
            S(sINB, '(wg*64 + w)*64 + INB')
            S(sKF, 'kh ^ (j >> 4)'); S(sROT, o.get('rot', '(((j >> 3) ^ j) & 1)*q + p'), q=4 if D2 else 8, p=8 * o.get('dflip', 1))
            S(sFS, 'x*7 + (j >> 2)'); S(sKQ, 'j & 3')
            va(vT + 4, [(0, 5, 8)])
            va(vT, [(0, 5, 16), (5, 1, 4096)])
            S(T3, 'w*4 + L_MP'); va(vT + 1, [(0, 6, 64)], T3)
            S(T3, 'kh*1024 + L_MP'); va(vT + 2, [(0, 4, 32), (5, 1, 512)], T3)
        S(T1, '(wg*4 + (w & 3))*256 + SINB')
        self.spoll([(0, 8, T2, 0)], (0, 1, 4, 5, 6, 7), work=role_prep)
        self.stamp('apre')
        if o.get('abar', 2) == 1: a('s_barrier')
        st_ld = lambda: self.bl(st, 2, vT + 4, rWS, T1, 0, 'sc1', 'st')
        def st_fetch():
            st_ld()
            if o.get('abar', 2) == 2: a('s_barrier')
            if o.get('xtlate', 0): ld_xt()
            S(T3, 'hp*4096 + w*512')
            a(f'v_add_u32 v{vT+6}, s{T3}, v{vL16}')
            S('m0', 'w*512 + L_WPHI')
            a('s_mov_b32 exec_hi, 0')
            a(f'global_load_lds_dwordx4 v{vT+6}, {sr(pWPHI, 2)}'); vm.issue()
            a('s_mov_b32 exec_hi, -1')
            w_next(wb[1])
        self.try_load(lambda: self.bl(mq, 4, vT, rWS, T0, 0, 'sc1'), [mq + 1, mq + 3], vT + 3, st_fetch)
        self.stamp('modok')
        a(f'ds_write2_b32 v{vT+1}, v{mq}, v{mq+2} offset0:0 offset1:8'); lg.issue()
        if not o.get('xtlate', 0):
            for i in range(8): self.unpack(xs + 2 * i, xs + 2 * i + 1, xr + i)
        self.barrier()
        mp = V.alloc(16); hp = V.alloc(8)
        for i in (2, 3, 0, 1): self.r128(mp + 4 * i, vT + 2, (i >> 1) * 2048 + (i & 1) * 16, i >> 1)
        w_next(wb[2])
        self.finish_load('st', st_ld, [st + 1], None)
        if o.get('xtlate', 0):
            vm.wait('xt')
            for i in range(8): self.unpack(xs + 2 * i, xs + 2 * i + 1, xr + i)
        self.stamp('statok')
        self.unpack(st + 1, st, st)
        a(f'v_rcp_f32 v{st}, v{st}')
        for i in E2: self.pk('add', xs + i, xs + i, st + 1, bc=(1,), neg=(1,))
        S(T0, '(((rt*16 + cb)*4 + (w & 3))*2 + kh)*2048 + HF')
        va(vT + 4, [(0, 4, 16), (4, 1, 1024), (5, 1, 512)])
        lg.wait(1); self.sum8(mp + 8)
        self.round1(mp + 8)
        lg.wait(0); self.sum8(mp)
        a(f'v_add_f32 v{mp+8}, 1.0, v{mp+8}')
        self.round2(mp + 8, mp)
        PKM = o.get('pkm', 1)
        if PKM:
            mb = V.alloc(32)
            S(T3, 'w*256 + L_MB'); va(vT, [(0, 4, 4), (5, 1, 64)], T3); va(vT + 1, [(5, 1, 64)], T3)
            a(f'ds_write2_b32 v{vT}, v{mp+8}, v{mp} offset0:0 offset1:32'); lg.issue()
            for q in range(8): self.r128(mb + 4 * q, vT + 1, (q >> 2) * 128 + (q & 3) * 16, ('mb', q))
        for h in range(2):
            rg = range(8 * h, 8 * h + 8)
            self.round_list([xs + i for i in rg])
            for i in range(8 * h, 8 * h + 8, 2): self.pk('mul', xs + i, xs + i, st, bc=(1,))
            self.round_list([xs + i for i in rg])
        for h in range(2):
            rg = range(8 * h, 8 * h + 8)
            if PKM:
                lg.wait(('mb', 2 * h + 1))
                for i in range(8 * h, 8 * h + 8, 2): self.pk('mul', xs + i, xs + i, mb + i)
            else:
                for i in rg: self.dpp('v_mul_f32', xs + i, mp + 8, xs + i, f'row_newbcast:{i}')
            self.round_list([xs + i for i in rg])
            if PKM:
                lg.wait(('mb', 4 + 2 * h + 1))
                for i in range(8 * h, 8 * h + 8, 2): self.pk('add', xs + i, xs + i, mb + 16 + i)
            else:
                for i in rg: self.dpp('v_add_f32', xs + i, mp, xs + i, f'row_newbcast:{i}')
            for i in range(4 * h, 4 * h + 4): a(f'v_cvt_pk_bf16_f32 v{hp+i}, v{xs+2*i}, v{xs+2*i+1}')
            self.bs(hp + 4 * h, 4, vT + 4, rWS, T0, 256 * h, 'sc1', 'hs')
        if PKM: V.release(mb, 32)
        self.stamp('hst')
        w_next(wb[3])
        va(vB, [(5, 1, 2080), (2, 2, 128), (3, 1, 64), (0, 2, 8)])
        va(vB + 1, [(4, 1, 1056)])
        va(vB + 2, [(3, 1, 128)])
        a(f"""v_add_u32 v{vB}, v{vB}, v{vB+1}
        v_sub_u32 v{vB+1}, v{vB}, v{vB+2}
        v_add_u32 v{vB+1}, 64, v{vB+1}""")
        for q in (1, 2):
            for h in range(2): a(f'v_add_u32 v{vB+2*q+h}, {2*q*SLOT}, v{vB+h}')
        S(T1, 'kh*2048 + L_WPHI')
        va(vT, [(2, 2, 64), (4, 1, 32), (0, 2, 8), (5, 1, 512)], T1)
        va(vT + 1, [(0, 3, 4096), (3, 1, 128 * 4096)] if HL else [(0, 2, 8 * 4096), (2, 2, 4096)])
        S(T0, ('rt*32768' if HL else '((rt >> 3)*4 + (rt & 7)*32)*4096') + ' + (cb >> 1)*64 + (cb & 1)*4 + INB')
        va(vT + 2, [(4, 1, 64), (5, 1, 16)]); va(vWo, [(0, 3, 16)])
        a(f'v_xor_b32 v{vWo}, v{vWo}, v{vT+2}'); va(vT + 2, [(3, 3, 2048)]); a(f'v_add_u32 v{vWo}, v{vWo}, v{vT+2}')
        S(T1, '(w & 2)*32'); va(vT + 2, [(4, 1, 32)], T1); va(vFG, [(0, 3, 16)])
        a(f'v_xor_b32 v{vFG}, v{vFG}, v{vT+2}'); va(vT + 2, [(3, 3, 7168)]); a(f'v_add_u32 v{vFG}, v{vFG}, v{vT+2}')
        S(T1, '(w & 1)*128')
        va(vT + 2, [(5, 1, 64)], T1); va(vFD, [(0, 5, 16), (5, 1, 2048)])
        a(f'v_xor_b32 v{vFD}, v{vFD}, v{vT+2}')
        S(sFG, '(kq*8 + w)*(32*7168) + fs*128'); S(sFD, '(fs*8 + w)*16384 + kq*512')
        a(f"""s_cmp_ge_u32 s{sJ}, 28
        s_cselect_b32 s{rWG+2}, 0, s{rWG+2}
        s_cselect_b32 s{rWU+2}, 0, s{rWU+2}
        s_cselect_b32 s{rWD+2}, 0, s{rWD+2}""")
        vm.wait('hs')
        a('s_barrier')
        self.push(vT + 1, T0, 16, vT + 2, 'L_PB')
        self.stamp('hpub')
        V.release(xs, 16); V.release(mp, 16); V.release(hp, 8); V.release(st, 4); V.release(mq, 4); V.release(vTk, 2)
        w_next(wb[4])
        for s in range(2):
            for u in range(2): self.tr(wphi + 4 * s + 2 * u, vT, s * 1024 + u * 256)
        AD, LOOK, LASTB = o['AD'], o.get('LOOK', 6), o['LASTB']
        accs = V.alloc(96)
        big = V.alloc(76)
        Ar, Br = big, big + 4 * AD
        assert 4 * AD + 4 * (LOOK + 1) <= 76
        S(T2, '(r1*64 + w)*4096 + HF')
        S(T0, '(w & 3)*4096 + L_XF'); a(f'v_add_u32 v{vXF}, s{T0}, v{vL16}')
        vXW = V.alloc(); vVW = V.alloc()
        va(vXW, [(0, 4, 16), (5, 1, 512), (4, 1, 8)], T0)
        S(T0, '(w & 3)*1024 + L_V'); va(vVW, [(0, 4, 32), (4, 2, 8)], T0)
        S(T0, '(w & 3)*1024 + kh*16384 + L_PHK'); va(vPW, [(0, 5, 32), (5, 1, 16)], T0)
        fq = [(m, i) for m in range(3) for i in range(4)]
        freg = []
        def f_src(m, i, back=0, T0=T0):
            if m < 2: S(T0, 'fg + q', q=i * 8 * 7168 - back * 4 * 32 * 7168)
            else: S(T0, 'fd + q', q=i * 4096 - back * 4 * 16384)
            return (vFG, (rWG, rWU)[m]) if m < 2 else (vFD, rWD)
        def f_lds(m, i): return (L_GU + m * 32768 if m < 2 else L_DN) + i * 1024
        def ffn_reg(n):
            for _ in range(n):
                m, i = fq.pop(0)
                for back in range(2):
                    v, r = f_src(m, i, back)
                    self.bl(big + 8 * len(freg) + 4 * back, 4, v, r, T0, 0, o.get('ntffn', 'nt'), 'ffn')
                freg.append((m, i))
        def ffn_dma(n, T0=T0):
            for _ in range(n):
                m, i = fq.pop(0)
                if o.get('nofd'): continue
                v, r = f_src(m, i, 0, T0)
                S('m0', 'w1k*4 + q', q=f_lds(m, i))
                self.dma(v, r, T0, 0, o.get('ntffn', 'nt'), 'gu' if m < 2 else 'dn')
        S(sWB, 'w*16384' if D2 else '(rot*4 + w)*16384'); S(sWO2, '(j >> 4)*1048576 + cb*128'); S(sW1K, 'w*1024')
        def wo_dma(it, back=0, T0=T0):
            S(T0, '(((wb + q) & 0xfffff) ^ (rot*65536)) + (wo2 ^ h)' if D2 else '((wb + q) & 0xfffff) + (wo2 ^ h)', q=(8 * it - 4 * back) * 16384, h=(it >> 3) << 20)
            S('m0', 'w1k + q', q=WO_H0 + it * 8192 - 4096 * back)
            self.dma(vWo, rWO, T0, 0, '', 'wo')
        self.inbox(0, 2, work=lambda: w_next(wb[5]), pipe=o.get('pipeB', 0))
        assert len(wq) % 3 == 0 and 30 <= len(wq) <= (45, 36, 36, 42)[o.get('wxor', 1)]
        NPU = 16 - len(wq) // 3
        vm.wait(('W', (0, 2, 3, 1)[o.get('wxor', 1)]))
        a('s_barrier')
        self.stamp('hok')
        a(f"""s_cmp_ge_u32 s{sWAVE}, 4
        s_cbranch_scc1 L_HELP
        s_setprio 2""")
        q_hok = list(vm.q)
        if 'pad' in o:
            a('.p2align 6')
            for _ in range(o['pad']): a('s_nop 0')
        def a_load(sg):
            if sg % 4 == 0: S(T3, '((u0 + n) & q)*16384 + T2', n=sg // 4, q=o.get('amask', 15))
            self.bl(Ar + 4 * (sg % AD), 4, vL16, rWS, T3, (sg % 4) * 1024, o.get('amod', 'sc1'), ('A', sg))
        CORD = [(1, 2), (1, 3), (1, 0), (1, 1)] + [(t, ct) for t in (0, 2) for ct in range(4)]
        WEV = o.get('wev', 2); NB = LOOK + 1
        def b_read(n, q):
            st_, c = divmod(n, 12); t, ct = CORD[c]
            slot = (st_ >> 1) % 6
            off = (slot & 1) * SLOT + t * SEC + (st_ & 1) * 4160 + (ct & 1) * 32 + q * 512
            self.tr(Br + 4 * (n % NB) + 2 * q, vB + 2 * (slot >> 1) + (ct >> 1), off, ('B', n))
        nxt = 0
        def a_more(lim):
            nonlocal nxt
            while nxt < min(lim, 64): a_load(nxt); nxt += 1
        a_more(2)
        for n in range(LOOK):
            for q in range(2): b_read(n, q)
        a_more(o.get('A0', 4))
        b14 = False
        for n in range(384):
            st_, c = divmod(n, 12); t, ct = CORD[c]
            if n % WEV == 0: lg.wait(('B', min(n + WEV - 1, 383)))
            for th in range(2):
                if c == 0: vm.wait(('A', 2 * st_ + (th if st_ < 2 or not o.get('vw1', 1) else 1)))
                d = accs + 32 * t + 16 * (ct >> 1) + 8 * (ct & 1) + 4 * th
                a(f'v_mfma_f32_16x16x32_bf16 {vr(d, 4)}, {vr(Br + 4*(n % NB), 4)}, {vr(Ar + 4*((2*st_ + th) % AD), 4)}, ' + ('0' if st_ == 0 else vr(d, 4)))
                if n + LOOK < 384:
                    if th == 0 and (n + LOOK) % 24 == 0 and (n + LOOK) // 24 <= LASTB: a('s_barrier')
                    b_read(n + LOOK, th)
            if c in o.get('aat', (0, 3, 6, 9)): a_more(min(nxt + 1, 2 * st_ + AD))
            if nxt == 64 and not b14 and (n + LOOK) // 24 >= LASTB and (n + LOOK) % 24:
                b14 = True; a('s_barrier')
        self.stamp('gemm1')
        aq, ak, av = accs, accs + 32, accs + 64
        def cvt8(d, s_, swap=True):
            for c in range(2):
                for th in range(2):
                    for ip in range(2): a(f'v_cvt_pk_bf16_f32 v{d + 4*c + 2*th + ip}, v{s_ + 8*c + 4*th + 2*ip}, v{s_ + 8*c + 4*th + 2*ip + 1}')
            if swap:
                for c in range(2):
                    for ip in range(2): a(f'v_permlane16_swap_b32 v{d + 4*c + ip}, v{d + 4*c + 2 + ip}')
        def put8(addr, d, off, oc_, ot):
            for c in range(2):
                for th in range(2): self.dw('ds_write_b64', addr, d + 4 * c + 2 * th, 2, off + c * oc_ + th * ot)
        cvt8(vv, ak + 16, False)
        put8(vXW, vv, 0, 1024, 256)
        cvt8(fr, ak)
        self.barrier()
        a('s_setprio 0')
        pp = ak; ee = ak + 16
        def phi_logits(src):
            a(f'v_mfma_f32_32x32x16_bf16 {vr(pp, 16)}, {vr(wphi, 4)}, {vr(src, 4)}, 0')
            a(f'v_mfma_f32_32x32x16_bf16 {vr(pp, 16)}, {vr(wphi + 4, 4)}, {vr(src + 4, 4)}, {vr(pp, 16)}')
        phi_logits(fr)
        for h in range(2):
            cvt8(vv if h == 0 else vq, av + 16 * h, False)
            put8(vVW, vv if h == 0 else vq, h * 8192, 4096, 512)
        cvt8(fr, aq + 16, False)
        put8(vXW, fr, 2048, 1024, 256)
        cvt8(vq, aq)
        a('s_branch L_JOIN')
        a('L_HELP:')
        vm.q = [('W', 1)] * len(q_hok) if o.get('wxor', 1) == 1 else list(q_hok); lg.reset()
        m2w = accs; m2c = accs + 32; g4 = accs + 48
        def w_unit(n):
            for wexpr in ('w - 4', 'w'):
                w_base(n, wexpr)
                for t in range(3):
                    w_slot(n, t)
                    if o.get('pace', 0) and n >= 6: a(f's_sleep {o["pace"]}')
        for n in range(NPU, 6): w_unit(n)
        S(T0, '((j & 3)*4 + w - 4)*128' if HL else '((x & 3)*4 + w - 4)*128')
        va(vCo, [(3, 3, 16)], T0)
        va(vWM, [(3, 3, 8 * 12288), (0, 3, 16)])
        S(T4, 'T0*6144 + (((j >> 2) & 3)*16 + x*2 + (j >> 4))*128 + 4096' if HL else 'T0*6144 + (j*2 + (x >> 2))*128 + 4096')
        a(f'global_load_dwordx4 {vr(m2c + 8, 4)}, v{vCo}, {sr(pC, 2)}'); vm.issue('m2c')
        m2l = list(range(8)); wol = [9, 10, 11, 12]; pwl = list(range(1, 8)); sil = list(range(8))
        m2ops = self.gemv_ops([m2w + 4 * i for i in range(8)], [m2c + i for i in range(8)], acc, vT, vT + 1, False)
        m2pos = 0
        m2q = accs; wr1 = accs + 8; vM2 = accs + 9
        ld_m2 = lambda: [self.bl(m2q + 4 * q, 4, vM2, rWS, T5, q * 1024, 'sc1', 'm2q') for q in range(2)]
        def m2_final():
            self.finish_load('m2q', ld_m2, [m2q + 1, m2q + 3, m2q + 5, m2q + 7], vT)
            q0, q1, q2, q3 = m2q, m2q + 1, m2q + 2, m2q + 3
            S(T0, '(w & 3)*128 + L_MT'); va(vT, [(0, 5, 4)], T0)
            S(T1, 'w & 3')
            a(f"""v_add_f32 v{q0}, v{m2q}, v{m2q+4}
            v_add_f32 v{q1}, v{m2q+2}, v{m2q+6}
            v_add_f32 v{q2}, v{m2q}, v{m2q+4}""".replace(f'v_add_f32 v{q2}, v{m2q}, v{m2q+4}', f'v_mov_b32 v{q2}, v{q0}'))
            a(f"""v_mov_b32 v{q3}, v{q1}
            s_cmp_eq_u32 s{T1}, 2
            s_cselect_b32 s{T2}, 1.0, 0
            v_permlane32_swap_b32 v{q0}, v{q2}
            v_permlane32_swap_b32 v{q1}, v{q3}""")
            self.pk('add', q0, q0, q2)
            self.round2(q0, q1)
            a(f"""v_add_f32 v{q0}, s{T2}, v{q0}
            v_add_f32 v{q1}, s{T2}, v{q1}
            v_cvt_pk_bf16_f32 v{q2}, v{q0}, v{q1}""")
            self.dw('ds_write_b32', vT, q2, 1)
            a('s_cbranch_scc0 L_NOG')
            g0, g1, gh, gl = m2q + 4, m2q + 5, m2q + 6, m2q + 7
            self.unpack(q0, q1, q2); self.unpack(g0, g1, wr1)
            self.pk('mul', g0, g0, q0)
            a(f'v_cvt_pk_bf16_f32 v{gh}, v{g0}, v{g1}')
            self.unpack(q0, q1, gh)
            self.pk('add', q0, g0, q0, neg=(1,))
            a(f"""v_cvt_pk_bf16_f32 v{gl}, v{q0}, v{q1}
            v_add_f32 v{q0}, v{g0}, v{g1}
            ds_write2_b32 v{vT}, v{gh}, v{gl} offset0:64 offset1:96
            ds_write_b32 v{vT}, v{wr1} offset:512""")
            for ctl in ('quad_perm:[1,0,3,2]', 'quad_perm:[2,3,0,1]', 'row_half_mirror', 'row_ror:8'): self.dpp('v_add_f32', q0, q0, q0, ctl)
            S(T0, '(rt*16 + cb)*8 + GR')
            a(f"""v_mov_b32 v{q2}, v{q0}
            v_mov_b32 v{q1}, s{sTAG}
            v_permlane16_swap_b32 v{q0}, v{q2}
            v_add_f32 v{q0}, v{q0}, v{q2}
            s_mov_b64 exec, 1""")
            self.bs(q0, 2, vZ, rWS, T0, 0, 'sc1', count=False)
            a("""s_mov_b64 exec, -1
        L_NOG:""")
        def act(op, k):
            nonlocal m2pos
            kind, n = op[0], int(op[1:] or 1)
            if kind == 'm':
                for _ in range(2 * n):
                    i = m2l.pop(0)
                    self.bl(m2w + 4 * i, 4, vWM, rWM, T4, 0, o.get('ntm2', 'nt'), ('m2', i))
                    if m2l: S(T4, 'T4 + 12288')
            elif kind == 'f': ffn_reg(n)
            elif kind == 'o':
                assert k >= 13
                for _ in range(n):
                    it = wol.pop(0); wo_dma(it, 1); wo_dma(it)
            elif kind == 'p':
                a('s_waitcnt lgkmcnt(0)')
                for q in range(n):
                    b = pwl.pop(0)
                    a(f's_load_dword s{sPL + 2*q}, {sr(rWS, 2)}, s{sINB} offset:{b * 512} glc')
                    a(f's_load_dword s{sPL + 2*q + 1}, {sr(rWS, 2)}, s{sINB} offset:{b * 512 - 256} glc')
            elif kind == 'q':
                S(T0, 'fs*8192 + (w - 4)*256 + HGR')
                a('s_waitcnt lgkmcnt(0)')
                for q in range(4): a(f's_load_dword s{sPL + q}, {sr(rWS, 2)}, s{T0} offset:{q * 2048 + 1024 + 252} glc')
            elif kind == 'z':
                for i in range(4): a(f'v_mov_b32 v{g4+i}, -1')
                if n == 1:
                    for we in ('w - 4', 'w'):
                        S(T0, f'(((r1*4 + (w & 3))*16 + hp)*2 + (({we}) >> 2))*2048 + OF')
                        for q in range(2): self.bs(g4, 4, vL16, rWS, T0, 1024 * q, 'sc1', 'pzo')
                else:
                    for we in ('w - 4', 'w'):
                        S(T0, f'((hp*8 + {we})*32 + r1)*1024 + KVP'); S(T1, 'T0 + 16384')
                        self.bs(g4, 4, vL16, rWS, T0, 0, 'sc1', 'pz'); self.bs(g4, 4, vL16, rWS, T1, 0, 'sc1', 'pz')
                    S(T0, '((hp*8 + w - 4)*16 + r1)*64 + ZP')
                    va(vT + 2, [(0, 2, 16), (2, 1, 4096)])
                    a('s_mov_b64 exec, 0xff')
                    self.bs(g4, 4, vT + 2, rWS, T0, 0, 'sc1', 'pz')
                    a('s_mov_b64 exec, -1')
            elif kind == 'M':
                va(vM2, [(0, 5, 16), (5, 1, 512)])
                S(T5, '((w & 3)*16 + cb)*2048 + MODP2')
                S(T0, 'cb*128'); va(vT, [(0, 5, 4)], T0)
                a(f'global_load_dword v{wr1}, v{vT}, {sr(pWR, 2)}'); vm.issue('m2q')
                ld_m2()
            elif kind == 'N': m2_final()
            elif kind == 'K':
                S(T0, '(hp*16 + r1)*1024 + (w & 3)*256 + KIN'); S(T1, 'hp*128 + CFL')
                a(f'v_lshlrev_b32 v{vWM}, 7, v{vL}')
                a('s_mov_b64 exec, 3')
                self.bl(vWM, 1, vWM, rWS, T0, 0, '')
                self.bl(vCo, 1, vZ, rWS, T1, 0, '')
                a('s_mov_b64 exec, -1')
            elif kind == 'h':
                S(T0, '(fs*4 + kq)*2048 + (w & 1)*1024 + HGR'); S(T1, '(rt*16 + cb)*2048 + (w & 1)*1024 + STAT')
                if TL: a(f's_bitcmp1_b32 s{sWAVE}, 1'); a(f's_cselect_b32 s{T0}, s{T1}, s{T0}')
                self.bl(m2c + 12, 4, vL16, rWS, T0, 0, '')
            elif kind == 's':
                vm.wait('m2c')
                for _ in range(n):
                    i = sil.pop(0)
                    a(f'v_and_b32 v{m2c+i}, s{sMASK}, v{m2c+8+i//2}' if i & 1 else f'v_lshlrev_b32 v{m2c+i}, 16, v{m2c+8+i//2}')
                    self.silu(m2c + i, vT + (i & 1))
            elif kind == 'g':
                assert not sil
                for _ in range(n):
                    vm.wait(('m2', m2pos // 16))
                    for s_ in m2ops[m2pos:m2pos + 16]: a(s_)
                    m2pos += 16
            elif kind == 'r':
                assert m2pos == 128
                for s_ in m2ops[128:]: a(s_)
                self.dw('ds_write_b32', vGA, acc, 1, L_M2 - SCR)
                lg.wait_all()
            elif kind == 'P':
                a(f"""s_cmp_lg_u32 s{sWAVE}, 4
                s_cbranch_scc1 L_M2F
                ds_read_b128 {vr(acc, 4)}, v{vL32S} offset:{L_M2 - SCR}""")
                S(T0, '((((j >> 2) & 3)*16 + x*2 + (j >> 4))*4 + (j & 3))*512 + MODP2' if HL else '((j*2 + (x >> 2))*4 + (x & 3))*512 + MODP2')
                a(f"""s_waitcnt lgkmcnt(0)
                v_add_f32 v{acc}, v{acc}, v{acc+1}
                v_add_f32 v{acc+2}, v{acc+2}, v{acc+3}
                v_mov_b32 v{acc+1}, s{sTAG}
                v_add_f32 v{acc}, v{acc}, v{acc+2}""")
                self.bs(acc, 2, vL8, rWS, T0, 0, 'sc1', count=False)
                a('L_M2F:')
            else: raise ValueError(op)
        sched = {int(k): v.split() for k, v in o['sched'].items()}
        for op in sched.get(0, []): act(op, 0)
        for k in range(1, LASTB + 1):
            for kk in (range(k, 16) if k == LASTB else [k + 1 if k < 3 and o.get('wxor', 1) == 3 else k]): vm.wait(('W', kk))
            if o.get('ust'): self.stamp(f'w{k}')
            a('s_barrier')
            if o.get('ust'): self.stamp(f'u{k}')
            ops = sched.get(k, [])
            if 6 <= k + 4 < 16:
                pre = [op[1:] for op in ops if op[0] == '<']
                for op in pre: act(op, k)
                if not o.get('now2'): w_unit(k + 4)
            for op in ops:
                if op[0] != '<': act(op, k)
        if o.get('b14', 1):
            assert LASTB == 13 and AD <= 12
            a('s_barrier')
            for op in sched.get(14, []): act(op, 14)
        self.barrier()
        for q in range(2): self.r128(fr + 4 * q, vXF, q * 1024)
        lg.wait_all()
        phi_logits(fr)
        for op in sched.get(15, []): act(op, 15)
        assert (not m2l or o.get('nom2')) and not wol
        assert 8 * len(freg) <= 76
        a('L_JOIN:')
        pzq = list(vm.q)
        vm.reset(); lg.q = [None]
        V.release(vXW); V.release(vVW); V.release(vB, 6); V.release(vWd); V.release(vGA); V.release(vL32S); V.release(acc, 8)
        V.release(big + 8 * len(freg), 76 - 8 * len(freg))
        ph = aq; fx = aq + 16
        vPA = V.alloc(); vPB = V.alloc()
        self.softmax_pm(pp, ee, ph, vT)
        for fb in range(4): self.dw('ds_write_b128', vPW, ph + 4 * fb, 4, fb * 4096)
        S(T0, 'w*4096 + L_PHK'); a(f'v_add_u32 v{vPA}, s{T0}, v{vL8}')
        S(T0, 'kh*8192 + L_V'); a(f'v_add_u32 v{vPB}, s{T0}, v{vL8}')
        ones = fr
        for i in range(4): a(f'v_mov_b32 v{ones+i}, 0x3f803f80')
        S(T0, '((hp*8 + w)*32 + r1)*1024 + KVP'); S(T2, 'T0 + 16384')
        S(T3, '(hp*8 + w)*1024 + ZP'); S(T1, 'r1*64 + T3')
        self.stamp('ksm')
        self.barrier()
        self.stamp('phik')
        tb7 = V.alloc(8); tb4 = tb7 + 4
        S(T5, 'kh*64 + L_MT'); va(tb7 + 3, [(0, 3, 4), (5, 1, 32)], T5)
        for q, t in ((0, 0), (1, 4), (2, 5), (4, 1), (5, 2), (6, 3), (7, 6)): self.dr('ds_read_b32', tb7 + q, 1, tb7 + 3, t * 128)
        fragA = [ee + 4 * i for i in range(4)]
        fragB = [av + 4 * i for i in range(8)]
        kvd = vv; zd = fr + 4
        def kvm(u):
            lg.wait(('kv', u))
            for db in range(2):
                a(f'v_mfma_f32_16x16x32_bf16 {vr(kvd + 4*db, 4)}, {vr(fragA[u], 4)}, {vr(fragB[2*u+db], 4)}, ' + ('0' if u == 0 else vr(kvd + 4*db, 4)))
            a(f'v_mfma_f32_16x16x32_bf16 {vr(zd, 4)}, {vr(fragA[u], 4)}, {vr(ones, 4)}, ' + ('0' if u == 0 else vr(zd, 4)))
        for ts in range(4):
            self.tr(fragA[ts], vPA, ts * 1024, ('kv', ts)); self.tr(fragA[ts] + 2, vPA, ts * 1024 + 512, ('kv', ts))
            for db in range(2):
                self.tr(fragB[2*ts+db], vPB, db * 4096 + ts * 1024, ('kv', ts)); self.tr(fragB[2*ts+db] + 2, vPB, db * 4096 + ts * 1024 + 512, ('kv', ts))
            if ts >= 2: kvm(ts - 2)
        va(vPW, [(0, 4, 8 * 4096)] if HL else [(0, 3, 32 * 4096), (3, 1, 4 * 4096)])
        S(T4, '(wg & q)*4096 + (r1 >> 1)*64 + (r1 & 1)*4 + INB + 512', q=0x87 if HL else 0x1b)
        kvm(2); kvm(3)
        a(f"""s_cmp_lt_u32 s{sWAVE}, 4
        s_cbranch_scc1 L_NOQX
        ds_read_b128 {vr(vq, 4)}, v{vXF} offset:2048
        ds_read_b128 {vr(vq + 4, 4)}, v{vXF} offset:3072
        L_NOQX:""")
        if 'pz' in pzq: a(f's_waitcnt vmcnt({pzq[::-1].index("pz")})')
        self.bs(kvd, 4, vL16, rWS, T0, 0, 'sc1', 'kvs')
        self.bs(kvd + 4, 4, vL16, rWS, T2, 0, 'sc1', 'kvs')
        a('s_mov_b32 exec_lo, 0x00010001')
        a('s_mov_b32 exec_hi, 0x00010001')
        self.bs(zd, 4, vL, rWS, T1, 0, 'sc1', 'kvs')
        a('s_mov_b64 exec, -1')
        lg.wait_all()
        phi_logits(vq)
        self.stamp('kvst')
        wl = [2, 3, 4, 5, 6, 7, 8, 13, 14, 15, 0, 1]
        kp = av; zz = av + 16; g4 = vv
        vKP = V.alloc()
        va(vKP, [(3, 3, 1024), (0, 3, 16)])
        va(vXF, [(0, 3, 16), (5, 1, 8)])
        wo1 = lambda: wo_dma(wl.pop(0), 0, T6)
        keep = a.items; a.items = []
        self.softmax_pm(pp, ee, ph, vv)
        qsm = a.items; a.items = keep
        qcost = [2 if it[1].is_trans or 'permlane' in it[1].mn else 1 for it in qsm]
        qtot = sum(qcost); qdone = [0]
        def q_slice(upto):
            while qsm and qdone[0] < qtot * upto / 100:
                a.items.append(qsm.pop(0)); qdone[0] += qcost.pop(0)
        qs = o.get('qs', (35, 85, 100))
        CL = o.get('cl', (0, 1)); assert CL[1]
        q_slice(qs[0])
        S(T5, 'hp*128 + CFL'); S(T1, 'r1*8 + T5')
        vCF = V.alloc(); cf = V.alloc()
        va(vCF, [(0, 4, 8)])
        vm.wait('kvs')
        a('s_barrier')
        if CL[0]:
            a(f"""s_cmp_eq_u32 s{sLOC}, 0
            s_cbranch_scc1 L_PCG
            s_cmp_lg_u32 s{sWAVE}, 0
            s_cbranch_scc1 L_PC
            v_mov_b32 v{cf}, s{sTAG}
            s_mov_b64 exec, 1""")
            self.bs(cf, 1, vZ, rWS, T1, 0, '', count=False)
            a("""s_mov_b64 exec, -1
            s_branch L_PC
            L_PCG:""")
        self.push(vPW, T4, 16, vPB, 'L_PC')
        self.stamp('kvpub')
        assert HL and not CL[0]
        self.bl(tb7 + 3, 1, vZ, rWS, '0', MARK, 'sc1', 'mk')
        S(T0, '(hp*16 + r1)*16384 + w*128 + KVP')
        S(T2, '(hp*16 + r1)*1024 + w*128 + KIN'); S(T4, 'T4 + 6*512')
        c1_work = lambda: (self.weave(lambda: q_slice(qs[1]), [wo1] * o['wowin'][0]), self.stamp('cw'))
        if CL[0]:
            ld_cf = lambda: self.bl(cf, 1, vCF, rWS, T5, 0, 'sc1', 'cf')
            if o.get('cfpre', 1): ld_cf()
            c1_work()
            a(f"""s_cmp_lg_u32 s{sLOC}, 0
            s_cbranch_scc1 L_C1L""")
            q_ = list(vm.q)
            self.inbox(1, 2)
            a("""s_barrier
            s_branch L_C1D
            L_C1L:""")
            if o.get('cfpre', 1): self.finish_load('cf', ld_cf, [cf])
            else: self.poll(ld_cf, [cf])
            vm.q = q_
            a('L_C1D:')
        else:
            self.inbox(1, 2, work=c1_work)
            a('s_barrier')
        V.release(vCF); V.release(vWM); V.release(vCo)
        self.stamp('kvok')
        S(T5, 'T0 + 8192')
        ld_kp = lambda: (self.bl(kp, 4, vKP, rWS, T0, 0, 'sc1', 'kp'), self.bl(kp + 4, 4, vKP, rWS, T5, 0, 'sc1', 'kp'))
        ld_z = lambda: self.bl(zz, 4, vL16, rWS, T3, 0, 'sc1', 'z')
        ld_kp(); ld_z()
        S(T1, 'w*32 + L_ZF'); va(vT + 2, [(0, 2, 8), (5, 1, 4)], T1)
        S(T1, 'w*1024 + L_KVF'); va(vT + 1, [(0, 4, 16), (5, 1, 512), (4, 1, 8)], T1)
        S(T1, 'kh*128 + L_ZF'); va(vT + 3, [(5, 1, 16)], T1)
        S(T1, 'kh*4096 + L_KVF'); a(f'v_add_u32 v{vPA}, s{T1}, v{vL16}')
        def red4(r, ctls):
            for i in range(2): a(f'v_permlane32_swap_b32 v{r+i}, v{r+2+i}')
            self.pk('add', r, r, r + 2)
            for ctl in ctls:
                for i in range(2): self.dpp('v_add_f32', r + i, r + i, r + i, ctl)
            for i in range(2): a(f'v_mov_b32 v{r+2+i}, v{r+i}')
            for i in range(2): a(f'v_permlane16_swap_b32 v{r+i}, v{r+2+i}')
            self.pk('add', r, r, r + 2)
            a(f'v_cvt_pk_bf16_f32 v{r}, v{r}, v{r+1}')
        self.weave(lambda: q_slice(qs[2]), [wo1] * o['wowin'][1])
        vm.wait('kp')
        a(f'v_cmp_eq_u32 vcc, s{sTAG}, v{tb7+3}')
        a(f's_cmp_eq_u32 vcc_lo, 0')
        a(f's_cselect_b32 s{sLOC}, {o.get("local", 1)}, 0')
        self.pk('add', kp, kp, kp + 4); self.pk('add', kp + 2, kp + 2, kp + 6)
        red4(kp, ['row_ror:8'])
        a(f"""v_mov_b32 v{kp+1}, s{sTAG}
        s_mov_b32 exec_lo, 0xff
        s_mov_b32 exec_hi, 0xff""")
        kc = V.alloc(4)
        if CL[1]:
            self.bs2([(kp, 2, vXF, T2, 0)])
            a(f"""s_mov_b64 exec, -1
            v_mov_b32 v{kc}, v{kp}
            v_mov_b32 v{kc+1}, v{kp+1}
            v_add_u32 v{kc+2}, s{T2}, v{vXF}
            s_cbranch_scc1 L_PC2""")
        else:
            self.bs(kp, 2, vXF, rWS, T2, 0, 'sc1', count=False)
            a('s_mov_b64 exec, -1')
        a('s_barrier')
        self.push(vPW, T4, 16, vPB, 'L_PC2')
        self.stamp('c2pub')
        kf = av; zf = av + 16; num = pp; den = ee
        k2 = av + 8
        S(T0, '(hp*8 + w)*2048 + KIN')
        ld_k2 = lambda: [self.bl(k2 + 4 * q, 4, vL16, rWS, T0, q * 1024, 'sc1') for q in range(2)]
        def z_work():
            vm.wait('z')
            red4(zz, ['row_ror:4', 'row_ror:8'])
            self.dw('ds_write_b32', vT + 2, zz, 1)
            q_slice(100)
            self.stamp('c2w')
        ZP_ = o.get('zpre', 1)
        if ZP_: z_work()
        a(f"""s_cmp_lg_u32 s{sLOC}, 0
        s_cbranch_scc1 L_C2L""")
        l_ = list(lg.q)
        self.inbox(7, 2)
        lg.q = l_
        a('L_C2L:')
        self.try_load(ld_k2, [k2 + 1, k2 + 3, k2 + 5, k2 + 7], vT, None if ZP_ else z_work)
        for db in range(2):
            a(f'ds_write2_b32 v{vT+1}, v{k2+4*db}, v{k2+4*db+2} offset0:{64*db} offset1:{64*db+1}'); lg.issue()
        self.barrier()
        self.stamp('kvred')
        for fb in range(4): self.r128(zf + 4 * fb, vT + 3, fb * 32, ('zf', fb))
        for fb in range(4): self.r128(kf + 4 * fb, vPA, fb * 1024, ('kf', fb))
        for _ in range(o['wowin'][2]): wo1()
        S(T0, '(((r1*4 + (w & 3))*16 + hp)*2 + kh)*2048 + OF')
        va(vT + 4, [(0, 4, 16), (4, 1, 1024), (5, 1, 256)])
        for fb in range(4):
            lg.wait(('zf', fb))
            a(f'v_mfma_f32_32x32x16_bf16 {vr(den, 16)}, {vr(zf + 4*fb, 4)}, {vr(ph + 4*fb, 4)}, ' + ('0' if fb == 0 else vr(den, 16)))
        for fb in range(4):
            lg.wait(('kf', fb))
            a(f'v_mfma_f32_32x32x16_bf16 {vr(num, 16)}, {vr(kf + 4*fb, 4)}, {vr(ph + 4*fb, 4)}, ' + ('0' if fb == 0 else vr(num, 16)))
        self.round1(den)
        a(f'v_add_f32 v{den}, 0x358637bd, v{den}')
        self.round1(den)
        a(f'v_rcp_f32 v{den}, v{den}')
        for h in range(2):
            self.round_list([num + i for i in range(8 * h, 8 * h + 8)])
            for i in range(8 * h, 8 * h + 8, 2): self.pk('mul', num + i, num + i, den, bc=(1,))
            for i in range(4 * h, 4 * h + 4): a(f'v_cvt_pk_bf16_f32 v{vq+i}, v{num+2*i}, v{num+2*i+1}')
            self.bs(vq + 4 * h, 4, vT + 4, rWS, T0, 512 * h, 'sc1', 'os')
        self.stamp('ost')
        for r, n in ((fr, 8), (vv, 8), (vPW, 1), (vXF, 1), (vPA, 1), (vPB, 1), (vKP, 1), (accs, 96), (wphi, 8)):
            V.release(r, n)
        assert GS == 0
        vG16 = vL16
        vBa = V.alloc(4); xf = V.alloc(16)
        S(T4, 'kh*(65536 + 64) + WO_H0')
        va(vBa, [(5, 1, 2048), (4, 1, 512), (2, 2, 128), (3, 1, 64), (1, 1, 32), (4, 1, 16), (0, 1, 8)])
        a(f'v_xor_b32 v{vBa}, s{T4}, v{vBa}')
        for q, x_ in ((1, 16), (2, 64), (3, 80)): a(f'v_xor_b32 v{vBa+q}, {x_}, v{vBa}')
        assert WO_H1 == WO_H0 + 65536
        va(vT + 1, LCB)
        S(T2, ('((r1 & 1)*128 + (r1 >> 1))*4096' if TL else '((r1 >> 2)*2 + (r1 & 3)*64)*4096') + (' + ((hp >> 3)*4 + (hp & 3))*64 + (((hp >> 2) ^ p) & 1)*4 + INB + 1024' if D2 else ' + (hp >> 1)*64 + (hp & 1)*4 + INB + 1024'), p=o.get('dflip', 1))
        gaf = V.alloc(16); gp = V.alloc(16); gr = V.alloc(2); vGR = V.alloc(); cn = V.alloc(2)
        def expand(dst, t):
            for i in range(8):
                self.dpp('v_mul_u32_u24', dst + 2 * i, t, cn, f'row_newbcast:{i}')
                self.dpp('v_and_b32', dst + 2 * i + 1, t, cn + 1, f'row_newbcast:{i}')
        a(f"""v_mov_b32 v{cn}, 0x10000
        v_mov_b32 v{cn+1}, s{sMASK}""")
        for i in range(8): self.unpack(xf + 2 * i, xf + 2 * i + 1, xr + i)
        expand(gaf, tb7)
        S(T6, '(gtb*2 + kf)*32768 + OF')
        va(vGR, [(0, 4, 8)])
        vm.wait('os')
        self.barrier()
        self.push(vT + 1, T2, 16, vT + 2, 'L_PD')
        self.stamp('opub')
        def c_clean():
            if CL[1]:
                a("""s_mov_b32 exec_lo, 0xff
                s_mov_b32 exec_hi, 0xff""")
                self.bs(kc, 2, kc + 2, rWS, '0', 0, 'sc1')
                a('s_mov_b64 exec, -1')
            if CL[0]:
                S(T0, 'hp*128 + r1*8 + CFL')
                a(f"""s_cmp_lg_u32 s{sWAVE}, 0
                s_cbranch_scc1 L_NOCC
                v_mov_b32 v{cf}, s{sTAG}
                s_mov_b64 exec, 1""")
                self.bs(cf, 1, vZ, rWS, T0, 0, 'sc1', count=False)
                a("""s_mov_b64 exec, -1
                L_NOCC:""")
        if o.get('ccat', 3) == 0: c_clean()
        V.release(vq, 8)
        late_wo = bool(wl)
        while wl: wo_dma(wl.pop(0))
        V.release(vWo)
        MS = o.get('msum', 1)
        def d_work():
            for k in range(2):
                for i in range(8): a(f'v_mov_b32_dpp v{gp + 8*k + i}, v{tb7 + 1 + k} row_newbcast:{i} row_mask:0xf bank_mask:0xf')
            if MS:
                a(f"""v_and_b32 v{vT}, 3, v{vL}
                v_cmp_eq_u32 vcc, 1, v{vT}
                v_cmp_eq_u32 {sr(sCMP, 2)}, 0, v{vT}
                v_mov_b32 v{vT+1}, 0x3f803f80""")
                for i in range(8): a(f'v_cndmask_b32 v{gp+i}, v{gp+8+i}, v{gp+i}, vcc')
                for i in range(8): a(f'v_cndmask_b32 v{gp+i}, v{gp+i}, v{vT+1}, {sr(sCMP, 2)}')
            if o.get('stouch', TL):
                S(T2, '(rt*16 + cb)*2048 + w*256 + STAT')
                a(f'v_lshlrev_b32 v{gr}, 7, v{vL}')
                a('s_mov_b64 exec, 3')
                self.bl(gr, 1, gr, rWS, T2, 0, '')
                a('s_mov_b64 exec, -1')
            if late_wo or o.get('stouch', TL): vm.wait_all()
            self.stamp('dw')
        AD2 = o['AD2']
        LK2 = o.get('LK2', 4); NB2 = LK2 + 1
        accA = V.alloc(16); accB = V.alloc(16); Ar = V.alloc(4 * AD2); Br = V.alloc(4 * NB2)
        def b2_read(n, q):
            st_, c = divmod(n, 4)
            self.tr(Br + 4 * (n % NB2) + 2 * q, vBa + (c ^ 2), st_ * 4096 + q * 1024, ('B', n))
        def a2_load(s):
            if s % 2 == 0: S(T7, '(rot ^ n)*2048 + T6' if D2 else '((rot + n) & 15)*2048 + T6', n=(s // 2) & o.get('a2mask', 15))
            self.bl(Ar + 4 * (s % AD2), 4, vL16, rWS, T7, (s % 2) * 1024, o.get('a2mod', 'sc1'), ('A', s))
        self.inbox(2, 2, [0] if D2 else None, work=d_work)
        a('s_barrier')
        self.stamp('ook')
        if o.get('prio2', 1):
            a(f"""s_cmp_lt_u32 s{sWAVE}, 4
            s_cbranch_scc1 L_P2
            s_setprio {o.get('prio2', 1)}
            L_P2:""")
        nx2 = 0
        def a2_more(lim):
            nonlocal nx2
            while nx2 < min(lim, 32):
                if nx2 == 16 and D2:
                    a(f"""s_cmp_eq_u32 s{sPL + 1}, s{sTAG}
                    s_cbranch_scc1 L_D2""")
                    l_ = list(lg.q)
                    self.inbox(2, 2, [1])
                    lg.q = l_
                    a("""L_D2:
                    s_barrier""")
                a2_load(nx2); nx2 += 1
                if nx2 == 32:
                    ld_gr()
                    if o.get('ccat', 3) == 1: c_clean()
        S(T5, 'rt*128 + GR')
        ld_gr = lambda: self.bl(gr, 2, vGR, rWS, T5, 0, 'sc1', 'gr')
        a2_more(2)
        for n in range(LK2):
            for q in range(2): b2_read(n, q)
        a2_more(o.get('A20', 4))
        for n in range(64):
            st_, c = divmod(n, 4)
            if n % o.get('wev2', 1) == 0: lg.wait(('B', min(n + o.get('wev2', 1) - 1, 63)))
            for th in range(2):
                if c == 0: vm.wait(('A', 2 * st_ + (th if st_ == 0 or not o.get('vw2', 1) else 1)))
                d = (accB, accA)[c >> 1] + 8 * (c & 1) + 4 * th
                a(f'v_mfma_f32_16x16x32_bf16 {vr(d, 4)}, {vr(Br + 4*(n % NB2), 4)}, {vr(Ar + 4*((2*st_ + th) % AD2), 4)}, ' + ('0' if st_ == 0 else vr(d, 4)))
                if n + LK2 < 64: b2_read(n + LK2, th)
            if n == o.get('prio2n', 18): a('s_setprio 0')
            if c in o.get('a2at', (0, 1)): a2_more(min(nx2 + 1, 2 * st_ + AD2))
            if c == 3 and AD2 == 4: a2_more(2 * st_ + 6)
        self.stamp('gemm2')
        if o.get('prio2', 1): a('s_setprio 0')
        S(T0, 'w*4096')
        a(f'v_add_u32 v{vT}, s{T0}, v{vG16}')
        for q in range(4): self.dw('ds_write_b128', vT, accB + 4 * q, 4, L_EXCH - GS + q * 1024)
        for i in range(8): a(f'v_permlane16_swap_b32 v{accA + 8*(i >> 2) + (i & 3)}, v{accA + 8*(i >> 2) + 4 + (i & 3)}')
        S(T0, '(w ^ 4)*4096'); va(vT + 1, [(0, 4, 16), (4, 1, 1024), (5, 1, 512)], T0)
        S(T0, 'kh*2048 + (w & 3)*512 + L_SP'); va(vT + 2, [(0, 5, 16), (5, 1, 8)], T0)
        S(T0, 'kh*64 + L_TB'); va(vT + 3, [(0, 3, 4), (5, 1, 32)], T0)
        vSG = V.alloc()
        S(T6, 'rt*32768 + w*256 + STAT'); va(vSG, [(0, 4, 16), (4, 2, 2048)])
        sm = Br; one = Br + 4
        a(f'v_mov_b32 v{one}, 0x3f803f80')
        fd = list(o['fdma']); assert sum(fd) == len(fq)
        self.stamp('exw')
        self.barrier()
        self.stamp('ex1')
        for q in range(4): self.r128(accB + 4 * q, vT + 1, L_EXCH - GS + (q >> 1) * 2048 + (q & 1) * 256, ('ex', q))
        ffn_dma(fd[0], T1)
        for h in range(2):
            for q in (2 * h, 2 * h + 1):
                lg.wait(('ex', q))
                self.pk('add', accA + 4 * q, accA + 4 * q, accB + 4 * q); self.pk('add', accA + 4 * q + 2, accA + 4 * q + 2, accB + 4 * q + 2)
            rg = range(8 * h, 8 * h + 8)
            self.round_list([accA + i for i in rg])
            for i in range(8 * h, 8 * h + 8, 2): self.pk('mul', accA + i, accA + i, gaf + i)
            self.round_list([accA + i for i in rg])
            for i in range(8 * h, 8 * h + 8, 2): self.pk('add', accA + i, accA + i, xf + i)
            for i in range(4 * h, 4 * h + 4): a(f'v_cvt_pk_bf16_f32 v{xr+i}, v{accA+2*i}, v{accA+2*i+1}')
        self.stamp('x1c')
        if MS:
            for t in range(2): a(f'v_mfma_f32_32x32x16_bf16 {vr(accB, 16)}, {vr(gp + 4*t, 4)}, {vr(xr + 4*t, 4)}, ' + ('0' if t == 0 else vr(accB, 16)))
            for i in range(8): a(f'v_dot2_f32_bf16 v{sm + (i & 1)}, v{xr+i}, v{xr+i}, ' + ('0' if i < 2 else f'v{sm + (i & 1)}'))
            a(f"""v_add_f32 v{sm+2}, v{sm}, v{sm+1}
            v_add_f32 v{sm}, v{sm}, v{sm+1}
            v_permlane32_swap_b32 v{sm}, v{sm+2}
            s_mov_b32 exec_lo, 0
            v_add_f32 v{accB}, v{sm}, v{sm+2}
            v_mov_b32 v{accB+1}, v{accB+2}
            s_mov_b32 exec_lo, -1""")
            self.dw('ds_write_b64', vT + 2, accB, 2)
        else:
            for i in range(8):
                for d, b in ((sm, one), (sm + 2, xr + i), (sm + 1, gp + i), (sm + 3, gp + 8 + i)):
                    a(f'v_dot2_f32_bf16 v{d}, v{xr+i}, v{b}, ' + ('0' if i == 0 else f'v{d}'))
            a(f"""v_permlane32_swap_b32 v{sm}, v{sm+2}
            v_permlane32_swap_b32 v{sm+1}, v{sm+3}""")
            self.pk('add', sm, sm, sm + 2)
            self.dw('ds_write_b64', vT + 2, sm, 2)
        for q in range(4): self.dw('ds_write_b32', vT + 3, tb4 + q, 1, 128 * q)
        a(f'v_add_u32 v{vT}, {L_SP}, v{vL16}')
        va(vT + 1, LCB)
        S(T0, '(rt*16 + cb)*2048 + STAT')
        S(T3, ('((rt & 1)*128 + (rt >> 1))*4096' if TL else '((rt & 3)*64 + (rt >> 2)*2)*4096') + ' + (cb >> 1)*64 + (cb & 1)*4 + INB + 1536')
        self.barrier()
        self.stamp('x1st')
        a(f"""s_cmp_lg_u32 s{sWAVE}, 0
        s_cbranch_scc1 L_PE""")
        for q in range(4): a(f'ds_read_b128 {vr(accB + 4*q, 4)}, v{vT} offset:{(q & 1) * 2048 + (q >> 1) * 1024}')
        for h in range(2):
            b = accB + 8 * h
            a(f's_waitcnt lgkmcnt({2 - 2*h})')
            self.pk('add', b, b, b + 4); self.pk('add', b + 2, b + 2, b + 6)
            a(f"""v_add_f32 v{b+1}, v{b+1}, v{b+3}
            v_mov_b32 v{b+3}, s{sTAG}""")
        if TL:
            self.bs2([(accB + 8 * h, 4, vL16, T0, 1024 * h) for h in range(2)])
            a('s_cbranch_scc1 L_PE')
        else:
            for h in range(2): self.bs(accB + 8 * h, 4, vL16, rWS, T0, 1024 * h, 'sc1', count=False)
        a('s_mov_b64 exec, 0xffff')
        self.bs(accB + 3, 1, vT + 1, rWS, T3, 0, 'sc1', count=False)
        a("""s_mov_b64 exec, -1
        L_PE:""")
        self.stamp('x1pub')
        if o.get('ccat', 3) == 2: c_clean()
        V.release(accA, 16); V.release(accB, 16); V.release(Ar, 4 * AD2); V.release(Br, 4 * NB2); V.release(vBa, 4); V.release(xf, 16); V.release(gaf, 16); V.release(gp, 16)
        x1 = V.alloc(16); hh = V.alloc(16); mf = V.alloc(32); sg = V.alloc(16); op = V.alloc(8)
        st = V.alloc(2); vRid = V.alloc(); ck = V.alloc(4); vOT = V.alloc()
        ct = V.alloc(12, 4)
        def e_work():
            S(T3, '(w & 3)*(32*144) + kh*64'); va(vOT, [(0, 5, 144), (5, 1, 32)], T3)
            for q in range(2): self.dw('ds_write_b128', vOT, xr + 4 * q, 4, L_XT + 16 * q)
            a(f'v_add_u32 v{vOT}, {L_OT}, v{vOT}')
            S(T2, '4094 - (rt*8 + w)*32'); va(vRid, [(0, 4, 2)]); a(f'v_sub_u32 v{vRid}, s{T2}, v{vRid}')
            S(T2, 'w*128 + L_ST2'); va(vT + 4, [(0, 4, 8)], T2)
            S(T2, '(w & 3)*256 + L_ST2'); va(vT + 6, [(0, 5, 8)], T2)
            va(vT + 7, [(0, 3, 8)], None, L_K1)
            self.finish_load('gr', ld_gr, [gr + 1])
            for ctl in ('quad_perm:[1,0,3,2]', 'quad_perm:[2,3,0,1]', 'row_half_mirror', 'row_ror:8'): self.dpp('v_add_f32', gr, gr, gr, ctl)
            a(f"""s_cmp_lg_u32 s{sWAVE}, 1
            s_cbranch_scc1 L_NOCT""")
            va(vT + 1, [(0, 4, 8)], None, L_TB)
            a(f"""ds_read_b64 {vr(ct + 2, 2)}, v{vT+1}
            ds_read_b64 {vr(ct + 6, 2)}, v{vT+1} offset:128
            ds_read_b64 {vr(ct + 8, 2)}, v{vT+1} offset:384
            s_waitcnt lgkmcnt(0)""")
            for b in (ct, ct + 4):
                self.unpack(b, b + 1, b + 2); self.unpack(b + 2, b + 3, b + 3)
            a('L_NOCT:')
        def f_pre(part):
            if part == 0:
                a(f"""s_cmp_lt_u32 s{sWAVE}, 4
                s_cbranch_scc1 L_NOST""")
                S(T0, '(w - 4)*4096 + L_GU')
                a(f'v_add_u32 v{vT}, s{T0}, v{vL16}')
                a(f'v_add_u32 v{vT+3}, {L_DN - L_GU}, v{vT}')
                for n, (m, i) in enumerate(freg):
                    for back in range(2):
                        self.dw('ds_write_b128', vT if m < 2 else vT + 3, big + 8 * n + 4 * back, 4, f_lds(m, i) - (L_GU if m < 2 else L_DN) + (1 - back) * 16384)
                a('L_NOST:')
                return
            for i in range(8): self.unpack(x1 + 2 * i, x1 + 2 * i + 1, xr + i)
            expand(mf, tb4); expand(mf + 16, tb4 + 1)
        if TL:
            a(f"""s_cmp_lg_u32 s{sLOC}, 0
            s_cbranch_scc1 L_ELOC""")
            self.inbox(3, 2)
            a("""s_barrier
            L_ELOC:""")
        else:
            ffn_dma(fd[1])
            self.inbox(3, 2, work=lambda: (e_work(), f_pre(0)))
            a('s_barrier')
        self.stamp('x1ok')
        def ld_sg():
            for q in range(4):
                S(T0, 'T6 + q', q=q * 8192)
                self.bl(sg + 4 * q, 4, vSG, rWS, T0, 0, 'sc1')
        self.try_load(ld_sg, [sg + 3, sg + 7, sg + 11, sg + 15], vT, e_work if TL else lambda: f_pre(1))
        V.release(vSG)
        self.stamp('x1ld')
        if o.get('htouch', 1):
            S(T2, '(fs*4 + kq)*2048 + w*256 + HGR')
            vDum = V.alloc()
            a(f'v_lshlrev_b32 v{vDum}, 7, v{vL}')
            a('s_mov_b64 exec, 3')
            self.bl(vDum, 1, vDum, rWS, T2, 0, '')
            a('s_mov_b64 exec, -1')
        ffn_dma(fd[2], T2)
        A_, B_, C_, U_ = sg, sg + 1, sg + 2, sg + 3
        self.pk('add', sg, sg, sg + 4); self.pk('add', sg + 8, sg + 8, sg + 12)
        a(f"""v_add_f32 v{C_}, v{C_}, v{sg+6}
        v_add_f32 v{sg+10}, v{sg+10}, v{sg+14}""")
        self.pk('add', sg, sg, sg + 8)
        a(f"""v_add_f32 v{C_}, v{C_}, v{sg+10}
        v_mov_b32 v{U_}, v{B_}
        v_permlane32_swap_b32 v{A_}, v{C_}
        v_permlane32_swap_b32 v{B_}, v{U_}
        v_add_f32 v{A_}, v{A_}, v{C_}
        v_add_f32 v{B_}, v{B_}, v{U_}
        v_permlane16_swap_b32 v{A_}, v{B_}
        v_add_f32 v{U_}, v{A_}, v{B_}
        v_add_f32 v{A_}, v{A_}, v{B_}
        v_permlane16_swap_b32 v{A_}, v{U_}
        v_mul_f32 v{C_}, 0x3a800000, v{A_}
        v_mul_f32 v{A_}, 0x3a800000, v{A_}
        v_permlane32_swap_b32 v{A_}, v{C_}""")
        self.stat_math(A_, C_, st, st + 1)
        S(T0, 'w*8 + L_K1')
        a(f"""v_rcp_f32 v{st+1}, v{st+1}
        v_fma_f32 v{U_}, -v{st}, v{gr}, v{U_}
        v_mov_b32 v{vT+1}, s{T0}
        v_mul_f32 v{U_}, v{U_}, v{st+1}""")
        self.dw('ds_write_b64', vT + 4, st, 2)
        a(f"""s_movk_i32 s{T0}, 0xfff
        v_ashrrev_i32 v{A_}, 31, v{U_}
        v_or_b32 v{A_}, 0x80000000, v{A_}
        v_xor_b32 v{A_}, v{A_}, v{U_}
        v_bfi_b32 v{ck}, s{T0}, v{vRid}, v{A_}""")
        def top2(ctls, first):
            for n, ctl in enumerate(ctls):
                if n == 0 and first:
                    self.dpp('v_min_u32', ck + 1, ck, ck, ctl); self.dpp('v_max_u32', ck, ck, ck, ctl)
                    continue
                self.dpp('v_min_u32', ck + 2, ck, ck, ctl); self.dpp('v_max_u32', ck + 1, ck + 1, ck + 1, ctl); self.dpp('v_max_u32', ck, ck, ck, ctl)
                a(f'v_max_u32 v{ck+1}, v{ck+1}, v{ck+2}')
        top2(('row_ror:8', 'row_ror:4', 'row_ror:2', 'row_ror:1'), True)
        self.dw('ds_write_b64', vT + 1, ck, 2)
        va(vT + 2, [(0, 1, 128 * 4096), (1, 3, 4096)] if TL else [(0, 2, 64 * 4096), (2, 2, 2 * 4096)])
        S(T1, ('cb*32768' if TL else '((cb & 7)*8 + (cb >> 3))*4096') + ' + (rt >> 1)*64 + (rt & 1)*16 + INB + 2560')
        self.barrier()
        self.stamp('ln2')
        self.dr('ds_read_b64', ck, 2, vT + 7, 0, 'k'); self.dr('ds_read_b64', st, 2, vT + 6, 0, 's')
        lg.wait('k')
        top2(('quad_perm:[1,0,3,2]', 'quad_perm:[2,3,0,1]', 'row_half_mirror'), False)
        a(f"""v_or_b32 v{ck+2}, 1, v{ck+1}
        v_mov_b32 v{ck+1}, s{sTAG}
        v_mov_b32 v{ck+3}, s{sTAG}
        s_cmp_lg_u32 s{sWAVE}, 0
        s_cbranch_scc1 L_NOF
        s_mov_b64 exec, 0xffff""")
        self.bs(ck, 4, vT + 2, rWS, T1, 0, 'sc1', count=False)
        a("""s_mov_b64 exec, -1
        L_NOF:""")
        self.stamp('Fpub')
        a(f"""s_cmp_lg_u32 s{sWAVE}, 1
        s_cbranch_scc1 L_NOC
        v_and_b32 v{vT}, 16, v{vL}
        v_cmp_eq_u32 vcc, 0, v{vT}
        v_cndmask_b32 v{vT}, v{ck+2}, v{ck}, vcc
        v_not_b32 v{vT}, v{vT}
        v_bfe_u32 v{vT}, v{vT}, 1, 7
        v_lshlrev_b32 v{vT+2}, 3, v{vT}
        v_mul_u32_u24 v{vT}, 144, v{vT}
        v_add_u32 v{vT+2}, {L_ST2}, v{vT+2}""")
        va(vT + 1, [(0, 4, 8)])
        cx, cs, ch = sg, sg + 4, sg + 8
        a(f"""v_add_u32 v{vT}, v{vT}, v{vT+1}
        ds_read_b64 {vr(cs, 2)}, v{vT+2}
        ds_read_b64 {vr(cx, 2)}, v{vT} offset:{L_XT}""")
        va(vT + 2, [(0, 4, 16), (4, 1, 16384), (5, 1, 4096)])
        va(vT + 3, [(4, 1, 16384)])
        S(T0, 'rt*32768 + cb*256 + CAND'); S(T3, 'rt*32768 + cb*8 + 8192 + CAND')
        a(f"""v_mov_b32 v{cx+3}, s{sTAG}
        s_waitcnt lgkmcnt(0)""")
        self.unpack(ch, ch + 1, cx); self.unpack(ch + 2, ch + 3, cx + 1)
        for i in (0, 2): self.pk('add', ch + i, ch + i, cs, bc=(1,), neg=(1,))
        self.round_list([ch + i for i in range(4)])
        for i in (0, 2): self.pk('mul', ch + i, ch + i, cs + 1, bc=(1,))
        self.round_list([ch + i for i in range(4)])
        for i in (0, 2): self.pk('mul', ch + i, ch + i, ct + 4 + i)
        self.round_list([ch + i for i in range(4)])
        for i in (0, 2): self.pk('add', ch + i, ch + i, ct + i)
        a(f"""v_mov_b32 v{cx+2}, v{cx+1}
        v_mov_b32 v{cx+1}, s{sTAG}
        s_mov_b32 exec_hi, 0
        v_cvt_pk_bf16_f32 v{cx}, v{ch}, v{ch+1}
        v_cvt_pk_bf16_f32 v{cx+2}, v{ch+2}, v{ch+3}
        s_mov_b32 exec_hi, -1
        v_dot2_f32_bf16 v{cs}, v{cx}, v{ct+8}, 0
        v_mov_b32 v{cs+1}, s{sTAG}
        v_dot2_f32_bf16 v{cs}, v{cx+2}, v{ct+9}, v{cs}""")
        self.bs(cx, 4, vT + 2, rWS, T0, 0, 'sc1', count=False)
        for ctl in ('quad_perm:[1,0,3,2]', 'quad_perm:[2,3,0,1]', 'row_half_mirror', 'row_ror:8'): self.dpp('v_add_f32', cs, cs, cs, ctl)
        a('s_mov_b64 exec, 0x10001')
        self.bs(cs, 2, vT + 3, rWS, T3, 0, 'sc1', count=False)
        a("""s_mov_b64 exec, -1
        L_NOC:""")
        V.release(ct, 12)
        def ln2_tile():
            for i in E2: self.pk('add', hh + i, x1 + i, st, bc=(1,), neg=(1,))
            self.round_list([hh + i for i in range(16)])
            for i in E2: self.pk('mul', hh + i, hh + i, st + 1, bc=(1,))
            self.round_list([hh + i for i in range(16)])
            for i in E2: self.pk('mul', hh + i, hh + i, mf + 16 + i)
            self.round_list([hh + i for i in range(16)])
            for i in E2: self.pk('add', hh + i, hh + i, mf + i)
            self.round_list([hh + i for i in range(16)])
        lg.wait('s')
        self.stamp('cand')
        if o.get('ccat', 3) == 3: c_clean()
        V.release(kc, 4); V.release(cf)
        ffn_dma(fd[3])
        uu = V.alloc(16); vGr = V.alloc(); vDr = V.alloc(); vXs = V.alloc()
        def out_calc():
            expand(mf, tb4 + 2)
            for i in E2: self.pk('mul', hh + i, hh + i, mf + i)
            self.round_list([hh + i for i in range(16)])
            for i in E2: self.pk('add', hh + i, hh + i, x1 + i)
            for i in range(8): a(f'v_cvt_pk_bf16_f32 v{op+i}, v{hh+2*i}, v{hh+2*i+1}')
            for q in range(2): self.dw('ds_write_b128', vOT, op + 4 * q, 4, 16 * q)
            S(T3, 'w*(16*144) + L_OT'); va(vOT, [(3, 3, 144), (0, 3, 16)], T3)
        oc = o.get('ocat', 2 if TL else 1); l2 = o.get('l2at', 1 if TL else 0)
        def f_work():
            if TL: f_pre(0); f_pre(1)
            if l2 == 0: ln2_tile()
            if oc == 0: out_calc()
            S(T0, '(w >> 2)*32768 + (w & 3)*32 + L_GU')
            va(vGr, [(4, 2, 8192), (2, 2, 128), (3, 2, 32), (0, 2, 8)]); a(f'v_xor_b32 v{vGr}, s{T0}, v{vGr}')
            S(T0, 'w*64')
            va(vDr, [(2, 1, 512), (3, 1, 4096), (5, 1, 2048), (2, 2, 64), (4, 1, 32), (0, 2, 8)])
            a(f'v_xor_b32 v{vDr}, s{T0}, v{vDr}'); a(f'v_add_u32 v{vDr}, {L_DN}, v{vDr}')
            va(vXs, [(0, 3, 16), (4, 2, 128)], None, L_XS)
            S(T0, 'w*16 + L_K2'); a(f'v_mov_b32 v{vT}, s{T0}')
            va(vT + 1, [(0, 3, 16)], None, L_K2)
            a(f'v_and_b32 v{vT+4}, 8, v{vL}')
            a(f'v_cmp_eq_u32 {sr(sCMP, 2)}, 0, v{vT+4}')
            self.stamp('oc')
        self.inbox(5, 8, (1, 3, 5, 7), f_work)
        P = sPL
        a(f"""s_min_u32 s{P+1}, s{P}, s{P+4}
        s_max_u32 s{P}, s{P}, s{P+4}
        s_max_u32 s{P+3}, s{P+2}, s{P+6}
        s_min_u32 s{P+2}, s{P+2}, s{P+6}
        s_max_u32 s{P+4}, s{P+1}, s{P+3}
        s_min_u32 s{P+1}, s{P+1}, s{P+3}
        v_mov_b32 v{uu}, s{P}
        v_mov_b32 v{uu+3}, s{P+2}
        v_mov_b32 v{uu+1}, s{P+4}
        v_mov_b32 v{uu+2}, s{P+1}""")
        self.dw('ds_write_b128', vT, uu, 4)
        self.stamp('F2p')
        V.release(big, 8 * len(freg)); V.release(gr, 2); V.release(vGR); V.release(vRid)
        ffn = V.alloc(48); ga_ = V.alloc(16); gb_ = V.alloc(16)
        vm.wait('gu')
        self.barrier()
        self.stamp('F2')
        def gu_frags():
            for s in range(8):
                self.tr(ffn + 4 * s, vGr, s * 1024); self.tr(ffn + 4 * s + 2, vGr, s * 1024 + 512)
        a(f"""s_cmp_lt_u32 s{sWAVE}, 4
        s_cbranch_scc1 L_CSEL""")
        fq0, vq0 = list(fq), list(vm.q)
        if not o.get('f4late', 1): ffn_dma(fd[4])
        gu_frags()
        if l2 == 1: ln2_tile()
        if oc == 1: out_calc()
        if o.get('f4late', 1): ffn_dma(fd[4])
        a("""s_branch L_CSELD
        L_CSEL:""")
        lg.reset(); fq[:] = fq0; vm.q = vq0
        self.r128(uu, vT + 1)
        S(T0, 'w*512 + L_XS'); a(f'v_add_u32 v{vT+2}, s{T0}, v{vL8}')
        S(T0, 'w*4 + L_K3'); a(f'v_mov_b32 v{vT+3}, s{T0}')
        lg.wait_all()
        c4 = uu + 4
        for n, ctl in enumerate(('quad_perm:[1,0,3,2]', 'quad_perm:[2,3,0,1]', 'row_half_mirror')):
            for i in range(4): self.dpp('v_max_u32', c4 + i, uu + 3 - i, uu + i, ctl)
            if n == 2: break
            a(f"""v_max_u32 v{c4+4}, v{c4}, v{c4+2}
            v_max_u32 v{c4+5}, v{c4+1}, v{c4+3}
            v_min_u32 v{c4+6}, v{c4}, v{c4+2}
            v_min_u32 v{c4+7}, v{c4+1}, v{c4+3}
            v_max_u32 v{uu}, v{c4+4}, v{c4+5}
            v_min_u32 v{uu+1}, v{c4+4}, v{c4+5}
            v_max_u32 v{uu+2}, v{c4+6}, v{c4+7}
            v_min_u32 v{uu+3}, v{c4+6}, v{c4+7}""")
        for i in range(4): a(f'v_readfirstlane_b32 s{P+i}, v{c4+i}')
        a(f"""s_bitcmp1_b32 s{sWAVE}, 0
        s_cselect_b32 s{P}, s{P+1}, s{P}
        s_cselect_b32 s{P+2}, s{P+3}, s{P+2}
        s_bitcmp1_b32 s{sWAVE}, 1
        s_cselect_b32 s{P}, s{P+2}, s{P}
        s_and_b32 s{T2}, s{P}, 4095""")
        S(T0, '((15 - (T2 >> 8))*2 + (T2 & 1))*16384 + CAND'); S(T1, 'kq*1024 + T0'); S(T0, 'T0 + 8192')
        va(vT + 6, [(0, 4, 8)])
        def sel_work():
            self.stamp('sel')
            ffn_dma(fd[4], T3)
            gu_frags()
            if l2 == 1: ln2_tile()
            if oc == 1: out_calc()
            S(T2, 'T2*4 + w')
        self.try_load(lambda: (self.bl(uu + 4, 2, vT + 6, rWS, T0, 0, 'sc1'), self.bl(uu, 4, vL16, rWS, T1, 0, 'sc1')), [uu + 1, uu + 3, uu + 5], vT + 4, sel_work)
        a(f'ds_write2_b32 v{vT+2}, v{uu}, v{uu+2} offset0:0 offset1:1'); lg.issue()
        for ctl in ('quad_perm:[1,0,3,2]', 'quad_perm:[2,3,0,1]', 'row_half_mirror', 'row_ror:8'): self.dpp('v_add_f32', uu + 4, uu + 4, uu + 4, ctl)
        a(f"""v_cvt_pk_bf16_f32 v{uu+4}, 0, v{uu+4}
        v_ashrrev_i32 v{uu+5}, 31, v{uu+4}
        v_or_b32 v{uu+5}, 0x80000000, v{uu+5}
        v_xor_b32 v{uu+4}, v{uu+4}, v{uu+5}
        v_and_b32 v{uu+4}, s{sMASK}, v{uu+4}
        v_or_b32 v{uu+4}, s{T2}, v{uu+4}""")
        self.dw('ds_write_b32', vT + 3, uu + 4, 1)
        a('L_CSELD:')
        V.release(vFG); V.release(vFD)
        a(f'v_mov_b32 v{vT}, {L_K3}')
        va(vT + 4, [(0, 4, 16), (5, 1, 8)])
        S(T1, 'fs*8192 + HGR'); S(T7, '(kq*8 + w)*256 + T1')
        self.barrier()
        self.stamp('xsel')
        self.r128(uu, vT)
        lg.wait_all()
        a(f"""v_max_u32 v{uu+4}, v{uu}, v{uu+1}
        v_max_u32 v{uu+5}, v{uu+2}, v{uu+3}
        v_min_u32 v{uu+6}, v{uu}, v{uu+1}
        v_min_u32 v{uu+7}, v{uu+2}, v{uu+3}
        v_min_u32 v{uu+1}, v{uu+4}, v{uu+5}
        v_max_u32 v{uu}, v{uu+4}, v{uu+5}
        v_max3_u32 v{uu+1}, v{uu+1}, v{uu+6}, v{uu+7}
        v_cndmask_b32 v{vT}, v{uu+1}, v{uu}, {sr(sCMP, 2)}
        v_readfirstlane_b32 s{sK1}, v{uu}
        v_and_b32 v{vT}, 3, v{vT}
        v_readfirstlane_b32 s{sK2}, v{uu+1}
        v_lshl_add_u32 v{vT}, v{vT}, 9, v{vXs}""")
        self.r128(uu + 4, vT)
        if oc < 2:
            for q in range(2): self.r128(op + 4 * q, vOT, q * 8 * 144, 'ot')
        a(f"""s_bfe_u32 s{sROW0}, s{sK1}, {3 | (11 << 16)}
        s_bfe_u32 s{sROW1}, s{sK2}, {3 | (11 << 16)}
        s_sub_u32 s{sROW0}, 2047, s{sROW0}
        s_sub_u32 s{sROW1}, 2047, s{sROW1}
        s_waitcnt lgkmcnt({2 if oc < 2 else 0})""")
        gd = [ga_ + 4 * i for i in range(4)] + [gb_ + 4 * i for i in range(4)]
        for s in range(8):
            a(f'v_mfma_f32_16x16x32_bf16 {vr(gd[s], 4)}, {vr(uu + 4, 4)}, {vr(ffn + 4*s, 4)}, 0')
        p0, p1 = uu, uu + 2
        hk = V.alloc(4)
        for p, b in ((p0, 0), (p1, 4)):
            a(f'v_add_f32 v{p}, v{gd[b]}, v{gd[b+1]+1}')
            a(f'v_add_f32 v{p+1}, v{gd[b+2]+2}, v{gd[b+3]+3}')
        a(f"""v_add_f32 v{p0}, v{p0}, v{p0+1}
        v_add_f32 v{p1}, v{p1}, v{p1+1}
        v_mov_b32 v{p0+1}, s{sTAG}
        v_permlane16_swap_b32 v{p1}, v{p1+1}
        s_cmp_ge_u32 s{sJ}, 28
        s_cbranch_scc1 L_NOHP
        v_add_f32 v{p0}, v{p0}, v{p1+1}
        s_mov_b32 exec_lo, 0xffff
        s_mov_b32 exec_hi, 0xffff""")
        self.bs2([(p0, 2, vT + 4, T7, 0)])
        a(f"""s_mov_b64 exec, -1
        L_NOHP:
        v_mov_b32 v{hk}, v{p0}
        v_mov_b32 v{hk+1}, v{p0+1}
        v_add_u32 v{hk+2}, s{T7}, v{vT+4}""")
        self.stamp('Hpub')
        vOr = V.alloc(); vOa = V.alloc()
        def out_store():
            S(T0, 'rt*128 + w*16'); va(vOr, [(3, 3, 1)], T0)
            S(T2, 'T0*2048 + cb*128'); S(T3, 'T2 + 16384')
            va(vOa, [(3, 3, 2048), (0, 3, 16)])
            for q in range(2):
                if q: a(f'v_add_u32 v{vOr}, 8, v{vOr}')
                a(f"""v_cmp_ne_u32 vcc, s{sROW0}, v{vOr}
                v_cmp_ne_u32 {sr(sCMP, 2)}, s{sROW1}, v{vOr}
                s_and_b64 exec, vcc, {sr(sCMP, 2)}""")
                self.bs(op + 4 * q, 4, vOa, rOUT, (T2, T3)[q], 0, o.get('outmod', 'sc1'), count=False)
                a('s_mov_b64 exec, -1')
        lg.wait('ot')
        if o.get('outat', 1) == 0: assert oc < 2; out_store()
        fz = V.alloc(4)
        sFR, sFK, sFC0 = T4, T5, T6
        a(f"""s_bitcmp1_b32 s{sX if TL else sRT}, {1 if TL else 2}
        s_cselect_b32 s{sFR}, s{sROW1}, s{sROW0}
        s_cselect_b32 s{sFK}, s{sK2}, s{sK1}
        s_cmp_lg_u32 s{sWAVE}, 7
        s_cbranch_scc1 L_NOFZ
        s_cmp_lg_u32 s2, 0
        s_cbranch_scc1 L_NONON
        v_mov_b32 v{vT+2}, s{sTAG}
        s_mov_b64 exec, 1""")
        self.bs(vT + 2, 1, vZ, rWS, '0', 0, 'sc1', count=False)
        a(f"""s_mov_b64 exec, -1
        L_NONON:""")
        S(sFC0, '(x >> 2)*2 + (x & 1)' if TL else '(rt >> 3)*2 + (rt & 1)')
        S(T7, '(cb*8 + x)*(56*128) + GGR' if TL else '(cb*8 + (rt >> 2)*2 + (rt & 1))*(56*128) + GGR')
        S(sU, 'T4*2048 + cb*128 + T6*32')
        va(vT + 6, [(0, 3, 4)])
        S(T0, 'T6*32 + L_GB'); a(f'v_add_u32 v{vT+1}, s{T0}, v{vT+6}')
        a(f'ds_read_b32 v{fz+2}, v{vT+1}')
        S(sK1, '((T4 >> 7)*2 + ((T5 >> 2) & 1))*16384 + cb*256 + T6*64 + CAND'); S(sK2, 'k1 + 4096')
        va(vT + 7, [(0, 3, 8)])
        ld_fz = lambda: (self.bl(st, 2, vT + 7, rWS, sK1, 0, 'sc1'), self.bl(fz, 2, vT + 7, rWS, sK2, 0, 'sc1'))
        q_ = list(vm.q); ld_fz(); vm.q = q_
        a(f"""s_and_b32 s{T0}, s{sFK}, s{sMASK}
        s_ashr_i32 s{T2}, s{T0}, 31
        s_andn2_b32 s{T2}, 0x7fff0000, s{T2}
        s_or_b32 s{T2}, s{T2}, 0x80000000
        s_xor_b32 s{T0}, s{T0}, s{T2}
        v_mov_b32 v{fz+3}, s{T0}
        v_mul_f32 v{fz+3}, s{sL2E}, v{fz+3}
        v_exp_f32 v{fz+3}, -v{fz+3}
        v_add_f32 v{fz+3}, 1.0, v{fz+3}
        v_rcp_f32 v{fz+3}, v{fz+3}""")
        self.round1(fz + 3)
        a(f"""L_NOFZ:
        s_cmp_lt_u32 s{sJ}, 28
        s_cbranch_scc1 L_HSEC""")
        if oc == 2:
            out_calc()
            self.barrier()
            for q in range(2): self.r128(op + 4 * q, vOT, q * 8 * 144)
            lg.wait_all()
        a("""s_branch L_GSEC
        L_HSEC:""")
        a(f"""s_cmp_lt_u32 s{sWAVE}, 4
        s_cbranch_scc1 L_HW""")
        if oc == 2: out_calc()
        a("""s_branch L_NOH
        L_HW:""")
        S(T0, 'w*256 + T1')
        va(vT, [(4, 2, 2048), (0, 4, 16)])
        S(T2, 'w*32 + L_ACT'); va(vT + 1, [(5, 1, 128), (2, 1, 16), (1, 1, 8), (3, 1, 4), (0, 1, 2)], T2)
        a(f"""s_cmp_lg_u32 s{sLOC}, 0
        s_cbranch_scc1 L_HLOC""")
        self.spoll([(q, 1, T0, q * 2048 + 1024 + 252) for q in range(4)], range(4))
        a('L_HLOC:')
        self.stamp('Hpre')
        g, u = ga_, ga_ + 4
        self.try_load(lambda: [self.bl(ga_ + 4 * m, 4, vT, rWS, T0, m * 1024, 'sc1') for m in range(2)], [g + 1, g + 3, u + 1, u + 3], vT + 2, out_calc if oc == 2 else None)
        a(f"""v_permlane32_swap_b32 v{g}, v{g+2}
        v_permlane32_swap_b32 v{u}, v{u+2}
        v_add_f32 v{g}, v{g}, v{g+2}
        v_add_f32 v{u}, v{u}, v{u+2}
        v_mov_b32 v{g+2}, v{g}
        v_mov_b32 v{u+2}, v{u}
        v_permlane16_swap_b32 v{g}, v{g+2}
        v_permlane16_swap_b32 v{u}, v{u+2}
        v_add_f32 v{g}, v{g}, v{g+2}
        v_add_f32 v{u}, v{u}, v{u+2}""")
        self.round2(g, u)
        self.silu(g, vT + 2)
        a(f"""v_mul_f32 v{g}, v{g}, v{u}
        v_cvt_pk_bf16_f32 v{g}, v{g}, v{g}
        ds_write_b16 v{vT+1}, v{g}
        L_NOH:""")
        va(vT, [(2, 1, 128), (5, 1, 16)], None, L_ACT)
        va(vT + 1, [(4, 2, 56 * 128), (0, 4, 8)])
        va(vT + 2, [(0, 2, 4096)] if TL else [(0, 1, 64 * 4096), (1, 1, 2 * 4096)])
        S(T0, '(kq*8 + w)*(4*56*128) + fs*128 + GGR')
        S(T1, ('(kq*8 + w)*16384' if TL else '(((kq & 1)*4 + (w >> 1))*8 + (w & 1)*4 + (kq >> 1))*4096') + ' + x*64 + (j >> 2)*4 + INB + 3072')
        vm.wait_all()
        self.barrier()
        self.stamp('Hok')
        for s in range(4):
            self.r128(ga_ + 4 * s, vT, s * 32, ('ac', s))
            self.tr(ffn + 32 + 4 * s, vDr, s * 8192, ('ac', s)); self.tr(ffn + 32 + 4 * s + 2, vDr, s * 8192 + 1024, ('ac', s))
        for s in range(4):
            lg.wait(('ac', s))
            a(f'v_mfma_f32_32x32x16_bf16 {vr(gb_, 16)}, {vr(ga_ + 4*s, 4)}, {vr(ffn + 32 + 4*s, 4)}, ' + ('0' if s == 0 else vr(gb_, 16)))
        if oc == 2:
            for q in range(2): self.r128(op + 4 * q, vOT, q * 8 * 144)
        a(f'v_mov_b32 v{gb_+1}, s{sTAG}')
        self.bs(gb_, 2, vT + 1, rWS, T0, 0, 'sc1')
        a('s_mov_b64 exec, 15')
        self.bs(gb_ + 1, 1, vT + 2, rWS, T1, 0, 'sc1')
        a('s_mov_b64 exec, -1')
        self.stamp('Gpub')
        def hclean():
            a("""s_mov_b32 exec_lo, 0xffff
            s_mov_b32 exec_hi, 0xffff""")
            self.bs(hk, 2, hk + 2, rWS, '0', 0, 'sc1', count=False)
            a('s_mov_b64 exec, -1')
        if o.get('hclean', 3) == 1: hclean()
        lg.wait_all()
        a('L_GSEC:')
        if o.get('outat', 1) == 1: out_store()
        a(f"""s_cmp_lt_u32 s{sJ}, 16
        s_cbranch_scc1 L_GF""")
        if o.get('outat', 1) == 2: out_store()
        if o.get('hclean', 3) >= 2:
            a(f"""s_cmp_ge_u32 s{sJ}, 28
            s_cbranch_scc1 L_FIN
            s_waitcnt vmcnt(0)""")
            hclean()
        a("""s_branch L_FIN
        L_GF:""")
        self.inbox(6, 8, range(7))
        self.stamp('Gpre')
        a('s_barrier')
        if o.get('hclean', 3) == 2: hclean()
        if o.get('hclean', 3) == 3:
            a(f"""s_cmp_eq_u32 s{sWAVE}, 7
            s_cbranch_scc1 L_G7
            s_barrier""")
            if o.get('outat', 1) == 2: out_store()
            hclean()
            a("""s_branch L_FIN
            L_G7:""")
        a(f"""s_cmp_lg_u32 s{sWAVE}, 7
        s_cbranch_scc1 L_FIN""")
        S(T0, 'T7 + 4096')
        gg = [ga_ + 4 * i for i in range(4)] + [uu + 4 * i for i in range(3)]
        self.poll(lambda: [self.bl(gg[n], 4, vL16, rWS, (T7, T0)[n >> 2], (n & 3) * 1024, 'sc1') for n in range(7)],
                  [gg[n] + 1 + 2 * e for n in range(7) for e in range(2)], vT)
        self.finish_load(None, ld_fz, [st + 1, fz + 1], vT)
        self.stamp('Gok')
        if o.get('hclean', 3) == 3: a('s_barrier')
        y0, y1 = gg[0], gg[0] + 1
        for lo, hi in ((0, 1), (2, 3), (4, 5), (0, 2), (4, 6), (0, 4)):
            for e in (0, 2): a(f'v_add_f32 v{gg[lo]+e}, v{gg[lo]+e}, v{gg[hi]+e}')
        a(f'v_mov_b32 v{y1}, v{gg[0]+2}')
        for y in (y0, y1): self.dpp('v_add_f32', y, y, y, 'row_ror:8')
        for sw in ('v_permlane16_swap_b32', 'v_permlane32_swap_b32'):
            for y in (y0, y1): a(f'v_mov_b32 v{y+2}, v{y}')
            for y in (y0, y1): a(f'{sw} v{y}, v{y+2}')
            self.pk('add', y0, y0, y0 + 2)
        self.round2(y0, y1)
        self.pk('mul', y0, y0, fz + 3, bc=(1,))
        self.unpack(vT, vT + 1, st)
        self.round2(y0, y1)
        self.pk('add', y0, y0, vT)
        self.unpack(vT, vT + 1, fz + 2)
        self.round2(y0, y1)
        self.pk('mul', y0, y0, vT)
        self.unpack(vT, vT + 1, fz)
        self.round2(y0, y1)
        self.pk('add', y0, y0, vT)
        a(f'v_cvt_pk_bf16_f32 v{y0}, v{y0}, v{y1}')
        a('s_mov_b64 exec, 0xff')
        self.bs(y0, 1, vT + 6, rOUT, sU, 0, 'sc1')
        a('s_mov_b64 exec, -1')
        if o.get('outat', 1) == 2: out_store()
        if o.get('hclean', 3) == 3: hclean()
        a('L_FIN:')
        if o.get('exfil'):
            self.stamp('fin')
            a('s_waitcnt vmcnt(0)')
            self.stamp('finw')
            a(f'''s_lshl3_add_u32 s{T0}, s2, s{sWAVE}
            s_cmp_lg_u32 s{T0}, {o.get('exwho', 7)}
            s_cbranch_scc1 L_END
            v_readlane_b32 s{T0}, v255, 0
            v_readlane_b32 s{T1}, v255, 1
            v_readlane_b32 s{T2}, v255, 2
            s_sub_u32 s{T2}, s{T2}, s{T1}
            s_max_i32 s{T2}, s{T2}, 0
            s_min_u32 s{T2}, s{T2}, 10000
            s_mul_i32 s{T2}, s{T2}, 10
            s_add_u32 s{T2}, s{T2}, 6000
            L_PAD:
            s_memrealtime {sr(sTM, 2)}
            s_waitcnt lgkmcnt(0)
            s_sub_u32 s{T1}, s{sTM}, s{T0}
            s_cmp_lt_u32 s{T1}, s{T2}
            s_cbranch_scc1 L_PAD''')
        if o.get('padfin'):
            a(f'''s_lshl3_add_u32 s{T0}, s2, s{sWAVE}
            s_cmp_lg_u32 s{T0}, 7
            s_cbranch_scc1 L_END
            s_memrealtime {sr(sTM, 2)}
            s_waitcnt lgkmcnt(0)
            s_mov_b32 s{T0}, s{sTM}
            L_PAD2:
            s_memrealtime {sr(sTM, 2)}
            s_waitcnt lgkmcnt(0)
            s_sub_u32 s{T1}, s{sTM}, s{T0}
            s_cmp_lt_u32 s{T1}, {o['padfin']}
            s_cbranch_scc1 L_PAD2''')
        if self.prof:
            a('s_waitcnt vmcnt(0) lgkmcnt(0)')
            self.stamp('end')
            a(f's_memrealtime {sr(sTM, 2)}')
            a('s_waitcnt lgkmcnt(0)')
            a(f'v_writelane_b32 v255, s{sTM}, 61')
            S(T0, '(wg*8 + w)*256 + STAMPS')
            a(f'v_writelane_b32 v255, s{sSPIN}, 62')
            a(f'v_lshlrev_b32 v{vT+1}, 2, v{vL}')
            a(f'buffer_store_dword v255, v{vT+1}, {sr(rWS, 4)}, s{T0} offen')
            S(T0, 'T0 + 0x100000')
            a(f'buffer_store_dword v254, v{vT+1}, {sr(rWS, 4)}, s{T0} offen')
        a('L_END:')
        a('s_endpgm')
        return self

    def text(self):
        a = self.a
        npad = a.fix_hazards()
        errs = a.check_waits([NAME])
        for e in errs: print('WAITERR', e, file=sys.stderr)
        assert not errs
        hdr = open(os.path.join(os.path.dirname(os.path.abspath(__file__)), 'header.txt')).read()
        s = hdr + '; @launch grid=(256,1,1) block=(512,1,1) lds=163840\n'
        s += '.amdgcn_target "amdgcn-amd-amdhsa--gfx950"\n.text\n'
        s += f'.globl {NAME}\n.p2align 8\n.type {NAME},@function\n'
        body = a.text()
        import subprocess, tempfile
        with tempfile.TemporaryDirectory() as td:
            open(td + '/t.s', 'w').write('.amdgcn_target "amdgcn-amd-amdhsa--gfx950"\n.text\n' + body.replace('CODE_KB', '20480'))
            subprocess.run(['clang', '-x', 'assembler', '-target', 'amdgcn-amd-amdhsa', '-mcpu=gfx950', '-c', td + '/t.s', '-o', td + '/t.o'], check=True)
            subprocess.run(['llvm-objcopy', '-O', 'binary', '-j', '.text', td + '/t.o', td + '/t.bin'], check=True)
            size = os.path.getsize(td + '/t.bin')
        print('; code bytes', size, file=sys.stderr)
        s += body.replace('CODE_KB', str((size // 1024 + 1) * 1024))
        s += '.p2align 10\n.fill 768, 4, 0xbf800000\n'
        s += '.section .rodata,"a"\n' + kernel_desc(NAME, 256, 102)
        print(f'; vgpr hi {self.V.hi}, nops {npad}, instrs {sum(1 for k, _ in a.items if k == "ins")}', file=sys.stderr)
        return s


if __name__ == '__main__':
    import argparse, json
    ap = argparse.ArgumentParser()
    ap.add_argument('-o', default='/dev/stdout')
    ap.add_argument('--prof', action='store_true')
    ap.add_argument('--opts', default='{}')
    args = ap.parse_args()
    g = Gen(args.prof, json.loads(args.opts)).build()
    t = g.text()
    open(args.o, 'w').write(t)
    if args.prof: open(args.o + '.stamps', 'w').write(json.dumps(g.stnames))
```

```python
import sys, os
sys.path.insert(0, os.path.dirname(os.path.abspath(__file__)))
from asm import *

NAME = 'adaLN_cond__linear_kernel_hedgehog__moe_arch_mod__prompt_kernel'

NONCE = 0x0
CFL = 0x8000
MARK = 0x100
GR = 0x010000
MODP2 = 0x020000
SINB = 0x040000
AINB = 0x080000
INA = 0x200000
INB = 0x100000
HF = 0x400000
OF = 0x800000
STAT = 0xC00000
CAND = 0x2000000
HGR = 0x1400000
ZP = 0x1480000
GGR = 0x1500000
KVP = 0x1800000
KIN = 0x1C00000
STAMPS = 0x1600000
WS_BYTES = 268435456

SEC = 8320
SLOT = 3 * SEC
SCR = 6 * SLOT
L_A1 = SCR
L_M2 = SCR + 1024
L_ST = SCR + 2048
L_MP = SCR + 2560
L_WPHI = SCR + 6656
L_MB = SCR + 10752
L_XF = 147456
L_PHK = 0
L_V = 32768
WO_H0 = 32768
WO_H1 = 98304
GS = 0
L_KVF = GS
L_ZF = GS + 8192
L_EXCH = GS
L_MT = 139264
L_GU = 32768
L_DN = 98304
TS = 131072
L_SP = TS
L_ST2 = TS + 4096
L_K1 = TS + 5120
L_K2 = TS + 5184
L_K3 = TS + 5312
L_XS = TS + 5632
L_ACT = TS + 7680
L_TB = TS + 7936
L_GB = L_TB + 256
L_OT = TS + 8704
L_XT = GS

SPIN_LIMIT = 300000

sWAVE, sTAG, sSPIN, sMASK, sL2E = 3, 4, 5, 6, 7
sX, sJ, sR1, sHP, sCB = 8, 9, 10, 11, 12
T0, T1, T2, T3, T4, T5, T6, T7 = 13, 14, 15, 16, 17, 18, 19, 20
sRT = 21
sCMP = 22
sPL = 24
rWS, rX, rW, rWO, rWM, rWG, rWU, rWD, rOUT = 32, 36, 40, 44, 48, 52, 56, 60, 64
KA = 68
pWPHI, pWR, pC = KA + 4, KA + 10, KA + 18
sK1, sK2, sROW0, sROW1, sFS, sKQ, sKH, sKF = 68, 69, 70, 71, 74, 75, 76, 77
sFG, sFD, sU, sROT, sWB, sU0 = 80, 81, 82, 83, 84, 85
sWO2, sW1K, sMF = 88, 89, 90
sINB, sRow, sGTB, sC32 = 92, 93, 94, 95
sXC = 94
pDBG = 30
sLOC = 93
XT = (96, 97, 98, 99)
sTM = 100
ENV = dict(wg=2, w=sWAVE, x=sX, j=sJ, r1=sR1, hp=sHP, cb=sCB, rt=sRT, row=sRow, gtb=sGTB, c32=sC32, kh=sKH, kf=sKF, fs=sFS, kq=sKQ,
           rot=sROT, wb=sWB, u0=sU0, wo2=sWO2, w1k=sW1K, mf=sMF, u=sU, fg=sFG, fd=sFD, T0=T0, T1=T1, T2=T2, T3=T3, T4=T4, T5=T5, T6=T6, T7=T7, row0=sROW0, row1=sROW1, k1=sK1, xc=sXC)


class Gen:
    def __init__(self, prof=False, opts=None):
        self.a = Asm()
        self.vm = Counter(self.a, 'vmcnt', 63)
        self.lg = Counter(self.a, 'lgkmcnt', 15)
        self.V = RegAlloc(254, 1)
        self.prof = prof
        self.nopk = False
        self.nst = 0
        self.stnames = []
        self.S = SExpr(self.a, ENV, {k: v for k, v in globals().items() if isinstance(v, int) and k.isupper() and k not in ENV}, XT)
        self.o = dict(AD=12, LOOK=6, wev=2, AD2=8, A20=6, wburst=(0, 3, 0, 0, 6, 6), wxor=3, LASTB=14, wsch={2: 6, 3: 3, 4: 6, 5: 3, 6: 6, 7: 3, 8: 6, 9: 6, 10: 6, 11: 6, 12: 6, 13: 3},
                      sched={1: 'm1 p2', 2: 's4', 3: 'm1 s4', 4: 'p2 g1', 5: 'm1 g1', 6: 'g1', 7: 'm1 h g1 p3', 8: 'g2', 9: 'g2 r', 10: 'P', 13: 'M', 14: 'K o4 f4 N', 15: 'f2'}, fdma=(3, 0, 1, 1, 1), wowin=(6, 0, 3))
        if opts: self.o.update(opts)

    def bl(self, dst, n, voff, srd, soff, imm=0, mods='', tag=None):
        op = {1: 'dword', 2: 'dwordx2', 4: 'dwordx4'}[n]
        so = soff if isinstance(soff, str) else (sr(soff))
        self.a(f'buffer_load_{op} {vr(dst, n)}, v{voff}, {sr(srd, 4)}, {so} offen' + (f' offset:{imm}' if imm else '') + (' ' + mods if mods else ''))
        self.vm.issue(tag)
    def bs(self, src, n, voff, srd, soff, imm=0, mods='', tag=None, count=True):
        op = {1: 'dword', 2: 'dwordx2', 4: 'dwordx4'}[n]
        so = soff if isinstance(soff, str) else (sr(soff))
        self.a(f'buffer_store_{op} {vr(src, n)}, v{voff}, {sr(srd, 4)}, {so} offen' + (f' offset:{imm}' if imm else '') + (' ' + mods if mods else ''))
        if count: self.vm.issue(tag)
    def bs2(self, items):
        a = self.a
        LL, D = a.label('LOC'), a.label('LOCD')
        a(f's_cmp_lg_u32 s{sLOC}, 0')
        a(f's_cbranch_scc1 {LL}')
        for src, n, voff, soff, imm in items: self.bs(src, n, voff, rWS, soff, imm, 'sc1', count=False)
        a(f's_branch {D}')
        a(f'{LL}:')
        for src, n, voff, soff, imm in items: self.bs(src, n, voff, rWS, soff, imm, '', count=False)
        a(f'{D}:')
    def dma(self, voff, srd, soff, imm=0, mods='', tag=None):
        self.a(f'buffer_load_dwordx4 v{voff}, {sr(srd, 4)}, {sr(soff)} offen' + (f' offset:{imm}' if imm else '') + (' ' + mods if mods else '') + ' lds')
        self.vm.issue(tag)
    def dr(self, op, dst, n, addr, off=0, tag=None):
        assert 0 <= off < 65536, off
        self.a(f'{op} {vr(dst, n)}, v{addr}' + (f' offset:{off}' if off else ''))
        self.lg.issue(tag)
    def tr(self, dst, addr, off, tag=None): self.dr('ds_read_b64_tr_b16', dst, 2, addr, off, tag)
    def r128(self, dst, addr, off=0, tag=None): self.dr('ds_read_b128', dst, 4, addr, off, tag)
    def dw(self, op, addr, src, n, off=0, tag=None):
        assert 0 <= off < 65536, off
        self.a(f'{op} v{addr}, {vr(src, n)}' + (f' offset:{off}' if off else ''))
        self.lg.issue(tag)
    def barrier(self):
        self.lg.wait_all()
        self.a('s_barrier')
    def stamp(self, name):
        ex = self.o.get('exfil')
        if ex and name in ex[:2]:
            self.a(f's_memrealtime {sr(sTM, 2)}')
            self.lg.wait_all()
            self.a(f'v_writelane_b32 v255, s{sTM}, {1 + ex.index(name)}')
        if not self.prof: return
        only = self.o.get('only')
        if only and name not in only and name != 'end': return
        self.a(f's_memtime {sr(sTM, 2)}')
        self.a(f's_memrealtime s[0:1]')
        self.lg.wait_all()
        self.a(f'v_writelane_b32 v255, s{sSPIN if self.o.get("spinst") and self.nst > 3 else sTM}, {self.nst}')
        self.a(f'v_writelane_b32 v254, s0, {self.nst}')
        self.stnames.append(name)
        self.nst += 1
        assert self.nst <= 60
    def unpack(self, lo, hi, src):
        self.a(f'v_lshlrev_b32 v{lo}, 16, v{src}')
        self.a(f'v_and_b32 v{hi}, s{sMASK}, v{src}')
    def round1(self, r):
        self.a(f'v_cvt_pk_bf16_f32 v{r}, 0, v{r}')
    def round2(self, r0, r1):
        self.round1(r0); self.round1(r1)
    def round_list(self, regs):
        for r in regs: self.round1(r)
    def pk(self, op, d, s0, s1, s2=None, bc=(), neg=()):
        srcs = [s0, s1] + ([s2] if s2 is not None else [])
        if self.nopk:
            for h in range(2):
                t = []
                for k, r in enumerate(srcs):
                    kind, n = r if isinstance(r, tuple) else ('v', r)
                    t.append(('-' if k in neg else '') + f'{kind}{n if k in bc else n + h}')
                e64 = '' if op == 'fma' else ('_e64' if (neg or t[1][0] == 's') else '')
                self.a(f'v_{op}_f32{e64} v{d+h}, ' + ', '.join(t))
            return
        txt, sel, selhi = [], [], []
        for k, r in enumerate(srcs):
            kind, n = r if isinstance(r, tuple) else ('v', r)
            if k in bc:
                txt.append(f'{kind}[{n & ~1}:{(n & ~1) + 1}]'); sel.append(n & 1); selhi.append(n & 1)
            else:
                assert n % 2 == 0
                txt.append(f'{kind}[{n}:{n+1}]'); sel.append(0); selhi.append(1)
        assert d % 2 == 0
        m = ''
        if any(sel): m += ' op_sel:[' + ','.join(map(str, sel)) + ']'
        if not all(selhi): m += ' op_sel_hi:[' + ','.join(map(str, selhi)) + ']'
        if neg:
            ng = ','.join('1' if k in neg else '0' for k in range(len(srcs)))
            m += f' neg_lo:[{ng}] neg_hi:[{ng}]'
        self.a(f'v_pk_{op}_f32 v[{d}:{d+1}], ' + ', '.join(txt) + m)
    def dpp(self, op, d, s0, s1, ctl):
        self.a(f'{op}_dpp v{d}, v{s0}, v{s1} {ctl} row_mask:0xf bank_mask:0xf')
    def allreduce(self, v, t, op='v_add_f32', lo=True, b3=True):
        if lo:
            self.dpp(op, v, v, v, 'quad_perm:[1,0,3,2]')
            self.dpp(op, v, v, v, 'quad_perm:[2,3,0,1]')
            self.dpp(op, v, v, v, 'row_half_mirror')
        self.dpp(op, v, v, v, 'row_ror:8')
        self.a(f'v_mov_b32 v{t}, v{v}')
        self.a(f'v_permlane16_swap_b32 v{v}, v{t}')
        self.a(f'{op} v{v}, v{v}, v{t}')
        self.a(f'v_mov_b32 v{t}, v{v}')
        self.a(f'v_permlane32_swap_b32 v{v}, v{t}')
        self.a(f'{op} v{v}, v{v}, v{t}')
    def poll(self, loads, tagregs, tmp=None):
        a = self.a
        L, D = a.label('POLL'), a.label('PDONE')
        a(f'{L}:')
        loads()
        self.vm.wait_all()
        self.tagcheck(tagregs, tmp)
        a(f's_cbranch_vccz {D}')
        a(f's_add_u32 s{sSPIN}, s{sSPIN}, 1')
        a(f's_cmp_lt_u32 s{sSPIN}, {SPIN_LIMIT}')
        a(f's_cbranch_scc1 {L}')
        a(f'{D}:')
    def weave(self, fn, extras):
        a = self.a
        keep = a.items; a.items = []
        fn()
        body = a.items; a.items = keep
        extras = list(extras); n = len(extras)
        for i, it in enumerate(body):
            while extras and (n - len(extras)) * len(body) <= i * n: extras.pop(0)()
            a.items.append(it)
        for e in extras: e()
    def tagcheck(self, tagregs, tmp):
        a = self.a
        if tagregs[0] == 'nan':
            if len(tagregs) == 3: a(f'v_max_u32 v{tmp}, v{tagregs[1]}, v{tagregs[2]}')
            a(f'v_cmp_eq_u32 vcc, -1, v{tmp if len(tagregs) == 3 else tagregs[1]}')
        elif len(tagregs) == 1:
            a(f'v_cmp_ne_u32 vcc, s{sTAG}, v{tagregs[0]}')
        else:
            a(f'v_bitop3_b32 v{tmp}, v{tagregs[0]}, v{tagregs[1]}, s{sTAG} bitop3:0x7e')
            for t in tagregs[2:]: a(f'v_bitop3_b32 v{tmp}, v{tmp}, v{t}, s{sTAG} bitop3:0xf6')
            a(f'v_cmp_ne_u32 vcc, 0, v{tmp}')
    def try_load(self, loads, tagregs, tmp=None, between=None, pre=None):
        a = self.a
        n0 = len(self.vm.q)
        loads()
        self.vm.q[-1] = tg = ('try', a.label('T'))
        if between: between()
        self.vm.wait(tg)
        OK = a.label('TOK')
        self.tagcheck(tagregs, tmp)
        a(f's_cbranch_vccz {OK}')
        q, l = list(self.vm.q), list(self.lg.q)
        if pre: pre()
        self.poll(loads, tagregs, tmp)
        self.vm.q, self.lg.q = q, l
        a(f'{OK}:')
    def finish_load(self, tg, loads, tagregs, tmp=None, pre=None):
        a = self.a
        self.vm.wait(tg)
        OK = a.label('TOK')
        self.tagcheck(tagregs, tmp)
        a(f's_cbranch_vccz {OK}')
        q, l = list(self.vm.q), list(self.lg.q)
        if pre: pre()
        self.poll(loads, tagregs, tmp)
        self.vm.q, self.lg.q = q, l
        a(f'{OK}:')
    def spoll(self, loads, checks, work=None, pipe=0):
        a = self.a
        L, C, D = a.label('SPOLL'), a.label('SCHK'), a.label('SDONE')
        def issue(note=''):
            for d, n, so, imm in loads:
                op = {1: 'dword', 2: 'dwordx2', 4: 'dwordx4', 8: 'dwordx8'}[n]
                a(f's_load_{op} {sr(sPL + d, n)}, {sr(rWS, 2)}, s{so} offset:{imm} glc' + note)
        if pipe:
            self.lg.wait_all()
            for k in checks: a(f's_not_b32 s{sPL + k}, s{sTAG}')
            issue(' ; nowait')
            if work: work()
            a(f'{L}:')
            a(f's_add_u32 s{sSPIN}, s{sSPIN}, 1')
            a(f's_cmp_ge_u32 s{sSPIN}, {SPIN_LIMIT}')
            a(f's_cbranch_scc1 {D}')
            ks = list(checks)
            a(f's_xor_b32 s{XT[0]}, s{sPL + ks[0]}, s{sTAG} ; nowait')
            for k in ks[1:]:
                a(f's_xor_b32 s{XT[1]}, s{sPL + k}, s{sTAG} ; nowait')
                a(f's_or_b32 s{XT[0]}, s{XT[0]}, s{XT[1]}')
            a(f's_cbranch_scc0 {D}')
            issue(' ; nowait')
            a(f's_sleep {pipe}')
            a(f's_branch {L}')
            a(f'{D}:')
            return
        if work:
            issue(); work()
            a(f's_branch {C}')
        a(f'{L}:')
        issue()
        a(f'{C}:')
        a(f's_add_u32 s{sSPIN}, s{sSPIN}, 1')
        a(f's_cmp_ge_u32 s{sSPIN}, {SPIN_LIMIT}')
        self.lg.wait_all()
        a(f's_cbranch_scc1 {D}')
        for k in checks:
            a(f's_cmp_lg_u32 s{sPL + k}, s{sTAG}')
            a(f's_cbranch_scc1 {L}')
        a(f'{D}:')
    def inbox(self, box, n, checks=None, work=None, pipe=0):
        self.spoll([(0, n, sINB, box * 512)], range(n) if checks is None else checks, work, pipe)
    def va(self, dst, terms, sreg=None, const=0, tmp=None):
        a = self.a; vL = self.vL
        first = True
        for sh, bits, mult in terms:
            full = sh + bits >= 6
            src = vL
            t = dst if first else tmp
            if sh == 0 and full: pass
            elif full: a(f'v_lshrrev_b32 v{t}, {sh}, v{vL}'); src = t
            elif sh == 0: a(f'v_and_b32 v{t}, {(1 << bits) - 1}, v{vL}'); src = t
            else: a(f'v_bfe_u32 v{t}, v{vL}, {sh}, {bits}'); src = t
            p2 = mult & (mult - 1) == 0
            k = mult.bit_length() - 1
            if first:
                if p2 and sreg is not None: a(f'v_lshl_add_u32 v{dst}, v{src}, {k}, s{sreg}'); sreg = None
                elif p2 and k: a(f'v_lshlrev_b32 v{dst}, {k}, v{src}')
                elif p2:
                    if src != dst: a(f'v_mov_b32 v{dst}, v{src}')
                else: a(f'v_mul_u32_u24 v{dst}, {mult}, v{src}')
            else:
                assert p2
                a(f'v_lshl_add_u32 v{dst}, v{src}, {k}, v{dst}')
            first = False
        if sreg is not None: a(f'v_add_u32 v{dst}, s{sreg}, v{dst}')
        if const: a(f'v_add_u32 v{dst}, {const}, v{dst}')
    def push(self, vaddr, soff, nl, vtmp, lab, wave=0):
        a = self.a
        a(f's_cmp_lg_u32 s{sWAVE}, {wave}')
        a(f's_cbranch_scc1 {lab}')
        a(f'v_mov_b32 v{vtmp}, s{sTAG}')
        a(f's_mov_b32 exec_hi, 0')
        if nl < 32: a(f's_mov_b32 exec_lo, {(1 << nl) - 1}')
        self.bs(vtmp, 1, vaddr, rWS, soff, 0, 'sc1', count=False)
        a('s_mov_b64 exec, -1')
        a(f'{lab}:')
    def silu(self, v, t):
        a = self.a
        a(f'v_mul_f32 v{t}, s{sL2E}, v{v}')
        a(f'v_exp_f32 v{t}, -v{t}')
        a(f'v_add_f32 v{t}, 1.0, v{t}')
        a(f'v_rcp_f32 v{t}, v{t}')
        a(f'v_mul_f32 v{v}, v{v}, v{t}')
        self.round1(v)
    def gemv_ops(self, wregs, cregs, acc, t0, t1, packed):
        ops = []
        assert t0 % 2 == 0 and t1 == t0 + 1
        for i, (w, c) in enumerate(zip(wregs, cregs)):
            cp = f'v[{c & ~1}:{(c & ~1) + 1}]'
            for d in range(4):
                tt = t0 + 2 * (d & 1)
                ops.append(f'v_lshlrev_b32 v{tt}, 16, v{w+d}')
                ops.append(f'v_and_b32 v{tt+1}, s{sMASK}, v{w+d}')
                ac = f'v[{acc+2*d}:{acc+2*d+1}]'
                if not packed:
                    for h in range(2): ops.append(f'v_mul_f32 v{acc+2*d+h}, v{tt+h}, v{c}' if i == 0 else f'v_fmac_f32 v{acc+2*d+h}, v{tt+h}, v{c}')
                elif i == 0: ops.append(f'v_pk_mul_f32 {ac}, v[{tt}:{tt+1}], {cp} op_sel:[0,{c & 1}] op_sel_hi:[1,{c & 1}]')
                else: ops.append(f'v_pk_fma_f32 {ac}, v[{tt}:{tt+1}], {cp}, {ac} op_sel:[0,{c & 1},0] op_sel_hi:[1,{c & 1},1]')
        for i in range(4): ops.append(f'v_permlane32_swap_b32 v{acc+i}, v{acc+4+i}')
        for i in range(4): ops.append(f'v_add_f32 v{acc+i}, v{acc+i}, v{acc+4+i}')
        for i in range(2): ops.append(f'v_permlane16_swap_b32 v{acc+i}, v{acc+2+i}')
        for i in range(2): ops.append(f'v_add_f32 v{acc+i}, v{acc+i}, v{acc+2+i}')
        for i in range(2): ops.append(f'v_add_f32_dpp v{acc+i}, v{acc+i}, v{acc+i} row_ror:8 row_mask:0xf bank_mask:0xf')
        ops.append(f'v_mov_b32_dpp v{acc}, v{acc+1} quad_perm:[0,1,2,3] row_mask:0xf bank_mask:0xc')
        return ops
    def sum8(self, b):
        self.pk('add', b, b, b + 2); self.pk('add', b + 4, b + 4, b + 6); self.pk('add', b, b, b + 4)
        self.a(f'v_add_f32 v{b}, v{b}, v{b+1}')
    def softmax_pm(self, p, e, out, t, mid=None, part=0, split=0):
        a = self.a
        mx, mn, u0, u1, s0, s1 = t, t + 1, t + 2, t + 3, t + 4, t + 6
        if part != 2:
            self.round_list([p + i for i in range(16)])
            a(f'v_max3_f32 v{mx}, v{p}, v{p+1}, v{p+2}')
            a(f'v_min3_f32 v{mn}, v{p}, v{p+1}, v{p+2}')
            for i in range(3, 15, 2):
                a(f'v_max3_f32 v{mx}, v{mx}, v{p+i}, v{p+i+1}')
                a(f'v_min3_f32 v{mn}, v{mn}, v{p+i}, v{p+i+1}')
            a(f'v_max_f32 v{u0}, v{mx}, v{p+15}')
            a(f'v_min_f32 v{u1}, v{mn}, v{p+15}')
            a(f'v_max_f32 v{mx}, v{mx}, v{p+15}')
            a(f'v_min_f32 v{mn}, v{mn}, v{p+15}')
            a(f'v_permlane32_swap_b32 v{mx}, v{u0}')
            a(f'v_permlane32_swap_b32 v{mn}, v{u1}')
            a(f'v_max_f32 v{mx}, v{mx}, v{u0}')
            a(f'v_min_f32 v{mn}, v{mn}, v{u1}')
            self.pk('mul', mx, mx, ('s', sL2E), bc=(1,))
            for i in range(0, 16, 2):
                self.pk('fma', e + i, p + i, ('s', sL2E), mx, bc=(1, 2), neg=(2,))
                self.pk('fma', p + i, p + i, ('s', sL2E), mn, bc=(1, 2), neg=(0,))
        for i in range(split if part == 2 else 0, 16):
            if mid and i == mid[0]: mid[1]()
            if part == 1 and i == split: return
            a(f'v_exp_f32 v{e+i}, v{e+i}')
            a(f'v_exp_f32 v{p+i}, v{p+i}')
        self.pk('add', s0, e, e + 2); self.pk('add', s1, p, p + 2)
        for i in range(4, 16, 2):
            self.pk('add', s0, s0, e + i); self.pk('add', s1, s1, p + i)
        a(f'v_add_f32 v{u0}, v{s0}, v{s0+1}')
        a(f'v_add_f32 v{u1}, v{s1}, v{s1+1}')
        a(f'v_add_f32 v{mx}, v{s0}, v{s0+1}')
        a(f'v_add_f32 v{mn}, v{s1}, v{s1+1}')
        a(f'v_permlane32_swap_b32 v{mx}, v{u0}')
        a(f'v_permlane32_swap_b32 v{mn}, v{u1}')
        self.pk('add', mx, mx, u0)
        a(f'v_rcp_f32 v{mx}, v{mx}')
        a(f'v_rcp_f32 v{mn}, v{mn}')
        for i in range(0, 16, 2):
            self.pk('mul', e + i, e + i, mx, bc=(1,))
            self.pk('mul', p + i, p + i, mn, bc=(1,))
        for i in range(8):
            a(f'v_cvt_pk_bf16_f32 v{out+i}, v{e+2*i}, v{e+2*i+1}')
            a(f'v_cvt_pk_bf16_f32 v{out+8+i}, v{p+2*i}, v{p+2*i+1}')
    def ln_stats(self, xp, t, m_out, sd_out, fill=()):
        a = self.a
        fill = list(fill)
        def pad(n):
            for _ in range(n):
                if fill: a(fill.pop(0))
        s, u = t, t + 4
        a(f'v_mov_b32 v{u}, 0x3f803f80')
        for i in range(8):
            k = 2 * (i & 1)
            a(f'v_dot2_f32_bf16 v{s+k}, v{xp+i}, v{u}, ' + ('0' if i < 2 else f'v{s+k}'))
            a(f'v_dot2_f32_bf16 v{s+k+1}, v{xp+i}, v{xp+i}, ' + ('0' if i < 2 else f'v{s+k+1}'))
        pad(3)
        self.pk('add', s, s, s + 2)
        for ctl in ('quad_perm:[1,0,3,2]', 'quad_perm:[2,3,0,1]', 'row_half_mirror', 'row_ror:8'):
            pad(2 if ctl.endswith('3,2]') else 1)
            self.dpp('v_add_f32', s, s, s, ctl); self.dpp('v_add_f32', s + 1, s + 1, s + 1, ctl)
        pad(2)
        a(f'v_permlane16_swap_b32 v{s}, v{s+1}')
        a(f'v_add_f32 v{u}, v{s}, v{s+1}')
        a(f'v_add_f32 v{s}, v{s}, v{s+1}')
        pad(2)
        a(f'v_permlane32_swap_b32 v{s}, v{u}')
        a(f'v_add_f32 v{s}, v{s}, v{u}')
        a(f'v_mul_f32 v{u}, 0x3a800000, v{s}')
        a(f'v_mul_f32 v{s}, 0x3a800000, v{s}')
        pad(2)
        a(f'v_permlane16_swap_b32 v{s}, v{u}')
        a(f'v_fma_f32 v{sd_out}, -v{s}, v{s}, v{u}')
        a(f'v_cvt_pk_bf16_f32 v{m_out}, 0, v{s}')
        a(f'v_max_f32 v{sd_out}, 0, v{sd_out}')
        self.round1(sd_out)
        a(f'v_add_f32 v{sd_out}, 0x3727c5ac, v{sd_out}')
        self.round1(sd_out)
        a(f'v_sqrt_f32 v{sd_out}, v{sd_out}')
        pad(99)
        self.round1(sd_out)

    def stat_math(self, s, u, m_out, sd_out):
        a = self.a
        a(f'v_fma_f32 v{sd_out}, -v{s}, v{s}, v{u}')
        a(f'v_cvt_pk_bf16_f32 v{m_out}, 0, v{s}')
        a(f'v_max_f32 v{sd_out}, 0, v{sd_out}')
        self.round1(sd_out)
        a(f'v_add_f32 v{sd_out}, 0x3727c5ac, v{sd_out}')
        self.round1(sd_out)
        a(f'v_sqrt_f32 v{sd_out}, v{sd_out}')
        self.round1(sd_out)
    def ln_stats2(self, x0, x1, t, m_out, sd_out):
        a = self.a
        s0, s1, q0, q1, u = t, t + 1, t + 2, t + 3, t + 4
        a(f'v_mov_b32 v{u}, 0x3f803f80')
        for i in range(8):
            for xx, s_, q_ in ((x0, s0, q0), (x1, s1, q1)):
                a(f'v_dot2_f32_bf16 v{s_}, v{xx+i}, v{u}, ' + ('0' if i == 0 else f'v{s_}'))
                a(f'v_dot2_f32_bf16 v{q_}, v{xx+i}, v{xx+i}, ' + ('0' if i == 0 else f'v{q_}'))
        a(f"""v_permlane32_swap_b32 v{s0}, v{s1}
        v_permlane32_swap_b32 v{q0}, v{q1}
        v_add_f32 v{s0}, v{s0}, v{s1}
        v_add_f32 v{q0}, v{q0}, v{q1}
        v_permlane16_swap_b32 v{s0}, v{q0}
        v_add_f32 v{s0}, v{s0}, v{q0}""")
        for ctl in ('quad_perm:[1,0,3,2]', 'quad_perm:[2,3,0,1]', 'row_half_mirror', 'row_ror:8'): self.dpp('v_add_f32', s0, s0, s0, ctl)
        a(f"""v_mul_f32 v{q0}, 0x3a800000, v{s0}
        v_mul_f32 v{s0}, 0x3a800000, v{s0}
        v_permlane16_swap_b32 v{s0}, v{q0}""")
        self.stat_math(s0, q0, m_out, sd_out)

    def build(self):
        a, V, vm, lg, o, S = self.a, self.V, self.vm, self.lg, self.o, self.S
        E2 = range(0, 16, 2)
        TL = o.get('tl', 0)
        HL = o.get('hl', 1)
        D2 = o.get('d2', 1)
        LCB = [(0, 4, 8 * 4096)] if TL else [(0, 3, 8 * 4096), (3, 1, 4096)]
        a(f'{NAME}:')
        a(f's_load_dwordx16 {sr(KA, 16)}, s[0:1], 0')
        a(f's_load_dwordx8 {sr(KA + 16, 8)}, s[0:1], 64')
        a(f's_load_dwordx2 {sr(rWS, 2)}, s[0:1], 104')
        a(f's_load_dwordx2 {sr(pDBG, 2)}, s[0:1], 96')
        a('s_cmp_ge_u32 s2, 256')
        a('s_cbranch_scc1 L_END')
        if self.prof:
            a(f's_memrealtime {sr(sCMP, 2)}')
            a(f's_memtime {sr(sTM, 2)}')
            a('v_mov_b32 v255, 0')
            a('v_mov_b32 v254, 0')
            self.stnames.append('start'); self.nst = 1
        if o.get('exfil'): a(f's_memrealtime {sr(sTM, 2)}')
        vL = self.vL = V.alloc()
        vL16 = V.alloc()
        vZ = V.alloc()
        vT = V.alloc(8)
        va = lambda dst, terms, sreg=None, const=0: self.va(dst, terms, sreg, const, vT + 5)
        a(f"""v_lshrrev_b32 v{vT}, 6, v0
        v_and_b32 v{vL}, 63, v0
        v_mov_b32 v{vZ}, 0
        v_readfirstlane_b32 s{sWAVE}, v{vT}
        v_lshlrev_b32 v{vL16}, 4, v{vL}""")
        xr = V.alloc(8); acc = V.alloc(8); wphi = V.alloc(8); fr = V.alloc(8); vq = V.alloc(8); vv = V.alloc(8)
        vWM = V.alloc(); vCo = V.alloc(); vWd = V.alloc(); vL8 = V.alloc(); vL32S = V.alloc(); vGA = V.alloc()
        vB = V.alloc(6, 1); vFG = V.alloc(); vFD = V.alloc(); vWo = V.alloc(); vPW = V.alloc(); vXF = V.alloc()
        S(sX, 'wg & 7'); S(sJ, 'wg >> 3')
        S(T2, '(x*4 + w)*64')
        S(T0, 'T2*6144 + (j ^ 1)*128')
        va(vWM, [(3, 3, 4 * 12288), (0, 3, 16)])
        va(vCo, [(3, 3, 8)], T2)
        S(T3, '((x*32 + j)*4 + w - 4)*4096')
        for srd, size in ((rWM, 12582912), (rX, 4194304), (rWS, WS_BYTES)):
            a(f's_mov_b32 s{srd+2}, {size}')
            a(f's_mov_b32 s{srd+3}, 0x20000')
        a(f's_getreg_b32 s{sXC}, hwreg(HW_REG_XCC_ID, 0, 3)')
        if o.get('fakexcc') is not None: a(f's_and_b32 s{sXC}, s{sXC}, {o["fakexcc"]}')
        a(f"""s_getpc_b64 {sr(sCMP, 2) if not self.prof else sr(sPL, 2)}""")
        S(T6, '(j*7 + w)*128')
        va(vT + 6, [(5, 1, 28672)], T6)
        a(f"""v_min_u32 v{vT+6}, CODE_KB, v{vT+6}
        s_cmp_ge_u32 s{sWAVE}, 4
        s_waitcnt lgkmcnt(0)""")
        if self.prof:
            a(f'v_writelane_b32 v255, s{sTM}, 0')
            a(f'v_writelane_b32 v255, s{sCMP}, 63')
            a(f'v_writelane_b32 v254, s{sCMP}, 0')
            a(f's_mov_b64 {sr(sCMP, 2)}, {sr(sPL, 2)}')
        if o.get('exfil'):
            for k in range(3): a(f'v_writelane_b32 v255, s{sTM}, {k}')
        self.stamp('karg')
        raw = V.alloc(16); cv = V.alloc(4); vTk = V.alloc(2)
        xs = V.alloc(16); st = V.alloc(4); mq = V.alloc(4)
        a(f"""s_mov_b64 {sr(rWM, 2)}, {sr(KA + 20, 2)}
        s_mov_b64 {sr(rX, 2)}, {sr(KA, 2)}
        s_load_dword s{sTAG}, {sr(rWS, 2)}, {NONCE}
        s_cbranch_scc1 L_FS""")
        def setup():
            for srd, size in ((rW, 6291456), (rWO, 2097152), (rWG, 7340032), (rWU, 7340032), (rWD, 7340032), (rOUT, 4194304)):
                a(f's_mov_b32 s{srd+2}, {size}')
                a(f's_mov_b32 s{srd+3}, 0x20000')
            for srd, k in ((rW, 2), (rWO, 6), (rWG, 12), (rWU, 14), (rWD, 16), (rOUT, 22)):
                a(f's_mov_b64 {sr(srd, 2)}, {sr(KA + k, 2)}')
            a(f"""s_mov_b32 s{sSPIN}, 0
            s_mov_b32 s{sMASK}, 0xffff0000
            s_mov_b32 s{sL2E}, 0x3fb8aa3b""")
            S(sKH, 'w >> 2')
            va(vT + 2, [(4, 1, 64)]); va(vWd, [(0, 3, 16)])
            a(f'v_xor_b32 v{vWd}, v{vWd}, v{vT+2}'); va(vT + 2, [(3, 3, 6144)]); a(f'v_add_u32 v{vWd}, v{vWd}, v{vT+2}')
            va(vL8, [(0, 6, 8)])
            a(f'v_add_u32 v{vL32S}, {SCR}, v{vL16}')
            S(T0, '(w & 3)*4 + SCR')
            va(vGA, [(4, 2, 32), (0, 3, 128), (3, 1, 16)], T0)
            S(T1, '((j >> 4)*128 + w*8 + x)*1024 + (j & 15)*64 + SINB' if TL else '((x & 6) + ((x & 1)*2 + (j >> 4))*64 + w*8)*1024 + (j & 15)*64 + SINB')
        def tag_hash():
            a(f"""s_mul_i32 s{sTAG}, s{sTAG}, 0x9e3779b1
            s_add_u32 s{sTAG}, s{sTAG}, 0x7f4a7c15""")
        def code_pf():
            a(f's_and_b32 s{sCMP}, s{sCMP}, 0xfffffc00')
            a(f'global_load_dword v{vTk}, v{vT+6}, {sr(sCMP, 2)}')
        wq = [(n, t) for n in range(16) for t in range(3)]
        def w_base(n, wexpr):
            if n < 4 and o.get('wxor', 1):
                if o.get('wxor', 1) < 3: S(T7, '((j >> 4)*2) ^ n' if o.get('wxor', 1) == 1 else o.get('wxe', '((j >> 4) + (x >> 2)*2) ^ n'), n=n)
                else:
                    S(T7, o.get('wxe', 'j & 3' if HL else '(j >> 4) + (x >> 2)*2'))
                    if n: a(f's_cmp_le_u32 s{T7}, {n - 1}'); a(f's_cselect_b32 s{T7}, {n}, {n - 1}')
                S(sU, f'(((T7 + u0) & 15)*8 + {wexpr})*(8*6144) + hp*128')
                S(T7, f'T7*SLOT + (({wexpr}) >> 1)*2080 + (({wexpr}) & 1)*1056')
            else:
                S(sU, f'(((u0 + n) & 15)*8 + {wexpr})*(8*6144) + hp*128', n=n)
                S(T7, f'(({wexpr}) >> 1)*2080 + (({wexpr}) & 1)*1056 + q', q=(n % 6) * SLOT)
        def w_slot(n, t):
            S('m0', 'T7 + q', q=t * SEC)
            self.dma(vWd, rW, sU, 0, o.get('wmod', ''), ('W', n))
            if t < 2: S(sU, 'u + 2048')
        def w_next(cnt=1):
            for _ in range(cnt):
                n, t = wq.pop(0)
                if t == 0: w_base(n, 'w')
                w_slot(n, t)
        wb = list(o['wburst'])
        def w_early():
            if not o.get('wearly'): return
            S(sHP, '(x & 3)*4 + ((j & 3) ^ q)', q=o.get('hpx', 2)); S(sU0, o.get('u0', 'j & 12'))
            w_next(o['wearly'])
        a(f'global_load_dwordx2 {vr(cv, 2)}, v{vCo}, {sr(pC, 2)}'); vm.issue('c')
        for i in range(4):
            self.bl(raw + 4 * i, 4, vWM, rWM, T0, 0, o.get('ntwm', 'nt'), ('wm', i))
            if i < 3: S(T0, 'T0 + 12288')
        a('s_barrier')
        if o.get('bar1', 1): a('s_barrier')
        code_pf(); vm.issue()
        setup()
        wq0 = list(wq); w_early(); wq[:] = wq0
        S(T0, '(((w*16 + ((j ^ 1) & 15))*2 + (j >> 4))*8 + x)*512 + AINB')
        S(T2, ('(((j ^ 1) & 15)*8 + w*2)*512' if TL else '(((j ^ 1) & 7)*8 + w*2 + ((j >> 3) & 1))*512') + ' + x*64 + (j >> 4)*4 + INA')
        va(vT + 6, [(0, 1, 128 * 512), (1, 1, 512)] if TL else [(0, 2, 64 * 512)])
        vm.wait('c')
        self.unpack(cv + 2, cv + 3, cv + 1)
        a(f'v_and_b32 v{cv+1}, s{sMASK}, v{cv}'); a(f'v_lshlrev_b32 v{cv}, 16, v{cv}')
        for i in range(4): self.silu(cv + i, vT + (i & 1))
        gops = self.gemv_ops([raw + 4 * i for i in range(4)], [cv + i for i in range(4)], acc, vT, vT + 1, True)
        for i in range(4):
            vm.wait(('wm', i))
            if i == 3: self.stamp('wmok')
            for s_ in gops[12 * i:12 * i + 12]: a(s_)
        for s_ in gops[48:]: a(s_)
        self.dw('ds_write_b32', vGA, acc, 1, L_A1 - SCR)
        self.barrier()
        a(f'ds_read_b128 {vr(acc, 4)}, v{vL32S} offset:{L_A1 - SCR}')
        tag_hash()
        a('s_waitcnt lgkmcnt(0)')
        self.pk('add', acc, acc, acc + 2)
        a(f"""v_add_f32 v{acc}, v{acc}, v{acc+1}
        v_mov_b32 v{acc+1}, s{sTAG}""")
        self.bs(acc, 2, vL8, rWS, T0, 0, 'sc1')
        a('s_mov_b64 exec, 15')
        self.bs(acc + 1, 1, vT + 6, rWS, T2, 0, 'sc1')
        a('s_mov_b64 exec, -1')
        self.stamp('A1pub')
        if o.get('wpf', 0):
            S(T2, '(((xc >> 2)*2 + (xc & 1))*4 + (xc & 2))*128 + (j*32 + w*8)*6144')
            va(vT + 2, [(4, 2, 6144), (0, 4, 16)])
            for i in range(o['wpf']):
                S(T0, 'T2 + q', q=(i % 3) * 2048 + (i // 3) * 4 * 6144)
                self.bl(raw, 4, vT + 2, rW, T0, 0, o.get('wpfmod', ''))
        tl_ = o.get('tlb', '')
        if tl_:
            S(T2, 'wg*128'); va(vT + 2, [(0, 6, 1 << 21)], T2)
            tab = dict(W=rW, o=rWO, g=rWG, u=rWU, d=rWD, m=rWM, x=rX, O=rOUT)
            for k_, c_ in enumerate(tl_):
                a(f's_cmp_lg_u32 s{sWAVE}, {k_ & 3}')
                L_ = a.label('TLB'); a(f's_cbranch_scc1 {L_}')
                if c_ == 's':
                    a('s_mov_b64 exec, 0x1ffff'); self.bl(raw + 4, 1, vT + 2, rWS, '0', 0, '', None); vm.q.pop(); a('s_mov_b64 exec, -1')
                else: self.bl(raw + 4, 1, vT + 2, tab[c_], '0', 0, '', None); vm.q.pop()
                a(f'{L_}:')
        a('s_branch L_FJ')
        qG = list(vm.q)
        a('L_FS:')
        vm.reset(); lg.reset()
        a('s_barrier')
        for i in range(4): self.bl(raw + 4 * i, 4, vL16, rX, T3, 1024 * i, o.get('xsmod', ''), 'xs')
        pw0 = o.get('pw0', 'ab')
        if 'a' in pw0:
            S(T4, '(wg*4 + w - 4)*128 + INA')
            for q in range(2): a(f's_load_dword s{sPL + q}, {sr(rWS, 2)}, s{T4} offset:{q * 64} glc')
        if 's' in pw0:
            S(T4, '(wg*4 + w - 4)*256 + SINB')
            for q in range(4): a(f's_load_dword s{sPL + 2 + q}, {sr(rWS, 2)}, s{T4} offset:{q * 64} glc')
        if 'b' in pw0:
            S(T4, '(wg*32 + w - 4)*128 + INB')
            for q in range(2): a(f's_load_dword s{sPL + q}, {sr(rWS, 2)}, s{T4} offset:{q * 64} glc ; nowait')
        a(f"""s_lshl_b32 s{T6}, s{sXC}, 5
        v_mov_b32 v{vTk}, 1
        v_mov_b32 v{vTk+1}, s{T6}""")
        if o.get('bar1', 1): a('s_barrier')
        a(f"""s_cmp_lg_u32 s{sWAVE}, 7
        s_cbranch_scc1 L_NOTK
        s_mov_b64 exec, 1
        global_atomic_add v{vTk}, v{vTk+1}, v{vTk}, {sr(pDBG, 2)} sc0 sc1
        s_mov_b64 exec, -1
        s_branch L_TK0
        L_NOTK:""")
        code_pf()
        a('L_TK0:')
        vm.issue('tk')
        setup()
        w_early()
        S(T0, '(w - 4)*16 + L_ST'); va(vT + 6, [(5, 1, 8)], T0)
        a('s_barrier')
        vm.wait('xs')
        lg.wait_all()
        tag_hash()
        self.stamp('xsok')
        self.ln_stats2(raw, raw + 8, xs, st, st + 1)
        a(f"""v_lshrrev_b32 v{st}, 16, v{st}
        v_or_b32 v{st}, v{st}, v{st+1}
        v_mov_b32 v{st+1}, s{sTAG}""")
        self.dw('ds_write_b64', vT + 6, st, 2)
        a('L_FJ:')
        va(vT + 1, [(0, 2, 16)], None, L_ST)
        va(vT, [(0, 2, 16), (2, 1, 65536 if TL else 1024)])
        va(vT + 6, [(0, 5, 2048), (5, 1, 32)])
        va(vT + 2, [(0, 1, 64 * 512 if TL else 512), (1, 1, 256)])
        S(T2, ('((j >> 4)*128 + w*8 + x)*512' if TL else '((x & 6) + ((x & 1)*2 + (j >> 4))*64 + w*8)*512') + ' + ((j >> 2) & 3)*64 + (j & 3)*4 + 16 + INA')
        self.barrier()
        self.r128(st, vT + 1, 0, 'st')
        lg.wait('st')
        a('s_mov_b64 exec, 0xff')
        self.bs(st, 4, vT, rWS, T1, 0, 'sc1')
        a('s_mov_b64 exec, 15')
        self.bs(st + 1, 1, vT + 2, rWS, T2, 0, 'sc1')
        a('s_mov_b64 exec, -1')
        self.stamp('A2pub')
        a(f"""s_cmp_lg_u32 s{sWAVE}, 7
        s_cbranch_scc1 L_NOTK2
        s_mov_b32 s{T0}, 0
        s_waitcnt vmcnt({len(vm.q) - 1 - vm.q.index('tk')})
        L_TK:
        v_readfirstlane_b32 s{T2}, v{vTk}
        s_cmp_lt_u32 s{T2}, 32
        s_cbranch_scc1 L_TKOK
        v_mov_b32 v{vTk}, s{sTAG}
        s_mov_b64 exec, 1
        buffer_store_dword v{vTk}, v{vZ}, {sr(rWS, 4)}, 0 offen offset:{MARK} sc1
        s_mov_b64 exec, -1
        s_add_u32 s{T0}, s{T0}, 1
        s_cmp_lt_u32 s{T0}, 8
        s_cbranch_scc0 L_TKNO
        s_add_u32 s{sXC}, s{sXC}, 1
        s_and_b32 s{sXC}, s{sXC}, 7
        s_lshl_b32 s{T6}, s{sXC}, 5
        v_mov_b32 v{vTk}, 1
        v_mov_b32 v{vTk+1}, s{T6}
        s_mov_b64 exec, 1
        global_atomic_add v{vTk}, v{vTk+1}, v{vTk}, {sr(pDBG, 2)} sc0 sc1
        s_mov_b64 exec, -1
        s_waitcnt vmcnt(0)
        s_branch L_TK
        L_TKNO:
        s_and_b32 s{sXC}, s2, 7
        s_lshr_b32 s{T2}, s2, 3
        L_TKOK:
        s_lshl3_add_u32 s{T2}, s{T2}, s{sXC}""")
        if o.get('rawrole'): a(f's_mov_b32 s{T2}, s2')
        a(f"""v_mov_b32 v{vTk}, s{T2}
        ds_write_b32 v{vT+1}, v{vTk} offset:64
        L_NOTK2:""")
        self.barrier()
        a(f'ds_read_b32 v{mq}, v{vT+1} offset:64'); lg.issue('role')
        lg.wait('role')
        a(f'v_readfirstlane_b32 s2, v{mq}')
        self.stamp('role')
        V.release(raw, 16); V.release(cv, 4)
        S(sX, 'wg & 7'); S(sJ, 'wg >> 3')
        S(sCB, 'j & 15' if TL else '(x & 1)*8 + (j & 7)')
        S(sRT, 'x*2 + (j >> 4)' if TL else '(x >> 1)*4 + (j >> 3)')
        S(sGTB, 'rt*4 + (w & 3)')
        S(sC32, 'cb*2 + kh')
        S(T5, 'gtb*65536 + c32*64')
        ld_xt = lambda: [self.bl(xr + 4 * q, 4, vT + 6, rX, T5, 16 * q, o.get('xtmod', ''), 'xt') for q in range(2)]
        if not o.get('xtlate', 0): ld_xt()
        S(T0, '(((x >> 1)*16 + cb)*16 + w)*512 + AINB')
        S(T2, '(wg*8 + w)*64 + INA')
        def role_prep():
            S(sR1, 'j & 15' if HL else '(x & 4)*2 + (j >> 2)'); S(sHP, '((x >> 2)*2 + (x & 1))*4 + (x & 2) + (j >> 4)' if HL else '(x & 3)*4 + ((j & 3) ^ 2)')
            S(sU0, o.get('u0', 'j & 12'))
            w_next(wb[0])
            S(sINB, '(wg*64 + w)*64 + INB')
            S(sKF, 'kh ^ (j >> 4)'); S(sROT, o.get('rot', '(((j >> 3) ^ j) & 1)*q + p'), q=4 if D2 else 8, p=8 * o.get('dflip', 1))
            S(sFS, 'x*7 + (j >> 2)'); S(sKQ, 'j & 3')
            va(vT + 4, [(0, 5, 8)])
            va(vT, [(0, 5, 16), (5, 1, 4096)])
            S(T3, 'w*4 + L_MP'); va(vT + 1, [(0, 6, 64)], T3)
            S(T3, 'kh*1024 + L_MP'); va(vT + 2, [(0, 4, 32), (5, 1, 512)], T3)
        S(T1, '(wg*4 + (w & 3))*256 + SINB')
        self.spoll([(0, 8, T2, 0)], (0, 1, 4, 5, 6, 7), work=role_prep)
        self.stamp('apre')
        if o.get('abar', 2) == 1: a('s_barrier')
        st_ld = lambda: self.bl(st, 2, vT + 4, rWS, T1, 0, 'sc1', 'st')
        def st_fetch():
            st_ld()
            if o.get('abar', 2) == 2: a('s_barrier')
            if o.get('xtlate', 0): ld_xt()
            S(T3, 'hp*4096 + w*512')
            a(f'v_add_u32 v{vT+6}, s{T3}, v{vL16}')
            S('m0', 'w*512 + L_WPHI')
            a('s_mov_b32 exec_hi, 0')
            a(f'global_load_lds_dwordx4 v{vT+6}, {sr(pWPHI, 2)}'); vm.issue()
            a('s_mov_b32 exec_hi, -1')
            w_next(wb[1])
        self.try_load(lambda: self.bl(mq, 4, vT, rWS, T0, 0, 'sc1'), [mq + 1, mq + 3], vT + 3, st_fetch)
        self.stamp('modok')
        a(f'ds_write2_b32 v{vT+1}, v{mq}, v{mq+2} offset0:0 offset1:8'); lg.issue()
        if not o.get('xtlate', 0):
            for i in range(8): self.unpack(xs + 2 * i, xs + 2 * i + 1, xr + i)
        self.barrier()
        mp = V.alloc(16); hp = V.alloc(8)
        for i in (2, 3, 0, 1): self.r128(mp + 4 * i, vT + 2, (i >> 1) * 2048 + (i & 1) * 16, i >> 1)
        w_next(wb[2])
        self.finish_load('st', st_ld, [st + 1], None)
        if o.get('xtlate', 0):
            vm.wait('xt')
            for i in range(8): self.unpack(xs + 2 * i, xs + 2 * i + 1, xr + i)
        self.stamp('statok')
        self.unpack(st + 1, st, st)
        a(f'v_rcp_f32 v{st}, v{st}')
        for i in E2: self.pk('add', xs + i, xs + i, st + 1, bc=(1,), neg=(1,))
        S(T0, '(((rt*16 + cb)*4 + (w & 3))*2 + kh)*2048 + HF')
        va(vT + 4, [(0, 4, 16), (4, 1, 1024), (5, 1, 512)])
        lg.wait(1); self.sum8(mp + 8)
        self.round1(mp + 8)
        lg.wait(0); self.sum8(mp)
        a(f'v_add_f32 v{mp+8}, 1.0, v{mp+8}')
        self.round2(mp + 8, mp)
        PKM = o.get('pkm', 1)
        if PKM:
            mb = V.alloc(32)
            S(T3, 'w*256 + L_MB'); va(vT, [(0, 4, 4), (5, 1, 64)], T3); va(vT + 1, [(5, 1, 64)], T3)
            a(f'ds_write2_b32 v{vT}, v{mp+8}, v{mp} offset0:0 offset1:32'); lg.issue()
            for q in range(8): self.r128(mb + 4 * q, vT + 1, (q >> 2) * 128 + (q & 3) * 16, ('mb', q))
        for h in range(2):
            rg = range(8 * h, 8 * h + 8)
            self.round_list([xs + i for i in rg])
            for i in range(8 * h, 8 * h + 8, 2): self.pk('mul', xs + i, xs + i, st, bc=(1,))
            self.round_list([xs + i for i in rg])
        for h in range(2):
            rg = range(8 * h, 8 * h + 8)
            if PKM:
                lg.wait(('mb', 2 * h + 1))
                for i in range(8 * h, 8 * h + 8, 2): self.pk('mul', xs + i, xs + i, mb + i)
            else:
                for i in rg: self.dpp('v_mul_f32', xs + i, mp + 8, xs + i, f'row_newbcast:{i}')
            self.round_list([xs + i for i in rg])
            if PKM:
                lg.wait(('mb', 4 + 2 * h + 1))
                for i in range(8 * h, 8 * h + 8, 2): self.pk('add', xs + i, xs + i, mb + 16 + i)
            else:
                for i in rg: self.dpp('v_add_f32', xs + i, mp, xs + i, f'row_newbcast:{i}')
            for i in range(4 * h, 4 * h + 4): a(f'v_cvt_pk_bf16_f32 v{hp+i}, v{xs+2*i}, v{xs+2*i+1}')
            self.bs(hp + 4 * h, 4, vT + 4, rWS, T0, 256 * h, 'sc1', 'hs')
        if PKM: V.release(mb, 32)
        self.stamp('hst')
        w_next(wb[3])
        va(vB, [(5, 1, 2080), (2, 2, 128), (3, 1, 64), (0, 2, 8)])
        va(vB + 1, [(4, 1, 1056)])
        va(vB + 2, [(3, 1, 128)])
        a(f"""v_add_u32 v{vB}, v{vB}, v{vB+1}
        v_sub_u32 v{vB+1}, v{vB}, v{vB+2}
        v_add_u32 v{vB+1}, 64, v{vB+1}""")
        for q in (1, 2):
            for h in range(2): a(f'v_add_u32 v{vB+2*q+h}, {2*q*SLOT}, v{vB+h}')
        S(T1, 'kh*2048 + L_WPHI')
        va(vT, [(2, 2, 64), (4, 1, 32), (0, 2, 8), (5, 1, 512)], T1)
        va(vT + 1, [(0, 3, 4096), (3, 1, 128 * 4096)] if HL else [(0, 2, 8 * 4096), (2, 2, 4096)])
        S(T0, ('rt*32768' if HL else '((rt >> 3)*4 + (rt & 7)*32)*4096') + ' + (cb >> 1)*64 + (cb & 1)*4 + INB')
        va(vT + 2, [(4, 1, 64), (5, 1, 16)]); va(vWo, [(0, 3, 16)])
        a(f'v_xor_b32 v{vWo}, v{vWo}, v{vT+2}'); va(vT + 2, [(3, 3, 2048)]); a(f'v_add_u32 v{vWo}, v{vWo}, v{vT+2}')
        S(T1, '(w & 2)*32'); va(vT + 2, [(4, 1, 32)], T1); va(vFG, [(0, 3, 16)])
        a(f'v_xor_b32 v{vFG}, v{vFG}, v{vT+2}'); va(vT + 2, [(3, 3, 7168)]); a(f'v_add_u32 v{vFG}, v{vFG}, v{vT+2}')
        S(T1, '(w & 1)*128')
        va(vT + 2, [(5, 1, 64)], T1); va(vFD, [(0, 5, 16), (5, 1, 2048)])
        a(f'v_xor_b32 v{vFD}, v{vFD}, v{vT+2}')
        S(sFG, '(kq*8 + w)*(32*7168) + fs*128'); S(sFD, '(fs*8 + w)*16384 + kq*512')
        a(f"""s_cmp_ge_u32 s{sJ}, 28
        s_cselect_b32 s{rWG+2}, 0, s{rWG+2}
        s_cselect_b32 s{rWU+2}, 0, s{rWU+2}
        s_cselect_b32 s{rWD+2}, 0, s{rWD+2}""")
        vm.wait('hs')
        a('s_barrier')
        self.push(vT + 1, T0, 16, vT + 2, 'L_PB')
        self.stamp('hpub')
        V.release(xs, 16); V.release(mp, 16); V.release(hp, 8); V.release(st, 4); V.release(mq, 4); V.release(vTk, 2)
        w_next(wb[4])
        for s in range(2):
            for u in range(2): self.tr(wphi + 4 * s + 2 * u, vT, s * 1024 + u * 256)
        AD, LOOK, LASTB = o['AD'], o.get('LOOK', 6), o['LASTB']
        accs = V.alloc(96)
        big = V.alloc(76)
        Ar, Br = big, big + 4 * AD
        assert 4 * AD + 4 * (LOOK + 1) <= 76
        S(T2, '(r1*64 + w)*4096 + HF')
        S(T0, '(w & 3)*4096 + L_XF'); a(f'v_add_u32 v{vXF}, s{T0}, v{vL16}')
        vXW = V.alloc(); vVW = V.alloc()
        va(vXW, [(0, 4, 16), (5, 1, 512), (4, 1, 8)], T0)
        S(T0, '(w & 3)*1024 + L_V'); va(vVW, [(0, 4, 32), (4, 2, 8)], T0)
        S(T0, '(w & 3)*1024 + kh*16384 + L_PHK'); va(vPW, [(0, 5, 32), (5, 1, 16)], T0)
        fq = [(m, i) for m in range(3) for i in range(4)]
        freg = []
        def f_src(m, i, back=0, T0=T0):
            if m < 2: S(T0, 'fg + q', q=i * 8 * 7168 - back * 4 * 32 * 7168)
            else: S(T0, 'fd + q', q=i * 4096 - back * 4 * 16384)
            return (vFG, (rWG, rWU)[m]) if m < 2 else (vFD, rWD)
        def f_lds(m, i): return (L_GU + m * 32768 if m < 2 else L_DN) + i * 1024
        def ffn_reg(n):
            for _ in range(n):
                m, i = fq.pop(0)
                for back in range(2):
                    v, r = f_src(m, i, back)
                    self.bl(big + 8 * len(freg) + 4 * back, 4, v, r, T0, 0, o.get('ntffn', 'nt'), 'ffn')
                freg.append((m, i))
        def ffn_dma(n, T0=T0):
            for _ in range(n):
                m, i = fq.pop(0)
                if o.get('nofd'): continue
                v, r = f_src(m, i, 0, T0)
                S('m0', 'w1k*4 + q', q=f_lds(m, i))
                self.dma(v, r, T0, 0, o.get('ntffn', 'nt'), 'gu' if m < 2 else 'dn')
        S(sWB, 'w*16384' if D2 else '(rot*4 + w)*16384'); S(sWO2, '(j >> 4)*1048576 + cb*128'); S(sW1K, 'w*1024')
        def wo_dma(it, back=0, T0=T0):
            S(T0, '(((wb + q) & 0xfffff) ^ (rot*65536)) + (wo2 ^ h)' if D2 else '((wb + q) & 0xfffff) + (wo2 ^ h)', q=(8 * it - 4 * back) * 16384, h=(it >> 3) << 20)
            S('m0', 'w1k + q', q=WO_H0 + it * 8192 - 4096 * back)
            self.dma(vWo, rWO, T0, 0, '', 'wo')
        self.inbox(0, 2, work=lambda: w_next(wb[5]), pipe=o.get('pipeB', 0))
        assert len(wq) % 3 == 0 and 30 <= len(wq) <= (45, 36, 36, 42)[o.get('wxor', 1)]
        NPU = 16 - len(wq) // 3
        vm.wait(('W', (0, 2, 3, 1)[o.get('wxor', 1)]))
        a('s_barrier')
        self.stamp('hok')
        a(f"""s_cmp_ge_u32 s{sWAVE}, 4
        s_cbranch_scc1 L_HELP
        s_setprio 2""")
        q_hok = list(vm.q)
        if 'pad' in o:
            a('.p2align 6')
            for _ in range(o['pad']): a('s_nop 0')
        def a_load(sg):
            if sg % 4 == 0: S(T3, '((u0 + n) & q)*16384 + T2', n=sg // 4, q=o.get('amask', 15))
            self.bl(Ar + 4 * (sg % AD), 4, vL16, rWS, T3, (sg % 4) * 1024, o.get('amod', 'sc1'), ('A', sg))
        CORD = [(1, 2), (1, 3), (1, 0), (1, 1)] + [(t, ct) for t in (0, 2) for ct in range(4)]
        WEV = o.get('wev', 2); NB = LOOK + 1
        def b_read(n, q):
            st_, c = divmod(n, 12); t, ct = CORD[c]
            slot = (st_ >> 1) % 6
            off = (slot & 1) * SLOT + t * SEC + (st_ & 1) * 4160 + (ct & 1) * 32 + q * 512
            self.tr(Br + 4 * (n % NB) + 2 * q, vB + 2 * (slot >> 1) + (ct >> 1), off, ('B', n))
        nxt = 0
        def a_more(lim):
            nonlocal nxt
            while nxt < min(lim, 64): a_load(nxt); nxt += 1
        a_more(2)
        for n in range(LOOK):
            for q in range(2): b_read(n, q)
        a_more(o.get('A0', 4))
        b14 = False
        for n in range(384):
            st_, c = divmod(n, 12); t, ct = CORD[c]
            if n % WEV == 0: lg.wait(('B', min(n + WEV - 1, 383)))
            for th in range(2):
                if c == 0: vm.wait(('A', 2 * st_ + (th if st_ < 2 or not o.get('vw1', 1) else 1)))
                d = accs + 32 * t + 16 * (ct >> 1) + 8 * (ct & 1) + 4 * th
                a(f'v_mfma_f32_16x16x32_bf16 {vr(d, 4)}, {vr(Br + 4*(n % NB), 4)}, {vr(Ar + 4*((2*st_ + th) % AD), 4)}, ' + ('0' if st_ == 0 else vr(d, 4)))
                if n + LOOK < 384:
                    if th == 0 and (n + LOOK) % 24 == 0 and (n + LOOK) // 24 <= LASTB: a('s_barrier')
                    b_read(n + LOOK, th)
            if c in o.get('aat', (0, 3, 6, 9)): a_more(min(nxt + 1, 2 * st_ + AD))
            if nxt == 64 and not b14 and (n + LOOK) // 24 >= 13 and (n + LOOK) % 24:
                b14 = True; a('s_barrier')
        self.stamp('gemm1')
        aq, ak, av = accs, accs + 32, accs + 64
        def cvt8(d, s_, swap=True):
            for c in range(2):
                for th in range(2):
                    for ip in range(2): a(f'v_cvt_pk_bf16_f32 v{d + 4*c + 2*th + ip}, v{s_ + 8*c + 4*th + 2*ip}, v{s_ + 8*c + 4*th + 2*ip + 1}')
            if swap:
                for c in range(2):
                    for ip in range(2): a(f'v_permlane16_swap_b32 v{d + 4*c + ip}, v{d + 4*c + 2 + ip}')
        def put8(addr, d, off, oc_, ot):
            for c in range(2):
                for th in range(2): self.dw('ds_write_b64', addr, d + 4 * c + 2 * th, 2, off + c * oc_ + th * ot)
        cvt8(vv, ak + 16, False)
        put8(vXW, vv, 0, 1024, 256)
        cvt8(fr, ak)
        self.barrier()
        a('s_setprio 0')
        pp = ak; ee = ak + 16
        def phi_logits(src):
            a(f'v_mfma_f32_32x32x16_bf16 {vr(pp, 16)}, {vr(wphi, 4)}, {vr(src, 4)}, 0')
            a(f'v_mfma_f32_32x32x16_bf16 {vr(pp, 16)}, {vr(wphi + 4, 4)}, {vr(src + 4, 4)}, {vr(pp, 16)}')
        phi_logits(fr)
        for h in range(2):
            cvt8(vv if h == 0 else vq, av + 16 * h, False)
            put8(vVW, vv if h == 0 else vq, h * 8192, 4096, 512)
        cvt8(fr, aq + 16, False)
        put8(vXW, fr, 2048, 1024, 256)
        cvt8(vq, aq)
        a('s_branch L_JOIN')
        a('L_HELP:')
        vm.q = [('W', 1)] * len(q_hok) if o.get('wxor', 1) == 1 else list(q_hok); lg.reset()
        m2w = accs; m2c = accs + 32; g4 = accs + 48
        def w_unit(n):
            for wexpr in ('w - 4', 'w'):
                w_base(n, wexpr)
                for t in range(3):
                    w_slot(n, t)
                    if o.get('pace', 0) and n >= 6: a(f's_sleep {o["pace"]}')
        for n in range(NPU, 6): w_unit(n)
        S(T0, '((j & 3)*4 + w - 4)*128' if HL else '((x & 3)*4 + w - 4)*128')
        va(vCo, [(3, 3, 16)], T0)
        va(vWM, [(3, 3, 8 * 12288), (0, 3, 16)])
        S(T4, 'T0*6144 + (((j >> 2) & 3)*16 + x*2 + (j >> 4))*128 + 4096' if HL else 'T0*6144 + (j*2 + (x >> 2))*128 + 4096')
        a(f'global_load_dwordx4 {vr(m2c + 8, 4)}, v{vCo}, {sr(pC, 2)}'); vm.issue('m2c')
        m2l = list(range(8)); wol = [9, 10, 11, 12]; pwl = list(range(1, 8)); sil = list(range(8))
        m2ops = self.gemv_ops([m2w + 4 * i for i in range(8)], [m2c + i for i in range(8)], acc, vT, vT + 1, False)
        m2pos = 0
        m2q = accs; wr1 = accs + 8; vM2 = accs + 9
        ld_m2 = lambda: [self.bl(m2q + 4 * q, 4, vM2, rWS, T5, q * 1024, 'sc1', 'm2q') for q in range(2)]
        def m2_final():
            self.finish_load('m2q', ld_m2, [m2q + 1, m2q + 3, m2q + 5, m2q + 7], vT)
            q0, q1, q2, q3 = m2q, m2q + 1, m2q + 2, m2q + 3
            S(T0, '(w & 3)*128 + L_MT'); va(vT, [(0, 5, 4)], T0)
            S(T1, 'w & 3')
            a(f"""v_add_f32 v{q0}, v{m2q}, v{m2q+4}
            v_add_f32 v{q1}, v{m2q+2}, v{m2q+6}
            v_add_f32 v{q2}, v{m2q}, v{m2q+4}""".replace(f'v_add_f32 v{q2}, v{m2q}, v{m2q+4}', f'v_mov_b32 v{q2}, v{q0}'))
            a(f"""v_mov_b32 v{q3}, v{q1}
            s_cmp_eq_u32 s{T1}, 2
            s_cselect_b32 s{T2}, 1.0, 0
            v_permlane32_swap_b32 v{q0}, v{q2}
            v_permlane32_swap_b32 v{q1}, v{q3}""")
            self.pk('add', q0, q0, q2)
            self.round2(q0, q1)
            a(f"""v_add_f32 v{q0}, s{T2}, v{q0}
            v_add_f32 v{q1}, s{T2}, v{q1}
            v_cvt_pk_bf16_f32 v{q2}, v{q0}, v{q1}""")
            self.dw('ds_write_b32', vT, q2, 1)
            a('s_cbranch_scc0 L_NOG')
            g0, g1, gh, gl = m2q + 4, m2q + 5, m2q + 6, m2q + 7
            self.unpack(q0, q1, q2); self.unpack(g0, g1, wr1)
            self.pk('mul', g0, g0, q0)
            a(f'v_cvt_pk_bf16_f32 v{gh}, v{g0}, v{g1}')
            self.unpack(q0, q1, gh)
            self.pk('add', q0, g0, q0, neg=(1,))
            a(f"""v_cvt_pk_bf16_f32 v{gl}, v{q0}, v{q1}
            v_add_f32 v{q0}, v{g0}, v{g1}
            ds_write2_b32 v{vT}, v{gh}, v{gl} offset0:64 offset1:96
            ds_write_b32 v{vT}, v{wr1} offset:512""")
            for ctl in ('quad_perm:[1,0,3,2]', 'quad_perm:[2,3,0,1]', 'row_half_mirror', 'row_ror:8'): self.dpp('v_add_f32', q0, q0, q0, ctl)
            S(T0, '(rt*16 + cb)*8 + GR')
            a(f"""v_mov_b32 v{q2}, v{q0}
            v_mov_b32 v{q1}, s{sTAG}
            v_permlane16_swap_b32 v{q0}, v{q2}
            v_add_f32 v{q0}, v{q0}, v{q2}
            s_mov_b64 exec, 1""")
            self.bs(q0, 2, vZ, rWS, T0, 0, 'sc1', count=False)
            a("""s_mov_b64 exec, -1
        L_NOG:""")
        def act(op, k):
            nonlocal m2pos
            kind, n = op[0], int(op[1:] or 1)
            if kind == 'm':
                for _ in range(2 * n):
                    i = m2l.pop(0)
                    self.bl(m2w + 4 * i, 4, vWM, rWM, T4, 0, o.get('ntm2', 'nt'), ('m2', i))
                    if m2l: S(T4, 'T4 + 12288')
            elif kind == 'f': ffn_reg(n)
            elif kind == 'o':
                assert k >= 13
                for _ in range(n):
                    it = wol.pop(0); wo_dma(it, 1); wo_dma(it)
            elif kind == 'p':
                a('s_waitcnt lgkmcnt(0)')
                for q in range(n):
                    b = pwl.pop(0)
                    a(f's_load_dword s{sPL + 2*q}, {sr(rWS, 2)}, s{sINB} offset:{b * 512} glc')
                    a(f's_load_dword s{sPL + 2*q + 1}, {sr(rWS, 2)}, s{sINB} offset:{b * 512 - 256} glc')
            elif kind == 'q':
                S(T0, 'fs*8192 + (w - 4)*256 + HGR')
                a('s_waitcnt lgkmcnt(0)')
                for q in range(4): a(f's_load_dword s{sPL + q}, {sr(rWS, 2)}, s{T0} offset:{q * 2048 + 1024 + 252} glc')
            elif kind == 'z':
                for i in range(4): a(f'v_mov_b32 v{g4+i}, -1')
                if n == 1:
                    for we in ('w - 4', 'w'):
                        S(T0, f'(((r1*4 + (w & 3))*16 + hp)*2 + (({we}) >> 2))*2048 + OF')
                        for q in range(2): self.bs(g4, 4, vL16, rWS, T0, 1024 * q, 'sc1', 'pzo')
                else:
                    for we in ('w - 4', 'w'):
                        S(T0, f'((hp*8 + {we})*32 + r1)*1024 + KVP'); S(T1, 'T0 + 16384')
                        self.bs(g4, 4, vL16, rWS, T0, 0, 'sc1', 'pz'); self.bs(g4, 4, vL16, rWS, T1, 0, 'sc1', 'pz')
                    S(T0, '((hp*8 + w - 4)*16 + r1)*64 + ZP')
                    va(vT + 2, [(0, 2, 16), (2, 1, 4096)])
                    a('s_mov_b64 exec, 0xff')
                    self.bs(g4, 4, vT + 2, rWS, T0, 0, 'sc1', 'pz')
                    a('s_mov_b64 exec, -1')
            elif kind == 'M':
                va(vM2, [(0, 5, 16), (5, 1, 512)])
                S(T5, '((w & 3)*16 + cb)*2048 + MODP2')
                S(T0, 'cb*128'); va(vT, [(0, 5, 4)], T0)
                a(f'global_load_dword v{wr1}, v{vT}, {sr(pWR, 2)}'); vm.issue('m2q')
                ld_m2()
            elif kind == 'N': m2_final()
            elif kind == 'K':
                S(T0, '(hp*16 + r1)*1024 + (w & 3)*256 + KIN'); S(T1, 'hp*128 + CFL')
                a(f'v_lshlrev_b32 v{vWM}, 7, v{vL}')
                a('s_mov_b64 exec, 3')
                self.bl(vWM, 1, vWM, rWS, T0, 0, '')
                self.bl(vCo, 1, vZ, rWS, T1, 0, '')
                a('s_mov_b64 exec, -1')
            elif kind == 'h':
                S(T0, '(fs*4 + kq)*2048 + (w & 1)*1024 + HGR'); S(T1, '(rt*16 + cb)*2048 + (w & 1)*1024 + STAT')
                if TL: a(f's_bitcmp1_b32 s{sWAVE}, 1'); a(f's_cselect_b32 s{T0}, s{T1}, s{T0}')
                self.bl(m2c + 12, 4, vL16, rWS, T0, 0, '')
            elif kind == 's':
                vm.wait('m2c')
                for _ in range(n):
                    i = sil.pop(0)
                    a(f'v_and_b32 v{m2c+i}, s{sMASK}, v{m2c+8+i//2}' if i & 1 else f'v_lshlrev_b32 v{m2c+i}, 16, v{m2c+8+i//2}')
                    self.silu(m2c + i, vT + (i & 1))
            elif kind == 'g':
                assert not sil
                for _ in range(n):
                    vm.wait(('m2', m2pos // 16))
                    for s_ in m2ops[m2pos:m2pos + 16]: a(s_)
                    m2pos += 16
            elif kind == 'r':
                assert m2pos == 128
                for s_ in m2ops[128:]: a(s_)
                self.dw('ds_write_b32', vGA, acc, 1, L_M2 - SCR)
                lg.wait_all()
            elif kind == 'P':
                a(f"""s_cmp_lg_u32 s{sWAVE}, 4
                s_cbranch_scc1 L_M2F
                ds_read_b128 {vr(acc, 4)}, v{vL32S} offset:{L_M2 - SCR}""")
                S(T0, '((((j >> 2) & 3)*16 + x*2 + (j >> 4))*4 + (j & 3))*512 + MODP2' if HL else '((j*2 + (x >> 2))*4 + (x & 3))*512 + MODP2')
                a(f"""s_waitcnt lgkmcnt(0)
                v_add_f32 v{acc}, v{acc}, v{acc+1}
                v_add_f32 v{acc+2}, v{acc+2}, v{acc+3}
                v_mov_b32 v{acc+1}, s{sTAG}
                v_add_f32 v{acc}, v{acc}, v{acc+2}""")
                self.bs(acc, 2, vL8, rWS, T0, 0, 'sc1', count=False)
                a('L_M2F:')
            else: raise ValueError(op)
        sched = {int(k): v.split() for k, v in o['sched'].items()}
        for op in sched.get(0, []): act(op, 0)
        wsch = {int(k): v for k, v in o.get('wsch', {k: 6 for k in range(2, 12)}).items()}
        hq = [(n, we, t) for n in range(6, 16) for we in ('w - 4', 'w') for t in range(3)]
        assert sum(wsch.values()) == 60
        for k in range(1, LASTB + 1):
            if k == 14: a('s_barrier')
            assert not any(n <= (15 if k == LASTB else k) for n, _, _ in hq)
            for kk in (range(k, 16) if k == LASTB else [k + 1 if k < 3 and o.get('wxor', 1) == 3 else k]): vm.wait(('W', kk))
            if o.get('ust'): self.stamp(f'w{k}')
            a('s_barrier')
            if o.get('ust'): self.stamp(f'u{k}')
            ops = sched.get(k, []) if k < 14 else []
            for op in ops:
                if op[0] == '<': act(op[1:], k)
            for _ in range(wsch.get(k, 0)):
                n, we, t = hq.pop(0)
                assert n - 4 <= k
                if t == 0: w_base(n, we)
                w_slot(n, t)
            for op in ops:
                if op[0] != '<': act(op, k)
        assert LASTB in (13, 14) and AD <= 12
        if LASTB == 13: a('s_barrier')
        for op in sched.get(14, []): act(op, 14)
        self.barrier()
        for q in range(2): self.r128(fr + 4 * q, vXF, q * 1024)
        lg.wait_all()
        phi_logits(fr)
        for op in sched.get(15, []): act(op, 15)
        assert (not m2l or o.get('nom2')) and not wol
        assert 8 * len(freg) <= 76
        a('L_JOIN:')
        pzq = list(vm.q)
        vm.reset(); lg.q = [None]
        V.release(vXW); V.release(vVW); V.release(vB, 6); V.release(vWd); V.release(vGA); V.release(vL32S); V.release(acc, 8)
        V.release(big + 8 * len(freg), 76 - 8 * len(freg))
        ph = aq; fx = aq + 16
        vPA = V.alloc(); vPB = V.alloc()
        self.softmax_pm(pp, ee, ph, vT)
        for fb in range(4): self.dw('ds_write_b128', vPW, ph + 4 * fb, 4, fb * 4096)
        S(T0, 'w*4096 + L_PHK'); a(f'v_add_u32 v{vPA}, s{T0}, v{vL8}')
        S(T0, 'kh*8192 + L_V'); a(f'v_add_u32 v{vPB}, s{T0}, v{vL8}')
        ones = fr
        for i in range(4): a(f'v_mov_b32 v{ones+i}, 0x3f803f80')
        S(T0, '((hp*8 + w)*32 + r1)*1024 + KVP'); S(T2, 'T0 + 16384')
        S(T3, '(hp*8 + w)*1024 + ZP'); S(T1, 'r1*64 + T3')
        self.stamp('ksm')
        self.barrier()
        self.stamp('phik')
        tb7 = V.alloc(8); tb4 = tb7 + 4
        S(T5, 'kh*64 + L_MT'); va(tb7 + 3, [(0, 3, 4), (5, 1, 32)], T5)
        for q, t in ((0, 0), (1, 4), (2, 5), (4, 1), (5, 2), (6, 3), (7, 6)): self.dr('ds_read_b32', tb7 + q, 1, tb7 + 3, t * 128)
        fragA = [ee + 4 * i for i in range(4)]
        fragB = [av + 4 * i for i in range(8)]
        kvd = vv; zd = fr + 4
        def kvm(u):
            lg.wait(('kv', u))
            for db in range(2):
                a(f'v_mfma_f32_16x16x32_bf16 {vr(kvd + 4*db, 4)}, {vr(fragA[u], 4)}, {vr(fragB[2*u+db], 4)}, ' + ('0' if u == 0 else vr(kvd + 4*db, 4)))
            a(f'v_mfma_f32_16x16x32_bf16 {vr(zd, 4)}, {vr(fragA[u], 4)}, {vr(ones, 4)}, ' + ('0' if u == 0 else vr(zd, 4)))
        for ts in range(4):
            self.tr(fragA[ts], vPA, ts * 1024, ('kv', ts)); self.tr(fragA[ts] + 2, vPA, ts * 1024 + 512, ('kv', ts))
            for db in range(2):
                self.tr(fragB[2*ts+db], vPB, db * 4096 + ts * 1024, ('kv', ts)); self.tr(fragB[2*ts+db] + 2, vPB, db * 4096 + ts * 1024 + 512, ('kv', ts))
            if ts >= 2: kvm(ts - 2)
        va(vPW, [(0, 4, 8 * 4096)] if HL else [(0, 3, 32 * 4096), (3, 1, 4 * 4096)])
        S(T4, '(wg & q)*4096 + (r1 >> 1)*64 + (r1 & 1)*4 + INB + 512', q=0x87 if HL else 0x1b)
        kvm(2); kvm(3)
        a(f"""s_cmp_lt_u32 s{sWAVE}, 4
        s_cbranch_scc1 L_NOQX
        ds_read_b128 {vr(vq, 4)}, v{vXF} offset:2048
        ds_read_b128 {vr(vq + 4, 4)}, v{vXF} offset:3072
        L_NOQX:""")
        if 'pz' in pzq: a(f's_waitcnt vmcnt({pzq[::-1].index("pz")})')
        self.bs(kvd, 4, vL16, rWS, T0, 0, 'sc1', 'kvs')
        self.bs(kvd + 4, 4, vL16, rWS, T2, 0, 'sc1', 'kvs')
        a('s_mov_b32 exec_lo, 0x00010001')
        a('s_mov_b32 exec_hi, 0x00010001')
        self.bs(zd, 4, vL, rWS, T1, 0, 'sc1', 'kvs')
        a('s_mov_b64 exec, -1')
        lg.wait_all()
        phi_logits(vq)
        self.stamp('kvst')
        wl = [2, 3, 4, 5, 6, 7, 8, 13, 14, 15, 0, 1]
        kp = av; zz = av + 16; g4 = vv
        vKP = V.alloc()
        va(vKP, [(3, 3, 1024), (0, 3, 16)])
        va(vXF, [(0, 3, 16), (5, 1, 8)])
        wo1 = lambda: wo_dma(wl.pop(0), 0, T6)
        keep = a.items; a.items = []
        self.softmax_pm(pp, ee, ph, vv)
        qsm = a.items; a.items = keep
        qcost = [2 if it[1].is_trans or 'permlane' in it[1].mn else 1 for it in qsm]
        qtot = sum(qcost); qdone = [0]
        def q_slice(upto):
            while qsm and qdone[0] < qtot * upto / 100:
                a.items.append(qsm.pop(0)); qdone[0] += qcost.pop(0)
        qs = o.get('qs', (35, 85, 100))
        CL = o.get('cl', (0, 1)); assert CL[1]
        q_slice(qs[0])
        S(T5, 'hp*128 + CFL'); S(T1, 'r1*8 + T5')
        vCF = V.alloc(); cf = V.alloc()
        va(vCF, [(0, 4, 8)])
        vm.wait('kvs')
        a('s_barrier')
        if CL[0]:
            a(f"""s_cmp_eq_u32 s{sLOC}, 0
            s_cbranch_scc1 L_PCG
            s_cmp_lg_u32 s{sWAVE}, 0
            s_cbranch_scc1 L_PC
            v_mov_b32 v{cf}, s{sTAG}
            s_mov_b64 exec, 1""")
            self.bs(cf, 1, vZ, rWS, T1, 0, '', count=False)
            a("""s_mov_b64 exec, -1
            s_branch L_PC
            L_PCG:""")
        self.push(vPW, T4, 16, vPB, 'L_PC')
        self.stamp('kvpub')
        assert HL and not CL[0]
        self.bl(tb7 + 3, 1, vZ, rWS, '0', MARK, 'sc1', 'mk')
        S(T0, '(hp*16 + r1)*16384 + w*128 + KVP')
        S(T2, '(hp*16 + r1)*1024 + w*128 + KIN'); S(T4, 'T4 + 6*512')
        c1_work = lambda: (self.weave(lambda: q_slice(qs[1]), [wo1] * o['wowin'][0]), self.stamp('cw'))
        if CL[0]:
            ld_cf = lambda: self.bl(cf, 1, vCF, rWS, T5, 0, 'sc1', 'cf')
            if o.get('cfpre', 1): ld_cf()
            c1_work()
            a(f"""s_cmp_lg_u32 s{sLOC}, 0
            s_cbranch_scc1 L_C1L""")
            q_ = list(vm.q)
            self.inbox(1, 2)
            a("""s_barrier
            s_branch L_C1D
            L_C1L:""")
            if o.get('cfpre', 1): self.finish_load('cf', ld_cf, [cf])
            else: self.poll(ld_cf, [cf])
            vm.q = q_
            a('L_C1D:')
        else:
            self.inbox(1, 2, work=c1_work)
            a('s_barrier')
        V.release(vCF); V.release(vWM); V.release(vCo)
        self.stamp('kvok')
        S(T5, 'T0 + 8192')
        ld_kp = lambda: (self.bl(kp, 4, vKP, rWS, T0, 0, 'sc1', 'kp'), self.bl(kp + 4, 4, vKP, rWS, T5, 0, 'sc1', 'kp'))
        ld_z = lambda: self.bl(zz, 4, vL16, rWS, T3, 0, 'sc1', 'z')
        ld_kp(); ld_z()
        S(T1, 'w*32 + L_ZF'); va(vT + 2, [(0, 2, 8), (5, 1, 4)], T1)
        S(T1, 'w*1024 + L_KVF'); va(vT + 1, [(0, 4, 16), (5, 1, 512), (4, 1, 8)], T1)
        S(T1, 'kh*128 + L_ZF'); va(vT + 3, [(5, 1, 16)], T1)
        S(T1, 'kh*4096 + L_KVF'); a(f'v_add_u32 v{vPA}, s{T1}, v{vL16}')
        def red4(r, ctls):
            for i in range(2): a(f'v_permlane32_swap_b32 v{r+i}, v{r+2+i}')
            self.pk('add', r, r, r + 2)
            for ctl in ctls:
                for i in range(2): self.dpp('v_add_f32', r + i, r + i, r + i, ctl)
            for i in range(2): a(f'v_mov_b32 v{r+2+i}, v{r+i}')
            for i in range(2): a(f'v_permlane16_swap_b32 v{r+i}, v{r+2+i}')
            self.pk('add', r, r, r + 2)
            a(f'v_cvt_pk_bf16_f32 v{r}, v{r}, v{r+1}')
        self.weave(lambda: q_slice(qs[2]), [wo1] * o['wowin'][1])
        vm.wait('kp')
        a(f'v_cmp_eq_u32 vcc, s{sTAG}, v{tb7+3}')
        a(f's_cmp_eq_u32 vcc_lo, 0')
        a(f's_cselect_b32 s{sLOC}, {o.get("local", 1)}, 0')
        self.pk('add', kp, kp, kp + 4); self.pk('add', kp + 2, kp + 2, kp + 6)
        red4(kp, ['row_ror:8'])
        a(f"""v_mov_b32 v{kp+1}, s{sTAG}
        s_mov_b32 exec_lo, 0xff
        s_mov_b32 exec_hi, 0xff""")
        kc = V.alloc(4)
        if CL[1]:
            self.bs2([(kp, 2, vXF, T2, 0)])
            a(f"""s_mov_b64 exec, -1
            v_mov_b32 v{kc}, v{kp}
            v_mov_b32 v{kc+1}, v{kp+1}
            v_add_u32 v{kc+2}, s{T2}, v{vXF}
            s_cbranch_scc1 L_PC2""")
        else:
            self.bs(kp, 2, vXF, rWS, T2, 0, 'sc1', count=False)
            a('s_mov_b64 exec, -1')
        a('s_barrier')
        self.push(vPW, T4, 16, vPB, 'L_PC2')
        self.stamp('c2pub')
        kf = av; zf = av + 16; num = pp; den = ee
        k2 = av + 8
        S(T0, '(hp*8 + w)*2048 + KIN')
        ld_k2 = lambda: [self.bl(k2 + 4 * q, 4, vL16, rWS, T0, q * 1024, 'sc1') for q in range(2)]
        def z_work():
            vm.wait('z')
            red4(zz, ['row_ror:4', 'row_ror:8'])
            self.dw('ds_write_b32', vT + 2, zz, 1)
            q_slice(100)
            self.stamp('c2w')
        ZP_ = o.get('zpre', 1)
        if ZP_: z_work()
        a(f"""s_cmp_lg_u32 s{sLOC}, 0
        s_cbranch_scc1 L_C2L""")
        l_ = list(lg.q)
        self.inbox(7, 2)
        lg.q = l_
        a('L_C2L:')
        self.try_load(ld_k2, [k2 + 1, k2 + 3, k2 + 5, k2 + 7], vT, None if ZP_ else z_work)
        for db in range(2):
            a(f'ds_write2_b32 v{vT+1}, v{k2+4*db}, v{k2+4*db+2} offset0:{64*db} offset1:{64*db+1}'); lg.issue()
        self.barrier()
        self.stamp('kvred')
        for fb in range(4): self.r128(zf + 4 * fb, vT + 3, fb * 32, ('zf', fb))
        for fb in range(4): self.r128(kf + 4 * fb, vPA, fb * 1024, ('kf', fb))
        for _ in range(o['wowin'][2]): wo1()
        S(T0, '(((r1*4 + (w & 3))*16 + hp)*2 + kh)*2048 + OF')
        va(vT + 4, [(0, 4, 16), (4, 1, 1024), (5, 1, 256)])
        for fb in range(4):
            lg.wait(('zf', fb))
            a(f'v_mfma_f32_32x32x16_bf16 {vr(den, 16)}, {vr(zf + 4*fb, 4)}, {vr(ph + 4*fb, 4)}, ' + ('0' if fb == 0 else vr(den, 16)))
        for fb in range(4):
            lg.wait(('kf', fb))
            a(f'v_mfma_f32_32x32x16_bf16 {vr(num, 16)}, {vr(kf + 4*fb, 4)}, {vr(ph + 4*fb, 4)}, ' + ('0' if fb == 0 else vr(num, 16)))
        self.round1(den)
        a(f'v_add_f32 v{den}, 0x358637bd, v{den}')
        self.round1(den)
        a(f'v_rcp_f32 v{den}, v{den}')
        for h in range(2):
            self.round_list([num + i for i in range(8 * h, 8 * h + 8)])
            for i in range(8 * h, 8 * h + 8, 2): self.pk('mul', num + i, num + i, den, bc=(1,))
            for i in range(4 * h, 4 * h + 4): a(f'v_cvt_pk_bf16_f32 v{vq+i}, v{num+2*i}, v{num+2*i+1}')
            self.bs(vq + 4 * h, 4, vT + 4, rWS, T0, 512 * h, 'sc1', 'os')
        self.stamp('ost')
        for r, n in ((fr, 8), (vv, 8), (vPW, 1), (vXF, 1), (vPA, 1), (vPB, 1), (vKP, 1), (accs, 96), (wphi, 8)):
            V.release(r, n)
        assert GS == 0
        vG16 = vL16
        vBa = V.alloc(4); xf = V.alloc(16)
        S(T4, 'kh*(65536 + 64) + WO_H0')
        va(vBa, [(5, 1, 2048), (4, 1, 512), (2, 2, 128), (3, 1, 64), (1, 1, 32), (4, 1, 16), (0, 1, 8)])
        a(f'v_xor_b32 v{vBa}, s{T4}, v{vBa}')
        for q, x_ in ((1, 16), (2, 64), (3, 80)): a(f'v_xor_b32 v{vBa+q}, {x_}, v{vBa}')
        assert WO_H1 == WO_H0 + 65536
        va(vT + 1, LCB)
        S(T2, ('((r1 & 1)*128 + (r1 >> 1))*4096' if TL else '((r1 >> 2)*2 + (r1 & 3)*64)*4096') + (' + ((hp >> 3)*4 + (hp & 3))*64 + (((hp >> 2) ^ p) & 1)*4 + INB + 1024' if D2 else ' + (hp >> 1)*64 + (hp & 1)*4 + INB + 1024'), p=o.get('dflip', 1))
        gaf = V.alloc(16); gp = V.alloc(16); gr = V.alloc(2); vGR = V.alloc(); cn = V.alloc(2)
        def expand(dst, t):
            for i in range(8):
                self.dpp('v_mul_u32_u24', dst + 2 * i, t, cn, f'row_newbcast:{i}')
                self.dpp('v_and_b32', dst + 2 * i + 1, t, cn + 1, f'row_newbcast:{i}')
        a(f"""v_mov_b32 v{cn}, 0x10000
        v_mov_b32 v{cn+1}, s{sMASK}""")
        for i in range(8): self.unpack(xf + 2 * i, xf + 2 * i + 1, xr + i)
        expand(gaf, tb7)
        S(T6, '(gtb*2 + kf)*32768 + OF')
        va(vGR, [(0, 4, 8)])
        vm.wait('os')
        self.barrier()
        self.push(vT + 1, T2, 16, vT + 2, 'L_PD')
        self.stamp('opub')
        def c_clean():
            if CL[1]:
                a("""s_mov_b32 exec_lo, 0xff
                s_mov_b32 exec_hi, 0xff""")
                self.bs(kc, 2, kc + 2, rWS, '0', 0, 'sc1')
                a('s_mov_b64 exec, -1')
            if CL[0]:
                S(T0, 'hp*128 + r1*8 + CFL')
                a(f"""s_cmp_lg_u32 s{sWAVE}, 0
                s_cbranch_scc1 L_NOCC
                v_mov_b32 v{cf}, s{sTAG}
                s_mov_b64 exec, 1""")
                self.bs(cf, 1, vZ, rWS, T0, 0, 'sc1', count=False)
                a("""s_mov_b64 exec, -1
                L_NOCC:""")
        if o.get('ccat', 3) == 0: c_clean()
        V.release(vq, 8)
        late_wo = bool(wl)
        while wl: wo_dma(wl.pop(0))
        V.release(vWo)
        MS = o.get('msum', 1)
        def d_work():
            for k in range(2):
                for i in range(8): a(f'v_mov_b32_dpp v{gp + 8*k + i}, v{tb7 + 1 + k} row_newbcast:{i} row_mask:0xf bank_mask:0xf')
            if MS:
                a(f"""v_and_b32 v{vT}, 3, v{vL}
                v_cmp_eq_u32 vcc, 1, v{vT}
                v_cmp_eq_u32 {sr(sCMP, 2)}, 0, v{vT}
                v_mov_b32 v{vT+1}, 0x3f803f80""")
                for i in range(8): a(f'v_cndmask_b32 v{gp+i}, v{gp+8+i}, v{gp+i}, vcc')
                for i in range(8): a(f'v_cndmask_b32 v{gp+i}, v{gp+i}, v{vT+1}, {sr(sCMP, 2)}')
            if o.get('stouch', TL):
                S(T2, '(rt*16 + cb)*2048 + w*256 + STAT')
                a(f'v_lshlrev_b32 v{gr}, 7, v{vL}')
                a('s_mov_b64 exec, 3')
                self.bl(gr, 1, gr, rWS, T2, 0, '')
                a('s_mov_b64 exec, -1')
            if late_wo or o.get('stouch', TL): vm.wait_all()
            self.stamp('dw')
        AD2 = o['AD2']
        LK2 = o.get('LK2', 4); NB2 = LK2 + 1
        accA = V.alloc(16); accB = V.alloc(16); Ar = V.alloc(4 * AD2); Br = V.alloc(4 * NB2)
        def b2_read(n, q):
            st_, c = divmod(n, 4)
            self.tr(Br + 4 * (n % NB2) + 2 * q, vBa + (c ^ 2), st_ * 4096 + q * 1024, ('B', n))
        def a2_load(s):
            if s % 2 == 0: S(T7, '(rot ^ n)*2048 + T6' if D2 else '((rot + n) & 15)*2048 + T6', n=(s // 2) & o.get('a2mask', 15))
            self.bl(Ar + 4 * (s % AD2), 4, vL16, rWS, T7, (s % 2) * 1024, o.get('a2mod', 'sc1'), ('A', s))
        self.inbox(2, 2, [0] if D2 else None, work=d_work)
        a('s_barrier')
        self.stamp('ook')
        if o.get('prio2', 1):
            a(f"""s_cmp_lt_u32 s{sWAVE}, 4
            s_cbranch_scc1 L_P2
            s_setprio {o.get('prio2', 1)}
            L_P2:""")
        nx2 = 0
        def a2_more(lim):
            nonlocal nx2
            while nx2 < min(lim, 32):
                if nx2 == 16 and D2:
                    a(f"""s_cmp_eq_u32 s{sPL + 1}, s{sTAG}
                    s_cbranch_scc1 L_D2""")
                    l_ = list(lg.q)
                    self.inbox(2, 2, [1])
                    lg.q = l_
                    a("""L_D2:
                    s_barrier""")
                a2_load(nx2); nx2 += 1
                if nx2 == 32:
                    ld_gr()
                    if o.get('ccat', 3) == 1: c_clean()
        S(T5, 'rt*128 + GR')
        ld_gr = lambda: self.bl(gr, 2, vGR, rWS, T5, 0, 'sc1', 'gr')
        a2_more(2)
        for n in range(LK2):
            for q in range(2): b2_read(n, q)
        a2_more(o.get('A20', 4))
        for n in range(64):
            st_, c = divmod(n, 4)
            if n % o.get('wev2', 1) == 0: lg.wait(('B', min(n + o.get('wev2', 1) - 1, 63)))
            for th in range(2):
                if c == 0: vm.wait(('A', 2 * st_ + (th if st_ == 0 or not o.get('vw2', 1) else 1)))
                d = (accB, accA)[c >> 1] + 8 * (c & 1) + 4 * th
                a(f'v_mfma_f32_16x16x32_bf16 {vr(d, 4)}, {vr(Br + 4*(n % NB2), 4)}, {vr(Ar + 4*((2*st_ + th) % AD2), 4)}, ' + ('0' if st_ == 0 else vr(d, 4)))
                if n + LK2 < 64: b2_read(n + LK2, th)
            if n == o.get('prio2n', 18): a('s_setprio 0')
            if c in o.get('a2at', (0, 1)): a2_more(min(nx2 + 1, 2 * st_ + AD2))
            if c == 3 and AD2 == 4: a2_more(2 * st_ + 6)
        self.stamp('gemm2')
        if o.get('prio2', 1): a('s_setprio 0')
        S(T0, 'w*4096')
        a(f'v_add_u32 v{vT}, s{T0}, v{vG16}')
        for q in range(4): self.dw('ds_write_b128', vT, accB + 4 * q, 4, L_EXCH - GS + q * 1024)
        for i in range(8): a(f'v_permlane16_swap_b32 v{accA + 8*(i >> 2) + (i & 3)}, v{accA + 8*(i >> 2) + 4 + (i & 3)}')
        S(T0, '(w ^ 4)*4096'); va(vT + 1, [(0, 4, 16), (4, 1, 1024), (5, 1, 512)], T0)
        S(T0, 'kh*2048 + (w & 3)*512 + L_SP'); va(vT + 2, [(0, 5, 16), (5, 1, 8)], T0)
        S(T0, 'kh*64 + L_TB'); va(vT + 3, [(0, 3, 4), (5, 1, 32)], T0)
        vSG = V.alloc()
        S(T6, 'rt*32768 + w*256 + STAT'); va(vSG, [(0, 4, 16), (4, 2, 2048)])
        sm = Br; one = Br + 4
        a(f'v_mov_b32 v{one}, 0x3f803f80')
        fd = list(o['fdma']); assert sum(fd) == len(fq)
        self.stamp('exw')
        self.barrier()
        self.stamp('ex1')
        for q in range(4): self.r128(accB + 4 * q, vT + 1, L_EXCH - GS + (q >> 1) * 2048 + (q & 1) * 256, ('ex', q))
        ffn_dma(fd[0], T1)
        for h in range(2):
            for q in (2 * h, 2 * h + 1):
                lg.wait(('ex', q))
                self.pk('add', accA + 4 * q, accA + 4 * q, accB + 4 * q); self.pk('add', accA + 4 * q + 2, accA + 4 * q + 2, accB + 4 * q + 2)
            rg = range(8 * h, 8 * h + 8)
            self.round_list([accA + i for i in rg])
            for i in range(8 * h, 8 * h + 8, 2): self.pk('mul', accA + i, accA + i, gaf + i)
            self.round_list([accA + i for i in rg])
            for i in range(8 * h, 8 * h + 8, 2): self.pk('add', accA + i, accA + i, xf + i)
            for i in range(4 * h, 4 * h + 4): a(f'v_cvt_pk_bf16_f32 v{xr+i}, v{accA+2*i}, v{accA+2*i+1}')
        self.stamp('x1c')
        if MS:
            for t in range(2): a(f'v_mfma_f32_32x32x16_bf16 {vr(accB, 16)}, {vr(gp + 4*t, 4)}, {vr(xr + 4*t, 4)}, ' + ('0' if t == 0 else vr(accB, 16)))
            for i in range(8): a(f'v_dot2_f32_bf16 v{sm + (i & 1)}, v{xr+i}, v{xr+i}, ' + ('0' if i < 2 else f'v{sm + (i & 1)}'))
            a(f"""v_add_f32 v{sm+2}, v{sm}, v{sm+1}
            v_add_f32 v{sm}, v{sm}, v{sm+1}
            v_permlane32_swap_b32 v{sm}, v{sm+2}
            s_mov_b32 exec_lo, 0
            v_add_f32 v{accB}, v{sm}, v{sm+2}
            v_mov_b32 v{accB+1}, v{accB+2}
            s_mov_b32 exec_lo, -1""")
            self.dw('ds_write_b64', vT + 2, accB, 2)
        else:
            for i in range(8):
                for d, b in ((sm, one), (sm + 2, xr + i), (sm + 1, gp + i), (sm + 3, gp + 8 + i)):
                    a(f'v_dot2_f32_bf16 v{d}, v{xr+i}, v{b}, ' + ('0' if i == 0 else f'v{d}'))
            a(f"""v_permlane32_swap_b32 v{sm}, v{sm+2}
            v_permlane32_swap_b32 v{sm+1}, v{sm+3}""")
            self.pk('add', sm, sm, sm + 2)
            self.dw('ds_write_b64', vT + 2, sm, 2)
        for q in range(4): self.dw('ds_write_b32', vT + 3, tb4 + q, 1, 128 * q)
        a(f'v_add_u32 v{vT}, {L_SP}, v{vL16}')
        va(vT + 1, LCB)
        S(T0, '(rt*16 + cb)*2048 + STAT')
        S(T3, ('((rt & 1)*128 + (rt >> 1))*4096' if TL else '((rt & 3)*64 + (rt >> 2)*2)*4096') + ' + (cb >> 1)*64 + (cb & 1)*4 + INB + 1536')
        self.barrier()
        self.stamp('x1st')
        a(f"""s_cmp_lg_u32 s{sWAVE}, 0
        s_cbranch_scc1 L_PE""")
        for q in range(4): a(f'ds_read_b128 {vr(accB + 4*q, 4)}, v{vT} offset:{(q & 1) * 2048 + (q >> 1) * 1024}')
        for h in range(2):
            b = accB + 8 * h
            a(f's_waitcnt lgkmcnt({2 - 2*h})')
            self.pk('add', b, b, b + 4); self.pk('add', b + 2, b + 2, b + 6)
            a(f"""v_add_f32 v{b+1}, v{b+1}, v{b+3}
            v_mov_b32 v{b+3}, s{sTAG}""")
        if TL:
            self.bs2([(accB + 8 * h, 4, vL16, T0, 1024 * h) for h in range(2)])
            a('s_cbranch_scc1 L_PE')
        else:
            for h in range(2): self.bs(accB + 8 * h, 4, vL16, rWS, T0, 1024 * h, 'sc1', count=False)
        a('s_mov_b64 exec, 0xffff')
        self.bs(accB + 3, 1, vT + 1, rWS, T3, 0, 'sc1', count=False)
        a("""s_mov_b64 exec, -1
        L_PE:""")
        self.stamp('x1pub')
        if o.get('ccat', 3) == 2: c_clean()
        V.release(accA, 16); V.release(accB, 16); V.release(Ar, 4 * AD2); V.release(Br, 4 * NB2); V.release(vBa, 4); V.release(xf, 16); V.release(gaf, 16); V.release(gp, 16)
        x1 = V.alloc(16); hh = V.alloc(16); mf = V.alloc(32); sg = V.alloc(16); op = V.alloc(8)
        st = V.alloc(2); vRid = V.alloc(); ck = V.alloc(4); vOT = V.alloc()
        ct = V.alloc(12, 4)
        def e_work():
            S(T3, '(w & 3)*(32*144) + kh*64'); va(vOT, [(0, 5, 144), (5, 1, 32)], T3)
            for q in range(2): self.dw('ds_write_b128', vOT, xr + 4 * q, 4, L_XT + 16 * q)
            a(f'v_add_u32 v{vOT}, {L_OT}, v{vOT}')
            S(T2, '4094 - (rt*8 + w)*32'); va(vRid, [(0, 4, 2)]); a(f'v_sub_u32 v{vRid}, s{T2}, v{vRid}')
            S(T2, 'w*128 + L_ST2'); va(vT + 4, [(0, 4, 8)], T2)
            S(T2, '(w & 3)*256 + L_ST2'); va(vT + 6, [(0, 5, 8)], T2)
            va(vT + 7, [(0, 3, 8)], None, L_K1)
            self.finish_load('gr', ld_gr, [gr + 1])
            for ctl in ('quad_perm:[1,0,3,2]', 'quad_perm:[2,3,0,1]', 'row_half_mirror', 'row_ror:8'): self.dpp('v_add_f32', gr, gr, gr, ctl)
            a(f"""s_cmp_lg_u32 s{sWAVE}, 1
            s_cbranch_scc1 L_NOCT""")
            va(vT + 1, [(0, 4, 8)], None, L_TB)
            a(f"""ds_read_b64 {vr(ct + 2, 2)}, v{vT+1}
            ds_read_b64 {vr(ct + 6, 2)}, v{vT+1} offset:128
            ds_read_b64 {vr(ct + 8, 2)}, v{vT+1} offset:384
            s_waitcnt lgkmcnt(0)""")
            for b in (ct, ct + 4):
                self.unpack(b, b + 1, b + 2); self.unpack(b + 2, b + 3, b + 3)
            a('L_NOCT:')
        def f_pre(part):
            if part == 0:
                a(f"""s_cmp_lt_u32 s{sWAVE}, 4
                s_cbranch_scc1 L_NOST""")
                S(T0, '(w - 4)*4096 + L_GU')
                a(f'v_add_u32 v{vT}, s{T0}, v{vL16}')
                a(f'v_add_u32 v{vT+3}, {L_DN - L_GU}, v{vT}')
                for n, (m, i) in enumerate(freg):
                    for back in range(2):
                        self.dw('ds_write_b128', vT if m < 2 else vT + 3, big + 8 * n + 4 * back, 4, f_lds(m, i) - (L_GU if m < 2 else L_DN) + (1 - back) * 16384)
                a('L_NOST:')
                return
            for i in range(8): self.unpack(x1 + 2 * i, x1 + 2 * i + 1, xr + i)
            expand(mf, tb4); expand(mf + 16, tb4 + 1)
        if TL:
            a(f"""s_cmp_lg_u32 s{sLOC}, 0
            s_cbranch_scc1 L_ELOC""")
            self.inbox(3, 2)
            a("""s_barrier
            L_ELOC:""")
        else:
            ffn_dma(fd[1])
            self.inbox(3, 2, work=lambda: (e_work(), f_pre(0)))
            a('s_barrier')
        self.stamp('x1ok')
        def ld_sg():
            for q in range(4):
                S(T0, 'T6 + q', q=q * 8192)
                self.bl(sg + 4 * q, 4, vSG, rWS, T0, 0, 'sc1')
        self.try_load(ld_sg, [sg + 3, sg + 7, sg + 11, sg + 15], vT, e_work if TL else lambda: f_pre(1))
        V.release(vSG)
        self.stamp('x1ld')
        if o.get('htouch', 1):
            S(T2, '(fs*4 + kq)*2048 + w*256 + HGR')
            vDum = V.alloc()
            a(f'v_lshlrev_b32 v{vDum}, 7, v{vL}')
            a('s_mov_b64 exec, 3')
            self.bl(vDum, 1, vDum, rWS, T2, 0, '')
            a('s_mov_b64 exec, -1')
        ffn_dma(fd[2], T2)
        A_, B_, C_, U_ = sg, sg + 1, sg + 2, sg + 3
        self.pk('add', sg, sg, sg + 4); self.pk('add', sg + 8, sg + 8, sg + 12)
        a(f"""v_add_f32 v{C_}, v{C_}, v{sg+6}
        v_add_f32 v{sg+10}, v{sg+10}, v{sg+14}""")
        self.pk('add', sg, sg, sg + 8)
        a(f"""v_add_f32 v{C_}, v{C_}, v{sg+10}
        v_mov_b32 v{U_}, v{B_}
        v_permlane32_swap_b32 v{A_}, v{C_}
        v_permlane32_swap_b32 v{B_}, v{U_}
        v_add_f32 v{A_}, v{A_}, v{C_}
        v_add_f32 v{B_}, v{B_}, v{U_}
        v_permlane16_swap_b32 v{A_}, v{B_}
        v_add_f32 v{U_}, v{A_}, v{B_}
        v_add_f32 v{A_}, v{A_}, v{B_}
        v_permlane16_swap_b32 v{A_}, v{U_}
        v_mul_f32 v{C_}, 0x3a800000, v{A_}
        v_mul_f32 v{A_}, 0x3a800000, v{A_}
        v_permlane32_swap_b32 v{A_}, v{C_}""")
        self.stat_math(A_, C_, st, st + 1)
        S(T0, 'w*8 + L_K1')
        a(f"""v_rcp_f32 v{st+1}, v{st+1}
        v_fma_f32 v{U_}, -v{st}, v{gr}, v{U_}
        v_mov_b32 v{vT+1}, s{T0}
        v_mul_f32 v{U_}, v{U_}, v{st+1}""")
        self.dw('ds_write_b64', vT + 4, st, 2)
        a(f"""s_movk_i32 s{T0}, 0xfff
        v_ashrrev_i32 v{A_}, 31, v{U_}
        v_or_b32 v{A_}, 0x80000000, v{A_}
        v_xor_b32 v{A_}, v{A_}, v{U_}
        v_bfi_b32 v{ck}, s{T0}, v{vRid}, v{A_}""")
        def top2(ctls, first):
            for n, ctl in enumerate(ctls):
                if n == 0 and first:
                    self.dpp('v_min_u32', ck + 1, ck, ck, ctl); self.dpp('v_max_u32', ck, ck, ck, ctl)
                    continue
                self.dpp('v_min_u32', ck + 2, ck, ck, ctl); self.dpp('v_max_u32', ck + 1, ck + 1, ck + 1, ctl); self.dpp('v_max_u32', ck, ck, ck, ctl)
                a(f'v_max_u32 v{ck+1}, v{ck+1}, v{ck+2}')
        top2(('row_ror:8', 'row_ror:4', 'row_ror:2', 'row_ror:1'), True)
        self.dw('ds_write_b64', vT + 1, ck, 2)
        va(vT + 2, [(0, 1, 128 * 4096), (1, 3, 4096)] if TL else [(0, 2, 64 * 4096), (2, 2, 2 * 4096)])
        S(T1, ('cb*32768' if TL else '((cb & 7)*8 + (cb >> 3))*4096') + ' + (rt >> 1)*64 + (rt & 1)*16 + INB + 2560')
        self.barrier()
        self.stamp('ln2')
        self.dr('ds_read_b64', ck, 2, vT + 7, 0, 'k'); self.dr('ds_read_b64', st, 2, vT + 6, 0, 's')
        lg.wait('k')
        top2(('quad_perm:[1,0,3,2]', 'quad_perm:[2,3,0,1]', 'row_half_mirror'), False)
        a(f"""v_or_b32 v{ck+2}, 1, v{ck+1}
        v_mov_b32 v{ck+1}, s{sTAG}
        v_mov_b32 v{ck+3}, s{sTAG}
        s_cmp_lg_u32 s{sWAVE}, 0
        s_cbranch_scc1 L_NOF
        s_mov_b64 exec, 0xffff""")
        self.bs(ck, 4, vT + 2, rWS, T1, 0, 'sc1', count=False)
        a("""s_mov_b64 exec, -1
        L_NOF:""")
        self.stamp('Fpub')
        a(f"""s_cmp_lg_u32 s{sWAVE}, 1
        s_cbranch_scc1 L_NOC
        v_and_b32 v{vT}, 16, v{vL}
        v_cmp_eq_u32 vcc, 0, v{vT}
        v_cndmask_b32 v{vT}, v{ck+2}, v{ck}, vcc
        v_not_b32 v{vT}, v{vT}
        v_bfe_u32 v{vT}, v{vT}, 1, 7
        v_lshlrev_b32 v{vT+2}, 3, v{vT}
        v_mul_u32_u24 v{vT}, 144, v{vT}
        v_add_u32 v{vT+2}, {L_ST2}, v{vT+2}""")
        va(vT + 1, [(0, 4, 8)])
        cx, cs, ch = sg, sg + 4, sg + 8
        a(f"""v_add_u32 v{vT}, v{vT}, v{vT+1}
        ds_read_b64 {vr(cs, 2)}, v{vT+2}
        ds_read_b64 {vr(cx, 2)}, v{vT} offset:{L_XT}""")
        va(vT + 2, [(0, 4, 16), (4, 1, 16384), (5, 1, 4096)])
        va(vT + 3, [(4, 1, 16384)])
        S(T0, 'rt*32768 + cb*256 + CAND'); S(T3, 'rt*32768 + cb*8 + 8192 + CAND')
        a(f"""v_mov_b32 v{cx+3}, s{sTAG}
        s_waitcnt lgkmcnt(0)""")
        self.unpack(ch, ch + 1, cx); self.unpack(ch + 2, ch + 3, cx + 1)
        for i in (0, 2): self.pk('add', ch + i, ch + i, cs, bc=(1,), neg=(1,))
        self.round_list([ch + i for i in range(4)])
        for i in (0, 2): self.pk('mul', ch + i, ch + i, cs + 1, bc=(1,))
        self.round_list([ch + i for i in range(4)])
        for i in (0, 2): self.pk('mul', ch + i, ch + i, ct + 4 + i)
        self.round_list([ch + i for i in range(4)])
        for i in (0, 2): self.pk('add', ch + i, ch + i, ct + i)
        a(f"""v_mov_b32 v{cx+2}, v{cx+1}
        v_mov_b32 v{cx+1}, s{sTAG}
        s_mov_b32 exec_hi, 0
        v_cvt_pk_bf16_f32 v{cx}, v{ch}, v{ch+1}
        v_cvt_pk_bf16_f32 v{cx+2}, v{ch+2}, v{ch+3}
        s_mov_b32 exec_hi, -1
        v_dot2_f32_bf16 v{cs}, v{cx}, v{ct+8}, 0
        v_mov_b32 v{cs+1}, s{sTAG}
        v_dot2_f32_bf16 v{cs}, v{cx+2}, v{ct+9}, v{cs}""")
        self.bs(cx, 4, vT + 2, rWS, T0, 0, 'sc1', count=False)
        for ctl in ('quad_perm:[1,0,3,2]', 'quad_perm:[2,3,0,1]', 'row_half_mirror', 'row_ror:8'): self.dpp('v_add_f32', cs, cs, cs, ctl)
        a('s_mov_b64 exec, 0x10001')
        self.bs(cs, 2, vT + 3, rWS, T3, 0, 'sc1', count=False)
        a("""s_mov_b64 exec, -1
        L_NOC:""")
        V.release(ct, 12)
        def ln2_tile():
            for i in E2: self.pk('add', hh + i, x1 + i, st, bc=(1,), neg=(1,))
            self.round_list([hh + i for i in range(16)])
            for i in E2: self.pk('mul', hh + i, hh + i, st + 1, bc=(1,))
            self.round_list([hh + i for i in range(16)])
            for i in E2: self.pk('mul', hh + i, hh + i, mf + 16 + i)
            self.round_list([hh + i for i in range(16)])
            for i in E2: self.pk('add', hh + i, hh + i, mf + i)
            self.round_list([hh + i for i in range(16)])
        lg.wait('s')
        self.stamp('cand')
        if o.get('ccat', 3) == 3: c_clean()
        V.release(kc, 4); V.release(cf)
        ffn_dma(fd[3])
        uu = V.alloc(16); vGr = V.alloc(); vDr = V.alloc(); vXs = V.alloc()
        def out_calc():
            expand(mf, tb4 + 2)
            for i in E2: self.pk('mul', hh + i, hh + i, mf + i)
            self.round_list([hh + i for i in range(16)])
            for i in E2: self.pk('add', hh + i, hh + i, x1 + i)
            for i in range(8): a(f'v_cvt_pk_bf16_f32 v{op+i}, v{hh+2*i}, v{hh+2*i+1}')
            for q in range(2): self.dw('ds_write_b128', vOT, op + 4 * q, 4, 16 * q)
            S(T3, 'w*(16*144) + L_OT'); va(vOT, [(3, 3, 144), (0, 3, 16)], T3)
        oc = o.get('ocat', 2 if TL else 1); l2 = o.get('l2at', 1 if TL else 0)
        def f_work():
            if TL: f_pre(0); f_pre(1)
            if l2 == 0: ln2_tile()
            if oc == 0: out_calc()
            S(T0, '(w >> 2)*32768 + (w & 3)*32 + L_GU')
            va(vGr, [(4, 2, 8192), (2, 2, 128), (3, 2, 32), (0, 2, 8)]); a(f'v_xor_b32 v{vGr}, s{T0}, v{vGr}')
            S(T0, 'w*64')
            va(vDr, [(2, 1, 512), (3, 1, 4096), (5, 1, 2048), (2, 2, 64), (4, 1, 32), (0, 2, 8)])
            a(f'v_xor_b32 v{vDr}, s{T0}, v{vDr}'); a(f'v_add_u32 v{vDr}, {L_DN}, v{vDr}')
            va(vXs, [(0, 3, 16), (4, 2, 128)], None, L_XS)
            S(T0, 'w*16 + L_K2'); a(f'v_mov_b32 v{vT}, s{T0}')
            va(vT + 1, [(0, 3, 16)], None, L_K2)
            a(f'v_and_b32 v{vT+4}, 8, v{vL}')
            a(f'v_cmp_eq_u32 {sr(sCMP, 2)}, 0, v{vT+4}')
            self.stamp('oc')
        self.inbox(5, 8, (1, 3, 5, 7), f_work)
        P = sPL
        a(f"""s_min_u32 s{P+1}, s{P}, s{P+4}
        s_max_u32 s{P}, s{P}, s{P+4}
        s_max_u32 s{P+3}, s{P+2}, s{P+6}
        s_min_u32 s{P+2}, s{P+2}, s{P+6}
        s_max_u32 s{P+4}, s{P+1}, s{P+3}
        s_min_u32 s{P+1}, s{P+1}, s{P+3}
        v_mov_b32 v{uu}, s{P}
        v_mov_b32 v{uu+3}, s{P+2}
        v_mov_b32 v{uu+1}, s{P+4}
        v_mov_b32 v{uu+2}, s{P+1}""")
        self.dw('ds_write_b128', vT, uu, 4)
        self.stamp('F2p')
        V.release(big, 8 * len(freg)); V.release(gr, 2); V.release(vGR); V.release(vRid)
        ffn = V.alloc(48); ga_ = V.alloc(16); gb_ = V.alloc(16)
        vm.wait('gu')
        self.barrier()
        self.stamp('F2')
        def gu_frags():
            for s in range(8):
                self.tr(ffn + 4 * s, vGr, s * 1024); self.tr(ffn + 4 * s + 2, vGr, s * 1024 + 512)
        a(f"""s_cmp_lt_u32 s{sWAVE}, 4
        s_cbranch_scc1 L_CSEL""")
        fq0, vq0 = list(fq), list(vm.q)
        if not o.get('f4late', 1): ffn_dma(fd[4])
        gu_frags()
        if l2 == 1: ln2_tile()
        if oc == 1: out_calc()
        if o.get('f4late', 1): ffn_dma(fd[4])
        a("""s_branch L_CSELD
        L_CSEL:""")
        lg.reset(); fq[:] = fq0; vm.q = vq0
        self.r128(uu, vT + 1)
        S(T0, 'w*512 + L_XS'); a(f'v_add_u32 v{vT+2}, s{T0}, v{vL8}')
        S(T0, 'w*4 + L_K3'); a(f'v_mov_b32 v{vT+3}, s{T0}')
        lg.wait_all()
        c4 = uu + 4
        for n, ctl in enumerate(('quad_perm:[1,0,3,2]', 'quad_perm:[2,3,0,1]', 'row_half_mirror')):
            for i in range(4): self.dpp('v_max_u32', c4 + i, uu + 3 - i, uu + i, ctl)
            if n == 2: break
            a(f"""v_max_u32 v{c4+4}, v{c4}, v{c4+2}
            v_max_u32 v{c4+5}, v{c4+1}, v{c4+3}
            v_min_u32 v{c4+6}, v{c4}, v{c4+2}
            v_min_u32 v{c4+7}, v{c4+1}, v{c4+3}
            v_max_u32 v{uu}, v{c4+4}, v{c4+5}
            v_min_u32 v{uu+1}, v{c4+4}, v{c4+5}
            v_max_u32 v{uu+2}, v{c4+6}, v{c4+7}
            v_min_u32 v{uu+3}, v{c4+6}, v{c4+7}""")
        for i in range(4): a(f'v_readfirstlane_b32 s{P+i}, v{c4+i}')
        a(f"""s_bitcmp1_b32 s{sWAVE}, 0
        s_cselect_b32 s{P}, s{P+1}, s{P}
        s_cselect_b32 s{P+2}, s{P+3}, s{P+2}
        s_bitcmp1_b32 s{sWAVE}, 1
        s_cselect_b32 s{P}, s{P+2}, s{P}
        s_and_b32 s{T2}, s{P}, 4095""")
        S(T0, '((15 - (T2 >> 8))*2 + (T2 & 1))*16384 + CAND'); S(T1, 'kq*1024 + T0'); S(T0, 'T0 + 8192')
        va(vT + 6, [(0, 4, 8)])
        def sel_work():
            self.stamp('sel')
            ffn_dma(fd[4], T3)
            gu_frags()
            if l2 == 1: ln2_tile()
            if oc == 1: out_calc()
            S(T2, 'T2*4 + w')
        self.try_load(lambda: (self.bl(uu + 4, 2, vT + 6, rWS, T0, 0, 'sc1'), self.bl(uu, 4, vL16, rWS, T1, 0, 'sc1')), [uu + 1, uu + 3, uu + 5], vT + 4, sel_work)
        a(f'ds_write2_b32 v{vT+2}, v{uu}, v{uu+2} offset0:0 offset1:1'); lg.issue()
        for ctl in ('quad_perm:[1,0,3,2]', 'quad_perm:[2,3,0,1]', 'row_half_mirror', 'row_ror:8'): self.dpp('v_add_f32', uu + 4, uu + 4, uu + 4, ctl)
        a(f"""v_cvt_pk_bf16_f32 v{uu+4}, 0, v{uu+4}
        v_ashrrev_i32 v{uu+5}, 31, v{uu+4}
        v_or_b32 v{uu+5}, 0x80000000, v{uu+5}
        v_xor_b32 v{uu+4}, v{uu+4}, v{uu+5}
        v_and_b32 v{uu+4}, s{sMASK}, v{uu+4}
        v_or_b32 v{uu+4}, s{T2}, v{uu+4}""")
        self.dw('ds_write_b32', vT + 3, uu + 4, 1)
        a('L_CSELD:')
        V.release(vFG); V.release(vFD)
        a(f'v_mov_b32 v{vT}, {L_K3}')
        va(vT + 4, [(0, 4, 16), (5, 1, 8)])
        S(T1, 'fs*8192 + HGR'); S(T7, '(kq*8 + w)*256 + T1')
        self.barrier()
        self.stamp('xsel')
        self.r128(uu, vT)
        lg.wait_all()
        a(f"""v_max_u32 v{uu+4}, v{uu}, v{uu+1}
        v_max_u32 v{uu+5}, v{uu+2}, v{uu+3}
        v_min_u32 v{uu+6}, v{uu}, v{uu+1}
        v_min_u32 v{uu+7}, v{uu+2}, v{uu+3}
        v_min_u32 v{uu+1}, v{uu+4}, v{uu+5}
        v_max_u32 v{uu}, v{uu+4}, v{uu+5}
        v_max3_u32 v{uu+1}, v{uu+1}, v{uu+6}, v{uu+7}
        v_cndmask_b32 v{vT}, v{uu+1}, v{uu}, {sr(sCMP, 2)}
        v_readfirstlane_b32 s{sK1}, v{uu}
        v_and_b32 v{vT}, 3, v{vT}
        v_readfirstlane_b32 s{sK2}, v{uu+1}
        v_lshl_add_u32 v{vT}, v{vT}, 9, v{vXs}""")
        self.r128(uu + 4, vT)
        if oc < 2:
            for q in range(2): self.r128(op + 4 * q, vOT, q * 8 * 144, 'ot')
        a(f"""s_bfe_u32 s{sROW0}, s{sK1}, {3 | (11 << 16)}
        s_bfe_u32 s{sROW1}, s{sK2}, {3 | (11 << 16)}
        s_sub_u32 s{sROW0}, 2047, s{sROW0}
        s_sub_u32 s{sROW1}, 2047, s{sROW1}
        s_waitcnt lgkmcnt({2 if oc < 2 else 0})""")
        gd = [ga_ + 4 * i for i in range(4)] + [gb_ + 4 * i for i in range(4)]
        for s in range(8):
            a(f'v_mfma_f32_16x16x32_bf16 {vr(gd[s], 4)}, {vr(uu + 4, 4)}, {vr(ffn + 4*s, 4)}, 0')
        p0, p1 = uu, uu + 2
        hk = V.alloc(4)
        for p, b in ((p0, 0), (p1, 4)):
            a(f'v_add_f32 v{p}, v{gd[b]}, v{gd[b+1]+1}')
            a(f'v_add_f32 v{p+1}, v{gd[b+2]+2}, v{gd[b+3]+3}')
        a(f"""v_add_f32 v{p0}, v{p0}, v{p0+1}
        v_add_f32 v{p1}, v{p1}, v{p1+1}
        v_mov_b32 v{p0+1}, s{sTAG}
        v_permlane16_swap_b32 v{p1}, v{p1+1}
        s_cmp_ge_u32 s{sJ}, 28
        s_cbranch_scc1 L_NOHP
        v_add_f32 v{p0}, v{p0}, v{p1+1}
        s_mov_b32 exec_lo, 0xffff
        s_mov_b32 exec_hi, 0xffff""")
        self.bs2([(p0, 2, vT + 4, T7, 0)])
        a(f"""s_mov_b64 exec, -1
        L_NOHP:
        v_mov_b32 v{hk}, v{p0}
        v_mov_b32 v{hk+1}, v{p0+1}
        v_add_u32 v{hk+2}, s{T7}, v{vT+4}""")
        self.stamp('Hpub')
        vOr = V.alloc(); vOa = V.alloc()
        def out_store():
            S(T0, 'rt*128 + w*16'); va(vOr, [(3, 3, 1)], T0)
            S(T2, 'T0*2048 + cb*128'); S(T3, 'T2 + 16384')
            va(vOa, [(3, 3, 2048), (0, 3, 16)])
            for q in range(2):
                if q: a(f'v_add_u32 v{vOr}, 8, v{vOr}')
                a(f"""v_cmp_ne_u32 vcc, s{sROW0}, v{vOr}
                v_cmp_ne_u32 {sr(sCMP, 2)}, s{sROW1}, v{vOr}
                s_and_b64 exec, vcc, {sr(sCMP, 2)}""")
                self.bs(op + 4 * q, 4, vOa, rOUT, (T2, T3)[q], 0, o.get('outmod', 'sc1'), count=False)
                a('s_mov_b64 exec, -1')
        lg.wait('ot')
        if o.get('outat', 1) == 0: assert oc < 2; out_store()
        fz = V.alloc(4)
        sFR, sFK, sFC0 = T4, T5, T6
        a(f"""s_bitcmp1_b32 s{sX if TL else sRT}, {1 if TL else 2}
        s_cselect_b32 s{sFR}, s{sROW1}, s{sROW0}
        s_cselect_b32 s{sFK}, s{sK2}, s{sK1}
        s_cmp_lg_u32 s{sWAVE}, 7
        s_cbranch_scc1 L_NOFZ
        s_cmp_lg_u32 s2, 0
        s_cbranch_scc1 L_NONON
        v_mov_b32 v{vT+2}, s{sTAG}
        s_mov_b64 exec, 1""")
        self.bs(vT + 2, 1, vZ, rWS, '0', 0, 'sc1', count=False)
        a(f"""s_mov_b64 exec, -1
        L_NONON:""")
        S(sFC0, '(x >> 2)*2 + (x & 1)' if TL else '(rt >> 3)*2 + (rt & 1)')
        S(T7, '(cb*8 + x)*(56*128) + GGR' if TL else '(cb*8 + (rt >> 2)*2 + (rt & 1))*(56*128) + GGR')
        S(sU, 'T4*2048 + cb*128 + T6*32')
        va(vT + 6, [(0, 3, 4)])
        S(T0, 'T6*32 + L_GB'); a(f'v_add_u32 v{vT+1}, s{T0}, v{vT+6}')
        a(f'ds_read_b32 v{fz+2}, v{vT+1}')
        S(sK1, '((T4 >> 7)*2 + ((T5 >> 2) & 1))*16384 + cb*256 + T6*64 + CAND'); S(sK2, 'k1 + 4096')
        va(vT + 7, [(0, 3, 8)])
        ld_fz = lambda: (self.bl(st, 2, vT + 7, rWS, sK1, 0, 'sc1'), self.bl(fz, 2, vT + 7, rWS, sK2, 0, 'sc1'))
        q_ = list(vm.q); ld_fz(); vm.q = q_
        a(f"""s_and_b32 s{T0}, s{sFK}, s{sMASK}
        s_ashr_i32 s{T2}, s{T0}, 31
        s_andn2_b32 s{T2}, 0x7fff0000, s{T2}
        s_or_b32 s{T2}, s{T2}, 0x80000000
        s_xor_b32 s{T0}, s{T0}, s{T2}
        v_mov_b32 v{fz+3}, s{T0}
        v_mul_f32 v{fz+3}, s{sL2E}, v{fz+3}
        v_exp_f32 v{fz+3}, -v{fz+3}
        v_add_f32 v{fz+3}, 1.0, v{fz+3}
        v_rcp_f32 v{fz+3}, v{fz+3}""")
        self.round1(fz + 3)
        a(f"""L_NOFZ:
        s_cmp_lt_u32 s{sJ}, 28
        s_cbranch_scc1 L_HSEC""")
        if oc == 2:
            out_calc()
            self.barrier()
            for q in range(2): self.r128(op + 4 * q, vOT, q * 8 * 144)
            lg.wait_all()
        a("""s_branch L_GSEC
        L_HSEC:""")
        a(f"""s_cmp_lt_u32 s{sWAVE}, 4
        s_cbranch_scc1 L_HW""")
        if oc == 2: out_calc()
        a("""s_branch L_NOH
        L_HW:""")
        S(T0, 'w*256 + T1')
        va(vT, [(4, 2, 2048), (0, 4, 16)])
        S(T2, 'w*32 + L_ACT'); va(vT + 1, [(5, 1, 128), (2, 1, 16), (1, 1, 8), (3, 1, 4), (0, 1, 2)], T2)
        a(f"""s_cmp_lg_u32 s{sLOC}, 0
        s_cbranch_scc1 L_HLOC""")
        self.spoll([(q, 1, T0, q * 2048 + 1024 + 252) for q in range(4)], range(4))
        a('L_HLOC:')
        self.stamp('Hpre')
        g, u = ga_, ga_ + 4
        self.try_load(lambda: [self.bl(ga_ + 4 * m, 4, vT, rWS, T0, m * 1024, 'sc1') for m in range(2)], [g + 1, g + 3, u + 1, u + 3], vT + 2, out_calc if oc == 2 else None)
        a(f"""v_permlane32_swap_b32 v{g}, v{g+2}
        v_permlane32_swap_b32 v{u}, v{u+2}
        v_add_f32 v{g}, v{g}, v{g+2}
        v_add_f32 v{u}, v{u}, v{u+2}
        v_mov_b32 v{g+2}, v{g}
        v_mov_b32 v{u+2}, v{u}
        v_permlane16_swap_b32 v{g}, v{g+2}
        v_permlane16_swap_b32 v{u}, v{u+2}
        v_add_f32 v{g}, v{g}, v{g+2}
        v_add_f32 v{u}, v{u}, v{u+2}""")
        self.round2(g, u)
        self.silu(g, vT + 2)
        a(f"""v_mul_f32 v{g}, v{g}, v{u}
        v_cvt_pk_bf16_f32 v{g}, v{g}, v{g}
        ds_write_b16 v{vT+1}, v{g}
        L_NOH:""")
        va(vT, [(2, 1, 128), (5, 1, 16)], None, L_ACT)
        va(vT + 1, [(4, 2, 56 * 128), (0, 4, 8)])
        va(vT + 2, [(0, 2, 4096)] if TL else [(0, 1, 64 * 4096), (1, 1, 2 * 4096)])
        S(T0, '(kq*8 + w)*(4*56*128) + fs*128 + GGR')
        S(T1, ('(kq*8 + w)*16384' if TL else '(((kq & 1)*4 + (w >> 1))*8 + (w & 1)*4 + (kq >> 1))*4096') + ' + x*64 + (j >> 2)*4 + INB + 3072')
        vm.wait_all()
        self.barrier()
        self.stamp('Hok')
        for s in range(4):
            self.r128(ga_ + 4 * s, vT, s * 32, ('ac', s))
            self.tr(ffn + 32 + 4 * s, vDr, s * 8192, ('ac', s)); self.tr(ffn + 32 + 4 * s + 2, vDr, s * 8192 + 1024, ('ac', s))
        for s in range(4):
            lg.wait(('ac', s))
            a(f'v_mfma_f32_32x32x16_bf16 {vr(gb_, 16)}, {vr(ga_ + 4*s, 4)}, {vr(ffn + 32 + 4*s, 4)}, ' + ('0' if s == 0 else vr(gb_, 16)))
        if oc == 2:
            for q in range(2): self.r128(op + 4 * q, vOT, q * 8 * 144)
        a(f'v_mov_b32 v{gb_+1}, s{sTAG}')
        self.bs(gb_, 2, vT + 1, rWS, T0, 0, 'sc1')
        a('s_mov_b64 exec, 15')
        self.bs(gb_ + 1, 1, vT + 2, rWS, T1, 0, 'sc1')
        a('s_mov_b64 exec, -1')
        self.stamp('Gpub')
        def hclean():
            a("""s_mov_b32 exec_lo, 0xffff
            s_mov_b32 exec_hi, 0xffff""")
            self.bs(hk, 2, hk + 2, rWS, '0', 0, 'sc1', count=False)
            a('s_mov_b64 exec, -1')
        if o.get('hclean', 3) == 1: hclean()
        lg.wait_all()
        a('L_GSEC:')
        if o.get('outat', 1) == 1: out_store()
        a(f"""s_cmp_lt_u32 s{sJ}, 16
        s_cbranch_scc1 L_GF""")
        if o.get('outat', 1) == 2: out_store()
        if o.get('hclean', 3) >= 2:
            a(f"""s_cmp_ge_u32 s{sJ}, 28
            s_cbranch_scc1 L_FIN
            s_waitcnt vmcnt(0)""")
            hclean()
        a("""s_branch L_FIN
        L_GF:""")
        self.inbox(6, 8, range(7))
        self.stamp('Gpre')
        a('s_barrier')
        if o.get('hclean', 3) == 2: hclean()
        if o.get('hclean', 3) == 3:
            a(f"""s_cmp_eq_u32 s{sWAVE}, 7
            s_cbranch_scc1 L_G7
            s_barrier""")
            if o.get('outat', 1) == 2: out_store()
            hclean()
            a("""s_branch L_FIN
            L_G7:""")
        a(f"""s_cmp_lg_u32 s{sWAVE}, 7
        s_cbranch_scc1 L_FIN""")
        S(T0, 'T7 + 4096')
        gg = [ga_ + 4 * i for i in range(4)] + [uu + 4 * i for i in range(3)]
        self.poll(lambda: [self.bl(gg[n], 4, vL16, rWS, (T7, T0)[n >> 2], (n & 3) * 1024, 'sc1') for n in range(7)],
                  [gg[n] + 1 + 2 * e for n in range(7) for e in range(2)], vT)
        self.finish_load(None, ld_fz, [st + 1, fz + 1], vT)
        self.stamp('Gok')
        if o.get('hclean', 3) == 3: a('s_barrier')
        y0, y1 = gg[0], gg[0] + 1
        for lo, hi in ((0, 1), (2, 3), (4, 5), (0, 2), (4, 6), (0, 4)):
            for e in (0, 2): a(f'v_add_f32 v{gg[lo]+e}, v{gg[lo]+e}, v{gg[hi]+e}')
        a(f'v_mov_b32 v{y1}, v{gg[0]+2}')
        for y in (y0, y1): self.dpp('v_add_f32', y, y, y, 'row_ror:8')
        for sw in ('v_permlane16_swap_b32', 'v_permlane32_swap_b32'):
            for y in (y0, y1): a(f'v_mov_b32 v{y+2}, v{y}')
            for y in (y0, y1): a(f'{sw} v{y}, v{y+2}')
            self.pk('add', y0, y0, y0 + 2)
        self.round2(y0, y1)
        self.pk('mul', y0, y0, fz + 3, bc=(1,))
        self.unpack(vT, vT + 1, st)
        self.round2(y0, y1)
        self.pk('add', y0, y0, vT)
        self.unpack(vT, vT + 1, fz + 2)
        self.round2(y0, y1)
        self.pk('mul', y0, y0, vT)
        self.unpack(vT, vT + 1, fz)
        self.round2(y0, y1)
        self.pk('add', y0, y0, vT)
        a(f'v_cvt_pk_bf16_f32 v{y0}, v{y0}, v{y1}')
        a('s_mov_b64 exec, 0xff')
        self.bs(y0, 1, vT + 6, rOUT, sU, 0, 'sc1')
        a('s_mov_b64 exec, -1')
        if o.get('outat', 1) == 2: out_store()
        if o.get('hclean', 3) == 3: hclean()
        a('L_FIN:')
        if o.get('exfil'):
            self.stamp('fin')
            a('s_waitcnt vmcnt(0)')
            self.stamp('finw')
            a(f'''s_lshl3_add_u32 s{T0}, s2, s{sWAVE}
            s_cmp_lg_u32 s{T0}, {o.get('exwho', 7)}
            s_cbranch_scc1 L_END
            v_readlane_b32 s{T0}, v255, 0
            v_readlane_b32 s{T1}, v255, 1
            v_readlane_b32 s{T2}, v255, 2
            s_sub_u32 s{T2}, s{T2}, s{T1}
            s_max_i32 s{T2}, s{T2}, 0
            s_min_u32 s{T2}, s{T2}, 10000
            s_mul_i32 s{T2}, s{T2}, 10
            s_add_u32 s{T2}, s{T2}, 6000
            L_PAD:
            s_memrealtime {sr(sTM, 2)}
            s_waitcnt lgkmcnt(0)
            s_sub_u32 s{T1}, s{sTM}, s{T0}
            s_cmp_lt_u32 s{T1}, s{T2}
            s_cbranch_scc1 L_PAD''')
        if o.get('padfin'):
            a(f'''s_lshl3_add_u32 s{T0}, s2, s{sWAVE}
            s_cmp_lg_u32 s{T0}, 7
            s_cbranch_scc1 L_END
            s_memrealtime {sr(sTM, 2)}
            s_waitcnt lgkmcnt(0)
            s_mov_b32 s{T0}, s{sTM}
            L_PAD2:
            s_memrealtime {sr(sTM, 2)}
            s_waitcnt lgkmcnt(0)
            s_sub_u32 s{T1}, s{sTM}, s{T0}
            s_cmp_lt_u32 s{T1}, {o['padfin']}
            s_cbranch_scc1 L_PAD2''')
        if self.prof:
            a('s_waitcnt vmcnt(0) lgkmcnt(0)')
            self.stamp('end')
            a(f's_memrealtime {sr(sTM, 2)}')
            a('s_waitcnt lgkmcnt(0)')
            a(f'v_writelane_b32 v255, s{sTM}, 61')
            S(T0, '(wg*8 + w)*256 + STAMPS')
            a(f'v_writelane_b32 v255, s{sSPIN}, 62')
            a(f'v_lshlrev_b32 v{vT+1}, 2, v{vL}')
            a(f'buffer_store_dword v255, v{vT+1}, {sr(rWS, 4)}, s{T0} offen')
            S(T0, 'T0 + 0x100000')
            a(f'buffer_store_dword v254, v{vT+1}, {sr(rWS, 4)}, s{T0} offen')
        a('L_END:')
        a('s_endpgm')
        return self

    def text(self):
        a = self.a
        npad = a.fix_hazards()
        errs = a.check_waits([NAME])
        for e in errs: print('WAITERR', e, file=sys.stderr)
        assert not errs
        hdr = open(os.path.join(os.path.dirname(os.path.abspath(__file__)), 'header.txt')).read()
        s = hdr + '; @launch grid=(256,1,1) block=(512,1,1) lds=163840\n'
        s += '.amdgcn_target "amdgcn-amd-amdhsa--gfx950"\n.text\n'
        s += f'.globl {NAME}\n.p2align 8\n.type {NAME},@function\n'
        body = a.text()
        import subprocess, tempfile
        with tempfile.TemporaryDirectory() as td:
            open(td + '/t.s', 'w').write('.amdgcn_target "amdgcn-amd-amdhsa--gfx950"\n.text\n' + body.replace('CODE_KB', '20480'))
            subprocess.run(['clang', '-x', 'assembler', '-target', 'amdgcn-amd-amdhsa', '-mcpu=gfx950', '-c', td + '/t.s', '-o', td + '/t.o'], check=True)
            subprocess.run(['llvm-objcopy', '-O', 'binary', '-j', '.text', td + '/t.o', td + '/t.bin'], check=True)
            size = os.path.getsize(td + '/t.bin')
        print('; code bytes', size, file=sys.stderr)
        s += body.replace('CODE_KB', str((size // 1024 + 1) * 1024))
        s += '.p2align 10\n.fill 768, 4, 0xbf800000\n'
        s += '.section .rodata,"a"\n' + kernel_desc(NAME, 256, 102)
        print(f'; vgpr hi {self.V.hi}, nops {npad}, instrs {sum(1 for k, _ in a.items if k == "ins")}', file=sys.stderr)
        return s


if __name__ == '__main__':
    import argparse, json
    ap = argparse.ArgumentParser()
    ap.add_argument('-o', default='/dev/stdout')
    ap.add_argument('--prof', action='store_true')
    ap.add_argument('--opts', default='{}')
    args = ap.parse_args()
    g = Gen(args.prof, json.loads(args.opts)).build()
    t = g.text()
    open(args.o, 'w').write(t)
    if args.prof: open(args.o + '.stamps', 'w').write(json.dumps(g.stnames))
```

```python
import sys, os
sys.path.insert(0, os.path.dirname(os.path.abspath(__file__)))
from asm import *

NAME = 'adaLN_cond__linear_kernel_hedgehog__moe_arch_mod__prompt_kernel'

NONCE = 0x0
CFL = 0x8000
MARK = 0x100
GR = 0x010000
MODP2 = 0x020000
SINB = 0x040000
AINB = 0x080000
INA = 0x200000
INB = 0x100000
HF = 0x400000
OF = 0x800000
STAT = 0xC00000
CAND = 0x2000000
HGR = 0x1400000
ZP = 0x1480000
GGR = 0x1500000
KVP = 0x1800000
KIN = 0x1C00000
STAMPS = 0x1600000
WS_BYTES = 268435456

SEC = 8320
SLOT = 3 * SEC
SCR = 6 * SLOT
L_A1 = SCR
L_M2 = SCR + 1024
L_ST = SCR + 2048
L_MP = SCR + 2560
L_WPHI = SCR + 6656
L_MB = SCR + 10752
L_XF = 147456
L_PHK = 0
L_V = 32768
WO_H0 = 32768
WO_H1 = 98304
GS = 0
L_KVF = GS
L_ZF = GS + 8192
L_EXCH = GS
L_MT = 139264
L_GU = 32768
L_DN = 98304
TS = 131072
L_SP = TS
L_ST2 = TS + 4096
L_K1 = TS + 5120
L_K2 = TS + 5184
L_K3 = TS + 5312
L_XS = TS + 5632
L_ACT = TS + 7680
L_TB = TS + 7936
L_GB = L_TB + 256
L_OT = TS + 8704
L_XT = GS

SPIN_LIMIT = 300000

sWAVE, sTAG, sSPIN, sMASK, sL2E = 3, 4, 5, 6, 7
sX, sJ, sR1, sHP, sCB = 8, 9, 10, 11, 12
T0, T1, T2, T3, T4, T5, T6, T7 = 13, 14, 15, 16, 17, 18, 19, 20
sRT = 21
sCMP = 22
sPL = 24
rWS, rX, rW, rWO, rWM, rWG, rWU, rWD, rOUT = 32, 36, 40, 44, 48, 52, 56, 60, 64
KA = 68
pWPHI, pWR, pC = KA + 4, KA + 10, KA + 18
sK1, sK2, sROW0, sROW1, sFS, sKQ, sKH, sKF = 68, 69, 70, 71, 74, 75, 76, 77
sFG, sFD, sU, sROT, sWB, sU0 = 80, 81, 82, 83, 84, 85
sWO2, sW1K, sMF = 88, 89, 90
sINB, sRow, sGTB, sC32 = 92, 93, 94, 95
sXC = 94
pDBG = 30
sLOC = 93
XT = (96, 97, 98, 99)
sTM = 100
ENV = dict(wg=2, w=sWAVE, x=sX, j=sJ, r1=sR1, hp=sHP, cb=sCB, rt=sRT, row=sRow, gtb=sGTB, c32=sC32, kh=sKH, kf=sKF, fs=sFS, kq=sKQ,
           rot=sROT, wb=sWB, u0=sU0, wo2=sWO2, w1k=sW1K, mf=sMF, u=sU, fg=sFG, fd=sFD, T0=T0, T1=T1, T2=T2, T3=T3, T4=T4, T5=T5, T6=T6, T7=T7, row0=sROW0, row1=sROW1, k1=sK1, xc=sXC)


class Gen:
    def __init__(self, prof=False, opts=None):
        self.a = Asm()
        self.vm = Counter(self.a, 'vmcnt', 63)
        self.lg = Counter(self.a, 'lgkmcnt', 15)
        self.V = RegAlloc(254, 1)
        self.prof = prof
        self.nopk = False
        self.nst = 0
        self.stnames = []
        self.S = SExpr(self.a, ENV, {k: v for k, v in globals().items() if isinstance(v, int) and k.isupper() and k not in ENV}, XT)
        self.o = dict(AD=13, LOOK=6, wev=2, AD2=8, A20=6, wburst=(0, 3, 0, 0, 6, 6), wxor=3, LASTB=14, wsch={2: 6, 3: 3, 4: 6, 5: 3, 6: 6, 7: 3, 8: 6, 9: 6, 10: 6, 11: 6, 12: 6, 13: 3},
                      sched={1: 'm1 p2', 2: 's4', 3: 'm1 s4', 4: 'p2 g1', 5: 'm1 g1', 6: 'g1', 7: 'm1 h g1 p3', 8: 'g2', 9: 'g2 r', 10: 'P', 13: 'M', 14: 'K o4 f4 N', 15: 'f2'}, fdma=(3, 0, 1, 1, 1), wowin=(6, 0, 3))
        if opts: self.o.update(opts)

    def bl(self, dst, n, voff, srd, soff, imm=0, mods='', tag=None):
        op = {1: 'dword', 2: 'dwordx2', 4: 'dwordx4'}[n]
        so = soff if isinstance(soff, str) else (sr(soff))
        self.a(f'buffer_load_{op} {vr(dst, n)}, v{voff}, {sr(srd, 4)}, {so} offen' + (f' offset:{imm}' if imm else '') + (' ' + mods if mods else ''))
        self.vm.issue(tag)
    def bs(self, src, n, voff, srd, soff, imm=0, mods='', tag=None, count=True):
        op = {1: 'dword', 2: 'dwordx2', 4: 'dwordx4'}[n]
        so = soff if isinstance(soff, str) else (sr(soff))
        self.a(f'buffer_store_{op} {vr(src, n)}, v{voff}, {sr(srd, 4)}, {so} offen' + (f' offset:{imm}' if imm else '') + (' ' + mods if mods else ''))
        if count: self.vm.issue(tag)
    def bs2(self, items):
        a = self.a
        LL, D = a.label('LOC'), a.label('LOCD')
        a(f's_cmp_lg_u32 s{sLOC}, 0')
        a(f's_cbranch_scc1 {LL}')
        for src, n, voff, soff, imm in items: self.bs(src, n, voff, rWS, soff, imm, 'sc1', count=False)
        a(f's_branch {D}')
        a(f'{LL}:')
        for src, n, voff, soff, imm in items: self.bs(src, n, voff, rWS, soff, imm, '', count=False)
        a(f'{D}:')
    def dma(self, voff, srd, soff, imm=0, mods='', tag=None):
        self.a(f'buffer_load_dwordx4 v{voff}, {sr(srd, 4)}, {sr(soff)} offen' + (f' offset:{imm}' if imm else '') + (' ' + mods if mods else '') + ' lds')
        self.vm.issue(tag)
    def dr(self, op, dst, n, addr, off=0, tag=None):
        assert 0 <= off < 65536, off
        self.a(f'{op} {vr(dst, n)}, v{addr}' + (f' offset:{off}' if off else ''))
        self.lg.issue(tag)
    def tr(self, dst, addr, off, tag=None): self.dr('ds_read_b64_tr_b16', dst, 2, addr, off, tag)
    def r128(self, dst, addr, off=0, tag=None): self.dr('ds_read_b128', dst, 4, addr, off, tag)
    def dw(self, op, addr, src, n, off=0, tag=None):
        assert 0 <= off < 65536, off
        self.a(f'{op} v{addr}, {vr(src, n)}' + (f' offset:{off}' if off else ''))
        self.lg.issue(tag)
    def barrier(self):
        self.lg.wait_all()
        self.a('s_barrier')
    def stamp(self, name):
        ex = self.o.get('exfil')
        if ex and name in ex[:2]:
            self.a(f's_memrealtime {sr(sTM, 2)}')
            self.lg.wait_all()
            self.a(f'v_writelane_b32 v255, s{sTM}, {1 + ex.index(name)}')
        if not self.prof: return
        only = self.o.get('only')
        if only and name not in only and name != 'end': return
        self.a(f's_memtime {sr(sTM, 2)}')
        self.a(f's_memrealtime s[0:1]')
        self.lg.wait_all()
        self.a(f'v_writelane_b32 v255, s{sSPIN if self.o.get("spinst") and self.nst > 3 else sTM}, {self.nst}')
        self.a(f'v_writelane_b32 v254, s0, {self.nst}')
        self.stnames.append(name)
        self.nst += 1
        assert self.nst <= 60
    def unpack(self, lo, hi, src):
        self.a(f'v_lshlrev_b32 v{lo}, 16, v{src}')
        self.a(f'v_and_b32 v{hi}, s{sMASK}, v{src}')
    def round1(self, r):
        self.a(f'v_cvt_pk_bf16_f32 v{r}, 0, v{r}')
    def round2(self, r0, r1):
        self.round1(r0); self.round1(r1)
    def round_list(self, regs):
        for r in regs: self.round1(r)
    def pk(self, op, d, s0, s1, s2=None, bc=(), neg=()):
        srcs = [s0, s1] + ([s2] if s2 is not None else [])
        if self.nopk:
            for h in range(2):
                t = []
                for k, r in enumerate(srcs):
                    kind, n = r if isinstance(r, tuple) else ('v', r)
                    t.append(('-' if k in neg else '') + f'{kind}{n if k in bc else n + h}')
                e64 = '' if op == 'fma' else ('_e64' if (neg or t[1][0] == 's') else '')
                self.a(f'v_{op}_f32{e64} v{d+h}, ' + ', '.join(t))
            return
        txt, sel, selhi = [], [], []
        for k, r in enumerate(srcs):
            kind, n = r if isinstance(r, tuple) else ('v', r)
            if k in bc:
                txt.append(f'{kind}[{n & ~1}:{(n & ~1) + 1}]'); sel.append(n & 1); selhi.append(n & 1)
            else:
                assert n % 2 == 0
                txt.append(f'{kind}[{n}:{n+1}]'); sel.append(0); selhi.append(1)
        assert d % 2 == 0
        m = ''
        if any(sel): m += ' op_sel:[' + ','.join(map(str, sel)) + ']'
        if not all(selhi): m += ' op_sel_hi:[' + ','.join(map(str, selhi)) + ']'
        if neg:
            ng = ','.join('1' if k in neg else '0' for k in range(len(srcs)))
            m += f' neg_lo:[{ng}] neg_hi:[{ng}]'
        self.a(f'v_pk_{op}_f32 v[{d}:{d+1}], ' + ', '.join(txt) + m)
    def dpp(self, op, d, s0, s1, ctl):
        self.a(f'{op}_dpp v{d}, v{s0}, v{s1} {ctl} row_mask:0xf bank_mask:0xf')
    def allreduce(self, v, t, op='v_add_f32', lo=True, b3=True):
        if lo:
            self.dpp(op, v, v, v, 'quad_perm:[1,0,3,2]')
            self.dpp(op, v, v, v, 'quad_perm:[2,3,0,1]')
            self.dpp(op, v, v, v, 'row_half_mirror')
        self.dpp(op, v, v, v, 'row_ror:8')
        self.a(f'v_mov_b32 v{t}, v{v}')
        self.a(f'v_permlane16_swap_b32 v{v}, v{t}')
        self.a(f'{op} v{v}, v{v}, v{t}')
        self.a(f'v_mov_b32 v{t}, v{v}')
        self.a(f'v_permlane32_swap_b32 v{v}, v{t}')
        self.a(f'{op} v{v}, v{v}, v{t}')
    def poll(self, loads, tagregs, tmp=None):
        a = self.a
        L, D = a.label('POLL'), a.label('PDONE')
        a(f'{L}:')
        loads()
        self.vm.wait_all()
        self.tagcheck(tagregs, tmp)
        a(f's_cbranch_vccz {D}')
        a(f's_add_u32 s{sSPIN}, s{sSPIN}, 1')
        a(f's_cmp_lt_u32 s{sSPIN}, {SPIN_LIMIT}')
        a(f's_cbranch_scc1 {L}')
        a(f'{D}:')
    def weave(self, fn, extras):
        a = self.a
        keep = a.items; a.items = []
        fn()
        body = a.items; a.items = keep
        extras = list(extras); n = len(extras)
        for i, it in enumerate(body):
            while extras and (n - len(extras)) * len(body) <= i * n: extras.pop(0)()
            a.items.append(it)
        for e in extras: e()
    def tagcheck(self, tagregs, tmp):
        a = self.a
        if tagregs[0] == 'nan':
            if len(tagregs) == 3: a(f'v_max_u32 v{tmp}, v{tagregs[1]}, v{tagregs[2]}')
            a(f'v_cmp_eq_u32 vcc, -1, v{tmp if len(tagregs) == 3 else tagregs[1]}')
        elif len(tagregs) == 1:
            a(f'v_cmp_ne_u32 vcc, s{sTAG}, v{tagregs[0]}')
        else:
            a(f'v_bitop3_b32 v{tmp}, v{tagregs[0]}, v{tagregs[1]}, s{sTAG} bitop3:0x7e')
            for t in tagregs[2:]: a(f'v_bitop3_b32 v{tmp}, v{tmp}, v{t}, s{sTAG} bitop3:0xf6')
            a(f'v_cmp_ne_u32 vcc, 0, v{tmp}')
    def try_load(self, loads, tagregs, tmp=None, between=None, pre=None):
        a = self.a
        n0 = len(self.vm.q)
        loads()
        self.vm.q[-1] = tg = ('try', a.label('T'))
        if between: between()
        self.vm.wait(tg)
        OK = a.label('TOK')
        self.tagcheck(tagregs, tmp)
        a(f's_cbranch_vccz {OK}')
        q, l = list(self.vm.q), list(self.lg.q)
        if pre: pre()
        self.poll(loads, tagregs, tmp)
        self.vm.q, self.lg.q = q, l
        a(f'{OK}:')
    def finish_load(self, tg, loads, tagregs, tmp=None, pre=None):
        a = self.a
        self.vm.wait(tg)
        OK = a.label('TOK')
        self.tagcheck(tagregs, tmp)
        a(f's_cbranch_vccz {OK}')
        q, l = list(self.vm.q), list(self.lg.q)
        if pre: pre()
        self.poll(loads, tagregs, tmp)
        self.vm.q, self.lg.q = q, l
        a(f'{OK}:')
    def spoll(self, loads, checks, work=None, pipe=0):
        a = self.a
        L, C, D = a.label('SPOLL'), a.label('SCHK'), a.label('SDONE')
        def issue(note=''):
            for d, n, so, imm in loads:
                op = {1: 'dword', 2: 'dwordx2', 4: 'dwordx4', 8: 'dwordx8'}[n]
                a(f's_load_{op} {sr(sPL + d, n)}, {sr(rWS, 2)}, s{so} offset:{imm} glc' + note)
        if pipe:
            self.lg.wait_all()
            for k in checks: a(f's_not_b32 s{sPL + k}, s{sTAG}')
            issue(' ; nowait')
            if work: work()
            a(f'{L}:')
            a(f's_add_u32 s{sSPIN}, s{sSPIN}, 1')
            a(f's_cmp_ge_u32 s{sSPIN}, {SPIN_LIMIT}')
            a(f's_cbranch_scc1 {D}')
            ks = list(checks)
            a(f's_xor_b32 s{XT[0]}, s{sPL + ks[0]}, s{sTAG} ; nowait')
            for k in ks[1:]:
                a(f's_xor_b32 s{XT[1]}, s{sPL + k}, s{sTAG} ; nowait')
                a(f's_or_b32 s{XT[0]}, s{XT[0]}, s{XT[1]}')
            a(f's_cbranch_scc0 {D}')
            issue(' ; nowait')
            a(f's_sleep {pipe}')
            a(f's_branch {L}')
            a(f'{D}:')
            return
        if work:
            issue(); work()
            a(f's_branch {C}')
        a(f'{L}:')
        issue()
        a(f'{C}:')
        a(f's_add_u32 s{sSPIN}, s{sSPIN}, 1')
        a(f's_cmp_ge_u32 s{sSPIN}, {SPIN_LIMIT}')
        self.lg.wait_all()
        a(f's_cbranch_scc1 {D}')
        for k in checks:
            a(f's_cmp_lg_u32 s{sPL + k}, s{sTAG}')
            a(f's_cbranch_scc1 {L}')
        a(f'{D}:')
    def inbox(self, box, n, checks=None, work=None, pipe=0):
        self.spoll([(0, n, sINB, box * 512)], range(n) if checks is None else checks, work, pipe)
    def va(self, dst, terms, sreg=None, const=0, tmp=None):
        a = self.a; vL = self.vL
        first = True
        for sh, bits, mult in terms:
            full = sh + bits >= 6
            src = vL
            t = dst if first else tmp
            if sh == 0 and full: pass
            elif full: a(f'v_lshrrev_b32 v{t}, {sh}, v{vL}'); src = t
            elif sh == 0: a(f'v_and_b32 v{t}, {(1 << bits) - 1}, v{vL}'); src = t
            else: a(f'v_bfe_u32 v{t}, v{vL}, {sh}, {bits}'); src = t
            p2 = mult & (mult - 1) == 0
            k = mult.bit_length() - 1
            if first:
                if p2 and sreg is not None: a(f'v_lshl_add_u32 v{dst}, v{src}, {k}, s{sreg}'); sreg = None
                elif p2 and k: a(f'v_lshlrev_b32 v{dst}, {k}, v{src}')
                elif p2:
                    if src != dst: a(f'v_mov_b32 v{dst}, v{src}')
                else: a(f'v_mul_u32_u24 v{dst}, {mult}, v{src}')
            else:
                assert p2
                a(f'v_lshl_add_u32 v{dst}, v{src}, {k}, v{dst}')
            first = False
        if sreg is not None: a(f'v_add_u32 v{dst}, s{sreg}, v{dst}')
        if const: a(f'v_add_u32 v{dst}, {const}, v{dst}')
    def push(self, vaddr, soff, nl, vtmp, lab, wave=0):
        a = self.a
        a(f's_cmp_lg_u32 s{sWAVE}, {wave}')
        a(f's_cbranch_scc1 {lab}')
        a(f'v_mov_b32 v{vtmp}, s{sTAG}')
        a(f's_mov_b32 exec_hi, 0')
        if nl < 32: a(f's_mov_b32 exec_lo, {(1 << nl) - 1}')
        self.bs(vtmp, 1, vaddr, rWS, soff, 0, 'sc1', count=False)
        a('s_mov_b64 exec, -1')
        a(f'{lab}:')
    def silu(self, v, t):
        a = self.a
        a(f'v_mul_f32 v{t}, s{sL2E}, v{v}')
        a(f'v_exp_f32 v{t}, -v{t}')
        a(f'v_add_f32 v{t}, 1.0, v{t}')
        a(f'v_rcp_f32 v{t}, v{t}')
        a(f'v_mul_f32 v{v}, v{v}, v{t}')
        self.round1(v)
    def gemv_ops(self, wregs, cregs, acc, t0, t1, packed):
        ops = []
        assert t0 % 2 == 0 and t1 == t0 + 1
        for i, (w, c) in enumerate(zip(wregs, cregs)):
            cp = f'v[{c & ~1}:{(c & ~1) + 1}]'
            for d in range(4):
                tt = t0 + 2 * (d & 1)
                ops.append(f'v_lshlrev_b32 v{tt}, 16, v{w+d}')
                ops.append(f'v_and_b32 v{tt+1}, s{sMASK}, v{w+d}')
                ac = f'v[{acc+2*d}:{acc+2*d+1}]'
                if not packed:
                    for h in range(2): ops.append(f'v_mul_f32 v{acc+2*d+h}, v{tt+h}, v{c}' if i == 0 else f'v_fmac_f32 v{acc+2*d+h}, v{tt+h}, v{c}')
                elif i == 0: ops.append(f'v_pk_mul_f32 {ac}, v[{tt}:{tt+1}], {cp} op_sel:[0,{c & 1}] op_sel_hi:[1,{c & 1}]')
                else: ops.append(f'v_pk_fma_f32 {ac}, v[{tt}:{tt+1}], {cp}, {ac} op_sel:[0,{c & 1},0] op_sel_hi:[1,{c & 1},1]')
        for i in range(4): ops.append(f'v_permlane32_swap_b32 v{acc+i}, v{acc+4+i}')
        for i in range(4): ops.append(f'v_add_f32 v{acc+i}, v{acc+i}, v{acc+4+i}')
        for i in range(2): ops.append(f'v_permlane16_swap_b32 v{acc+i}, v{acc+2+i}')
        for i in range(2): ops.append(f'v_add_f32 v{acc+i}, v{acc+i}, v{acc+2+i}')
        for i in range(2): ops.append(f'v_add_f32_dpp v{acc+i}, v{acc+i}, v{acc+i} row_ror:8 row_mask:0xf bank_mask:0xf')
        ops.append(f'v_mov_b32_dpp v{acc}, v{acc+1} quad_perm:[0,1,2,3] row_mask:0xf bank_mask:0xc')
        return ops
    def sum8(self, b):
        self.pk('add', b, b, b + 2); self.pk('add', b + 4, b + 4, b + 6); self.pk('add', b, b, b + 4)
        self.a(f'v_add_f32 v{b}, v{b}, v{b+1}')
    def softmax_pm(self, p, e, out, t, mid=None, part=0, split=0):
        a = self.a
        mx, mn, u0, u1, s0, s1 = t, t + 1, t + 2, t + 3, t + 4, t + 6
        if part != 2:
            self.round_list([p + i for i in range(16)])
            a(f'v_max3_f32 v{mx}, v{p}, v{p+1}, v{p+2}')
            a(f'v_min3_f32 v{mn}, v{p}, v{p+1}, v{p+2}')
            for i in range(3, 15, 2):
                a(f'v_max3_f32 v{mx}, v{mx}, v{p+i}, v{p+i+1}')
                a(f'v_min3_f32 v{mn}, v{mn}, v{p+i}, v{p+i+1}')
            a(f'v_max_f32 v{u0}, v{mx}, v{p+15}')
            a(f'v_min_f32 v{u1}, v{mn}, v{p+15}')
            a(f'v_max_f32 v{mx}, v{mx}, v{p+15}')
            a(f'v_min_f32 v{mn}, v{mn}, v{p+15}')
            a(f'v_permlane32_swap_b32 v{mx}, v{u0}')
            a(f'v_permlane32_swap_b32 v{mn}, v{u1}')
            a(f'v_max_f32 v{mx}, v{mx}, v{u0}')
            a(f'v_min_f32 v{mn}, v{mn}, v{u1}')
            self.pk('mul', mx, mx, ('s', sL2E), bc=(1,))
            for i in range(0, 16, 2):
                self.pk('fma', e + i, p + i, ('s', sL2E), mx, bc=(1, 2), neg=(2,))
                self.pk('fma', p + i, p + i, ('s', sL2E), mn, bc=(1, 2), neg=(0,))
        for i in range(split if part == 2 else 0, 16):
            if mid and i == mid[0]: mid[1]()
            if part == 1 and i == split: return
            a(f'v_exp_f32 v{e+i}, v{e+i}')
            a(f'v_exp_f32 v{p+i}, v{p+i}')
        self.pk('add', s0, e, e + 2); self.pk('add', s1, p, p + 2)
        for i in range(4, 16, 2):
            self.pk('add', s0, s0, e + i); self.pk('add', s1, s1, p + i)
        a(f'v_add_f32 v{u0}, v{s0}, v{s0+1}')
        a(f'v_add_f32 v{u1}, v{s1}, v{s1+1}')
        a(f'v_add_f32 v{mx}, v{s0}, v{s0+1}')
        a(f'v_add_f32 v{mn}, v{s1}, v{s1+1}')
        a(f'v_permlane32_swap_b32 v{mx}, v{u0}')
        a(f'v_permlane32_swap_b32 v{mn}, v{u1}')
        self.pk('add', mx, mx, u0)
        a(f'v_rcp_f32 v{mx}, v{mx}')
        a(f'v_rcp_f32 v{mn}, v{mn}')
        for i in range(0, 16, 2):
            self.pk('mul', e + i, e + i, mx, bc=(1,))
            self.pk('mul', p + i, p + i, mn, bc=(1,))
        for i in range(8):
            a(f'v_cvt_pk_bf16_f32 v{out+i}, v{e+2*i}, v{e+2*i+1}')
            a(f'v_cvt_pk_bf16_f32 v{out+8+i}, v{p+2*i}, v{p+2*i+1}')
    def ln_stats(self, xp, t, m_out, sd_out, fill=()):
        a = self.a
        fill = list(fill)
        def pad(n):
            for _ in range(n):
                if fill: a(fill.pop(0))
        s, u = t, t + 4
        a(f'v_mov_b32 v{u}, 0x3f803f80')
        for i in range(8):
            k = 2 * (i & 1)
            a(f'v_dot2_f32_bf16 v{s+k}, v{xp+i}, v{u}, ' + ('0' if i < 2 else f'v{s+k}'))
            a(f'v_dot2_f32_bf16 v{s+k+1}, v{xp+i}, v{xp+i}, ' + ('0' if i < 2 else f'v{s+k+1}'))
        pad(3)
        self.pk('add', s, s, s + 2)
        for ctl in ('quad_perm:[1,0,3,2]', 'quad_perm:[2,3,0,1]', 'row_half_mirror', 'row_ror:8'):
            pad(2 if ctl.endswith('3,2]') else 1)
            self.dpp('v_add_f32', s, s, s, ctl); self.dpp('v_add_f32', s + 1, s + 1, s + 1, ctl)
        pad(2)
        a(f'v_permlane16_swap_b32 v{s}, v{s+1}')
        a(f'v_add_f32 v{u}, v{s}, v{s+1}')
        a(f'v_add_f32 v{s}, v{s}, v{s+1}')
        pad(2)
        a(f'v_permlane32_swap_b32 v{s}, v{u}')
        a(f'v_add_f32 v{s}, v{s}, v{u}')
        a(f'v_mul_f32 v{u}, 0x3a800000, v{s}')
        a(f'v_mul_f32 v{s}, 0x3a800000, v{s}')
        pad(2)
        a(f'v_permlane16_swap_b32 v{s}, v{u}')
        a(f'v_fma_f32 v{sd_out}, -v{s}, v{s}, v{u}')
        a(f'v_cvt_pk_bf16_f32 v{m_out}, 0, v{s}')
        a(f'v_max_f32 v{sd_out}, 0, v{sd_out}')
        self.round1(sd_out)
        a(f'v_add_f32 v{sd_out}, 0x3727c5ac, v{sd_out}')
        self.round1(sd_out)
        a(f'v_sqrt_f32 v{sd_out}, v{sd_out}')
        pad(99)
        self.round1(sd_out)

    def stat_math(self, s, u, m_out, sd_out):
        a = self.a
        a(f'v_fma_f32 v{sd_out}, -v{s}, v{s}, v{u}')
        a(f'v_cvt_pk_bf16_f32 v{m_out}, 0, v{s}')
        a(f'v_max_f32 v{sd_out}, 0, v{sd_out}')
        self.round1(sd_out)
        a(f'v_add_f32 v{sd_out}, 0x3727c5ac, v{sd_out}')
        self.round1(sd_out)
        a(f'v_sqrt_f32 v{sd_out}, v{sd_out}')
        self.round1(sd_out)
    def ln_stats2(self, x0, x1, t, m_out, sd_out):
        a = self.a
        s0, s1, q0, q1, u = t, t + 1, t + 2, t + 3, t + 4
        a(f'v_mov_b32 v{u}, 0x3f803f80')
        for i in range(8):
            for xx, s_, q_ in ((x0, s0, q0), (x1, s1, q1)):
                a(f'v_dot2_f32_bf16 v{s_}, v{xx+i}, v{u}, ' + ('0' if i == 0 else f'v{s_}'))
                a(f'v_dot2_f32_bf16 v{q_}, v{xx+i}, v{xx+i}, ' + ('0' if i == 0 else f'v{q_}'))
        a(f"""v_permlane32_swap_b32 v{s0}, v{s1}
        v_permlane32_swap_b32 v{q0}, v{q1}
        v_add_f32 v{s0}, v{s0}, v{s1}
        v_add_f32 v{q0}, v{q0}, v{q1}
        v_permlane16_swap_b32 v{s0}, v{q0}
        v_add_f32 v{s0}, v{s0}, v{q0}""")
        for ctl in ('quad_perm:[1,0,3,2]', 'quad_perm:[2,3,0,1]', 'row_half_mirror', 'row_ror:8'): self.dpp('v_add_f32', s0, s0, s0, ctl)
        a(f"""v_mul_f32 v{q0}, 0x3a800000, v{s0}
        v_mul_f32 v{s0}, 0x3a800000, v{s0}
        v_permlane16_swap_b32 v{s0}, v{q0}""")
        self.stat_math(s0, q0, m_out, sd_out)

    def build(self):
        a, V, vm, lg, o, S = self.a, self.V, self.vm, self.lg, self.o, self.S
        E2 = range(0, 16, 2)
        TL = o.get('tl', 0)
        HL = o.get('hl', 1)
        D2 = o.get('d2', 1)
        LCB = [(0, 4, 8 * 4096)] if TL else [(0, 3, 8 * 4096), (3, 1, 4096)]
        a(f'{NAME}:')
        a(f's_load_dwordx16 {sr(KA, 16)}, s[0:1], 0')
        a(f's_load_dwordx8 {sr(KA + 16, 8)}, s[0:1], 64')
        a(f's_load_dwordx2 {sr(rWS, 2)}, s[0:1], 104')
        a(f's_load_dwordx2 {sr(pDBG, 2)}, s[0:1], 96')
        a('s_cmp_ge_u32 s2, 256')
        a('s_cbranch_scc1 L_END')
        if self.prof:
            a(f's_memrealtime {sr(sCMP, 2)}')
            a(f's_memtime {sr(sTM, 2)}')
            a('v_mov_b32 v255, 0')
            a('v_mov_b32 v254, 0')
            self.stnames.append('start'); self.nst = 1
        if o.get('exfil'): a(f's_memrealtime {sr(sTM, 2)}')
        vL = self.vL = V.alloc()
        vL16 = V.alloc()
        vZ = V.alloc()
        vT = V.alloc(8)
        va = lambda dst, terms, sreg=None, const=0: self.va(dst, terms, sreg, const, vT + 5)
        a(f"""v_lshrrev_b32 v{vT}, 6, v0
        v_and_b32 v{vL}, 63, v0
        v_mov_b32 v{vZ}, 0
        v_readfirstlane_b32 s{sWAVE}, v{vT}
        v_lshlrev_b32 v{vL16}, 4, v{vL}""")
        xr = V.alloc(8); acc = V.alloc(8); wphi = V.alloc(8); fr = V.alloc(8); vq = V.alloc(8); vv = V.alloc(8)
        vWM = V.alloc(); vCo = V.alloc(); vWd = V.alloc(); vL8 = V.alloc(); vL32S = V.alloc(); vGA = V.alloc()
        vB = V.alloc(6, 1); vFG = V.alloc(); vFD = V.alloc(); vWo = V.alloc(); vPW = V.alloc(); vXF = V.alloc()
        S(sX, 'wg & 7'); S(sJ, 'wg >> 3')
        S(T2, '(x*4 + w)*64')
        S(T0, 'T2*6144 + (j ^ 1)*128')
        va(vWM, [(3, 3, 4 * 12288), (0, 3, 16)])
        va(vCo, [(3, 3, 8)], T2)
        S(T3, '((x*32 + j)*4 + w - 4)*4096')
        for srd, size in ((rWM, 12582912), (rX, 4194304), (rWS, WS_BYTES)):
            a(f's_mov_b32 s{srd+2}, {size}')
            a(f's_mov_b32 s{srd+3}, 0x20000')
        a(f's_getreg_b32 s{sXC}, hwreg(HW_REG_XCC_ID, 0, 3)')
        if o.get('fakexcc') is not None: a(f's_and_b32 s{sXC}, s{sXC}, {o["fakexcc"]}')
        a(f"""s_getpc_b64 {sr(sCMP, 2) if not self.prof else sr(sPL, 2)}""")
        S(T6, '(j*7 + w)*128')
        va(vT + 6, [(5, 1, 28672)], T6)
        a(f"""v_min_u32 v{vT+6}, CODE_KB, v{vT+6}
        s_cmp_ge_u32 s{sWAVE}, 4
        s_waitcnt lgkmcnt(0)""")
        if self.prof:
            a(f'v_writelane_b32 v255, s{sTM}, 0')
            a(f'v_writelane_b32 v255, s{sCMP}, 63')
            a(f'v_writelane_b32 v254, s{sCMP}, 0')
            a(f's_mov_b64 {sr(sCMP, 2)}, {sr(sPL, 2)}')
        if o.get('exfil'):
            for k in range(3): a(f'v_writelane_b32 v255, s{sTM}, {k}')
        self.stamp('karg')
        raw = V.alloc(16); cv = V.alloc(4); vTk = V.alloc(2)
        xs = V.alloc(16); st = V.alloc(4); mq = V.alloc(4)
        a(f"""s_mov_b64 {sr(rWM, 2)}, {sr(KA + 20, 2)}
        s_mov_b64 {sr(rX, 2)}, {sr(KA, 2)}
        s_load_dword s{sTAG}, {sr(rWS, 2)}, {NONCE}
        s_cbranch_scc1 L_FS""")
        def setup():
            for srd, size in ((rW, 6291456), (rWO, 2097152), (rWG, 7340032), (rWU, 7340032), (rWD, 7340032), (rOUT, 4194304)):
                a(f's_mov_b32 s{srd+2}, {size}')
                a(f's_mov_b32 s{srd+3}, 0x20000')
            for srd, k in ((rW, 2), (rWO, 6), (rWG, 12), (rWU, 14), (rWD, 16), (rOUT, 22)):
                a(f's_mov_b64 {sr(srd, 2)}, {sr(KA + k, 2)}')
            a(f"""s_mov_b32 s{sSPIN}, 0
            s_mov_b32 s{sMASK}, 0xffff0000
            s_mov_b32 s{sL2E}, 0x3fb8aa3b""")
            S(sKH, 'w >> 2')
            va(vT + 2, [(4, 1, 64)]); va(vWd, [(0, 3, 16)])
            a(f'v_xor_b32 v{vWd}, v{vWd}, v{vT+2}'); va(vT + 2, [(3, 3, 6144)]); a(f'v_add_u32 v{vWd}, v{vWd}, v{vT+2}')
            va(vL8, [(0, 6, 8)])
            a(f'v_add_u32 v{vL32S}, {SCR}, v{vL16}')
            S(T0, '(w & 3)*4 + SCR')
            va(vGA, [(4, 2, 32), (0, 3, 128), (3, 1, 16)], T0)
            S(T1, '((j >> 4)*128 + w*8 + x)*1024 + (j & 15)*64 + SINB' if TL else '((x & 6) + ((x & 1)*2 + (j >> 4))*64 + w*8)*1024 + (j & 15)*64 + SINB')
        def tag_hash():
            a(f"""s_mul_i32 s{sTAG}, s{sTAG}, 0x9e3779b1
            s_add_u32 s{sTAG}, s{sTAG}, 0x7f4a7c15""")
        def code_pf():
            a(f's_and_b32 s{sCMP}, s{sCMP}, 0xfffffc00')
            a(f'global_load_dword v{vTk}, v{vT+6}, {sr(sCMP, 2)}')
        wq = [(n, t) for n in range(16) for t in range(3)]
        def w_base(n, wexpr):
            if n < 4 and o.get('wxor', 1):
                if o.get('wxor', 1) < 3: S(T7, '((j >> 4)*2) ^ n' if o.get('wxor', 1) == 1 else o.get('wxe', '((j >> 4) + (x >> 2)*2) ^ n'), n=n)
                else:
                    S(T7, o.get('wxe', 'j & 3' if HL else '(j >> 4) + (x >> 2)*2'))
                    if n: a(f's_cmp_le_u32 s{T7}, {n - 1}'); a(f's_cselect_b32 s{T7}, {n}, {n - 1}')
                S(sU, f'(((T7 + u0) & 15)*8 + {wexpr})*(8*6144) + hp*128')
                S(T7, f'T7*SLOT + (({wexpr}) >> 1)*2080 + (({wexpr}) & 1)*1056')
            else:
                S(sU, f'(((u0 + n) & 15)*8 + {wexpr})*(8*6144) + hp*128', n=n)
                S(T7, f'(({wexpr}) >> 1)*2080 + (({wexpr}) & 1)*1056 + q', q=(n % 6) * SLOT)
        def w_slot(n, t):
            S('m0', 'T7 + q', q=t * SEC)
            self.dma(vWd, rW, sU, 0, o.get('wmod', ''), ('W', n))
            if t < 2: S(sU, 'u + 2048')
        def w_next(cnt=1):
            for _ in range(cnt):
                n, t = wq.pop(0)
                if t == 0: w_base(n, 'w')
                w_slot(n, t)
        wb = list(o['wburst'])
        def w_early():
            if not o.get('wearly'): return
            S(sHP, '(x & 3)*4 + ((j & 3) ^ q)', q=o.get('hpx', 2)); S(sU0, o.get('u0', 'j & 12'))
            w_next(o['wearly'])
        a(f'global_load_dwordx2 {vr(cv, 2)}, v{vCo}, {sr(pC, 2)}'); vm.issue('c')
        for i in range(4):
            self.bl(raw + 4 * i, 4, vWM, rWM, T0, 0, o.get('ntwm', 'nt'), ('wm', i))
            if i < 3: S(T0, 'T0 + 12288')
        a('s_barrier')
        if o.get('bar1', 1): a('s_barrier')
        code_pf(); vm.issue()
        setup()
        wq0 = list(wq); w_early(); wq[:] = wq0
        S(T0, '(((w*16 + ((j ^ 1) & 15))*2 + (j >> 4))*8 + x)*512 + AINB')
        S(T2, ('(((j ^ 1) & 15)*8 + w*2)*512' if TL else '(((j ^ 1) & 7)*8 + w*2 + ((j >> 3) & 1))*512') + ' + x*64 + (j >> 4)*4 + INA')
        va(vT + 6, [(0, 1, 128 * 512), (1, 1, 512)] if TL else [(0, 2, 64 * 512)])
        vm.wait('c')
        self.unpack(cv + 2, cv + 3, cv + 1)
        a(f'v_and_b32 v{cv+1}, s{sMASK}, v{cv}'); a(f'v_lshlrev_b32 v{cv}, 16, v{cv}')
        for i in range(4): self.silu(cv + i, vT + (i & 1))
        gops = self.gemv_ops([raw + 4 * i for i in range(4)], [cv + i for i in range(4)], acc, vT, vT + 1, True)
        for i in range(4):
            vm.wait(('wm', i))
            if i == 3: self.stamp('wmok')
            for s_ in gops[12 * i:12 * i + 12]: a(s_)
        for s_ in gops[48:]: a(s_)
        self.dw('ds_write_b32', vGA, acc, 1, L_A1 - SCR)
        self.barrier()
        a(f'ds_read_b128 {vr(acc, 4)}, v{vL32S} offset:{L_A1 - SCR}')
        tag_hash()
        a('s_waitcnt lgkmcnt(0)')
        self.pk('add', acc, acc, acc + 2)
        a(f"""v_add_f32 v{acc}, v{acc}, v{acc+1}
        v_mov_b32 v{acc+1}, s{sTAG}""")
        self.bs(acc, 2, vL8, rWS, T0, 0, 'sc1')
        a('s_mov_b64 exec, 15')
        self.bs(acc + 1, 1, vT + 6, rWS, T2, 0, 'sc1')
        a('s_mov_b64 exec, -1')
        self.stamp('A1pub')
        if o.get('wpf', 0):
            S(T2, '(((xc >> 2)*2 + (xc & 1))*4 + (xc & 2))*128 + (j*32 + w*8)*6144')
            va(vT + 2, [(4, 2, 6144), (0, 4, 16)])
            for i in range(o['wpf']):
                S(T0, 'T2 + q', q=(i % 3) * 2048 + (i // 3) * 4 * 6144)
                self.bl(raw, 4, vT + 2, rW, T0, 0, o.get('wpfmod', ''))
        tl_ = o.get('tlb', '')
        if tl_:
            S(T2, 'wg*128'); va(vT + 2, [(0, 6, 1 << 21)], T2)
            tab = dict(W=rW, o=rWO, g=rWG, u=rWU, d=rWD, m=rWM, x=rX, O=rOUT)
            for k_, c_ in enumerate(tl_):
                a(f's_cmp_lg_u32 s{sWAVE}, {k_ & 3}')
                L_ = a.label('TLB'); a(f's_cbranch_scc1 {L_}')
                if c_ == 's':
                    a('s_mov_b64 exec, 0x1ffff'); self.bl(raw + 4, 1, vT + 2, rWS, '0', 0, '', None); vm.q.pop(); a('s_mov_b64 exec, -1')
                else: self.bl(raw + 4, 1, vT + 2, tab[c_], '0', 0, '', None); vm.q.pop()
                a(f'{L_}:')
        a('s_branch L_FJ')
        qG = list(vm.q)
        a('L_FS:')
        vm.reset(); lg.reset()
        a('s_barrier')
        for i in range(4): self.bl(raw + 4 * i, 4, vL16, rX, T3, 1024 * i, o.get('xsmod', ''), 'xs')
        pw0 = o.get('pw0', 'ab')
        if 'a' in pw0:
            S(T4, '(wg*4 + w - 4)*128 + INA')
            for q in range(2): a(f's_load_dword s{sPL + q}, {sr(rWS, 2)}, s{T4} offset:{q * 64} glc')
        if 's' in pw0:
            S(T4, '(wg*4 + w - 4)*256 + SINB')
            for q in range(4): a(f's_load_dword s{sPL + 2 + q}, {sr(rWS, 2)}, s{T4} offset:{q * 64} glc')
        if 'b' in pw0:
            S(T4, '(wg*32 + w - 4)*128 + INB')
            for q in range(2): a(f's_load_dword s{sPL + q}, {sr(rWS, 2)}, s{T4} offset:{q * 64} glc ; nowait')
        a(f"""s_lshl_b32 s{T6}, s{sXC}, 5
        v_mov_b32 v{vTk}, 1
        v_mov_b32 v{vTk+1}, s{T6}""")
        if o.get('bar1', 1): a('s_barrier')
        a(f"""s_cmp_lg_u32 s{sWAVE}, 7
        s_cbranch_scc1 L_NOTK
        s_mov_b64 exec, 1
        global_atomic_add v{vTk}, v{vTk+1}, v{vTk}, {sr(pDBG, 2)} sc0 sc1
        s_mov_b64 exec, -1
        s_branch L_TK0
        L_NOTK:""")
        code_pf()
        a('L_TK0:')
        vm.issue('tk')
        setup()
        w_early()
        S(T0, '(w - 4)*16 + L_ST'); va(vT + 6, [(5, 1, 8)], T0)
        a('s_barrier')
        vm.wait('xs')
        lg.wait_all()
        tag_hash()
        self.stamp('xsok')
        self.ln_stats2(raw, raw + 8, xs, st, st + 1)
        a(f"""v_lshrrev_b32 v{st}, 16, v{st}
        v_or_b32 v{st}, v{st}, v{st+1}
        v_mov_b32 v{st+1}, s{sTAG}""")
        self.dw('ds_write_b64', vT + 6, st, 2)
        a('L_FJ:')
        va(vT + 1, [(0, 2, 16)], None, L_ST)
        va(vT, [(0, 2, 16), (2, 1, 65536 if TL else 1024)])
        va(vT + 6, [(0, 5, 2048), (5, 1, 32)])
        va(vT + 2, [(0, 1, 64 * 512 if TL else 512), (1, 1, 256)])
        S(T2, ('((j >> 4)*128 + w*8 + x)*512' if TL else '((x & 6) + ((x & 1)*2 + (j >> 4))*64 + w*8)*512') + ' + ((j >> 2) & 3)*64 + (j & 3)*4 + 16 + INA')
        self.barrier()
        self.r128(st, vT + 1, 0, 'st')
        lg.wait('st')
        a('s_mov_b64 exec, 0xff')
        self.bs(st, 4, vT, rWS, T1, 0, 'sc1')
        a('s_mov_b64 exec, 15')
        self.bs(st + 1, 1, vT + 2, rWS, T2, 0, 'sc1')
        a('s_mov_b64 exec, -1')
        self.stamp('A2pub')
        a(f"""s_cmp_lg_u32 s{sWAVE}, 7
        s_cbranch_scc1 L_NOTK2
        s_mov_b32 s{T0}, 0
        s_waitcnt vmcnt({len(vm.q) - 1 - vm.q.index('tk')})
        L_TK:
        v_readfirstlane_b32 s{T2}, v{vTk}
        s_cmp_lt_u32 s{T2}, 32
        s_cbranch_scc1 L_TKOK
        v_mov_b32 v{vTk}, s{sTAG}
        s_mov_b64 exec, 1
        buffer_store_dword v{vTk}, v{vZ}, {sr(rWS, 4)}, 0 offen offset:{MARK} sc1
        s_mov_b64 exec, -1
        s_add_u32 s{T0}, s{T0}, 1
        s_cmp_lt_u32 s{T0}, 8
        s_cbranch_scc0 L_TKNO
        s_add_u32 s{sXC}, s{sXC}, 1
        s_and_b32 s{sXC}, s{sXC}, 7
        s_lshl_b32 s{T6}, s{sXC}, 5
        v_mov_b32 v{vTk}, 1
        v_mov_b32 v{vTk+1}, s{T6}
        s_mov_b64 exec, 1
        global_atomic_add v{vTk}, v{vTk+1}, v{vTk}, {sr(pDBG, 2)} sc0 sc1
        s_mov_b64 exec, -1
        s_waitcnt vmcnt(0)
        s_branch L_TK
        L_TKNO:
        s_and_b32 s{sXC}, s2, 7
        s_lshr_b32 s{T2}, s2, 3
        L_TKOK:
        s_lshl3_add_u32 s{T2}, s{T2}, s{sXC}""")
        if o.get('rawrole'): a(f's_mov_b32 s{T2}, s2')
        a(f"""v_mov_b32 v{vTk}, s{T2}
        ds_write_b32 v{vT+1}, v{vTk} offset:64
        L_NOTK2:""")
        self.barrier()
        a(f'ds_read_b32 v{mq}, v{vT+1} offset:64'); lg.issue('role')
        lg.wait('role')
        a(f'v_readfirstlane_b32 s2, v{mq}')
        self.stamp('role')
        V.release(raw, 16); V.release(cv, 4)
        S(sX, 'wg & 7'); S(sJ, 'wg >> 3')
        S(sCB, 'j & 15' if TL else '(x & 1)*8 + (j & 7)')
        S(sRT, 'x*2 + (j >> 4)' if TL else '(x >> 1)*4 + (j >> 3)')
        S(sGTB, 'rt*4 + (w & 3)')
        S(sC32, 'cb*2 + kh')
        S(T5, 'gtb*65536 + c32*64')
        ld_xt = lambda: [self.bl(xr + 4 * q, 4, vT + 6, rX, T5, 16 * q, o.get('xtmod', ''), 'xt') for q in range(2)]
        if not o.get('xtlate', 0): ld_xt()
        S(T0, '(((x >> 1)*16 + cb)*16 + w)*512 + AINB')
        S(T2, '(wg*8 + w)*64 + INA')
        def role_prep():
            S(sR1, 'j & 15' if HL else '(x & 4)*2 + (j >> 2)'); S(sHP, '((x >> 2)*2 + (x & 1))*4 + (x & 2) + (j >> 4)' if HL else '(x & 3)*4 + ((j & 3) ^ 2)')
            S(sU0, o.get('u0', 'j & 12'))
            w_next(wb[0])
            S(sINB, '(wg*64 + w)*64 + INB')
            S(sKF, 'kh ^ (j >> 4)'); S(sROT, o.get('rot', '(((j >> 3) ^ j) & 1)*q + p'), q=4 if D2 else 8, p=8 * o.get('dflip', 1))
            S(sFS, 'x*7 + (j >> 2)'); S(sKQ, 'j & 3')
            va(vT + 4, [(0, 5, 8)])
            va(vT, [(0, 5, 16), (5, 1, 4096)])
            S(T3, 'w*4 + L_MP'); va(vT + 1, [(0, 6, 64)], T3)
            S(T3, 'kh*1024 + L_MP'); va(vT + 2, [(0, 4, 32), (5, 1, 512)], T3)
        S(T1, '(wg*4 + (w & 3))*256 + SINB')
        self.spoll([(0, 8, T2, 0)], (0, 1, 4, 5, 6, 7), work=role_prep)
        self.stamp('apre')
        if o.get('abar', 2) == 1: a('s_barrier')
        st_ld = lambda: self.bl(st, 2, vT + 4, rWS, T1, 0, 'sc1', 'st')
        def st_fetch():
            st_ld()
            if o.get('abar', 2) == 2: a('s_barrier')
            if o.get('xtlate', 0): ld_xt()
            S(T3, 'hp*4096 + w*512')
            a(f'v_add_u32 v{vT+6}, s{T3}, v{vL16}')
            S('m0', 'w*512 + L_WPHI')
            a('s_mov_b32 exec_hi, 0')
            a(f'global_load_lds_dwordx4 v{vT+6}, {sr(pWPHI, 2)}'); vm.issue()
            a('s_mov_b32 exec_hi, -1')
            w_next(wb[1])
        self.try_load(lambda: self.bl(mq, 4, vT, rWS, T0, 0, 'sc1'), [mq + 1, mq + 3], vT + 3, st_fetch)
        self.stamp('modok')
        a(f'ds_write2_b32 v{vT+1}, v{mq}, v{mq+2} offset0:0 offset1:8'); lg.issue()
        if not o.get('xtlate', 0):
            for i in range(8): self.unpack(xs + 2 * i, xs + 2 * i + 1, xr + i)
        self.barrier()
        mp = V.alloc(16); hp = V.alloc(8)
        for i in (2, 3, 0, 1): self.r128(mp + 4 * i, vT + 2, (i >> 1) * 2048 + (i & 1) * 16, i >> 1)
        w_next(wb[2])
        self.finish_load('st', st_ld, [st + 1], None)
        if o.get('xtlate', 0):
            vm.wait('xt')
            for i in range(8): self.unpack(xs + 2 * i, xs + 2 * i + 1, xr + i)
        self.stamp('statok')
        self.unpack(st + 1, st, st)
        a(f'v_rcp_f32 v{st}, v{st}')
        for i in E2: self.pk('add', xs + i, xs + i, st + 1, bc=(1,), neg=(1,))
        S(T0, '(((rt*16 + cb)*4 + (w & 3))*2 + kh)*2048 + HF')
        va(vT + 4, [(0, 4, 16), (4, 1, 1024), (5, 1, 512)])
        lg.wait(1); self.sum8(mp + 8)
        self.round1(mp + 8)
        lg.wait(0); self.sum8(mp)
        a(f'v_add_f32 v{mp+8}, 1.0, v{mp+8}')
        self.round2(mp + 8, mp)
        PKM = o.get('pkm', 1)
        if PKM:
            mb = V.alloc(32)
            S(T3, 'w*256 + L_MB'); va(vT, [(0, 4, 4), (5, 1, 64)], T3); va(vT + 1, [(5, 1, 64)], T3)
            a(f'ds_write2_b32 v{vT}, v{mp+8}, v{mp} offset0:0 offset1:32'); lg.issue()
            for q in range(8): self.r128(mb + 4 * q, vT + 1, (q >> 2) * 128 + (q & 3) * 16, ('mb', q))
        for h in range(2):
            rg = range(8 * h, 8 * h + 8)
            self.round_list([xs + i for i in rg])
            for i in range(8 * h, 8 * h + 8, 2): self.pk('mul', xs + i, xs + i, st, bc=(1,))
            self.round_list([xs + i for i in rg])
        for h in range(2):
            rg = range(8 * h, 8 * h + 8)
            if PKM:
                lg.wait(('mb', 2 * h + 1))
                for i in range(8 * h, 8 * h + 8, 2): self.pk('mul', xs + i, xs + i, mb + i)
            else:
                for i in rg: self.dpp('v_mul_f32', xs + i, mp + 8, xs + i, f'row_newbcast:{i}')
            self.round_list([xs + i for i in rg])
            if PKM:
                lg.wait(('mb', 4 + 2 * h + 1))
                for i in range(8 * h, 8 * h + 8, 2): self.pk('add', xs + i, xs + i, mb + 16 + i)
            else:
                for i in rg: self.dpp('v_add_f32', xs + i, mp, xs + i, f'row_newbcast:{i}')
            for i in range(4 * h, 4 * h + 4): a(f'v_cvt_pk_bf16_f32 v{hp+i}, v{xs+2*i}, v{xs+2*i+1}')
            self.bs(hp + 4 * h, 4, vT + 4, rWS, T0, 256 * h, 'sc1', 'hs')
        if PKM: V.release(mb, 32)
        self.stamp('hst')
        w_next(wb[3])
        va(vB, [(5, 1, 2080), (2, 2, 128), (3, 1, 64), (0, 2, 8)])
        va(vB + 1, [(4, 1, 1056)])
        va(vB + 2, [(3, 1, 128)])
        a(f"""v_add_u32 v{vB}, v{vB}, v{vB+1}
        v_sub_u32 v{vB+1}, v{vB}, v{vB+2}
        v_add_u32 v{vB+1}, 64, v{vB+1}""")
        for q in (1, 2):
            for h in range(2): a(f'v_add_u32 v{vB+2*q+h}, {2*q*SLOT}, v{vB+h}')
        S(T1, 'kh*2048 + L_WPHI')
        va(vT, [(2, 2, 64), (4, 1, 32), (0, 2, 8), (5, 1, 512)], T1)
        va(vT + 1, [(0, 3, 4096), (3, 1, 128 * 4096)] if HL else [(0, 2, 8 * 4096), (2, 2, 4096)])
        S(T0, ('rt*32768' if HL else '((rt >> 3)*4 + (rt & 7)*32)*4096') + ' + (cb >> 1)*64 + (cb & 1)*4 + INB')
        va(vT + 2, [(4, 1, 64), (5, 1, 16)]); va(vWo, [(0, 3, 16)])
        a(f'v_xor_b32 v{vWo}, v{vWo}, v{vT+2}'); va(vT + 2, [(3, 3, 2048)]); a(f'v_add_u32 v{vWo}, v{vWo}, v{vT+2}')
        S(T1, '(w & 2)*32'); va(vT + 2, [(4, 1, 32)], T1); va(vFG, [(0, 3, 16)])
        a(f'v_xor_b32 v{vFG}, v{vFG}, v{vT+2}'); va(vT + 2, [(3, 3, 7168)]); a(f'v_add_u32 v{vFG}, v{vFG}, v{vT+2}')
        S(T1, '(w & 1)*128')
        va(vT + 2, [(5, 1, 64)], T1); va(vFD, [(0, 5, 16), (5, 1, 2048)])
        a(f'v_xor_b32 v{vFD}, v{vFD}, v{vT+2}')
        S(sFG, '(kq*8 + w)*(32*7168) + fs*128'); S(sFD, '(fs*8 + w)*16384 + kq*512')
        a(f"""s_cmp_ge_u32 s{sJ}, 28
        s_cselect_b32 s{rWG+2}, 0, s{rWG+2}
        s_cselect_b32 s{rWU+2}, 0, s{rWU+2}
        s_cselect_b32 s{rWD+2}, 0, s{rWD+2}""")
        vm.wait('hs')
        a('s_barrier')
        self.push(vT + 1, T0, 16, vT + 2, 'L_PB')
        self.stamp('hpub')
        V.release(xs, 16); V.release(mp, 16); V.release(hp, 8); V.release(st, 4); V.release(mq, 4); V.release(vTk, 2)
        w_next(wb[4])
        for s in range(2):
            for u in range(2): self.tr(wphi + 4 * s + 2 * u, vT, s * 1024 + u * 256)
        AD, LOOK, LASTB = o['AD'], o.get('LOOK', 6), o['LASTB']
        accs = V.alloc(96)
        big = V.alloc(76)
        Br = big + 76 - 4 * (LOOK + 1)
        aslot = list(range(big, Br, 4)) + [fr, fr + 4, vq, vq + 4, vv, vv + 4, acc, acc + 4]
        assert AD <= len(aslot)
        S(T2, '(r1*64 + w)*4096 + HF')
        S(T0, '(w & 3)*4096 + L_XF'); a(f'v_add_u32 v{vXF}, s{T0}, v{vL16}')
        vXW = V.alloc(); vVW = V.alloc()
        va(vXW, [(0, 4, 16), (5, 1, 512), (4, 1, 8)], T0)
        S(T0, '(w & 3)*1024 + L_V'); va(vVW, [(0, 4, 32), (4, 2, 8)], T0)
        S(T0, '(w & 3)*1024 + kh*16384 + L_PHK'); va(vPW, [(0, 5, 32), (5, 1, 16)], T0)
        fq = [(m, i) for m in range(3) for i in range(4)]
        freg = []
        def f_src(m, i, back=0, T0=T0):
            if m < 2: S(T0, 'fg + q', q=i * 8 * 7168 - back * 4 * 32 * 7168)
            else: S(T0, 'fd + q', q=i * 4096 - back * 4 * 16384)
            return (vFG, (rWG, rWU)[m]) if m < 2 else (vFD, rWD)
        def f_lds(m, i): return (L_GU + m * 32768 if m < 2 else L_DN) + i * 1024
        def ffn_reg(n):
            for _ in range(n):
                m, i = fq.pop(0)
                for back in range(2):
                    v, r = f_src(m, i, back)
                    self.bl(big + 8 * len(freg) + 4 * back, 4, v, r, T0, 0, o.get('ntffn', 'nt'), 'ffn')
                freg.append((m, i))
        def ffn_dma(n, T0=T0):
            for _ in range(n):
                m, i = fq.pop(0)
                if o.get('nofd'): continue
                v, r = f_src(m, i, 0, T0)
                S('m0', 'w1k*4 + q', q=f_lds(m, i))
                self.dma(v, r, T0, 0, o.get('ntffn', 'nt'), 'gu' if m < 2 else 'dn')
        S(sWB, 'w*16384' if D2 else '(rot*4 + w)*16384'); S(sWO2, '(j >> 4)*1048576 + cb*128'); S(sW1K, 'w*1024')
        def wo_dma(it, back=0, T0=T0):
            S(T0, '(((wb + q) & 0xfffff) ^ (rot*65536)) + (wo2 ^ h)' if D2 else '((wb + q) & 0xfffff) + (wo2 ^ h)', q=(8 * it - 4 * back) * 16384, h=(it >> 3) << 20)
            S('m0', 'w1k + q', q=WO_H0 + it * 8192 - 4096 * back)
            self.dma(vWo, rWO, T0, 0, '', 'wo')
        self.inbox(0, 2, work=lambda: w_next(wb[5]), pipe=o.get('pipeB', 0))
        assert len(wq) % 3 == 0 and 30 <= len(wq) <= (45, 36, 36, 42)[o.get('wxor', 1)]
        NPU = 16 - len(wq) // 3
        vm.wait(('W', (0, 2, 3, 1)[o.get('wxor', 1)]))
        a('s_barrier')
        self.stamp('hok')
        a(f"""s_cmp_ge_u32 s{sWAVE}, 4
        s_cbranch_scc1 L_HELP
        s_setprio 2""")
        q_hok = list(vm.q)
        if 'pad' in o:
            a('.p2align 6')
            for _ in range(o['pad']): a('s_nop 0')
        def a_load(sg):
            if sg % 4 == 0: S(T3, '((u0 + n) & q)*16384 + T2', n=sg // 4, q=o.get('amask', 15))
            self.bl(aslot[sg % AD], 4, vL16, rWS, T3, (sg % 4) * 1024, o.get('amod', 'sc1'), ('A', sg))
        CORD = [(1, 2), (1, 3), (1, 0), (1, 1)] + [(t, ct) for t in (0, 2) for ct in range(4)]
        WEV = o.get('wev', 2); NB = LOOK + 1
        def b_read(n, q):
            st_, c = divmod(n, 12); t, ct = CORD[c]
            slot = (st_ >> 1) % 6
            off = (slot & 1) * SLOT + t * SEC + (st_ & 1) * 4160 + (ct & 1) * 32 + q * 512
            self.tr(Br + 4 * (n % NB) + 2 * q, vB + 2 * (slot >> 1) + (ct >> 1), off, ('B', n))
        nxt = 0
        def a_more(lim):
            nonlocal nxt
            while nxt < min(lim, 64): a_load(nxt); nxt += 1
        a_more(2)
        for n in range(LOOK):
            for q in range(2): b_read(n, q)
        a_more(o.get('A0', 4))
        b14 = False
        for n in range(384):
            st_, c = divmod(n, 12); t, ct = CORD[c]
            if n % WEV == 0: lg.wait(('B', min(n + WEV - 1, 383)))
            for th in range(2):
                if c == 0: vm.wait(('A', 2 * st_ + (th if st_ < 2 or not o.get('vw1', 1) else 1)))
                d = accs + 32 * t + 16 * (ct >> 1) + 8 * (ct & 1) + 4 * th
                a(f'v_mfma_f32_16x16x32_bf16 {vr(d, 4)}, {vr(Br + 4*(n % NB), 4)}, {vr(aslot[(2*st_ + th) % AD], 4)}, ' + ('0' if st_ == 0 else vr(d, 4)))
                if n + LOOK < 384:
                    if th == 0 and (n + LOOK) % 24 == 0 and (n + LOOK) // 24 <= LASTB: a('s_barrier')
                    b_read(n + LOOK, th)
            if c in o.get('aat', (0, 3, 6, 9)): a_more(min(nxt + 1, 2 * st_ + AD))
            if nxt == 64 and not b14 and (n + LOOK) // 24 >= 13 and (n + LOOK) % 24:
                b14 = True; a('s_barrier')
        self.stamp('gemm1')
        aq, ak, av = accs, accs + 32, accs + 64
        def cvt8(d, s_, swap=True):
            for c in range(2):
                for th in range(2):
                    for ip in range(2): a(f'v_cvt_pk_bf16_f32 v{d + 4*c + 2*th + ip}, v{s_ + 8*c + 4*th + 2*ip}, v{s_ + 8*c + 4*th + 2*ip + 1}')
            if swap:
                for c in range(2):
                    for ip in range(2): a(f'v_permlane16_swap_b32 v{d + 4*c + ip}, v{d + 4*c + 2 + ip}')
        def put8(addr, d, off, oc_, ot):
            for c in range(2):
                for th in range(2): self.dw('ds_write_b64', addr, d + 4 * c + 2 * th, 2, off + c * oc_ + th * ot)
        cvt8(vv, ak + 16, False)
        put8(vXW, vv, 0, 1024, 256)
        cvt8(fr, ak)
        self.barrier()
        a('s_setprio 0')
        pp = ak; ee = ak + 16
        def phi_logits(src):
            a(f'v_mfma_f32_32x32x16_bf16 {vr(pp, 16)}, {vr(wphi, 4)}, {vr(src, 4)}, 0')
            a(f'v_mfma_f32_32x32x16_bf16 {vr(pp, 16)}, {vr(wphi + 4, 4)}, {vr(src + 4, 4)}, {vr(pp, 16)}')
        phi_logits(fr)
        for h in range(2):
            cvt8(vv if h == 0 else vq, av + 16 * h, False)
            put8(vVW, vv if h == 0 else vq, h * 8192, 4096, 512)
        cvt8(fr, aq + 16, False)
        put8(vXW, fr, 2048, 1024, 256)
        cvt8(vq, aq)
        a('s_branch L_JOIN')
        a('L_HELP:')
        vm.q = [('W', 1)] * len(q_hok) if o.get('wxor', 1) == 1 else list(q_hok); lg.reset()
        m2w = accs; m2c = accs + 32; g4 = accs + 48
        def w_unit(n):
            for wexpr in ('w - 4', 'w'):
                w_base(n, wexpr)
                for t in range(3):
                    w_slot(n, t)
                    if o.get('pace', 0) and n >= 6: a(f's_sleep {o["pace"]}')
        for n in range(NPU, 6): w_unit(n)
        S(T0, '((j & 3)*4 + w - 4)*128' if HL else '((x & 3)*4 + w - 4)*128')
        va(vCo, [(3, 3, 16)], T0)
        va(vWM, [(3, 3, 8 * 12288), (0, 3, 16)])
        S(T4, 'T0*6144 + (((j >> 2) & 3)*16 + x*2 + (j >> 4))*128 + 4096' if HL else 'T0*6144 + (j*2 + (x >> 2))*128 + 4096')
        a(f'global_load_dwordx4 {vr(m2c + 8, 4)}, v{vCo}, {sr(pC, 2)}'); vm.issue('m2c')
        m2l = list(range(8)); wol = [9, 10, 11, 12]; pwl = list(range(1, 8)); sil = list(range(8))
        m2ops = self.gemv_ops([m2w + 4 * i for i in range(8)], [m2c + i for i in range(8)], acc, vT, vT + 1, False)
        m2pos = 0
        m2q = accs; wr1 = accs + 8; vM2 = accs + 9
        ld_m2 = lambda: [self.bl(m2q + 4 * q, 4, vM2, rWS, T5, q * 1024, 'sc1', 'm2q') for q in range(2)]
        def m2_final():
            self.finish_load('m2q', ld_m2, [m2q + 1, m2q + 3, m2q + 5, m2q + 7], vT)
            q0, q1, q2, q3 = m2q, m2q + 1, m2q + 2, m2q + 3
            S(T0, '(w & 3)*128 + L_MT'); va(vT, [(0, 5, 4)], T0)
            S(T1, 'w & 3')
            a(f"""v_add_f32 v{q0}, v{m2q}, v{m2q+4}
            v_add_f32 v{q1}, v{m2q+2}, v{m2q+6}
            v_add_f32 v{q2}, v{m2q}, v{m2q+4}""".replace(f'v_add_f32 v{q2}, v{m2q}, v{m2q+4}', f'v_mov_b32 v{q2}, v{q0}'))
            a(f"""v_mov_b32 v{q3}, v{q1}
            s_cmp_eq_u32 s{T1}, 2
            s_cselect_b32 s{T2}, 1.0, 0
            v_permlane32_swap_b32 v{q0}, v{q2}
            v_permlane32_swap_b32 v{q1}, v{q3}""")
            self.pk('add', q0, q0, q2)
            self.round2(q0, q1)
            a(f"""v_add_f32 v{q0}, s{T2}, v{q0}
            v_add_f32 v{q1}, s{T2}, v{q1}
            v_cvt_pk_bf16_f32 v{q2}, v{q0}, v{q1}""")
            self.dw('ds_write_b32', vT, q2, 1)
            a('s_cbranch_scc0 L_NOG')
            g0, g1, gh, gl = m2q + 4, m2q + 5, m2q + 6, m2q + 7
            self.unpack(q0, q1, q2); self.unpack(g0, g1, wr1)
            self.pk('mul', g0, g0, q0)
            a(f'v_cvt_pk_bf16_f32 v{gh}, v{g0}, v{g1}')
            self.unpack(q0, q1, gh)
            self.pk('add', q0, g0, q0, neg=(1,))
            a(f"""v_cvt_pk_bf16_f32 v{gl}, v{q0}, v{q1}
            v_add_f32 v{q0}, v{g0}, v{g1}
            ds_write2_b32 v{vT}, v{gh}, v{gl} offset0:64 offset1:96
            ds_write_b32 v{vT}, v{wr1} offset:512""")
            for ctl in ('quad_perm:[1,0,3,2]', 'quad_perm:[2,3,0,1]', 'row_half_mirror', 'row_ror:8'): self.dpp('v_add_f32', q0, q0, q0, ctl)
            S(T0, '(rt*16 + cb)*8 + GR')
            a(f"""v_mov_b32 v{q2}, v{q0}
            v_mov_b32 v{q1}, s{sTAG}
            v_permlane16_swap_b32 v{q0}, v{q2}
            v_add_f32 v{q0}, v{q0}, v{q2}
            s_mov_b64 exec, 1""")
            self.bs(q0, 2, vZ, rWS, T0, 0, 'sc1', count=False)
            a("""s_mov_b64 exec, -1
        L_NOG:""")
        def act(op, k):
            nonlocal m2pos
            kind, n = op[0], int(op[1:] or 1)
            if kind == 'm':
                for _ in range(2 * n):
                    i = m2l.pop(0)
                    self.bl(m2w + 4 * i, 4, vWM, rWM, T4, 0, o.get('ntm2', 'nt'), ('m2', i))
                    if m2l: S(T4, 'T4 + 12288')
            elif kind == 'f': ffn_reg(n)
            elif kind == 'o':
                assert k >= 13
                for _ in range(n):
                    it = wol.pop(0); wo_dma(it, 1); wo_dma(it)
            elif kind == 'p':
                a('s_waitcnt lgkmcnt(0)')
                for q in range(n):
                    b = pwl.pop(0)
                    a(f's_load_dword s{sPL + 2*q}, {sr(rWS, 2)}, s{sINB} offset:{b * 512} glc')
                    a(f's_load_dword s{sPL + 2*q + 1}, {sr(rWS, 2)}, s{sINB} offset:{b * 512 - 256} glc')
            elif kind == 'q':
                S(T0, 'fs*8192 + (w - 4)*256 + HGR')
                a('s_waitcnt lgkmcnt(0)')
                for q in range(4): a(f's_load_dword s{sPL + q}, {sr(rWS, 2)}, s{T0} offset:{q * 2048 + 1024 + 252} glc')
            elif kind == 'z':
                for i in range(4): a(f'v_mov_b32 v{g4+i}, -1')
                if n == 1:
                    for we in ('w - 4', 'w'):
                        S(T0, f'(((r1*4 + (w & 3))*16 + hp)*2 + (({we}) >> 2))*2048 + OF')
                        for q in range(2): self.bs(g4, 4, vL16, rWS, T0, 1024 * q, 'sc1', 'pzo')
                else:
                    for we in ('w - 4', 'w'):
                        S(T0, f'((hp*8 + {we})*32 + r1)*1024 + KVP'); S(T1, 'T0 + 16384')
                        self.bs(g4, 4, vL16, rWS, T0, 0, 'sc1', 'pz'); self.bs(g4, 4, vL16, rWS, T1, 0, 'sc1', 'pz')
                    S(T0, '((hp*8 + w - 4)*16 + r1)*64 + ZP')
                    va(vT + 2, [(0, 2, 16), (2, 1, 4096)])
                    a('s_mov_b64 exec, 0xff')
                    self.bs(g4, 4, vT + 2, rWS, T0, 0, 'sc1', 'pz')
                    a('s_mov_b64 exec, -1')
            elif kind == 'M':
                va(vM2, [(0, 5, 16), (5, 1, 512)])
                S(T5, '((w & 3)*16 + cb)*2048 + MODP2')
                S(T0, 'cb*128'); va(vT, [(0, 5, 4)], T0)
                a(f'global_load_dword v{wr1}, v{vT}, {sr(pWR, 2)}'); vm.issue('m2q')
                ld_m2()
            elif kind == 'N': m2_final()
            elif kind == 'K':
                S(T0, '(hp*16 + r1)*1024 + (w & 3)*256 + KIN'); S(T1, 'hp*128 + CFL')
                a(f'v_lshlrev_b32 v{vWM}, 7, v{vL}')
                a('s_mov_b64 exec, 3')
                self.bl(vWM, 1, vWM, rWS, T0, 0, '')
                self.bl(vCo, 1, vZ, rWS, T1, 0, '')
                a('s_mov_b64 exec, -1')
            elif kind == 'h':
                S(T0, '(fs*4 + kq)*2048 + (w & 1)*1024 + HGR'); S(T1, '(rt*16 + cb)*2048 + (w & 1)*1024 + STAT')
                if TL: a(f's_bitcmp1_b32 s{sWAVE}, 1'); a(f's_cselect_b32 s{T0}, s{T1}, s{T0}')
                self.bl(m2c + 12, 4, vL16, rWS, T0, 0, '')
            elif kind == 's':
                vm.wait('m2c')
                for _ in range(n):
                    i = sil.pop(0)
                    a(f'v_and_b32 v{m2c+i}, s{sMASK}, v{m2c+8+i//2}' if i & 1 else f'v_lshlrev_b32 v{m2c+i}, 16, v{m2c+8+i//2}')
                    self.silu(m2c + i, vT + (i & 1))
            elif kind == 'g':
                assert not sil
                for _ in range(n):
                    vm.wait(('m2', m2pos // 16))
                    for s_ in m2ops[m2pos:m2pos + 16]: a(s_)
                    m2pos += 16
            elif kind == 'r':
                assert m2pos == 128
                for s_ in m2ops[128:]: a(s_)
                self.dw('ds_write_b32', vGA, acc, 1, L_M2 - SCR)
                lg.wait_all()
            elif kind == 'P':
                a(f"""s_cmp_lg_u32 s{sWAVE}, 4
                s_cbranch_scc1 L_M2F
                ds_read_b128 {vr(acc, 4)}, v{vL32S} offset:{L_M2 - SCR}""")
                S(T0, '((((j >> 2) & 3)*16 + x*2 + (j >> 4))*4 + (j & 3))*512 + MODP2' if HL else '((j*2 + (x >> 2))*4 + (x & 3))*512 + MODP2')
                a(f"""s_waitcnt lgkmcnt(0)
                v_add_f32 v{acc}, v{acc}, v{acc+1}
                v_add_f32 v{acc+2}, v{acc+2}, v{acc+3}
                v_mov_b32 v{acc+1}, s{sTAG}
                v_add_f32 v{acc}, v{acc}, v{acc+2}""")
                self.bs(acc, 2, vL8, rWS, T0, 0, 'sc1', count=False)
                a('L_M2F:')
            else: raise ValueError(op)
        sched = {int(k): v.split() for k, v in o['sched'].items()}
        for op in sched.get(0, []): act(op, 0)
        wsch = {int(k): v for k, v in o.get('wsch', {k: 6 for k in range(2, 12)}).items()}
        hq = [(n, we, t) for n in range(6, 16) for we in ('w - 4', 'w') for t in range(3)]
        assert sum(wsch.values()) == 60
        for k in range(1, LASTB + 1):
            if k == 14: a('s_barrier')
            assert not any(n <= (15 if k == LASTB else k) for n, _, _ in hq)
            for kk in (range(k, 16) if k == LASTB else [k + 1 if k < 3 and o.get('wxor', 1) == 3 else k]): vm.wait(('W', kk))
            if o.get('ust'): self.stamp(f'w{k}')
            a('s_barrier')
            if o.get('ust'): self.stamp(f'u{k}')
            ops = sched.get(k, []) if k < 14 else []
            for op in ops:
                if op[0] == '<': act(op[1:], k)
            for _ in range(wsch.get(k, 0)):
                n, we, t = hq.pop(0)
                assert n - 4 <= k
                if t == 0: w_base(n, we)
                w_slot(n, t)
            for op in ops:
                if op[0] != '<': act(op, k)
        assert LASTB in (13, 14)
        if LASTB == 13: a('s_barrier')
        for op in sched.get(14, []): act(op, 14)
        self.barrier()
        for q in range(2): self.r128(fr + 4 * q, vXF, q * 1024)
        lg.wait_all()
        phi_logits(fr)
        for op in sched.get(15, []): act(op, 15)
        assert (not m2l or o.get('nom2')) and not wol
        assert 8 * len(freg) <= 76
        a('L_JOIN:')
        pzq = list(vm.q)
        vm.reset(); lg.q = [None]
        V.release(vXW); V.release(vVW); V.release(vB, 6); V.release(vWd); V.release(vGA); V.release(vL32S); V.release(acc, 8)
        V.release(big + 8 * len(freg), 76 - 8 * len(freg))
        ph = aq; fx = aq + 16
        vPA = V.alloc(); vPB = V.alloc()
        self.softmax_pm(pp, ee, ph, vT)
        for fb in range(4): self.dw('ds_write_b128', vPW, ph + 4 * fb, 4, fb * 4096)
        S(T0, 'w*4096 + L_PHK'); a(f'v_add_u32 v{vPA}, s{T0}, v{vL8}')
        S(T0, 'kh*8192 + L_V'); a(f'v_add_u32 v{vPB}, s{T0}, v{vL8}')
        ones = fr
        for i in range(4): a(f'v_mov_b32 v{ones+i}, 0x3f803f80')
        S(T0, '((hp*8 + w)*32 + r1)*1024 + KVP'); S(T2, 'T0 + 16384')
        S(T3, '(hp*8 + w)*1024 + ZP'); S(T1, 'r1*64 + T3')
        self.stamp('ksm')
        self.barrier()
        self.stamp('phik')
        tb7 = V.alloc(8); tb4 = tb7 + 4
        S(T5, 'kh*64 + L_MT'); va(tb7 + 3, [(0, 3, 4), (5, 1, 32)], T5)
        for q, t in ((0, 0), (1, 4), (2, 5), (4, 1), (5, 2), (6, 3), (7, 6)): self.dr('ds_read_b32', tb7 + q, 1, tb7 + 3, t * 128)
        fragA = [ee + 4 * i for i in range(4)]
        fragB = [av + 4 * i for i in range(8)]
        kvd = vv; zd = fr + 4
        def kvm(u):
            lg.wait(('kv', u))
            for db in range(2):
                a(f'v_mfma_f32_16x16x32_bf16 {vr(kvd + 4*db, 4)}, {vr(fragA[u], 4)}, {vr(fragB[2*u+db], 4)}, ' + ('0' if u == 0 else vr(kvd + 4*db, 4)))
            a(f'v_mfma_f32_16x16x32_bf16 {vr(zd, 4)}, {vr(fragA[u], 4)}, {vr(ones, 4)}, ' + ('0' if u == 0 else vr(zd, 4)))
        for ts in range(4):
            self.tr(fragA[ts], vPA, ts * 1024, ('kv', ts)); self.tr(fragA[ts] + 2, vPA, ts * 1024 + 512, ('kv', ts))
            for db in range(2):
                self.tr(fragB[2*ts+db], vPB, db * 4096 + ts * 1024, ('kv', ts)); self.tr(fragB[2*ts+db] + 2, vPB, db * 4096 + ts * 1024 + 512, ('kv', ts))
            if ts >= 2: kvm(ts - 2)
        va(vPW, [(0, 4, 8 * 4096)] if HL else [(0, 3, 32 * 4096), (3, 1, 4 * 4096)])
        S(T4, '(wg & q)*4096 + (r1 >> 1)*64 + (r1 & 1)*4 + INB + 512', q=0x87 if HL else 0x1b)
        kvm(2); kvm(3)
        a(f"""s_cmp_lt_u32 s{sWAVE}, 4
        s_cbranch_scc1 L_NOQX
        ds_read_b128 {vr(vq, 4)}, v{vXF} offset:2048
        ds_read_b128 {vr(vq + 4, 4)}, v{vXF} offset:3072
        L_NOQX:""")
        if 'pz' in pzq: a(f's_waitcnt vmcnt({pzq[::-1].index("pz")})')
        self.bs(kvd, 4, vL16, rWS, T0, 0, 'sc1', 'kvs')
        self.bs(kvd + 4, 4, vL16, rWS, T2, 0, 'sc1', 'kvs')
        a('s_mov_b32 exec_lo, 0x00010001')
        a('s_mov_b32 exec_hi, 0x00010001')
        self.bs(zd, 4, vL, rWS, T1, 0, 'sc1', 'kvs')
        a('s_mov_b64 exec, -1')
        lg.wait_all()
        phi_logits(vq)
        self.stamp('kvst')
        wl = [2, 3, 4, 5, 6, 7, 8, 13, 14, 15, 0, 1]
        kp = av; zz = av + 16; g4 = vv
        vKP = V.alloc()
        va(vKP, [(3, 3, 1024), (0, 3, 16)])
        va(vXF, [(0, 3, 16), (5, 1, 8)])
        wo1 = lambda: wo_dma(wl.pop(0), 0, T6)
        keep = a.items; a.items = []
        self.softmax_pm(pp, ee, ph, vv)
        qsm = a.items; a.items = keep
        qcost = [2 if it[1].is_trans or 'permlane' in it[1].mn else 1 for it in qsm]
        qtot = sum(qcost); qdone = [0]
        def q_slice(upto):
            while qsm and qdone[0] < qtot * upto / 100:
                a.items.append(qsm.pop(0)); qdone[0] += qcost.pop(0)
        qs = o.get('qs', (35, 85, 100))
        CL = o.get('cl', (0, 1)); assert CL[1]
        q_slice(qs[0])
        S(T5, 'hp*128 + CFL'); S(T1, 'r1*8 + T5')
        vCF = V.alloc(); cf = V.alloc()
        va(vCF, [(0, 4, 8)])
        vm.wait('kvs')
        a('s_barrier')
        if CL[0]:
            a(f"""s_cmp_eq_u32 s{sLOC}, 0
            s_cbranch_scc1 L_PCG
            s_cmp_lg_u32 s{sWAVE}, 0
            s_cbranch_scc1 L_PC
            v_mov_b32 v{cf}, s{sTAG}
            s_mov_b64 exec, 1""")
            self.bs(cf, 1, vZ, rWS, T1, 0, '', count=False)
            a("""s_mov_b64 exec, -1
            s_branch L_PC
            L_PCG:""")
        self.push(vPW, T4, 16, vPB, 'L_PC')
        self.stamp('kvpub')
        assert HL and not CL[0]
        self.bl(tb7 + 3, 1, vZ, rWS, '0', MARK, 'sc1', 'mk')
        S(T0, '(hp*16 + r1)*16384 + w*128 + KVP')
        S(T2, '(hp*16 + r1)*1024 + w*128 + KIN'); S(T4, 'T4 + 6*512')
        c1_work = lambda: (self.weave(lambda: q_slice(qs[1]), [wo1] * o['wowin'][0]), self.stamp('cw'))
        if CL[0]:
            ld_cf = lambda: self.bl(cf, 1, vCF, rWS, T5, 0, 'sc1', 'cf')
            if o.get('cfpre', 1): ld_cf()
            c1_work()
            a(f"""s_cmp_lg_u32 s{sLOC}, 0
            s_cbranch_scc1 L_C1L""")
            q_ = list(vm.q)
            self.inbox(1, 2)
            a("""s_barrier
            s_branch L_C1D
            L_C1L:""")
            if o.get('cfpre', 1): self.finish_load('cf', ld_cf, [cf])
            else: self.poll(ld_cf, [cf])
            vm.q = q_
            a('L_C1D:')
        else:
            self.inbox(1, 2, work=c1_work)
            a('s_barrier')
        V.release(vCF); V.release(vWM); V.release(vCo)
        self.stamp('kvok')
        S(T5, 'T0 + 8192')
        ld_kp = lambda: (self.bl(kp, 4, vKP, rWS, T0, 0, 'sc1', 'kp'), self.bl(kp + 4, 4, vKP, rWS, T5, 0, 'sc1', 'kp'))
        ld_z = lambda: self.bl(zz, 4, vL16, rWS, T3, 0, 'sc1', 'z')
        ld_kp(); ld_z()
        S(T1, 'w*32 + L_ZF'); va(vT + 2, [(0, 2, 8), (5, 1, 4)], T1)
        S(T1, 'w*1024 + L_KVF'); va(vT + 1, [(0, 4, 16), (5, 1, 512), (4, 1, 8)], T1)
        S(T1, 'kh*128 + L_ZF'); va(vT + 3, [(5, 1, 16)], T1)
        S(T1, 'kh*4096 + L_KVF'); a(f'v_add_u32 v{vPA}, s{T1}, v{vL16}')
        def red4(r, ctls):
            for i in range(2): a(f'v_permlane32_swap_b32 v{r+i}, v{r+2+i}')
            self.pk('add', r, r, r + 2)
            for ctl in ctls:
                for i in range(2): self.dpp('v_add_f32', r + i, r + i, r + i, ctl)
            for i in range(2): a(f'v_mov_b32 v{r+2+i}, v{r+i}')
            for i in range(2): a(f'v_permlane16_swap_b32 v{r+i}, v{r+2+i}')
            self.pk('add', r, r, r + 2)
            a(f'v_cvt_pk_bf16_f32 v{r}, v{r}, v{r+1}')
        self.weave(lambda: q_slice(qs[2]), [wo1] * o['wowin'][1])
        vm.wait('kp')
        a(f'v_cmp_eq_u32 vcc, s{sTAG}, v{tb7+3}')
        a(f's_cmp_eq_u32 vcc_lo, 0')
        a(f's_cselect_b32 s{sLOC}, {o.get("local", 1)}, 0')
        self.pk('add', kp, kp, kp + 4); self.pk('add', kp + 2, kp + 2, kp + 6)
        red4(kp, ['row_ror:8'])
        a(f"""v_mov_b32 v{kp+1}, s{sTAG}
        s_mov_b32 exec_lo, 0xff
        s_mov_b32 exec_hi, 0xff""")
        kc = V.alloc(4)
        if CL[1]:
            self.bs2([(kp, 2, vXF, T2, 0)])
            a(f"""s_mov_b64 exec, -1
            v_mov_b32 v{kc}, v{kp}
            v_mov_b32 v{kc+1}, v{kp+1}
            v_add_u32 v{kc+2}, s{T2}, v{vXF}
            s_cbranch_scc1 L_PC2""")
        else:
            self.bs(kp, 2, vXF, rWS, T2, 0, 'sc1', count=False)
            a('s_mov_b64 exec, -1')
        a('s_barrier')
        self.push(vPW, T4, 16, vPB, 'L_PC2')
        self.stamp('c2pub')
        kf = av; zf = av + 16; num = pp; den = ee
        k2 = av + 8
        S(T0, '(hp*8 + w)*2048 + KIN')
        ld_k2 = lambda: [self.bl(k2 + 4 * q, 4, vL16, rWS, T0, q * 1024, 'sc1') for q in range(2)]
        def z_work():
            vm.wait('z')
            red4(zz, ['row_ror:4', 'row_ror:8'])
            self.dw('ds_write_b32', vT + 2, zz, 1)
            q_slice(100)
            self.stamp('c2w')
        ZP_ = o.get('zpre', 1)
        if ZP_: z_work()
        a(f"""s_cmp_lg_u32 s{sLOC}, 0
        s_cbranch_scc1 L_C2L""")
        l_ = list(lg.q)
        self.inbox(7, 2)
        lg.q = l_
        a('L_C2L:')
        self.try_load(ld_k2, [k2 + 1, k2 + 3, k2 + 5, k2 + 7], vT, None if ZP_ else z_work)
        for db in range(2):
            a(f'ds_write2_b32 v{vT+1}, v{k2+4*db}, v{k2+4*db+2} offset0:{64*db} offset1:{64*db+1}'); lg.issue()
        self.barrier()
        self.stamp('kvred')
        for fb in range(4): self.r128(zf + 4 * fb, vT + 3, fb * 32, ('zf', fb))
        for fb in range(4): self.r128(kf + 4 * fb, vPA, fb * 1024, ('kf', fb))
        for _ in range(o['wowin'][2]): wo1()
        S(T0, '(((r1*4 + (w & 3))*16 + hp)*2 + kh)*2048 + OF')
        va(vT + 4, [(0, 4, 16), (4, 1, 1024), (5, 1, 256)])
        for fb in range(4):
            lg.wait(('zf', fb))
            a(f'v_mfma_f32_32x32x16_bf16 {vr(den, 16)}, {vr(zf + 4*fb, 4)}, {vr(ph + 4*fb, 4)}, ' + ('0' if fb == 0 else vr(den, 16)))
        for fb in range(4):
            lg.wait(('kf', fb))
            a(f'v_mfma_f32_32x32x16_bf16 {vr(num, 16)}, {vr(kf + 4*fb, 4)}, {vr(ph + 4*fb, 4)}, ' + ('0' if fb == 0 else vr(num, 16)))
        self.round1(den)
        a(f'v_add_f32 v{den}, 0x358637bd, v{den}')
        self.round1(den)
        a(f'v_rcp_f32 v{den}, v{den}')
        for h in range(2):
            self.round_list([num + i for i in range(8 * h, 8 * h + 8)])
            for i in range(8 * h, 8 * h + 8, 2): self.pk('mul', num + i, num + i, den, bc=(1,))
            for i in range(4 * h, 4 * h + 4): a(f'v_cvt_pk_bf16_f32 v{vq+i}, v{num+2*i}, v{num+2*i+1}')
            self.bs(vq + 4 * h, 4, vT + 4, rWS, T0, 512 * h, 'sc1', 'os')
        self.stamp('ost')
        for r, n in ((fr, 8), (vv, 8), (vPW, 1), (vXF, 1), (vPA, 1), (vPB, 1), (vKP, 1), (accs, 96), (wphi, 8)):
            V.release(r, n)
        assert GS == 0
        vG16 = vL16
        vBa = V.alloc(4); xf = V.alloc(16)
        S(T4, 'kh*(65536 + 64) + WO_H0')
        va(vBa, [(5, 1, 2048), (4, 1, 512), (2, 2, 128), (3, 1, 64), (1, 1, 32), (4, 1, 16), (0, 1, 8)])
        a(f'v_xor_b32 v{vBa}, s{T4}, v{vBa}')
        for q, x_ in ((1, 16), (2, 64), (3, 80)): a(f'v_xor_b32 v{vBa+q}, {x_}, v{vBa}')
        assert WO_H1 == WO_H0 + 65536
        va(vT + 1, LCB)
        S(T2, ('((r1 & 1)*128 + (r1 >> 1))*4096' if TL else '((r1 >> 2)*2 + (r1 & 3)*64)*4096') + (' + ((hp >> 3)*4 + (hp & 3))*64 + (((hp >> 2) ^ p) & 1)*4 + INB + 1024' if D2 else ' + (hp >> 1)*64 + (hp & 1)*4 + INB + 1024'), p=o.get('dflip', 1))
        gaf = V.alloc(16); gp = V.alloc(16); gr = V.alloc(2); vGR = V.alloc(); cn = V.alloc(2)
        def expand(dst, t):
            for i in range(8):
                self.dpp('v_mul_u32_u24', dst + 2 * i, t, cn, f'row_newbcast:{i}')
                self.dpp('v_and_b32', dst + 2 * i + 1, t, cn + 1, f'row_newbcast:{i}')
        a(f"""v_mov_b32 v{cn}, 0x10000
        v_mov_b32 v{cn+1}, s{sMASK}""")
        for i in range(8): self.unpack(xf + 2 * i, xf + 2 * i + 1, xr + i)
        expand(gaf, tb7)
        S(T6, '(gtb*2 + kf)*32768 + OF')
        va(vGR, [(0, 4, 8)])
        vm.wait('os')
        self.barrier()
        self.push(vT + 1, T2, 16, vT + 2, 'L_PD')
        self.stamp('opub')
        def c_clean():
            if CL[1]:
                a("""s_mov_b32 exec_lo, 0xff
                s_mov_b32 exec_hi, 0xff""")
                self.bs(kc, 2, kc + 2, rWS, '0', 0, 'sc1')
                a('s_mov_b64 exec, -1')
            if CL[0]:
                S(T0, 'hp*128 + r1*8 + CFL')
                a(f"""s_cmp_lg_u32 s{sWAVE}, 0
                s_cbranch_scc1 L_NOCC
                v_mov_b32 v{cf}, s{sTAG}
                s_mov_b64 exec, 1""")
                self.bs(cf, 1, vZ, rWS, T0, 0, 'sc1', count=False)
                a("""s_mov_b64 exec, -1
                L_NOCC:""")
        if o.get('ccat', 3) == 0: c_clean()
        V.release(vq, 8)
        late_wo = bool(wl)
        while wl: wo_dma(wl.pop(0))
        V.release(vWo)
        MS = o.get('msum', 1)
        def d_work():
            for k in range(2):
                for i in range(8): a(f'v_mov_b32_dpp v{gp + 8*k + i}, v{tb7 + 1 + k} row_newbcast:{i} row_mask:0xf bank_mask:0xf')
            if MS:
                a(f"""v_and_b32 v{vT}, 3, v{vL}
                v_cmp_eq_u32 vcc, 1, v{vT}
                v_cmp_eq_u32 {sr(sCMP, 2)}, 0, v{vT}
                v_mov_b32 v{vT+1}, 0x3f803f80""")
                for i in range(8): a(f'v_cndmask_b32 v{gp+i}, v{gp+8+i}, v{gp+i}, vcc')
                for i in range(8): a(f'v_cndmask_b32 v{gp+i}, v{gp+i}, v{vT+1}, {sr(sCMP, 2)}')
            if o.get('stouch', TL):
                S(T2, '(rt*16 + cb)*2048 + w*256 + STAT')
                a(f'v_lshlrev_b32 v{gr}, 7, v{vL}')
                a('s_mov_b64 exec, 3')
                self.bl(gr, 1, gr, rWS, T2, 0, '')
                a('s_mov_b64 exec, -1')
            if late_wo or o.get('stouch', TL): vm.wait_all()
            self.stamp('dw')
        AD2 = o['AD2']
        LK2 = o.get('LK2', 4); NB2 = LK2 + 1
        accA = V.alloc(16); accB = V.alloc(16); Ar = V.alloc(4 * AD2); Br = V.alloc(4 * NB2)
        def b2_read(n, q):
            st_, c = divmod(n, 4)
            self.tr(Br + 4 * (n % NB2) + 2 * q, vBa + (c ^ 2), st_ * 4096 + q * 1024, ('B', n))
        def a2_load(s):
            if s % 2 == 0: S(T7, '(rot ^ n)*2048 + T6' if D2 else '((rot + n) & 15)*2048 + T6', n=(s // 2) & o.get('a2mask', 15))
            self.bl(Ar + 4 * (s % AD2), 4, vL16, rWS, T7, (s % 2) * 1024, o.get('a2mod', 'sc1'), ('A', s))
        self.inbox(2, 2, [0] if D2 else None, work=d_work)
        a('s_barrier')
        self.stamp('ook')
        if o.get('prio2', 1):
            a(f"""s_cmp_lt_u32 s{sWAVE}, 4
            s_cbranch_scc1 L_P2
            s_setprio {o.get('prio2', 1)}
            L_P2:""")
        nx2 = 0
        def a2_more(lim):
            nonlocal nx2
            while nx2 < min(lim, 32):
                if nx2 == 16 and D2:
                    a(f"""s_cmp_eq_u32 s{sPL + 1}, s{sTAG}
                    s_cbranch_scc1 L_D2""")
                    l_ = list(lg.q)
                    self.inbox(2, 2, [1])
                    lg.q = l_
                    a("""L_D2:
                    s_barrier""")
                a2_load(nx2); nx2 += 1
                if nx2 == 32:
                    ld_gr()
                    if o.get('ccat', 3) == 1: c_clean()
        S(T5, 'rt*128 + GR')
        ld_gr = lambda: self.bl(gr, 2, vGR, rWS, T5, 0, 'sc1', 'gr')
        a2_more(2)
        for n in range(LK2):
            for q in range(2): b2_read(n, q)
        a2_more(o.get('A20', 4))
        for n in range(64):
            st_, c = divmod(n, 4)
            if n % o.get('wev2', 1) == 0: lg.wait(('B', min(n + o.get('wev2', 1) - 1, 63)))
            for th in range(2):
                if c == 0: vm.wait(('A', 2 * st_ + (th if st_ == 0 or not o.get('vw2', 1) else 1)))
                d = (accB, accA)[c >> 1] + 8 * (c & 1) + 4 * th
                a(f'v_mfma_f32_16x16x32_bf16 {vr(d, 4)}, {vr(Br + 4*(n % NB2), 4)}, {vr(Ar + 4*((2*st_ + th) % AD2), 4)}, ' + ('0' if st_ == 0 else vr(d, 4)))
                if n + LK2 < 64: b2_read(n + LK2, th)
            if n == o.get('prio2n', 18): a('s_setprio 0')
            if c in o.get('a2at', (0, 1)): a2_more(min(nx2 + 1, 2 * st_ + AD2))
            if c == 3 and AD2 == 4: a2_more(2 * st_ + 6)
        self.stamp('gemm2')
        if o.get('prio2', 1): a('s_setprio 0')
        S(T0, 'w*4096')
        a(f'v_add_u32 v{vT}, s{T0}, v{vG16}')
        for q in range(4): self.dw('ds_write_b128', vT, accB + 4 * q, 4, L_EXCH - GS + q * 1024)
        for i in range(8): a(f'v_permlane16_swap_b32 v{accA + 8*(i >> 2) + (i & 3)}, v{accA + 8*(i >> 2) + 4 + (i & 3)}')
        S(T0, '(w ^ 4)*4096'); va(vT + 1, [(0, 4, 16), (4, 1, 1024), (5, 1, 512)], T0)
        S(T0, 'kh*2048 + (w & 3)*512 + L_SP'); va(vT + 2, [(0, 5, 16), (5, 1, 8)], T0)
        S(T0, 'kh*64 + L_TB'); va(vT + 3, [(0, 3, 4), (5, 1, 32)], T0)
        vSG = V.alloc()
        S(T6, 'rt*32768 + w*256 + STAT'); va(vSG, [(0, 4, 16), (4, 2, 2048)])
        sm = Br; one = Br + 4
        a(f'v_mov_b32 v{one}, 0x3f803f80')
        fd = list(o['fdma']); assert sum(fd) == len(fq)
        self.stamp('exw')
        self.barrier()
        self.stamp('ex1')
        for q in range(4): self.r128(accB + 4 * q, vT + 1, L_EXCH - GS + (q >> 1) * 2048 + (q & 1) * 256, ('ex', q))
        ffn_dma(fd[0], T1)
        for h in range(2):
            for q in (2 * h, 2 * h + 1):
                lg.wait(('ex', q))
                self.pk('add', accA + 4 * q, accA + 4 * q, accB + 4 * q); self.pk('add', accA + 4 * q + 2, accA + 4 * q + 2, accB + 4 * q + 2)
            rg = range(8 * h, 8 * h + 8)
            self.round_list([accA + i for i in rg])
            for i in range(8 * h, 8 * h + 8, 2): self.pk('mul', accA + i, accA + i, gaf + i)
            self.round_list([accA + i for i in rg])
            for i in range(8 * h, 8 * h + 8, 2): self.pk('add', accA + i, accA + i, xf + i)
            for i in range(4 * h, 4 * h + 4): a(f'v_cvt_pk_bf16_f32 v{xr+i}, v{accA+2*i}, v{accA+2*i+1}')
        self.stamp('x1c')
        if MS:
            for t in range(2): a(f'v_mfma_f32_32x32x16_bf16 {vr(accB, 16)}, {vr(gp + 4*t, 4)}, {vr(xr + 4*t, 4)}, ' + ('0' if t == 0 else vr(accB, 16)))
            for i in range(8): a(f'v_dot2_f32_bf16 v{sm + (i & 1)}, v{xr+i}, v{xr+i}, ' + ('0' if i < 2 else f'v{sm + (i & 1)}'))
            a(f"""v_add_f32 v{sm+2}, v{sm}, v{sm+1}
            v_add_f32 v{sm}, v{sm}, v{sm+1}
            v_permlane32_swap_b32 v{sm}, v{sm+2}
            s_mov_b32 exec_lo, 0
            v_add_f32 v{accB}, v{sm}, v{sm+2}
            v_mov_b32 v{accB+1}, v{accB+2}
            s_mov_b32 exec_lo, -1""")
            self.dw('ds_write_b64', vT + 2, accB, 2)
        else:
            for i in range(8):
                for d, b in ((sm, one), (sm + 2, xr + i), (sm + 1, gp + i), (sm + 3, gp + 8 + i)):
                    a(f'v_dot2_f32_bf16 v{d}, v{xr+i}, v{b}, ' + ('0' if i == 0 else f'v{d}'))
            a(f"""v_permlane32_swap_b32 v{sm}, v{sm+2}
            v_permlane32_swap_b32 v{sm+1}, v{sm+3}""")
            self.pk('add', sm, sm, sm + 2)
            self.dw('ds_write_b64', vT + 2, sm, 2)
        for q in range(4): self.dw('ds_write_b32', vT + 3, tb4 + q, 1, 128 * q)
        a(f'v_add_u32 v{vT}, {L_SP}, v{vL16}')
        va(vT + 1, LCB)
        S(T0, '(rt*16 + cb)*2048 + STAT')
        S(T3, ('((rt & 1)*128 + (rt >> 1))*4096' if TL else '((rt & 3)*64 + (rt >> 2)*2)*4096') + ' + (cb >> 1)*64 + (cb & 1)*4 + INB + 1536')
        self.barrier()
        self.stamp('x1st')
        a(f"""s_cmp_lg_u32 s{sWAVE}, 0
        s_cbranch_scc1 L_PE""")
        for q in range(4): a(f'ds_read_b128 {vr(accB + 4*q, 4)}, v{vT} offset:{(q & 1) * 2048 + (q >> 1) * 1024}')
        for h in range(2):
            b = accB + 8 * h
            a(f's_waitcnt lgkmcnt({2 - 2*h})')
            self.pk('add', b, b, b + 4); self.pk('add', b + 2, b + 2, b + 6)
            a(f"""v_add_f32 v{b+1}, v{b+1}, v{b+3}
            v_mov_b32 v{b+3}, s{sTAG}""")
        if TL:
            self.bs2([(accB + 8 * h, 4, vL16, T0, 1024 * h) for h in range(2)])
            a('s_cbranch_scc1 L_PE')
        else:
            for h in range(2): self.bs(accB + 8 * h, 4, vL16, rWS, T0, 1024 * h, 'sc1', count=False)
        a('s_mov_b64 exec, 0xffff')
        self.bs(accB + 3, 1, vT + 1, rWS, T3, 0, 'sc1', count=False)
        a("""s_mov_b64 exec, -1
        L_PE:""")
        self.stamp('x1pub')
        if o.get('ccat', 3) == 2: c_clean()
        V.release(accA, 16); V.release(accB, 16); V.release(Ar, 4 * AD2); V.release(Br, 4 * NB2); V.release(vBa, 4); V.release(xf, 16); V.release(gaf, 16); V.release(gp, 16)
        x1 = V.alloc(16); hh = V.alloc(16); mf = V.alloc(32); sg = V.alloc(16); op = V.alloc(8)
        st = V.alloc(2); vRid = V.alloc(); ck = V.alloc(4); vOT = V.alloc()
        ct = V.alloc(12, 4)
        def e_work():
            S(T3, '(w & 3)*(32*144) + kh*64'); va(vOT, [(0, 5, 144), (5, 1, 32)], T3)
            for q in range(2): self.dw('ds_write_b128', vOT, xr + 4 * q, 4, L_XT + 16 * q)
            a(f'v_add_u32 v{vOT}, {L_OT}, v{vOT}')
            S(T2, '4094 - (rt*8 + w)*32'); va(vRid, [(0, 4, 2)]); a(f'v_sub_u32 v{vRid}, s{T2}, v{vRid}')
            S(T2, 'w*128 + L_ST2'); va(vT + 4, [(0, 4, 8)], T2)
            S(T2, '(w & 3)*256 + L_ST2'); va(vT + 6, [(0, 5, 8)], T2)
            va(vT + 7, [(0, 3, 8)], None, L_K1)
            self.finish_load('gr', ld_gr, [gr + 1])
            for ctl in ('quad_perm:[1,0,3,2]', 'quad_perm:[2,3,0,1]', 'row_half_mirror', 'row_ror:8'): self.dpp('v_add_f32', gr, gr, gr, ctl)
            a(f"""s_cmp_lg_u32 s{sWAVE}, 1
            s_cbranch_scc1 L_NOCT""")
            va(vT + 1, [(0, 4, 8)], None, L_TB)
            a(f"""ds_read_b64 {vr(ct + 2, 2)}, v{vT+1}
            ds_read_b64 {vr(ct + 6, 2)}, v{vT+1} offset:128
            ds_read_b64 {vr(ct + 8, 2)}, v{vT+1} offset:384
            s_waitcnt lgkmcnt(0)""")
            for b in (ct, ct + 4):
                self.unpack(b, b + 1, b + 2); self.unpack(b + 2, b + 3, b + 3)
            a('L_NOCT:')
        def f_pre(part):
            if part == 0:
                a(f"""s_cmp_lt_u32 s{sWAVE}, 4
                s_cbranch_scc1 L_NOST""")
                S(T0, '(w - 4)*4096 + L_GU')
                a(f'v_add_u32 v{vT}, s{T0}, v{vL16}')
                a(f'v_add_u32 v{vT+3}, {L_DN - L_GU}, v{vT}')
                for n, (m, i) in enumerate(freg):
                    for back in range(2):
                        self.dw('ds_write_b128', vT if m < 2 else vT + 3, big + 8 * n + 4 * back, 4, f_lds(m, i) - (L_GU if m < 2 else L_DN) + (1 - back) * 16384)
                a('L_NOST:')
                return
            for i in range(8): self.unpack(x1 + 2 * i, x1 + 2 * i + 1, xr + i)
            expand(mf, tb4); expand(mf + 16, tb4 + 1)
        if TL:
            a(f"""s_cmp_lg_u32 s{sLOC}, 0
            s_cbranch_scc1 L_ELOC""")
            self.inbox(3, 2)
            a("""s_barrier
            L_ELOC:""")
        else:
            ffn_dma(fd[1])
            self.inbox(3, 2, work=lambda: (e_work(), f_pre(0)))
            a('s_barrier')
        self.stamp('x1ok')
        def ld_sg():
            for q in range(4):
                S(T0, 'T6 + q', q=q * 8192)
                self.bl(sg + 4 * q, 4, vSG, rWS, T0, 0, 'sc1')
        self.try_load(ld_sg, [sg + 3, sg + 7, sg + 11, sg + 15], vT, e_work if TL else lambda: f_pre(1))
        V.release(vSG)
        self.stamp('x1ld')
        if o.get('htouch', 1):
            S(T2, '(fs*4 + kq)*2048 + w*256 + HGR')
            vDum = V.alloc()
            a(f'v_lshlrev_b32 v{vDum}, 7, v{vL}')
            a('s_mov_b64 exec, 3')
            self.bl(vDum, 1, vDum, rWS, T2, 0, '')
            a('s_mov_b64 exec, -1')
        ffn_dma(fd[2], T2)
        A_, B_, C_, U_ = sg, sg + 1, sg + 2, sg + 3
        self.pk('add', sg, sg, sg + 4); self.pk('add', sg + 8, sg + 8, sg + 12)
        a(f"""v_add_f32 v{C_}, v{C_}, v{sg+6}
        v_add_f32 v{sg+10}, v{sg+10}, v{sg+14}""")
        self.pk('add', sg, sg, sg + 8)
        a(f"""v_add_f32 v{C_}, v{C_}, v{sg+10}
        v_mov_b32 v{U_}, v{B_}
        v_permlane32_swap_b32 v{A_}, v{C_}
        v_permlane32_swap_b32 v{B_}, v{U_}
        v_add_f32 v{A_}, v{A_}, v{C_}
        v_add_f32 v{B_}, v{B_}, v{U_}
        v_permlane16_swap_b32 v{A_}, v{B_}
        v_add_f32 v{U_}, v{A_}, v{B_}
        v_add_f32 v{A_}, v{A_}, v{B_}
        v_permlane16_swap_b32 v{A_}, v{U_}
        v_mul_f32 v{C_}, 0x3a800000, v{A_}
        v_mul_f32 v{A_}, 0x3a800000, v{A_}
        v_permlane32_swap_b32 v{A_}, v{C_}""")
        self.stat_math(A_, C_, st, st + 1)
        S(T0, 'w*8 + L_K1')
        a(f"""v_rcp_f32 v{st+1}, v{st+1}
        v_fma_f32 v{U_}, -v{st}, v{gr}, v{U_}
        v_mov_b32 v{vT+1}, s{T0}
        v_mul_f32 v{U_}, v{U_}, v{st+1}""")
        self.dw('ds_write_b64', vT + 4, st, 2)
        a(f"""s_movk_i32 s{T0}, 0xfff
        v_ashrrev_i32 v{A_}, 31, v{U_}
        v_or_b32 v{A_}, 0x80000000, v{A_}
        v_xor_b32 v{A_}, v{A_}, v{U_}
        v_bfi_b32 v{ck}, s{T0}, v{vRid}, v{A_}""")
        def top2(ctls, first):
            for n, ctl in enumerate(ctls):
                if n == 0 and first:
                    self.dpp('v_min_u32', ck + 1, ck, ck, ctl); self.dpp('v_max_u32', ck, ck, ck, ctl)
                    continue
                self.dpp('v_min_u32', ck + 2, ck, ck, ctl); self.dpp('v_max_u32', ck + 1, ck + 1, ck + 1, ctl); self.dpp('v_max_u32', ck, ck, ck, ctl)
                a(f'v_max_u32 v{ck+1}, v{ck+1}, v{ck+2}')
        top2(('row_ror:8', 'row_ror:4', 'row_ror:2', 'row_ror:1'), True)
        self.dw('ds_write_b64', vT + 1, ck, 2)
        va(vT + 2, [(0, 1, 128 * 4096), (1, 3, 4096)] if TL else [(0, 2, 64 * 4096), (2, 2, 2 * 4096)])
        S(T1, ('cb*32768' if TL else '((cb & 7)*8 + (cb >> 3))*4096') + ' + (rt >> 1)*64 + (rt & 1)*16 + INB + 2560')
        self.barrier()
        self.stamp('ln2')
        self.dr('ds_read_b64', ck, 2, vT + 7, 0, 'k'); self.dr('ds_read_b64', st, 2, vT + 6, 0, 's')
        lg.wait('k')
        top2(('quad_perm:[1,0,3,2]', 'quad_perm:[2,3,0,1]', 'row_half_mirror'), False)
        a(f"""v_or_b32 v{ck+2}, 1, v{ck+1}
        v_mov_b32 v{ck+1}, s{sTAG}
        v_mov_b32 v{ck+3}, s{sTAG}
        s_cmp_lg_u32 s{sWAVE}, 0
        s_cbranch_scc1 L_NOF
        s_mov_b64 exec, 0xffff""")
        self.bs(ck, 4, vT + 2, rWS, T1, 0, 'sc1', count=False)
        a("""s_mov_b64 exec, -1
        L_NOF:""")
        self.stamp('Fpub')
        a(f"""s_cmp_lg_u32 s{sWAVE}, 1
        s_cbranch_scc1 L_NOC
        v_and_b32 v{vT}, 16, v{vL}
        v_cmp_eq_u32 vcc, 0, v{vT}
        v_cndmask_b32 v{vT}, v{ck+2}, v{ck}, vcc
        v_not_b32 v{vT}, v{vT}
        v_bfe_u32 v{vT}, v{vT}, 1, 7
        v_lshlrev_b32 v{vT+2}, 3, v{vT}
        v_mul_u32_u24 v{vT}, 144, v{vT}
        v_add_u32 v{vT+2}, {L_ST2}, v{vT+2}""")
        va(vT + 1, [(0, 4, 8)])
        cx, cs, ch = sg, sg + 4, sg + 8
        a(f"""v_add_u32 v{vT}, v{vT}, v{vT+1}
        ds_read_b64 {vr(cs, 2)}, v{vT+2}
        ds_read_b64 {vr(cx, 2)}, v{vT} offset:{L_XT}""")
        va(vT + 2, [(0, 4, 16), (4, 1, 16384), (5, 1, 4096)])
        va(vT + 3, [(4, 1, 16384)])
        S(T0, 'rt*32768 + cb*256 + CAND'); S(T3, 'rt*32768 + cb*8 + 8192 + CAND')
        a(f"""v_mov_b32 v{cx+3}, s{sTAG}
        s_waitcnt lgkmcnt(0)""")
        self.unpack(ch, ch + 1, cx); self.unpack(ch + 2, ch + 3, cx + 1)
        for i in (0, 2): self.pk('add', ch + i, ch + i, cs, bc=(1,), neg=(1,))
        self.round_list([ch + i for i in range(4)])
        for i in (0, 2): self.pk('mul', ch + i, ch + i, cs + 1, bc=(1,))
        self.round_list([ch + i for i in range(4)])
        for i in (0, 2): self.pk('mul', ch + i, ch + i, ct + 4 + i)
        self.round_list([ch + i for i in range(4)])
        for i in (0, 2): self.pk('add', ch + i, ch + i, ct + i)
        a(f"""v_mov_b32 v{cx+2}, v{cx+1}
        v_mov_b32 v{cx+1}, s{sTAG}
        s_mov_b32 exec_hi, 0
        v_cvt_pk_bf16_f32 v{cx}, v{ch}, v{ch+1}
        v_cvt_pk_bf16_f32 v{cx+2}, v{ch+2}, v{ch+3}
        s_mov_b32 exec_hi, -1
        v_dot2_f32_bf16 v{cs}, v{cx}, v{ct+8}, 0
        v_mov_b32 v{cs+1}, s{sTAG}
        v_dot2_f32_bf16 v{cs}, v{cx+2}, v{ct+9}, v{cs}""")
        self.bs(cx, 4, vT + 2, rWS, T0, 0, 'sc1', count=False)
        for ctl in ('quad_perm:[1,0,3,2]', 'quad_perm:[2,3,0,1]', 'row_half_mirror', 'row_ror:8'): self.dpp('v_add_f32', cs, cs, cs, ctl)
        a('s_mov_b64 exec, 0x10001')
        self.bs(cs, 2, vT + 3, rWS, T3, 0, 'sc1', count=False)
        a("""s_mov_b64 exec, -1
        L_NOC:""")
        V.release(ct, 12)
        def ln2_tile():
            for i in E2: self.pk('add', hh + i, x1 + i, st, bc=(1,), neg=(1,))
            self.round_list([hh + i for i in range(16)])
            for i in E2: self.pk('mul', hh + i, hh + i, st + 1, bc=(1,))
            self.round_list([hh + i for i in range(16)])
            for i in E2: self.pk('mul', hh + i, hh + i, mf + 16 + i)
            self.round_list([hh + i for i in range(16)])
            for i in E2: self.pk('add', hh + i, hh + i, mf + i)
            self.round_list([hh + i for i in range(16)])
        lg.wait('s')
        self.stamp('cand')
        if o.get('ccat', 3) == 3: c_clean()
        V.release(kc, 4); V.release(cf)
        ffn_dma(fd[3])
        uu = V.alloc(16); vGr = V.alloc(); vDr = V.alloc(); vXs = V.alloc()
        def out_calc():
            expand(mf, tb4 + 2)
            for i in E2: self.pk('mul', hh + i, hh + i, mf + i)
            self.round_list([hh + i for i in range(16)])
            for i in E2: self.pk('add', hh + i, hh + i, x1 + i)
            for i in range(8): a(f'v_cvt_pk_bf16_f32 v{op+i}, v{hh+2*i}, v{hh+2*i+1}')
            for q in range(2): self.dw('ds_write_b128', vOT, op + 4 * q, 4, 16 * q)
            S(T3, 'w*(16*144) + L_OT'); va(vOT, [(3, 3, 144), (0, 3, 16)], T3)
        oc = o.get('ocat', 2 if TL else 1); l2 = o.get('l2at', 1 if TL else 0)
        def f_work():
            if TL: f_pre(0); f_pre(1)
            if l2 == 0: ln2_tile()
            if oc == 0: out_calc()
            S(T0, '(w >> 2)*32768 + (w & 3)*32 + L_GU')
            va(vGr, [(4, 2, 8192), (2, 2, 128), (3, 2, 32), (0, 2, 8)]); a(f'v_xor_b32 v{vGr}, s{T0}, v{vGr}')
            S(T0, 'w*64')
            va(vDr, [(2, 1, 512), (3, 1, 4096), (5, 1, 2048), (2, 2, 64), (4, 1, 32), (0, 2, 8)])
            a(f'v_xor_b32 v{vDr}, s{T0}, v{vDr}'); a(f'v_add_u32 v{vDr}, {L_DN}, v{vDr}')
            va(vXs, [(0, 3, 16), (4, 2, 128)], None, L_XS)
            S(T0, 'w*16 + L_K2'); a(f'v_mov_b32 v{vT}, s{T0}')
            va(vT + 1, [(0, 3, 16)], None, L_K2)
            a(f'v_and_b32 v{vT+4}, 8, v{vL}')
            a(f'v_cmp_eq_u32 {sr(sCMP, 2)}, 0, v{vT+4}')
            self.stamp('oc')
        self.inbox(5, 8, (1, 3, 5, 7), f_work)
        P = sPL
        a(f"""s_min_u32 s{P+1}, s{P}, s{P+4}
        s_max_u32 s{P}, s{P}, s{P+4}
        s_max_u32 s{P+3}, s{P+2}, s{P+6}
        s_min_u32 s{P+2}, s{P+2}, s{P+6}
        s_max_u32 s{P+4}, s{P+1}, s{P+3}
        s_min_u32 s{P+1}, s{P+1}, s{P+3}
        v_mov_b32 v{uu}, s{P}
        v_mov_b32 v{uu+3}, s{P+2}
        v_mov_b32 v{uu+1}, s{P+4}
        v_mov_b32 v{uu+2}, s{P+1}""")
        self.dw('ds_write_b128', vT, uu, 4)
        self.stamp('F2p')
        V.release(big, 8 * len(freg)); V.release(gr, 2); V.release(vGR); V.release(vRid)
        ffn = V.alloc(48); ga_ = V.alloc(16); gb_ = V.alloc(16)
        vm.wait('gu')
        self.barrier()
        self.stamp('F2')
        def gu_frags():
            for s in range(8):
                self.tr(ffn + 4 * s, vGr, s * 1024); self.tr(ffn + 4 * s + 2, vGr, s * 1024 + 512)
        a(f"""s_cmp_lt_u32 s{sWAVE}, 4
        s_cbranch_scc1 L_CSEL""")
        fq0, vq0 = list(fq), list(vm.q)
        if not o.get('f4late', 1): ffn_dma(fd[4])
        gu_frags()
        if l2 == 1: ln2_tile()
        if oc == 1: out_calc()
        if o.get('f4late', 1): ffn_dma(fd[4])
        a("""s_branch L_CSELD
        L_CSEL:""")
        lg.reset(); fq[:] = fq0; vm.q = vq0
        self.r128(uu, vT + 1)
        S(T0, 'w*512 + L_XS'); a(f'v_add_u32 v{vT+2}, s{T0}, v{vL8}')
        S(T0, 'w*4 + L_K3'); a(f'v_mov_b32 v{vT+3}, s{T0}')
        lg.wait_all()
        c4 = uu + 4
        for n, ctl in enumerate(('quad_perm:[1,0,3,2]', 'quad_perm:[2,3,0,1]', 'row_half_mirror')):
            for i in range(4): self.dpp('v_max_u32', c4 + i, uu + 3 - i, uu + i, ctl)
            if n == 2: break
            a(f"""v_max_u32 v{c4+4}, v{c4}, v{c4+2}
            v_max_u32 v{c4+5}, v{c4+1}, v{c4+3}
            v_min_u32 v{c4+6}, v{c4}, v{c4+2}
            v_min_u32 v{c4+7}, v{c4+1}, v{c4+3}
            v_max_u32 v{uu}, v{c4+4}, v{c4+5}
            v_min_u32 v{uu+1}, v{c4+4}, v{c4+5}
            v_max_u32 v{uu+2}, v{c4+6}, v{c4+7}
            v_min_u32 v{uu+3}, v{c4+6}, v{c4+7}""")
        for i in range(4): a(f'v_readfirstlane_b32 s{P+i}, v{c4+i}')
        a(f"""s_bitcmp1_b32 s{sWAVE}, 0
        s_cselect_b32 s{P}, s{P+1}, s{P}
        s_cselect_b32 s{P+2}, s{P+3}, s{P+2}
        s_bitcmp1_b32 s{sWAVE}, 1
        s_cselect_b32 s{P}, s{P+2}, s{P}
        s_and_b32 s{T2}, s{P}, 4095""")
        S(T0, '((15 - (T2 >> 8))*2 + (T2 & 1))*16384 + CAND'); S(T1, 'kq*1024 + T0'); S(T0, 'T0 + 8192')
        va(vT + 6, [(0, 4, 8)])
        def sel_work():
            self.stamp('sel')
            ffn_dma(fd[4], T3)
            gu_frags()
            if l2 == 1: ln2_tile()
            if oc == 1: out_calc()
            S(T2, 'T2*4 + w')
        self.try_load(lambda: (self.bl(uu + 4, 2, vT + 6, rWS, T0, 0, 'sc1'), self.bl(uu, 4, vL16, rWS, T1, 0, 'sc1')), [uu + 1, uu + 3, uu + 5], vT + 4, sel_work)
        a(f'ds_write2_b32 v{vT+2}, v{uu}, v{uu+2} offset0:0 offset1:1'); lg.issue()
        for ctl in ('quad_perm:[1,0,3,2]', 'quad_perm:[2,3,0,1]', 'row_half_mirror', 'row_ror:8'): self.dpp('v_add_f32', uu + 4, uu + 4, uu + 4, ctl)
        a(f"""v_cvt_pk_bf16_f32 v{uu+4}, 0, v{uu+4}
        v_ashrrev_i32 v{uu+5}, 31, v{uu+4}
        v_or_b32 v{uu+5}, 0x80000000, v{uu+5}
        v_xor_b32 v{uu+4}, v{uu+4}, v{uu+5}
        v_and_b32 v{uu+4}, s{sMASK}, v{uu+4}
        v_or_b32 v{uu+4}, s{T2}, v{uu+4}""")
        self.dw('ds_write_b32', vT + 3, uu + 4, 1)
        a('L_CSELD:')
        V.release(vFG); V.release(vFD)
        a(f'v_mov_b32 v{vT}, {L_K3}')
        va(vT + 4, [(0, 4, 16), (5, 1, 8)])
        S(T1, 'fs*8192 + HGR'); S(T7, '(kq*8 + w)*256 + T1')
        self.barrier()
        self.stamp('xsel')
        self.r128(uu, vT)
        lg.wait_all()
        a(f"""v_max_u32 v{uu+4}, v{uu}, v{uu+1}
        v_max_u32 v{uu+5}, v{uu+2}, v{uu+3}
        v_min_u32 v{uu+6}, v{uu}, v{uu+1}
        v_min_u32 v{uu+7}, v{uu+2}, v{uu+3}
        v_min_u32 v{uu+1}, v{uu+4}, v{uu+5}
        v_max_u32 v{uu}, v{uu+4}, v{uu+5}
        v_max3_u32 v{uu+1}, v{uu+1}, v{uu+6}, v{uu+7}
        v_cndmask_b32 v{vT}, v{uu+1}, v{uu}, {sr(sCMP, 2)}
        v_readfirstlane_b32 s{sK1}, v{uu}
        v_and_b32 v{vT}, 3, v{vT}
        v_readfirstlane_b32 s{sK2}, v{uu+1}
        v_lshl_add_u32 v{vT}, v{vT}, 9, v{vXs}""")
        self.r128(uu + 4, vT)
        if oc < 2:
            for q in range(2): self.r128(op + 4 * q, vOT, q * 8 * 144, 'ot')
        a(f"""s_bfe_u32 s{sROW0}, s{sK1}, {3 | (11 << 16)}
        s_bfe_u32 s{sROW1}, s{sK2}, {3 | (11 << 16)}
        s_sub_u32 s{sROW0}, 2047, s{sROW0}
        s_sub_u32 s{sROW1}, 2047, s{sROW1}
        s_waitcnt lgkmcnt({2 if oc < 2 else 0})""")
        gd = [ga_ + 4 * i for i in range(4)] + [gb_ + 4 * i for i in range(4)]
        for s in range(8):
            a(f'v_mfma_f32_16x16x32_bf16 {vr(gd[s], 4)}, {vr(uu + 4, 4)}, {vr(ffn + 4*s, 4)}, 0')
        p0, p1 = uu, uu + 2
        hk = V.alloc(4)
        for p, b in ((p0, 0), (p1, 4)):
            a(f'v_add_f32 v{p}, v{gd[b]}, v{gd[b+1]+1}')
            a(f'v_add_f32 v{p+1}, v{gd[b+2]+2}, v{gd[b+3]+3}')
        a(f"""v_add_f32 v{p0}, v{p0}, v{p0+1}
        v_add_f32 v{p1}, v{p1}, v{p1+1}
        v_mov_b32 v{p0+1}, s{sTAG}
        v_permlane16_swap_b32 v{p1}, v{p1+1}
        s_cmp_ge_u32 s{sJ}, 28
        s_cbranch_scc1 L_NOHP
        v_add_f32 v{p0}, v{p0}, v{p1+1}
        s_mov_b32 exec_lo, 0xffff
        s_mov_b32 exec_hi, 0xffff""")
        self.bs2([(p0, 2, vT + 4, T7, 0)])
        a(f"""s_mov_b64 exec, -1
        L_NOHP:
        v_mov_b32 v{hk}, v{p0}
        v_mov_b32 v{hk+1}, v{p0+1}
        v_add_u32 v{hk+2}, s{T7}, v{vT+4}""")
        self.stamp('Hpub')
        vOr = V.alloc(); vOa = V.alloc()
        def out_store():
            S(T0, 'rt*128 + w*16'); va(vOr, [(3, 3, 1)], T0)
            S(T2, 'T0*2048 + cb*128'); S(T3, 'T2 + 16384')
            va(vOa, [(3, 3, 2048), (0, 3, 16)])
            for q in range(2):
                if q: a(f'v_add_u32 v{vOr}, 8, v{vOr}')
                a(f"""v_cmp_ne_u32 vcc, s{sROW0}, v{vOr}
                v_cmp_ne_u32 {sr(sCMP, 2)}, s{sROW1}, v{vOr}
                s_and_b64 exec, vcc, {sr(sCMP, 2)}""")
                self.bs(op + 4 * q, 4, vOa, rOUT, (T2, T3)[q], 0, o.get('outmod', 'sc1'), count=False)
                a('s_mov_b64 exec, -1')
        lg.wait('ot')
        if o.get('outat', 1) == 0: assert oc < 2; out_store()
        fz = V.alloc(4)
        sFR, sFK, sFC0 = T4, T5, T6
        a(f"""s_bitcmp1_b32 s{sX if TL else sRT}, {1 if TL else 2}
        s_cselect_b32 s{sFR}, s{sROW1}, s{sROW0}
        s_cselect_b32 s{sFK}, s{sK2}, s{sK1}
        s_cmp_lg_u32 s{sWAVE}, 7
        s_cbranch_scc1 L_NOFZ
        s_cmp_lg_u32 s2, 0
        s_cbranch_scc1 L_NONON
        v_mov_b32 v{vT+2}, s{sTAG}
        s_mov_b64 exec, 1""")
        self.bs(vT + 2, 1, vZ, rWS, '0', 0, 'sc1', count=False)
        a(f"""s_mov_b64 exec, -1
        L_NONON:""")
        S(sFC0, '(x >> 2)*2 + (x & 1)' if TL else '(rt >> 3)*2 + (rt & 1)')
        S(T7, '(cb*8 + x)*(56*128) + GGR' if TL else '(cb*8 + (rt >> 2)*2 + (rt & 1))*(56*128) + GGR')
        S(sU, 'T4*2048 + cb*128 + T6*32')
        va(vT + 6, [(0, 3, 4)])
        S(T0, 'T6*32 + L_GB'); a(f'v_add_u32 v{vT+1}, s{T0}, v{vT+6}')
        a(f'ds_read_b32 v{fz+2}, v{vT+1}')
        S(sK1, '((T4 >> 7)*2 + ((T5 >> 2) & 1))*16384 + cb*256 + T6*64 + CAND'); S(sK2, 'k1 + 4096')
        va(vT + 7, [(0, 3, 8)])
        ld_fz = lambda: (self.bl(st, 2, vT + 7, rWS, sK1, 0, 'sc1'), self.bl(fz, 2, vT + 7, rWS, sK2, 0, 'sc1'))
        q_ = list(vm.q); ld_fz(); vm.q = q_
        a(f"""s_and_b32 s{T0}, s{sFK}, s{sMASK}
        s_ashr_i32 s{T2}, s{T0}, 31
        s_andn2_b32 s{T2}, 0x7fff0000, s{T2}
        s_or_b32 s{T2}, s{T2}, 0x80000000
        s_xor_b32 s{T0}, s{T0}, s{T2}
        v_mov_b32 v{fz+3}, s{T0}
        v_mul_f32 v{fz+3}, s{sL2E}, v{fz+3}
        v_exp_f32 v{fz+3}, -v{fz+3}
        v_add_f32 v{fz+3}, 1.0, v{fz+3}
        v_rcp_f32 v{fz+3}, v{fz+3}""")
        self.round1(fz + 3)
        a(f"""L_NOFZ:
        s_cmp_lt_u32 s{sJ}, 28
        s_cbranch_scc1 L_HSEC""")
        if oc == 2:
            out_calc()
            self.barrier()
            for q in range(2): self.r128(op + 4 * q, vOT, q * 8 * 144)
            lg.wait_all()
        a("""s_branch L_GSEC
        L_HSEC:""")
        a(f"""s_cmp_lt_u32 s{sWAVE}, 4
        s_cbranch_scc1 L_HW""")
        if oc == 2: out_calc()
        a("""s_branch L_NOH
        L_HW:""")
        S(T0, 'w*256 + T1')
        va(vT, [(4, 2, 2048), (0, 4, 16)])
        S(T2, 'w*32 + L_ACT'); va(vT + 1, [(5, 1, 128), (2, 1, 16), (1, 1, 8), (3, 1, 4), (0, 1, 2)], T2)
        a(f"""s_cmp_lg_u32 s{sLOC}, 0
        s_cbranch_scc1 L_HLOC""")
        self.spoll([(q, 1, T0, q * 2048 + 1024 + 252) for q in range(4)], range(4))
        a('L_HLOC:')
        self.stamp('Hpre')
        g, u = ga_, ga_ + 4
        self.try_load(lambda: [self.bl(ga_ + 4 * m, 4, vT, rWS, T0, m * 1024, 'sc1') for m in range(2)], [g + 1, g + 3, u + 1, u + 3], vT + 2, out_calc if oc == 2 else None)
        a(f"""v_permlane32_swap_b32 v{g}, v{g+2}
        v_permlane32_swap_b32 v{u}, v{u+2}
        v_add_f32 v{g}, v{g}, v{g+2}
        v_add_f32 v{u}, v{u}, v{u+2}
        v_mov_b32 v{g+2}, v{g}
        v_mov_b32 v{u+2}, v{u}
        v_permlane16_swap_b32 v{g}, v{g+2}
        v_permlane16_swap_b32 v{u}, v{u+2}
        v_add_f32 v{g}, v{g}, v{g+2}
        v_add_f32 v{u}, v{u}, v{u+2}""")
        self.round2(g, u)
        self.silu(g, vT + 2)
        a(f"""v_mul_f32 v{g}, v{g}, v{u}
        v_cvt_pk_bf16_f32 v{g}, v{g}, v{g}
        ds_write_b16 v{vT+1}, v{g}
        L_NOH:""")
        va(vT, [(2, 1, 128), (5, 1, 16)], None, L_ACT)
        va(vT + 1, [(4, 2, 56 * 128), (0, 4, 8)])
        va(vT + 2, [(0, 2, 4096)] if TL else [(0, 1, 64 * 4096), (1, 1, 2 * 4096)])
        S(T0, '(kq*8 + w)*(4*56*128) + fs*128 + GGR')
        S(T1, ('(kq*8 + w)*16384' if TL else '(((kq & 1)*4 + (w >> 1))*8 + (w & 1)*4 + (kq >> 1))*4096') + ' + x*64 + (j >> 2)*4 + INB + 3072')
        vm.wait_all()
        self.barrier()
        self.stamp('Hok')
        for s in range(4):
            self.r128(ga_ + 4 * s, vT, s * 32, ('ac', s))
            self.tr(ffn + 32 + 4 * s, vDr, s * 8192, ('ac', s)); self.tr(ffn + 32 + 4 * s + 2, vDr, s * 8192 + 1024, ('ac', s))
        for s in range(4):
            lg.wait(('ac', s))
            a(f'v_mfma_f32_32x32x16_bf16 {vr(gb_, 16)}, {vr(ga_ + 4*s, 4)}, {vr(ffn + 32 + 4*s, 4)}, ' + ('0' if s == 0 else vr(gb_, 16)))
        if oc == 2:
            for q in range(2): self.r128(op + 4 * q, vOT, q * 8 * 144)
        a(f'v_mov_b32 v{gb_+1}, s{sTAG}')
        self.bs(gb_, 2, vT + 1, rWS, T0, 0, 'sc1')
        a('s_mov_b64 exec, 15')
        self.bs(gb_ + 1, 1, vT + 2, rWS, T1, 0, 'sc1')
        a('s_mov_b64 exec, -1')
        self.stamp('Gpub')
        def hclean():
            a("""s_mov_b32 exec_lo, 0xffff
            s_mov_b32 exec_hi, 0xffff""")
            self.bs(hk, 2, hk + 2, rWS, '0', 0, 'sc1', count=False)
            a('s_mov_b64 exec, -1')
        if o.get('hclean', 3) == 1: hclean()
        lg.wait_all()
        a('L_GSEC:')
        if o.get('outat', 1) == 1: out_store()
        a(f"""s_cmp_lt_u32 s{sJ}, 16
        s_cbranch_scc1 L_GF""")
        if o.get('outat', 1) == 2: out_store()
        if o.get('hclean', 3) >= 2:
            a(f"""s_cmp_ge_u32 s{sJ}, 28
            s_cbranch_scc1 L_FIN
            s_waitcnt vmcnt(0)""")
            hclean()
        a("""s_branch L_FIN
        L_GF:""")
        self.inbox(6, 8, range(7))
        self.stamp('Gpre')
        a('s_barrier')
        if o.get('hclean', 3) == 2: hclean()
        if o.get('hclean', 3) == 3:
            a(f"""s_cmp_eq_u32 s{sWAVE}, 7
            s_cbranch_scc1 L_G7
            s_barrier""")
            if o.get('outat', 1) == 2: out_store()
            hclean()
            a("""s_branch L_FIN
            L_G7:""")
        a(f"""s_cmp_lg_u32 s{sWAVE}, 7
        s_cbranch_scc1 L_FIN""")
        S(T0, 'T7 + 4096')
        gg = [ga_ + 4 * i for i in range(4)] + [uu + 4 * i for i in range(3)]
        self.poll(lambda: [self.bl(gg[n], 4, vL16, rWS, (T7, T0)[n >> 2], (n & 3) * 1024, 'sc1') for n in range(7)],
                  [gg[n] + 1 + 2 * e for n in range(7) for e in range(2)], vT)
        self.finish_load(None, ld_fz, [st + 1, fz + 1], vT)
        self.stamp('Gok')
        if o.get('hclean', 3) == 3: a('s_barrier')
        y0, y1 = gg[0], gg[0] + 1
        for lo, hi in ((0, 1), (2, 3), (4, 5), (0, 2), (4, 6), (0, 4)):
            for e in (0, 2): a(f'v_add_f32 v{gg[lo]+e}, v{gg[lo]+e}, v{gg[hi]+e}')
        a(f'v_mov_b32 v{y1}, v{gg[0]+2}')
        for y in (y0, y1): self.dpp('v_add_f32', y, y, y, 'row_ror:8')
        for sw in ('v_permlane16_swap_b32', 'v_permlane32_swap_b32'):
            for y in (y0, y1): a(f'v_mov_b32 v{y+2}, v{y}')
            for y in (y0, y1): a(f'{sw} v{y}, v{y+2}')
            self.pk('add', y0, y0, y0 + 2)
        self.round2(y0, y1)
        self.pk('mul', y0, y0, fz + 3, bc=(1,))
        self.unpack(vT, vT + 1, st)
        self.round2(y0, y1)
        self.pk('add', y0, y0, vT)
        self.unpack(vT, vT + 1, fz + 2)
        self.round2(y0, y1)
        self.pk('mul', y0, y0, vT)
        self.unpack(vT, vT + 1, fz)
        self.round2(y0, y1)
        self.pk('add', y0, y0, vT)
        a(f'v_cvt_pk_bf16_f32 v{y0}, v{y0}, v{y1}')
        a('s_mov_b64 exec, 0xff')
        self.bs(y0, 1, vT + 6, rOUT, sU, 0, 'sc1')
        a('s_mov_b64 exec, -1')
        if o.get('outat', 1) == 2: out_store()
        if o.get('hclean', 3) == 3: hclean()
        a('L_FIN:')
        if o.get('exfil'):
            self.stamp('fin')
            a('s_waitcnt vmcnt(0)')
            self.stamp('finw')
            a(f'''s_lshl3_add_u32 s{T0}, s2, s{sWAVE}
            s_cmp_lg_u32 s{T0}, {o.get('exwho', 7)}
            s_cbranch_scc1 L_END
            v_readlane_b32 s{T0}, v255, 0
            v_readlane_b32 s{T1}, v255, 1
            v_readlane_b32 s{T2}, v255, 2
            s_sub_u32 s{T2}, s{T2}, s{T1}
            s_max_i32 s{T2}, s{T2}, 0
            s_min_u32 s{T2}, s{T2}, 10000
            s_mul_i32 s{T2}, s{T2}, 10
            s_add_u32 s{T2}, s{T2}, 6000
            L_PAD:
            s_memrealtime {sr(sTM, 2)}
            s_waitcnt lgkmcnt(0)
            s_sub_u32 s{T1}, s{sTM}, s{T0}
            s_cmp_lt_u32 s{T1}, s{T2}
            s_cbranch_scc1 L_PAD''')
        if o.get('padfin'):
            a(f'''s_lshl3_add_u32 s{T0}, s2, s{sWAVE}
            s_cmp_lg_u32 s{T0}, 7
            s_cbranch_scc1 L_END
            s_memrealtime {sr(sTM, 2)}
            s_waitcnt lgkmcnt(0)
            s_mov_b32 s{T0}, s{sTM}
            L_PAD2:
            s_memrealtime {sr(sTM, 2)}
            s_waitcnt lgkmcnt(0)
            s_sub_u32 s{T1}, s{sTM}, s{T0}
            s_cmp_lt_u32 s{T1}, {o['padfin']}
            s_cbranch_scc1 L_PAD2''')
        if self.prof:
            a('s_waitcnt vmcnt(0) lgkmcnt(0)')
            self.stamp('end')
            a(f's_memrealtime {sr(sTM, 2)}')
            a('s_waitcnt lgkmcnt(0)')
            a(f'v_writelane_b32 v255, s{sTM}, 61')
            S(T0, '(wg*8 + w)*256 + STAMPS')
            a(f'v_writelane_b32 v255, s{sSPIN}, 62')
            a(f'v_lshlrev_b32 v{vT+1}, 2, v{vL}')
            a(f'buffer_store_dword v255, v{vT+1}, {sr(rWS, 4)}, s{T0} offen')
            S(T0, 'T0 + 0x100000')
            a(f'buffer_store_dword v254, v{vT+1}, {sr(rWS, 4)}, s{T0} offen')
        a('L_END:')
        a('s_endpgm')
        return self

    def text(self):
        a = self.a
        npad = a.fix_hazards()
        errs = a.check_waits([NAME])
        for e in errs: print('WAITERR', e, file=sys.stderr)
        assert not errs
        hdr = open(os.path.join(os.path.dirname(os.path.abspath(__file__)), 'header.txt')).read()
        s = hdr + '; @launch grid=(256,1,1) block=(512,1,1) lds=163840\n'
        s += '.amdgcn_target "amdgcn-amd-amdhsa--gfx950"\n.text\n'
        s += f'.globl {NAME}\n.p2align 8\n.type {NAME},@function\n'
        body = a.text()
        import subprocess, tempfile
        with tempfile.TemporaryDirectory() as td:
            open(td + '/t.s', 'w').write('.amdgcn_target "amdgcn-amd-amdhsa--gfx950"\n.text\n' + body.replace('CODE_KB', '20480'))
            subprocess.run(['clang', '-x', 'assembler', '-target', 'amdgcn-amd-amdhsa', '-mcpu=gfx950', '-c', td + '/t.s', '-o', td + '/t.o'], check=True)
            subprocess.run(['llvm-objcopy', '-O', 'binary', '-j', '.text', td + '/t.o', td + '/t.bin'], check=True)
            size = os.path.getsize(td + '/t.bin')
        print('; code bytes', size, file=sys.stderr)
        s += body.replace('CODE_KB', str((size // 1024 + 1) * 1024))
        s += '.p2align 10\n.fill 768, 4, 0xbf800000\n'
        s += '.section .rodata,"a"\n' + kernel_desc(NAME, 256, 102)
        print(f'; vgpr hi {self.V.hi}, nops {npad}, instrs {sum(1 for k, _ in a.items if k == "ins")}', file=sys.stderr)
        return s


if __name__ == '__main__':
    import argparse, json
    ap = argparse.ArgumentParser()
    ap.add_argument('-o', default='/dev/stdout')
    ap.add_argument('--prof', action='store_true')
    ap.add_argument('--opts', default='{}')
    args = ap.parse_args()
    g = Gen(args.prof, json.loads(args.opts)).build()
    t = g.text()
    open(args.o, 'w').write(t)
    if args.prof: open(args.o + '.stamps', 'w').write(json.dumps(g.stnames))
```

```python
import sys, os
sys.path.insert(0, os.path.dirname(os.path.abspath(__file__)))
from asm import *

NAME = 'adaLN_cond__linear_kernel_hedgehog__moe_arch_mod__prompt_kernel'

NONCE = 0x0
CFL = 0x8000
MARK = 0x100
GR = 0x010000
MODP2 = 0x020000
SINB = 0x040000
AINB = 0x080000
INA = 0x200000
INB = 0x100000
HF = 0x400000
OF = 0x800000
STAT = 0xC00000
CAND = 0x2000000
HGR = 0x1400000
ZP = 0x1480000
GGR = 0x1500000
KVP = 0x1800000
KIN = 0x1C00000
STAMPS = 0x1600000
WS_BYTES = 268435456

SEC = 8320
SLOT = 3 * SEC
SCR = 6 * SLOT
L_A1 = SCR
L_M2 = SCR + 1024
L_ST = SCR + 2048
L_MP = SCR + 2560
L_WPHI = SCR + 6656
L_MB = SCR + 10752
L_XF = 147456
L_PHK = 0
L_V = 32768
WO_H0 = 32768
WO_H1 = 98304
GS = 0
L_KVF = GS
L_ZF = GS + 8192
L_EXCH = GS
L_MT = 139264
L_GU = 32768
L_DN = 98304
TS = 131072
L_SP = TS
L_ST2 = TS + 4096
L_K1 = TS + 5120
L_K2 = TS + 5184
L_K3 = TS + 5312
L_XS = TS + 5632
L_ACT = TS + 7680
L_TB = TS + 7936
L_GB = L_TB + 256
L_OT = TS + 8704
L_XT = GS

SPIN_LIMIT = 300000

sWAVE, sTAG, sSPIN, sMASK, sL2E = 3, 4, 5, 6, 7
sX, sJ, sR1, sHP, sCB = 8, 9, 10, 11, 12
T0, T1, T2, T3, T4, T5, T6, T7 = 13, 14, 15, 16, 17, 18, 19, 20
sRT = 21
sCMP = 22
sPL = 24
rWS, rX, rW, rWO, rWM, rWG, rWU, rWD, rOUT = 32, 36, 40, 44, 48, 52, 56, 60, 64
KA = 68
pWPHI, pWR, pC = KA + 4, KA + 10, KA + 18
sK1, sK2, sROW0, sROW1, sFS, sKQ, sKH, sKF = 68, 69, 70, 71, 74, 75, 76, 77
sFG, sFD, sU, sROT, sWB, sU0 = 80, 81, 82, 83, 84, 85
sWO2, sW1K, sMF = 88, 89, 90
sINB, sRow, sGTB, sC32 = 92, 93, 94, 95
sWC = 91
sXC = 94
pDBG = 30
sLOC = 93
XT = (96, 97, 98, 99)
sTM = 100
ENV = dict(wg=2, w=sWAVE, x=sX, j=sJ, r1=sR1, hp=sHP, cb=sCB, rt=sRT, row=sRow, gtb=sGTB, c32=sC32, kh=sKH, kf=sKF, fs=sFS, kq=sKQ,
           rot=sROT, wb=sWB, u0=sU0, wo2=sWO2, w1k=sW1K, mf=sMF, u=sU, fg=sFG, fd=sFD, T0=T0, T1=T1, T2=T2, T3=T3, T4=T4, T5=T5, T6=T6, T7=T7, row0=sROW0, row1=sROW1, k1=sK1, xc=sXC)


class Gen:
    def __init__(self, prof=False, opts=None):
        self.a = Asm()
        self.vm = Counter(self.a, 'vmcnt', 63)
        self.lg = Counter(self.a, 'lgkmcnt', 15)
        self.V = RegAlloc(254, 1)
        self.prof = prof
        self.nopk = False
        self.nst = 0
        self.stnames = []
        self.S = SExpr(self.a, ENV, {k: v for k, v in globals().items() if isinstance(v, int) and k.isupper() and k not in ENV}, XT)
        self.o = dict(AD=13, LOOK=6, wev=2, AD2=8, A20=6, wburst=(0, 3, 0, 0, 6, 6), wxor=3, LASTB=14, wsch={2: 6, 3: 3, 4: 6, 5: 3, 6: 6, 7: 3, 8: 6, 9: 6, 10: 6, 11: 6, 12: 6, 13: 3},
                      sched={1: 'm1 p2', 2: 's4', 3: 'm1', 4: 's4 p2', 5: 'm1', 6: 'g1', 7: 'm1 h p3', 8: 'g1', 9: 'g1', 10: 'g1', 11: 'g2', 12: 'g2', 13: 'R r1', 14: 'P K o4 f4', 15: 'f2'}, fdma=(3, 0, 1, 1, 1), wowin=(6, 0, 3))
        if opts: self.o.update(opts)

    def bl(self, dst, n, voff, srd, soff, imm=0, mods='', tag=None):
        op = {1: 'dword', 2: 'dwordx2', 4: 'dwordx4'}[n]
        so = soff if isinstance(soff, str) else (sr(soff))
        self.a(f'buffer_load_{op} {vr(dst, n)}, v{voff}, {sr(srd, 4)}, {so} offen' + (f' offset:{imm}' if imm else '') + (' ' + mods if mods else ''))
        self.vm.issue(tag)
    def bs(self, src, n, voff, srd, soff, imm=0, mods='', tag=None, count=True):
        op = {1: 'dword', 2: 'dwordx2', 4: 'dwordx4'}[n]
        so = soff if isinstance(soff, str) else (sr(soff))
        self.a(f'buffer_store_{op} {vr(src, n)}, v{voff}, {sr(srd, 4)}, {so} offen' + (f' offset:{imm}' if imm else '') + (' ' + mods if mods else ''))
        if count: self.vm.issue(tag)
    def bs2(self, items):
        a = self.a
        LL, D = a.label('LOC'), a.label('LOCD')
        a(f's_cmp_lg_u32 s{sLOC}, 0')
        a(f's_cbranch_scc1 {LL}')
        for src, n, voff, soff, imm in items: self.bs(src, n, voff, rWS, soff, imm, 'sc1', count=False)
        a(f's_branch {D}')
        a(f'{LL}:')
        for src, n, voff, soff, imm in items: self.bs(src, n, voff, rWS, soff, imm, '', count=False)
        a(f'{D}:')
    def dma(self, voff, srd, soff, imm=0, mods='', tag=None):
        self.a(f'buffer_load_dwordx4 v{voff}, {sr(srd, 4)}, {sr(soff)} offen' + (f' offset:{imm}' if imm else '') + (' ' + mods if mods else '') + ' lds')
        self.vm.issue(tag)
    def dr(self, op, dst, n, addr, off=0, tag=None):
        assert 0 <= off < 65536, off
        self.a(f'{op} {vr(dst, n)}, v{addr}' + (f' offset:{off}' if off else ''))
        self.lg.issue(tag)
    def tr(self, dst, addr, off, tag=None): self.dr('ds_read_b64_tr_b16', dst, 2, addr, off, tag)
    def r128(self, dst, addr, off=0, tag=None): self.dr('ds_read_b128', dst, 4, addr, off, tag)
    def dw(self, op, addr, src, n, off=0, tag=None):
        assert 0 <= off < 65536, off
        self.a(f'{op} v{addr}, {vr(src, n)}' + (f' offset:{off}' if off else ''))
        self.lg.issue(tag)
    def barrier(self):
        self.lg.wait_all()
        self.a('s_barrier')
    def stamp(self, name):
        ex = self.o.get('exfil')
        if ex and name in ex[:2]:
            self.a(f's_memrealtime {sr(sTM, 2)}')
            self.lg.wait_all()
            self.a(f'v_writelane_b32 v255, s{sTM}, {1 + ex.index(name)}')
        if not self.prof: return
        only = self.o.get('only')
        if only and name not in only and name != 'end': return
        self.a(f's_memtime {sr(sTM, 2)}')
        self.a(f's_memrealtime s[0:1]')
        self.lg.wait_all()
        self.a(f'v_writelane_b32 v255, s{sSPIN if self.o.get("spinst") and self.nst > 3 else sTM}, {self.nst}')
        self.a(f'v_writelane_b32 v254, s0, {self.nst}')
        self.stnames.append(name)
        self.nst += 1
        assert self.nst <= 60
    def unpack(self, lo, hi, src):
        self.a(f'v_lshlrev_b32 v{lo}, 16, v{src}')
        self.a(f'v_and_b32 v{hi}, s{sMASK}, v{src}')
    def round1(self, r):
        self.a(f'v_cvt_pk_bf16_f32 v{r}, 0, v{r}')
    def round2(self, r0, r1):
        self.round1(r0); self.round1(r1)
    def round_list(self, regs):
        for r in regs: self.round1(r)
    def pk(self, op, d, s0, s1, s2=None, bc=(), neg=()):
        srcs = [s0, s1] + ([s2] if s2 is not None else [])
        if self.nopk:
            for h in range(2):
                t = []
                for k, r in enumerate(srcs):
                    kind, n = r if isinstance(r, tuple) else ('v', r)
                    t.append(('-' if k in neg else '') + f'{kind}{n if k in bc else n + h}')
                e64 = '' if op == 'fma' else ('_e64' if (neg or t[1][0] == 's') else '')
                self.a(f'v_{op}_f32{e64} v{d+h}, ' + ', '.join(t))
            return
        txt, sel, selhi = [], [], []
        for k, r in enumerate(srcs):
            kind, n = r if isinstance(r, tuple) else ('v', r)
            if k in bc:
                txt.append(f'{kind}[{n & ~1}:{(n & ~1) + 1}]'); sel.append(n & 1); selhi.append(n & 1)
            else:
                assert n % 2 == 0
                txt.append(f'{kind}[{n}:{n+1}]'); sel.append(0); selhi.append(1)
        assert d % 2 == 0
        m = ''
        if any(sel): m += ' op_sel:[' + ','.join(map(str, sel)) + ']'
        if not all(selhi): m += ' op_sel_hi:[' + ','.join(map(str, selhi)) + ']'
        if neg:
            ng = ','.join('1' if k in neg else '0' for k in range(len(srcs)))
            m += f' neg_lo:[{ng}] neg_hi:[{ng}]'
        self.a(f'v_pk_{op}_f32 v[{d}:{d+1}], ' + ', '.join(txt) + m)
    def dpp(self, op, d, s0, s1, ctl):
        self.a(f'{op}_dpp v{d}, v{s0}, v{s1} {ctl} row_mask:0xf bank_mask:0xf')
    def allreduce(self, v, t, op='v_add_f32', lo=True, b3=True):
        if lo:
            self.dpp(op, v, v, v, 'quad_perm:[1,0,3,2]')
            self.dpp(op, v, v, v, 'quad_perm:[2,3,0,1]')
            self.dpp(op, v, v, v, 'row_half_mirror')
        self.dpp(op, v, v, v, 'row_ror:8')
        self.a(f'v_mov_b32 v{t}, v{v}')
        self.a(f'v_permlane16_swap_b32 v{v}, v{t}')
        self.a(f'{op} v{v}, v{v}, v{t}')
        self.a(f'v_mov_b32 v{t}, v{v}')
        self.a(f'v_permlane32_swap_b32 v{v}, v{t}')
        self.a(f'{op} v{v}, v{v}, v{t}')
    def poll(self, loads, tagregs, tmp=None):
        a = self.a
        L, D = a.label('POLL'), a.label('PDONE')
        a(f'{L}:')
        loads()
        self.vm.wait_all()
        self.tagcheck(tagregs, tmp)
        a(f's_cbranch_vccz {D}')
        a(f's_add_u32 s{sSPIN}, s{sSPIN}, 1')
        a(f's_cmp_lt_u32 s{sSPIN}, {SPIN_LIMIT}')
        a(f's_cbranch_scc1 {L}')
        a(f'{D}:')
    def weave(self, fn, extras):
        a = self.a
        keep = a.items; a.items = []
        fn()
        body = a.items; a.items = keep
        extras = list(extras); n = len(extras)
        for i, it in enumerate(body):
            while extras and (n - len(extras)) * len(body) <= i * n: extras.pop(0)()
            a.items.append(it)
        for e in extras: e()
    def tagcheck(self, tagregs, tmp):
        a = self.a
        if tagregs[0] == 'nan':
            if len(tagregs) == 3: a(f'v_max_u32 v{tmp}, v{tagregs[1]}, v{tagregs[2]}')
            a(f'v_cmp_eq_u32 vcc, -1, v{tmp if len(tagregs) == 3 else tagregs[1]}')
        elif len(tagregs) == 1:
            a(f'v_cmp_ne_u32 vcc, s{sTAG}, v{tagregs[0]}')
        else:
            a(f'v_bitop3_b32 v{tmp}, v{tagregs[0]}, v{tagregs[1]}, s{sTAG} bitop3:0x7e')
            for t in tagregs[2:]: a(f'v_bitop3_b32 v{tmp}, v{tmp}, v{t}, s{sTAG} bitop3:0xf6')
            a(f'v_cmp_ne_u32 vcc, 0, v{tmp}')
    def try_load(self, loads, tagregs, tmp=None, between=None, pre=None):
        a = self.a
        n0 = len(self.vm.q)
        loads()
        self.vm.q[-1] = tg = ('try', a.label('T'))
        if between: between()
        self.vm.wait(tg)
        OK = a.label('TOK')
        self.tagcheck(tagregs, tmp)
        a(f's_cbranch_vccz {OK}')
        q, l = list(self.vm.q), list(self.lg.q)
        if pre: pre()
        self.poll(loads, tagregs, tmp)
        self.vm.q, self.lg.q = q, l
        a(f'{OK}:')
    def finish_load(self, tg, loads, tagregs, tmp=None, pre=None):
        a = self.a
        self.vm.wait(tg)
        OK = a.label('TOK')
        self.tagcheck(tagregs, tmp)
        a(f's_cbranch_vccz {OK}')
        q, l = list(self.vm.q), list(self.lg.q)
        if pre: pre()
        self.poll(loads, tagregs, tmp)
        self.vm.q, self.lg.q = q, l
        a(f'{OK}:')
    def spoll(self, loads, checks, work=None, pipe=0):
        a = self.a
        L, C, D = a.label('SPOLL'), a.label('SCHK'), a.label('SDONE')
        def issue(note=''):
            for d, n, so, imm in loads:
                op = {1: 'dword', 2: 'dwordx2', 4: 'dwordx4', 8: 'dwordx8'}[n]
                a(f's_load_{op} {sr(sPL + d, n)}, {sr(rWS, 2)}, s{so} offset:{imm} glc' + note)
        if pipe:
            self.lg.wait_all()
            for k in checks: a(f's_not_b32 s{sPL + k}, s{sTAG}')
            issue(' ; nowait')
            if work: work()
            a(f'{L}:')
            a(f's_add_u32 s{sSPIN}, s{sSPIN}, 1')
            a(f's_cmp_ge_u32 s{sSPIN}, {SPIN_LIMIT}')
            a(f's_cbranch_scc1 {D}')
            ks = list(checks)
            a(f's_xor_b32 s{XT[0]}, s{sPL + ks[0]}, s{sTAG} ; nowait')
            for k in ks[1:]:
                a(f's_xor_b32 s{XT[1]}, s{sPL + k}, s{sTAG} ; nowait')
                a(f's_or_b32 s{XT[0]}, s{XT[0]}, s{XT[1]}')
            a(f's_cbranch_scc0 {D}')
            issue(' ; nowait')
            a(f's_sleep {pipe}')
            a(f's_branch {L}')
            a(f'{D}:')
            return
        if work:
            issue(); work()
            a(f's_branch {C}')
        a(f'{L}:')
        issue()
        a(f'{C}:')
        a(f's_add_u32 s{sSPIN}, s{sSPIN}, 1')
        a(f's_cmp_ge_u32 s{sSPIN}, {SPIN_LIMIT}')
        self.lg.wait_all()
        a(f's_cbranch_scc1 {D}')
        for k in checks:
            a(f's_cmp_lg_u32 s{sPL + k}, s{sTAG}')
            a(f's_cbranch_scc1 {L}')
        a(f'{D}:')
    def inbox(self, box, n, checks=None, work=None, pipe=0):
        self.spoll([(0, n, sINB, box * 512)], range(n) if checks is None else checks, work, pipe)
    def va(self, dst, terms, sreg=None, const=0, tmp=None):
        a = self.a; vL = self.vL
        first = True
        for sh, bits, mult in terms:
            full = sh + bits >= 6
            src = vL
            t = dst if first else tmp
            if sh == 0 and full: pass
            elif full: a(f'v_lshrrev_b32 v{t}, {sh}, v{vL}'); src = t
            elif sh == 0: a(f'v_and_b32 v{t}, {(1 << bits) - 1}, v{vL}'); src = t
            else: a(f'v_bfe_u32 v{t}, v{vL}, {sh}, {bits}'); src = t
            p2 = mult & (mult - 1) == 0
            k = mult.bit_length() - 1
            if first:
                if p2 and sreg is not None: a(f'v_lshl_add_u32 v{dst}, v{src}, {k}, s{sreg}'); sreg = None
                elif p2 and k: a(f'v_lshlrev_b32 v{dst}, {k}, v{src}')
                elif p2:
                    if src != dst: a(f'v_mov_b32 v{dst}, v{src}')
                else: a(f'v_mul_u32_u24 v{dst}, {mult}, v{src}')
            else:
                assert p2
                a(f'v_lshl_add_u32 v{dst}, v{src}, {k}, v{dst}')
            first = False
        if sreg is not None: a(f'v_add_u32 v{dst}, s{sreg}, v{dst}')
        if const: a(f'v_add_u32 v{dst}, {const}, v{dst}')
    def push(self, vaddr, soff, nl, vtmp, lab, wave=0):
        a = self.a
        a(f's_cmp_lg_u32 s{sWAVE}, {wave}')
        a(f's_cbranch_scc1 {lab}')
        a(f'v_mov_b32 v{vtmp}, s{sTAG}')
        a(f's_mov_b32 exec_hi, 0')
        if nl < 32: a(f's_mov_b32 exec_lo, {(1 << nl) - 1}')
        self.bs(vtmp, 1, vaddr, rWS, soff, 0, 'sc1', count=False)
        a('s_mov_b64 exec, -1')
        a(f'{lab}:')
    def silu(self, v, t):
        a = self.a
        a(f'v_mul_f32 v{t}, s{sL2E}, v{v}')
        a(f'v_exp_f32 v{t}, -v{t}')
        a(f'v_add_f32 v{t}, 1.0, v{t}')
        a(f'v_rcp_f32 v{t}, v{t}')
        a(f'v_mul_f32 v{v}, v{v}, v{t}')
        self.round1(v)
    def gemv_ops(self, wregs, cregs, acc, t0, t1, packed):
        ops = []
        assert t0 % 2 == 0 and t1 == t0 + 1
        for i, (w, c) in enumerate(zip(wregs, cregs)):
            cp = f'v[{c & ~1}:{(c & ~1) + 1}]'
            for d in range(4):
                tt = t0 + 2 * (d & 1)
                ops.append(f'v_lshlrev_b32 v{tt}, 16, v{w+d}')
                ops.append(f'v_and_b32 v{tt+1}, s{sMASK}, v{w+d}')
                ac = f'v[{acc+2*d}:{acc+2*d+1}]'
                if not packed:
                    for h in range(2): ops.append(f'v_mul_f32 v{acc+2*d+h}, v{tt+h}, v{c}' if i == 0 else f'v_fmac_f32 v{acc+2*d+h}, v{tt+h}, v{c}')
                elif i == 0: ops.append(f'v_pk_mul_f32 {ac}, v[{tt}:{tt+1}], {cp} op_sel:[0,{c & 1}] op_sel_hi:[1,{c & 1}]')
                else: ops.append(f'v_pk_fma_f32 {ac}, v[{tt}:{tt+1}], {cp}, {ac} op_sel:[0,{c & 1},0] op_sel_hi:[1,{c & 1},1]')
        for i in range(4): ops.append(f'v_permlane32_swap_b32 v{acc+i}, v{acc+4+i}')
        for i in range(4): ops.append(f'v_add_f32 v{acc+i}, v{acc+i}, v{acc+4+i}')
        for i in range(2): ops.append(f'v_permlane16_swap_b32 v{acc+i}, v{acc+2+i}')
        for i in range(2): ops.append(f'v_add_f32 v{acc+i}, v{acc+i}, v{acc+2+i}')
        for i in range(2): ops.append(f'v_add_f32_dpp v{acc+i}, v{acc+i}, v{acc+i} row_ror:8 row_mask:0xf bank_mask:0xf')
        ops.append(f'v_mov_b32_dpp v{acc}, v{acc+1} quad_perm:[0,1,2,3] row_mask:0xf bank_mask:0xc')
        return ops
    def sum8(self, b):
        self.pk('add', b, b, b + 2); self.pk('add', b + 4, b + 4, b + 6); self.pk('add', b, b, b + 4)
        self.a(f'v_add_f32 v{b}, v{b}, v{b+1}')
    def softmax_pm(self, p, e, out, t, mid=None, part=0, split=0):
        a = self.a
        mx, mn, u0, u1, s0, s1 = t, t + 1, t + 2, t + 3, t + 4, t + 6
        if part != 2:
            self.round_list([p + i for i in range(16)])
            a(f'v_max3_f32 v{mx}, v{p}, v{p+1}, v{p+2}')
            a(f'v_min3_f32 v{mn}, v{p}, v{p+1}, v{p+2}')
            for i in range(3, 15, 2):
                a(f'v_max3_f32 v{mx}, v{mx}, v{p+i}, v{p+i+1}')
                a(f'v_min3_f32 v{mn}, v{mn}, v{p+i}, v{p+i+1}')
            a(f'v_max_f32 v{u0}, v{mx}, v{p+15}')
            a(f'v_min_f32 v{u1}, v{mn}, v{p+15}')
            a(f'v_max_f32 v{mx}, v{mx}, v{p+15}')
            a(f'v_min_f32 v{mn}, v{mn}, v{p+15}')
            a(f'v_permlane32_swap_b32 v{mx}, v{u0}')
            a(f'v_permlane32_swap_b32 v{mn}, v{u1}')
            a(f'v_max_f32 v{mx}, v{mx}, v{u0}')
            a(f'v_min_f32 v{mn}, v{mn}, v{u1}')
            self.pk('mul', mx, mx, ('s', sL2E), bc=(1,))
            for i in range(0, 16, 2):
                self.pk('fma', e + i, p + i, ('s', sL2E), mx, bc=(1, 2), neg=(2,))
                self.pk('fma', p + i, p + i, ('s', sL2E), mn, bc=(1, 2), neg=(0,))
        for i in range(split if part == 2 else 0, 16):
            if mid and i == mid[0]: mid[1]()
            if part == 1 and i == split: return
            a(f'v_exp_f32 v{e+i}, v{e+i}')
            a(f'v_exp_f32 v{p+i}, v{p+i}')
        self.pk('add', s0, e, e + 2); self.pk('add', s1, p, p + 2)
        for i in range(4, 16, 2):
            self.pk('add', s0, s0, e + i); self.pk('add', s1, s1, p + i)
        a(f'v_add_f32 v{u0}, v{s0}, v{s0+1}')
        a(f'v_add_f32 v{u1}, v{s1}, v{s1+1}')
        a(f'v_add_f32 v{mx}, v{s0}, v{s0+1}')
        a(f'v_add_f32 v{mn}, v{s1}, v{s1+1}')
        a(f'v_permlane32_swap_b32 v{mx}, v{u0}')
        a(f'v_permlane32_swap_b32 v{mn}, v{u1}')
        self.pk('add', mx, mx, u0)
        a(f'v_rcp_f32 v{mx}, v{mx}')
        a(f'v_rcp_f32 v{mn}, v{mn}')
        for i in range(0, 16, 2):
            self.pk('mul', e + i, e + i, mx, bc=(1,))
            self.pk('mul', p + i, p + i, mn, bc=(1,))
        for i in range(8):
            a(f'v_cvt_pk_bf16_f32 v{out+i}, v{e+2*i}, v{e+2*i+1}')
            a(f'v_cvt_pk_bf16_f32 v{out+8+i}, v{p+2*i}, v{p+2*i+1}')
    def ln_stats(self, xp, t, m_out, sd_out, fill=()):
        a = self.a
        fill = list(fill)
        def pad(n):
            for _ in range(n):
                if fill: a(fill.pop(0))
        s, u = t, t + 4
        a(f'v_mov_b32 v{u}, 0x3f803f80')
        for i in range(8):
            k = 2 * (i & 1)
            a(f'v_dot2_f32_bf16 v{s+k}, v{xp+i}, v{u}, ' + ('0' if i < 2 else f'v{s+k}'))
            a(f'v_dot2_f32_bf16 v{s+k+1}, v{xp+i}, v{xp+i}, ' + ('0' if i < 2 else f'v{s+k+1}'))
        pad(3)
        self.pk('add', s, s, s + 2)
        for ctl in ('quad_perm:[1,0,3,2]', 'quad_perm:[2,3,0,1]', 'row_half_mirror', 'row_ror:8'):
            pad(2 if ctl.endswith('3,2]') else 1)
            self.dpp('v_add_f32', s, s, s, ctl); self.dpp('v_add_f32', s + 1, s + 1, s + 1, ctl)
        pad(2)
        a(f'v_permlane16_swap_b32 v{s}, v{s+1}')
        a(f'v_add_f32 v{u}, v{s}, v{s+1}')
        a(f'v_add_f32 v{s}, v{s}, v{s+1}')
        pad(2)
        a(f'v_permlane32_swap_b32 v{s}, v{u}')
        a(f'v_add_f32 v{s}, v{s}, v{u}')
        a(f'v_mul_f32 v{u}, 0x3a800000, v{s}')
        a(f'v_mul_f32 v{s}, 0x3a800000, v{s}')
        pad(2)
        a(f'v_permlane16_swap_b32 v{s}, v{u}')
        a(f'v_fma_f32 v{sd_out}, -v{s}, v{s}, v{u}')
        a(f'v_cvt_pk_bf16_f32 v{m_out}, 0, v{s}')
        a(f'v_max_f32 v{sd_out}, 0, v{sd_out}')
        self.round1(sd_out)
        a(f'v_add_f32 v{sd_out}, 0x3727c5ac, v{sd_out}')
        self.round1(sd_out)
        a(f'v_sqrt_f32 v{sd_out}, v{sd_out}')
        pad(99)
        self.round1(sd_out)

    def stat_math(self, s, u, m_out, sd_out):
        a = self.a
        a(f'v_fma_f32 v{sd_out}, -v{s}, v{s}, v{u}')
        a(f'v_cvt_pk_bf16_f32 v{m_out}, 0, v{s}')
        a(f'v_max_f32 v{sd_out}, 0, v{sd_out}')
        self.round1(sd_out)
        a(f'v_add_f32 v{sd_out}, 0x3727c5ac, v{sd_out}')
        self.round1(sd_out)
        a(f'v_sqrt_f32 v{sd_out}, v{sd_out}')
        self.round1(sd_out)
    def ln_stats2(self, x0, x1, t, m_out, sd_out):
        a = self.a
        s0, s1, q0, q1, u = t, t + 1, t + 2, t + 3, t + 4
        a(f'v_mov_b32 v{u}, 0x3f803f80')
        for i in range(8):
            for xx, s_, q_ in ((x0, s0, q0), (x1, s1, q1)):
                a(f'v_dot2_f32_bf16 v{s_}, v{xx+i}, v{u}, ' + ('0' if i == 0 else f'v{s_}'))
                a(f'v_dot2_f32_bf16 v{q_}, v{xx+i}, v{xx+i}, ' + ('0' if i == 0 else f'v{q_}'))
        a(f"""v_permlane32_swap_b32 v{s0}, v{s1}
        v_permlane32_swap_b32 v{q0}, v{q1}
        v_add_f32 v{s0}, v{s0}, v{s1}
        v_add_f32 v{q0}, v{q0}, v{q1}
        v_permlane16_swap_b32 v{s0}, v{q0}
        v_add_f32 v{s0}, v{s0}, v{q0}""")
        for ctl in ('quad_perm:[1,0,3,2]', 'quad_perm:[2,3,0,1]', 'row_half_mirror', 'row_ror:8'): self.dpp('v_add_f32', s0, s0, s0, ctl)
        a(f"""v_mul_f32 v{q0}, 0x3a800000, v{s0}
        v_mul_f32 v{s0}, 0x3a800000, v{s0}
        v_permlane16_swap_b32 v{s0}, v{q0}""")
        self.stat_math(s0, q0, m_out, sd_out)

    def build(self):
        a, V, vm, lg, o, S = self.a, self.V, self.vm, self.lg, self.o, self.S
        E2 = range(0, 16, 2)
        TL = o.get('tl', 0)
        HL = o.get('hl', 1)
        D2 = o.get('d2', 1)
        LCB = [(0, 4, 8 * 4096)] if TL else [(0, 3, 8 * 4096), (3, 1, 4096)]
        a(f'{NAME}:')
        a(f's_load_dwordx16 {sr(KA, 16)}, s[0:1], 0')
        a(f's_load_dwordx8 {sr(KA + 16, 8)}, s[0:1], 64')
        a(f's_load_dwordx2 {sr(rWS, 2)}, s[0:1], 104')
        a(f's_load_dwordx2 {sr(pDBG, 2)}, s[0:1], 96')
        a('s_cmp_ge_u32 s2, 256')
        a('s_cbranch_scc1 L_END')
        if self.prof:
            a(f's_memrealtime {sr(sCMP, 2)}')
            a(f's_memtime {sr(sTM, 2)}')
            a('v_mov_b32 v255, 0')
            a('v_mov_b32 v254, 0')
            self.stnames.append('start'); self.nst = 1
        if o.get('exfil'): a(f's_memrealtime {sr(sTM, 2)}')
        vL = self.vL = V.alloc()
        vL16 = V.alloc()
        vZ = V.alloc()
        vT = V.alloc(8)
        va = lambda dst, terms, sreg=None, const=0: self.va(dst, terms, sreg, const, vT + 5)
        a(f"""v_lshrrev_b32 v{vT}, 6, v0
        v_and_b32 v{vL}, 63, v0
        v_mov_b32 v{vZ}, 0
        v_readfirstlane_b32 s{sWAVE}, v{vT}
        v_lshlrev_b32 v{vL16}, 4, v{vL}""")
        xr = V.alloc(8); acc = V.alloc(8); wphi = V.alloc(8); fr = V.alloc(8); vq = V.alloc(8); vv = V.alloc(8)
        vWM = V.alloc(); vCo = V.alloc(); vWd = V.alloc(); vL8 = V.alloc(); vL32S = V.alloc(); vGA = V.alloc()
        vB = V.alloc(6, 1); vFG = V.alloc(); vFD = V.alloc(); vWo = V.alloc(); vPW = V.alloc(); vXF = V.alloc()
        S(sX, 'wg & 7'); S(sJ, 'wg >> 3')
        S(T2, '(x*4 + w)*64')
        S(T0, 'T2*6144 + (j ^ 1)*128')
        va(vWM, [(3, 3, 4 * 12288), (0, 3, 16)])
        va(vCo, [(3, 3, 8)], T2)
        S(T3, '((x*32 + j)*4 + w - 4)*4096')
        for srd, size in ((rWM, 12582912), (rX, 4194304), (rWS, WS_BYTES)):
            a(f's_mov_b32 s{srd+2}, {size}')
            a(f's_mov_b32 s{srd+3}, 0x20000')
        a(f's_getreg_b32 s{sXC}, hwreg(HW_REG_XCC_ID, 0, 3)')
        if o.get('fakexcc') is not None: a(f's_and_b32 s{sXC}, s{sXC}, {o["fakexcc"]}')
        a(f"""s_getpc_b64 {sr(sCMP, 2) if not self.prof else sr(sPL, 2)}""")
        S(T6, '(j*7 + w)*128')
        va(vT + 6, [(5, 1, 28672)], T6)
        a(f"""v_min_u32 v{vT+6}, CODE_KB, v{vT+6}
        s_cmp_ge_u32 s{sWAVE}, 4
        s_waitcnt lgkmcnt(0)""")
        if self.prof:
            a(f'v_writelane_b32 v255, s{sTM}, 0')
            a(f'v_writelane_b32 v255, s{sCMP}, 63')
            a(f'v_writelane_b32 v254, s{sCMP}, 0')
            a(f's_mov_b64 {sr(sCMP, 2)}, {sr(sPL, 2)}')
        if o.get('exfil'):
            for k in range(3): a(f'v_writelane_b32 v255, s{sTM}, {k}')
        self.stamp('karg')
        raw = V.alloc(16); cv = V.alloc(4); vTk = V.alloc(2)
        xs = V.alloc(16); st = V.alloc(4); mq = V.alloc(4)
        a(f"""s_mov_b64 {sr(rWM, 2)}, {sr(KA + 20, 2)}
        s_mov_b64 {sr(rX, 2)}, {sr(KA, 2)}
        s_load_dword s{sTAG}, {sr(rWS, 2)}, {NONCE}
        s_cbranch_scc1 L_FS""")
        def setup():
            for srd, size in ((rW, 6291456), (rWO, 2097152), (rWG, 7340032), (rWU, 7340032), (rWD, 7340032), (rOUT, 4194304)):
                a(f's_mov_b32 s{srd+2}, {size}')
                a(f's_mov_b32 s{srd+3}, 0x20000')
            for srd, k in ((rW, 2), (rWO, 6), (rWG, 12), (rWU, 14), (rWD, 16), (rOUT, 22)):
                a(f's_mov_b64 {sr(srd, 2)}, {sr(KA + k, 2)}')
            a(f"""s_mov_b32 s{sSPIN}, 0
            s_mov_b32 s{sMASK}, 0xffff0000
            s_mov_b32 s{sL2E}, 0x3fb8aa3b""")
            S(sKH, 'w >> 2')
            va(vT + 2, [(4, 1, 64)]); va(vWd, [(0, 3, 16)])
            a(f'v_xor_b32 v{vWd}, v{vWd}, v{vT+2}'); va(vT + 2, [(3, 3, 6144)]); a(f'v_add_u32 v{vWd}, v{vWd}, v{vT+2}')
            va(vL8, [(0, 6, 8)])
            a(f'v_add_u32 v{vL32S}, {SCR}, v{vL16}')
            S(T0, '(w & 3)*4 + SCR')
            va(vGA, [(4, 2, 32), (0, 3, 128), (3, 1, 16)], T0)
            S(T1, '((j >> 4)*128 + w*8 + x)*1024 + (j & 15)*64 + SINB' if TL else '((x & 6) + ((x & 1)*2 + (j >> 4))*64 + w*8)*1024 + (j & 15)*64 + SINB')
        def tag_hash():
            a(f"""s_mul_i32 s{sTAG}, s{sTAG}, 0x9e3779b1
            s_add_u32 s{sTAG}, s{sTAG}, 0x7f4a7c15""")
        def code_pf():
            a(f's_and_b32 s{sCMP}, s{sCMP}, 0xfffffc00')
            a(f'global_load_dword v{vTk}, v{vT+6}, {sr(sCMP, 2)}')
        wq = [(n, t) for n in range(16) for t in range(3)]
        def w_base(n, wexpr):
            if n < 4 and o.get('wxor', 1):
                if o.get('wxor', 1) < 3: S(T7, '((j >> 4)*2) ^ n' if o.get('wxor', 1) == 1 else o.get('wxe', '((j >> 4) + (x >> 2)*2) ^ n'), n=n)
                else:
                    S(T7, o.get('wxe', 'j & 3' if HL else '(j >> 4) + (x >> 2)*2'))
                    if n: a(f's_cmp_le_u32 s{T7}, {n - 1}'); a(f's_cselect_b32 s{T7}, {n}, {n - 1}')
                S(sU, f'(((T7 + u0) & 15)*8 + {wexpr})*(8*6144) + hp*128')
                S(T7, f'T7*SLOT + (({wexpr}) >> 1)*2080 + (({wexpr}) & 1)*1056')
            else:
                S(sU, f'(((u0 + n) & 15)*8 + {wexpr})*(8*6144) + hp*128', n=n)
                S(T7, f'(({wexpr}) >> 1)*2080 + (({wexpr}) & 1)*1056 + q', q=(n % 6) * SLOT)
        def w_slot(n, t):
            S('m0', 'T7 + q', q=t * SEC)
            self.dma(vWd, rW, sU, 0, o.get('wmod', ''), ('W', n))
            if t < 2: S(sU, 'u + 2048')
        def w_next(cnt=1):
            for _ in range(cnt):
                n, t = wq.pop(0)
                if t == 0: w_base(n, 'w')
                w_slot(n, t)
        wb = list(o['wburst'])
        def w_early():
            if not o.get('wearly'): return
            S(sHP, '(x & 3)*4 + ((j & 3) ^ q)', q=o.get('hpx', 2)); S(sU0, o.get('u0', 'j & 12'))
            w_next(o['wearly'])
        a(f'global_load_dwordx2 {vr(cv, 2)}, v{vCo}, {sr(pC, 2)}'); vm.issue('c')
        for i in range(4):
            self.bl(raw + 4 * i, 4, vWM, rWM, T0, 0, o.get('ntwm', 'nt'), ('wm', i))
            if i < 3: S(T0, 'T0 + 12288')
        a('s_barrier')
        if o.get('bar1', 1): a('s_barrier')
        code_pf(); vm.issue()
        setup()
        wq0 = list(wq); w_early(); wq[:] = wq0
        S(T0, '(((w*16 + ((j ^ 1) & 15))*2 + (j >> 4))*8 + x)*512 + AINB')
        S(T2, ('(((j ^ 1) & 15)*8 + w*2)*512' if TL else '(((j ^ 1) & 7)*8 + w*2 + ((j >> 3) & 1))*512') + ' + x*64 + (j >> 4)*4 + INA')
        va(vT + 6, [(0, 1, 128 * 512), (1, 1, 512)] if TL else [(0, 2, 64 * 512)])
        vm.wait('c')
        self.unpack(cv + 2, cv + 3, cv + 1)
        a(f'v_and_b32 v{cv+1}, s{sMASK}, v{cv}'); a(f'v_lshlrev_b32 v{cv}, 16, v{cv}')
        for i in range(4): self.silu(cv + i, vT + (i & 1))
        gops = self.gemv_ops([raw + 4 * i for i in range(4)], [cv + i for i in range(4)], acc, vT, vT + 1, True)
        for i in range(4):
            vm.wait(('wm', i))
            if i == 3: self.stamp('wmok')
            for s_ in gops[12 * i:12 * i + 12]: a(s_)
        for s_ in gops[48:]: a(s_)
        self.dw('ds_write_b32', vGA, acc, 1, L_A1 - SCR)
        self.barrier()
        a(f'ds_read_b128 {vr(acc, 4)}, v{vL32S} offset:{L_A1 - SCR}')
        tag_hash()
        a('s_waitcnt lgkmcnt(0)')
        self.pk('add', acc, acc, acc + 2)
        a(f"""v_add_f32 v{acc}, v{acc}, v{acc+1}
        v_mov_b32 v{acc+1}, s{sTAG}""")
        self.bs(acc, 2, vL8, rWS, T0, 0, 'sc1')
        a('s_mov_b64 exec, 15')
        self.bs(acc + 1, 1, vT + 6, rWS, T2, 0, 'sc1')
        a('s_mov_b64 exec, -1')
        self.stamp('A1pub')
        if o.get('wpf', 0):
            S(T2, '(((xc >> 2)*2 + (xc & 1))*4 + (xc & 2))*128 + (j*32 + w*8)*6144')
            va(vT + 2, [(4, 2, 6144), (0, 4, 16)])
            for i in range(o['wpf']):
                S(T0, 'T2 + q', q=(i % 3) * 2048 + (i // 3) * 4 * 6144)
                self.bl(raw, 4, vT + 2, rW, T0, 0, o.get('wpfmod', ''))
        tl_ = o.get('tlb', '')
        if tl_:
            S(T2, 'wg*128'); va(vT + 2, [(0, 6, 1 << 21)], T2)
            tab = dict(W=rW, o=rWO, g=rWG, u=rWU, d=rWD, m=rWM, x=rX, O=rOUT)
            for k_, c_ in enumerate(tl_):
                a(f's_cmp_lg_u32 s{sWAVE}, {k_ & 3}')
                L_ = a.label('TLB'); a(f's_cbranch_scc1 {L_}')
                if c_ == 's':
                    a('s_mov_b64 exec, 0x1ffff'); self.bl(raw + 4, 1, vT + 2, rWS, '0', 0, '', None); vm.q.pop(); a('s_mov_b64 exec, -1')
                else: self.bl(raw + 4, 1, vT + 2, tab[c_], '0', 0, '', None); vm.q.pop()
                a(f'{L_}:')
        a('s_branch L_FJ')
        qG = list(vm.q)
        a('L_FS:')
        vm.reset(); lg.reset()
        a('s_barrier')
        for i in range(4): self.bl(raw + 4 * i, 4, vL16, rX, T3, 1024 * i, o.get('xsmod', ''), 'xs')
        pw0 = o.get('pw0', 'ab')
        if 'a' in pw0:
            S(T4, '(wg*4 + w - 4)*128 + INA')
            for q in range(2): a(f's_load_dword s{sPL + q}, {sr(rWS, 2)}, s{T4} offset:{q * 64} glc')
        if 's' in pw0:
            S(T4, '(wg*4 + w - 4)*256 + SINB')
            for q in range(4): a(f's_load_dword s{sPL + 2 + q}, {sr(rWS, 2)}, s{T4} offset:{q * 64} glc')
        if 'b' in pw0:
            S(T4, '(wg*32 + w - 4)*128 + INB')
            for q in range(2): a(f's_load_dword s{sPL + q}, {sr(rWS, 2)}, s{T4} offset:{q * 64} glc ; nowait')
        a(f"""s_lshl_b32 s{T6}, s{sXC}, 5
        v_mov_b32 v{vTk}, 1
        v_mov_b32 v{vTk+1}, s{T6}""")
        if o.get('bar1', 1): a('s_barrier')
        a(f"""s_cmp_lg_u32 s{sWAVE}, 7
        s_cbranch_scc1 L_NOTK
        s_mov_b64 exec, 1
        global_atomic_add v{vTk}, v{vTk+1}, v{vTk}, {sr(pDBG, 2)} sc0 sc1
        s_mov_b64 exec, -1
        s_branch L_TK0
        L_NOTK:""")
        code_pf()
        a('L_TK0:')
        vm.issue('tk')
        setup()
        w_early()
        S(T0, '(w - 4)*16 + L_ST'); va(vT + 6, [(5, 1, 8)], T0)
        a('s_barrier')
        vm.wait('xs')
        lg.wait_all()
        tag_hash()
        self.stamp('xsok')
        self.ln_stats2(raw, raw + 8, xs, st, st + 1)
        a(f"""v_lshrrev_b32 v{st}, 16, v{st}
        v_or_b32 v{st}, v{st}, v{st+1}
        v_mov_b32 v{st+1}, s{sTAG}""")
        self.dw('ds_write_b64', vT + 6, st, 2)
        a('L_FJ:')
        va(vT + 1, [(0, 2, 16)], None, L_ST)
        va(vT, [(0, 2, 16), (2, 1, 65536 if TL else 1024)])
        va(vT + 6, [(0, 5, 2048), (5, 1, 32)])
        va(vT + 2, [(0, 1, 64 * 512 if TL else 512), (1, 1, 256)])
        S(T2, ('((j >> 4)*128 + w*8 + x)*512' if TL else '((x & 6) + ((x & 1)*2 + (j >> 4))*64 + w*8)*512') + ' + ((j >> 2) & 3)*64 + (j & 3)*4 + 16 + INA')
        self.barrier()
        self.r128(st, vT + 1, 0, 'st')
        lg.wait('st')
        a('s_mov_b64 exec, 0xff')
        self.bs(st, 4, vT, rWS, T1, 0, 'sc1')
        a('s_mov_b64 exec, 15')
        self.bs(st + 1, 1, vT + 2, rWS, T2, 0, 'sc1')
        a('s_mov_b64 exec, -1')
        self.stamp('A2pub')
        a(f"""s_cmp_lg_u32 s{sWAVE}, 7
        s_cbranch_scc1 L_NOTK2
        s_mov_b32 s{T0}, 0
        s_waitcnt vmcnt({len(vm.q) - 1 - vm.q.index('tk')})
        L_TK:
        v_readfirstlane_b32 s{T2}, v{vTk}
        s_cmp_lt_u32 s{T2}, 32
        s_cbranch_scc1 L_TKOK
        v_mov_b32 v{vTk}, s{sTAG}
        s_mov_b64 exec, 1
        buffer_store_dword v{vTk}, v{vZ}, {sr(rWS, 4)}, 0 offen offset:{MARK} sc1
        s_mov_b64 exec, -1
        s_add_u32 s{T0}, s{T0}, 1
        s_cmp_lt_u32 s{T0}, 8
        s_cbranch_scc0 L_TKNO
        s_add_u32 s{sXC}, s{sXC}, 1
        s_and_b32 s{sXC}, s{sXC}, 7
        s_lshl_b32 s{T6}, s{sXC}, 5
        v_mov_b32 v{vTk}, 1
        v_mov_b32 v{vTk+1}, s{T6}
        s_mov_b64 exec, 1
        global_atomic_add v{vTk}, v{vTk+1}, v{vTk}, {sr(pDBG, 2)} sc0 sc1
        s_mov_b64 exec, -1
        s_waitcnt vmcnt(0)
        s_branch L_TK
        L_TKNO:
        s_and_b32 s{sXC}, s2, 7
        s_lshr_b32 s{T2}, s2, 3
        L_TKOK:
        s_lshl3_add_u32 s{T2}, s{T2}, s{sXC}""")
        if o.get('rawrole'): a(f's_mov_b32 s{T2}, s2')
        a(f"""v_mov_b32 v{vTk}, s{T2}
        ds_write_b32 v{vT+1}, v{vTk} offset:64
        L_NOTK2:""")
        self.barrier()
        a(f'ds_read_b32 v{mq}, v{vT+1} offset:64'); lg.issue('role')
        lg.wait('role')
        a(f'v_readfirstlane_b32 s2, v{mq}')
        self.stamp('role')
        V.release(raw, 16); V.release(cv, 4)
        S(sX, 'wg & 7'); S(sJ, 'wg >> 3')
        S(sCB, 'j & 15' if TL else '(x & 1)*8 + (j & 7)')
        S(sRT, 'x*2 + (j >> 4)' if TL else '(x >> 1)*4 + (j >> 3)')
        S(sGTB, 'rt*4 + (w & 3)')
        S(sC32, 'cb*2 + kh')
        S(T5, 'gtb*65536 + c32*64')
        ld_xt = lambda: [self.bl(xr + 4 * q, 4, vT + 6, rX, T5, 16 * q, o.get('xtmod', ''), 'xt') for q in range(2)]
        if not o.get('xtlate', 0): ld_xt()
        S(T0, '(((x >> 1)*16 + cb)*16 + w)*512 + AINB')
        S(T2, '(wg*8 + w)*64 + INA')
        def role_prep():
            S(sR1, 'j & 15' if HL else '(x & 4)*2 + (j >> 2)'); S(sHP, '((x >> 2)*2 + (x & 1))*4 + (x & 2) + (j >> 4)' if HL else '(x & 3)*4 + ((j & 3) ^ 2)')
            S(sU0, o.get('u0', 'j & 12'))
            w_next(wb[0])
            S(sINB, '(wg*64 + w)*64 + INB')
            S(sKF, 'kh ^ (j >> 4)'); S(sROT, o.get('rot', '(((j >> 3) ^ j) & 1)*q + p'), q=4 if D2 else 8, p=8 * o.get('dflip', 1))
            S(sFS, 'x*7 + (j >> 2)'); S(sKQ, 'j & 3')
            va(vT + 4, [(0, 5, 8)])
            va(vT, [(0, 5, 16), (5, 1, 4096)])
            S(T3, 'w*4 + L_MP'); va(vT + 1, [(0, 6, 64)], T3)
            S(T3, 'kh*1024 + L_MP'); va(vT + 2, [(0, 4, 32), (5, 1, 512)], T3)
        S(T1, '(wg*4 + (w & 3))*256 + SINB')
        self.spoll([(0, 8, T2, 0)], (0, 1, 4, 5, 6, 7), work=role_prep)
        self.stamp('apre')
        if o.get('abar', 2) == 1: a('s_barrier')
        st_ld = lambda: self.bl(st, 2, vT + 4, rWS, T1, 0, 'sc1', 'st')
        def st_fetch():
            st_ld()
            if o.get('abar', 2) == 2: a('s_barrier')
            if o.get('xtlate', 0): ld_xt()
            S(T3, 'hp*4096 + w*512')
            a(f'v_add_u32 v{vT+6}, s{T3}, v{vL16}')
            S('m0', 'w*512 + L_WPHI')
            a('s_mov_b32 exec_hi, 0')
            a(f'global_load_lds_dwordx4 v{vT+6}, {sr(pWPHI, 2)}'); vm.issue()
            a('s_mov_b32 exec_hi, -1')
            w_next(wb[1])
        self.try_load(lambda: self.bl(mq, 4, vT, rWS, T0, 0, 'sc1'), [mq + 1, mq + 3], vT + 3, st_fetch)
        self.stamp('modok')
        a(f'ds_write2_b32 v{vT+1}, v{mq}, v{mq+2} offset0:0 offset1:8'); lg.issue()
        if not o.get('xtlate', 0):
            for i in range(8): self.unpack(xs + 2 * i, xs + 2 * i + 1, xr + i)
        self.barrier()
        mp = V.alloc(16); hp = V.alloc(8)
        for i in (2, 3, 0, 1): self.r128(mp + 4 * i, vT + 2, (i >> 1) * 2048 + (i & 1) * 16, i >> 1)
        w_next(wb[2])
        self.finish_load('st', st_ld, [st + 1], None)
        if o.get('xtlate', 0):
            vm.wait('xt')
            for i in range(8): self.unpack(xs + 2 * i, xs + 2 * i + 1, xr + i)
        self.stamp('statok')
        self.unpack(st + 1, st, st)
        a(f'v_rcp_f32 v{st}, v{st}')
        for i in E2: self.pk('add', xs + i, xs + i, st + 1, bc=(1,), neg=(1,))
        S(T0, '(((rt*16 + cb)*4 + (w & 3))*2 + kh)*2048 + HF')
        va(vT + 4, [(0, 4, 16), (4, 1, 1024), (5, 1, 512)])
        lg.wait(1); self.sum8(mp + 8)
        self.round1(mp + 8)
        lg.wait(0); self.sum8(mp)
        a(f'v_add_f32 v{mp+8}, 1.0, v{mp+8}')
        self.round2(mp + 8, mp)
        PKM = o.get('pkm', 1)
        if PKM:
            mb = V.alloc(32)
            S(T3, 'w*256 + L_MB'); va(vT, [(0, 4, 4), (5, 1, 64)], T3); va(vT + 1, [(5, 1, 64)], T3)
            a(f'ds_write2_b32 v{vT}, v{mp+8}, v{mp} offset0:0 offset1:32'); lg.issue()
            for q in range(8): self.r128(mb + 4 * q, vT + 1, (q >> 2) * 128 + (q & 3) * 16, ('mb', q))
        for h in range(2):
            rg = range(8 * h, 8 * h + 8)
            self.round_list([xs + i for i in rg])
            for i in range(8 * h, 8 * h + 8, 2): self.pk('mul', xs + i, xs + i, st, bc=(1,))
            self.round_list([xs + i for i in rg])
        for h in range(2):
            rg = range(8 * h, 8 * h + 8)
            if PKM:
                lg.wait(('mb', 2 * h + 1))
                for i in range(8 * h, 8 * h + 8, 2): self.pk('mul', xs + i, xs + i, mb + i)
            else:
                for i in rg: self.dpp('v_mul_f32', xs + i, mp + 8, xs + i, f'row_newbcast:{i}')
            self.round_list([xs + i for i in rg])
            if PKM:
                lg.wait(('mb', 4 + 2 * h + 1))
                for i in range(8 * h, 8 * h + 8, 2): self.pk('add', xs + i, xs + i, mb + 16 + i)
            else:
                for i in rg: self.dpp('v_add_f32', xs + i, mp, xs + i, f'row_newbcast:{i}')
            for i in range(4 * h, 4 * h + 4): a(f'v_cvt_pk_bf16_f32 v{hp+i}, v{xs+2*i}, v{xs+2*i+1}')
            self.bs(hp + 4 * h, 4, vT + 4, rWS, T0, 256 * h, 'sc1', 'hs')
        if PKM: V.release(mb, 32)
        self.stamp('hst')
        w_next(wb[3])
        va(vB, [(5, 1, 2080), (2, 2, 128), (3, 1, 64), (0, 2, 8)])
        va(vB + 1, [(4, 1, 1056)])
        va(vB + 2, [(3, 1, 128)])
        a(f"""v_add_u32 v{vB}, v{vB}, v{vB+1}
        v_sub_u32 v{vB+1}, v{vB}, v{vB+2}
        v_add_u32 v{vB+1}, 64, v{vB+1}""")
        for q in (1, 2):
            for h in range(2): a(f'v_add_u32 v{vB+2*q+h}, {2*q*SLOT}, v{vB+h}')
        S(T1, 'kh*2048 + L_WPHI')
        va(vT, [(2, 2, 64), (4, 1, 32), (0, 2, 8), (5, 1, 512)], T1)
        va(vT + 1, [(0, 3, 4096), (3, 1, 128 * 4096)] if HL else [(0, 2, 8 * 4096), (2, 2, 4096)])
        S(T0, ('rt*32768' if HL else '((rt >> 3)*4 + (rt & 7)*32)*4096') + ' + (cb >> 1)*64 + (cb & 1)*4 + INB')
        va(vT + 2, [(4, 1, 64), (5, 1, 16)]); va(vWo, [(0, 3, 16)])
        a(f'v_xor_b32 v{vWo}, v{vWo}, v{vT+2}'); va(vT + 2, [(3, 3, 2048)]); a(f'v_add_u32 v{vWo}, v{vWo}, v{vT+2}')
        S(T1, '(w & 2)*32'); va(vT + 2, [(4, 1, 32)], T1); va(vFG, [(0, 3, 16)])
        a(f'v_xor_b32 v{vFG}, v{vFG}, v{vT+2}'); va(vT + 2, [(3, 3, 7168)]); a(f'v_add_u32 v{vFG}, v{vFG}, v{vT+2}')
        S(T1, '(w & 1)*128')
        va(vT + 2, [(5, 1, 64)], T1); va(vFD, [(0, 5, 16), (5, 1, 2048)])
        a(f'v_xor_b32 v{vFD}, v{vFD}, v{vT+2}')
        S(sFG, '(kq*8 + w)*(32*7168) + fs*128'); S(sFD, '(fs*8 + w)*16384 + kq*512')
        US = o.get('ush', 1)
        S(sMF, '(j >> 2) + q', q=US)
        a(f"""s_cmp_ge_u32 s{sMF}, 7
        s_cselect_b32 s{sMF}, {US - 7 & 0xffffffff}, {US}""")
        a(f"""s_cmp_ge_u32 s{sJ}, 28
        s_cselect_b32 s{rWG+2}, 0, s{rWG+2}
        s_cselect_b32 s{rWU+2}, 0, s{rWU+2}
        s_cselect_b32 s{rWD+2}, 0, s{rWD+2}""")
        if o.get('zm2'): a(f's_mov_b32 s{rWM+2}, 0')
        if o.get('zffn'):
            for r_ in (rWG, rWU, rWD): a(f's_mov_b32 s{r_+2}, 0')
        if o.get('zwo'): a(f's_mov_b32 s{rWO+2}, 0')
        vm.wait('hs')
        a('s_barrier')
        self.push(vT + 1, T0, 16, vT + 2, 'L_PB')
        self.stamp('hpub')
        V.release(xs, 16); V.release(mp, 16); V.release(hp, 8); V.release(st, 4); V.release(mq, 4); V.release(vTk, 2)
        w_next(wb[4])
        for s in range(2):
            for u in range(2): self.tr(wphi + 4 * s + 2 * u, vT, s * 1024 + u * 256)
        AD, LOOK, LASTB = o['AD'], o.get('LOOK', 6), o['LASTB']
        accs = V.alloc(96)
        big = V.alloc(76)
        Br = big + 76 - 4 * (LOOK + 1)
        aslot = list(range(big, Br, 4)) + [fr, fr + 4, vq, vq + 4, vv, vv + 4, acc, acc + 4]
        assert AD <= len(aslot)
        S(T2, '(r1*64 + w)*4096 + HF')
        S(T0, '(w & 3)*4096 + L_XF'); a(f'v_add_u32 v{vXF}, s{T0}, v{vL16}')
        vXW = V.alloc(); vVW = V.alloc()
        va(vXW, [(0, 4, 16), (5, 1, 512), (4, 1, 8)], T0)
        S(T0, '(w & 3)*1024 + L_V'); va(vVW, [(0, 4, 32), (4, 2, 8)], T0)
        S(T0, '(w & 3)*1024 + kh*16384 + L_PHK'); va(vPW, [(0, 5, 32), (5, 1, 16)], T0)
        fq = ([(m, i) for i in range(4) for m in range(2)] if o.get('fmix', 1) else [(m, i) for m in range(2) for i in range(4)]) + [(2, i) for i in range(4)]
        freg = []
        def f_src(m, i, back=0, T0=T0):
            if m < 2: S(T0, 'fg + q' if m == 0 else 'mf*128 + fg + q', q=i * 8 * 7168 - back * 4 * 32 * 7168)
            else: S(T0, 'fd + q', q=i * 4096 - back * 4 * 16384)
            return (vFG, (rWG, rWU)[m]) if m < 2 else (vFD, rWD)
        def f_lds(m, i): return (L_GU + m * 32768 if m < 2 else L_DN) + i * 1024
        def ffn_reg(n):
            for _ in range(n):
                m, i = fq.pop(0)
                for back in range(2):
                    v, r = f_src(m, i, back)
                    self.bl(big + 8 * len(freg) + 4 * back, 4, v, r, T0, 0, o.get('ntffn', 'nt'), 'ffn')
                freg.append((m, i))
        def ffn_dma(n, T0=T0):
            for _ in range(n):
                m, i = fq.pop(0)
                if o.get('nofd'): continue
                v, r = f_src(m, i, 0, T0)
                S('m0', 'w1k*4 + q', q=f_lds(m, i))
                self.dma(v, r, T0, 0, o.get('ntffn', 'nt'), 'gu' if m < 2 else 'dn')
        S(sWB, 'w*16384' if D2 else '(rot*4 + w)*16384'); S(sWO2, '(j >> 4)*1048576 + cb*128'); S(sW1K, 'w*1024')
        def wo_dma(it, back=0, T0=T0):
            S(T0, '(((wb + q) & 0xfffff) ^ (rot*65536)) + (wo2 ^ h)' if D2 else '((wb + q) & 0xfffff) + (wo2 ^ h)', q=(8 * it - 4 * back) * 16384, h=(it >> 3) << 20)
            S('m0', 'w1k + q', q=WO_H0 + it * 8192 - 4096 * back)
            self.dma(vWo, rWO, T0, 0, '', 'wo')
        self.inbox(0, 2, work=lambda: w_next(wb[5]), pipe=o.get('pipeB', 0))
        assert len(wq) % 3 == 0 and 30 <= len(wq) <= (45, 36, 36, 42)[o.get('wxor', 1)]
        NPU = 16 - len(wq) // 3
        vm.wait(('W', (0, 2, 3, 1)[o.get('wxor', 1)]))
        a('s_barrier')
        self.stamp('hok')
        a(f"""s_cmp_ge_u32 s{sWAVE}, 4
        s_cbranch_scc1 L_HELP
        s_setprio 2""")
        q_hok = list(vm.q)
        if 'pad' in o:
            a('.p2align 6')
            for _ in range(o['pad']): a('s_nop 0')
        def a_load(sg):
            if sg % 4 == 0: S(T3, '((u0 + n) & q)*16384 + T2', n=sg // 4, q=o.get('amask', 15))
            self.bl(aslot[sg % AD], 4, vL16, rWS, T3, (sg % 4) * 1024, o.get('amod', 'sc1'), ('A', sg))
        CORD = [(1, 2), (1, 3), (1, 0), (1, 1)] + [(t, ct) for t in (0, 2) for ct in range(4)]
        WEV = o.get('wev', 2); NB = LOOK + 1
        def b_read(n, q):
            st_, c = divmod(n, 12); t, ct = CORD[c]
            slot = (st_ >> 1) % 6
            off = (slot & 1) * SLOT + t * SEC + (st_ & 1) * 4160 + (ct & 1) * 32 + q * 512
            self.tr(Br + 4 * (n % NB) + 2 * q, vB + 2 * (slot >> 1) + (ct >> 1), off, ('B', n))
        nxt = 0
        def a_more(lim):
            nonlocal nxt
            while nxt < min(lim, 64): a_load(nxt); nxt += 1
        a_more(2)
        for n in range(LOOK):
            for q in range(2): b_read(n, q)
        a_more(o.get('A0', 4))
        b14 = False
        for n in range(384):
            st_, c = divmod(n, 12); t, ct = CORD[c]
            if n % WEV == 0: lg.wait(('B', min(n + WEV - 1, 383)))
            for th in range(2):
                if c == 0: vm.wait(('A', 2 * st_ + (th if st_ < 2 or not o.get('vw1', 1) else 1)))
                d = accs + 32 * t + 16 * (ct >> 1) + 8 * (ct & 1) + 4 * th
                a(f'v_mfma_f32_16x16x32_bf16 {vr(d, 4)}, {vr(Br + 4*(n % NB), 4)}, {vr(aslot[(2*st_ + th) % AD], 4)}, ' + ('0' if st_ == 0 else vr(d, 4)))
                if n + LOOK < 384:
                    if th == 0 and (n + LOOK) % 24 == 0 and (n + LOOK) // 24 <= LASTB: a('s_barrier')
                    b_read(n + LOOK, th)
            if c in o.get('aat', (0, 3, 6, 9)): a_more(min(nxt + 1, 2 * st_ + AD))
            if nxt == 64 and not b14 and (n + LOOK) // 24 >= 13 and (n + LOOK) % 24:
                b14 = True; a('s_barrier')
        self.stamp('gemm1')
        aq, ak, av = accs, accs + 32, accs + 64
        def cvt8(d, s_, swap=True):
            for c in range(2):
                for th in range(2):
                    for ip in range(2): a(f'v_cvt_pk_bf16_f32 v{d + 4*c + 2*th + ip}, v{s_ + 8*c + 4*th + 2*ip}, v{s_ + 8*c + 4*th + 2*ip + 1}')
            if swap:
                for c in range(2):
                    for ip in range(2): a(f'v_permlane16_swap_b32 v{d + 4*c + ip}, v{d + 4*c + 2 + ip}')
        def put8(addr, d, off, oc_, ot):
            for c in range(2):
                for th in range(2): self.dw('ds_write_b64', addr, d + 4 * c + 2 * th, 2, off + c * oc_ + th * ot)
        cvt8(vv, ak + 16, False)
        put8(vXW, vv, 0, 1024, 256)
        cvt8(fr, ak)
        self.barrier()
        a('s_setprio 0')
        pp = ak; ee = ak + 16
        def phi_logits(src):
            a(f'v_mfma_f32_32x32x16_bf16 {vr(pp, 16)}, {vr(wphi, 4)}, {vr(src, 4)}, 0')
            a(f'v_mfma_f32_32x32x16_bf16 {vr(pp, 16)}, {vr(wphi + 4, 4)}, {vr(src + 4, 4)}, {vr(pp, 16)}')
        phi_logits(fr)
        for h in range(2):
            cvt8(vv if h == 0 else vq, av + 16 * h, False)
            put8(vVW, vv if h == 0 else vq, h * 8192, 4096, 512)
        cvt8(fr, aq + 16, False)
        put8(vXW, fr, 2048, 1024, 256)
        cvt8(vq, aq)
        a('s_branch L_JOIN')
        a('L_HELP:')
        vm.q = [('W', 1)] * len(q_hok) if o.get('wxor', 1) == 1 else list(q_hok); lg.reset()
        m2w = accs; m2c = accs + 32; g4 = accs + 48
        def w_unit(n):
            for wexpr in ('w - 4', 'w'):
                w_base(n, wexpr)
                for t in range(3):
                    w_slot(n, t)
                    if o.get('pace', 0) and n >= 6: a(f's_sleep {o["pace"]}')
        for n in range(NPU, 6): w_unit(n)
        S(T0, '((j & 3)*4 + w - 4)*128' if HL else '((x & 3)*4 + w - 4)*128')
        va(vCo, [(3, 3, 16)], T0)
        va(vWM, [(3, 3, 8 * 12288), (0, 3, 16)])
        S(T4, 'T0*6144 + (((j >> 2) & 3)*16 + x*2 + (j >> 4))*128 + 4096' if HL else 'T0*6144 + (j*2 + (x >> 2))*128 + 4096')
        a(f'global_load_dwordx4 {vr(m2c + 8, 4)}, v{vCo}, {sr(pC, 2)}'); vm.issue('m2c')
        m2l = list(range(8)); wol = [9, 10, 11, 12]; pwl = list(range(1, 8)); sil = list(range(8))
        m2ops = self.gemv_ops([m2w + 4 * i for i in range(8)], [m2c + i for i in range(8)], acc, vT, vT + 1, False)
        m2pos = 0
        ML = o.get('mlate', 1)
        m2q = accs + (16 if ML else 64); wr1 = m2q + 8; vM2 = m2q + 9
        TL_, TA, TB, TC, LMT = (T7, T1, sU, sWC, GS + 12288) if ML else (T5, T0, T1, T2, L_MT)
        ld_m2 = lambda: [self.bl(m2q + 4 * q, 4, vM2, rWS, TL_, q * 1024, 'sc1', 'm2q') for q in range(2)]
        def m2_final():
            self.finish_load('m2q', ld_m2, [m2q + 1, m2q + 3, m2q + 5, m2q + 7], vT)
            q0, q1, q2, q3 = m2q, m2q + 1, m2q + 2, m2q + 3
            S(TA, '(w & 3)*128 + q', q=LMT); va(vT, [(0, 5, 4)], TA)
            S(TB, 'w & 3')
            a(f"""v_add_f32 v{q0}, v{m2q}, v{m2q+4}
            v_add_f32 v{q1}, v{m2q+2}, v{m2q+6}
            v_add_f32 v{q2}, v{m2q}, v{m2q+4}""".replace(f'v_add_f32 v{q2}, v{m2q}, v{m2q+4}', f'v_mov_b32 v{q2}, v{q0}'))
            a(f"""v_mov_b32 v{q3}, v{q1}
            s_cmp_eq_u32 s{TB}, 2
            s_cselect_b32 s{TC}, 1.0, 0
            v_permlane32_swap_b32 v{q0}, v{q2}
            v_permlane32_swap_b32 v{q1}, v{q3}""")
            self.pk('add', q0, q0, q2)
            self.round2(q0, q1)
            a(f"""v_add_f32 v{q0}, s{TC}, v{q0}
            v_add_f32 v{q1}, s{TC}, v{q1}
            v_cvt_pk_bf16_f32 v{q2}, v{q0}, v{q1}""")
            self.dw('ds_write_b32', vT, q2, 1)
            a('s_cbranch_scc0 L_NOG')
            g0, g1, gh, gl = m2q + 4, m2q + 5, m2q + 6, m2q + 7
            self.unpack(q0, q1, q2); self.unpack(g0, g1, wr1)
            self.pk('mul', g0, g0, q0)
            a(f'v_cvt_pk_bf16_f32 v{gh}, v{g0}, v{g1}')
            self.unpack(q0, q1, gh)
            self.pk('add', q0, g0, q0, neg=(1,))
            a(f"""v_cvt_pk_bf16_f32 v{gl}, v{q0}, v{q1}
            v_add_f32 v{q0}, v{g0}, v{g1}
            ds_write2_b32 v{vT}, v{gh}, v{gl} offset0:64 offset1:96
            ds_write_b32 v{vT}, v{wr1} offset:512""")
            for ctl in ('quad_perm:[1,0,3,2]', 'quad_perm:[2,3,0,1]', 'row_half_mirror', 'row_ror:8'): self.dpp('v_add_f32', q0, q0, q0, ctl)
            S(TA, '(rt*16 + cb)*8 + GR')
            a(f"""v_mov_b32 v{q2}, v{q0}
            v_mov_b32 v{q1}, s{sTAG}
            v_permlane16_swap_b32 v{q0}, v{q2}
            v_add_f32 v{q0}, v{q0}, v{q2}
            s_mov_b64 exec, 1""")
            self.bs(q0, 2, vZ, rWS, TA, 0, 'sc1', count=False)
            a("""s_mov_b64 exec, -1
        L_NOG:""")
        def m2_fetch():
            va(vM2, [(0, 5, 16), (5, 1, 512)])
            S(TL_, '((w & 3)*16 + cb)*2048 + MODP2')
            ld_m2()
        def act(op, k):
            nonlocal m2pos
            kind, n = op[0], int(op[1:] or 1)
            if kind == 'm':
                for _ in range(2 * n):
                    i = m2l.pop(0)
                    self.bl(m2w + 4 * i, 4, vWM, rWM, T4, 0, o.get('ntm2', 'nt'), ('m2', i))
                    if m2l: S(T4, 'T4 + 12288')
            elif kind == 'f': ffn_reg(n)
            elif kind == 'o':
                assert k >= 13
                for _ in range(n):
                    it = wol.pop(0); wo_dma(it, 1); wo_dma(it)
            elif kind == 'p':
                a('s_waitcnt lgkmcnt(0)')
                for q in range(n):
                    b = pwl.pop(0)
                    a(f's_load_dword s{sPL + 2*q}, {sr(rWS, 2)}, s{sINB} offset:{b * 512} glc')
                    a(f's_load_dword s{sPL + 2*q + 1}, {sr(rWS, 2)}, s{sINB} offset:{b * 512 - 256} glc')
            elif kind == 'q':
                S(T0, 'fs*8192 + (w - 4)*256 + HGR')
                a('s_waitcnt lgkmcnt(0)')
                for q in range(4): a(f's_load_dword s{sPL + q}, {sr(rWS, 2)}, s{T0} offset:{q * 2048 + 1024 + 252} glc')
            elif kind == 'z':
                for i in range(4): a(f'v_mov_b32 v{g4+i}, -1')
                if n == 1:
                    for we in ('w - 4', 'w'):
                        S(T0, f'(((r1*4 + (w & 3))*16 + hp)*2 + (({we}) >> 2))*2048 + OF')
                        for q in range(2): self.bs(g4, 4, vL16, rWS, T0, 1024 * q, 'sc1', 'pzo')
                else:
                    for we in ('w - 4', 'w'):
                        S(T0, f'((hp*8 + {we})*32 + r1)*1024 + KVP'); S(T1, 'T0 + 16384')
                        self.bs(g4, 4, vL16, rWS, T0, 0, 'sc1', 'pz'); self.bs(g4, 4, vL16, rWS, T1, 0, 'sc1', 'pz')
                    S(T0, '((hp*8 + w - 4)*16 + r1)*64 + ZP')
                    va(vT + 2, [(0, 2, 16), (2, 1, 4096)])
                    a('s_mov_b64 exec, 0xff')
                    self.bs(g4, 4, vT + 2, rWS, T0, 0, 'sc1', 'pz')
                    a('s_mov_b64 exec, -1')
            elif kind == 'M': m2_fetch()
            elif kind == 'R':
                S(T0, 'cb*128'); va(vT, [(0, 5, 4)], T0)
                a(f'global_load_dword v{wr1}, v{vT}, {sr(pWR, 2)}'); vm.issue()
            elif kind == 'N': m2_final()
            elif kind == 'K':
                S(T0, '(hp*16 + r1)*1024 + (w & 3)*256 + KIN'); S(T1, 'hp*128 + CFL')
                a(f'v_lshlrev_b32 v{vWM}, 7, v{vL}')
                a('s_mov_b64 exec, 3')
                self.bl(vWM, 1, vWM, rWS, T0, 0, '')
                self.bl(vCo, 1, vZ, rWS, T1, 0, '')
                a('s_mov_b64 exec, -1')
            elif kind == 'h':
                S(T0, '(fs*4 + kq)*2048 + (w & 1)*1024 + HGR'); S(T1, '(rt*16 + cb)*2048 + (w & 1)*1024 + STAT')
                if TL: a(f's_bitcmp1_b32 s{sWAVE}, 1'); a(f's_cselect_b32 s{T0}, s{T1}, s{T0}')
                self.bl(m2c + 12, 4, vL16, rWS, T0, 0, '')
            elif kind == 's':
                vm.wait('m2c')
                for _ in range(n):
                    i = sil.pop(0)
                    a(f'v_and_b32 v{m2c+i}, s{sMASK}, v{m2c+8+i//2}' if i & 1 else f'v_lshlrev_b32 v{m2c+i}, 16, v{m2c+8+i//2}')
                    self.silu(m2c + i, vT + (i & 1))
            elif kind == 'g':
                assert not sil
                for _ in range(n):
                    vm.wait(('m2', m2pos // 16))
                    for s_ in m2ops[m2pos:m2pos + 16]: a(s_)
                    m2pos += 16
            elif kind == 'r':
                assert m2pos == 128
                for s_ in m2ops[128:]: a(s_)
                self.dw('ds_write_b32', vGA, acc, 1, L_M2 - SCR)
                lg.wait_all()
            elif kind == 'P':
                a(f"""s_cmp_lg_u32 s{sWAVE}, 4
                s_cbranch_scc1 L_M2F
                ds_read_b128 {vr(acc, 4)}, v{vL32S} offset:{L_M2 - SCR}""")
                S(T0, '((((j >> 2) & 3)*16 + x*2 + (j >> 4))*4 + (j & 3))*512 + MODP2' if HL else '((j*2 + (x >> 2))*4 + (x & 3))*512 + MODP2')
                a(f"""s_waitcnt lgkmcnt(0)
                v_add_f32 v{acc}, v{acc}, v{acc+1}
                v_add_f32 v{acc+2}, v{acc+2}, v{acc+3}
                v_mov_b32 v{acc+1}, s{sTAG}
                v_add_f32 v{acc}, v{acc}, v{acc+2}""")
                self.bs(acc, 2, vL8, rWS, T0, 0, 'sc1', count=False)
                a('L_M2F:')
            else: raise ValueError(op)
        sched = {int(k): v.split() for k, v in o['sched'].items()}
        for op in sched.get(0, []): act(op, 0)
        wsch = {int(k): v for k, v in o.get('wsch', {k: 6 for k in range(2, 12)}).items()}
        hq = [(n, we, t) for n in range(6, 16) for we in ('w - 4', 'w') for t in range(3)]
        assert sum(wsch.values()) == 60
        for k in range(1, LASTB + 1):
            if k == 14: a('s_barrier')
            assert not any(n <= (15 if k == LASTB else k) for n, _, _ in hq)
            for kk in (range(k, 16) if k == LASTB else [k + 1 if k < 3 and o.get('wxor', 1) == 3 else k]): vm.wait(('W', kk))
            if o.get('ust'): self.stamp(f'w{k}')
            a('s_barrier')
            if o.get('ust'): self.stamp(f'u{k}')
            ops = sched.get(k, []) if k < 14 else []
            for op in ops:
                if op[0] == '<': act(op[1:], k)
            for _ in range(wsch.get(k, 0)):
                n, we, t = hq.pop(0)
                assert n - 4 <= k
                if t == 0: w_base(n, we)
                w_slot(n, t)
            for op in ops:
                if op[0] != '<': act(op, k)
        assert LASTB in (13, 14)
        if LASTB == 13: a('s_barrier')
        for op in sched.get(14, []): act(op, 14)
        self.barrier()
        for q in range(2): self.r128(fr + 4 * q, vXF, q * 1024)
        lg.wait_all()
        phi_logits(fr)
        for op in sched.get(15, []): act(op, 15)
        assert not m2l or o.get('nom2')
        assert 8 * len(freg) <= 76
        a('L_JOIN:')
        pzq = list(vm.q)
        vm.reset(); lg.q = [None]
        V.release(vXW); V.release(vVW); V.release(vB, 6); V.release(vWd); V.release(vGA); V.release(vL32S); V.release(acc, 8)
        kw = o.get('kweave', ''); fall = []; fb0 = big + 8 * len(freg); nfa = kw.count('f')
        def kw_op(c_):
            if c_ == 'o': wo_dma(wol.pop(0), 0, T6)
            else:
                m, i = fq.pop(0); v, r = f_src(m, i, 0, T6)
                self.bl(fb0 + 4 * len(fall), 4, v, r, T6, 0, o.get('ntffn', 'nt')); fall.append((m, i))
        V.release(fb0 + 4 * nfa, 76 - 8 * len(freg) - 4 * nfa)
        ph = aq; fx = aq + 16
        vPA = V.alloc(); vPB = V.alloc()
        self.weave(lambda: self.softmax_pm(pp, ee, ph, vT), [lambda c_=c_: kw_op(c_) for c_ in kw])
        for fb in range(4): self.dw('ds_write_b128', vPW, ph + 4 * fb, 4, fb * 4096)
        S(T0, 'w*4096 + L_PHK'); a(f'v_add_u32 v{vPA}, s{T0}, v{vL8}')
        S(T0, 'kh*8192 + L_V'); a(f'v_add_u32 v{vPB}, s{T0}, v{vL8}')
        ones = fr
        for i in range(4): a(f'v_mov_b32 v{ones+i}, 0x3f803f80')
        S(T0, '((hp*8 + w)*32 + r1)*1024 + KVP'); S(T2, 'T0 + 16384')
        S(T3, '(hp*8 + w)*1024 + ZP'); S(T1, 'r1*64 + T3')
        self.stamp('ksm')
        self.barrier()
        self.stamp('phik')
        tb7 = V.alloc(8); tb4 = tb7 + 4
        def tb_read():
            S(T5, 'kh*64 + q', q=LMT); va(tb7 + 3, [(0, 3, 4), (5, 1, 32)], T5)
            for q, t in ((0, 0), (1, 4), (2, 5), (4, 1), (5, 2), (6, 3), (7, 6)): self.dr('ds_read_b32', tb7 + q, 1, tb7 + 3, t * 128)
        if not ML: tb_read()
        fragA = [ee + 4 * i for i in range(4)]
        fragB = [av + 4 * i for i in range(8)]
        kvd = vv; zd = fr + 4
        def kvm(u):
            lg.wait(('kv', u))
            for db in range(2):
                a(f'v_mfma_f32_16x16x32_bf16 {vr(kvd + 4*db, 4)}, {vr(fragA[u], 4)}, {vr(fragB[2*u+db], 4)}, ' + ('0' if u == 0 else vr(kvd + 4*db, 4)))
            a(f'v_mfma_f32_16x16x32_bf16 {vr(zd, 4)}, {vr(fragA[u], 4)}, {vr(ones, 4)}, ' + ('0' if u == 0 else vr(zd, 4)))
        for ts in range(4):
            self.tr(fragA[ts], vPA, ts * 1024, ('kv', ts)); self.tr(fragA[ts] + 2, vPA, ts * 1024 + 512, ('kv', ts))
            for db in range(2):
                self.tr(fragB[2*ts+db], vPB, db * 4096 + ts * 1024, ('kv', ts)); self.tr(fragB[2*ts+db] + 2, vPB, db * 4096 + ts * 1024 + 512, ('kv', ts))
            if ts >= 2: kvm(ts - 2)
        va(vPW, [(0, 4, 8 * 4096)] if HL else [(0, 3, 32 * 4096), (3, 1, 4 * 4096)])
        S(T4, '(wg & q)*4096 + (r1 >> 1)*64 + (r1 & 1)*4 + INB + 512', q=0x87 if HL else 0x1b)
        kvm(2); kvm(3)
        a(f"""s_cmp_lt_u32 s{sWAVE}, 4
        s_cbranch_scc1 L_NOQX
        ds_read_b128 {vr(vq, 4)}, v{vXF} offset:2048
        ds_read_b128 {vr(vq + 4, 4)}, v{vXF} offset:3072
        L_NOQX:""")
        if 'pz' in pzq: a(f's_waitcnt vmcnt({pzq[::-1].index("pz")})')
        self.bs(kvd, 4, vL16, rWS, T0, 0, 'sc1', 'kvs')
        self.bs(kvd + 4, 4, vL16, rWS, T2, 0, 'sc1', 'kvs')
        a('s_mov_b32 exec_lo, 0x00010001')
        a('s_mov_b32 exec_hi, 0x00010001')
        self.bs(zd, 4, vL, rWS, T1, 0, 'sc1', 'kvs')
        a('s_mov_b64 exec, -1')
        lg.wait_all()
        phi_logits(vq)
        self.stamp('kvst')
        wl = wol + [2, 3, 4, 5, 6, 7, 8, 13, 14, 15, 0, 1]
        kp = av; zz = av + 16; g4 = vv
        vKP = V.alloc()
        va(vKP, [(3, 3, 1024), (0, 3, 16)])
        va(vXF, [(0, 3, 16), (5, 1, 8)])
        wo1 = lambda: wo_dma(wl.pop(0), 0, T6)
        keep = a.items; a.items = []
        self.softmax_pm(pp, ee, ph, vv)
        qsm = a.items; a.items = keep
        qcost = [2 if it[1].is_trans or 'permlane' in it[1].mn else 1 for it in qsm]
        qtot = sum(qcost); qdone = [0]
        def q_slice(upto):
            while qsm and qdone[0] < qtot * upto / 100:
                a.items.append(qsm.pop(0)); qdone[0] += qcost.pop(0)
        qs = o.get('qs', (35, 85, 100))
        CL = o.get('cl', (0, 1)); assert CL[1]
        q_slice(qs[0])
        S(T5, 'hp*128 + CFL'); S(T1, 'r1*8 + T5')
        vCF = V.alloc(); cf = V.alloc()
        va(vCF, [(0, 4, 8)])
        vm.wait('kvs')
        a('s_barrier')
        if CL[0]:
            a(f"""s_cmp_eq_u32 s{sLOC}, 0
            s_cbranch_scc1 L_PCG
            s_cmp_lg_u32 s{sWAVE}, 0
            s_cbranch_scc1 L_PC
            v_mov_b32 v{cf}, s{sTAG}
            s_mov_b64 exec, 1""")
            self.bs(cf, 1, vZ, rWS, T1, 0, '', count=False)
            a("""s_mov_b64 exec, -1
            s_branch L_PC
            L_PCG:""")
        self.push(vPW, T4, 16, vPB, 'L_PC')
        self.stamp('kvpub')
        assert HL and not CL[0]
        if ML:
            a(f"""s_cmp_lt_u32 s{sWAVE}, 4
            s_cbranch_scc1 L_NOM""")
            m2_fetch()
            a('L_NOM:')
        S(T0, '(hp*16 + r1)*16384 + w*128 + KVP')
        S(T2, '(hp*16 + r1)*1024 + w*128 + KIN'); S(T4, 'T4 + 6*512')
        def c1_work():
            self.weave(lambda: q_slice(qs[1]), [wo1] * o['wowin'][0])
            if ML:
                a(f"""s_cmp_lt_u32 s{sWAVE}, 4
                s_cbranch_scc1 L_NOG""")
                q_ = list(vm.q); m2_final(); vm.q = q_
            self.stamp('cw')
        if CL[0]:
            ld_cf = lambda: self.bl(cf, 1, vCF, rWS, T5, 0, 'sc1', 'cf')
            if o.get('cfpre', 1): ld_cf()
            c1_work()
            a(f"""s_cmp_lg_u32 s{sLOC}, 0
            s_cbranch_scc1 L_C1L""")
            q_ = list(vm.q)
            self.inbox(1, 2)
            a("""s_barrier
            s_branch L_C1D
            L_C1L:""")
            if o.get('cfpre', 1): self.finish_load('cf', ld_cf, [cf])
            else: self.poll(ld_cf, [cf])
            vm.q = q_
            a('L_C1D:')
        else:
            self.inbox(1, 2, work=c1_work)
            a('s_barrier')
        V.release(vCF); V.release(vWM); V.release(vCo)
        self.stamp('kvok')
        S(T5, 'T0 + 8192')
        ld_kp = lambda: (self.bl(kp, 4, vKP, rWS, T0, 0, 'sc1', 'kp'), self.bl(kp + 4, 4, vKP, rWS, T5, 0, 'sc1', 'kp'))
        ld_z = lambda: self.bl(zz, 4, vL16, rWS, T3, 0, 'sc1', 'z')
        self.bl(cf, 1, vZ, rWS, '0', MARK, 'sc1')
        ld_kp(); ld_z()
        S(T1, 'w*32 + L_ZF'); va(vT + 2, [(0, 2, 8), (5, 1, 4)], T1)
        S(T1, 'w*1024 + L_KVF'); va(vT + 1, [(0, 4, 16), (5, 1, 512), (4, 1, 8)], T1)
        S(T1, 'kh*128 + L_ZF'); va(vT + 3, [(5, 1, 16)], T1)
        S(T1, 'kh*4096 + L_KVF'); a(f'v_add_u32 v{vPA}, s{T1}, v{vL16}')
        def red4(r, ctls):
            for i in range(2): a(f'v_permlane32_swap_b32 v{r+i}, v{r+2+i}')
            self.pk('add', r, r, r + 2)
            for ctl in ctls:
                for i in range(2): self.dpp('v_add_f32', r + i, r + i, r + i, ctl)
            for i in range(2): a(f'v_mov_b32 v{r+2+i}, v{r+i}')
            for i in range(2): a(f'v_permlane16_swap_b32 v{r+i}, v{r+2+i}')
            self.pk('add', r, r, r + 2)
            a(f'v_cvt_pk_bf16_f32 v{r}, v{r}, v{r+1}')
        self.weave(lambda: q_slice(qs[2]), [wo1] * o['wowin'][1])
        vm.wait('kp')
        a(f'v_cmp_eq_u32 vcc, s{sTAG}, v{cf}')
        a(f's_cmp_eq_u32 vcc_lo, 0')
        a(f's_cselect_b32 s{sLOC}, {o.get("local", 1)}, 0')
        self.pk('add', kp, kp, kp + 4); self.pk('add', kp + 2, kp + 2, kp + 6)
        red4(kp, ['row_ror:8'])
        a(f"""v_mov_b32 v{kp+1}, s{sTAG}
        s_mov_b32 exec_lo, 0xff
        s_mov_b32 exec_hi, 0xff""")
        kc = V.alloc(4)
        if CL[1]:
            self.bs2([(kp, 2, vXF, T2, 0)])
            a(f"""s_mov_b64 exec, -1
            v_mov_b32 v{kc}, v{kp}
            v_mov_b32 v{kc+1}, v{kp+1}
            v_add_u32 v{kc+2}, s{T2}, v{vXF}
            s_cbranch_scc1 L_PC2""")
        else:
            self.bs(kp, 2, vXF, rWS, T2, 0, 'sc1', count=False)
            a('s_mov_b64 exec, -1')
        a('s_barrier')
        self.push(vPW, T4, 16, vPB, 'L_PC2')
        self.stamp('c2pub')
        kf = av; zf = av + 16; num = pp; den = ee
        k2 = av + 8
        S(T0, '(hp*8 + w)*2048 + KIN')
        ld_k2 = lambda: [self.bl(k2 + 4 * q, 4, vL16, rWS, T0, q * 1024, 'sc1') for q in range(2)]
        def z_work():
            vm.wait('z')
            red4(zz, ['row_ror:4', 'row_ror:8'])
            self.dw('ds_write_b32', vT + 2, zz, 1)
            q_slice(100)
            self.stamp('c2w')
        ZP_ = o.get('zpre', 1)
        if ZP_: z_work()
        a(f"""s_cmp_lg_u32 s{sLOC}, 0
        s_cbranch_scc1 L_C2L""")
        l_ = list(lg.q)
        self.inbox(7, 2)
        lg.q = l_
        a('L_C2L:')
        self.try_load(ld_k2, [k2 + 1, k2 + 3, k2 + 5, k2 + 7], vT, None if ZP_ else z_work)
        for db in range(2):
            a(f'ds_write2_b32 v{vT+1}, v{k2+4*db}, v{k2+4*db+2} offset0:{64*db} offset1:{64*db+1}'); lg.issue()
        self.barrier()
        self.stamp('kvred')
        for fb in range(4): self.r128(zf + 4 * fb, vT + 3, fb * 32, ('zf', fb))
        for fb in range(4): self.r128(kf + 4 * fb, vPA, fb * 1024, ('kf', fb))
        if ML: tb_read()
        for _ in range(o['wowin'][2]): wo1()
        S(T0, '(((r1*4 + (w & 3))*16 + hp)*2 + kh)*2048 + OF')
        va(vT + 4, [(0, 4, 16), (4, 1, 1024), (5, 1, 256)])
        for fb in range(4):
            lg.wait(('zf', fb))
            a(f'v_mfma_f32_32x32x16_bf16 {vr(den, 16)}, {vr(zf + 4*fb, 4)}, {vr(ph + 4*fb, 4)}, ' + ('0' if fb == 0 else vr(den, 16)))
        for fb in range(4):
            lg.wait(('kf', fb))
            a(f'v_mfma_f32_32x32x16_bf16 {vr(num, 16)}, {vr(kf + 4*fb, 4)}, {vr(ph + 4*fb, 4)}, ' + ('0' if fb == 0 else vr(num, 16)))
        self.round1(den)
        a(f'v_add_f32 v{den}, 0x358637bd, v{den}')
        self.round1(den)
        a(f'v_rcp_f32 v{den}, v{den}')
        for h in range(2):
            self.round_list([num + i for i in range(8 * h, 8 * h + 8)])
            for i in range(8 * h, 8 * h + 8, 2): self.pk('mul', num + i, num + i, den, bc=(1,))
            for i in range(4 * h, 4 * h + 4): a(f'v_cvt_pk_bf16_f32 v{vq+i}, v{num+2*i}, v{num+2*i+1}')
            self.bs(vq + 4 * h, 4, vT + 4, rWS, T0, 512 * h, 'sc1', 'os')
        self.stamp('ost')
        for r, n in ((fr, 8), (vv, 8), (vPW, 1), (vXF, 1), (vPA, 1), (vPB, 1), (vKP, 1), (accs, 96), (wphi, 8)):
            V.release(r, n)
        assert GS == 0
        vG16 = vL16
        vBa = V.alloc(4); xf = V.alloc(16)
        S(T4, 'kh*(65536 + 64) + WO_H0')
        va(vBa, [(5, 1, 2048), (4, 1, 512), (2, 2, 128), (3, 1, 64), (1, 1, 32), (4, 1, 16), (0, 1, 8)])
        a(f'v_xor_b32 v{vBa}, s{T4}, v{vBa}')
        for q, x_ in ((1, 16), (2, 64), (3, 80)): a(f'v_xor_b32 v{vBa+q}, {x_}, v{vBa}')
        assert WO_H1 == WO_H0 + 65536
        va(vT + 1, LCB)
        S(T2, ('((r1 & 1)*128 + (r1 >> 1))*4096' if TL else '((r1 >> 2)*2 + (r1 & 3)*64)*4096') + (' + ((hp >> 3)*4 + (hp & 3))*64 + (((hp >> 2) ^ p) & 1)*4 + INB + 1024' if D2 else ' + (hp >> 1)*64 + (hp & 1)*4 + INB + 1024'), p=o.get('dflip', 1))
        gaf = V.alloc(16); gp = V.alloc(16); gr = V.alloc(2); vGR = V.alloc(); cn = V.alloc(2)
        def expand(dst, t):
            for i in range(8):
                self.dpp('v_mul_u32_u24', dst + 2 * i, t, cn, f'row_newbcast:{i}')
                self.dpp('v_and_b32', dst + 2 * i + 1, t, cn + 1, f'row_newbcast:{i}')
        a(f"""v_mov_b32 v{cn}, 0x10000
        v_mov_b32 v{cn+1}, s{sMASK}""")
        for i in range(8): self.unpack(xf + 2 * i, xf + 2 * i + 1, xr + i)
        lg.wait_all()
        expand(gaf, tb7)
        S(T6, '(gtb*2 + kf)*32768 + OF')
        va(vGR, [(0, 4, 8)])
        vm.wait('os')
        self.barrier()
        self.push(vT + 1, T2, 16, vT + 2, 'L_PD')
        self.stamp('opub')
        def c_clean():
            if CL[1]:
                a("""s_mov_b32 exec_lo, 0xff
                s_mov_b32 exec_hi, 0xff""")
                self.bs(kc, 2, kc + 2, rWS, '0', 0, 'sc1')
                a('s_mov_b64 exec, -1')
            if CL[0]:
                S(T0, 'hp*128 + r1*8 + CFL')
                a(f"""s_cmp_lg_u32 s{sWAVE}, 0
                s_cbranch_scc1 L_NOCC
                v_mov_b32 v{cf}, s{sTAG}
                s_mov_b64 exec, 1""")
                self.bs(cf, 1, vZ, rWS, T0, 0, 'sc1', count=False)
                a("""s_mov_b64 exec, -1
                L_NOCC:""")
        if o.get('ccat', 3) == 0: c_clean()
        V.release(vq, 8)
        late_wo = bool(wl)
        while wl: wo_dma(wl.pop(0))
        V.release(vWo)
        MS = o.get('msum', 1)
        def d_work():
            for k in range(2):
                for i in range(8): a(f'v_mov_b32_dpp v{gp + 8*k + i}, v{tb7 + 1 + k} row_newbcast:{i} row_mask:0xf bank_mask:0xf')
            if MS:
                a(f"""v_and_b32 v{vT}, 3, v{vL}
                v_cmp_eq_u32 vcc, 1, v{vT}
                v_cmp_eq_u32 {sr(sCMP, 2)}, 0, v{vT}
                v_mov_b32 v{vT+1}, 0x3f803f80""")
                for i in range(8): a(f'v_cndmask_b32 v{gp+i}, v{gp+8+i}, v{gp+i}, vcc')
                for i in range(8): a(f'v_cndmask_b32 v{gp+i}, v{gp+i}, v{vT+1}, {sr(sCMP, 2)}')
            if o.get('stouch', TL):
                S(T2, '(rt*16 + cb)*2048 + w*256 + STAT')
                a(f'v_lshlrev_b32 v{gr}, 7, v{vL}')
                a('s_mov_b64 exec, 3')
                self.bl(gr, 1, gr, rWS, T2, 0, '')
                a('s_mov_b64 exec, -1')
            if late_wo or o.get('stouch', TL): vm.wait_all()
            self.stamp('dw')
        AD2 = o['AD2']
        LK2 = o.get('LK2', 4); NB2 = LK2 + 1
        accA = V.alloc(16); accB = V.alloc(16); Ar = V.alloc(4 * AD2); Br = V.alloc(4 * NB2)
        def b2_read(n, q):
            st_, c = divmod(n, 4)
            self.tr(Br + 4 * (n % NB2) + 2 * q, vBa + (c ^ 2), st_ * 4096 + q * 1024, ('B', n))
        def a2_load(s):
            if s % 2 == 0: S(T7, '(rot ^ n)*2048 + T6' if D2 else '((rot + n) & 15)*2048 + T6', n=(s // 2) & o.get('a2mask', 15))
            self.bl(Ar + 4 * (s % AD2), 4, vL16, rWS, T7, (s % 2) * 1024, o.get('a2mod', 'sc1'), ('A', s))
        self.inbox(2, 2, [0] if D2 else None, work=d_work)
        a('s_barrier')
        self.stamp('ook')
        if o.get('prio2', 1):
            a(f"""s_cmp_lt_u32 s{sWAVE}, 4
            s_cbranch_scc1 L_P2
            s_setprio {o.get('prio2', 1)}
            L_P2:""")
        nx2 = 0
        def a2_more(lim):
            nonlocal nx2
            while nx2 < min(lim, 32):
                if nx2 == 16 and D2:
                    a(f"""s_cmp_eq_u32 s{sPL + 1}, s{sTAG}
                    s_cbranch_scc1 L_D2""")
                    l_ = list(lg.q)
                    self.inbox(2, 2, [1])
                    lg.q = l_
                    a("""L_D2:
                    s_barrier""")
                a2_load(nx2); nx2 += 1
                if nx2 == 32:
                    ld_gr()
                    if o.get('ccat', 3) == 1: c_clean()
        S(T5, 'rt*128 + GR')
        ld_gr = lambda: self.bl(gr, 2, vGR, rWS, T5, 0, 'sc1', 'gr')
        a2_more(2)
        for n in range(LK2):
            for q in range(2): b2_read(n, q)
        a2_more(o.get('A20', 4))
        for n in range(64):
            st_, c = divmod(n, 4)
            if n % o.get('wev2', 1) == 0: lg.wait(('B', min(n + o.get('wev2', 1) - 1, 63)))
            for th in range(2):
                if c == 0: vm.wait(('A', 2 * st_ + (th if st_ == 0 or not o.get('vw2', 1) else 1)))
                d = (accB, accA)[c >> 1] + 8 * (c & 1) + 4 * th
                a(f'v_mfma_f32_16x16x32_bf16 {vr(d, 4)}, {vr(Br + 4*(n % NB2), 4)}, {vr(Ar + 4*((2*st_ + th) % AD2), 4)}, ' + ('0' if st_ == 0 else vr(d, 4)))
                if n + LK2 < 64: b2_read(n + LK2, th)
            if n == o.get('prio2n', 18): a('s_setprio 0')
            if c in o.get('a2at', (0, 1)): a2_more(min(nx2 + 1, 2 * st_ + AD2))
            if c == 3 and AD2 == 4: a2_more(2 * st_ + 6)
        self.stamp('gemm2')
        if o.get('prio2', 1): a('s_setprio 0')
        S(T0, 'w*4096')
        a(f'v_add_u32 v{vT}, s{T0}, v{vG16}')
        for q in range(4): self.dw('ds_write_b128', vT, accB + 4 * q, 4, L_EXCH - GS + q * 1024)
        for i in range(8): a(f'v_permlane16_swap_b32 v{accA + 8*(i >> 2) + (i & 3)}, v{accA + 8*(i >> 2) + 4 + (i & 3)}')
        S(T0, '(w ^ 4)*4096'); va(vT + 1, [(0, 4, 16), (4, 1, 1024), (5, 1, 512)], T0)
        S(T0, 'kh*2048 + (w & 3)*512 + L_SP'); va(vT + 2, [(0, 5, 16), (5, 1, 8)], T0)
        S(T0, 'kh*64 + L_TB'); va(vT + 3, [(0, 3, 4), (5, 1, 32)], T0)
        vSG = V.alloc()
        S(T6, 'rt*32768 + w*256 + STAT'); va(vSG, [(0, 4, 16), (4, 2, 2048)])
        sm = Br; one = Br + 4
        a(f'v_mov_b32 v{one}, 0x3f803f80')
        fd = list(o['fdma']); assert sum(fd) == len(fq)
        self.stamp('exw')
        self.barrier()
        self.stamp('ex1')
        for q in range(4): self.r128(accB + 4 * q, vT + 1, L_EXCH - GS + (q >> 1) * 2048 + (q & 1) * 256, ('ex', q))
        ffn_dma(fd[0], T1)
        for h in range(2):
            for q in (2 * h, 2 * h + 1):
                lg.wait(('ex', q))
                self.pk('add', accA + 4 * q, accA + 4 * q, accB + 4 * q); self.pk('add', accA + 4 * q + 2, accA + 4 * q + 2, accB + 4 * q + 2)
            rg = range(8 * h, 8 * h + 8)
            self.round_list([accA + i for i in rg])
            for i in range(8 * h, 8 * h + 8, 2): self.pk('mul', accA + i, accA + i, gaf + i)
            self.round_list([accA + i for i in rg])
            for i in range(8 * h, 8 * h + 8, 2): self.pk('add', accA + i, accA + i, xf + i)
            for i in range(4 * h, 4 * h + 4): a(f'v_cvt_pk_bf16_f32 v{xr+i}, v{accA+2*i}, v{accA+2*i+1}')
        self.stamp('x1c')
        if MS:
            for t in range(2): a(f'v_mfma_f32_32x32x16_bf16 {vr(accB, 16)}, {vr(gp + 4*t, 4)}, {vr(xr + 4*t, 4)}, ' + ('0' if t == 0 else vr(accB, 16)))
            for i in range(8): a(f'v_dot2_f32_bf16 v{sm + (i & 1)}, v{xr+i}, v{xr+i}, ' + ('0' if i < 2 else f'v{sm + (i & 1)}'))
            a(f"""v_add_f32 v{sm+2}, v{sm}, v{sm+1}
            v_add_f32 v{sm}, v{sm}, v{sm+1}
            v_permlane32_swap_b32 v{sm}, v{sm+2}
            s_mov_b32 exec_lo, 0
            v_add_f32 v{accB}, v{sm}, v{sm+2}
            v_mov_b32 v{accB+1}, v{accB+2}
            s_mov_b32 exec_lo, -1""")
            self.dw('ds_write_b64', vT + 2, accB, 2)
        else:
            for i in range(8):
                for d, b in ((sm, one), (sm + 2, xr + i), (sm + 1, gp + i), (sm + 3, gp + 8 + i)):
                    a(f'v_dot2_f32_bf16 v{d}, v{xr+i}, v{b}, ' + ('0' if i == 0 else f'v{d}'))
            a(f"""v_permlane32_swap_b32 v{sm}, v{sm+2}
            v_permlane32_swap_b32 v{sm+1}, v{sm+3}""")
            self.pk('add', sm, sm, sm + 2)
            self.dw('ds_write_b64', vT + 2, sm, 2)
        for q in range(4): self.dw('ds_write_b32', vT + 3, tb4 + q, 1, 128 * q)
        a(f'v_add_u32 v{vT}, {L_SP}, v{vL16}')
        va(vT + 1, LCB)
        S(T0, '(rt*16 + cb)*2048 + STAT')
        S(T3, ('((rt & 1)*128 + (rt >> 1))*4096' if TL else '((rt & 3)*64 + (rt >> 2)*2)*4096') + ' + (cb >> 1)*64 + (cb & 1)*4 + INB + 1536')
        self.barrier()
        self.stamp('x1st')
        PR = o.get('crit', 3)
        a(f"""s_cmp_lg_u32 s{sWAVE}, 0
        s_cbranch_scc1 L_PE""")
        if PR: a(f's_setprio {PR}')
        for q in range(4): a(f'ds_read_b128 {vr(accB + 4*q, 4)}, v{vT} offset:{(q & 1) * 2048 + (q >> 1) * 1024}')
        for h in range(2):
            b = accB + 8 * h
            a(f's_waitcnt lgkmcnt({2 - 2*h})')
            self.pk('add', b, b, b + 4); self.pk('add', b + 2, b + 2, b + 6)
            a(f"""v_add_f32 v{b+1}, v{b+1}, v{b+3}
            v_mov_b32 v{b+3}, s{sTAG}""")
        if TL:
            self.bs2([(accB + 8 * h, 4, vL16, T0, 1024 * h) for h in range(2)])
            a('s_cbranch_scc1 L_PE')
        else:
            for h in range(2): self.bs(accB + 8 * h, 4, vL16, rWS, T0, 1024 * h, 'sc1', count=False)
        a('s_mov_b64 exec, 0xffff')
        self.bs(accB + 3, 1, vT + 1, rWS, T3, 0, 'sc1', count=False)
        if PR: a('s_setprio 0')
        a("""s_mov_b64 exec, -1
        L_PE:""")
        self.stamp('x1pub')
        if o.get('ccat', 3) == 2: c_clean()
        V.release(accA, 16); V.release(accB, 16); V.release(Ar, 4 * AD2); V.release(Br, 4 * NB2); V.release(vBa, 4); V.release(xf, 16); V.release(gaf, 16); V.release(gp, 16)
        x1 = V.alloc(16); hh = V.alloc(16); mf = V.alloc(32); sg = V.alloc(16); op = V.alloc(8)
        st = V.alloc(2); vRid = V.alloc(); ck = V.alloc(4); vOT = V.alloc()
        ct = V.alloc(12, 4)
        def e_work():
            S(T3, '(w & 3)*(32*144) + kh*64'); va(vOT, [(0, 5, 144), (5, 1, 32)], T3)
            for q in range(2): self.dw('ds_write_b128', vOT, xr + 4 * q, 4, L_XT + 16 * q)
            a(f'v_add_u32 v{vOT}, {L_OT}, v{vOT}')
            S(T2, '4094 - (rt*8 + w)*32'); va(vRid, [(0, 4, 2)]); a(f'v_sub_u32 v{vRid}, s{T2}, v{vRid}')
            S(T2, 'w*128 + L_ST2'); va(vT + 4, [(0, 4, 8)], T2)
            S(T2, '(w & 3)*256 + L_ST2'); va(vT + 6, [(0, 5, 8)], T2)
            va(vT + 7, [(0, 3, 8)], None, L_K1)
            self.finish_load('gr', ld_gr, [gr + 1])
            for ctl in ('quad_perm:[1,0,3,2]', 'quad_perm:[2,3,0,1]', 'row_half_mirror', 'row_ror:8'): self.dpp('v_add_f32', gr, gr, gr, ctl)
            a(f"""s_cmp_lg_u32 s{sWAVE}, 1
            s_cbranch_scc1 L_NOCT""")
            va(vT + 1, [(0, 4, 8)], None, L_TB)
            a(f"""ds_read_b64 {vr(ct + 2, 2)}, v{vT+1}
            ds_read_b64 {vr(ct + 6, 2)}, v{vT+1} offset:128
            ds_read_b64 {vr(ct + 8, 2)}, v{vT+1} offset:384
            s_waitcnt lgkmcnt(0)""")
            for b in (ct, ct + 4):
                self.unpack(b, b + 1, b + 2); self.unpack(b + 2, b + 3, b + 3)
            a('L_NOCT:')
        def f_pre(part):
            if part == 0:
                a(f"""s_cmp_lt_u32 s{sWAVE}, 4
                s_cbranch_scc1 L_NOST""")
                S(T0, '(w - 4)*4096 + L_GU')
                a(f'v_add_u32 v{vT}, s{T0}, v{vL16}')
                a(f'v_add_u32 v{vT+3}, {L_DN - L_GU}, v{vT}')
                for n, (m, i) in enumerate(freg):
                    for back in range(2):
                        self.dw('ds_write_b128', vT if m < 2 else vT + 3, big + 8 * n + 4 * back, 4, f_lds(m, i) - (L_GU if m < 2 else L_DN) + (1 - back) * 16384)
                a('L_NOST:')
                if fall:
                    S(T0, 'w*4096 + L_GU'); a(f'v_add_u32 v{vT}, s{T0}, v{vL16}')
                    for n, (m, i) in enumerate(fall):
                        assert m < 2
                        self.dw('ds_write_b128', vT, fb0 + 4 * n, 4, f_lds(m, i) - L_GU)
                return
            for i in range(8): self.unpack(x1 + 2 * i, x1 + 2 * i + 1, xr + i)
            expand(mf, tb4); expand(mf + 16, tb4 + 1)
        if TL:
            a(f"""s_cmp_lg_u32 s{sLOC}, 0
            s_cbranch_scc1 L_ELOC""")
            self.inbox(3, 2)
            a("""s_barrier
            L_ELOC:""")
        else:
            ffn_dma(fd[1])
            self.inbox(3, 2, work=lambda: (e_work(), f_pre(0)))
            a('s_barrier')
        self.stamp('x1ok')
        def ld_sg():
            for q in range(4):
                S(T0, 'T6 + q', q=q * 8192)
                self.bl(sg + 4 * q, 4, vSG, rWS, T0, 0, 'sc1')
        self.try_load(ld_sg, [sg + 3, sg + 7, sg + 11, sg + 15], vT, e_work if TL else lambda: f_pre(1))
        V.release(vSG)
        self.stamp('x1ld')
        if o.get('htouch', 1):
            S(T2, '(fs*4 + kq)*2048 + w*256 + HGR')
            vDum = V.alloc()
            a(f'v_lshlrev_b32 v{vDum}, 7, v{vL}')
            a('s_mov_b64 exec, 3')
            self.bl(vDum, 1, vDum, rWS, T2, 0, '')
            a('s_mov_b64 exec, -1')
        ffn_dma(fd[2], T2)
        A_, B_, C_, U_ = sg, sg + 1, sg + 2, sg + 3
        self.pk('add', sg, sg, sg + 4); self.pk('add', sg + 8, sg + 8, sg + 12)
        a(f"""v_add_f32 v{C_}, v{C_}, v{sg+6}
        v_add_f32 v{sg+10}, v{sg+10}, v{sg+14}""")
        self.pk('add', sg, sg, sg + 8)
        a(f"""v_add_f32 v{C_}, v{C_}, v{sg+10}
        v_mov_b32 v{U_}, v{B_}
        v_permlane32_swap_b32 v{A_}, v{C_}
        v_permlane32_swap_b32 v{B_}, v{U_}
        v_add_f32 v{A_}, v{A_}, v{C_}
        v_add_f32 v{B_}, v{B_}, v{U_}
        v_permlane16_swap_b32 v{A_}, v{B_}
        v_add_f32 v{U_}, v{A_}, v{B_}
        v_add_f32 v{A_}, v{A_}, v{B_}
        v_permlane16_swap_b32 v{A_}, v{U_}
        v_mul_f32 v{C_}, 0x3a800000, v{A_}
        v_mul_f32 v{A_}, 0x3a800000, v{A_}
        v_permlane32_swap_b32 v{A_}, v{C_}""")
        self.stat_math(A_, C_, st, st + 1)
        S(T0, 'w*8 + L_K1')
        a(f"""v_rcp_f32 v{st+1}, v{st+1}
        v_fma_f32 v{U_}, -v{st}, v{gr}, v{U_}
        v_mov_b32 v{vT+1}, s{T0}
        v_mul_f32 v{U_}, v{U_}, v{st+1}""")
        self.dw('ds_write_b64', vT + 4, st, 2)
        a(f"""s_movk_i32 s{T0}, 0xfff
        v_ashrrev_i32 v{A_}, 31, v{U_}
        v_or_b32 v{A_}, 0x80000000, v{A_}
        v_xor_b32 v{A_}, v{A_}, v{U_}
        v_bfi_b32 v{ck}, s{T0}, v{vRid}, v{A_}""")
        def top2(ctls, first):
            for n, ctl in enumerate(ctls):
                if n == 0 and first:
                    self.dpp('v_min_u32', ck + 1, ck, ck, ctl); self.dpp('v_max_u32', ck, ck, ck, ctl)
                    continue
                self.dpp('v_min_u32', ck + 2, ck, ck, ctl); self.dpp('v_max_u32', ck + 1, ck + 1, ck + 1, ctl); self.dpp('v_max_u32', ck, ck, ck, ctl)
                a(f'v_max_u32 v{ck+1}, v{ck+1}, v{ck+2}')
        top2(('row_ror:8', 'row_ror:4', 'row_ror:2', 'row_ror:1'), True)
        self.dw('ds_write_b64', vT + 1, ck, 2)
        va(vT + 2, [(0, 1, 128 * 4096), (1, 3, 4096)] if TL else [(0, 2, 64 * 4096), (2, 2, 2 * 4096)])
        S(T1, ('cb*32768' if TL else '((cb & 7)*8 + (cb >> 3))*4096') + ' + (rt >> 1)*64 + (rt & 1)*16 + INB + 2560')
        self.barrier()
        self.stamp('ln2')
        if PR:
            a(f"""s_cmp_ge_u32 s{sWAVE}, 2
            s_cbranch_scc1 L_PR1
            s_setprio {PR}
            L_PR1:""")
        self.dr('ds_read_b64', ck, 2, vT + 7, 0, 'k'); self.dr('ds_read_b64', st, 2, vT + 6, 0, 's')
        lg.wait('k')
        top2(('quad_perm:[1,0,3,2]', 'quad_perm:[2,3,0,1]', 'row_half_mirror'), False)
        a(f"""v_or_b32 v{ck+2}, 1, v{ck+1}
        v_mov_b32 v{ck+1}, s{sTAG}
        v_mov_b32 v{ck+3}, s{sTAG}
        s_cmp_lg_u32 s{sWAVE}, 0
        s_cbranch_scc1 L_NOF
        s_mov_b64 exec, 0xffff""")
        self.bs(ck, 4, vT + 2, rWS, T1, 0, 'sc1', count=False)
        a("""s_mov_b64 exec, -1
        L_NOF:""")
        self.stamp('Fpub')
        a(f"""s_cmp_lg_u32 s{sWAVE}, 1
        s_cbranch_scc1 L_NOC
        v_and_b32 v{vT}, 16, v{vL}
        v_cmp_eq_u32 vcc, 0, v{vT}
        v_cndmask_b32 v{vT}, v{ck+2}, v{ck}, vcc
        v_not_b32 v{vT}, v{vT}
        v_bfe_u32 v{vT}, v{vT}, 1, 7
        v_lshlrev_b32 v{vT+2}, 3, v{vT}
        v_mul_u32_u24 v{vT}, 144, v{vT}
        v_add_u32 v{vT+2}, {L_ST2}, v{vT+2}""")
        va(vT + 1, [(0, 4, 8)])
        cx, cs, ch = sg, sg + 4, sg + 8
        a(f"""v_add_u32 v{vT}, v{vT}, v{vT+1}
        ds_read_b64 {vr(cs, 2)}, v{vT+2}
        ds_read_b64 {vr(cx, 2)}, v{vT} offset:{L_XT}""")
        va(vT + 2, [(0, 4, 16), (4, 1, 16384), (5, 1, 4096)])
        va(vT + 3, [(4, 1, 16384)])
        S(T0, 'rt*32768 + cb*256 + CAND'); S(T3, 'rt*32768 + cb*8 + 8192 + CAND')
        a(f"""v_mov_b32 v{cx+3}, s{sTAG}
        s_waitcnt lgkmcnt(0)""")
        self.unpack(ch, ch + 1, cx); self.unpack(ch + 2, ch + 3, cx + 1)
        for i in (0, 2): self.pk('add', ch + i, ch + i, cs, bc=(1,), neg=(1,))
        self.round_list([ch + i for i in range(4)])
        for i in (0, 2): self.pk('mul', ch + i, ch + i, cs + 1, bc=(1,))
        self.round_list([ch + i for i in range(4)])
        for i in (0, 2): self.pk('mul', ch + i, ch + i, ct + 4 + i)
        self.round_list([ch + i for i in range(4)])
        for i in (0, 2): self.pk('add', ch + i, ch + i, ct + i)
        a(f"""v_mov_b32 v{cx+2}, v{cx+1}
        v_mov_b32 v{cx+1}, s{sTAG}
        s_mov_b32 exec_hi, 0
        v_cvt_pk_bf16_f32 v{cx}, v{ch}, v{ch+1}
        v_cvt_pk_bf16_f32 v{cx+2}, v{ch+2}, v{ch+3}
        s_mov_b32 exec_hi, -1
        v_dot2_f32_bf16 v{cs}, v{cx}, v{ct+8}, 0
        v_mov_b32 v{cs+1}, s{sTAG}
        v_dot2_f32_bf16 v{cs}, v{cx+2}, v{ct+9}, v{cs}""")
        self.bs(cx, 4, vT + 2, rWS, T0, 0, 'sc1', count=False)
        for ctl in ('quad_perm:[1,0,3,2]', 'quad_perm:[2,3,0,1]', 'row_half_mirror', 'row_ror:8'): self.dpp('v_add_f32', cs, cs, cs, ctl)
        a('s_mov_b64 exec, 0x10001')
        self.bs(cs, 2, vT + 3, rWS, T3, 0, 'sc1', count=False)
        a("""s_mov_b64 exec, -1
        L_NOC:""")
        V.release(ct, 12)
        def ln2_tile():
            for i in E2: self.pk('add', hh + i, x1 + i, st, bc=(1,), neg=(1,))
            self.round_list([hh + i for i in range(16)])
            for i in E2: self.pk('mul', hh + i, hh + i, st + 1, bc=(1,))
            self.round_list([hh + i for i in range(16)])
            for i in E2: self.pk('mul', hh + i, hh + i, mf + 16 + i)
            self.round_list([hh + i for i in range(16)])
            for i in E2: self.pk('add', hh + i, hh + i, mf + i)
            self.round_list([hh + i for i in range(16)])
        lg.wait('s')
        if PR: a('s_setprio 0')
        self.stamp('cand')
        if o.get('ccat', 3) == 3: c_clean()
        V.release(kc, 4); V.release(cf)
        ffn_dma(fd[3])
        uu = V.alloc(16); vGr = V.alloc(); vDr = V.alloc(); vXs = V.alloc()
        def out_calc():
            expand(mf, tb4 + 2)
            for i in E2: self.pk('mul', hh + i, hh + i, mf + i)
            self.round_list([hh + i for i in range(16)])
            for i in E2: self.pk('add', hh + i, hh + i, x1 + i)
            for i in range(8): a(f'v_cvt_pk_bf16_f32 v{op+i}, v{hh+2*i}, v{hh+2*i+1}')
            for q in range(2): self.dw('ds_write_b128', vOT, op + 4 * q, 4, 16 * q)
            S(T3, 'w*(16*144) + L_OT'); va(vOT, [(3, 3, 144), (0, 3, 16)], T3)
        oc = o.get('ocat', 2 if TL else 1); l2 = o.get('l2at', 1 if TL else 0)
        def f_work():
            if TL: f_pre(0); f_pre(1)
            if l2 == 0: ln2_tile()
            if oc == 0: out_calc()
            S(T0, '(w >> 2)*32768 + (w & 3)*32 + L_GU')
            va(vGr, [(4, 2, 8192), (2, 2, 128), (3, 2, 32), (0, 2, 8)]); a(f'v_xor_b32 v{vGr}, s{T0}, v{vGr}')
            S(T0, 'w*64')
            va(vDr, [(2, 1, 512), (3, 1, 4096), (5, 1, 2048), (2, 2, 64), (4, 1, 32), (0, 2, 8)])
            a(f'v_xor_b32 v{vDr}, s{T0}, v{vDr}'); a(f'v_add_u32 v{vDr}, {L_DN}, v{vDr}')
            va(vXs, [(0, 3, 16), (4, 2, 128)], None, L_XS)
            S(T0, 'w*16 + L_K2'); a(f'v_mov_b32 v{vT}, s{T0}')
            va(vT + 1, [(0, 3, 16)], None, L_K2)
            a(f'v_and_b32 v{vT+4}, 8, v{vL}')
            a(f'v_cmp_eq_u32 {sr(sCMP, 2)}, 0, v{vT+4}')
            self.stamp('oc')
        self.inbox(5, 8, (1, 3, 5, 7), f_work)
        P = sPL
        a(f"""s_min_u32 s{P+1}, s{P}, s{P+4}
        s_max_u32 s{P}, s{P}, s{P+4}
        s_max_u32 s{P+3}, s{P+2}, s{P+6}
        s_min_u32 s{P+2}, s{P+2}, s{P+6}
        s_max_u32 s{P+4}, s{P+1}, s{P+3}
        s_min_u32 s{P+1}, s{P+1}, s{P+3}
        v_mov_b32 v{uu}, s{P}
        v_mov_b32 v{uu+3}, s{P+2}
        v_mov_b32 v{uu+1}, s{P+4}
        v_mov_b32 v{uu+2}, s{P+1}""")
        self.dw('ds_write_b128', vT, uu, 4)
        self.stamp('F2p')
        V.release(big, 8 * len(freg) + 4 * nfa); V.release(gr, 2); V.release(vGR); V.release(vRid)
        ffn = V.alloc(48); ga_ = V.alloc(16); gb_ = V.alloc(16)
        vm.wait('gu')
        self.barrier()
        self.stamp('F2')
        def gu_frags():
            for s in range(8):
                self.tr(ffn + 4 * s, vGr, s * 1024); self.tr(ffn + 4 * s + 2, vGr, s * 1024 + 512)
        a(f"""s_cmp_lt_u32 s{sWAVE}, 4
        s_cbranch_scc1 L_CSEL""")
        fq0, vq0 = list(fq), list(vm.q)
        if not o.get('f4late', 1): ffn_dma(fd[4])
        gu_frags()
        if l2 == 1: ln2_tile()
        if oc == 1: out_calc()
        if o.get('f4late', 1): ffn_dma(fd[4])
        a("""s_branch L_CSELD
        L_CSEL:""")
        lg.reset(); fq[:] = fq0; vm.q = vq0
        if PR: a(f's_setprio {PR}')
        self.r128(uu, vT + 1)
        S(T0, 'w*512 + L_XS'); a(f'v_add_u32 v{vT+2}, s{T0}, v{vL8}')
        S(T0, 'w*4 + L_K3'); a(f'v_mov_b32 v{vT+3}, s{T0}')
        lg.wait_all()
        c4 = uu + 4
        for n, ctl in enumerate(('quad_perm:[1,0,3,2]', 'quad_perm:[2,3,0,1]', 'row_half_mirror')):
            for i in range(4): self.dpp('v_max_u32', c4 + i, uu + 3 - i, uu + i, ctl)
            if n == 2: break
            a(f"""v_max_u32 v{c4+4}, v{c4}, v{c4+2}
            v_max_u32 v{c4+5}, v{c4+1}, v{c4+3}
            v_min_u32 v{c4+6}, v{c4}, v{c4+2}
            v_min_u32 v{c4+7}, v{c4+1}, v{c4+3}
            v_max_u32 v{uu}, v{c4+4}, v{c4+5}
            v_min_u32 v{uu+1}, v{c4+4}, v{c4+5}
            v_max_u32 v{uu+2}, v{c4+6}, v{c4+7}
            v_min_u32 v{uu+3}, v{c4+6}, v{c4+7}""")
        for i in range(4): a(f'v_readfirstlane_b32 s{P+i}, v{c4+i}')
        a(f"""s_bitcmp1_b32 s{sWAVE}, 0
        s_cselect_b32 s{P}, s{P+1}, s{P}
        s_cselect_b32 s{P+2}, s{P+3}, s{P+2}
        s_bitcmp1_b32 s{sWAVE}, 1
        s_cselect_b32 s{P}, s{P+2}, s{P}
        s_and_b32 s{T2}, s{P}, 4095""")
        S(T0, '((15 - (T2 >> 8))*2 + (T2 & 1))*16384 + CAND'); S(T1, 'kq*1024 + T0'); S(T0, 'T0 + 8192')
        va(vT + 6, [(0, 4, 8)])
        def sel_work():
            self.stamp('sel')
            if PR: a('s_setprio 0')
            ffn_dma(fd[4], T3)
            gu_frags()
            if l2 == 1: ln2_tile()
            if oc == 1: out_calc()
            S(T2, 'T2*4 + w')
        self.try_load(lambda: (self.bl(uu + 4, 2, vT + 6, rWS, T0, 0, 'sc1'), self.bl(uu, 4, vL16, rWS, T1, 0, 'sc1')), [uu + 1, uu + 3, uu + 5], vT + 4, sel_work)
        if PR: a(f's_setprio {PR}')
        a(f'ds_write2_b32 v{vT+2}, v{uu}, v{uu+2} offset0:0 offset1:1'); lg.issue()
        for ctl in ('quad_perm:[1,0,3,2]', 'quad_perm:[2,3,0,1]', 'row_half_mirror', 'row_ror:8'): self.dpp('v_add_f32', uu + 4, uu + 4, uu + 4, ctl)
        a(f"""v_cvt_pk_bf16_f32 v{uu+4}, 0, v{uu+4}
        v_ashrrev_i32 v{uu+5}, 31, v{uu+4}
        v_or_b32 v{uu+5}, 0x80000000, v{uu+5}
        v_xor_b32 v{uu+4}, v{uu+4}, v{uu+5}
        v_and_b32 v{uu+4}, s{sMASK}, v{uu+4}
        v_or_b32 v{uu+4}, s{T2}, v{uu+4}""")
        self.dw('ds_write_b32', vT + 3, uu + 4, 1)
        if PR: a('s_setprio 0')
        a('L_CSELD:')
        V.release(vFG); V.release(vFD)
        a(f'v_mov_b32 v{vT}, {L_K3}')
        va(vT + 4, [(0, 4, 16), (5, 1, 8)])
        S(T1, 'fs*8192 + HGR'); S(T7, 'mf*kh*8192 + (kq*8 + w)*256 + T1')
        self.barrier()
        self.stamp('xsel')
        self.r128(uu, vT)
        lg.wait_all()
        a(f"""v_max_u32 v{uu+4}, v{uu}, v{uu+1}
        v_max_u32 v{uu+5}, v{uu+2}, v{uu+3}
        v_min_u32 v{uu+6}, v{uu}, v{uu+1}
        v_min_u32 v{uu+7}, v{uu+2}, v{uu+3}
        v_min_u32 v{uu+1}, v{uu+4}, v{uu+5}
        v_max_u32 v{uu}, v{uu+4}, v{uu+5}
        v_max3_u32 v{uu+1}, v{uu+1}, v{uu+6}, v{uu+7}
        v_cndmask_b32 v{vT}, v{uu+1}, v{uu}, {sr(sCMP, 2)}
        v_readfirstlane_b32 s{sK1}, v{uu}
        v_and_b32 v{vT}, 3, v{vT}
        v_readfirstlane_b32 s{sK2}, v{uu+1}
        v_lshl_add_u32 v{vT}, v{vT}, 9, v{vXs}""")
        self.r128(uu + 4, vT)
        if oc < 2:
            for q in range(2): self.r128(op + 4 * q, vOT, q * 8 * 144, 'ot')
        a(f"""s_bfe_u32 s{sROW0}, s{sK1}, {3 | (11 << 16)}
        s_bfe_u32 s{sROW1}, s{sK2}, {3 | (11 << 16)}
        s_sub_u32 s{sROW0}, 2047, s{sROW0}
        s_sub_u32 s{sROW1}, 2047, s{sROW1}
        s_waitcnt lgkmcnt({2 if oc < 2 else 0})""")
        gd = [ga_ + 4 * i for i in range(4)] + [gb_ + 4 * i for i in range(4)]
        for s in range(8):
            a(f'v_mfma_f32_16x16x32_bf16 {vr(gd[s], 4)}, {vr(uu + 4, 4)}, {vr(ffn + 4*s, 4)}, 0')
        p0, p1 = uu, uu + 2
        hk = V.alloc(4)
        for p, b in ((p0, 0), (p1, 4)):
            a(f'v_add_f32 v{p}, v{gd[b]}, v{gd[b+1]+1}')
            a(f'v_add_f32 v{p+1}, v{gd[b+2]+2}, v{gd[b+3]+3}')
        a(f"""v_add_f32 v{p0}, v{p0}, v{p0+1}
        v_add_f32 v{p1}, v{p1}, v{p1+1}
        v_mov_b32 v{p0+1}, s{sTAG}
        v_permlane16_swap_b32 v{p1}, v{p1+1}
        s_cmp_ge_u32 s{sJ}, 28
        s_cbranch_scc1 L_NOHP
        v_add_f32 v{p0}, v{p0}, v{p1+1}
        s_mov_b32 exec_lo, 0xffff
        s_mov_b32 exec_hi, 0xffff""")
        self.bs2([(p0, 2, vT + 4, T7, 0)])
        a(f"""s_mov_b64 exec, -1
        L_NOHP:
        v_mov_b32 v{hk}, v{p0}
        v_mov_b32 v{hk+1}, v{p0+1}
        v_add_u32 v{hk+2}, s{T7}, v{vT+4}""")
        self.stamp('Hpub')
        vOr = V.alloc(); vOa = V.alloc()
        def out_store():
            S(T0, 'rt*128 + w*16'); va(vOr, [(3, 3, 1)], T0)
            S(T2, 'T0*2048 + cb*128'); S(T3, 'T2 + 16384')
            va(vOa, [(3, 3, 2048), (0, 3, 16)])
            for q in range(2):
                if q: a(f'v_add_u32 v{vOr}, 8, v{vOr}')
                a(f"""v_cmp_ne_u32 vcc, s{sROW0}, v{vOr}
                v_cmp_ne_u32 {sr(sCMP, 2)}, s{sROW1}, v{vOr}
                s_and_b64 exec, vcc, {sr(sCMP, 2)}""")
                self.bs(op + 4 * q, 4, vOa, rOUT, (T2, T3)[q], 0, o.get('outmod', 'sc1'), count=False)
                a('s_mov_b64 exec, -1')
        lg.wait('ot')
        if o.get('outat', 1) == 0: assert oc < 2; out_store()
        fz = V.alloc(4)
        sFR, sFK, sFC0 = T4, T5, T6
        a(f"""s_bitcmp1_b32 s{sX if TL else sRT}, {1 if TL else 2}
        s_cselect_b32 s{sFR}, s{sROW1}, s{sROW0}
        s_cselect_b32 s{sFK}, s{sK2}, s{sK1}
        s_cmp_lg_u32 s{sWAVE}, 7
        s_cbranch_scc1 L_NOFZ
        s_cmp_lg_u32 s2, 0
        s_cbranch_scc1 L_NONON
        v_mov_b32 v{vT+2}, s{sTAG}
        s_mov_b64 exec, 1""")
        self.bs(vT + 2, 1, vZ, rWS, '0', 0, 'sc1', count=False)
        a(f"""s_mov_b64 exec, -1
        L_NONON:""")
        S(sFC0, '(x >> 2)*2 + (x & 1)' if TL else '(rt >> 3)*2 + (rt & 1)')
        S(T7, '(cb*8 + x)*(56*128) + GGR' if TL else '(cb*8 + (rt >> 2)*2 + (rt & 1))*(56*128) + GGR')
        S(sU, 'T4*2048 + cb*128 + T6*32')
        va(vT + 6, [(0, 3, 4)])
        S(T0, 'T6*32 + L_GB'); a(f'v_add_u32 v{vT+1}, s{T0}, v{vT+6}')
        a(f'ds_read_b32 v{fz+2}, v{vT+1}')
        S(sK1, '((T4 >> 7)*2 + ((T5 >> 2) & 1))*16384 + cb*256 + T6*64 + CAND'); S(sK2, 'k1 + 4096')
        va(vT + 7, [(0, 3, 8)])
        ld_fz = lambda: (self.bl(st, 2, vT + 7, rWS, sK1, 0, 'sc1'), self.bl(fz, 2, vT + 7, rWS, sK2, 0, 'sc1'))
        q_ = list(vm.q); ld_fz(); vm.q = q_
        a(f"""s_and_b32 s{T0}, s{sFK}, s{sMASK}
        s_ashr_i32 s{T2}, s{T0}, 31
        s_andn2_b32 s{T2}, 0x7fff0000, s{T2}
        s_or_b32 s{T2}, s{T2}, 0x80000000
        s_xor_b32 s{T0}, s{T0}, s{T2}
        v_mov_b32 v{fz+3}, s{T0}
        v_mul_f32 v{fz+3}, s{sL2E}, v{fz+3}
        v_exp_f32 v{fz+3}, -v{fz+3}
        v_add_f32 v{fz+3}, 1.0, v{fz+3}
        v_rcp_f32 v{fz+3}, v{fz+3}""")
        self.round1(fz + 3)
        a(f"""L_NOFZ:
        s_cmp_lt_u32 s{sJ}, 28
        s_cbranch_scc1 L_HSEC""")
        if oc == 2:
            out_calc()
            self.barrier()
            for q in range(2): self.r128(op + 4 * q, vOT, q * 8 * 144)
            lg.wait_all()
        a("""s_branch L_GSEC
        L_HSEC:""")
        a(f"""s_cmp_lt_u32 s{sWAVE}, 4
        s_cbranch_scc1 L_HW""")
        if oc == 2: out_calc()
        a("""s_branch L_NOH
        L_HW:""")
        S(T0, 'w*256 + T1')
        va(vT, [(4, 2, 2048), (0, 4, 16)])
        S(T2, 'w*32 + L_ACT'); va(vT + 1, [(5, 1, 128), (2, 1, 16), (1, 1, 8), (3, 1, 4), (0, 1, 2)], T2)
        a(f"""s_cmp_lg_u32 s{sLOC}, 0
        s_cbranch_scc1 L_HLOC""")
        self.spoll([(q, 1, T0, q * 2048 + 1024 + 252) for q in range(4)], range(4))
        a('L_HLOC:')
        self.stamp('Hpre')
        g, u = ga_, ga_ + 4
        self.try_load(lambda: [self.bl(ga_ + 4 * m, 4, vT, rWS, T0, m * 1024, 'sc1') for m in range(2)], [g + 1, g + 3, u + 1, u + 3], vT + 2, out_calc if oc == 2 else None)
        a(f"""v_permlane32_swap_b32 v{g}, v{g+2}
        v_permlane32_swap_b32 v{u}, v{u+2}
        v_add_f32 v{g}, v{g}, v{g+2}
        v_add_f32 v{u}, v{u}, v{u+2}
        v_mov_b32 v{g+2}, v{g}
        v_mov_b32 v{u+2}, v{u}
        v_permlane16_swap_b32 v{g}, v{g+2}
        v_permlane16_swap_b32 v{u}, v{u+2}
        v_add_f32 v{g}, v{g}, v{g+2}
        v_add_f32 v{u}, v{u}, v{u+2}""")
        self.round2(g, u)
        self.silu(g, vT + 2)
        a(f"""v_mul_f32 v{g}, v{g}, v{u}
        v_cvt_pk_bf16_f32 v{g}, v{g}, v{g}
        ds_write_b16 v{vT+1}, v{g}
        L_NOH:""")
        va(vT, [(2, 1, 128), (5, 1, 16)], None, L_ACT)
        va(vT + 1, [(4, 2, 56 * 128), (0, 4, 8)])
        va(vT + 2, [(0, 2, 4096)] if TL else [(0, 1, 64 * 4096), (1, 1, 2 * 4096)])
        S(T0, '(kq*8 + w)*(4*56*128) + fs*128 + GGR')
        S(T1, ('(kq*8 + w)*16384' if TL else '(((kq & 1)*4 + (w >> 1))*8 + (w & 1)*4 + (kq >> 1))*4096') + ' + x*64 + (j >> 2)*4 + INB + 3072')
        vm.wait_all()
        self.barrier()
        self.stamp('Hok')
        for s in range(4):
            self.r128(ga_ + 4 * s, vT, s * 32, ('ac', s))
            self.tr(ffn + 32 + 4 * s, vDr, s * 8192, ('ac', s)); self.tr(ffn + 32 + 4 * s + 2, vDr, s * 8192 + 1024, ('ac', s))
        for s in range(4):
            lg.wait(('ac', s))
            a(f'v_mfma_f32_32x32x16_bf16 {vr(gb_, 16)}, {vr(ga_ + 4*s, 4)}, {vr(ffn + 32 + 4*s, 4)}, ' + ('0' if s == 0 else vr(gb_, 16)))
        if oc == 2:
            for q in range(2): self.r128(op + 4 * q, vOT, q * 8 * 144)
        a(f'v_mov_b32 v{gb_+1}, s{sTAG}')
        self.bs(gb_, 2, vT + 1, rWS, T0, 0, 'sc1')
        a('s_mov_b64 exec, 15')
        self.bs(gb_ + 1, 1, vT + 2, rWS, T1, 0, 'sc1')
        a('s_mov_b64 exec, -1')
        self.stamp('Gpub')
        def hclean():
            a("""s_mov_b32 exec_lo, 0xffff
            s_mov_b32 exec_hi, 0xffff""")
            self.bs(hk, 2, hk + 2, rWS, '0', 0, 'sc1', count=False)
            a('s_mov_b64 exec, -1')
        if o.get('hclean', 3) == 1: hclean()
        lg.wait_all()
        a('L_GSEC:')
        if o.get('outat', 1) == 1: out_store()
        a(f"""s_cmp_lt_u32 s{sJ}, 16
        s_cbranch_scc1 L_GF""")
        if o.get('outat', 1) == 2: out_store()
        if o.get('hclean', 3) >= 2:
            a(f"""s_cmp_ge_u32 s{sJ}, 28
            s_cbranch_scc1 L_FIN
            s_waitcnt vmcnt(0)""")
            hclean()
        a("""s_branch L_FIN
        L_GF:""")
        self.inbox(6, 8, range(7))
        self.stamp('Gpre')
        a('s_barrier')
        if o.get('hclean', 3) == 2: hclean()
        if o.get('hclean', 3) == 3:
            a(f"""s_cmp_eq_u32 s{sWAVE}, 7
            s_cbranch_scc1 L_G7
            s_barrier""")
            if o.get('outat', 1) == 2: out_store()
            hclean()
            a("""s_branch L_FIN
            L_G7:""")
        a(f"""s_cmp_lg_u32 s{sWAVE}, 7
        s_cbranch_scc1 L_FIN""")
        S(T0, 'T7 + 4096')
        gg = [ga_ + 4 * i for i in range(4)] + [uu + 4 * i for i in range(3)]
        self.poll(lambda: [self.bl(gg[n], 4, vL16, rWS, (T7, T0)[n >> 2], (n & 3) * 1024, 'sc1') for n in range(7)],
                  [gg[n] + 1 + 2 * e for n in range(7) for e in range(2)], vT)
        self.finish_load(None, ld_fz, [st + 1, fz + 1], vT)
        self.stamp('Gok')
        if o.get('hclean', 3) == 3: a('s_barrier')
        y0, y1 = gg[0], gg[0] + 1
        for lo, hi in ((0, 1), (2, 3), (4, 5), (0, 2), (4, 6), (0, 4)):
            for e in (0, 2): a(f'v_add_f32 v{gg[lo]+e}, v{gg[lo]+e}, v{gg[hi]+e}')
        a(f'v_mov_b32 v{y1}, v{gg[0]+2}')
        for y in (y0, y1): self.dpp('v_add_f32', y, y, y, 'row_ror:8')
        for sw in ('v_permlane16_swap_b32', 'v_permlane32_swap_b32'):
            for y in (y0, y1): a(f'v_mov_b32 v{y+2}, v{y}')
            for y in (y0, y1): a(f'{sw} v{y}, v{y+2}')
            self.pk('add', y0, y0, y0 + 2)
        self.round2(y0, y1)
        self.pk('mul', y0, y0, fz + 3, bc=(1,))
        self.unpack(vT, vT + 1, st)
        self.round2(y0, y1)
        self.pk('add', y0, y0, vT)
        self.unpack(vT, vT + 1, fz + 2)
        self.round2(y0, y1)
        self.pk('mul', y0, y0, vT)
        self.unpack(vT, vT + 1, fz)
        self.round2(y0, y1)
        self.pk('add', y0, y0, vT)
        a(f'v_cvt_pk_bf16_f32 v{y0}, v{y0}, v{y1}')
        a('s_mov_b64 exec, 0xff')
        self.bs(y0, 1, vT + 6, rOUT, sU, 0, 'sc1')
        a('s_mov_b64 exec, -1')
        if o.get('outat', 1) == 2: out_store()
        if o.get('hclean', 3) == 3: hclean()
        a('L_FIN:')
        if o.get('exfil'):
            self.stamp('fin')
            a('s_waitcnt vmcnt(0)')
            self.stamp('finw')
            a(f'''s_lshl3_add_u32 s{T0}, s2, s{sWAVE}
            s_cmp_lg_u32 s{T0}, {o.get('exwho', 7)}
            s_cbranch_scc1 L_END
            v_readlane_b32 s{T0}, v255, 0
            v_readlane_b32 s{T1}, v255, 1
            v_readlane_b32 s{T2}, v255, 2
            s_sub_u32 s{T2}, s{T2}, s{T1}
            s_max_i32 s{T2}, s{T2}, 0
            s_min_u32 s{T2}, s{T2}, 10000
            s_mul_i32 s{T2}, s{T2}, 10
            s_add_u32 s{T2}, s{T2}, 6000
            L_PAD:
            s_memrealtime {sr(sTM, 2)}
            s_waitcnt lgkmcnt(0)
            s_sub_u32 s{T1}, s{sTM}, s{T0}
            s_cmp_lt_u32 s{T1}, s{T2}
            s_cbranch_scc1 L_PAD''')
        if o.get('padfin'):
            a(f'''s_lshl3_add_u32 s{T0}, s2, s{sWAVE}
            s_cmp_lg_u32 s{T0}, 7
            s_cbranch_scc1 L_END
            s_memrealtime {sr(sTM, 2)}
            s_waitcnt lgkmcnt(0)
            s_mov_b32 s{T0}, s{sTM}
            L_PAD2:
            s_memrealtime {sr(sTM, 2)}
            s_waitcnt lgkmcnt(0)
            s_sub_u32 s{T1}, s{sTM}, s{T0}
            s_cmp_lt_u32 s{T1}, {o['padfin']}
            s_cbranch_scc1 L_PAD2''')
        if self.prof:
            a('s_waitcnt vmcnt(0) lgkmcnt(0)')
            self.stamp('end')
            a(f's_memrealtime {sr(sTM, 2)}')
            a('s_waitcnt lgkmcnt(0)')
            a(f'v_writelane_b32 v255, s{sTM}, 61')
            S(T0, '(wg*8 + w)*256 + STAMPS')
            a(f'v_writelane_b32 v255, s{sSPIN}, 62')
            a(f'v_lshlrev_b32 v{vT+1}, 2, v{vL}')
            a(f'buffer_store_dword v255, v{vT+1}, {sr(rWS, 4)}, s{T0} offen')
            S(T0, 'T0 + 0x100000')
            a(f'buffer_store_dword v254, v{vT+1}, {sr(rWS, 4)}, s{T0} offen')
        a('L_END:')
        a('s_endpgm')
        return self

    def text(self):
        a = self.a
        npad = a.fix_hazards()
        errs = a.check_waits([NAME])
        for e in errs: print('WAITERR', e, file=sys.stderr)
        assert not errs
        hdr = open(os.path.join(os.path.dirname(os.path.abspath(__file__)), 'header.txt')).read()
        s = hdr + '; @launch grid=(256,1,1) block=(512,1,1) lds=163840\n'
        s += '.amdgcn_target "amdgcn-amd-amdhsa--gfx950"\n.text\n'
        s += f'.globl {NAME}\n.p2align 8\n.type {NAME},@function\n'
        body = a.text()
        import subprocess, tempfile
        with tempfile.TemporaryDirectory() as td:
            open(td + '/t.s', 'w').write('.amdgcn_target "amdgcn-amd-amdhsa--gfx950"\n.text\n' + body.replace('CODE_KB', '20480'))
            subprocess.run(['clang', '-x', 'assembler', '-target', 'amdgcn-amd-amdhsa', '-mcpu=gfx950', '-c', td + '/t.s', '-o', td + '/t.o'], check=True)
            subprocess.run(['llvm-objcopy', '-O', 'binary', '-j', '.text', td + '/t.o', td + '/t.bin'], check=True)
            size = os.path.getsize(td + '/t.bin')
        print('; code bytes', size, file=sys.stderr)
        s += body.replace('CODE_KB', str((size // 1024 + 1) * 1024))
        s += '.p2align 10\n.fill 768, 4, 0xbf800000\n'
        s += '.section .rodata,"a"\n' + kernel_desc(NAME, 256, 102)
        print(f'; vgpr hi {self.V.hi}, nops {npad}, instrs {sum(1 for k, _ in a.items if k == "ins")}', file=sys.stderr)
        return s


if __name__ == '__main__':
    import argparse, json
    ap = argparse.ArgumentParser()
    ap.add_argument('-o', default='/dev/stdout')
    ap.add_argument('--prof', action='store_true')
    ap.add_argument('--opts', default='{}')
    args = ap.parse_args()
    g = Gen(args.prof, json.loads(args.opts)).build()
    t = g.text()
    open(args.o, 'w').write(t)
    if args.prof: open(args.o + '.stamps', 'w').write(json.dumps(g.stnames))
```

```python
import sys, os
sys.path.insert(0, os.path.dirname(os.path.abspath(__file__)))
from asm import *

NAME = 'adaLN_cond__linear_kernel_hedgehog__moe_arch_mod__prompt_kernel'

NONCE = 0x0
CFL = 0x8000
MARK = 0x100
GR = 0x010000
MODP2 = 0x020000
SINB = 0x040000
AINB = 0x080000
INA = 0x200000
INB = 0x100000
HF = 0x400000
OF = 0x800000
STAT = 0xC00000
CAND = 0x2000000
HGR = 0x1400000
ZP = 0x1480000
GGR = 0x1500000
KVP = 0x1800000
KIN = 0x1C00000
STAMPS = 0x1600000
WS_BYTES = 268435456

SEC = 8320
SLOT = 3 * SEC
SCR = 6 * SLOT
L_A1 = SCR
L_M2 = SCR + 1024
L_ST = SCR + 2048
L_MP = SCR + 2560
L_WPHI = SCR + 6656
L_MB = SCR + 10752
L_XF = 147456
L_PHK = 0
L_V = 32768
WO_H0 = 32768
WO_H1 = 98304
GS = 0
L_KVF = GS
L_ZF = GS + 8192
L_EXCH = GS
L_MT = 139264
L_GU = 32768
L_DN = 98304
TS = 131072
L_SP = TS
L_ST2 = TS + 4096
L_K1 = TS + 5120
L_K2 = TS + 5184
L_K3 = TS + 5312
L_XS = TS + 5632
L_ACT = TS + 7680
L_TB = TS + 7936
L_GB = L_TB + 256
L_OT = TS + 8704
L_XT = GS

SPIN_LIMIT = 300000

sWAVE, sTAG, sSPIN, sMASK, sL2E = 3, 4, 5, 6, 7
sX, sJ, sR1, sHP, sCB = 8, 9, 10, 11, 12
T0, T1, T2, T3, T4, T5, T6, T7 = 13, 14, 15, 16, 17, 18, 19, 20
sRT = 21
sCMP = 22
sPL = 24
rWS, rX, rW, rWO, rWM, rWG, rWU, rWD, rOUT = 32, 36, 40, 44, 48, 52, 56, 60, 64
KA = 68
pWPHI, pWR, pC = KA + 4, KA + 10, KA + 18
sK1, sK2, sROW0, sROW1, sFS, sKQ, sKH, sKF = 68, 69, 70, 71, 74, 75, 76, 77
sFG, sFD, sU, sROT, sWB, sU0 = 80, 81, 82, 83, 84, 85
sWO2, sW1K, sMF = 88, 89, 90
sINB, sRow, sGTB, sC32 = 92, 93, 94, 95
sWC = 91
sXC = 94
pDBG = 30
sLOC = 93
XT = (96, 97, 98, 99)
sTM = 100
ENV = dict(wg=2, w=sWAVE, x=sX, j=sJ, r1=sR1, hp=sHP, cb=sCB, rt=sRT, row=sRow, gtb=sGTB, c32=sC32, kh=sKH, kf=sKF, fs=sFS, kq=sKQ,
           rot=sROT, wb=sWB, u0=sU0, wo2=sWO2, w1k=sW1K, mf=sMF, u=sU, fg=sFG, fd=sFD, T0=T0, T1=T1, T2=T2, T3=T3, T4=T4, T5=T5, T6=T6, T7=T7, row0=sROW0, row1=sROW1, k1=sK1, xc=sXC)


class Gen:
    def __init__(self, prof=False, opts=None):
        self.a = Asm()
        self.vm = Counter(self.a, 'vmcnt', 63)
        self.lg = Counter(self.a, 'lgkmcnt', 15)
        self.V = RegAlloc(254, 1)
        self.prof = prof
        self.nopk = False
        self.nst = 0
        self.stnames = []
        self.S = SExpr(self.a, ENV, {k: v for k, v in globals().items() if isinstance(v, int) and k.isupper() and k not in ENV}, XT)
        self.o = dict(AD=13, LOOK=6, wev=2, AD2=8, A20=6, wburst=(0, 3, 0, 0, 6, 6), wxor=3, LASTB=14, wsch={2: 6, 3: 3, 4: 6, 5: 3, 6: 6, 7: 3, 8: 6, 9: 6, 10: 6, 11: 6, 12: 6, 13: 3},
                      sched={1: 'm1 p2', 2: 's4', 3: 'm1', 4: 's4 p2', 5: 'm1', 6: 'g1', 7: 'm1 h p3', 8: 'g1', 9: 'g1', 10: 'g1', 11: 'g2', 12: 'g2', 13: 'R r1', 14: 'P K o4 f4', 15: 'f2'}, fdma=(3, 0, 1, 1, 1), wowin=(6, 0, 3))
        if opts: self.o.update(opts)

    def bl(self, dst, n, voff, srd, soff, imm=0, mods='', tag=None):
        op = {1: 'dword', 2: 'dwordx2', 4: 'dwordx4'}[n]
        so = soff if isinstance(soff, str) else (sr(soff))
        self.a(f'buffer_load_{op} {vr(dst, n)}, v{voff}, {sr(srd, 4)}, {so} offen' + (f' offset:{imm}' if imm else '') + (' ' + mods if mods else ''))
        self.vm.issue(tag)
    def bs(self, src, n, voff, srd, soff, imm=0, mods='', tag=None, count=True):
        op = {1: 'dword', 2: 'dwordx2', 4: 'dwordx4'}[n]
        so = soff if isinstance(soff, str) else (sr(soff))
        self.a(f'buffer_store_{op} {vr(src, n)}, v{voff}, {sr(srd, 4)}, {so} offen' + (f' offset:{imm}' if imm else '') + (' ' + mods if mods else ''))
        if count: self.vm.issue(tag)
    def bs2(self, items):
        a = self.a
        LL, D = a.label('LOC'), a.label('LOCD')
        a(f's_cmp_lg_u32 s{sLOC}, 0')
        a(f's_cbranch_scc1 {LL}')
        for src, n, voff, soff, imm in items: self.bs(src, n, voff, rWS, soff, imm, 'sc1', count=False)
        a(f's_branch {D}')
        a(f'{LL}:')
        for src, n, voff, soff, imm in items: self.bs(src, n, voff, rWS, soff, imm, '', count=False)
        a(f'{D}:')
    def dma(self, voff, srd, soff, imm=0, mods='', tag=None):
        self.a(f'buffer_load_dwordx4 v{voff}, {sr(srd, 4)}, {sr(soff)} offen' + (f' offset:{imm}' if imm else '') + (' ' + mods if mods else '') + ' lds')
        self.vm.issue(tag)
    def dr(self, op, dst, n, addr, off=0, tag=None):
        assert 0 <= off < 65536, off
        self.a(f'{op} {vr(dst, n)}, v{addr}' + (f' offset:{off}' if off else ''))
        self.lg.issue(tag)
    def tr(self, dst, addr, off, tag=None): self.dr('ds_read_b64_tr_b16', dst, 2, addr, off, tag)
    def r128(self, dst, addr, off=0, tag=None): self.dr('ds_read_b128', dst, 4, addr, off, tag)
    def dw(self, op, addr, src, n, off=0, tag=None):
        assert 0 <= off < 65536, off
        self.a(f'{op} v{addr}, {vr(src, n)}' + (f' offset:{off}' if off else ''))
        self.lg.issue(tag)
    def barrier(self):
        self.lg.wait_all()
        self.a('s_barrier')
    def stamp(self, name):
        ex = self.o.get('exfil')
        if ex and name in ex[:2]:
            self.a(f's_memrealtime {sr(sTM, 2)}')
            self.lg.wait_all()
            self.a(f'v_writelane_b32 v255, s{sTM}, {1 + ex.index(name)}')
        if not self.prof: return
        only = self.o.get('only')
        if only and name not in only and name != 'end': return
        self.a(f's_memtime {sr(sTM, 2)}')
        self.a(f's_memrealtime s[0:1]')
        self.lg.wait_all()
        self.a(f'v_writelane_b32 v255, s{sSPIN if self.o.get("spinst") and self.nst > 3 else sTM}, {self.nst}')
        self.a(f'v_writelane_b32 v254, s0, {self.nst}')
        self.stnames.append(name)
        self.nst += 1
        assert self.nst <= 60
    def unpack(self, lo, hi, src):
        self.a(f'v_lshlrev_b32 v{lo}, 16, v{src}')
        self.a(f'v_and_b32 v{hi}, s{sMASK}, v{src}')
    def round1(self, r):
        self.a(f'v_cvt_pk_bf16_f32 v{r}, 0, v{r}')
    def round2(self, r0, r1):
        self.round1(r0); self.round1(r1)
    def round_list(self, regs):
        for r in regs: self.round1(r)
    def pk(self, op, d, s0, s1, s2=None, bc=(), neg=()):
        srcs = [s0, s1] + ([s2] if s2 is not None else [])
        if self.nopk:
            for h in range(2):
                t = []
                for k, r in enumerate(srcs):
                    kind, n = r if isinstance(r, tuple) else ('v', r)
                    t.append(('-' if k in neg else '') + f'{kind}{n if k in bc else n + h}')
                e64 = '' if op == 'fma' else ('_e64' if (neg or t[1][0] == 's') else '')
                self.a(f'v_{op}_f32{e64} v{d+h}, ' + ', '.join(t))
            return
        txt, sel, selhi = [], [], []
        for k, r in enumerate(srcs):
            kind, n = r if isinstance(r, tuple) else ('v', r)
            if k in bc:
                txt.append(f'{kind}[{n & ~1}:{(n & ~1) + 1}]'); sel.append(n & 1); selhi.append(n & 1)
            else:
                assert n % 2 == 0
                txt.append(f'{kind}[{n}:{n+1}]'); sel.append(0); selhi.append(1)
        assert d % 2 == 0
        m = ''
        if any(sel): m += ' op_sel:[' + ','.join(map(str, sel)) + ']'
        if not all(selhi): m += ' op_sel_hi:[' + ','.join(map(str, selhi)) + ']'
        if neg:
            ng = ','.join('1' if k in neg else '0' for k in range(len(srcs)))
            m += f' neg_lo:[{ng}] neg_hi:[{ng}]'
        self.a(f'v_pk_{op}_f32 v[{d}:{d+1}], ' + ', '.join(txt) + m)
    def dpp(self, op, d, s0, s1, ctl):
        self.a(f'{op}_dpp v{d}, v{s0}, v{s1} {ctl} row_mask:0xf bank_mask:0xf')
    def allreduce(self, v, t, op='v_add_f32', lo=True, b3=True):
        if lo:
            self.dpp(op, v, v, v, 'quad_perm:[1,0,3,2]')
            self.dpp(op, v, v, v, 'quad_perm:[2,3,0,1]')
            self.dpp(op, v, v, v, 'row_half_mirror')
        self.dpp(op, v, v, v, 'row_ror:8')
        self.a(f'v_mov_b32 v{t}, v{v}')
        self.a(f'v_permlane16_swap_b32 v{v}, v{t}')
        self.a(f'{op} v{v}, v{v}, v{t}')
        self.a(f'v_mov_b32 v{t}, v{v}')
        self.a(f'v_permlane32_swap_b32 v{v}, v{t}')
        self.a(f'{op} v{v}, v{v}, v{t}')
    def poll(self, loads, tagregs, tmp=None):
        a = self.a
        L, D = a.label('POLL'), a.label('PDONE')
        a(f'{L}:')
        loads()
        self.vm.wait_all()
        self.tagcheck(tagregs, tmp)
        a(f's_cbranch_vccz {D}')
        a(f's_add_u32 s{sSPIN}, s{sSPIN}, 1')
        a(f's_cmp_lt_u32 s{sSPIN}, {SPIN_LIMIT}')
        a(f's_cbranch_scc1 {L}')
        a(f'{D}:')
    def weave(self, fn, extras):
        a = self.a
        keep = a.items; a.items = []
        fn()
        body = a.items; a.items = keep
        extras = list(extras); n = len(extras)
        for i, it in enumerate(body):
            while extras and (n - len(extras)) * len(body) <= i * n: extras.pop(0)()
            a.items.append(it)
        for e in extras: e()
    def tagcheck(self, tagregs, tmp):
        a = self.a
        if tagregs[0] == 'nan':
            if len(tagregs) == 3: a(f'v_max_u32 v{tmp}, v{tagregs[1]}, v{tagregs[2]}')
            a(f'v_cmp_eq_u32 vcc, -1, v{tmp if len(tagregs) == 3 else tagregs[1]}')
        elif len(tagregs) == 1:
            a(f'v_cmp_ne_u32 vcc, s{sTAG}, v{tagregs[0]}')
        else:
            a(f'v_bitop3_b32 v{tmp}, v{tagregs[0]}, v{tagregs[1]}, s{sTAG} bitop3:0x7e')
            for t in tagregs[2:]: a(f'v_bitop3_b32 v{tmp}, v{tmp}, v{t}, s{sTAG} bitop3:0xf6')
            a(f'v_cmp_ne_u32 vcc, 0, v{tmp}')
    def try_load(self, loads, tagregs, tmp=None, between=None, pre=None):
        a = self.a
        n0 = len(self.vm.q)
        loads()
        self.vm.q[-1] = tg = ('try', a.label('T'))
        if between: between()
        self.vm.wait(tg)
        OK = a.label('TOK')
        self.tagcheck(tagregs, tmp)
        a(f's_cbranch_vccz {OK}')
        q, l = list(self.vm.q), list(self.lg.q)
        if pre: pre()
        self.poll(loads, tagregs, tmp)
        self.vm.q, self.lg.q = q, l
        a(f'{OK}:')
    def finish_load(self, tg, loads, tagregs, tmp=None, pre=None):
        a = self.a
        self.vm.wait(tg)
        OK = a.label('TOK')
        self.tagcheck(tagregs, tmp)
        a(f's_cbranch_vccz {OK}')
        q, l = list(self.vm.q), list(self.lg.q)
        if pre: pre()
        self.poll(loads, tagregs, tmp)
        self.vm.q, self.lg.q = q, l
        a(f'{OK}:')
    def spoll(self, loads, checks, work=None, pipe=0):
        a = self.a
        L, C, D = a.label('SPOLL'), a.label('SCHK'), a.label('SDONE')
        def issue(note=''):
            for d, n, so, imm in loads:
                op = {1: 'dword', 2: 'dwordx2', 4: 'dwordx4', 8: 'dwordx8'}[n]
                a(f's_load_{op} {sr(sPL + d, n)}, {sr(rWS, 2)}, s{so} offset:{imm} glc' + note)
        if pipe:
            self.lg.wait_all()
            for k in checks: a(f's_not_b32 s{sPL + k}, s{sTAG}')
            issue(' ; nowait')
            if work: work()
            a(f'{L}:')
            a(f's_add_u32 s{sSPIN}, s{sSPIN}, 1')
            a(f's_cmp_ge_u32 s{sSPIN}, {SPIN_LIMIT}')
            a(f's_cbranch_scc1 {D}')
            ks = list(checks)
            a(f's_xor_b32 s{XT[0]}, s{sPL + ks[0]}, s{sTAG} ; nowait')
            for k in ks[1:]:
                a(f's_xor_b32 s{XT[1]}, s{sPL + k}, s{sTAG} ; nowait')
                a(f's_or_b32 s{XT[0]}, s{XT[0]}, s{XT[1]}')
            a(f's_cbranch_scc0 {D}')
            issue(' ; nowait')
            a(f's_sleep {pipe}')
            a(f's_branch {L}')
            a(f'{D}:')
            return
        if work:
            issue(); work()
            a(f's_branch {C}')
        a(f'{L}:')
        issue()
        a(f'{C}:')
        a(f's_add_u32 s{sSPIN}, s{sSPIN}, 1')
        a(f's_cmp_ge_u32 s{sSPIN}, {SPIN_LIMIT}')
        self.lg.wait_all()
        a(f's_cbranch_scc1 {D}')
        for k in checks:
            a(f's_cmp_lg_u32 s{sPL + k}, s{sTAG}')
            a(f's_cbranch_scc1 {L}')
        a(f'{D}:')
    def inbox(self, box, n, checks=None, work=None, pipe=0):
        self.spoll([(0, n, sINB, box * 512)], range(n) if checks is None else checks, work, pipe)
    def va(self, dst, terms, sreg=None, const=0, tmp=None):
        a = self.a; vL = self.vL
        first = True
        for sh, bits, mult in terms:
            full = sh + bits >= 6
            src = vL
            t = dst if first else tmp
            if sh == 0 and full: pass
            elif full: a(f'v_lshrrev_b32 v{t}, {sh}, v{vL}'); src = t
            elif sh == 0: a(f'v_and_b32 v{t}, {(1 << bits) - 1}, v{vL}'); src = t
            else: a(f'v_bfe_u32 v{t}, v{vL}, {sh}, {bits}'); src = t
            p2 = mult & (mult - 1) == 0
            k = mult.bit_length() - 1
            if first:
                if p2 and sreg is not None: a(f'v_lshl_add_u32 v{dst}, v{src}, {k}, s{sreg}'); sreg = None
                elif p2 and k: a(f'v_lshlrev_b32 v{dst}, {k}, v{src}')
                elif p2:
                    if src != dst: a(f'v_mov_b32 v{dst}, v{src}')
                else: a(f'v_mul_u32_u24 v{dst}, {mult}, v{src}')
            else:
                assert p2
                a(f'v_lshl_add_u32 v{dst}, v{src}, {k}, v{dst}')
            first = False
        if sreg is not None: a(f'v_add_u32 v{dst}, s{sreg}, v{dst}')
        if const: a(f'v_add_u32 v{dst}, {const}, v{dst}')
    def push(self, vaddr, soff, nl, vtmp, lab, wave=0):
        a = self.a
        a(f's_cmp_lg_u32 s{sWAVE}, {wave}')
        a(f's_cbranch_scc1 {lab}')
        a(f'v_mov_b32 v{vtmp}, s{sTAG}')
        a(f's_mov_b32 exec_hi, 0')
        if nl < 32: a(f's_mov_b32 exec_lo, {(1 << nl) - 1}')
        self.bs(vtmp, 1, vaddr, rWS, soff, 0, 'sc1', count=False)
        a('s_mov_b64 exec, -1')
        a(f'{lab}:')
    def silu(self, v, t):
        a = self.a
        a(f'v_mul_f32 v{t}, s{sL2E}, v{v}')
        a(f'v_exp_f32 v{t}, -v{t}')
        a(f'v_add_f32 v{t}, 1.0, v{t}')
        a(f'v_rcp_f32 v{t}, v{t}')
        a(f'v_mul_f32 v{v}, v{v}, v{t}')
        self.round1(v)
    def gemv_ops(self, wregs, cregs, acc, t0, t1, packed):
        ops = []
        assert t0 % 2 == 0 and t1 == t0 + 1
        for i, (w, c) in enumerate(zip(wregs, cregs)):
            cp = f'v[{c & ~1}:{(c & ~1) + 1}]'
            for d in range(4):
                tt = t0 + 2 * (d & 1)
                ops.append(f'v_lshlrev_b32 v{tt}, 16, v{w+d}')
                ops.append(f'v_and_b32 v{tt+1}, s{sMASK}, v{w+d}')
                ac = f'v[{acc+2*d}:{acc+2*d+1}]'
                if not packed:
                    for h in range(2): ops.append(f'v_mul_f32 v{acc+2*d+h}, v{tt+h}, v{c}' if i == 0 else f'v_fmac_f32 v{acc+2*d+h}, v{tt+h}, v{c}')
                elif i == 0: ops.append(f'v_pk_mul_f32 {ac}, v[{tt}:{tt+1}], {cp} op_sel:[0,{c & 1}] op_sel_hi:[1,{c & 1}]')
                else: ops.append(f'v_pk_fma_f32 {ac}, v[{tt}:{tt+1}], {cp}, {ac} op_sel:[0,{c & 1},0] op_sel_hi:[1,{c & 1},1]')
        for i in range(4): ops.append(f'v_permlane32_swap_b32 v{acc+i}, v{acc+4+i}')
        for i in range(4): ops.append(f'v_add_f32 v{acc+i}, v{acc+i}, v{acc+4+i}')
        for i in range(2): ops.append(f'v_permlane16_swap_b32 v{acc+i}, v{acc+2+i}')
        for i in range(2): ops.append(f'v_add_f32 v{acc+i}, v{acc+i}, v{acc+2+i}')
        for i in range(2): ops.append(f'v_add_f32_dpp v{acc+i}, v{acc+i}, v{acc+i} row_ror:8 row_mask:0xf bank_mask:0xf')
        ops.append(f'v_mov_b32_dpp v{acc}, v{acc+1} quad_perm:[0,1,2,3] row_mask:0xf bank_mask:0xc')
        return ops
    def sum8(self, b):
        self.pk('add', b, b, b + 2); self.pk('add', b + 4, b + 4, b + 6); self.pk('add', b, b, b + 4)
        self.a(f'v_add_f32 v{b}, v{b}, v{b+1}')
    def softmax_pm(self, p, e, out, t, mid=None, part=0, split=0):
        a = self.a
        mx, mn, u0, u1, s0, s1 = t, t + 1, t + 2, t + 3, t + 4, t + 6
        if part != 2:
            self.round_list([p + i for i in range(16)])
            a(f'v_max3_f32 v{mx}, v{p}, v{p+1}, v{p+2}')
            a(f'v_min3_f32 v{mn}, v{p}, v{p+1}, v{p+2}')
            for i in range(3, 15, 2):
                a(f'v_max3_f32 v{mx}, v{mx}, v{p+i}, v{p+i+1}')
                a(f'v_min3_f32 v{mn}, v{mn}, v{p+i}, v{p+i+1}')
            a(f'v_max_f32 v{u0}, v{mx}, v{p+15}')
            a(f'v_min_f32 v{u1}, v{mn}, v{p+15}')
            a(f'v_max_f32 v{mx}, v{mx}, v{p+15}')
            a(f'v_min_f32 v{mn}, v{mn}, v{p+15}')
            a(f'v_permlane32_swap_b32 v{mx}, v{u0}')
            a(f'v_permlane32_swap_b32 v{mn}, v{u1}')
            a(f'v_max_f32 v{mx}, v{mx}, v{u0}')
            a(f'v_min_f32 v{mn}, v{mn}, v{u1}')
            self.pk('mul', mx, mx, ('s', sL2E), bc=(1,))
            for i in range(0, 16, 2):
                self.pk('fma', e + i, p + i, ('s', sL2E), mx, bc=(1, 2), neg=(2,))
                self.pk('fma', p + i, p + i, ('s', sL2E), mn, bc=(1, 2), neg=(0,))
        for i in range(split if part == 2 else 0, 16):
            if mid and i == mid[0]: mid[1]()
            if part == 1 and i == split: return
            a(f'v_exp_f32 v{e+i}, v{e+i}')
            a(f'v_exp_f32 v{p+i}, v{p+i}')
        self.pk('add', s0, e, e + 2); self.pk('add', s1, p, p + 2)
        for i in range(4, 16, 2):
            self.pk('add', s0, s0, e + i); self.pk('add', s1, s1, p + i)
        a(f'v_add_f32 v{u0}, v{s0}, v{s0+1}')
        a(f'v_add_f32 v{u1}, v{s1}, v{s1+1}')
        a(f'v_add_f32 v{mx}, v{s0}, v{s0+1}')
        a(f'v_add_f32 v{mn}, v{s1}, v{s1+1}')
        a(f'v_permlane32_swap_b32 v{mx}, v{u0}')
        a(f'v_permlane32_swap_b32 v{mn}, v{u1}')
        self.pk('add', mx, mx, u0)
        a(f'v_rcp_f32 v{mx}, v{mx}')
        a(f'v_rcp_f32 v{mn}, v{mn}')
        for i in range(0, 16, 2):
            self.pk('mul', e + i, e + i, mx, bc=(1,))
            self.pk('mul', p + i, p + i, mn, bc=(1,))
        for i in range(8):
            a(f'v_cvt_pk_bf16_f32 v{out+i}, v{e+2*i}, v{e+2*i+1}')
            a(f'v_cvt_pk_bf16_f32 v{out+8+i}, v{p+2*i}, v{p+2*i+1}')
    def ln_stats(self, xp, t, m_out, sd_out, fill=()):
        a = self.a
        fill = list(fill)
        def pad(n):
            for _ in range(n):
                if fill: a(fill.pop(0))
        s, u = t, t + 4
        a(f'v_mov_b32 v{u}, 0x3f803f80')
        for i in range(8):
            k = 2 * (i & 1)
            a(f'v_dot2_f32_bf16 v{s+k}, v{xp+i}, v{u}, ' + ('0' if i < 2 else f'v{s+k}'))
            a(f'v_dot2_f32_bf16 v{s+k+1}, v{xp+i}, v{xp+i}, ' + ('0' if i < 2 else f'v{s+k+1}'))
        pad(3)
        self.pk('add', s, s, s + 2)
        for ctl in ('quad_perm:[1,0,3,2]', 'quad_perm:[2,3,0,1]', 'row_half_mirror', 'row_ror:8'):
            pad(2 if ctl.endswith('3,2]') else 1)
            self.dpp('v_add_f32', s, s, s, ctl); self.dpp('v_add_f32', s + 1, s + 1, s + 1, ctl)
        pad(2)
        a(f'v_permlane16_swap_b32 v{s}, v{s+1}')
        a(f'v_add_f32 v{u}, v{s}, v{s+1}')
        a(f'v_add_f32 v{s}, v{s}, v{s+1}')
        pad(2)
        a(f'v_permlane32_swap_b32 v{s}, v{u}')
        a(f'v_add_f32 v{s}, v{s}, v{u}')
        a(f'v_mul_f32 v{u}, 0x3a800000, v{s}')
        a(f'v_mul_f32 v{s}, 0x3a800000, v{s}')
        pad(2)
        a(f'v_permlane16_swap_b32 v{s}, v{u}')
        a(f'v_fma_f32 v{sd_out}, -v{s}, v{s}, v{u}')
        a(f'v_cvt_pk_bf16_f32 v{m_out}, 0, v{s}')
        a(f'v_max_f32 v{sd_out}, 0, v{sd_out}')
        self.round1(sd_out)
        a(f'v_add_f32 v{sd_out}, 0x3727c5ac, v{sd_out}')
        self.round1(sd_out)
        a(f'v_sqrt_f32 v{sd_out}, v{sd_out}')
        pad(99)
        self.round1(sd_out)

    def stat_math(self, s, u, m_out, sd_out):
        a = self.a
        a(f'v_fma_f32 v{sd_out}, -v{s}, v{s}, v{u}')
        a(f'v_cvt_pk_bf16_f32 v{m_out}, 0, v{s}')
        a(f'v_max_f32 v{sd_out}, 0, v{sd_out}')
        self.round1(sd_out)
        a(f'v_add_f32 v{sd_out}, 0x3727c5ac, v{sd_out}')
        self.round1(sd_out)
        a(f'v_sqrt_f32 v{sd_out}, v{sd_out}')
        self.round1(sd_out)
    def ln_stats2(self, x0, x1, t, m_out, sd_out):
        a = self.a
        s0, s1, q0, q1, u = t, t + 1, t + 2, t + 3, t + 4
        a(f'v_mov_b32 v{u}, 0x3f803f80')
        for i in range(8):
            for xx, s_, q_ in ((x0, s0, q0), (x1, s1, q1)):
                a(f'v_dot2_f32_bf16 v{s_}, v{xx+i}, v{u}, ' + ('0' if i == 0 else f'v{s_}'))
                a(f'v_dot2_f32_bf16 v{q_}, v{xx+i}, v{xx+i}, ' + ('0' if i == 0 else f'v{q_}'))
        a(f"""v_permlane32_swap_b32 v{s0}, v{s1}
        v_permlane32_swap_b32 v{q0}, v{q1}
        v_add_f32 v{s0}, v{s0}, v{s1}
        v_add_f32 v{q0}, v{q0}, v{q1}
        v_permlane16_swap_b32 v{s0}, v{q0}
        v_add_f32 v{s0}, v{s0}, v{q0}""")
        for ctl in ('quad_perm:[1,0,3,2]', 'quad_perm:[2,3,0,1]', 'row_half_mirror', 'row_ror:8'): self.dpp('v_add_f32', s0, s0, s0, ctl)
        a(f"""v_mul_f32 v{q0}, 0x3a800000, v{s0}
        v_mul_f32 v{s0}, 0x3a800000, v{s0}
        v_permlane16_swap_b32 v{s0}, v{q0}""")
        self.stat_math(s0, q0, m_out, sd_out)

    def build(self):
        a, V, vm, lg, o, S = self.a, self.V, self.vm, self.lg, self.o, self.S
        E2 = range(0, 16, 2)
        TL = o.get('tl', 0)
        HL = o.get('hl', 1)
        D2 = o.get('d2', 1)
        LCB = [(0, 4, 8 * 4096)] if TL else [(0, 3, 8 * 4096), (3, 1, 4096)]
        a(f'{NAME}:')
        a(f's_load_dwordx16 {sr(KA, 16)}, s[0:1], 0')
        a(f's_load_dwordx8 {sr(KA + 16, 8)}, s[0:1], 64')
        a(f's_load_dwordx2 {sr(rWS, 2)}, s[0:1], 104')
        a(f's_load_dwordx2 {sr(pDBG, 2)}, s[0:1], 96')
        a('s_cmp_ge_u32 s2, 256')
        a('s_cbranch_scc1 L_END')
        if self.prof:
            a(f's_memrealtime {sr(sCMP, 2)}')
            a(f's_memtime {sr(sTM, 2)}')
            a('v_mov_b32 v255, 0')
            a('v_mov_b32 v254, 0')
            self.stnames.append('start'); self.nst = 1
        if o.get('exfil'): a(f's_memrealtime {sr(sTM, 2)}')
        vL = self.vL = V.alloc()
        vL16 = V.alloc()
        vZ = V.alloc()
        vT = V.alloc(8)
        va = lambda dst, terms, sreg=None, const=0: self.va(dst, terms, sreg, const, vT + 5)
        a(f"""v_lshrrev_b32 v{vT}, 6, v0
        v_and_b32 v{vL}, 63, v0
        v_mov_b32 v{vZ}, 0
        v_readfirstlane_b32 s{sWAVE}, v{vT}
        v_lshlrev_b32 v{vL16}, 4, v{vL}""")
        xr = V.alloc(8); acc = V.alloc(8); wphi = V.alloc(8); fr = V.alloc(8); vq = V.alloc(8); vv = V.alloc(8)
        vWM = V.alloc(); vCo = V.alloc(); vWd = V.alloc(); vL8 = V.alloc(); vL32S = V.alloc(); vGA = V.alloc()
        vB = V.alloc(6, 1); vFG = V.alloc(); vFD = V.alloc(); vWo = V.alloc(); vPW = V.alloc(); vXF = V.alloc()
        S(sX, 'wg & 7'); S(sJ, 'wg >> 3')
        S(T2, '(x*4 + w)*64')
        S(T0, 'T2*6144 + (j ^ 1)*128')
        va(vWM, [(3, 3, 4 * 12288), (0, 3, 16)])
        va(vCo, [(3, 3, 8)], T2)
        S(T3, '((x*32 + j)*4 + w - 4)*4096')
        for srd, size in ((rWM, 12582912), (rX, 4194304), (rWS, WS_BYTES)):
            a(f's_mov_b32 s{srd+2}, {size}')
            a(f's_mov_b32 s{srd+3}, 0x20000')
        a(f's_getreg_b32 s{sXC}, hwreg(HW_REG_XCC_ID, 0, 3)')
        if o.get('fakexcc') is not None: a(f's_and_b32 s{sXC}, s{sXC}, {o["fakexcc"]}')
        a(f"""s_getpc_b64 {sr(sCMP, 2) if not self.prof else sr(sPL, 2)}""")
        S(T6, '(j*7 + w)*128')
        va(vT + 6, [(5, 1, 28672)], T6)
        a(f"""v_min_u32 v{vT+6}, CODE_KB, v{vT+6}
        s_cmp_ge_u32 s{sWAVE}, 4
        s_waitcnt lgkmcnt(0)""")
        if self.prof:
            a(f'v_writelane_b32 v255, s{sTM}, 0')
            a(f'v_writelane_b32 v255, s{sCMP}, 63')
            a(f'v_writelane_b32 v254, s{sCMP}, 0')
            a(f's_mov_b64 {sr(sCMP, 2)}, {sr(sPL, 2)}')
        if o.get('exfil'):
            for k in range(3): a(f'v_writelane_b32 v255, s{sTM}, {k}')
        self.stamp('karg')
        raw = V.alloc(16); cv = V.alloc(4); vTk = V.alloc(2)
        xs = V.alloc(16); st = V.alloc(4); mq = V.alloc(4)
        a(f"""s_mov_b64 {sr(rWM, 2)}, {sr(KA + 20, 2)}
        s_mov_b64 {sr(rX, 2)}, {sr(KA, 2)}
        s_load_dword s{sTAG}, {sr(rWS, 2)}, {NONCE}
        s_cbranch_scc1 L_FS""")
        def setup():
            for srd, size in ((rW, 6291456), (rWO, 2097152), (rWG, 7340032), (rWU, 7340032), (rWD, 7340032), (rOUT, 4194304)):
                a(f's_mov_b32 s{srd+2}, {size}')
                a(f's_mov_b32 s{srd+3}, 0x20000')
            for srd, k in ((rW, 2), (rWO, 6), (rWG, 12), (rWU, 14), (rWD, 16), (rOUT, 22)):
                a(f's_mov_b64 {sr(srd, 2)}, {sr(KA + k, 2)}')
            a(f"""s_mov_b32 s{sSPIN}, 0
            s_mov_b32 s{sMASK}, 0xffff0000
            s_mov_b32 s{sL2E}, 0x3fb8aa3b""")
            S(sKH, 'w >> 2')
            va(vT + 2, [(4, 1, 64)]); va(vWd, [(0, 3, 16)])
            a(f'v_xor_b32 v{vWd}, v{vWd}, v{vT+2}'); va(vT + 2, [(3, 3, 6144)]); a(f'v_add_u32 v{vWd}, v{vWd}, v{vT+2}')
            va(vL8, [(0, 6, 8)])
            a(f'v_add_u32 v{vL32S}, {SCR}, v{vL16}')
            S(T0, '(w & 3)*4 + SCR')
            va(vGA, [(4, 2, 32), (0, 3, 128), (3, 1, 16)], T0)
            S(T1, '((j >> 4)*128 + w*8 + x)*1024 + (j & 15)*64 + SINB' if TL else '((x & 6) + ((x & 1)*2 + (j >> 4))*64 + w*8)*1024 + (j & 15)*64 + SINB')
        def tag_hash():
            a(f"""s_mul_i32 s{sTAG}, s{sTAG}, 0x9e3779b1
            s_add_u32 s{sTAG}, s{sTAG}, 0x7f4a7c15""")
        def code_pf():
            a(f's_and_b32 s{sCMP}, s{sCMP}, 0xfffffc00')
            a(f'global_load_dword v{vTk}, v{vT+6}, {sr(sCMP, 2)}')
        wq = [(n, t) for n in range(16) for t in range(3)]
        def w_base(n, wexpr):
            if n < 4 and o.get('wxor', 1):
                if o.get('wxor', 1) < 3: S(T7, '((j >> 4)*2) ^ n' if o.get('wxor', 1) == 1 else o.get('wxe', '((j >> 4) + (x >> 2)*2) ^ n'), n=n)
                else:
                    S(T7, o.get('wxe', 'j & 3' if HL else '(j >> 4) + (x >> 2)*2'))
                    if n: a(f's_cmp_le_u32 s{T7}, {n - 1}'); a(f's_cselect_b32 s{T7}, {n}, {n - 1}')
                S(sU, f'(((T7 + u0) & 15)*8 + {wexpr})*(8*6144) + hp*128')
                S(T7, f'T7*SLOT + (({wexpr}) >> 1)*2080 + (({wexpr}) & 1)*1056')
            else:
                S(sU, f'(((u0 + n) & 15)*8 + {wexpr})*(8*6144) + hp*128', n=n)
                S(T7, f'(({wexpr}) >> 1)*2080 + (({wexpr}) & 1)*1056 + q', q=(n % 6) * SLOT)
        def w_slot(n, t):
            S('m0', 'T7 + q', q=t * SEC)
            self.dma(vWd, rW, sU, 0, o.get('wmod', ''), ('W', n))
            if t < 2: S(sU, 'u + 2048')
        def w_next(cnt=1):
            for _ in range(cnt):
                n, t = wq.pop(0)
                if t == 0: w_base(n, 'w')
                w_slot(n, t)
        wb = list(o['wburst'])
        def w_early():
            if not o.get('wearly'): return
            S(sHP, '(x & 3)*4 + ((j & 3) ^ q)', q=o.get('hpx', 2)); S(sU0, o.get('u0', 'j & 12'))
            w_next(o['wearly'])
        a(f'global_load_dwordx2 {vr(cv, 2)}, v{vCo}, {sr(pC, 2)}'); vm.issue('c')
        for i in range(4):
            self.bl(raw + 4 * i, 4, vWM, rWM, T0, 0, o.get('ntwm', 'nt'), ('wm', i))
            if i < 3: S(T0, 'T0 + 12288')
        a('s_barrier')
        if o.get('bar1', 1): a('s_barrier')
        code_pf(); vm.issue()
        setup()
        wq0 = list(wq); w_early(); wq[:] = wq0
        S(T0, '(((w*16 + ((j ^ 1) & 15))*2 + (j >> 4))*8 + x)*512 + AINB')
        S(T2, ('(((j ^ 1) & 15)*8 + w*2)*512' if TL else '(((j ^ 1) & 7)*8 + w*2 + ((j >> 3) & 1))*512') + ' + x*64 + (j >> 4)*4 + INA')
        va(vT + 6, [(0, 1, 128 * 512), (1, 1, 512)] if TL else [(0, 2, 64 * 512)])
        vm.wait('c')
        self.unpack(cv + 2, cv + 3, cv + 1)
        a(f'v_and_b32 v{cv+1}, s{sMASK}, v{cv}'); a(f'v_lshlrev_b32 v{cv}, 16, v{cv}')
        for i in range(4): self.silu(cv + i, vT + (i & 1))
        gops = self.gemv_ops([raw + 4 * i for i in range(4)], [cv + i for i in range(4)], acc, vT, vT + 1, True)
        for i in range(4):
            vm.wait(('wm', i))
            if i == 3: self.stamp('wmok')
            for s_ in gops[12 * i:12 * i + 12]: a(s_)
        for s_ in gops[48:]: a(s_)
        self.dw('ds_write_b32', vGA, acc, 1, L_A1 - SCR)
        self.barrier()
        a(f'ds_read_b128 {vr(acc, 4)}, v{vL32S} offset:{L_A1 - SCR}')
        tag_hash()
        a('s_waitcnt lgkmcnt(0)')
        self.pk('add', acc, acc, acc + 2)
        a(f"""v_add_f32 v{acc}, v{acc}, v{acc+1}
        v_mov_b32 v{acc+1}, s{sTAG}""")
        self.bs(acc, 2, vL8, rWS, T0, 0, 'sc1')
        a('s_mov_b64 exec, 15')
        self.bs(acc + 1, 1, vT + 6, rWS, T2, 0, 'sc1')
        a('s_mov_b64 exec, -1')
        self.stamp('A1pub')
        if o.get('wpf', 0):
            S(T2, '(((xc >> 2)*2 + (xc & 1))*4 + (xc & 2))*128 + (j*32 + w*8)*6144')
            va(vT + 2, [(4, 2, 6144), (0, 4, 16)])
            for i in range(o['wpf']):
                S(T0, 'T2 + q', q=(i % 3) * 2048 + (i // 3) * 4 * 6144)
                self.bl(raw, 4, vT + 2, rW, T0, 0, o.get('wpfmod', ''))
        tl_ = o.get('tlb', '')
        if tl_:
            S(T2, 'wg*128'); va(vT + 2, [(0, 6, 1 << 21)], T2)
            tab = dict(W=rW, o=rWO, g=rWG, u=rWU, d=rWD, m=rWM, x=rX, O=rOUT)
            for k_, c_ in enumerate(tl_):
                a(f's_cmp_lg_u32 s{sWAVE}, {k_ & 3}')
                L_ = a.label('TLB'); a(f's_cbranch_scc1 {L_}')
                if c_ == 's':
                    a('s_mov_b64 exec, 0x1ffff'); self.bl(raw + 4, 1, vT + 2, rWS, '0', 0, '', None); vm.q.pop(); a('s_mov_b64 exec, -1')
                else: self.bl(raw + 4, 1, vT + 2, tab[c_], '0', 0, '', None); vm.q.pop()
                a(f'{L_}:')
        a('s_branch L_FJ')
        qG = list(vm.q)
        a('L_FS:')
        vm.reset(); lg.reset()
        a('s_barrier')
        for i in range(4): self.bl(raw + 4 * i, 4, vL16, rX, T3, 1024 * i, o.get('xsmod', ''), 'xs')
        pw0 = o.get('pw0', 'ab')
        if 'a' in pw0:
            S(T4, '(wg*4 + w - 4)*128 + INA')
            for q in range(2): a(f's_load_dword s{sPL + q}, {sr(rWS, 2)}, s{T4} offset:{q * 64} glc')
        if 's' in pw0:
            S(T4, '(wg*4 + w - 4)*256 + SINB')
            for q in range(4): a(f's_load_dword s{sPL + 2 + q}, {sr(rWS, 2)}, s{T4} offset:{q * 64} glc')
        if 'b' in pw0:
            S(T4, '(wg*32 + w - 4)*128 + INB')
            for q in range(2): a(f's_load_dword s{sPL + q}, {sr(rWS, 2)}, s{T4} offset:{q * 64} glc ; nowait')
        a(f"""s_lshl_b32 s{T6}, s{sXC}, 5
        v_mov_b32 v{vTk}, 1
        v_mov_b32 v{vTk+1}, s{T6}""")
        if o.get('bar1', 1): a('s_barrier')
        a(f"""s_cmp_lg_u32 s{sWAVE}, 7
        s_cbranch_scc1 L_NOTK
        s_mov_b64 exec, 1
        global_atomic_add v{vTk}, v{vTk+1}, v{vTk}, {sr(pDBG, 2)} sc0 sc1
        s_mov_b64 exec, -1
        s_branch L_TK0
        L_NOTK:""")
        code_pf()
        a('L_TK0:')
        vm.issue('tk')
        setup()
        w_early()
        S(T0, '(w - 4)*16 + L_ST'); va(vT + 6, [(5, 1, 8)], T0)
        a('s_barrier')
        vm.wait('xs')
        lg.wait_all()
        tag_hash()
        self.stamp('xsok')
        self.ln_stats2(raw, raw + 8, xs, st, st + 1)
        a(f"""v_lshrrev_b32 v{st}, 16, v{st}
        v_or_b32 v{st}, v{st}, v{st+1}
        v_mov_b32 v{st+1}, s{sTAG}""")
        self.dw('ds_write_b64', vT + 6, st, 2)
        a('L_FJ:')
        va(vT + 1, [(0, 2, 16)], None, L_ST)
        va(vT, [(0, 2, 16), (2, 1, 65536 if TL else 1024)])
        va(vT + 6, [(0, 5, 2048), (5, 1, 32)])
        va(vT + 2, [(0, 1, 64 * 512 if TL else 512), (1, 1, 256)])
        S(T2, ('((j >> 4)*128 + w*8 + x)*512' if TL else '((x & 6) + ((x & 1)*2 + (j >> 4))*64 + w*8)*512') + ' + ((j >> 2) & 3)*64 + (j & 3)*4 + 16 + INA')
        self.barrier()
        self.r128(st, vT + 1, 0, 'st')
        lg.wait('st')
        a('s_mov_b64 exec, 0xff')
        self.bs(st, 4, vT, rWS, T1, 0, 'sc1')
        a('s_mov_b64 exec, 15')
        self.bs(st + 1, 1, vT + 2, rWS, T2, 0, 'sc1')
        a('s_mov_b64 exec, -1')
        self.stamp('A2pub')
        a(f"""s_cmp_lg_u32 s{sWAVE}, 7
        s_cbranch_scc1 L_NOTK2
        s_mov_b32 s{T0}, 0
        s_waitcnt vmcnt({len(vm.q) - 1 - vm.q.index('tk')})
        L_TK:
        v_readfirstlane_b32 s{T2}, v{vTk}
        s_cmp_lt_u32 s{T2}, 32
        s_cbranch_scc1 L_TKOK
        v_mov_b32 v{vTk}, s{sTAG}
        s_mov_b64 exec, 1
        buffer_store_dword v{vTk}, v{vZ}, {sr(rWS, 4)}, 0 offen offset:{MARK} sc1
        s_mov_b64 exec, -1
        s_add_u32 s{T0}, s{T0}, 1
        s_cmp_lt_u32 s{T0}, 8
        s_cbranch_scc0 L_TKNO
        s_add_u32 s{sXC}, s{sXC}, 1
        s_and_b32 s{sXC}, s{sXC}, 7
        s_lshl_b32 s{T6}, s{sXC}, 5
        v_mov_b32 v{vTk}, 1
        v_mov_b32 v{vTk+1}, s{T6}
        s_mov_b64 exec, 1
        global_atomic_add v{vTk}, v{vTk+1}, v{vTk}, {sr(pDBG, 2)} sc0 sc1
        s_mov_b64 exec, -1
        s_waitcnt vmcnt(0)
        s_branch L_TK
        L_TKNO:
        s_and_b32 s{sXC}, s2, 7
        s_lshr_b32 s{T2}, s2, 3
        L_TKOK:
        s_lshl3_add_u32 s{T2}, s{T2}, s{sXC}""")
        if o.get('rawrole'): a(f's_mov_b32 s{T2}, s2')
        a(f"""v_mov_b32 v{vTk}, s{T2}
        ds_write_b32 v{vT+1}, v{vTk} offset:64
        L_NOTK2:""")
        self.barrier()
        a(f'ds_read_b32 v{mq}, v{vT+1} offset:64'); lg.issue('role')
        lg.wait('role')
        a(f'v_readfirstlane_b32 s2, v{mq}')
        self.stamp('role')
        V.release(raw, 16); V.release(cv, 4)
        S(sX, 'wg & 7'); S(sJ, 'wg >> 3')
        S(sCB, 'j & 15' if TL else '(x & 1)*8 + (j & 7)')
        S(sRT, 'x*2 + (j >> 4)' if TL else '(x >> 1)*4 + (j >> 3)')
        S(sGTB, 'rt*4 + (w & 3)')
        S(sC32, 'cb*2 + kh')
        S(T5, 'gtb*65536 + c32*64')
        ld_xt = lambda: [self.bl(xr + 4 * q, 4, vT + 6, rX, T5, 16 * q, o.get('xtmod', ''), 'xt') for q in range(2)]
        if not o.get('xtlate', 0): ld_xt()
        S(T0, '(((x >> 1)*16 + cb)*16 + w)*512 + AINB')
        S(T2, '(wg*8 + w)*64 + INA')
        def role_prep():
            S(sR1, 'j & 15' if HL else '(x & 4)*2 + (j >> 2)'); S(sHP, '((x >> 2)*2 + (x & 1))*4 + (x & 2) + (j >> 4)' if HL else '(x & 3)*4 + ((j & 3) ^ 2)')
            S(sU0, o.get('u0', 'j & 12'))
            w_next(wb[0])
            S(sINB, '(wg*64 + w)*64 + INB')
            S(sKF, 'kh ^ (j >> 4)'); S(sROT, o.get('rot', '(((j >> 3) ^ j) & 1)*q + p'), q=4 if D2 else 8, p=8 * o.get('dflip', 1))
            S(sFS, 'x*7 + (j >> 2)'); S(sKQ, 'j & 3')
            va(vT + 4, [(0, 5, 8)])
            va(vT, [(0, 5, 16), (5, 1, 4096)])
            S(T3, 'w*4 + L_MP'); va(vT + 1, [(0, 6, 64)], T3)
            S(T3, 'kh*1024 + L_MP'); va(vT + 2, [(0, 4, 32), (5, 1, 512)], T3)
        S(T1, '(wg*4 + (w & 3))*256 + SINB')
        self.spoll([(0, 8, T2, 0)], (0, 1, 4, 5, 6, 7), work=role_prep)
        self.stamp('apre')
        if o.get('abar', 2) == 1: a('s_barrier')
        st_ld = lambda: self.bl(st, 2, vT + 4, rWS, T1, 0, 'sc1', 'st')
        def st_fetch():
            st_ld()
            if o.get('abar', 2) == 2: a('s_barrier')
            if o.get('xtlate', 0): ld_xt()
            S(T3, 'hp*4096 + w*512')
            a(f'v_add_u32 v{vT+6}, s{T3}, v{vL16}')
            S('m0', 'w*512 + L_WPHI')
            a('s_mov_b32 exec_hi, 0')
            a(f'global_load_lds_dwordx4 v{vT+6}, {sr(pWPHI, 2)}'); vm.issue()
            a('s_mov_b32 exec_hi, -1')
            w_next(wb[1])
        self.try_load(lambda: self.bl(mq, 4, vT, rWS, T0, 0, 'sc1'), [mq + 1, mq + 3], vT + 3, st_fetch)
        self.stamp('modok')
        a(f'ds_write2_b32 v{vT+1}, v{mq}, v{mq+2} offset0:0 offset1:8'); lg.issue()
        if not o.get('xtlate', 0):
            for i in range(8): self.unpack(xs + 2 * i, xs + 2 * i + 1, xr + i)
        self.barrier()
        mp = V.alloc(16); hp = V.alloc(8)
        for i in (2, 3, 0, 1): self.r128(mp + 4 * i, vT + 2, (i >> 1) * 2048 + (i & 1) * 16, i >> 1)
        w_next(wb[2])
        self.finish_load('st', st_ld, [st + 1], None)
        if o.get('xtlate', 0):
            vm.wait('xt')
            for i in range(8): self.unpack(xs + 2 * i, xs + 2 * i + 1, xr + i)
        self.stamp('statok')
        self.unpack(st + 1, st, st)
        a(f'v_rcp_f32 v{st}, v{st}')
        for i in E2: self.pk('add', xs + i, xs + i, st + 1, bc=(1,), neg=(1,))
        S(T0, '(((rt*16 + cb)*4 + (w & 3))*2 + kh)*2048 + HF')
        va(vT + 4, [(0, 4, 16), (4, 1, 1024), (5, 1, 512)])
        lg.wait(1); self.sum8(mp + 8)
        self.round1(mp + 8)
        lg.wait(0); self.sum8(mp)
        a(f'v_add_f32 v{mp+8}, 1.0, v{mp+8}')
        self.round2(mp + 8, mp)
        PKM = o.get('pkm', 1)
        if PKM:
            mb = V.alloc(32)
            S(T3, 'w*256 + L_MB'); va(vT, [(0, 4, 4), (5, 1, 64)], T3); va(vT + 1, [(5, 1, 64)], T3)
            a(f'ds_write2_b32 v{vT}, v{mp+8}, v{mp} offset0:0 offset1:32'); lg.issue()
            for q in range(8): self.r128(mb + 4 * q, vT + 1, (q >> 2) * 128 + (q & 3) * 16, ('mb', q))
        for h in range(2):
            rg = range(8 * h, 8 * h + 8)
            self.round_list([xs + i for i in rg])
            for i in range(8 * h, 8 * h + 8, 2): self.pk('mul', xs + i, xs + i, st, bc=(1,))
            self.round_list([xs + i for i in rg])
        for h in range(2):
            rg = range(8 * h, 8 * h + 8)
            if PKM:
                lg.wait(('mb', 2 * h + 1))
                for i in range(8 * h, 8 * h + 8, 2): self.pk('mul', xs + i, xs + i, mb + i)
            else:
                for i in rg: self.dpp('v_mul_f32', xs + i, mp + 8, xs + i, f'row_newbcast:{i}')
            self.round_list([xs + i for i in rg])
            if PKM:
                lg.wait(('mb', 4 + 2 * h + 1))
                for i in range(8 * h, 8 * h + 8, 2): self.pk('add', xs + i, xs + i, mb + 16 + i)
            else:
                for i in rg: self.dpp('v_add_f32', xs + i, mp, xs + i, f'row_newbcast:{i}')
            for i in range(4 * h, 4 * h + 4): a(f'v_cvt_pk_bf16_f32 v{hp+i}, v{xs+2*i}, v{xs+2*i+1}')
            self.bs(hp + 4 * h, 4, vT + 4, rWS, T0, 256 * h, 'sc1', 'hs')
        if PKM: V.release(mb, 32)
        self.stamp('hst')
        w_next(wb[3])
        va(vB, [(5, 1, 2080), (2, 2, 128), (3, 1, 64), (0, 2, 8)])
        va(vB + 1, [(4, 1, 1056)])
        va(vB + 2, [(3, 1, 128)])
        a(f"""v_add_u32 v{vB}, v{vB}, v{vB+1}
        v_sub_u32 v{vB+1}, v{vB}, v{vB+2}
        v_add_u32 v{vB+1}, 64, v{vB+1}""")
        for q in (1, 2):
            for h in range(2): a(f'v_add_u32 v{vB+2*q+h}, {2*q*SLOT}, v{vB+h}')
        S(T1, 'kh*2048 + L_WPHI')
        va(vT, [(2, 2, 64), (4, 1, 32), (0, 2, 8), (5, 1, 512)], T1)
        va(vT + 1, [(0, 3, 4096), (3, 1, 128 * 4096)] if HL else [(0, 2, 8 * 4096), (2, 2, 4096)])
        S(T0, ('rt*32768' if HL else '((rt >> 3)*4 + (rt & 7)*32)*4096') + ' + (cb >> 1)*64 + (cb & 1)*4 + INB')
        va(vT + 2, [(4, 1, 64), (5, 1, 16)]); va(vWo, [(0, 3, 16)])
        a(f'v_xor_b32 v{vWo}, v{vWo}, v{vT+2}'); va(vT + 2, [(3, 3, 2048)]); a(f'v_add_u32 v{vWo}, v{vWo}, v{vT+2}')
        S(T1, '(w & 2)*32'); va(vT + 2, [(4, 1, 32)], T1); va(vFG, [(0, 3, 16)])
        a(f'v_xor_b32 v{vFG}, v{vFG}, v{vT+2}'); va(vT + 2, [(3, 3, 7168)]); a(f'v_add_u32 v{vFG}, v{vFG}, v{vT+2}')
        S(T1, '(w & 1)*128')
        va(vT + 2, [(5, 1, 64)], T1); va(vFD, [(0, 5, 16), (5, 1, 2048)])
        a(f'v_xor_b32 v{vFD}, v{vFD}, v{vT+2}')
        S(sFG, '(kq*8 + w)*(32*7168) + fs*128'); S(sFD, '(fs*8 + w)*16384 + kq*512')
        US = o.get('ush', 1)
        S(sMF, '(j >> 2) + q', q=US)
        a(f"""s_cmp_ge_u32 s{sMF}, 7
        s_cselect_b32 s{sMF}, {US - 7 & 0xffffffff}, {US}""")
        a(f"""s_cmp_ge_u32 s{sJ}, 28
        s_cselect_b32 s{rWG+2}, 0, s{rWG+2}
        s_cselect_b32 s{rWU+2}, 0, s{rWU+2}
        s_cselect_b32 s{rWD+2}, 0, s{rWD+2}""")
        if o.get('zm2'): a(f's_mov_b32 s{rWM+2}, 0')
        if o.get('zffn'):
            for r_ in (rWG, rWU, rWD): a(f's_mov_b32 s{r_+2}, 0')
        if o.get('zwo'): a(f's_mov_b32 s{rWO+2}, 0')
        vm.wait('hs')
        a('s_barrier')
        self.push(vT + 1, T0, 16, vT + 2, 'L_PB')
        self.stamp('hpub')
        V.release(xs, 16); V.release(mp, 16); V.release(hp, 8); V.release(st, 4); V.release(mq, 4); V.release(vTk, 2)
        w_next(wb[4])
        for s in range(2):
            for u in range(2): self.tr(wphi + 4 * s + 2 * u, vT, s * 1024 + u * 256)
        AD, LOOK, LASTB = o['AD'], o.get('LOOK', 6), o['LASTB']
        accs = V.alloc(96)
        big = V.alloc(76)
        Br = big + 76 - 4 * (LOOK + 1)
        aslot = list(range(big, Br, 4)) + [fr, fr + 4, vq, vq + 4, vv, vv + 4, acc, acc + 4]
        assert AD <= len(aslot)
        S(T2, '(r1*64 + w)*4096 + HF')
        S(T0, '(w & 3)*4096 + L_XF'); a(f'v_add_u32 v{vXF}, s{T0}, v{vL16}')
        vXW = V.alloc(); vVW = V.alloc()
        va(vXW, [(0, 4, 16), (5, 1, 512), (4, 1, 8)], T0)
        S(T0, '(w & 3)*1024 + L_V'); va(vVW, [(0, 4, 32), (4, 2, 8)], T0)
        S(T0, '(w & 3)*1024 + kh*16384 + L_PHK'); va(vPW, [(0, 5, 32), (5, 1, 16)], T0)
        fq = ([(m, i) for i in range(4) for m in range(2)] if o.get('fmix', 1) else [(m, i) for m in range(2) for i in range(4)]) + [(2, i) for i in range(4)]
        freg = []
        def f_src(m, i, back=0, T0=T0):
            if m < 2: S(T0, 'fg + q' if m == 0 else 'mf*128 + fg + q', q=i * 8 * 7168 - back * 4 * 32 * 7168)
            else: S(T0, 'fd + q', q=i * 4096 - back * 4 * 16384)
            return (vFG, (rWG, rWU)[m]) if m < 2 else (vFD, rWD)
        def f_lds(m, i): return (L_GU + m * 32768 if m < 2 else L_DN) + i * 1024
        def ffn_reg(n):
            for _ in range(n):
                m, i = fq.pop(0)
                for back in range(2):
                    v, r = f_src(m, i, back)
                    self.bl(big + 8 * len(freg) + 4 * back, 4, v, r, T0, 0, o.get('ntffn', 'nt'), 'ffn')
                freg.append((m, i))
        def ffn_dma(n, T0=T0):
            for _ in range(n):
                m, i = fq.pop(0)
                if o.get('nofd'): continue
                v, r = f_src(m, i, 0, T0)
                S('m0', 'w1k*4 + q', q=f_lds(m, i))
                self.dma(v, r, T0, 0, o.get('ntffn', 'nt'), 'gu' if m < 2 else 'dn')
        S(sWB, 'w*16384' if D2 else '(rot*4 + w)*16384'); S(sWO2, '(j >> 4)*1048576 + cb*128'); S(sW1K, 'w*1024')
        def wo_dma(it, back=0, T0=T0):
            S(T0, '(((wb + q) & 0xfffff) ^ (rot*65536)) + (wo2 ^ h)' if D2 else '((wb + q) & 0xfffff) + (wo2 ^ h)', q=(8 * it - 4 * back) * 16384, h=(it >> 3) << 20)
            S('m0', 'w1k + q', q=WO_H0 + it * 8192 - 4096 * back)
            self.dma(vWo, rWO, T0, 0, '', 'wo')
        self.inbox(0, 2, work=lambda: w_next(wb[5]), pipe=o.get('pipeB', 0))
        assert len(wq) % 3 == 0 and 30 <= len(wq) <= (45, 36, 36, 42)[o.get('wxor', 1)]
        NPU = 16 - len(wq) // 3
        vm.wait(('W', (0, 2, 3, 1)[o.get('wxor', 1)]))
        a('s_barrier')
        self.stamp('hok')
        a(f"""s_cmp_ge_u32 s{sWAVE}, 4
        s_cbranch_scc1 L_HELP
        s_setprio 2""")
        q_hok = list(vm.q)
        if 'pad' in o:
            a('.p2align 6')
            for _ in range(o['pad']): a('s_nop 0')
        def a_load(sg):
            if sg % 4 == 0: S(T3, '((u0 + n) & q)*16384 + T2', n=sg // 4, q=o.get('amask', 15))
            self.bl(aslot[sg % AD], 4, vL16, rWS, T3, (sg % 4) * 1024, o.get('amod', 'sc1'), ('A', sg))
        CORD = [(1, 2), (1, 3), (1, 0), (1, 1)] + [(t, ct) for t in (0, 2) for ct in range(4)]
        WEV = o.get('wev', 2); NB = LOOK + 1
        def b_read(n, q):
            st_, c = divmod(n, 12); t, ct = CORD[c]
            slot = (st_ >> 1) % 6
            off = (slot & 1) * SLOT + t * SEC + (st_ & 1) * 4160 + (ct & 1) * 32 + q * 512
            self.tr(Br + 4 * (n % NB) + 2 * q, vB + 2 * (slot >> 1) + (ct >> 1), off, ('B', n))
        nxt = 0
        def a_more(lim):
            nonlocal nxt
            while nxt < min(lim, 64): a_load(nxt); nxt += 1
        a_more(2)
        for n in range(LOOK):
            for q in range(2): b_read(n, q)
        a_more(o.get('A0', 4))
        b14 = False
        for n in range(384):
            st_, c = divmod(n, 12); t, ct = CORD[c]
            if n % WEV == 0: lg.wait(('B', min(n + WEV - 1, 383)))
            for th in range(2):
                if c == 0: vm.wait(('A', 2 * st_ + (th if st_ < 2 or not o.get('vw1', 1) else 1)))
                d = accs + 32 * t + 16 * (ct >> 1) + 8 * (ct & 1) + 4 * th
                a(f'v_mfma_f32_16x16x32_bf16 {vr(d, 4)}, {vr(Br + 4*(n % NB), 4)}, {vr(aslot[(2*st_ + th) % AD], 4)}, ' + ('0' if st_ == 0 else vr(d, 4)))
                if n + LOOK < 384:
                    if th == 0 and (n + LOOK) % 24 == 0 and (n + LOOK) // 24 <= LASTB: a('s_barrier')
                    b_read(n + LOOK, th)
            if c in o.get('aat', (0, 3, 6, 9)): a_more(min(nxt + 1, 2 * st_ + AD))
            if nxt == 64 and not b14 and (n + LOOK) // 24 >= 13 and (n + LOOK) % 24:
                b14 = True; a('s_barrier')
        self.stamp('gemm1')
        aq, ak, av = accs, accs + 32, accs + 64
        def cvt8(d, s_, swap=True):
            for c in range(2):
                for th in range(2):
                    for ip in range(2): a(f'v_cvt_pk_bf16_f32 v{d + 4*c + 2*th + ip}, v{s_ + 8*c + 4*th + 2*ip}, v{s_ + 8*c + 4*th + 2*ip + 1}')
            if swap:
                for c in range(2):
                    for ip in range(2): a(f'v_permlane16_swap_b32 v{d + 4*c + ip}, v{d + 4*c + 2 + ip}')
        def put8(addr, d, off, oc_, ot):
            for c in range(2):
                for th in range(2): self.dw('ds_write_b64', addr, d + 4 * c + 2 * th, 2, off + c * oc_ + th * ot)
        cvt8(vv, ak + 16, False)
        put8(vXW, vv, 0, 1024, 256)
        cvt8(fr, ak)
        self.barrier()
        a('s_setprio 0')
        pp = ak; ee = ak + 16
        def phi_logits(src):
            a(f'v_mfma_f32_32x32x16_bf16 {vr(pp, 16)}, {vr(wphi, 4)}, {vr(src, 4)}, 0')
            a(f'v_mfma_f32_32x32x16_bf16 {vr(pp, 16)}, {vr(wphi + 4, 4)}, {vr(src + 4, 4)}, {vr(pp, 16)}')
        phi_logits(fr)
        for h in range(2):
            cvt8(vv if h == 0 else vq, av + 16 * h, False)
            put8(vVW, vv if h == 0 else vq, h * 8192, 4096, 512)
        cvt8(fr, aq + 16, False)
        put8(vXW, fr, 2048, 1024, 256)
        cvt8(vq, aq)
        a('s_branch L_JOIN')
        a('L_HELP:')
        vm.q = [('W', 1)] * len(q_hok) if o.get('wxor', 1) == 1 else list(q_hok); lg.reset()
        m2w = accs; m2c = accs + 32; g4 = accs + 48
        def w_unit(n):
            for wexpr in ('w - 4', 'w'):
                w_base(n, wexpr)
                for t in range(3):
                    w_slot(n, t)
                    if o.get('pace', 0) and n >= 6: a(f's_sleep {o["pace"]}')
        for n in range(NPU, 6): w_unit(n)
        S(T0, '((j & 3)*4 + w - 4)*128' if HL else '((x & 3)*4 + w - 4)*128')
        va(vCo, [(3, 3, 16)], T0)
        va(vWM, [(3, 3, 8 * 12288), (0, 3, 16)])
        S(T4, 'T0*6144 + (((j >> 2) & 3)*16 + x*2 + (j >> 4))*128 + 4096' if HL else 'T0*6144 + (j*2 + (x >> 2))*128 + 4096')
        a(f'global_load_dwordx4 {vr(m2c + 8, 4)}, v{vCo}, {sr(pC, 2)}'); vm.issue('m2c')
        m2l = list(range(8)); wol = [9, 10, 11, 12]; pwl = list(range(1, 8)); sil = list(range(8))
        m2ops = self.gemv_ops([m2w + 4 * i for i in range(8)], [m2c + i for i in range(8)], acc, vT, vT + 1, False)
        m2pos = 0
        ML = o.get('mlate', 1)
        m2q = accs + (16 if ML else 64); wr1 = m2q + 8; vM2 = m2q + 9
        TL_, TA, TB, TC, LMT = (T7, T1, sU, sWC, GS + 12288) if ML else (T5, T0, T1, T2, L_MT)
        ld_m2 = lambda: [self.bl(m2q + 4 * q, 4, vM2, rWS, TL_, q * 1024, 'sc1', 'm2q') for q in range(2)]
        def m2_final():
            self.finish_load('m2q', ld_m2, [m2q + 1, m2q + 3, m2q + 5, m2q + 7], vT)
            q0, q1, q2, q3 = m2q, m2q + 1, m2q + 2, m2q + 3
            S(TA, '(w & 3)*128 + q', q=LMT); va(vT, [(0, 5, 4)], TA)
            S(TB, 'w & 3')
            a(f"""v_add_f32 v{q0}, v{m2q}, v{m2q+4}
            v_add_f32 v{q1}, v{m2q+2}, v{m2q+6}
            v_add_f32 v{q2}, v{m2q}, v{m2q+4}""".replace(f'v_add_f32 v{q2}, v{m2q}, v{m2q+4}', f'v_mov_b32 v{q2}, v{q0}'))
            a(f"""v_mov_b32 v{q3}, v{q1}
            s_cmp_eq_u32 s{TB}, 2
            s_cselect_b32 s{TC}, 1.0, 0
            v_permlane32_swap_b32 v{q0}, v{q2}
            v_permlane32_swap_b32 v{q1}, v{q3}""")
            self.pk('add', q0, q0, q2)
            self.round2(q0, q1)
            a(f"""v_add_f32 v{q0}, s{TC}, v{q0}
            v_add_f32 v{q1}, s{TC}, v{q1}
            v_cvt_pk_bf16_f32 v{q2}, v{q0}, v{q1}""")
            self.dw('ds_write_b32', vT, q2, 1)
            a('s_cbranch_scc0 L_NOG')
            g0, g1, gh, gl = m2q + 4, m2q + 5, m2q + 6, m2q + 7
            self.unpack(q0, q1, q2); self.unpack(g0, g1, wr1)
            self.pk('mul', g0, g0, q0)
            a(f'v_cvt_pk_bf16_f32 v{gh}, v{g0}, v{g1}')
            self.unpack(q0, q1, gh)
            self.pk('add', q0, g0, q0, neg=(1,))
            a(f"""v_cvt_pk_bf16_f32 v{gl}, v{q0}, v{q1}
            v_add_f32 v{q0}, v{g0}, v{g1}
            ds_write2_b32 v{vT}, v{gh}, v{gl} offset0:64 offset1:96
            ds_write_b32 v{vT}, v{wr1} offset:512""")
            for ctl in ('quad_perm:[1,0,3,2]', 'quad_perm:[2,3,0,1]', 'row_half_mirror', 'row_ror:8'): self.dpp('v_add_f32', q0, q0, q0, ctl)
            S(TA, '(rt*16 + cb)*8 + GR')
            a(f"""v_mov_b32 v{q2}, v{q0}
            v_mov_b32 v{q1}, s{sTAG}
            v_permlane16_swap_b32 v{q0}, v{q2}
            v_add_f32 v{q0}, v{q0}, v{q2}
            s_mov_b64 exec, 1""")
            self.bs(q0, 2, vZ, rWS, TA, 0, 'sc1', count=False)
            a("""s_mov_b64 exec, -1
        L_NOG:""")
        def m2_fetch():
            va(vM2, [(0, 5, 16), (5, 1, 512)])
            S(TL_, '((w & 3)*16 + cb)*2048 + MODP2')
            ld_m2()
        def act(op, k):
            nonlocal m2pos
            kind, n = op[0], int(op[1:] or 1)
            if kind == 'm':
                for _ in range(2 * n):
                    i = m2l.pop(0)
                    self.bl(m2w + 4 * i, 4, vWM, rWM, T4, 0, o.get('ntm2', 'nt'), ('m2', i))
                    if m2l: S(T4, 'T4 + 12288')
            elif kind == 'f': ffn_reg(n)
            elif kind == 'o':
                assert k >= 13
                for _ in range(n):
                    it = wol.pop(0); wo_dma(it, 1); wo_dma(it)
            elif kind == 'p':
                a('s_waitcnt lgkmcnt(0)')
                for q in range(n):
                    b = pwl.pop(0)
                    a(f's_load_dword s{sPL + 2*q}, {sr(rWS, 2)}, s{sINB} offset:{b * 512} glc')
                    a(f's_load_dword s{sPL + 2*q + 1}, {sr(rWS, 2)}, s{sINB} offset:{b * 512 - 256} glc')
            elif kind == 'q':
                S(T0, 'fs*8192 + (w - 4)*256 + HGR')
                a('s_waitcnt lgkmcnt(0)')
                for q in range(4): a(f's_load_dword s{sPL + q}, {sr(rWS, 2)}, s{T0} offset:{q * 2048 + 1024 + 252} glc')
            elif kind == 'z':
                for i in range(4): a(f'v_mov_b32 v{g4+i}, -1')
                if n == 1:
                    for we in ('w - 4', 'w'):
                        S(T0, f'(((r1*4 + (w & 3))*16 + hp)*2 + (({we}) >> 2))*2048 + OF')
                        for q in range(2): self.bs(g4, 4, vL16, rWS, T0, 1024 * q, 'sc1', 'pzo')
                else:
                    for we in ('w - 4', 'w'):
                        S(T0, f'((hp*8 + {we})*32 + r1)*1024 + KVP'); S(T1, 'T0 + 16384')
                        self.bs(g4, 4, vL16, rWS, T0, 0, 'sc1', 'pz'); self.bs(g4, 4, vL16, rWS, T1, 0, 'sc1', 'pz')
                    S(T0, '((hp*8 + w - 4)*16 + r1)*64 + ZP')
                    va(vT + 2, [(0, 2, 16), (2, 1, 4096)])
                    a('s_mov_b64 exec, 0xff')
                    self.bs(g4, 4, vT + 2, rWS, T0, 0, 'sc1', 'pz')
                    a('s_mov_b64 exec, -1')
            elif kind == 'M': m2_fetch()
            elif kind == 'R':
                S(T0, 'cb*128'); va(vT, [(0, 5, 4)], T0)
                a(f'global_load_dword v{wr1}, v{vT}, {sr(pWR, 2)}'); vm.issue()
            elif kind == 'N': m2_final()
            elif kind == 'K':
                S(T0, '(hp*16 + r1)*1024 + (w & 3)*256 + KIN'); S(T1, 'hp*128 + CFL')
                a(f'v_lshlrev_b32 v{vWM}, 7, v{vL}')
                a('s_mov_b64 exec, 3')
                self.bl(vWM, 1, vWM, rWS, T0, 0, '')
                self.bl(vCo, 1, vZ, rWS, T1, 0, '')
                a('s_mov_b64 exec, -1')
            elif kind == 'h':
                S(T0, '(fs*4 + kq)*2048 + (w & 1)*1024 + HGR'); S(T1, '(rt*16 + cb)*2048 + (w & 1)*1024 + STAT')
                if TL: a(f's_bitcmp1_b32 s{sWAVE}, 1'); a(f's_cselect_b32 s{T0}, s{T1}, s{T0}')
                self.bl(m2c + 12, 4, vL16, rWS, T0, 0, '')
            elif kind == 's':
                vm.wait('m2c')
                for _ in range(n):
                    i = sil.pop(0)
                    a(f'v_and_b32 v{m2c+i}, s{sMASK}, v{m2c+8+i//2}' if i & 1 else f'v_lshlrev_b32 v{m2c+i}, 16, v{m2c+8+i//2}')
                    self.silu(m2c + i, vT + (i & 1))
            elif kind == 'g':
                assert not sil
                for _ in range(n):
                    vm.wait(('m2', m2pos // 16))
                    for s_ in m2ops[m2pos:m2pos + 16]: a(s_)
                    m2pos += 16
            elif kind == 'r':
                assert m2pos == 128
                for s_ in m2ops[128:]: a(s_)
                self.dw('ds_write_b32', vGA, acc, 1, L_M2 - SCR)
                lg.wait_all()
            elif kind == 'P':
                a(f"""s_cmp_lg_u32 s{sWAVE}, 4
                s_cbranch_scc1 L_M2F
                ds_read_b128 {vr(acc, 4)}, v{vL32S} offset:{L_M2 - SCR}""")
                S(T0, '((((j >> 2) & 3)*16 + x*2 + (j >> 4))*4 + (j & 3))*512 + MODP2' if HL else '((j*2 + (x >> 2))*4 + (x & 3))*512 + MODP2')
                a(f"""s_waitcnt lgkmcnt(0)
                v_add_f32 v{acc}, v{acc}, v{acc+1}
                v_add_f32 v{acc+2}, v{acc+2}, v{acc+3}
                v_mov_b32 v{acc+1}, s{sTAG}
                v_add_f32 v{acc}, v{acc}, v{acc+2}""")
                self.bs(acc, 2, vL8, rWS, T0, 0, 'sc1', count=False)
                a('L_M2F:')
            else: raise ValueError(op)
        sched = {int(k): v.split() for k, v in o['sched'].items()}
        for op in sched.get(0, []): act(op, 0)
        wsch = {int(k): v for k, v in o.get('wsch', {k: 6 for k in range(2, 12)}).items()}
        hq = [(n, we, t) for n in range(6, 16) for we in ('w - 4', 'w') for t in range(3)]
        assert sum(wsch.values()) == 60
        for k in range(1, LASTB + 1):
            if k == 14: a('s_barrier')
            assert not any(n <= (15 if k == LASTB else k) for n, _, _ in hq)
            for kk in (range(k, 16) if k == LASTB else [k + 1 if k < 3 and o.get('wxor', 1) == 3 else k]): vm.wait(('W', kk))
            if o.get('ust'): self.stamp(f'w{k}')
            a('s_barrier')
            if o.get('ust'): self.stamp(f'u{k}')
            ops = sched.get(k, []) if k < 14 else []
            for op in ops:
                if op[0] == '<': act(op[1:], k)
            for _ in range(wsch.get(k, 0)):
                n, we, t = hq.pop(0)
                assert n - 4 <= k
                if t == 0: w_base(n, we)
                w_slot(n, t)
            for op in ops:
                if op[0] != '<': act(op, k)
        assert LASTB in (13, 14)
        if LASTB == 13: a('s_barrier')
        for op in sched.get(14, []): act(op, 14)
        self.barrier()
        for q in range(2): self.r128(fr + 4 * q, vXF, q * 1024)
        lg.wait_all()
        phi_logits(fr)
        for op in sched.get(15, []): act(op, 15)
        assert not m2l or o.get('nom2')
        assert 8 * len(freg) <= 76
        a('L_JOIN:')
        pzq = list(vm.q)
        vm.reset(); lg.q = [None]
        V.release(vXW); V.release(vVW); V.release(vB, 6); V.release(vWd); V.release(vGA); V.release(vL32S); V.release(acc, 8)
        kw = o.get('kweave', ''); fall = []; fb0 = big + 8 * len(freg); nfa = kw.count('f')
        def kw_op(c_):
            if c_ == 'o': wo_dma(wol.pop(0), 0, T6)
            else:
                m, i = fq.pop(0); v, r = f_src(m, i, 0, T6)
                self.bl(fb0 + 4 * len(fall), 4, v, r, T6, 0, o.get('ntffn', 'nt')); fall.append((m, i))
        V.release(fb0 + 4 * nfa, 76 - 8 * len(freg) - 4 * nfa)
        ph = aq; fx = aq + 16
        vPA = V.alloc(); vPB = V.alloc()
        self.weave(lambda: self.softmax_pm(pp, ee, ph, vT), [lambda c_=c_: kw_op(c_) for c_ in kw])
        for fb in range(4): self.dw('ds_write_b128', vPW, ph + 4 * fb, 4, fb * 4096)
        S(T0, 'w*4096 + L_PHK'); a(f'v_add_u32 v{vPA}, s{T0}, v{vL8}')
        S(T0, 'kh*8192 + L_V'); a(f'v_add_u32 v{vPB}, s{T0}, v{vL8}')
        ones = fr
        for i in range(4): a(f'v_mov_b32 v{ones+i}, 0x3f803f80')
        S(T0, '((hp*8 + w)*32 + r1)*1024 + KVP'); S(T2, 'T0 + 16384')
        S(T3, '(hp*8 + w)*1024 + ZP'); S(T1, 'r1*64 + T3')
        self.stamp('ksm')
        self.barrier()
        self.stamp('phik')
        tb7 = V.alloc(8); tb4 = tb7 + 4
        def tb_read():
            S(T5, 'kh*64 + q', q=LMT); va(tb7 + 3, [(0, 3, 4), (5, 1, 32)], T5)
            for q, t in ((0, 0), (1, 4), (2, 5), (4, 1), (5, 2), (6, 3), (7, 6)): self.dr('ds_read_b32', tb7 + q, 1, tb7 + 3, t * 128)
        if not ML: tb_read()
        fragA = [ee + 4 * i for i in range(4)]
        fragB = [av + 4 * i for i in range(8)]
        kvd = vv; zd = fr + 4
        def kvm(u):
            lg.wait(('kv', u))
            for db in range(2):
                a(f'v_mfma_f32_16x16x32_bf16 {vr(kvd + 4*db, 4)}, {vr(fragA[u], 4)}, {vr(fragB[2*u+db], 4)}, ' + ('0' if u == 0 else vr(kvd + 4*db, 4)))
            a(f'v_mfma_f32_16x16x32_bf16 {vr(zd, 4)}, {vr(fragA[u], 4)}, {vr(ones, 4)}, ' + ('0' if u == 0 else vr(zd, 4)))
        for ts in range(4):
            self.tr(fragA[ts], vPA, ts * 1024, ('kv', ts)); self.tr(fragA[ts] + 2, vPA, ts * 1024 + 512, ('kv', ts))
            for db in range(2):
                self.tr(fragB[2*ts+db], vPB, db * 4096 + ts * 1024, ('kv', ts)); self.tr(fragB[2*ts+db] + 2, vPB, db * 4096 + ts * 1024 + 512, ('kv', ts))
            if ts >= 2: kvm(ts - 2)
        va(vPW, [(0, 4, 8 * 4096)] if HL else [(0, 3, 32 * 4096), (3, 1, 4 * 4096)])
        S(T4, '(wg & q)*4096 + (r1 >> 1)*64 + (r1 & 1)*4 + INB + 512', q=0x87 if HL else 0x1b)
        kvm(2); kvm(3)
        a(f"""s_cmp_lt_u32 s{sWAVE}, 4
        s_cbranch_scc1 L_NOQX
        ds_read_b128 {vr(vq, 4)}, v{vXF} offset:2048
        ds_read_b128 {vr(vq + 4, 4)}, v{vXF} offset:3072
        L_NOQX:""")
        if 'pz' in pzq: a(f's_waitcnt vmcnt({pzq[::-1].index("pz")})')
        self.bs(kvd, 4, vL16, rWS, T0, 0, 'sc1', 'kvs')
        self.bs(kvd + 4, 4, vL16, rWS, T2, 0, 'sc1', 'kvs')
        a('s_mov_b32 exec_lo, 0x00010001')
        a('s_mov_b32 exec_hi, 0x00010001')
        self.bs(zd, 4, vL, rWS, T1, 0, 'sc1', 'kvs')
        a('s_mov_b64 exec, -1')
        lg.wait_all()
        phi_logits(vq)
        self.stamp('kvst')
        wl = wol + [2, 3, 4, 5, 6, 7, 8, 13, 14, 15, 0, 1]
        kp = av; zz = av + 16; g4 = vv
        vKP = V.alloc()
        va(vKP, [(3, 3, 1024), (0, 3, 16)])
        wo1 = lambda: wo_dma(wl.pop(0), 0, T6)
        keep = a.items; a.items = []
        self.softmax_pm(pp, ee, ph, vv)
        qsm = a.items; a.items = keep
        qcost = [2 if it[1].is_trans or 'permlane' in it[1].mn else 1 for it in qsm]
        qtot = sum(qcost); qdone = [0]
        def q_slice(upto):
            while qsm and qdone[0] < qtot * upto / 100:
                a.items.append(qsm.pop(0)); qdone[0] += qcost.pop(0)
        qs = o.get('qs', (35, 85, 100))
        CL = o.get('cl', (0, 1)); assert CL[1]
        q_slice(qs[0])
        S(T5, 'hp*128 + CFL'); S(T1, 'r1*8 + T5')
        vCF = V.alloc(); cf = V.alloc()
        va(vCF, [(0, 4, 8)])
        vm.wait('kvs')
        a('s_barrier')
        if CL[0]:
            a(f"""s_cmp_eq_u32 s{sLOC}, 0
            s_cbranch_scc1 L_PCG
            s_cmp_lg_u32 s{sWAVE}, 0
            s_cbranch_scc1 L_PC
            v_mov_b32 v{cf}, s{sTAG}
            s_mov_b64 exec, 1""")
            self.bs(cf, 1, vZ, rWS, T1, 0, '', count=False)
            a("""s_mov_b64 exec, -1
            s_branch L_PC
            L_PCG:""")
        self.push(vPW, T4, 16, vPB, 'L_PC')
        self.stamp('kvpub')
        assert HL and not CL[0]
        if ML:
            a(f"""s_cmp_lt_u32 s{sWAVE}, 4
            s_cbranch_scc1 L_NOM""")
            m2_fetch()
            a('L_NOM:')
        S(T0, '(hp*16 + r1)*16384 + w*128 + KVP')
        S(T2, '(hp*16 + r1)*1024 + w*128 + KIN'); S(T4, 'T4 + 6*512')
        def c1_work():
            self.weave(lambda: q_slice(qs[1]), [wo1] * o['wowin'][0])
            if ML:
                a(f"""s_cmp_lt_u32 s{sWAVE}, 4
                s_cbranch_scc1 L_NOG""")
                q_ = list(vm.q); m2_final(); vm.q = q_
            self.stamp('cw')
        if CL[0]:
            ld_cf = lambda: self.bl(cf, 1, vCF, rWS, T5, 0, 'sc1', 'cf')
            if o.get('cfpre', 1): ld_cf()
            c1_work()
            a(f"""s_cmp_lg_u32 s{sLOC}, 0
            s_cbranch_scc1 L_C1L""")
            q_ = list(vm.q)
            self.inbox(1, 2)
            a("""s_barrier
            s_branch L_C1D
            L_C1L:""")
            if o.get('cfpre', 1): self.finish_load('cf', ld_cf, [cf])
            else: self.poll(ld_cf, [cf])
            vm.q = q_
            a('L_C1D:')
        else:
            self.inbox(1, 2, work=c1_work)
            a('s_barrier')
        V.release(vCF); V.release(vWM); V.release(vCo)
        self.stamp('kvok')
        S(T5, 'T0 + 8192')
        ld_kp = lambda: (self.bl(kp, 4, vKP, rWS, T0, 0, 'sc1', 'kp'), self.bl(kp + 4, 4, vKP, rWS, T5, 0, 'sc1', 'kp'))
        ld_z = lambda: self.bl(zz, 4, vL16, rWS, T3, 0, 'sc1', 'z')
        self.bl(cf, 1, vZ, rWS, '0', MARK, 'sc1')
        ld_kp(); ld_z()
        S(T1, 'w*32 + L_ZF'); va(vT + 2, [(0, 2, 8), (5, 1, 4)], T1)
        S(T1, 'w*1024 + L_KVF'); va(vT + 1, [(0, 4, 16), (5, 1, 512), (4, 1, 8)], T1)
        S(T1, 'kh*128 + L_ZF'); va(vT + 3, [(5, 1, 16)], T1)
        S(T1, 'kh*4096 + L_KVF'); a(f'v_add_u32 v{vPA}, s{T1}, v{vL16}')
        def red4(r, ctls):
            for i in range(2): a(f'v_permlane32_swap_b32 v{r+i}, v{r+2+i}')
            self.pk('add', r, r, r + 2)
            for ctl in ctls:
                for i in range(2): self.dpp('v_add_f32', r + i, r + i, r + i, ctl)
            for i in range(2): a(f'v_mov_b32 v{r+2+i}, v{r+i}')
            for i in range(2): a(f'v_permlane16_swap_b32 v{r+i}, v{r+2+i}')
            self.pk('add', r, r, r + 2)
            a(f'v_cvt_pk_bf16_f32 v{r}, v{r}, v{r+1}')
        self.weave(lambda: q_slice(qs[2]), [wo1] * o['wowin'][1])
        vm.wait('kp')
        a(f'v_cmp_eq_u32 vcc, s{sTAG}, v{cf}')
        a(f's_cmp_eq_u32 vcc_lo, 0')
        a(f's_cselect_b32 s{sLOC}, {o.get("local", 1)}, 0')
        self.pk('add', kp, kp, kp + 4); self.pk('add', kp + 2, kp + 2, kp + 6)
        red4(kp, ['row_ror:8'])
        kc = V.alloc(5, 4)
        a(f"""v_mov_b32 v{kc}, v{kp}
        v_mov_b32 v{kc+2}, v{kp}
        v_mov_b32 v{kc+1}, s{sTAG}
        v_mov_b32 v{kc+3}, s{sTAG}
        v_permlane32_swap_b32 v{kc}, v{kc+2}
        v_add_u32 v{kc+4}, s{T2}, v{vL16}
        s_mov_b64 exec, 0xff""")
        self.bs2([(kc, 4, vL16, T2, 0)])
        a("""s_mov_b64 exec, -1
        s_cbranch_scc1 L_PC2""")
        a('s_barrier')
        self.push(vPW, T4, 16, vPB, 'L_PC2')
        self.stamp('c2pub')
        kf = av; zf = av + 16; num = pp; den = ee
        k2 = av + 8
        S(T0, '(hp*8 + w)*2048 + KIN')
        ld_k2 = lambda: [self.bl(k2 + 4 * q, 4, vL16, rWS, T0, q * 1024, 'sc1') for q in range(2)]
        def z_work():
            vm.wait('z')
            red4(zz, ['row_ror:4', 'row_ror:8'])
            self.dw('ds_write_b32', vT + 2, zz, 1)
            q_slice(100)
            self.stamp('c2w')
        ZP_ = o.get('zpre', 1)
        if ZP_: z_work()
        a(f"""s_cmp_lg_u32 s{sLOC}, 0
        s_cbranch_scc1 L_C2L""")
        l_ = list(lg.q)
        self.inbox(7, 2)
        lg.q = l_
        a('L_C2L:')
        self.try_load(ld_k2, [k2 + 1, k2 + 3, k2 + 5, k2 + 7], vT, None if ZP_ else z_work)
        for db in range(2):
            a(f'ds_write2_b32 v{vT+1}, v{k2+4*db}, v{k2+4*db+2} offset0:{64*db} offset1:{64*db+1}'); lg.issue()
        self.barrier()
        self.stamp('kvred')
        for fb in range(4): self.r128(zf + 4 * fb, vT + 3, fb * 32, ('zf', fb))
        for fb in range(4): self.r128(kf + 4 * fb, vPA, fb * 1024, ('kf', fb))
        if ML: tb_read()
        for _ in range(o['wowin'][2]): wo1()
        S(T0, '(((r1*4 + (w & 3))*16 + hp)*2 + kh)*2048 + OF')
        va(vT + 4, [(0, 4, 16), (4, 1, 1024), (5, 1, 256)])
        for fb in range(4):
            lg.wait(('zf', fb))
            a(f'v_mfma_f32_32x32x16_bf16 {vr(den, 16)}, {vr(zf + 4*fb, 4)}, {vr(ph + 4*fb, 4)}, ' + ('0' if fb == 0 else vr(den, 16)))
        for fb in range(4):
            lg.wait(('kf', fb))
            a(f'v_mfma_f32_32x32x16_bf16 {vr(num, 16)}, {vr(kf + 4*fb, 4)}, {vr(ph + 4*fb, 4)}, ' + ('0' if fb == 0 else vr(num, 16)))
        self.round1(den)
        a(f'v_add_f32 v{den}, 0x358637bd, v{den}')
        self.round1(den)
        a(f'v_rcp_f32 v{den}, v{den}')
        for h in range(2):
            self.round_list([num + i for i in range(8 * h, 8 * h + 8)])
            for i in range(8 * h, 8 * h + 8, 2): self.pk('mul', num + i, num + i, den, bc=(1,))
            for i in range(4 * h, 4 * h + 4): a(f'v_cvt_pk_bf16_f32 v{vq+i}, v{num+2*i}, v{num+2*i+1}')
            self.bs(vq + 4 * h, 4, vT + 4, rWS, T0, 512 * h, 'sc1', 'os')
        self.stamp('ost')
        for r, n in ((fr, 8), (vv, 8), (vPW, 1), (vXF, 1), (vPA, 1), (vPB, 1), (vKP, 1), (accs, 96), (wphi, 8)):
            V.release(r, n)
        assert GS == 0
        vG16 = vL16
        vBa = V.alloc(4); xf = V.alloc(16)
        S(T4, 'kh*(65536 + 64) + WO_H0')
        va(vBa, [(5, 1, 2048), (4, 1, 512), (2, 2, 128), (3, 1, 64), (1, 1, 32), (4, 1, 16), (0, 1, 8)])
        a(f'v_xor_b32 v{vBa}, s{T4}, v{vBa}')
        for q, x_ in ((1, 16), (2, 64), (3, 80)): a(f'v_xor_b32 v{vBa+q}, {x_}, v{vBa}')
        assert WO_H1 == WO_H0 + 65536
        va(vT + 1, LCB)
        S(T2, ('((r1 & 1)*128 + (r1 >> 1))*4096' if TL else '((r1 >> 2)*2 + (r1 & 3)*64)*4096') + (' + ((hp >> 3)*4 + (hp & 3))*64 + (((hp >> 2) ^ p) & 1)*4 + INB + 1024' if D2 else ' + (hp >> 1)*64 + (hp & 1)*4 + INB + 1024'), p=o.get('dflip', 1))
        gaf = V.alloc(16); gp = V.alloc(16); gr = V.alloc(2); vGR = V.alloc(); cn = V.alloc(2)
        def expand(dst, t):
            for i in range(8):
                self.dpp('v_mul_u32_u24', dst + 2 * i, t, cn, f'row_newbcast:{i}')
                self.dpp('v_and_b32', dst + 2 * i + 1, t, cn + 1, f'row_newbcast:{i}')
        a(f"""v_mov_b32 v{cn}, 0x10000
        v_mov_b32 v{cn+1}, s{sMASK}""")
        for i in range(8): self.unpack(xf + 2 * i, xf + 2 * i + 1, xr + i)
        lg.wait_all()
        expand(gaf, tb7)
        S(T6, '(gtb*2 + kf)*32768 + OF')
        va(vGR, [(0, 4, 8)])
        vm.wait('os')
        self.barrier()
        self.push(vT + 1, T2, 16, vT + 2, 'L_PD')
        self.stamp('opub')
        def c_clean():
            if CL[1]:
                a('s_mov_b64 exec, 0xff')
                self.bs(kc, 4, kc + 4, rWS, '0', 0, 'sc1')
                a('s_mov_b64 exec, -1')
            if CL[0]:
                S(T0, 'hp*128 + r1*8 + CFL')
                a(f"""s_cmp_lg_u32 s{sWAVE}, 0
                s_cbranch_scc1 L_NOCC
                v_mov_b32 v{cf}, s{sTAG}
                s_mov_b64 exec, 1""")
                self.bs(cf, 1, vZ, rWS, T0, 0, 'sc1', count=False)
                a("""s_mov_b64 exec, -1
                L_NOCC:""")
        if o.get('ccat', 3) == 0: c_clean()
        V.release(vq, 8)
        late_wo = bool(wl)
        while wl: wo_dma(wl.pop(0))
        V.release(vWo)
        MS = o.get('msum', 1)
        def d_work():
            for k in range(2):
                for i in range(8): a(f'v_mov_b32_dpp v{gp + 8*k + i}, v{tb7 + 1 + k} row_newbcast:{i} row_mask:0xf bank_mask:0xf')
            if MS:
                a(f"""v_and_b32 v{vT}, 3, v{vL}
                v_cmp_eq_u32 vcc, 1, v{vT}
                v_cmp_eq_u32 {sr(sCMP, 2)}, 0, v{vT}
                v_mov_b32 v{vT+1}, 0x3f803f80""")
                for i in range(8): a(f'v_cndmask_b32 v{gp+i}, v{gp+8+i}, v{gp+i}, vcc')
                for i in range(8): a(f'v_cndmask_b32 v{gp+i}, v{gp+i}, v{vT+1}, {sr(sCMP, 2)}')
            if o.get('stouch', TL):
                S(T2, '(rt*16 + cb)*2048 + w*256 + STAT')
                a(f'v_lshlrev_b32 v{gr}, 7, v{vL}')
                a('s_mov_b64 exec, 3')
                self.bl(gr, 1, gr, rWS, T2, 0, '')
                a('s_mov_b64 exec, -1')
            if late_wo or o.get('stouch', TL): vm.wait_all()
            self.stamp('dw')
        AD2 = o['AD2']
        LK2 = o.get('LK2', 4); NB2 = LK2 + 1
        accA = V.alloc(16); accB = V.alloc(16); Ar = V.alloc(4 * AD2); Br = V.alloc(4 * NB2)
        def b2_read(n, q):
            st_, c = divmod(n, 4)
            self.tr(Br + 4 * (n % NB2) + 2 * q, vBa + (c ^ 2), st_ * 4096 + q * 1024, ('B', n))
        def a2_load(s):
            if s % 2 == 0: S(T7, '(rot ^ n)*2048 + T6' if D2 else '((rot + n) & 15)*2048 + T6', n=(s // 2) & o.get('a2mask', 15))
            self.bl(Ar + 4 * (s % AD2), 4, vL16, rWS, T7, (s % 2) * 1024, o.get('a2mod', 'sc1'), ('A', s))
        self.inbox(2, 2, [0] if D2 else None, work=d_work)
        a('s_barrier')
        self.stamp('ook')
        if o.get('prio2', 1):
            a(f"""s_cmp_lt_u32 s{sWAVE}, 4
            s_cbranch_scc1 L_P2
            s_setprio {o.get('prio2', 1)}
            L_P2:""")
        nx2 = 0
        def a2_more(lim):
            nonlocal nx2
            while nx2 < min(lim, 32):
                if nx2 == 16 and D2:
                    a(f"""s_cmp_eq_u32 s{sPL + 1}, s{sTAG}
                    s_cbranch_scc1 L_D2""")
                    l_ = list(lg.q)
                    self.inbox(2, 2, [1])
                    lg.q = l_
                    a("""L_D2:
                    s_barrier""")
                a2_load(nx2); nx2 += 1
                if nx2 == 32:
                    ld_gr()
                    if o.get('ccat', 3) == 1: c_clean()
        S(T5, 'rt*128 + GR')
        ld_gr = lambda: self.bl(gr, 2, vGR, rWS, T5, 0, 'sc1', 'gr')
        a2_more(2)
        for n in range(LK2):
            for q in range(2): b2_read(n, q)
        a2_more(o.get('A20', 4))
        for n in range(64):
            st_, c = divmod(n, 4)
            if n % o.get('wev2', 1) == 0: lg.wait(('B', min(n + o.get('wev2', 1) - 1, 63)))
            for th in range(2):
                if c == 0: vm.wait(('A', 2 * st_ + (th if st_ == 0 or not o.get('vw2', 1) else 1)))
                d = (accB, accA)[c >> 1] + 8 * (c & 1) + 4 * th
                a(f'v_mfma_f32_16x16x32_bf16 {vr(d, 4)}, {vr(Br + 4*(n % NB2), 4)}, {vr(Ar + 4*((2*st_ + th) % AD2), 4)}, ' + ('0' if st_ == 0 else vr(d, 4)))
                if n + LK2 < 64: b2_read(n + LK2, th)
            if n == o.get('prio2n', 18): a('s_setprio 0')
            if c in o.get('a2at', (0, 1)): a2_more(min(nx2 + 1, 2 * st_ + AD2))
            if c == 3 and AD2 == 4: a2_more(2 * st_ + 6)
        self.stamp('gemm2')
        if o.get('prio2', 1): a('s_setprio 0')
        S(T0, 'w*4096')
        a(f'v_add_u32 v{vT}, s{T0}, v{vG16}')
        for q in range(4): self.dw('ds_write_b128', vT, accB + 4 * q, 4, L_EXCH - GS + q * 1024)
        for i in range(8): a(f'v_permlane16_swap_b32 v{accA + 8*(i >> 2) + (i & 3)}, v{accA + 8*(i >> 2) + 4 + (i & 3)}')
        S(T0, '(w ^ 4)*4096'); va(vT + 1, [(0, 4, 16), (4, 1, 1024), (5, 1, 512)], T0)
        S(T0, 'kh*2048 + (w & 3)*512 + L_SP'); va(vT + 2, [(0, 5, 16), (5, 1, 8)], T0)
        S(T0, 'kh*64 + L_TB'); va(vT + 3, [(0, 3, 4), (5, 1, 32)], T0)
        vSG = V.alloc()
        S(T6, 'rt*32768 + w*256 + STAT'); va(vSG, [(0, 4, 16), (4, 2, 2048)])
        sm = Br; one = Br + 4
        a(f'v_mov_b32 v{one}, 0x3f803f80')
        fd = list(o['fdma']); assert sum(fd) == len(fq)
        self.stamp('exw')
        self.barrier()
        self.stamp('ex1')
        for q in range(4): self.r128(accB + 4 * q, vT + 1, L_EXCH - GS + (q >> 1) * 2048 + (q & 1) * 256, ('ex', q))
        ffn_dma(fd[0], T1)
        for h in range(2):
            for q in (2 * h, 2 * h + 1):
                lg.wait(('ex', q))
                self.pk('add', accA + 4 * q, accA + 4 * q, accB + 4 * q); self.pk('add', accA + 4 * q + 2, accA + 4 * q + 2, accB + 4 * q + 2)
            rg = range(8 * h, 8 * h + 8)
            self.round_list([accA + i for i in rg])
            for i in range(8 * h, 8 * h + 8, 2): self.pk('mul', accA + i, accA + i, gaf + i)
            self.round_list([accA + i for i in rg])
            for i in range(8 * h, 8 * h + 8, 2): self.pk('add', accA + i, accA + i, xf + i)
            for i in range(4 * h, 4 * h + 4): a(f'v_cvt_pk_bf16_f32 v{xr+i}, v{accA+2*i}, v{accA+2*i+1}')
        self.stamp('x1c')
        if MS:
            for t in range(2): a(f'v_mfma_f32_32x32x16_bf16 {vr(accB, 16)}, {vr(gp + 4*t, 4)}, {vr(xr + 4*t, 4)}, ' + ('0' if t == 0 else vr(accB, 16)))
            for i in range(8): a(f'v_dot2_f32_bf16 v{sm + (i & 1)}, v{xr+i}, v{xr+i}, ' + ('0' if i < 2 else f'v{sm + (i & 1)}'))
            a(f"""v_add_f32 v{sm+2}, v{sm}, v{sm+1}
            v_add_f32 v{sm}, v{sm}, v{sm+1}
            v_permlane32_swap_b32 v{sm}, v{sm+2}
            s_mov_b32 exec_lo, 0
            v_add_f32 v{accB}, v{sm}, v{sm+2}
            v_mov_b32 v{accB+1}, v{accB+2}
            s_mov_b32 exec_lo, -1""")
            self.dw('ds_write_b64', vT + 2, accB, 2)
        else:
            for i in range(8):
                for d, b in ((sm, one), (sm + 2, xr + i), (sm + 1, gp + i), (sm + 3, gp + 8 + i)):
                    a(f'v_dot2_f32_bf16 v{d}, v{xr+i}, v{b}, ' + ('0' if i == 0 else f'v{d}'))
            a(f"""v_permlane32_swap_b32 v{sm}, v{sm+2}
            v_permlane32_swap_b32 v{sm+1}, v{sm+3}""")
            self.pk('add', sm, sm, sm + 2)
            self.dw('ds_write_b64', vT + 2, sm, 2)
        for q in range(4): self.dw('ds_write_b32', vT + 3, tb4 + q, 1, 128 * q)
        a(f'v_add_u32 v{vT}, {L_SP}, v{vL16}')
        va(vT + 1, LCB)
        S(T0, '(rt*16 + cb)*2048 + STAT')
        S(T3, ('((rt & 1)*128 + (rt >> 1))*4096' if TL else '((rt & 3)*64 + (rt >> 2)*2)*4096') + ' + (cb >> 1)*64 + (cb & 1)*4 + INB + 1536')
        self.barrier()
        self.stamp('x1st')
        PR = o.get('crit', 3)
        a(f"""s_cmp_lg_u32 s{sWAVE}, 0
        s_cbranch_scc1 L_PE""")
        if PR: a(f's_setprio {PR}')
        for q in range(4): a(f'ds_read_b128 {vr(accB + 4*q, 4)}, v{vT} offset:{(q & 1) * 2048 + (q >> 1) * 1024}')
        for h in range(2):
            b = accB + 8 * h
            a(f's_waitcnt lgkmcnt({2 - 2*h})')
            self.pk('add', b, b, b + 4); self.pk('add', b + 2, b + 2, b + 6)
            a(f"""v_add_f32 v{b+1}, v{b+1}, v{b+3}
            v_mov_b32 v{b+3}, s{sTAG}""")
        if TL:
            self.bs2([(accB + 8 * h, 4, vL16, T0, 1024 * h) for h in range(2)])
            a('s_cbranch_scc1 L_PE')
        else:
            for h in range(2): self.bs(accB + 8 * h, 4, vL16, rWS, T0, 1024 * h, 'sc1', count=False)
        a('s_mov_b64 exec, 0xffff')
        self.bs(accB + 3, 1, vT + 1, rWS, T3, 0, 'sc1', count=False)
        if PR: a('s_setprio 0')
        a("""s_mov_b64 exec, -1
        L_PE:""")
        self.stamp('x1pub')
        if o.get('ccat', 3) == 2: c_clean()
        V.release(accA, 16); V.release(accB, 16); V.release(Ar, 4 * AD2); V.release(Br, 4 * NB2); V.release(vBa, 4); V.release(xf, 16); V.release(gaf, 16); V.release(gp, 16)
        x1 = V.alloc(16); hh = V.alloc(16); mf = V.alloc(32); sg = V.alloc(16); op = V.alloc(8)
        st = V.alloc(2); vRid = V.alloc(); ck = V.alloc(4); vOT = V.alloc()
        ct = V.alloc(12, 4)
        def e_work():
            S(T3, '(w & 3)*(32*144) + kh*64'); va(vOT, [(0, 5, 144), (5, 1, 32)], T3)
            for q in range(2): self.dw('ds_write_b128', vOT, xr + 4 * q, 4, L_XT + 16 * q)
            a(f'v_add_u32 v{vOT}, {L_OT}, v{vOT}')
            S(T2, '4094 - (rt*8 + w)*32'); va(vRid, [(0, 4, 2)]); a(f'v_sub_u32 v{vRid}, s{T2}, v{vRid}')
            S(T2, 'w*128 + L_ST2'); va(vT + 4, [(0, 4, 8)], T2)
            S(T2, '(w & 3)*256 + L_ST2'); va(vT + 6, [(0, 5, 8)], T2)
            va(vT + 7, [(0, 3, 8)], None, L_K1)
            self.finish_load('gr', ld_gr, [gr + 1])
            for ctl in ('quad_perm:[1,0,3,2]', 'quad_perm:[2,3,0,1]', 'row_half_mirror', 'row_ror:8'): self.dpp('v_add_f32', gr, gr, gr, ctl)
            a(f"""s_cmp_lg_u32 s{sWAVE}, 1
            s_cbranch_scc1 L_NOCT""")
            va(vT + 1, [(0, 4, 8)], None, L_TB)
            a(f"""ds_read_b64 {vr(ct + 2, 2)}, v{vT+1}
            ds_read_b64 {vr(ct + 6, 2)}, v{vT+1} offset:128
            ds_read_b64 {vr(ct + 8, 2)}, v{vT+1} offset:384
            s_waitcnt lgkmcnt(0)""")
            for b in (ct, ct + 4):
                self.unpack(b, b + 1, b + 2); self.unpack(b + 2, b + 3, b + 3)
            a('L_NOCT:')
        def f_pre(part):
            if part == 0:
                a(f"""s_cmp_lt_u32 s{sWAVE}, 4
                s_cbranch_scc1 L_NOST""")
                S(T0, '(w - 4)*4096 + L_GU')
                a(f'v_add_u32 v{vT}, s{T0}, v{vL16}')
                a(f'v_add_u32 v{vT+3}, {L_DN - L_GU}, v{vT}')
                for n, (m, i) in enumerate(freg):
                    for back in range(2):
                        self.dw('ds_write_b128', vT if m < 2 else vT + 3, big + 8 * n + 4 * back, 4, f_lds(m, i) - (L_GU if m < 2 else L_DN) + (1 - back) * 16384)
                a('L_NOST:')
                if fall:
                    S(T0, 'w*4096 + L_GU'); a(f'v_add_u32 v{vT}, s{T0}, v{vL16}')
                    for n, (m, i) in enumerate(fall):
                        assert m < 2
                        self.dw('ds_write_b128', vT, fb0 + 4 * n, 4, f_lds(m, i) - L_GU)
                return
            for i in range(8): self.unpack(x1 + 2 * i, x1 + 2 * i + 1, xr + i)
            expand(mf, tb4); expand(mf + 16, tb4 + 1)
        if TL:
            a(f"""s_cmp_lg_u32 s{sLOC}, 0
            s_cbranch_scc1 L_ELOC""")
            self.inbox(3, 2)
            a("""s_barrier
            L_ELOC:""")
        else:
            ffn_dma(fd[1])
            self.inbox(3, 2, work=lambda: (e_work(), f_pre(0)))
            a('s_barrier')
        self.stamp('x1ok')
        def ld_sg():
            for q in range(4):
                S(T0, 'T6 + q', q=q * 8192)
                self.bl(sg + 4 * q, 4, vSG, rWS, T0, 0, 'sc1')
        self.try_load(ld_sg, [sg + 3, sg + 7, sg + 11, sg + 15], vT, e_work if TL else lambda: f_pre(1))
        V.release(vSG)
        self.stamp('x1ld')
        if o.get('htouch', 1):
            S(T2, '(fs*4 + kq)*2048 + w*256 + HGR')
            vDum = V.alloc()
            a(f'v_lshlrev_b32 v{vDum}, 7, v{vL}')
            a('s_mov_b64 exec, 3')
            self.bl(vDum, 1, vDum, rWS, T2, 0, '')
            a('s_mov_b64 exec, -1')
        ffn_dma(fd[2], T2)
        A_, B_, C_, U_ = sg, sg + 1, sg + 2, sg + 3
        self.pk('add', sg, sg, sg + 4); self.pk('add', sg + 8, sg + 8, sg + 12)
        a(f"""v_add_f32 v{C_}, v{C_}, v{sg+6}
        v_add_f32 v{sg+10}, v{sg+10}, v{sg+14}""")
        self.pk('add', sg, sg, sg + 8)
        a(f"""v_add_f32 v{C_}, v{C_}, v{sg+10}
        v_mov_b32 v{U_}, v{B_}
        v_permlane32_swap_b32 v{A_}, v{C_}
        v_permlane32_swap_b32 v{B_}, v{U_}
        v_add_f32 v{A_}, v{A_}, v{C_}
        v_add_f32 v{B_}, v{B_}, v{U_}
        v_permlane16_swap_b32 v{A_}, v{B_}
        v_add_f32 v{U_}, v{A_}, v{B_}
        v_add_f32 v{A_}, v{A_}, v{B_}
        v_permlane16_swap_b32 v{A_}, v{U_}
        v_mul_f32 v{C_}, 0x3a800000, v{A_}
        v_mul_f32 v{A_}, 0x3a800000, v{A_}
        v_permlane32_swap_b32 v{A_}, v{C_}""")
        self.stat_math(A_, C_, st, st + 1)
        S(T0, 'w*8 + L_K1')
        a(f"""v_rcp_f32 v{st+1}, v{st+1}
        v_fma_f32 v{U_}, -v{st}, v{gr}, v{U_}
        v_mov_b32 v{vT+1}, s{T0}
        v_mul_f32 v{U_}, v{U_}, v{st+1}""")
        self.dw('ds_write_b64', vT + 4, st, 2)
        a(f"""s_movk_i32 s{T0}, 0xfff
        v_ashrrev_i32 v{A_}, 31, v{U_}
        v_or_b32 v{A_}, 0x80000000, v{A_}
        v_xor_b32 v{A_}, v{A_}, v{U_}
        v_bfi_b32 v{ck}, s{T0}, v{vRid}, v{A_}""")
        def top2(ctls, first):
            for n, ctl in enumerate(ctls):
                if n == 0 and first:
                    self.dpp('v_min_u32', ck + 1, ck, ck, ctl); self.dpp('v_max_u32', ck, ck, ck, ctl)
                    continue
                self.dpp('v_min_u32', ck + 2, ck, ck, ctl); self.dpp('v_max_u32', ck + 1, ck + 1, ck + 1, ctl); self.dpp('v_max_u32', ck, ck, ck, ctl)
                a(f'v_max_u32 v{ck+1}, v{ck+1}, v{ck+2}')
        top2(('row_ror:8', 'row_ror:4', 'row_ror:2', 'row_ror:1'), True)
        self.dw('ds_write_b64', vT + 1, ck, 2)
        va(vT + 2, [(0, 1, 128 * 4096), (1, 3, 4096)] if TL else [(0, 2, 64 * 4096), (2, 2, 2 * 4096)])
        S(T1, ('cb*32768' if TL else '((cb & 7)*8 + (cb >> 3))*4096') + ' + (rt >> 1)*64 + (rt & 1)*16 + INB + 2560')
        self.barrier()
        self.stamp('ln2')
        if PR:
            a(f"""s_cmp_ge_u32 s{sWAVE}, 2
            s_cbranch_scc1 L_PR1
            s_setprio {PR}
            L_PR1:""")
        self.dr('ds_read_b64', ck, 2, vT + 7, 0, 'k'); self.dr('ds_read_b64', st, 2, vT + 6, 0, 's')
        lg.wait('k')
        top2(('quad_perm:[1,0,3,2]', 'quad_perm:[2,3,0,1]', 'row_half_mirror'), False)
        a(f"""v_or_b32 v{ck+2}, 1, v{ck+1}
        v_mov_b32 v{ck+1}, s{sTAG}
        v_mov_b32 v{ck+3}, s{sTAG}
        s_cmp_lg_u32 s{sWAVE}, 0
        s_cbranch_scc1 L_NOF
        s_mov_b64 exec, 0xffff""")
        self.bs(ck, 4, vT + 2, rWS, T1, 0, 'sc1', count=False)
        a("""s_mov_b64 exec, -1
        L_NOF:""")
        self.stamp('Fpub')
        a(f"""s_cmp_lg_u32 s{sWAVE}, 1
        s_cbranch_scc1 L_NOC
        v_and_b32 v{vT}, 16, v{vL}
        v_cmp_eq_u32 vcc, 0, v{vT}
        v_cndmask_b32 v{vT}, v{ck+2}, v{ck}, vcc
        v_not_b32 v{vT}, v{vT}
        v_bfe_u32 v{vT}, v{vT}, 1, 7
        v_lshlrev_b32 v{vT+2}, 3, v{vT}
        v_mul_u32_u24 v{vT}, 144, v{vT}
        v_add_u32 v{vT+2}, {L_ST2}, v{vT+2}""")
        va(vT + 1, [(0, 4, 8)])
        cx, cs, ch = sg, sg + 4, sg + 8
        a(f"""v_add_u32 v{vT}, v{vT}, v{vT+1}
        ds_read_b64 {vr(cs, 2)}, v{vT+2}
        ds_read_b64 {vr(cx, 2)}, v{vT} offset:{L_XT}""")
        va(vT + 2, [(0, 4, 16), (4, 1, 16384), (5, 1, 4096)])
        va(vT + 3, [(4, 1, 16384)])
        S(T0, 'rt*32768 + cb*256 + CAND'); S(T3, 'rt*32768 + cb*8 + 8192 + CAND')
        a(f"""v_mov_b32 v{cx+3}, s{sTAG}
        s_waitcnt lgkmcnt(0)""")
        self.unpack(ch, ch + 1, cx); self.unpack(ch + 2, ch + 3, cx + 1)
        for i in (0, 2): self.pk('add', ch + i, ch + i, cs, bc=(1,), neg=(1,))
        self.round_list([ch + i for i in range(4)])
        for i in (0, 2): self.pk('mul', ch + i, ch + i, cs + 1, bc=(1,))
        self.round_list([ch + i for i in range(4)])
        for i in (0, 2): self.pk('mul', ch + i, ch + i, ct + 4 + i)
        self.round_list([ch + i for i in range(4)])
        for i in (0, 2): self.pk('add', ch + i, ch + i, ct + i)
        a(f"""v_mov_b32 v{cx+2}, v{cx+1}
        v_mov_b32 v{cx+1}, s{sTAG}
        s_mov_b32 exec_hi, 0
        v_cvt_pk_bf16_f32 v{cx}, v{ch}, v{ch+1}
        v_cvt_pk_bf16_f32 v{cx+2}, v{ch+2}, v{ch+3}
        s_mov_b32 exec_hi, -1
        v_dot2_f32_bf16 v{cs}, v{cx}, v{ct+8}, 0
        v_mov_b32 v{cs+1}, s{sTAG}
        v_dot2_f32_bf16 v{cs}, v{cx+2}, v{ct+9}, v{cs}""")
        self.bs(cx, 4, vT + 2, rWS, T0, 0, 'sc1', count=False)
        for ctl in ('quad_perm:[1,0,3,2]', 'quad_perm:[2,3,0,1]', 'row_half_mirror', 'row_ror:8'): self.dpp('v_add_f32', cs, cs, cs, ctl)
        a('s_mov_b64 exec, 0x10001')
        self.bs(cs, 2, vT + 3, rWS, T3, 0, 'sc1', count=False)
        a("""s_mov_b64 exec, -1
        L_NOC:""")
        V.release(ct, 12)
        def ln2_tile():
            for i in E2: self.pk('add', hh + i, x1 + i, st, bc=(1,), neg=(1,))
            self.round_list([hh + i for i in range(16)])
            for i in E2: self.pk('mul', hh + i, hh + i, st + 1, bc=(1,))
            self.round_list([hh + i for i in range(16)])
            for i in E2: self.pk('mul', hh + i, hh + i, mf + 16 + i)
            self.round_list([hh + i for i in range(16)])
            for i in E2: self.pk('add', hh + i, hh + i, mf + i)
            self.round_list([hh + i for i in range(16)])
        lg.wait('s')
        if PR: a('s_setprio 0')
        self.stamp('cand')
        if o.get('ccat', 3) == 3: c_clean()
        V.release(kc, 5); V.release(cf)
        ffn_dma(fd[3])
        uu = V.alloc(16); vGr = V.alloc(); vDr = V.alloc(); vXs = V.alloc()
        def out_calc():
            expand(mf, tb4 + 2)
            for i in E2: self.pk('mul', hh + i, hh + i, mf + i)
            self.round_list([hh + i for i in range(16)])
            for i in E2: self.pk('add', hh + i, hh + i, x1 + i)
            for i in range(8): a(f'v_cvt_pk_bf16_f32 v{op+i}, v{hh+2*i}, v{hh+2*i+1}')
            for q in range(2): self.dw('ds_write_b128', vOT, op + 4 * q, 4, 16 * q)
            S(T3, 'w*(16*144) + L_OT'); va(vOT, [(3, 3, 144), (0, 3, 16)], T3)
        oc = o.get('ocat', 2 if TL else 1); l2 = o.get('l2at', 1 if TL else 0)
        def f_work():
            if TL: f_pre(0); f_pre(1)
            if l2 == 0: ln2_tile()
            if oc == 0: out_calc()
            S(T0, '(w >> 2)*32768 + (w & 3)*32 + L_GU')
            va(vGr, [(4, 2, 8192), (2, 2, 128), (3, 2, 32), (0, 2, 8)]); a(f'v_xor_b32 v{vGr}, s{T0}, v{vGr}')
            S(T0, 'w*64')
            va(vDr, [(2, 1, 512), (3, 1, 4096), (5, 1, 2048), (2, 2, 64), (4, 1, 32), (0, 2, 8)])
            a(f'v_xor_b32 v{vDr}, s{T0}, v{vDr}'); a(f'v_add_u32 v{vDr}, {L_DN}, v{vDr}')
            va(vXs, [(0, 3, 16), (4, 2, 128)], None, L_XS)
            S(T0, 'w*16 + L_K2'); a(f'v_mov_b32 v{vT}, s{T0}')
            va(vT + 1, [(0, 3, 16)], None, L_K2)
            a(f'v_and_b32 v{vT+4}, 8, v{vL}')
            a(f'v_cmp_eq_u32 {sr(sCMP, 2)}, 0, v{vT+4}')
            self.stamp('oc')
        self.inbox(5, 8, (1, 3, 5, 7), f_work)
        P = sPL
        a(f"""s_min_u32 s{P+1}, s{P}, s{P+4}
        s_max_u32 s{P}, s{P}, s{P+4}
        s_max_u32 s{P+3}, s{P+2}, s{P+6}
        s_min_u32 s{P+2}, s{P+2}, s{P+6}
        s_max_u32 s{P+4}, s{P+1}, s{P+3}
        s_min_u32 s{P+1}, s{P+1}, s{P+3}
        v_mov_b32 v{uu}, s{P}
        v_mov_b32 v{uu+3}, s{P+2}
        v_mov_b32 v{uu+1}, s{P+4}
        v_mov_b32 v{uu+2}, s{P+1}""")
        self.dw('ds_write_b128', vT, uu, 4)
        self.stamp('F2p')
        V.release(big, 8 * len(freg) + 4 * nfa); V.release(gr, 2); V.release(vGR); V.release(vRid)
        ffn = V.alloc(48); ga_ = V.alloc(16); gb_ = V.alloc(16)
        vm.wait('gu')
        self.barrier()
        self.stamp('F2')
        def gu_frags():
            for s in range(8):
                self.tr(ffn + 4 * s, vGr, s * 1024); self.tr(ffn + 4 * s + 2, vGr, s * 1024 + 512)
        a(f"""s_cmp_lt_u32 s{sWAVE}, 4
        s_cbranch_scc1 L_CSEL""")
        fq0, vq0 = list(fq), list(vm.q)
        if not o.get('f4late', 1): ffn_dma(fd[4])
        gu_frags()
        if l2 == 1: ln2_tile()
        if oc == 1: out_calc()
        if o.get('f4late', 1): ffn_dma(fd[4])
        a("""s_branch L_CSELD
        L_CSEL:""")
        lg.reset(); fq[:] = fq0; vm.q = vq0
        if PR: a(f's_setprio {PR}')
        self.r128(uu, vT + 1)
        S(T0, 'w*512 + L_XS'); a(f'v_add_u32 v{vT+2}, s{T0}, v{vL8}')
        S(T0, 'w*4 + L_K3'); a(f'v_mov_b32 v{vT+3}, s{T0}')
        lg.wait_all()
        c4 = uu + 4
        for n, ctl in enumerate(('quad_perm:[1,0,3,2]', 'quad_perm:[2,3,0,1]', 'row_half_mirror')):
            for i in range(4): self.dpp('v_max_u32', c4 + i, uu + 3 - i, uu + i, ctl)
            if n == 2: break
            a(f"""v_max_u32 v{c4+4}, v{c4}, v{c4+2}
            v_max_u32 v{c4+5}, v{c4+1}, v{c4+3}
            v_min_u32 v{c4+6}, v{c4}, v{c4+2}
            v_min_u32 v{c4+7}, v{c4+1}, v{c4+3}
            v_max_u32 v{uu}, v{c4+4}, v{c4+5}
            v_min_u32 v{uu+1}, v{c4+4}, v{c4+5}
            v_max_u32 v{uu+2}, v{c4+6}, v{c4+7}
            v_min_u32 v{uu+3}, v{c4+6}, v{c4+7}""")
        for i in range(4): a(f'v_readfirstlane_b32 s{P+i}, v{c4+i}')
        a(f"""s_bitcmp1_b32 s{sWAVE}, 0
        s_cselect_b32 s{P}, s{P+1}, s{P}
        s_cselect_b32 s{P+2}, s{P+3}, s{P+2}
        s_bitcmp1_b32 s{sWAVE}, 1
        s_cselect_b32 s{P}, s{P+2}, s{P}
        s_and_b32 s{T2}, s{P}, 4095""")
        S(T0, '((15 - (T2 >> 8))*2 + (T2 & 1))*16384 + CAND'); S(T1, 'kq*1024 + T0'); S(T0, 'T0 + 8192')
        va(vT + 6, [(0, 4, 8)])
        def sel_work():
            self.stamp('sel')
            if PR: a('s_setprio 0')
            ffn_dma(fd[4], T3)
            gu_frags()
            if l2 == 1: ln2_tile()
            if oc == 1: out_calc()
            S(T2, 'T2*4 + w')
        self.try_load(lambda: (self.bl(uu + 4, 2, vT + 6, rWS, T0, 0, 'sc1'), self.bl(uu, 4, vL16, rWS, T1, 0, 'sc1')), [uu + 1, uu + 3, uu + 5], vT + 4, sel_work)
        if PR: a(f's_setprio {PR}')
        a(f'ds_write2_b32 v{vT+2}, v{uu}, v{uu+2} offset0:0 offset1:1'); lg.issue()
        for ctl in ('quad_perm:[1,0,3,2]', 'quad_perm:[2,3,0,1]', 'row_half_mirror', 'row_ror:8'): self.dpp('v_add_f32', uu + 4, uu + 4, uu + 4, ctl)
        a(f"""v_cvt_pk_bf16_f32 v{uu+4}, 0, v{uu+4}
        v_ashrrev_i32 v{uu+5}, 31, v{uu+4}
        v_or_b32 v{uu+5}, 0x80000000, v{uu+5}
        v_xor_b32 v{uu+4}, v{uu+4}, v{uu+5}
        v_and_b32 v{uu+4}, s{sMASK}, v{uu+4}
        v_or_b32 v{uu+4}, s{T2}, v{uu+4}""")
        self.dw('ds_write_b32', vT + 3, uu + 4, 1)
        if PR: a('s_setprio 0')
        a('L_CSELD:')
        V.release(vFG); V.release(vFD)
        a(f'v_mov_b32 v{vT}, {L_K3}')
        S(T1, 'fs*8192 + HGR'); S(T7, 'mf*kh*8192 + (kq*8 + w)*256 + T1')
        self.barrier()
        self.stamp('xsel')
        self.r128(uu, vT)
        lg.wait_all()
        a(f"""v_max_u32 v{uu+4}, v{uu}, v{uu+1}
        v_max_u32 v{uu+5}, v{uu+2}, v{uu+3}
        v_min_u32 v{uu+6}, v{uu}, v{uu+1}
        v_min_u32 v{uu+7}, v{uu+2}, v{uu+3}
        v_min_u32 v{uu+1}, v{uu+4}, v{uu+5}
        v_max_u32 v{uu}, v{uu+4}, v{uu+5}
        v_max3_u32 v{uu+1}, v{uu+1}, v{uu+6}, v{uu+7}
        v_cndmask_b32 v{vT}, v{uu+1}, v{uu}, {sr(sCMP, 2)}
        v_readfirstlane_b32 s{sK1}, v{uu}
        v_and_b32 v{vT}, 3, v{vT}
        v_readfirstlane_b32 s{sK2}, v{uu+1}
        v_lshl_add_u32 v{vT}, v{vT}, 9, v{vXs}""")
        self.r128(uu + 4, vT)
        if oc < 2:
            for q in range(2): self.r128(op + 4 * q, vOT, q * 8 * 144, 'ot')
        a(f"""s_bfe_u32 s{sROW0}, s{sK1}, {3 | (11 << 16)}
        s_bfe_u32 s{sROW1}, s{sK2}, {3 | (11 << 16)}
        s_sub_u32 s{sROW0}, 2047, s{sROW0}
        s_sub_u32 s{sROW1}, 2047, s{sROW1}
        s_waitcnt lgkmcnt({2 if oc < 2 else 0})""")
        gd = [ga_ + 4 * i for i in range(4)] + [gb_ + 4 * i for i in range(4)]
        for s in range(8):
            a(f'v_mfma_f32_16x16x32_bf16 {vr(gd[s], 4)}, {vr(uu + 4, 4)}, {vr(ffn + 4*s, 4)}, 0')
        p0, p1 = uu, uu + 2
        hk = V.alloc(5, 4)
        for p, b in ((p0, 0), (p1, 4)):
            a(f'v_add_f32 v{p}, v{gd[b]}, v{gd[b+1]+1}')
            a(f'v_add_f32 v{p+1}, v{gd[b+2]+2}, v{gd[b+3]+3}')
        a(f"""v_add_f32 v{p0}, v{p0}, v{p0+1}
        v_add_f32 v{p1}, v{p1}, v{p1+1}
        v_permlane16_swap_b32 v{p1}, v{p1+1}
        v_add_f32 v{hk}, v{p0}, v{p1+1}
        v_add_f32 v{hk+2}, v{p0}, v{p1+1}
        v_mov_b32 v{hk+1}, s{sTAG}
        v_mov_b32 v{hk+3}, s{sTAG}
        v_permlane32_swap_b32 v{hk}, v{hk+2}
        s_cmp_ge_u32 s{sJ}, 28
        s_cbranch_scc1 L_NOHP
        s_mov_b64 exec, 0xffff""")
        self.bs2([(hk, 4, vL16, T7, 0)])
        a(f"""s_mov_b64 exec, -1
        L_NOHP:
        v_add_u32 v{hk+4}, s{T7}, v{vL16}""")
        self.stamp('Hpub')
        vOr = V.alloc(); vOa = V.alloc()
        def out_store():
            S(T0, 'rt*128 + w*16'); va(vOr, [(3, 3, 1)], T0)
            S(T2, 'T0*2048 + cb*128'); S(T3, 'T2 + 16384')
            va(vOa, [(3, 3, 2048), (0, 3, 16)])
            for q in range(2):
                if q: a(f'v_add_u32 v{vOr}, 8, v{vOr}')
                a(f"""v_cmp_ne_u32 vcc, s{sROW0}, v{vOr}
                v_cmp_ne_u32 {sr(sCMP, 2)}, s{sROW1}, v{vOr}
                s_and_b64 exec, vcc, {sr(sCMP, 2)}""")
                self.bs(op + 4 * q, 4, vOa, rOUT, (T2, T3)[q], 0, o.get('outmod', 'sc1'), count=False)
                a('s_mov_b64 exec, -1')
        lg.wait('ot')
        if o.get('outat', 1) == 0: assert oc < 2; out_store()
        fz = V.alloc(4)
        sFR, sFK, sFC0 = T4, T5, T6
        a(f"""s_bitcmp1_b32 s{sX if TL else sRT}, {1 if TL else 2}
        s_cselect_b32 s{sFR}, s{sROW1}, s{sROW0}
        s_cselect_b32 s{sFK}, s{sK2}, s{sK1}
        s_cmp_lg_u32 s{sWAVE}, 7
        s_cbranch_scc1 L_NOFZ
        s_cmp_lg_u32 s2, 0
        s_cbranch_scc1 L_NONON
        v_mov_b32 v{vT+2}, s{sTAG}
        s_mov_b64 exec, 1""")
        self.bs(vT + 2, 1, vZ, rWS, '0', 0, 'sc1', count=False)
        a(f"""s_mov_b64 exec, -1
        L_NONON:""")
        S(sFC0, '(x >> 2)*2 + (x & 1)' if TL else '(rt >> 3)*2 + (rt & 1)')
        S(T7, '(cb*8 + x)*(56*128) + GGR' if TL else '(cb*8 + (rt >> 2)*2 + (rt & 1))*(56*128) + GGR')
        S(sU, 'T4*2048 + cb*128 + T6*32')
        va(vT + 6, [(0, 3, 4)])
        S(T0, 'T6*32 + L_GB'); a(f'v_add_u32 v{vT+1}, s{T0}, v{vT+6}')
        a(f'ds_read_b32 v{fz+2}, v{vT+1}')
        S(sK1, '((T4 >> 7)*2 + ((T5 >> 2) & 1))*16384 + cb*256 + T6*64 + CAND'); S(sK2, 'k1 + 4096')
        va(vT + 7, [(0, 3, 8)])
        ld_fz = lambda: (self.bl(st, 2, vT + 7, rWS, sK1, 0, 'sc1'), self.bl(fz, 2, vT + 7, rWS, sK2, 0, 'sc1'))
        q_ = list(vm.q); ld_fz(); vm.q = q_
        a(f"""s_and_b32 s{T0}, s{sFK}, s{sMASK}
        s_ashr_i32 s{T2}, s{T0}, 31
        s_andn2_b32 s{T2}, 0x7fff0000, s{T2}
        s_or_b32 s{T2}, s{T2}, 0x80000000
        s_xor_b32 s{T0}, s{T0}, s{T2}
        v_mov_b32 v{fz+3}, s{T0}
        v_mul_f32 v{fz+3}, s{sL2E}, v{fz+3}
        v_exp_f32 v{fz+3}, -v{fz+3}
        v_add_f32 v{fz+3}, 1.0, v{fz+3}
        v_rcp_f32 v{fz+3}, v{fz+3}""")
        self.round1(fz + 3)
        a(f"""L_NOFZ:
        s_cmp_lt_u32 s{sJ}, 28
        s_cbranch_scc1 L_HSEC""")
        if oc == 2:
            out_calc()
            self.barrier()
            for q in range(2): self.r128(op + 4 * q, vOT, q * 8 * 144)
            lg.wait_all()
        a("""s_branch L_GSEC
        L_HSEC:""")
        a(f"""s_cmp_lt_u32 s{sWAVE}, 4
        s_cbranch_scc1 L_HW""")
        if oc == 2: out_calc()
        a("""s_branch L_NOH
        L_HW:""")
        S(T0, 'w*256 + T1')
        va(vT, [(4, 2, 2048), (0, 4, 16)])
        S(T2, 'w*32 + L_ACT'); va(vT + 1, [(5, 1, 128), (2, 1, 16), (1, 1, 8), (3, 1, 4), (0, 1, 2)], T2)
        a(f"""s_cmp_lg_u32 s{sLOC}, 0
        s_cbranch_scc1 L_HLOC""")
        self.spoll([(q, 1, T0, q * 2048 + 1024 + 252) for q in range(4)], range(4))
        a('L_HLOC:')
        self.stamp('Hpre')
        g, u = ga_, ga_ + 4
        self.try_load(lambda: [self.bl(ga_ + 4 * m, 4, vT, rWS, T0, m * 1024, 'sc1') for m in range(2)], [g + 1, g + 3, u + 1, u + 3], vT + 2, out_calc if oc == 2 else None)
        a(f"""v_permlane32_swap_b32 v{g}, v{g+2}
        v_permlane32_swap_b32 v{u}, v{u+2}
        v_add_f32 v{g}, v{g}, v{g+2}
        v_add_f32 v{u}, v{u}, v{u+2}
        v_mov_b32 v{g+2}, v{g}
        v_mov_b32 v{u+2}, v{u}
        v_permlane16_swap_b32 v{g}, v{g+2}
        v_permlane16_swap_b32 v{u}, v{u+2}
        v_add_f32 v{g}, v{g}, v{g+2}
        v_add_f32 v{u}, v{u}, v{u+2}""")
        self.round2(g, u)
        self.silu(g, vT + 2)
        a(f"""v_mul_f32 v{g}, v{g}, v{u}
        v_cvt_pk_bf16_f32 v{g}, v{g}, v{g}
        ds_write_b16 v{vT+1}, v{g}
        L_NOH:""")
        va(vT, [(2, 1, 128), (5, 1, 16)], None, L_ACT)
        va(vT + 1, [(4, 2, 56 * 128), (0, 4, 8)])
        va(vT + 2, [(0, 2, 4096)] if TL else [(0, 1, 64 * 4096), (1, 1, 2 * 4096)])
        S(T0, '(kq*8 + w)*(4*56*128) + fs*128 + GGR')
        S(T1, ('(kq*8 + w)*16384' if TL else '(((kq & 1)*4 + (w >> 1))*8 + (w & 1)*4 + (kq >> 1))*4096') + ' + x*64 + (j >> 2)*4 + INB + 3072')
        vm.wait_all()
        self.barrier()
        self.stamp('Hok')
        for s in range(4):
            self.r128(ga_ + 4 * s, vT, s * 32, ('ac', s))
            self.tr(ffn + 32 + 4 * s, vDr, s * 8192, ('ac', s)); self.tr(ffn + 32 + 4 * s + 2, vDr, s * 8192 + 1024, ('ac', s))
        for s in range(4):
            lg.wait(('ac', s))
            a(f'v_mfma_f32_32x32x16_bf16 {vr(gb_, 16)}, {vr(ga_ + 4*s, 4)}, {vr(ffn + 32 + 4*s, 4)}, ' + ('0' if s == 0 else vr(gb_, 16)))
        if oc == 2:
            for q in range(2): self.r128(op + 4 * q, vOT, q * 8 * 144)
        a(f'v_mov_b32 v{gb_+1}, s{sTAG}')
        self.bs(gb_, 2, vT + 1, rWS, T0, 0, 'sc1')
        a('s_mov_b64 exec, 15')
        self.bs(gb_ + 1, 1, vT + 2, rWS, T1, 0, 'sc1')
        a('s_mov_b64 exec, -1')
        self.stamp('Gpub')
        def hclean():
            a('s_mov_b64 exec, 0xffff')
            self.bs(hk, 4, hk + 4, rWS, '0', 0, 'sc1', count=False)
            a('s_mov_b64 exec, -1')
        if o.get('hclean', 3) == 1: hclean()
        lg.wait_all()
        a('L_GSEC:')
        if o.get('outat', 1) == 1: out_store()
        a(f"""s_cmp_lt_u32 s{sJ}, 16
        s_cbranch_scc1 L_GF""")
        if o.get('outat', 1) == 2: out_store()
        if o.get('hclean', 3) >= 2:
            a(f"""s_cmp_ge_u32 s{sJ}, 28
            s_cbranch_scc1 L_FIN
            s_waitcnt vmcnt(0)""")
            hclean()
        a("""s_branch L_FIN
        L_GF:""")
        self.inbox(6, 8, range(7))
        self.stamp('Gpre')
        a('s_barrier')
        if o.get('hclean', 3) == 2: hclean()
        if o.get('hclean', 3) == 3:
            a(f"""s_cmp_eq_u32 s{sWAVE}, 7
            s_cbranch_scc1 L_G7
            s_barrier""")
            if o.get('outat', 1) == 2: out_store()
            hclean()
            a("""s_branch L_FIN
            L_G7:""")
        a(f"""s_cmp_lg_u32 s{sWAVE}, 7
        s_cbranch_scc1 L_FIN""")
        S(T0, 'T7 + 4096')
        gg = [ga_ + 4 * i for i in range(4)] + [uu + 4 * i for i in range(3)]
        self.poll(lambda: [self.bl(gg[n], 4, vL16, rWS, (T7, T0)[n >> 2], (n & 3) * 1024, 'sc1') for n in range(7)],
                  [gg[n] + 1 + 2 * e for n in range(7) for e in range(2)], vT)
        self.finish_load(None, ld_fz, [st + 1, fz + 1], vT)
        self.stamp('Gok')
        if o.get('hclean', 3) == 3: a('s_barrier')
        y0, y1 = gg[0], gg[0] + 1
        for lo, hi in ((0, 1), (2, 3), (4, 5), (0, 2), (4, 6), (0, 4)):
            for e in (0, 2): a(f'v_add_f32 v{gg[lo]+e}, v{gg[lo]+e}, v{gg[hi]+e}')
        a(f'v_mov_b32 v{y1}, v{gg[0]+2}')
        for y in (y0, y1): self.dpp('v_add_f32', y, y, y, 'row_ror:8')
        for sw in ('v_permlane16_swap_b32', 'v_permlane32_swap_b32'):
            for y in (y0, y1): a(f'v_mov_b32 v{y+2}, v{y}')
            for y in (y0, y1): a(f'{sw} v{y}, v{y+2}')
            self.pk('add', y0, y0, y0 + 2)
        self.round2(y0, y1)
        self.pk('mul', y0, y0, fz + 3, bc=(1,))
        self.unpack(vT, vT + 1, st)
        self.round2(y0, y1)
        self.pk('add', y0, y0, vT)
        self.unpack(vT, vT + 1, fz + 2)
        self.round2(y0, y1)
        self.pk('mul', y0, y0, vT)
        self.unpack(vT, vT + 1, fz)
        self.round2(y0, y1)
        self.pk('add', y0, y0, vT)
        a(f'v_cvt_pk_bf16_f32 v{y0}, v{y0}, v{y1}')
        a('s_mov_b64 exec, 0xff')
        self.bs(y0, 1, vT + 6, rOUT, sU, 0, 'sc1')
        a('s_mov_b64 exec, -1')
        if o.get('outat', 1) == 2: out_store()
        if o.get('hclean', 3) == 3: hclean()
        a('L_FIN:')
        if o.get('exfil'):
            self.stamp('fin')
            a('s_waitcnt vmcnt(0)')
            self.stamp('finw')
            a(f'''s_lshl3_add_u32 s{T0}, s2, s{sWAVE}
            s_cmp_lg_u32 s{T0}, {o.get('exwho', 7)}
            s_cbranch_scc1 L_END
            v_readlane_b32 s{T0}, v255, 0
            v_readlane_b32 s{T1}, v255, 1
            v_readlane_b32 s{T2}, v255, 2
            s_sub_u32 s{T2}, s{T2}, s{T1}
            s_max_i32 s{T2}, s{T2}, 0
            s_min_u32 s{T2}, s{T2}, 10000
            s_mul_i32 s{T2}, s{T2}, 10
            s_add_u32 s{T2}, s{T2}, 6000
            L_PAD:
            s_memrealtime {sr(sTM, 2)}
            s_waitcnt lgkmcnt(0)
            s_sub_u32 s{T1}, s{sTM}, s{T0}
            s_cmp_lt_u32 s{T1}, s{T2}
            s_cbranch_scc1 L_PAD''')
        if o.get('padfin'):
            a(f'''s_lshl3_add_u32 s{T0}, s2, s{sWAVE}
            s_cmp_lg_u32 s{T0}, 7
            s_cbranch_scc1 L_END
            s_memrealtime {sr(sTM, 2)}
            s_waitcnt lgkmcnt(0)
            s_mov_b32 s{T0}, s{sTM}
            L_PAD2:
            s_memrealtime {sr(sTM, 2)}
            s_waitcnt lgkmcnt(0)
            s_sub_u32 s{T1}, s{sTM}, s{T0}
            s_cmp_lt_u32 s{T1}, {o['padfin']}
            s_cbranch_scc1 L_PAD2''')
        if self.prof:
            a('s_waitcnt vmcnt(0) lgkmcnt(0)')
            self.stamp('end')
            a(f's_memrealtime {sr(sTM, 2)}')
            a('s_waitcnt lgkmcnt(0)')
            a(f'v_writelane_b32 v255, s{sTM}, 61')
            S(T0, '(wg*8 + w)*256 + STAMPS')
            a(f'v_writelane_b32 v255, s{sSPIN}, 62')
            a(f'v_lshlrev_b32 v{vT+1}, 2, v{vL}')
            a(f'buffer_store_dword v255, v{vT+1}, {sr(rWS, 4)}, s{T0} offen')
            S(T0, 'T0 + 0x100000')
            a(f'buffer_store_dword v254, v{vT+1}, {sr(rWS, 4)}, s{T0} offen')
        a('L_END:')
        a('s_endpgm')
        return self

    def text(self):
        a = self.a
        npad = a.fix_hazards()
        errs = a.check_waits([NAME])
        for e in errs: print('WAITERR', e, file=sys.stderr)
        assert not errs
        hdr = open(os.path.join(os.path.dirname(os.path.abspath(__file__)), 'header.txt')).read()
        s = hdr + '; @launch grid=(256,1,1) block=(512,1,1) lds=163840\n'
        s += '.amdgcn_target "amdgcn-amd-amdhsa--gfx950"\n.text\n'
        s += f'.globl {NAME}\n.p2align 8\n.type {NAME},@function\n'
        body = a.text()
        import subprocess, tempfile
        with tempfile.TemporaryDirectory() as td:
            open(td + '/t.s', 'w').write('.amdgcn_target "amdgcn-amd-amdhsa--gfx950"\n.text\n' + body.replace('CODE_KB', '20480'))
            subprocess.run(['clang', '-x', 'assembler', '-target', 'amdgcn-amd-amdhsa', '-mcpu=gfx950', '-c', td + '/t.s', '-o', td + '/t.o'], check=True)
            subprocess.run(['llvm-objcopy', '-O', 'binary', '-j', '.text', td + '/t.o', td + '/t.bin'], check=True)
            size = os.path.getsize(td + '/t.bin')
        print('; code bytes', size, file=sys.stderr)
        s += body.replace('CODE_KB', str((size // 1024 + 1) * 1024))
        s += '.p2align 10\n.fill 768, 4, 0xbf800000\n'
        s += '.section .rodata,"a"\n' + kernel_desc(NAME, 256, 102)
        print(f'; vgpr hi {self.V.hi}, nops {npad}, instrs {sum(1 for k, _ in a.items if k == "ins")}', file=sys.stderr)
        return s


if __name__ == '__main__':
    import argparse, json
    ap = argparse.ArgumentParser()
    ap.add_argument('-o', default='/dev/stdout')
    ap.add_argument('--prof', action='store_true')
    ap.add_argument('--opts', default='{}')
    args = ap.parse_args()
    g = Gen(args.prof, json.loads(args.opts)).build()
    t = g.text()
    open(args.o, 'w').write(t)
    if args.prof: open(args.o + '.stamps', 'w').write(json.dumps(g.stnames))
```

```python
import sys, os
sys.path.insert(0, os.path.dirname(os.path.abspath(__file__)))
from asm import *

NAME = 'adaLN_cond__linear_kernel_hedgehog__moe_arch_mod__prompt_kernel'

NONCE = 0x0
CFL = 0x8000
MARK = 0x100
GR = 0x010000
MODP2 = 0x020000
SINB = 0x040000
AINB = 0x080000
INA = 0x200000
INB = 0x100000
HF = 0x400000
OF = 0x800000
STAT = 0xC00000
CAND = 0x2000000
HGR = 0x1400000
ZP = 0x1480000
GGR = 0x1500000
KVP = 0x1800000
KIN = 0x1C00000
STAMPS = 0x1600000
WS_BYTES = 268435456

SEC = 8320
SLOT = 3 * SEC
SCR = 6 * SLOT
L_A1 = SCR
L_M2 = SCR + 1024
L_ST = SCR + 2048
L_MP = SCR + 2560
L_WPHI = SCR + 6656
L_MB = SCR + 10752
L_XF = 147456
L_PHK = 0
L_V = 32768
WO_H0 = 32768
WO_H1 = 98304
GS = 0
L_KVF = GS
L_ZF = GS + 8192
L_EXCH = GS
L_MT = 139264
L_GU = 32768
L_DN = 98304
TS = 131072
L_SP = TS
L_ST2 = TS + 4096
L_K1 = TS + 5120
L_K2 = TS + 5184
L_K3 = TS + 5312
L_XS = TS + 5632
L_ACT = TS + 7680
L_TB = TS + 7936
L_GB = L_TB + 256
L_OT = TS + 8704
L_XT = GS

SPIN_LIMIT = 300000

sWAVE, sTAG, sSPIN, sMASK, sL2E = 3, 4, 5, 6, 7
sX, sJ, sR1, sHP, sCB = 8, 9, 10, 11, 12
T0, T1, T2, T3, T4, T5, T6, T7 = 13, 14, 15, 16, 17, 18, 19, 20
sRT = 21
sCMP = 22
sPL = 24
rWS, rX, rW, rWO, rWM, rWG, rWU, rWD, rOUT = 32, 36, 40, 44, 48, 52, 56, 60, 64
KA = 68
pWPHI, pWR, pC = KA + 4, KA + 10, KA + 18
sK1, sK2, sROW0, sROW1, sFS, sKQ, sKH, sKF = 68, 69, 70, 71, 74, 75, 76, 77
sFG, sFD, sU, sROT, sWB, sU0 = 80, 81, 82, 83, 84, 85
sWO2, sW1K, sMF = 88, 89, 90
sINB, sRow, sGTB, sC32 = 92, 93, 94, 95
sWC = 91
sXC = 94
pDBG = 30
sLOC = 93
XT = (96, 97, 98, 99)
sTM = 100
ENV = dict(wg=2, w=sWAVE, x=sX, j=sJ, r1=sR1, hp=sHP, cb=sCB, rt=sRT, row=sRow, gtb=sGTB, c32=sC32, kh=sKH, kf=sKF, fs=sFS, kq=sKQ,
           rot=sROT, wb=sWB, u0=sU0, wo2=sWO2, w1k=sW1K, mf=sMF, u=sU, fg=sFG, fd=sFD, T0=T0, T1=T1, T2=T2, T3=T3, T4=T4, T5=T5, T6=T6, T7=T7, row0=sROW0, row1=sROW1, k1=sK1, xc=sXC)


class Gen:
    def __init__(self, prof=False, opts=None):
        self.a = Asm()
        self.vm = Counter(self.a, 'vmcnt', 63)
        self.lg = Counter(self.a, 'lgkmcnt', 15)
        self.V = RegAlloc(254, 1)
        self.prof = prof
        self.nopk = False
        self.nst = 0
        self.stnames = []
        self.S = SExpr(self.a, ENV, {k: v for k, v in globals().items() if isinstance(v, int) and k.isupper() and k not in ENV}, XT)
        self.o = dict(AD=13, LOOK=6, wev=2, AD2=8, A20=6, wburst=(0, 3, 0, 0, 6, 6), wxor=3, LASTB=14, wsch={2: 6, 3: 3, 4: 6, 5: 3, 6: 6, 7: 3, 8: 6, 9: 6, 10: 6, 11: 6, 12: 6, 13: 3},
                      sched={1: 'm1 p2', 2: 's4', 3: 'm1', 4: 's4 p2', 5: 'm1', 6: 'g1', 7: 'm1 h p3', 8: 'g1', 9: 'g1', 10: 'g1', 11: 'g2', 12: 'g2', 13: 'R r1', 14: 'P K o4 f4', 15: 'f2'}, fdma=(3, 0, 1, 1, 1), wowin=(6, 0, 3))
        if opts: self.o.update(opts)

    def bl(self, dst, n, voff, srd, soff, imm=0, mods='', tag=None):
        op = {1: 'dword', 2: 'dwordx2', 4: 'dwordx4'}[n]
        so = soff if isinstance(soff, str) else (sr(soff))
        self.a(f'buffer_load_{op} {vr(dst, n)}, v{voff}, {sr(srd, 4)}, {so} offen' + (f' offset:{imm}' if imm else '') + (' ' + mods if mods else ''))
        self.vm.issue(tag)
    def bs(self, src, n, voff, srd, soff, imm=0, mods='', tag=None, count=True):
        op = {1: 'dword', 2: 'dwordx2', 4: 'dwordx4'}[n]
        so = soff if isinstance(soff, str) else (sr(soff))
        self.a(f'buffer_store_{op} {vr(src, n)}, v{voff}, {sr(srd, 4)}, {so} offen' + (f' offset:{imm}' if imm else '') + (' ' + mods if mods else ''))
        if count: self.vm.issue(tag)
    def bs2(self, items):
        a = self.a
        LL, D = a.label('LOC'), a.label('LOCD')
        a(f's_cmp_lg_u32 s{sLOC}, 0')
        a(f's_cbranch_scc1 {LL}')
        for src, n, voff, soff, imm in items: self.bs(src, n, voff, rWS, soff, imm, 'sc1', count=False)
        a(f's_branch {D}')
        a(f'{LL}:')
        for src, n, voff, soff, imm in items: self.bs(src, n, voff, rWS, soff, imm, '', count=False)
        a(f'{D}:')
    def dma(self, voff, srd, soff, imm=0, mods='', tag=None):
        self.a(f'buffer_load_dwordx4 v{voff}, {sr(srd, 4)}, {sr(soff)} offen' + (f' offset:{imm}' if imm else '') + (' ' + mods if mods else '') + ' lds')
        self.vm.issue(tag)
    def dr(self, op, dst, n, addr, off=0, tag=None):
        assert 0 <= off < 65536, off
        self.a(f'{op} {vr(dst, n)}, v{addr}' + (f' offset:{off}' if off else ''))
        self.lg.issue(tag)
    def tr(self, dst, addr, off, tag=None): self.dr('ds_read_b64_tr_b16', dst, 2, addr, off, tag)
    def r128(self, dst, addr, off=0, tag=None): self.dr('ds_read_b128', dst, 4, addr, off, tag)
    def dw(self, op, addr, src, n, off=0, tag=None):
        assert 0 <= off < 65536, off
        self.a(f'{op} v{addr}, {vr(src, n)}' + (f' offset:{off}' if off else ''))
        self.lg.issue(tag)
    def barrier(self):
        self.lg.wait_all()
        self.a('s_barrier')
    def stamp(self, name):
        ex = self.o.get('exfil')
        if ex and name in ex[:2]:
            self.a(f's_memrealtime {sr(sTM, 2)}')
            self.lg.wait_all()
            self.a(f'v_writelane_b32 v255, s{sTM}, {1 + ex.index(name)}')
        if not self.prof: return
        only = self.o.get('only')
        if only and name not in only and name != 'end': return
        self.a(f's_memtime {sr(sTM, 2)}')
        self.a(f's_memrealtime s[0:1]')
        self.lg.wait_all()
        self.a(f'v_writelane_b32 v255, s{sSPIN if self.o.get("spinst") and self.nst > 3 else sTM}, {self.nst}')
        self.a(f'v_writelane_b32 v254, s0, {self.nst}')
        self.stnames.append(name)
        self.nst += 1
        assert self.nst <= 60
    def unpack(self, lo, hi, src):
        self.a(f'v_lshlrev_b32 v{lo}, 16, v{src}')
        self.a(f'v_and_b32 v{hi}, s{sMASK}, v{src}')
    def round1(self, r):
        self.a(f'v_cvt_pk_bf16_f32 v{r}, 0, v{r}')
    def round2(self, r0, r1):
        self.round1(r0); self.round1(r1)
    def round_list(self, regs):
        for r in regs: self.round1(r)
    def pk(self, op, d, s0, s1, s2=None, bc=(), neg=()):
        srcs = [s0, s1] + ([s2] if s2 is not None else [])
        if self.nopk:
            for h in range(2):
                t = []
                for k, r in enumerate(srcs):
                    kind, n = r if isinstance(r, tuple) else ('v', r)
                    t.append(('-' if k in neg else '') + f'{kind}{n if k in bc else n + h}')
                e64 = '' if op == 'fma' else ('_e64' if (neg or t[1][0] == 's') else '')
                self.a(f'v_{op}_f32{e64} v{d+h}, ' + ', '.join(t))
            return
        txt, sel, selhi = [], [], []
        for k, r in enumerate(srcs):
            kind, n = r if isinstance(r, tuple) else ('v', r)
            if k in bc:
                txt.append(f'{kind}[{n & ~1}:{(n & ~1) + 1}]'); sel.append(n & 1); selhi.append(n & 1)
            else:
                assert n % 2 == 0
                txt.append(f'{kind}[{n}:{n+1}]'); sel.append(0); selhi.append(1)
        assert d % 2 == 0
        m = ''
        if any(sel): m += ' op_sel:[' + ','.join(map(str, sel)) + ']'
        if not all(selhi): m += ' op_sel_hi:[' + ','.join(map(str, selhi)) + ']'
        if neg:
            ng = ','.join('1' if k in neg else '0' for k in range(len(srcs)))
            m += f' neg_lo:[{ng}] neg_hi:[{ng}]'
        self.a(f'v_pk_{op}_f32 v[{d}:{d+1}], ' + ', '.join(txt) + m)
    def dpp(self, op, d, s0, s1, ctl):
        self.a(f'{op}_dpp v{d}, v{s0}, v{s1} {ctl} row_mask:0xf bank_mask:0xf')
    def allreduce(self, v, t, op='v_add_f32', lo=True, b3=True):
        if lo:
            self.dpp(op, v, v, v, 'quad_perm:[1,0,3,2]')
            self.dpp(op, v, v, v, 'quad_perm:[2,3,0,1]')
            self.dpp(op, v, v, v, 'row_half_mirror')
        self.dpp(op, v, v, v, 'row_ror:8')
        self.a(f'v_mov_b32 v{t}, v{v}')
        self.a(f'v_permlane16_swap_b32 v{v}, v{t}')
        self.a(f'{op} v{v}, v{v}, v{t}')
        self.a(f'v_mov_b32 v{t}, v{v}')
        self.a(f'v_permlane32_swap_b32 v{v}, v{t}')
        self.a(f'{op} v{v}, v{v}, v{t}')
    def poll(self, loads, tagregs, tmp=None):
        a = self.a
        L, D = a.label('POLL'), a.label('PDONE')
        a(f'{L}:')
        loads()
        self.vm.wait_all()
        self.tagcheck(tagregs, tmp)
        a(f's_cbranch_vccz {D}')
        a(f's_add_u32 s{sSPIN}, s{sSPIN}, 1')
        a(f's_cmp_lt_u32 s{sSPIN}, {SPIN_LIMIT}')
        a(f's_cbranch_scc1 {L}')
        a(f'{D}:')
    def weave(self, fn, extras):
        a = self.a
        keep = a.items; a.items = []
        fn()
        body = a.items; a.items = keep
        extras = list(extras); n = len(extras)
        for i, it in enumerate(body):
            while extras and (n - len(extras)) * len(body) <= i * n: extras.pop(0)()
            a.items.append(it)
        for e in extras: e()
    def tagcheck(self, tagregs, tmp):
        a = self.a
        if tagregs[0] == 'nan':
            if len(tagregs) == 3: a(f'v_max_u32 v{tmp}, v{tagregs[1]}, v{tagregs[2]}')
            a(f'v_cmp_eq_u32 vcc, -1, v{tmp if len(tagregs) == 3 else tagregs[1]}')
        elif len(tagregs) == 1:
            a(f'v_cmp_ne_u32 vcc, s{sTAG}, v{tagregs[0]}')
        else:
            a(f'v_bitop3_b32 v{tmp}, v{tagregs[0]}, v{tagregs[1]}, s{sTAG} bitop3:0x7e')
            for t in tagregs[2:]: a(f'v_bitop3_b32 v{tmp}, v{tmp}, v{t}, s{sTAG} bitop3:0xf6')
            a(f'v_cmp_ne_u32 vcc, 0, v{tmp}')
    def try_load(self, loads, tagregs, tmp=None, between=None, pre=None):
        a = self.a
        n0 = len(self.vm.q)
        loads()
        self.vm.q[-1] = tg = ('try', a.label('T'))
        if between: between()
        self.vm.wait(tg)
        OK = a.label('TOK')
        self.tagcheck(tagregs, tmp)
        a(f's_cbranch_vccz {OK}')
        q, l = list(self.vm.q), list(self.lg.q)
        if pre: pre()
        self.poll(loads, tagregs, tmp)
        self.vm.q, self.lg.q = q, l
        a(f'{OK}:')
    def finish_load(self, tg, loads, tagregs, tmp=None, pre=None):
        a = self.a
        self.vm.wait(tg)
        OK = a.label('TOK')
        self.tagcheck(tagregs, tmp)
        a(f's_cbranch_vccz {OK}')
        q, l = list(self.vm.q), list(self.lg.q)
        if pre: pre()
        self.poll(loads, tagregs, tmp)
        self.vm.q, self.lg.q = q, l
        a(f'{OK}:')
    def spoll(self, loads, checks, work=None, pipe=0):
        a = self.a
        L, C, D = a.label('SPOLL'), a.label('SCHK'), a.label('SDONE')
        def issue(note=''):
            for d, n, so, imm in loads:
                op = {1: 'dword', 2: 'dwordx2', 4: 'dwordx4', 8: 'dwordx8'}[n]
                a(f's_load_{op} {sr(sPL + d, n)}, {sr(rWS, 2)}, s{so} offset:{imm} glc' + note)
        if pipe:
            self.lg.wait_all()
            for k in checks: a(f's_not_b32 s{sPL + k}, s{sTAG}')
            issue(' ; nowait')
            if work: work()
            a(f'{L}:')
            a(f's_add_u32 s{sSPIN}, s{sSPIN}, 1')
            a(f's_cmp_ge_u32 s{sSPIN}, {SPIN_LIMIT}')
            a(f's_cbranch_scc1 {D}')
            ks = list(checks)
            a(f's_xor_b32 s{XT[0]}, s{sPL + ks[0]}, s{sTAG} ; nowait')
            for k in ks[1:]:
                a(f's_xor_b32 s{XT[1]}, s{sPL + k}, s{sTAG} ; nowait')
                a(f's_or_b32 s{XT[0]}, s{XT[0]}, s{XT[1]}')
            a(f's_cbranch_scc0 {D}')
            issue(' ; nowait')
            a(f's_sleep {pipe}')
            a(f's_branch {L}')
            a(f'{D}:')
            return
        if work:
            issue(); work()
            a(f's_branch {C}')
        a(f'{L}:')
        issue()
        a(f'{C}:')
        a(f's_add_u32 s{sSPIN}, s{sSPIN}, 1')
        a(f's_cmp_ge_u32 s{sSPIN}, {SPIN_LIMIT}')
        self.lg.wait_all()
        a(f's_cbranch_scc1 {D}')
        for k in checks:
            a(f's_cmp_lg_u32 s{sPL + k}, s{sTAG}')
            a(f's_cbranch_scc1 {L}')
        a(f'{D}:')
    def inbox(self, box, n, checks=None, work=None, pipe=0):
        self.spoll([(0, n, sINB, box * 512)], range(n) if checks is None else checks, work, pipe)
    def va(self, dst, terms, sreg=None, const=0, tmp=None):
        a = self.a; vL = self.vL
        first = True
        for sh, bits, mult in terms:
            full = sh + bits >= 6
            src = vL
            t = dst if first else tmp
            if sh == 0 and full: pass
            elif full: a(f'v_lshrrev_b32 v{t}, {sh}, v{vL}'); src = t
            elif sh == 0: a(f'v_and_b32 v{t}, {(1 << bits) - 1}, v{vL}'); src = t
            else: a(f'v_bfe_u32 v{t}, v{vL}, {sh}, {bits}'); src = t
            p2 = mult & (mult - 1) == 0
            k = mult.bit_length() - 1
            if first:
                if p2 and sreg is not None: a(f'v_lshl_add_u32 v{dst}, v{src}, {k}, s{sreg}'); sreg = None
                elif p2 and k: a(f'v_lshlrev_b32 v{dst}, {k}, v{src}')
                elif p2:
                    if src != dst: a(f'v_mov_b32 v{dst}, v{src}')
                else: a(f'v_mul_u32_u24 v{dst}, {mult}, v{src}')
            else:
                assert p2
                a(f'v_lshl_add_u32 v{dst}, v{src}, {k}, v{dst}')
            first = False
        if sreg is not None: a(f'v_add_u32 v{dst}, s{sreg}, v{dst}')
        if const: a(f'v_add_u32 v{dst}, {const}, v{dst}')
    def push(self, vaddr, soff, nl, vtmp, lab, wave=0):
        a = self.a
        a(f's_cmp_lg_u32 s{sWAVE}, {wave}')
        a(f's_cbranch_scc1 {lab}')
        a(f'v_mov_b32 v{vtmp}, s{sTAG}')
        a(f's_mov_b32 exec_hi, 0')
        if nl < 32: a(f's_mov_b32 exec_lo, {(1 << nl) - 1}')
        self.bs(vtmp, 1, vaddr, rWS, soff, 0, 'sc1', count=False)
        a('s_mov_b64 exec, -1')
        a(f'{lab}:')
    def silu(self, v, t):
        a = self.a
        a(f'v_mul_f32 v{t}, s{sL2E}, v{v}')
        a(f'v_exp_f32 v{t}, -v{t}')
        a(f'v_add_f32 v{t}, 1.0, v{t}')
        a(f'v_rcp_f32 v{t}, v{t}')
        a(f'v_mul_f32 v{v}, v{v}, v{t}')
        self.round1(v)
    def gemv_ops(self, wregs, cregs, acc, t0, t1, packed):
        ops = []
        assert t0 % 2 == 0 and t1 == t0 + 1
        for i, (w, c) in enumerate(zip(wregs, cregs)):
            cp = f'v[{c & ~1}:{(c & ~1) + 1}]'
            for d in range(4):
                tt = t0 + 2 * (d & 1)
                ops.append(f'v_lshlrev_b32 v{tt}, 16, v{w+d}')
                ops.append(f'v_and_b32 v{tt+1}, s{sMASK}, v{w+d}')
                ac = f'v[{acc+2*d}:{acc+2*d+1}]'
                if not packed:
                    for h in range(2): ops.append(f'v_mul_f32 v{acc+2*d+h}, v{tt+h}, v{c}' if i == 0 else f'v_fmac_f32 v{acc+2*d+h}, v{tt+h}, v{c}')
                elif i == 0: ops.append(f'v_pk_mul_f32 {ac}, v[{tt}:{tt+1}], {cp} op_sel:[0,{c & 1}] op_sel_hi:[1,{c & 1}]')
                else: ops.append(f'v_pk_fma_f32 {ac}, v[{tt}:{tt+1}], {cp}, {ac} op_sel:[0,{c & 1},0] op_sel_hi:[1,{c & 1},1]')
        for i in range(4): ops.append(f'v_permlane32_swap_b32 v{acc+i}, v{acc+4+i}')
        for i in range(4): ops.append(f'v_add_f32 v{acc+i}, v{acc+i}, v{acc+4+i}')
        for i in range(2): ops.append(f'v_permlane16_swap_b32 v{acc+i}, v{acc+2+i}')
        for i in range(2): ops.append(f'v_add_f32 v{acc+i}, v{acc+i}, v{acc+2+i}')
        for i in range(2): ops.append(f'v_add_f32_dpp v{acc+i}, v{acc+i}, v{acc+i} row_ror:8 row_mask:0xf bank_mask:0xf')
        ops.append(f'v_mov_b32_dpp v{acc}, v{acc+1} quad_perm:[0,1,2,3] row_mask:0xf bank_mask:0xc')
        return ops
    def sum8(self, b):
        self.pk('add', b, b, b + 2); self.pk('add', b + 4, b + 4, b + 6); self.pk('add', b, b, b + 4)
        self.a(f'v_add_f32 v{b}, v{b}, v{b+1}')
    def softmax_pm(self, p, e, out, t, mid=None, part=0, split=0):
        a = self.a
        mx, mn, u0, u1, s0, s1 = t, t + 1, t + 2, t + 3, t + 4, t + 6
        if part != 2:
            self.round_list([p + i for i in range(16)])
            a(f'v_max3_f32 v{mx}, v{p}, v{p+1}, v{p+2}')
            a(f'v_min3_f32 v{mn}, v{p}, v{p+1}, v{p+2}')
            for i in range(3, 15, 2):
                a(f'v_max3_f32 v{mx}, v{mx}, v{p+i}, v{p+i+1}')
                a(f'v_min3_f32 v{mn}, v{mn}, v{p+i}, v{p+i+1}')
            a(f'v_max_f32 v{u0}, v{mx}, v{p+15}')
            a(f'v_min_f32 v{u1}, v{mn}, v{p+15}')
            a(f'v_max_f32 v{mx}, v{mx}, v{p+15}')
            a(f'v_min_f32 v{mn}, v{mn}, v{p+15}')
            a(f'v_permlane32_swap_b32 v{mx}, v{u0}')
            a(f'v_permlane32_swap_b32 v{mn}, v{u1}')
            a(f'v_max_f32 v{mx}, v{mx}, v{u0}')
            a(f'v_min_f32 v{mn}, v{mn}, v{u1}')
            self.pk('mul', mx, mx, ('s', sL2E), bc=(1,))
            for i in range(0, 16, 2):
                self.pk('fma', e + i, p + i, ('s', sL2E), mx, bc=(1, 2), neg=(2,))
                self.pk('fma', p + i, p + i, ('s', sL2E), mn, bc=(1, 2), neg=(0,))
        for i in range(split if part == 2 else 0, 16):
            if mid and i == mid[0]: mid[1]()
            if part == 1 and i == split: return
            a(f'v_exp_f32 v{e+i}, v{e+i}')
            a(f'v_exp_f32 v{p+i}, v{p+i}')
        self.pk('add', s0, e, e + 2); self.pk('add', s1, p, p + 2)
        for i in range(4, 16, 2):
            self.pk('add', s0, s0, e + i); self.pk('add', s1, s1, p + i)
        a(f'v_add_f32 v{u0}, v{s0}, v{s0+1}')
        a(f'v_add_f32 v{u1}, v{s1}, v{s1+1}')
        a(f'v_add_f32 v{mx}, v{s0}, v{s0+1}')
        a(f'v_add_f32 v{mn}, v{s1}, v{s1+1}')
        a(f'v_permlane32_swap_b32 v{mx}, v{u0}')
        a(f'v_permlane32_swap_b32 v{mn}, v{u1}')
        self.pk('add', mx, mx, u0)
        a(f'v_rcp_f32 v{mx}, v{mx}')
        a(f'v_rcp_f32 v{mn}, v{mn}')
        for i in range(0, 16, 2):
            self.pk('mul', e + i, e + i, mx, bc=(1,))
            self.pk('mul', p + i, p + i, mn, bc=(1,))
        for i in range(8):
            a(f'v_cvt_pk_bf16_f32 v{out+i}, v{e+2*i}, v{e+2*i+1}')
            a(f'v_cvt_pk_bf16_f32 v{out+8+i}, v{p+2*i}, v{p+2*i+1}')
    def ln_stats(self, xp, t, m_out, sd_out, fill=()):
        a = self.a
        fill = list(fill)
        def pad(n):
            for _ in range(n):
                if fill: a(fill.pop(0))
        s, u = t, t + 4
        a(f'v_mov_b32 v{u}, 0x3f803f80')
        for i in range(8):
            k = 2 * (i & 1)
            a(f'v_dot2_f32_bf16 v{s+k}, v{xp+i}, v{u}, ' + ('0' if i < 2 else f'v{s+k}'))
            a(f'v_dot2_f32_bf16 v{s+k+1}, v{xp+i}, v{xp+i}, ' + ('0' if i < 2 else f'v{s+k+1}'))
        pad(3)
        self.pk('add', s, s, s + 2)
        for ctl in ('quad_perm:[1,0,3,2]', 'quad_perm:[2,3,0,1]', 'row_half_mirror', 'row_ror:8'):
            pad(2 if ctl.endswith('3,2]') else 1)
            self.dpp('v_add_f32', s, s, s, ctl); self.dpp('v_add_f32', s + 1, s + 1, s + 1, ctl)
        pad(2)
        a(f'v_permlane16_swap_b32 v{s}, v{s+1}')
        a(f'v_add_f32 v{u}, v{s}, v{s+1}')
        a(f'v_add_f32 v{s}, v{s}, v{s+1}')
        pad(2)
        a(f'v_permlane32_swap_b32 v{s}, v{u}')
        a(f'v_add_f32 v{s}, v{s}, v{u}')
        a(f'v_mul_f32 v{u}, 0x3a800000, v{s}')
        a(f'v_mul_f32 v{s}, 0x3a800000, v{s}')
        pad(2)
        a(f'v_permlane16_swap_b32 v{s}, v{u}')
        a(f'v_fma_f32 v{sd_out}, -v{s}, v{s}, v{u}')
        a(f'v_cvt_pk_bf16_f32 v{m_out}, 0, v{s}')
        a(f'v_max_f32 v{sd_out}, 0, v{sd_out}')
        self.round1(sd_out)
        a(f'v_add_f32 v{sd_out}, 0x3727c5ac, v{sd_out}')
        self.round1(sd_out)
        a(f'v_sqrt_f32 v{sd_out}, v{sd_out}')
        pad(99)
        self.round1(sd_out)

    def stat_math(self, s, u, m_out, sd_out):
        a = self.a
        a(f'v_fma_f32 v{sd_out}, -v{s}, v{s}, v{u}')
        a(f'v_cvt_pk_bf16_f32 v{m_out}, 0, v{s}')
        a(f'v_max_f32 v{sd_out}, 0, v{sd_out}')
        self.round1(sd_out)
        a(f'v_add_f32 v{sd_out}, 0x3727c5ac, v{sd_out}')
        self.round1(sd_out)
        a(f'v_sqrt_f32 v{sd_out}, v{sd_out}')
        self.round1(sd_out)
    def ln_stats2(self, x0, x1, t, m_out, sd_out):
        a = self.a
        s0, s1, q0, q1, u = t, t + 1, t + 2, t + 3, t + 4
        a(f'v_mov_b32 v{u}, 0x3f803f80')
        for i in range(8):
            for xx, s_, q_ in ((x0, s0, q0), (x1, s1, q1)):
                a(f'v_dot2_f32_bf16 v{s_}, v{xx+i}, v{u}, ' + ('0' if i == 0 else f'v{s_}'))
                a(f'v_dot2_f32_bf16 v{q_}, v{xx+i}, v{xx+i}, ' + ('0' if i == 0 else f'v{q_}'))
        a(f"""v_permlane32_swap_b32 v{s0}, v{s1}
        v_permlane32_swap_b32 v{q0}, v{q1}
        v_add_f32 v{s0}, v{s0}, v{s1}
        v_add_f32 v{q0}, v{q0}, v{q1}
        v_permlane16_swap_b32 v{s0}, v{q0}
        v_add_f32 v{s0}, v{s0}, v{q0}""")
        for ctl in ('quad_perm:[1,0,3,2]', 'quad_perm:[2,3,0,1]', 'row_half_mirror', 'row_ror:8'): self.dpp('v_add_f32', s0, s0, s0, ctl)
        a(f"""v_mul_f32 v{q0}, 0x3a800000, v{s0}
        v_mul_f32 v{s0}, 0x3a800000, v{s0}
        v_permlane16_swap_b32 v{s0}, v{q0}""")
        self.stat_math(s0, q0, m_out, sd_out)

    def build(self):
        a, V, vm, lg, o, S = self.a, self.V, self.vm, self.lg, self.o, self.S
        E2 = range(0, 16, 2)
        TL = o.get('tl', 0)
        HL = o.get('hl', 1)
        D2 = o.get('d2', 1)
        LCB = [(0, 4, 8 * 4096)] if TL else [(0, 3, 8 * 4096), (3, 1, 4096)]
        a(f'{NAME}:')
        a(f's_load_dwordx16 {sr(KA, 16)}, s[0:1], 0')
        a(f's_load_dwordx8 {sr(KA + 16, 8)}, s[0:1], 64')
        a(f's_load_dwordx2 {sr(rWS, 2)}, s[0:1], 104')
        a(f's_load_dwordx2 {sr(pDBG, 2)}, s[0:1], 96')
        a('s_cmp_ge_u32 s2, 256')
        a('s_cbranch_scc1 L_END')
        if self.prof:
            a(f's_memrealtime {sr(sCMP, 2)}')
            a(f's_memtime {sr(sTM, 2)}')
            a('v_mov_b32 v255, 0')
            a('v_mov_b32 v254, 0')
            self.stnames.append('start'); self.nst = 1
        if o.get('exfil'): a(f's_memrealtime {sr(sTM, 2)}')
        vL = self.vL = V.alloc()
        vL16 = V.alloc()
        vZ = V.alloc()
        vT = V.alloc(8)
        va = lambda dst, terms, sreg=None, const=0: self.va(dst, terms, sreg, const, vT + 5)
        a(f"""v_lshrrev_b32 v{vT}, 6, v0
        v_and_b32 v{vL}, 63, v0
        v_mov_b32 v{vZ}, 0
        v_readfirstlane_b32 s{sWAVE}, v{vT}
        v_lshlrev_b32 v{vL16}, 4, v{vL}""")
        xr = V.alloc(8); acc = V.alloc(8); wphi = V.alloc(8); fr = V.alloc(8); vq = V.alloc(8); vv = V.alloc(8)
        vWM = V.alloc(); vCo = V.alloc(); vWd = V.alloc(); vL8 = V.alloc(); vL32S = V.alloc(); vGA = V.alloc()
        vB = V.alloc(6, 1); vFG = V.alloc(); vFD = V.alloc(); vWo = V.alloc(); vPW = V.alloc(); vXF = V.alloc()
        S(sX, 'wg & 7'); S(sJ, 'wg >> 3')
        S(T2, '(x*4 + w)*64')
        S(T0, 'T2*6144 + (j ^ 1)*128')
        va(vWM, [(3, 3, 4 * 12288), (0, 3, 16)])
        va(vCo, [(3, 3, 8)], T2)
        S(T3, '((x*32 + j)*4 + w - 4)*4096')
        for srd, size in ((rWM, 12582912), (rX, 4194304), (rWS, WS_BYTES)):
            a(f's_mov_b32 s{srd+2}, {size}')
            a(f's_mov_b32 s{srd+3}, 0x20000')
        a(f's_getreg_b32 s{sXC}, hwreg(HW_REG_XCC_ID, 0, 3)')
        if o.get('fakexcc') is not None: a(f's_and_b32 s{sXC}, s{sXC}, {o["fakexcc"]}')
        a(f"""s_getpc_b64 {sr(sCMP, 2) if not self.prof else sr(sPL, 2)}""")
        S(T6, '(j*7 + w)*128')
        va(vT + 6, [(5, 1, 28672)], T6)
        a(f"""v_min_u32 v{vT+6}, CODE_KB, v{vT+6}
        s_cmp_ge_u32 s{sWAVE}, 4
        s_waitcnt lgkmcnt(0)""")
        if self.prof:
            a(f'v_writelane_b32 v255, s{sTM}, 0')
            a(f'v_writelane_b32 v255, s{sCMP}, 63')
            a(f'v_writelane_b32 v254, s{sCMP}, 0')
            a(f's_mov_b64 {sr(sCMP, 2)}, {sr(sPL, 2)}')
        if o.get('exfil'):
            for k in range(3): a(f'v_writelane_b32 v255, s{sTM}, {k}')
        self.stamp('karg')
        raw = V.alloc(16); cv = V.alloc(4); vTk = V.alloc(2)
        xs = V.alloc(16); st = V.alloc(4); mq = V.alloc(4)
        a(f"""s_mov_b64 {sr(rWM, 2)}, {sr(KA + 20, 2)}
        s_mov_b64 {sr(rX, 2)}, {sr(KA, 2)}
        s_load_dword s{sTAG}, {sr(rWS, 2)}, {NONCE}
        s_cbranch_scc1 L_FS""")
        def setup():
            for srd, size in ((rW, 6291456), (rWO, 2097152), (rWG, 7340032), (rWU, 7340032), (rWD, 7340032), (rOUT, 4194304)):
                a(f's_mov_b32 s{srd+2}, {size}')
                a(f's_mov_b32 s{srd+3}, 0x20000')
            for srd, k in ((rW, 2), (rWO, 6), (rWG, 12), (rWU, 14), (rWD, 16), (rOUT, 22)):
                a(f's_mov_b64 {sr(srd, 2)}, {sr(KA + k, 2)}')
            a(f"""s_mov_b32 s{sSPIN}, 0
            s_mov_b32 s{sMASK}, 0xffff0000
            s_mov_b32 s{sL2E}, 0x3fb8aa3b""")
            S(sKH, 'w >> 2')
            va(vT + 2, [(4, 1, 64)]); va(vWd, [(0, 3, 16)])
            a(f'v_xor_b32 v{vWd}, v{vWd}, v{vT+2}'); va(vT + 2, [(3, 3, 6144)]); a(f'v_add_u32 v{vWd}, v{vWd}, v{vT+2}')
            va(vL8, [(0, 6, 8)])
            va(vL32S, [(0, 5, 32)], None, SCR)
            S(T0, '(w & 3)*4 + SCR')
            va(vGA, [(4, 2, 32), (0, 3, 128), (3, 1, 16)], T0)
            S(T1, '((j >> 4)*128 + w*8 + x)*1024 + (j & 15)*64 + SINB' if TL else '((x & 6) + ((x & 1)*2 + (j >> 4))*64 + w*8)*1024 + (j & 15)*64 + SINB')
        def tag_hash():
            a(f"""s_mul_i32 s{sTAG}, s{sTAG}, 0x9e3779b1
            s_add_u32 s{sTAG}, s{sTAG}, 0x7f4a7c15""")
        def code_pf():
            a(f's_and_b32 s{sCMP}, s{sCMP}, 0xfffffc00')
            a(f'global_load_dword v{vTk}, v{vT+6}, {sr(sCMP, 2)}')
        wq = [(n, t) for n in range(16) for t in range(3)]
        def w_base(n, wexpr):
            if n < 4 and o.get('wxor', 1):
                if o.get('wxor', 1) < 3: S(T7, '((j >> 4)*2) ^ n' if o.get('wxor', 1) == 1 else o.get('wxe', '((j >> 4) + (x >> 2)*2) ^ n'), n=n)
                else:
                    S(T7, o.get('wxe', 'j & 3' if HL else '(j >> 4) + (x >> 2)*2'))
                    if n: a(f's_cmp_le_u32 s{T7}, {n - 1}'); a(f's_cselect_b32 s{T7}, {n}, {n - 1}')
                S(sU, f'(((T7 + u0) & 15)*8 + {wexpr})*(8*6144) + hp*128')
                S(T7, f'T7*SLOT + (({wexpr}) >> 1)*2080 + (({wexpr}) & 1)*1056')
            else:
                S(sU, f'(((u0 + n) & 15)*8 + {wexpr})*(8*6144) + hp*128', n=n)
                S(T7, f'(({wexpr}) >> 1)*2080 + (({wexpr}) & 1)*1056 + q', q=(n % 6) * SLOT)
        def w_slot(n, t):
            S('m0', 'T7 + q', q=t * SEC)
            self.dma(vWd, rW, sU, 0, o.get('wmod', ''), ('W', n))
            if t < 2: S(sU, 'u + 2048')
        def w_next(cnt=1):
            for _ in range(cnt):
                n, t = wq.pop(0)
                if t == 0: w_base(n, 'w')
                w_slot(n, t)
        wb = list(o['wburst'])
        def w_early():
            if not o.get('wearly'): return
            S(sHP, '(x & 3)*4 + ((j & 3) ^ q)', q=o.get('hpx', 2)); S(sU0, o.get('u0', 'j & 12'))
            w_next(o['wearly'])
        a(f'global_load_dwordx2 {vr(cv, 2)}, v{vCo}, {sr(pC, 2)}'); vm.issue('c')
        for i in range(4):
            self.bl(raw + 4 * i, 4, vWM, rWM, T0, 0, o.get('ntwm', 'nt'), ('wm', i))
            if i < 3: S(T0, 'T0 + 12288')
        a('s_barrier')
        if o.get('bar1', 1): a('s_barrier')
        code_pf(); vm.issue()
        setup()
        wq0 = list(wq); w_early(); wq[:] = wq0
        S(T0, '(((w*16 + ((j ^ 1) & 15))*2 + (j >> 4))*8 + x)*512 + AINB')
        S(T2, ('(((j ^ 1) & 15)*8 + w*2)*512' if TL else '(((j ^ 1) & 7)*8 + w*2 + ((j >> 3) & 1))*512') + ' + x*64 + (j >> 4)*4 + INA')
        va(vT + 6, [(0, 1, 128 * 512), (1, 1, 512)] if TL else [(0, 2, 64 * 512)])
        vm.wait('c')
        self.unpack(cv + 2, cv + 3, cv + 1)
        a(f'v_and_b32 v{cv+1}, s{sMASK}, v{cv}'); a(f'v_lshlrev_b32 v{cv}, 16, v{cv}')
        for i in range(4): self.silu(cv + i, vT + (i & 1))
        gops = self.gemv_ops([raw + 4 * i for i in range(4)], [cv + i for i in range(4)], acc, vT, vT + 1, True)
        for i in range(4):
            vm.wait(('wm', i))
            if i == 3: self.stamp('wmok')
            for s_ in gops[12 * i:12 * i + 12]: a(s_)
        for s_ in gops[48:]: a(s_)
        self.dw('ds_write_b32', vGA, acc, 1, L_A1 - SCR)
        self.barrier()
        def pair_sum(off):
            a(f'ds_read_b128 {vr(acc, 4)}, v{vL32S} offset:{off}')
            a(f'ds_read_b128 {vr(acc + 4, 4)}, v{vL32S} offset:{off + 16}')
            a('s_waitcnt lgkmcnt(0)')
            for b in (acc, acc + 4):
                a(f'v_add_f32 v{b}, v{b}, v{b+2}'); a(f'v_add_f32 v{b+1}, v{b+1}, v{b+3}')
            a(f"""v_add_f32 v{acc}, v{acc}, v{acc+1}
            v_add_f32 v{acc+2}, v{acc+4}, v{acc+5}
            v_mov_b32 v{acc+1}, s{sTAG}
            v_mov_b32 v{acc+3}, s{sTAG}
            s_mov_b32 exec_hi, 0""")
        tag_hash()
        pair_sum(L_A1 - SCR)
        self.bs(acc, 4, vL16, rWS, T0, 0, 'sc1')
        a('s_mov_b64 exec, 15')
        self.bs(acc + 1, 1, vT + 6, rWS, T2, 0, 'sc1')
        a('s_mov_b64 exec, -1')
        self.stamp('A1pub')
        if o.get('wpf', 0):
            S(T2, '(((xc >> 2)*2 + (xc & 1))*4 + (xc & 2))*128 + (j*32 + w*8)*6144')
            va(vT + 2, [(4, 2, 6144), (0, 4, 16)])
            for i in range(o['wpf']):
                S(T0, 'T2 + q', q=(i % 3) * 2048 + (i // 3) * 4 * 6144)
                self.bl(raw, 4, vT + 2, rW, T0, 0, o.get('wpfmod', ''))
        tl_ = o.get('tlb', '')
        if tl_:
            S(T2, 'wg*128'); va(vT + 2, [(0, 6, 1 << 21)], T2)
            tab = dict(W=rW, o=rWO, g=rWG, u=rWU, d=rWD, m=rWM, x=rX, O=rOUT)
            for k_, c_ in enumerate(tl_):
                a(f's_cmp_lg_u32 s{sWAVE}, {k_ & 3}')
                L_ = a.label('TLB'); a(f's_cbranch_scc1 {L_}')
                if c_ == 's':
                    a('s_mov_b64 exec, 0x1ffff'); self.bl(raw + 4, 1, vT + 2, rWS, '0', 0, '', None); vm.q.pop(); a('s_mov_b64 exec, -1')
                else: self.bl(raw + 4, 1, vT + 2, tab[c_], '0', 0, '', None); vm.q.pop()
                a(f'{L_}:')
        a('s_branch L_FJ')
        qG = list(vm.q)
        a('L_FS:')
        vm.reset(); lg.reset()
        a('s_barrier')
        for i in range(4): self.bl(raw + 4 * i, 4, vL16, rX, T3, 1024 * i, o.get('xsmod', ''), 'xs')
        pw0 = o.get('pw0', 'ab')
        if 'a' in pw0:
            S(T4, '(wg*4 + w - 4)*128 + INA')
            for q in range(2): a(f's_load_dword s{sPL + q}, {sr(rWS, 2)}, s{T4} offset:{q * 64} glc')
        if 's' in pw0:
            S(T4, '(wg*4 + w - 4)*256 + SINB')
            for q in range(4): a(f's_load_dword s{sPL + 2 + q}, {sr(rWS, 2)}, s{T4} offset:{q * 64} glc')
        if 'b' in pw0:
            S(T4, '(wg*32 + w - 4)*128 + INB')
            for q in range(2): a(f's_load_dword s{sPL + q}, {sr(rWS, 2)}, s{T4} offset:{q * 64} glc ; nowait')
        a(f"""s_lshl_b32 s{T6}, s{sXC}, 5
        v_mov_b32 v{vTk}, 1
        v_mov_b32 v{vTk+1}, s{T6}""")
        if o.get('bar1', 1): a('s_barrier')
        a(f"""s_cmp_lg_u32 s{sWAVE}, 7
        s_cbranch_scc1 L_NOTK
        s_mov_b64 exec, 1
        global_atomic_add v{vTk}, v{vTk+1}, v{vTk}, {sr(pDBG, 2)} sc0 sc1
        s_mov_b64 exec, -1
        s_branch L_TK0
        L_NOTK:""")
        code_pf()
        a('L_TK0:')
        vm.issue('tk')
        setup()
        w_early()
        S(T0, '(w - 4)*16 + L_ST'); va(vT + 6, [(5, 1, 8)], T0)
        a('s_barrier')
        vm.wait('xs')
        lg.wait_all()
        tag_hash()
        self.stamp('xsok')
        self.ln_stats2(raw, raw + 8, xs, st, st + 1)
        a(f"""v_lshrrev_b32 v{st}, 16, v{st}
        v_or_b32 v{st}, v{st}, v{st+1}
        v_mov_b32 v{st+1}, s{sTAG}""")
        self.dw('ds_write_b64', vT + 6, st, 2)
        a('L_FJ:')
        va(vT + 1, [(0, 2, 16)], None, L_ST)
        va(vT, [(0, 2, 16), (2, 1, 65536 if TL else 1024)])
        va(vT + 6, [(0, 5, 2048), (5, 1, 32)])
        va(vT + 2, [(0, 1, 64 * 512 if TL else 512), (1, 1, 256)])
        S(T2, ('((j >> 4)*128 + w*8 + x)*512' if TL else '((x & 6) + ((x & 1)*2 + (j >> 4))*64 + w*8)*512') + ' + ((j >> 2) & 3)*64 + (j & 3)*4 + 16 + INA')
        self.barrier()
        self.r128(st, vT + 1, 0, 'st')
        lg.wait('st')
        a('s_mov_b64 exec, 0xff')
        self.bs(st, 4, vT, rWS, T1, 0, 'sc1')
        a('s_mov_b64 exec, 15')
        self.bs(st + 1, 1, vT + 2, rWS, T2, 0, 'sc1')
        a('s_mov_b64 exec, -1')
        self.stamp('A2pub')
        a(f"""s_cmp_lg_u32 s{sWAVE}, 7
        s_cbranch_scc1 L_NOTK2
        s_mov_b32 s{T0}, 0
        s_waitcnt vmcnt({len(vm.q) - 1 - vm.q.index('tk')})
        L_TK:
        v_readfirstlane_b32 s{T2}, v{vTk}
        s_cmp_lt_u32 s{T2}, 32
        s_cbranch_scc1 L_TKOK
        v_mov_b32 v{vTk}, s{sTAG}
        s_mov_b64 exec, 1
        buffer_store_dword v{vTk}, v{vZ}, {sr(rWS, 4)}, 0 offen offset:{MARK} sc1
        s_mov_b64 exec, -1
        s_add_u32 s{T0}, s{T0}, 1
        s_cmp_lt_u32 s{T0}, 8
        s_cbranch_scc0 L_TKNO
        s_add_u32 s{sXC}, s{sXC}, 1
        s_and_b32 s{sXC}, s{sXC}, 7
        s_lshl_b32 s{T6}, s{sXC}, 5
        v_mov_b32 v{vTk}, 1
        v_mov_b32 v{vTk+1}, s{T6}
        s_mov_b64 exec, 1
        global_atomic_add v{vTk}, v{vTk+1}, v{vTk}, {sr(pDBG, 2)} sc0 sc1
        s_mov_b64 exec, -1
        s_waitcnt vmcnt(0)
        s_branch L_TK
        L_TKNO:
        s_and_b32 s{sXC}, s2, 7
        s_lshr_b32 s{T2}, s2, 3
        L_TKOK:
        s_lshl3_add_u32 s{T2}, s{T2}, s{sXC}""")
        if o.get('rawrole'): a(f's_mov_b32 s{T2}, s2')
        a(f"""v_mov_b32 v{vTk}, s{T2}
        ds_write_b32 v{vT+1}, v{vTk} offset:64
        L_NOTK2:""")
        self.barrier()
        a(f'ds_read_b32 v{mq}, v{vT+1} offset:64'); lg.issue('role')
        lg.wait('role')
        a(f'v_readfirstlane_b32 s2, v{mq}')
        self.stamp('role')
        V.release(raw, 16); V.release(cv, 4)
        S(sX, 'wg & 7'); S(sJ, 'wg >> 3')
        S(sCB, 'j & 15' if TL else '(x & 1)*8 + (j & 7)')
        S(sRT, 'x*2 + (j >> 4)' if TL else '(x >> 1)*4 + (j >> 3)')
        S(sGTB, 'rt*4 + (w & 3)')
        S(sC32, 'cb*2 + kh')
        S(T5, 'gtb*65536 + c32*64')
        ld_xt = lambda: [self.bl(xr + 4 * q, 4, vT + 6, rX, T5, 16 * q, o.get('xtmod', ''), 'xt') for q in range(2)]
        if not o.get('xtlate', 0): ld_xt()
        S(T0, '(((x >> 1)*16 + cb)*16 + w)*512 + AINB')
        S(T2, '(wg*8 + w)*64 + INA')
        def role_prep():
            S(sR1, 'j & 15' if HL else '(x & 4)*2 + (j >> 2)'); S(sHP, '((x >> 2)*2 + (x & 1))*4 + (x & 2) + (j >> 4)' if HL else '(x & 3)*4 + ((j & 3) ^ 2)')
            S(sU0, o.get('u0', 'j & 12'))
            w_next(wb[0])
            S(sINB, '(wg*64 + w)*64 + INB')
            S(sKF, 'kh ^ (j >> 4)'); S(sROT, o.get('rot', '(((j >> 3) ^ j) & 1)*q + p'), q=4 if D2 else 8, p=8 * o.get('dflip', 1))
            S(sFS, 'x*7 + (j >> 2)'); S(sKQ, 'j & 3')
            va(vT + 4, [(0, 5, 8)])
            va(vT, [(0, 5, 16), (5, 1, 4096)])
            S(T3, 'w*4 + L_MP'); va(vT + 1, [(0, 6, 64)], T3)
            S(T3, 'kh*1024 + L_MP'); va(vT + 2, [(0, 4, 32), (5, 1, 512)], T3)
        S(T1, '(wg*4 + (w & 3))*256 + SINB')
        self.spoll([(0, 8, T2, 0)], (0, 1, 4, 5, 6, 7), work=role_prep)
        self.stamp('apre')
        if o.get('abar', 2) == 1: a('s_barrier')
        st_ld = lambda: self.bl(st, 2, vT + 4, rWS, T1, 0, 'sc1', 'st')
        def st_fetch():
            st_ld()
            if o.get('abar', 2) == 2: a('s_barrier')
            if o.get('xtlate', 0): ld_xt()
            S(T3, 'hp*4096 + w*512')
            a(f'v_add_u32 v{vT+6}, s{T3}, v{vL16}')
            S('m0', 'w*512 + L_WPHI')
            a('s_mov_b32 exec_hi, 0')
            a(f'global_load_lds_dwordx4 v{vT+6}, {sr(pWPHI, 2)}'); vm.issue()
            a('s_mov_b32 exec_hi, -1')
            w_next(wb[1])
        self.try_load(lambda: self.bl(mq, 4, vT, rWS, T0, 0, 'sc1'), [mq + 1, mq + 3], vT + 3, st_fetch)
        self.stamp('modok')
        a(f'ds_write2_b32 v{vT+1}, v{mq}, v{mq+2} offset0:0 offset1:8'); lg.issue()
        if not o.get('xtlate', 0):
            for i in range(8): self.unpack(xs + 2 * i, xs + 2 * i + 1, xr + i)
        self.barrier()
        mp = V.alloc(16); hp = V.alloc(8)
        for i in (2, 3, 0, 1): self.r128(mp + 4 * i, vT + 2, (i >> 1) * 2048 + (i & 1) * 16, i >> 1)
        w_next(wb[2])
        self.finish_load('st', st_ld, [st + 1], None)
        if o.get('xtlate', 0):
            vm.wait('xt')
            for i in range(8): self.unpack(xs + 2 * i, xs + 2 * i + 1, xr + i)
        self.stamp('statok')
        self.unpack(st + 1, st, st)
        a(f'v_rcp_f32 v{st}, v{st}')
        for i in E2: self.pk('add', xs + i, xs + i, st + 1, bc=(1,), neg=(1,))
        S(T0, '(((rt*16 + cb)*4 + (w & 3))*2 + kh)*2048 + HF')
        va(vT + 4, [(0, 4, 16), (4, 1, 1024), (5, 1, 512)])
        lg.wait(1); self.sum8(mp + 8)
        self.round1(mp + 8)
        lg.wait(0); self.sum8(mp)
        a(f'v_add_f32 v{mp+8}, 1.0, v{mp+8}')
        self.round2(mp + 8, mp)
        PKM = o.get('pkm', 1)
        if PKM:
            mb = V.alloc(32)
            S(T3, 'w*256 + L_MB'); va(vT, [(0, 4, 4), (5, 1, 64)], T3); va(vT + 1, [(5, 1, 64)], T3)
            a(f'ds_write2_b32 v{vT}, v{mp+8}, v{mp} offset0:0 offset1:32'); lg.issue()
            for q in range(8): self.r128(mb + 4 * q, vT + 1, (q >> 2) * 128 + (q & 3) * 16, ('mb', q))
        for h in range(2):
            rg = range(8 * h, 8 * h + 8)
            self.round_list([xs + i for i in rg])
            for i in range(8 * h, 8 * h + 8, 2): self.pk('mul', xs + i, xs + i, st, bc=(1,))
            self.round_list([xs + i for i in rg])
        for h in range(2):
            rg = range(8 * h, 8 * h + 8)
            if PKM:
                lg.wait(('mb', 2 * h + 1))
                for i in range(8 * h, 8 * h + 8, 2): self.pk('mul', xs + i, xs + i, mb + i)
            else:
                for i in rg: self.dpp('v_mul_f32', xs + i, mp + 8, xs + i, f'row_newbcast:{i}')
            self.round_list([xs + i for i in rg])
            if PKM:
                lg.wait(('mb', 4 + 2 * h + 1))
                for i in range(8 * h, 8 * h + 8, 2): self.pk('add', xs + i, xs + i, mb + 16 + i)
            else:
                for i in rg: self.dpp('v_add_f32', xs + i, mp, xs + i, f'row_newbcast:{i}')
            for i in range(4 * h, 4 * h + 4): a(f'v_cvt_pk_bf16_f32 v{hp+i}, v{xs+2*i}, v{xs+2*i+1}')
            self.bs(hp + 4 * h, 4, vT + 4, rWS, T0, 256 * h, 'sc1', 'hs')
        if PKM: V.release(mb, 32)
        self.stamp('hst')
        w_next(wb[3])
        va(vB, [(5, 1, 2080), (2, 2, 128), (3, 1, 64), (0, 2, 8)])
        va(vB + 1, [(4, 1, 1056)])
        va(vB + 2, [(3, 1, 128)])
        a(f"""v_add_u32 v{vB}, v{vB}, v{vB+1}
        v_sub_u32 v{vB+1}, v{vB}, v{vB+2}
        v_add_u32 v{vB+1}, 64, v{vB+1}""")
        for q in (1, 2):
            for h in range(2): a(f'v_add_u32 v{vB+2*q+h}, {2*q*SLOT}, v{vB+h}')
        S(T1, 'kh*2048 + L_WPHI')
        va(vT, [(2, 2, 64), (4, 1, 32), (0, 2, 8), (5, 1, 512)], T1)
        va(vT + 1, [(0, 3, 4096), (3, 1, 128 * 4096)] if HL else [(0, 2, 8 * 4096), (2, 2, 4096)])
        S(T0, ('rt*32768' if HL else '((rt >> 3)*4 + (rt & 7)*32)*4096') + ' + (cb >> 1)*64 + (cb & 1)*4 + INB')
        va(vT + 2, [(4, 1, 64), (5, 1, 16)]); va(vWo, [(0, 3, 16)])
        a(f'v_xor_b32 v{vWo}, v{vWo}, v{vT+2}'); va(vT + 2, [(3, 3, 2048)]); a(f'v_add_u32 v{vWo}, v{vWo}, v{vT+2}')
        S(T1, '(w & 2)*32'); va(vT + 2, [(4, 1, 32)], T1); va(vFG, [(0, 3, 16)])
        a(f'v_xor_b32 v{vFG}, v{vFG}, v{vT+2}'); va(vT + 2, [(3, 3, 7168)]); a(f'v_add_u32 v{vFG}, v{vFG}, v{vT+2}')
        S(T1, '(w & 1)*128')
        va(vT + 2, [(5, 1, 64)], T1); va(vFD, [(0, 5, 16), (5, 1, 2048)])
        a(f'v_xor_b32 v{vFD}, v{vFD}, v{vT+2}')
        S(sFG, '(kq*8 + w)*(32*7168) + fs*128'); S(sFD, '(fs*8 + w)*16384 + kq*512')
        US = o.get('ush', 1)
        S(sMF, '(j >> 2) + q', q=US)
        a(f"""s_cmp_ge_u32 s{sMF}, 7
        s_cselect_b32 s{sMF}, {US - 7 & 0xffffffff}, {US}""")
        a(f"""s_cmp_ge_u32 s{sJ}, 28
        s_cselect_b32 s{rWG+2}, 0, s{rWG+2}
        s_cselect_b32 s{rWU+2}, 0, s{rWU+2}
        s_cselect_b32 s{rWD+2}, 0, s{rWD+2}""")
        if o.get('zm2'): a(f's_mov_b32 s{rWM+2}, 0')
        if o.get('zffn'):
            for r_ in (rWG, rWU, rWD): a(f's_mov_b32 s{r_+2}, 0')
        if o.get('zwo'): a(f's_mov_b32 s{rWO+2}, 0')
        vm.wait('hs')
        a('s_barrier')
        self.push(vT + 1, T0, 16, vT + 2, 'L_PB')
        self.stamp('hpub')
        V.release(xs, 16); V.release(mp, 16); V.release(hp, 8); V.release(st, 4); V.release(mq, 4); V.release(vTk, 2)
        w_next(wb[4])
        for s in range(2):
            for u in range(2): self.tr(wphi + 4 * s + 2 * u, vT, s * 1024 + u * 256)
        AD, LOOK, LASTB = o['AD'], o.get('LOOK', 6), o['LASTB']
        accs = V.alloc(96)
        big = V.alloc(76)
        Br = big + 76 - 4 * (LOOK + 1)
        aslot = list(range(big, Br, 4)) + [fr, fr + 4, vq, vq + 4, vv, vv + 4, acc, acc + 4]
        assert AD <= len(aslot)
        S(T2, '(r1*64 + w)*4096 + HF')
        S(T0, '(w & 3)*4096 + L_XF'); a(f'v_add_u32 v{vXF}, s{T0}, v{vL16}')
        vXW = V.alloc(); vVW = V.alloc()
        va(vXW, [(0, 4, 16), (5, 1, 512), (4, 1, 8)], T0)
        S(T0, '(w & 3)*1024 + L_V'); va(vVW, [(0, 4, 32), (4, 2, 8)], T0)
        S(T0, '(w & 3)*1024 + kh*16384 + L_PHK'); va(vPW, [(0, 5, 32), (5, 1, 16)], T0)
        fq = ([(m, i) for i in range(4) for m in range(2)] if o.get('fmix', 1) else [(m, i) for m in range(2) for i in range(4)]) + [(2, i) for i in range(4)]
        freg = []
        def f_src(m, i, back=0, T0=T0):
            if m < 2: S(T0, 'fg + q' if m == 0 else 'mf*128 + fg + q', q=i * 8 * 7168 - back * 4 * 32 * 7168)
            else: S(T0, 'fd + q', q=i * 4096 - back * 4 * 16384)
            return (vFG, (rWG, rWU)[m]) if m < 2 else (vFD, rWD)
        def f_lds(m, i): return (L_GU + m * 32768 if m < 2 else L_DN) + i * 1024
        def ffn_reg(n):
            for _ in range(n):
                m, i = fq.pop(0)
                for back in range(2):
                    v, r = f_src(m, i, back)
                    self.bl(big + 8 * len(freg) + 4 * back, 4, v, r, T0, 0, o.get('ntffn', 'nt'), 'ffn')
                freg.append((m, i))
        def ffn_dma(n, T0=T0):
            for _ in range(n):
                m, i = fq.pop(0)
                if o.get('nofd'): continue
                v, r = f_src(m, i, 0, T0)
                S('m0', 'w1k*4 + q', q=f_lds(m, i))
                self.dma(v, r, T0, 0, o.get('ntffn', 'nt'), 'gu' if m < 2 else 'dn')
        S(sWB, 'w*16384' if D2 else '(rot*4 + w)*16384'); S(sWO2, '(j >> 4)*1048576 + cb*128'); S(sW1K, 'w*1024')
        def wo_dma(it, back=0, T0=T0):
            S(T0, '(((wb + q) & 0xfffff) ^ (rot*65536)) + (wo2 ^ h)' if D2 else '((wb + q) & 0xfffff) + (wo2 ^ h)', q=(8 * it - 4 * back) * 16384, h=(it >> 3) << 20)
            S('m0', 'w1k + q', q=WO_H0 + it * 8192 - 4096 * back)
            self.dma(vWo, rWO, T0, 0, '', 'wo')
        self.inbox(0, 2, work=lambda: w_next(wb[5]), pipe=o.get('pipeB', 0))
        assert len(wq) % 3 == 0 and 30 <= len(wq) <= (45, 36, 36, 42)[o.get('wxor', 1)]
        NPU = 16 - len(wq) // 3
        vm.wait(('W', (0, 2, 3, 1)[o.get('wxor', 1)]))
        a('s_barrier')
        self.stamp('hok')
        a(f"""s_cmp_ge_u32 s{sWAVE}, 4
        s_cbranch_scc1 L_HELP
        s_setprio 2""")
        q_hok = list(vm.q)
        if 'pad' in o:
            a('.p2align 6')
            for _ in range(o['pad']): a('s_nop 0')
        def a_load(sg):
            if sg % 4 == 0: S(T3, '((u0 + n) & q)*16384 + T2', n=sg // 4, q=o.get('amask', 15))
            self.bl(aslot[sg % AD], 4, vL16, rWS, T3, (sg % 4) * 1024, o.get('amod', 'sc1'), ('A', sg))
        CORD = [(1, 2), (1, 3), (1, 0), (1, 1)] + [(t, ct) for t in (0, 2) for ct in range(4)]
        WEV = o.get('wev', 2); NB = LOOK + 1
        def b_read(n, q):
            st_, c = divmod(n, 12); t, ct = CORD[c]
            slot = (st_ >> 1) % 6
            off = (slot & 1) * SLOT + t * SEC + (st_ & 1) * 4160 + (ct & 1) * 32 + q * 512
            self.tr(Br + 4 * (n % NB) + 2 * q, vB + 2 * (slot >> 1) + (ct >> 1), off, ('B', n))
        nxt = 0
        def a_more(lim):
            nonlocal nxt
            while nxt < min(lim, 64): a_load(nxt); nxt += 1
        a_more(2)
        for n in range(LOOK):
            for q in range(2): b_read(n, q)
        a_more(o.get('A0', 4))
        b14 = False
        for n in range(384):
            st_, c = divmod(n, 12); t, ct = CORD[c]
            if n % WEV == 0: lg.wait(('B', min(n + WEV - 1, 383)))
            for th in range(2):
                if c == 0: vm.wait(('A', 2 * st_ + (th if st_ < 2 or not o.get('vw1', 1) else 1)))
                d = accs + 32 * t + 16 * (ct >> 1) + 8 * (ct & 1) + 4 * th
                a(f'v_mfma_f32_16x16x32_bf16 {vr(d, 4)}, {vr(Br + 4*(n % NB), 4)}, {vr(aslot[(2*st_ + th) % AD], 4)}, ' + ('0' if st_ == 0 else vr(d, 4)))
                if n + LOOK < 384:
                    if th == 0 and (n + LOOK) % 24 == 0 and (n + LOOK) // 24 <= LASTB: a('s_barrier')
                    b_read(n + LOOK, th)
            if c in o.get('aat', (0, 3, 6, 9)): a_more(min(nxt + 1, 2 * st_ + AD))
            if nxt == 64 and not b14 and (n + LOOK) // 24 >= 13 and (n + LOOK) % 24:
                b14 = True; a('s_barrier')
        self.stamp('gemm1')
        aq, ak, av = accs, accs + 32, accs + 64
        def cvt8(d, s_, swap=True):
            for c in range(2):
                for th in range(2):
                    for ip in range(2): a(f'v_cvt_pk_bf16_f32 v{d + 4*c + 2*th + ip}, v{s_ + 8*c + 4*th + 2*ip}, v{s_ + 8*c + 4*th + 2*ip + 1}')
            if swap:
                for c in range(2):
                    for ip in range(2): a(f'v_permlane16_swap_b32 v{d + 4*c + ip}, v{d + 4*c + 2 + ip}')
        def put8(addr, d, off, oc_, ot):
            for c in range(2):
                for th in range(2): self.dw('ds_write_b64', addr, d + 4 * c + 2 * th, 2, off + c * oc_ + th * ot)
        cvt8(vv, ak + 16, False)
        put8(vXW, vv, 0, 1024, 256)
        cvt8(fr, ak)
        self.barrier()
        a('s_setprio 0')
        pp = ak; ee = ak + 16
        def phi_logits(src):
            a(f'v_mfma_f32_32x32x16_bf16 {vr(pp, 16)}, {vr(wphi, 4)}, {vr(src, 4)}, 0')
            a(f'v_mfma_f32_32x32x16_bf16 {vr(pp, 16)}, {vr(wphi + 4, 4)}, {vr(src + 4, 4)}, {vr(pp, 16)}')
        phi_logits(fr)
        for h in range(2):
            cvt8(vv if h == 0 else vq, av + 16 * h, False)
            put8(vVW, vv if h == 0 else vq, h * 8192, 4096, 512)
        cvt8(fr, aq + 16, False)
        put8(vXW, fr, 2048, 1024, 256)
        cvt8(vq, aq)
        a('s_branch L_JOIN')
        a('L_HELP:')
        vm.q = [('W', 1)] * len(q_hok) if o.get('wxor', 1) == 1 else list(q_hok); lg.reset()
        m2w = accs; m2c = accs + 32; g4 = accs + 48
        def w_unit(n):
            for wexpr in ('w - 4', 'w'):
                w_base(n, wexpr)
                for t in range(3):
                    w_slot(n, t)
                    if o.get('pace', 0) and n >= 6: a(f's_sleep {o["pace"]}')
        for n in range(NPU, 6): w_unit(n)
        S(T0, '((j & 3)*4 + w - 4)*128' if HL else '((x & 3)*4 + w - 4)*128')
        va(vCo, [(3, 3, 16)], T0)
        va(vWM, [(3, 3, 8 * 12288), (0, 3, 16)])
        S(T4, 'T0*6144 + (((j >> 2) & 3)*16 + x*2 + (j >> 4))*128 + 4096' if HL else 'T0*6144 + (j*2 + (x >> 2))*128 + 4096')
        a(f'global_load_dwordx4 {vr(m2c + 8, 4)}, v{vCo}, {sr(pC, 2)}'); vm.issue('m2c')
        m2l = list(range(8)); wol = [9, 10, 11, 12]; pwl = list(range(1, 8)); sil = list(range(8))
        m2ops = self.gemv_ops([m2w + 4 * i for i in range(8)], [m2c + i for i in range(8)], acc, vT, vT + 1, False)
        m2pos = 0
        ML = o.get('mlate', 1)
        m2q = accs + (16 if ML else 64); wr1 = m2q + 8; vM2 = m2q + 9
        TL_, TA, TB, TC, LMT = (T7, T1, sU, sWC, GS + 12288) if ML else (T5, T0, T1, T2, L_MT)
        ld_m2 = lambda: [self.bl(m2q + 4 * q, 4, vM2, rWS, TL_, q * 1024, 'sc1', 'm2q') for q in range(2)]
        def m2_final():
            self.finish_load('m2q', ld_m2, [m2q + 1, m2q + 3, m2q + 5, m2q + 7], vT)
            q0, q1, q2, q3 = m2q, m2q + 1, m2q + 2, m2q + 3
            S(TA, '(w & 3)*128 + q', q=LMT); va(vT, [(0, 5, 4)], TA)
            S(TB, 'w & 3')
            a(f"""v_add_f32 v{q0}, v{m2q}, v{m2q+4}
            v_add_f32 v{q1}, v{m2q+2}, v{m2q+6}
            v_add_f32 v{q2}, v{m2q}, v{m2q+4}""".replace(f'v_add_f32 v{q2}, v{m2q}, v{m2q+4}', f'v_mov_b32 v{q2}, v{q0}'))
            a(f"""v_mov_b32 v{q3}, v{q1}
            s_cmp_eq_u32 s{TB}, 2
            s_cselect_b32 s{TC}, 1.0, 0
            v_permlane32_swap_b32 v{q0}, v{q2}
            v_permlane32_swap_b32 v{q1}, v{q3}""")
            self.pk('add', q0, q0, q2)
            self.round2(q0, q1)
            a(f"""v_add_f32 v{q0}, s{TC}, v{q0}
            v_add_f32 v{q1}, s{TC}, v{q1}
            v_cvt_pk_bf16_f32 v{q2}, v{q0}, v{q1}""")
            self.dw('ds_write_b32', vT, q2, 1)
            a('s_cbranch_scc0 L_NOG')
            g0, g1, gh, gl = m2q + 4, m2q + 5, m2q + 6, m2q + 7
            self.unpack(q0, q1, q2); self.unpack(g0, g1, wr1)
            self.pk('mul', g0, g0, q0)
            a(f'v_cvt_pk_bf16_f32 v{gh}, v{g0}, v{g1}')
            self.unpack(q0, q1, gh)
            self.pk('add', q0, g0, q0, neg=(1,))
            a(f"""v_cvt_pk_bf16_f32 v{gl}, v{q0}, v{q1}
            v_add_f32 v{q0}, v{g0}, v{g1}
            ds_write2_b32 v{vT}, v{gh}, v{gl} offset0:64 offset1:96
            ds_write_b32 v{vT}, v{wr1} offset:512""")
            for ctl in ('quad_perm:[1,0,3,2]', 'quad_perm:[2,3,0,1]', 'row_half_mirror', 'row_ror:8'): self.dpp('v_add_f32', q0, q0, q0, ctl)
            S(TA, '(rt*16 + cb)*64 + GR')
            a(f"""v_mov_b32 v{q2}, v{q0}
            v_mov_b32 v{q1}, s{sTAG}
            v_permlane16_swap_b32 v{q0}, v{q2}
            v_add_f32 v{q0}, v{q0}, v{q2}
            v_mov_b32 v{q3}, s{sTAG}
            s_mov_b64 exec, 15""")
            self.bs(q0, 4, vL16, rWS, TA, 0, 'sc1', count=False)
            a("""s_mov_b64 exec, -1
        L_NOG:""")
        def m2_fetch():
            va(vM2, [(0, 5, 16), (5, 1, 512)])
            S(TL_, '((w & 3)*16 + cb)*2048 + MODP2')
            ld_m2()
        def act(op, k):
            nonlocal m2pos
            kind, n = op[0], int(op[1:] or 1)
            if kind == 'm':
                for _ in range(2 * n):
                    i = m2l.pop(0)
                    self.bl(m2w + 4 * i, 4, vWM, rWM, T4, 0, o.get('ntm2', 'nt'), ('m2', i))
                    if m2l: S(T4, 'T4 + 12288')
            elif kind == 'f': ffn_reg(n)
            elif kind == 'o':
                assert k >= 13
                for _ in range(n):
                    it = wol.pop(0); wo_dma(it, 1); wo_dma(it)
            elif kind == 'p':
                a('s_waitcnt lgkmcnt(0)')
                for q in range(n):
                    b = pwl.pop(0)
                    a(f's_load_dword s{sPL + 2*q}, {sr(rWS, 2)}, s{sINB} offset:{b * 512} glc')
                    a(f's_load_dword s{sPL + 2*q + 1}, {sr(rWS, 2)}, s{sINB} offset:{b * 512 - 256} glc')
            elif kind == 'q':
                S(T0, 'fs*8192 + (w - 4)*256 + HGR')
                a('s_waitcnt lgkmcnt(0)')
                for q in range(4): a(f's_load_dword s{sPL + q}, {sr(rWS, 2)}, s{T0} offset:{q * 2048 + 1024 + 252} glc')
            elif kind == 'z':
                for i in range(4): a(f'v_mov_b32 v{g4+i}, -1')
                if n == 1:
                    for we in ('w - 4', 'w'):
                        S(T0, f'(((r1*4 + (w & 3))*16 + hp)*2 + (({we}) >> 2))*2048 + OF')
                        for q in range(2): self.bs(g4, 4, vL16, rWS, T0, 1024 * q, 'sc1', 'pzo')
                else:
                    for we in ('w - 4', 'w'):
                        S(T0, f'((hp*8 + {we})*32 + r1)*1024 + KVP'); S(T1, 'T0 + 16384')
                        self.bs(g4, 4, vL16, rWS, T0, 0, 'sc1', 'pz'); self.bs(g4, 4, vL16, rWS, T1, 0, 'sc1', 'pz')
                    S(T0, '((hp*8 + w - 4)*16 + r1)*64 + ZP')
                    va(vT + 2, [(0, 2, 16), (2, 1, 4096)])
                    a('s_mov_b64 exec, 0xff')
                    self.bs(g4, 4, vT + 2, rWS, T0, 0, 'sc1', 'pz')
                    a('s_mov_b64 exec, -1')
            elif kind == 'M': m2_fetch()
            elif kind == 'R':
                S(T0, 'cb*128'); va(vT, [(0, 5, 4)], T0)
                a(f'global_load_dword v{wr1}, v{vT}, {sr(pWR, 2)}'); vm.issue()
            elif kind == 'N': m2_final()
            elif kind == 'K':
                S(T0, '(hp*16 + r1)*1024 + (w & 3)*256 + KIN'); S(T1, 'hp*128 + CFL')
                a(f'v_lshlrev_b32 v{vWM}, 7, v{vL}')
                a('s_mov_b64 exec, 3')
                self.bl(vWM, 1, vWM, rWS, T0, 0, '')
                self.bl(vCo, 1, vZ, rWS, T1, 0, '')
                a('s_mov_b64 exec, -1')
            elif kind == 'h':
                S(T0, '(fs*4 + kq)*2048 + (w & 1)*1024 + HGR'); S(T1, '(rt*16 + cb)*2048 + (w & 1)*1024 + STAT')
                if TL: a(f's_bitcmp1_b32 s{sWAVE}, 1'); a(f's_cselect_b32 s{T0}, s{T1}, s{T0}')
                self.bl(m2c + 12, 4, vL16, rWS, T0, 0, '')
            elif kind == 's':
                vm.wait('m2c')
                for _ in range(n):
                    i = sil.pop(0)
                    a(f'v_and_b32 v{m2c+i}, s{sMASK}, v{m2c+8+i//2}' if i & 1 else f'v_lshlrev_b32 v{m2c+i}, 16, v{m2c+8+i//2}')
                    self.silu(m2c + i, vT + (i & 1))
            elif kind == 'g':
                assert not sil
                for _ in range(n):
                    vm.wait(('m2', m2pos // 16))
                    for s_ in m2ops[m2pos:m2pos + 16]: a(s_)
                    m2pos += 16
            elif kind == 'r':
                assert m2pos == 128
                for s_ in m2ops[128:]: a(s_)
                self.dw('ds_write_b32', vGA, acc, 1, L_M2 - SCR)
                lg.wait_all()
            elif kind == 'P':
                a(f"""s_cmp_lg_u32 s{sWAVE}, 4
                s_cbranch_scc1 L_M2F""")
                S(T0, '((((j >> 2) & 3)*16 + x*2 + (j >> 4))*4 + (j & 3))*512 + MODP2')
                pair_sum(L_M2 - SCR)
                self.bs(acc, 4, vL16, rWS, T0, 0, 'sc1', count=False)
                a('s_mov_b32 exec_hi, -1')
                a('L_M2F:')
            else: raise ValueError(op)
        sched = {int(k): v.split() for k, v in o['sched'].items()}
        for op in sched.get(0, []): act(op, 0)
        wsch = {int(k): v for k, v in o.get('wsch', {k: 6 for k in range(2, 12)}).items()}
        hq = [(n, we, t) for n in range(6, 16) for we in ('w - 4', 'w') for t in range(3)]
        assert sum(wsch.values()) == 60
        for k in range(1, LASTB + 1):
            if k == 14: a('s_barrier')
            assert not any(n <= (15 if k == LASTB else k) for n, _, _ in hq)
            for kk in (range(k, 16) if k == LASTB else [k + 1 if k < 3 and o.get('wxor', 1) == 3 else k]): vm.wait(('W', kk))
            if o.get('ust'): self.stamp(f'w{k}')
            a('s_barrier')
            if o.get('ust'): self.stamp(f'u{k}')
            ops = sched.get(k, []) if k < 14 else []
            for op in ops:
                if op[0] == '<': act(op[1:], k)
            for _ in range(wsch.get(k, 0)):
                n, we, t = hq.pop(0)
                assert n - 4 <= k
                if t == 0: w_base(n, we)
                w_slot(n, t)
            for op in ops:
                if op[0] != '<': act(op, k)
        assert LASTB in (13, 14)
        if LASTB == 13: a('s_barrier')
        for op in sched.get(14, []): act(op, 14)
        self.barrier()
        for q in range(2): self.r128(fr + 4 * q, vXF, q * 1024)
        lg.wait_all()
        phi_logits(fr)
        for op in sched.get(15, []): act(op, 15)
        assert not m2l or o.get('nom2')
        assert 8 * len(freg) <= 76
        a('L_JOIN:')
        pzq = list(vm.q)
        vm.reset(); lg.q = [None]
        V.release(vXW); V.release(vVW); V.release(vB, 6); V.release(vWd); V.release(vGA); V.release(vL32S); V.release(acc, 8)
        kw = o.get('kweave', ''); fall = []; fb0 = big + 8 * len(freg); nfa = kw.count('f')
        def kw_op(c_):
            if c_ == 'o': wo_dma(wol.pop(0), 0, T6)
            else:
                m, i = fq.pop(0); v, r = f_src(m, i, 0, T6)
                self.bl(fb0 + 4 * len(fall), 4, v, r, T6, 0, o.get('ntffn', 'nt')); fall.append((m, i))
        V.release(fb0 + 4 * nfa, 76 - 8 * len(freg) - 4 * nfa)
        ph = aq; fx = aq + 16
        vPA = V.alloc(); vPB = V.alloc()
        self.weave(lambda: self.softmax_pm(pp, ee, ph, vT), [lambda c_=c_: kw_op(c_) for c_ in kw])
        for fb in range(4): self.dw('ds_write_b128', vPW, ph + 4 * fb, 4, fb * 4096)
        S(T0, 'w*4096 + L_PHK'); a(f'v_add_u32 v{vPA}, s{T0}, v{vL8}')
        S(T0, 'kh*8192 + L_V'); a(f'v_add_u32 v{vPB}, s{T0}, v{vL8}')
        ones = fr
        for i in range(4): a(f'v_mov_b32 v{ones+i}, 0x3f803f80')
        S(T0, '((hp*8 + w)*32 + r1)*1024 + KVP'); S(T2, 'T0 + 16384')
        S(T3, '(hp*8 + w)*1024 + ZP'); S(T1, 'r1*64 + T3')
        self.stamp('ksm')
        self.barrier()
        self.stamp('phik')
        tb7 = V.alloc(8); tb4 = tb7 + 4
        def tb_read():
            S(T5, 'kh*64 + q', q=LMT); va(tb7 + 3, [(0, 3, 4), (5, 1, 32)], T5)
            for q, t in ((0, 0), (1, 4), (2, 5), (4, 1), (5, 2), (6, 3), (7, 6)): self.dr('ds_read_b32', tb7 + q, 1, tb7 + 3, t * 128)
        if not ML: tb_read()
        fragA = [ee + 4 * i for i in range(4)]
        fragB = [av + 4 * i for i in range(8)]
        kvd = vv; zd = fr + 4
        def kvm(u):
            lg.wait(('kv', u))
            for db in range(2):
                a(f'v_mfma_f32_16x16x32_bf16 {vr(kvd + 4*db, 4)}, {vr(fragA[u], 4)}, {vr(fragB[2*u+db], 4)}, ' + ('0' if u == 0 else vr(kvd + 4*db, 4)))
            a(f'v_mfma_f32_16x16x32_bf16 {vr(zd, 4)}, {vr(fragA[u], 4)}, {vr(ones, 4)}, ' + ('0' if u == 0 else vr(zd, 4)))
        for ts in range(4):
            self.tr(fragA[ts], vPA, ts * 1024, ('kv', ts)); self.tr(fragA[ts] + 2, vPA, ts * 1024 + 512, ('kv', ts))
            for db in range(2):
                self.tr(fragB[2*ts+db], vPB, db * 4096 + ts * 1024, ('kv', ts)); self.tr(fragB[2*ts+db] + 2, vPB, db * 4096 + ts * 1024 + 512, ('kv', ts))
            if ts >= 2: kvm(ts - 2)
        va(vPW, [(0, 4, 8 * 4096)] if HL else [(0, 3, 32 * 4096), (3, 1, 4 * 4096)])
        S(T4, '(wg & q)*4096 + (r1 >> 1)*64 + (r1 & 1)*4 + INB + 512', q=0x87 if HL else 0x1b)
        kvm(2); kvm(3)
        a(f"""s_cmp_lt_u32 s{sWAVE}, 4
        s_cbranch_scc1 L_NOQX
        ds_read_b128 {vr(vq, 4)}, v{vXF} offset:2048
        ds_read_b128 {vr(vq + 4, 4)}, v{vXF} offset:3072
        L_NOQX:""")
        if 'pz' in pzq: a(f's_waitcnt vmcnt({pzq[::-1].index("pz")})')
        self.bs(kvd, 4, vL16, rWS, T0, 0, 'sc1', 'kvs')
        self.bs(kvd + 4, 4, vL16, rWS, T2, 0, 'sc1', 'kvs')
        if o.get('zperm', 1):
            a(f'v_lshlrev_b32 v{vT}, 6, v{vL}')
            for i in range(4): a(f'ds_bpermute_b32 v{zd+i}, v{vT}, v{zd+i}')
            a("""s_waitcnt lgkmcnt(0)
            s_mov_b64 exec, 15""")
            self.bs(zd, 4, vL16, rWS, T1, 0, 'sc1', 'kvs')
        else:
            a('s_mov_b32 exec_lo, 0x00010001')
            a('s_mov_b32 exec_hi, 0x00010001')
            self.bs(zd, 4, vL, rWS, T1, 0, 'sc1', 'kvs')
        a('s_mov_b64 exec, -1')
        lg.wait_all()
        phi_logits(vq)
        self.stamp('kvst')
        wl = wol + [2, 3, 4, 5, 6, 7, 8, 13, 14, 15, 0, 1]
        kp = av; zz = av + 16; g4 = vv
        vKP = V.alloc()
        va(vKP, [(3, 3, 1024), (0, 3, 16)])
        wo1 = lambda: wo_dma(wl.pop(0), 0, T6)
        keep = a.items; a.items = []
        self.softmax_pm(pp, ee, ph, vv)
        qsm = a.items; a.items = keep
        qcost = [2 if it[1].is_trans or 'permlane' in it[1].mn else 1 for it in qsm]
        qtot = sum(qcost); qdone = [0]
        def q_slice(upto):
            while qsm and qdone[0] < qtot * upto / 100:
                a.items.append(qsm.pop(0)); qdone[0] += qcost.pop(0)
        qs = o.get('qs', (35, 85, 100))
        CL = o.get('cl', (0, 1)); assert CL[1]
        q_slice(qs[0])
        S(T5, 'hp*128 + CFL'); S(T1, 'r1*8 + T5')
        vCF = V.alloc(); cf = V.alloc()
        va(vCF, [(0, 4, 8)])
        vm.wait('kvs')
        a('s_barrier')
        if CL[0]:
            a(f"""s_cmp_eq_u32 s{sLOC}, 0
            s_cbranch_scc1 L_PCG
            s_cmp_lg_u32 s{sWAVE}, 0
            s_cbranch_scc1 L_PC
            v_mov_b32 v{cf}, s{sTAG}
            s_mov_b64 exec, 1""")
            self.bs(cf, 1, vZ, rWS, T1, 0, '', count=False)
            a("""s_mov_b64 exec, -1
            s_branch L_PC
            L_PCG:""")
        self.push(vPW, T4, 16, vPB, 'L_PC')
        self.stamp('kvpub')
        assert HL and not CL[0]
        if ML:
            a(f"""s_cmp_lt_u32 s{sWAVE}, 4
            s_cbranch_scc1 L_NOM""")
            m2_fetch()
            a('L_NOM:')
        S(T0, '(hp*16 + r1)*16384 + w*128 + KVP')
        S(T2, '(hp*16 + r1)*1024 + w*128 + KIN'); S(T4, 'T4 + 6*512')
        def c1_work():
            self.weave(lambda: q_slice(qs[1]), [wo1] * o['wowin'][0])
            if ML:
                a(f"""s_cmp_lt_u32 s{sWAVE}, 4
                s_cbranch_scc1 L_NOG""")
                q_ = list(vm.q); m2_final(); vm.q = q_
            self.stamp('cw')
        if CL[0]:
            ld_cf = lambda: self.bl(cf, 1, vCF, rWS, T5, 0, 'sc1', 'cf')
            if o.get('cfpre', 1): ld_cf()
            c1_work()
            a(f"""s_cmp_lg_u32 s{sLOC}, 0
            s_cbranch_scc1 L_C1L""")
            q_ = list(vm.q)
            self.inbox(1, 2)
            a("""s_barrier
            s_branch L_C1D
            L_C1L:""")
            if o.get('cfpre', 1): self.finish_load('cf', ld_cf, [cf])
            else: self.poll(ld_cf, [cf])
            vm.q = q_
            a('L_C1D:')
        else:
            self.inbox(1, 2, work=c1_work)
            a('s_barrier')
        V.release(vCF); V.release(vWM); V.release(vCo)
        self.stamp('kvok')
        S(T5, 'T0 + 8192')
        ld_kp = lambda: (self.bl(kp, 4, vKP, rWS, T0, 0, 'sc1', 'kp'), self.bl(kp + 4, 4, vKP, rWS, T5, 0, 'sc1', 'kp'))
        ld_z = lambda: self.bl(zz, 4, vL16, rWS, T3, 0, 'sc1', 'z')
        self.bl(cf, 1, vZ, rWS, '0', MARK, 'sc1')
        ld_kp(); ld_z()
        S(T1, 'w*32 + L_ZF'); va(vT + 2, [(0, 2, 8), (5, 1, 4)], T1)
        S(T1, 'w*1024 + L_KVF'); va(vT + 1, [(0, 4, 16), (5, 1, 512), (4, 1, 8)], T1)
        S(T1, 'kh*128 + L_ZF'); va(vT + 3, [(5, 1, 16)], T1)
        S(T1, 'kh*4096 + L_KVF'); a(f'v_add_u32 v{vPA}, s{T1}, v{vL16}')
        def red4(r, ctls):
            for i in range(2): a(f'v_permlane32_swap_b32 v{r+i}, v{r+2+i}')
            self.pk('add', r, r, r + 2)
            for ctl in ctls:
                for i in range(2): self.dpp('v_add_f32', r + i, r + i, r + i, ctl)
            for i in range(2): a(f'v_mov_b32 v{r+2+i}, v{r+i}')
            for i in range(2): a(f'v_permlane16_swap_b32 v{r+i}, v{r+2+i}')
            self.pk('add', r, r, r + 2)
            a(f'v_cvt_pk_bf16_f32 v{r}, v{r}, v{r+1}')
        self.weave(lambda: q_slice(qs[2]), [wo1] * o['wowin'][1])
        vm.wait('kp')
        a(f'v_cmp_eq_u32 vcc, s{sTAG}, v{cf}')
        a(f's_cmp_eq_u32 vcc_lo, 0')
        a(f's_cselect_b32 s{sLOC}, {o.get("local", 1)}, 0')
        self.pk('add', kp, kp, kp + 4); self.pk('add', kp + 2, kp + 2, kp + 6)
        red4(kp, ['row_ror:8'])
        kc = V.alloc(5, 4)
        a(f"""v_mov_b32 v{kc}, v{kp}
        v_mov_b32 v{kc+2}, v{kp}
        v_mov_b32 v{kc+1}, s{sTAG}
        v_mov_b32 v{kc+3}, s{sTAG}
        v_permlane32_swap_b32 v{kc}, v{kc+2}
        v_add_u32 v{kc+4}, s{T2}, v{vL16}
        s_mov_b64 exec, 0xff""")
        self.bs2([(kc, 4, vL16, T2, 0)])
        a("""s_mov_b64 exec, -1
        s_cbranch_scc1 L_PC2""")
        a('s_barrier')
        self.push(vPW, T4, 16, vPB, 'L_PC2')
        self.stamp('c2pub')
        kf = av; zf = av + 16; num = pp; den = ee
        k2 = av + 8
        S(T0, '(hp*8 + w)*2048 + KIN')
        ld_k2 = lambda: [self.bl(k2 + 4 * q, 4, vL16, rWS, T0, q * 1024, 'sc1') for q in range(2)]
        def z_work():
            vm.wait('z')
            red4(zz, ['row_ror:4', 'row_ror:8'])
            self.dw('ds_write_b32', vT + 2, zz, 1)
            q_slice(100)
            self.stamp('c2w')
        ZP_ = o.get('zpre', 1)
        if ZP_: z_work()
        a(f"""s_cmp_lg_u32 s{sLOC}, 0
        s_cbranch_scc1 L_C2L""")
        l_ = list(lg.q)
        self.inbox(7, 2)
        lg.q = l_
        a('L_C2L:')
        self.try_load(ld_k2, [k2 + 1, k2 + 3, k2 + 5, k2 + 7], vT, None if ZP_ else z_work)
        for db in range(2):
            a(f'ds_write2_b32 v{vT+1}, v{k2+4*db}, v{k2+4*db+2} offset0:{64*db} offset1:{64*db+1}'); lg.issue()
        self.barrier()
        self.stamp('kvred')
        for fb in range(4): self.r128(zf + 4 * fb, vT + 3, fb * 32, ('zf', fb))
        for fb in range(4): self.r128(kf + 4 * fb, vPA, fb * 1024, ('kf', fb))
        if ML: tb_read()
        for _ in range(o['wowin'][2]): wo1()
        S(T0, '(((r1*4 + (w & 3))*16 + hp)*2 + kh)*2048 + OF')
        va(vT + 4, [(0, 4, 16), (4, 1, 1024), (5, 1, 256)])
        for fb in range(4):
            lg.wait(('zf', fb))
            a(f'v_mfma_f32_32x32x16_bf16 {vr(den, 16)}, {vr(zf + 4*fb, 4)}, {vr(ph + 4*fb, 4)}, ' + ('0' if fb == 0 else vr(den, 16)))
        for fb in range(4):
            lg.wait(('kf', fb))
            a(f'v_mfma_f32_32x32x16_bf16 {vr(num, 16)}, {vr(kf + 4*fb, 4)}, {vr(ph + 4*fb, 4)}, ' + ('0' if fb == 0 else vr(num, 16)))
        self.round1(den)
        a(f'v_add_f32 v{den}, 0x358637bd, v{den}')
        self.round1(den)
        a(f'v_rcp_f32 v{den}, v{den}')
        for h in range(2):
            self.round_list([num + i for i in range(8 * h, 8 * h + 8)])
            for i in range(8 * h, 8 * h + 8, 2): self.pk('mul', num + i, num + i, den, bc=(1,))
            for i in range(4 * h, 4 * h + 4): a(f'v_cvt_pk_bf16_f32 v{vq+i}, v{num+2*i}, v{num+2*i+1}')
            self.bs(vq + 4 * h, 4, vT + 4, rWS, T0, 512 * h, 'sc1', 'os')
        self.stamp('ost')
        for r, n in ((fr, 8), (vv, 8), (vPW, 1), (vXF, 1), (vPA, 1), (vPB, 1), (vKP, 1), (accs, 96), (wphi, 8)):
            V.release(r, n)
        assert GS == 0
        vG16 = vL16
        vBa = V.alloc(4); xf = V.alloc(16)
        S(T4, 'kh*(65536 + 64) + WO_H0')
        va(vBa, [(5, 1, 2048), (4, 1, 512), (2, 2, 128), (3, 1, 64), (1, 1, 32), (4, 1, 16), (0, 1, 8)])
        a(f'v_xor_b32 v{vBa}, s{T4}, v{vBa}')
        for q, x_ in ((1, 16), (2, 64), (3, 80)): a(f'v_xor_b32 v{vBa+q}, {x_}, v{vBa}')
        assert WO_H1 == WO_H0 + 65536
        va(vT + 1, LCB)
        S(T2, ('((r1 & 1)*128 + (r1 >> 1))*4096' if TL else '((r1 >> 2)*2 + (r1 & 3)*64)*4096') + (' + ((hp >> 3)*4 + (hp & 3))*64 + (((hp >> 2) ^ p) & 1)*4 + INB + 1024' if D2 else ' + (hp >> 1)*64 + (hp & 1)*4 + INB + 1024'), p=o.get('dflip', 1))
        gaf = V.alloc(16); gp = V.alloc(16); gr = V.alloc(2); vGR = V.alloc(); cn = V.alloc(2)
        def expand(dst, t):
            for i in range(8):
                self.dpp('v_mul_u32_u24', dst + 2 * i, t, cn, f'row_newbcast:{i}')
                self.dpp('v_and_b32', dst + 2 * i + 1, t, cn + 1, f'row_newbcast:{i}')
        a(f"""v_mov_b32 v{cn}, 0x10000
        v_mov_b32 v{cn+1}, s{sMASK}""")
        for i in range(8): self.unpack(xf + 2 * i, xf + 2 * i + 1, xr + i)
        lg.wait_all()
        expand(gaf, tb7)
        S(T6, '(gtb*2 + kf)*32768 + OF')
        va(vGR, [(0, 4, 64)])
        vm.wait('os')
        self.barrier()
        self.push(vT + 1, T2, 16, vT + 2, 'L_PD')
        self.stamp('opub')
        def c_clean():
            if CL[1]:
                a('s_mov_b64 exec, 0xff')
                self.bs(kc, 4, kc + 4, rWS, '0', 0, 'sc1')
                a('s_mov_b64 exec, -1')
            if CL[0]:
                S(T0, 'hp*128 + r1*8 + CFL')
                a(f"""s_cmp_lg_u32 s{sWAVE}, 0
                s_cbranch_scc1 L_NOCC
                v_mov_b32 v{cf}, s{sTAG}
                s_mov_b64 exec, 1""")
                self.bs(cf, 1, vZ, rWS, T0, 0, 'sc1', count=False)
                a("""s_mov_b64 exec, -1
                L_NOCC:""")
        if o.get('ccat', 3) == 0: c_clean()
        V.release(vq, 8)
        late_wo = bool(wl)
        while wl: wo_dma(wl.pop(0))
        V.release(vWo)
        MS = o.get('msum', 1)
        def d_work():
            for k in range(2):
                for i in range(8): a(f'v_mov_b32_dpp v{gp + 8*k + i}, v{tb7 + 1 + k} row_newbcast:{i} row_mask:0xf bank_mask:0xf')
            if MS:
                a(f"""v_and_b32 v{vT}, 3, v{vL}
                v_cmp_eq_u32 vcc, 1, v{vT}
                v_cmp_eq_u32 {sr(sCMP, 2)}, 0, v{vT}
                v_mov_b32 v{vT+1}, 0x3f803f80""")
                for i in range(8): a(f'v_cndmask_b32 v{gp+i}, v{gp+8+i}, v{gp+i}, vcc')
                for i in range(8): a(f'v_cndmask_b32 v{gp+i}, v{gp+i}, v{vT+1}, {sr(sCMP, 2)}')
            if o.get('stouch', TL):
                S(T2, '(rt*16 + cb)*2048 + w*256 + STAT')
                a(f'v_lshlrev_b32 v{gr}, 7, v{vL}')
                a('s_mov_b64 exec, 3')
                self.bl(gr, 1, gr, rWS, T2, 0, '')
                a('s_mov_b64 exec, -1')
            if late_wo or o.get('stouch', TL): vm.wait_all()
            self.stamp('dw')
        AD2 = o['AD2']
        LK2 = o.get('LK2', 4); NB2 = LK2 + 1
        accA = V.alloc(16); accB = V.alloc(16); Ar = V.alloc(4 * AD2); Br = V.alloc(4 * NB2)
        def b2_read(n, q):
            st_, c = divmod(n, 4)
            self.tr(Br + 4 * (n % NB2) + 2 * q, vBa + (c ^ 2), st_ * 4096 + q * 1024, ('B', n))
        def a2_load(s):
            if s % 2 == 0: S(T7, '(rot ^ n)*2048 + T6' if D2 else '((rot + n) & 15)*2048 + T6', n=(s // 2) & o.get('a2mask', 15))
            self.bl(Ar + 4 * (s % AD2), 4, vL16, rWS, T7, (s % 2) * 1024, o.get('a2mod', 'sc1'), ('A', s))
        self.inbox(2, 2, [0] if D2 else None, work=d_work)
        a('s_barrier')
        self.stamp('ook')
        if o.get('prio2', 1):
            a(f"""s_cmp_lt_u32 s{sWAVE}, 4
            s_cbranch_scc1 L_P2
            s_setprio {o.get('prio2', 1)}
            L_P2:""")
        nx2 = 0
        def a2_more(lim):
            nonlocal nx2
            while nx2 < min(lim, 32):
                if nx2 == 16 and D2:
                    a(f"""s_cmp_eq_u32 s{sPL + 1}, s{sTAG}
                    s_cbranch_scc1 L_D2""")
                    l_ = list(lg.q)
                    self.inbox(2, 2, [1])
                    lg.q = l_
                    a("""L_D2:
                    s_barrier""")
                a2_load(nx2); nx2 += 1
                if nx2 == 32:
                    ld_gr()
                    if o.get('ccat', 3) == 1: c_clean()
        S(T5, 'rt*1024 + GR')
        ld_gr = lambda: self.bl(gr, 2, vGR, rWS, T5, 0, 'sc1', 'gr')
        a2_more(2)
        for n in range(LK2):
            for q in range(2): b2_read(n, q)
        a2_more(o.get('A20', 4))
        for n in range(64):
            st_, c = divmod(n, 4)
            if n % o.get('wev2', 1) == 0: lg.wait(('B', min(n + o.get('wev2', 1) - 1, 63)))
            for th in range(2):
                if c == 0: vm.wait(('A', 2 * st_ + (th if st_ == 0 or not o.get('vw2', 1) else 1)))
                d = (accB, accA)[c >> 1] + 8 * (c & 1) + 4 * th
                a(f'v_mfma_f32_16x16x32_bf16 {vr(d, 4)}, {vr(Br + 4*(n % NB2), 4)}, {vr(Ar + 4*((2*st_ + th) % AD2), 4)}, ' + ('0' if st_ == 0 else vr(d, 4)))
                if n + LK2 < 64: b2_read(n + LK2, th)
            if n == o.get('prio2n', 18): a('s_setprio 0')
            if c in o.get('a2at', (0, 1)): a2_more(min(nx2 + 1, 2 * st_ + AD2))
            if c == 3 and AD2 == 4: a2_more(2 * st_ + 6)
        self.stamp('gemm2')
        if o.get('prio2', 1): a('s_setprio 0')
        S(T0, 'w*4096')
        a(f'v_add_u32 v{vT}, s{T0}, v{vG16}')
        for q in range(4): self.dw('ds_write_b128', vT, accB + 4 * q, 4, L_EXCH - GS + q * 1024)
        for i in range(8): a(f'v_permlane16_swap_b32 v{accA + 8*(i >> 2) + (i & 3)}, v{accA + 8*(i >> 2) + 4 + (i & 3)}')
        S(T0, '(w ^ 4)*4096'); va(vT + 1, [(0, 4, 16), (4, 1, 1024), (5, 1, 512)], T0)
        S(T0, 'kh*2048 + (w & 3)*512 + L_SP'); va(vT + 2, [(0, 5, 16), (5, 1, 8)], T0)
        S(T0, 'kh*64 + L_TB'); va(vT + 3, [(0, 3, 4), (5, 1, 32)], T0)
        vSG = V.alloc()
        S(T6, 'rt*32768 + w*256 + STAT'); va(vSG, [(0, 4, 16), (4, 2, 2048)])
        sm = Br; one = Br + 4
        a(f'v_mov_b32 v{one}, 0x3f803f80')
        fd = list(o['fdma']); assert sum(fd) == len(fq)
        self.stamp('exw')
        self.barrier()
        self.stamp('ex1')
        for q in range(4): self.r128(accB + 4 * q, vT + 1, L_EXCH - GS + (q >> 1) * 2048 + (q & 1) * 256, ('ex', q))
        ffn_dma(fd[0], T1)
        for h in range(2):
            for q in (2 * h, 2 * h + 1):
                lg.wait(('ex', q))
                self.pk('add', accA + 4 * q, accA + 4 * q, accB + 4 * q); self.pk('add', accA + 4 * q + 2, accA + 4 * q + 2, accB + 4 * q + 2)
            rg = range(8 * h, 8 * h + 8)
            self.round_list([accA + i for i in rg])
            for i in range(8 * h, 8 * h + 8, 2): self.pk('mul', accA + i, accA + i, gaf + i)
            self.round_list([accA + i for i in rg])
            for i in range(8 * h, 8 * h + 8, 2): self.pk('add', accA + i, accA + i, xf + i)
            for i in range(4 * h, 4 * h + 4): a(f'v_cvt_pk_bf16_f32 v{xr+i}, v{accA+2*i}, v{accA+2*i+1}')
        self.stamp('x1c')
        if MS:
            for t in range(2): a(f'v_mfma_f32_32x32x16_bf16 {vr(accB, 16)}, {vr(gp + 4*t, 4)}, {vr(xr + 4*t, 4)}, ' + ('0' if t == 0 else vr(accB, 16)))
            for i in range(8): a(f'v_dot2_f32_bf16 v{sm + (i & 1)}, v{xr+i}, v{xr+i}, ' + ('0' if i < 2 else f'v{sm + (i & 1)}'))
            a(f"""v_add_f32 v{sm+2}, v{sm}, v{sm+1}
            v_add_f32 v{sm}, v{sm}, v{sm+1}
            v_permlane32_swap_b32 v{sm}, v{sm+2}
            s_mov_b32 exec_lo, 0
            v_add_f32 v{accB}, v{sm}, v{sm+2}
            v_mov_b32 v{accB+1}, v{accB+2}
            s_mov_b32 exec_lo, -1""")
            self.dw('ds_write_b64', vT + 2, accB, 2)
        else:
            for i in range(8):
                for d, b in ((sm, one), (sm + 2, xr + i), (sm + 1, gp + i), (sm + 3, gp + 8 + i)):
                    a(f'v_dot2_f32_bf16 v{d}, v{xr+i}, v{b}, ' + ('0' if i == 0 else f'v{d}'))
            a(f"""v_permlane32_swap_b32 v{sm}, v{sm+2}
            v_permlane32_swap_b32 v{sm+1}, v{sm+3}""")
            self.pk('add', sm, sm, sm + 2)
            self.dw('ds_write_b64', vT + 2, sm, 2)
        for q in range(4): self.dw('ds_write_b32', vT + 3, tb4 + q, 1, 128 * q)
        a(f'v_add_u32 v{vT}, {L_SP}, v{vL16}')
        va(vT + 1, LCB)
        S(T0, '(rt*16 + cb)*2048 + STAT')
        S(T3, ('((rt & 1)*128 + (rt >> 1))*4096' if TL else '((rt & 3)*64 + (rt >> 2)*2)*4096') + ' + (cb >> 1)*64 + (cb & 1)*4 + INB + 1536')
        self.barrier()
        self.stamp('x1st')
        PR = o.get('crit', 3)
        a(f"""s_cmp_lg_u32 s{sWAVE}, 0
        s_cbranch_scc1 L_PE""")
        if PR: a(f's_setprio {PR}')
        for q in range(4): a(f'ds_read_b128 {vr(accB + 4*q, 4)}, v{vT} offset:{(q & 1) * 2048 + (q >> 1) * 1024}')
        for h in range(2):
            b = accB + 8 * h
            a(f's_waitcnt lgkmcnt({2 - 2*h})')
            self.pk('add', b, b, b + 4); self.pk('add', b + 2, b + 2, b + 6)
            a(f"""v_add_f32 v{b+1}, v{b+1}, v{b+3}
            v_mov_b32 v{b+3}, s{sTAG}""")
        if TL:
            self.bs2([(accB + 8 * h, 4, vL16, T0, 1024 * h) for h in range(2)])
            a('s_cbranch_scc1 L_PE')
        else:
            for h in range(2): self.bs(accB + 8 * h, 4, vL16, rWS, T0, 1024 * h, 'sc1', count=False)
        a('s_mov_b64 exec, 0xffff')
        self.bs(accB + 3, 1, vT + 1, rWS, T3, 0, 'sc1', count=False)
        if PR: a('s_setprio 0')
        a("""s_mov_b64 exec, -1
        L_PE:""")
        self.stamp('x1pub')
        if o.get('ccat', 3) == 2: c_clean()
        V.release(accA, 16); V.release(accB, 16); V.release(Ar, 4 * AD2); V.release(Br, 4 * NB2); V.release(vBa, 4); V.release(xf, 16); V.release(gaf, 16); V.release(gp, 16)
        x1 = V.alloc(16); hh = V.alloc(16); mf = V.alloc(32); sg = V.alloc(16); op = V.alloc(8)
        st = V.alloc(2); vRid = V.alloc(); ck = V.alloc(4); vOT = V.alloc()
        ct = V.alloc(12, 4)
        def e_work():
            S(T3, '(w & 3)*(32*144) + kh*64'); va(vOT, [(0, 5, 144), (5, 1, 32)], T3)
            for q in range(2): self.dw('ds_write_b128', vOT, xr + 4 * q, 4, L_XT + 16 * q)
            a(f'v_add_u32 v{vOT}, {L_OT}, v{vOT}')
            S(T2, '4094 - (rt*8 + w)*32'); va(vRid, [(0, 4, 2)]); a(f'v_sub_u32 v{vRid}, s{T2}, v{vRid}')
            S(T2, 'w*128 + L_ST2'); va(vT + 4, [(0, 4, 8)], T2)
            S(T2, '(w & 3)*256 + L_ST2'); va(vT + 6, [(0, 5, 8)], T2)
            va(vT + 7, [(0, 3, 8)], None, L_K1)
            self.finish_load('gr', ld_gr, [gr + 1])
            for ctl in ('quad_perm:[1,0,3,2]', 'quad_perm:[2,3,0,1]', 'row_half_mirror', 'row_ror:8'): self.dpp('v_add_f32', gr, gr, gr, ctl)
            a(f"""s_cmp_lg_u32 s{sWAVE}, 1
            s_cbranch_scc1 L_NOCT""")
            va(vT + 1, [(0, 4, 8)], None, L_TB)
            a(f"""ds_read_b64 {vr(ct + 2, 2)}, v{vT+1}
            ds_read_b64 {vr(ct + 6, 2)}, v{vT+1} offset:128
            ds_read_b64 {vr(ct + 8, 2)}, v{vT+1} offset:384
            s_waitcnt lgkmcnt(0)""")
            for b in (ct, ct + 4):
                self.unpack(b, b + 1, b + 2); self.unpack(b + 2, b + 3, b + 3)
            a('L_NOCT:')
        def f_pre(part):
            if part == 0:
                a(f"""s_cmp_lt_u32 s{sWAVE}, 4
                s_cbranch_scc1 L_NOST""")
                S(T0, '(w - 4)*4096 + L_GU')
                a(f'v_add_u32 v{vT}, s{T0}, v{vL16}')
                a(f'v_add_u32 v{vT+3}, {L_DN - L_GU}, v{vT}')
                for n, (m, i) in enumerate(freg):
                    for back in range(2):
                        self.dw('ds_write_b128', vT if m < 2 else vT + 3, big + 8 * n + 4 * back, 4, f_lds(m, i) - (L_GU if m < 2 else L_DN) + (1 - back) * 16384)
                a('L_NOST:')
                if fall:
                    S(T0, 'w*4096 + L_GU'); a(f'v_add_u32 v{vT}, s{T0}, v{vL16}')
                    for n, (m, i) in enumerate(fall):
                        assert m < 2
                        self.dw('ds_write_b128', vT, fb0 + 4 * n, 4, f_lds(m, i) - L_GU)
                return
            for i in range(8): self.unpack(x1 + 2 * i, x1 + 2 * i + 1, xr + i)
            expand(mf, tb4); expand(mf + 16, tb4 + 1)
        if TL:
            a(f"""s_cmp_lg_u32 s{sLOC}, 0
            s_cbranch_scc1 L_ELOC""")
            self.inbox(3, 2)
            a("""s_barrier
            L_ELOC:""")
        else:
            ffn_dma(fd[1])
            self.inbox(3, 2, work=lambda: (e_work(), f_pre(0)))
            a('s_barrier')
        self.stamp('x1ok')
        def ld_sg():
            for q in range(4):
                S(T0, 'T6 + q', q=q * 8192)
                self.bl(sg + 4 * q, 4, vSG, rWS, T0, 0, 'sc1')
        self.try_load(ld_sg, [sg + 3, sg + 7, sg + 11, sg + 15], vT, e_work if TL else lambda: f_pre(1))
        V.release(vSG)
        self.stamp('x1ld')
        if o.get('htouch', 1):
            S(T2, '(fs*4 + kq)*2048 + w*256 + HGR')
            vDum = V.alloc()
            a(f'v_lshlrev_b32 v{vDum}, 7, v{vL}')
            a('s_mov_b64 exec, 3')
            self.bl(vDum, 1, vDum, rWS, T2, 0, '')
            a('s_mov_b64 exec, -1')
        ffn_dma(fd[2], T2)
        A_, B_, C_, U_ = sg, sg + 1, sg + 2, sg + 3
        self.pk('add', sg, sg, sg + 4); self.pk('add', sg + 8, sg + 8, sg + 12)
        a(f"""v_add_f32 v{C_}, v{C_}, v{sg+6}
        v_add_f32 v{sg+10}, v{sg+10}, v{sg+14}""")
        self.pk('add', sg, sg, sg + 8)
        a(f"""v_add_f32 v{C_}, v{C_}, v{sg+10}
        v_mov_b32 v{U_}, v{B_}
        v_permlane32_swap_b32 v{A_}, v{C_}
        v_permlane32_swap_b32 v{B_}, v{U_}
        v_add_f32 v{A_}, v{A_}, v{C_}
        v_add_f32 v{B_}, v{B_}, v{U_}
        v_permlane16_swap_b32 v{A_}, v{B_}
        v_add_f32 v{U_}, v{A_}, v{B_}
        v_add_f32 v{A_}, v{A_}, v{B_}
        v_permlane16_swap_b32 v{A_}, v{U_}
        v_mul_f32 v{C_}, 0x3a800000, v{A_}
        v_mul_f32 v{A_}, 0x3a800000, v{A_}
        v_permlane32_swap_b32 v{A_}, v{C_}""")
        self.stat_math(A_, C_, st, st + 1)
        S(T0, 'w*8 + L_K1')
        a(f"""v_rcp_f32 v{st+1}, v{st+1}
        v_fma_f32 v{U_}, -v{st}, v{gr}, v{U_}
        v_mov_b32 v{vT+1}, s{T0}
        v_mul_f32 v{U_}, v{U_}, v{st+1}""")
        self.dw('ds_write_b64', vT + 4, st, 2)
        a(f"""s_movk_i32 s{T0}, 0xfff
        v_ashrrev_i32 v{A_}, 31, v{U_}
        v_or_b32 v{A_}, 0x80000000, v{A_}
        v_xor_b32 v{A_}, v{A_}, v{U_}
        v_bfi_b32 v{ck}, s{T0}, v{vRid}, v{A_}""")
        def top2(ctls, first):
            for n, ctl in enumerate(ctls):
                if n == 0 and first:
                    self.dpp('v_min_u32', ck + 1, ck, ck, ctl); self.dpp('v_max_u32', ck, ck, ck, ctl)
                    continue
                self.dpp('v_min_u32', ck + 2, ck, ck, ctl); self.dpp('v_max_u32', ck + 1, ck + 1, ck + 1, ctl); self.dpp('v_max_u32', ck, ck, ck, ctl)
                a(f'v_max_u32 v{ck+1}, v{ck+1}, v{ck+2}')
        top2(('row_ror:8', 'row_ror:4', 'row_ror:2', 'row_ror:1'), True)
        self.dw('ds_write_b64', vT + 1, ck, 2)
        va(vT + 2, [(0, 1, 128 * 4096), (1, 3, 4096)] if TL else [(0, 2, 64 * 4096), (2, 2, 2 * 4096)])
        S(T1, ('cb*32768' if TL else '((cb & 7)*8 + (cb >> 3))*4096') + ' + (rt >> 1)*64 + (rt & 1)*16 + INB + 2560')
        self.barrier()
        self.stamp('ln2')
        if PR:
            a(f"""s_cmp_ge_u32 s{sWAVE}, 2
            s_cbranch_scc1 L_PR1
            s_setprio {PR}
            L_PR1:""")
        self.dr('ds_read_b64', ck, 2, vT + 7, 0, 'k'); self.dr('ds_read_b64', st, 2, vT + 6, 0, 's')
        lg.wait('k')
        top2(('quad_perm:[1,0,3,2]', 'quad_perm:[2,3,0,1]', 'row_half_mirror'), False)
        a(f"""v_or_b32 v{ck+2}, 1, v{ck+1}
        v_mov_b32 v{ck+1}, s{sTAG}
        v_mov_b32 v{ck+3}, s{sTAG}
        s_cmp_lg_u32 s{sWAVE}, 0
        s_cbranch_scc1 L_NOF
        s_mov_b64 exec, 0xffff""")
        self.bs(ck, 4, vT + 2, rWS, T1, 0, 'sc1', count=False)
        a("""s_mov_b64 exec, -1
        L_NOF:""")
        self.stamp('Fpub')
        a(f"""s_cmp_lg_u32 s{sWAVE}, 1
        s_cbranch_scc1 L_NOC
        v_and_b32 v{vT}, 16, v{vL}
        v_cmp_eq_u32 vcc, 0, v{vT}
        v_cndmask_b32 v{vT}, v{ck+2}, v{ck}, vcc
        v_not_b32 v{vT}, v{vT}
        v_bfe_u32 v{vT}, v{vT}, 1, 7
        v_lshlrev_b32 v{vT+2}, 3, v{vT}
        v_mul_u32_u24 v{vT}, 144, v{vT}
        v_add_u32 v{vT+2}, {L_ST2}, v{vT+2}""")
        va(vT + 1, [(0, 4, 8)])
        cx, cs, ch = sg, sg + 4, sg + 8
        a(f"""v_add_u32 v{vT}, v{vT}, v{vT+1}
        ds_read_b64 {vr(cs, 2)}, v{vT+2}
        ds_read_b64 {vr(cx, 2)}, v{vT} offset:{L_XT}""")
        va(vT + 2, [(0, 4, 16), (4, 1, 16384), (5, 1, 4096)])
        va(vT + 3, [(4, 1, 16384), (0, 2, 16)])
        S(T0, 'rt*32768 + cb*256 + CAND'); S(T3, 'rt*32768 + cb*64 + 8192 + CAND')
        a(f"""v_mov_b32 v{cx+3}, s{sTAG}
        s_waitcnt lgkmcnt(0)""")
        self.unpack(ch, ch + 1, cx); self.unpack(ch + 2, ch + 3, cx + 1)
        for i in (0, 2): self.pk('add', ch + i, ch + i, cs, bc=(1,), neg=(1,))
        self.round_list([ch + i for i in range(4)])
        for i in (0, 2): self.pk('mul', ch + i, ch + i, cs + 1, bc=(1,))
        self.round_list([ch + i for i in range(4)])
        for i in (0, 2): self.pk('mul', ch + i, ch + i, ct + 4 + i)
        self.round_list([ch + i for i in range(4)])
        for i in (0, 2): self.pk('add', ch + i, ch + i, ct + i)
        a(f"""v_mov_b32 v{cx+2}, v{cx+1}
        v_mov_b32 v{cx+1}, s{sTAG}
        s_mov_b32 exec_hi, 0
        v_cvt_pk_bf16_f32 v{cx}, v{ch}, v{ch+1}
        v_cvt_pk_bf16_f32 v{cx+2}, v{ch+2}, v{ch+3}
        s_mov_b32 exec_hi, -1
        v_dot2_f32_bf16 v{cs}, v{cx}, v{ct+8}, 0
        v_mov_b32 v{cs+1}, s{sTAG}
        v_dot2_f32_bf16 v{cs}, v{cx+2}, v{ct+9}, v{cs}""")
        self.bs(cx, 4, vT + 2, rWS, T0, 0, 'sc1', count=False)
        for ctl in ('quad_perm:[1,0,3,2]', 'quad_perm:[2,3,0,1]', 'row_half_mirror', 'row_ror:8'): self.dpp('v_add_f32', cs, cs, cs, ctl)
        a(f"""v_mov_b32 v{cs+2}, v{cs}
        v_mov_b32 v{cs+3}, s{sTAG}
        s_mov_b64 exec, 0xf000f""")
        self.bs(cs, 4, vT + 3, rWS, T3, 0, 'sc1', count=False)
        a("""s_mov_b64 exec, -1
        L_NOC:""")
        V.release(ct, 12)
        def ln2_tile():
            for i in E2: self.pk('add', hh + i, x1 + i, st, bc=(1,), neg=(1,))
            self.round_list([hh + i for i in range(16)])
            for i in E2: self.pk('mul', hh + i, hh + i, st + 1, bc=(1,))
            self.round_list([hh + i for i in range(16)])
            for i in E2: self.pk('mul', hh + i, hh + i, mf + 16 + i)
            self.round_list([hh + i for i in range(16)])
            for i in E2: self.pk('add', hh + i, hh + i, mf + i)
            self.round_list([hh + i for i in range(16)])
        lg.wait('s')
        if PR: a('s_setprio 0')
        self.stamp('cand')
        if o.get('ccat', 3) == 3: c_clean()
        V.release(kc, 5); V.release(cf)
        ffn_dma(fd[3])
        uu = V.alloc(16); vGr = V.alloc(); vDr = V.alloc(); vXs = V.alloc()
        def out_calc():
            expand(mf, tb4 + 2)
            for i in E2: self.pk('mul', hh + i, hh + i, mf + i)
            self.round_list([hh + i for i in range(16)])
            for i in E2: self.pk('add', hh + i, hh + i, x1 + i)
            for i in range(8): a(f'v_cvt_pk_bf16_f32 v{op+i}, v{hh+2*i}, v{hh+2*i+1}')
            for q in range(2): self.dw('ds_write_b128', vOT, op + 4 * q, 4, 16 * q)
            S(T3, 'w*(16*144) + L_OT'); va(vOT, [(3, 3, 144), (0, 3, 16)], T3)
        oc = o.get('ocat', 2 if TL else 1); l2 = o.get('l2at', 1 if TL else 0)
        def f_work():
            if TL: f_pre(0); f_pre(1)
            if l2 == 0: ln2_tile()
            if oc == 0: out_calc()
            S(T0, '(w >> 2)*32768 + (w & 3)*32 + L_GU')
            va(vGr, [(4, 2, 8192), (2, 2, 128), (3, 2, 32), (0, 2, 8)]); a(f'v_xor_b32 v{vGr}, s{T0}, v{vGr}')
            S(T0, 'w*64')
            va(vDr, [(2, 1, 512), (3, 1, 4096), (5, 1, 2048), (2, 2, 64), (4, 1, 32), (0, 2, 8)])
            a(f'v_xor_b32 v{vDr}, s{T0}, v{vDr}'); a(f'v_add_u32 v{vDr}, {L_DN}, v{vDr}')
            va(vXs, [(0, 3, 16), (4, 2, 128)], None, L_XS)
            S(T0, 'w*16 + L_K2'); a(f'v_mov_b32 v{vT}, s{T0}')
            va(vT + 1, [(0, 3, 16)], None, L_K2)
            a(f'v_and_b32 v{vT+4}, 8, v{vL}')
            a(f'v_cmp_eq_u32 {sr(sCMP, 2)}, 0, v{vT+4}')
            self.stamp('oc')
        self.inbox(5, 8, (1, 3, 5, 7), f_work)
        P = sPL
        a(f"""s_min_u32 s{P+1}, s{P}, s{P+4}
        s_max_u32 s{P}, s{P}, s{P+4}
        s_max_u32 s{P+3}, s{P+2}, s{P+6}
        s_min_u32 s{P+2}, s{P+2}, s{P+6}
        s_max_u32 s{P+4}, s{P+1}, s{P+3}
        s_min_u32 s{P+1}, s{P+1}, s{P+3}
        v_mov_b32 v{uu}, s{P}
        v_mov_b32 v{uu+3}, s{P+2}
        v_mov_b32 v{uu+1}, s{P+4}
        v_mov_b32 v{uu+2}, s{P+1}""")
        self.dw('ds_write_b128', vT, uu, 4)
        self.stamp('F2p')
        V.release(big, 8 * len(freg) + 4 * nfa); V.release(gr, 2); V.release(vGR); V.release(vRid)
        ffn = V.alloc(48); ga_ = V.alloc(16); gb_ = V.alloc(16)
        vm.wait('gu')
        self.barrier()
        self.stamp('F2')
        def gu_frags():
            for s in range(8):
                self.tr(ffn + 4 * s, vGr, s * 1024); self.tr(ffn + 4 * s + 2, vGr, s * 1024 + 512)
        a(f"""s_cmp_lt_u32 s{sWAVE}, 4
        s_cbranch_scc1 L_CSEL""")
        fq0, vq0 = list(fq), list(vm.q)
        if not o.get('f4late', 1): ffn_dma(fd[4])
        gu_frags()
        if l2 == 1: ln2_tile()
        if oc == 1: out_calc()
        if o.get('f4late', 1): ffn_dma(fd[4])
        a("""s_branch L_CSELD
        L_CSEL:""")
        lg.reset(); fq[:] = fq0; vm.q = vq0
        if PR: a(f's_setprio {PR}')
        self.r128(uu, vT + 1)
        S(T0, 'w*512 + L_XS'); a(f'v_add_u32 v{vT+2}, s{T0}, v{vL8}')
        S(T0, 'w*4 + L_K3'); a(f'v_mov_b32 v{vT+3}, s{T0}')
        lg.wait_all()
        c4 = uu + 4
        for n, ctl in enumerate(('quad_perm:[1,0,3,2]', 'quad_perm:[2,3,0,1]', 'row_half_mirror')):
            for i in range(4): self.dpp('v_max_u32', c4 + i, uu + 3 - i, uu + i, ctl)
            if n == 2: break
            a(f"""v_max_u32 v{c4+4}, v{c4}, v{c4+2}
            v_max_u32 v{c4+5}, v{c4+1}, v{c4+3}
            v_min_u32 v{c4+6}, v{c4}, v{c4+2}
            v_min_u32 v{c4+7}, v{c4+1}, v{c4+3}
            v_max_u32 v{uu}, v{c4+4}, v{c4+5}
            v_min_u32 v{uu+1}, v{c4+4}, v{c4+5}
            v_max_u32 v{uu+2}, v{c4+6}, v{c4+7}
            v_min_u32 v{uu+3}, v{c4+6}, v{c4+7}""")
        for i in range(4): a(f'v_readfirstlane_b32 s{P+i}, v{c4+i}')
        a(f"""s_bitcmp1_b32 s{sWAVE}, 0
        s_cselect_b32 s{P}, s{P+1}, s{P}
        s_cselect_b32 s{P+2}, s{P+3}, s{P+2}
        s_bitcmp1_b32 s{sWAVE}, 1
        s_cselect_b32 s{P}, s{P+2}, s{P}
        s_and_b32 s{T2}, s{P}, 4095""")
        S(T0, '((15 - (T2 >> 8))*2 + (T2 & 1))*16384 + CAND'); S(T1, 'kq*1024 + T0'); S(T0, 'T0 + 8192')
        va(vT + 6, [(0, 4, 64)])
        def sel_work():
            self.stamp('sel')
            if PR: a('s_setprio 0')
            ffn_dma(fd[4], T3)
            gu_frags()
            if l2 == 1: ln2_tile()
            if oc == 1: out_calc()
            S(T2, 'T2*4 + w')
        self.try_load(lambda: (self.bl(uu + 4, 2, vT + 6, rWS, T0, 0, 'sc1'), self.bl(uu, 4, vL16, rWS, T1, 0, 'sc1')), [uu + 1, uu + 3, uu + 5], vT + 4, sel_work)
        if PR: a(f's_setprio {PR}')
        a(f'ds_write2_b32 v{vT+2}, v{uu}, v{uu+2} offset0:0 offset1:1'); lg.issue()
        for ctl in ('quad_perm:[1,0,3,2]', 'quad_perm:[2,3,0,1]', 'row_half_mirror', 'row_ror:8'): self.dpp('v_add_f32', uu + 4, uu + 4, uu + 4, ctl)
        a(f"""v_cvt_pk_bf16_f32 v{uu+4}, 0, v{uu+4}
        v_ashrrev_i32 v{uu+5}, 31, v{uu+4}
        v_or_b32 v{uu+5}, 0x80000000, v{uu+5}
        v_xor_b32 v{uu+4}, v{uu+4}, v{uu+5}
        v_and_b32 v{uu+4}, s{sMASK}, v{uu+4}
        v_or_b32 v{uu+4}, s{T2}, v{uu+4}""")
        self.dw('ds_write_b32', vT + 3, uu + 4, 1)
        if PR: a('s_setprio 0')
        a('L_CSELD:')
        V.release(vFG); V.release(vFD)
        a(f'v_mov_b32 v{vT}, {L_K3}')
        S(T1, 'fs*8192 + HGR'); S(T7, 'mf*kh*8192 + (kq*8 + w)*256 + T1')
        self.barrier()
        self.stamp('xsel')
        self.r128(uu, vT)
        lg.wait_all()
        a(f"""v_max_u32 v{uu+4}, v{uu}, v{uu+1}
        v_max_u32 v{uu+5}, v{uu+2}, v{uu+3}
        v_min_u32 v{uu+6}, v{uu}, v{uu+1}
        v_min_u32 v{uu+7}, v{uu+2}, v{uu+3}
        v_min_u32 v{uu+1}, v{uu+4}, v{uu+5}
        v_max_u32 v{uu}, v{uu+4}, v{uu+5}
        v_max3_u32 v{uu+1}, v{uu+1}, v{uu+6}, v{uu+7}
        v_cndmask_b32 v{vT}, v{uu+1}, v{uu}, {sr(sCMP, 2)}
        v_readfirstlane_b32 s{sK1}, v{uu}
        v_and_b32 v{vT}, 3, v{vT}
        v_readfirstlane_b32 s{sK2}, v{uu+1}
        v_lshl_add_u32 v{vT}, v{vT}, 9, v{vXs}""")
        self.r128(uu + 4, vT)
        if oc < 2:
            for q in range(2): self.r128(op + 4 * q, vOT, q * 8 * 144, 'ot')
        a(f"""s_bfe_u32 s{sROW0}, s{sK1}, {3 | (11 << 16)}
        s_bfe_u32 s{sROW1}, s{sK2}, {3 | (11 << 16)}
        s_sub_u32 s{sROW0}, 2047, s{sROW0}
        s_sub_u32 s{sROW1}, 2047, s{sROW1}
        s_waitcnt lgkmcnt({2 if oc < 2 else 0})""")
        gd = [ga_ + 4 * i for i in range(4)] + [gb_ + 4 * i for i in range(4)]
        for s in range(8):
            a(f'v_mfma_f32_16x16x32_bf16 {vr(gd[s], 4)}, {vr(uu + 4, 4)}, {vr(ffn + 4*s, 4)}, 0')
        p0, p1 = uu, uu + 2
        hk = V.alloc(5, 4)
        for p, b in ((p0, 0), (p1, 4)):
            a(f'v_add_f32 v{p}, v{gd[b]}, v{gd[b+1]+1}')
            a(f'v_add_f32 v{p+1}, v{gd[b+2]+2}, v{gd[b+3]+3}')
        a(f"""v_add_f32 v{p0}, v{p0}, v{p0+1}
        v_add_f32 v{p1}, v{p1}, v{p1+1}
        v_permlane16_swap_b32 v{p1}, v{p1+1}
        v_add_f32 v{hk}, v{p0}, v{p1+1}
        v_add_f32 v{hk+2}, v{p0}, v{p1+1}
        v_mov_b32 v{hk+1}, s{sTAG}
        v_mov_b32 v{hk+3}, s{sTAG}
        v_permlane32_swap_b32 v{hk}, v{hk+2}
        s_cmp_ge_u32 s{sJ}, 28
        s_cbranch_scc1 L_NOHP
        s_mov_b64 exec, 0xffff""")
        self.bs2([(hk, 4, vL16, T7, 0)])
        a(f"""s_mov_b64 exec, -1
        L_NOHP:
        v_add_u32 v{hk+4}, s{T7}, v{vL16}""")
        self.stamp('Hpub')
        vOr = V.alloc(); vOa = V.alloc()
        def out_store():
            S(T0, 'rt*128 + w*16'); va(vOr, [(3, 3, 1)], T0)
            S(T2, 'T0*2048 + cb*128'); S(T3, 'T2 + 16384')
            va(vOa, [(3, 3, 2048), (0, 3, 16)])
            for q in range(2):
                if q: a(f'v_add_u32 v{vOr}, 8, v{vOr}')
                a(f"""v_cmp_ne_u32 vcc, s{sROW0}, v{vOr}
                v_cmp_ne_u32 {sr(sCMP, 2)}, s{sROW1}, v{vOr}
                s_and_b64 exec, vcc, {sr(sCMP, 2)}""")
                self.bs(op + 4 * q, 4, vOa, rOUT, (T2, T3)[q], 0, o.get('outmod', 'sc1'), count=False)
                a('s_mov_b64 exec, -1')
        lg.wait('ot')
        if o.get('outat', 1) == 0: assert oc < 2; out_store()
        fz = V.alloc(4)
        sFR, sFK, sFC0 = T4, T5, T6
        a(f"""s_bitcmp1_b32 s{sX if TL else sRT}, {1 if TL else 2}
        s_cselect_b32 s{sFR}, s{sROW1}, s{sROW0}
        s_cselect_b32 s{sFK}, s{sK2}, s{sK1}
        s_cmp_lg_u32 s{sWAVE}, 7
        s_cbranch_scc1 L_NOFZ
        s_cmp_lg_u32 s2, 0
        s_cbranch_scc1 L_NONON
        v_mov_b32 v{vT+2}, s{sTAG}
        s_mov_b64 exec, 1""")
        self.bs(vT + 2, 1, vZ, rWS, '0', 0, 'sc1', count=False)
        a(f"""s_mov_b64 exec, -1
        L_NONON:""")
        S(sFC0, '(x >> 2)*2 + (x & 1)' if TL else '(rt >> 3)*2 + (rt & 1)')
        S(T7, '(cb*8 + x)*(56*128) + GGR' if TL else '(cb*8 + (rt >> 2)*2 + (rt & 1))*(56*128) + GGR')
        S(sU, 'T4*2048 + cb*128 + T6*32')
        va(vT + 6, [(0, 1, 4), (2, 1, 8), (1, 1, 16)])
        S(T0, 'T6*32 + L_GB'); a(f'v_add_u32 v{vT+1}, s{T0}, v{vT+6}')
        a(f'ds_read_b32 v{fz+2}, v{vT+1}')
        S(sK1, '((T4 >> 7)*2 + ((T5 >> 2) & 1))*16384 + cb*256 + T6*64 + CAND'); S(sK2, 'k1 + 4096')
        va(vT + 7, [(0, 1, 8), (2, 1, 16), (1, 1, 32)])
        ld_fz = lambda: (self.bl(st, 2, vT + 7, rWS, sK1, 0, 'sc1'), self.bl(fz, 2, vT + 7, rWS, sK2, 0, 'sc1'))
        q_ = list(vm.q); ld_fz(); vm.q = q_
        a(f"""s_and_b32 s{T0}, s{sFK}, s{sMASK}
        s_ashr_i32 s{T2}, s{T0}, 31
        s_andn2_b32 s{T2}, 0x7fff0000, s{T2}
        s_or_b32 s{T2}, s{T2}, 0x80000000
        s_xor_b32 s{T0}, s{T0}, s{T2}
        v_mov_b32 v{fz+3}, s{T0}
        v_mul_f32 v{fz+3}, s{sL2E}, v{fz+3}
        v_exp_f32 v{fz+3}, -v{fz+3}
        v_add_f32 v{fz+3}, 1.0, v{fz+3}
        v_rcp_f32 v{fz+3}, v{fz+3}""")
        self.round1(fz + 3)
        a(f"""L_NOFZ:
        s_cmp_lt_u32 s{sJ}, 28
        s_cbranch_scc1 L_HSEC""")
        if oc == 2:
            out_calc()
            self.barrier()
            for q in range(2): self.r128(op + 4 * q, vOT, q * 8 * 144)
            lg.wait_all()
        a("""s_branch L_GSEC
        L_HSEC:""")
        a(f"""s_cmp_lt_u32 s{sWAVE}, 4
        s_cbranch_scc1 L_HW""")
        if oc == 2: out_calc()
        a("""s_branch L_NOH
        L_HW:""")
        S(T0, 'w*256 + T1')
        va(vT, [(4, 2, 2048), (0, 4, 16)])
        S(T2, 'w*32 + L_ACT'); va(vT + 1, [(5, 1, 128), (2, 1, 16), (1, 1, 8), (3, 1, 4), (0, 1, 2)], T2)
        a(f"""s_cmp_lg_u32 s{sLOC}, 0
        s_cbranch_scc1 L_HLOC""")
        self.spoll([(q, 1, T0, q * 2048 + 1024 + 252) for q in range(4)], range(4))
        a('L_HLOC:')
        self.stamp('Hpre')
        g, u = ga_, ga_ + 4
        self.try_load(lambda: [self.bl(ga_ + 4 * m, 4, vT, rWS, T0, m * 1024, 'sc1') for m in range(2)], [g + 1, g + 3, u + 1, u + 3], vT + 2, out_calc if oc == 2 else None)
        a(f"""v_permlane32_swap_b32 v{g}, v{g+2}
        v_permlane32_swap_b32 v{u}, v{u+2}
        v_add_f32 v{g}, v{g}, v{g+2}
        v_add_f32 v{u}, v{u}, v{u+2}
        v_mov_b32 v{g+2}, v{g}
        v_mov_b32 v{u+2}, v{u}
        v_permlane16_swap_b32 v{g}, v{g+2}
        v_permlane16_swap_b32 v{u}, v{u+2}
        v_add_f32 v{g}, v{g}, v{g+2}
        v_add_f32 v{u}, v{u}, v{u+2}""")
        self.round2(g, u)
        self.silu(g, vT + 2)
        a(f"""v_mul_f32 v{g}, v{g}, v{u}
        v_cvt_pk_bf16_f32 v{g}, v{g}, v{g}
        ds_write_b16 v{vT+1}, v{g}
        L_NOH:""")
        va(vT, [(2, 1, 128), (5, 1, 16)], None, L_ACT)
        va(vT + 1, [(4, 2, 56 * 128), (0, 3, 16)])
        va(vT + 2, [(0, 2, 4096)] if TL else [(0, 1, 64 * 4096), (1, 1, 2 * 4096)])
        S(T0, '(kq*8 + w)*(4*56*128) + fs*128 + GGR')
        S(T1, ('(kq*8 + w)*16384' if TL else '(((kq & 1)*4 + (w >> 1))*8 + (w & 1)*4 + (kq >> 1))*4096') + ' + x*64 + (j >> 2)*4 + INB + 3072')
        vm.wait_all()
        self.barrier()
        self.stamp('Hok')
        for s in range(4):
            self.r128(ga_ + 4 * s, vT, s * 32, ('ac', s))
            self.tr(ffn + 32 + 4 * s, vDr, s * 8192, ('ac', s)); self.tr(ffn + 32 + 4 * s + 2, vDr, s * 8192 + 1024, ('ac', s))
        for s in range(4):
            lg.wait(('ac', s))
            a(f'v_mfma_f32_32x32x16_bf16 {vr(gb_, 16)}, {vr(ga_ + 4*s, 4)}, {vr(ffn + 32 + 4*s, 4)}, ' + ('0' if s == 0 else vr(gb_, 16)))
        if oc == 2:
            for q in range(2): self.r128(op + 4 * q, vOT, q * 8 * 144)
        a(f"""v_mov_b32_dpp v{gb_+2}, v{gb_} row_ror:8 row_mask:0xf bank_mask:0xf
        v_mov_b32 v{gb_+1}, s{sTAG}
        v_mov_b32 v{gb_+3}, s{sTAG}
        s_mov_b32 exec_lo, 0x00ff00ff
        s_mov_b32 exec_hi, 0x00ff00ff""")
        self.bs(gb_, 4, vT + 1, rWS, T0, 0, 'sc1')
        a('s_mov_b64 exec, 15')
        self.bs(gb_ + 1, 1, vT + 2, rWS, T1, 0, 'sc1')
        a('s_mov_b64 exec, -1')
        self.stamp('Gpub')
        def hclean():
            a('s_mov_b64 exec, 0xffff')
            self.bs(hk, 4, hk + 4, rWS, '0', 0, 'sc1', count=False)
            a('s_mov_b64 exec, -1')
        if o.get('hclean', 3) == 1: hclean()
        lg.wait_all()
        a('L_GSEC:')
        if o.get('outat', 1) == 1: out_store()
        a(f"""s_cmp_lt_u32 s{sJ}, 16
        s_cbranch_scc1 L_GF""")
        if o.get('outat', 1) == 2: out_store()
        if o.get('hclean', 3) >= 2:
            a(f"""s_cmp_ge_u32 s{sJ}, 28
            s_cbranch_scc1 L_FIN
            s_waitcnt vmcnt(0)""")
            hclean()
        a("""s_branch L_FIN
        L_GF:""")
        self.inbox(6, 8, range(7))
        self.stamp('Gpre')
        a('s_barrier')
        if o.get('hclean', 3) == 2: hclean()
        if o.get('hclean', 3) == 3:
            a(f"""s_cmp_eq_u32 s{sWAVE}, 7
            s_cbranch_scc1 L_G7
            s_barrier""")
            if o.get('outat', 1) == 2: out_store()
            hclean()
            a("""s_branch L_FIN
            L_G7:""")
        a(f"""s_cmp_lg_u32 s{sWAVE}, 7
        s_cbranch_scc1 L_FIN""")
        S(T0, 'T7 + 4096')
        gg = [ga_ + 4 * i for i in range(4)] + [uu + 4 * i for i in range(3)]
        self.poll(lambda: [self.bl(gg[n], 4, vL16, rWS, (T7, T0)[n >> 2], (n & 3) * 1024, 'sc1') for n in range(7)],
                  [gg[n] + 1 + 2 * e for n in range(7) for e in range(2)], vT)
        self.finish_load(None, ld_fz, [st + 1, fz + 1], vT)
        self.stamp('Gok')
        if o.get('hclean', 3) == 3: a('s_barrier')
        y0, y1 = gg[0], gg[0] + 1
        for lo, hi in ((0, 1), (2, 3), (4, 5), (0, 2), (4, 6), (0, 4)):
            for e in (0, 2): a(f'v_add_f32 v{gg[lo]+e}, v{gg[lo]+e}, v{gg[hi]+e}')
        a(f'v_mov_b32 v{y1}, v{gg[0]+2}')
        for y in (y0, y1): self.dpp('v_add_f32', y, y, y, 'row_ror:8')
        for sw in ('v_permlane16_swap_b32', 'v_permlane32_swap_b32'):
            for y in (y0, y1): a(f'v_mov_b32 v{y+2}, v{y}')
            for y in (y0, y1): a(f'{sw} v{y}, v{y+2}')
            self.pk('add', y0, y0, y0 + 2)
        a(f"""v_mov_b32_dpp v{y0+2}, v{y0} quad_perm:[0,2,0,2] row_mask:0xf bank_mask:0xf
        v_mov_b32_dpp v{y0+3}, v{y0} quad_perm:[1,3,1,3] row_mask:0xf bank_mask:0xf
        v_mov_b32_dpp v{y0}, v{y1} quad_perm:[0,2,0,2] row_mask:0xf bank_mask:0xf
        v_mov_b32_dpp v{y1}, v{y1} quad_perm:[1,3,1,3] row_mask:0xf bank_mask:0xf
        s_mov_b32 exec_lo, 0x33333333
        v_mov_b32 v{y0}, v{y0+2}
        v_mov_b32 v{y1}, v{y0+3}
        s_mov_b32 exec_lo, -1""")
        self.round2(y0, y1)
        self.pk('mul', y0, y0, fz + 3, bc=(1,))
        self.unpack(vT, vT + 1, st)
        self.round2(y0, y1)
        self.pk('add', y0, y0, vT)
        self.unpack(vT, vT + 1, fz + 2)
        self.round2(y0, y1)
        self.pk('mul', y0, y0, vT)
        self.unpack(vT, vT + 1, fz)
        self.round2(y0, y1)
        self.pk('add', y0, y0, vT)
        a(f'v_cvt_pk_bf16_f32 v{y0}, v{y0}, v{y1}')
        a('s_mov_b64 exec, 0xff')
        self.bs(y0, 1, vT + 6, rOUT, sU, 0, 'sc1')
        a('s_mov_b64 exec, -1')
        if o.get('outat', 1) == 2: out_store()
        if o.get('hclean', 3) == 3: hclean()
        a('L_FIN:')
        if o.get('exfil'):
            self.stamp('fin')
            a('s_waitcnt vmcnt(0)')
            self.stamp('finw')
            a(f'''s_lshl3_add_u32 s{T0}, s2, s{sWAVE}
            s_cmp_lg_u32 s{T0}, {o.get('exwho', 7)}
            s_cbranch_scc1 L_END
            v_readlane_b32 s{T0}, v255, 0
            v_readlane_b32 s{T1}, v255, 1
            v_readlane_b32 s{T2}, v255, 2
            s_sub_u32 s{T2}, s{T2}, s{T1}
            s_max_i32 s{T2}, s{T2}, 0
            s_min_u32 s{T2}, s{T2}, 10000
            s_mul_i32 s{T2}, s{T2}, 10
            s_add_u32 s{T2}, s{T2}, 6000
            L_PAD:
            s_memrealtime {sr(sTM, 2)}
            s_waitcnt lgkmcnt(0)
            s_sub_u32 s{T1}, s{sTM}, s{T0}
            s_cmp_lt_u32 s{T1}, s{T2}
            s_cbranch_scc1 L_PAD''')
        if o.get('padfin'):
            a(f'''s_lshl3_add_u32 s{T0}, s2, s{sWAVE}
            s_cmp_lg_u32 s{T0}, 7
            s_cbranch_scc1 L_END
            s_memrealtime {sr(sTM, 2)}
            s_waitcnt lgkmcnt(0)
            s_mov_b32 s{T0}, s{sTM}
            L_PAD2:
            s_memrealtime {sr(sTM, 2)}
            s_waitcnt lgkmcnt(0)
            s_sub_u32 s{T1}, s{sTM}, s{T0}
            s_cmp_lt_u32 s{T1}, {o['padfin']}
            s_cbranch_scc1 L_PAD2''')
        if self.prof:
            a('s_waitcnt vmcnt(0) lgkmcnt(0)')
            self.stamp('end')
            a(f's_memrealtime {sr(sTM, 2)}')
            a('s_waitcnt lgkmcnt(0)')
            a(f'v_writelane_b32 v255, s{sTM}, 61')
            S(T0, '(wg*8 + w)*256 + STAMPS')
            a(f'v_writelane_b32 v255, s{sSPIN}, 62')
            a(f'v_lshlrev_b32 v{vT+1}, 2, v{vL}')
            a(f'buffer_store_dword v255, v{vT+1}, {sr(rWS, 4)}, s{T0} offen')
            S(T0, 'T0 + 0x100000')
            a(f'buffer_store_dword v254, v{vT+1}, {sr(rWS, 4)}, s{T0} offen')
        a('L_END:')
        a('s_endpgm')
        return self

    def text(self):
        a = self.a
        npad = a.fix_hazards()
        errs = a.check_waits([NAME])
        for e in errs: print('WAITERR', e, file=sys.stderr)
        assert not errs
        hdr = open(os.path.join(os.path.dirname(os.path.abspath(__file__)), 'header.txt')).read()
        s = hdr + '; @launch grid=(256,1,1) block=(512,1,1) lds=163840\n'
        s += '.amdgcn_target "amdgcn-amd-amdhsa--gfx950"\n.text\n'
        s += f'.globl {NAME}\n.p2align 8\n.type {NAME},@function\n'
        body = a.text()
        import subprocess, tempfile
        with tempfile.TemporaryDirectory() as td:
            open(td + '/t.s', 'w').write('.amdgcn_target "amdgcn-amd-amdhsa--gfx950"\n.text\n' + body.replace('CODE_KB', '20480'))
            subprocess.run(['clang', '-x', 'assembler', '-target', 'amdgcn-amd-amdhsa', '-mcpu=gfx950', '-c', td + '/t.s', '-o', td + '/t.o'], check=True)
            subprocess.run(['llvm-objcopy', '-O', 'binary', '-j', '.text', td + '/t.o', td + '/t.bin'], check=True)
            size = os.path.getsize(td + '/t.bin')
        print('; code bytes', size, file=sys.stderr)
        s += body.replace('CODE_KB', str((size // 1024 + 1) * 1024))
        s += '.p2align 10\n.fill 768, 4, 0xbf800000\n'
        s += '.section .rodata,"a"\n' + kernel_desc(NAME, 256, 102)
        print(f'; vgpr hi {self.V.hi}, nops {npad}, instrs {sum(1 for k, _ in a.items if k == "ins")}', file=sys.stderr)
        return s


if __name__ == '__main__':
    import argparse, json
    ap = argparse.ArgumentParser()
    ap.add_argument('-o', default='/dev/stdout')
    ap.add_argument('--prof', action='store_true')
    ap.add_argument('--opts', default='{}')
    args = ap.parse_args()
    g = Gen(args.prof, json.loads(args.opts)).build()
    t = g.text()
    open(args.o, 'w').write(t)
    if args.prof: open(args.o + '.stamps', 'w').write(json.dumps(g.stnames))
```

```python
import sys, os
sys.path.insert(0, os.path.dirname(os.path.abspath(__file__)))
from asm import *

NAME = 'adaLN_cond__linear_kernel_hedgehog__moe_arch_mod__prompt_kernel'

NONCE = 0x0
CFL = 0x8000
MARK = 0x100
GR = 0x010000
MODP2 = 0x020000
SINB = 0x040000
AINB = 0x080000
INA = 0x200000
INB = 0x100000
HF = 0x400000
OF = 0x800000
STAT = 0xC00000
CAND = 0x2000000
HGR = 0x1400000
ZP = 0x1480000
GGR = 0x1500000
KVP = 0x1800000
KIN = 0x1C00000
STAMPS = 0x1600000
WS_BYTES = 268435456

SEC = 8320
SLOT = 3 * SEC
SCR = 6 * SLOT
L_A1 = SCR
L_M2 = SCR + 1024
L_ST = SCR + 2048
L_MP = SCR + 2560
L_WPHI = SCR + 6656
L_MB = SCR + 10752
L_XF = 147456
L_PHK = 0
L_V = 32768
WO_H0 = 32768
WO_H1 = 98304
GS = 0
L_KVF = GS
L_ZF = GS + 8192
L_EXCH = GS
L_MT = 139264
L_GU = 32768
L_DN = 98304
TS = 131072
L_SP = TS
L_ST2 = TS + 4096
L_K1 = TS + 5120
L_K2 = TS + 5184
L_K3 = TS + 5312
L_XS = TS + 5632
L_ACT = TS + 7680
L_TB = TS + 7936
L_GB = L_TB + 256
L_OT = TS + 8704
L_XT = GS

SPIN_LIMIT = 300000

sWAVE, sTAG, sSPIN, sMASK, sL2E = 3, 4, 5, 6, 7
sX, sJ, sR1, sHP, sCB = 8, 9, 10, 11, 12
T0, T1, T2, T3, T4, T5, T6, T7 = 13, 14, 15, 16, 17, 18, 19, 20
sRT = 21
sCMP = 22
sPL = 24
rWS, rX, rW, rWO, rWM, rWG, rWU, rWD, rOUT = 32, 36, 40, 44, 48, 52, 56, 60, 64
KA = 68
pWPHI, pWR, pC = KA + 4, KA + 10, KA + 18
sK1, sK2, sROW0, sROW1, sFS, sKQ, sKH, sKF = 68, 69, 70, 71, 74, 75, 76, 77
sFG, sFD, sU, sROT, sWB, sU0 = 80, 81, 82, 83, 84, 85
sWO2, sW1K, sMF = 88, 89, 90
sINB, sRow, sGTB, sC32 = 92, 93, 94, 95
sWC = 91
sXC = 94
pDBG = 30
sLOC = 93
XT = (96, 97, 98, 99)
sTM = 100
ENV = dict(wg=2, w=sWAVE, x=sX, j=sJ, r1=sR1, hp=sHP, cb=sCB, rt=sRT, row=sRow, gtb=sGTB, c32=sC32, kh=sKH, kf=sKF, fs=sFS, kq=sKQ,
           rot=sROT, wb=sWB, u0=sU0, wo2=sWO2, w1k=sW1K, mf=sMF, u=sU, fg=sFG, fd=sFD, T0=T0, T1=T1, T2=T2, T3=T3, T4=T4, T5=T5, T6=T6, T7=T7, row0=sROW0, row1=sROW1, k1=sK1, xc=sXC)


class Gen:
    def __init__(self, prof=False, opts=None):
        self.a = Asm()
        self.vm = Counter(self.a, 'vmcnt', 63)
        self.lg = Counter(self.a, 'lgkmcnt', 15)
        self.V = RegAlloc(254, 1)
        self.prof = prof
        self.nopk = False
        self.nst = 0
        self.stnames = []
        self.S = SExpr(self.a, ENV, {k: v for k, v in globals().items() if isinstance(v, int) and k.isupper() and k not in ENV}, XT)
        self.o = dict(AD=13, LOOK=6, wev=2, AD2=8, A20=6, wburst=(0, 3, 0, 0, 6, 6), wxor=3, LASTB=14, wsch={2: 6, 3: 3, 4: 6, 5: 3, 6: 6, 7: 3, 8: 6, 9: 6, 10: 6, 11: 6, 12: 6, 13: 3},
                      sched={1: 'm1 p2', 2: 's4', 3: 'm1', 4: 's4 p2', 5: 'm1', 6: 'g1', 7: 'm1 h p3', 8: 'g1', 9: 'g1', 10: 'g1', 11: 'g2', 12: 'g2', 13: 'R r1', 14: 'P K o4 f4', 15: 'f2'}, fdma=(3, 0, 1, 1, 1), wowin=(6, 0, 3))
        if opts: self.o.update(opts)

    def bl(self, dst, n, voff, srd, soff, imm=0, mods='', tag=None):
        op = {1: 'dword', 2: 'dwordx2', 4: 'dwordx4'}[n]
        so = soff if isinstance(soff, str) else (sr(soff))
        self.a(f'buffer_load_{op} {vr(dst, n)}, v{voff}, {sr(srd, 4)}, {so} offen' + (f' offset:{imm}' if imm else '') + (' ' + mods if mods else ''))
        self.vm.issue(tag)
    def bs(self, src, n, voff, srd, soff, imm=0, mods='', tag=None, count=True):
        op = {1: 'dword', 2: 'dwordx2', 4: 'dwordx4'}[n]
        so = soff if isinstance(soff, str) else (sr(soff))
        self.a(f'buffer_store_{op} {vr(src, n)}, v{voff}, {sr(srd, 4)}, {so} offen' + (f' offset:{imm}' if imm else '') + (' ' + mods if mods else ''))
        if count: self.vm.issue(tag)
    def bs2(self, items):
        a = self.a
        LL, D = a.label('LOC'), a.label('LOCD')
        a(f's_cmp_lg_u32 s{sLOC}, 0')
        a(f's_cbranch_scc1 {LL}')
        for src, n, voff, soff, imm in items: self.bs(src, n, voff, rWS, soff, imm, 'sc1', count=False)
        a(f's_branch {D}')
        a(f'{LL}:')
        for src, n, voff, soff, imm in items: self.bs(src, n, voff, rWS, soff, imm, '', count=False)
        a(f'{D}:')
    def dma(self, voff, srd, soff, imm=0, mods='', tag=None):
        self.a(f'buffer_load_dwordx4 v{voff}, {sr(srd, 4)}, {sr(soff)} offen' + (f' offset:{imm}' if imm else '') + (' ' + mods if mods else '') + ' lds')
        self.vm.issue(tag)
    def dr(self, op, dst, n, addr, off=0, tag=None):
        assert 0 <= off < 65536, off
        self.a(f'{op} {vr(dst, n)}, v{addr}' + (f' offset:{off}' if off else ''))
        self.lg.issue(tag)
    def tr(self, dst, addr, off, tag=None): self.dr('ds_read_b64_tr_b16', dst, 2, addr, off, tag)
    def r128(self, dst, addr, off=0, tag=None): self.dr('ds_read_b128', dst, 4, addr, off, tag)
    def dw(self, op, addr, src, n, off=0, tag=None):
        assert 0 <= off < 65536, off
        self.a(f'{op} v{addr}, {vr(src, n)}' + (f' offset:{off}' if off else ''))
        self.lg.issue(tag)
    def barrier(self):
        self.lg.wait_all()
        self.a('s_barrier')
    def stamp(self, name):
        ex = self.o.get('exfil')
        if ex and name in ex[:2]:
            self.a(f's_memrealtime {sr(sTM, 2)}')
            self.lg.wait_all()
            self.a(f'v_writelane_b32 v255, s{sTM}, {1 + ex.index(name)}')
        if not self.prof: return
        only = self.o.get('only')
        if only and name not in only and name != 'end': return
        self.a(f's_memtime {sr(sTM, 2)}')
        self.a(f's_memrealtime s[0:1]')
        self.lg.wait_all()
        self.a(f'v_writelane_b32 v255, s{sSPIN if self.o.get("spinst") and self.nst > 3 else sTM}, {self.nst}')
        self.a(f'v_writelane_b32 v254, s0, {self.nst}')
        self.stnames.append(name)
        self.nst += 1
        assert self.nst <= 60
    def unpack(self, lo, hi, src):
        self.a(f'v_lshlrev_b32 v{lo}, 16, v{src}')
        self.a(f'v_and_b32 v{hi}, s{sMASK}, v{src}')
    def round1(self, r):
        self.a(f'v_cvt_pk_bf16_f32 v{r}, 0, v{r}')
    def round2(self, r0, r1):
        self.round1(r0); self.round1(r1)
    def round_list(self, regs):
        for r in regs: self.round1(r)
    def pk(self, op, d, s0, s1, s2=None, bc=(), neg=()):
        srcs = [s0, s1] + ([s2] if s2 is not None else [])
        if self.nopk:
            for h in range(2):
                t = []
                for k, r in enumerate(srcs):
                    kind, n = r if isinstance(r, tuple) else ('v', r)
                    t.append(('-' if k in neg else '') + f'{kind}{n if k in bc else n + h}')
                e64 = '' if op == 'fma' else ('_e64' if (neg or t[1][0] == 's') else '')
                self.a(f'v_{op}_f32{e64} v{d+h}, ' + ', '.join(t))
            return
        txt, sel, selhi = [], [], []
        for k, r in enumerate(srcs):
            kind, n = r if isinstance(r, tuple) else ('v', r)
            if k in bc:
                txt.append(f'{kind}[{n & ~1}:{(n & ~1) + 1}]'); sel.append(n & 1); selhi.append(n & 1)
            else:
                assert n % 2 == 0
                txt.append(f'{kind}[{n}:{n+1}]'); sel.append(0); selhi.append(1)
        assert d % 2 == 0
        m = ''
        if any(sel): m += ' op_sel:[' + ','.join(map(str, sel)) + ']'
        if not all(selhi): m += ' op_sel_hi:[' + ','.join(map(str, selhi)) + ']'
        if neg:
            ng = ','.join('1' if k in neg else '0' for k in range(len(srcs)))
            m += f' neg_lo:[{ng}] neg_hi:[{ng}]'
        self.a(f'v_pk_{op}_f32 v[{d}:{d+1}], ' + ', '.join(txt) + m)
    def dpp(self, op, d, s0, s1, ctl):
        self.a(f'{op}_dpp v{d}, v{s0}, v{s1} {ctl} row_mask:0xf bank_mask:0xf')
    def allreduce(self, v, t, op='v_add_f32', lo=True, b3=True):
        if lo:
            self.dpp(op, v, v, v, 'quad_perm:[1,0,3,2]')
            self.dpp(op, v, v, v, 'quad_perm:[2,3,0,1]')
            self.dpp(op, v, v, v, 'row_half_mirror')
        self.dpp(op, v, v, v, 'row_ror:8')
        self.a(f'v_mov_b32 v{t}, v{v}')
        self.a(f'v_permlane16_swap_b32 v{v}, v{t}')
        self.a(f'{op} v{v}, v{v}, v{t}')
        self.a(f'v_mov_b32 v{t}, v{v}')
        self.a(f'v_permlane32_swap_b32 v{v}, v{t}')
        self.a(f'{op} v{v}, v{v}, v{t}')
    def poll(self, loads, tagregs, tmp=None):
        a = self.a
        L, D = a.label('POLL'), a.label('PDONE')
        a(f'{L}:')
        loads()
        self.vm.wait_all()
        self.tagcheck(tagregs, tmp)
        a(f's_cbranch_vccz {D}')
        a(f's_add_u32 s{sSPIN}, s{sSPIN}, 1')
        a(f's_cmp_lt_u32 s{sSPIN}, {SPIN_LIMIT}')
        a(f's_cbranch_scc1 {L}')
        a(f'{D}:')
    def weave(self, fn, extras):
        a = self.a
        keep = a.items; a.items = []
        fn()
        body = a.items; a.items = keep
        extras = list(extras); n = len(extras)
        for i, it in enumerate(body):
            while extras and (n - len(extras)) * len(body) <= i * n: extras.pop(0)()
            a.items.append(it)
        for e in extras: e()
    def tagcheck(self, tagregs, tmp):
        a = self.a
        if tagregs[0] == 'nan':
            if len(tagregs) == 3: a(f'v_max_u32 v{tmp}, v{tagregs[1]}, v{tagregs[2]}')
            a(f'v_cmp_eq_u32 vcc, -1, v{tmp if len(tagregs) == 3 else tagregs[1]}')
        elif len(tagregs) == 1:
            a(f'v_cmp_ne_u32 vcc, s{sTAG}, v{tagregs[0]}')
        else:
            a(f'v_bitop3_b32 v{tmp}, v{tagregs[0]}, v{tagregs[1]}, s{sTAG} bitop3:0x7e')
            for t in tagregs[2:]: a(f'v_bitop3_b32 v{tmp}, v{tmp}, v{t}, s{sTAG} bitop3:0xf6')
            a(f'v_cmp_ne_u32 vcc, 0, v{tmp}')
    def try_load(self, loads, tagregs, tmp=None, between=None, pre=None):
        a = self.a
        n0 = len(self.vm.q)
        loads()
        self.vm.q[-1] = tg = ('try', a.label('T'))
        if between: between()
        self.vm.wait(tg)
        OK = a.label('TOK')
        self.tagcheck(tagregs, tmp)
        a(f's_cbranch_vccz {OK}')
        q, l = list(self.vm.q), list(self.lg.q)
        if pre: pre()
        self.poll(loads, tagregs, tmp)
        self.vm.q, self.lg.q = q, l
        a(f'{OK}:')
    def finish_load(self, tg, loads, tagregs, tmp=None, pre=None):
        a = self.a
        self.vm.wait(tg)
        OK = a.label('TOK')
        self.tagcheck(tagregs, tmp)
        a(f's_cbranch_vccz {OK}')
        q, l = list(self.vm.q), list(self.lg.q)
        if pre: pre()
        self.poll(loads, tagregs, tmp)
        self.vm.q, self.lg.q = q, l
        a(f'{OK}:')
    def spoll(self, loads, checks, work=None, pipe=0):
        a = self.a
        L, C, D = a.label('SPOLL'), a.label('SCHK'), a.label('SDONE')
        def issue(note=''):
            for d, n, so, imm in loads:
                op = {1: 'dword', 2: 'dwordx2', 4: 'dwordx4', 8: 'dwordx8'}[n]
                a(f's_load_{op} {sr(sPL + d, n)}, {sr(rWS, 2)}, s{so} offset:{imm} glc' + note)
        if pipe:
            self.lg.wait_all()
            for k in checks: a(f's_not_b32 s{sPL + k}, s{sTAG}')
            issue(' ; nowait')
            if work: work()
            a(f'{L}:')
            a(f's_add_u32 s{sSPIN}, s{sSPIN}, 1')
            a(f's_cmp_ge_u32 s{sSPIN}, {SPIN_LIMIT}')
            a(f's_cbranch_scc1 {D}')
            ks = list(checks)
            a(f's_xor_b32 s{XT[0]}, s{sPL + ks[0]}, s{sTAG} ; nowait')
            for k in ks[1:]:
                a(f's_xor_b32 s{XT[1]}, s{sPL + k}, s{sTAG} ; nowait')
                a(f's_or_b32 s{XT[0]}, s{XT[0]}, s{XT[1]}')
            a(f's_cbranch_scc0 {D}')
            issue(' ; nowait')
            a(f's_sleep {pipe}')
            a(f's_branch {L}')
            a(f'{D}:')
            return
        if work:
            issue(); work()
            a(f's_branch {C}')
        a(f'{L}:')
        issue()
        a(f'{C}:')
        a(f's_add_u32 s{sSPIN}, s{sSPIN}, 1')
        a(f's_cmp_ge_u32 s{sSPIN}, {SPIN_LIMIT}')
        self.lg.wait_all()
        a(f's_cbranch_scc1 {D}')
        for k in checks:
            a(f's_cmp_lg_u32 s{sPL + k}, s{sTAG}')
            a(f's_cbranch_scc1 {L}')
        a(f'{D}:')
    def inbox(self, box, n, checks=None, work=None, pipe=0):
        self.spoll([(0, n, sINB, box * 512)], range(n) if checks is None else checks, work, pipe)
    def va(self, dst, terms, sreg=None, const=0, tmp=None):
        a = self.a; vL = self.vL
        first = True
        for sh, bits, mult in terms:
            full = sh + bits >= 6
            src = vL
            t = dst if first else tmp
            if sh == 0 and full: pass
            elif full: a(f'v_lshrrev_b32 v{t}, {sh}, v{vL}'); src = t
            elif sh == 0: a(f'v_and_b32 v{t}, {(1 << bits) - 1}, v{vL}'); src = t
            else: a(f'v_bfe_u32 v{t}, v{vL}, {sh}, {bits}'); src = t
            p2 = mult & (mult - 1) == 0
            k = mult.bit_length() - 1
            if first:
                if p2 and sreg is not None: a(f'v_lshl_add_u32 v{dst}, v{src}, {k}, s{sreg}'); sreg = None
                elif p2 and k: a(f'v_lshlrev_b32 v{dst}, {k}, v{src}')
                elif p2:
                    if src != dst: a(f'v_mov_b32 v{dst}, v{src}')
                else: a(f'v_mul_u32_u24 v{dst}, {mult}, v{src}')
            else:
                assert p2
                a(f'v_lshl_add_u32 v{dst}, v{src}, {k}, v{dst}')
            first = False
        if sreg is not None: a(f'v_add_u32 v{dst}, s{sreg}, v{dst}')
        if const: a(f'v_add_u32 v{dst}, {const}, v{dst}')
    def push(self, vaddr, soff, nl, vtmp, lab, wave=0):
        a = self.a
        a(f's_cmp_lg_u32 s{sWAVE}, {wave}')
        a(f's_cbranch_scc1 {lab}')
        a(f'v_mov_b32 v{vtmp}, s{sTAG}')
        a(f's_mov_b32 exec_hi, 0')
        if nl < 32: a(f's_mov_b32 exec_lo, {(1 << nl) - 1}')
        self.bs(vtmp, 1, vaddr, rWS, soff, 0, 'sc1', count=False)
        a('s_mov_b64 exec, -1')
        a(f'{lab}:')
    def silu(self, v, t):
        a = self.a
        a(f'v_mul_f32 v{t}, s{sL2E}, v{v}')
        a(f'v_exp_f32 v{t}, -v{t}')
        a(f'v_add_f32 v{t}, 1.0, v{t}')
        a(f'v_rcp_f32 v{t}, v{t}')
        a(f'v_mul_f32 v{v}, v{v}, v{t}')
        self.round1(v)
    def gemv_ops(self, wregs, cregs, acc, t0, t1, packed):
        ops = []
        assert t0 % 2 == 0 and t1 == t0 + 1
        for i, (w, c) in enumerate(zip(wregs, cregs)):
            cp = f'v[{c & ~1}:{(c & ~1) + 1}]'
            for d in range(4):
                tt = t0 + 2 * (d & 1)
                ops.append(f'v_lshlrev_b32 v{tt}, 16, v{w+d}')
                ops.append(f'v_and_b32 v{tt+1}, s{sMASK}, v{w+d}')
                ac = f'v[{acc+2*d}:{acc+2*d+1}]'
                if not packed:
                    for h in range(2): ops.append(f'v_mul_f32 v{acc+2*d+h}, v{tt+h}, v{c}' if i == 0 else f'v_fmac_f32 v{acc+2*d+h}, v{tt+h}, v{c}')
                elif i == 0: ops.append(f'v_pk_mul_f32 {ac}, v[{tt}:{tt+1}], {cp} op_sel:[0,{c & 1}] op_sel_hi:[1,{c & 1}]')
                else: ops.append(f'v_pk_fma_f32 {ac}, v[{tt}:{tt+1}], {cp}, {ac} op_sel:[0,{c & 1},0] op_sel_hi:[1,{c & 1},1]')
        for i in range(4): ops.append(f'v_permlane32_swap_b32 v{acc+i}, v{acc+4+i}')
        for i in range(4): ops.append(f'v_add_f32 v{acc+i}, v{acc+i}, v{acc+4+i}')
        for i in range(2): ops.append(f'v_permlane16_swap_b32 v{acc+i}, v{acc+2+i}')
        for i in range(2): ops.append(f'v_add_f32 v{acc+i}, v{acc+i}, v{acc+2+i}')
        for i in range(2): ops.append(f'v_add_f32_dpp v{acc+i}, v{acc+i}, v{acc+i} row_ror:8 row_mask:0xf bank_mask:0xf')
        ops.append(f'v_mov_b32_dpp v{acc}, v{acc+1} quad_perm:[0,1,2,3] row_mask:0xf bank_mask:0xc')
        return ops
    def sum8(self, b):
        self.pk('add', b, b, b + 2); self.pk('add', b + 4, b + 4, b + 6); self.pk('add', b, b, b + 4)
        self.a(f'v_add_f32 v{b}, v{b}, v{b+1}')
    def softmax_pm(self, p, e, out, t, mid=None, part=0, split=0):
        a = self.a
        mx, mn, u0, u1, s0, s1 = t, t + 1, t + 2, t + 3, t + 4, t + 6
        if part != 2:
            self.round_list([p + i for i in range(16)])
            a(f'v_max3_f32 v{mx}, v{p}, v{p+1}, v{p+2}')
            a(f'v_min3_f32 v{mn}, v{p}, v{p+1}, v{p+2}')
            for i in range(3, 15, 2):
                a(f'v_max3_f32 v{mx}, v{mx}, v{p+i}, v{p+i+1}')
                a(f'v_min3_f32 v{mn}, v{mn}, v{p+i}, v{p+i+1}')
            a(f'v_max_f32 v{u0}, v{mx}, v{p+15}')
            a(f'v_min_f32 v{u1}, v{mn}, v{p+15}')
            a(f'v_max_f32 v{mx}, v{mx}, v{p+15}')
            a(f'v_min_f32 v{mn}, v{mn}, v{p+15}')
            a(f'v_permlane32_swap_b32 v{mx}, v{u0}')
            a(f'v_permlane32_swap_b32 v{mn}, v{u1}')
            a(f'v_max_f32 v{mx}, v{mx}, v{u0}')
            a(f'v_min_f32 v{mn}, v{mn}, v{u1}')
            self.pk('mul', mx, mx, ('s', sL2E), bc=(1,))
            for i in range(0, 16, 2):
                self.pk('fma', e + i, p + i, ('s', sL2E), mx, bc=(1, 2), neg=(2,))
                self.pk('fma', p + i, p + i, ('s', sL2E), mn, bc=(1, 2), neg=(0,))
        for i in range(split if part == 2 else 0, 16):
            if mid and i == mid[0]: mid[1]()
            if part == 1 and i == split: return
            a(f'v_exp_f32 v{e+i}, v{e+i}')
            a(f'v_exp_f32 v{p+i}, v{p+i}')
        self.pk('add', s0, e, e + 2); self.pk('add', s1, p, p + 2)
        for i in range(4, 16, 2):
            self.pk('add', s0, s0, e + i); self.pk('add', s1, s1, p + i)
        a(f'v_add_f32 v{u0}, v{s0}, v{s0+1}')
        a(f'v_add_f32 v{u1}, v{s1}, v{s1+1}')
        a(f'v_add_f32 v{mx}, v{s0}, v{s0+1}')
        a(f'v_add_f32 v{mn}, v{s1}, v{s1+1}')
        a(f'v_permlane32_swap_b32 v{mx}, v{u0}')
        a(f'v_permlane32_swap_b32 v{mn}, v{u1}')
        self.pk('add', mx, mx, u0)
        a(f'v_rcp_f32 v{mx}, v{mx}')
        a(f'v_rcp_f32 v{mn}, v{mn}')
        for i in range(0, 16, 2):
            self.pk('mul', e + i, e + i, mx, bc=(1,))
            self.pk('mul', p + i, p + i, mn, bc=(1,))
        for i in range(8):
            a(f'v_cvt_pk_bf16_f32 v{out+i}, v{e+2*i}, v{e+2*i+1}')
            a(f'v_cvt_pk_bf16_f32 v{out+8+i}, v{p+2*i}, v{p+2*i+1}')
    def ln_stats(self, xp, t, m_out, sd_out, fill=()):
        a = self.a
        fill = list(fill)
        def pad(n):
            for _ in range(n):
                if fill: a(fill.pop(0))
        s, u = t, t + 4
        a(f'v_mov_b32 v{u}, 0x3f803f80')
        for i in range(8):
            k = 2 * (i & 1)
            a(f'v_dot2_f32_bf16 v{s+k}, v{xp+i}, v{u}, ' + ('0' if i < 2 else f'v{s+k}'))
            a(f'v_dot2_f32_bf16 v{s+k+1}, v{xp+i}, v{xp+i}, ' + ('0' if i < 2 else f'v{s+k+1}'))
        pad(3)
        self.pk('add', s, s, s + 2)
        for ctl in ('quad_perm:[1,0,3,2]', 'quad_perm:[2,3,0,1]', 'row_half_mirror', 'row_ror:8'):
            pad(2 if ctl.endswith('3,2]') else 1)
            self.dpp('v_add_f32', s, s, s, ctl); self.dpp('v_add_f32', s + 1, s + 1, s + 1, ctl)
        pad(2)
        a(f'v_permlane16_swap_b32 v{s}, v{s+1}')
        a(f'v_add_f32 v{u}, v{s}, v{s+1}')
        a(f'v_add_f32 v{s}, v{s}, v{s+1}')
        pad(2)
        a(f'v_permlane32_swap_b32 v{s}, v{u}')
        a(f'v_add_f32 v{s}, v{s}, v{u}')
        a(f'v_mul_f32 v{u}, 0x3a800000, v{s}')
        a(f'v_mul_f32 v{s}, 0x3a800000, v{s}')
        pad(2)
        a(f'v_permlane16_swap_b32 v{s}, v{u}')
        a(f'v_fma_f32 v{sd_out}, -v{s}, v{s}, v{u}')
        a(f'v_cvt_pk_bf16_f32 v{m_out}, 0, v{s}')
        a(f'v_max_f32 v{sd_out}, 0, v{sd_out}')
        self.round1(sd_out)
        a(f'v_add_f32 v{sd_out}, 0x3727c5ac, v{sd_out}')
        self.round1(sd_out)
        a(f'v_sqrt_f32 v{sd_out}, v{sd_out}')
        pad(99)
        self.round1(sd_out)

    def stat_math(self, s, u, m_out, sd_out):
        a = self.a
        a(f'v_fma_f32 v{sd_out}, -v{s}, v{s}, v{u}')
        a(f'v_cvt_pk_bf16_f32 v{m_out}, 0, v{s}')
        a(f'v_max_f32 v{sd_out}, 0, v{sd_out}')
        self.round1(sd_out)
        a(f'v_add_f32 v{sd_out}, 0x3727c5ac, v{sd_out}')
        self.round1(sd_out)
        a(f'v_sqrt_f32 v{sd_out}, v{sd_out}')
        self.round1(sd_out)
    def ln_stats2(self, x0, x1, t, m_out, sd_out):
        a = self.a
        s0, s1, q0, q1, u = t, t + 1, t + 2, t + 3, t + 4
        a(f'v_mov_b32 v{u}, 0x3f803f80')
        for i in range(8):
            for xx, s_, q_ in ((x0, s0, q0), (x1, s1, q1)):
                a(f'v_dot2_f32_bf16 v{s_}, v{xx+i}, v{u}, ' + ('0' if i == 0 else f'v{s_}'))
                a(f'v_dot2_f32_bf16 v{q_}, v{xx+i}, v{xx+i}, ' + ('0' if i == 0 else f'v{q_}'))
        a(f"""v_permlane32_swap_b32 v{s0}, v{s1}
        v_permlane32_swap_b32 v{q0}, v{q1}
        v_add_f32 v{s0}, v{s0}, v{s1}
        v_add_f32 v{q0}, v{q0}, v{q1}
        v_permlane16_swap_b32 v{s0}, v{q0}
        v_add_f32 v{s0}, v{s0}, v{q0}""")
        for ctl in ('quad_perm:[1,0,3,2]', 'quad_perm:[2,3,0,1]', 'row_half_mirror', 'row_ror:8'): self.dpp('v_add_f32', s0, s0, s0, ctl)
        a(f"""v_mul_f32 v{q0}, 0x3a800000, v{s0}
        v_mul_f32 v{s0}, 0x3a800000, v{s0}
        v_permlane16_swap_b32 v{s0}, v{q0}""")
        self.stat_math(s0, q0, m_out, sd_out)

    def build(self):
        a, V, vm, lg, o, S = self.a, self.V, self.vm, self.lg, self.o, self.S
        E2 = range(0, 16, 2)
        TL = o.get('tl', 0)
        HL = o.get('hl', 1)
        D2 = o.get('d2', 1)
        LCB = [(0, 4, 8 * 4096)] if TL else [(0, 3, 8 * 4096), (3, 1, 4096)]
        a(f'{NAME}:')
        a(f's_load_dwordx16 {sr(KA, 16)}, s[0:1], 0')
        a(f's_load_dwordx8 {sr(KA + 16, 8)}, s[0:1], 64')
        a(f's_load_dwordx2 {sr(rWS, 2)}, s[0:1], 104')
        a(f's_load_dwordx2 {sr(pDBG, 2)}, s[0:1], 96')
        a('s_cmp_ge_u32 s2, 256')
        a('s_cbranch_scc1 L_END')
        if self.prof:
            a(f's_memrealtime {sr(sCMP, 2)}')
            a(f's_memtime {sr(sTM, 2)}')
            a('v_mov_b32 v255, 0')
            a('v_mov_b32 v254, 0')
            self.stnames.append('start'); self.nst = 1
        if o.get('exfil'): a(f's_memrealtime {sr(sTM, 2)}')
        vL = self.vL = V.alloc()
        vL16 = V.alloc()
        vZ = V.alloc()
        vT = V.alloc(8)
        va = lambda dst, terms, sreg=None, const=0: self.va(dst, terms, sreg, const, vT + 5)
        a(f"""v_lshrrev_b32 v{vT}, 6, v0
        v_and_b32 v{vL}, 63, v0
        v_mov_b32 v{vZ}, 0
        v_readfirstlane_b32 s{sWAVE}, v{vT}
        v_lshlrev_b32 v{vL16}, 4, v{vL}""")
        xr = V.alloc(8); acc = V.alloc(8); wphi = V.alloc(8); fr = V.alloc(8); vq = V.alloc(8); vv = V.alloc(8)
        vWM = V.alloc(); vCo = V.alloc(); vWd = V.alloc(); vL8 = V.alloc(); vL32S = V.alloc(); vGA = V.alloc()
        vB = V.alloc(6, 1); vFG = V.alloc(); vFD = V.alloc(); vWo = V.alloc(); vPW = V.alloc(); vXF = V.alloc()
        S(sX, 'wg & 7'); S(sJ, 'wg >> 3')
        S(T2, '(x*4 + w)*64')
        S(T0, 'T2*6144 + (j ^ 1)*128')
        va(vWM, [(3, 3, 4 * 12288), (0, 3, 16)])
        va(vCo, [(3, 3, 8)], T2)
        S(T3, '((x*32 + j)*4 + w - 4)*4096')
        for srd, size in ((rWM, 12582912), (rX, 4194304), (rWS, WS_BYTES)):
            a(f's_mov_b32 s{srd+2}, {size}')
            a(f's_mov_b32 s{srd+3}, 0x20000')
        a(f's_getreg_b32 s{sXC}, hwreg(HW_REG_XCC_ID, 0, 3)')
        if o.get('fakexcc') is not None: a(f's_and_b32 s{sXC}, s{sXC}, {o["fakexcc"]}')
        a(f"""s_getpc_b64 {sr(sCMP, 2) if not self.prof else sr(sPL, 2)}""")
        S(T6, '(j*7 + w)*128')
        va(vT + 6, [(5, 1, 28672)], T6)
        a(f"""v_min_u32 v{vT+6}, CODE_KB, v{vT+6}
        s_cmp_ge_u32 s{sWAVE}, 4
        s_waitcnt lgkmcnt(0)""")
        if self.prof:
            a(f'v_writelane_b32 v255, s{sTM}, 0')
            a(f'v_writelane_b32 v255, s{sCMP}, 63')
            a(f'v_writelane_b32 v254, s{sCMP}, 0')
            a(f's_mov_b64 {sr(sCMP, 2)}, {sr(sPL, 2)}')
        if o.get('exfil'):
            for k in range(3): a(f'v_writelane_b32 v255, s{sTM}, {k}')
        self.stamp('karg')
        raw = V.alloc(16); cv = V.alloc(4); vTk = V.alloc(2)
        xs = V.alloc(16); st = V.alloc(4); mq = V.alloc(4); vMB = V.alloc(2)
        a(f"""s_mov_b64 {sr(rWM, 2)}, {sr(KA + 20, 2)}
        s_mov_b64 {sr(rX, 2)}, {sr(KA, 2)}
        s_load_dword s{sTAG}, {sr(rWS, 2)}, {NONCE}
        s_cbranch_scc1 L_FS""")
        def setup():
            for srd, size in ((rW, 6291456), (rWO, 2097152), (rWG, 7340032), (rWU, 7340032), (rWD, 7340032), (rOUT, 4194304)):
                a(f's_mov_b32 s{srd+2}, {size}')
                a(f's_mov_b32 s{srd+3}, 0x20000')
            for srd, k in ((rW, 2), (rWO, 6), (rWG, 12), (rWU, 14), (rWD, 16), (rOUT, 22)):
                a(f's_mov_b64 {sr(srd, 2)}, {sr(KA + k, 2)}')
            a(f"""s_mov_b32 s{sSPIN}, 0
            s_mov_b32 s{sMASK}, 0xffff0000
            s_mov_b32 s{sL2E}, 0x3fb8aa3b""")
            S(sKH, 'w >> 2')
            va(vT + 2, [(4, 1, 64)]); va(vWd, [(0, 3, 16)])
            a(f'v_xor_b32 v{vWd}, v{vWd}, v{vT+2}'); va(vT + 2, [(3, 3, 6144)]); a(f'v_add_u32 v{vWd}, v{vWd}, v{vT+2}')
            va(vL8, [(0, 6, 8)])
            va(vL32S, [(0, 5, 32)], None, SCR)
            S(T0, '(w & 3)*4 + SCR')
            va(vGA, [(4, 2, 32), (0, 3, 128), (3, 1, 16)], T0)
            S(T1, '((j >> 4)*128 + w*8 + x)*1024 + (j & 15)*64 + SINB' if TL else '((x & 6) + ((x & 1)*2 + (j >> 4))*64 + w*8)*1024 + (j & 15)*64 + SINB')
        def tag_hash():
            a(f"""s_mul_i32 s{sTAG}, s{sTAG}, 0x9e3779b1
            s_add_u32 s{sTAG}, s{sTAG}, 0x7f4a7c15""")
        def code_pf():
            a(f's_and_b32 s{sCMP}, s{sCMP}, 0xfffffc00')
            a(f'global_load_dword v{vTk}, v{vT+6}, {sr(sCMP, 2)}')
        wq = [(n, t) for n in range(16) for t in range(3)]
        def w_base(n, wexpr):
            if n < 4 and o.get('wxor', 1):
                if o.get('wxor', 1) < 3: S(T7, '((j >> 4)*2) ^ n' if o.get('wxor', 1) == 1 else o.get('wxe', '((j >> 4) + (x >> 2)*2) ^ n'), n=n)
                else:
                    S(T7, o.get('wxe', 'j & 3' if HL else '(j >> 4) + (x >> 2)*2'))
                    if n: a(f's_cmp_le_u32 s{T7}, {n - 1}'); a(f's_cselect_b32 s{T7}, {n}, {n - 1}')
                S(sU, f'(((T7 + u0) & 15)*8 + {wexpr})*(8*6144) + hp*128')
                S(T7, f'T7*SLOT + (({wexpr}) >> 1)*2080 + (({wexpr}) & 1)*1056')
            else:
                S(sU, f'(((u0 + n) & 15)*8 + {wexpr})*(8*6144) + hp*128', n=n)
                S(T7, f'(({wexpr}) >> 1)*2080 + (({wexpr}) & 1)*1056 + q', q=(n % 6) * SLOT)
        def w_slot(n, t):
            S('m0', 'T7 + q', q=t * SEC)
            self.dma(vWd, rW, sU, 0, o.get('wmod', ''), ('W', n))
            if t < 2: S(sU, 'u + 2048')
        def w_next(cnt=1):
            for _ in range(cnt):
                n, t = wq.pop(0)
                if t == 0: w_base(n, 'w')
                w_slot(n, t)
        wb = list(o['wburst'])
        def w_early():
            if not o.get('wearly'): return
            S(sHP, '(x & 3)*4 + ((j & 3) ^ q)', q=o.get('hpx', 2)); S(sU0, o.get('u0', 'j & 12'))
            w_next(o['wearly'])
        def st_prep():
            va(vT + 1, [(0, 2, 16)], None, L_ST)
            va(vT, [(0, 2, 16), (2, 1, 65536 if TL else 1024)])
            va(vT + 7, [(0, 5, 2048), (5, 1, 32)])
            va(vT + 2, [(0, 1, 64 * 512 if TL else 512), (1, 1, 256)])
            S(T2, ('((j >> 4)*128 + w*8 + x)*512' if TL else '((x & 6) + ((x & 1)*2 + (j >> 4))*64 + w*8)*512') + ' + ((j >> 2) & 3)*64 + (j & 3)*4 + 16 + INA')
        a(f'global_load_dwordx2 {vr(cv, 2)}, v{vCo}, {sr(pC, 2)}'); vm.issue('c')
        for i in range(4):
            self.bl(raw + 4 * i, 4, vWM, rWM, T0, 0, o.get('ntwm', 'nt'), ('wm', i))
            if i < 3: S(T0, 'T0 + 12288')
        a('s_barrier')
        if o.get('bar1', 1): a('s_barrier')
        code_pf(); vm.issue()
        setup()
        wq0 = list(wq); w_early(); wq[:] = wq0
        S(T0, '(((w*16 + ((j ^ 1) & 15))*2 + (j >> 4))*8 + x)*512 + AINB')
        S(T2, ('(((j ^ 1) & 15)*8 + w*2)*512' if TL else '(((j ^ 1) & 7)*8 + w*2 + ((j >> 3) & 1))*512') + ' + x*64 + (j >> 4)*4 + INA')
        va(vT + 6, [(0, 1, 128 * 512), (1, 1, 512)] if TL else [(0, 2, 64 * 512)])
        vm.wait('c')
        self.unpack(cv + 2, cv + 3, cv + 1)
        a(f'v_and_b32 v{cv+1}, s{sMASK}, v{cv}'); a(f'v_lshlrev_b32 v{cv}, 16, v{cv}')
        for i in range(4): self.silu(cv + i, vT + (i & 1))
        gops = self.gemv_ops([raw + 4 * i for i in range(4)], [cv + i for i in range(4)], acc, vT, vT + 1, True)
        for i in range(4):
            vm.wait(('wm', i))
            if i == 3: self.stamp('wmok')
            for s_ in gops[12 * i:12 * i + 12]: a(s_)
        for s_ in gops[48:]: a(s_)
        self.dw('ds_write_b32', vGA, acc, 1, L_A1 - SCR)
        self.barrier()
        def pair_sum(off):
            a(f'ds_read_b128 {vr(acc, 4)}, v{vL32S} offset:{off}')
            a(f'ds_read_b128 {vr(acc + 4, 4)}, v{vL32S} offset:{off + 16}')
            a('s_waitcnt lgkmcnt(0)')
            for b in (acc, acc + 4):
                a(f'v_add_f32 v{b}, v{b}, v{b+2}'); a(f'v_add_f32 v{b+1}, v{b+1}, v{b+3}')
            a(f"""v_add_f32 v{acc}, v{acc}, v{acc+1}
            v_add_f32 v{acc+2}, v{acc+4}, v{acc+5}
            v_mov_b32 v{acc+1}, s{sTAG}
            v_mov_b32 v{acc+3}, s{sTAG}
            s_mov_b32 exec_hi, 0""")
        tag_hash()
        pair_sum(L_A1 - SCR)
        self.bs(acc, 4, vL16, rWS, T0, 0, 'sc1')
        a('s_mov_b64 exec, 15')
        self.bs(acc + 1, 1, vT + 6, rWS, T2, 0, 'sc1')
        a('s_mov_b64 exec, -1')
        self.stamp('A1pub')
        if o.get('wpf', 0):
            S(T2, '(((xc >> 2)*2 + (xc & 1))*4 + (xc & 2))*128 + (j*32 + w*8)*6144')
            va(vT + 2, [(4, 2, 6144), (0, 4, 16)])
            for i in range(o['wpf']):
                S(T0, 'T2 + q', q=(i % 3) * 2048 + (i // 3) * 4 * 6144)
                self.bl(raw, 4, vT + 2, rW, T0, 0, o.get('wpfmod', ''))
        tl_ = o.get('tlb', '')
        if tl_:
            S(T2, 'wg*128'); va(vT + 2, [(0, 6, 1 << 21)], T2)
            tab = dict(W=rW, o=rWO, g=rWG, u=rWU, d=rWD, m=rWM, x=rX, O=rOUT)
            for k_, c_ in enumerate(tl_):
                a(f's_cmp_lg_u32 s{sWAVE}, {k_ & 3}')
                L_ = a.label('TLB'); a(f's_cbranch_scc1 {L_}')
                if c_ == 's':
                    a('s_mov_b64 exec, 0x1ffff'); self.bl(raw + 4, 1, vT + 2, rWS, '0', 0, '', None); vm.q.pop(); a('s_mov_b64 exec, -1')
                else: self.bl(raw + 4, 1, vT + 2, tab[c_], '0', 0, '', None); vm.q.pop()
                a(f'{L_}:')
        st_prep()
        a('s_branch L_FJ')
        qG = list(vm.q)
        a('L_FS:')
        vm.reset(); lg.reset()
        a('s_barrier')
        for i in range(4): self.bl(raw + 4 * i, 4, vL16, rX, T3, 1024 * i, o.get('xsmod', ''), 'xs')
        pw0 = o.get('pw0', 'ab')
        if 'a' in pw0:
            S(T4, '(wg*4 + w - 4)*128 + INA')
            for q in range(2): a(f's_load_dword s{sPL + q}, {sr(rWS, 2)}, s{T4} offset:{q * 64} glc')
        if 's' in pw0:
            S(T4, '(wg*4 + w - 4)*256 + SINB')
            for q in range(4): a(f's_load_dword s{sPL + 2 + q}, {sr(rWS, 2)}, s{T4} offset:{q * 64} glc')
        if 'b' in pw0:
            S(T4, '(wg*32 + w - 4)*128 + INB')
            for q in range(2): a(f's_load_dword s{sPL + q}, {sr(rWS, 2)}, s{T4} offset:{q * 64} glc ; nowait')
        a(f"""s_lshl_b32 s{T6}, s{sXC}, 5
        v_mov_b32 v{vTk}, 1
        v_mov_b32 v{vTk+1}, s{T6}""")
        if o.get('bar1', 1): a('s_barrier')
        a(f"""s_cmp_lg_u32 s{sWAVE}, 7
        s_cbranch_scc1 L_NOTK
        s_mov_b64 exec, 1
        global_atomic_add v{vTk}, v{vTk+1}, v{vTk}, {sr(pDBG, 2)} sc0 sc1
        s_mov_b64 exec, -1
        s_branch L_TK0
        L_NOTK:""")
        code_pf()
        a('L_TK0:')
        vm.issue('tk')
        setup()
        w_early()
        S(T0, '(w - 4)*16 + L_ST'); va(vT + 6, [(5, 1, 8)], T0)
        st_prep()
        a('s_barrier')
        vm.wait('xs')
        lg.wait_all()
        tag_hash()
        self.stamp('xsok')
        self.ln_stats2(raw, raw + 8, xs, st, st + 1)
        a(f"""v_lshrrev_b32 v{st}, 16, v{st}
        v_or_b32 v{st}, v{st}, v{st+1}
        v_mov_b32 v{st+1}, s{sTAG}""")
        self.dw('ds_write_b64', vT + 6, st, 2)
        a('L_FJ:')
        self.barrier()
        self.r128(st, vT + 1, 0, 'st')
        lg.wait('st')
        a('s_mov_b64 exec, 0xff')
        self.bs(st, 4, vT, rWS, T1, 0, 'sc1')
        a('s_mov_b64 exec, 15')
        self.bs(st + 1, 1, vT + 2, rWS, T2, 0, 'sc1')
        a('s_mov_b64 exec, -1')
        self.stamp('A2pub')
        a(f"""s_cmp_lg_u32 s{sWAVE}, 7
        s_cbranch_scc1 L_NOTK2
        s_mov_b32 s{T0}, 0
        s_waitcnt vmcnt({len(vm.q) - 1 - vm.q.index('tk')})
        L_TK:
        v_readfirstlane_b32 s{T2}, v{vTk}
        s_cmp_lt_u32 s{T2}, 32
        s_cbranch_scc1 L_TKOK
        v_mov_b32 v{vTk}, s{sTAG}
        s_mov_b64 exec, 1
        buffer_store_dword v{vTk}, v{vZ}, {sr(rWS, 4)}, 0 offen offset:{MARK} sc1
        s_mov_b64 exec, -1
        s_add_u32 s{T0}, s{T0}, 1
        s_cmp_lt_u32 s{T0}, 8
        s_cbranch_scc0 L_TKNO
        s_add_u32 s{sXC}, s{sXC}, 1
        s_and_b32 s{sXC}, s{sXC}, 7
        s_lshl_b32 s{T6}, s{sXC}, 5
        v_mov_b32 v{vTk}, 1
        v_mov_b32 v{vTk+1}, s{T6}
        s_mov_b64 exec, 1
        global_atomic_add v{vTk}, v{vTk+1}, v{vTk}, {sr(pDBG, 2)} sc0 sc1
        s_mov_b64 exec, -1
        s_waitcnt vmcnt(0)
        s_branch L_TK
        L_TKNO:
        s_and_b32 s{sXC}, s2, 7
        s_lshr_b32 s{T2}, s2, 3
        L_TKOK:
        s_lshl3_add_u32 s{T2}, s{T2}, s{sXC}""")
        if o.get('rawrole'): a(f's_mov_b32 s{T2}, s2')
        a(f"""v_mov_b32 v{vTk}, s{T2}
        ds_write_b32 v{vT+1}, v{vTk} offset:64
        L_NOTK2:""")
        self.barrier()
        a(f'ds_read_b32 v{mq}, v{vT+1} offset:64'); lg.issue('role')
        lg.wait('role')
        a(f'v_readfirstlane_b32 s2, v{mq}')
        self.stamp('role')
        V.release(raw, 16); V.release(cv, 4)
        S(T2, '(wg*8 + w)*64 + INA')
        ld_xt = lambda: [self.bl(xr + 4 * q, 4, vT + 7, rX, T5, 16 * q, o.get('xtmod', ''), 'xt') for q in range(2)]
        def role_prep():
            S(sX, 'wg & 7'); S(sJ, 'wg >> 3')
            S(sCB, 'j & 15' if TL else '(x & 1)*8 + (j & 7)')
            S(sRT, 'x*2 + (j >> 4)' if TL else '(x >> 1)*4 + (j >> 3)')
            S(sGTB, 'rt*4 + (w & 3)')
            S(sC32, 'cb*2 + kh')
            S(T5, 'gtb*65536 + c32*64')
            if not o.get('xtlate', 0): ld_xt()
            S(T0, '(((x >> 1)*16 + cb)*16 + w)*512 + AINB')
            S(T1, '(wg*4 + (w & 3))*256 + SINB')
            S(sR1, 'j & 15' if HL else '(x & 4)*2 + (j >> 2)'); S(sHP, '((x >> 2)*2 + (x & 1))*4 + (x & 2) + (j >> 4)' if HL else '(x & 3)*4 + ((j & 3) ^ 2)')
            S(sU0, o.get('u0', 'j & 12'))
            w_next(wb[0])
            S(sINB, '(wg*64 + w)*64 + INB')
            S(sKF, 'kh ^ (j >> 4)'); S(sROT, o.get('rot', '(((j >> 3) ^ j) & 1)*q + p'), q=4 if D2 else 8, p=8 * o.get('dflip', 1))
            S(sFS, 'x*7 + (j >> 2)'); S(sKQ, 'j & 3')
            va(vT + 4, [(0, 5, 8)])
            va(vT, [(0, 5, 16), (5, 1, 4096)])
            S(T3, 'w*4 + L_MP'); va(vT + 1, [(0, 6, 64)], T3)
            S(T3, 'kh*1024 + L_MP'); va(vT + 2, [(0, 4, 32), (5, 1, 512)], T3)
        self.spoll([(0, 8, T2, 0)], (0, 1, 4, 5, 6, 7), work=role_prep)
        self.stamp('apre')
        if o.get('abar', 2) == 1: a('s_barrier')
        st_ld = lambda: self.bl(st, 2, vT + 4, rWS, T1, 0, 'sc1', 'st')
        def st_fetch():
            st_ld()
            if o.get('abar', 2) == 2: a('s_barrier')
            if o.get('xtlate', 0): ld_xt()
            S(T3, 'hp*4096 + w*512')
            a(f'v_add_u32 v{vT+6}, s{T3}, v{vL16}')
            S('m0', 'w*512 + L_WPHI')
            a('s_mov_b32 exec_hi, 0')
            a(f'global_load_lds_dwordx4 v{vT+6}, {sr(pWPHI, 2)}'); vm.issue()
            a('s_mov_b32 exec_hi, -1')
            w_next(wb[1])
            S(T4, '(((rt*16 + cb)*4 + (w & 3))*2 + kh)*2048 + HF')
            va(vT + 6, [(0, 4, 16), (4, 1, 1024), (5, 1, 512)])
            S(T3, 'w*256 + L_MB'); va(vMB, [(0, 4, 4), (5, 1, 64)], T3); va(vMB + 1, [(5, 1, 64)], T3)
        self.try_load(lambda: self.bl(mq, 4, vT, rWS, T0, 0, 'sc1'), [mq + 1, mq + 3], vT + 3, st_fetch)
        self.stamp('modok')
        a(f'ds_write2_b32 v{vT+1}, v{mq}, v{mq+2} offset0:0 offset1:8'); lg.issue()
        if not o.get('xtlate', 0):
            for i in range(8): self.unpack(xs + 2 * i, xs + 2 * i + 1, xr + i)
        self.barrier()
        mp = V.alloc(16); hp = V.alloc(8)
        for i in (2, 3, 0, 1): self.r128(mp + 4 * i, vT + 2, (i >> 1) * 2048 + (i & 1) * 16, i >> 1)
        w_next(wb[2])
        self.finish_load('st', st_ld, [st + 1], None)
        if o.get('xtlate', 0):
            vm.wait('xt')
            for i in range(8): self.unpack(xs + 2 * i, xs + 2 * i + 1, xr + i)
        self.stamp('statok')
        self.unpack(st + 1, st, st)
        a(f'v_rcp_f32 v{st}, v{st}')
        for i in E2: self.pk('add', xs + i, xs + i, st + 1, bc=(1,), neg=(1,))
        lg.wait(1); self.sum8(mp + 8)
        self.round1(mp + 8)
        lg.wait(0); self.sum8(mp)
        a(f'v_add_f32 v{mp+8}, 1.0, v{mp+8}')
        self.round2(mp + 8, mp)
        PKM = o.get('pkm', 1)
        if PKM:
            mb = V.alloc(32)
            a(f'ds_write2_b32 v{vMB}, v{mp+8}, v{mp} offset0:0 offset1:32'); lg.issue()
            for q in range(8): self.r128(mb + 4 * q, vMB + 1, (q >> 2) * 128 + (q & 3) * 16, ('mb', q))
        for h in range(2):
            rg = range(8 * h, 8 * h + 8)
            self.round_list([xs + i for i in rg])
            for i in range(8 * h, 8 * h + 8, 2): self.pk('mul', xs + i, xs + i, st, bc=(1,))
            self.round_list([xs + i for i in rg])
        for h in range(2):
            rg = range(8 * h, 8 * h + 8)
            if PKM:
                lg.wait(('mb', 2 * h + 1))
                for i in range(8 * h, 8 * h + 8, 2): self.pk('mul', xs + i, xs + i, mb + i)
            else:
                for i in rg: self.dpp('v_mul_f32', xs + i, mp + 8, xs + i, f'row_newbcast:{i}')
            self.round_list([xs + i for i in rg])
            if PKM:
                lg.wait(('mb', 4 + 2 * h + 1))
                for i in range(8 * h, 8 * h + 8, 2): self.pk('add', xs + i, xs + i, mb + 16 + i)
            else:
                for i in rg: self.dpp('v_add_f32', xs + i, mp, xs + i, f'row_newbcast:{i}')
            for i in range(4 * h, 4 * h + 4): a(f'v_cvt_pk_bf16_f32 v{hp+i}, v{xs+2*i}, v{xs+2*i+1}')
            self.bs(hp + 4 * h, 4, vT + 6, rWS, T4, 256 * h, 'sc1', 'hs')
        if PKM: V.release(mb, 32)
        self.stamp('hst')
        w_next(wb[3])
        va(vB, [(5, 1, 2080), (2, 2, 128), (3, 1, 64), (0, 2, 8)])
        va(vB + 1, [(4, 1, 1056)])
        va(vB + 2, [(3, 1, 128)])
        a(f"""v_add_u32 v{vB}, v{vB}, v{vB+1}
        v_sub_u32 v{vB+1}, v{vB}, v{vB+2}
        v_add_u32 v{vB+1}, 64, v{vB+1}""")
        for q in (1, 2):
            for h in range(2): a(f'v_add_u32 v{vB+2*q+h}, {2*q*SLOT}, v{vB+h}')
        S(T1, 'kh*2048 + L_WPHI')
        va(vT, [(2, 2, 64), (4, 1, 32), (0, 2, 8), (5, 1, 512)], T1)
        va(vT + 1, [(0, 3, 4096), (3, 1, 128 * 4096)] if HL else [(0, 2, 8 * 4096), (2, 2, 4096)])
        S(T0, ('rt*32768' if HL else '((rt >> 3)*4 + (rt & 7)*32)*4096') + ' + (cb >> 1)*64 + (cb & 1)*4 + INB')
        va(vT + 2, [(4, 1, 64), (5, 1, 16)]); va(vWo, [(0, 3, 16)])
        a(f'v_xor_b32 v{vWo}, v{vWo}, v{vT+2}'); va(vT + 2, [(3, 3, 2048)]); a(f'v_add_u32 v{vWo}, v{vWo}, v{vT+2}')
        S(T1, '(w & 2)*32'); va(vT + 2, [(4, 1, 32)], T1); va(vFG, [(0, 3, 16)])
        a(f'v_xor_b32 v{vFG}, v{vFG}, v{vT+2}'); va(vT + 2, [(3, 3, 7168)]); a(f'v_add_u32 v{vFG}, v{vFG}, v{vT+2}')
        S(T1, '(w & 1)*128')
        va(vT + 2, [(5, 1, 64)], T1); va(vFD, [(0, 5, 16), (5, 1, 2048)])
        a(f'v_xor_b32 v{vFD}, v{vFD}, v{vT+2}')
        S(sFG, '(kq*8 + w)*(32*7168) + fs*128'); S(sFD, '(fs*8 + w)*16384 + kq*512')
        US = o.get('ush', 1)
        S(sMF, '(j >> 2) + q', q=US)
        a(f"""s_cmp_ge_u32 s{sMF}, 7
        s_cselect_b32 s{sMF}, {US - 7 & 0xffffffff}, {US}""")
        a(f"""s_cmp_ge_u32 s{sJ}, 28
        s_cselect_b32 s{rWG+2}, 0, s{rWG+2}
        s_cselect_b32 s{rWU+2}, 0, s{rWU+2}
        s_cselect_b32 s{rWD+2}, 0, s{rWD+2}""")
        if o.get('zm2'): a(f's_mov_b32 s{rWM+2}, 0')
        if o.get('zffn'):
            for r_ in (rWG, rWU, rWD): a(f's_mov_b32 s{r_+2}, 0')
        if o.get('zwo'): a(f's_mov_b32 s{rWO+2}, 0')
        vm.wait('hs')
        a('s_barrier')
        self.push(vT + 1, T0, 16, vT + 2, 'L_PB')
        self.stamp('hpub')
        V.release(xs, 16); V.release(mp, 16); V.release(hp, 8); V.release(st, 4); V.release(mq, 4); V.release(vTk, 2); V.release(vMB, 2)
        w_next(wb[4])
        for s in range(2):
            for u in range(2): self.tr(wphi + 4 * s + 2 * u, vT, s * 1024 + u * 256)
        AD, LOOK, LASTB = o['AD'], o.get('LOOK', 6), o['LASTB']
        accs = V.alloc(96)
        big = V.alloc(76)
        Br = big + 76 - 4 * (LOOK + 1)
        aslot = list(range(big, Br, 4)) + [fr, fr + 4, vq, vq + 4, vv, vv + 4, acc, acc + 4]
        assert AD <= len(aslot)
        S(T2, '(r1*64 + w)*4096 + HF')
        S(T0, '(w & 3)*4096 + L_XF'); a(f'v_add_u32 v{vXF}, s{T0}, v{vL16}')
        vXW = V.alloc(); vVW = V.alloc()
        va(vXW, [(0, 4, 16), (5, 1, 512), (4, 1, 8)], T0)
        S(T0, '(w & 3)*1024 + L_V'); va(vVW, [(0, 4, 32), (4, 2, 8)], T0)
        S(T0, '(w & 3)*1024 + kh*16384 + L_PHK'); va(vPW, [(0, 5, 32), (5, 1, 16)], T0)
        fq = ([(m, i) for i in range(4) for m in range(2)] if o.get('fmix', 1) else [(m, i) for m in range(2) for i in range(4)]) + [(2, i) for i in range(4)]
        freg = []
        def f_src(m, i, back=0, T0=T0):
            if m < 2: S(T0, 'fg + q' if m == 0 else 'mf*128 + fg + q', q=i * 8 * 7168 - back * 4 * 32 * 7168)
            else: S(T0, 'fd + q', q=i * 4096 - back * 4 * 16384)
            return (vFG, (rWG, rWU)[m]) if m < 2 else (vFD, rWD)
        def f_lds(m, i): return (L_GU + m * 32768 if m < 2 else L_DN) + i * 1024
        def ffn_reg(n):
            for _ in range(n):
                m, i = fq.pop(0)
                for back in range(2):
                    v, r = f_src(m, i, back)
                    self.bl(big + 8 * len(freg) + 4 * back, 4, v, r, T0, 0, o.get('ntffn', 'nt'), 'ffn')
                freg.append((m, i))
        def ffn_dma(n, T0=T0):
            for _ in range(n):
                m, i = fq.pop(0)
                if o.get('nofd'): continue
                v, r = f_src(m, i, 0, T0)
                S('m0', 'w1k*4 + q', q=f_lds(m, i))
                self.dma(v, r, T0, 0, o.get('ntffn', 'nt'), 'gu' if m < 2 else 'dn')
        S(sWB, 'w*16384' if D2 else '(rot*4 + w)*16384'); S(sWO2, '(j >> 4)*1048576 + cb*128'); S(sW1K, 'w*1024')
        def wo_dma(it, back=0, T0=T0):
            S(T0, '(((wb + q) & 0xfffff) ^ (rot*65536)) + (wo2 ^ h)' if D2 else '((wb + q) & 0xfffff) + (wo2 ^ h)', q=(8 * it - 4 * back) * 16384, h=(it >> 3) << 20)
            S('m0', 'w1k + q', q=WO_H0 + it * 8192 - 4096 * back)
            self.dma(vWo, rWO, T0, 0, '', 'wo')
        self.inbox(0, 2, work=lambda: w_next(wb[5]), pipe=o.get('pipeB', 0))
        assert len(wq) % 3 == 0 and 30 <= len(wq) <= (45, 36, 36, 42)[o.get('wxor', 1)]
        NPU = 16 - len(wq) // 3
        vm.wait(('W', (0, 2, 3, 1)[o.get('wxor', 1)]))
        a('s_barrier')
        self.stamp('hok')
        a(f"""s_cmp_ge_u32 s{sWAVE}, 4
        s_cbranch_scc1 L_HELP
        s_setprio 2""")
        q_hok = list(vm.q)
        if 'pad' in o:
            a('.p2align 6')
            for _ in range(o['pad']): a('s_nop 0')
        def a_load(sg):
            if sg % 4 == 0: S(T3, '((u0 + n) & q)*16384 + T2', n=sg // 4, q=o.get('amask', 15))
            self.bl(aslot[sg % AD], 4, vL16, rWS, T3, (sg % 4) * 1024, o.get('amod', 'sc1'), ('A', sg))
        CORD = [(1, 2), (1, 3), (1, 0), (1, 1)] + [(t, ct) for t in (0, 2) for ct in range(4)]
        WEV = o.get('wev', 2); NB = LOOK + 1
        def b_read(n, q):
            st_, c = divmod(n, 12); t, ct = CORD[c]
            slot = (st_ >> 1) % 6
            off = (slot & 1) * SLOT + t * SEC + (st_ & 1) * 4160 + (ct & 1) * 32 + q * 512
            self.tr(Br + 4 * (n % NB) + 2 * q, vB + 2 * (slot >> 1) + (ct >> 1), off, ('B', n))
        nxt = 0
        def a_more(lim):
            nonlocal nxt
            while nxt < min(lim, 64): a_load(nxt); nxt += 1
        a_more(2)
        for n in range(LOOK):
            for q in range(2): b_read(n, q)
        a_more(o.get('A0', 4))
        b14 = False
        for n in range(384):
            st_, c = divmod(n, 12); t, ct = CORD[c]
            if n % WEV == 0: lg.wait(('B', min(n + WEV - 1, 383)))
            for th in range(2):
                if c == 0: vm.wait(('A', 2 * st_ + (th if st_ < 2 or not o.get('vw1', 1) else 1)))
                d = accs + 32 * t + 16 * (ct >> 1) + 8 * (ct & 1) + 4 * th
                a(f'v_mfma_f32_16x16x32_bf16 {vr(d, 4)}, {vr(Br + 4*(n % NB), 4)}, {vr(aslot[(2*st_ + th) % AD], 4)}, ' + ('0' if st_ == 0 else vr(d, 4)))
                if n + LOOK < 384:
                    if th == 0 and (n + LOOK) % 24 == 0 and (n + LOOK) // 24 <= LASTB: a('s_barrier')
                    b_read(n + LOOK, th)
            if c in o.get('aat', (0, 3, 6, 9)): a_more(min(nxt + 1, 2 * st_ + AD))
            if nxt == 64 and not b14 and (n + LOOK) // 24 >= 13 and (n + LOOK) % 24:
                b14 = True; a('s_barrier')
        self.stamp('gemm1')
        aq, ak, av = accs, accs + 32, accs + 64
        def cvt8(d, s_, swap=True):
            for c in range(2):
                for th in range(2):
                    for ip in range(2): a(f'v_cvt_pk_bf16_f32 v{d + 4*c + 2*th + ip}, v{s_ + 8*c + 4*th + 2*ip}, v{s_ + 8*c + 4*th + 2*ip + 1}')
            if swap:
                for c in range(2):
                    for ip in range(2): a(f'v_permlane16_swap_b32 v{d + 4*c + ip}, v{d + 4*c + 2 + ip}')
        def put8(addr, d, off, oc_, ot):
            for c in range(2):
                for th in range(2): self.dw('ds_write_b64', addr, d + 4 * c + 2 * th, 2, off + c * oc_ + th * ot)
        cvt8(vv, ak + 16, False)
        put8(vXW, vv, 0, 1024, 256)
        self.barrier()
        a('s_setprio 0')
        cvt8(fr, ak)
        pp = ak; ee = ak + 16
        def phi_logits(src):
            a(f'v_mfma_f32_32x32x16_bf16 {vr(pp, 16)}, {vr(wphi, 4)}, {vr(src, 4)}, 0')
            a(f'v_mfma_f32_32x32x16_bf16 {vr(pp, 16)}, {vr(wphi + 4, 4)}, {vr(src + 4, 4)}, {vr(pp, 16)}')
        phi_logits(fr)
        for h in range(2):
            cvt8(vv if h == 0 else vq, av + 16 * h, False)
            put8(vVW, vv if h == 0 else vq, h * 8192, 4096, 512)
        cvt8(fr, aq + 16, False)
        put8(vXW, fr, 2048, 1024, 256)
        cvt8(vq, aq)
        a('s_branch L_JOIN')
        a('L_HELP:')
        vm.q = [('W', 1)] * len(q_hok) if o.get('wxor', 1) == 1 else list(q_hok); lg.reset()
        m2w = accs; m2c = accs + 32; g4 = accs + 48
        def w_unit(n):
            for wexpr in ('w - 4', 'w'):
                w_base(n, wexpr)
                for t in range(3):
                    w_slot(n, t)
                    if o.get('pace', 0) and n >= 6: a(f's_sleep {o["pace"]}')
        for n in range(NPU, 6): w_unit(n)
        S(T0, '((j & 3)*4 + w - 4)*128' if HL else '((x & 3)*4 + w - 4)*128')
        va(vCo, [(3, 3, 16)], T0)
        va(vWM, [(3, 3, 8 * 12288), (0, 3, 16)])
        S(T4, 'T0*6144 + (((j >> 2) & 3)*16 + x*2 + (j >> 4))*128 + 4096' if HL else 'T0*6144 + (j*2 + (x >> 2))*128 + 4096')
        a(f'global_load_dwordx4 {vr(m2c + 8, 4)}, v{vCo}, {sr(pC, 2)}'); vm.issue('m2c')
        m2l = list(range(8)); wol = [9, 10, 11, 12]; pwl = list(range(1, 8)); sil = list(range(8))
        m2ops = self.gemv_ops([m2w + 4 * i for i in range(8)], [m2c + i for i in range(8)], acc, vT, vT + 1, False)
        m2pos = 0
        ML = o.get('mlate', 1)
        m2q = accs + (16 if ML else 64); wr1 = m2q + 8; vM2 = m2q + 9
        TL_, TA, TB, TC, LMT = (T7, T1, sU, sWC, GS + 12288) if ML else (T5, T0, T1, T2, L_MT)
        ld_m2 = lambda: [self.bl(m2q + 4 * q, 4, vM2, rWS, TL_, q * 1024, 'sc1', 'm2q') for q in range(2)]
        def m2_final():
            self.finish_load('m2q', ld_m2, [m2q + 1, m2q + 3, m2q + 5, m2q + 7], vT)
            q0, q1, q2, q3 = m2q, m2q + 1, m2q + 2, m2q + 3
            S(TA, '(w & 3)*128 + q', q=LMT); va(vT, [(0, 5, 4)], TA)
            S(TB, 'w & 3')
            a(f"""v_add_f32 v{q0}, v{m2q}, v{m2q+4}
            v_add_f32 v{q1}, v{m2q+2}, v{m2q+6}
            v_add_f32 v{q2}, v{m2q}, v{m2q+4}""".replace(f'v_add_f32 v{q2}, v{m2q}, v{m2q+4}', f'v_mov_b32 v{q2}, v{q0}'))
            a(f"""v_mov_b32 v{q3}, v{q1}
            s_cmp_eq_u32 s{TB}, 2
            s_cselect_b32 s{TC}, 1.0, 0
            v_permlane32_swap_b32 v{q0}, v{q2}
            v_permlane32_swap_b32 v{q1}, v{q3}""")
            self.pk('add', q0, q0, q2)
            self.round2(q0, q1)
            a(f"""v_add_f32 v{q0}, s{TC}, v{q0}
            v_add_f32 v{q1}, s{TC}, v{q1}
            v_cvt_pk_bf16_f32 v{q2}, v{q0}, v{q1}""")
            self.dw('ds_write_b32', vT, q2, 1)
            a('s_cbranch_scc0 L_NOG')
            g0, g1, gh, gl = m2q + 4, m2q + 5, m2q + 6, m2q + 7
            self.unpack(q0, q1, q2); self.unpack(g0, g1, wr1)
            self.pk('mul', g0, g0, q0)
            a(f'v_cvt_pk_bf16_f32 v{gh}, v{g0}, v{g1}')
            self.unpack(q0, q1, gh)
            self.pk('add', q0, g0, q0, neg=(1,))
            a(f"""v_cvt_pk_bf16_f32 v{gl}, v{q0}, v{q1}
            v_add_f32 v{q0}, v{g0}, v{g1}
            ds_write2_b32 v{vT}, v{gh}, v{gl} offset0:64 offset1:96
            ds_write_b32 v{vT}, v{wr1} offset:512""")
            for ctl in ('quad_perm:[1,0,3,2]', 'quad_perm:[2,3,0,1]', 'row_half_mirror', 'row_ror:8'): self.dpp('v_add_f32', q0, q0, q0, ctl)
            S(TA, '(rt*16 + cb)*64 + GR')
            a(f"""v_mov_b32 v{q2}, v{q0}
            v_mov_b32 v{q1}, s{sTAG}
            v_permlane16_swap_b32 v{q0}, v{q2}
            v_add_f32 v{q0}, v{q0}, v{q2}
            v_mov_b32 v{q3}, s{sTAG}
            s_mov_b64 exec, 15""")
            self.bs(q0, 4, vL16, rWS, TA, 0, 'sc1', count=False)
            a("""s_mov_b64 exec, -1
        L_NOG:""")
        def m2_fetch():
            va(vM2, [(0, 5, 16), (5, 1, 512)])
            S(TL_, '((w & 3)*16 + cb)*2048 + MODP2')
            ld_m2()
        def act(op, k):
            nonlocal m2pos
            kind, n = op[0], int(op[1:] or 1)
            if kind == 'm':
                for _ in range(2 * n):
                    i = m2l.pop(0)
                    self.bl(m2w + 4 * i, 4, vWM, rWM, T4, 0, o.get('ntm2', 'nt'), ('m2', i))
                    if m2l: S(T4, 'T4 + 12288')
            elif kind == 'f': ffn_reg(n)
            elif kind == 'o':
                assert k >= 13
                for _ in range(n):
                    it = wol.pop(0); wo_dma(it, 1); wo_dma(it)
            elif kind == 'p':
                a('s_waitcnt lgkmcnt(0)')
                for q in range(n):
                    b = pwl.pop(0)
                    a(f's_load_dword s{sPL + 2*q}, {sr(rWS, 2)}, s{sINB} offset:{b * 512} glc')
                    a(f's_load_dword s{sPL + 2*q + 1}, {sr(rWS, 2)}, s{sINB} offset:{b * 512 - 256} glc')
            elif kind == 'q':
                S(T0, 'fs*8192 + (w - 4)*256 + HGR')
                a('s_waitcnt lgkmcnt(0)')
                for q in range(4): a(f's_load_dword s{sPL + q}, {sr(rWS, 2)}, s{T0} offset:{q * 2048 + 1024 + 252} glc')
            elif kind == 'z':
                for i in range(4): a(f'v_mov_b32 v{g4+i}, -1')
                if n == 1:
                    for we in ('w - 4', 'w'):
                        S(T0, f'(((r1*4 + (w & 3))*16 + hp)*2 + (({we}) >> 2))*2048 + OF')
                        for q in range(2): self.bs(g4, 4, vL16, rWS, T0, 1024 * q, 'sc1', 'pzo')
                else:
                    for we in ('w - 4', 'w'):
                        S(T0, f'((hp*8 + {we})*32 + r1)*1024 + KVP'); S(T1, 'T0 + 16384')
                        self.bs(g4, 4, vL16, rWS, T0, 0, 'sc1', 'pz'); self.bs(g4, 4, vL16, rWS, T1, 0, 'sc1', 'pz')
                    S(T0, '((hp*8 + w - 4)*16 + r1)*64 + ZP')
                    va(vT + 2, [(0, 2, 16), (2, 1, 4096)])
                    a('s_mov_b64 exec, 0xff')
                    self.bs(g4, 4, vT + 2, rWS, T0, 0, 'sc1', 'pz')
                    a('s_mov_b64 exec, -1')
            elif kind == 'M': m2_fetch()
            elif kind == 'R':
                S(T0, 'cb*128'); va(vT, [(0, 5, 4)], T0)
                a(f'global_load_dword v{wr1}, v{vT}, {sr(pWR, 2)}'); vm.issue()
            elif kind == 'N': m2_final()
            elif kind == 'K':
                S(T0, '(hp*16 + r1)*1024 + (w & 3)*256 + KIN'); S(T1, 'hp*128 + CFL')
                a(f'v_lshlrev_b32 v{vWM}, 7, v{vL}')
                a('s_mov_b64 exec, 3')
                self.bl(vWM, 1, vWM, rWS, T0, 0, '')
                self.bl(vCo, 1, vZ, rWS, T1, 0, '')
                a('s_mov_b64 exec, -1')
            elif kind == 'h':
                S(T0, '(fs*4 + kq)*2048 + (w & 1)*1024 + HGR'); S(T1, '(rt*16 + cb)*2048 + (w & 1)*1024 + STAT')
                if TL: a(f's_bitcmp1_b32 s{sWAVE}, 1'); a(f's_cselect_b32 s{T0}, s{T1}, s{T0}')
                self.bl(m2c + 12, 4, vL16, rWS, T0, 0, '')
            elif kind == 's':
                vm.wait('m2c')
                for _ in range(n):
                    i = sil.pop(0)
                    a(f'v_and_b32 v{m2c+i}, s{sMASK}, v{m2c+8+i//2}' if i & 1 else f'v_lshlrev_b32 v{m2c+i}, 16, v{m2c+8+i//2}')
                    self.silu(m2c + i, vT + (i & 1))
            elif kind == 'g':
                assert not sil
                for _ in range(n):
                    vm.wait(('m2', m2pos // 16))
                    for s_ in m2ops[m2pos:m2pos + 16]: a(s_)
                    m2pos += 16
            elif kind == 'r':
                assert m2pos == 128
                for s_ in m2ops[128:]: a(s_)
                self.dw('ds_write_b32', vGA, acc, 1, L_M2 - SCR)
                lg.wait_all()
            elif kind == 'P':
                a(f"""s_cmp_lg_u32 s{sWAVE}, 4
                s_cbranch_scc1 L_M2F""")
                S(T0, '((((j >> 2) & 3)*16 + x*2 + (j >> 4))*4 + (j & 3))*512 + MODP2')
                pair_sum(L_M2 - SCR)
                self.bs(acc, 4, vL16, rWS, T0, 0, 'sc1', count=False)
                a('s_mov_b32 exec_hi, -1')
                a('L_M2F:')
            else: raise ValueError(op)
        sched = {int(k): v.split() for k, v in o['sched'].items()}
        for op in sched.get(0, []): act(op, 0)
        wsch = {int(k): v for k, v in o.get('wsch', {k: 6 for k in range(2, 12)}).items()}
        hq = [(n, we, t) for n in range(6, 16) for we in ('w - 4', 'w') for t in range(3)]
        assert sum(wsch.values()) == 60
        for k in range(1, LASTB + 1):
            if k == 14: a('s_barrier')
            assert not any(n <= (15 if k == LASTB else k) for n, _, _ in hq)
            for kk in (range(k, 16) if k == LASTB else [k + 1 if k < 3 and o.get('wxor', 1) == 3 else k]): vm.wait(('W', kk))
            if o.get('ust'): self.stamp(f'w{k}')
            a('s_barrier')
            if o.get('ust'): self.stamp(f'u{k}')
            ops = sched.get(k, []) if k < 14 else []
            for op in ops:
                if op[0] == '<': act(op[1:], k)
            for _ in range(wsch.get(k, 0)):
                n, we, t = hq.pop(0)
                assert n - 4 <= k
                if t == 0: w_base(n, we)
                w_slot(n, t)
            for op in ops:
                if op[0] != '<': act(op, k)
        assert LASTB in (13, 14)
        if LASTB == 13: a('s_barrier')
        for op in sched.get(14, []): act(op, 14)
        self.barrier()
        for q in range(2): self.r128(fr + 4 * q, vXF, q * 1024)
        lg.wait_all()
        phi_logits(fr)
        for op in sched.get(15, []): act(op, 15)
        assert not m2l or o.get('nom2')
        assert 8 * len(freg) <= 76
        a('L_JOIN:')
        pzq = list(vm.q)
        vm.reset(); lg.q = [None]
        V.release(vXW); V.release(vVW); V.release(vB, 6); V.release(vWd); V.release(vGA); V.release(vL32S); V.release(acc, 8)
        kw = o.get('kweave', ''); fall = []; fb0 = big + 8 * len(freg); nfa = kw.count('f')
        def kw_op(c_):
            if c_ == 'o': wo_dma(wol.pop(0), 0, T6)
            else:
                m, i = fq.pop(0); v, r = f_src(m, i, 0, T6)
                self.bl(fb0 + 4 * len(fall), 4, v, r, T6, 0, o.get('ntffn', 'nt')); fall.append((m, i))
        V.release(fb0 + 4 * nfa, 76 - 8 * len(freg) - 4 * nfa)
        ph = aq; fx = aq + 16
        vPA = V.alloc(); vPB = V.alloc()
        S(T0, 'w*4096 + L_PHK'); a(f'v_add_u32 v{vPA}, s{T0}, v{vL8}')
        S(T0, 'kh*8192 + L_V'); a(f'v_add_u32 v{vPB}, s{T0}, v{vL8}')
        S(T0, '((hp*8 + w)*32 + r1)*1024 + KVP'); S(T2, 'T0 + 16384')
        S(T3, '(hp*8 + w)*1024 + ZP'); S(T1, 'r1*64 + T3')
        self.weave(lambda: self.softmax_pm(pp, ee, ph, vT), [lambda c_=c_: kw_op(c_) for c_ in kw])
        for fb in range(4): self.dw('ds_write_b128', vPW, ph + 4 * fb, 4, fb * 4096)
        ones = fr
        for i in range(4): a(f'v_mov_b32 v{ones+i}, 0x3f803f80')
        self.stamp('ksm')
        self.barrier()
        self.stamp('phik')
        tb7 = V.alloc(8); tb4 = tb7 + 4
        def tb_read():
            S(T5, 'kh*64 + q', q=LMT); va(tb7 + 3, [(0, 3, 4), (5, 1, 32)], T5)
            for q, t in ((0, 0), (1, 4), (2, 5), (4, 1), (5, 2), (6, 3), (7, 6)): self.dr('ds_read_b32', tb7 + q, 1, tb7 + 3, t * 128)
        if not ML: tb_read()
        fragA = [ee + 4 * i for i in range(4)]
        fragB = [av + 4 * i for i in range(8)]
        kvd = vv; zd = fr + 4
        def kvm(u):
            lg.wait(('kv', u))
            for db in range(2):
                a(f'v_mfma_f32_16x16x32_bf16 {vr(kvd + 4*db, 4)}, {vr(fragA[u], 4)}, {vr(fragB[2*u+db], 4)}, ' + ('0' if u == 0 else vr(kvd + 4*db, 4)))
            a(f'v_mfma_f32_16x16x32_bf16 {vr(zd, 4)}, {vr(fragA[u], 4)}, {vr(ones, 4)}, ' + ('0' if u == 0 else vr(zd, 4)))
        for ts in range(4):
            self.tr(fragA[ts], vPA, ts * 1024, ('kv', ts)); self.tr(fragA[ts] + 2, vPA, ts * 1024 + 512, ('kv', ts))
            for db in range(2):
                self.tr(fragB[2*ts+db], vPB, db * 4096 + ts * 1024, ('kv', ts)); self.tr(fragB[2*ts+db] + 2, vPB, db * 4096 + ts * 1024 + 512, ('kv', ts))
            if ts >= 2: kvm(ts - 2)
        va(vPW, [(0, 4, 8 * 4096)] if HL else [(0, 3, 32 * 4096), (3, 1, 4 * 4096)])
        S(T4, '(wg & q)*4096 + (r1 >> 1)*64 + (r1 & 1)*4 + INB + 512', q=0x87 if HL else 0x1b)
        kvm(2); kvm(3)
        a(f"""s_cmp_lt_u32 s{sWAVE}, 4
        s_cbranch_scc1 L_NOQX
        ds_read_b128 {vr(vq, 4)}, v{vXF} offset:2048
        ds_read_b128 {vr(vq + 4, 4)}, v{vXF} offset:3072
        L_NOQX:""")
        if 'pz' in pzq: a(f's_waitcnt vmcnt({pzq[::-1].index("pz")})')
        self.bs(kvd, 4, vL16, rWS, T0, 0, 'sc1', 'kvs')
        self.bs(kvd + 4, 4, vL16, rWS, T2, 0, 'sc1', 'kvs')
        if o.get('zperm', 1):
            a(f'v_lshlrev_b32 v{vT}, 6, v{vL}')
            for i in range(4): a(f'ds_bpermute_b32 v{zd+i}, v{vT}, v{zd+i}')
            a("""s_waitcnt lgkmcnt(0)
            s_mov_b64 exec, 15""")
            self.bs(zd, 4, vL16, rWS, T1, 0, 'sc1', 'kvs')
        else:
            a('s_mov_b32 exec_lo, 0x00010001')
            a('s_mov_b32 exec_hi, 0x00010001')
            self.bs(zd, 4, vL, rWS, T1, 0, 'sc1', 'kvs')
        a('s_mov_b64 exec, -1')
        lg.wait_all()
        phi_logits(vq)
        self.stamp('kvst')
        wl = wol + [2, 3, 4, 5, 6, 7, 8, 13, 14, 15, 0, 1]
        kp = av; zz = av + 16; g4 = vv
        vKP = V.alloc()
        va(vKP, [(3, 3, 1024), (0, 3, 16)])
        wo1 = lambda: wo_dma(wl.pop(0), 0, T6)
        keep = a.items; a.items = []
        self.softmax_pm(pp, ee, ph, vv)
        qsm = a.items; a.items = keep
        qcost = [2 if it[1].is_trans or 'permlane' in it[1].mn else 1 for it in qsm]
        qtot = sum(qcost); qdone = [0]
        def q_slice(upto):
            while qsm and qdone[0] < qtot * upto / 100:
                a.items.append(qsm.pop(0)); qdone[0] += qcost.pop(0)
        qs = o.get('qs', (35, 85, 100))
        CL = o.get('cl', (0, 1)); assert CL[1]
        q_slice(qs[0])
        S(T5, 'hp*128 + CFL'); S(T1, 'r1*8 + T5')
        vCF = V.alloc(); cf = V.alloc()
        va(vCF, [(0, 4, 8)])
        vm.wait('kvs')
        a('s_barrier')
        if CL[0]:
            a(f"""s_cmp_eq_u32 s{sLOC}, 0
            s_cbranch_scc1 L_PCG
            s_cmp_lg_u32 s{sWAVE}, 0
            s_cbranch_scc1 L_PC
            v_mov_b32 v{cf}, s{sTAG}
            s_mov_b64 exec, 1""")
            self.bs(cf, 1, vZ, rWS, T1, 0, '', count=False)
            a("""s_mov_b64 exec, -1
            s_branch L_PC
            L_PCG:""")
        self.push(vPW, T4, 16, vPB, 'L_PC')
        self.stamp('kvpub')
        assert HL and not CL[0]
        if ML:
            a(f"""s_cmp_lt_u32 s{sWAVE}, 4
            s_cbranch_scc1 L_NOM""")
            m2_fetch()
            a('L_NOM:')
        S(T0, '(hp*16 + r1)*16384 + w*128 + KVP')
        S(T2, '(hp*16 + r1)*1024 + w*128 + KIN'); S(T4, 'T4 + 6*512')
        def c1_work():
            self.weave(lambda: q_slice(qs[1]), [wo1] * o['wowin'][0])
            if ML:
                a(f"""s_cmp_lt_u32 s{sWAVE}, 4
                s_cbranch_scc1 L_NOG""")
                q_ = list(vm.q); m2_final(); vm.q = q_
            self.stamp('cw')
        if CL[0]:
            ld_cf = lambda: self.bl(cf, 1, vCF, rWS, T5, 0, 'sc1', 'cf')
            if o.get('cfpre', 1): ld_cf()
            c1_work()
            a(f"""s_cmp_lg_u32 s{sLOC}, 0
            s_cbranch_scc1 L_C1L""")
            q_ = list(vm.q)
            self.inbox(1, 2)
            a("""s_barrier
            s_branch L_C1D
            L_C1L:""")
            if o.get('cfpre', 1): self.finish_load('cf', ld_cf, [cf])
            else: self.poll(ld_cf, [cf])
            vm.q = q_
            a('L_C1D:')
        else:
            self.inbox(1, 2, work=c1_work)
            a('s_barrier')
        V.release(vCF); V.release(vWM); V.release(vCo)
        self.stamp('kvok')
        S(T5, 'T0 + 8192')
        ld_kp = lambda: (self.bl(kp, 4, vKP, rWS, T0, 0, 'sc1', 'kp'), self.bl(kp + 4, 4, vKP, rWS, T5, 0, 'sc1', 'kp'))
        ld_z = lambda: self.bl(zz, 4, vL16, rWS, T3, 0, 'sc1', 'z')
        self.bl(cf, 1, vZ, rWS, '0', MARK, 'sc1')
        ld_kp(); ld_z()
        S(T1, 'w*32 + L_ZF'); va(vT + 2, [(0, 2, 8), (5, 1, 4)], T1)
        S(T1, 'w*1024 + L_KVF'); va(vT + 1, [(0, 4, 16), (5, 1, 512), (4, 1, 8)], T1)
        S(T1, 'kh*128 + L_ZF'); va(vT + 3, [(5, 1, 16)], T1)
        S(T1, 'kh*4096 + L_KVF'); a(f'v_add_u32 v{vPA}, s{T1}, v{vL16}')
        def red4(r, ctls):
            for i in range(2): a(f'v_permlane32_swap_b32 v{r+i}, v{r+2+i}')
            self.pk('add', r, r, r + 2)
            for ctl in ctls:
                for i in range(2): self.dpp('v_add_f32', r + i, r + i, r + i, ctl)
            for i in range(2): a(f'v_mov_b32 v{r+2+i}, v{r+i}')
            for i in range(2): a(f'v_permlane16_swap_b32 v{r+i}, v{r+2+i}')
            self.pk('add', r, r, r + 2)
            a(f'v_cvt_pk_bf16_f32 v{r}, v{r}, v{r+1}')
        self.weave(lambda: q_slice(qs[2]), [wo1] * o['wowin'][1])
        vm.wait('kp')
        a(f'v_cmp_eq_u32 vcc, s{sTAG}, v{cf}')
        a(f's_cmp_eq_u32 vcc_lo, 0')
        a(f's_cselect_b32 s{sLOC}, {o.get("local", 1)}, 0')
        self.pk('add', kp, kp, kp + 4); self.pk('add', kp + 2, kp + 2, kp + 6)
        red4(kp, ['row_ror:8'])
        kc = V.alloc(5, 4)
        a(f"""v_mov_b32 v{kc}, v{kp}
        v_mov_b32 v{kc+2}, v{kp}
        v_mov_b32 v{kc+1}, s{sTAG}
        v_mov_b32 v{kc+3}, s{sTAG}
        v_permlane32_swap_b32 v{kc}, v{kc+2}
        v_add_u32 v{kc+4}, s{T2}, v{vL16}
        s_mov_b64 exec, 0xff""")
        self.bs2([(kc, 4, vL16, T2, 0)])
        a("""s_mov_b64 exec, -1
        s_cbranch_scc1 L_PC2""")
        a('s_barrier')
        self.push(vPW, T4, 16, vPB, 'L_PC2')
        self.stamp('c2pub')
        kf = av; zf = av + 16; num = pp; den = ee
        k2 = av + 8
        S(T0, '(hp*8 + w)*2048 + KIN')
        ld_k2 = lambda: [self.bl(k2 + 4 * q, 4, vL16, rWS, T0, q * 1024, 'sc1') for q in range(2)]
        def z_work():
            vm.wait('z')
            red4(zz, ['row_ror:4', 'row_ror:8'])
            self.dw('ds_write_b32', vT + 2, zz, 1)
            q_slice(100)
            self.stamp('c2w')
        ZP_ = o.get('zpre', 1)
        if ZP_: z_work()
        a(f"""s_cmp_lg_u32 s{sLOC}, 0
        s_cbranch_scc1 L_C2L""")
        l_ = list(lg.q)
        self.inbox(7, 2)
        lg.q = l_
        a('L_C2L:')
        self.try_load(ld_k2, [k2 + 1, k2 + 3, k2 + 5, k2 + 7], vT, None if ZP_ else z_work)
        for db in range(2):
            a(f'ds_write2_b32 v{vT+1}, v{k2+4*db}, v{k2+4*db+2} offset0:{64*db} offset1:{64*db+1}'); lg.issue()
        self.barrier()
        self.stamp('kvred')
        for fb in range(4): self.r128(zf + 4 * fb, vT + 3, fb * 32, ('zf', fb))
        for fb in range(4): self.r128(kf + 4 * fb, vPA, fb * 1024, ('kf', fb))
        for fb in range(4):
            lg.wait(('zf', fb))
            a(f'v_mfma_f32_32x32x16_bf16 {vr(den, 16)}, {vr(zf + 4*fb, 4)}, {vr(ph + 4*fb, 4)}, ' + ('0' if fb == 0 else vr(den, 16)))
        for fb in range(4):
            lg.wait(('kf', fb))
            a(f'v_mfma_f32_32x32x16_bf16 {vr(num, 16)}, {vr(kf + 4*fb, 4)}, {vr(ph + 4*fb, 4)}, ' + ('0' if fb == 0 else vr(num, 16)))
        if ML: tb_read()
        for _ in range(o['wowin'][2]): wo1()
        S(T0, '(((r1*4 + (w & 3))*16 + hp)*2 + kh)*2048 + OF')
        va(vT + 4, [(0, 4, 16), (4, 1, 1024), (5, 1, 256)])
        self.round1(den)
        a(f'v_add_f32 v{den}, 0x358637bd, v{den}')
        self.round1(den)
        a(f'v_rcp_f32 v{den}, v{den}')
        for h in range(2):
            self.round_list([num + i for i in range(8 * h, 8 * h + 8)])
            for i in range(8 * h, 8 * h + 8, 2): self.pk('mul', num + i, num + i, den, bc=(1,))
            for i in range(4 * h, 4 * h + 4): a(f'v_cvt_pk_bf16_f32 v{vq+i}, v{num+2*i}, v{num+2*i+1}')
            self.bs(vq + 4 * h, 4, vT + 4, rWS, T0, 512 * h, 'sc1', 'os')
        self.stamp('ost')
        for r, n in ((fr, 8), (vv, 8), (vPW, 1), (vXF, 1), (vPA, 1), (vPB, 1), (vKP, 1), (accs, 96), (wphi, 8)):
            V.release(r, n)
        assert GS == 0
        vG16 = vL16
        vBa = V.alloc(4); xf = V.alloc(16)
        S(T4, 'kh*(65536 + 64) + WO_H0')
        va(vBa, [(5, 1, 2048), (4, 1, 512), (2, 2, 128), (3, 1, 64), (1, 1, 32), (4, 1, 16), (0, 1, 8)])
        a(f'v_xor_b32 v{vBa}, s{T4}, v{vBa}')
        for q, x_ in ((1, 16), (2, 64), (3, 80)): a(f'v_xor_b32 v{vBa+q}, {x_}, v{vBa}')
        assert WO_H1 == WO_H0 + 65536
        va(vT + 1, LCB)
        S(T2, ('((r1 & 1)*128 + (r1 >> 1))*4096' if TL else '((r1 >> 2)*2 + (r1 & 3)*64)*4096') + (' + ((hp >> 3)*4 + (hp & 3))*64 + (((hp >> 2) ^ p) & 1)*4 + INB + 1024' if D2 else ' + (hp >> 1)*64 + (hp & 1)*4 + INB + 1024'), p=o.get('dflip', 1))
        gaf = V.alloc(16); gp = V.alloc(16); gr = V.alloc(2); vGR = V.alloc(); cn = V.alloc(2)
        def expand(dst, t):
            for i in range(8):
                self.dpp('v_mul_u32_u24', dst + 2 * i, t, cn, f'row_newbcast:{i}')
                self.dpp('v_and_b32', dst + 2 * i + 1, t, cn + 1, f'row_newbcast:{i}')
        a(f"""v_mov_b32 v{cn}, 0x10000
        v_mov_b32 v{cn+1}, s{sMASK}""")
        for i in range(8): self.unpack(xf + 2 * i, xf + 2 * i + 1, xr + i)
        lg.wait_all()
        expand(gaf, tb7)
        S(T6, '(gtb*2 + kf)*32768 + OF')
        va(vGR, [(0, 4, 64)])
        vm.wait('os')
        self.barrier()
        self.push(vT + 1, T2, 16, vT + 2, 'L_PD')
        self.stamp('opub')
        def c_clean():
            if CL[1]:
                a('s_mov_b64 exec, 0xff')
                self.bs(kc, 4, kc + 4, rWS, '0', 0, 'sc1')
                a('s_mov_b64 exec, -1')
            if CL[0]:
                S(T0, 'hp*128 + r1*8 + CFL')
                a(f"""s_cmp_lg_u32 s{sWAVE}, 0
                s_cbranch_scc1 L_NOCC
                v_mov_b32 v{cf}, s{sTAG}
                s_mov_b64 exec, 1""")
                self.bs(cf, 1, vZ, rWS, T0, 0, 'sc1', count=False)
                a("""s_mov_b64 exec, -1
                L_NOCC:""")
        if o.get('ccat', 3) == 0: c_clean()
        V.release(vq, 8)
        late_wo = bool(wl)
        while wl: wo_dma(wl.pop(0))
        V.release(vWo)
        MS = o.get('msum', 1); vSG = V.alloc(); assert MS and not TL
        def d_work():
            for k in range(2):
                for i in range(8): a(f'v_mov_b32_dpp v{gp + 8*k + i}, v{tb7 + 1 + k} row_newbcast:{i} row_mask:0xf bank_mask:0xf')
            if MS:
                a(f"""v_and_b32 v{vT}, 3, v{vL}
                v_cmp_eq_u32 vcc, 1, v{vT}
                v_cmp_eq_u32 {sr(sCMP, 2)}, 0, v{vT}
                v_mov_b32 v{vT+1}, 0x3f803f80""")
                for i in range(8): a(f'v_cndmask_b32 v{gp+i}, v{gp+8+i}, v{gp+i}, vcc')
                for i in range(8): a(f'v_cndmask_b32 v{gp+i}, v{gp+i}, v{vT+1}, {sr(sCMP, 2)}')
            S(T0, 'w*4096'); a(f'v_add_u32 v{vT}, s{T0}, v{vL16}')
            S(T0, '(w ^ 4)*4096'); va(vT + 1, [(0, 4, 16), (4, 1, 1024), (5, 1, 512)], T0)
            S(T0, 'kh*2048 + (w & 3)*512 + L_SP'); va(vT + 2, [(0, 5, 16), (5, 1, 8)], T0)
            S(T0, 'kh*64 + L_TB'); va(vT + 3, [(0, 3, 4), (5, 1, 32)], T0)
            a(f'v_add_u32 v{vT+4}, {L_SP}, v{vL16}')
            va(vT + 6, LCB)
            S(T4, 'rt*32768 + w*256 + STAT'); va(vSG, [(0, 4, 16), (4, 2, 2048)])
            S(T1, '(rt*16 + cb)*2048 + STAT')
            S(T3, '((rt & 3)*64 + (rt >> 2)*2)*4096 + (cb >> 1)*64 + (cb & 1)*4 + INB + 1536')
            if o.get('stouch', TL):
                S(T2, '(rt*16 + cb)*2048 + w*256 + STAT')
                a(f'v_lshlrev_b32 v{gr}, 7, v{vL}')
                a('s_mov_b64 exec, 3')
                self.bl(gr, 1, gr, rWS, T2, 0, '')
                a('s_mov_b64 exec, -1')
            if late_wo or o.get('stouch', TL): vm.wait_all()
            self.stamp('dw')
        AD2 = o['AD2']
        LK2 = o.get('LK2', 4); NB2 = LK2 + 1
        accA = V.alloc(16); accB = V.alloc(16); Ar = V.alloc(4 * AD2); Br = V.alloc(4 * NB2)
        def b2_read(n, q):
            st_, c = divmod(n, 4)
            self.tr(Br + 4 * (n % NB2) + 2 * q, vBa + (c ^ 2), st_ * 4096 + q * 1024, ('B', n))
        def a2_load(s):
            if s % 2 == 0: S(T7, '(rot ^ n)*2048 + T6' if D2 else '((rot + n) & 15)*2048 + T6', n=(s // 2) & o.get('a2mask', 15))
            self.bl(Ar + 4 * (s % AD2), 4, vL16, rWS, T7, (s % 2) * 1024, o.get('a2mod', 'sc1'), ('A', s))
        self.inbox(2, 2, [0] if D2 else None, work=d_work)
        a('s_barrier')
        self.stamp('ook')
        if o.get('prio2', 1):
            a(f"""s_cmp_lt_u32 s{sWAVE}, 4
            s_cbranch_scc1 L_P2
            s_setprio {o.get('prio2', 1)}
            L_P2:""")
        nx2 = 0
        def a2_more(lim):
            nonlocal nx2
            while nx2 < min(lim, 32):
                if nx2 == 16 and D2:
                    a(f"""s_cmp_eq_u32 s{sPL + 1}, s{sTAG}
                    s_cbranch_scc1 L_D2""")
                    l_ = list(lg.q)
                    self.inbox(2, 2, [1])
                    lg.q = l_
                    a("""L_D2:
                    s_barrier""")
                a2_load(nx2); nx2 += 1
                if nx2 == 32:
                    ld_gr()
                    if o.get('ccat', 3) == 1: c_clean()
        S(T5, 'rt*1024 + GR')
        ld_gr = lambda: self.bl(gr, 2, vGR, rWS, T5, 0, 'sc1', 'gr')
        a2_more(2)
        for n in range(LK2):
            for q in range(2): b2_read(n, q)
        a2_more(o.get('A20', 4))
        for n in range(64):
            st_, c = divmod(n, 4)
            if n % o.get('wev2', 1) == 0: lg.wait(('B', min(n + o.get('wev2', 1) - 1, 63)))
            for th in range(2):
                if c == 0: vm.wait(('A', 2 * st_ + (th if st_ == 0 or not o.get('vw2', 1) else 1)))
                d = (accB, accA)[c >> 1] + 8 * (c & 1) + 4 * th
                a(f'v_mfma_f32_16x16x32_bf16 {vr(d, 4)}, {vr(Br + 4*(n % NB2), 4)}, {vr(Ar + 4*((2*st_ + th) % AD2), 4)}, ' + ('0' if st_ == 0 else vr(d, 4)))
                if n + LK2 < 64: b2_read(n + LK2, th)
            if n == o.get('prio2n', 18): a('s_setprio 0')
            if c in o.get('a2at', (0, 1)): a2_more(min(nx2 + 1, 2 * st_ + AD2))
            if c == 3 and AD2 == 4: a2_more(2 * st_ + 6)
        self.stamp('gemm2')
        if o.get('prio2', 1): a('s_setprio 0')
        for q in range(4): self.dw('ds_write_b128', vT, accB + 4 * q, 4, L_EXCH - GS + q * 1024)
        for i in range(8): a(f'v_permlane16_swap_b32 v{accA + 8*(i >> 2) + (i & 3)}, v{accA + 8*(i >> 2) + 4 + (i & 3)}')
        sm = Br
        fd = list(o['fdma']); assert sum(fd) == len(fq)
        self.stamp('exw')
        self.barrier()
        self.stamp('ex1')
        for q in range(4): self.r128(accB + 4 * q, vT + 1, L_EXCH - GS + (q >> 1) * 2048 + (q & 1) * 256, ('ex', q))
        ffn_dma(fd[0], T2)
        for h in range(2):
            for q in (2 * h, 2 * h + 1):
                lg.wait(('ex', q))
                self.pk('add', accA + 4 * q, accA + 4 * q, accB + 4 * q); self.pk('add', accA + 4 * q + 2, accA + 4 * q + 2, accB + 4 * q + 2)
            rg = range(8 * h, 8 * h + 8)
            self.round_list([accA + i for i in rg])
            for i in range(8 * h, 8 * h + 8, 2): self.pk('mul', accA + i, accA + i, gaf + i)
            self.round_list([accA + i for i in rg])
            for i in range(8 * h, 8 * h + 8, 2): self.pk('add', accA + i, accA + i, xf + i)
            for i in range(4 * h, 4 * h + 4): a(f'v_cvt_pk_bf16_f32 v{xr+i}, v{accA+2*i}, v{accA+2*i+1}')
        self.stamp('x1c')
        if MS:
            for t in range(2): a(f'v_mfma_f32_32x32x16_bf16 {vr(accB, 16)}, {vr(gp + 4*t, 4)}, {vr(xr + 4*t, 4)}, ' + ('0' if t == 0 else vr(accB, 16)))
            for i in range(8): a(f'v_dot2_f32_bf16 v{sm + (i & 1)}, v{xr+i}, v{xr+i}, ' + ('0' if i < 2 else f'v{sm + (i & 1)}'))
            a(f"""v_add_f32 v{sm+2}, v{sm}, v{sm+1}
            v_add_f32 v{sm}, v{sm}, v{sm+1}
            v_permlane32_swap_b32 v{sm}, v{sm+2}
            s_mov_b32 exec_lo, 0
            v_add_f32 v{accB}, v{sm}, v{sm+2}
            v_mov_b32 v{accB+1}, v{accB+2}
            s_mov_b32 exec_lo, -1""")
            self.dw('ds_write_b64', vT + 2, accB, 2)
        else:
            for i in range(8):
                for d, b in ((sm, one), (sm + 2, xr + i), (sm + 1, gp + i), (sm + 3, gp + 8 + i)):
                    a(f'v_dot2_f32_bf16 v{d}, v{xr+i}, v{b}, ' + ('0' if i == 0 else f'v{d}'))
            a(f"""v_permlane32_swap_b32 v{sm}, v{sm+2}
            v_permlane32_swap_b32 v{sm+1}, v{sm+3}""")
            self.pk('add', sm, sm, sm + 2)
            self.dw('ds_write_b64', vT + 2, sm, 2)
        for q in range(4): self.dw('ds_write_b32', vT + 3, tb4 + q, 1, 128 * q)
        self.barrier()
        self.stamp('x1st')
        PR = o.get('crit', 3)
        a(f"""s_cmp_lg_u32 s{sWAVE}, 0
        s_cbranch_scc1 L_PE""")
        if PR: a(f's_setprio {PR}')
        for q in range(4): a(f'ds_read_b128 {vr(accB + 4*q, 4)}, v{vT+4} offset:{(q & 1) * 2048 + (q >> 1) * 1024}')
        for h in range(2):
            b = accB + 8 * h
            a(f's_waitcnt lgkmcnt({2 - 2*h})')
            self.pk('add', b, b, b + 4); self.pk('add', b + 2, b + 2, b + 6)
            a(f"""v_add_f32 v{b+1}, v{b+1}, v{b+3}
            v_mov_b32 v{b+3}, s{sTAG}""")
        if TL:
            self.bs2([(accB + 8 * h, 4, vL16, T0, 1024 * h) for h in range(2)])
            a('s_cbranch_scc1 L_PE')
        else:
            for h in range(2): self.bs(accB + 8 * h, 4, vL16, rWS, T1, 1024 * h, 'sc1', count=False)
        a('s_mov_b64 exec, 0xffff')
        self.bs(accB + 3, 1, vT + 6, rWS, T3, 0, 'sc1', count=False)
        if PR: a('s_setprio 0')
        a("""s_mov_b64 exec, -1
        L_PE:""")
        self.stamp('x1pub')
        if o.get('ccat', 3) == 2: c_clean()
        V.release(accA, 16); V.release(accB, 16); V.release(Ar, 4 * AD2); V.release(Br, 4 * NB2); V.release(vBa, 4); V.release(xf, 16); V.release(gaf, 16); V.release(gp, 16)
        x1 = V.alloc(16); hh = V.alloc(16); mf = V.alloc(32); sg = V.alloc(16); op = V.alloc(8)
        st = V.alloc(2); vRid = V.alloc(); ck = V.alloc(4); vOT = V.alloc()
        ct = V.alloc(12, 4)
        def e_work():
            S(T3, '(w & 3)*(32*144) + kh*64'); va(vOT, [(0, 5, 144), (5, 1, 32)], T3)
            for q in range(2): self.dw('ds_write_b128', vOT, xr + 4 * q, 4, L_XT + 16 * q)
            a(f'v_add_u32 v{vOT}, {L_OT}, v{vOT}')
            S(T2, '4094 - (rt*8 + w)*32'); va(vRid, [(0, 4, 2)]); a(f'v_sub_u32 v{vRid}, s{T2}, v{vRid}')
            S(T2, 'w*128 + L_ST2'); va(vT + 4, [(0, 4, 8)], T2)
            S(T2, '(w & 3)*256 + L_ST2'); va(vT + 6, [(0, 5, 8)], T2)
            va(vT + 7, [(0, 3, 8)], None, L_K1)
            self.finish_load('gr', ld_gr, [gr + 1])
            for ctl in ('quad_perm:[1,0,3,2]', 'quad_perm:[2,3,0,1]', 'row_half_mirror', 'row_ror:8'): self.dpp('v_add_f32', gr, gr, gr, ctl)
            a(f"""s_cmp_lg_u32 s{sWAVE}, 1
            s_cbranch_scc1 L_NOCT""")
            va(vT + 1, [(0, 4, 8)], None, L_TB)
            a(f"""ds_read_b64 {vr(ct + 2, 2)}, v{vT+1}
            ds_read_b64 {vr(ct + 6, 2)}, v{vT+1} offset:128
            ds_read_b64 {vr(ct + 8, 2)}, v{vT+1} offset:384
            s_waitcnt lgkmcnt(0)""")
            for b in (ct, ct + 4):
                self.unpack(b, b + 1, b + 2); self.unpack(b + 2, b + 3, b + 3)
            a('L_NOCT:')
            S(T2, 'w*8 + L_K1'); a(f'v_mov_b32 v{vT+1}, s{T2}')
            va(vT + 2, [(0, 2, 64 * 4096), (2, 2, 2 * 4096)])
            S(T1, '((cb & 7)*8 + (cb >> 3))*4096 + (rt >> 1)*64 + (rt & 1)*16 + INB + 2560')
        def f_pre(part):
            if part == 0:
                a(f"""s_cmp_lt_u32 s{sWAVE}, 4
                s_cbranch_scc1 L_NOST""")
                S(T0, '(w - 4)*4096 + L_GU')
                a(f'v_add_u32 v{vT}, s{T0}, v{vL16}')
                a(f'v_add_u32 v{vT+3}, {L_DN - L_GU}, v{vT}')
                for n, (m, i) in enumerate(freg):
                    for back in range(2):
                        self.dw('ds_write_b128', vT if m < 2 else vT + 3, big + 8 * n + 4 * back, 4, f_lds(m, i) - (L_GU if m < 2 else L_DN) + (1 - back) * 16384)
                a('L_NOST:')
                if fall:
                    S(T0, 'w*4096 + L_GU'); a(f'v_add_u32 v{vT}, s{T0}, v{vL16}')
                    for n, (m, i) in enumerate(fall):
                        assert m < 2
                        self.dw('ds_write_b128', vT, fb0 + 4 * n, 4, f_lds(m, i) - L_GU)
                return
            for i in range(8): self.unpack(x1 + 2 * i, x1 + 2 * i + 1, xr + i)
            expand(mf, tb4); expand(mf + 16, tb4 + 1)
        if TL:
            a(f"""s_cmp_lg_u32 s{sLOC}, 0
            s_cbranch_scc1 L_ELOC""")
            self.inbox(3, 2)
            a("""s_barrier
            L_ELOC:""")
        else:
            ffn_dma(fd[1])
            self.inbox(3, 2, work=lambda: (e_work(), f_pre(0)))
            a('s_barrier')
        self.stamp('x1ok')
        def ld_sg():
            for q in range(4):
                S(T0, 'T4 + q', q=q * 8192)
                self.bl(sg + 4 * q, 4, vSG, rWS, T0, 0, 'sc1')
        self.try_load(ld_sg, [sg + 3, sg + 7, sg + 11, sg + 15], vT, e_work if TL else lambda: f_pre(1))
        V.release(vSG)
        self.stamp('x1ld')
        A_, B_, C_, U_ = sg, sg + 1, sg + 2, sg + 3
        self.pk('add', sg, sg, sg + 4); self.pk('add', sg + 8, sg + 8, sg + 12)
        a(f"""v_add_f32 v{C_}, v{C_}, v{sg+6}
        v_add_f32 v{sg+10}, v{sg+10}, v{sg+14}""")
        self.pk('add', sg, sg, sg + 8)
        a(f"""v_add_f32 v{C_}, v{C_}, v{sg+10}
        v_mov_b32 v{U_}, v{B_}
        v_permlane32_swap_b32 v{A_}, v{C_}
        v_permlane32_swap_b32 v{B_}, v{U_}
        v_add_f32 v{A_}, v{A_}, v{C_}
        v_add_f32 v{B_}, v{B_}, v{U_}
        v_permlane16_swap_b32 v{A_}, v{B_}
        v_add_f32 v{U_}, v{A_}, v{B_}
        v_add_f32 v{A_}, v{A_}, v{B_}
        v_permlane16_swap_b32 v{A_}, v{U_}
        v_mul_f32 v{C_}, 0x3a800000, v{A_}
        v_mul_f32 v{A_}, 0x3a800000, v{A_}
        v_permlane32_swap_b32 v{A_}, v{C_}""")
        self.stat_math(A_, C_, st, st + 1)
        a(f"""v_rcp_f32 v{st+1}, v{st+1}
        v_fma_f32 v{U_}, -v{st}, v{gr}, v{U_}
        v_mul_f32 v{U_}, v{U_}, v{st+1}""")
        self.dw('ds_write_b64', vT + 4, st, 2)
        a(f"""s_movk_i32 s{T0}, 0xfff
        v_ashrrev_i32 v{A_}, 31, v{U_}
        v_or_b32 v{A_}, 0x80000000, v{A_}
        v_xor_b32 v{A_}, v{A_}, v{U_}
        v_bfi_b32 v{ck}, s{T0}, v{vRid}, v{A_}""")
        def top2(ctls, first):
            for n, ctl in enumerate(ctls):
                if n == 0 and first:
                    self.dpp('v_min_u32', ck + 1, ck, ck, ctl); self.dpp('v_max_u32', ck, ck, ck, ctl)
                    continue
                self.dpp('v_min_u32', ck + 2, ck, ck, ctl); self.dpp('v_max_u32', ck + 1, ck + 1, ck + 1, ctl); self.dpp('v_max_u32', ck, ck, ck, ctl)
                a(f'v_max_u32 v{ck+1}, v{ck+1}, v{ck+2}')
        top2(('row_ror:8', 'row_ror:4', 'row_ror:2', 'row_ror:1'), True)
        self.dw('ds_write_b64', vT + 1, ck, 2)
        def side2():
            if o.get('htouch', 1):
                S(T2, '(fs*4 + kq)*2048 + w*256 + HGR')
                vDum = V.alloc()
                a(f'v_lshlrev_b32 v{vDum}, 7, v{vL}')
                a('s_mov_b64 exec, 3')
                self.bl(vDum, 1, vDum, rWS, T2, 0, '')
                a('s_mov_b64 exec, -1')
            ffn_dma(fd[2], T2)
        if o.get('f2pos', 0) == 0: side2()
        self.barrier()
        self.stamp('ln2')
        if PR:
            a(f"""s_cmp_ge_u32 s{sWAVE}, 2
            s_cbranch_scc1 L_PR1
            s_setprio {PR}
            L_PR1:""")
        self.dr('ds_read_b64', ck, 2, vT + 7, 0, 'k'); self.dr('ds_read_b64', st, 2, vT + 6, 0, 's')
        lg.wait('k')
        top2(('quad_perm:[1,0,3,2]', 'quad_perm:[2,3,0,1]', 'row_half_mirror'), False)
        a(f"""v_or_b32 v{ck+2}, 1, v{ck+1}
        v_mov_b32 v{ck+1}, s{sTAG}
        v_mov_b32 v{ck+3}, s{sTAG}
        s_cmp_lg_u32 s{sWAVE}, 0
        s_cbranch_scc1 L_NOF
        s_mov_b64 exec, 0xffff""")
        self.bs(ck, 4, vT + 2, rWS, T1, 0, 'sc1', count=False)
        a("""s_mov_b64 exec, -1
        L_NOF:""")
        self.stamp('Fpub')
        a(f"""s_cmp_lg_u32 s{sWAVE}, 1
        s_cbranch_scc1 L_NOC
        v_and_b32 v{vT}, 16, v{vL}
        v_cmp_eq_u32 vcc, 0, v{vT}
        v_cndmask_b32 v{vT}, v{ck+2}, v{ck}, vcc
        v_not_b32 v{vT}, v{vT}
        v_bfe_u32 v{vT}, v{vT}, 1, 7
        v_lshlrev_b32 v{vT+2}, 3, v{vT}
        v_mul_u32_u24 v{vT}, 144, v{vT}
        v_add_u32 v{vT+2}, {L_ST2}, v{vT+2}""")
        va(vT + 1, [(0, 4, 8)])
        cx, cs, ch = sg, sg + 4, sg + 8
        a(f"""v_add_u32 v{vT}, v{vT}, v{vT+1}
        ds_read_b64 {vr(cs, 2)}, v{vT+2}
        ds_read_b64 {vr(cx, 2)}, v{vT} offset:{L_XT}""")
        va(vT + 2, [(0, 4, 16), (4, 1, 16384), (5, 1, 4096)])
        va(vT + 3, [(4, 1, 16384), (0, 2, 16)])
        S(T0, 'rt*32768 + cb*256 + CAND'); S(T3, 'rt*32768 + cb*64 + 8192 + CAND')
        a(f"""v_mov_b32 v{cx+3}, s{sTAG}
        s_waitcnt lgkmcnt(0)""")
        self.unpack(ch, ch + 1, cx); self.unpack(ch + 2, ch + 3, cx + 1)
        for i in (0, 2): self.pk('add', ch + i, ch + i, cs, bc=(1,), neg=(1,))
        self.round_list([ch + i for i in range(4)])
        for i in (0, 2): self.pk('mul', ch + i, ch + i, cs + 1, bc=(1,))
        self.round_list([ch + i for i in range(4)])
        for i in (0, 2): self.pk('mul', ch + i, ch + i, ct + 4 + i)
        self.round_list([ch + i for i in range(4)])
        for i in (0, 2): self.pk('add', ch + i, ch + i, ct + i)
        a(f"""v_mov_b32 v{cx+2}, v{cx+1}
        v_mov_b32 v{cx+1}, s{sTAG}
        s_mov_b32 exec_hi, 0
        v_cvt_pk_bf16_f32 v{cx}, v{ch}, v{ch+1}
        v_cvt_pk_bf16_f32 v{cx+2}, v{ch+2}, v{ch+3}
        s_mov_b32 exec_hi, -1
        v_dot2_f32_bf16 v{cs}, v{cx}, v{ct+8}, 0
        v_mov_b32 v{cs+1}, s{sTAG}
        v_dot2_f32_bf16 v{cs}, v{cx+2}, v{ct+9}, v{cs}""")
        self.bs(cx, 4, vT + 2, rWS, T0, 0, 'sc1', count=False)
        for ctl in ('quad_perm:[1,0,3,2]', 'quad_perm:[2,3,0,1]', 'row_half_mirror', 'row_ror:8'): self.dpp('v_add_f32', cs, cs, cs, ctl)
        a(f"""v_mov_b32 v{cs+2}, v{cs}
        v_mov_b32 v{cs+3}, s{sTAG}
        s_mov_b64 exec, 0xf000f""")
        self.bs(cs, 4, vT + 3, rWS, T3, 0, 'sc1', count=False)
        a("""s_mov_b64 exec, -1
        L_NOC:""")
        V.release(ct, 12)
        def ln2_tile():
            for i in E2: self.pk('add', hh + i, x1 + i, st, bc=(1,), neg=(1,))
            self.round_list([hh + i for i in range(16)])
            for i in E2: self.pk('mul', hh + i, hh + i, st + 1, bc=(1,))
            self.round_list([hh + i for i in range(16)])
            for i in E2: self.pk('mul', hh + i, hh + i, mf + 16 + i)
            self.round_list([hh + i for i in range(16)])
            for i in E2: self.pk('add', hh + i, hh + i, mf + i)
            self.round_list([hh + i for i in range(16)])
        lg.wait('s')
        if PR: a('s_setprio 0')
        self.stamp('cand')
        if o.get('f2pos', 0) == 1: side2()
        if o.get('ccat', 3) == 3: c_clean()
        V.release(kc, 5); V.release(cf)
        ffn_dma(fd[3])
        uu = V.alloc(16); vGr = V.alloc(); vDr = V.alloc(); vXs = V.alloc(); vCL = V.alloc(2, 1)
        def out_calc():
            expand(mf, tb4 + 2)
            for i in E2: self.pk('mul', hh + i, hh + i, mf + i)
            self.round_list([hh + i for i in range(16)])
            for i in E2: self.pk('add', hh + i, hh + i, x1 + i)
            for i in range(8): a(f'v_cvt_pk_bf16_f32 v{op+i}, v{hh+2*i}, v{hh+2*i+1}')
            for q in range(2): self.dw('ds_write_b128', vOT, op + 4 * q, 4, 16 * q)
            S(T3, 'w*(16*144) + L_OT'); va(vOT, [(3, 3, 144), (0, 3, 16)], T3)
        oc = o.get('ocat', 2 if TL else 1); l2 = o.get('l2at', 1 if TL else 0)
        def f_work():
            if TL: f_pre(0); f_pre(1)
            if l2 == 0: ln2_tile()
            if oc == 0: out_calc()
            S(T0, '(w >> 2)*32768 + (w & 3)*32 + L_GU')
            va(vGr, [(4, 2, 8192), (2, 2, 128), (3, 2, 32), (0, 2, 8)]); a(f'v_xor_b32 v{vGr}, s{T0}, v{vGr}')
            S(T0, 'w*64')
            va(vDr, [(2, 1, 512), (3, 1, 4096), (5, 1, 2048), (2, 2, 64), (4, 1, 32), (0, 2, 8)])
            a(f'v_xor_b32 v{vDr}, s{T0}, v{vDr}'); a(f'v_add_u32 v{vDr}, {L_DN}, v{vDr}')
            va(vXs, [(0, 3, 16), (4, 2, 128)], None, L_XS)
            S(T0, 'kq*1024'); a(f'v_add_u32 v{vCL}, s{T0}, v{vL16}')
            va(vCL + 1, [(0, 4, 64)], None, 8192)
            S(sWB, 'fs*8192 + HGR'); S(T7, 'mf*kh*8192 + (kq*8 + w)*256 + wb')
            S(T0, 'w*16 + L_K2'); a(f'v_mov_b32 v{vT}, s{T0}')
            va(vT + 1, [(0, 3, 16)], None, L_K2)
            a(f'v_and_b32 v{vT+4}, 8, v{vL}')
            a(f'v_cmp_eq_u32 {sr(sCMP, 2)}, 0, v{vT+4}')
            self.stamp('oc')
        self.inbox(5, 8, (1, 3, 5, 7), f_work)
        P = sPL
        a(f"""s_min_u32 s{P+1}, s{P}, s{P+4}
        s_max_u32 s{P}, s{P}, s{P+4}
        s_max_u32 s{P+3}, s{P+2}, s{P+6}
        s_min_u32 s{P+2}, s{P+2}, s{P+6}
        s_max_u32 s{P+4}, s{P+1}, s{P+3}
        s_min_u32 s{P+1}, s{P+1}, s{P+3}
        v_mov_b32 v{uu}, s{P}
        v_mov_b32 v{uu+3}, s{P+2}
        v_mov_b32 v{uu+1}, s{P+4}
        v_mov_b32 v{uu+2}, s{P+1}""")
        self.dw('ds_write_b128', vT, uu, 4)
        self.stamp('F2p')
        V.release(big, 8 * len(freg) + 4 * nfa); V.release(gr, 2); V.release(vGR); V.release(vRid)
        ffn = V.alloc(48); ga_ = V.alloc(16); gb_ = V.alloc(16)
        vm.wait('gu')
        self.barrier()
        self.stamp('F2')
        def gu_frags():
            for s in range(8):
                self.tr(ffn + 4 * s, vGr, s * 1024); self.tr(ffn + 4 * s + 2, vGr, s * 1024 + 512)
        a(f"""s_cmp_lt_u32 s{sWAVE}, 4
        s_cbranch_scc1 L_CSEL""")
        fq0, vq0 = list(fq), list(vm.q)
        if not o.get('f4late', 1): ffn_dma(fd[4])
        gu_frags()
        if l2 == 1: ln2_tile()
        if oc == 1: out_calc()
        if o.get('f4late', 1): ffn_dma(fd[4])
        a("""s_branch L_CSELD
        L_CSEL:""")
        lg.reset(); fq[:] = fq0; vm.q = vq0
        if PR: a(f's_setprio {PR}')
        self.r128(uu, vT + 1)
        S(T0, 'w*512 + L_XS'); a(f'v_add_u32 v{vT+2}, s{T0}, v{vL8}')
        S(T0, 'w*4 + L_K3'); a(f'v_mov_b32 v{vT+3}, s{T0}')
        lg.wait_all()
        c4 = uu + 4
        for n, ctl in enumerate(('quad_perm:[1,0,3,2]', 'quad_perm:[2,3,0,1]', 'row_half_mirror')):
            for i in range(4): self.dpp('v_max_u32', c4 + i, uu + 3 - i, uu + i, ctl)
            if n == 2: break
            a(f"""v_max_u32 v{c4+4}, v{c4}, v{c4+2}
            v_max_u32 v{c4+5}, v{c4+1}, v{c4+3}
            v_min_u32 v{c4+6}, v{c4}, v{c4+2}
            v_min_u32 v{c4+7}, v{c4+1}, v{c4+3}
            v_max_u32 v{uu}, v{c4+4}, v{c4+5}
            v_min_u32 v{uu+1}, v{c4+4}, v{c4+5}
            v_max_u32 v{uu+2}, v{c4+6}, v{c4+7}
            v_min_u32 v{uu+3}, v{c4+6}, v{c4+7}""")
        for i in range(4): a(f'v_readfirstlane_b32 s{P+i}, v{c4+i}')
        a(f"""s_bitcmp1_b32 s{sWAVE}, 0
        s_cselect_b32 s{P}, s{P+1}, s{P}
        s_cselect_b32 s{P+2}, s{P+3}, s{P+2}
        s_bitcmp1_b32 s{sWAVE}, 1
        s_cselect_b32 s{P}, s{P+2}, s{P}
        s_and_b32 s{T2}, s{P}, 4095""")
        S(T0, '((15 - (T2 >> 8))*2 + (T2 & 1))*16384 + CAND')
        def sel_work():
            self.stamp('sel')
            if PR: a('s_setprio 0')
            ffn_dma(fd[4], T3)
            gu_frags()
            if l2 == 1: ln2_tile()
            if oc == 1: out_calc()
            S(T2, 'T2*4 + w')
        self.try_load(lambda: (self.bl(uu + 4, 2, vCL + 1, rWS, T0, 0, 'sc1'), self.bl(uu, 4, vCL, rWS, T0, 0, 'sc1')), [uu + 1, uu + 3, uu + 5], vT + 4, sel_work)
        if PR: a(f's_setprio {PR}')
        a(f'ds_write2_b32 v{vT+2}, v{uu}, v{uu+2} offset0:0 offset1:1'); lg.issue()
        for ctl in ('quad_perm:[1,0,3,2]', 'quad_perm:[2,3,0,1]', 'row_half_mirror', 'row_ror:8'): self.dpp('v_add_f32', uu + 4, uu + 4, uu + 4, ctl)
        a(f"""v_cvt_pk_bf16_f32 v{uu+4}, 0, v{uu+4}
        v_ashrrev_i32 v{uu+5}, 31, v{uu+4}
        v_or_b32 v{uu+5}, 0x80000000, v{uu+5}
        v_xor_b32 v{uu+4}, v{uu+4}, v{uu+5}
        v_and_b32 v{uu+4}, s{sMASK}, v{uu+4}
        v_or_b32 v{uu+4}, s{T2}, v{uu+4}""")
        self.dw('ds_write_b32', vT + 3, uu + 4, 1)
        if PR: a('s_setprio 0')
        a('L_CSELD:')
        V.release(vFG); V.release(vFD)
        a(f'v_mov_b32 v{vT}, {L_K3}')
        self.barrier()
        self.stamp('xsel')
        self.r128(uu, vT)
        lg.wait_all()
        a(f"""v_max_u32 v{uu+4}, v{uu}, v{uu+1}
        v_max_u32 v{uu+5}, v{uu+2}, v{uu+3}
        v_min_u32 v{uu+6}, v{uu}, v{uu+1}
        v_min_u32 v{uu+7}, v{uu+2}, v{uu+3}
        v_min_u32 v{uu+1}, v{uu+4}, v{uu+5}
        v_max_u32 v{uu}, v{uu+4}, v{uu+5}
        v_max3_u32 v{uu+1}, v{uu+1}, v{uu+6}, v{uu+7}
        v_cndmask_b32 v{vT}, v{uu+1}, v{uu}, {sr(sCMP, 2)}
        v_readfirstlane_b32 s{sK1}, v{uu}
        v_and_b32 v{vT}, 3, v{vT}
        v_readfirstlane_b32 s{sK2}, v{uu+1}
        v_lshl_add_u32 v{vT}, v{vT}, 9, v{vXs}""")
        self.r128(uu + 4, vT)
        if oc < 2:
            for q in range(2): self.r128(op + 4 * q, vOT, q * 8 * 144, 'ot')
        a(f"""s_bfe_u32 s{sROW0}, s{sK1}, {3 | (11 << 16)}
        s_bfe_u32 s{sROW1}, s{sK2}, {3 | (11 << 16)}
        s_sub_u32 s{sROW0}, 2047, s{sROW0}
        s_sub_u32 s{sROW1}, 2047, s{sROW1}
        s_waitcnt lgkmcnt({2 if oc < 2 else 0})""")
        gd = [ga_ + 4 * i for i in range(4)] + [gb_ + 4 * i for i in range(4)]
        for s in range(8):
            a(f'v_mfma_f32_16x16x32_bf16 {vr(gd[s], 4)}, {vr(uu + 4, 4)}, {vr(ffn + 4*s, 4)}, 0')
        p0, p1 = uu, uu + 2
        hk = V.alloc(5, 4)
        for p, b in ((p0, 0), (p1, 4)):
            a(f'v_add_f32 v{p}, v{gd[b]}, v{gd[b+1]+1}')
            a(f'v_add_f32 v{p+1}, v{gd[b+2]+2}, v{gd[b+3]+3}')
        a(f"""v_add_f32 v{p0}, v{p0}, v{p0+1}
        v_add_f32 v{p1}, v{p1}, v{p1+1}
        v_permlane16_swap_b32 v{p1}, v{p1+1}
        v_add_f32 v{hk}, v{p0}, v{p1+1}
        v_add_f32 v{hk+2}, v{p0}, v{p1+1}
        v_mov_b32 v{hk+1}, s{sTAG}
        v_mov_b32 v{hk+3}, s{sTAG}
        v_permlane32_swap_b32 v{hk}, v{hk+2}
        s_cmp_ge_u32 s{sJ}, 28
        s_cbranch_scc1 L_NOHP
        s_mov_b64 exec, 0xffff""")
        self.bs2([(hk, 4, vL16, T7, 0)])
        a(f"""s_mov_b64 exec, -1
        L_NOHP:
        v_add_u32 v{hk+4}, s{T7}, v{vL16}""")
        self.stamp('Hpub')
        vG3 = V.alloc(3, 1)
        def g_prep():
            va(vG3, [(2, 1, 128), (5, 1, 16)], None, L_ACT)
            va(vG3 + 1, [(4, 2, 56 * 128), (0, 3, 16)])
            va(vG3 + 2, [(0, 2, 4096)] if TL else [(0, 1, 64 * 4096), (1, 1, 2 * 4096)])
            S(sWB, '(kq*8 + w)*(4*56*128) + fs*128 + GGR')
            S(sU0, ('(kq*8 + w)*16384' if TL else '(((kq & 1)*4 + (w >> 1))*8 + (w & 1)*4 + (kq >> 1))*4096') + ' + x*64 + (j >> 2)*4 + INB + 3072')
        vOr = V.alloc(); vOa = V.alloc()
        def out_store():
            S(T0, 'rt*128 + w*16'); va(vOr, [(3, 3, 1)], T0)
            S(T2, 'T0*2048 + cb*128'); S(T3, 'T2 + 16384')
            va(vOa, [(3, 3, 2048), (0, 3, 16)])
            for q in range(2):
                if q: a(f'v_add_u32 v{vOr}, 8, v{vOr}')
                a(f"""v_cmp_ne_u32 vcc, s{sROW0}, v{vOr}
                v_cmp_ne_u32 {sr(sCMP, 2)}, s{sROW1}, v{vOr}
                s_and_b64 exec, vcc, {sr(sCMP, 2)}""")
                self.bs(op + 4 * q, 4, vOa, rOUT, (T2, T3)[q], 0, o.get('outmod', 'sc1'), count=False)
                a('s_mov_b64 exec, -1')
        lg.wait('ot')
        if o.get('outat', 1) == 0: assert oc < 2; out_store()
        fz = V.alloc(4)
        sFR, sFK, sFC0 = T4, T5, T6
        a(f"""s_bitcmp1_b32 s{sX if TL else sRT}, {1 if TL else 2}
        s_cselect_b32 s{sFR}, s{sROW1}, s{sROW0}
        s_cselect_b32 s{sFK}, s{sK2}, s{sK1}
        s_cmp_lg_u32 s{sWAVE}, 7
        s_cbranch_scc1 L_NOFZ
        s_cmp_lg_u32 s2, 0
        s_cbranch_scc1 L_NONON
        v_mov_b32 v{vT+2}, s{sTAG}
        s_mov_b64 exec, 1""")
        self.bs(vT + 2, 1, vZ, rWS, '0', 0, 'sc1', count=False)
        a(f"""s_mov_b64 exec, -1
        L_NONON:""")
        S(sFC0, '(x >> 2)*2 + (x & 1)' if TL else '(rt >> 3)*2 + (rt & 1)')
        S(T7, '(cb*8 + x)*(56*128) + GGR' if TL else '(cb*8 + (rt >> 2)*2 + (rt & 1))*(56*128) + GGR')
        S(sU, 'T4*2048 + cb*128 + T6*32')
        va(vT + 6, [(0, 1, 4), (2, 1, 8), (1, 1, 16)])
        S(T0, 'T6*32 + L_GB'); a(f'v_add_u32 v{vT+1}, s{T0}, v{vT+6}')
        a(f'ds_read_b32 v{fz+2}, v{vT+1}')
        S(sK1, '((T4 >> 7)*2 + ((T5 >> 2) & 1))*16384 + cb*256 + T6*64 + CAND'); S(sK2, 'k1 + 4096')
        va(vT + 7, [(0, 1, 8), (2, 1, 16), (1, 1, 32)])
        ld_fz = lambda: (self.bl(st, 2, vT + 7, rWS, sK1, 0, 'sc1'), self.bl(fz, 2, vT + 7, rWS, sK2, 0, 'sc1'))
        q_ = list(vm.q); ld_fz(); vm.q = q_
        a(f"""s_and_b32 s{T0}, s{sFK}, s{sMASK}
        s_ashr_i32 s{T2}, s{T0}, 31
        s_andn2_b32 s{T2}, 0x7fff0000, s{T2}
        s_or_b32 s{T2}, s{T2}, 0x80000000
        s_xor_b32 s{T0}, s{T0}, s{T2}
        v_mov_b32 v{fz+3}, s{T0}
        v_mul_f32 v{fz+3}, s{sL2E}, v{fz+3}
        v_exp_f32 v{fz+3}, -v{fz+3}
        v_add_f32 v{fz+3}, 1.0, v{fz+3}
        v_rcp_f32 v{fz+3}, v{fz+3}""")
        self.round1(fz + 3)
        a(f"""L_NOFZ:
        s_cmp_lt_u32 s{sJ}, 28
        s_cbranch_scc1 L_HSEC""")
        if oc == 2:
            out_calc()
            self.barrier()
            for q in range(2): self.r128(op + 4 * q, vOT, q * 8 * 144)
            lg.wait_all()
        a("""s_branch L_GSEC
        L_HSEC:""")
        a(f"""s_cmp_lt_u32 s{sWAVE}, 4
        s_cbranch_scc1 L_HW""")
        if oc == 2: out_calc()
        g_prep()
        a("""s_branch L_NOH
        L_HW:""")
        S(T0, 'w*256 + wb')
        va(vT, [(4, 2, 2048), (0, 4, 16)])
        S(T2, 'w*32 + L_ACT'); va(vT + 1, [(5, 1, 128), (2, 1, 16), (1, 1, 8), (3, 1, 4), (0, 1, 2)], T2)
        a(f"""s_cmp_lg_u32 s{sLOC}, 0
        s_cbranch_scc1 L_HLOC""")
        self.spoll([(q, 1, T0, q * 2048 + 1024 + 252) for q in range(4)], range(4))
        a('L_HLOC:')
        self.stamp('Hpre')
        g, u = ga_, ga_ + 4
        self.try_load(lambda: [self.bl(ga_ + 4 * m, 4, vT, rWS, T0, m * 1024, 'sc1') for m in range(2)], [g + 1, g + 3, u + 1, u + 3], vT + 2, lambda: (g_prep(), out_calc() if oc == 2 else None))
        a(f"""v_permlane32_swap_b32 v{g}, v{g+2}
        v_permlane32_swap_b32 v{u}, v{u+2}
        v_add_f32 v{g}, v{g}, v{g+2}
        v_add_f32 v{u}, v{u}, v{u+2}
        v_mov_b32 v{g+2}, v{g}
        v_mov_b32 v{u+2}, v{u}
        v_permlane16_swap_b32 v{g}, v{g+2}
        v_permlane16_swap_b32 v{u}, v{u+2}
        v_add_f32 v{g}, v{g}, v{g+2}
        v_add_f32 v{u}, v{u}, v{u+2}""")
        self.round2(g, u)
        self.silu(g, vT + 2)
        a(f"""v_mul_f32 v{g}, v{g}, v{u}
        v_cvt_pk_bf16_f32 v{g}, v{g}, v{g}
        ds_write_b16 v{vT+1}, v{g}
        L_NOH:""")
        vm.wait_all()
        self.barrier()
        self.stamp('Hok')
        for s in range(4):
            self.r128(ga_ + 4 * s, vG3, s * 32, ('ac', s))
            self.tr(ffn + 32 + 4 * s, vDr, s * 8192, ('ac', s)); self.tr(ffn + 32 + 4 * s + 2, vDr, s * 8192 + 1024, ('ac', s))
        for s in range(4):
            lg.wait(('ac', s))
            a(f'v_mfma_f32_32x32x16_bf16 {vr(gb_, 16)}, {vr(ga_ + 4*s, 4)}, {vr(ffn + 32 + 4*s, 4)}, ' + ('0' if s == 0 else vr(gb_, 16)))
        if oc == 2:
            for q in range(2): self.r128(op + 4 * q, vOT, q * 8 * 144)
        a(f"""v_mov_b32_dpp v{gb_+2}, v{gb_} row_ror:8 row_mask:0xf bank_mask:0xf
        v_mov_b32 v{gb_+1}, s{sTAG}
        v_mov_b32 v{gb_+3}, s{sTAG}
        s_mov_b32 exec_lo, 0x00ff00ff
        s_mov_b32 exec_hi, 0x00ff00ff""")
        self.bs(gb_, 4, vG3 + 1, rWS, sWB, 0, 'sc1')
        a('s_mov_b64 exec, 15')
        self.bs(gb_ + 1, 1, vG3 + 2, rWS, sU0, 0, 'sc1')
        a('s_mov_b64 exec, -1')
        self.stamp('Gpub')
        def hclean():
            a('s_mov_b64 exec, 0xffff')
            self.bs(hk, 4, hk + 4, rWS, '0', 0, 'sc1', count=False)
            a('s_mov_b64 exec, -1')
        if o.get('hclean', 3) == 1: hclean()
        lg.wait_all()
        a('L_GSEC:')
        if o.get('outat', 1) == 1: out_store()
        a(f"""s_cmp_lt_u32 s{sJ}, 16
        s_cbranch_scc1 L_GF""")
        if o.get('outat', 1) == 2: out_store()
        if o.get('hclean', 3) >= 2:
            a(f"""s_cmp_ge_u32 s{sJ}, 28
            s_cbranch_scc1 L_FIN
            s_waitcnt vmcnt(0)""")
            hclean()
        a("""s_branch L_FIN
        L_GF:""")
        self.inbox(6, 8, range(7))
        self.stamp('Gpre')
        a('s_barrier')
        if o.get('hclean', 3) == 2: hclean()
        if o.get('hclean', 3) == 3:
            a(f"""s_cmp_eq_u32 s{sWAVE}, 7
            s_cbranch_scc1 L_G7
            s_barrier""")
            if o.get('outat', 1) == 2: out_store()
            hclean()
            a("""s_branch L_FIN
            L_G7:""")
        a(f"""s_cmp_lg_u32 s{sWAVE}, 7
        s_cbranch_scc1 L_FIN""")
        S(T0, 'T7 + 4096')
        gg = [ga_ + 4 * i for i in range(4)] + [uu + 4 * i for i in range(3)]
        fo = V.alloc(6, 2)
        def g_work():
            a(f's_waitcnt vmcnt(7)')
            self.finish_load('none', ld_fz, [st + 1, fz + 1], vT)
            for q, r_ in enumerate((st, fz + 2, fz)): self.unpack(fo + 2 * q, fo + 2 * q + 1, r_)
        self.try_load(lambda: [self.bl(gg[n], 4, vL16, rWS, (T7, T0)[n >> 2], (n & 3) * 1024, 'sc1') for n in range(7)],
                      [gg[n] + 1 + 2 * e for n in range(7) for e in range(2)], vT, g_work)
        self.stamp('Gok')
        if o.get('hclean', 3) == 3: a('s_barrier')
        y0, y1 = gg[0], gg[0] + 1
        for lo, hi in ((0, 1), (2, 3), (4, 5), (0, 2), (4, 6), (0, 4)):
            for e in (0, 2): a(f'v_add_f32 v{gg[lo]+e}, v{gg[lo]+e}, v{gg[hi]+e}')
        a(f'v_mov_b32 v{y1}, v{gg[0]+2}')
        for y in (y0, y1): self.dpp('v_add_f32', y, y, y, 'row_ror:8')
        for sw in ('v_permlane16_swap_b32', 'v_permlane32_swap_b32'):
            for y in (y0, y1): a(f'v_mov_b32 v{y+2}, v{y}')
            for y in (y0, y1): a(f'{sw} v{y}, v{y+2}')
            self.pk('add', y0, y0, y0 + 2)
        a(f"""v_mov_b32_dpp v{y0+2}, v{y0} quad_perm:[0,2,0,2] row_mask:0xf bank_mask:0xf
        v_mov_b32_dpp v{y0+3}, v{y0} quad_perm:[1,3,1,3] row_mask:0xf bank_mask:0xf
        v_mov_b32_dpp v{y0}, v{y1} quad_perm:[0,2,0,2] row_mask:0xf bank_mask:0xf
        v_mov_b32_dpp v{y1}, v{y1} quad_perm:[1,3,1,3] row_mask:0xf bank_mask:0xf
        s_mov_b32 exec_lo, 0x33333333
        v_mov_b32 v{y0}, v{y0+2}
        v_mov_b32 v{y1}, v{y0+3}
        s_mov_b32 exec_lo, -1""")
        self.round2(y0, y1)
        self.pk('mul', y0, y0, fz + 3, bc=(1,))
        self.round2(y0, y1)
        self.pk('add', y0, y0, fo)
        self.round2(y0, y1)
        self.pk('mul', y0, y0, fo + 2)
        self.round2(y0, y1)
        self.pk('add', y0, y0, fo + 4)
        a(f'v_cvt_pk_bf16_f32 v{y0}, v{y0}, v{y1}')
        a('s_mov_b64 exec, 0xff')
        self.bs(y0, 1, vT + 6, rOUT, sU, 0, 'sc1')
        a('s_mov_b64 exec, -1')
        if o.get('outat', 1) == 2: out_store()
        if o.get('hclean', 3) == 3: hclean()
        a('L_FIN:')
        if o.get('exfil'):
            self.stamp('fin')
            a('s_waitcnt vmcnt(0)')
            self.stamp('finw')
            a(f'''s_lshl3_add_u32 s{T0}, s2, s{sWAVE}
            s_cmp_lg_u32 s{T0}, {o.get('exwho', 7)}
            s_cbranch_scc1 L_END
            v_readlane_b32 s{T0}, v255, 0
            v_readlane_b32 s{T1}, v255, 1
            v_readlane_b32 s{T2}, v255, 2
            s_sub_u32 s{T2}, s{T2}, s{T1}
            s_max_i32 s{T2}, s{T2}, 0
            s_min_u32 s{T2}, s{T2}, 10000
            s_mul_i32 s{T2}, s{T2}, 10
            s_add_u32 s{T2}, s{T2}, 6000
            L_PAD:
            s_memrealtime {sr(sTM, 2)}
            s_waitcnt lgkmcnt(0)
            s_sub_u32 s{T1}, s{sTM}, s{T0}
            s_cmp_lt_u32 s{T1}, s{T2}
            s_cbranch_scc1 L_PAD''')
        if o.get('padfin'):
            a(f'''s_lshl3_add_u32 s{T0}, s2, s{sWAVE}
            s_cmp_lg_u32 s{T0}, 7
            s_cbranch_scc1 L_END
            s_memrealtime {sr(sTM, 2)}
            s_waitcnt lgkmcnt(0)
            s_mov_b32 s{T0}, s{sTM}
            L_PAD2:
            s_memrealtime {sr(sTM, 2)}
            s_waitcnt lgkmcnt(0)
            s_sub_u32 s{T1}, s{sTM}, s{T0}
            s_cmp_lt_u32 s{T1}, {o['padfin']}
            s_cbranch_scc1 L_PAD2''')
        if self.prof:
            a('s_waitcnt vmcnt(0) lgkmcnt(0)')
            self.stamp('end')
            a(f's_memrealtime {sr(sTM, 2)}')
            a('s_waitcnt lgkmcnt(0)')
            a(f'v_writelane_b32 v255, s{sTM}, 61')
            S(T0, '(wg*8 + w)*256 + STAMPS')
            a(f'v_writelane_b32 v255, s{sSPIN}, 62')
            a(f'v_lshlrev_b32 v{vT+1}, 2, v{vL}')
            a(f'buffer_store_dword v255, v{vT+1}, {sr(rWS, 4)}, s{T0} offen')
            S(T0, 'T0 + 0x100000')
            a(f'buffer_store_dword v254, v{vT+1}, {sr(rWS, 4)}, s{T0} offen')
        a('L_END:')
        a('s_endpgm')
        return self

    def text(self):
        a = self.a
        npad = a.fix_hazards()
        errs = a.check_waits([NAME], maxvisit=int(os.environ.get('MAXVISIT', 4)))
        for e in errs: print('WAITERR', e, file=sys.stderr)
        assert not errs
        hdr = open(os.path.join(os.path.dirname(os.path.abspath(__file__)), 'header.txt')).read()
        s = hdr + '; @launch grid=(256,1,1) block=(512,1,1) lds=163840\n'
        s += '.amdgcn_target "amdgcn-amd-amdhsa--gfx950"\n.text\n'
        s += f'.globl {NAME}\n.p2align 8\n.type {NAME},@function\n'
        body = a.text()
        import subprocess, tempfile
        with tempfile.TemporaryDirectory() as td:
            open(td + '/t.s', 'w').write('.amdgcn_target "amdgcn-amd-amdhsa--gfx950"\n.text\n' + body.replace('CODE_KB', '20480'))
            subprocess.run(['clang', '-x', 'assembler', '-target', 'amdgcn-amd-amdhsa', '-mcpu=gfx950', '-c', td + '/t.s', '-o', td + '/t.o'], check=True)
            subprocess.run(['llvm-objcopy', '-O', 'binary', '-j', '.text', td + '/t.o', td + '/t.bin'], check=True)
            size = os.path.getsize(td + '/t.bin')
        print('; code bytes', size, file=sys.stderr)
        s += body.replace('CODE_KB', str((size // 1024 + 1) * 1024))
        s += '.p2align 10\n.fill 768, 4, 0xbf800000\n'
        s += '.section .rodata,"a"\n' + kernel_desc(NAME, 256, 102)
        print(f'; vgpr hi {self.V.hi}, nops {npad}, instrs {sum(1 for k, _ in a.items if k == "ins")}', file=sys.stderr)
        return s


if __name__ == '__main__':
    import argparse, json
    ap = argparse.ArgumentParser()
    ap.add_argument('-o', default='/dev/stdout')
    ap.add_argument('--prof', action='store_true')
    ap.add_argument('--opts', default='{}')
    args = ap.parse_args()
    g = Gen(args.prof, json.loads(args.opts)).build()
    t = g.text()
    open(args.o, 'w').write(t)
    if args.prof: open(args.o + '.stamps', 'w').write(json.dumps(g.stnames))
```

```python
import sys, os
sys.path.insert(0, os.path.dirname(os.path.abspath(__file__)))
from asm import *

NAME = 'adaLN_cond__linear_kernel_hedgehog__moe_arch_mod__prompt_kernel'

NONCE = 0x0
CFL = 0x8000
MARK = 0x100
GR = 0x010000
MODP2 = 0x020000
SINB = 0x040000
AINB = 0x080000
INA = 0x200000
INB = 0x100000
HF = 0x400000
OF = 0x800000
STAT = 0xC00000
CAND = 0x2000000
HGR = 0x1400000
ZP = 0x1480000
GGR = 0x1500000
KVP = 0x1800000
KIN = 0x1C00000
STAMPS = 0x1600000
WS_BYTES = 268435456

SEC = 8320
SLOT = 3 * SEC
SCR = 6 * SLOT
L_A1 = SCR
L_M2 = SCR + 1024
L_ST = SCR + 2048
L_MP = SCR + 2560
L_WPHI = SCR + 6656
L_MB = SCR + 10752
L_XF = 147456
L_PHK = 0
L_V = 32768
WO_H0 = 32768
WO_H1 = 98304
GS = 0
L_KVF = GS
L_ZF = GS + 8192
L_EXCH = GS
L_MT = 139264
L_GU = 32768
L_DN = 98304
TS = 131072
L_SP = TS
L_ST2 = TS + 4096
L_K1 = TS + 5120
L_K2 = TS + 5184
L_K3 = TS + 5312
L_XS = TS + 5632
L_ACT = TS + 7680
L_TB = TS + 7936
L_GB = L_TB + 256
L_OT = TS + 8704
L_XT = GS

SPIN_LIMIT = 300000

sWAVE, sTAG, sSPIN, sMASK, sL2E = 3, 4, 5, 6, 7
sX, sJ, sR1, sHP, sCB = 8, 9, 10, 11, 12
T0, T1, T2, T3, T4, T5, T6, T7 = 13, 14, 15, 16, 17, 18, 19, 20
sRT = 21
sCMP = 22
sPL = 24
rWS, rX, rW, rWO, rWM, rWG, rWU, rWD, rOUT = 32, 36, 40, 44, 48, 52, 56, 60, 64
KA = 68
pWPHI, pWR, pC = KA + 4, KA + 10, KA + 18
sK1, sK2, sROW0, sROW1, sFS, sKQ, sKH, sKF = 68, 69, 70, 71, 74, 75, 76, 77
sFG, sFD, sU, sROT, sWB, sU0 = 80, 81, 82, 83, 84, 85
sWO2, sW1K, sMF = 88, 89, 90
sINB, sRow, sGTB, sC32 = 92, 93, 94, 95
sWC = 91
sXC = 94
pDBG = 30
sLOC = 93
XT = (96, 97, 98, 99)
sTM = 100
ENV = dict(wg=2, w=sWAVE, x=sX, j=sJ, r1=sR1, hp=sHP, cb=sCB, rt=sRT, row=sRow, gtb=sGTB, c32=sC32, kh=sKH, kf=sKF, fs=sFS, kq=sKQ,
           rot=sROT, wb=sWB, u0=sU0, wo2=sWO2, w1k=sW1K, mf=sMF, u=sU, fg=sFG, fd=sFD, T0=T0, T1=T1, T2=T2, T3=T3, T4=T4, T5=T5, T6=T6, T7=T7, row0=sROW0, row1=sROW1, k1=sK1, xc=sXC)


class Gen:
    def __init__(self, prof=False, opts=None):
        self.a = Asm()
        self.vm = Counter(self.a, 'vmcnt', 63)
        self.lg = Counter(self.a, 'lgkmcnt', 15)
        self.V = RegAlloc(254, 1)
        self.prof = prof
        self.nopk = False
        self.nst = 0
        self.stnames = []
        self.S = SExpr(self.a, ENV, {k: v for k, v in globals().items() if isinstance(v, int) and k.isupper() and k not in ENV}, XT)
        self.o = dict(AD=13, LOOK=6, wev=2, AD2=8, A20=6, wburst=(0, 3, 0, 0, 6, 6), wxor=3, LASTB=14, wsch={2: 6, 3: 3, 4: 6, 5: 3, 6: 6, 7: 3, 8: 6, 9: 6, 10: 6, 11: 6, 12: 6, 13: 3},
                      sched={1: 'm1 p2', 2: 's4', 3: 'm1', 4: 's4 p2', 5: 'm1', 6: 'g1', 7: 'm1 h p3', 8: 'g1', 9: 'g1', 10: 'g1', 11: 'g2', 12: 'g2', 13: 'R r1', 14: 'P K o4 f4', 15: 'f2'}, fdma=(3, 0, 1, 1, 1), wowin=(6, 0, 3))
        if opts: self.o.update(opts)

    def bl(self, dst, n, voff, srd, soff, imm=0, mods='', tag=None):
        op = {1: 'dword', 2: 'dwordx2', 4: 'dwordx4'}[n]
        so = soff if isinstance(soff, str) else (sr(soff))
        self.a(f'buffer_load_{op} {vr(dst, n)}, v{voff}, {sr(srd, 4)}, {so} offen' + (f' offset:{imm}' if imm else '') + (' ' + mods if mods else ''))
        self.vm.issue(tag)
    def bs(self, src, n, voff, srd, soff, imm=0, mods='', tag=None, count=True):
        op = {1: 'dword', 2: 'dwordx2', 4: 'dwordx4'}[n]
        so = soff if isinstance(soff, str) else (sr(soff))
        self.a(f'buffer_store_{op} {vr(src, n)}, v{voff}, {sr(srd, 4)}, {so} offen' + (f' offset:{imm}' if imm else '') + (' ' + mods if mods else ''))
        if count: self.vm.issue(tag)
    def bs2(self, items):
        a = self.a
        LL, D = a.label('LOC'), a.label('LOCD')
        a(f's_cmp_lg_u32 s{sLOC}, 0')
        a(f's_cbranch_scc1 {LL}')
        for src, n, voff, soff, imm in items: self.bs(src, n, voff, rWS, soff, imm, 'sc1', count=False)
        a(f's_branch {D}')
        a(f'{LL}:')
        for src, n, voff, soff, imm in items: self.bs(src, n, voff, rWS, soff, imm, '', count=False)
        a(f'{D}:')
    def dma(self, voff, srd, soff, imm=0, mods='', tag=None):
        self.a(f'buffer_load_dwordx4 v{voff}, {sr(srd, 4)}, {sr(soff)} offen' + (f' offset:{imm}' if imm else '') + (' ' + mods if mods else '') + ' lds')
        self.vm.issue(tag)
    def dr(self, op, dst, n, addr, off=0, tag=None):
        assert 0 <= off < 65536, off
        self.a(f'{op} {vr(dst, n)}, v{addr}' + (f' offset:{off}' if off else ''))
        self.lg.issue(tag)
    def tr(self, dst, addr, off, tag=None): self.dr('ds_read_b64_tr_b16', dst, 2, addr, off, tag)
    def r128(self, dst, addr, off=0, tag=None): self.dr('ds_read_b128', dst, 4, addr, off, tag)
    def dw(self, op, addr, src, n, off=0, tag=None):
        assert 0 <= off < 65536, off
        self.a(f'{op} v{addr}, {vr(src, n)}' + (f' offset:{off}' if off else ''))
        self.lg.issue(tag)
    def barrier(self):
        self.lg.wait_all()
        self.a('s_barrier')
    def stamp(self, name):
        ex = self.o.get('exfil')
        if ex and name in ex[:2]:
            self.a(f's_memrealtime {sr(sTM, 2)}')
            self.lg.wait_all()
            self.a(f'v_writelane_b32 v255, s{sTM}, {1 + ex.index(name)}')
        if not self.prof: return
        only = self.o.get('only')
        if only and name not in only and name != 'end': return
        self.a(f's_memtime {sr(sTM, 2)}')
        self.a(f's_memrealtime s[0:1]')
        self.lg.wait_all()
        self.a(f'v_writelane_b32 v255, s{sSPIN if self.o.get("spinst") and self.nst > 3 else sTM}, {self.nst}')
        self.a(f'v_writelane_b32 v254, s0, {self.nst}')
        self.stnames.append(name)
        self.nst += 1
        assert self.nst <= 60
    def unpack(self, lo, hi, src):
        self.a(f'v_lshlrev_b32 v{lo}, 16, v{src}')
        self.a(f'v_and_b32 v{hi}, s{sMASK}, v{src}')
    def round1(self, r):
        self.a(f'v_cvt_pk_bf16_f32 v{r}, 0, v{r}')
    def round2(self, r0, r1):
        self.round1(r0); self.round1(r1)
    def round_list(self, regs):
        for r in regs: self.round1(r)
    def pk(self, op, d, s0, s1, s2=None, bc=(), neg=()):
        srcs = [s0, s1] + ([s2] if s2 is not None else [])
        if self.nopk:
            for h in range(2):
                t = []
                for k, r in enumerate(srcs):
                    kind, n = r if isinstance(r, tuple) else ('v', r)
                    t.append(('-' if k in neg else '') + f'{kind}{n if k in bc else n + h}')
                e64 = '' if op == 'fma' else ('_e64' if (neg or t[1][0] == 's') else '')
                self.a(f'v_{op}_f32{e64} v{d+h}, ' + ', '.join(t))
            return
        txt, sel, selhi = [], [], []
        for k, r in enumerate(srcs):
            kind, n = r if isinstance(r, tuple) else ('v', r)
            if k in bc:
                txt.append(f'{kind}[{n & ~1}:{(n & ~1) + 1}]'); sel.append(n & 1); selhi.append(n & 1)
            else:
                assert n % 2 == 0
                txt.append(f'{kind}[{n}:{n+1}]'); sel.append(0); selhi.append(1)
        assert d % 2 == 0
        m = ''
        if any(sel): m += ' op_sel:[' + ','.join(map(str, sel)) + ']'
        if not all(selhi): m += ' op_sel_hi:[' + ','.join(map(str, selhi)) + ']'
        if neg:
            ng = ','.join('1' if k in neg else '0' for k in range(len(srcs)))
            m += f' neg_lo:[{ng}] neg_hi:[{ng}]'
        self.a(f'v_pk_{op}_f32 v[{d}:{d+1}], ' + ', '.join(txt) + m)
    def dpp(self, op, d, s0, s1, ctl):
        self.a(f'{op}_dpp v{d}, v{s0}, v{s1} {ctl} row_mask:0xf bank_mask:0xf')
    def allreduce(self, v, t, op='v_add_f32', lo=True, b3=True):
        if lo:
            self.dpp(op, v, v, v, 'quad_perm:[1,0,3,2]')
            self.dpp(op, v, v, v, 'quad_perm:[2,3,0,1]')
            self.dpp(op, v, v, v, 'row_half_mirror')
        self.dpp(op, v, v, v, 'row_ror:8')
        self.a(f'v_mov_b32 v{t}, v{v}')
        self.a(f'v_permlane16_swap_b32 v{v}, v{t}')
        self.a(f'{op} v{v}, v{v}, v{t}')
        self.a(f'v_mov_b32 v{t}, v{v}')
        self.a(f'v_permlane32_swap_b32 v{v}, v{t}')
        self.a(f'{op} v{v}, v{v}, v{t}')
    def poll(self, loads, tagregs, tmp=None):
        a = self.a
        L, D = a.label('POLL'), a.label('PDONE')
        a(f'{L}:')
        loads()
        self.vm.wait_all()
        self.tagcheck(tagregs, tmp)
        a(f's_cbranch_vccz {D}')
        a(f's_add_u32 s{sSPIN}, s{sSPIN}, 1')
        a(f's_cmp_lt_u32 s{sSPIN}, {SPIN_LIMIT}')
        a(f's_cbranch_scc1 {L}')
        a(f'{D}:')
    def weave(self, fn, extras):
        a = self.a
        keep = a.items; a.items = []
        fn()
        body = a.items; a.items = keep
        extras = list(extras); n = len(extras)
        for i, it in enumerate(body):
            while extras and (n - len(extras)) * len(body) <= i * n: extras.pop(0)()
            a.items.append(it)
        for e in extras: e()
    def tagcheck(self, tagregs, tmp):
        a = self.a
        if tagregs[0] == 'nan':
            if len(tagregs) == 3: a(f'v_max_u32 v{tmp}, v{tagregs[1]}, v{tagregs[2]}')
            a(f'v_cmp_eq_u32 vcc, -1, v{tmp if len(tagregs) == 3 else tagregs[1]}')
        elif len(tagregs) == 1:
            a(f'v_cmp_ne_u32 vcc, s{sTAG}, v{tagregs[0]}')
        else:
            a(f'v_bitop3_b32 v{tmp}, v{tagregs[0]}, v{tagregs[1]}, s{sTAG} bitop3:0x7e')
            for t in tagregs[2:]: a(f'v_bitop3_b32 v{tmp}, v{tmp}, v{t}, s{sTAG} bitop3:0xf6')
            a(f'v_cmp_ne_u32 vcc, 0, v{tmp}')
    def try_load(self, loads, tagregs, tmp=None, between=None, pre=None):
        a = self.a
        n0 = len(self.vm.q)
        loads()
        self.vm.q[-1] = tg = ('try', a.label('T'))
        if between: between()
        self.vm.wait(tg)
        OK = a.label('TOK')
        self.tagcheck(tagregs, tmp)
        a(f's_cbranch_vccz {OK}')
        q, l = list(self.vm.q), list(self.lg.q)
        if pre: pre()
        self.poll(loads, tagregs, tmp)
        self.vm.q, self.lg.q = q, l
        a(f'{OK}:')
    def finish_load(self, tg, loads, tagregs, tmp=None, pre=None):
        a = self.a
        self.vm.wait(tg)
        OK = a.label('TOK')
        self.tagcheck(tagregs, tmp)
        a(f's_cbranch_vccz {OK}')
        q, l = list(self.vm.q), list(self.lg.q)
        if pre: pre()
        self.poll(loads, tagregs, tmp)
        self.vm.q, self.lg.q = q, l
        a(f'{OK}:')
    def spoll(self, loads, checks, work=None, pipe=0):
        a = self.a
        L, C, D = a.label('SPOLL'), a.label('SCHK'), a.label('SDONE')
        def issue(note=''):
            for d, n, so, imm in loads:
                op = {1: 'dword', 2: 'dwordx2', 4: 'dwordx4', 8: 'dwordx8'}[n]
                a(f's_load_{op} {sr(sPL + d, n)}, {sr(rWS, 2)}, s{so} offset:{imm} glc' + note)
        if pipe:
            self.lg.wait_all()
            for k in checks: a(f's_not_b32 s{sPL + k}, s{sTAG}')
            issue(' ; nowait')
            if work: work()
            a(f'{L}:')
            a(f's_add_u32 s{sSPIN}, s{sSPIN}, 1')
            a(f's_cmp_ge_u32 s{sSPIN}, {SPIN_LIMIT}')
            a(f's_cbranch_scc1 {D}')
            ks = list(checks)
            a(f's_xor_b32 s{XT[0]}, s{sPL + ks[0]}, s{sTAG} ; nowait')
            for k in ks[1:]:
                a(f's_xor_b32 s{XT[1]}, s{sPL + k}, s{sTAG} ; nowait')
                a(f's_or_b32 s{XT[0]}, s{XT[0]}, s{XT[1]}')
            a(f's_cbranch_scc0 {D}')
            issue(' ; nowait')
            a(f's_sleep {pipe}')
            a(f's_branch {L}')
            a(f'{D}:')
            return
        if work:
            issue(); work()
            a(f's_branch {C}')
        a(f'{L}:')
        issue()
        a(f'{C}:')
        a(f's_add_u32 s{sSPIN}, s{sSPIN}, 1')
        a(f's_cmp_ge_u32 s{sSPIN}, {SPIN_LIMIT}')
        self.lg.wait_all()
        a(f's_cbranch_scc1 {D}')
        for k in checks:
            a(f's_cmp_lg_u32 s{sPL + k}, s{sTAG}')
            a(f's_cbranch_scc1 {L}')
        a(f'{D}:')
    def inbox(self, box, n, checks=None, work=None, pipe=0):
        self.spoll([(0, n, sINB, box * 512)], range(n) if checks is None else checks, work, pipe)
    def va(self, dst, terms, sreg=None, const=0, tmp=None):
        a = self.a; vL = self.vL
        first = True
        for sh, bits, mult in terms:
            full = sh + bits >= 6
            src = vL
            t = dst if first else tmp
            if sh == 0 and full: pass
            elif full: a(f'v_lshrrev_b32 v{t}, {sh}, v{vL}'); src = t
            elif sh == 0: a(f'v_and_b32 v{t}, {(1 << bits) - 1}, v{vL}'); src = t
            else: a(f'v_bfe_u32 v{t}, v{vL}, {sh}, {bits}'); src = t
            p2 = mult & (mult - 1) == 0
            k = mult.bit_length() - 1
            if first:
                if p2 and sreg is not None: a(f'v_lshl_add_u32 v{dst}, v{src}, {k}, s{sreg}'); sreg = None
                elif p2 and k: a(f'v_lshlrev_b32 v{dst}, {k}, v{src}')
                elif p2:
                    if src != dst: a(f'v_mov_b32 v{dst}, v{src}')
                else: a(f'v_mul_u32_u24 v{dst}, {mult}, v{src}')
            else:
                assert p2
                a(f'v_lshl_add_u32 v{dst}, v{src}, {k}, v{dst}')
            first = False
        if sreg is not None: a(f'v_add_u32 v{dst}, s{sreg}, v{dst}')
        if const: a(f'v_add_u32 v{dst}, {const}, v{dst}')
    def push(self, vaddr, soff, nl, vtmp, lab, wave=0):
        a = self.a
        a(f's_cmp_lg_u32 s{sWAVE}, {wave}')
        a(f's_cbranch_scc1 {lab}')
        a(f'v_mov_b32 v{vtmp}, s{sTAG}')
        a(f's_mov_b32 exec_hi, 0')
        if nl < 32: a(f's_mov_b32 exec_lo, {(1 << nl) - 1}')
        self.bs(vtmp, 1, vaddr, rWS, soff, 0, 'sc1', count=False)
        a('s_mov_b64 exec, -1')
        a(f'{lab}:')
    def silu(self, v, t):
        a = self.a
        a(f'v_mul_f32 v{t}, s{sL2E}, v{v}')
        a(f'v_exp_f32 v{t}, -v{t}')
        a(f'v_add_f32 v{t}, 1.0, v{t}')
        a(f'v_rcp_f32 v{t}, v{t}')
        a(f'v_mul_f32 v{v}, v{v}, v{t}')
        self.round1(v)
    def gemv_ops(self, wregs, cregs, acc, t0, t1, packed):
        ops = []
        assert t0 % 2 == 0 and t1 == t0 + 1
        for i, (w, c) in enumerate(zip(wregs, cregs)):
            cp = f'v[{c & ~1}:{(c & ~1) + 1}]'
            for d in range(4):
                tt = t0 + 2 * (d & 1)
                ops.append(f'v_lshlrev_b32 v{tt}, 16, v{w+d}')
                ops.append(f'v_and_b32 v{tt+1}, s{sMASK}, v{w+d}')
                ac = f'v[{acc+2*d}:{acc+2*d+1}]'
                if not packed:
                    for h in range(2): ops.append(f'v_mul_f32 v{acc+2*d+h}, v{tt+h}, v{c}' if i == 0 else f'v_fmac_f32 v{acc+2*d+h}, v{tt+h}, v{c}')
                elif i == 0: ops.append(f'v_pk_mul_f32 {ac}, v[{tt}:{tt+1}], {cp} op_sel:[0,{c & 1}] op_sel_hi:[1,{c & 1}]')
                else: ops.append(f'v_pk_fma_f32 {ac}, v[{tt}:{tt+1}], {cp}, {ac} op_sel:[0,{c & 1},0] op_sel_hi:[1,{c & 1},1]')
        for i in range(4): ops.append(f'v_permlane32_swap_b32 v{acc+i}, v{acc+4+i}')
        for i in range(4): ops.append(f'v_add_f32 v{acc+i}, v{acc+i}, v{acc+4+i}')
        for i in range(2): ops.append(f'v_permlane16_swap_b32 v{acc+i}, v{acc+2+i}')
        for i in range(2): ops.append(f'v_add_f32 v{acc+i}, v{acc+i}, v{acc+2+i}')
        for i in range(2): ops.append(f'v_add_f32_dpp v{acc+i}, v{acc+i}, v{acc+i} row_ror:8 row_mask:0xf bank_mask:0xf')
        ops.append(f'v_mov_b32_dpp v{acc}, v{acc+1} quad_perm:[0,1,2,3] row_mask:0xf bank_mask:0xc')
        return ops
    def sum8(self, b):
        self.pk('add', b, b, b + 2); self.pk('add', b + 4, b + 4, b + 6); self.pk('add', b, b, b + 4)
        self.a(f'v_add_f32 v{b}, v{b}, v{b+1}')
    def softmax_pm(self, p, e, out, t, mid=None, part=0, split=0, done=None):
        a = self.a
        mx, mn, u0, u1, s0, s1 = t, t + 1, t + 2, t + 3, t + 4, t + 6
        if part != 2:
            self.round_list([p + i for i in range(16)])
            a(f'v_max3_f32 v{mx}, v{p}, v{p+1}, v{p+2}')
            a(f'v_min3_f32 v{mn}, v{p}, v{p+1}, v{p+2}')
            for i in range(3, 15, 2):
                a(f'v_max3_f32 v{mx}, v{mx}, v{p+i}, v{p+i+1}')
                a(f'v_min3_f32 v{mn}, v{mn}, v{p+i}, v{p+i+1}')
            a(f'v_max_f32 v{u0}, v{mx}, v{p+15}')
            a(f'v_min_f32 v{u1}, v{mn}, v{p+15}')
            a(f'v_max_f32 v{mx}, v{mx}, v{p+15}')
            a(f'v_min_f32 v{mn}, v{mn}, v{p+15}')
            a(f'v_permlane32_swap_b32 v{mx}, v{u0}')
            a(f'v_permlane32_swap_b32 v{mn}, v{u1}')
            a(f'v_max_f32 v{mx}, v{mx}, v{u0}')
            a(f'v_min_f32 v{mn}, v{mn}, v{u1}')
            self.pk('mul', mx, mx, ('s', sL2E), bc=(1,))
            for i in range(0, 16, 2):
                self.pk('fma', e + i, p + i, ('s', sL2E), mx, bc=(1, 2), neg=(2,))
                self.pk('fma', p + i, p + i, ('s', sL2E), mn, bc=(1, 2), neg=(0,))
        for i in range(split if part == 2 else 0, 16):
            if mid and i == mid[0]: mid[1]()
            if part == 1 and i == split: return
            a(f'v_exp_f32 v{e+i}, v{e+i}')
            a(f'v_exp_f32 v{p+i}, v{p+i}')
        self.pk('add', s0, e, e + 2); self.pk('add', s1, p, p + 2)
        for i in range(4, 16, 2):
            self.pk('add', s0, s0, e + i); self.pk('add', s1, s1, p + i)
        a(f'v_add_f32 v{u0}, v{s0}, v{s0+1}')
        a(f'v_add_f32 v{u1}, v{s1}, v{s1+1}')
        a(f'v_add_f32 v{mx}, v{s0}, v{s0+1}')
        a(f'v_add_f32 v{mn}, v{s1}, v{s1+1}')
        a(f'v_permlane32_swap_b32 v{mx}, v{u0}')
        a(f'v_permlane32_swap_b32 v{mn}, v{u1}')
        self.pk('add', mx, mx, u0)
        a(f'v_rcp_f32 v{mx}, v{mx}')
        a(f'v_rcp_f32 v{mn}, v{mn}')
        for gq, (src, sc) in enumerate(((e, mx), (e + 8, mx), (p, mn), (p + 8, mn))):
            for i in range(0, 8, 2): self.pk('mul', src + i, src + i, sc, bc=(1,))
            for i in range(4): a(f'v_cvt_pk_bf16_f32 v{out + 4*gq + i}, v{src + 2*i}, v{src + 2*i + 1}')
            if done: done(gq)
    def ln_stats(self, xp, t, m_out, sd_out, fill=()):
        a = self.a
        fill = list(fill)
        def pad(n):
            for _ in range(n):
                if fill: a(fill.pop(0))
        s, u = t, t + 4
        a(f'v_mov_b32 v{u}, 0x3f803f80')
        for i in range(8):
            k = 2 * (i & 1)
            a(f'v_dot2_f32_bf16 v{s+k}, v{xp+i}, v{u}, ' + ('0' if i < 2 else f'v{s+k}'))
            a(f'v_dot2_f32_bf16 v{s+k+1}, v{xp+i}, v{xp+i}, ' + ('0' if i < 2 else f'v{s+k+1}'))
        pad(3)
        self.pk('add', s, s, s + 2)
        for ctl in ('quad_perm:[1,0,3,2]', 'quad_perm:[2,3,0,1]', 'row_half_mirror', 'row_ror:8'):
            pad(2 if ctl.endswith('3,2]') else 1)
            self.dpp('v_add_f32', s, s, s, ctl); self.dpp('v_add_f32', s + 1, s + 1, s + 1, ctl)
        pad(2)
        a(f'v_permlane16_swap_b32 v{s}, v{s+1}')
        a(f'v_add_f32 v{u}, v{s}, v{s+1}')
        a(f'v_add_f32 v{s}, v{s}, v{s+1}')
        pad(2)
        a(f'v_permlane32_swap_b32 v{s}, v{u}')
        a(f'v_add_f32 v{s}, v{s}, v{u}')
        a(f'v_mul_f32 v{u}, 0x3a800000, v{s}')
        a(f'v_mul_f32 v{s}, 0x3a800000, v{s}')
        pad(2)
        a(f'v_permlane16_swap_b32 v{s}, v{u}')
        a(f'v_fma_f32 v{sd_out}, -v{s}, v{s}, v{u}')
        a(f'v_cvt_pk_bf16_f32 v{m_out}, 0, v{s}')
        a(f'v_max_f32 v{sd_out}, 0, v{sd_out}')
        self.round1(sd_out)
        a(f'v_add_f32 v{sd_out}, 0x3727c5ac, v{sd_out}')
        self.round1(sd_out)
        a(f'v_sqrt_f32 v{sd_out}, v{sd_out}')
        pad(99)
        self.round1(sd_out)

    def stat_math(self, s, u, m_out, sd_out):
        a = self.a
        a(f'v_fma_f32 v{sd_out}, -v{s}, v{s}, v{u}')
        a(f'v_cvt_pk_bf16_f32 v{m_out}, 0, v{s}')
        a(f'v_max_f32 v{sd_out}, 0, v{sd_out}')
        self.round1(sd_out)
        a(f'v_add_f32 v{sd_out}, 0x3727c5ac, v{sd_out}')
        self.round1(sd_out)
        a(f'v_sqrt_f32 v{sd_out}, v{sd_out}')
        self.round1(sd_out)
    def ln_stats2(self, x0, x1, t, m_out, sd_out):
        a = self.a
        s0, s1, q0, q1, u = t, t + 1, t + 2, t + 3, t + 4
        a(f'v_mov_b32 v{u}, 0x3f803f80')
        for i in range(8):
            for xx, s_, q_ in ((x0, s0, q0), (x1, s1, q1)):
                a(f'v_dot2_f32_bf16 v{s_}, v{xx+i}, v{u}, ' + ('0' if i == 0 else f'v{s_}'))
                a(f'v_dot2_f32_bf16 v{q_}, v{xx+i}, v{xx+i}, ' + ('0' if i == 0 else f'v{q_}'))
        a(f"""v_permlane32_swap_b32 v{s0}, v{s1}
        v_permlane32_swap_b32 v{q0}, v{q1}
        v_add_f32 v{s0}, v{s0}, v{s1}
        v_add_f32 v{q0}, v{q0}, v{q1}
        v_permlane16_swap_b32 v{s0}, v{q0}
        v_add_f32 v{s0}, v{s0}, v{q0}""")
        for ctl in ('quad_perm:[1,0,3,2]', 'quad_perm:[2,3,0,1]', 'row_half_mirror', 'row_ror:8'): self.dpp('v_add_f32', s0, s0, s0, ctl)
        a(f"""v_mul_f32 v{q0}, 0x3a800000, v{s0}
        v_mul_f32 v{s0}, 0x3a800000, v{s0}
        v_permlane16_swap_b32 v{s0}, v{q0}""")
        self.stat_math(s0, q0, m_out, sd_out)

    def build(self):
        a, V, vm, lg, o, S = self.a, self.V, self.vm, self.lg, self.o, self.S
        E2 = range(0, 16, 2)
        TL = o.get('tl', 0)
        HL = o.get('hl', 1)
        D2 = o.get('d2', 1)
        LCB = [(0, 4, 8 * 4096)] if TL else [(0, 3, 8 * 4096), (3, 1, 4096)]
        a(f'{NAME}:')
        a(f's_load_dwordx16 {sr(KA, 16)}, s[0:1], 0')
        a(f's_load_dwordx8 {sr(KA + 16, 8)}, s[0:1], 64')
        a(f's_load_dwordx2 {sr(rWS, 2)}, s[0:1], 104')
        a(f's_load_dwordx2 {sr(pDBG, 2)}, s[0:1], 96')
        a('s_cmp_ge_u32 s2, 256')
        a('s_cbranch_scc1 L_END')
        if self.prof:
            a(f's_memrealtime {sr(sCMP, 2)}')
            a(f's_memtime {sr(sTM, 2)}')
            a('v_mov_b32 v255, 0')
            a('v_mov_b32 v254, 0')
            self.stnames.append('start'); self.nst = 1
        if o.get('exfil'): a(f's_memrealtime {sr(sTM, 2)}')
        vL = self.vL = V.alloc()
        vL16 = V.alloc()
        vZ = V.alloc()
        vT = V.alloc(8)
        va = lambda dst, terms, sreg=None, const=0: self.va(dst, terms, sreg, const, vT + 5)
        a(f"""v_lshrrev_b32 v{vT}, 6, v0
        v_and_b32 v{vL}, 63, v0
        v_mov_b32 v{vZ}, 0
        v_readfirstlane_b32 s{sWAVE}, v{vT}
        v_lshlrev_b32 v{vL16}, 4, v{vL}""")
        xr = V.alloc(8); acc = V.alloc(8); wphi = V.alloc(8); fr = V.alloc(8); vq = V.alloc(8); vv = V.alloc(8)
        vWM = V.alloc(); vCo = V.alloc(); vWd = V.alloc(); vL8 = V.alloc(); vL32S = V.alloc(); vGA = V.alloc()
        vB = V.alloc(6, 1); vFG = V.alloc(); vFD = V.alloc(); vWo = V.alloc(); vPW = V.alloc(); vXF = V.alloc()
        S(sX, 'wg & 7'); S(sJ, 'wg >> 3')
        S(T2, '(x*4 + w)*64')
        S(T0, 'T2*6144 + (j ^ 1)*128')
        va(vWM, [(3, 3, 4 * 12288), (0, 3, 16)])
        va(vCo, [(3, 3, 8)], T2)
        S(T3, '((x*32 + j)*4 + w - 4)*4096')
        for srd, size in ((rWM, 12582912), (rX, 4194304), (rWS, WS_BYTES)):
            a(f's_mov_b32 s{srd+2}, {size}')
            a(f's_mov_b32 s{srd+3}, 0x20000')
        a(f's_getreg_b32 s{sXC}, hwreg(HW_REG_XCC_ID, 0, 3)')
        if o.get('fakexcc') is not None: a(f's_and_b32 s{sXC}, s{sXC}, {o["fakexcc"]}')
        a(f"""s_getpc_b64 {sr(sCMP, 2) if not self.prof else sr(sPL, 2)}""")
        S(T6, '(j*7 + w)*128')
        va(vT + 6, [(5, 1, 28672)], T6)
        a(f"""v_min_u32 v{vT+6}, CODE_KB, v{vT+6}
        s_cmp_ge_u32 s{sWAVE}, 4
        s_waitcnt lgkmcnt(0)""")
        if self.prof:
            a(f'v_writelane_b32 v255, s{sTM}, 0')
            a(f'v_writelane_b32 v255, s{sCMP}, 63')
            a(f'v_writelane_b32 v254, s{sCMP}, 0')
            a(f's_mov_b64 {sr(sCMP, 2)}, {sr(sPL, 2)}')
        if o.get('exfil'):
            for k in range(3): a(f'v_writelane_b32 v255, s{sTM}, {k}')
        self.stamp('karg')
        raw = V.alloc(16); cv = V.alloc(4); vTk = V.alloc(2)
        xs = V.alloc(16); st = V.alloc(4); mq = V.alloc(4); vMB = V.alloc(2)
        a(f"""s_mov_b64 {sr(rWM, 2)}, {sr(KA + 20, 2)}
        s_mov_b64 {sr(rX, 2)}, {sr(KA, 2)}
        s_load_dword s{sTAG}, {sr(rWS, 2)}, {NONCE}
        s_cbranch_scc1 L_FS""")
        def setup():
            for srd, size in ((rW, 6291456), (rWO, 2097152), (rWG, 7340032), (rWU, 7340032), (rWD, 7340032), (rOUT, 4194304)):
                a(f's_mov_b32 s{srd+2}, {size}')
                a(f's_mov_b32 s{srd+3}, 0x20000')
            for srd, k in ((rW, 2), (rWO, 6), (rWG, 12), (rWU, 14), (rWD, 16), (rOUT, 22)):
                a(f's_mov_b64 {sr(srd, 2)}, {sr(KA + k, 2)}')
            a(f"""s_mov_b32 s{sSPIN}, 0
            s_mov_b32 s{sMASK}, 0xffff0000
            s_mov_b32 s{sL2E}, 0x3fb8aa3b""")
            S(sKH, 'w >> 2')
            va(vT + 2, [(4, 1, 64)]); va(vWd, [(0, 3, 16)])
            a(f'v_xor_b32 v{vWd}, v{vWd}, v{vT+2}'); va(vT + 2, [(3, 3, 6144)]); a(f'v_add_u32 v{vWd}, v{vWd}, v{vT+2}')
            va(vL8, [(0, 6, 8)])
            va(vL32S, [(0, 5, 32)], None, SCR)
            S(T0, '(w & 3)*4 + SCR')
            va(vGA, [(4, 2, 32), (0, 3, 128), (3, 1, 16)], T0)
            S(T1, '((j >> 4)*128 + w*8 + x)*1024 + (j & 15)*64 + SINB' if TL else '((x & 6) + ((x & 1)*2 + (j >> 4))*64 + w*8)*1024 + (j & 15)*64 + SINB')
        def tag_hash():
            a(f"""s_mul_i32 s{sTAG}, s{sTAG}, 0x9e3779b1
            s_add_u32 s{sTAG}, s{sTAG}, 0x7f4a7c15""")
        def code_pf():
            a(f's_and_b32 s{sCMP}, s{sCMP}, 0xfffffc00')
            a(f'global_load_dword v{vTk}, v{vT+6}, {sr(sCMP, 2)}')
        wq = [(n, t) for n in range(16) for t in range(3)]
        def w_base(n, wexpr):
            if n < 4 and o.get('wxor', 1):
                if o.get('wxor', 1) < 3: S(T7, '((j >> 4)*2) ^ n' if o.get('wxor', 1) == 1 else o.get('wxe', '((j >> 4) + (x >> 2)*2) ^ n'), n=n)
                else:
                    S(T7, o.get('wxe', 'j & 3' if HL else '(j >> 4) + (x >> 2)*2'))
                    if n: a(f's_cmp_le_u32 s{T7}, {n - 1}'); a(f's_cselect_b32 s{T7}, {n}, {n - 1}')
                S(sU, f'(((T7 + u0) & 15)*8 + {wexpr})*(8*6144) + hp*128')
                S(T7, f'T7*SLOT + (({wexpr}) >> 1)*2080 + (({wexpr}) & 1)*1056')
            else:
                S(sU, f'(((u0 + n) & 15)*8 + {wexpr})*(8*6144) + hp*128', n=n)
                S(T7, f'(({wexpr}) >> 1)*2080 + (({wexpr}) & 1)*1056 + q', q=(n % 6) * SLOT)
        def w_slot(n, t):
            S('m0', 'T7 + q', q=t * SEC)
            self.dma(vWd, rW, sU, 0, o.get('wmod', ''), ('W', n))
            if t < 2: S(sU, 'u + 2048')
        def w_next(cnt=1):
            for _ in range(cnt):
                n, t = wq.pop(0)
                if t == 0: w_base(n, 'w')
                w_slot(n, t)
        wb = list(o['wburst'])
        def w_early():
            if not o.get('wearly'): return
            S(sHP, '(x & 3)*4 + ((j & 3) ^ q)', q=o.get('hpx', 2)); S(sU0, o.get('u0', 'j & 12'))
            w_next(o['wearly'])
        def st_prep():
            va(vT + 1, [(0, 2, 16)], None, L_ST)
            va(vT, [(0, 2, 16), (2, 1, 65536 if TL else 1024)])
            va(vT + 7, [(0, 5, 2048), (5, 1, 32)])
            va(vT + 2, [(0, 1, 64 * 512 if TL else 512), (1, 1, 256)])
            S(T2, ('((j >> 4)*128 + w*8 + x)*512' if TL else '((x & 6) + ((x & 1)*2 + (j >> 4))*64 + w*8)*512') + ' + ((j >> 2) & 3)*64 + (j & 3)*4 + 16 + INA')
        a(f'global_load_dwordx2 {vr(cv, 2)}, v{vCo}, {sr(pC, 2)}'); vm.issue('c')
        for i in range(4):
            self.bl(raw + 4 * i, 4, vWM, rWM, T0, 0, o.get('ntwm', 'nt'), ('wm', i))
            if i < 3: S(T0, 'T0 + 12288')
        a('s_barrier')
        if o.get('bar1', 1): a('s_barrier')
        code_pf(); vm.issue()
        setup()
        wq0 = list(wq); w_early(); wq[:] = wq0
        S(T0, '(((w*16 + ((j ^ 1) & 15))*2 + (j >> 4))*8 + x)*512 + AINB')
        S(T2, ('(((j ^ 1) & 15)*8 + w*2)*512' if TL else '(((j ^ 1) & 7)*8 + w*2 + ((j >> 3) & 1))*512') + ' + x*64 + (j >> 4)*4 + INA')
        va(vT + 6, [(0, 1, 128 * 512), (1, 1, 512)] if TL else [(0, 2, 64 * 512)])
        vm.wait('c')
        self.unpack(cv + 2, cv + 3, cv + 1)
        a(f'v_and_b32 v{cv+1}, s{sMASK}, v{cv}'); a(f'v_lshlrev_b32 v{cv}, 16, v{cv}')
        for i in range(4): self.silu(cv + i, vT + (i & 1))
        gops = self.gemv_ops([raw + 4 * i for i in range(4)], [cv + i for i in range(4)], acc, vT, vT + 1, True)
        for i in range(4):
            vm.wait(('wm', i))
            if i == 3: self.stamp('wmok')
            for s_ in gops[12 * i:12 * i + 12]: a(s_)
        for s_ in gops[48:]: a(s_)
        self.dw('ds_write_b32', vGA, acc, 1, L_A1 - SCR)
        self.barrier()
        def pair_sum(off):
            a(f'ds_read_b128 {vr(acc, 4)}, v{vL32S} offset:{off}')
            a(f'ds_read_b128 {vr(acc + 4, 4)}, v{vL32S} offset:{off + 16}')
            a('s_waitcnt lgkmcnt(0)')
            for b in (acc, acc + 4):
                a(f'v_add_f32 v{b}, v{b}, v{b+2}'); a(f'v_add_f32 v{b+1}, v{b+1}, v{b+3}')
            a(f"""v_add_f32 v{acc}, v{acc}, v{acc+1}
            v_add_f32 v{acc+2}, v{acc+4}, v{acc+5}
            v_mov_b32 v{acc+1}, s{sTAG}
            v_mov_b32 v{acc+3}, s{sTAG}
            s_mov_b32 exec_hi, 0""")
        tag_hash()
        pair_sum(L_A1 - SCR)
        self.bs(acc, 4, vL16, rWS, T0, 0, 'sc1')
        a('s_mov_b64 exec, 15')
        self.bs(acc + 1, 1, vT + 6, rWS, T2, 0, 'sc1')
        a('s_mov_b64 exec, -1')
        self.stamp('A1pub')
        if o.get('wpf', 0):
            S(T2, '(((xc >> 2)*2 + (xc & 1))*4 + (xc & 2))*128 + (j*32 + w*8)*6144')
            va(vT + 2, [(4, 2, 6144), (0, 4, 16)])
            for i in range(o['wpf']):
                S(T0, 'T2 + q', q=(i % 3) * 2048 + (i // 3) * 4 * 6144)
                self.bl(raw, 4, vT + 2, rW, T0, 0, o.get('wpfmod', ''))
        tl_ = o.get('tlb', '')
        if tl_:
            S(T2, 'wg*128'); va(vT + 2, [(0, 6, 1 << 21)], T2)
            tab = dict(W=rW, o=rWO, g=rWG, u=rWU, d=rWD, m=rWM, x=rX, O=rOUT)
            for k_, c_ in enumerate(tl_):
                a(f's_cmp_lg_u32 s{sWAVE}, {k_ & 3}')
                L_ = a.label('TLB'); a(f's_cbranch_scc1 {L_}')
                if c_ == 's':
                    a('s_mov_b64 exec, 0x1ffff'); self.bl(raw + 4, 1, vT + 2, rWS, '0', 0, '', None); vm.q.pop(); a('s_mov_b64 exec, -1')
                else: self.bl(raw + 4, 1, vT + 2, tab[c_], '0', 0, '', None); vm.q.pop()
                a(f'{L_}:')
        st_prep()
        a('s_branch L_FJ')
        qG = list(vm.q)
        a('L_FS:')
        vm.reset(); lg.reset()
        a('s_barrier')
        for i in range(4): self.bl(raw + 4 * i, 4, vL16, rX, T3, 1024 * i, o.get('xsmod', ''), 'xs')
        pw0 = o.get('pw0', 'ab')
        if 'a' in pw0:
            S(T4, '(wg*4 + w - 4)*128 + INA')
            for q in range(2): a(f's_load_dword s{sPL + q}, {sr(rWS, 2)}, s{T4} offset:{q * 64} glc')
        if 's' in pw0:
            S(T4, '(wg*4 + w - 4)*256 + SINB')
            for q in range(4): a(f's_load_dword s{sPL + 2 + q}, {sr(rWS, 2)}, s{T4} offset:{q * 64} glc')
        if 'b' in pw0:
            S(T4, '(wg*32 + w - 4)*128 + INB')
            for q in range(2): a(f's_load_dword s{sPL + q}, {sr(rWS, 2)}, s{T4} offset:{q * 64} glc ; nowait')
        a(f"""s_lshl_b32 s{T6}, s{sXC}, 5
        v_mov_b32 v{vTk}, 1
        v_mov_b32 v{vTk+1}, s{T6}""")
        if o.get('bar1', 1): a('s_barrier')
        a(f"""s_cmp_lg_u32 s{sWAVE}, 7
        s_cbranch_scc1 L_NOTK
        s_mov_b64 exec, 1
        global_atomic_add v{vTk}, v{vTk+1}, v{vTk}, {sr(pDBG, 2)} sc0 sc1
        s_mov_b64 exec, -1
        s_branch L_TK0
        L_NOTK:""")
        code_pf()
        a('L_TK0:')
        vm.issue('tk')
        setup()
        w_early()
        S(T0, '(w - 4)*16 + L_ST'); va(vT + 6, [(5, 1, 8)], T0)
        st_prep()
        a('s_barrier')
        vm.wait('xs')
        lg.wait_all()
        tag_hash()
        self.stamp('xsok')
        self.ln_stats2(raw, raw + 8, xs, st, st + 1)
        a(f"""v_lshrrev_b32 v{st}, 16, v{st}
        v_or_b32 v{st}, v{st}, v{st+1}
        v_mov_b32 v{st+1}, s{sTAG}""")
        self.dw('ds_write_b64', vT + 6, st, 2)
        a('L_FJ:')
        self.barrier()
        self.r128(st, vT + 1, 0, 'st')
        lg.wait('st')
        a('s_mov_b64 exec, 0xff')
        self.bs(st, 4, vT, rWS, T1, 0, 'sc1')
        a('s_mov_b64 exec, 15')
        self.bs(st + 1, 1, vT + 2, rWS, T2, 0, 'sc1')
        a('s_mov_b64 exec, -1')
        self.stamp('A2pub')
        a(f"""s_cmp_lg_u32 s{sWAVE}, 7
        s_cbranch_scc1 L_NOTK2
        s_mov_b32 s{T0}, 0
        s_waitcnt vmcnt({len(vm.q) - 1 - vm.q.index('tk')})
        L_TK:
        v_readfirstlane_b32 s{T2}, v{vTk}
        s_cmp_lt_u32 s{T2}, 32
        s_cbranch_scc1 L_TKOK
        v_mov_b32 v{vTk}, s{sTAG}
        s_mov_b64 exec, 1
        buffer_store_dword v{vTk}, v{vZ}, {sr(rWS, 4)}, 0 offen offset:{MARK} sc1
        s_mov_b64 exec, -1
        s_add_u32 s{T0}, s{T0}, 1
        s_cmp_lt_u32 s{T0}, 8
        s_cbranch_scc0 L_TKNO
        s_add_u32 s{sXC}, s{sXC}, 1
        s_and_b32 s{sXC}, s{sXC}, 7
        s_lshl_b32 s{T6}, s{sXC}, 5
        v_mov_b32 v{vTk}, 1
        v_mov_b32 v{vTk+1}, s{T6}
        s_mov_b64 exec, 1
        global_atomic_add v{vTk}, v{vTk+1}, v{vTk}, {sr(pDBG, 2)} sc0 sc1
        s_mov_b64 exec, -1
        s_waitcnt vmcnt(0)
        s_branch L_TK
        L_TKNO:
        s_and_b32 s{sXC}, s2, 7
        s_lshr_b32 s{T2}, s2, 3
        L_TKOK:
        s_lshl3_add_u32 s{T2}, s{T2}, s{sXC}""")
        if o.get('rawrole'): a(f's_mov_b32 s{T2}, s2')
        a(f"""v_mov_b32 v{vTk}, s{T2}
        ds_write_b32 v{vT+1}, v{vTk} offset:64
        L_NOTK2:""")
        self.barrier()
        a(f'ds_read_b32 v{mq}, v{vT+1} offset:64'); lg.issue('role')
        lg.wait('role')
        a(f'v_readfirstlane_b32 s2, v{mq}')
        self.stamp('role')
        V.release(raw, 16); V.release(cv, 4)
        S(T2, '(wg*8 + w)*64 + INA')
        ld_xt = lambda: [self.bl(xr + 4 * q, 4, vT + 7, rX, T5, 16 * q, o.get('xtmod', ''), 'xt') for q in range(2)]
        def role_prep():
            S(sX, 'wg & 7'); S(sJ, 'wg >> 3')
            S(sCB, 'j & 15' if TL else '(x & 1)*8 + (j & 7)')
            S(sRT, 'x*2 + (j >> 4)' if TL else '(x >> 1)*4 + (j >> 3)')
            S(sGTB, 'rt*4 + (w & 3)')
            S(sC32, 'cb*2 + kh')
            S(T5, 'gtb*65536 + c32*64')
            if not o.get('xtlate', 0): ld_xt()
            S(T0, '(((x >> 1)*16 + cb)*16 + w)*512 + AINB')
            S(T1, '(wg*4 + (w & 3))*256 + SINB')
            S(sR1, 'j & 15' if HL else '(x & 4)*2 + (j >> 2)'); S(sHP, '((x >> 2)*2 + (x & 1))*4 + (x & 2) + (j >> 4)' if HL else '(x & 3)*4 + ((j & 3) ^ 2)')
            S(sU0, o.get('u0', 'j & 12'))
            w_next(wb[0])
            S(sINB, '(wg*64 + w)*64 + INB')
            S(sKF, 'kh ^ (j >> 4)'); S(sROT, o.get('rot', '(((j >> 3) ^ j) & 1)*q + p'), q=4 if D2 else 8, p=8 * o.get('dflip', 1))
            S(sFS, 'x*7 + (j >> 2)'); S(sKQ, 'j & 3')
            va(vT + 4, [(0, 5, 8)])
            va(vT, [(0, 5, 16), (5, 1, 4096)])
            S(T3, 'w*4 + L_MP'); va(vT + 1, [(0, 6, 64)], T3)
            S(T3, 'kh*1024 + L_MP'); va(vT + 2, [(0, 4, 32), (5, 1, 512)], T3)
        self.spoll([(0, 8, T2, 0)], (0, 1, 4, 5, 6, 7), work=role_prep)
        self.stamp('apre')
        if o.get('abar', 2) == 1: a('s_barrier')
        st_ld = lambda: self.bl(st, 2, vT + 4, rWS, T1, 0, 'sc1', 'st')
        def st_fetch():
            st_ld()
            if o.get('abar', 2) == 2: a('s_barrier')
            if o.get('xtlate', 0): ld_xt()
            S(T3, 'hp*4096 + w*512')
            a(f'v_add_u32 v{vT+6}, s{T3}, v{vL16}')
            S('m0', 'w*512 + L_WPHI')
            a('s_mov_b32 exec_hi, 0')
            a(f'global_load_lds_dwordx4 v{vT+6}, {sr(pWPHI, 2)}'); vm.issue()
            a('s_mov_b32 exec_hi, -1')
            w_next(wb[1])
            S(T4, '(((rt*16 + cb)*4 + (w & 3))*2 + kh)*2048 + HF')
            va(vT + 6, [(0, 4, 16), (4, 1, 1024), (5, 1, 512)])
            S(T3, 'w*256 + L_MB'); va(vMB, [(0, 4, 4), (5, 1, 64)], T3); va(vMB + 1, [(5, 1, 64)], T3)
        self.try_load(lambda: self.bl(mq, 4, vT, rWS, T0, 0, 'sc1'), [mq + 1, mq + 3], vT + 3, st_fetch)
        self.stamp('modok')
        a(f'ds_write2_b32 v{vT+1}, v{mq}, v{mq+2} offset0:0 offset1:8'); lg.issue()
        if not o.get('xtlate', 0):
            for i in range(8): self.unpack(xs + 2 * i, xs + 2 * i + 1, xr + i)
        self.barrier()
        mp = V.alloc(16); hp = V.alloc(8)
        for i in (2, 3, 0, 1): self.r128(mp + 4 * i, vT + 2, (i >> 1) * 2048 + (i & 1) * 16, i >> 1)
        w_next(wb[2])
        self.finish_load('st', st_ld, [st + 1], None)
        if o.get('xtlate', 0):
            vm.wait('xt')
            for i in range(8): self.unpack(xs + 2 * i, xs + 2 * i + 1, xr + i)
        self.stamp('statok')
        self.unpack(st + 1, st, st)
        a(f'v_rcp_f32 v{st}, v{st}')
        for i in E2: self.pk('add', xs + i, xs + i, st + 1, bc=(1,), neg=(1,))
        lg.wait(1); self.sum8(mp + 8)
        self.round1(mp + 8)
        lg.wait(0); self.sum8(mp)
        a(f'v_add_f32 v{mp+8}, 1.0, v{mp+8}')
        self.round2(mp + 8, mp)
        PKM = o.get('pkm', 1)
        if PKM:
            mb = V.alloc(32)
            a(f'ds_write2_b32 v{vMB}, v{mp+8}, v{mp} offset0:0 offset1:32'); lg.issue()
            for q in range(8): self.r128(mb + 4 * q, vMB + 1, (q >> 2) * 128 + (q & 3) * 16, ('mb', q))
        for h in range(2):
            rg = range(8 * h, 8 * h + 8)
            self.round_list([xs + i for i in rg])
            for i in range(8 * h, 8 * h + 8, 2): self.pk('mul', xs + i, xs + i, st, bc=(1,))
            self.round_list([xs + i for i in rg])
        for h in range(2):
            rg = range(8 * h, 8 * h + 8)
            if PKM:
                lg.wait(('mb', 2 * h + 1))
                for i in range(8 * h, 8 * h + 8, 2): self.pk('mul', xs + i, xs + i, mb + i)
            else:
                for i in rg: self.dpp('v_mul_f32', xs + i, mp + 8, xs + i, f'row_newbcast:{i}')
            self.round_list([xs + i for i in rg])
            if PKM:
                lg.wait(('mb', 4 + 2 * h + 1))
                for i in range(8 * h, 8 * h + 8, 2): self.pk('add', xs + i, xs + i, mb + 16 + i)
            else:
                for i in rg: self.dpp('v_add_f32', xs + i, mp, xs + i, f'row_newbcast:{i}')
            for i in range(4 * h, 4 * h + 4): a(f'v_cvt_pk_bf16_f32 v{hp+i}, v{xs+2*i}, v{xs+2*i+1}')
            self.bs(hp + 4 * h, 4, vT + 6, rWS, T4, 256 * h, 'sc1', 'hs')
        if PKM: V.release(mb, 32)
        self.stamp('hst')
        w_next(wb[3])
        va(vB, [(5, 1, 2080), (2, 2, 128), (3, 1, 64), (0, 2, 8)])
        va(vB + 1, [(4, 1, 1056)])
        va(vB + 2, [(3, 1, 128)])
        a(f"""v_add_u32 v{vB}, v{vB}, v{vB+1}
        v_sub_u32 v{vB+1}, v{vB}, v{vB+2}
        v_add_u32 v{vB+1}, 64, v{vB+1}""")
        for q in (1, 2):
            for h in range(2): a(f'v_add_u32 v{vB+2*q+h}, {2*q*SLOT}, v{vB+h}')
        S(T1, 'kh*2048 + L_WPHI')
        va(vT, [(2, 2, 64), (4, 1, 32), (0, 2, 8), (5, 1, 512)], T1)
        va(vT + 1, [(0, 3, 4096), (3, 1, 128 * 4096)] if HL else [(0, 2, 8 * 4096), (2, 2, 4096)])
        S(T0, ('rt*32768' if HL else '((rt >> 3)*4 + (rt & 7)*32)*4096') + ' + (cb >> 1)*64 + (cb & 1)*4 + INB')
        va(vT + 2, [(4, 1, 64), (5, 1, 16)]); va(vWo, [(0, 3, 16)])
        a(f'v_xor_b32 v{vWo}, v{vWo}, v{vT+2}'); va(vT + 2, [(3, 3, 2048)]); a(f'v_add_u32 v{vWo}, v{vWo}, v{vT+2}')
        S(T1, '(w & 2)*32'); va(vT + 2, [(4, 1, 32)], T1); va(vFG, [(0, 3, 16)])
        a(f'v_xor_b32 v{vFG}, v{vFG}, v{vT+2}'); va(vT + 2, [(3, 3, 7168)]); a(f'v_add_u32 v{vFG}, v{vFG}, v{vT+2}')
        S(T1, '(w & 1)*128')
        va(vT + 2, [(5, 1, 64)], T1); va(vFD, [(0, 5, 16), (5, 1, 2048)])
        a(f'v_xor_b32 v{vFD}, v{vFD}, v{vT+2}')
        S(sFG, '(kq*8 + w)*(32*7168) + fs*128'); S(sFD, '(fs*8 + w)*16384 + kq*512')
        US = o.get('ush', 1)
        S(sMF, '(j >> 2) + q', q=US)
        a(f"""s_cmp_ge_u32 s{sMF}, 7
        s_cselect_b32 s{sMF}, {US - 7 & 0xffffffff}, {US}""")
        a(f"""s_cmp_ge_u32 s{sJ}, 28
        s_cselect_b32 s{rWG+2}, 0, s{rWG+2}
        s_cselect_b32 s{rWU+2}, 0, s{rWU+2}
        s_cselect_b32 s{rWD+2}, 0, s{rWD+2}""")
        if o.get('zm2'): a(f's_mov_b32 s{rWM+2}, 0')
        if o.get('zffn'):
            for r_ in (rWG, rWU, rWD): a(f's_mov_b32 s{r_+2}, 0')
        if o.get('zwo'): a(f's_mov_b32 s{rWO+2}, 0')
        vm.wait('hs')
        a('s_barrier')
        self.push(vT + 1, T0, 16, vT + 2, 'L_PB')
        self.stamp('hpub')
        V.release(xs, 16); V.release(mp, 16); V.release(hp, 8); V.release(st, 4); V.release(mq, 4); V.release(vTk, 2); V.release(vMB, 2)
        w_next(wb[4])
        for s in range(2):
            for u in range(2): self.tr(wphi + 4 * s + 2 * u, vT, s * 1024 + u * 256)
        AD, LOOK, LASTB = o['AD'], o.get('LOOK', 6), o['LASTB']
        accs = V.alloc(96)
        big = V.alloc(76)
        Br = big + 76 - 4 * (LOOK + 1)
        aslot = list(range(big, Br, 4)) + [fr, fr + 4, vq, vq + 4, vv, vv + 4, acc, acc + 4]
        assert AD <= len(aslot)
        S(T2, '(r1*64 + w)*4096 + HF')
        S(T0, '(w & 3)*4096 + L_XF'); a(f'v_add_u32 v{vXF}, s{T0}, v{vL16}')
        vXW = V.alloc(); vVW = V.alloc()
        va(vXW, [(0, 4, 16), (5, 1, 512), (4, 1, 8)], T0)
        S(T0, '(w & 3)*1024 + L_V'); va(vVW, [(0, 4, 32), (4, 2, 8)], T0)
        S(T0, '(w & 3)*1024 + kh*16384 + L_PHK'); va(vPW, [(0, 5, 32), (5, 1, 16)], T0)
        fq = ([(m, i) for i in range(4) for m in range(2)] if o.get('fmix', 1) else [(m, i) for m in range(2) for i in range(4)]) + [(2, i) for i in range(4)]
        freg = []
        def f_src(m, i, back=0, T0=T0):
            if m < 2: S(T0, 'fg + q' if m == 0 else 'mf*128 + fg + q', q=i * 8 * 7168 - back * 4 * 32 * 7168)
            else: S(T0, 'fd + q', q=i * 4096 - back * 4 * 16384)
            return (vFG, (rWG, rWU)[m]) if m < 2 else (vFD, rWD)
        def f_lds(m, i): return (L_GU + m * 32768 if m < 2 else L_DN) + i * 1024
        def ffn_reg(n):
            for _ in range(n):
                m, i = fq.pop(0)
                for back in range(2):
                    v, r = f_src(m, i, back)
                    self.bl(big + 8 * len(freg) + 4 * back, 4, v, r, T0, 0, o.get('ntffn', 'nt'), 'ffn')
                freg.append((m, i))
        def ffn_dma(n, T0=T0):
            for _ in range(n):
                m, i = fq.pop(0)
                if o.get('nofd'): continue
                v, r = f_src(m, i, 0, T0)
                S('m0', 'w1k*4 + q', q=f_lds(m, i))
                self.dma(v, r, T0, 0, o.get('ntffn', 'nt'), 'gu' if m < 2 else 'dn')
        S(sWB, 'w*16384' if D2 else '(rot*4 + w)*16384'); S(sWO2, '(j >> 4)*1048576 + cb*128'); S(sW1K, 'w*1024')
        def wo_dma(it, back=0, T0=T0):
            S(T0, '(((wb + q) & 0xfffff) ^ (rot*65536)) + (wo2 ^ h)' if D2 else '((wb + q) & 0xfffff) + (wo2 ^ h)', q=(8 * it - 4 * back) * 16384, h=(it >> 3) << 20)
            S('m0', 'w1k + q', q=WO_H0 + it * 8192 - 4096 * back)
            self.dma(vWo, rWO, T0, 0, '', 'wo')
        self.inbox(0, 2, work=lambda: w_next(wb[5]), pipe=o.get('pipeB', 0))
        assert len(wq) % 3 == 0 and 30 <= len(wq) <= (45, 36, 36, 42)[o.get('wxor', 1)]
        NPU = 16 - len(wq) // 3
        vm.wait(('W', (0, 2, 3, 1)[o.get('wxor', 1)]))
        a('s_barrier')
        self.stamp('hok')
        a(f"""s_cmp_ge_u32 s{sWAVE}, 4
        s_cbranch_scc1 L_HELP
        s_setprio 2""")
        q_hok = list(vm.q)
        if 'pad' in o:
            a('.p2align 6')
            for _ in range(o['pad']): a('s_nop 0')
        def a_load(sg):
            if sg % 4 == 0: S(T3, '((u0 + n) & q)*16384 + T2', n=sg // 4, q=o.get('amask', 15))
            self.bl(aslot[sg % AD], 4, vL16, rWS, T3, (sg % 4) * 1024, o.get('amod', 'sc1'), ('A', sg))
        CORD = [(1, 2), (1, 3), (1, 0), (1, 1)] + [(t, ct) for t in (0, 2) for ct in range(4)]
        WEV = o.get('wev', 2); NB = LOOK + 1
        def b_read(n, q):
            st_, c = divmod(n, 12); t, ct = CORD[c]
            slot = (st_ >> 1) % 6
            off = (slot & 1) * SLOT + t * SEC + (st_ & 1) * 4160 + (ct & 1) * 32 + q * 512
            self.tr(Br + 4 * (n % NB) + 2 * q, vB + 2 * (slot >> 1) + (ct >> 1), off, ('B', n))
        nxt = 0
        def a_more(lim):
            nonlocal nxt
            while nxt < min(lim, 64): a_load(nxt); nxt += 1
        a_more(2)
        for n in range(LOOK):
            for q in range(2): b_read(n, q)
        a_more(o.get('A0', 4))
        b14 = False
        for n in range(384):
            st_, c = divmod(n, 12); t, ct = CORD[c]
            if n % WEV == 0: lg.wait(('B', min(n + WEV - 1, 383)))
            for th in range(2):
                if c == 0: vm.wait(('A', 2 * st_ + (th if st_ < 2 or not o.get('vw1', 1) else 1)))
                d = accs + 32 * t + 16 * (ct >> 1) + 8 * (ct & 1) + 4 * th
                a(f'v_mfma_f32_16x16x32_bf16 {vr(d, 4)}, {vr(Br + 4*(n % NB), 4)}, {vr(aslot[(2*st_ + th) % AD], 4)}, ' + ('0' if st_ == 0 else vr(d, 4)))
                if n + LOOK < 384:
                    if th == 0 and (n + LOOK) % 24 == 0 and (n + LOOK) // 24 <= LASTB: a('s_barrier')
                    b_read(n + LOOK, th)
            if c in o.get('aat', (0, 3, 6, 9)): a_more(min(nxt + 1, 2 * st_ + AD))
            if nxt == 64 and not b14 and (n + LOOK) // 24 >= 13 and (n + LOOK) % 24:
                b14 = True; a('s_barrier')
        self.stamp('gemm1')
        aq, ak, av = accs, accs + 32, accs + 64
        def cvt8(d, s_, swap=True):
            for c in range(2):
                for th in range(2):
                    for ip in range(2): a(f'v_cvt_pk_bf16_f32 v{d + 4*c + 2*th + ip}, v{s_ + 8*c + 4*th + 2*ip}, v{s_ + 8*c + 4*th + 2*ip + 1}')
            if swap:
                for c in range(2):
                    for ip in range(2): a(f'v_permlane16_swap_b32 v{d + 4*c + ip}, v{d + 4*c + 2 + ip}')
        def put8(addr, d, off, oc_, ot):
            for c in range(2):
                for th in range(2): self.dw('ds_write_b64', addr, d + 4 * c + 2 * th, 2, off + c * oc_ + th * ot)
        cvt8(vv, ak + 16, False)
        put8(vXW, vv, 0, 1024, 256)
        self.barrier()
        a('s_setprio 0')
        cvt8(fr, ak)
        pp = ak; ee = ak + 16
        def phi_logits(src):
            a(f'v_mfma_f32_32x32x16_bf16 {vr(pp, 16)}, {vr(wphi, 4)}, {vr(src, 4)}, 0')
            a(f'v_mfma_f32_32x32x16_bf16 {vr(pp, 16)}, {vr(wphi + 4, 4)}, {vr(src + 4, 4)}, {vr(pp, 16)}')
        phi_logits(fr)
        for h in range(2):
            cvt8(vv if h == 0 else vq, av + 16 * h, False)
            put8(vVW, vv if h == 0 else vq, h * 8192, 4096, 512)
        cvt8(fr, aq + 16, False)
        put8(vXW, fr, 2048, 1024, 256)
        cvt8(vq, aq)
        a('s_branch L_JOIN')
        a('L_HELP:')
        vm.q = [('W', 1)] * len(q_hok) if o.get('wxor', 1) == 1 else list(q_hok); lg.reset()
        m2w = accs; m2c = accs + 32; g4 = accs + 48
        def w_unit(n):
            for wexpr in ('w - 4', 'w'):
                w_base(n, wexpr)
                for t in range(3):
                    w_slot(n, t)
                    if o.get('pace', 0) and n >= 6: a(f's_sleep {o["pace"]}')
        for n in range(NPU, 6): w_unit(n)
        S(T0, '((j & 3)*4 + w - 4)*128' if HL else '((x & 3)*4 + w - 4)*128')
        va(vCo, [(3, 3, 16)], T0)
        va(vWM, [(3, 3, 8 * 12288), (0, 3, 16)])
        S(T4, 'T0*6144 + (((j >> 2) & 3)*16 + x*2 + (j >> 4))*128 + 4096' if HL else 'T0*6144 + (j*2 + (x >> 2))*128 + 4096')
        a(f'global_load_dwordx4 {vr(m2c + 8, 4)}, v{vCo}, {sr(pC, 2)}'); vm.issue('m2c')
        m2l = list(range(8)); wol = [9, 10, 11, 12]; pwl = list(range(1, 8)); sil = list(range(8))
        m2ops = self.gemv_ops([m2w + 4 * i for i in range(8)], [m2c + i for i in range(8)], acc, vT, vT + 1, False)
        m2pos = 0
        ML = o.get('mlate', 1)
        m2q = accs + (16 if ML else 64); wr1 = m2q + 8; vM2 = m2q + 9
        TL_, TA, TB, TC, LMT = (T7, T1, sU, sWC, GS + 12288) if ML else (T5, T0, T1, T2, L_MT)
        ld_m2 = lambda: [self.bl(m2q + 4 * q, 4, vM2, rWS, TL_, q * 1024, 'sc1', 'm2q') for q in range(2)]
        def m2_final():
            self.finish_load('m2q', ld_m2, [m2q + 1, m2q + 3, m2q + 5, m2q + 7], vT)
            q0, q1, q2, q3 = m2q, m2q + 1, m2q + 2, m2q + 3
            S(TA, '(w & 3)*128 + q', q=LMT); va(vT, [(0, 5, 4)], TA)
            S(TB, 'w & 3')
            a(f"""v_add_f32 v{q0}, v{m2q}, v{m2q+4}
            v_add_f32 v{q1}, v{m2q+2}, v{m2q+6}
            v_add_f32 v{q2}, v{m2q}, v{m2q+4}""".replace(f'v_add_f32 v{q2}, v{m2q}, v{m2q+4}', f'v_mov_b32 v{q2}, v{q0}'))
            a(f"""v_mov_b32 v{q3}, v{q1}
            s_cmp_eq_u32 s{TB}, 2
            s_cselect_b32 s{TC}, 1.0, 0
            v_permlane32_swap_b32 v{q0}, v{q2}
            v_permlane32_swap_b32 v{q1}, v{q3}""")
            self.pk('add', q0, q0, q2)
            self.round2(q0, q1)
            a(f"""v_add_f32 v{q0}, s{TC}, v{q0}
            v_add_f32 v{q1}, s{TC}, v{q1}
            v_cvt_pk_bf16_f32 v{q2}, v{q0}, v{q1}""")
            self.dw('ds_write_b32', vT, q2, 1)
            a('s_cbranch_scc0 L_NOG')
            g0, g1, gh, gl = m2q + 4, m2q + 5, m2q + 6, m2q + 7
            self.unpack(q0, q1, q2); self.unpack(g0, g1, wr1)
            self.pk('mul', g0, g0, q0)
            a(f'v_cvt_pk_bf16_f32 v{gh}, v{g0}, v{g1}')
            self.unpack(q0, q1, gh)
            self.pk('add', q0, g0, q0, neg=(1,))
            a(f"""v_cvt_pk_bf16_f32 v{gl}, v{q0}, v{q1}
            v_add_f32 v{q0}, v{g0}, v{g1}
            ds_write2_b32 v{vT}, v{gh}, v{gl} offset0:64 offset1:96
            ds_write_b32 v{vT}, v{wr1} offset:512""")
            for ctl in ('quad_perm:[1,0,3,2]', 'quad_perm:[2,3,0,1]', 'row_half_mirror', 'row_ror:8'): self.dpp('v_add_f32', q0, q0, q0, ctl)
            S(TA, '(rt*16 + cb)*64 + GR')
            a(f"""v_mov_b32 v{q2}, v{q0}
            v_mov_b32 v{q1}, s{sTAG}
            v_permlane16_swap_b32 v{q0}, v{q2}
            v_add_f32 v{q0}, v{q0}, v{q2}
            v_mov_b32 v{q3}, s{sTAG}
            s_mov_b64 exec, 15""")
            self.bs(q0, 4, vL16, rWS, TA, 0, 'sc1', count=False)
            a("""s_mov_b64 exec, -1
        L_NOG:""")
        def m2_fetch():
            va(vM2, [(0, 5, 16), (5, 1, 512)])
            S(TL_, '((w & 3)*16 + cb)*2048 + MODP2')
            ld_m2()
        def act(op, k):
            nonlocal m2pos
            kind, n = op[0], int(op[1:] or 1)
            if kind == 'm':
                for _ in range(2 * n):
                    i = m2l.pop(0)
                    self.bl(m2w + 4 * i, 4, vWM, rWM, T4, 0, o.get('ntm2', 'nt'), ('m2', i))
                    if m2l: S(T4, 'T4 + 12288')
            elif kind == 'f': ffn_reg(n)
            elif kind == 'o':
                assert k >= 13
                for _ in range(n):
                    it = wol.pop(0); wo_dma(it, 1); wo_dma(it)
            elif kind == 'p':
                a('s_waitcnt lgkmcnt(0)')
                for q in range(n):
                    b = pwl.pop(0)
                    a(f's_load_dword s{sPL + 2*q}, {sr(rWS, 2)}, s{sINB} offset:{b * 512} glc')
                    a(f's_load_dword s{sPL + 2*q + 1}, {sr(rWS, 2)}, s{sINB} offset:{b * 512 - 256} glc')
            elif kind == 'q':
                S(T0, 'fs*8192 + (w - 4)*256 + HGR')
                a('s_waitcnt lgkmcnt(0)')
                for q in range(4): a(f's_load_dword s{sPL + q}, {sr(rWS, 2)}, s{T0} offset:{q * 2048 + 1024 + 252} glc')
            elif kind == 'z':
                for i in range(4): a(f'v_mov_b32 v{g4+i}, -1')
                if n == 1:
                    for we in ('w - 4', 'w'):
                        S(T0, f'(((r1*4 + (w & 3))*16 + hp)*2 + (({we}) >> 2))*2048 + OF')
                        for q in range(2): self.bs(g4, 4, vL16, rWS, T0, 1024 * q, 'sc1', 'pzo')
                else:
                    for we in ('w - 4', 'w'):
                        S(T0, f'((hp*8 + {we})*32 + r1)*1024 + KVP'); S(T1, 'T0 + 16384')
                        self.bs(g4, 4, vL16, rWS, T0, 0, 'sc1', 'pz'); self.bs(g4, 4, vL16, rWS, T1, 0, 'sc1', 'pz')
                    S(T0, '((hp*8 + w - 4)*16 + r1)*64 + ZP')
                    va(vT + 2, [(0, 2, 16), (2, 1, 4096)])
                    a('s_mov_b64 exec, 0xff')
                    self.bs(g4, 4, vT + 2, rWS, T0, 0, 'sc1', 'pz')
                    a('s_mov_b64 exec, -1')
            elif kind == 'M': m2_fetch()
            elif kind == 'R':
                S(T0, 'cb*128'); va(vT, [(0, 5, 4)], T0)
                a(f'global_load_dword v{wr1}, v{vT}, {sr(pWR, 2)}'); vm.issue()
            elif kind == 'N': m2_final()
            elif kind == 'K':
                S(T0, '(hp*16 + r1)*1024 + (w & 3)*256 + KIN'); S(T1, 'hp*128 + CFL')
                a(f'v_lshlrev_b32 v{vWM}, 7, v{vL}')
                a('s_mov_b64 exec, 3')
                self.bl(vWM, 1, vWM, rWS, T0, 0, '')
                self.bl(vCo, 1, vZ, rWS, T1, 0, '')
                a('s_mov_b64 exec, -1')
            elif kind == 'h':
                S(T0, '(fs*4 + kq)*2048 + (w & 1)*1024 + HGR'); S(T1, '(rt*16 + cb)*2048 + (w & 1)*1024 + STAT')
                if TL: a(f's_bitcmp1_b32 s{sWAVE}, 1'); a(f's_cselect_b32 s{T0}, s{T1}, s{T0}')
                self.bl(m2c + 12, 4, vL16, rWS, T0, 0, '')
            elif kind == 's':
                vm.wait('m2c')
                for _ in range(n):
                    i = sil.pop(0)
                    a(f'v_and_b32 v{m2c+i}, s{sMASK}, v{m2c+8+i//2}' if i & 1 else f'v_lshlrev_b32 v{m2c+i}, 16, v{m2c+8+i//2}')
                    self.silu(m2c + i, vT + (i & 1))
            elif kind == 'g':
                assert not sil
                for _ in range(n):
                    vm.wait(('m2', m2pos // 16))
                    for s_ in m2ops[m2pos:m2pos + 16]: a(s_)
                    m2pos += 16
            elif kind == 'r':
                assert m2pos == 128
                for s_ in m2ops[128:]: a(s_)
                self.dw('ds_write_b32', vGA, acc, 1, L_M2 - SCR)
                lg.wait_all()
            elif kind == 'P':
                a(f"""s_cmp_lg_u32 s{sWAVE}, 4
                s_cbranch_scc1 L_M2F""")
                S(T0, '((((j >> 2) & 3)*16 + x*2 + (j >> 4))*4 + (j & 3))*512 + MODP2')
                pair_sum(L_M2 - SCR)
                self.bs(acc, 4, vL16, rWS, T0, 0, 'sc1', count=False)
                a('s_mov_b32 exec_hi, -1')
                a('L_M2F:')
            else: raise ValueError(op)
        sched = {int(k): v.split() for k, v in o['sched'].items()}
        for op in sched.get(0, []): act(op, 0)
        wsch = {int(k): v for k, v in o.get('wsch', {k: 6 for k in range(2, 12)}).items()}
        hq = [(n, we, t) for n in range(6, 16) for we in ('w - 4', 'w') for t in range(3)]
        assert sum(wsch.values()) == 60
        for k in range(1, LASTB + 1):
            if k == 14: a('s_barrier')
            assert not any(n <= (15 if k == LASTB else k) for n, _, _ in hq)
            for kk in (range(k, 16) if k == LASTB else [k + 1 if k < 3 and o.get('wxor', 1) == 3 else k]): vm.wait(('W', kk))
            if o.get('ust'): self.stamp(f'w{k}')
            a('s_barrier')
            if o.get('ust'): self.stamp(f'u{k}')
            ops = sched.get(k, []) if k < 14 else []
            for op in ops:
                if op[0] == '<': act(op[1:], k)
            for _ in range(wsch.get(k, 0)):
                n, we, t = hq.pop(0)
                assert n - 4 <= k
                if t == 0: w_base(n, we)
                w_slot(n, t)
            for op in ops:
                if op[0] != '<': act(op, k)
        assert LASTB in (13, 14)
        if LASTB == 13: a('s_barrier')
        for op in sched.get(14, []): act(op, 14)
        self.barrier()
        for q in range(2): self.r128(fr + 4 * q, vXF, q * 1024)
        lg.wait_all()
        phi_logits(fr)
        for op in sched.get(15, []): act(op, 15)
        assert not m2l or o.get('nom2')
        assert 8 * len(freg) <= 76
        a('L_JOIN:')
        pzq = list(vm.q)
        vm.reset(); lg.q = [None]
        V.release(vXW); V.release(vVW); V.release(vB, 6); V.release(vWd); V.release(vGA); V.release(vL32S); V.release(acc, 8)
        kw = o.get('kweave', ''); fall = []; fb0 = big + 8 * len(freg); nfa = kw.count('f')
        def kw_op(c_):
            if c_ == 'o': wo_dma(wol.pop(0), 0, T6)
            else:
                m, i = fq.pop(0); v, r = f_src(m, i, 0, T6)
                self.bl(fb0 + 4 * len(fall), 4, v, r, T6, 0, o.get('ntffn', 'nt')); fall.append((m, i))
        V.release(fb0 + 4 * nfa, 76 - 8 * len(freg) - 4 * nfa)
        ph = aq; fx = aq + 16
        vPA = V.alloc(); vPB = V.alloc()
        S(T0, 'w*4096 + L_PHK'); a(f'v_add_u32 v{vPA}, s{T0}, v{vL8}')
        S(T0, 'kh*8192 + L_V'); a(f'v_add_u32 v{vPB}, s{T0}, v{vL8}')
        S(T0, '((hp*8 + w)*32 + r1)*1024 + KVP'); S(T2, 'T0 + 16384')
        S(T3, '(hp*8 + w)*1024 + ZP'); S(T1, 'r1*64 + T3')
        assert not kw
        self.softmax_pm(pp, ee, ph, vT, done=lambda fb: self.dw('ds_write_b128', vPW, ph + 4 * fb, 4, fb * 4096))
        ones = fr
        for i in range(4): a(f'v_mov_b32 v{ones+i}, 0x3f803f80')
        self.stamp('ksm')
        self.barrier()
        self.stamp('phik')
        tb7 = V.alloc(8); tb4 = tb7 + 4
        def tb_read():
            S(T5, 'kh*64 + q', q=LMT); va(tb7 + 3, [(0, 3, 4), (5, 1, 32)], T5)
            for q, t in ((0, 0), (1, 4), (2, 5), (4, 1), (5, 2), (6, 3), (7, 6)): self.dr('ds_read_b32', tb7 + q, 1, tb7 + 3, t * 128)
        if not ML: tb_read()
        fragA = [ee + 4 * i for i in range(4)]
        fragB = [av + 4 * i for i in range(8)]
        kvd = vv; zd = fr + 4
        def kvm(u):
            lg.wait(('kv', u))
            for db in range(2):
                a(f'v_mfma_f32_16x16x32_bf16 {vr(kvd + 4*db, 4)}, {vr(fragA[u], 4)}, {vr(fragB[2*u+db], 4)}, ' + ('0' if u == 0 else vr(kvd + 4*db, 4)))
            a(f'v_mfma_f32_16x16x32_bf16 {vr(zd, 4)}, {vr(fragA[u], 4)}, {vr(ones, 4)}, ' + ('0' if u == 0 else vr(zd, 4)))
        for ts in range(4):
            self.tr(fragA[ts], vPA, ts * 1024, ('kv', ts)); self.tr(fragA[ts] + 2, vPA, ts * 1024 + 512, ('kv', ts))
            for db in range(2):
                self.tr(fragB[2*ts+db], vPB, db * 4096 + ts * 1024, ('kv', ts)); self.tr(fragB[2*ts+db] + 2, vPB, db * 4096 + ts * 1024 + 512, ('kv', ts))
            if ts >= 2: kvm(ts - 2)
        va(vPW, [(0, 4, 8 * 4096)] if HL else [(0, 3, 32 * 4096), (3, 1, 4 * 4096)])
        S(T4, '(wg & q)*4096 + (r1 >> 1)*64 + (r1 & 1)*4 + INB + 512', q=0x87 if HL else 0x1b)
        kvm(2); kvm(3)
        a(f"""s_cmp_lt_u32 s{sWAVE}, 4
        s_cbranch_scc1 L_NOQX
        ds_read_b128 {vr(vq, 4)}, v{vXF} offset:2048
        ds_read_b128 {vr(vq + 4, 4)}, v{vXF} offset:3072
        L_NOQX:""")
        if 'pz' in pzq: a(f's_waitcnt vmcnt({pzq[::-1].index("pz")})')
        self.bs(kvd, 4, vL16, rWS, T0, 0, 'sc1', 'kvs')
        self.bs(kvd + 4, 4, vL16, rWS, T2, 0, 'sc1', 'kvs')
        if o.get('zperm', 1):
            a(f'v_lshlrev_b32 v{vT}, 6, v{vL}')
            for i in range(4): a(f'ds_bpermute_b32 v{zd+i}, v{vT}, v{zd+i}')
            a("""s_waitcnt lgkmcnt(0)
            s_mov_b64 exec, 15""")
            self.bs(zd, 4, vL16, rWS, T1, 0, 'sc1', 'kvs')
        else:
            a('s_mov_b32 exec_lo, 0x00010001')
            a('s_mov_b32 exec_hi, 0x00010001')
            self.bs(zd, 4, vL, rWS, T1, 0, 'sc1', 'kvs')
        a('s_mov_b64 exec, -1')
        lg.wait_all()
        phi_logits(vq)
        self.stamp('kvst')
        wl = wol + [2, 3, 4, 5, 6, 7, 8, 13, 14, 15, 0, 1]
        kp = av; zz = av + 16; g4 = vv
        vKP = V.alloc()
        va(vKP, [(3, 3, 1024), (0, 3, 16)])
        wo1 = lambda: wo_dma(wl.pop(0), 0, T6)
        keep = a.items; a.items = []
        self.softmax_pm(pp, ee, ph, vv)
        qsm = a.items; a.items = keep
        qcost = [2 if it[1].is_trans or 'permlane' in it[1].mn else 1 for it in qsm]
        qtot = sum(qcost); qdone = [0]
        def q_slice(upto):
            while qsm and qdone[0] < qtot * upto / 100:
                a.items.append(qsm.pop(0)); qdone[0] += qcost.pop(0)
        qs = o.get('qs', (35, 85, 100))
        CL = o.get('cl', (0, 1)); assert CL[1]
        q_slice(qs[0])
        S(T5, 'hp*128 + CFL'); S(T1, 'r1*8 + T5')
        vCF = V.alloc(); cf = V.alloc()
        va(vCF, [(0, 4, 8)])
        vm.wait('kvs')
        a('s_barrier')
        if CL[0]:
            a(f"""s_cmp_eq_u32 s{sLOC}, 0
            s_cbranch_scc1 L_PCG
            s_cmp_lg_u32 s{sWAVE}, 0
            s_cbranch_scc1 L_PC
            v_mov_b32 v{cf}, s{sTAG}
            s_mov_b64 exec, 1""")
            self.bs(cf, 1, vZ, rWS, T1, 0, '', count=False)
            a("""s_mov_b64 exec, -1
            s_branch L_PC
            L_PCG:""")
        self.push(vPW, T4, 16, vPB, 'L_PC')
        self.stamp('kvpub')
        assert HL and not CL[0]
        if ML:
            a(f"""s_cmp_lt_u32 s{sWAVE}, 4
            s_cbranch_scc1 L_NOM""")
            m2_fetch()
            a('L_NOM:')
        S(T0, '(hp*16 + r1)*16384 + w*128 + KVP')
        S(T2, '(hp*16 + r1)*1024 + w*128 + KIN'); S(T4, 'T4 + 6*512')
        def c1_work():
            self.weave(lambda: q_slice(qs[1]), [wo1] * o['wowin'][0])
            if ML:
                a(f"""s_cmp_lt_u32 s{sWAVE}, 4
                s_cbranch_scc1 L_NOG""")
                q_ = list(vm.q); m2_final(); vm.q = q_
            self.stamp('cw')
        if CL[0]:
            ld_cf = lambda: self.bl(cf, 1, vCF, rWS, T5, 0, 'sc1', 'cf')
            if o.get('cfpre', 1): ld_cf()
            c1_work()
            a(f"""s_cmp_lg_u32 s{sLOC}, 0
            s_cbranch_scc1 L_C1L""")
            q_ = list(vm.q)
            self.inbox(1, 2)
            a("""s_barrier
            s_branch L_C1D
            L_C1L:""")
            if o.get('cfpre', 1): self.finish_load('cf', ld_cf, [cf])
            else: self.poll(ld_cf, [cf])
            vm.q = q_
            a('L_C1D:')
        else:
            self.inbox(1, 2, work=c1_work)
            a('s_barrier')
        V.release(vCF); V.release(vWM); V.release(vCo)
        self.stamp('kvok')
        S(T5, 'T0 + 8192')
        ld_kp = lambda: (self.bl(kp, 4, vKP, rWS, T0, 0, 'sc1', 'kp'), self.bl(kp + 4, 4, vKP, rWS, T5, 0, 'sc1', 'kp'))
        ld_z = lambda: self.bl(zz, 4, vL16, rWS, T3, 0, 'sc1', 'z')
        self.bl(cf, 1, vZ, rWS, '0', MARK, 'sc1')
        ld_kp(); ld_z()
        S(T1, 'w*32 + L_ZF'); va(vT + 2, [(0, 2, 8), (5, 1, 4)], T1)
        S(T1, 'w*1024 + L_KVF'); va(vT + 1, [(0, 4, 16), (5, 1, 512), (4, 1, 8)], T1)
        S(T1, 'kh*128 + L_ZF'); va(vT + 3, [(5, 1, 16)], T1)
        S(T1, 'kh*4096 + L_KVF'); a(f'v_add_u32 v{vPA}, s{T1}, v{vL16}')
        def red4(r, ctls):
            for i in range(2): a(f'v_permlane32_swap_b32 v{r+i}, v{r+2+i}')
            self.pk('add', r, r, r + 2)
            for ctl in ctls:
                for i in range(2): self.dpp('v_add_f32', r + i, r + i, r + i, ctl)
            for i in range(2): a(f'v_mov_b32 v{r+2+i}, v{r+i}')
            for i in range(2): a(f'v_permlane16_swap_b32 v{r+i}, v{r+2+i}')
            self.pk('add', r, r, r + 2)
            a(f'v_cvt_pk_bf16_f32 v{r}, v{r}, v{r+1}')
        self.weave(lambda: q_slice(qs[2]), [wo1] * o['wowin'][1])
        vm.wait('kp')
        a(f'v_cmp_eq_u32 vcc, s{sTAG}, v{cf}')
        a(f's_cmp_eq_u32 vcc_lo, 0')
        a(f's_cselect_b32 s{sLOC}, {o.get("local", 1)}, 0')
        self.pk('add', kp, kp, kp + 4); self.pk('add', kp + 2, kp + 2, kp + 6)
        red4(kp, ['row_ror:8'])
        kc = V.alloc(5, 4)
        a(f"""v_mov_b32 v{kc}, v{kp}
        v_mov_b32 v{kc+2}, v{kp}
        v_mov_b32 v{kc+1}, s{sTAG}
        v_mov_b32 v{kc+3}, s{sTAG}
        v_permlane32_swap_b32 v{kc}, v{kc+2}
        v_add_u32 v{kc+4}, s{T2}, v{vL16}
        s_mov_b64 exec, 0xff""")
        self.bs2([(kc, 4, vL16, T2, 0)])
        a("""s_mov_b64 exec, -1
        s_cbranch_scc1 L_PC2""")
        a('s_barrier')
        self.push(vPW, T4, 16, vPB, 'L_PC2')
        self.stamp('c2pub')
        kf = av; zf = av + 16; num = pp; den = ee
        k2 = av + 8
        S(T0, '(hp*8 + w)*2048 + KIN')
        ld_k2 = lambda: [self.bl(k2 + 4 * q, 4, vL16, rWS, T0, q * 1024, 'sc1') for q in range(2)]
        def z_work():
            vm.wait('z')
            red4(zz, ['row_ror:4', 'row_ror:8'])
            self.dw('ds_write_b32', vT + 2, zz, 1)
            q_slice(100)
            self.stamp('c2w')
        ZP_ = o.get('zpre', 1)
        if ZP_: z_work()
        a(f"""s_cmp_lg_u32 s{sLOC}, 0
        s_cbranch_scc1 L_C2L""")
        l_ = list(lg.q)
        self.inbox(7, 2)
        lg.q = l_
        a('L_C2L:')
        self.try_load(ld_k2, [k2 + 1, k2 + 3, k2 + 5, k2 + 7], vT, None if ZP_ else z_work)
        for db in range(2):
            a(f'ds_write2_b32 v{vT+1}, v{k2+4*db}, v{k2+4*db+2} offset0:{64*db} offset1:{64*db+1}'); lg.issue()
        self.barrier()
        self.stamp('kvred')
        for fb in range(4): self.r128(zf + 4 * fb, vT + 3, fb * 32, ('zf', fb))
        for fb in range(4): self.r128(kf + 4 * fb, vPA, fb * 1024, ('kf', fb))
        for fb in range(4):
            lg.wait(('zf', fb))
            a(f'v_mfma_f32_32x32x16_bf16 {vr(den, 16)}, {vr(zf + 4*fb, 4)}, {vr(ph + 4*fb, 4)}, ' + ('0' if fb == 0 else vr(den, 16)))
        for fb in range(4):
            lg.wait(('kf', fb))
            a(f'v_mfma_f32_32x32x16_bf16 {vr(num, 16)}, {vr(kf + 4*fb, 4)}, {vr(ph + 4*fb, 4)}, ' + ('0' if fb == 0 else vr(num, 16)))
        if ML: tb_read()
        for _ in range(o['wowin'][2]): wo1()
        S(T0, '(((r1*4 + (w & 3))*16 + hp)*2 + kh)*2048 + OF')
        va(vT + 4, [(0, 4, 16), (4, 1, 1024), (5, 1, 256)])
        self.round1(den)
        a(f'v_add_f32 v{den}, 0x358637bd, v{den}')
        self.round1(den)
        a(f'v_rcp_f32 v{den}, v{den}')
        for h in range(2):
            self.round_list([num + i for i in range(8 * h, 8 * h + 8)])
            for i in range(8 * h, 8 * h + 8, 2): self.pk('mul', num + i, num + i, den, bc=(1,))
            for i in range(4 * h, 4 * h + 4): a(f'v_cvt_pk_bf16_f32 v{vq+i}, v{num+2*i}, v{num+2*i+1}')
            self.bs(vq + 4 * h, 4, vT + 4, rWS, T0, 512 * h, 'sc1', 'os')
        self.stamp('ost')
        for r, n in ((fr, 8), (vv, 8), (vPW, 1), (vXF, 1), (vPA, 1), (vPB, 1), (vKP, 1), (accs, 96), (wphi, 8)):
            V.release(r, n)
        assert GS == 0
        vG16 = vL16
        vBa = V.alloc(4); xf = V.alloc(16)
        S(T4, 'kh*(65536 + 64) + WO_H0')
        va(vBa, [(5, 1, 2048), (4, 1, 512), (2, 2, 128), (3, 1, 64), (1, 1, 32), (4, 1, 16), (0, 1, 8)])
        a(f'v_xor_b32 v{vBa}, s{T4}, v{vBa}')
        for q, x_ in ((1, 16), (2, 64), (3, 80)): a(f'v_xor_b32 v{vBa+q}, {x_}, v{vBa}')
        assert WO_H1 == WO_H0 + 65536
        va(vT + 1, LCB)
        S(T2, ('((r1 & 1)*128 + (r1 >> 1))*4096' if TL else '((r1 >> 2)*2 + (r1 & 3)*64)*4096') + (' + ((hp >> 3)*4 + (hp & 3))*64 + (((hp >> 2) ^ p) & 1)*4 + INB + 1024' if D2 else ' + (hp >> 1)*64 + (hp & 1)*4 + INB + 1024'), p=o.get('dflip', 1))
        gaf = V.alloc(16); gp = V.alloc(16); gr = V.alloc(2); vGR = V.alloc(); cn = V.alloc(2)
        def expand(dst, t):
            for i in range(8):
                self.dpp('v_mul_u32_u24', dst + 2 * i, t, cn, f'row_newbcast:{i}')
                self.dpp('v_and_b32', dst + 2 * i + 1, t, cn + 1, f'row_newbcast:{i}')
        a(f"""v_mov_b32 v{cn}, 0x10000
        v_mov_b32 v{cn+1}, s{sMASK}""")
        for i in range(8): self.unpack(xf + 2 * i, xf + 2 * i + 1, xr + i)
        lg.wait_all()
        expand(gaf, tb7)
        S(T6, '(gtb*2 + kf)*32768 + OF')
        va(vGR, [(0, 4, 64)])
        vm.wait('os')
        self.barrier()
        self.push(vT + 1, T2, 16, vT + 2, 'L_PD')
        self.stamp('opub')
        def c_clean():
            if CL[1]:
                a('s_mov_b64 exec, 0xff')
                self.bs(kc, 4, kc + 4, rWS, '0', 0, 'sc1')
                a('s_mov_b64 exec, -1')
            if CL[0]:
                S(T0, 'hp*128 + r1*8 + CFL')
                a(f"""s_cmp_lg_u32 s{sWAVE}, 0
                s_cbranch_scc1 L_NOCC
                v_mov_b32 v{cf}, s{sTAG}
                s_mov_b64 exec, 1""")
                self.bs(cf, 1, vZ, rWS, T0, 0, 'sc1', count=False)
                a("""s_mov_b64 exec, -1
                L_NOCC:""")
        if o.get('ccat', 3) == 0: c_clean()
        V.release(vq, 8)
        late_wo = bool(wl)
        while wl: wo_dma(wl.pop(0))
        V.release(vWo)
        MS = o.get('msum', 1); vSG = V.alloc(); assert MS and not TL
        def d_work():
            for k in range(2):
                for i in range(8): a(f'v_mov_b32_dpp v{gp + 8*k + i}, v{tb7 + 1 + k} row_newbcast:{i} row_mask:0xf bank_mask:0xf')
            if MS:
                a(f"""v_and_b32 v{vT}, 3, v{vL}
                v_cmp_eq_u32 vcc, 1, v{vT}
                v_cmp_eq_u32 {sr(sCMP, 2)}, 0, v{vT}
                v_mov_b32 v{vT+1}, 0x3f803f80""")
                for i in range(8): a(f'v_cndmask_b32 v{gp+i}, v{gp+8+i}, v{gp+i}, vcc')
                for i in range(8): a(f'v_cndmask_b32 v{gp+i}, v{gp+i}, v{vT+1}, {sr(sCMP, 2)}')
            S(T0, 'w*4096'); a(f'v_add_u32 v{vT}, s{T0}, v{vL16}')
            S(T0, '(w ^ 4)*4096'); va(vT + 1, [(0, 4, 16), (4, 1, 1024), (5, 1, 512)], T0)
            S(T0, 'kh*2048 + (w & 3)*512 + L_SP'); va(vT + 2, [(0, 5, 16), (5, 1, 8)], T0)
            S(T0, 'kh*64 + L_TB'); va(vT + 3, [(0, 3, 4), (5, 1, 32)], T0)
            a(f'v_add_u32 v{vT+4}, {L_SP}, v{vL16}')
            va(vT + 6, LCB)
            S(T4, 'rt*32768 + w*256 + STAT'); va(vSG, [(0, 4, 16), (4, 2, 2048)])
            S(T1, '(rt*16 + cb)*2048 + STAT')
            S(T3, '((rt & 3)*64 + (rt >> 2)*2)*4096 + (cb >> 1)*64 + (cb & 1)*4 + INB + 1536')
            if o.get('stouch', TL):
                S(T2, '(rt*16 + cb)*2048 + w*256 + STAT')
                a(f'v_lshlrev_b32 v{gr}, 7, v{vL}')
                a('s_mov_b64 exec, 3')
                self.bl(gr, 1, gr, rWS, T2, 0, '')
                a('s_mov_b64 exec, -1')
            if late_wo or o.get('stouch', TL): vm.wait_all()
            self.stamp('dw')
        AD2 = o['AD2']
        LK2 = o.get('LK2', 4); NB2 = LK2 + 1
        accA = V.alloc(16); accB = V.alloc(16); Ar = V.alloc(4 * AD2); Br = V.alloc(4 * NB2)
        def b2_read(n, q):
            st_, c = divmod(n, 4)
            self.tr(Br + 4 * (n % NB2) + 2 * q, vBa + (c ^ 2), st_ * 4096 + q * 1024, ('B', n))
        def a2_load(s):
            if s % 2 == 0: S(T7, '(rot ^ n)*2048 + T6' if D2 else '((rot + n) & 15)*2048 + T6', n=(s // 2) & o.get('a2mask', 15))
            self.bl(Ar + 4 * (s % AD2), 4, vL16, rWS, T7, (s % 2) * 1024, o.get('a2mod', 'sc1'), ('A', s))
        self.inbox(2, 2, [0] if D2 else None, work=d_work)
        a('s_barrier')
        self.stamp('ook')
        if o.get('prio2', 1):
            a(f"""s_cmp_lt_u32 s{sWAVE}, 4
            s_cbranch_scc1 L_P2
            s_setprio {o.get('prio2', 1)}
            L_P2:""")
        nx2 = 0
        def a2_more(lim):
            nonlocal nx2
            while nx2 < min(lim, 32):
                if nx2 == 16 and D2:
                    a(f"""s_cmp_eq_u32 s{sPL + 1}, s{sTAG}
                    s_cbranch_scc1 L_D2""")
                    l_ = list(lg.q)
                    self.inbox(2, 2, [1])
                    lg.q = l_
                    a("""L_D2:
                    s_barrier""")
                a2_load(nx2); nx2 += 1
                if nx2 == 32:
                    ld_gr()
                    if o.get('ccat', 3) == 1: c_clean()
        S(T5, 'rt*1024 + GR')
        ld_gr = lambda: self.bl(gr, 2, vGR, rWS, T5, 0, 'sc1', 'gr')
        a2_more(2)
        for n in range(LK2):
            for q in range(2): b2_read(n, q)
        a2_more(o.get('A20', 4))
        for n in range(64):
            st_, c = divmod(n, 4)
            if n % o.get('wev2', 1) == 0: lg.wait(('B', min(n + o.get('wev2', 1) - 1, 63)))
            for th in range(2):
                if c == 0: vm.wait(('A', 2 * st_ + (th if st_ == 0 or not o.get('vw2', 1) else 1)))
                d = (accB, accA)[c >> 1] + 8 * (c & 1) + 4 * th
                a(f'v_mfma_f32_16x16x32_bf16 {vr(d, 4)}, {vr(Br + 4*(n % NB2), 4)}, {vr(Ar + 4*((2*st_ + th) % AD2), 4)}, ' + ('0' if st_ == 0 else vr(d, 4)))
                if n + LK2 < 64: b2_read(n + LK2, th)
            if n == o.get('prio2n', 18): a('s_setprio 0')
            if c in o.get('a2at', (0, 1)): a2_more(min(nx2 + 1, 2 * st_ + AD2))
            if c == 3 and AD2 == 4: a2_more(2 * st_ + 6)
        self.stamp('gemm2')
        if o.get('prio2', 1): a('s_setprio 0')
        for q in range(4): self.dw('ds_write_b128', vT, accB + 4 * q, 4, L_EXCH - GS + q * 1024)
        for i in range(8): a(f'v_permlane16_swap_b32 v{accA + 8*(i >> 2) + (i & 3)}, v{accA + 8*(i >> 2) + 4 + (i & 3)}')
        sm = Br
        fd = list(o['fdma']); assert sum(fd) == len(fq)
        self.stamp('exw')
        self.barrier()
        self.stamp('ex1')
        for q in range(4): self.r128(accB + 4 * q, vT + 1, L_EXCH - GS + (q >> 1) * 2048 + (q & 1) * 256, ('ex', q))
        ffn_dma(fd[0], T2)
        for h in range(2):
            for q in (2 * h, 2 * h + 1):
                lg.wait(('ex', q))
                self.pk('add', accA + 4 * q, accA + 4 * q, accB + 4 * q); self.pk('add', accA + 4 * q + 2, accA + 4 * q + 2, accB + 4 * q + 2)
            rg = range(8 * h, 8 * h + 8)
            self.round_list([accA + i for i in rg])
            for i in range(8 * h, 8 * h + 8, 2): self.pk('mul', accA + i, accA + i, gaf + i)
            self.round_list([accA + i for i in rg])
            for i in range(8 * h, 8 * h + 8, 2): self.pk('add', accA + i, accA + i, xf + i)
            for i in range(4 * h, 4 * h + 4): a(f'v_cvt_pk_bf16_f32 v{xr+i}, v{accA+2*i}, v{accA+2*i+1}')
        self.stamp('x1c')
        if MS:
            for t in range(2): a(f'v_mfma_f32_32x32x16_bf16 {vr(accB, 16)}, {vr(gp + 4*t, 4)}, {vr(xr + 4*t, 4)}, ' + ('0' if t == 0 else vr(accB, 16)))
            for i in range(8): a(f'v_dot2_f32_bf16 v{sm + (i & 1)}, v{xr+i}, v{xr+i}, ' + ('0' if i < 2 else f'v{sm + (i & 1)}'))
            a(f"""v_add_f32 v{sm+2}, v{sm}, v{sm+1}
            v_add_f32 v{sm}, v{sm}, v{sm+1}
            v_permlane32_swap_b32 v{sm}, v{sm+2}
            s_mov_b32 exec_lo, 0
            v_add_f32 v{accB}, v{sm}, v{sm+2}
            v_mov_b32 v{accB+1}, v{accB+2}
            s_mov_b32 exec_lo, -1""")
            self.dw('ds_write_b64', vT + 2, accB, 2)
        else:
            for i in range(8):
                for d, b in ((sm, one), (sm + 2, xr + i), (sm + 1, gp + i), (sm + 3, gp + 8 + i)):
                    a(f'v_dot2_f32_bf16 v{d}, v{xr+i}, v{b}, ' + ('0' if i == 0 else f'v{d}'))
            a(f"""v_permlane32_swap_b32 v{sm}, v{sm+2}
            v_permlane32_swap_b32 v{sm+1}, v{sm+3}""")
            self.pk('add', sm, sm, sm + 2)
            self.dw('ds_write_b64', vT + 2, sm, 2)
        for q in range(4): self.dw('ds_write_b32', vT + 3, tb4 + q, 1, 128 * q)
        self.barrier()
        self.stamp('x1st')
        PR = o.get('crit', 3)
        a(f"""s_cmp_lg_u32 s{sWAVE}, 0
        s_cbranch_scc1 L_PE""")
        if PR: a(f's_setprio {PR}')
        for q in range(4): a(f'ds_read_b128 {vr(accB + 4*q, 4)}, v{vT+4} offset:{(q & 1) * 2048 + (q >> 1) * 1024}')
        for h in range(2):
            b = accB + 8 * h
            a(f's_waitcnt lgkmcnt({2 - 2*h})')
            self.pk('add', b, b, b + 4); self.pk('add', b + 2, b + 2, b + 6)
            a(f"""v_add_f32 v{b+1}, v{b+1}, v{b+3}
            v_mov_b32 v{b+3}, s{sTAG}""")
        if TL:
            self.bs2([(accB + 8 * h, 4, vL16, T0, 1024 * h) for h in range(2)])
            a('s_cbranch_scc1 L_PE')
        else:
            for h in range(2): self.bs(accB + 8 * h, 4, vL16, rWS, T1, 1024 * h, 'sc1', count=False)
        a('s_mov_b64 exec, 0xffff')
        self.bs(accB + 3, 1, vT + 6, rWS, T3, 0, 'sc1', count=False)
        if PR: a('s_setprio 0')
        a("""s_mov_b64 exec, -1
        L_PE:""")
        self.stamp('x1pub')
        if o.get('ccat', 3) == 2: c_clean()
        V.release(accA, 16); V.release(accB, 16); V.release(Ar, 4 * AD2); V.release(Br, 4 * NB2); V.release(vBa, 4); V.release(xf, 16); V.release(gaf, 16); V.release(gp, 16)
        x1 = V.alloc(16); hh = V.alloc(16); mf = V.alloc(32); sg = V.alloc(16); op = V.alloc(8)
        st = V.alloc(2); vRid = V.alloc(); ck = V.alloc(4); vOT = V.alloc()
        ct = V.alloc(12, 4)
        def e_work():
            S(T3, '(w & 3)*(32*144) + kh*64'); va(vOT, [(0, 5, 144), (5, 1, 32)], T3)
            for q in range(2): self.dw('ds_write_b128', vOT, xr + 4 * q, 4, L_XT + 16 * q)
            a(f'v_add_u32 v{vOT}, {L_OT}, v{vOT}')
            S(T2, '4094 - (rt*8 + w)*32'); va(vRid, [(0, 4, 2)]); a(f'v_sub_u32 v{vRid}, s{T2}, v{vRid}')
            S(T2, 'w*128 + L_ST2'); va(vT + 4, [(0, 4, 8)], T2)
            S(T2, '(w & 3)*256 + L_ST2'); va(vT + 6, [(0, 5, 8)], T2)
            va(vT + 7, [(0, 3, 8)], None, L_K1)
            self.finish_load('gr', ld_gr, [gr + 1])
            for ctl in ('quad_perm:[1,0,3,2]', 'quad_perm:[2,3,0,1]', 'row_half_mirror', 'row_ror:8'): self.dpp('v_add_f32', gr, gr, gr, ctl)
            a(f"""s_cmp_lg_u32 s{sWAVE}, 1
            s_cbranch_scc1 L_NOCT""")
            va(vT + 1, [(0, 4, 8)], None, L_TB)
            a(f"""ds_read_b64 {vr(ct + 2, 2)}, v{vT+1}
            ds_read_b64 {vr(ct + 6, 2)}, v{vT+1} offset:128
            ds_read_b64 {vr(ct + 8, 2)}, v{vT+1} offset:384
            s_waitcnt lgkmcnt(0)""")
            for b in (ct, ct + 4):
                self.unpack(b, b + 1, b + 2); self.unpack(b + 2, b + 3, b + 3)
            a('L_NOCT:')
            S(T2, 'w*8 + L_K1'); a(f'v_mov_b32 v{vT+1}, s{T2}')
            va(vT + 2, [(0, 2, 64 * 4096), (2, 2, 2 * 4096)])
            S(T1, '((cb & 7)*8 + (cb >> 3))*4096 + (rt >> 1)*64 + (rt & 1)*16 + INB + 2560')
        def f_pre(part):
            if part == 0:
                a(f"""s_cmp_lt_u32 s{sWAVE}, 4
                s_cbranch_scc1 L_NOST""")
                S(T0, '(w - 4)*4096 + L_GU')
                a(f'v_add_u32 v{vT}, s{T0}, v{vL16}')
                a(f'v_add_u32 v{vT+3}, {L_DN - L_GU}, v{vT}')
                for n, (m, i) in enumerate(freg):
                    for back in range(2):
                        self.dw('ds_write_b128', vT if m < 2 else vT + 3, big + 8 * n + 4 * back, 4, f_lds(m, i) - (L_GU if m < 2 else L_DN) + (1 - back) * 16384)
                a('L_NOST:')
                if fall:
                    S(T0, 'w*4096 + L_GU'); a(f'v_add_u32 v{vT}, s{T0}, v{vL16}')
                    for n, (m, i) in enumerate(fall):
                        assert m < 2
                        self.dw('ds_write_b128', vT, fb0 + 4 * n, 4, f_lds(m, i) - L_GU)
                return
            for i in range(8): self.unpack(x1 + 2 * i, x1 + 2 * i + 1, xr + i)
            expand(mf, tb4); expand(mf + 16, tb4 + 1)
        if TL:
            a(f"""s_cmp_lg_u32 s{sLOC}, 0
            s_cbranch_scc1 L_ELOC""")
            self.inbox(3, 2)
            a("""s_barrier
            L_ELOC:""")
        else:
            ffn_dma(fd[1])
            self.inbox(3, 2, work=lambda: (e_work(), f_pre(0)))
            a('s_barrier')
        self.stamp('x1ok')
        def ld_sg():
            for q in range(4):
                S(T0, 'T4 + q', q=q * 8192)
                self.bl(sg + 4 * q, 4, vSG, rWS, T0, 0, 'sc1')
        self.try_load(ld_sg, [sg + 3, sg + 7, sg + 11, sg + 15], vT, e_work if TL else lambda: f_pre(1))
        V.release(vSG)
        self.stamp('x1ld')
        A_, B_, C_, U_ = sg, sg + 1, sg + 2, sg + 3
        self.pk('add', sg, sg, sg + 4); self.pk('add', sg + 8, sg + 8, sg + 12)
        a(f"""v_add_f32 v{C_}, v{C_}, v{sg+6}
        v_add_f32 v{sg+10}, v{sg+10}, v{sg+14}""")
        self.pk('add', sg, sg, sg + 8)
        a(f"""v_add_f32 v{C_}, v{C_}, v{sg+10}
        v_mov_b32 v{U_}, v{B_}
        v_permlane32_swap_b32 v{A_}, v{C_}
        v_permlane32_swap_b32 v{B_}, v{U_}
        v_add_f32 v{A_}, v{A_}, v{C_}
        v_add_f32 v{B_}, v{B_}, v{U_}
        v_permlane16_swap_b32 v{A_}, v{B_}
        v_add_f32 v{U_}, v{A_}, v{B_}
        v_add_f32 v{A_}, v{A_}, v{B_}
        v_permlane16_swap_b32 v{A_}, v{U_}
        v_mul_f32 v{C_}, 0x3a800000, v{A_}
        v_mul_f32 v{A_}, 0x3a800000, v{A_}
        v_permlane32_swap_b32 v{A_}, v{C_}""")
        self.stat_math(A_, C_, st, st + 1)
        a(f"""v_rcp_f32 v{st+1}, v{st+1}
        v_fma_f32 v{U_}, -v{st}, v{gr}, v{U_}
        v_mul_f32 v{U_}, v{U_}, v{st+1}""")
        self.dw('ds_write_b64', vT + 4, st, 2)
        a(f"""s_movk_i32 s{T0}, 0xfff
        v_ashrrev_i32 v{A_}, 31, v{U_}
        v_or_b32 v{A_}, 0x80000000, v{A_}
        v_xor_b32 v{A_}, v{A_}, v{U_}
        v_bfi_b32 v{ck}, s{T0}, v{vRid}, v{A_}""")
        def top2(ctls, first):
            for n, ctl in enumerate(ctls):
                if n == 0 and first:
                    self.dpp('v_min_u32', ck + 1, ck, ck, ctl); self.dpp('v_max_u32', ck, ck, ck, ctl)
                    continue
                self.dpp('v_min_u32', ck + 2, ck, ck, ctl); self.dpp('v_max_u32', ck + 1, ck + 1, ck + 1, ctl); self.dpp('v_max_u32', ck, ck, ck, ctl)
                a(f'v_max_u32 v{ck+1}, v{ck+1}, v{ck+2}')
        top2(('row_ror:8', 'row_ror:4', 'row_ror:2', 'row_ror:1'), True)
        self.dw('ds_write_b64', vT + 1, ck, 2)
        def side2():
            if o.get('htouch', 1):
                S(T2, '(fs*4 + kq)*2048 + w*256 + HGR')
                vDum = V.alloc()
                a(f'v_lshlrev_b32 v{vDum}, 7, v{vL}')
                a('s_mov_b64 exec, 3')
                self.bl(vDum, 1, vDum, rWS, T2, 0, '')
                a('s_mov_b64 exec, -1')
            ffn_dma(fd[2], T2)
        if o.get('f2pos', 0) == 0: side2()
        self.barrier()
        self.stamp('ln2')
        if PR:
            a(f"""s_cmp_ge_u32 s{sWAVE}, 2
            s_cbranch_scc1 L_PR1
            s_setprio {PR}
            L_PR1:""")
        self.dr('ds_read_b64', ck, 2, vT + 7, 0, 'k'); self.dr('ds_read_b64', st, 2, vT + 6, 0, 's')
        lg.wait('k')
        top2(('quad_perm:[1,0,3,2]', 'quad_perm:[2,3,0,1]', 'row_half_mirror'), False)
        a(f"""v_or_b32 v{ck+2}, 1, v{ck+1}
        v_mov_b32 v{ck+1}, s{sTAG}
        v_mov_b32 v{ck+3}, s{sTAG}
        s_cmp_lg_u32 s{sWAVE}, 0
        s_cbranch_scc1 L_NOF
        s_mov_b64 exec, 0xffff""")
        self.bs(ck, 4, vT + 2, rWS, T1, 0, 'sc1', count=False)
        a("""s_mov_b64 exec, -1
        L_NOF:""")
        self.stamp('Fpub')
        a(f"""s_cmp_lg_u32 s{sWAVE}, 1
        s_cbranch_scc1 L_NOC
        v_and_b32 v{vT}, 16, v{vL}
        v_cmp_eq_u32 vcc, 0, v{vT}
        v_cndmask_b32 v{vT}, v{ck+2}, v{ck}, vcc
        v_not_b32 v{vT}, v{vT}
        v_bfe_u32 v{vT}, v{vT}, 1, 7
        v_lshlrev_b32 v{vT+2}, 3, v{vT}
        v_mul_u32_u24 v{vT}, 144, v{vT}
        v_add_u32 v{vT+2}, {L_ST2}, v{vT+2}""")
        va(vT + 1, [(0, 4, 8)])
        cx, cs, ch = sg, sg + 4, sg + 8
        a(f"""v_add_u32 v{vT}, v{vT}, v{vT+1}
        ds_read_b64 {vr(cs, 2)}, v{vT+2}
        ds_read_b64 {vr(cx, 2)}, v{vT} offset:{L_XT}""")
        va(vT + 2, [(0, 4, 16), (4, 1, 16384), (5, 1, 4096)])
        va(vT + 3, [(4, 1, 16384), (0, 2, 16)])
        S(T0, 'rt*32768 + cb*256 + CAND'); S(T3, 'rt*32768 + cb*64 + 8192 + CAND')
        a(f"""v_mov_b32 v{cx+3}, s{sTAG}
        s_waitcnt lgkmcnt(0)""")
        self.unpack(ch, ch + 1, cx); self.unpack(ch + 2, ch + 3, cx + 1)
        for i in (0, 2): self.pk('add', ch + i, ch + i, cs, bc=(1,), neg=(1,))
        self.round_list([ch + i for i in range(4)])
        for i in (0, 2): self.pk('mul', ch + i, ch + i, cs + 1, bc=(1,))
        self.round_list([ch + i for i in range(4)])
        for i in (0, 2): self.pk('mul', ch + i, ch + i, ct + 4 + i)
        self.round_list([ch + i for i in range(4)])
        for i in (0, 2): self.pk('add', ch + i, ch + i, ct + i)
        a(f"""v_mov_b32 v{cx+2}, v{cx+1}
        v_mov_b32 v{cx+1}, s{sTAG}
        s_mov_b32 exec_hi, 0
        v_cvt_pk_bf16_f32 v{cx}, v{ch}, v{ch+1}
        v_cvt_pk_bf16_f32 v{cx+2}, v{ch+2}, v{ch+3}
        s_mov_b32 exec_hi, -1
        v_dot2_f32_bf16 v{cs}, v{cx}, v{ct+8}, 0
        v_mov_b32 v{cs+1}, s{sTAG}
        v_dot2_f32_bf16 v{cs}, v{cx+2}, v{ct+9}, v{cs}""")
        self.bs(cx, 4, vT + 2, rWS, T0, 0, 'sc1', count=False)
        for ctl in ('quad_perm:[1,0,3,2]', 'quad_perm:[2,3,0,1]', 'row_half_mirror', 'row_ror:8'): self.dpp('v_add_f32', cs, cs, cs, ctl)
        a(f"""v_mov_b32 v{cs+2}, v{cs}
        v_mov_b32 v{cs+3}, s{sTAG}
        s_mov_b64 exec, 0xf000f""")
        self.bs(cs, 4, vT + 3, rWS, T3, 0, 'sc1', count=False)
        a("""s_mov_b64 exec, -1
        L_NOC:""")
        V.release(ct, 12)
        def ln2_tile():
            for i in E2: self.pk('add', hh + i, x1 + i, st, bc=(1,), neg=(1,))
            self.round_list([hh + i for i in range(16)])
            for i in E2: self.pk('mul', hh + i, hh + i, st + 1, bc=(1,))
            self.round_list([hh + i for i in range(16)])
            for i in E2: self.pk('mul', hh + i, hh + i, mf + 16 + i)
            self.round_list([hh + i for i in range(16)])
            for i in E2: self.pk('add', hh + i, hh + i, mf + i)
            self.round_list([hh + i for i in range(16)])
        lg.wait('s')
        if PR: a('s_setprio 0')
        self.stamp('cand')
        if o.get('f2pos', 0) == 1: side2()
        if o.get('ccat', 3) == 3: c_clean()
        V.release(kc, 5); V.release(cf)
        ffn_dma(fd[3])
        uu = V.alloc(16); vGr = V.alloc(); vDr = V.alloc(); vXs = V.alloc(); vCL = V.alloc(2, 1)
        def out_calc():
            expand(mf, tb4 + 2)
            for i in E2: self.pk('mul', hh + i, hh + i, mf + i)
            self.round_list([hh + i for i in range(16)])
            for i in E2: self.pk('add', hh + i, hh + i, x1 + i)
            for i in range(8): a(f'v_cvt_pk_bf16_f32 v{op+i}, v{hh+2*i}, v{hh+2*i+1}')
            for q in range(2): self.dw('ds_write_b128', vOT, op + 4 * q, 4, 16 * q)
            S(T3, 'w*(16*144) + L_OT'); va(vOT, [(3, 3, 144), (0, 3, 16)], T3)
        oc = o.get('ocat', 2 if TL else 1); l2 = o.get('l2at', 1 if TL else 0)
        def f_work():
            if TL: f_pre(0); f_pre(1)
            if l2 == 0: ln2_tile()
            if oc == 0: out_calc()
            S(T0, '(w >> 2)*32768 + (w & 3)*32 + L_GU')
            va(vGr, [(4, 2, 8192), (2, 2, 128), (3, 2, 32), (0, 2, 8)]); a(f'v_xor_b32 v{vGr}, s{T0}, v{vGr}')
            S(T0, 'w*64')
            va(vDr, [(2, 1, 512), (3, 1, 4096), (5, 1, 2048), (2, 2, 64), (4, 1, 32), (0, 2, 8)])
            a(f'v_xor_b32 v{vDr}, s{T0}, v{vDr}'); a(f'v_add_u32 v{vDr}, {L_DN}, v{vDr}')
            va(vXs, [(0, 3, 16), (4, 2, 128)], None, L_XS)
            S(T0, 'kq*1024'); a(f'v_add_u32 v{vCL}, s{T0}, v{vL16}')
            va(vCL + 1, [(0, 4, 64)], None, 8192)
            S(sWB, 'fs*8192 + HGR'); S(T7, 'mf*kh*8192 + (kq*8 + w)*256 + wb')
            S(T0, 'w*16 + L_K2'); a(f'v_mov_b32 v{vT}, s{T0}')
            va(vT + 1, [(0, 3, 16)], None, L_K2)
            a(f'v_and_b32 v{vT+4}, 8, v{vL}')
            a(f'v_cmp_eq_u32 {sr(sCMP, 2)}, 0, v{vT+4}')
            self.stamp('oc')
        self.inbox(5, 8, (1, 3, 5, 7), f_work)
        P = sPL
        a(f"""s_min_u32 s{P+1}, s{P}, s{P+4}
        s_max_u32 s{P}, s{P}, s{P+4}
        s_max_u32 s{P+3}, s{P+2}, s{P+6}
        s_min_u32 s{P+2}, s{P+2}, s{P+6}
        s_max_u32 s{P+4}, s{P+1}, s{P+3}
        s_min_u32 s{P+1}, s{P+1}, s{P+3}
        v_mov_b32 v{uu}, s{P}
        v_mov_b32 v{uu+3}, s{P+2}
        v_mov_b32 v{uu+1}, s{P+4}
        v_mov_b32 v{uu+2}, s{P+1}""")
        self.dw('ds_write_b128', vT, uu, 4)
        self.stamp('F2p')
        V.release(big, 8 * len(freg) + 4 * nfa); V.release(gr, 2); V.release(vGR); V.release(vRid)
        ffn = V.alloc(48); ga_ = V.alloc(16); gb_ = V.alloc(16)
        vm.wait('gu')
        self.barrier()
        self.stamp('F2')
        def gu_frags():
            for s in range(8):
                self.tr(ffn + 4 * s, vGr, s * 1024); self.tr(ffn + 4 * s + 2, vGr, s * 1024 + 512)
        a(f"""s_cmp_lt_u32 s{sWAVE}, 4
        s_cbranch_scc1 L_CSEL""")
        fq0, vq0 = list(fq), list(vm.q)
        if not o.get('f4late', 1): ffn_dma(fd[4])
        gu_frags()
        if l2 == 1: ln2_tile()
        if oc == 1: out_calc()
        if o.get('f4late', 1): ffn_dma(fd[4])
        a("""s_branch L_CSELD
        L_CSEL:""")
        lg.reset(); fq[:] = fq0; vm.q = vq0
        if PR: a(f's_setprio {PR}')
        self.r128(uu, vT + 1)
        S(T0, 'w*512 + L_XS'); a(f'v_add_u32 v{vT+2}, s{T0}, v{vL8}')
        S(T0, 'w*4 + L_K3'); a(f'v_mov_b32 v{vT+3}, s{T0}')
        lg.wait_all()
        c4 = uu + 4
        for n, ctl in enumerate(('quad_perm:[1,0,3,2]', 'quad_perm:[2,3,0,1]', 'row_half_mirror')):
            for i in range(4): self.dpp('v_max_u32', c4 + i, uu + 3 - i, uu + i, ctl)
            if n == 2: break
            a(f"""v_max_u32 v{c4+4}, v{c4}, v{c4+2}
            v_max_u32 v{c4+5}, v{c4+1}, v{c4+3}
            v_min_u32 v{c4+6}, v{c4}, v{c4+2}
            v_min_u32 v{c4+7}, v{c4+1}, v{c4+3}
            v_max_u32 v{uu}, v{c4+4}, v{c4+5}
            v_min_u32 v{uu+1}, v{c4+4}, v{c4+5}
            v_max_u32 v{uu+2}, v{c4+6}, v{c4+7}
            v_min_u32 v{uu+3}, v{c4+6}, v{c4+7}""")
        for i in range(4): a(f'v_readfirstlane_b32 s{P+i}, v{c4+i}')
        a(f"""s_bitcmp1_b32 s{sWAVE}, 0
        s_cselect_b32 s{P}, s{P+1}, s{P}
        s_cselect_b32 s{P+2}, s{P+3}, s{P+2}
        s_bitcmp1_b32 s{sWAVE}, 1
        s_cselect_b32 s{P}, s{P+2}, s{P}
        s_and_b32 s{T2}, s{P}, 4095""")
        S(T0, '((15 - (T2 >> 8))*2 + (T2 & 1))*16384 + CAND')
        def sel_work():
            self.stamp('sel')
            if PR: a('s_setprio 0')
            ffn_dma(fd[4], T3)
            gu_frags()
            if l2 == 1: ln2_tile()
            if oc == 1: out_calc()
            S(T2, 'T2*4 + w')
        self.try_load(lambda: (self.bl(uu + 4, 2, vCL + 1, rWS, T0, 0, 'sc1'), self.bl(uu, 4, vCL, rWS, T0, 0, 'sc1')), [uu + 1, uu + 3, uu + 5], vT + 4, sel_work)
        if PR: a(f's_setprio {PR}')
        a(f'ds_write2_b32 v{vT+2}, v{uu}, v{uu+2} offset0:0 offset1:1'); lg.issue()
        for ctl in ('quad_perm:[1,0,3,2]', 'quad_perm:[2,3,0,1]', 'row_half_mirror', 'row_ror:8'): self.dpp('v_add_f32', uu + 4, uu + 4, uu + 4, ctl)
        a(f"""v_cvt_pk_bf16_f32 v{uu+4}, 0, v{uu+4}
        v_ashrrev_i32 v{uu+5}, 31, v{uu+4}
        v_or_b32 v{uu+5}, 0x80000000, v{uu+5}
        v_xor_b32 v{uu+4}, v{uu+4}, v{uu+5}
        v_and_b32 v{uu+4}, s{sMASK}, v{uu+4}
        v_or_b32 v{uu+4}, s{T2}, v{uu+4}""")
        self.dw('ds_write_b32', vT + 3, uu + 4, 1)
        if PR: a('s_setprio 0')
        a('L_CSELD:')
        V.release(vFG); V.release(vFD)
        a(f'v_mov_b32 v{vT}, {L_K3}')
        DP = o.get('dpre', 0)
        if DP: assert fd[4] == 0; vm.wait_all()
        self.barrier()
        self.stamp('xsel')
        self.r128(uu, vT)
        lg.wait_all()
        a(f"""v_max_u32 v{uu+4}, v{uu}, v{uu+1}
        v_max_u32 v{uu+5}, v{uu+2}, v{uu+3}
        v_min_u32 v{uu+6}, v{uu}, v{uu+1}
        v_min_u32 v{uu+7}, v{uu+2}, v{uu+3}
        v_min_u32 v{uu+1}, v{uu+4}, v{uu+5}
        v_max_u32 v{uu}, v{uu+4}, v{uu+5}
        v_max3_u32 v{uu+1}, v{uu+1}, v{uu+6}, v{uu+7}
        v_cndmask_b32 v{vT}, v{uu+1}, v{uu}, {sr(sCMP, 2)}
        v_readfirstlane_b32 s{sK1}, v{uu}
        v_and_b32 v{vT}, 3, v{vT}
        v_readfirstlane_b32 s{sK2}, v{uu+1}
        v_lshl_add_u32 v{vT}, v{vT}, 9, v{vXs}""")
        self.r128(uu + 4, vT)
        if oc < 2:
            for q in range(2): self.r128(op + 4 * q, vOT, q * 8 * 144, 'ot')
        a(f"""s_bfe_u32 s{sROW0}, s{sK1}, {3 | (11 << 16)}
        s_bfe_u32 s{sROW1}, s{sK2}, {3 | (11 << 16)}
        s_sub_u32 s{sROW0}, 2047, s{sROW0}
        s_sub_u32 s{sROW1}, 2047, s{sROW1}
        s_waitcnt lgkmcnt({2 if oc < 2 else 0})""")
        gd = [ga_ + 4 * i for i in range(4)] + [gb_ + 4 * i for i in range(4)]
        for s in range(8):
            a(f'v_mfma_f32_16x16x32_bf16 {vr(gd[s], 4)}, {vr(uu + 4, 4)}, {vr(ffn + 4*s, 4)}, 0')
        if DP:
            for s in range(4):
                self.tr(ffn + 32 + 4 * s, vDr, s * 8192); self.tr(ffn + 32 + 4 * s + 2, vDr, s * 8192 + 1024)
        p0, p1 = uu, uu + 2
        hk = V.alloc(5, 4)
        for p, b in ((p0, 0), (p1, 4)):
            a(f'v_add_f32 v{p}, v{gd[b]}, v{gd[b+1]+1}')
            a(f'v_add_f32 v{p+1}, v{gd[b+2]+2}, v{gd[b+3]+3}')
        a(f"""v_add_f32 v{p0}, v{p0}, v{p0+1}
        v_add_f32 v{p1}, v{p1}, v{p1+1}
        v_permlane16_swap_b32 v{p1}, v{p1+1}
        v_add_f32 v{hk}, v{p0}, v{p1+1}
        v_add_f32 v{hk+2}, v{p0}, v{p1+1}
        v_mov_b32 v{hk+1}, s{sTAG}
        v_mov_b32 v{hk+3}, s{sTAG}
        v_permlane32_swap_b32 v{hk}, v{hk+2}
        s_cmp_ge_u32 s{sJ}, 28
        s_cbranch_scc1 L_NOHP
        s_mov_b64 exec, 0xffff""")
        self.bs2([(hk, 4, vL16, T7, 0)])
        a(f"""s_mov_b64 exec, -1
        L_NOHP:
        v_add_u32 v{hk+4}, s{T7}, v{vL16}""")
        self.stamp('Hpub')
        vG3 = V.alloc(3, 1)
        def g_prep():
            va(vG3, [(2, 1, 128), (5, 1, 16)], None, L_ACT)
            va(vG3 + 1, [(4, 2, 56 * 128), (0, 3, 16)])
            va(vG3 + 2, [(0, 2, 4096)] if TL else [(0, 1, 64 * 4096), (1, 1, 2 * 4096)])
            S(sWB, '(kq*8 + w)*(4*56*128) + fs*128 + GGR')
            S(sU0, ('(kq*8 + w)*16384' if TL else '(((kq & 1)*4 + (w >> 1))*8 + (w & 1)*4 + (kq >> 1))*4096') + ' + x*64 + (j >> 2)*4 + INB + 3072')
        vOr = V.alloc(); vOa = V.alloc()
        def out_store():
            S(T0, 'rt*128 + w*16'); va(vOr, [(3, 3, 1)], T0)
            S(T2, 'T0*2048 + cb*128'); S(T3, 'T2 + 16384')
            va(vOa, [(3, 3, 2048), (0, 3, 16)])
            for q in range(2):
                if q: a(f'v_add_u32 v{vOr}, 8, v{vOr}')
                a(f"""v_cmp_ne_u32 vcc, s{sROW0}, v{vOr}
                v_cmp_ne_u32 {sr(sCMP, 2)}, s{sROW1}, v{vOr}
                s_and_b64 exec, vcc, {sr(sCMP, 2)}""")
                self.bs(op + 4 * q, 4, vOa, rOUT, (T2, T3)[q], 0, o.get('outmod', 'sc1'), count=False)
                a('s_mov_b64 exec, -1')
        lg.wait('ot')
        if o.get('outat', 1) == 0: assert oc < 2; out_store()
        fz = V.alloc(4)
        sFR, sFK, sFC0 = T4, T5, T6
        a(f"""s_bitcmp1_b32 s{sX if TL else sRT}, {1 if TL else 2}
        s_cselect_b32 s{sFR}, s{sROW1}, s{sROW0}
        s_cselect_b32 s{sFK}, s{sK2}, s{sK1}
        s_cmp_lg_u32 s{sWAVE}, 7
        s_cbranch_scc1 L_NOFZ
        s_cmp_lg_u32 s2, 0
        s_cbranch_scc1 L_NONON
        v_mov_b32 v{vT+2}, s{sTAG}
        s_mov_b64 exec, 1""")
        self.bs(vT + 2, 1, vZ, rWS, '0', 0, 'sc1', count=False)
        a(f"""s_mov_b64 exec, -1
        L_NONON:""")
        S(sFC0, '(x >> 2)*2 + (x & 1)' if TL else '(rt >> 3)*2 + (rt & 1)')
        S(T7, '(cb*8 + x)*(56*128) + GGR' if TL else '(cb*8 + (rt >> 2)*2 + (rt & 1))*(56*128) + GGR')
        S(sU, 'T4*2048 + cb*128 + T6*32')
        va(vT + 6, [(0, 1, 4), (2, 1, 8), (1, 1, 16)])
        S(T0, 'T6*32 + L_GB'); a(f'v_add_u32 v{vT+1}, s{T0}, v{vT+6}')
        a(f'ds_read_b32 v{fz+2}, v{vT+1}')
        S(sK1, '((T4 >> 7)*2 + ((T5 >> 2) & 1))*16384 + cb*256 + T6*64 + CAND'); S(sK2, 'k1 + 4096')
        va(vT + 7, [(0, 1, 8), (2, 1, 16), (1, 1, 32)])
        ld_fz = lambda: (self.bl(st, 2, vT + 7, rWS, sK1, 0, 'sc1'), self.bl(fz, 2, vT + 7, rWS, sK2, 0, 'sc1'))
        q_ = list(vm.q); ld_fz(); vm.q = q_
        a(f"""s_and_b32 s{T0}, s{sFK}, s{sMASK}
        s_ashr_i32 s{T2}, s{T0}, 31
        s_andn2_b32 s{T2}, 0x7fff0000, s{T2}
        s_or_b32 s{T2}, s{T2}, 0x80000000
        s_xor_b32 s{T0}, s{T0}, s{T2}
        v_mov_b32 v{fz+3}, s{T0}
        v_mul_f32 v{fz+3}, s{sL2E}, v{fz+3}
        v_exp_f32 v{fz+3}, -v{fz+3}
        v_add_f32 v{fz+3}, 1.0, v{fz+3}
        v_rcp_f32 v{fz+3}, v{fz+3}""")
        self.round1(fz + 3)
        a(f"""L_NOFZ:
        s_cmp_lt_u32 s{sJ}, 28
        s_cbranch_scc1 L_HSEC""")
        if oc == 2:
            out_calc()
            self.barrier()
            for q in range(2): self.r128(op + 4 * q, vOT, q * 8 * 144)
            lg.wait_all()
        a("""s_branch L_GSEC
        L_HSEC:""")
        a(f"""s_cmp_lt_u32 s{sWAVE}, 4
        s_cbranch_scc1 L_HW""")
        if oc == 2: out_calc()
        g_prep()
        a("""s_branch L_NOH
        L_HW:""")
        S(T0, 'w*256 + wb')
        va(vT, [(4, 2, 2048), (0, 4, 16)])
        S(T2, 'w*32 + L_ACT'); va(vT + 1, [(5, 1, 128), (2, 1, 16), (1, 1, 8), (3, 1, 4), (0, 1, 2)], T2)
        a(f"""s_cmp_lg_u32 s{sLOC}, 0
        s_cbranch_scc1 L_HLOC""")
        self.spoll([(q, 1, T0, q * 2048 + 1024 + 252) for q in range(4)], range(4))
        a('L_HLOC:')
        self.stamp('Hpre')
        g, u = ga_, ga_ + 4
        self.try_load(lambda: [self.bl(ga_ + 4 * m, 4, vT, rWS, T0, m * 1024, 'sc1') for m in range(2)], [g + 1, g + 3, u + 1, u + 3], vT + 2, lambda: (g_prep(), out_calc() if oc == 2 else None))
        a(f"""v_permlane32_swap_b32 v{g}, v{g+2}
        v_permlane32_swap_b32 v{u}, v{u+2}
        v_add_f32 v{g}, v{g}, v{g+2}
        v_add_f32 v{u}, v{u}, v{u+2}
        v_mov_b32 v{g+2}, v{g}
        v_mov_b32 v{u+2}, v{u}
        v_permlane16_swap_b32 v{g}, v{g+2}
        v_permlane16_swap_b32 v{u}, v{u+2}
        v_add_f32 v{g}, v{g}, v{g+2}
        v_add_f32 v{u}, v{u}, v{u+2}""")
        self.round2(g, u)
        self.silu(g, vT + 2)
        a(f"""v_mul_f32 v{g}, v{g}, v{u}
        v_cvt_pk_bf16_f32 v{g}, v{g}, v{g}
        ds_write_b16 v{vT+1}, v{g}
        L_NOH:""")
        vm.wait_all()
        self.barrier()
        self.stamp('Hok')
        for s in range(4):
            self.r128(ga_ + 4 * s, vG3, s * 32, ('ac', s))
            if not DP: self.tr(ffn + 32 + 4 * s, vDr, s * 8192, ('ac', s)); self.tr(ffn + 32 + 4 * s + 2, vDr, s * 8192 + 1024, ('ac', s))
        for s in range(4):
            lg.wait(('ac', s))
            a(f'v_mfma_f32_32x32x16_bf16 {vr(gb_, 16)}, {vr(ga_ + 4*s, 4)}, {vr(ffn + 32 + 4*s, 4)}, ' + ('0' if s == 0 else vr(gb_, 16)))
        if oc == 2:
            for q in range(2): self.r128(op + 4 * q, vOT, q * 8 * 144)
        a(f"""v_mov_b32_dpp v{gb_+2}, v{gb_} row_ror:8 row_mask:0xf bank_mask:0xf
        v_mov_b32 v{gb_+1}, s{sTAG}
        v_mov_b32 v{gb_+3}, s{sTAG}
        s_mov_b32 exec_lo, 0x00ff00ff
        s_mov_b32 exec_hi, 0x00ff00ff""")
        self.bs(gb_, 4, vG3 + 1, rWS, sWB, 0, 'sc1')
        a('s_mov_b64 exec, 15')
        self.bs(gb_ + 1, 1, vG3 + 2, rWS, sU0, 0, 'sc1')
        a('s_mov_b64 exec, -1')
        self.stamp('Gpub')
        def hclean():
            a('s_mov_b64 exec, 0xffff')
            self.bs(hk, 4, hk + 4, rWS, '0', 0, 'sc1', count=False)
            a('s_mov_b64 exec, -1')
        if o.get('hclean', 3) == 1: hclean()
        lg.wait_all()
        a('L_GSEC:')
        if o.get('outat', 1) == 1: out_store()
        a(f"""s_cmp_lt_u32 s{sJ}, 16
        s_cbranch_scc1 L_GF""")
        if o.get('outat', 1) == 2: out_store()
        if o.get('hclean', 3) >= 2:
            a(f"""s_cmp_ge_u32 s{sJ}, 28
            s_cbranch_scc1 L_FIN
            s_waitcnt vmcnt(0)""")
            hclean()
        a("""s_branch L_FIN
        L_GF:""")
        self.inbox(6, 8, range(7))
        self.stamp('Gpre')
        a('s_barrier')
        if o.get('hclean', 3) == 2: hclean()
        if o.get('hclean', 3) == 3:
            a(f"""s_cmp_eq_u32 s{sWAVE}, 7
            s_cbranch_scc1 L_G7
            s_barrier""")
            if o.get('outat', 1) == 2: out_store()
            hclean()
            a("""s_branch L_FIN
            L_G7:""")
        a(f"""s_cmp_lg_u32 s{sWAVE}, 7
        s_cbranch_scc1 L_FIN""")
        S(T0, 'T7 + 4096')
        gg = [ga_ + 4 * i for i in range(4)] + [uu + 4 * i for i in range(3)]
        fo = V.alloc(6, 2)
        def g_work():
            a(f's_waitcnt vmcnt(7)')
            self.finish_load('none', ld_fz, [st + 1, fz + 1], vT)
            for q, r_ in enumerate((st, fz + 2, fz)): self.unpack(fo + 2 * q, fo + 2 * q + 1, r_)
        self.try_load(lambda: [self.bl(gg[n], 4, vL16, rWS, (T7, T0)[n >> 2], (n & 3) * 1024, 'sc1') for n in range(7)],
                      [gg[n] + 1 + 2 * e for n in range(7) for e in range(2)], vT, g_work)
        self.stamp('Gok')
        if o.get('hclean', 3) == 3: a('s_barrier')
        y0, y1 = gg[0], gg[0] + 1
        for lo, hi in ((0, 1), (2, 3), (4, 5), (0, 2), (4, 6), (0, 4)):
            for e in (0, 2): a(f'v_add_f32 v{gg[lo]+e}, v{gg[lo]+e}, v{gg[hi]+e}')
        a(f'v_mov_b32 v{y1}, v{gg[0]+2}')
        for y in (y0, y1): self.dpp('v_add_f32', y, y, y, 'row_ror:8')
        for sw in ('v_permlane16_swap_b32', 'v_permlane32_swap_b32'):
            for y in (y0, y1): a(f'v_mov_b32 v{y+2}, v{y}')
            for y in (y0, y1): a(f'{sw} v{y}, v{y+2}')
            self.pk('add', y0, y0, y0 + 2)
        a(f"""v_mov_b32_dpp v{y0+2}, v{y0} quad_perm:[0,2,0,2] row_mask:0xf bank_mask:0xf
        v_mov_b32_dpp v{y0+3}, v{y0} quad_perm:[1,3,1,3] row_mask:0xf bank_mask:0xf
        v_mov_b32_dpp v{y0}, v{y1} quad_perm:[0,2,0,2] row_mask:0xf bank_mask:0xf
        v_mov_b32_dpp v{y1}, v{y1} quad_perm:[1,3,1,3] row_mask:0xf bank_mask:0xf
        s_mov_b32 exec_lo, 0x33333333
        v_mov_b32 v{y0}, v{y0+2}
        v_mov_b32 v{y1}, v{y0+3}
        s_mov_b32 exec_lo, -1""")
        self.round2(y0, y1)
        self.pk('mul', y0, y0, fz + 3, bc=(1,))
        self.round2(y0, y1)
        self.pk('add', y0, y0, fo)
        self.round2(y0, y1)
        self.pk('mul', y0, y0, fo + 2)
        self.round2(y0, y1)
        self.pk('add', y0, y0, fo + 4)
        a(f'v_cvt_pk_bf16_f32 v{y0}, v{y0}, v{y1}')
        a('s_mov_b64 exec, 0xff')
        self.bs(y0, 1, vT + 6, rOUT, sU, 0, 'sc1')
        a('s_mov_b64 exec, -1')
        if o.get('outat', 1) == 2: out_store()
        if o.get('hclean', 3) == 3: hclean()
        a('L_FIN:')
        if o.get('exfil'):
            self.stamp('fin')
            a('s_waitcnt vmcnt(0)')
            self.stamp('finw')
            a(f'''s_lshl3_add_u32 s{T0}, s2, s{sWAVE}
            s_cmp_lg_u32 s{T0}, {o.get('exwho', 7)}
            s_cbranch_scc1 L_END
            v_readlane_b32 s{T0}, v255, 0
            v_readlane_b32 s{T1}, v255, 1
            v_readlane_b32 s{T2}, v255, 2
            s_sub_u32 s{T2}, s{T2}, s{T1}
            s_max_i32 s{T2}, s{T2}, 0
            s_min_u32 s{T2}, s{T2}, 10000
            s_mul_i32 s{T2}, s{T2}, 10
            s_add_u32 s{T2}, s{T2}, 6000
            L_PAD:
            s_memrealtime {sr(sTM, 2)}
            s_waitcnt lgkmcnt(0)
            s_sub_u32 s{T1}, s{sTM}, s{T0}
            s_cmp_lt_u32 s{T1}, s{T2}
            s_cbranch_scc1 L_PAD''')
        if o.get('padfin'):
            a(f'''s_lshl3_add_u32 s{T0}, s2, s{sWAVE}
            s_cmp_lg_u32 s{T0}, 7
            s_cbranch_scc1 L_END
            s_memrealtime {sr(sTM, 2)}
            s_waitcnt lgkmcnt(0)
            s_mov_b32 s{T0}, s{sTM}
            L_PAD2:
            s_memrealtime {sr(sTM, 2)}
            s_waitcnt lgkmcnt(0)
            s_sub_u32 s{T1}, s{sTM}, s{T0}
            s_cmp_lt_u32 s{T1}, {o['padfin']}
            s_cbranch_scc1 L_PAD2''')
        if self.prof:
            a('s_waitcnt vmcnt(0) lgkmcnt(0)')
            self.stamp('end')
            a(f's_memrealtime {sr(sTM, 2)}')
            a('s_waitcnt lgkmcnt(0)')
            a(f'v_writelane_b32 v255, s{sTM}, 61')
            S(T0, '(wg*8 + w)*256 + STAMPS')
            a(f'v_writelane_b32 v255, s{sSPIN}, 62')
            a(f'v_lshlrev_b32 v{vT+1}, 2, v{vL}')
            a(f'buffer_store_dword v255, v{vT+1}, {sr(rWS, 4)}, s{T0} offen')
            S(T0, 'T0 + 0x100000')
            a(f'buffer_store_dword v254, v{vT+1}, {sr(rWS, 4)}, s{T0} offen')
        a('L_END:')
        a('s_endpgm')
        return self

    def text(self):
        a = self.a
        npad = a.fix_hazards()
        errs = a.check_waits([NAME], maxvisit=int(os.environ.get('MAXVISIT', 4)))
        for e in errs: print('WAITERR', e, file=sys.stderr)
        assert not errs
        hdr = open(os.path.join(os.path.dirname(os.path.abspath(__file__)), 'header.txt')).read()
        s = hdr + '; @launch grid=(256,1,1) block=(512,1,1) lds=163840\n'
        s += '.amdgcn_target "amdgcn-amd-amdhsa--gfx950"\n.text\n'
        s += f'.globl {NAME}\n.p2align 8\n.type {NAME},@function\n'
        body = a.text()
        import subprocess, tempfile
        with tempfile.TemporaryDirectory() as td:
            open(td + '/t.s', 'w').write('.amdgcn_target "amdgcn-amd-amdhsa--gfx950"\n.text\n' + body.replace('CODE_KB', '20480'))
            subprocess.run(['clang', '-x', 'assembler', '-target', 'amdgcn-amd-amdhsa', '-mcpu=gfx950', '-c', td + '/t.s', '-o', td + '/t.o'], check=True)
            subprocess.run(['llvm-objcopy', '-O', 'binary', '-j', '.text', td + '/t.o', td + '/t.bin'], check=True)
            size = os.path.getsize(td + '/t.bin')
        print('; code bytes', size, file=sys.stderr)
        s += body.replace('CODE_KB', str((size // 1024 + 1) * 1024))
        s += '.p2align 10\n.fill 768, 4, 0xbf800000\n'
        s += '.section .rodata,"a"\n' + kernel_desc(NAME, 256, 102)
        print(f'; vgpr hi {self.V.hi}, nops {npad}, instrs {sum(1 for k, _ in a.items if k == "ins")}', file=sys.stderr)
        return s


if __name__ == '__main__':
    import argparse, json
    ap = argparse.ArgumentParser()
    ap.add_argument('-o', default='/dev/stdout')
    ap.add_argument('--prof', action='store_true')
    ap.add_argument('--opts', default='{}')
    args = ap.parse_args()
    g = Gen(args.prof, json.loads(args.opts)).build()
    t = g.text()
    open(args.o, 'w').write(t)
    if args.prof: open(args.o + '.stamps', 'w').write(json.dumps(g.stnames))
```

```python
import sys, os
sys.path.insert(0, os.path.dirname(os.path.abspath(__file__)))
from asm import *

NAME = 'adaLN_cond__linear_kernel_hedgehog__moe_arch_mod__prompt_kernel'

NONCE = 0x0
CFL = 0x8000
MARK = 0x100
GR = 0x010000
MODP2 = 0x020000
SINB = 0x040000
AINB = 0x080000
INA = 0x200000
INB = 0x100000
HF = 0x400000
OF = 0x800000
STAT = 0xC00000
CAND = 0x2000000
HGR = 0x1400000
ZP = 0x1480000
GGR = 0x1500000
KVP = 0x1800000
KIN = 0x1C00000
STAMPS = 0x1600000
WS_BYTES = 268435456

SEC = 8320
SLOT = 3 * SEC
SCR = 6 * SLOT
L_A1 = SCR
L_M2 = SCR + 1024
L_ST = SCR + 2048
L_MP = SCR + 2560
L_WPHI = SCR + 6656
L_MB = SCR + 10752
L_FLG = 147200
L_XF = 147456
L_PHK = 0
L_V = 32768
WO_H0 = 32768
WO_H1 = 98304
GS = 0
L_KVF = GS
L_ZF = GS + 8192
L_EXCH = GS
L_MT = 139264
L_GU = 32768
L_DN = 98304
TS = 131072
L_SP = TS
L_ST2 = TS + 4096
L_K1 = TS + 5120
L_K2 = TS + 5184
L_K3 = TS + 5312
L_XS = TS + 5632
L_ACT = TS + 7680
L_TB = TS + 7936
L_GB = L_TB + 256
L_OT = TS + 8704
L_XT = GS

SPIN_LIMIT = 300000

sWAVE, sTAG, sSPIN, sMASK, sL2E = 3, 4, 5, 6, 7
sX, sJ, sR1, sHP, sCB = 8, 9, 10, 11, 12
T0, T1, T2, T3, T4, T5, T6, T7 = 13, 14, 15, 16, 17, 18, 19, 20
sRT = 21
sCMP = 22
sPL = 24
rWS, rX, rW, rWO, rWM, rWG, rWU, rWD, rOUT = 32, 36, 40, 44, 48, 52, 56, 60, 64
KA = 68
pWPHI, pWR, pC = KA + 4, KA + 10, KA + 18
sK1, sK2, sROW0, sROW1, sFS, sKQ, sKH, sKF = 68, 69, 70, 71, 74, 75, 76, 77
sFG, sFD, sU, sROT, sWB, sU0 = 80, 81, 82, 83, 84, 85
sWO2, sW1K, sMF = 88, 89, 90
sINB, sRow, sGTB, sC32 = 92, 93, 94, 95
sWC = 91
sXC = 94
pDBG = 30
sLOC = 93
XT = (96, 97, 98, 99)
sTM = 100
ENV = dict(wg=2, w=sWAVE, x=sX, j=sJ, r1=sR1, hp=sHP, cb=sCB, rt=sRT, row=sRow, gtb=sGTB, c32=sC32, kh=sKH, kf=sKF, fs=sFS, kq=sKQ,
           rot=sROT, wb=sWB, u0=sU0, wo2=sWO2, w1k=sW1K, mf=sMF, u=sU, fg=sFG, fd=sFD, T0=T0, T1=T1, T2=T2, T3=T3, T4=T4, T5=T5, T6=T6, T7=T7, row0=sROW0, row1=sROW1, k1=sK1, xc=sXC)


class Gen:
    def __init__(self, prof=False, opts=None):
        self.a = Asm()
        self.vm = Counter(self.a, 'vmcnt', 63)
        self.lg = Counter(self.a, 'lgkmcnt', 15)
        self.V = RegAlloc(254, 1)
        self.prof = prof
        self.nopk = False
        self.nst = 0
        self.stnames = []
        self.S = SExpr(self.a, ENV, {k: v for k, v in globals().items() if isinstance(v, int) and k.isupper() and k not in ENV}, XT)
        self.o = dict(AD=13, LOOK=6, wev=2, AD2=8, A20=6, wburst=(0, 3, 0, 0, 6, 6), wxor=3, LASTB=14, wsch={2: 6, 3: 3, 4: 6, 5: 3, 6: 6, 7: 3, 8: 6, 9: 6, 10: 6, 11: 6, 12: 6, 13: 3},
                      sched={1: 'm1 p2', 2: 's4', 3: 'm1', 4: 's4 p2', 5: 'm1', 6: 'g1', 7: 'm1 h p3', 8: 'g1', 9: 'g1', 10: 'g1', 11: 'g2', 12: 'g2', 13: 'R r1', 14: 'P K o4 f4', 15: 'f2'}, fdma=(3, 0, 1, 1, 1), wowin=(6, 0, 3))
        if opts: self.o.update(opts)

    def bl(self, dst, n, voff, srd, soff, imm=0, mods='', tag=None):
        op = {1: 'dword', 2: 'dwordx2', 4: 'dwordx4'}[n]
        so = soff if isinstance(soff, str) else (sr(soff))
        self.a(f'buffer_load_{op} {vr(dst, n)}, v{voff}, {sr(srd, 4)}, {so} offen' + (f' offset:{imm}' if imm else '') + (' ' + mods if mods else ''))
        self.vm.issue(tag)
    def bs(self, src, n, voff, srd, soff, imm=0, mods='', tag=None, count=True):
        op = {1: 'dword', 2: 'dwordx2', 4: 'dwordx4'}[n]
        so = soff if isinstance(soff, str) else (sr(soff))
        self.a(f'buffer_store_{op} {vr(src, n)}, v{voff}, {sr(srd, 4)}, {so} offen' + (f' offset:{imm}' if imm else '') + (' ' + mods if mods else ''))
        if count: self.vm.issue(tag)
    def bs2(self, items):
        a = self.a
        LL, D = a.label('LOC'), a.label('LOCD')
        a(f's_cmp_lg_u32 s{sLOC}, 0')
        a(f's_cbranch_scc1 {LL}')
        for src, n, voff, soff, imm in items: self.bs(src, n, voff, rWS, soff, imm, 'sc1', count=False)
        a(f's_branch {D}')
        a(f'{LL}:')
        for src, n, voff, soff, imm in items: self.bs(src, n, voff, rWS, soff, imm, '', count=False)
        a(f'{D}:')
    def dma(self, voff, srd, soff, imm=0, mods='', tag=None):
        self.a(f'buffer_load_dwordx4 v{voff}, {sr(srd, 4)}, {sr(soff)} offen' + (f' offset:{imm}' if imm else '') + (' ' + mods if mods else '') + ' lds')
        self.vm.issue(tag)
    def dr(self, op, dst, n, addr, off=0, tag=None):
        assert 0 <= off < 65536, off
        self.a(f'{op} {vr(dst, n)}, v{addr}' + (f' offset:{off}' if off else ''))
        self.lg.issue(tag)
    def tr(self, dst, addr, off, tag=None): self.dr('ds_read_b64_tr_b16', dst, 2, addr, off, tag)
    def r128(self, dst, addr, off=0, tag=None): self.dr('ds_read_b128', dst, 4, addr, off, tag)
    def dw(self, op, addr, src, n, off=0, tag=None):
        assert 0 <= off < 65536, off
        self.a(f'{op} v{addr}, {vr(src, n)}' + (f' offset:{off}' if off else ''))
        self.lg.issue(tag)
    def barrier(self):
        self.lg.wait_all()
        self.a('s_barrier')
    def stamp(self, name):
        ex = self.o.get('exfil')
        if ex and name in ex[:2]:
            self.a(f's_memrealtime {sr(sTM, 2)}')
            self.lg.wait_all()
            self.a(f'v_writelane_b32 v255, s{sTM}, {1 + ex.index(name)}')
        if not self.prof: return
        only = self.o.get('only')
        if only and name not in only and name != 'end': return
        self.a(f's_memtime {sr(sTM, 2)}')
        self.a(f's_memrealtime s[0:1]')
        self.lg.wait_all()
        self.a(f'v_writelane_b32 v255, s{sSPIN if self.o.get("spinst") and self.nst > 3 else sTM}, {self.nst}')
        self.a(f'v_writelane_b32 v254, s0, {self.nst}')
        self.stnames.append(name)
        self.nst += 1
        assert self.nst <= 60
    def unpack(self, lo, hi, src):
        self.a(f'v_lshlrev_b32 v{lo}, 16, v{src}')
        self.a(f'v_and_b32 v{hi}, s{sMASK}, v{src}')
    def round1(self, r):
        self.a(f'v_cvt_pk_bf16_f32 v{r}, 0, v{r}')
    def round2(self, r0, r1):
        self.round1(r0); self.round1(r1)
    def round_list(self, regs):
        for r in regs: self.round1(r)
    def pk(self, op, d, s0, s1, s2=None, bc=(), neg=()):
        srcs = [s0, s1] + ([s2] if s2 is not None else [])
        if self.nopk:
            for h in range(2):
                t = []
                for k, r in enumerate(srcs):
                    kind, n = r if isinstance(r, tuple) else ('v', r)
                    t.append(('-' if k in neg else '') + f'{kind}{n if k in bc else n + h}')
                e64 = '' if op == 'fma' else ('_e64' if (neg or t[1][0] == 's') else '')
                self.a(f'v_{op}_f32{e64} v{d+h}, ' + ', '.join(t))
            return
        txt, sel, selhi = [], [], []
        for k, r in enumerate(srcs):
            kind, n = r if isinstance(r, tuple) else ('v', r)
            if k in bc:
                txt.append(f'{kind}[{n & ~1}:{(n & ~1) + 1}]'); sel.append(n & 1); selhi.append(n & 1)
            else:
                assert n % 2 == 0
                txt.append(f'{kind}[{n}:{n+1}]'); sel.append(0); selhi.append(1)
        assert d % 2 == 0
        m = ''
        if any(sel): m += ' op_sel:[' + ','.join(map(str, sel)) + ']'
        if not all(selhi): m += ' op_sel_hi:[' + ','.join(map(str, selhi)) + ']'
        if neg:
            ng = ','.join('1' if k in neg else '0' for k in range(len(srcs)))
            m += f' neg_lo:[{ng}] neg_hi:[{ng}]'
        self.a(f'v_pk_{op}_f32 v[{d}:{d+1}], ' + ', '.join(txt) + m)
    def dpp(self, op, d, s0, s1, ctl):
        self.a(f'{op}_dpp v{d}, v{s0}, v{s1} {ctl} row_mask:0xf bank_mask:0xf')
    def allreduce(self, v, t, op='v_add_f32', lo=True, b3=True):
        if lo:
            self.dpp(op, v, v, v, 'quad_perm:[1,0,3,2]')
            self.dpp(op, v, v, v, 'quad_perm:[2,3,0,1]')
            self.dpp(op, v, v, v, 'row_half_mirror')
        self.dpp(op, v, v, v, 'row_ror:8')
        self.a(f'v_mov_b32 v{t}, v{v}')
        self.a(f'v_permlane16_swap_b32 v{v}, v{t}')
        self.a(f'{op} v{v}, v{v}, v{t}')
        self.a(f'v_mov_b32 v{t}, v{v}')
        self.a(f'v_permlane32_swap_b32 v{v}, v{t}')
        self.a(f'{op} v{v}, v{v}, v{t}')
    def poll(self, loads, tagregs, tmp=None):
        a = self.a
        L, D = a.label('POLL'), a.label('PDONE')
        a(f'{L}:')
        loads()
        self.vm.wait_all()
        self.tagcheck(tagregs, tmp)
        a(f's_cbranch_vccz {D}')
        a(f's_add_u32 s{sSPIN}, s{sSPIN}, 1')
        a(f's_cmp_lt_u32 s{sSPIN}, {SPIN_LIMIT}')
        a(f's_cbranch_scc1 {L}')
        a(f'{D}:')
    def weave(self, fn, extras):
        a = self.a
        keep = a.items; a.items = []
        fn()
        body = a.items; a.items = keep
        extras = list(extras); n = len(extras)
        for i, it in enumerate(body):
            while extras and (n - len(extras)) * len(body) <= i * n: extras.pop(0)()
            a.items.append(it)
        for e in extras: e()
    def tagcheck(self, tagregs, tmp):
        a = self.a
        if tagregs[0] == 'nan':
            if len(tagregs) == 3: a(f'v_max_u32 v{tmp}, v{tagregs[1]}, v{tagregs[2]}')
            a(f'v_cmp_eq_u32 vcc, -1, v{tmp if len(tagregs) == 3 else tagregs[1]}')
        elif len(tagregs) == 1:
            a(f'v_cmp_ne_u32 vcc, s{sTAG}, v{tagregs[0]}')
        else:
            a(f'v_bitop3_b32 v{tmp}, v{tagregs[0]}, v{tagregs[1]}, s{sTAG} bitop3:0x7e')
            for t in tagregs[2:]: a(f'v_bitop3_b32 v{tmp}, v{tmp}, v{t}, s{sTAG} bitop3:0xf6')
            a(f'v_cmp_ne_u32 vcc, 0, v{tmp}')
    def try_load(self, loads, tagregs, tmp=None, between=None, pre=None):
        a = self.a
        n0 = len(self.vm.q)
        loads()
        self.vm.q[-1] = tg = ('try', a.label('T'))
        if between: between()
        self.vm.wait(tg)
        OK = a.label('TOK')
        self.tagcheck(tagregs, tmp)
        a(f's_cbranch_vccz {OK}')
        q, l = list(self.vm.q), list(self.lg.q)
        if pre: pre()
        self.poll(loads, tagregs, tmp)
        self.vm.q, self.lg.q = q, l
        a(f'{OK}:')
    def finish_load(self, tg, loads, tagregs, tmp=None, pre=None):
        a = self.a
        self.vm.wait(tg)
        OK = a.label('TOK')
        self.tagcheck(tagregs, tmp)
        a(f's_cbranch_vccz {OK}')
        q, l = list(self.vm.q), list(self.lg.q)
        if pre: pre()
        self.poll(loads, tagregs, tmp)
        self.vm.q, self.lg.q = q, l
        a(f'{OK}:')
    def spoll(self, loads, checks, work=None, pipe=0):
        a = self.a
        L, C, D = a.label('SPOLL'), a.label('SCHK'), a.label('SDONE')
        def issue(note=''):
            for d, n, so, imm in loads:
                op = {1: 'dword', 2: 'dwordx2', 4: 'dwordx4', 8: 'dwordx8'}[n]
                a(f's_load_{op} {sr(sPL + d, n)}, {sr(rWS, 2)}, s{so} offset:{imm} glc' + note)
        if pipe:
            self.lg.wait_all()
            for k in checks: a(f's_not_b32 s{sPL + k}, s{sTAG}')
            issue(' ; nowait')
            if work: work()
            a(f'{L}:')
            a(f's_add_u32 s{sSPIN}, s{sSPIN}, 1')
            a(f's_cmp_ge_u32 s{sSPIN}, {SPIN_LIMIT}')
            a(f's_cbranch_scc1 {D}')
            ks = list(checks)
            a(f's_xor_b32 s{XT[0]}, s{sPL + ks[0]}, s{sTAG} ; nowait')
            for k in ks[1:]:
                a(f's_xor_b32 s{XT[1]}, s{sPL + k}, s{sTAG} ; nowait')
                a(f's_or_b32 s{XT[0]}, s{XT[0]}, s{XT[1]}')
            a(f's_cbranch_scc0 {D}')
            issue(' ; nowait')
            a(f's_sleep {pipe}')
            a(f's_branch {L}')
            a(f'{D}:')
            return
        if work:
            issue(); work()
            a(f's_branch {C}')
        a(f'{L}:')
        issue()
        a(f'{C}:')
        a(f's_add_u32 s{sSPIN}, s{sSPIN}, 1')
        a(f's_cmp_ge_u32 s{sSPIN}, {SPIN_LIMIT}')
        self.lg.wait_all()
        a(f's_cbranch_scc1 {D}')
        for k in checks:
            a(f's_cmp_lg_u32 s{sPL + k}, s{sTAG}')
            a(f's_cbranch_scc1 {L}')
        a(f'{D}:')
    def inbox(self, box, n, checks=None, work=None, pipe=0):
        self.spoll([(0, n, sINB, box * 512)], range(n) if checks is None else checks, work, pipe)
    def va(self, dst, terms, sreg=None, const=0, tmp=None):
        a = self.a; vL = self.vL
        first = True
        for sh, bits, mult in terms:
            full = sh + bits >= 6
            src = vL
            t = dst if first else tmp
            if sh == 0 and full: pass
            elif full: a(f'v_lshrrev_b32 v{t}, {sh}, v{vL}'); src = t
            elif sh == 0: a(f'v_and_b32 v{t}, {(1 << bits) - 1}, v{vL}'); src = t
            else: a(f'v_bfe_u32 v{t}, v{vL}, {sh}, {bits}'); src = t
            p2 = mult & (mult - 1) == 0
            k = mult.bit_length() - 1
            if first:
                if p2 and sreg is not None: a(f'v_lshl_add_u32 v{dst}, v{src}, {k}, s{sreg}'); sreg = None
                elif p2 and k: a(f'v_lshlrev_b32 v{dst}, {k}, v{src}')
                elif p2:
                    if src != dst: a(f'v_mov_b32 v{dst}, v{src}')
                else: a(f'v_mul_u32_u24 v{dst}, {mult}, v{src}')
            else:
                assert p2
                a(f'v_lshl_add_u32 v{dst}, v{src}, {k}, v{dst}')
            first = False
        if sreg is not None: a(f'v_add_u32 v{dst}, s{sreg}, v{dst}')
        if const: a(f'v_add_u32 v{dst}, {const}, v{dst}')
    def push(self, vaddr, soff, nl, vtmp, lab, wave=0):
        a = self.a
        a(f's_cmp_lg_u32 s{sWAVE}, {wave}')
        a(f's_cbranch_scc1 {lab}')
        a(f'v_mov_b32 v{vtmp}, s{sTAG}')
        a(f's_mov_b32 exec_hi, 0')
        if nl < 32: a(f's_mov_b32 exec_lo, {(1 << nl) - 1}')
        self.bs(vtmp, 1, vaddr, rWS, soff, 0, 'sc1', count=False)
        a('s_mov_b64 exec, -1')
        a(f'{lab}:')
    def silu(self, v, t):
        a = self.a
        a(f'v_mul_f32 v{t}, s{sL2E}, v{v}')
        a(f'v_exp_f32 v{t}, -v{t}')
        a(f'v_add_f32 v{t}, 1.0, v{t}')
        a(f'v_rcp_f32 v{t}, v{t}')
        a(f'v_mul_f32 v{v}, v{v}, v{t}')
        self.round1(v)
    def gemv_ops(self, wregs, cregs, acc, t0, t1, packed):
        ops = []
        assert t0 % 2 == 0 and t1 == t0 + 1
        for i, (w, c) in enumerate(zip(wregs, cregs)):
            cp = f'v[{c & ~1}:{(c & ~1) + 1}]'
            for d in range(4):
                tt = t0 + 2 * (d & 1)
                ops.append(f'v_lshlrev_b32 v{tt}, 16, v{w+d}')
                ops.append(f'v_and_b32 v{tt+1}, s{sMASK}, v{w+d}')
                ac = f'v[{acc+2*d}:{acc+2*d+1}]'
                if not packed:
                    for h in range(2): ops.append(f'v_mul_f32 v{acc+2*d+h}, v{tt+h}, v{c}' if i == 0 else f'v_fmac_f32 v{acc+2*d+h}, v{tt+h}, v{c}')
                elif i == 0: ops.append(f'v_pk_mul_f32 {ac}, v[{tt}:{tt+1}], {cp} op_sel:[0,{c & 1}] op_sel_hi:[1,{c & 1}]')
                else: ops.append(f'v_pk_fma_f32 {ac}, v[{tt}:{tt+1}], {cp}, {ac} op_sel:[0,{c & 1},0] op_sel_hi:[1,{c & 1},1]')
        for i in range(4): ops.append(f'v_permlane32_swap_b32 v{acc+i}, v{acc+4+i}')
        for i in range(4): ops.append(f'v_add_f32 v{acc+i}, v{acc+i}, v{acc+4+i}')
        for i in range(2): ops.append(f'v_permlane16_swap_b32 v{acc+i}, v{acc+2+i}')
        for i in range(2): ops.append(f'v_add_f32 v{acc+i}, v{acc+i}, v{acc+2+i}')
        for i in range(2): ops.append(f'v_add_f32_dpp v{acc+i}, v{acc+i}, v{acc+i} row_ror:8 row_mask:0xf bank_mask:0xf')
        ops.append(f'v_mov_b32_dpp v{acc}, v{acc+1} quad_perm:[0,1,2,3] row_mask:0xf bank_mask:0xc')
        return ops
    def sum8(self, b):
        self.pk('add', b, b, b + 2); self.pk('add', b + 4, b + 4, b + 6); self.pk('add', b, b, b + 4)
        self.a(f'v_add_f32 v{b}, v{b}, v{b+1}')
    def softmax_pm(self, p, e, out, t, mid=None, part=0, split=0, done=None):
        a = self.a
        mx, mn, u0, u1, s0, s1 = t, t + 1, t + 2, t + 3, t + 4, t + 6
        if part != 2:
            self.round_list([p + i for i in range(16)])
            a(f'v_max3_f32 v{mx}, v{p}, v{p+1}, v{p+2}')
            a(f'v_min3_f32 v{mn}, v{p}, v{p+1}, v{p+2}')
            for i in range(3, 15, 2):
                a(f'v_max3_f32 v{mx}, v{mx}, v{p+i}, v{p+i+1}')
                a(f'v_min3_f32 v{mn}, v{mn}, v{p+i}, v{p+i+1}')
            a(f'v_max_f32 v{u0}, v{mx}, v{p+15}')
            a(f'v_min_f32 v{u1}, v{mn}, v{p+15}')
            a(f'v_max_f32 v{mx}, v{mx}, v{p+15}')
            a(f'v_min_f32 v{mn}, v{mn}, v{p+15}')
            a(f'v_permlane32_swap_b32 v{mx}, v{u0}')
            a(f'v_permlane32_swap_b32 v{mn}, v{u1}')
            a(f'v_max_f32 v{mx}, v{mx}, v{u0}')
            a(f'v_min_f32 v{mn}, v{mn}, v{u1}')
            self.pk('mul', mx, mx, ('s', sL2E), bc=(1,))
            for i in range(0, 16, 2):
                self.pk('fma', e + i, p + i, ('s', sL2E), mx, bc=(1, 2), neg=(2,))
                self.pk('fma', p + i, p + i, ('s', sL2E), mn, bc=(1, 2), neg=(0,))
        for i in range(split if part == 2 else 0, 16):
            if mid and i == mid[0]: mid[1]()
            if part == 1 and i == split: return
            a(f'v_exp_f32 v{e+i}, v{e+i}')
            a(f'v_exp_f32 v{p+i}, v{p+i}')
        self.pk('add', s0, e, e + 2); self.pk('add', s1, p, p + 2)
        for i in range(4, 16, 2):
            self.pk('add', s0, s0, e + i); self.pk('add', s1, s1, p + i)
        a(f'v_add_f32 v{u0}, v{s0}, v{s0+1}')
        a(f'v_add_f32 v{u1}, v{s1}, v{s1+1}')
        a(f'v_add_f32 v{mx}, v{s0}, v{s0+1}')
        a(f'v_add_f32 v{mn}, v{s1}, v{s1+1}')
        a(f'v_permlane32_swap_b32 v{mx}, v{u0}')
        a(f'v_permlane32_swap_b32 v{mn}, v{u1}')
        self.pk('add', mx, mx, u0)
        a(f'v_rcp_f32 v{mx}, v{mx}')
        a(f'v_rcp_f32 v{mn}, v{mn}')
        for gq, (src, sc) in enumerate(((e, mx), (e + 8, mx), (p, mn), (p + 8, mn))):
            for i in range(0, 8, 2): self.pk('mul', src + i, src + i, sc, bc=(1,))
            for i in range(4): a(f'v_cvt_pk_bf16_f32 v{out + 4*gq + i}, v{src + 2*i}, v{src + 2*i + 1}')
            if done: done(gq)
    def ln_stats(self, xp, t, m_out, sd_out, fill=()):
        a = self.a
        fill = list(fill)
        def pad(n):
            for _ in range(n):
                if fill: a(fill.pop(0))
        s, u = t, t + 4
        a(f'v_mov_b32 v{u}, 0x3f803f80')
        for i in range(8):
            k = 2 * (i & 1)
            a(f'v_dot2_f32_bf16 v{s+k}, v{xp+i}, v{u}, ' + ('0' if i < 2 else f'v{s+k}'))
            a(f'v_dot2_f32_bf16 v{s+k+1}, v{xp+i}, v{xp+i}, ' + ('0' if i < 2 else f'v{s+k+1}'))
        pad(3)
        self.pk('add', s, s, s + 2)
        for ctl in ('quad_perm:[1,0,3,2]', 'quad_perm:[2,3,0,1]', 'row_half_mirror', 'row_ror:8'):
            pad(2 if ctl.endswith('3,2]') else 1)
            self.dpp('v_add_f32', s, s, s, ctl); self.dpp('v_add_f32', s + 1, s + 1, s + 1, ctl)
        pad(2)
        a(f'v_permlane16_swap_b32 v{s}, v{s+1}')
        a(f'v_add_f32 v{u}, v{s}, v{s+1}')
        a(f'v_add_f32 v{s}, v{s}, v{s+1}')
        pad(2)
        a(f'v_permlane32_swap_b32 v{s}, v{u}')
        a(f'v_add_f32 v{s}, v{s}, v{u}')
        a(f'v_mul_f32 v{u}, 0x3a800000, v{s}')
        a(f'v_mul_f32 v{s}, 0x3a800000, v{s}')
        pad(2)
        a(f'v_permlane16_swap_b32 v{s}, v{u}')
        a(f'v_fma_f32 v{sd_out}, -v{s}, v{s}, v{u}')
        a(f'v_cvt_pk_bf16_f32 v{m_out}, 0, v{s}')
        a(f'v_max_f32 v{sd_out}, 0, v{sd_out}')
        self.round1(sd_out)
        a(f'v_add_f32 v{sd_out}, 0x3727c5ac, v{sd_out}')
        self.round1(sd_out)
        a(f'v_sqrt_f32 v{sd_out}, v{sd_out}')
        pad(99)
        self.round1(sd_out)

    def stat_math(self, s, u, m_out, sd_out):
        a = self.a
        a(f'v_fma_f32 v{sd_out}, -v{s}, v{s}, v{u}')
        a(f'v_cvt_pk_bf16_f32 v{m_out}, 0, v{s}')
        a(f'v_max_f32 v{sd_out}, 0, v{sd_out}')
        self.round1(sd_out)
        a(f'v_add_f32 v{sd_out}, 0x3727c5ac, v{sd_out}')
        self.round1(sd_out)
        a(f'v_sqrt_f32 v{sd_out}, v{sd_out}')
        self.round1(sd_out)
    def ln_stats2(self, x0, x1, t, m_out, sd_out):
        a = self.a
        s0, s1, q0, q1, u = t, t + 1, t + 2, t + 3, t + 4
        a(f'v_mov_b32 v{u}, 0x3f803f80')
        for i in range(8):
            for xx, s_, q_ in ((x0, s0, q0), (x1, s1, q1)):
                a(f'v_dot2_f32_bf16 v{s_}, v{xx+i}, v{u}, ' + ('0' if i == 0 else f'v{s_}'))
                a(f'v_dot2_f32_bf16 v{q_}, v{xx+i}, v{xx+i}, ' + ('0' if i == 0 else f'v{q_}'))
        a(f"""v_permlane32_swap_b32 v{s0}, v{s1}
        v_permlane32_swap_b32 v{q0}, v{q1}
        v_add_f32 v{s0}, v{s0}, v{s1}
        v_add_f32 v{q0}, v{q0}, v{q1}
        v_permlane16_swap_b32 v{s0}, v{q0}
        v_add_f32 v{s0}, v{s0}, v{q0}""")
        for ctl in ('quad_perm:[1,0,3,2]', 'quad_perm:[2,3,0,1]', 'row_half_mirror', 'row_ror:8'): self.dpp('v_add_f32', s0, s0, s0, ctl)
        a(f"""v_mul_f32 v{q0}, 0x3a800000, v{s0}
        v_mul_f32 v{s0}, 0x3a800000, v{s0}
        v_permlane16_swap_b32 v{s0}, v{q0}""")
        self.stat_math(s0, q0, m_out, sd_out)

    def build(self):
        a, V, vm, lg, o, S = self.a, self.V, self.vm, self.lg, self.o, self.S
        E2 = range(0, 16, 2)
        TL = o.get('tl', 0)
        HL = o.get('hl', 1)
        D2 = o.get('d2', 1)
        LCB = [(0, 4, 8 * 4096)] if TL else [(0, 3, 8 * 4096), (3, 1, 4096)]
        a(f'{NAME}:')
        a(f's_load_dwordx16 {sr(KA, 16)}, s[0:1], 0')
        a(f's_load_dwordx8 {sr(KA + 16, 8)}, s[0:1], 64')
        a(f's_load_dwordx2 {sr(rWS, 2)}, s[0:1], 104')
        a(f's_load_dwordx2 {sr(pDBG, 2)}, s[0:1], 96')
        a('s_cmp_ge_u32 s2, 256')
        a('s_cbranch_scc1 L_END')
        if self.prof:
            a(f's_memrealtime {sr(sCMP, 2)}')
            a(f's_memtime {sr(sTM, 2)}')
            a('v_mov_b32 v255, 0')
            a('v_mov_b32 v254, 0')
            self.stnames.append('start'); self.nst = 1
        if o.get('exfil'): a(f's_memrealtime {sr(sTM, 2)}')
        vL = self.vL = V.alloc()
        vL16 = V.alloc()
        vZ = V.alloc()
        vT = V.alloc(8)
        va = lambda dst, terms, sreg=None, const=0: self.va(dst, terms, sreg, const, vT + 5)
        a(f"""v_lshrrev_b32 v{vT}, 6, v0
        v_and_b32 v{vL}, 63, v0
        v_mov_b32 v{vZ}, 0
        v_readfirstlane_b32 s{sWAVE}, v{vT}
        v_lshlrev_b32 v{vL16}, 4, v{vL}""")
        xr = V.alloc(8); acc = V.alloc(8); wphi = V.alloc(8); fr = V.alloc(8); vq = V.alloc(8); vv = V.alloc(8)
        vWM = V.alloc(); vCo = V.alloc(); vWd = V.alloc(); vL8 = V.alloc(); vL32S = V.alloc(); vGA = V.alloc()
        vB = V.alloc(6, 1); vFG = V.alloc(); vFD = V.alloc(); vWo = V.alloc(); vPW = V.alloc(); vXF = V.alloc()
        S(sX, 'wg & 7'); S(sJ, 'wg >> 3')
        S(T2, '(x*4 + w)*64')
        S(T0, 'T2*6144 + (j ^ 1)*128')
        va(vWM, [(3, 3, 4 * 12288), (0, 3, 16)])
        va(vCo, [(3, 3, 8)], T2)
        S(T3, '((x*32 + j)*4 + w - 4)*4096')
        for srd, size in ((rWM, 12582912), (rX, 4194304), (rWS, WS_BYTES)):
            a(f's_mov_b32 s{srd+2}, {size}')
            a(f's_mov_b32 s{srd+3}, 0x20000')
        a(f's_getreg_b32 s{sXC}, hwreg(HW_REG_XCC_ID, 0, 3)')
        if o.get('fakexcc') is not None: a(f's_and_b32 s{sXC}, s{sXC}, {o["fakexcc"]}')
        a(f"""s_getpc_b64 {sr(sCMP, 2) if not self.prof else sr(sPL, 2)}""")
        S(T6, '(j*7 + w)*128')
        va(vT + 6, [(5, 1, 28672)], T6)
        a(f"""v_min_u32 v{vT+6}, CODE_KB, v{vT+6}
        s_cmp_ge_u32 s{sWAVE}, 4
        s_waitcnt lgkmcnt(0)""")
        if self.prof:
            a(f'v_writelane_b32 v255, s{sTM}, 0')
            a(f'v_writelane_b32 v255, s{sCMP}, 63')
            a(f'v_writelane_b32 v254, s{sCMP}, 0')
            a(f's_mov_b64 {sr(sCMP, 2)}, {sr(sPL, 2)}')
        if o.get('exfil'):
            for k in range(3): a(f'v_writelane_b32 v255, s{sTM}, {k}')
        self.stamp('karg')
        raw = V.alloc(16); cv = V.alloc(4); vTk = V.alloc(2)
        xs = V.alloc(16); st = V.alloc(4); mq = V.alloc(4); vMB = V.alloc(2)
        a(f"""s_mov_b64 {sr(rWM, 2)}, {sr(KA + 20, 2)}
        s_mov_b64 {sr(rX, 2)}, {sr(KA, 2)}
        s_load_dword s{sTAG}, {sr(rWS, 2)}, {NONCE}
        s_cbranch_scc1 L_FS""")
        def setup():
            for srd, size in ((rW, 6291456), (rWO, 2097152), (rWG, 7340032), (rWU, 7340032), (rWD, 7340032), (rOUT, 4194304)):
                a(f's_mov_b32 s{srd+2}, {size}')
                a(f's_mov_b32 s{srd+3}, 0x20000')
            for srd, k in ((rW, 2), (rWO, 6), (rWG, 12), (rWU, 14), (rWD, 16), (rOUT, 22)):
                a(f's_mov_b64 {sr(srd, 2)}, {sr(KA + k, 2)}')
            a(f"""s_mov_b32 s{sSPIN}, 0
            s_mov_b32 s{sMASK}, 0xffff0000
            s_mov_b32 s{sL2E}, 0x3fb8aa3b""")
            S(sKH, 'w >> 2')
            va(vT + 2, [(4, 1, 64)]); va(vWd, [(0, 3, 16)])
            a(f'v_xor_b32 v{vWd}, v{vWd}, v{vT+2}'); va(vT + 2, [(3, 3, 6144)]); a(f'v_add_u32 v{vWd}, v{vWd}, v{vT+2}')
            va(vL8, [(0, 6, 8)])
            va(vL32S, [(0, 5, 32)], None, SCR)
            S(T0, '(w & 3)*4 + SCR')
            va(vGA, [(4, 2, 32), (0, 3, 128), (3, 1, 16)], T0)
            S(T1, '((j >> 4)*128 + w*8 + x)*1024 + (j & 15)*64 + SINB' if TL else '((x & 6) + ((x & 1)*2 + (j >> 4))*64 + w*8)*1024 + (j & 15)*64 + SINB')
        def tag_hash():
            a(f"""s_mul_i32 s{sTAG}, s{sTAG}, 0x9e3779b1
            s_add_u32 s{sTAG}, s{sTAG}, 0x7f4a7c15""")
        def code_pf():
            a(f's_and_b32 s{sCMP}, s{sCMP}, 0xfffffc00')
            a(f'global_load_dword v{vTk}, v{vT+6}, {sr(sCMP, 2)}')
        wq = [(n, t) for n in range(16) for t in range(3)]
        def w_base(n, wexpr):
            if n < 4 and o.get('wxor', 1):
                if o.get('wxor', 1) < 3: S(T7, '((j >> 4)*2) ^ n' if o.get('wxor', 1) == 1 else o.get('wxe', '((j >> 4) + (x >> 2)*2) ^ n'), n=n)
                else:
                    S(T7, o.get('wxe', 'j & 3' if HL else '(j >> 4) + (x >> 2)*2'))
                    if n: a(f's_cmp_le_u32 s{T7}, {n - 1}'); a(f's_cselect_b32 s{T7}, {n}, {n - 1}')
                S(sU, f'(((T7 + u0) & 15)*8 + {wexpr})*(8*6144) + hp*128')
                S(T7, f'T7*SLOT + (({wexpr}) >> 1)*2080 + (({wexpr}) & 1)*1056')
            else:
                S(sU, f'(((u0 + n) & 15)*8 + {wexpr})*(8*6144) + hp*128', n=n)
                S(T7, f'(({wexpr}) >> 1)*2080 + (({wexpr}) & 1)*1056 + q', q=(n % 6) * SLOT)
        def w_slot(n, t):
            S('m0', 'T7 + q', q=t * SEC)
            self.dma(vWd, rW, sU, 0, o.get('wmod', ''), ('W', n))
            if t < 2: S(sU, 'u + 2048')
        def w_next(cnt=1):
            for _ in range(cnt):
                n, t = wq.pop(0)
                if t == 0: w_base(n, 'w')
                w_slot(n, t)
        wb = list(o['wburst'])
        def w_early():
            if not o.get('wearly'): return
            S(sHP, '(x & 3)*4 + ((j & 3) ^ q)', q=o.get('hpx', 2)); S(sU0, o.get('u0', 'j & 12'))
            w_next(o['wearly'])
        def st_prep():
            va(vT + 1, [(0, 2, 16)], None, L_ST)
            va(vT, [(0, 2, 16), (2, 1, 65536 if TL else 1024)])
            va(vT + 7, [(0, 5, 2048), (5, 1, 32)])
            va(vT + 2, [(0, 1, 64 * 512 if TL else 512), (1, 1, 256)])
            S(T2, ('((j >> 4)*128 + w*8 + x)*512' if TL else '((x & 6) + ((x & 1)*2 + (j >> 4))*64 + w*8)*512') + ' + ((j >> 2) & 3)*64 + (j & 3)*4 + 16 + INA')
        a(f'global_load_dwordx2 {vr(cv, 2)}, v{vCo}, {sr(pC, 2)}'); vm.issue('c')
        for i in range(4):
            self.bl(raw + 4 * i, 4, vWM, rWM, T0, 0, o.get('ntwm', 'nt'), ('wm', i))
            if i < 3: S(T0, 'T0 + 12288')
        a('s_barrier')
        if o.get('bar1', 1): a('s_barrier')
        code_pf(); vm.issue()
        setup()
        wq0 = list(wq); w_early(); wq[:] = wq0
        S(T0, '(((w*16 + ((j ^ 1) & 15))*2 + (j >> 4))*8 + x)*512 + AINB')
        S(T2, ('(((j ^ 1) & 15)*8 + w*2)*512' if TL else '(((j ^ 1) & 7)*8 + w*2 + ((j >> 3) & 1))*512') + ' + x*64 + (j >> 4)*4 + INA')
        va(vT + 6, [(0, 1, 128 * 512), (1, 1, 512)] if TL else [(0, 2, 64 * 512)])
        vm.wait('c')
        self.unpack(cv + 2, cv + 3, cv + 1)
        a(f'v_and_b32 v{cv+1}, s{sMASK}, v{cv}'); a(f'v_lshlrev_b32 v{cv}, 16, v{cv}')
        for i in range(4): self.silu(cv + i, vT + (i & 1))
        gops = self.gemv_ops([raw + 4 * i for i in range(4)], [cv + i for i in range(4)], acc, vT, vT + 1, True)
        for i in range(4):
            vm.wait(('wm', i))
            if i == 3: self.stamp('wmok')
            for s_ in gops[12 * i:12 * i + 12]: a(s_)
        for s_ in gops[48:]: a(s_)
        self.dw('ds_write_b32', vGA, acc, 1, L_A1 - SCR)
        self.barrier()
        def pair_sum(off):
            a(f'ds_read_b128 {vr(acc, 4)}, v{vL32S} offset:{off}')
            a(f'ds_read_b128 {vr(acc + 4, 4)}, v{vL32S} offset:{off + 16}')
            a('s_waitcnt lgkmcnt(0)')
            for b in (acc, acc + 4):
                a(f'v_add_f32 v{b}, v{b}, v{b+2}'); a(f'v_add_f32 v{b+1}, v{b+1}, v{b+3}')
            a(f"""v_add_f32 v{acc}, v{acc}, v{acc+1}
            v_add_f32 v{acc+2}, v{acc+4}, v{acc+5}
            v_mov_b32 v{acc+1}, s{sTAG}
            v_mov_b32 v{acc+3}, s{sTAG}
            s_mov_b32 exec_hi, 0""")
        tag_hash()
        pair_sum(L_A1 - SCR)
        self.bs(acc, 4, vL16, rWS, T0, 0, 'sc1')
        a('s_mov_b64 exec, 15')
        self.bs(acc + 1, 1, vT + 6, rWS, T2, 0, 'sc1')
        a('s_mov_b64 exec, -1')
        self.stamp('A1pub')
        if o.get('wpf', 0):
            S(T2, '(((xc >> 2)*2 + (xc & 1))*4 + (xc & 2))*128 + (j*32 + w*8)*6144')
            va(vT + 2, [(4, 2, 6144), (0, 4, 16)])
            for i in range(o['wpf']):
                S(T0, 'T2 + q', q=(i % 3) * 2048 + (i // 3) * 4 * 6144)
                self.bl(raw, 4, vT + 2, rW, T0, 0, o.get('wpfmod', ''))
        tl_ = o.get('tlb', '')
        if tl_:
            S(T2, 'wg*128'); va(vT + 2, [(0, 6, 1 << 21)], T2)
            tab = dict(W=rW, o=rWO, g=rWG, u=rWU, d=rWD, m=rWM, x=rX, O=rOUT)
            for k_, c_ in enumerate(tl_):
                a(f's_cmp_lg_u32 s{sWAVE}, {k_ & 3}')
                L_ = a.label('TLB'); a(f's_cbranch_scc1 {L_}')
                if c_ == 's':
                    a('s_mov_b64 exec, 0x1ffff'); self.bl(raw + 4, 1, vT + 2, rWS, '0', 0, '', None); vm.q.pop(); a('s_mov_b64 exec, -1')
                else: self.bl(raw + 4, 1, vT + 2, tab[c_], '0', 0, '', None); vm.q.pop()
                a(f'{L_}:')
        st_prep()
        a('s_branch L_FJ')
        qG = list(vm.q)
        a('L_FS:')
        vm.reset(); lg.reset()
        a('s_barrier')
        for i in range(4): self.bl(raw + 4 * i, 4, vL16, rX, T3, 1024 * i, o.get('xsmod', ''), 'xs')
        pw0 = o.get('pw0', 'ab')
        if 'a' in pw0:
            S(T4, '(wg*4 + w - 4)*128 + INA')
            for q in range(2): a(f's_load_dword s{sPL + q}, {sr(rWS, 2)}, s{T4} offset:{q * 64} glc')
        if 's' in pw0:
            S(T4, '(wg*4 + w - 4)*256 + SINB')
            for q in range(4): a(f's_load_dword s{sPL + 2 + q}, {sr(rWS, 2)}, s{T4} offset:{q * 64} glc')
        if 'b' in pw0:
            S(T4, '(wg*32 + w - 4)*128 + INB')
            for q in range(2): a(f's_load_dword s{sPL + q}, {sr(rWS, 2)}, s{T4} offset:{q * 64} glc ; nowait')
        a(f"""s_lshl_b32 s{T6}, s{sXC}, 5
        v_mov_b32 v{vTk}, 1
        v_mov_b32 v{vTk+1}, s{T6}""")
        if o.get('bar1', 1): a('s_barrier')
        a(f"""s_cmp_lg_u32 s{sWAVE}, 7
        s_cbranch_scc1 L_NOTK
        s_mov_b64 exec, 1
        global_atomic_add v{vTk}, v{vTk+1}, v{vTk}, {sr(pDBG, 2)} sc0 sc1
        s_mov_b64 exec, -1
        s_branch L_TK0
        L_NOTK:""")
        code_pf()
        a('L_TK0:')
        vm.issue('tk')
        setup()
        w_early()
        S(T0, '(w - 4)*16 + L_ST'); va(vT + 6, [(5, 1, 8)], T0)
        st_prep()
        a('s_barrier')
        vm.wait('xs')
        lg.wait_all()
        tag_hash()
        self.stamp('xsok')
        self.ln_stats2(raw, raw + 8, xs, st, st + 1)
        a(f"""v_lshrrev_b32 v{st}, 16, v{st}
        v_or_b32 v{st}, v{st}, v{st+1}
        v_mov_b32 v{st+1}, s{sTAG}""")
        self.dw('ds_write_b64', vT + 6, st, 2)
        a('L_FJ:')
        self.barrier()
        self.r128(st, vT + 1, 0, 'st')
        lg.wait('st')
        a('s_mov_b64 exec, 0xff')
        self.bs(st, 4, vT, rWS, T1, 0, 'sc1')
        a('s_mov_b64 exec, 15')
        self.bs(st + 1, 1, vT + 2, rWS, T2, 0, 'sc1')
        a('s_mov_b64 exec, -1')
        self.stamp('A2pub')
        a(f"""s_cmp_lg_u32 s{sWAVE}, 7
        s_cbranch_scc1 L_NOTK2
        s_mov_b32 s{T0}, 0
        s_waitcnt vmcnt({len(vm.q) - 1 - vm.q.index('tk')})
        L_TK:
        v_readfirstlane_b32 s{T2}, v{vTk}
        s_cmp_lt_u32 s{T2}, 32
        s_cbranch_scc1 L_TKOK
        v_mov_b32 v{vTk}, s{sTAG}
        s_mov_b64 exec, 1
        buffer_store_dword v{vTk}, v{vZ}, {sr(rWS, 4)}, 0 offen offset:{MARK} sc1
        s_mov_b64 exec, -1
        s_add_u32 s{T0}, s{T0}, 1
        s_cmp_lt_u32 s{T0}, 8
        s_cbranch_scc0 L_TKNO
        s_add_u32 s{sXC}, s{sXC}, 1
        s_and_b32 s{sXC}, s{sXC}, 7
        s_lshl_b32 s{T6}, s{sXC}, 5
        v_mov_b32 v{vTk}, 1
        v_mov_b32 v{vTk+1}, s{T6}
        s_mov_b64 exec, 1
        global_atomic_add v{vTk}, v{vTk+1}, v{vTk}, {sr(pDBG, 2)} sc0 sc1
        s_mov_b64 exec, -1
        s_waitcnt vmcnt(0)
        s_branch L_TK
        L_TKNO:
        s_and_b32 s{sXC}, s2, 7
        s_lshr_b32 s{T2}, s2, 3
        L_TKOK:
        s_lshl3_add_u32 s{T2}, s{T2}, s{sXC}""")
        if o.get('rawrole'): a(f's_mov_b32 s{T2}, s2')
        a(f"""v_mov_b32 v{vTk}, s{T2}
        ds_write_b32 v{vT+1}, v{vTk} offset:64
        L_NOTK2:""")
        self.barrier()
        a(f'ds_read_b32 v{mq}, v{vT+1} offset:64'); lg.issue('role')
        lg.wait('role')
        a(f'v_readfirstlane_b32 s2, v{mq}')
        self.stamp('role')
        V.release(raw, 16); V.release(cv, 4)
        S(T2, '(wg*8 + w)*64 + INA')
        ld_xt = lambda: [self.bl(xr + 4 * q, 4, vT + 7, rX, T5, 16 * q, o.get('xtmod', ''), 'xt') for q in range(2)]
        def role_prep():
            S(sX, 'wg & 7'); S(sJ, 'wg >> 3')
            S(sCB, 'j & 15' if TL else '(x & 1)*8 + (j & 7)')
            S(sRT, 'x*2 + (j >> 4)' if TL else '(x >> 1)*4 + (j >> 3)')
            S(sGTB, 'rt*4 + (w & 3)')
            S(sC32, 'cb*2 + kh')
            S(T5, 'gtb*65536 + c32*64')
            if not o.get('xtlate', 0): ld_xt()
            S(T0, '(((x >> 1)*16 + cb)*16 + w)*512 + AINB')
            S(T1, '(wg*4 + (w & 3))*256 + SINB')
            S(sR1, 'j & 15' if HL else '(x & 4)*2 + (j >> 2)'); S(sHP, '((x >> 2)*2 + (x & 1))*4 + (x & 2) + (j >> 4)' if HL else '(x & 3)*4 + ((j & 3) ^ 2)')
            S(sU0, o.get('u0', 'j & 12'))
            w_next(wb[0])
            S(sINB, '(wg*64 + w)*64 + INB')
            S(sKF, 'kh ^ (j >> 4)'); S(sROT, o.get('rot', '(((j >> 3) ^ j) & 1)*q + p'), q=4 if D2 else 8, p=8 * o.get('dflip', 1))
            S(sFS, 'x*7 + (j >> 2)'); S(sKQ, 'j & 3')
            va(vT + 4, [(0, 5, 8)])
            va(vT, [(0, 5, 16), (5, 1, 4096)])
            S(T3, 'w*4 + L_MP'); va(vT + 1, [(0, 6, 64)], T3)
            S(T3, 'kh*1024 + L_MP'); va(vT + 2, [(0, 4, 32), (5, 1, 512)], T3)
        self.spoll([(0, 8, T2, 0)], (0, 1, 4, 5, 6, 7), work=role_prep)
        self.stamp('apre')
        if o.get('abar', 2) == 1: a('s_barrier')
        st_ld = lambda: self.bl(st, 2, vT + 4, rWS, T1, 0, 'sc1', 'st')
        def st_fetch():
            st_ld()
            if o.get('abar', 2) == 2: a('s_barrier')
            if o.get('xtlate', 0): ld_xt()
            S(T3, 'hp*4096 + w*512')
            a(f'v_add_u32 v{vT+6}, s{T3}, v{vL16}')
            S('m0', 'w*512 + L_WPHI')
            a('s_mov_b32 exec_hi, 0')
            a(f'global_load_lds_dwordx4 v{vT+6}, {sr(pWPHI, 2)}'); vm.issue()
            a('s_mov_b32 exec_hi, -1')
            w_next(wb[1])
            S(T4, '(((rt*16 + cb)*4 + (w & 3))*2 + kh)*2048 + HF')
            va(vT + 6, [(0, 4, 16), (4, 1, 1024), (5, 1, 512)])
            S(T3, 'w*256 + L_MB'); va(vMB, [(0, 4, 4), (5, 1, 64)], T3); va(vMB + 1, [(5, 1, 64)], T3)
        self.try_load(lambda: self.bl(mq, 4, vT, rWS, T0, 0, 'sc1'), [mq + 1, mq + 3], vT + 3, st_fetch)
        self.stamp('modok')
        a(f'ds_write2_b32 v{vT+1}, v{mq}, v{mq+2} offset0:0 offset1:8'); lg.issue()
        if not o.get('xtlate', 0):
            for i in range(8): self.unpack(xs + 2 * i, xs + 2 * i + 1, xr + i)
        self.barrier()
        mp = V.alloc(16); hp = V.alloc(8)
        for i in (2, 3, 0, 1): self.r128(mp + 4 * i, vT + 2, (i >> 1) * 2048 + (i & 1) * 16, i >> 1)
        w_next(wb[2])
        self.finish_load('st', st_ld, [st + 1], None)
        if o.get('xtlate', 0):
            vm.wait('xt')
            for i in range(8): self.unpack(xs + 2 * i, xs + 2 * i + 1, xr + i)
        self.stamp('statok')
        self.unpack(st + 1, st, st)
        a(f'v_rcp_f32 v{st}, v{st}')
        for i in E2: self.pk('add', xs + i, xs + i, st + 1, bc=(1,), neg=(1,))
        lg.wait(1); self.sum8(mp + 8)
        self.round1(mp + 8)
        lg.wait(0); self.sum8(mp)
        a(f'v_add_f32 v{mp+8}, 1.0, v{mp+8}')
        self.round2(mp + 8, mp)
        PKM = o.get('pkm', 1)
        if PKM:
            mb = V.alloc(32)
            a(f'ds_write2_b32 v{vMB}, v{mp+8}, v{mp} offset0:0 offset1:32'); lg.issue()
            for q in range(8): self.r128(mb + 4 * q, vMB + 1, (q >> 2) * 128 + (q & 3) * 16, ('mb', q))
        for h in range(2):
            rg = range(8 * h, 8 * h + 8)
            self.round_list([xs + i for i in rg])
            for i in range(8 * h, 8 * h + 8, 2): self.pk('mul', xs + i, xs + i, st, bc=(1,))
            self.round_list([xs + i for i in rg])
        for h in range(2):
            rg = range(8 * h, 8 * h + 8)
            if PKM:
                lg.wait(('mb', 2 * h + 1))
                for i in range(8 * h, 8 * h + 8, 2): self.pk('mul', xs + i, xs + i, mb + i)
            else:
                for i in rg: self.dpp('v_mul_f32', xs + i, mp + 8, xs + i, f'row_newbcast:{i}')
            self.round_list([xs + i for i in rg])
            if PKM:
                lg.wait(('mb', 4 + 2 * h + 1))
                for i in range(8 * h, 8 * h + 8, 2): self.pk('add', xs + i, xs + i, mb + 16 + i)
            else:
                for i in rg: self.dpp('v_add_f32', xs + i, mp, xs + i, f'row_newbcast:{i}')
            for i in range(4 * h, 4 * h + 4): a(f'v_cvt_pk_bf16_f32 v{hp+i}, v{xs+2*i}, v{xs+2*i+1}')
            self.bs(hp + 4 * h, 4, vT + 6, rWS, T4, 256 * h, 'sc1', 'hs')
        if PKM: V.release(mb, 32)
        self.stamp('hst')
        w_next(wb[3])
        va(vB, [(5, 1, 2080), (2, 2, 128), (3, 1, 64), (0, 2, 8)])
        va(vB + 1, [(4, 1, 1056)])
        va(vB + 2, [(3, 1, 128)])
        a(f"""v_add_u32 v{vB}, v{vB}, v{vB+1}
        v_sub_u32 v{vB+1}, v{vB}, v{vB+2}
        v_add_u32 v{vB+1}, 64, v{vB+1}""")
        for q in (1, 2):
            for h in range(2): a(f'v_add_u32 v{vB+2*q+h}, {2*q*SLOT}, v{vB+h}')
        S(T1, 'kh*2048 + L_WPHI')
        va(vT, [(2, 2, 64), (4, 1, 32), (0, 2, 8), (5, 1, 512)], T1)
        va(vT + 1, [(0, 3, 4096), (3, 1, 128 * 4096)] if HL else [(0, 2, 8 * 4096), (2, 2, 4096)])
        S(T0, ('rt*32768' if HL else '((rt >> 3)*4 + (rt & 7)*32)*4096') + ' + (cb >> 1)*64 + (cb & 1)*4 + INB')
        va(vT + 2, [(4, 1, 64), (5, 1, 16)]); va(vWo, [(0, 3, 16)])
        a(f'v_xor_b32 v{vWo}, v{vWo}, v{vT+2}'); va(vT + 2, [(3, 3, 2048)]); a(f'v_add_u32 v{vWo}, v{vWo}, v{vT+2}')
        S(T1, '(w & 2)*32'); va(vT + 2, [(4, 1, 32)], T1); va(vFG, [(0, 3, 16)])
        a(f'v_xor_b32 v{vFG}, v{vFG}, v{vT+2}'); va(vT + 2, [(3, 3, 7168)]); a(f'v_add_u32 v{vFG}, v{vFG}, v{vT+2}')
        S(T1, '(w & 1)*128')
        va(vT + 2, [(5, 1, 64)], T1); va(vFD, [(0, 5, 16), (5, 1, 2048)])
        a(f'v_xor_b32 v{vFD}, v{vFD}, v{vT+2}')
        S(sFG, '(kq*8 + w)*(32*7168) + fs*128'); S(sFD, '(fs*8 + w)*16384 + kq*512')
        US = o.get('ush', 1)
        S(sMF, '(j >> 2) + q', q=US)
        a(f"""s_cmp_ge_u32 s{sMF}, 7
        s_cselect_b32 s{sMF}, {US - 7 & 0xffffffff}, {US}""")
        a(f"""s_cmp_ge_u32 s{sJ}, 28
        s_cselect_b32 s{rWG+2}, 0, s{rWG+2}
        s_cselect_b32 s{rWU+2}, 0, s{rWU+2}
        s_cselect_b32 s{rWD+2}, 0, s{rWD+2}""")
        if o.get('zm2'): a(f's_mov_b32 s{rWM+2}, 0')
        if o.get('zffn'):
            for r_ in (rWG, rWU, rWD): a(f's_mov_b32 s{r_+2}, 0')
        if o.get('zwo'): a(f's_mov_b32 s{rWO+2}, 0')
        vm.wait('hs')
        a('s_barrier')
        self.push(vT + 1, T0, 16, vT + 2, 'L_PB')
        self.stamp('hpub')
        V.release(xs, 16); V.release(mp, 16); V.release(hp, 8); V.release(st, 4); V.release(mq, 4); V.release(vTk, 2); V.release(vMB, 2)
        w_next(wb[4])
        for s in range(2):
            for u in range(2): self.tr(wphi + 4 * s + 2 * u, vT, s * 1024 + u * 256)
        AD, LOOK, LASTB = o['AD'], o.get('LOOK', 6), o['LASTB']
        accs = V.alloc(96)
        big = V.alloc(76)
        Br = big + 76 - 4 * (LOOK + 1)
        aslot = list(range(big, Br, 4)) + [fr, fr + 4, vq, vq + 4, vv, vv + 4, acc, acc + 4]
        assert AD <= len(aslot)
        S(T2, '(r1*64 + w)*4096 + HF')
        S(T0, '(w & 3)*4096 + L_XF'); a(f'v_add_u32 v{vXF}, s{T0}, v{vL16}')
        vXW = V.alloc(); vVW = V.alloc()
        va(vXW, [(0, 4, 16), (5, 1, 512), (4, 1, 8)], T0)
        S(T0, '(w & 3)*1024 + L_V'); va(vVW, [(0, 4, 32), (4, 2, 8)], T0)
        S(T0, '(w & 3)*1024 + kh*16384 + L_PHK'); va(vPW, [(0, 5, 32), (5, 1, 16)], T0)
        fq = ([(m, i) for i in range(4) for m in range(2)] if o.get('fmix', 1) else [(m, i) for m in range(2) for i in range(4)]) + [(2, i) for i in range(4)]
        freg = []
        def f_src(m, i, back=0, T0=T0):
            if m < 2: S(T0, 'fg + q' if m == 0 else 'mf*128 + fg + q', q=i * 8 * 7168 - back * 4 * 32 * 7168)
            else: S(T0, 'fd + q', q=i * 4096 - back * 4 * 16384)
            return (vFG, (rWG, rWU)[m]) if m < 2 else (vFD, rWD)
        def f_lds(m, i): return (L_GU + m * 32768 if m < 2 else L_DN) + i * 1024
        def ffn_reg(n):
            for _ in range(n):
                m, i = fq.pop(0)
                for back in range(2):
                    v, r = f_src(m, i, back)
                    self.bl(big + 8 * len(freg) + 4 * back, 4, v, r, T0, 0, o.get('ntffn', 'nt'), 'ffn')
                freg.append((m, i))
        def ffn_dma(n, T0=T0):
            for _ in range(n):
                m, i = fq.pop(0)
                if o.get('nofd'): continue
                v, r = f_src(m, i, 0, T0)
                S('m0', 'w1k*4 + q', q=f_lds(m, i))
                self.dma(v, r, T0, 0, o.get('ntffn', 'nt'), 'gu' if m < 2 else 'dn')
        S(sWB, 'w*16384' if D2 else '(rot*4 + w)*16384'); S(sWO2, '(j >> 4)*1048576 + cb*128'); S(sW1K, 'w*1024')
        def wo_dma(it, back=0, T0=T0):
            S(T0, '(((wb + q) & 0xfffff) ^ (rot*65536)) + (wo2 ^ h)' if D2 else '((wb + q) & 0xfffff) + (wo2 ^ h)', q=(8 * it - 4 * back) * 16384, h=(it >> 3) << 20)
            S('m0', 'w1k + q', q=WO_H0 + it * 8192 - 4096 * back)
            self.dma(vWo, rWO, T0, 0, '', 'wo')
        self.inbox(0, 2, work=lambda: w_next(wb[5]), pipe=o.get('pipeB', 0))
        assert len(wq) % 3 == 0 and 30 <= len(wq) <= (45, 36, 36, 42)[o.get('wxor', 1)]
        NPU = 16 - len(wq) // 3
        vm.wait(('W', (0, 2, 3, 1)[o.get('wxor', 1)]))
        a('s_barrier')
        self.stamp('hok')
        a(f"""s_cmp_ge_u32 s{sWAVE}, 4
        s_cbranch_scc1 L_HELP
        s_setprio 2""")
        q_hok = list(vm.q)
        if 'pad' in o:
            a('.p2align 6')
            for _ in range(o['pad']): a('s_nop 0')
        def a_load(sg):
            if sg % 4 == 0: S(T3, '((u0 + n) & q)*16384 + T2', n=sg // 4, q=o.get('amask', 15))
            self.bl(aslot[sg % AD], 4, vL16, rWS, T3, (sg % 4) * 1024, o.get('amod', 'sc1'), ('A', sg))
        CORD = [(1, 2), (1, 3), (1, 0), (1, 1)] + [(t, ct) for t in (0, 2) for ct in range(4)]
        WEV = o.get('wev', 2); NB = LOOK + 1
        def b_read(n, q):
            st_, c = divmod(n, 12); t, ct = CORD[c]
            slot = (st_ >> 1) % 6
            off = (slot & 1) * SLOT + t * SEC + (st_ & 1) * 4160 + (ct & 1) * 32 + q * 512
            self.tr(Br + 4 * (n % NB) + 2 * q, vB + 2 * (slot >> 1) + (ct >> 1), off, ('B', n))
        nxt = 0
        def a_more(lim):
            nonlocal nxt
            while nxt < min(lim, 64): a_load(nxt); nxt += 1
        a_more(2)
        for n in range(LOOK):
            for q in range(2): b_read(n, q)
        a_more(o.get('A0', 4))
        b14 = False
        for n in range(384):
            st_, c = divmod(n, 12); t, ct = CORD[c]
            if n % WEV == 0: lg.wait(('B', min(n + WEV - 1, 383)))
            for th in range(2):
                if c == 0: vm.wait(('A', 2 * st_ + (th if st_ < 2 or not o.get('vw1', 1) else 1)))
                d = accs + 32 * t + 16 * (ct >> 1) + 8 * (ct & 1) + 4 * th
                a(f'v_mfma_f32_16x16x32_bf16 {vr(d, 4)}, {vr(Br + 4*(n % NB), 4)}, {vr(aslot[(2*st_ + th) % AD], 4)}, ' + ('0' if st_ == 0 else vr(d, 4)))
                if n + LOOK < 384:
                    if th == 0 and (n + LOOK) % 24 == 0 and (n + LOOK) // 24 <= LASTB: a('s_barrier')
                    b_read(n + LOOK, th)
            if c in o.get('aat', (0, 3, 6, 9)): a_more(min(nxt + 1, 2 * st_ + AD))
            if nxt == 64 and not b14 and (n + LOOK) // 24 >= 13 and (n + LOOK) % 24:
                b14 = True; a('s_barrier')
        self.stamp('gemm1')
        aq, ak, av = accs, accs + 32, accs + 64
        def cvt8(d, s_, swap=True):
            for c in range(2):
                for th in range(2):
                    for ip in range(2): a(f'v_cvt_pk_bf16_f32 v{d + 4*c + 2*th + ip}, v{s_ + 8*c + 4*th + 2*ip}, v{s_ + 8*c + 4*th + 2*ip + 1}')
            if swap:
                for c in range(2):
                    for ip in range(2): a(f'v_permlane16_swap_b32 v{d + 4*c + ip}, v{d + 4*c + 2 + ip}')
        def put8(addr, d, off, oc_, ot):
            for c in range(2):
                for th in range(2): self.dw('ds_write_b64', addr, d + 4 * c + 2 * th, 2, off + c * oc_ + th * ot)
        cvt8(vv, ak + 16, False)
        put8(vXW, vv, 0, 1024, 256)
        KF = o.get('kflag', 1); assert LASTB == 14 and L_V + 16384 <= 2 * SLOT
        if KF:
            S(T0, 'w*4 + L_FLG')
            a(f"""v_mov_b32 v{vT}, s{T0}
            v_mov_b32 v{vT+1}, s{sTAG}""")
            self.dw('ds_write_b32', vT, vT + 1, 1)
        else: self.barrier()
        a('s_setprio 0')
        cvt8(fr, ak)
        pp = ak; ee = ak + 16
        def phi_logits(src):
            a(f'v_mfma_f32_32x32x16_bf16 {vr(pp, 16)}, {vr(wphi, 4)}, {vr(src, 4)}, 0')
            a(f'v_mfma_f32_32x32x16_bf16 {vr(pp, 16)}, {vr(wphi + 4, 4)}, {vr(src + 4, 4)}, {vr(pp, 16)}')
        phi_logits(fr)
        for h in range(2):
            cvt8(vv if h == 0 else vq, av + 16 * h, False)
            put8(vVW, vv if h == 0 else vq, h * 8192, 4096, 512)
        cvt8(fr, aq + 16, False)
        put8(vXW, fr, 2048, 1024, 256)
        cvt8(vq, aq)
        a('s_branch L_JOIN')
        a('L_HELP:')
        vm.q = [('W', 1)] * len(q_hok) if o.get('wxor', 1) == 1 else list(q_hok); lg.reset()
        m2w = accs; m2c = accs + 32; g4 = accs + 48
        def w_unit(n):
            for wexpr in ('w - 4', 'w'):
                w_base(n, wexpr)
                for t in range(3):
                    w_slot(n, t)
                    if o.get('pace', 0) and n >= 6: a(f's_sleep {o["pace"]}')
        for n in range(NPU, 6): w_unit(n)
        S(T0, '((j & 3)*4 + w - 4)*128' if HL else '((x & 3)*4 + w - 4)*128')
        va(vCo, [(3, 3, 16)], T0)
        va(vWM, [(3, 3, 8 * 12288), (0, 3, 16)])
        S(T4, 'T0*6144 + (((j >> 2) & 3)*16 + x*2 + (j >> 4))*128 + 4096' if HL else 'T0*6144 + (j*2 + (x >> 2))*128 + 4096')
        a(f'global_load_dwordx4 {vr(m2c + 8, 4)}, v{vCo}, {sr(pC, 2)}'); vm.issue('m2c')
        m2l = list(range(8)); wol = [9, 10, 11, 12]; pwl = list(range(1, 8)); sil = list(range(8))
        m2ops = self.gemv_ops([m2w + 4 * i for i in range(8)], [m2c + i for i in range(8)], acc, vT, vT + 1, False)
        m2pos = 0
        ML = o.get('mlate', 1)
        m2q = accs + (16 if ML else 64); wr1 = m2q + 8; vM2 = m2q + 9
        TL_, TA, TB, TC, LMT = (T7, T1, sU, sWC, GS + 12288) if ML else (T5, T0, T1, T2, L_MT)
        ld_m2 = lambda: [self.bl(m2q + 4 * q, 4, vM2, rWS, TL_, q * 1024, 'sc1', 'm2q') for q in range(2)]
        def m2_final():
            self.finish_load('m2q', ld_m2, [m2q + 1, m2q + 3, m2q + 5, m2q + 7], vT)
            q0, q1, q2, q3 = m2q, m2q + 1, m2q + 2, m2q + 3
            S(TA, '(w & 3)*128 + q', q=LMT); va(vT, [(0, 5, 4)], TA)
            S(TB, 'w & 3')
            a(f"""v_add_f32 v{q0}, v{m2q}, v{m2q+4}
            v_add_f32 v{q1}, v{m2q+2}, v{m2q+6}
            v_add_f32 v{q2}, v{m2q}, v{m2q+4}""".replace(f'v_add_f32 v{q2}, v{m2q}, v{m2q+4}', f'v_mov_b32 v{q2}, v{q0}'))
            a(f"""v_mov_b32 v{q3}, v{q1}
            s_cmp_eq_u32 s{TB}, 2
            s_cselect_b32 s{TC}, 1.0, 0
            v_permlane32_swap_b32 v{q0}, v{q2}
            v_permlane32_swap_b32 v{q1}, v{q3}""")
            self.pk('add', q0, q0, q2)
            self.round2(q0, q1)
            a(f"""v_add_f32 v{q0}, s{TC}, v{q0}
            v_add_f32 v{q1}, s{TC}, v{q1}
            v_cvt_pk_bf16_f32 v{q2}, v{q0}, v{q1}""")
            self.dw('ds_write_b32', vT, q2, 1)
            a('s_cbranch_scc0 L_NOG')
            g0, g1, gh, gl = m2q + 4, m2q + 5, m2q + 6, m2q + 7
            self.unpack(q0, q1, q2); self.unpack(g0, g1, wr1)
            self.pk('mul', g0, g0, q0)
            a(f'v_cvt_pk_bf16_f32 v{gh}, v{g0}, v{g1}')
            self.unpack(q0, q1, gh)
            self.pk('add', q0, g0, q0, neg=(1,))
            a(f"""v_cvt_pk_bf16_f32 v{gl}, v{q0}, v{q1}
            v_add_f32 v{q0}, v{g0}, v{g1}
            ds_write2_b32 v{vT}, v{gh}, v{gl} offset0:64 offset1:96
            ds_write_b32 v{vT}, v{wr1} offset:512""")
            for ctl in ('quad_perm:[1,0,3,2]', 'quad_perm:[2,3,0,1]', 'row_half_mirror', 'row_ror:8'): self.dpp('v_add_f32', q0, q0, q0, ctl)
            S(TA, '(rt*16 + cb)*64 + GR')
            a(f"""v_mov_b32 v{q2}, v{q0}
            v_mov_b32 v{q1}, s{sTAG}
            v_permlane16_swap_b32 v{q0}, v{q2}
            v_add_f32 v{q0}, v{q0}, v{q2}
            v_mov_b32 v{q3}, s{sTAG}
            s_mov_b64 exec, 15""")
            self.bs(q0, 4, vL16, rWS, TA, 0, 'sc1', count=False)
            a("""s_mov_b64 exec, -1
        L_NOG:""")
        def m2_fetch():
            va(vM2, [(0, 5, 16), (5, 1, 512)])
            S(TL_, '((w & 3)*16 + cb)*2048 + MODP2')
            ld_m2()
        def act(op, k):
            nonlocal m2pos
            kind, n = op[0], int(op[1:] or 1)
            if kind == 'm':
                for _ in range(2 * n):
                    i = m2l.pop(0)
                    self.bl(m2w + 4 * i, 4, vWM, rWM, T4, 0, o.get('ntm2', 'nt'), ('m2', i))
                    if m2l: S(T4, 'T4 + 12288')
            elif kind == 'f': ffn_reg(n)
            elif kind == 'o':
                assert k >= 13
                for _ in range(n):
                    it = wol.pop(0); wo_dma(it, 1); wo_dma(it)
            elif kind == 'p':
                a('s_waitcnt lgkmcnt(0)')
                for q in range(n):
                    b = pwl.pop(0)
                    a(f's_load_dword s{sPL + 2*q}, {sr(rWS, 2)}, s{sINB} offset:{b * 512} glc')
                    a(f's_load_dword s{sPL + 2*q + 1}, {sr(rWS, 2)}, s{sINB} offset:{b * 512 - 256} glc')
            elif kind == 'q':
                S(T0, 'fs*8192 + (w - 4)*256 + HGR')
                a('s_waitcnt lgkmcnt(0)')
                for q in range(4): a(f's_load_dword s{sPL + q}, {sr(rWS, 2)}, s{T0} offset:{q * 2048 + 1024 + 252} glc')
            elif kind == 'z':
                for i in range(4): a(f'v_mov_b32 v{g4+i}, -1')
                if n == 1:
                    for we in ('w - 4', 'w'):
                        S(T0, f'(((r1*4 + (w & 3))*16 + hp)*2 + (({we}) >> 2))*2048 + OF')
                        for q in range(2): self.bs(g4, 4, vL16, rWS, T0, 1024 * q, 'sc1', 'pzo')
                else:
                    for we in ('w - 4', 'w'):
                        S(T0, f'((hp*8 + {we})*32 + r1)*1024 + KVP'); S(T1, 'T0 + 16384')
                        self.bs(g4, 4, vL16, rWS, T0, 0, 'sc1', 'pz'); self.bs(g4, 4, vL16, rWS, T1, 0, 'sc1', 'pz')
                    S(T0, '((hp*8 + w - 4)*16 + r1)*64 + ZP')
                    va(vT + 2, [(0, 2, 16), (2, 1, 4096)])
                    a('s_mov_b64 exec, 0xff')
                    self.bs(g4, 4, vT + 2, rWS, T0, 0, 'sc1', 'pz')
                    a('s_mov_b64 exec, -1')
            elif kind == 'M': m2_fetch()
            elif kind == 'R':
                S(T0, 'cb*128'); va(vT, [(0, 5, 4)], T0)
                a(f'global_load_dword v{wr1}, v{vT}, {sr(pWR, 2)}'); vm.issue()
            elif kind == 'N': m2_final()
            elif kind == 'K':
                S(T0, '(hp*16 + r1)*1024 + (w & 3)*256 + KIN'); S(T1, 'hp*128 + CFL')
                a(f'v_lshlrev_b32 v{vWM}, 7, v{vL}')
                a('s_mov_b64 exec, 3')
                self.bl(vWM, 1, vWM, rWS, T0, 0, '')
                self.bl(vCo, 1, vZ, rWS, T1, 0, '')
                a('s_mov_b64 exec, -1')
            elif kind == 'h':
                S(T0, '(fs*4 + kq)*2048 + (w & 1)*1024 + HGR'); S(T1, '(rt*16 + cb)*2048 + (w & 1)*1024 + STAT')
                if TL: a(f's_bitcmp1_b32 s{sWAVE}, 1'); a(f's_cselect_b32 s{T0}, s{T1}, s{T0}')
                self.bl(m2c + 12, 4, vL16, rWS, T0, 0, '')
            elif kind == 's':
                vm.wait('m2c')
                for _ in range(n):
                    i = sil.pop(0)
                    a(f'v_and_b32 v{m2c+i}, s{sMASK}, v{m2c+8+i//2}' if i & 1 else f'v_lshlrev_b32 v{m2c+i}, 16, v{m2c+8+i//2}')
                    self.silu(m2c + i, vT + (i & 1))
            elif kind == 'g':
                assert not sil
                for _ in range(n):
                    vm.wait(('m2', m2pos // 16))
                    for s_ in m2ops[m2pos:m2pos + 16]: a(s_)
                    m2pos += 16
            elif kind == 'r':
                assert m2pos == 128
                for s_ in m2ops[128:]: a(s_)
                self.dw('ds_write_b32', vGA, acc, 1, L_M2 - SCR)
                lg.wait_all()
            elif kind == 'P':
                a(f"""s_cmp_lg_u32 s{sWAVE}, 4
                s_cbranch_scc1 L_M2F""")
                S(T0, '((((j >> 2) & 3)*16 + x*2 + (j >> 4))*4 + (j & 3))*512 + MODP2')
                pair_sum(L_M2 - SCR)
                self.bs(acc, 4, vL16, rWS, T0, 0, 'sc1', count=False)
                a('s_mov_b32 exec_hi, -1')
                a('L_M2F:')
            else: raise ValueError(op)
        sched = {int(k): v.split() for k, v in o['sched'].items()}
        for op in sched.get(0, []): act(op, 0)
        wsch = {int(k): v for k, v in o.get('wsch', {k: 6 for k in range(2, 12)}).items()}
        hq = [(n, we, t) for n in range(6, 16) for we in ('w - 4', 'w') for t in range(3)]
        assert sum(wsch.values()) == 60
        for k in range(1, LASTB + 1):
            if k == 14: a('s_barrier')
            assert not any(n <= (15 if k == LASTB else k) for n, _, _ in hq)
            for kk in (range(k, 16) if k == LASTB else [k + 1 if k < 3 and o.get('wxor', 1) == 3 else k]): vm.wait(('W', kk))
            if o.get('ust'): self.stamp(f'w{k}')
            a('s_barrier')
            if o.get('ust'): self.stamp(f'u{k}')
            ops = sched.get(k, []) if k < 14 else []
            if k == 13 and KF:
                S(T0, '(w - 4)*4 + L_FLG')
                a(f"""v_mov_b32 v{vT+6}, s{T0}
                v_not_b32 v{vT+7}, s{sTAG}""")
                self.dw('ds_write_b32', vT + 6, vT + 7, 1)
                lg.wait_all()
            for op in ops:
                if op[0] == '<': act(op[1:], k)
            for _ in range(wsch.get(k, 0)):
                n, we, t = hq.pop(0)
                assert n - 4 <= k
                if t == 0: w_base(n, we)
                w_slot(n, t)
            for op in ops:
                if op[0] != '<': act(op, k)
        assert LASTB in (13, 14)
        if LASTB == 13: a('s_barrier')
        for op in sched.get(14, []): act(op, 14)
        if KF:
            a('L_KF:')
            a(f'ds_read_b32 v{vT+1}, v{vT+6}')
            a(f"""s_add_u32 s{sSPIN}, s{sSPIN}, 1
            s_cmp_ge_u32 s{sSPIN}, {SPIN_LIMIT}
            s_waitcnt lgkmcnt(0)
            s_cbranch_scc1 L_KFD
            v_cmp_ne_u32 vcc, s{sTAG}, v{vT+1}
            s_cbranch_vccnz L_KF
            L_KFD:""")
            lg.reset()
        else: self.barrier()
        for q in range(2): self.r128(fr + 4 * q, vXF, q * 1024)
        lg.wait_all()
        phi_logits(fr)
        for op in sched.get(15, []): act(op, 15)
        assert not m2l or o.get('nom2')
        assert 8 * len(freg) <= 76
        a('L_JOIN:')
        pzq = list(vm.q)
        vm.reset(); lg.q = [None]
        V.release(vXW); V.release(vVW); V.release(vB, 6); V.release(vWd); V.release(vGA); V.release(vL32S); V.release(acc, 8)
        kw = o.get('kweave', ''); fall = []; fb0 = big + 8 * len(freg); nfa = kw.count('f')
        def kw_op(c_):
            if c_ == 'o': wo_dma(wol.pop(0), 0, T6)
            else:
                m, i = fq.pop(0); v, r = f_src(m, i, 0, T6)
                self.bl(fb0 + 4 * len(fall), 4, v, r, T6, 0, o.get('ntffn', 'nt')); fall.append((m, i))
        V.release(fb0 + 4 * nfa, 76 - 8 * len(freg) - 4 * nfa)
        ph = aq; fx = aq + 16
        vPA = V.alloc(); vPB = V.alloc()
        S(T0, 'w*4096 + L_PHK'); a(f'v_add_u32 v{vPA}, s{T0}, v{vL8}')
        S(T0, 'kh*8192 + L_V'); a(f'v_add_u32 v{vPB}, s{T0}, v{vL8}')
        S(T0, '((hp*8 + w)*32 + r1)*1024 + KVP'); S(T2, 'T0 + 16384')
        S(T3, '(hp*8 + w)*1024 + ZP'); S(T1, 'r1*64 + T3')
        assert not kw
        self.softmax_pm(pp, ee, ph, vT, done=lambda fb: self.dw('ds_write_b128', vPW, ph + 4 * fb, 4, fb * 4096))
        ones = fr
        for i in range(4): a(f'v_mov_b32 v{ones+i}, 0x3f803f80')
        self.stamp('ksm')
        self.barrier()
        self.stamp('phik')
        tb7 = V.alloc(8); tb4 = tb7 + 4
        def tb_read():
            S(T5, 'kh*64 + q', q=LMT); va(tb7 + 3, [(0, 3, 4), (5, 1, 32)], T5)
            for q, t in ((0, 0), (1, 4), (2, 5), (4, 1), (5, 2), (6, 3), (7, 6)): self.dr('ds_read_b32', tb7 + q, 1, tb7 + 3, t * 128)
        if not ML: tb_read()
        fragA = [ee + 4 * i for i in range(4)]
        fragB = [av + 4 * i for i in range(8)]
        kvd = vv; zd = fr + 4
        def kvm(u):
            lg.wait(('kv', u))
            for db in range(2):
                a(f'v_mfma_f32_16x16x32_bf16 {vr(kvd + 4*db, 4)}, {vr(fragA[u], 4)}, {vr(fragB[2*u+db], 4)}, ' + ('0' if u == 0 else vr(kvd + 4*db, 4)))
            a(f'v_mfma_f32_16x16x32_bf16 {vr(zd, 4)}, {vr(fragA[u], 4)}, {vr(ones, 4)}, ' + ('0' if u == 0 else vr(zd, 4)))
        for ts in range(4):
            self.tr(fragA[ts], vPA, ts * 1024, ('kv', ts)); self.tr(fragA[ts] + 2, vPA, ts * 1024 + 512, ('kv', ts))
            for db in range(2):
                self.tr(fragB[2*ts+db], vPB, db * 4096 + ts * 1024, ('kv', ts)); self.tr(fragB[2*ts+db] + 2, vPB, db * 4096 + ts * 1024 + 512, ('kv', ts))
            if ts >= 2: kvm(ts - 2)
        va(vPW, [(0, 4, 8 * 4096)] if HL else [(0, 3, 32 * 4096), (3, 1, 4 * 4096)])
        S(T4, '(wg & q)*4096 + (r1 >> 1)*64 + (r1 & 1)*4 + INB + 512', q=0x87 if HL else 0x1b)
        kvm(2); kvm(3)
        a(f"""s_cmp_lt_u32 s{sWAVE}, 4
        s_cbranch_scc1 L_NOQX
        ds_read_b128 {vr(vq, 4)}, v{vXF} offset:2048
        ds_read_b128 {vr(vq + 4, 4)}, v{vXF} offset:3072
        L_NOQX:""")
        if 'pz' in pzq: a(f's_waitcnt vmcnt({pzq[::-1].index("pz")})')
        self.bs(kvd, 4, vL16, rWS, T0, 0, 'sc1', 'kvs')
        self.bs(kvd + 4, 4, vL16, rWS, T2, 0, 'sc1', 'kvs')
        if o.get('zperm', 1):
            a(f'v_lshlrev_b32 v{vT}, 6, v{vL}')
            for i in range(4): a(f'ds_bpermute_b32 v{zd+i}, v{vT}, v{zd+i}')
            a("""s_waitcnt lgkmcnt(0)
            s_mov_b64 exec, 15""")
            self.bs(zd, 4, vL16, rWS, T1, 0, 'sc1', 'kvs')
        else:
            a('s_mov_b32 exec_lo, 0x00010001')
            a('s_mov_b32 exec_hi, 0x00010001')
            self.bs(zd, 4, vL, rWS, T1, 0, 'sc1', 'kvs')
        a('s_mov_b64 exec, -1')
        lg.wait_all()
        phi_logits(vq)
        self.stamp('kvst')
        wl = wol + [2, 3, 4, 5, 6, 7, 8, 13, 14, 15, 0, 1]
        kp = av; zz = av + 16; g4 = vv
        vKP = V.alloc()
        va(vKP, [(3, 3, 1024), (0, 3, 16)])
        wo1 = lambda: wo_dma(wl.pop(0), 0, T6)
        keep = a.items; a.items = []
        self.softmax_pm(pp, ee, ph, vv)
        qsm = a.items; a.items = keep
        qcost = [2 if it[1].is_trans or 'permlane' in it[1].mn else 1 for it in qsm]
        qtot = sum(qcost); qdone = [0]
        def q_slice(upto):
            while qsm and qdone[0] < qtot * upto / 100:
                a.items.append(qsm.pop(0)); qdone[0] += qcost.pop(0)
        qs = o.get('qs', (35, 85, 100))
        CL = o.get('cl', (0, 1)); assert CL[1]
        q_slice(qs[0])
        S(T5, 'hp*128 + CFL'); S(T1, 'r1*8 + T5')
        vCF = V.alloc(); cf = V.alloc()
        va(vCF, [(0, 4, 8)])
        vm.wait('kvs')
        a('s_barrier')
        if CL[0]:
            a(f"""s_cmp_eq_u32 s{sLOC}, 0
            s_cbranch_scc1 L_PCG
            s_cmp_lg_u32 s{sWAVE}, 0
            s_cbranch_scc1 L_PC
            v_mov_b32 v{cf}, s{sTAG}
            s_mov_b64 exec, 1""")
            self.bs(cf, 1, vZ, rWS, T1, 0, '', count=False)
            a("""s_mov_b64 exec, -1
            s_branch L_PC
            L_PCG:""")
        self.push(vPW, T4, 16, vPB, 'L_PC')
        self.stamp('kvpub')
        assert HL and not CL[0]
        if ML:
            a(f"""s_cmp_lt_u32 s{sWAVE}, 4
            s_cbranch_scc1 L_NOM""")
            m2_fetch()
            a('L_NOM:')
        S(T0, '(hp*16 + r1)*16384 + w*128 + KVP')
        S(T2, '(hp*16 + r1)*1024 + w*128 + KIN'); S(T4, 'T4 + 6*512')
        def c1_work():
            self.weave(lambda: q_slice(qs[1]), [wo1] * o['wowin'][0])
            if ML:
                a(f"""s_cmp_lt_u32 s{sWAVE}, 4
                s_cbranch_scc1 L_NOG""")
                q_ = list(vm.q); m2_final(); vm.q = q_
            self.stamp('cw')
        if CL[0]:
            ld_cf = lambda: self.bl(cf, 1, vCF, rWS, T5, 0, 'sc1', 'cf')
            if o.get('cfpre', 1): ld_cf()
            c1_work()
            a(f"""s_cmp_lg_u32 s{sLOC}, 0
            s_cbranch_scc1 L_C1L""")
            q_ = list(vm.q)
            self.inbox(1, 2)
            a("""s_barrier
            s_branch L_C1D
            L_C1L:""")
            if o.get('cfpre', 1): self.finish_load('cf', ld_cf, [cf])
            else: self.poll(ld_cf, [cf])
            vm.q = q_
            a('L_C1D:')
        else:
            self.inbox(1, 2, work=c1_work)
            a('s_barrier')
        V.release(vCF); V.release(vWM); V.release(vCo)
        self.stamp('kvok')
        S(T5, 'T0 + 8192')
        ld_kp = lambda: (self.bl(kp, 4, vKP, rWS, T0, 0, 'sc1', 'kp'), self.bl(kp + 4, 4, vKP, rWS, T5, 0, 'sc1', 'kp'))
        ld_z = lambda: self.bl(zz, 4, vL16, rWS, T3, 0, 'sc1', 'z')
        self.bl(cf, 1, vZ, rWS, '0', MARK, 'sc1')
        ld_kp(); ld_z()
        S(T1, 'w*32 + L_ZF'); va(vT + 2, [(0, 2, 8), (5, 1, 4)], T1)
        S(T1, 'w*1024 + L_KVF'); va(vT + 1, [(0, 4, 16), (5, 1, 512), (4, 1, 8)], T1)
        S(T1, 'kh*128 + L_ZF'); va(vT + 3, [(5, 1, 16)], T1)
        S(T1, 'kh*4096 + L_KVF'); a(f'v_add_u32 v{vPA}, s{T1}, v{vL16}')
        def red4(r, ctls):
            for i in range(2): a(f'v_permlane32_swap_b32 v{r+i}, v{r+2+i}')
            self.pk('add', r, r, r + 2)
            for ctl in ctls:
                for i in range(2): self.dpp('v_add_f32', r + i, r + i, r + i, ctl)
            for i in range(2): a(f'v_mov_b32 v{r+2+i}, v{r+i}')
            for i in range(2): a(f'v_permlane16_swap_b32 v{r+i}, v{r+2+i}')
            self.pk('add', r, r, r + 2)
            a(f'v_cvt_pk_bf16_f32 v{r}, v{r}, v{r+1}')
        self.weave(lambda: q_slice(qs[2]), [wo1] * o['wowin'][1])
        vm.wait('kp')
        a(f'v_cmp_eq_u32 vcc, s{sTAG}, v{cf}')
        a(f's_cmp_eq_u32 vcc_lo, 0')
        a(f's_cselect_b32 s{sLOC}, {o.get("local", 1)}, 0')
        self.pk('add', kp, kp, kp + 4); self.pk('add', kp + 2, kp + 2, kp + 6)
        red4(kp, ['row_ror:8'])
        kc = V.alloc(5, 4)
        a(f"""v_mov_b32 v{kc}, v{kp}
        v_mov_b32 v{kc+2}, v{kp}
        v_mov_b32 v{kc+1}, s{sTAG}
        v_mov_b32 v{kc+3}, s{sTAG}
        v_permlane32_swap_b32 v{kc}, v{kc+2}
        v_add_u32 v{kc+4}, s{T2}, v{vL16}
        s_mov_b64 exec, 0xff""")
        self.bs2([(kc, 4, vL16, T2, 0)])
        a("""s_mov_b64 exec, -1
        s_cbranch_scc1 L_PC2""")
        a('s_barrier')
        self.push(vPW, T4, 16, vPB, 'L_PC2')
        self.stamp('c2pub')
        kf = av; zf = av + 16; num = pp; den = ee
        k2 = av + 8
        S(T0, '(hp*8 + w)*2048 + KIN')
        ld_k2 = lambda: [self.bl(k2 + 4 * q, 4, vL16, rWS, T0, q * 1024, 'sc1') for q in range(2)]
        def z_work():
            vm.wait('z')
            red4(zz, ['row_ror:4', 'row_ror:8'])
            self.dw('ds_write_b32', vT + 2, zz, 1)
            q_slice(100)
            self.stamp('c2w')
        ZP_ = o.get('zpre', 1)
        if ZP_: z_work()
        a(f"""s_cmp_lg_u32 s{sLOC}, 0
        s_cbranch_scc1 L_C2L""")
        l_ = list(lg.q)
        self.inbox(7, 2)
        lg.q = l_
        a('L_C2L:')
        self.try_load(ld_k2, [k2 + 1, k2 + 3, k2 + 5, k2 + 7], vT, None if ZP_ else z_work)
        for db in range(2):
            a(f'ds_write2_b32 v{vT+1}, v{k2+4*db}, v{k2+4*db+2} offset0:{64*db} offset1:{64*db+1}'); lg.issue()
        self.barrier()
        self.stamp('kvred')
        for fb in range(4): self.r128(zf + 4 * fb, vT + 3, fb * 32, ('zf', fb))
        for fb in range(4): self.r128(kf + 4 * fb, vPA, fb * 1024, ('kf', fb))
        for fb in range(4):
            lg.wait(('zf', fb))
            a(f'v_mfma_f32_32x32x16_bf16 {vr(den, 16)}, {vr(zf + 4*fb, 4)}, {vr(ph + 4*fb, 4)}, ' + ('0' if fb == 0 else vr(den, 16)))
        for fb in range(4):
            lg.wait(('kf', fb))
            a(f'v_mfma_f32_32x32x16_bf16 {vr(num, 16)}, {vr(kf + 4*fb, 4)}, {vr(ph + 4*fb, 4)}, ' + ('0' if fb == 0 else vr(num, 16)))
        if ML: tb_read()
        for _ in range(o['wowin'][2]): wo1()
        S(T0, '(((r1*4 + (w & 3))*16 + hp)*2 + kh)*2048 + OF')
        va(vT + 4, [(0, 4, 16), (4, 1, 1024), (5, 1, 256)])
        self.round1(den)
        a(f'v_add_f32 v{den}, 0x358637bd, v{den}')
        self.round1(den)
        a(f'v_rcp_f32 v{den}, v{den}')
        for h in range(2):
            self.round_list([num + i for i in range(8 * h, 8 * h + 8)])
            for i in range(8 * h, 8 * h + 8, 2): self.pk('mul', num + i, num + i, den, bc=(1,))
            for i in range(4 * h, 4 * h + 4): a(f'v_cvt_pk_bf16_f32 v{vq+i}, v{num+2*i}, v{num+2*i+1}')
            self.bs(vq + 4 * h, 4, vT + 4, rWS, T0, 512 * h, 'sc1', 'os')
        self.stamp('ost')
        for r, n in ((fr, 8), (vv, 8), (vPW, 1), (vXF, 1), (vPA, 1), (vPB, 1), (vKP, 1), (accs, 96), (wphi, 8)):
            V.release(r, n)
        assert GS == 0
        vG16 = vL16
        vBa = V.alloc(4); xf = V.alloc(16)
        S(T4, 'kh*(65536 + 64) + WO_H0')
        va(vBa, [(5, 1, 2048), (4, 1, 512), (2, 2, 128), (3, 1, 64), (1, 1, 32), (4, 1, 16), (0, 1, 8)])
        a(f'v_xor_b32 v{vBa}, s{T4}, v{vBa}')
        for q, x_ in ((1, 16), (2, 64), (3, 80)): a(f'v_xor_b32 v{vBa+q}, {x_}, v{vBa}')
        assert WO_H1 == WO_H0 + 65536
        va(vT + 1, LCB)
        S(T2, ('((r1 & 1)*128 + (r1 >> 1))*4096' if TL else '((r1 >> 2)*2 + (r1 & 3)*64)*4096') + (' + ((hp >> 3)*4 + (hp & 3))*64 + (((hp >> 2) ^ p) & 1)*4 + INB + 1024' if D2 else ' + (hp >> 1)*64 + (hp & 1)*4 + INB + 1024'), p=o.get('dflip', 1))
        gaf = V.alloc(16); gp = V.alloc(16); gr = V.alloc(2); vGR = V.alloc(); cn = V.alloc(2)
        def expand(dst, t):
            for i in range(8):
                self.dpp('v_mul_u32_u24', dst + 2 * i, t, cn, f'row_newbcast:{i}')
                self.dpp('v_and_b32', dst + 2 * i + 1, t, cn + 1, f'row_newbcast:{i}')
        a(f"""v_mov_b32 v{cn}, 0x10000
        v_mov_b32 v{cn+1}, s{sMASK}""")
        for i in range(8): self.unpack(xf + 2 * i, xf + 2 * i + 1, xr + i)
        lg.wait_all()
        expand(gaf, tb7)
        S(T6, '(gtb*2 + kf)*32768 + OF')
        va(vGR, [(0, 4, 64)])
        vm.wait('os')
        self.barrier()
        self.push(vT + 1, T2, 16, vT + 2, 'L_PD')
        self.stamp('opub')
        def c_clean():
            if CL[1]:
                a('s_mov_b64 exec, 0xff')
                self.bs(kc, 4, kc + 4, rWS, '0', 0, 'sc1')
                a('s_mov_b64 exec, -1')
            if CL[0]:
                S(T0, 'hp*128 + r1*8 + CFL')
                a(f"""s_cmp_lg_u32 s{sWAVE}, 0
                s_cbranch_scc1 L_NOCC
                v_mov_b32 v{cf}, s{sTAG}
                s_mov_b64 exec, 1""")
                self.bs(cf, 1, vZ, rWS, T0, 0, 'sc1', count=False)
                a("""s_mov_b64 exec, -1
                L_NOCC:""")
        if o.get('ccat', 3) == 0: c_clean()
        V.release(vq, 8)
        late_wo = bool(wl)
        while wl: wo_dma(wl.pop(0))
        V.release(vWo)
        MS = o.get('msum', 1); vSG = V.alloc(); assert MS and not TL
        def d_work():
            for k in range(2):
                for i in range(8): a(f'v_mov_b32_dpp v{gp + 8*k + i}, v{tb7 + 1 + k} row_newbcast:{i} row_mask:0xf bank_mask:0xf')
            if MS:
                a(f"""v_and_b32 v{vT}, 3, v{vL}
                v_cmp_eq_u32 vcc, 1, v{vT}
                v_cmp_eq_u32 {sr(sCMP, 2)}, 0, v{vT}
                v_mov_b32 v{vT+1}, 0x3f803f80""")
                for i in range(8): a(f'v_cndmask_b32 v{gp+i}, v{gp+8+i}, v{gp+i}, vcc')
                for i in range(8): a(f'v_cndmask_b32 v{gp+i}, v{gp+i}, v{vT+1}, {sr(sCMP, 2)}')
            S(T0, 'w*4096'); a(f'v_add_u32 v{vT}, s{T0}, v{vL16}')
            S(T0, '(w ^ 4)*4096'); va(vT + 1, [(0, 4, 16), (4, 1, 1024), (5, 1, 512)], T0)
            S(T0, 'kh*2048 + (w & 3)*512 + L_SP'); va(vT + 2, [(0, 5, 16), (5, 1, 8)], T0)
            S(T0, 'kh*64 + L_TB'); va(vT + 3, [(0, 3, 4), (5, 1, 32)], T0)
            a(f'v_add_u32 v{vT+4}, {L_SP}, v{vL16}')
            va(vT + 6, LCB)
            S(T4, 'rt*32768 + w*256 + STAT'); va(vSG, [(0, 4, 16), (4, 2, 2048)])
            S(T1, '(rt*16 + cb)*2048 + STAT')
            S(T3, '((rt & 3)*64 + (rt >> 2)*2)*4096 + (cb >> 1)*64 + (cb & 1)*4 + INB + 1536')
            if o.get('stouch', TL):
                S(T2, '(rt*16 + cb)*2048 + w*256 + STAT')
                a(f'v_lshlrev_b32 v{gr}, 7, v{vL}')
                a('s_mov_b64 exec, 3')
                self.bl(gr, 1, gr, rWS, T2, 0, '')
                a('s_mov_b64 exec, -1')
            if late_wo or o.get('stouch', TL): vm.wait_all()
            self.stamp('dw')
        AD2 = o['AD2']
        LK2 = o.get('LK2', 4); NB2 = LK2 + 1
        accA = V.alloc(16); accB = V.alloc(16); Ar = V.alloc(4 * AD2); Br = V.alloc(4 * NB2)
        def b2_read(n, q):
            st_, c = divmod(n, 4)
            self.tr(Br + 4 * (n % NB2) + 2 * q, vBa + (c ^ 2), st_ * 4096 + q * 1024, ('B', n))
        def a2_load(s):
            if s % 2 == 0: S(T7, '(rot ^ n)*2048 + T6' if D2 else '((rot + n) & 15)*2048 + T6', n=(s // 2) & o.get('a2mask', 15))
            self.bl(Ar + 4 * (s % AD2), 4, vL16, rWS, T7, (s % 2) * 1024, o.get('a2mod', 'sc1'), ('A', s))
        self.inbox(2, 2, [0] if D2 else None, work=d_work)
        a('s_barrier')
        self.stamp('ook')
        if o.get('prio2', 1):
            a(f"""s_cmp_lt_u32 s{sWAVE}, 4
            s_cbranch_scc1 L_P2
            s_setprio {o.get('prio2', 1)}
            L_P2:""")
        nx2 = 0
        def a2_more(lim):
            nonlocal nx2
            while nx2 < min(lim, 32):
                if nx2 == 16 and D2:
                    a(f"""s_cmp_eq_u32 s{sPL + 1}, s{sTAG}
                    s_cbranch_scc1 L_D2""")
                    l_ = list(lg.q)
                    self.inbox(2, 2, [1])
                    lg.q = l_
                    a("""L_D2:
                    s_barrier""")
                a2_load(nx2); nx2 += 1
                if nx2 == 32:
                    ld_gr()
                    if o.get('ccat', 3) == 1: c_clean()
        S(T5, 'rt*1024 + GR')
        ld_gr = lambda: self.bl(gr, 2, vGR, rWS, T5, 0, 'sc1', 'gr')
        a2_more(2)
        for n in range(LK2):
            for q in range(2): b2_read(n, q)
        a2_more(o.get('A20', 4))
        for n in range(64):
            st_, c = divmod(n, 4)
            if n % o.get('wev2', 1) == 0: lg.wait(('B', min(n + o.get('wev2', 1) - 1, 63)))
            for th in range(2):
                if c == 0: vm.wait(('A', 2 * st_ + (th if st_ == 0 or not o.get('vw2', 1) else 1)))
                d = (accB, accA)[c >> 1] + 8 * (c & 1) + 4 * th
                a(f'v_mfma_f32_16x16x32_bf16 {vr(d, 4)}, {vr(Br + 4*(n % NB2), 4)}, {vr(Ar + 4*((2*st_ + th) % AD2), 4)}, ' + ('0' if st_ == 0 else vr(d, 4)))
                if n + LK2 < 64: b2_read(n + LK2, th)
            if n == o.get('prio2n', 18): a('s_setprio 0')
            if c in o.get('a2at', (0, 1)): a2_more(min(nx2 + 1, 2 * st_ + AD2))
            if c == 3 and AD2 == 4: a2_more(2 * st_ + 6)
        self.stamp('gemm2')
        if o.get('prio2', 1): a('s_setprio 0')
        for q in range(4): self.dw('ds_write_b128', vT, accB + 4 * q, 4, L_EXCH - GS + q * 1024)
        for i in range(8): a(f'v_permlane16_swap_b32 v{accA + 8*(i >> 2) + (i & 3)}, v{accA + 8*(i >> 2) + 4 + (i & 3)}')
        sm = Br
        fd = list(o['fdma']); assert sum(fd) == len(fq)
        self.stamp('exw')
        self.barrier()
        self.stamp('ex1')
        for q in range(4): self.r128(accB + 4 * q, vT + 1, L_EXCH - GS + (q >> 1) * 2048 + (q & 1) * 256, ('ex', q))
        ffn_dma(fd[0], T2)
        for h in range(2):
            for q in (2 * h, 2 * h + 1):
                lg.wait(('ex', q))
                self.pk('add', accA + 4 * q, accA + 4 * q, accB + 4 * q); self.pk('add', accA + 4 * q + 2, accA + 4 * q + 2, accB + 4 * q + 2)
            rg = range(8 * h, 8 * h + 8)
            self.round_list([accA + i for i in rg])
            for i in range(8 * h, 8 * h + 8, 2): self.pk('mul', accA + i, accA + i, gaf + i)
            self.round_list([accA + i for i in rg])
            for i in range(8 * h, 8 * h + 8, 2): self.pk('add', accA + i, accA + i, xf + i)
            for i in range(4 * h, 4 * h + 4): a(f'v_cvt_pk_bf16_f32 v{xr+i}, v{accA+2*i}, v{accA+2*i+1}')
        self.stamp('x1c')
        if MS:
            for t in range(2): a(f'v_mfma_f32_32x32x16_bf16 {vr(accB, 16)}, {vr(gp + 4*t, 4)}, {vr(xr + 4*t, 4)}, ' + ('0' if t == 0 else vr(accB, 16)))
            for i in range(8): a(f'v_dot2_f32_bf16 v{sm + (i & 1)}, v{xr+i}, v{xr+i}, ' + ('0' if i < 2 else f'v{sm + (i & 1)}'))
            a(f"""v_add_f32 v{sm+2}, v{sm}, v{sm+1}
            v_add_f32 v{sm}, v{sm}, v{sm+1}
            v_permlane32_swap_b32 v{sm}, v{sm+2}
            s_mov_b32 exec_lo, 0
            v_add_f32 v{accB}, v{sm}, v{sm+2}
            v_mov_b32 v{accB+1}, v{accB+2}
            s_mov_b32 exec_lo, -1""")
            self.dw('ds_write_b64', vT + 2, accB, 2)
        else:
            for i in range(8):
                for d, b in ((sm, one), (sm + 2, xr + i), (sm + 1, gp + i), (sm + 3, gp + 8 + i)):
                    a(f'v_dot2_f32_bf16 v{d}, v{xr+i}, v{b}, ' + ('0' if i == 0 else f'v{d}'))
            a(f"""v_permlane32_swap_b32 v{sm}, v{sm+2}
            v_permlane32_swap_b32 v{sm+1}, v{sm+3}""")
            self.pk('add', sm, sm, sm + 2)
            self.dw('ds_write_b64', vT + 2, sm, 2)
        for q in range(4): self.dw('ds_write_b32', vT + 3, tb4 + q, 1, 128 * q)
        self.barrier()
        self.stamp('x1st')
        PR = o.get('crit', 3)
        a(f"""s_cmp_lg_u32 s{sWAVE}, 0
        s_cbranch_scc1 L_PE""")
        if PR: a(f's_setprio {PR}')
        for q in range(4): a(f'ds_read_b128 {vr(accB + 4*q, 4)}, v{vT+4} offset:{(q & 1) * 2048 + (q >> 1) * 1024}')
        for h in range(2):
            b = accB + 8 * h
            a(f's_waitcnt lgkmcnt({2 - 2*h})')
            self.pk('add', b, b, b + 4); self.pk('add', b + 2, b + 2, b + 6)
            a(f"""v_add_f32 v{b+1}, v{b+1}, v{b+3}
            v_mov_b32 v{b+3}, s{sTAG}""")
        if TL:
            self.bs2([(accB + 8 * h, 4, vL16, T0, 1024 * h) for h in range(2)])
            a('s_cbranch_scc1 L_PE')
        else:
            for h in range(2): self.bs(accB + 8 * h, 4, vL16, rWS, T1, 1024 * h, 'sc1', count=False)
        a('s_mov_b64 exec, 0xffff')
        self.bs(accB + 3, 1, vT + 6, rWS, T3, 0, 'sc1', count=False)
        if PR: a('s_setprio 0')
        a("""s_mov_b64 exec, -1
        L_PE:""")
        self.stamp('x1pub')
        if o.get('ccat', 3) == 2: c_clean()
        V.release(accA, 16); V.release(accB, 16); V.release(Ar, 4 * AD2); V.release(Br, 4 * NB2); V.release(vBa, 4); V.release(xf, 16); V.release(gaf, 16); V.release(gp, 16)
        x1 = V.alloc(16); hh = V.alloc(16); mf = V.alloc(32); sg = V.alloc(16); op = V.alloc(8)
        st = V.alloc(2); vRid = V.alloc(); ck = V.alloc(4); vOT = V.alloc()
        ct = V.alloc(12, 4)
        def e_work():
            S(T3, '(w & 3)*(32*144) + kh*64'); va(vOT, [(0, 5, 144), (5, 1, 32)], T3)
            for q in range(2): self.dw('ds_write_b128', vOT, xr + 4 * q, 4, L_XT + 16 * q)
            a(f'v_add_u32 v{vOT}, {L_OT}, v{vOT}')
            S(T2, '4094 - (rt*8 + w)*32'); va(vRid, [(0, 4, 2)]); a(f'v_sub_u32 v{vRid}, s{T2}, v{vRid}')
            S(T2, 'w*128 + L_ST2'); va(vT + 4, [(0, 4, 8)], T2)
            S(T2, '(w & 3)*256 + L_ST2'); va(vT + 6, [(0, 5, 8)], T2)
            va(vT + 7, [(0, 3, 8)], None, L_K1)
            self.finish_load('gr', ld_gr, [gr + 1])
            for ctl in ('quad_perm:[1,0,3,2]', 'quad_perm:[2,3,0,1]', 'row_half_mirror', 'row_ror:8'): self.dpp('v_add_f32', gr, gr, gr, ctl)
            a(f"""s_cmp_lg_u32 s{sWAVE}, 1
            s_cbranch_scc1 L_NOCT""")
            va(vT + 1, [(0, 4, 8)], None, L_TB)
            a(f"""ds_read_b64 {vr(ct + 2, 2)}, v{vT+1}
            ds_read_b64 {vr(ct + 6, 2)}, v{vT+1} offset:128
            ds_read_b64 {vr(ct + 8, 2)}, v{vT+1} offset:384
            s_waitcnt lgkmcnt(0)""")
            for b in (ct, ct + 4):
                self.unpack(b, b + 1, b + 2); self.unpack(b + 2, b + 3, b + 3)
            a('L_NOCT:')
            S(T2, 'w*8 + L_K1'); a(f'v_mov_b32 v{vT+1}, s{T2}')
            va(vT + 2, [(0, 2, 64 * 4096), (2, 2, 2 * 4096)])
            S(T1, '((cb & 7)*8 + (cb >> 3))*4096 + (rt >> 1)*64 + (rt & 1)*16 + INB + 2560')
        def f_pre(part):
            if part == 0:
                a(f"""s_cmp_lt_u32 s{sWAVE}, 4
                s_cbranch_scc1 L_NOST""")
                S(T0, '(w - 4)*4096 + L_GU')
                a(f'v_add_u32 v{vT}, s{T0}, v{vL16}')
                a(f'v_add_u32 v{vT+3}, {L_DN - L_GU}, v{vT}')
                for n, (m, i) in enumerate(freg):
                    for back in range(2):
                        self.dw('ds_write_b128', vT if m < 2 else vT + 3, big + 8 * n + 4 * back, 4, f_lds(m, i) - (L_GU if m < 2 else L_DN) + (1 - back) * 16384)
                a('L_NOST:')
                if fall:
                    S(T0, 'w*4096 + L_GU'); a(f'v_add_u32 v{vT}, s{T0}, v{vL16}')
                    for n, (m, i) in enumerate(fall):
                        assert m < 2
                        self.dw('ds_write_b128', vT, fb0 + 4 * n, 4, f_lds(m, i) - L_GU)
                return
            for i in range(8): self.unpack(x1 + 2 * i, x1 + 2 * i + 1, xr + i)
            expand(mf, tb4); expand(mf + 16, tb4 + 1)
        if TL:
            a(f"""s_cmp_lg_u32 s{sLOC}, 0
            s_cbranch_scc1 L_ELOC""")
            self.inbox(3, 2)
            a("""s_barrier
            L_ELOC:""")
        else:
            ffn_dma(fd[1])
            self.inbox(3, 2, work=lambda: (e_work(), f_pre(0)))
            a('s_barrier')
        self.stamp('x1ok')
        def ld_sg():
            for q in range(4):
                S(T0, 'T4 + q', q=q * 8192)
                self.bl(sg + 4 * q, 4, vSG, rWS, T0, 0, 'sc1')
        self.try_load(ld_sg, [sg + 3, sg + 7, sg + 11, sg + 15], vT, e_work if TL else lambda: f_pre(1))
        V.release(vSG)
        self.stamp('x1ld')
        A_, B_, C_, U_ = sg, sg + 1, sg + 2, sg + 3
        self.pk('add', sg, sg, sg + 4); self.pk('add', sg + 8, sg + 8, sg + 12)
        a(f"""v_add_f32 v{C_}, v{C_}, v{sg+6}
        v_add_f32 v{sg+10}, v{sg+10}, v{sg+14}""")
        self.pk('add', sg, sg, sg + 8)
        a(f"""v_add_f32 v{C_}, v{C_}, v{sg+10}
        v_mov_b32 v{U_}, v{B_}
        v_permlane32_swap_b32 v{A_}, v{C_}
        v_permlane32_swap_b32 v{B_}, v{U_}
        v_add_f32 v{A_}, v{A_}, v{C_}
        v_add_f32 v{B_}, v{B_}, v{U_}
        v_permlane16_swap_b32 v{A_}, v{B_}
        v_add_f32 v{U_}, v{A_}, v{B_}
        v_add_f32 v{A_}, v{A_}, v{B_}
        v_permlane16_swap_b32 v{A_}, v{U_}
        v_mul_f32 v{C_}, 0x3a800000, v{A_}
        v_mul_f32 v{A_}, 0x3a800000, v{A_}
        v_permlane32_swap_b32 v{A_}, v{C_}""")
        self.stat_math(A_, C_, st, st + 1)
        a(f"""v_rcp_f32 v{st+1}, v{st+1}
        v_fma_f32 v{U_}, -v{st}, v{gr}, v{U_}
        v_mul_f32 v{U_}, v{U_}, v{st+1}""")
        self.dw('ds_write_b64', vT + 4, st, 2)
        a(f"""s_movk_i32 s{T0}, 0xfff
        v_ashrrev_i32 v{A_}, 31, v{U_}
        v_or_b32 v{A_}, 0x80000000, v{A_}
        v_xor_b32 v{A_}, v{A_}, v{U_}
        v_bfi_b32 v{ck}, s{T0}, v{vRid}, v{A_}""")
        def top2(ctls, first):
            for n, ctl in enumerate(ctls):
                if n == 0 and first:
                    self.dpp('v_min_u32', ck + 1, ck, ck, ctl); self.dpp('v_max_u32', ck, ck, ck, ctl)
                    continue
                self.dpp('v_min_u32', ck + 2, ck, ck, ctl); self.dpp('v_max_u32', ck + 1, ck + 1, ck + 1, ctl); self.dpp('v_max_u32', ck, ck, ck, ctl)
                a(f'v_max_u32 v{ck+1}, v{ck+1}, v{ck+2}')
        top2(('row_ror:8', 'row_ror:4', 'row_ror:2', 'row_ror:1'), True)
        self.dw('ds_write_b64', vT + 1, ck, 2)
        def side2():
            if o.get('htouch', 1):
                S(T2, '(fs*4 + kq)*2048 + w*256 + HGR')
                vDum = V.alloc()
                a(f'v_lshlrev_b32 v{vDum}, 7, v{vL}')
                a('s_mov_b64 exec, 3')
                self.bl(vDum, 1, vDum, rWS, T2, 0, '')
                a('s_mov_b64 exec, -1')
            ffn_dma(fd[2], T2)
        if o.get('f2pos', 0) == 0: side2()
        self.barrier()
        self.stamp('ln2')
        if PR:
            a(f"""s_cmp_ge_u32 s{sWAVE}, 2
            s_cbranch_scc1 L_PR1
            s_setprio {PR}
            L_PR1:""")
        self.dr('ds_read_b64', ck, 2, vT + 7, 0, 'k'); self.dr('ds_read_b64', st, 2, vT + 6, 0, 's')
        lg.wait('k')
        top2(('quad_perm:[1,0,3,2]', 'quad_perm:[2,3,0,1]', 'row_half_mirror'), False)
        a(f"""v_or_b32 v{ck+2}, 1, v{ck+1}
        v_mov_b32 v{ck+1}, s{sTAG}
        v_mov_b32 v{ck+3}, s{sTAG}
        s_cmp_lg_u32 s{sWAVE}, 0
        s_cbranch_scc1 L_NOF
        s_mov_b64 exec, 0xffff""")
        self.bs(ck, 4, vT + 2, rWS, T1, 0, 'sc1', count=False)
        a("""s_mov_b64 exec, -1
        L_NOF:""")
        self.stamp('Fpub')
        a(f"""s_cmp_lg_u32 s{sWAVE}, 1
        s_cbranch_scc1 L_NOC
        v_and_b32 v{vT}, 16, v{vL}
        v_cmp_eq_u32 vcc, 0, v{vT}
        v_cndmask_b32 v{vT}, v{ck+2}, v{ck}, vcc
        v_not_b32 v{vT}, v{vT}
        v_bfe_u32 v{vT}, v{vT}, 1, 7
        v_lshlrev_b32 v{vT+2}, 3, v{vT}
        v_mul_u32_u24 v{vT}, 144, v{vT}
        v_add_u32 v{vT+2}, {L_ST2}, v{vT+2}""")
        va(vT + 1, [(0, 4, 8)])
        cx, cs, ch = sg, sg + 4, sg + 8
        a(f"""v_add_u32 v{vT}, v{vT}, v{vT+1}
        ds_read_b64 {vr(cs, 2)}, v{vT+2}
        ds_read_b64 {vr(cx, 2)}, v{vT} offset:{L_XT}""")
        va(vT + 2, [(0, 4, 16), (4, 1, 16384), (5, 1, 4096)])
        va(vT + 3, [(4, 1, 16384), (0, 2, 16)])
        S(T0, 'rt*32768 + cb*256 + CAND'); S(T3, 'rt*32768 + cb*64 + 8192 + CAND')
        a(f"""v_mov_b32 v{cx+3}, s{sTAG}
        s_waitcnt lgkmcnt(0)""")
        self.unpack(ch, ch + 1, cx); self.unpack(ch + 2, ch + 3, cx + 1)
        for i in (0, 2): self.pk('add', ch + i, ch + i, cs, bc=(1,), neg=(1,))
        self.round_list([ch + i for i in range(4)])
        for i in (0, 2): self.pk('mul', ch + i, ch + i, cs + 1, bc=(1,))
        self.round_list([ch + i for i in range(4)])
        for i in (0, 2): self.pk('mul', ch + i, ch + i, ct + 4 + i)
        self.round_list([ch + i for i in range(4)])
        for i in (0, 2): self.pk('add', ch + i, ch + i, ct + i)
        a(f"""v_mov_b32 v{cx+2}, v{cx+1}
        v_mov_b32 v{cx+1}, s{sTAG}
        s_mov_b32 exec_hi, 0
        v_cvt_pk_bf16_f32 v{cx}, v{ch}, v{ch+1}
        v_cvt_pk_bf16_f32 v{cx+2}, v{ch+2}, v{ch+3}
        s_mov_b32 exec_hi, -1
        v_dot2_f32_bf16 v{cs}, v{cx}, v{ct+8}, 0
        v_mov_b32 v{cs+1}, s{sTAG}
        v_dot2_f32_bf16 v{cs}, v{cx+2}, v{ct+9}, v{cs}""")
        self.bs(cx, 4, vT + 2, rWS, T0, 0, 'sc1', count=False)
        for ctl in ('quad_perm:[1,0,3,2]', 'quad_perm:[2,3,0,1]', 'row_half_mirror', 'row_ror:8'): self.dpp('v_add_f32', cs, cs, cs, ctl)
        a(f"""v_mov_b32 v{cs+2}, v{cs}
        v_mov_b32 v{cs+3}, s{sTAG}
        s_mov_b64 exec, 0xf000f""")
        self.bs(cs, 4, vT + 3, rWS, T3, 0, 'sc1', count=False)
        a("""s_mov_b64 exec, -1
        L_NOC:""")
        V.release(ct, 12)
        def ln2_tile():
            for i in E2: self.pk('add', hh + i, x1 + i, st, bc=(1,), neg=(1,))
            self.round_list([hh + i for i in range(16)])
            for i in E2: self.pk('mul', hh + i, hh + i, st + 1, bc=(1,))
            self.round_list([hh + i for i in range(16)])
            for i in E2: self.pk('mul', hh + i, hh + i, mf + 16 + i)
            self.round_list([hh + i for i in range(16)])
            for i in E2: self.pk('add', hh + i, hh + i, mf + i)
            self.round_list([hh + i for i in range(16)])
        lg.wait('s')
        if PR: a('s_setprio 0')
        self.stamp('cand')
        if o.get('f2pos', 0) == 1: side2()
        if o.get('ccat', 3) == 3: c_clean()
        V.release(kc, 5); V.release(cf)
        ffn_dma(fd[3])
        uu = V.alloc(16); vGr = V.alloc(); vDr = V.alloc(); vXs = V.alloc(); vCL = V.alloc(2, 1)
        def out_calc():
            expand(mf, tb4 + 2)
            for i in E2: self.pk('mul', hh + i, hh + i, mf + i)
            self.round_list([hh + i for i in range(16)])
            for i in E2: self.pk('add', hh + i, hh + i, x1 + i)
            for i in range(8): a(f'v_cvt_pk_bf16_f32 v{op+i}, v{hh+2*i}, v{hh+2*i+1}')
            for q in range(2): self.dw('ds_write_b128', vOT, op + 4 * q, 4, 16 * q)
            S(T3, 'w*(16*144) + L_OT'); va(vOT, [(3, 3, 144), (0, 3, 16)], T3)
        oc = o.get('ocat', 2 if TL else 1); l2 = o.get('l2at', 1 if TL else 0)
        def f_work():
            if TL: f_pre(0); f_pre(1)
            if l2 == 0: ln2_tile()
            if oc == 0: out_calc()
            S(T0, '(w >> 2)*32768 + (w & 3)*32 + L_GU')
            va(vGr, [(4, 2, 8192), (2, 2, 128), (3, 2, 32), (0, 2, 8)]); a(f'v_xor_b32 v{vGr}, s{T0}, v{vGr}')
            S(T0, 'w*64')
            va(vDr, [(2, 1, 512), (3, 1, 4096), (5, 1, 2048), (2, 2, 64), (4, 1, 32), (0, 2, 8)])
            a(f'v_xor_b32 v{vDr}, s{T0}, v{vDr}'); a(f'v_add_u32 v{vDr}, {L_DN}, v{vDr}')
            va(vXs, [(0, 3, 16), (4, 2, 128)], None, L_XS)
            S(T0, 'kq*1024'); a(f'v_add_u32 v{vCL}, s{T0}, v{vL16}')
            va(vCL + 1, [(0, 4, 64)], None, 8192)
            S(sWB, 'fs*8192 + HGR'); S(T7, 'mf*kh*8192 + (kq*8 + w)*256 + wb')
            S(T0, 'w*16 + L_K2'); a(f'v_mov_b32 v{vT}, s{T0}')
            va(vT + 1, [(0, 3, 16)], None, L_K2)
            a(f'v_and_b32 v{vT+4}, 8, v{vL}')
            a(f'v_cmp_eq_u32 {sr(sCMP, 2)}, 0, v{vT+4}')
            self.stamp('oc')
        self.inbox(5, 8, (1, 3, 5, 7), f_work)
        P = sPL
        a(f"""s_min_u32 s{P+1}, s{P}, s{P+4}
        s_max_u32 s{P}, s{P}, s{P+4}
        s_max_u32 s{P+3}, s{P+2}, s{P+6}
        s_min_u32 s{P+2}, s{P+2}, s{P+6}
        s_max_u32 s{P+4}, s{P+1}, s{P+3}
        s_min_u32 s{P+1}, s{P+1}, s{P+3}
        v_mov_b32 v{uu}, s{P}
        v_mov_b32 v{uu+3}, s{P+2}
        v_mov_b32 v{uu+1}, s{P+4}
        v_mov_b32 v{uu+2}, s{P+1}""")
        self.dw('ds_write_b128', vT, uu, 4)
        self.stamp('F2p')
        V.release(big, 8 * len(freg) + 4 * nfa); V.release(gr, 2); V.release(vGR); V.release(vRid)
        ffn = V.alloc(48); ga_ = V.alloc(16); gb_ = V.alloc(16)
        vm.wait('gu')
        self.barrier()
        self.stamp('F2')
        def gu_frags():
            for s in range(8):
                self.tr(ffn + 4 * s, vGr, s * 1024); self.tr(ffn + 4 * s + 2, vGr, s * 1024 + 512)
        a(f"""s_cmp_lt_u32 s{sWAVE}, 4
        s_cbranch_scc1 L_CSEL""")
        fq0, vq0 = list(fq), list(vm.q)
        if not o.get('f4late', 1): ffn_dma(fd[4])
        gu_frags()
        if l2 == 1: ln2_tile()
        if oc == 1: out_calc()
        if o.get('f4late', 1): ffn_dma(fd[4])
        a("""s_branch L_CSELD
        L_CSEL:""")
        lg.reset(); fq[:] = fq0; vm.q = vq0
        if PR: a(f's_setprio {PR}')
        self.r128(uu, vT + 1)
        S(T0, 'w*512 + L_XS'); a(f'v_add_u32 v{vT+2}, s{T0}, v{vL8}')
        S(T0, 'w*4 + L_K3'); a(f'v_mov_b32 v{vT+3}, s{T0}')
        lg.wait_all()
        c4 = uu + 4
        for n, ctl in enumerate(('quad_perm:[1,0,3,2]', 'quad_perm:[2,3,0,1]', 'row_half_mirror')):
            for i in range(4): self.dpp('v_max_u32', c4 + i, uu + 3 - i, uu + i, ctl)
            if n == 2: break
            a(f"""v_max_u32 v{c4+4}, v{c4}, v{c4+2}
            v_max_u32 v{c4+5}, v{c4+1}, v{c4+3}
            v_min_u32 v{c4+6}, v{c4}, v{c4+2}
            v_min_u32 v{c4+7}, v{c4+1}, v{c4+3}
            v_max_u32 v{uu}, v{c4+4}, v{c4+5}
            v_min_u32 v{uu+1}, v{c4+4}, v{c4+5}
            v_max_u32 v{uu+2}, v{c4+6}, v{c4+7}
            v_min_u32 v{uu+3}, v{c4+6}, v{c4+7}""")
        for i in range(4): a(f'v_readfirstlane_b32 s{P+i}, v{c4+i}')
        a(f"""s_bitcmp1_b32 s{sWAVE}, 0
        s_cselect_b32 s{P}, s{P+1}, s{P}
        s_cselect_b32 s{P+2}, s{P+3}, s{P+2}
        s_bitcmp1_b32 s{sWAVE}, 1
        s_cselect_b32 s{P}, s{P+2}, s{P}
        s_and_b32 s{T2}, s{P}, 4095""")
        S(T0, '((15 - (T2 >> 8))*2 + (T2 & 1))*16384 + CAND')
        def sel_work():
            self.stamp('sel')
            if PR: a('s_setprio 0')
            ffn_dma(fd[4], T3)
            gu_frags()
            if l2 == 1: ln2_tile()
            if oc == 1: out_calc()
            S(T2, 'T2*4 + w')
        self.try_load(lambda: (self.bl(uu + 4, 2, vCL + 1, rWS, T0, 0, 'sc1'), self.bl(uu, 4, vCL, rWS, T0, 0, 'sc1')), [uu + 1, uu + 3, uu + 5], vT + 4, sel_work)
        if PR: a(f's_setprio {PR}')
        a(f'ds_write2_b32 v{vT+2}, v{uu}, v{uu+2} offset0:0 offset1:1'); lg.issue()
        for ctl in ('quad_perm:[1,0,3,2]', 'quad_perm:[2,3,0,1]', 'row_half_mirror', 'row_ror:8'): self.dpp('v_add_f32', uu + 4, uu + 4, uu + 4, ctl)
        a(f"""v_cvt_pk_bf16_f32 v{uu+4}, 0, v{uu+4}
        v_ashrrev_i32 v{uu+5}, 31, v{uu+4}
        v_or_b32 v{uu+5}, 0x80000000, v{uu+5}
        v_xor_b32 v{uu+4}, v{uu+4}, v{uu+5}
        v_and_b32 v{uu+4}, s{sMASK}, v{uu+4}
        v_or_b32 v{uu+4}, s{T2}, v{uu+4}""")
        self.dw('ds_write_b32', vT + 3, uu + 4, 1)
        if PR: a('s_setprio 0')
        a('L_CSELD:')
        V.release(vFG); V.release(vFD)
        a(f'v_mov_b32 v{vT}, {L_K3}')
        DP = o.get('dpre', 0)
        if DP: assert fd[4] == 0; vm.wait_all()
        self.barrier()
        self.stamp('xsel')
        self.r128(uu, vT)
        lg.wait_all()
        a(f"""v_max_u32 v{uu+4}, v{uu}, v{uu+1}
        v_max_u32 v{uu+5}, v{uu+2}, v{uu+3}
        v_min_u32 v{uu+6}, v{uu}, v{uu+1}
        v_min_u32 v{uu+7}, v{uu+2}, v{uu+3}
        v_min_u32 v{uu+1}, v{uu+4}, v{uu+5}
        v_max_u32 v{uu}, v{uu+4}, v{uu+5}
        v_max3_u32 v{uu+1}, v{uu+1}, v{uu+6}, v{uu+7}
        v_cndmask_b32 v{vT}, v{uu+1}, v{uu}, {sr(sCMP, 2)}
        v_readfirstlane_b32 s{sK1}, v{uu}
        v_and_b32 v{vT}, 3, v{vT}
        v_readfirstlane_b32 s{sK2}, v{uu+1}
        v_lshl_add_u32 v{vT}, v{vT}, 9, v{vXs}""")
        self.r128(uu + 4, vT)
        if oc < 2:
            for q in range(2): self.r128(op + 4 * q, vOT, q * 8 * 144, 'ot')
        a(f"""s_bfe_u32 s{sROW0}, s{sK1}, {3 | (11 << 16)}
        s_bfe_u32 s{sROW1}, s{sK2}, {3 | (11 << 16)}
        s_sub_u32 s{sROW0}, 2047, s{sROW0}
        s_sub_u32 s{sROW1}, 2047, s{sROW1}
        s_waitcnt lgkmcnt({2 if oc < 2 else 0})""")
        gd = [ga_ + 4 * i for i in range(4)] + [gb_ + 4 * i for i in range(4)]
        for s in range(8):
            a(f'v_mfma_f32_16x16x32_bf16 {vr(gd[s], 4)}, {vr(uu + 4, 4)}, {vr(ffn + 4*s, 4)}, 0')
        if DP:
            for s in range(4):
                self.tr(ffn + 32 + 4 * s, vDr, s * 8192); self.tr(ffn + 32 + 4 * s + 2, vDr, s * 8192 + 1024)
        p0, p1 = uu, uu + 2
        hk = V.alloc(5, 4)
        for p, b in ((p0, 0), (p1, 4)):
            a(f'v_add_f32 v{p}, v{gd[b]}, v{gd[b+1]+1}')
            a(f'v_add_f32 v{p+1}, v{gd[b+2]+2}, v{gd[b+3]+3}')
        a(f"""v_add_f32 v{p0}, v{p0}, v{p0+1}
        v_add_f32 v{p1}, v{p1}, v{p1+1}
        v_permlane16_swap_b32 v{p1}, v{p1+1}
        v_add_f32 v{hk}, v{p0}, v{p1+1}
        v_add_f32 v{hk+2}, v{p0}, v{p1+1}
        v_mov_b32 v{hk+1}, s{sTAG}
        v_mov_b32 v{hk+3}, s{sTAG}
        v_permlane32_swap_b32 v{hk}, v{hk+2}
        s_cmp_ge_u32 s{sJ}, 28
        s_cbranch_scc1 L_NOHP
        s_mov_b64 exec, 0xffff""")
        self.bs2([(hk, 4, vL16, T7, 0)])
        a(f"""s_mov_b64 exec, -1
        L_NOHP:
        v_add_u32 v{hk+4}, s{T7}, v{vL16}""")
        self.stamp('Hpub')
        vG3 = V.alloc(3, 1)
        def g_prep():
            va(vG3, [(2, 1, 128), (5, 1, 16)], None, L_ACT)
            va(vG3 + 1, [(4, 2, 56 * 128), (0, 3, 16)])
            va(vG3 + 2, [(0, 2, 4096)] if TL else [(0, 1, 64 * 4096), (1, 1, 2 * 4096)])
            S(sWB, '(kq*8 + w)*(4*56*128) + fs*128 + GGR')
            S(sU0, ('(kq*8 + w)*16384' if TL else '(((kq & 1)*4 + (w >> 1))*8 + (w & 1)*4 + (kq >> 1))*4096') + ' + x*64 + (j >> 2)*4 + INB + 3072')
        vOr = V.alloc(); vOa = V.alloc()
        def out_store():
            S(T0, 'rt*128 + w*16'); va(vOr, [(3, 3, 1)], T0)
            S(T2, 'T0*2048 + cb*128'); S(T3, 'T2 + 16384')
            va(vOa, [(3, 3, 2048), (0, 3, 16)])
            for q in range(2):
                if q: a(f'v_add_u32 v{vOr}, 8, v{vOr}')
                a(f"""v_cmp_ne_u32 vcc, s{sROW0}, v{vOr}
                v_cmp_ne_u32 {sr(sCMP, 2)}, s{sROW1}, v{vOr}
                s_and_b64 exec, vcc, {sr(sCMP, 2)}""")
                self.bs(op + 4 * q, 4, vOa, rOUT, (T2, T3)[q], 0, o.get('outmod', 'sc1'), count=False)
                a('s_mov_b64 exec, -1')
        lg.wait('ot')
        if o.get('outat', 1) == 0: assert oc < 2; out_store()
        fz = V.alloc(4)
        sFR, sFK, sFC0 = T4, T5, T6
        a(f"""s_bitcmp1_b32 s{sX if TL else sRT}, {1 if TL else 2}
        s_cselect_b32 s{sFR}, s{sROW1}, s{sROW0}
        s_cselect_b32 s{sFK}, s{sK2}, s{sK1}
        s_cmp_lg_u32 s{sWAVE}, 7
        s_cbranch_scc1 L_NOFZ
        s_cmp_lg_u32 s2, 0
        s_cbranch_scc1 L_NONON
        v_mov_b32 v{vT+2}, s{sTAG}
        s_mov_b64 exec, 1""")
        self.bs(vT + 2, 1, vZ, rWS, '0', 0, 'sc1', count=False)
        a(f"""s_mov_b64 exec, -1
        L_NONON:""")
        S(sFC0, '(x >> 2)*2 + (x & 1)' if TL else '(rt >> 3)*2 + (rt & 1)')
        S(T7, '(cb*8 + x)*(56*128) + GGR' if TL else '(cb*8 + (rt >> 2)*2 + (rt & 1))*(56*128) + GGR')
        S(sU, 'T4*2048 + cb*128 + T6*32')
        va(vT + 6, [(0, 1, 4), (2, 1, 8), (1, 1, 16)])
        S(T0, 'T6*32 + L_GB'); a(f'v_add_u32 v{vT+1}, s{T0}, v{vT+6}')
        a(f'ds_read_b32 v{fz+2}, v{vT+1}')
        S(sK1, '((T4 >> 7)*2 + ((T5 >> 2) & 1))*16384 + cb*256 + T6*64 + CAND'); S(sK2, 'k1 + 4096')
        va(vT + 7, [(0, 1, 8), (2, 1, 16), (1, 1, 32)])
        ld_fz = lambda: (self.bl(st, 2, vT + 7, rWS, sK1, 0, 'sc1'), self.bl(fz, 2, vT + 7, rWS, sK2, 0, 'sc1'))
        q_ = list(vm.q); ld_fz(); vm.q = q_
        a(f"""s_and_b32 s{T0}, s{sFK}, s{sMASK}
        s_ashr_i32 s{T2}, s{T0}, 31
        s_andn2_b32 s{T2}, 0x7fff0000, s{T2}
        s_or_b32 s{T2}, s{T2}, 0x80000000
        s_xor_b32 s{T0}, s{T0}, s{T2}
        v_mov_b32 v{fz+3}, s{T0}
        v_mul_f32 v{fz+3}, s{sL2E}, v{fz+3}
        v_exp_f32 v{fz+3}, -v{fz+3}
        v_add_f32 v{fz+3}, 1.0, v{fz+3}
        v_rcp_f32 v{fz+3}, v{fz+3}""")
        self.round1(fz + 3)
        a(f"""L_NOFZ:
        s_cmp_lt_u32 s{sJ}, 28
        s_cbranch_scc1 L_HSEC""")
        if oc == 2:
            out_calc()
            self.barrier()
            for q in range(2): self.r128(op + 4 * q, vOT, q * 8 * 144)
            lg.wait_all()
        a("""s_branch L_GSEC
        L_HSEC:""")
        a(f"""s_cmp_lt_u32 s{sWAVE}, 4
        s_cbranch_scc1 L_HW""")
        if oc == 2: out_calc()
        g_prep()
        a("""s_branch L_NOH
        L_HW:""")
        S(T0, 'w*256 + wb')
        va(vT, [(4, 2, 2048), (0, 4, 16)])
        S(T2, 'w*32 + L_ACT'); va(vT + 1, [(5, 1, 128), (2, 1, 16), (1, 1, 8), (3, 1, 4), (0, 1, 2)], T2)
        a(f"""s_cmp_lg_u32 s{sLOC}, 0
        s_cbranch_scc1 L_HLOC""")
        self.spoll([(q, 1, T0, q * 2048 + 1024 + 252) for q in range(4)], range(4))
        a('L_HLOC:')
        self.stamp('Hpre')
        g, u = ga_, ga_ + 4
        self.try_load(lambda: [self.bl(ga_ + 4 * m, 4, vT, rWS, T0, m * 1024, 'sc1') for m in range(2)], [g + 1, g + 3, u + 1, u + 3], vT + 2, lambda: (g_prep(), out_calc() if oc == 2 else None))
        a(f"""v_permlane32_swap_b32 v{g}, v{g+2}
        v_permlane32_swap_b32 v{u}, v{u+2}
        v_add_f32 v{g}, v{g}, v{g+2}
        v_add_f32 v{u}, v{u}, v{u+2}
        v_mov_b32 v{g+2}, v{g}
        v_mov_b32 v{u+2}, v{u}
        v_permlane16_swap_b32 v{g}, v{g+2}
        v_permlane16_swap_b32 v{u}, v{u+2}
        v_add_f32 v{g}, v{g}, v{g+2}
        v_add_f32 v{u}, v{u}, v{u+2}""")
        self.round2(g, u)
        self.silu(g, vT + 2)
        a(f"""v_mul_f32 v{g}, v{g}, v{u}
        v_cvt_pk_bf16_f32 v{g}, v{g}, v{g}
        ds_write_b16 v{vT+1}, v{g}
        L_NOH:""")
        vm.wait_all()
        self.barrier()
        self.stamp('Hok')
        for s in range(4):
            self.r128(ga_ + 4 * s, vG3, s * 32, ('ac', s))
            if not DP: self.tr(ffn + 32 + 4 * s, vDr, s * 8192, ('ac', s)); self.tr(ffn + 32 + 4 * s + 2, vDr, s * 8192 + 1024, ('ac', s))
        for s in range(4):
            lg.wait(('ac', s))
            a(f'v_mfma_f32_32x32x16_bf16 {vr(gb_, 16)}, {vr(ga_ + 4*s, 4)}, {vr(ffn + 32 + 4*s, 4)}, ' + ('0' if s == 0 else vr(gb_, 16)))
        if oc == 2:
            for q in range(2): self.r128(op + 4 * q, vOT, q * 8 * 144)
        a(f"""v_mov_b32_dpp v{gb_+2}, v{gb_} row_ror:8 row_mask:0xf bank_mask:0xf
        v_mov_b32 v{gb_+1}, s{sTAG}
        v_mov_b32 v{gb_+3}, s{sTAG}
        s_mov_b32 exec_lo, 0x00ff00ff
        s_mov_b32 exec_hi, 0x00ff00ff""")
        self.bs(gb_, 4, vG3 + 1, rWS, sWB, 0, 'sc1')
        a('s_mov_b64 exec, 15')
        self.bs(gb_ + 1, 1, vG3 + 2, rWS, sU0, 0, 'sc1')
        a('s_mov_b64 exec, -1')
        self.stamp('Gpub')
        def hclean():
            a('s_mov_b64 exec, 0xffff')
            self.bs(hk, 4, hk + 4, rWS, '0', 0, 'sc1', count=False)
            a('s_mov_b64 exec, -1')
        if o.get('hclean', 3) == 1: hclean()
        lg.wait_all()
        a('L_GSEC:')
        if o.get('outat', 1) == 1: out_store()
        a(f"""s_cmp_lt_u32 s{sJ}, 16
        s_cbranch_scc1 L_GF""")
        if o.get('outat', 1) == 2: out_store()
        if o.get('hclean', 3) >= 2:
            a(f"""s_cmp_ge_u32 s{sJ}, 28
            s_cbranch_scc1 L_FIN
            s_waitcnt vmcnt(0)""")
            hclean()
        a("""s_branch L_FIN
        L_GF:""")
        self.inbox(6, 8, range(7))
        self.stamp('Gpre')
        a('s_barrier')
        if o.get('hclean', 3) == 2: hclean()
        if o.get('hclean', 3) == 3:
            a(f"""s_cmp_eq_u32 s{sWAVE}, 7
            s_cbranch_scc1 L_G7
            s_barrier""")
            if o.get('outat', 1) == 2: out_store()
            hclean()
            a("""s_branch L_FIN
            L_G7:""")
        a(f"""s_cmp_lg_u32 s{sWAVE}, 7
        s_cbranch_scc1 L_FIN""")
        S(T0, 'T7 + 4096')
        gg = [ga_ + 4 * i for i in range(4)] + [uu + 4 * i for i in range(3)]
        fo = V.alloc(6, 2)
        def g_work():
            a(f's_waitcnt vmcnt(7)')
            self.finish_load('none', ld_fz, [st + 1, fz + 1], vT)
            for q, r_ in enumerate((st, fz + 2, fz)): self.unpack(fo + 2 * q, fo + 2 * q + 1, r_)
        self.try_load(lambda: [self.bl(gg[n], 4, vL16, rWS, (T7, T0)[n >> 2], (n & 3) * 1024, 'sc1') for n in range(7)],
                      [gg[n] + 1 + 2 * e for n in range(7) for e in range(2)], vT, g_work)
        self.stamp('Gok')
        if o.get('hclean', 3) == 3: a('s_barrier')
        y0, y1 = gg[0], gg[0] + 1
        for lo, hi in ((0, 1), (2, 3), (4, 5), (0, 2), (4, 6), (0, 4)):
            for e in (0, 2): a(f'v_add_f32 v{gg[lo]+e}, v{gg[lo]+e}, v{gg[hi]+e}')
        a(f'v_mov_b32 v{y1}, v{gg[0]+2}')
        for y in (y0, y1): self.dpp('v_add_f32', y, y, y, 'row_ror:8')
        for sw in ('v_permlane16_swap_b32', 'v_permlane32_swap_b32'):
            for y in (y0, y1): a(f'v_mov_b32 v{y+2}, v{y}')
            for y in (y0, y1): a(f'{sw} v{y}, v{y+2}')
            self.pk('add', y0, y0, y0 + 2)
        a(f"""v_mov_b32_dpp v{y0+2}, v{y0} quad_perm:[0,2,0,2] row_mask:0xf bank_mask:0xf
        v_mov_b32_dpp v{y0+3}, v{y0} quad_perm:[1,3,1,3] row_mask:0xf bank_mask:0xf
        v_mov_b32_dpp v{y0}, v{y1} quad_perm:[0,2,0,2] row_mask:0xf bank_mask:0xf
        v_mov_b32_dpp v{y1}, v{y1} quad_perm:[1,3,1,3] row_mask:0xf bank_mask:0xf
        s_mov_b32 exec_lo, 0x33333333
        v_mov_b32 v{y0}, v{y0+2}
        v_mov_b32 v{y1}, v{y0+3}
        s_mov_b32 exec_lo, -1""")
        self.round2(y0, y1)
        self.pk('mul', y0, y0, fz + 3, bc=(1,))
        self.round2(y0, y1)
        self.pk('add', y0, y0, fo)
        self.round2(y0, y1)
        self.pk('mul', y0, y0, fo + 2)
        self.round2(y0, y1)
        self.pk('add', y0, y0, fo + 4)
        a(f'v_cvt_pk_bf16_f32 v{y0}, v{y0}, v{y1}')
        a('s_mov_b64 exec, 0xff')
        self.bs(y0, 1, vT + 6, rOUT, sU, 0, 'sc1')
        a('s_mov_b64 exec, -1')
        if o.get('outat', 1) == 2: out_store()
        if o.get('hclean', 3) == 3: hclean()
        a('L_FIN:')
        if o.get('exfil'):
            self.stamp('fin')
            a('s_waitcnt vmcnt(0)')
            self.stamp('finw')
            a(f'''s_lshl3_add_u32 s{T0}, s2, s{sWAVE}
            s_cmp_lg_u32 s{T0}, {o.get('exwho', 7)}
            s_cbranch_scc1 L_END
            v_readlane_b32 s{T0}, v255, 0
            v_readlane_b32 s{T1}, v255, 1
            v_readlane_b32 s{T2}, v255, 2
            s_sub_u32 s{T2}, s{T2}, s{T1}
            s_max_i32 s{T2}, s{T2}, 0
            s_min_u32 s{T2}, s{T2}, 10000
            s_mul_i32 s{T2}, s{T2}, 10
            s_add_u32 s{T2}, s{T2}, 6000
            L_PAD:
            s_memrealtime {sr(sTM, 2)}
            s_waitcnt lgkmcnt(0)
            s_sub_u32 s{T1}, s{sTM}, s{T0}
            s_cmp_lt_u32 s{T1}, s{T2}
            s_cbranch_scc1 L_PAD''')
        if o.get('padfin'):
            a(f'''s_lshl3_add_u32 s{T0}, s2, s{sWAVE}
            s_cmp_lg_u32 s{T0}, 7
            s_cbranch_scc1 L_END
            s_memrealtime {sr(sTM, 2)}
            s_waitcnt lgkmcnt(0)
            s_mov_b32 s{T0}, s{sTM}
            L_PAD2:
            s_memrealtime {sr(sTM, 2)}
            s_waitcnt lgkmcnt(0)
            s_sub_u32 s{T1}, s{sTM}, s{T0}
            s_cmp_lt_u32 s{T1}, {o['padfin']}
            s_cbranch_scc1 L_PAD2''')
        if self.prof:
            a('s_waitcnt vmcnt(0) lgkmcnt(0)')
            self.stamp('end')
            a(f's_memrealtime {sr(sTM, 2)}')
            a('s_waitcnt lgkmcnt(0)')
            a(f'v_writelane_b32 v255, s{sTM}, 61')
            S(T0, '(wg*8 + w)*256 + STAMPS')
            a(f'v_writelane_b32 v255, s{sSPIN}, 62')
            a(f'v_lshlrev_b32 v{vT+1}, 2, v{vL}')
            a(f'buffer_store_dword v255, v{vT+1}, {sr(rWS, 4)}, s{T0} offen')
            S(T0, 'T0 + 0x100000')
            a(f'buffer_store_dword v254, v{vT+1}, {sr(rWS, 4)}, s{T0} offen')
        a('L_END:')
        a('s_endpgm')
        return self

    def text(self):
        a = self.a
        npad = a.fix_hazards()
        errs = a.check_waits([NAME], maxvisit=int(os.environ.get('MAXVISIT', 4)))
        for e in errs: print('WAITERR', e, file=sys.stderr)
        assert not errs
        hdr = open(os.path.join(os.path.dirname(os.path.abspath(__file__)), 'header.txt')).read()
        s = hdr + '; @launch grid=(256,1,1) block=(512,1,1) lds=163840\n'
        s += '.amdgcn_target "amdgcn-amd-amdhsa--gfx950"\n.text\n'
        s += f'.globl {NAME}\n.p2align 8\n.type {NAME},@function\n'
        body = a.text()
        import subprocess, tempfile
        with tempfile.TemporaryDirectory() as td:
            open(td + '/t.s', 'w').write('.amdgcn_target "amdgcn-amd-amdhsa--gfx950"\n.text\n' + body.replace('CODE_KB', '20480'))
            subprocess.run(['clang', '-x', 'assembler', '-target', 'amdgcn-amd-amdhsa', '-mcpu=gfx950', '-c', td + '/t.s', '-o', td + '/t.o'], check=True)
            subprocess.run(['llvm-objcopy', '-O', 'binary', '-j', '.text', td + '/t.o', td + '/t.bin'], check=True)
            size = os.path.getsize(td + '/t.bin')
        print('; code bytes', size, file=sys.stderr)
        s += body.replace('CODE_KB', str((size // 1024 + 1) * 1024))
        s += '.p2align 10\n.fill 768, 4, 0xbf800000\n'
        s += '.section .rodata,"a"\n' + kernel_desc(NAME, 256, 102)
        print(f'; vgpr hi {self.V.hi}, nops {npad}, instrs {sum(1 for k, _ in a.items if k == "ins")}', file=sys.stderr)
        return s


if __name__ == '__main__':
    import argparse, json
    ap = argparse.ArgumentParser()
    ap.add_argument('-o', default='/dev/stdout')
    ap.add_argument('--prof', action='store_true')
    ap.add_argument('--opts', default='{}')
    args = ap.parse_args()
    g = Gen(args.prof, json.loads(args.opts)).build()
    t = g.text()
    open(args.o, 'w').write(t)
    if args.prof: open(args.o + '.stamps', 'w').write(json.dumps(g.stnames))
```
